```python
import torch

def _softmax(x, axis=-1):
    return torch.softmax(x, dim=axis)
def _gelu(x):
    return torch.nn.functional.gelu(x, approximate="tanh")
def _silu(x):
    return torch.nn.functional.silu(x)
def _sigmoid(x):
    return torch.sigmoid(x)
def _layernorm(x, axis=-1, eps=1e-5):
    m = x.mean(dim=axis, keepdim=True)
    v = x.var(dim=axis, keepdim=True, unbiased=False)
    return (x - m) / torch.sqrt(v + eps)
def _scatter_add(tgt, idx, src, axis=0):
    return tgt.clone().index_add_(axis, idx, src)
def _segment_sum(src, seg, n):
    out = torch.zeros((n,) + src.shape[1:], dtype=src.dtype)
    return out.index_add_(0, seg, src)
def _pad(x, pw):
    flat = tuple(v for pair in reversed(pw) for v in pair)
    return torch.nn.functional.pad(x, flat)

kernel_name = 'interleave_layers__linear_attn_block__mixer_token_mlp__prompt'

def setup_inputs():

    _w = (lambda a: (lambda t: t.to(torch.bfloat16) if t.is_floating_point() else t)(torch.as_tensor(a)))
    def _A_setup():
        B, S, D = 1, 2048, 512
        return {
            "x": _w((lambda *s: torch.randn(*s, dtype=torch.bfloat16) * 0.05)(B, S, D)),
            "wqkv": _w((lambda *s: torch.randn(*s, dtype=torch.bfloat16) * 0.05)(D, 3 * D)),
            "wo": _w((lambda *s: torch.randn(*s, dtype=torch.bfloat16) * 0.05)(D, D)),
        }
    _A_in = _A_setup()

    def _B_setup():
        B, S, D, F = 1, 2048, 512, 1792
        return {
            "x": _w((lambda *s: torch.randn(*s, dtype=torch.bfloat16) * 0.05)(B, S, D)),
            "w1": _w((lambda *s: torch.randn(*s, dtype=torch.bfloat16) * 0.8)(S, F) * (S ** -0.5)),
            "b1": _w((lambda *s: torch.randn(*s, dtype=torch.bfloat16) * 12.8)(F) * 0.02),
            "w2": _w((lambda *s: torch.randn(*s, dtype=torch.bfloat16) * 0.4)(F, S) * (F ** -0.5)),
            "b2": _w((lambda *s: torch.randn(*s, dtype=torch.bfloat16) * 3.2)(S) * 0.02),
        }
    _B_in = _B_setup()

    return {
        "A_x": _A_in["x"],
        "A_wqkv": _A_in["wqkv"],
        "A_wo": _A_in["wo"],
        "B_x": _B_in["x"],
        "B_w1": _B_in["w1"],
        "B_b1": _B_in["b1"],
        "B_w2": _B_in["w2"],
        "B_b2": _B_in["b2"],
    }

def reference(A_x, A_wqkv, A_wo, B_x, B_w1, B_b1, B_w2, B_b2):
    def _A_ref(x, wqkv, wo):
        B, S, D = x.shape
        H = 32; Dh = D // H
        qkv = (lambda x, *d: x.permute(*d))((x @ wqkv).reshape(B, S, 3, H, Dh), 2, 0, 3, 1, 4)
        q, k, v = qkv[0], qkv[1], qkv[2]
        phi = lambda t: torch.where(t > 0, t + 1, torch.exp(t)) + 1e-6
        pq, pk = phi(q), phi(k)
        kv = torch.einsum("bhsd,bhse->bhde", pk, v)
        z = torch.einsum("bhsd->bhd", pk)
        num = torch.einsum("bhqd,bhde->bhqe", pq, kv)
        den = torch.einsum("bhqd,bhd->bhq", pq, z)[..., None] + 1e-6
        o = num / den
        return (lambda x, *d: x.permute(*d))(o, 0, 2, 1, 3).reshape(B, S, D) @ wo

    def _B_ref(x, w1, b1, w2, b2):
        B, S, D = x.shape
        h = _layernorm(x, axis=-1)
        u = torch.einsum("bsd,sf->bdf", h, w1) + b1
        u = _gelu(u)
        y = torch.einsum("bdf,fs->bds", u, w2) + b2
        return (lambda x, *d: x.permute(*d))(y, 0, 2, 1)

    x = A_x
    x = x + _A_ref(_layernorm(x, axis=-1), A_wqkv, A_wo)
    x = x + _B_ref(_layernorm(x, axis=-1), B_w1, B_b1, B_w2, B_b2)
    x = x + _A_ref(_layernorm(x, axis=-1), A_wqkv, A_wo)
    x = x + _B_ref(_layernorm(x, axis=-1), B_w1, B_b1, B_w2, B_b2)
    return x
```

```python
import re

TRANS = ("v_exp_f32", "v_log_f32", "v_rcp_f32", "v_rsq_f32", "v_sqrt_f32", "v_sin_f32", "v_cos_f32")

def regs_of(tok):
    tok = tok.strip()
    neg = tok.lstrip("-").replace("abs(", "").replace(")", "").replace("|", "")
    m = re.fullmatch(r"([vas])\[(\d+):(\d+)\]", neg)
    if m:
        return {(m.group(1), i) for i in range(int(m.group(2)), int(m.group(3)) + 1)}
    m = re.fullmatch(r"([vas])(\d+)", neg)
    if m:
        return {(m.group(1), int(m.group(2)))}
    if neg in ("vcc", "vcc_lo", "vcc_hi"):
        return {("x", "vcc")}
    if neg in ("exec", "exec_lo", "exec_hi"):
        return {("x", "exec")}
    if neg == "m0":
        return {("x", "m0")}
    return set()

class Ins:
    def __init__(self, text):
        self.text = text
        t = text.split(";")[0].strip()
        parts = t.split(None, 1)
        self.op = parts[0]
        rest = parts[1] if len(parts) > 1 else ""
        brk = " ".join(re.findall(r"\w+:\[[^\]]*\]", re.sub(r"[vas]\[\d+:\d+\]", "", rest)))
        rest = re.sub(r"\s(op_sel|op_sel_hi|neg_lo|neg_hi|quad_perm):\[[^\]]*\]", "", rest)
        ops = [o.strip() for o in rest.split(",")] if rest else []
        self.mods = ""
        if ops:
            sp = ops[-1].split(None, 1)
            ops[-1] = sp[0]
            self.mods = sp[1] if len(sp) > 1 else ""
        self.mods += " " + brk
        self.ops = ops
        op = self.op
        self.mfma = op.startswith("v_mfma")
        self.valu = op.startswith("v_") and not self.mfma
        self.salu = op.startswith("s_")
        self.ds = op.startswith("ds_")
        self.vmem = op.startswith("buffer_") or op.startswith("global_")
        self.trans = op.replace("_e64", "").replace("_e32", "") in TRANS
        self.dot = op.startswith("v_dot")
        self.dpp = "dpp" in op or "quad_perm" in self.mods or "row_" in self.mods
        self.perml = op.startswith("v_permlane")
        self.w = set(); self.r = set(); self.srcC = set(); self.srcAB = set(); self.sdata = set()
        R = [regs_of(o) for o in ops]
        if self.mfma:
            self.w = R[0]; self.srcAB = R[1] | R[2]; self.srcC = R[3]; self.r = self.srcAB | self.srcC
            self.passes = 8 if "32x32" in op else 4
        elif self.vmem:
            lds = " lds" in (" " + self.mods)
            if op in ("buffer_inv", "buffer_wbl2"):
                pass
            elif "store" in op or "atomic" in op:
                for x in R: self.r |= x
                self.sdata = R[0] if op.startswith("buffer_") else R[1]
                self.wide = op.endswith("x4") or op.endswith("x3")
            elif lds:
                for x in R: self.r |= x
                self.r |= {("x", "m0")}
                self.ldsdma = True
            else:
                self.w = R[0]
                for x in R[1:]: self.r |= x
        elif self.ds:
            if op.startswith("ds_write"):
                for x in R: self.r |= x
            else:
                self.w = R[0]
                for x in R[1:]: self.r |= x
        elif self.valu:
            if self.perml and "swap" in op:
                self.w = R[0] | R[1]; self.r = R[0] | R[1]
            elif op.startswith("v_cmp"):
                self.w = R[0]
                for x in R[1:]: self.r |= x
            elif op.startswith("v_readfirstlane") or op.startswith("v_readlane"):
                self.w = R[0]
                for x in R[1:]: self.r |= x
            else:
                self.w = R[0]
                for x in R[1:]: self.r |= x
                if op.startswith(("v_fmac", "v_dot2c", "v_writelane")) or self.dpp:
                    self.r |= R[0]
                if op.startswith(("v_add_co", "v_sub_co", "v_addc_co")):
                    self.w |= R[1]
        elif self.salu:
            if op.startswith(("s_cmp", "s_cbranch", "s_branch", "s_waitcnt", "s_nop", "s_barrier", "s_sleep", "s_endpgm", "s_setprio", "s_bitcmp")):
                for x in R: self.r |= x
            else:
                if R: self.w = R[0]
                for x in R[1:]: self.r |= x
                if "saveexec" in op: self.w |= {("x", "exec")}
        self.states = 1
        if op == "s_nop":
            self.states = int(ops[0]) + 1

def need_wait(p, c):
    n = 0
    vg = lambda s: {x for x in s if x[0] in "va"}
    sg = lambda s: {x for x in s if x[0] == "s" or x == ("x", "vcc")}
    if p.valu and not p.dot and c.mfma and (vg(p.w) & c.r): n = max(n, 2)
    if p.dot and (vg(p.w) & (c.r | c.w)):
        if c.op == p.op and not (vg(p.w) & (regs_of(c.ops[1]) | regs_of(c.ops[2]))): pass
        else: n = max(n, 3)
    if p.mfma:
        big = {8: 12, 4: 8}[p.passes]
        if c.mfma:
            if p.w & c.srcAB: n = max(n, big)
            if p.w & c.srcC and p.w != c.srcC: n = max(n, big - 2)
            if p.w & c.srcC and p.w == c.srcC and p.passes != c.passes: n = max(n, big - 2)
        elif c.valu or c.vmem or c.ds:
            if p.w & (c.r | c.w): n = max(n, big)
        if c.valu and (p.srcC & c.w): n = max(n, {8: 7, 4: 3}[p.passes])
    if p.valu:
        if sg(p.w):
            if c.vmem and (sg(p.w) & c.r): n = max(n, 5)
            if c.valu and (sg(p.w) & c.r):
                n = max(n, 4 if c.op.startswith(("v_readlane", "v_writelane")) else 2)
            if c.salu and (sg(p.w) & c.r) and not c.op.startswith("s_cbranch"): n = max(n, 1)
        if vg(p.w) & c.r:
            if c.op.startswith(("v_readlane", "v_readfirstlane")): n = max(n, 1)
            if c.valu and c.dpp: n = max(n, 2)
            if c.perml: n = max(n, 2)
            if p.trans and c.valu and not c.trans: n = max(n, 1)
            if p.trans and (c.mfma): n = max(n, 2)
    if p.salu and ("x", "m0") in p.w and getattr(c, "ldsdma", False): n = max(n, 1)
    if p.vmem and p.sdata and getattr(p, "wide", False) and (p.sdata & c.w):
        n = max(n, 2 if c.valu else 1)
    return n

class Asm:
    def __init__(self):
        self.out = []
        self.hist = []
        self.vm = 0
        self.vm_done = 0
        self.lg = 0
        self.lg_done = 0
        self.nlabel = 0
        self.bytes_est = 0
    def raw(self, s):
        self.out.append(s)
    def c(self, s):
        self.out.append("    ; " + s)
    def label(self, name):
        self.out.append(name + ":")
    def newlabel(self, p="L"):
        self.nlabel += 1
        return f"{p}_{self.nlabel}"
    def __call__(self, text):
        ins = Ins(text)
        need = 0; dist = 0
        for p in reversed(self.hist[-24:]):
            w = need_wait(p, ins)
            if w - dist > need: need = w - dist
            dist += p.states
            if dist >= 20: break
        while need > 0:
            k = min(need, 16)
            nop = Ins(f"s_nop {k-1}")
            self.out.append(f"    s_nop {k-1}")
            self.hist.append(nop)
            need -= k
        self.out.append("    " + text)
        self.hist.append(ins)
        if ins.vmem and ins.op not in ("buffer_inv", "buffer_wbl2"):
            self.vm += 1
            return self.vm - 1
        if ins.ds:
            self.lg += 1
            return self.lg - 1
        return None
    def wait(self, vm=None, lg=None):
        parts = []
        if vm is not None and vm >= self.vm_done:
            n = min(self.vm - vm - 1, 63)
            parts.append(f"vmcnt({n})"); self.vm_done = self.vm - n
        if lg is not None and lg >= self.lg_done:
            n = min(self.lg - lg - 1, 15)
            parts.append(f"lgkmcnt({n})"); self.lg_done = self.lg - n
        if parts:
            self("s_waitcnt " + " ".join(parts))
    def wait_vm_all(self, force=False):
        if force or self.vm_done < self.vm:
            self("s_waitcnt vmcnt(0)"); self.vm_done = self.vm
    def wait_lg_all(self, force=False):
        if force or self.lg_done < self.lg:
            self("s_waitcnt lgkmcnt(0)"); self.lg_done = self.lg
    def text(self):
        return "\n".join(self.out) + "\n"

def vr(a, n=1):
    return f"v{a}" if n == 1 else f"v[{a}:{a+n-1}]"
def ar(a, n=1):
    return f"a{a}" if n == 1 else f"a[{a}:{a+n-1}]"
def sr(a, n=1):
    return f"s{a}" if n == 1 else f"s[{a}:{a+n-1}]"
```

```python
import sys, struct
from contextlib import contextmanager
from asmlib import Asm, vr, ar, sr

NAME = "interleave_layers__linear_attn_block__mixer_token_mlp__prompt"
DIAG = "--diag" in sys.argv
STOP = None
for a_ in sys.argv:
    if a_.startswith("--stop="): STOP = a_.split("=")[1]
OPT = {}
for a_ in sys.argv:
    if a_.startswith("-D"):
        k_, v_ = a_[2:].split("="); OPT[k_] = int(v_)
def opt(k, d): return OPT.get(k, d)

def f2u(x): return struct.unpack("<I", struct.pack("<f", x))[0]
def fl(x): return "0x%08x" % f2u(x)

FL_PQ = [0x0000, 0x1000]; FL_HT = [0x0400, 0x1400]; FL_U = [0x0800, 0x1800]; FL_X2 = 0x0C00
KVF = [0x2000, 0x90000]; KVP = [0x8000, 0x96000]; ST = [0x11E000, 0x15E000]
SELFP = 0x90000
PQ = [0x200000, 0x400000]; HT = [0x600000, 0x800000]; U = [0xA00000, 0xC00000]; X2 = 0xE00000
TS = 0x1000000
WS_BYTES = 268435456
L_WQ = 0; L_WO = 32768; L_S = 98304; LDS_BYTES = 163840
sW = 3
SX, SWQKV, SWO, SW1, SW2, SWS, SOUT, SDBG, SB1, SB2, SCODE = 4, 8, 12, 16, 20, 24, 28, 32, 36, 40, 44
sST, sDT, sRB, sHP, sDT3, sFT, sP3, sRH, sKH, sWB, sTO, sONES, sEPS6, sB = 48, 49, 50, 51, 52, 53, 54, 55, 56, 57, 58, 59, 60, 61
sT0, sT1, sT2, sT3, sT4, sT5 = 62, 63, 64, 65, 66, 67
sSO = 68
sW1K = 69
sTS = 70
sKA = 76
vL, vL16, vTA, vTB, vT0, vT1, vT2, vT3 = 0, 1, 2, 3, 4, 5, 6, 7
XR = 8; CSQ = 16; CSK = 32; CSV = 33; vB2 = 34; vRS = 35; vMU = 36; vHH = 37; vT4 = 38; vTSV = 39
LOC = 40

a = Asm()
nstamp = [0]
stamp_names = []

@contextmanager
def cond():
    st = (a.vm, a.vm_done, a.lg, a.lg_done)
    yield
    a.vm, a.vm_done, a.lg, a.lg_done = st[0], min(st[1], st[0]), st[2], min(st[3], st[2])
    a("s_nop 0")

def stamp(name):
    if not DIAG: return
    k = nstamp[0]; nstamp[0] += 1; stamp_names.append(name)
    a(f"s_memrealtime {sr(sTS,2)}")
    a("s_waitcnt lgkmcnt(0)"); a.lg_done = a.lg
    a(f"v_writelane_b32 v{vTSV}, s{sTS}, {k}")

def srd(base, ptr, nbytes):
    a(f"s_mov_b32 s{base}, s{ptr}")
    a(f"s_and_b32 s{base+1}, s{ptr+1}, 0xffff")
    a(f"s_mov_b32 s{base+2}, {nbytes:#x}")
    a(f"s_mov_b32 s{base+3}, 0x20000")

def set_exec(mask):
    lo, hi = mask & 0xffffffff, (mask >> 32) & 0xffffffff
    if mask == (1 << 64) - 1: a("s_mov_b64 exec, -1")
    else:
        a(f"s_mov_b32 exec_lo, {lo:#x}"); a(f"s_mov_b32 exec_hi, {hi:#x}")

def poll(issue, check, code):
    top = a.newlabel("POLL"); done = a.newlabel("PDONE")
    a.label(top)
    issue()
    a.wait_vm_all(force=True)
    check()
    a(f"s_cbranch_vccz {done}")
    a(f"s_sub_u32 s{sTO}, s{sTO}, 1")
    a(f"s_cbranch_scc0 {top}")
    a(f"s_mov_b32 s{sTO}, 0")
    a(f"v_mov_b32 v{vT0}, {code}")
    a(f"v_mov_b32 v{vT1}, 0")
    a(f"buffer_store_dword v{vT0}, v{vT1}, {sr(SDBG,4)}, 0 offen")
    a("s_waitcnt vmcnt(0)")
    a.vm_done = a.vm
    a.label(done)
    a("s_nop 0")

def poll_flags(sbase_expr_emit, n, code):
    a(f"v_min_u32 v{vT2}, {n-1}, v{vL}")
    a(f"v_lshlrev_b32 v{vT2}, 2, v{vT2}")
    def issue(): a(f"buffer_load_dword v{vT3}, v{vT2}, {sr(SWS,4)}, s{sT0} offen sc1")
    def check(): a(f"v_cmp_ne_u32 vcc, 1, v{vT3}")
    poll(issue, check, code)

def publish_flag():
    a.wait_vm_all(force=True)
    a("s_barrier")
    skip = a.newlabel("NOFLAG")
    a(f"s_cmp_lg_u32 s{sW}, 0")
    a(f"s_cbranch_scc1 {skip}")
    with cond():
        a(f"v_mov_b32 v{vT0}, 1")
        a(f"v_mov_b32 v{vT1}, 0")
        set_exec(1)
        a(f"buffer_store_dword v{vT0}, v{vT1}, {sr(SWS,4)}, s{sT0} offen sc1")
        set_exec((1 << 64) - 1)
    a.label(skip)

def finish():
    if DIAG:
        stamp("end")
        a(f"s_lshl_b32 s{sT0}, s{sB}, 2")
        a(f"s_add_u32 s{sT0}, s{sT0}, s{sW}")
        a(f"s_lshl_b32 s{sT0}, s{sT0}, 8")
        a(f"s_add_u32 s{sT0}, s{sT0}, {TS:#x}")
        a(f"v_lshlrev_b32 v{vT0}, 2, v{vL}")
        a(f"buffer_store_dword v{vTSV}, v{vT0}, {sr(SWS,4)}, s{sT0} offen")
    a("s_endpgm")

class Stop(Exception): pass
def phase_end(name):
    stamp(name)
    if STOP == name:
        finish(); raise Stop()

def tr_base(dst_a, dst_b, sel_sgpr, region):
    a(f"v_bfe_u32 v{vT0}, v{vL}, 2, 2")
    a(f"v_lshl_add_u32 v{vT0}, v{vHH}, 2, v{vT0}")
    a(f"v_lshlrev_b32 v{dst_a}, 7, v{vT0}")
    a(f"v_bfe_u32 v{vT1}, v{vL}, 3, 1")
    a(f"v_lshl_add_u32 v{dst_a}, v{vT1}, 6, v{dst_a}")
    a(f"v_bfe_u32 v{vT1}, v{vL}, 4, 1")
    a(f"v_lshl_add_u32 v{dst_a}, v{vT1}, 5, v{dst_a}")
    a(f"v_and_b32 v{vT1}, 3, v{vL}")
    a(f"v_lshl_add_u32 v{dst_a}, v{vT1}, 3, v{dst_a}")
    a(f"s_lshl_b32 s{sT5}, s{sel_sgpr}, 6")
    a(f"v_xor_b32 v{dst_a}, s{sT5}, v{dst_a}")
    a(f"v_add_u32 v{dst_a}, {region}, v{dst_a}")
    a(f"v_xor_b32 v{dst_b}, 64, v{dst_a}")

def dma_voff(dst, dst2, pitch, scol):
    a(f"v_lshrrev_b32 v{vT0}, 3, v{vL}")
    a(f"s_mov_b32 s{sT5}, {pitch}")
    a(f"v_mul_lo_u32 v{dst}, v{vT0}, s{sT5}")
    a(f"v_bfe_u32 v{vT1}, v{vL}, 4, 1")
    a(f"v_lshlrev_b32 v{vT1}, 2, v{vT1}")
    a(f"v_and_b32 v{vT0}, 7, v{vL}")
    a(f"v_xor_b32 v{vT0}, v{vT0}, v{vT1}")
    a(f"v_lshl_add_u32 v{dst}, v{vT0}, 4, v{dst}")
    a(f"v_add_u32 v{dst}, s{scol}, v{dst}")
    a(f"v_add_u32 v{dst2}, {8*pitch-1024}, v{dst}")

def wload(kind, k0, k1, va=124):
    pitch, srdw, nks = (3584, SW1, 32) if kind == 1 else (4096, SW2, 28)
    vA, vB, tA, tB = va, va + 1, va + 2, va + 3
    a.c(f"wload W{kind} ks {k0}..{k1}")
    if kind == 1: a(f"s_lshl_b32 s{sT4}, s{sFT}, 7")
    else: a(f"s_lshl_b32 s{sT4}, s{sST}, 7")
    dma_voff(vA, vB, pitch, sT4)
    tr_base(tA, tB, sRH, f"s{sWB}")
    a(f"s_mul_i32 s{sSO}, s{sW}, {nks*16*pitch}")
    if k0: a(f"s_add_u32 s{sSO}, s{sSO}, {k0*16*pitch}")
    NS = 8
    ids = {}
    def dma(ks):
        a(f"s_add_u32 m0, s{sWB}, {(ks % NS)*2048}")
        a(f"buffer_load_dwordx4 v{vA}, {sr(srdw,4)}, s{sSO} offen lds")
        ids[ks] = a(f"buffer_load_dwordx4 v{vB}, {sr(srdw,4)}, s{sSO} offen offset:1024 lds")
        a(f"s_add_u32 s{sSO}, s{sSO}, {16*pitch}")
    for ks in range(k0, min(k1, k0 + NS)): dma(ks)
    prev = None
    for ks in range(k0, k1):
        a.wait(vm=ids[ks])
        o = (ks % NS) * 2048
        a(f"ds_read_b64_tr_b16 {ar(ks*8+0,2)}, v{tA} offset:{o}")
        a(f"ds_read_b64_tr_b16 {ar(ks*8+2,2)}, v{tA} offset:{o+1024}")
        a(f"ds_read_b64_tr_b16 {ar(ks*8+4,2)}, v{tB} offset:{o}")
        last = a(f"ds_read_b64_tr_b16 {ar(ks*8+6,2)}, v{tB} offset:{o+1024}")
        if prev is not None and prev[0] + NS < k1:
            a.wait(lg=prev[1]); dma(prev[0] + NS)
        prev = (ks, last)
    a.wait_lg_all()

def wqkv_dma(vW):
    pass

def wqkv_voff(vW):
    a(f"v_lshrrev_b32 v{vT0}, 2, v{vL}")
    a(f"s_lshl_b32 s{sT0}, s{sW}, 4")
    a(f"v_add_u32 v{vT0}, s{sT0}, v{vT0}")
    a(f"s_movk_i32 s{sT1}, 3072")
    a(f"v_mul_lo_u32 v{vW}, v{vT0}, s{sT1}")
    a(f"v_and_b32 v{vT0}, 3, v{vL}")
    a(f"v_lshl_add_u32 v{vW}, v{vT0}, 4, v{vW}")
    a(f"s_lshl_b32 s{sT0}, s{sHP}, 6")
    a(f"v_add_u32 v{vW}, s{sT0}, v{vW}")

def wqkv_issue(vW, kb):
    a(f"s_mov_b32 s{sSO}, {kb*64*3072}")
    for seg in (1, 2, 0):
        a(f"s_add_u32 m0, s{sW1K}, {seg*32768 - seg*1024 + kb*4096}")
        a("s_nop 0")
        i = a(f"buffer_load_dwordx4 v{vW}, {sr(SWQKV,4)}, s{sSO} offen offset:{seg*1024} lds")
    return i

def prologue():
    a(f"s_cmp_ge_u32 s2, 256")
    a(f"s_cbranch_scc1 L_EXIT")
    a(f"s_load_dwordx16 {sr(sKA,16)}, s[0:1], 0")
    a(f"s_load_dwordx4 {sr(sKA+16,4)}, s[0:1], 64")
    a(f"s_load_dwordx2 {sr(sKA+20,2)}, s[0:1], 80")
    a(f"s_mov_b32 s{sB}, s2")
    a(f"v_lshrrev_b32 v{vT0}, 6, v0")
    a(f"v_and_b32 v{vL}, 63, v0")
    a(f"v_readfirstlane_b32 s{sW}, v{vT0}")
    a(f"v_lshlrev_b32 v{vL16}, 4, v{vL}")
    a(f"v_lshrrev_b32 v{vHH}, 5, v{vL}")
    if DIAG: a(f"v_mov_b32 v{vTSV}, 0")
    stamp("start")
    a(f"s_and_b32 s{sT0}, s{sB}, 7")
    a(f"s_lshr_b32 s{sT1}, s{sB}, 3")
    a(f"s_lshr_b32 s{sT2}, s{sT1}, 3")
    a(f"s_lshl_b32 s{sST}, s{sT0}, 2")
    a(f"s_add_u32 s{sST}, s{sST}, s{sT2}")
    a(f"s_and_b32 s{sDT}, s{sT1}, 7")
    a(f"s_lshr_b32 s{sT2}, s{sT1}, 4")
    a(f"s_lshl_b32 s{sRB}, s{sT0}, 1")
    a(f"s_add_u32 s{sRB}, s{sRB}, s{sT2}")
    a(f"s_and_b32 s{sHP}, s{sT1}, 15")
    a(f"s_and_b32 s{sT2}, s{sT0}, 1")
    a(f"s_lshl_b32 s{sT2}, s{sT2}, 2")
    a(f"s_and_b32 s{sDT3}, s{sT1}, 3")
    a(f"s_add_u32 s{sDT3}, s{sDT3}, s{sT2}")
    a(f"s_lshr_b32 s{sT2}, s{sT0}, 1")
    a(f"s_mul_i32 s{sFT}, s{sT2}, 7")
    a(f"s_lshr_b32 s{sP3}, s{sT1}, 2")
    a(f"s_add_u32 s{sFT}, s{sFT}, s{sP3}")
    a(f"s_lshr_b32 s{sRH}, s{sW}, 1")
    a(f"s_and_b32 s{sKH}, s{sW}, 1")
    a(f"s_lshl_b32 s{sW1K}, s{sW}, 10")
    a(f"s_lshl_b32 s{sWB}, s{sW}, 14")
    a(f"s_add_u32 s{sWB}, s{sWB}, {L_S}")
    a(f"s_mov_b32 s{sTO}, 400000")
    a(f"s_mov_b32 s{sONES}, 0x3f803f80")
    a(f"s_mov_b32 s{sEPS6}, {fl(1e-6)}")
    a("s_waitcnt lgkmcnt(0)")
    srd(SX, sKA + 0, 2048 * 512 * 2)
    srd(SWQKV, sKA + 2, 512 * 1536 * 2)
    srd(SWS, sKA + 20, WS_BYTES)
    srd(SWO, sKA + 4, 512 * 512 * 2)
    srd(SW1, sKA + 8, 2048 * 1792 * 2)
    srd(SB1, sKA + 10, 1792 * 2)
    srd(SW2, sKA + 12, 1792 * 2048 * 2)
    srd(SB2, sKA + 14, 2048 * 2)
    srd(SOUT, sKA + 16, 2048 * 512 * 2)
    srd(SDBG, sKA + 18, 256)

def init_poison():
    P = LOC
    for i in range(4): a(f"v_mov_b32 v{P+i}, -1")
    skip = a.newlabel("NOPOIS")
    a(f"s_cmp_ge_u32 s{sB}, 32")
    a(f"s_cbranch_scc1 {skip}")
    with cond():
        a(f"s_mul_i32 s{sT0}, s{sB}, 18432")
        a(f"s_add_u32 s{sT0}, s{sT0}, s{sW1K}")
        for j in range(4):
            a(f"buffer_store_dwordx4 {vr(P,4)}, v{vL16}, {sr(SWS,4)}, s{sT0} offen sc1")
            a(f"s_add_u32 s{sT0}, s{sT0}, 4096")
        s2 = a.newlabel("NOP5")
        a(f"s_cmp_ge_u32 s{sW}, 2")
        a(f"s_cbranch_scc1 {s2}")
        a(f"buffer_store_dwordx4 {vr(P,4)}, v{vL16}, {sr(SWS,4)}, s{sT0} offen sc1")
        a.label(s2)
    a.label(skip)

def init_misc():
    P = LOC
    a(f"s_mul_i32 s{sT0}, s{sB}, 5120")
    a(f"s_add_u32 s{sT0}, s{sT0}, {SELFP:#x}")
    a(f"s_add_u32 s{sT1}, s{sT0}, s{sW1K}")
    a(f"buffer_store_dwordx4 {vr(P,4)}, v{vL16}, {sr(SWS,4)}, s{sT1} offen sc1")
    a(f"s_add_u32 s{sT0}, s{sT0}, 4096")
    a(f"v_lshlrev_b32 v{vT0}, 2, v{vL}")
    a(f"s_lshl_b32 s{sT1}, s{sW}, 8")
    a(f"s_add_u32 s{sT0}, s{sT0}, s{sT1}")
    a(f"buffer_store_dword v{P}, v{vT0}, {sr(SWS,4)}, s{sT0} offen sc1")
    if opt("CODEPF", 1):
        a(f"s_getpc_b64 {sr(SCODE,2)}")
        a.label("L_PC")
        a(f"s_and_b32 s{SCODE+1}, s{SCODE+1}, 0xffff")
        a(f"s_mov_b32 s{SCODE+2}, L_END - L_PC")
        a(f"s_mov_b32 s{SCODE+3}, 0x20000")
        a(f"s_lshr_b32 s{sT0}, s{sB}, 3")
        a(f"s_lshl_b32 s{sT0}, s{sT0}, 12")
        a(f"s_add_u32 s{sT0}, s{sT0}, s{sW1K}")
        a(f"buffer_load_dwordx4 {ar(252,4)}, v{vL16}, {sr(SCODE,4)}, s{sT0} offen")
    a(f"s_lshl_b32 s{sT0}, s{sST}, 1")
    a(f"s_add_u32 s{sT0}, s{sT0}, s{sRH}")
    a(f"s_lshl_b32 s{sT0}, s{sT0}, 5")
    a(f"v_and_b32 v{vT0}, 31, v{vL}")
    a(f"v_add_u32 v{vT0}, s{sT0}, v{vT0}")
    a(f"v_lshlrev_b32 v{vT1}, 1, v{vT0}")
    a(f"buffer_load_ushort v{vB2}, v{vT1}, {sr(SB2,4)}, 0 offen")
    a(f"v_lshlrev_b32 v{vT0}, 10, v{vT0}")
    a(f"v_lshl_add_u32 v{vT4}, v{vHH}, 4, v{vT0}")
    a(f"s_lshl_b32 s{sT0}, s{sDT}, 1")
    a(f"s_add_u32 s{sT0}, s{sT0}, s{sKH}")
    a(f"s_lshl_b32 s{sT0}, s{sT0}, 6")
    a(f"v_add_u32 v{vT4}, s{sT0}, v{vT4}")
    a(f"buffer_load_dwordx4 {vr(XR,4)}, v{vT4}, {sr(SX,4)}, 0 offen")
    a(f"buffer_load_dwordx4 {vr(XR+4,4)}, v{vT4}, {sr(SX,4)}, 0 offen offset:32")

XF = 128
def p1(L):
    ACCK, ACCV = LOC, LOC + 16
    RR, MM = LOC + 32, LOC + 48
    S0, S1, Q0, Q1 = 104, 105, 106, 107
    vTQ = 112; XA = 116
    vW, vXA, vXB = 113, 114, 115
    PK, VV = 116, 104
    WFR = 0; NWF = 3
    ONESF = 24; CK, CV = 32, 48
    a.c(f"======== P1 layer {L}")
    a(f"v_bfe_u32 v{vT0}, v{vL}, 2, 2")
    a(f"v_lshl_add_u32 v{vT0}, v{vHH}, {3 if L == 0 else 2}, v{vT0}")
    a(f"v_lshlrev_b32 v{vTQ}, 6, v{vT0}")
    a(f"v_bfe_u32 v{vT1}, v{vL}, 4, 1")
    a(f"v_lshl_add_u32 v{vTQ}, v{vT1}, 5, v{vTQ}")
    a(f"v_and_b32 v{vT1}, 3, v{vL}")
    a(f"v_lshl_add_u32 v{vTQ}, v{vT1}, 3, v{vTQ}")
    toff = 256 if L == 0 else 512
    for i in range(4): a(f"v_accvgpr_write_b32 a{ONESF+i}, s{sONES}")
    for r in (S0, S1, Q0, Q1): a(f"v_mov_b32 v{r}, 0")
    xid = {}
    wid = {}
    if L == 0:
        init_poison()
        wqkv_voff(vW)
        a(f"s_lshl_b32 s{sT0}, s{sRB}, 2")
        a(f"s_add_u32 s{sT0}, s{sT0}, s{sW}")
        a(f"s_lshl_b32 s{sT0}, s{sT0}, 15")
        a(f"v_lshrrev_b32 v{vT0}, 3, v{vL}")
        a(f"v_lshlrev_b32 v{vT0}, 10, v{vT0}")
        a(f"v_add_u32 v{vT0}, s{sT0}, v{vT0}")
        a(f"v_and_b32 v{vT1}, 7, v{vL}")
        a(f"v_lshrrev_b32 v{vT2}, 4, v{vL}")
        a(f"v_xor_b32 v{vT1}, v{vT1}, v{vT2}")
        a(f"v_lshl_add_u32 v{vXA}, v{vT1}, 4, v{vT0}")
        a(f"v_xor_b32 v{vXB}, 64, v{vXA}")
        a(f"v_add_u32 v{vXB}, 8192, v{vXB}")
        def xdma(kb):
            for j in range(4):
                a(f"s_add_u32 m0, s{sWB}, {(kb&3)*4096 + j*1024}")
                a(f"s_mov_b32 s{sT1}, {kb*128 + (j>>1)*16384}")
                i = a(f"buffer_load_dwordx4 v{vXA if j%2==0 else vXB}, {sr(SX,4)}, s{sT1} offen lds")
            xid[kb] = i
        for kb in range(8):
            wid[kb] = wqkv_issue(vW, kb)
            if kb < 4: xdma(kb)
        init_misc()
        a(f"v_and_b32 v{vT0}, 31, v{vL}")
        a(f"v_bfe_u32 v{vT1}, v{vL}, 1, 3")
        a(f"v_xor_b32 v{vT1}, v{vT1}, v{vHH}")
        a(f"v_lshlrev_b32 v{vT0}, 7, v{vT0}")
        a(f"v_add_u32 v{vT0}, s{sWB}, v{vT0}")
        for t in range(4):
            a(f"v_xor_b32 v{vT2}, {2*t}, v{vT1}")
            a(f"v_lshl_add_u32 v{XA+t}, v{vT2}, 4, v{vT0}")
    else:
        a(f"s_lshl_b32 s{sT0}, s{sRB}, 1")
        a(f"s_add_u32 s{sT0}, s{sT0}, s{sRH}")
        a(f"s_lshl_b32 s{sT0}, s{sT0}, 5")
        a(f"s_add_u32 s{sT0}, s{sT0}, {FL_X2}")
        poll_flags(None, 8, 0x40)
        stamp("p1_flag")
        a(f"s_lshl_b32 s{sSO}, s{sRB}, 2")
        a(f"s_add_u32 s{sSO}, s{sSO}, s{sW}")
        a(f"s_lshl_b32 s{sSO}, s{sSO}, 15")
        a(f"s_add_u32 s{sSO}, s{sSO}, {X2:#x}")
        for s in range(32):
            xid[s] = a(f"buffer_load_dwordx4 {vr(XF+4*s,4)}, v{vL16}, {sr(SWS,4)}, s{sSO} offen offset:{(s&3)*1024} sc1")
            if s & 3 == 3 and s < 31: a(f"s_add_u32 s{sSO}, s{sSO}, 4096")
        a("s_barrier")

    rg = {}
    def RG(s):
        b = WFR + (s % NWF) * 8
        o = s * 1024
        a(f"ds_read_b64_tr_b16 {ar(b,2)}, v{vTQ} offset:{32768+o}")
        a(f"ds_read_b64_tr_b16 {ar(b+2,2)}, v{vTQ} offset:{32768+o+toff}")
        a(f"ds_read_b64_tr_b16 {ar(b+4,2)}, v{vT3} offset:{o}")
        rg[s] = a(f"ds_read_b64_tr_b16 {ar(b+6,2)}, v{vT3} offset:{o+toff}")
    a(f"v_add_u32 v{vT3}, 65536, v{vTQ}")
    def MG(s):
        b = WFR + (s % NWF) * 8
        x = vr(XF + 4 * s, 4)
        ck = "0" if s == 0 else vr(ACCK, 16); cv = "0" if s == 0 else vr(ACCV, 16)
        a(f"v_mfma_f32_32x32x16_bf16 {vr(ACCK,16)}, {x}, {ar(b,4)}, {ck}")
        for j in range(2):
            a(f"v_dot2_f32_bf16 v{S0+(j&1)}, v{XF+4*s+j}, s{sONES}, v{S0+(j&1)}")
            a(f"v_dot2_f32_bf16 v{Q0+(j&1)}, v{XF+4*s+j}, v{XF+4*s+j}, v{Q0+(j&1)}")
        a(f"v_mfma_f32_32x32x16_bf16 {vr(ACCV,16)}, {x}, {ar(b+4,4)}, {cv}")
        for j in range(2, 4):
            a(f"v_dot2_f32_bf16 v{S0+(j&1)}, v{XF+4*s+j}, s{sONES}, v{S0+(j&1)}")
            a(f"v_dot2_f32_bf16 v{Q0+(j&1)}, v{XF+4*s+j}, v{XF+4*s+j}, v{Q0+(j&1)}")
        if L == 0:
            a(f"v_mfma_f32_32x32x16_bf16 {ar(CK,16)}, {ar(ONESF,4)}, {ar(b,4)}, {'0' if s==0 else ar(CK,16)}")
            a(f"v_mfma_f32_32x32x16_bf16 {ar(CV,16)}, {ar(ONESF,4)}, {ar(b+4,4)}, {'0' if s==0 else ar(CV,16)}")
    if L == 0:
        for kb in range(8):
            a.wait(vm=max(xid[kb], wid[kb]))
            if kb <= 4:
                a("s_barrier")
            if kb == 0:
                stamp("p1_first")
                skip = a.newlabel("NOINIT")
                a(f"s_cmp_ge_u32 s{sB}, 32")
                a(f"s_cbranch_scc1 {skip}")
                a(f"s_cmp_lg_u32 s{sW}, 0")
                a(f"s_cbranch_scc1 {skip}")
                with cond():
                    a(f"v_mov_b32 v{vT0}, 1")
                    a(f"s_lshl_b32 s{sT0}, s{sB}, 2")
                    a(f"v_mov_b32 v{vT1}, s{sT0}")
                    set_exec(1)
                    a(f"buffer_store_dword v{vT0}, v{vT1}, {sr(SDBG,4)}, 0 offen offset:128 sc1")
                    set_exec((1 << 64) - 1)
                a.label(skip)
            xr = None
            for t in range(4):
                xr = a(f"ds_read_b128 {vr(XF+16*kb+4*t,4)}, v{XA+t} offset:{(kb&3)*4096}")
            for s in range(4 * kb, 4 * kb + 2):
                if s not in rg: RG(s)
            a.wait(lg=xr)
            if kb < 4: xdma(kb + 4)
            for s in range(4 * kb, 4 * kb + 4):
                a.wait(lg=rg[s])
                nxt = s + 2
                if nxt < 32 and (nxt < 4 * kb + 4 or kb >= 4): RG(nxt)
                MG(s)
    else:
        RG(0); RG(1)
        for s in range(32):
            a.wait(vm=xid[s], lg=rg[s])
            if s + 2 < 32: RG(s + 2)
            MG(s)
    stamp("p1_gemm")
    a(f"v_add_f32 v{S0}, v{S0}, v{S1}")
    a(f"v_add_f32 v{Q0}, v{Q0}, v{Q1}")
    a(f"v_mov_b32 v{S1}, v{S0}")
    a(f"v_mov_b32 v{Q1}, v{Q0}")
    a(f"v_permlane32_swap_b32 v{S0}, v{S1}")
    a(f"v_permlane32_swap_b32 v{Q0}, v{Q1}")
    a(f"v_add_f32 v{S0}, v{S0}, v{S1}")
    a(f"v_add_f32 v{Q0}, v{Q0}, v{Q1}")
    a(f"v_mul_f32 v{vMU}, {fl(1/512)}, v{S0}")
    a(f"v_mul_f32 v{Q0}, {fl(1/512)}, v{Q0}")
    a(f"v_fma_f32 v{Q0}, -v{vMU}, v{vMU}, v{Q0}")
    a(f"v_max_f32 v{Q0}, 0, v{Q0}")
    a(f"v_add_f32 v{Q0}, {fl(1e-5)}, v{Q0}")
    a(f"v_rsq_f32 v{vRS}, v{Q0}")
    a(f"v_cmp_ne_u32 vcc, 0, v{vHH}")
    a(f"v_lshlrev_b32 v{vT0}, 2, v{vL}")
    a(f"v_add_u32 v{vT0}, s{sWB}, v{vT0}")
    a(f"v_cndmask_b32 v{S0}, v{vRS}, v{vMU}, vcc")
    a(f"ds_write_b32 v{vT0}, v{S0}")
    a(f"v_lshlrev_b32 v{vT1}, 4, v{vHH}")
    a(f"v_add_u32 v{vT1}, s{sWB}, v{vT1}")
    if L == 0:
        a(f"v_accvgpr_read_b32 v{CSK}, a{CK}")
        a(f"v_accvgpr_read_b32 v{CSV}, a{CV}")
    a.wait_lg_all()
    ids = []
    for q in range(4):
        a(f"ds_read_b128 {vr(MM+4*q,4)}, v{vT1} offset:{128+32*q}")
        ids.append(a(f"ds_read_b128 {vr(RR+4*q,4)}, v{vT1} offset:{32*q}"))
    T1 = 124
    for q in range(4):
        a.wait(lg=ids[q])
        for i in range(4 * q, 4 * q + 4):
            a(f"v_fma_f32 v{ACCK+i}, -v{MM+i}, v{CSK}, v{ACCK+i}")
            a(f"v_fma_f32 v{ACCV+i}, -v{MM+i}, v{CSV}, v{ACCV+i}")
        for i in range(4 * q, 4 * q + 4):
            a(f"v_fma_f32 v{ACCK+i}, v{ACCK+i}, v{RR+i}, s{sEPS6}")
            a(f"v_mul_f32 v{ACCV+i}, v{ACCV+i}, v{RR+i}")
        for i in range(4 * q, 4 * q + 4):
            a(f"v_mul_f32 v{T1+(i&3)}, {fl(1.4426950408889634)}, v{ACCK+i}")
            a(f"v_max_f32 v{ACCK+i}, s{sEPS6}, v{ACCK+i}")
        for i in range(4 * q, 4 * q + 4):
            a(f"v_exp_f32_e64 v{T1+(i&3)}, v{T1+(i&3)} clamp")
        a(f"v_cvt_pk_bf16_f32 v{VV+2*q}, v{ACCV+4*q}, v{ACCV+4*q+1}")
        a(f"v_cvt_pk_bf16_f32 v{VV+2*q+1}, v{ACCV+4*q+2}, v{ACCV+4*q+3}")
        for i in range(4 * q, 4 * q + 4):
            a(f"v_add_f32 v{ACCK+i}, v{ACCK+i}, v{T1+(i&3)}")
        a(f"v_cvt_pk_bf16_f32 v{PK+2*q}, v{ACCK+4*q}, v{ACCK+4*q+1}")
        a(f"v_cvt_pk_bf16_f32 v{PK+2*q+1}, v{ACCK+4*q+2}, v{ACCK+4*q+3}")
    KVA, ZA = RR, MM
    a(f"v_mfma_f32_32x32x16_bf16 {vr(KVA,16)}, {vr(PK,4)}, {vr(VV,4)}, 0")
    a(f"v_mfma_f32_32x32x16_bf16 {vr(ZA,16)}, {vr(PK,4)}, {ar(ONESF,4)}, 0")
    a(f"v_mfma_f32_32x32x16_bf16 {vr(KVA,16)}, {vr(PK+4,4)}, {vr(VV+4,4)}, {vr(KVA,16)}")
    a(f"v_mfma_f32_32x32x16_bf16 {vr(ZA,16)}, {vr(PK+4,4)}, {ar(ONESF,4)}, {vr(ZA,16)}")
    a(f"v_bfe_u32 v{vT0}, v{vL}, 4, 1")
    a(f"v_cmp_ne_u32 vcc, 0, v{vT0}")
    a(f"v_lshl_add_u32 v{vT0}, v{vT0}, 1, v{vHH}")
    a(f"v_mul_u32_u24 v{vT0}, 17, v{vT0}")
    a(f"v_and_b32 v{vT1}, 15, v{vL}")
    a(f"v_add_u32 v{vT0}, v{vT0}, v{vT1}")
    a(f"v_lshlrev_b32 v{vT0}, 5, v{vT0}")
    a(f"v_add_u32 v{vT0}, s{sWB}, v{vT0}")
    for j in range(8): a(f"v_cndmask_b32 v{ACCK+j}, v{KVA+j}, v{KVA+8+j}, vcc")
    a(f"ds_write_b128 v{vT0}, {vr(ACCK,4)} offset:1024")
    a(f"ds_write_b128 v{vT0}, {vr(ACCK+4,4)} offset:1040")
    for j in range(8): a(f"v_cndmask_b32 v{ACCK+8+j}, v{ZA+j}, v{ZA+8+j}, vcc")
    set_exec(0x0001000100010001)
    a(f"ds_write_b128 v{vT0}, {vr(ACCK+8,4)} offset:{1024+512}")
    a(f"ds_write_b128 v{vT0}, {vr(ACCK+12,4)} offset:{1040+512}")
    set_exec((1 << 64) - 1)
    if L == 0:
        a(f"v_and_b32 v{vT2}, 31, v{vL}")
        a(f"v_lshlrev_b32 v{vT2}, 2, v{vT2}")
        def issue(): a(f"buffer_load_dword v{vT3}, v{vT2}, {sr(SDBG,4)}, 0 offen offset:128 sc1")
        def check(): a(f"v_cmp_ne_u32 vcc, 1, v{vT3}")
        poll(issue, check, 0x10)
    a(f"s_mul_i32 s{sT0}, s{sW}, 544")
    a(f"v_add_u32 v{vT0}, s{sT0}, v{vL16}")
    a(f"v_add_u32 v{vT1}, {L_S}, v{vT0}")
    a(f"s_lshl_b32 s{sT1}, s{sHP}, 4")
    a(f"s_add_u32 s{sT1}, s{sT1}, s{sRB}")
    a(f"s_mul_i32 s{sT1}, s{sT1}, 2176")
    a(f"s_add_u32 s{sT1}, s{sT1}, {KVP[L]:#x}")
    a.wait_lg_all()
    a("s_barrier")
    for w in range(4): a(f"ds_read_b128 {vr(RR+4*w,4)}, v{vT1} offset:{1024+16384*w}")
    a.wait_lg_all()
    for j in range(4):
        a(f"v_add_f32 v{RR+j}, v{RR+j}, v{RR+4+j}")
        a(f"v_add_f32 v{RR+8+j}, v{RR+8+j}, v{RR+12+j}")
    for j in range(4): a(f"v_add_f32 v{RR+j}, v{RR+j}, v{RR+8+j}")
    set_exec((1 << 34) - 1)
    a(f"buffer_store_dwordx4 {vr(RR,4)}, v{vT0}, {sr(SWS,4)}, s{sT1} offen sc1")
    set_exec((1 << 64) - 1)
    stamp("p1_kvpub")
    a(f"s_lshl_b32 s{sT4}, s{sDT}, 7")
    dma_voff(vXA, vXB, 1024, sT4)
    a(f"s_lshl_b32 s{sSO}, s{sW}, 17")
    a(f"s_lshl_b32 s{sT0}, s{sW}, 14")
    for j in range(8):
        a(f"s_add_u32 m0, s{sT0}, {L_WO + j*2048}")
        a("s_nop 0")
        a(f"buffer_load_dwordx4 v{vXA}, {sr(SWO,4)}, s{sSO} offen lds")
        a(f"buffer_load_dwordx4 v{vXB}, {sr(SWO,4)}, s{sSO} offen offset:1024 lds")
        if j < 7: a(f"s_add_u32 s{sSO}, s{sSO}, 16384")
    ACCQ = LOC
    NQ = 4
    rq = {}
    def RQ(s):
        b = (s % NQ) * 4
        a(f"ds_read_b64_tr_b16 {ar(b,2)}, v{vTQ} offset:{s*1024}")
        rq[s] = a(f"ds_read_b64_tr_b16 {ar(b+2,2)}, v{vTQ} offset:{s*1024+toff}")
    for s in range(3): RQ(s)
    for s in range(32):
        a.wait(lg=rq[s])
        if s + 3 < 32: RQ(s + 3)
        b = (s % NQ) * 4
        a(f"v_mfma_f32_32x32x16_bf16 {vr(ACCQ,16)}, {ar(b,4)}, {vr(XF+4*s,4)}, {'0' if s==0 else vr(ACCQ,16)}")
        if L == 0:
            a(f"v_mfma_f32_32x32x16_bf16 {vr(CSQ,16)}, {ar(b,4)}, {ar(ONESF,4)}, {'0' if s==0 else vr(CSQ,16)}")
    a(f"s_lshl_b32 s{sT0}, s{sRB}, 2")
    a(f"s_add_u32 s{sT0}, s{sT0}, s{sW}")
    a(f"s_lshl_b32 s{sT0}, s{sT0}, 4")
    a(f"s_add_u32 s{sT0}, s{sT0}, s{sHP}")
    a(f"s_lshl_b32 s{sT0}, s{sT0}, 11")
    a(f"s_add_u32 s{sT1}, s{sT0}, {PQ[L]:#x}")
    TQ = LOC + 16
    for i in range(16): a(f"v_fma_f32 v{ACCQ+i}, -v{vMU}, v{CSQ+i}, v{ACCQ+i}")
    for i in range(16): a(f"v_fma_f32 v{ACCQ+i}, v{ACCQ+i}, v{vRS}, s{sEPS6}")
    for i in range(16):
        a(f"v_mul_f32 v{TQ+i}, {fl(1.4426950408889634)}, v{ACCQ+i}")
        a(f"v_max_f32 v{ACCQ+i}, s{sEPS6}, v{ACCQ+i}")
        a(f"v_exp_f32_e64 v{TQ+i}, v{TQ+i} clamp")
    for h in range(2):
        for i in range(8 * h, 8 * h + 8): a(f"v_add_f32 v{ACCQ+i}, v{ACCQ+i}, v{TQ+i}")
        for j in range(4): a(f"v_cvt_pk_bf16_f32 v{PK+4*h+j}, v{ACCQ+8*h+2*j}, v{ACCQ+8*h+2*j+1}")
        a(f"buffer_store_dwordx4 {vr(PK+4*h,4)}, v{vL16}, {sr(SWS,4)}, s{sT1} offen offset:{1024*h} sc1")
    a(f"s_lshl_b32 s{sT0}, s{sRB}, 4")
    a(f"s_add_u32 s{sT0}, s{sT0}, s{sHP}")
    a(f"s_lshl_b32 s{sT0}, s{sT0}, 2")
    a(f"s_add_u32 s{sT0}, s{sT0}, {FL_PQ[L]}")
    publish_flag()
    phase_end(f"p1_{L}")

def a1(L):
    a.c("======== A1 reducer")
    skip = a.newlabel("NOA1")
    a(f"s_cmp_ge_u32 s{sRB}, 4")
    a(f"s_cbranch_scc1 {skip}")
    a(f"s_cmp_lg_u32 s{sW}, 3")
    a(f"s_cbranch_scc1 {skip}")
    with cond():
        B = 128
        a(f"s_mul_i32 s{sT1}, s{sHP}, {16*2176}")
        a(f"s_mul_i32 s{sT2}, s{sRB}, 544")
        a(f"s_add_u32 s{sT1}, s{sT1}, s{sT2}")
        a(f"s_add_u32 s{sT1}, s{sT1}, {KVP[L]:#x}")
        set_exec((1 << 34) - 1)
        def issue():
            a(f"s_mov_b32 s{sSO}, s{sT1}")
            for p in range(16):
                a(f"buffer_load_dwordx4 {vr(B+4*p,4)}, v{vL16}, {sr(SWS,4)}, s{sSO} offen offset:{(p&1)*2176} sc1")
                if p & 1 and p < 15: a(f"s_add_u32 s{sSO}, s{sSO}, {2*2176}")
        def check():
            a(f"v_max3_u32 v{vT3}, v{B}, v{B+4}, v{B+8}")
            for p in range(3, 15, 2): a(f"v_max3_u32 v{vT3}, v{vT3}, v{B+4*p}, v{B+4*p+4}")
            a(f"v_max_u32 v{vT3}, v{vT3}, v{B+60}")
            a(f"v_cmp_eq_u32 vcc, -1, v{vT3}")
        poll(issue, check, 0x20)
        n = 16
        while n > 1:
            n //= 2
            for p in range(n):
                for j in range(4): a(f"v_add_f32 v{B+4*p+j}, v{B+4*p+j}, v{B+4*(p+n)+j}")
        a(f"v_cvt_pk_bf16_f32 v{B+4}, v{B}, v{B+1}")
        a(f"v_cvt_pk_bf16_f32 v{B+5}, v{B+2}, v{B+3}")
        a(f"v_mov_b32_dpp v{B+6}, v{B+4} quad_perm:[1,1,3,3] row_mask:0xf bank_mask:0xf")
        a(f"v_mov_b32_dpp v{B+7}, v{B+5} quad_perm:[1,1,3,3] row_mask:0xf bank_mask:0xf")
        a(f"v_lshlrev_b32 v{vT0}, 3, v{vL}")
        a(f"s_lshl_b32 s{sT1}, s{sHP}, 2")
        a(f"s_add_u32 s{sT1}, s{sT1}, s{sRB}")
        a(f"s_mul_i32 s{sT1}, s{sT1}, 384")
        a(f"s_add_u32 s{sT1}, s{sT1}, {KVF[L]:#x}")
        set_exec(0x155555555)
        a(f"buffer_store_dwordx4 {vr(B+4,4)}, v{vT0}, {sr(SWS,4)}, s{sT1} offen sc1")
        set_exec((1 << 64) - 1)
    a.label(skip)
    stamp("a1")

def p3active_skip(lbl):
    a(f"s_cmp_ge_u32 s{sP3}, 7")
    a(f"s_cbranch_scc1 {lbl}")

def wload1(k0, k1):
    if k0 >= k1: return
    skip = a.newlabel("NOW1")
    p3active_skip(skip)
    with cond(): wload(1, k0, k1)
    a.label(skip)

def p2(L):
    a.c(f"======== P2 layer {L}")
    KF, QF = 128, 192
    ACC = LOC; CR = 72; OF = 104; WF = 112
    a(f"s_lshr_b32 s{sT0}, s{sST}, 1")
    a(f"s_lshl_b32 s{sT0}, s{sT0}, 1")
    a(f"s_add_u32 s{sT0}, s{sT0}, s{sKH}")
    a(f"s_lshl_b32 s{sT0}, s{sT0}, 5")
    a(f"s_add_u32 s{sT0}, s{sT0}, {FL_PQ[L]}")
    poll_flags(None, 8, 0x30 + L)
    stamp("p2_pqflag")
    a(f"s_lshl_b32 s{sSO}, s{sST}, 1")
    a(f"s_add_u32 s{sSO}, s{sSO}, s{sRH}")
    a(f"s_lshl_b32 s{sSO}, s{sSO}, 1")
    a(f"s_add_u32 s{sSO}, s{sSO}, s{sKH}")
    a(f"s_lshl_b32 s{sSO}, s{sSO}, 14")
    a(f"s_add_u32 s{sSO}, s{sSO}, {PQ[L]:#x}")
    for j in range(16):
        a(f"buffer_load_dwordx4 {vr(QF+4*j,4)}, v{vL16}, {sr(SWS,4)}, s{sSO} offen offset:{(j&3)*1024} sc1")
        if j & 3 == 3 and j < 15: a(f"s_add_u32 s{sSO}, s{sSO}, 4096")
    a(f"v_and_b32 v{vT0}, 31, v{vL}")
    a(f"v_min_u32 v{vT0}, 16, v{vT0}")
    a(f"v_lshlrev_b32 v{vT0}, 4, v{vT0}")
    a(f"v_mul_u32_u24 v{vT1}, 384, v{vHH}")
    a(f"v_add_u32 v{vT2}, v{vT0}, v{vT1}")
    a(f"s_mul_i32 s{sT1}, s{sKH}, {16*768}")
    a(f"s_add_u32 s{sT1}, s{sT1}, {KVF[L]:#x}")
    tr_base(vTA, vTB, sKH, L_WO)
    a(f"s_lshl_b32 s{sT2}, s{sKH}, 15")
    a(f"v_add_u32 v{vTA}, s{sT2}, v{vTA}")
    a(f"v_add_u32 v{vTB}, s{sT2}, v{vTB}")
    if L == 0:
        for q in range(2):
            a(f"v_permlane32_swap_b32 v{XR+4*q}, v{XR+4*q+2}")
            a(f"v_permlane32_swap_b32 v{XR+4*q+1}, v{XR+4*q+3}")
        a(f"v_lshlrev_b32 v{vB2}, 16, v{vB2}")
    def issue():
        a(f"s_mov_b32 s{sSO}, s{sT1}")
        for j in range(16):
            a(f"buffer_load_dwordx4 {vr(KF+4*j,4)}, v{vT2}, {sr(SWS,4)}, s{sSO} offen offset:{(j&3)*768} sc1")
            if j & 3 == 3 and j < 15: a(f"s_add_u32 s{sSO}, s{sSO}, {4*768}")
    def check():
        a(f"v_max3_u32 v{vT3}, v{KF}, v{KF+4}, v{KF+8}")
        for p in range(3, 15, 2): a(f"v_max3_u32 v{vT3}, v{vT3}, v{KF+4*p}, v{KF+4*p+4}")
        a(f"v_max_u32 v{vT3}, v{vT3}, v{KF+60}")
        a(f"v_cmp_eq_u32 vcc, -1, v{vT3}")
    poll(issue, check, 0x32 + L)
    stamp("p2_kvf")
    rw = {}
    def RW(j):
        b = WF + (j & 1) * 8
        a(f"ds_read_b64_tr_b16 {vr(b,2)}, v{vTA} offset:{j*2048}")
        a(f"ds_read_b64_tr_b16 {vr(b+2,2)}, v{vTA} offset:{j*2048+1024}")
        a(f"ds_read_b64_tr_b16 {vr(b+4,2)}, v{vTB} offset:{j*2048}")
        rw[j] = a(f"ds_read_b64_tr_b16 {vr(b+6,2)}, v{vTB} offset:{j*2048+1024}")
    def M1(j):
        a(f"v_mfma_f32_32x32x16_bf16 {vr(CR+(j&1)*16,16)}, {vr(KF+4*j,4)}, {vr(QF+4*j,4)}, 0")
    M1(0); M1(1); RW(0)
    for j in range(16):
        c = CR + (j & 1) * 16; o = OF + (j & 1) * 4; b = WF + (j & 1) * 8
        a(f"v_add_f32 v{c+8}, s{sEPS6}, v{c+8}")
        a(f"v_rcp_f32 v{c+8}, v{c+8}")
        if j + 1 < 16: RW(j + 1)
        for i in range(8): a(f"v_mul_f32 v{c+i}, v{c+i}, v{c+8}")
        for i in range(4): a(f"v_cvt_pk_bf16_f32 v{o+i}, v{c+2*i}, v{c+2*i+1}")
        if j + 2 < 16: M1(j + 2)
        a.wait(lg=rw[j])
        a(f"v_mfma_f32_32x32x16_bf16 {vr(ACC,16)}, {vr(b,4)}, {vr(o,4)}, {'0' if j==0 else vr(ACC,16)}")
        a(f"v_mfma_f32_32x32x16_bf16 {vr(ACC+16,16)}, {vr(b+4,4)}, {vr(o,4)}, {'0' if j==0 else vr(ACC+16,16)}")
    a(f"s_xor_b32 s{sT0}, s{sW}, 1")
    a(f"s_lshl_b32 s{sT0}, s{sT0}, 12")
    a(f"v_add_u32 v{vT0}, s{sT0}, v{vL16}")
    a(f"s_lshl_b32 s{sT0}, s{sW}, 12")
    a(f"v_add_u32 v{vT1}, s{sT0}, v{vL16}")
    for q in range(4): a(f"ds_write_b128 v{vT0}, {vr(ACC+16+4*q,4)} offset:{q*1024}")
    XU = CR
    for j in range(8):
        a(f"v_lshlrev_b32 v{XU+2*j}, 16, v{XR+j}")
        a(f"v_and_b32 v{XU+2*j+1}, 0xffff0000, v{XR+j}")
    for i in range(16): a(f"v_add_f32 v{ACC+i}, v{ACC+i}, v{XU+i}")
    a.wait_lg_all()
    a("s_barrier")
    ids = [a(f"ds_read_b128 {vr(ACC+16+4*q,4)}, v{vT1} offset:{q*1024}") for q in range(4)]
    a(f"s_lshl_b32 s{sT0}, s{sST}, 4")
    a(f"s_lshl_b32 s{sT1}, s{sDT}, 1")
    a(f"s_add_u32 s{sT1}, s{sT1}, s{sKH}")
    a(f"s_add_u32 s{sT1}, s{sT1}, s{sT0}")
    a(f"s_lshl_b32 s{sT1}, s{sT1}, 1")
    a(f"s_add_u32 s{sT1}, s{sT1}, s{sRH}")
    a(f"s_lshl_b32 s{sT1}, s{sT1}, 8")
    a(f"s_add_u32 s{sT1}, s{sT1}, {ST[L]:#x}")
    SM, SQ, SM2, SQ2 = 104, 105, 106, 107
    for q in range(4):
        a.wait(lg=ids[q])
        for i in range(4 * q, 4 * q + 4): a(f"v_add_f32 v{ACC+i}, v{ACC+i}, v{ACC+16+i}")
        a(f"v_cvt_pk_bf16_f32 v{XR+2*q}, v{ACC+4*q}, v{ACC+4*q+1}")
        a(f"v_cvt_pk_bf16_f32 v{XR+2*q+1}, v{ACC+4*q+2}, v{ACC+4*q+3}")
    for j in range(8):
        a(f"v_lshlrev_b32 v{XU+2*j}, 16, v{XR+j}")
        a(f"v_and_b32 v{XU+2*j+1}, 0xffff0000, v{XR+j}")
    a(f"v_add_f32 v{SM}, v{XU}, v{XU+1}")
    a(f"v_mul_f32 v{SQ}, v{XU}, v{XU}")
    a(f"v_add_f32 v{SM2}, v{XU+2}, v{XU+3}")
    a(f"v_mul_f32 v{SQ2}, v{XU+1}, v{XU+1}")
    for i in range(2, 16, 2):
        a(f"v_fmac_f32 v{SQ}, v{XU+i}, v{XU+i}")
        a(f"v_fmac_f32 v{SQ2}, v{XU+i+1}, v{XU+i+1}")
        if i >= 4:
            a(f"v_add_f32 v{SM}, v{SM}, v{XU+i}")
            a(f"v_add_f32 v{SM2}, v{SM2}, v{XU+i+1}")
    a(f"v_add_f32 v{SM}, v{SM}, v{SM2}")
    a(f"v_add_f32 v{SQ}, v{SQ}, v{SQ2}")
    a(f"v_mov_b32 v{SM2}, v{SM}")
    a(f"v_mov_b32 v{SQ2}, v{SQ}")
    a(f"v_lshlrev_b32 v{vT0}, 3, v{vL}")
    a(f"v_permlane32_swap_b32 v{SM}, v{SM2}")
    a(f"v_permlane32_swap_b32 v{SQ}, v{SQ2}")
    a(f"v_add_f32 v{SM}, v{SM}, v{SM2}")
    a(f"v_add_f32 v{SQ}, v{SQ}, v{SQ2}")
    a(f"v_and_b32 v{SQ}, 0x7fffffff, v{SQ}")
    set_exec((1 << 32) - 1)
    a(f"buffer_store_dwordx2 {vr(SM,2)}, v{vT0}, {sr(SWS,4)}, s{sT1} offen sc1")
    set_exec((1 << 64) - 1)
    stamp("p2_stpub")
    IDF = 108
    a(f"v_and_b32 v{vT0}, 31, v{vL}")
    a(f"v_lshlrev_b32 v{vT1}, 2, v{vHH}")
    a(f"v_sub_u32 v{vT0}, v{vT0}, v{vT1}")
    a(f"v_mov_b32 v{vT3}, 0x3f80")
    for f in range(2):
        for c in range(4):
            base = 16 * f + ((2 * c) & 3) + 8 * (c >> 1)
            a(f"v_subrev_u32 v{vT1}, {base}, v{vT0}")
            a(f"v_cmp_gt_u32 vcc, 2, v{vT1}")
            a(f"v_lshlrev_b32 v{vT1}, 4, v{vT1}")
            a(f"v_lshlrev_b32 v{vT2}, v{vT1}, v{vT3}")
            a(f"v_cndmask_b32 v{IDF+4*f+c}, 0, v{vT2}, vcc")
    wload1(opt("GA0", 12), opt("GA1", 20))
    stamp("p2_gamma")
    SB = 128
    a(f"v_and_b32 v{vT0}, 31, v{vL}")
    a(f"v_lshlrev_b32 v{vT0}, 3, v{vT0}")
    a(f"v_lshl_add_u32 v{vT2}, v{vHH}, 12, v{vT0}")
    a(f"s_lshl_b32 s{sT1}, s{sST}, 13")
    a(f"s_lshl_b32 s{sT2}, s{sRH}, 8")
    a(f"s_add_u32 s{sT1}, s{sT1}, s{sT2}")
    a(f"s_add_u32 s{sT1}, s{sT1}, {ST[L]:#x}")
    def issue():
        for p in range(8): a(f"buffer_load_dwordx2 {vr(SB+2*p,2)}, v{vT2}, {sr(SWS,4)}, s{sT1} offen offset:{p*512} sc1")
    def check():
        a(f"v_max3_u32 v{vT3}, v{SB+1}, v{SB+3}, v{SB+5}")
        a(f"v_max3_u32 v{vT3}, v{vT3}, v{SB+7}, v{SB+9}")
        a(f"v_max3_u32 v{vT3}, v{vT3}, v{SB+11}, v{SB+13}")
        a(f"v_max_u32 v{vT3}, v{vT3}, v{SB+15}")
        a(f"v_cmp_eq_u32 vcc, -1, v{vT3}")
    poll(issue, check, 0x34 + L)
    stamp("p2_stats")
    for n in (4, 2, 1):
        for p in range(n):
            a(f"v_add_f32 v{SB+2*p}, v{SB+2*p}, v{SB+2*(p+n)}")
            a(f"v_add_f32 v{SB+2*p+1}, v{SB+2*p+1}, v{SB+2*(p+n)+1}")
    a(f"v_mov_b32 v{SB+2}, v{SB}")
    a(f"v_mov_b32 v{SB+3}, v{SB+1}")
    a(f"s_lshl_b32 s{sT0}, s{sDT}, 18")
    a(f"s_lshl_b32 s{sT1}, s{sST}, 1")
    a(f"v_permlane32_swap_b32 v{SB}, v{SB+2}")
    a(f"v_permlane32_swap_b32 v{SB+1}, v{SB+3}")
    a(f"v_add_f32 v{SB}, v{SB}, v{SB+2}")
    a(f"v_add_f32 v{SB+1}, v{SB+1}, v{SB+3}")
    a(f"v_mul_f32 v{SB}, {fl(1/512)}, v{SB}")
    a(f"v_mul_f32 v{SB+1}, {fl(1/512)}, v{SB+1}")
    a(f"v_fma_f32 v{SB+1}, -v{SB}, v{SB}, v{SB+1}")
    a(f"v_max_f32 v{SB+1}, 0, v{SB+1}")
    a(f"v_mov_b32 v{SB+2}, {fl(1.0+1e-5)}")
    a(f"v_fmaak_f32 v{SB+1}, v{SB+1}, v{SB+2}, {fl(1e-10)}")
    a(f"v_rsq_f32 v{SB+1}, v{SB+1}")
    a(f"s_add_u32 s{sT1}, s{sT1}, s{sRH}")
    a(f"s_lshl_b32 s{sT1}, s{sT1}, 12")
    a(f"s_add_u32 s{sT0}, s{sT0}, s{sT1}")
    a(f"s_lshl_b32 s{sT1}, s{sKH}, 10")
    a(f"s_add_u32 s{sT0}, s{sT0}, s{sT1}")
    a(f"s_add_u32 s{sT1}, s{sT0}, {HT[L]:#x}")
    a(f"v_mul_f32 v{SB}, v{SB}, v{SB+1}")
    HP_ = 116
    for j in range(8):
        a(f"v_fma_f32 v{XU+2*j}, v{XU+2*j}, v{SB+1}, -v{SB}")
        a(f"v_fma_f32 v{XU+2*j+1}, v{XU+2*j+1}, v{SB+1}, -v{SB}")
        a(f"v_cvt_pk_bf16_f32 v{HP_+j}, v{XU+2*j}, v{XU+2*j+1}")
    a(f"v_mfma_f32_32x32x16_bf16 {vr(ACC,16)}, {vr(HP_,4)}, {vr(IDF,4)}, 0")
    a(f"v_mfma_f32_32x32x16_bf16 {vr(ACC,16)}, {vr(HP_+4,4)}, {vr(IDF+4,4)}, {vr(ACC,16)}")
    for f in range(2):
        for j in range(4): a(f"v_cvt_pk_bf16_f32 v{ACC+16+4*f+j}, v{ACC+8*f+2*j}, v{ACC+8*f+2*j+1}")
        a(f"buffer_store_dwordx4 {vr(ACC+16+4*f,4)}, v{vL16}, {sr(SWS,4)}, s{sT1} offen offset:{2048*f} sc1")
    a(f"s_lshl_b32 s{sT0}, s{sDT}, 5")
    a(f"s_add_u32 s{sT0}, s{sT0}, s{sST}")
    a(f"s_lshl_b32 s{sT0}, s{sT0}, 2")
    a(f"s_add_u32 s{sT0}, s{sT0}, {FL_HT[L]}")
    publish_flag()
    phase_end(f"p2_{L}")

def big_gemm(kind, nks, scratch):
    ACC = LOC; RING = 128; NR = 16
    vA, vB = 120, 121
    a(f"s_lshl_b32 s{sT0}, s{sKH}, 10")
    a(f"v_add_u32 v{vA}, s{sT0}, v{vL16}")
    a(f"v_xor_b32 v{vB}, 1024, v{vA}")
    ids = {}
    def LD(s):
        b = RING + (s % NR) * 8
        a(f"buffer_load_dwordx4 {vr(b,4)}, v{vA}, {sr(SWS,4)}, s{sSO} offen offset:{(s&1)*2048} sc1")
        ids[s] = a(f"buffer_load_dwordx4 {vr(b+4,4)}, v{vB}, {sr(SWS,4)}, s{sSO} offen offset:{(s&1)*2048} sc1")
        if s & 1 and s < nks - 1: a(f"s_add_u32 s{sSO}, s{sSO}, 4096")
    for s in range(NR): LD(s)
    for s in range(nks):
        a.wait(vm=ids[s])
        b = RING + (s % NR) * 8
        for acc in range(4):
            wf = ar(s * 8 + 4 * (acc >> 1), 4); af = vr(b + 4 * (acc & 1), 4)
            c = "0" if s == 0 else vr(ACC + 16 * acc, 16)
            A_, B_ = (wf, af) if kind == 1 else (af, wf)
            a(f"v_mfma_f32_32x32x16_bf16 {vr(ACC+16*acc,16)}, {A_}, {B_}, {c}")
        if s + NR < nks: LD(s + NR)
    stamp("gemm")
    for acc in (1, 2, 3):
        a(f"s_xor_b32 s{sT0}, s{sW}, {acc}")
        a(f"s_mul_i32 s{sT0}, s{sT0}, 12288")
        a(f"s_add_u32 s{sT0}, s{sT0}, {scratch + (acc-1)*4096}")
        a(f"v_add_u32 v{vT0+acc-1}, s{sT0}, v{vL16}")
    for acc in (1, 2, 3):
        for q in range(4): a(f"ds_write_b128 v{vT0+acc-1}, {vr(ACC+16*acc+4*q,4)} offset:{q*1024}")
    a(f"s_mul_i32 s{sT0}, s{sW}, 12288")
    a(f"s_add_u32 s{sT0}, s{sT0}, {scratch}")
    a(f"v_add_u32 v{vT3}, s{sT0}, v{vL16}")
    a.wait_lg_all()
    a("s_barrier")
    ids = {}
    for q in range(4):
        for sl in range(3): ids[(q, sl)] = a(f"ds_read_b128 {vr(RING+16*sl+4*q,4)}, v{vT3} offset:{sl*4096+q*1024}")
    return ids

def p3(L):
    a.c(f"======== P3 layer {L}")
    ACC = LOC; RING = 128; B1R = 104
    skip = a.newlabel("NOP3")
    p3active_skip(skip)
    with cond():
        wload(1, opt("GA1", 20), 32)
        a(f"s_lshl_b32 s{sT0}, s{sFT}, 1")
        a(f"s_add_u32 s{sT0}, s{sT0}, s{sRH}")
        a(f"s_lshl_b32 s{sT0}, s{sT0}, 6")
        a(f"v_lshlrev_b32 v{vT0}, 3, v{vHH}")
        for q in range(4): a(f"buffer_load_dwordx2 {vr(RING+2*q,2)}, v{vT0}, {sr(SB1,4)}, s{sT0} offen offset:{16*q}")
        stamp("p3_delta")
        a(f"s_lshl_b32 s{sT0}, s{sDT3}, 2")
        a(f"s_add_u32 s{sT0}, s{sT0}, s{sW}")
        a(f"s_lshl_b32 s{sT0}, s{sT0}, 5")
        a(f"s_add_u32 s{sT0}, s{sT0}, {FL_HT[L]}")
        poll_flags(None, 8, 0x50 + L)
        stamp("p3_flag")
        for j in range(8):
            a(f"v_lshlrev_b32 v{B1R+2*j}, 16, v{RING+j}")
            a(f"v_and_b32 v{B1R+2*j+1}, 0xffff0000, v{RING+j}")
        a(f"s_lshl_b32 s{sSO}, s{sDT3}, 2")
        a(f"s_add_u32 s{sSO}, s{sSO}, s{sW}")
        a(f"s_lshl_b32 s{sSO}, s{sSO}, 16")
        a(f"s_add_u32 s{sSO}, s{sSO}, {HT[L]:#x}")
        ids = big_gemm(1, 32, 0)
        a(f"s_mul_i32 s{sT0}, s{sDT3}, 229376")
        a(f"s_lshl_b32 s{sT1}, s{sFT}, 1")
        a(f"s_add_u32 s{sT1}, s{sT1}, s{sRH}")
        a(f"s_lshl_b32 s{sT1}, s{sT1}, 12")
        a(f"s_add_u32 s{sT0}, s{sT0}, s{sT1}")
        a(f"s_lshl_b32 s{sT1}, s{sKH}, 10")
        a(f"s_add_u32 s{sT0}, s{sT0}, s{sT1}")
        a(f"s_add_u32 s{sT1}, s{sT0}, {U[L]:#x}")
        K1 = -2.0 * 0.7978845608028654 * 1.4426950408889634
        a(f"v_mov_b32 v{vT0}, {fl(K1*0.044715)}")
        for i in range(16): a(f"v_add_f32 v{ACC+i}, v{ACC+i}, v{B1R+i}")
        T = ACC + 16; PKD = ACC + 32
        for q in range(4):
            a.wait(lg=ids[(q, 1)])
            for i in range(4 * q, 4 * q + 4): a(f"v_add_f32 v{RING+i}, v{RING+i}, v{RING+16+i}")
            a.wait(lg=ids[(q, 2)])
            for i in range(4 * q, 4 * q + 4): a(f"v_add_f32 v{ACC+i}, v{ACC+i}, v{RING+32+i}")
            for i in range(4 * q, 4 * q + 4): a(f"v_add_f32 v{ACC+i}, v{ACC+i}, v{RING+i}")
            for i in range(4 * q, 4 * q + 4): a(f"v_mul_f32 v{T+i}, v{ACC+i}, v{ACC+i}")
            for i in range(4 * q, 4 * q + 4): a(f"v_fmaak_f32 v{T+i}, v{vT0}, v{T+i}, {fl(K1)}")
            for i in range(4 * q, 4 * q + 4): a(f"v_mul_f32 v{T+i}, v{T+i}, v{ACC+i}")
            for i in range(4 * q, 4 * q + 4): a(f"v_exp_f32 v{T+i}, v{T+i}")
            for i in range(4 * q, 4 * q + 4): a(f"v_add_f32 v{T+i}, 1.0, v{T+i}")
            for i in range(4 * q, 4 * q + 4): a(f"v_rcp_f32 v{T+i}, v{T+i}")
            for i in range(4 * q, 4 * q + 4): a(f"v_mul_f32 v{ACC+i}, v{ACC+i}, v{T+i}")
            a(f"v_cvt_pk_bf16_f32 v{PKD+2*q}, v{ACC+4*q}, v{ACC+4*q+1}")
            a(f"v_cvt_pk_bf16_f32 v{PKD+2*q+1}, v{ACC+4*q+2}, v{ACC+4*q+3}")
            if q & 1:
                a(f"buffer_store_dwordx4 {vr(PKD+4*(q>>1),4)}, v{vL16}, {sr(SWS,4)}, s{sT1} offen offset:{2048*(q>>1)} sc1")
        a(f"s_lshl_b32 s{sT0}, s{sDT3}, 5")
        a(f"s_add_u32 s{sT0}, s{sT0}, s{sFT}")
        a(f"s_lshl_b32 s{sT0}, s{sT0}, 2")
        a(f"s_add_u32 s{sT0}, s{sT0}, {FL_U[L]}")
        publish_flag()
    a.label(skip)
    phase_end(f"p3_{L}")

def p4(L):
    a.c(f"======== P4 layer {L}")
    ACC = LOC; RING = 128
    wload(2, 0, 28)
    stamp("p4_w2")
    a(f"s_lshl_b32 s{sT0}, s{sDT}, 5")
    a(f"s_mul_i32 s{sT1}, s{sW}, 7")
    a(f"s_add_u32 s{sT0}, s{sT0}, s{sT1}")
    a(f"s_lshl_b32 s{sT0}, s{sT0}, 2")
    a(f"s_add_u32 s{sT0}, s{sT0}, {FL_U[L]}")
    poll_flags(None, 7, 0x60 + L)
    stamp("p4_flag")
    a(f"s_lshl_b32 s{sSO}, s{sDT}, 2")
    a(f"s_add_u32 s{sSO}, s{sSO}, s{sW}")
    a(f"s_mul_i32 s{sSO}, s{sSO}, {28*2048}")
    a(f"s_add_u32 s{sSO}, s{sSO}, {U[L]:#x}")
    a("s_barrier")
    ids = big_gemm(2, 28, L_S)
    XU = ACC + 16
    for j in range(8):
        a(f"v_lshlrev_b32 v{XU+2*j}, 16, v{XR+j}")
        a(f"v_and_b32 v{XU+2*j+1}, 0xffff0000, v{XR+j}")
    for i in range(16): a(f"v_add_f32 v{XU+i}, v{XU+i}, v{vB2}")
    for i in range(16): a(f"v_add_f32 v{ACC+i}, v{ACC+i}, v{XU+i}")
    a(f"s_lshl_b32 s{sT0}, s{sST}, 1")
    a(f"s_add_u32 s{sT0}, s{sT0}, s{sRH}")
    a(f"s_lshl_b32 s{sT0}, s{sT0}, 4")
    a(f"s_lshl_b32 s{sT1}, s{sDT}, 1")
    a(f"s_add_u32 s{sT0}, s{sT0}, s{sT1}")
    a(f"s_add_u32 s{sT0}, s{sT0}, s{sKH}")
    a(f"s_lshl_b32 s{sT0}, s{sT0}, 11")
    a(f"s_add_u32 s{sT1}, s{sT0}, {X2:#x}")
    for q in range(4):
        a.wait(lg=ids[(q, 1)])
        for i in range(4 * q, 4 * q + 4): a(f"v_add_f32 v{RING+i}, v{RING+i}, v{RING+16+i}")
        a.wait(lg=ids[(q, 2)])
        for i in range(4 * q, 4 * q + 4): a(f"v_add_f32 v{ACC+i}, v{ACC+i}, v{RING+32+i}")
        for i in range(4 * q, 4 * q + 4): a(f"v_add_f32 v{ACC+i}, v{ACC+i}, v{RING+i}")
        a(f"v_cvt_pk_bf16_f32 v{XR+2*q}, v{ACC+4*q}, v{ACC+4*q+1}")
        a(f"v_cvt_pk_bf16_f32 v{XR+2*q+1}, v{ACC+4*q+2}, v{ACC+4*q+3}")
        if q & 1:
            h = q >> 1
            if L == 0:
                a(f"buffer_store_dwordx4 {vr(XR+4*h,4)}, v{vL16}, {sr(SWS,4)}, s{sT1} offen offset:{1024*h} sc1")
            else:
                a(f"v_permlane32_swap_b32 v{XR+4*h}, v{XR+4*h+2}")
                a(f"v_permlane32_swap_b32 v{XR+4*h+1}, v{XR+4*h+3}")
                a(f"buffer_store_dwordx4 {vr(XR+4*h,4)}, v{vT4}, {sr(SOUT,4)}, 0 offen offset:{32*h}")
    if L == 0:
        a(f"s_lshl_b32 s{sT0}, s{sST}, 3")
        a(f"s_add_u32 s{sT0}, s{sT0}, s{sDT}")
        a(f"s_lshl_b32 s{sT0}, s{sT0}, 2")
        a(f"s_add_u32 s{sT0}, s{sT0}, {FL_X2}")
        publish_flag()
        wqkv_voff(113)
        for kb in range(8): wqkv_issue(113, kb)
    phase_end(f"p4_{L}")

def body():
    prologue()
    for L in range(2):
        p1(L)
        a1(L)
        wload1(0, opt("GA0", 12))
        stamp("beta")
        p2(L)
        p3(L)
        p4(L)
    finish()

try:
    body()
except Stop:
    pass
a.label("L_EXIT")
a("s_endpgm")
a.label("L_END")

hdr = open(f"cdna_kernels/{NAME}.s.ref").read().split("; Override launch")[0]
out = hdr + f"""; @launch grid=(256,1,1) block=(256,1,1) lds={LDS_BYTES}
.amdgcn_target "amdgcn-amd-amdhsa--gfx950"
.text
.globl {NAME}_kernel
.p2align 8
.type {NAME}_kernel,@function
{NAME}_kernel:
""" + a.text() + f""".section .rodata,"a"
.p2align 6
.amdhsa_kernel {NAME}_kernel
  .amdhsa_next_free_vgpr 512
  .amdhsa_next_free_sgpr 102
  .amdhsa_accum_offset 256
  .amdhsa_group_segment_fixed_size 0
  .amdhsa_kernarg_size 88
  .amdhsa_user_sgpr_count 2
  .amdhsa_user_sgpr_kernarg_segment_ptr 1
  .amdhsa_system_sgpr_workgroup_id_x 1
  .amdhsa_float_denorm_mode_32 3
.end_amdhsa_kernel
"""
outp = [x for x in sys.argv[1:] if x.endswith(".s")]
open(outp[0] if outp else "k.s", "w").write(out)
if DIAG: open("stamps.txt", "w").write("\n".join(stamp_names))
```

```python
import sys, struct
from contextlib import contextmanager
from asmlib import Asm, vr, ar, sr

NAME = "interleave_layers__linear_attn_block__mixer_token_mlp__prompt"
DIAG = "--diag" in sys.argv
OPT = {}
for a_ in sys.argv:
    if a_.startswith("-D"):
        k_, v_ = a_[2:].split("="); OPT[k_] = int(v_)
def opt(k, d): return OPT.get(k, d)
def f2u(x): return struct.unpack("<I", struct.pack("<f", x))[0]
def fl(x): return "0x%08x" % f2u(x)
FULL = (1 << 64) - 1
LOG2E = 1.4426950408889634

FL_PQ = 0xB0000
KVF = [0x2000, 0xC0000]; KVP = [0x8000, 0xC6000]; ST = [0x166000, 0x1A6000]; ST2 = 0x1E6000
SELFP = 0xC0000
PQ = [0x400000, 0x600000]; HT = [0x800000, 0xA00000]; U = [0xC00000, 0xE00000]; X2 = 0x1000000
WQT = 0x1200000
TS = 0x1400000
DUMP = 0x1500000
WS_BYTES = 268435456
L_A = 32768; L_B = 98304; LDS_BYTES = 163840
NS = 6; SCR = 12288
sW = 3
SX, SWQKV, SWO, SW1, SW2, SWS, SOUT, SDBG, SB1, SB2, SCODE = 4, 8, 12, 16, 20, 24, 28, 32, 36, 40, 44
sST, sDT, sRB, sHP, sDT3, sFT, sP3, sRH, sKH, sWB, sTO, sONES = 48, 49, 50, 51, 52, 53, 54, 55, 56, 57, 58, 59
sEPS6 = 60; sB = 61
sT0, sT1, sT2, sT3, sT4, sT5 = 62, 63, 64, 65, 66, 67
sSO = 68; sW1K = 69; sTS = 70
sL2E = 74; sWA = 75; sROTX = 76; sROT1 = 77; sROT2 = 78; sRED = 79; sWOFF = 80; sKB = 81; sXC = 82; sWI = 83
sKA = 84
vL, vL16, vTA, vTB, vT0, vT1, vT2, vT3 = 0, 1, 2, 3, 4, 5, 6, 7
XR = 8
CKP, CVP, CQP, vB2, vRS, vHH, vOUT, vTSV = 16, 17, 18, 19, 20, 21, 22, 23
vWA, vWB, vWTA, vWTB = 24, 25, 26, 27
MA = 28
LOC = 32

a = Asm()
stamp_names = []
TOREC = ()
torec = []

@contextmanager
def cond():
    st = (a.vm, a.vm_done, a.lg, a.lg_done)
    yield
    a.vm, a.vm_done, a.lg, a.lg_done = st[0], min(st[1], st[0]), st[2], min(st[3], st[2])

def stamp(name):
    if not DIAG: return
    k = len(stamp_names); stamp_names.append(name)
    a(f"s_memrealtime {sr(sTS,2)}")
    if name in ("start", "end"): a(f"s_memtime {sr(sTS+2,2)}")
    a("s_waitcnt lgkmcnt(0)"); a.lg_done = a.lg
    a(f"v_writelane_b32 v{vTSV}, s{sTS}, {k}")
    if name in ("start", "end"): a(f"v_writelane_b32 v{vTSV}, s{sTS+2}, {62 if name == 'start' else 63}")
    if name in TOREC:
        a(f"v_writelane_b32 v{vTSV}, s{sTO}, {52 + len(torec)}"); torec.append(name)

def srd(base, ptr, nbytes):
    a(f"s_mov_b32 s{base}, s{ptr}")
    a(f"s_and_b32 s{base+1}, s{ptr+1}, 0xffff")
    a(f"s_mov_b32 s{base+2}, {nbytes:#x}")
    a(f"s_mov_b32 s{base+3}, 0x20000")

def set_exec(mask):
    if mask == FULL: a("s_mov_b64 exec, -1")
    elif mask <= 64: a(f"s_mov_b64 exec, {mask}")
    else:
        a(f"s_mov_b32 exec_lo, {mask & 0xffffffff:#x}"); a(f"s_mov_b32 exec_hi, {mask >> 32:#x}")

def poll(issue, check, code, pre=None):
    top = a.newlabel("POLL"); done = a.newlabel("PDONE"); chk = a.newlabel("PCHK")
    if pre is not None:
        a.wait(vm=pre)
        st = (a.vm, a.vm_done)
        a(f"s_branch {chk}")
    a.label(top)
    issue()
    a.wait_vm_all(force=True)
    if pre is not None: a.label(chk)
    check()
    a(f"s_cbranch_vccz {done}")
    a(f"s_sub_u32 s{sTO}, s{sTO}, 1")
    a(f"s_cbranch_scc0 {top}")
    a(f"s_mov_b32 s{sTO}, 0")
    a(f"v_mov_b32 v{vT0}, {code}")
    a(f"v_mov_b32 v{vT1}, 0")
    a(f"buffer_store_dword v{vT0}, v{vT1}, {sr(SDBG,4)}, 0 offen")
    a("s_waitcnt vmcnt(0)")
    a.vm_done = a.vm
    a.label(done)
    if pre is not None: a.vm, a.vm_done = st

def poll_flags(n, code):
    a(f"v_min_u32 v{vT2}, {n-1}, v{vL}")
    a(f"v_lshlrev_b32 v{vT2}, 7, v{vT2}")
    def issue(): a(f"buffer_load_dword v{vT3}, v{vT2}, {sr(SWS,4)}, s{sT0} offen sc1")
    def check(): a(f"v_cmp_ne_u32 vcc, 1, v{vT3}")
    poll(issue, check, code)

def publish_flag(last_store):
    a(f"v_mov_b32 v{vT0}, 1")
    a(f"v_lshlrev_b32 v{vT1}, 2, v{vL}")
    a.wait(vm=last_store)
    a("s_barrier")
    skip = a.newlabel("NOFLAG")
    a(f"s_cmp_lg_u32 s{sW}, 0")
    a(f"s_cbranch_scc1 {skip}")
    with cond():
        set_exec((1 << 32) - 1)
        a(f"buffer_store_dword v{vT0}, v{vT1}, {sr(SWS,4)}, s{sT0} offen sc1")
        set_exec(FULL)
    a.label(skip)

def finish():
    if DIAG:
        stamp("end")
        a(f"s_lshl_b32 s{sT0}, s{sB}, 2")
        a(f"s_add_u32 s{sT0}, s{sT0}, s{sW}")
        a(f"s_lshl_b32 s{sT0}, s{sT0}, 8")
        a(f"s_add_u32 s{sT0}, s{sT0}, {TS:#x}")
        a(f"v_lshlrev_b32 v{vT0}, 2, v{vL}")
        a(f"buffer_store_dword v{vTSV}, v{vT0}, {sr(SWS,4)}, s{sT0} offen")
    a("s_endpgm")

def pk(op, d, x, y, z=None, hi=None, lo=None, neg=None):
    ops = [x, y] + ([z] if z is not None else [])
    m = ""
    if lo: m += " op_sel:[" + ",".join(map(str, lo)) + "]"
    if hi: m += " op_sel_hi:[" + ",".join(map(str, hi)) + "]"
    if neg: m += " neg_lo:[" + ",".join(map(str, neg)) + "] neg_hi:[" + ",".join(map(str, neg)) + "]"
    a(f"v_pk_{op}_f32 {vr(d,2)}, " + ", ".join(ops) + m)

def mfma(d, A, B, C):
    a(f"v_mfma_f32_32x32x16_bf16 {d}, {A}, {B}, {C}")

def tr_base(dst_a, dst_b, sel_sgpr, region):
    a(f"v_bfe_u32 v{vT0}, v{vL}, 2, 2")
    a(f"v_lshl_add_u32 v{vT0}, v{vHH}, 2, v{vT0}")
    a(f"v_lshlrev_b32 v{dst_a}, 7, v{vT0}")
    a(f"v_bfe_u32 v{vT1}, v{vL}, 3, 1")
    a(f"v_lshl_add_u32 v{dst_a}, v{vT1}, 6, v{dst_a}")
    a(f"v_bfe_u32 v{vT1}, v{vL}, 4, 1")
    a(f"v_lshl_add_u32 v{dst_a}, v{vT1}, 5, v{dst_a}")
    a(f"v_and_b32 v{vT1}, 3, v{vL}")
    a(f"v_lshl_add_u32 v{dst_a}, v{vT1}, 3, v{dst_a}")
    a(f"s_lshl_b32 s{sT5}, s{sel_sgpr}, 6")
    a(f"v_xor_b32 v{dst_a}, s{sT5}, v{dst_a}")
    a(f"v_add_u32 v{dst_a}, {region}, v{dst_a}")
    a(f"v_xor_b32 v{dst_b}, 64, v{dst_a}")

def dma_voff(dst, dst2, pitch, scol):
    a(f"v_lshrrev_b32 v{vT0}, 3, v{vL}")
    a(f"v_mul_u32_u24 v{dst}, {pitch}, v{vT0}")
    a(f"v_bfe_u32 v{vT1}, v{vL}, 4, 1")
    a(f"v_lshlrev_b32 v{vT1}, 2, v{vT1}")
    a(f"v_and_b32 v{vT0}, 7, v{vL}")
    a(f"v_xor_b32 v{vT0}, v{vT0}, v{vT1}")
    a(f"v_lshl_add_u32 v{dst}, v{vT0}, 4, v{dst}")
    a(f"v_add_u32 v{dst}, s{scol}, v{dst}")
    a(f"v_add_u32 v{dst2}, {8*pitch-1024}, v{dst}")

NV2 = opt("NV2", 12)
V2BASE = 256 - 8 * NV2
def wreg(kind, t, j, n):
    if kind == 2:
        if t < NV2: return vr(V2BASE + 8 * t + j, n)
        return ar((t - NV2) * 8 + j, n)
    return ar(t * 8 + j, n)

class Pump:
    def setup(self, kind):
        self.kind = kind
        self.pitch, self.srd, self.n = (3584, SW1, 32) if kind == 1 else (4096, SW2, 28)
        self.i = 0; self.c = 0; self.vid = {}; self.lid = {}
        a.c(f"pump setup W{kind}")
        a(f"s_lshl_b32 s{sT4}, s{sFT if kind == 1 else sST}, 7")
        a(f"s_mul_i32 s{sT5}, s{sW}, {self.n*16*self.pitch}")
        a(f"s_add_u32 s{sT4}, s{sT4}, s{sT5}")
        dma_voff(vWA, vWB, self.pitch, sT4)
        a(f"s_mul_i32 s{sWOFF}, s{sROT1 if kind == 1 else sROT2}, {16*self.pitch}")
    def issue1(self):
        if opt("NOPUMP", 0):
            self.vid[self.i] = None; self.i += 1; return
        t = self.i
        if t >= NS: a.wait(lg=self.lid[t - NS])
        a(f"s_add_u32 m0, s{sWA}, {(t % NS)*2048}")
        a(f"buffer_load_dwordx4 v{vWA}, {sr(self.srd,4)}, s{sWOFF} offen lds")
        self.vid[t] = a(f"buffer_load_dwordx4 v{vWB}, {sr(self.srd,4)}, s{sWOFF} offen offset:1024 lds")
        if t + 1 < self.n:
            a(f"s_add_u32 s{sWOFF}, s{sWOFF}, {16*self.pitch}")
            a(f"s_cmp_eq_u32 s{sWOFF}, {self.n*16*self.pitch}")
            a(f"s_cselect_b32 s{sWOFF}, 0, s{sWOFF}")
        self.i += 1
    def fill(self, upto=None):
        lim = self.n if upto is None else min(self.n, upto)
        while self.i < lim and self.i - NS < self.c: self.issue1()
    def run(self, target, refill=True):
        target = min(target, self.n)
        while self.c < target:
            t = self.c
            if t >= self.i: self.issue1()
            if opt("NOPUMP", 0):
                self.c += 1; continue
            a.wait(vm=self.vid[t])
            o = (t % NS) * 2048
            a(f"ds_read_b64_tr_b16 {wreg(self.kind,t,0,2)}, v{vWTA} offset:{o}")
            a(f"ds_read_b64_tr_b16 {wreg(self.kind,t,2,2)}, v{vWTA} offset:{o+1024}")
            a(f"ds_read_b64_tr_b16 {wreg(self.kind,t,4,2)}, v{vWTB} offset:{o}")
            self.lid[t] = a(f"ds_read_b64_tr_b16 {wreg(self.kind,t,6,2)}, v{vWTB} offset:{o+1024}")
            self.c += 1
            lim = self.n if refill else target
            if self.i < lim and self.i - NS < self.c - 1: self.issue1()
        if refill: self.fill()
pump = Pump()

def prologue():
    a(f"s_cmp_ge_u32 s2, 256")
    a(f"s_cbranch_scc1 L_EXIT")
    a(f"s_load_dwordx16 {sr(sKA,16)}, s[0:1], 0")
    a(f"s_load_dwordx4 {sr(SCODE,4)}, s[0:1], 64")
    a(f"s_load_dwordx2 s[100:101], s[0:1], 80")
    a(f"s_mov_b32 s{sB}, s2")
    a(f"v_lshrrev_b32 v{vT0}, 6, v0")
    a(f"v_and_b32 v{vL}, 63, v0")
    a(f"v_readfirstlane_b32 s{sW}, v{vT0}")
    a(f"v_lshlrev_b32 v{vL16}, 4, v{vL}")
    a(f"v_lshrrev_b32 v{vHH}, 5, v{vL}")
    if DIAG: a(f"v_mov_b32 v{vTSV}, 0")
    stamp("start")
    X_, I_ = sT0, sT1
    a(f"s_and_b32 s{X_}, s{sB}, 7")
    a(f"s_lshr_b32 s{I_}, s{sB}, 3")
    a(f"s_lshr_b32 s{sT2}, s{I_}, 3")
    a(f"s_and_b32 s{sDT}, s{I_}, 7")
    a(f"s_and_b32 s{sRB}, s{X_}, 3")
    a(f"s_lshl_b32 s{sRB}, s{sRB}, 2")
    a(f"s_add_u32 s{sRB}, s{sRB}, s{sT2}")
    a(f"s_lshr_b32 s{sHP}, s{X_}, 2")
    a(f"s_lshl_b32 s{sHP}, s{sHP}, 3")
    a(f"s_add_u32 s{sHP}, s{sHP}, s{sDT}")
    a(f"s_lshr_b32 s{sROTX}, s{sDT}, 1")
    a(f"s_add_u32 s{sROTX}, s{sROTX}, s{sT2}")
    a(f"s_and_b32 s{sROTX}, s{sROTX}, 3")
    a(f"s_lshl_b32 s{sROTX}, s{sROTX}, 1")
    a(f"s_and_b32 s{sT3}, s{I_}, 1")
    a(f"s_add_u32 s{sROTX}, s{sROTX}, s{sT3}")
    if not opt("ROTX", 1): a(f"s_mov_b32 s{sROTX}, 0")
    a(f"s_lshl_b32 s{sW1K}, s{sW}, 10")
    a(f"s_lshl_b32 s{sWB}, s{sW}, 14")
    a(f"s_add_u32 s{sWA}, s{sWB}, {L_A}")
    a(f"s_add_u32 s{sWB}, s{sWB}, {L_B}")
    a(f"s_lshl_b32 s{sST}, s{X_}, 2")
    a(f"s_add_u32 s{sST}, s{sST}, s{sT2}")
    a(f"s_lshr_b32 s{sT3}, s{X_}, 1")
    a(f"s_mul_i32 s{sT3}, s{sT3}, 7")
    a(f"s_and_b32 s{sT4}, s{X_}, 1")
    a(f"s_lshl_b32 s{sT5}, s{sT4}, 2")
    a(f"s_add_u32 s{sFT}, s{sT3}, s{sT5}")
    a(f"s_add_u32 s{sFT}, s{sFT}, s{sT2}")
    a(f"s_and_b32 s{sP3}, s{I_}, 3")
    a(f"s_add_u32 s{sT5}, s{sT5}, s{sP3}")
    a(f"s_add_u32 s{sKB}, s{sT3}, 3")
    a(f"s_cmp_lt_u32 s{I_}, 24")
    a(f"s_cselect_b32 s{sFT}, s{sFT}, s{sKB}")
    a(f"s_cselect_b32 s{sDT3}, s{sDT}, s{sT5}")
    a(f"s_mul_i32 s{sT4}, s{sT4}, 3")
    a(f"s_add_u32 s{sXC}, s{sT3}, s{sT4}")
    a(f"s_lshl_b32 s{sROT1}, s{sDT3}, 2")
    a(f"s_and_b32 s{sT3}, s{I_}, 3")
    a(f"s_lshr_b32 s{sP3}, s{I_}, 2")
    a(f"s_lshl_b32 s{sWI}, s{I_}, 2")
    a(f"s_add_u32 s{sWI}, s{sWI}, s{sW}")
    a(f"s_lshl_b32 s{sRED}, s{X_}, 2")
    a(f"s_add_u32 s{sRED}, s{sRED}, s{sT3}")
    a(f"s_lshl_b32 s{sRED}, s{sRED}, 1")
    a(f"s_add_u32 s{sRED}, s{sRED}, s{sW}")
    a(f"s_cmp_lt_u32 s{sW}, 2")
    a(f"s_cselect_b32 s{sRED}, s{sRED}, 99")
    a(f"s_cmp_eq_u32 s{sP3}, 7")
    a(f"s_cselect_b32 s{sRED}, s{sRED}, 99")
    a(f"s_mul_i32 s{sROT2}, s{sDT}, 7")
    a(f"s_lshr_b32 s{sROT2}, s{sROT2}, 2")
    a(f"s_lshl_b32 s{sROT2}, s{sROT2}, 1")
    if not opt("ROTW", 0):
        a(f"s_mov_b32 s{sROT1}, 0"); a(f"s_mov_b32 s{sROT2}, 0")
    a(f"s_lshr_b32 s{sRH}, s{sW}, 1")
    a(f"s_and_b32 s{sKH}, s{sW}, 1")
    a(f"s_mov_b32 s{sTO}, 400000")
    a(f"s_mov_b32 s{sONES}, 0x3f803f80")
    a(f"s_mov_b32 s{sEPS6}, {fl(1e-6)}")
    a(f"s_mov_b32 s{sL2E}, {fl(LOG2E)}")
    a("s_waitcnt lgkmcnt(0)")
    pass
    srd(SX, sKA + 0, 2048 * 512 * 2)
    srd(SWQKV, sKA + 2, 512 * 1536 * 2)
    srd(SWS, 100, WS_BYTES)

def late_srds():
    srd(SWO, sKA + 4, 512 * 512 * 2)
    srd(SW1, sKA + 8, 2048 * 1792 * 2)
    a(f"s_cmp_eq_u32 s{sP3}, 7")
    a(f"s_cselect_b32 s{SW1+2}, 0, s{SW1+2}")
    srd(SB1, sKA + 10, 1792 * 2)
    srd(SW2, sKA + 12, 1792 * 2048 * 2)
    srd(SB2, sKA + 14, 2048 * 2)
    srd(SOUT, SCODE, 2048 * 512 * 2)
    srd(SDBG, SCODE + 2, 256)

def init_poison(P):
    for i in range(4): a(f"v_mov_b32 v{P+i}, -1")
    skip = a.newlabel("NOPOIS")
    a(f"s_cmp_ge_u32 s{sB}, 32")
    a(f"s_cbranch_scc1 {skip}")
    with cond():
        a(f"s_mul_i32 s{sT0}, s{sB}, 24576")
        a(f"s_add_u32 s{sT0}, s{sT0}, s{sW1K}")
        for j in range(6):
            a(f"buffer_store_dwordx4 {vr(P,4)}, v{vL16}, {sr(SWS,4)}, s{sT0} offen sc1")
            if j < 5: a(f"s_add_u32 s{sT0}, s{sT0}, 4096")
    a.label(skip)

def ht_addr(dst, L):
    a(f"s_lshl_b32 s{dst}, s{sDT}, 6")
    a(f"s_lshl_b32 s{sT5}, s{sST}, 1")
    a(f"s_add_u32 s{dst}, s{dst}, s{sT5}")
    a(f"s_add_u32 s{dst}, s{dst}, s{sRH}")
    a(f"s_lshl_b32 s{dst}, s{dst}, 2")
    a(f"s_add_u32 s{dst}, s{dst}, s{sKH}")
    a(f"s_lshl_b32 s{dst}, s{dst}, 10")
    a(f"s_add_u32 s{dst}, s{dst}, {HT[L]:#x}")
def u_addr(dst, L):
    a(f"s_mul_i32 s{dst}, s{sDT3}, 56")
    a(f"s_lshl_b32 s{sT5}, s{sFT}, 1")
    a(f"s_add_u32 s{dst}, s{dst}, s{sT5}")
    a(f"s_add_u32 s{dst}, s{dst}, s{sRH}")
    a(f"s_lshl_b32 s{dst}, s{dst}, 2")
    a(f"s_add_u32 s{dst}, s{dst}, s{sKH}")
    a(f"s_lshl_b32 s{dst}, s{dst}, 10")
    a(f"s_add_u32 s{dst}, s{dst}, {U[L]:#x}")
def x2_addr(dst):
    a(f"s_lshl_b32 s{dst}, s{sST}, 1")
    a(f"s_add_u32 s{dst}, s{dst}, s{sRH}")
    a(f"s_lshl_b32 s{dst}, s{dst}, 3")
    a(f"s_add_u32 s{dst}, s{dst}, s{sDT}")
    a(f"s_lshl_b32 s{dst}, s{dst}, 1")
    a(f"s_add_u32 s{dst}, s{dst}, s{sKH}")
    a(f"s_lshl_b32 s{dst}, s{dst}, 11")
    a(f"s_add_u32 s{dst}, s{dst}, {X2:#x}")
def poison_tiles(P, L):
    ht_addr(sT0, L)
    for f in range(2): a(f"buffer_store_dwordx4 {vr(P,4)}, v{vL16}, {sr(SWS,4)}, s{sT0} offen offset:{2048*f} sc1")
    u_addr(sT0, L)
    a(f"s_cmp_eq_u32 s{sP3}, 7")
    a(f"s_cselect_b32 s{sT0}, {DUMP:#x}, s{sT0}")
    for f in range(2): a(f"buffer_store_dwordx4 {vr(P,4)}, v{vL16}, {sr(SWS,4)}, s{sT0} offen offset:{2048*f} sc1")
    if L == 0: x2_addr(sT0)
    else:
        for x in (f"s_lshl_b32 s{sT0}, s{sRB}, 2", f"s_add_u32 s{sT0}, s{sT0}, s{sW}", f"s_lshl_b32 s{sT0}, s{sT0}, 4",
                  f"s_add_u32 s{sT0}, s{sT0}, s{sHP}", f"s_lshl_b32 s{sT0}, s{sT0}, 11", f"s_add_u32 s{sT0}, s{sT0}, {PQ[1]:#x}"): a(x)
    for f in range(2): a(f"buffer_store_dwordx4 {vr(P,4)}, v{vL16}, {sr(SWS,4)}, s{sT0} offen offset:{1024*f} sc1")

def code_prefetch():
    if opt("CODEPF", 1):
        a(f"s_getpc_b64 {sr(SCODE,2)}")
        a.label("L_PC")
        a(f"s_and_b32 s{SCODE+1}, s{SCODE+1}, 0xffff")
        a(f"s_mov_b32 s{SCODE+2}, L_END - L_PC")
        a(f"s_mov_b32 s{SCODE+3}, 0x20000")
        a(f"s_lshr_b32 s{sT0}, s{sB}, 3")
        a(f"s_lshl_b32 s{sT0}, s{sT0}, 12")
        a(f"s_add_u32 s{sT0}, s{sT0}, s{sW1K}")
        a(f"buffer_load_dwordx4 {ar(252,4)}, v{vL16}, {sr(SCODE,4)}, s{sT0} offen")
    srd(SCODE, sKA + 8, 2048 * 1792 * 2)

def touch(srdn, rows_per_wave, lines_per_row_log2, pitch, scol_emit, dst):
    lg = lines_per_row_log2
    n = rows_per_wave << lg
    scol_emit()
    a(f"v_min_u32 v{vT0}, {n-1}, v{vL}")
    a(f"v_lshrrev_b32 v{vT1}, {lg}, v{vT0}")
    a(f"v_mul_u32_u24 v{vT1}, {pitch}, v{vT1}")
    a(f"v_and_b32 v{vT0}, {(1<<lg)-1}, v{vT0}")
    a(f"v_lshl_add_u32 v{vT0}, v{vT0}, 7, v{vT1}")
    a(f"s_mul_i32 s{sT5}, s{sWI}, {rows_per_wave*pitch}")
    a(f"s_add_u32 s{sT4}, s{sT4}, s{sT5}")
    a(f"buffer_load_dword {dst}, v{vT0}, {sr(srdn,4)}, s{sT4} offen")
def touch_w1():
    if not opt("TOUCH", 1): return
    touch(SCODE, 16, 2, 3584, lambda: a(f"s_lshl_b32 s{sT4}, s{sXC}, 7"), "a252")
def touch_w2():
    if not opt("TOUCH", 1): return
    def c2():
        a(f"s_and_b32 s{sT4}, s{sB}, 7"); a(f"s_lshl_b32 s{sT4}, s{sT4}, 9")
    touch(SW2, 14, 2, 4096, c2, "a253")
def touch_wo():
    if not opt("TOUCH", 1): return
    touch(SWO, 4, 3, 1024, lambda: a(f"s_mov_b32 s{sT4}, 0"), "a254")
def touch_wqt(dst):
    if not opt("TOUCH", 1): return
    def c():
        a(f"s_lshr_b32 s{sT4}, s{sHP}, 3"); a(f"s_mul_i32 s{sT4}, s{sT4}, {8*98304}"); a(f"s_add_u32 s{sT4}, s{sT4}, {WQT:#x}")
    touch(SWS, 6, 3, 1024, c, dst)

def verify(vMX, redo):
    ok = a.newlabel("VOK")
    a(f"v_cmp_eq_u32 vcc, -1, v{vMX}")
    a(f"s_cbranch_vccz {ok}")
    a("s_waitcnt vmcnt(0)")
    a(f"s_sub_u32 s{sTO}, s{sTO}, 64")
    a(f"s_cbranch_scc0 {redo}")
    a(f"s_mov_b32 s{sTO}, 0")
    a.label(ok)

def init_misc(P):
    a(f"s_mul_i32 s{sT0}, s{sB}, 6144")
    a(f"s_add_u32 s{sT0}, s{sT0}, {SELFP:#x}")
    a(f"s_add_u32 s{sT1}, s{sT0}, s{sW1K}")
    a(f"buffer_store_dwordx4 {vr(P,4)}, v{vL16}, {sr(SWS,4)}, s{sT1} offen sc1")
    a(f"v_lshlrev_b32 v{vT0}, 3, v{vL}")
    a(f"s_lshl_b32 s{sT1}, s{sW}, 9")
    a(f"s_add_u32 s{sT0}, s{sT0}, s{sT1}")
    a(f"s_add_u32 s{sT0}, s{sT0}, 4096")
    a(f"buffer_store_dwordx2 {vr(P,2)}, v{vT0}, {sr(SWS,4)}, s{sT0} offen sc1")
    a(f"s_lshl_b32 s{sT0}, s{sST}, 1")
    a(f"s_add_u32 s{sT0}, s{sT0}, s{sRH}")
    a(f"s_lshl_b32 s{sT0}, s{sT0}, 5")
    a(f"v_and_b32 v{vT0}, 31, v{vL}")
    a(f"v_add_u32 v{vT0}, s{sT0}, v{vT0}")
    a(f"v_lshlrev_b32 v{vT1}, 1, v{vT0}")
    a(f"buffer_load_ushort v{vB2}, v{vT1}, {sr(SB2,4)}, 0 offen")
    a(f"v_lshlrev_b32 v{vT0}, 10, v{vT0}")
    a(f"v_lshl_add_u32 v{vOUT}, v{vHH}, 4, v{vT0}")
    a(f"s_lshl_b32 s{sT0}, s{sDT}, 1")
    a(f"s_add_u32 s{sT0}, s{sT0}, s{sKH}")
    a(f"s_lshl_b32 s{sT0}, s{sT0}, 6")
    a(f"v_add_u32 v{vOUT}, s{sT0}, v{vOUT}")
    a(f"buffer_load_dwordx4 {vr(XR,4)}, v{vOUT}, {sr(SX,4)}, 0 offen")
    a(f"buffer_load_dwordx4 {vr(XR+4,4)}, v{vOUT}, {sr(SX,4)}, 0 offen offset:32")
    tr_base(vWTA, vWTB, sRH, f"s{sWA}")

def split2(dst, src, t0):
    a(f"v_cvt_pk_bf16_f32 v{t0}, v{src}, v{src}")
    a(f"v_and_b32 v{t0}, 0xffff0000, v{t0}")
    a(f"v_sub_f32 v{dst}, v{src}, v{t0}")
    a(f"v_cvt_pk_bf16_f32 v{dst}, v{t0}, v{dst}")

def stats_to_frags(S, Q, RA):
    a(f"v_mul_f32 v{S}, {fl(-1/512)}, v{S}")
    a(f"v_mul_f32 v{Q}, {fl(1/512)}, v{Q}")
    a(f"v_cmp_eq_u32 vcc, 0, v{vHH}")
    a(f"v_fma_f32 v{Q}, -v{S}, v{S}, v{Q}")
    a(f"v_max_f32 v{Q}, 0, v{Q}")
    a(f"v_add_f32 v{Q}, {fl(1e-5)}, v{Q}")
    a(f"v_rsq_f32 v{vRS}, v{Q}")
    a(f"v_cndmask_b32 v{S}, 0, v{S}, vcc")
    a(f"v_cvt_pk_bf16_f32 v{MA}, v{S}, v{S}")
    a(f"v_cndmask_b32 v{Q}, 0, v{vRS}, vcc")
    a(f"v_and_b32 v{vT0}, 0xffff0000, v{MA}")
    a(f"v_sub_f32 v{S}, v{S}, v{vT0}")
    a(f"v_cvt_pk_bf16_f32 v{MA+1}, v{S}, v{S}")
    split2(RA, Q, vT0)

XF = 128
def p1(L):
    ACCK, ACCV, RR = 32, 48, 64
    VV, PK, T1 = 80, 88, 96
    S0, S1, Q0, Q1 = 80, 81, 82, 83
    CF = 84
    CFV, CFQ, RA = 112, 116, 120
    vTQ, vTV = 124, 125
    vW, vXA, vXB = 126, 127, 96
    vCQ, vCV = 97, 98
    XA = 88
    WFR = 216; NWF = 4; ONESF = 248; CG = 200; CK, CV, CQ = 152, 168, 184
    a.c(f"======== P1 layer {L}")
    xid = {}; wid = {}
    toff = 256 if L == 0 else 512
    def addr_setup():
        a(f"v_bfe_u32 v{vT0}, v{vL}, 2, 2")
        a(f"v_lshl_add_u32 v{vT0}, v{vHH}, {3 if L == 0 else 2}, v{vT0}")
        a(f"v_lshlrev_b32 v{vTQ}, 6, v{vT0}")
        a(f"v_bfe_u32 v{vT1}, v{vL}, 4, 1")
        a(f"v_lshl_add_u32 v{vTQ}, v{vT1}, 5, v{vTQ}")
        a(f"v_and_b32 v{vT1}, 3, v{vL}")
        a(f"v_lshl_add_u32 v{vTQ}, v{vT1}, 3, v{vTQ}")
        a(f"v_add_u32 v{vTV}, 65536, v{vTQ}")
        for i in range(4): a(f"v_accvgpr_write_b32 a{ONESF+i}, s{sONES}")
        for r in (MA + 2, MA + 3, RA + 1, RA + 2, RA + 3, CF + 2, CF + 3, CFV + 2, CFV + 3, CFQ + 2, CFQ + 3): a(f"v_mov_b32 v{r}, 0")
    rg = {}
    def RG(s):
        b = WFR + (s % NWF) * 8
        o = s * 1024
        a(f"ds_read_b64_tr_b16 {ar(b,2)}, v{vTQ} offset:{32768+o}")
        a(f"ds_read_b64_tr_b16 {ar(b+2,2)}, v{vTQ} offset:{32768+o+toff}")
        a(f"ds_read_b64_tr_b16 {ar(b+4,2)}, v{vTV} offset:{o}")
        rg[s] = a(f"ds_read_b64_tr_b16 {ar(b+6,2)}, v{vTV} offset:{o+toff}")
    if L == 0:
        init_poison(T1 + 4)
        a(f"v_lshrrev_b32 v{vT0}, 2, v{vL}")
        a(f"s_lshl_b32 s{sT0}, s{sW}, 4")
        a(f"v_add_u32 v{vT0}, s{sT0}, v{vT0}")
        a(f"v_mul_u32_u24 v{vW}, 3072, v{vT0}")
        a(f"v_and_b32 v{vT0}, 3, v{vL}")
        a(f"v_lshl_add_u32 v{vW}, v{vT0}, 4, v{vW}")
        a(f"s_lshl_b32 s{sT0}, s{sHP}, 6")
        a(f"v_add_u32 v{vW}, s{sT0}, v{vW}")
        a(f"s_lshl_b32 s{sT0}, s{sRB}, 2")
        a(f"s_add_u32 s{sT0}, s{sT0}, s{sW}")
        a(f"s_lshl_b32 s{sT0}, s{sT0}, 15")
        a(f"v_lshrrev_b32 v{vT0}, 3, v{vL}")
        a(f"v_lshlrev_b32 v{vT0}, 10, v{vT0}")
        a(f"v_add_u32 v{vT0}, s{sT0}, v{vT0}")
        a(f"v_and_b32 v{vT1}, 7, v{vL}")
        a(f"v_lshrrev_b32 v{vT2}, 4, v{vL}")
        a(f"v_xor_b32 v{vT1}, v{vT1}, v{vT2}")
        a(f"v_lshl_add_u32 v{vXA}, v{vT1}, 4, v{vT0}")
        a(f"v_xor_b32 v{vXB}, 64, v{vXA}")
        a(f"v_add_u32 v{vXB}, {8192-1024}, v{vXB}")
        def slot_issue(j):
            a(f"s_add_u32 s{sKB}, s{sROTX}, {j}")
            a(f"s_and_b32 s{sKB}, s{sKB}, 7")
            a(f"s_lshl_b32 s{sT1}, s{sKB}, 7")
            a(f"s_add_u32 m0, s{sWB}, {(j&3)*4096}")
            a(f"s_mul_i32 s{sSO}, s{sKB}, {64*3072}")
            a(f"buffer_load_dwordx4 v{vXA}, {sr(SX,4)}, s{sT1} offen lds")
            a(f"buffer_load_dwordx4 v{vXB}, {sr(SX,4)}, s{sT1} offen offset:1024 lds")
            a(f"s_add_u32 m0, s{sWB}, {(j&3)*4096+2048}")
            a(f"s_add_u32 s{sT1}, s{sT1}, 16384")
            a(f"buffer_load_dwordx4 v{vXA}, {sr(SX,4)}, s{sT1} offen lds")
            a(f"buffer_load_dwordx4 v{vXB}, {sr(SX,4)}, s{sT1} offen offset:1024 lds")
            for seg in (1, 2, 0):
                a(f"s_add_u32 m0, s{sW1K}, {seg*32768 - seg*1024 + j*4096}")
                wid[j] = a(f"buffer_load_dwordx4 v{vW}, {sr(SWQKV,4)}, s{sSO} offen offset:{seg*1024} lds")
        LA = opt("LA0", 2)
        slot_issue(0)
        pass
        late_srds()
        addr_setup()
        a(f"v_add_u32 v{vCQ}, s{sW1K}, v{vTQ}")
        a(f"v_add_u32 v{vCV}, s{sW1K}, v{vTV}")
        for r in (S0, S1, Q0, Q1): a(f"v_mov_b32 v{r}, 0")
        a(f"v_and_b32 v{vT0}, 31, v{vL}")
        a(f"v_bfe_u32 v{vT1}, v{vL}, 1, 3")
        a(f"v_xor_b32 v{vT1}, v{vT1}, v{vHH}")
        a(f"v_lshlrev_b32 v{vT0}, 7, v{vT0}")
        a(f"v_add_u32 v{vT0}, s{sWB}, v{vT0}")
        for t in range(4):
            a(f"v_xor_b32 v{vT2}, {2*t}, v{vT1}")
            a(f"v_lshl_add_u32 v{XA+t}, v{vT2}, 4, v{vT0}")
        code_prefetch()
        for j in range(1, LA): slot_issue(j)
        init_misc(T1 + 4)
        pass
        initld = None
        cg = None
        def colsum(j):
            a.wait(lg=cg)
            for k, c in enumerate((CK, CV, CQ)):
                mfma(ar(c,16), ar(ONESF,4), ar(CG+4*k,4), "0" if j == 0 else ar(c,16))
        for j in range(8):
            a.wait(vm=wid[j])
            a("s_barrier")
            if j == 0:
                stamp("p1_first")
                skip = a.newlabel("NOINIT")
                a(f"s_cmp_ge_u32 s{sB}, 32")
                a(f"s_cbranch_scc1 {skip}")
                a(f"s_cmp_lg_u32 s{sW}, 0")
                a(f"s_cbranch_scc1 {skip}")
                with cond():
                    a(f"v_mov_b32 v{vT0}, 1")
                    a(f"s_lshl_b32 s{sT0}, s{sB}, 2")
                    a(f"v_mov_b32 v{vT1}, s{sT0}")
                    set_exec(1)
                    a(f"buffer_store_dword v{vT0}, v{vT1}, {sr(SDBG,4)}, 0 offen offset:128 sc1")
                    set_exec(FULL)
                a.label(skip)
            xr = [a(f"ds_read_b128 {vr(XF+16*j+4*t,4)}, v{XA+t} offset:{(j&3)*4096}") for t in range(4)]
            RG(4 * j); RG(4 * j + 1)
            if j > 0: colsum(j - 1)
            if j + LA < 8: slot_issue(j + LA)
            if j == 8 - LA:
                poison_tiles(T1 + 4, 0)
                touch_wo()
                a(f"v_and_b32 v{vT2}, 31, v{vL}")
                a(f"v_lshlrev_b32 v{vT2}, 2, v{vT2}")
                initld = a(f"buffer_load_dword v{vT3}, v{vT2}, {sr(SDBG,4)}, 0 offen offset:128 sc1")
            for t in range(4):
                a.wait(lg=xr[t])
                for k in range(4):
                    r = XF + 16 * j + 4 * t + k
                    a(f"v_dot2_f32_bf16 v{S0+(k&1)}, v{r}, s{sONES}, v{S0+(k&1)}")
                    a(f"v_dot2_f32_bf16 v{Q0+(k&1)}, v{r}, v{r}, v{Q0+(k&1)}")
            for s in range(4 * j, 4 * j + 4):
                a.wait(lg=rg[s])
                b = WFR + (s % NWF) * 8
                x = vr(XF + 4 * s, 4)
                mfma(vr(ACCK,16), x, ar(b,4), "0" if s == 0 else vr(ACCK,16))
                if s + 2 < 4 * j + 4: RG(s + 2)
                if s == 4 * j + 2:
                    o = j * 4096
                    a(f"ds_read_b64_tr_b16 {ar(CG,2)}, v{vCQ} offset:{32768+o}")
                    a(f"ds_read_b64_tr_b16 {ar(CG+2,2)}, v{vCQ} offset:{32768+o+toff}")
                    a(f"ds_read_b64_tr_b16 {ar(CG+4,2)}, v{vCV} offset:{o}")
                    a(f"ds_read_b64_tr_b16 {ar(CG+6,2)}, v{vCV} offset:{o+toff}")
                    a(f"ds_read_b64_tr_b16 {ar(CG+8,2)}, v{vCQ} offset:{o}")
                    cg = a(f"ds_read_b64_tr_b16 {ar(CG+10,2)}, v{vCQ} offset:{o+toff}")
                mfma(vr(ACCV,16), x, ar(b+4,4), "0" if s == 0 else vr(ACCV,16))
        colsum(7)
        stamp("p1_gemm")
        CPY = T1
        a(f"s_lshr_b32 s{sT0}, s{sRB}, 1")
        a(f"s_sub_u32 s{sT0}, s{sT0}, s{sROTX}")
        a(f"s_and_b32 s{sT0}, s{sT0}, 7")
        a(f"s_lshl_b32 s{sT0}, s{sT0}, 12")
        a(f"s_and_b32 s{sT1}, s{sRB}, 1")
        a(f"s_lshl_b32 s{sT1}, s{sT1}, 11")
        a(f"s_add_u32 s{sT0}, s{sT0}, s{sT1}")
        a(f"s_min_u32 s{sT2}, s{sW}, 2")
        a(f"s_lshl_b32 s{sT2}, s{sT2}, 15")
        a(f"s_add_u32 s{sT0}, s{sT0}, s{sT2}")
        a(f"v_add_u32 v{vT0}, s{sT0}, v{vL16}")
        a(f"ds_read_b128 {vr(CPY,4)}, v{vT0}")
        a(f"ds_read_b128 {vr(CPY+4,4)}, v{vT0} offset:1024")
        a(f"v_add_f32 v{S0}, v{S0}, v{S1}")
        a(f"v_add_f32 v{Q0}, v{Q0}, v{Q1}")
        a(f"v_mov_b32 v{S1}, v{S0}")
        a(f"v_mov_b32 v{Q1}, v{Q0}")
        a(f"v_add_u32 v{vT1}, s{sWB}, v{vL16}")
        a(f"v_permlane32_swap_b32 v{S0}, v{S1}")
        a(f"v_permlane32_swap_b32 v{Q0}, v{Q1}")
        CS4 = T1 + 8
        a(f"v_accvgpr_read_b32 v{CS4}, a{CK}")
        a(f"v_accvgpr_read_b32 v{CS4+1}, a{CV}")
        a(f"v_accvgpr_read_b32 v{CS4+2}, a{CQ}")
        a(f"ds_write_b128 v{vT1}, {vr(CS4,4)}")
        a(f"v_add_f32 v{S0}, v{S0}, v{S1}")
        a(f"v_add_f32 v{Q0}, v{Q0}, v{Q1}")
        a(f"v_add_u32 v{vT1}, {L_B}, v{vL16}")
        a.wait_lg_all()
        a("s_barrier")
        for w in range(4): cr = a(f"ds_read_b128 {vr(PK+4*(w&1) if w < 2 else CS4+4*(w&1),4)}, v{vT1} offset:{16384*w}")
        stats_to_frags(S0, Q0, RA)
        mfma(vr(RR,16), vr(RA,4), ar(ONESF,4), "0")
        a(f"s_mul_i32 s{sT3}, s{sHP}, 98304")
        a(f"s_add_u32 s{sT3}, s{sT3}, s{sT2}")
        a(f"s_lshl_b32 s{sT1}, s{sRB}, 11")
        a(f"s_add_u32 s{sT3}, s{sT3}, s{sT1}")
        a(f"s_add_u32 s{sT3}, s{sT3}, {WQT:#x}")
        a(f"buffer_store_dwordx4 {vr(CPY,4)}, v{vL16}, {sr(SWS,4)}, s{sT3} offen sc1")
        a(f"buffer_store_dwordx4 {vr(CPY+4,4)}, v{vL16}, {sr(SWS,4)}, s{sT3} offen offset:1024 sc1")
        a.wait(lg=cr)
        for j in (0, 2):
            pk("add", PK+j, vr(PK+j,2), vr(PK+4+j,2)); pk("add", CS4+j, vr(CS4+j,2), vr(CS4+4+j,2))
        for j in (0, 2): pk("add", PK+j, vr(PK+j,2), vr(CS4+j,2))
        split2(CKP, PK, vT0)
        split2(CVP, PK + 1, vT1)
        for c, p in ((CF, CKP), (CFV, CVP)):
            a(f"v_mov_b32 v{c}, v{p}"); a(f"v_mov_b32 v{c+1}, v{p}")
        mfma(vr(ACCK,16), vr(MA,4), vr(CF,4), vr(ACCK,16))
        mfma(vr(ACCV,16), vr(MA,4), vr(CFV,4), vr(ACCV,16))
        split2(CQP, PK + 2, vT0)
        pump.setup(1)
    else:
        addr_setup()
        for c, p in ((CF, CKP), (CFV, CVP)):
            a(f"v_mov_b32 v{c}, v{p}"); a(f"v_mov_b32 v{c+1}, v{p}")
        a(f"s_lshl_b32 s{sT0}, s{sRB}, 1")
        a(f"s_add_u32 s{sT0}, s{sT0}, s{sRH}")
        a(f"s_lshl_b32 s{sT1}, s{sT0}, 13")
        a(f"s_lshl_b32 s{sT2}, s{sKH}, 8")
        a(f"s_add_u32 s{sT1}, s{sT1}, s{sT2}")
        a(f"s_add_u32 s{sT1}, s{sT1}, {ST2:#x}")
        a(f"s_lshl_b32 s{sT4}, s{sRB}, 2")
        a(f"s_add_u32 s{sT4}, s{sT4}, s{sW}")
        a(f"s_lshl_b32 s{sT4}, s{sT4}, 15")
        a(f"s_add_u32 s{sT4}, s{sT4}, {X2:#x}")
        a(f"v_and_b32 v{vT0}, 31, v{vL}")
        a(f"v_lshlrev_b32 v{vT0}, 3, v{vT0}")
        a(f"v_lshl_add_u32 v{vXA}, v{vHH}, 12, v{vT0}")
        a(f"s_mul_i32 s{sKB}, s{sHP}, 98304")
        a(f"s_lshl_b32 s{sT2}, s{sW}, 13")
        a(f"s_add_u32 s{sKB}, s{sKB}, s{sT2}")
        a(f"s_add_u32 s{sKB}, s{sKB}, {WQT:#x}")
        SB = T1
        def issue():
            for p in range(8): a(f"buffer_load_dwordx2 {vr(SB+2*p,2)}, v{vXA}, {sr(SWS,4)}, s{sT1} offen offset:{p*512} sc1")
        def check():
            a(f"v_max3_u32 v{vT3}, v{SB+1}, v{SB+3}, v{SB+5}")
            a(f"v_max3_u32 v{vT3}, v{vT3}, v{SB+7}, v{SB+9}")
            a(f"v_max3_u32 v{vT3}, v{vT3}, v{SB+11}, v{SB+13}")
            a(f"v_max_u32 v{vT3}, v{vT3}, v{SB+15}")
            a(f"v_cmp_eq_u32 vcc, -1, v{vT3}")
        a(f"s_mov_b32 s{sT0}, s{sT4}")
        pump.setup(1)
        a(f"s_mov_b32 s{sT4}, s{sT0}")
        poll(issue, check, 0x40)
        stamp("p1_flag")
        def XL(s):
            xid[s] = a(f"buffer_load_dwordx4 {vr(XF+4*s,4)}, v{vL16}, {sr(SWS,4)}, s{sSO} offen offset:{(s&3)*1024} sc1")
            if s & 3 == 3 and s < 31: a(f"s_add_u32 s{sSO}, s{sSO}, 4096")
        LA = opt("LA1", 10)
        vMX = vW
        a(f"s_mov_b32 s{sSO}, s{sT4}")
        for s in range(LA): XL(s)
        a("s_barrier")
        for n in (4, 2, 1):
            for p in range(n): pk("add", SB+2*p, vr(SB+2*p,2), vr(SB+2*(p+n),2))
        a(f"v_mov_b32 v{SB+2}, v{SB}")
        a(f"v_mov_b32 v{SB+3}, v{SB+1}")
        a(f"v_permlane32_swap_b32 v{SB}, v{SB+2}")
        a(f"v_permlane32_swap_b32 v{SB+1}, v{SB+3}")
        pk("add", SB, vr(SB,2), vr(SB+2,2))
        stats_to_frags(SB, SB + 1, RA)
        mfma(vr(RR,16), vr(RA,4), ar(ONESF,4), "0")
        go = a.newlabel("XGO"); redo = a.newlabel("XREDO")
        a(f"s_branch {go}")
        a.label(redo)
        st_vm = (a.vm, a.vm_done)
        a(f"s_mov_b32 s{sSO}, s{sT4}")
        sv = dict(xid)
        for s in range(LA): XL(s)
        xid.update(sv); a.vm, a.vm_done = st_vm
        a.label(go)
        RG(0); RG(1); RG(2)
        a(f"v_mov_b32 v{vMX}, 0")
        a(f"s_mov_b32 s{sT3}, s{sKB}")
        mfma(vr(ACCK,16), vr(MA,4), vr(CF,4), "0")
        mfma(vr(ACCV,16), vr(MA,4), vr(CFV,4), "0")
        qid = None
        for s in range(32):
            a.wait(vm=xid[s], lg=rg[s])
            b = WFR + (s % NWF) * 8
            x = vr(XF + 4 * s, 4)
            mfma(vr(ACCK,16), x, ar(b,4), vr(ACCK,16))
            if s + LA < 32: XL(s + LA)
            elif s + LA - 32 < 8:
                j = s + LA - 32
                if j == 4: a(f"s_add_u32 s{sT3}, s{sT3}, 4096")
                if j & 3 == 0: a(f"s_add_u32 m0, s{sT2}, {j*1024}")
                qid = a(f"buffer_load_dwordx4 v{vL16}, {sr(SWS,4)}, s{sT3} offen offset:{(j&3)*1024} lds")
            if s & 1: a(f"v_max3_u32 v{vMX}, v{vMX}, v{XF+4*s-4}, v{XF+4*s}")
            if s + 3 < 32: RG(s + 3)
            mfma(vr(ACCV,16), x, ar(b+4,4), vr(ACCV,16))
        verify(vMX, redo)
        stamp("p1_gemm")
        a("s_barrier")

    for q in range(8): pk("fma", ACCK+2*q, vr(ACCK+2*q,2), vr(RR+2*q,2), sr(sEPS6,2), hi=[1,1,0])
    for q in range(8): pk("mul", T1+2*q, vr(ACCK+2*q,2), sr(sL2E,2), hi=[1,0])
    for i in range(16):
        a(f"v_exp_f32_e64 v{T1+i}, v{T1+i} clamp")
        a(f"v_max_f32 v{ACCK+i}, s{sEPS6}, v{ACCK+i}")
    for q in range(8): pk("mul", ACCV+2*q, vr(ACCV+2*q,2), vr(RR+2*q,2))
    for q in range(8): pk("add", ACCK+2*q, vr(ACCK+2*q,2), vr(T1+2*q,2))
    for q in range(8):
        a(f"v_cvt_pk_bf16_f32 v{PK+q}, v{ACCK+2*q}, v{ACCK+2*q+1}")
        a(f"v_cvt_pk_bf16_f32 v{VV+q}, v{ACCV+2*q}, v{ACCV+2*q+1}")
    KVA, ZA = RR, T1
    mfma(vr(KVA,16), vr(PK,4), vr(VV,4), "0")
    mfma(vr(KVA,16), vr(PK+4,4), vr(VV+4,4), vr(KVA,16))
    a(f"v_bfe_u32 v{vT0}, v{vL}, 4, 1")
    a(f"v_cmp_ne_u32 vcc, 0, v{vT0}")
    a(f"v_lshl_add_u32 v{vT0}, v{vT0}, 1, v{vHH}")
    a(f"v_mul_u32_u24 v{vT0}, 17, v{vT0}")
    mfma(vr(ZA,16), vr(PK,4), ar(ONESF,4), "0")
    a(f"v_and_b32 v{vT1}, 15, v{vL}")
    a(f"v_add_u32 v{vT0}, v{vT0}, v{vT1}")
    a(f"v_lshlrev_b32 v{vT0}, 5, v{vT0}")
    a(f"v_add_u32 v{vT0}, s{sWA}, v{vT0}")
    mfma(vr(ZA,16), vr(PK+4,4), ar(ONESF,4), vr(ZA,16))
    a(f"s_mul_i32 s{sT0}, s{sW}, 544")
    a(f"s_lshl_b32 s{sT1}, s{sHP}, 4")
    a(f"s_add_u32 s{sT1}, s{sT1}, s{sRB}")
    a(f"s_lshl_b32 s{sT1}, s{sT1}, 2")
    a(f"s_add_u32 s{sT1}, s{sT1}, s{sW}")
    a(f"s_mul_i32 s{sT1}, s{sT1}, 640")
    a(f"s_add_u32 s{sT1}, s{sT1}, {KVP[L]:#x}")
    a(f"s_add_u32 s{sT0}, s{sT0}, {L_A + SCR}")
    a(f"v_add_u32 v{vXA}, s{sT0}, v{vL16}")
    for j in range(8): a(f"v_cndmask_b32 v{ACCK+j}, v{KVA+j}, v{KVA+8+j}, vcc")
    a(f"ds_write_b128 v{vT0}, {vr(ACCK,4)} offset:{SCR}")
    a(f"ds_write_b128 v{vT0}, {vr(ACCK+4,4)} offset:{SCR+16}")
    for j in range(8): a(f"v_cndmask_b32 v{ACCK+8+j}, v{ZA+j}, v{ZA+8+j}, vcc")
    set_exec(0x0001000100010001)
    a(f"ds_write_b128 v{vT0}, {vr(ACCK+8,4)} offset:{SCR+512}")
    a(f"ds_write_b128 v{vT0}, {vr(ACCK+12,4)} offset:{SCR+528}")
    set_exec(FULL)
    if L == 0:
        def issue(): a(f"buffer_load_dword v{vT3}, v{vT2}, {sr(SDBG,4)}, 0 offen offset:128 sc1")
        def check(): a(f"v_cmp_ne_u32 vcc, 1, v{vT3}")
        poll(issue, check, 0x10, pre=initld)
    NQ = 8; QLA = 6
    rq = {}
    def RQ(s):
        b = WFR + (s % NQ) * 4
        a(f"ds_read_b64_tr_b16 {ar(b,2)}, v{vTQ} offset:{s*1024}")
        rq[s] = a(f"ds_read_b64_tr_b16 {ar(b+2,2)}, v{vTQ} offset:{s*1024+toff}")
    if L == 1: a.wait(vm=qid)
    a.wait_lg_all()
    a("s_barrier")
    for w in range(4): kr = a(f"ds_read_b128 {vr(RR+4*w,4)}, v{vXA} offset:{16384*w}")
    for s in range(QLA): RQ(s)
    a(f"v_mov_b32 v{CFQ}, v{CQP}"); a(f"v_mov_b32 v{CFQ+1}, v{CQP}")
    a.wait(lg=kr)
    pk("add", RR, vr(RR,2), vr(RR+4,2)); pk("add", RR+2, vr(RR+2,2), vr(RR+6,2))
    pk("add", RR+8, vr(RR+8,2), vr(RR+12,2)); pk("add", RR+10, vr(RR+10,2), vr(RR+14,2))
    pk("add", RR, vr(RR,2), vr(RR+8,2)); pk("add", RR+2, vr(RR+2,2), vr(RR+10,2))
    set_exec((1 << 40) - 1)
    a(f"buffer_store_dwordx4 {vr(RR,4)}, v{vL16}, {sr(SWS,4)}, s{sT1} offen sc1")
    set_exec(FULL)
    stamp("p1_kvpub")
    touch_w1()
    pump.fill(opt("F0", 2))
    ACCQ = ACCK
    mfma(vr(ACCQ,16), vr(CFQ,4), vr(MA,4), "0")
    if L == 0:
        a(f"s_lshl_b32 s{sT4}, s{sDT}, 7")
        dma_voff(vXA, vW, 1024, sT4)
        a(f"s_lshl_b32 s{sSO}, s{sW}, 17")
    sal = [f"s_lshl_b32 s{sT0}, s{sRB}, 2", f"s_add_u32 s{sT0}, s{sT0}, s{sW}", f"s_lshl_b32 s{sT0}, s{sT0}, 4",
           f"s_add_u32 s{sT0}, s{sT0}, s{sHP}", f"s_lshl_b32 s{sT0}, s{sT0}, 11", f"s_add_u32 s{sT1}, s{sT0}, {PQ[L]:#x}",
           f"s_lshl_b32 s{sT0}, s{sRB}, 4", f"s_add_u32 s{sT0}, s{sT0}, s{sHP}", f"s_lshl_b32 s{sT0}, s{sT0}, 7",
           f"s_add_u32 s{sT0}, s{sT0}, {FL_PQ}"]
    if L == 1: sal = sal[:6]
    for s in range(32):
        a.wait(lg=rq[s])
        b = WFR + (s % NQ) * 4
        mfma(vr(ACCQ,16), ar(b,4), vr(XF+4*s,4), vr(ACCQ,16))
        if s + QLA < 32: RQ(s + QLA)
        if L == 0 and s % 4 == 0 and s // 4 < opt("WOQ", 8):
            j = s // 4
            a(f"s_add_u32 m0, s{sWB}, {j*2048}")
            a(f"buffer_load_dwordx4 v{vXA}, {sr(SWO,4)}, s{sSO} offen lds")
            a(f"buffer_load_dwordx4 v{vW}, {sr(SWO,4)}, s{sSO} offen offset:1024 lds")
            a(f"s_add_u32 s{sSO}, s{sSO}, 16384")
        if s % 2 == 1 and sal and s >= 8: a(sal.pop(0))
        if s == opt("A1S", 22):
            a1_early(L); vm_a1 = a.vm
        if opt("QP", 0) and s >= opt("QP0", 8) and (s - opt("QP0", 8)) % opt("QPD", 4) == 0 and pump.c < opt("QP", 0):
            pump.run(pump.c + 1)
    for x in sal: a(x)
    if opt("A1FIRST", 0): a1(L, a.vm - vm_a1)
    for h in range(2):
        for q in range(4*h, 4*h+4): pk("fma", ACCQ+2*q, vr(ACCQ+2*q,2), vr(vRS,2), sr(sEPS6,2), hi=[1,0,0])
        for q in range(4*h, 4*h+4): pk("mul", T1+2*q, vr(ACCQ+2*q,2), sr(sL2E,2), hi=[1,0])
        for i in range(8*h, 8*h+8):
            a(f"v_exp_f32_e64 v{T1+i}, v{T1+i} clamp")
            a(f"v_max_f32 v{ACCQ+i}, s{sEPS6}, v{ACCQ+i}")
        for q in range(4*h, 4*h+4): pk("add", ACCQ+2*q, vr(ACCQ+2*q,2), vr(T1+2*q,2))
        for q in range(4*h, 4*h+4): a(f"v_cvt_pk_bf16_f32 v{PK+q}, v{ACCQ+2*q}, v{ACCQ+2*q+1}")
        sid = a(f"buffer_store_dwordx4 {vr(PK+4*h,4)}, v{vL16}, {sr(SWS,4)}, s{sT1} offen offset:{1024*h} sc1")
    stamp("p1_q")
    if L == 0:
        for j in range(opt("WOQ", 8), 8):
            a(f"s_add_u32 m0, s{sWB}, {j*2048}")
            a(f"buffer_load_dwordx4 v{vXA}, {sr(SWO,4)}, s{sSO} offen lds")
            wo_last = a(f"buffer_load_dwordx4 v{vW}, {sr(SWO,4)}, s{sSO} offen offset:1024 lds")
            a(f"s_add_u32 s{sSO}, s{sSO}, 16384")
    if not opt("A1FIRST", 0): a1(L, a.vm - vm_a1)
    pump.fill(pump.c + opt("F1", 6))
    if L == 0: publish_flag(sid)
    if opt("T2", 1) == 0: touch_w2()
    stamp(f"p1_{L}")

A1B = 128
def a1_issue():
    a(f"s_mov_b32 s{sSO}, s{sKB}")
    for p in range(16):
        a(f"buffer_load_dwordx4 {vr(A1B+4*p,4)}, v{vL16}, {sr(SWS,4)}, s{sSO} offen offset:{(p&1)*2560} sc1")
        if p & 1 and p < 15: a(f"s_add_u32 s{sSO}, s{sSO}, {2*2560}")
def a1_early(L):
    skip = a.newlabel("NOA1E")
    a(f"s_cmp_ge_u32 s{sRED}, 64")
    a(f"s_cbranch_scc1 {skip}")
    with cond():
        a(f"s_lshr_b32 s{sKB}, s{sRED}, 2")
        a(f"s_mul_i32 s{sKB}, s{sKB}, {16*2560}")
        a(f"s_and_b32 s{sT2}, s{sRED}, 3")
        a(f"s_mul_i32 s{sT2}, s{sT2}, 640")
        a(f"s_add_u32 s{sKB}, s{sKB}, s{sT2}")
        a(f"s_add_u32 s{sKB}, s{sKB}, {KVP[L]:#x}")
        a(f"s_mov_b32 s{sT3}, s{sSO}")
        set_exec((1 << 34) - 1)
        a1_issue()
        set_exec(FULL)
        a(f"s_mov_b32 s{sSO}, s{sT3}")
    a.label(skip)
def a1(L, younger):
    a.c("======== A1 reducer")
    skip = a.newlabel("NOA1")
    a(f"s_cmp_ge_u32 s{sRED}, 64")
    a(f"s_cbranch_scc1 {skip}")
    with cond():
        B = A1B
        a(f"s_mul_i32 s{sT2}, s{sRED}, 384")
        a(f"s_add_u32 s{sT2}, s{sT2}, {KVF[L]:#x}")
        a(f"v_lshlrev_b32 v{vT2}, 3, v{vL}")
        set_exec((1 << 34) - 1)
        def check():
            a(f"v_max3_u32 v{vT3}, v{B}, v{B+4}, v{B+8}")
            for p in range(3, 15, 2): a(f"v_max3_u32 v{vT3}, v{vT3}, v{B+4*p}, v{B+4*p+4}")
            a(f"v_max_u32 v{vT3}, v{vT3}, v{B+60}")
            a(f"v_cmp_eq_u32 vcc, -1, v{vT3}")
        a.vm_done = min(a.vm_done, a.vm - younger - 1)
        poll(a1_issue, check, 0x20, pre=a.vm - younger - 1)
        n = 16
        while n > 1:
            n //= 2
            for p in range(n):
                for j in (0, 2): pk("add", B+4*p+j, vr(B+4*p+j,2), vr(B+4*(p+n)+j,2))
        a(f"v_cvt_pk_bf16_f32 v{B+4}, v{B}, v{B+1}")
        a(f"v_cvt_pk_bf16_f32 v{B+5}, v{B+2}, v{B+3}")
        a(f"v_mov_b32_dpp v{B+6}, v{B+4} quad_perm:[1,1,3,3] row_mask:0xf bank_mask:0xf")
        a(f"v_mov_b32_dpp v{B+7}, v{B+5} quad_perm:[1,1,3,3] row_mask:0xf bank_mask:0xf")
        set_exec(0x555555555555)
        a(f"buffer_store_dwordx4 {vr(B+4,4)}, v{vT2}, {sr(SWS,4)}, s{sT2} offen sc1")
        set_exec(FULL)
    a.label(skip)
    stamp("a1")

def row_stats_publish(soff, SM):
    a(f"v_dot2_f32_bf16 v{SM}, v{XR}, s{sONES}, 0")
    a(f"v_dot2_f32_bf16 v{SM+1}, v{XR}, v{XR}, 0")
    a(f"v_dot2_f32_bf16 v{SM+2}, v{XR+1}, s{sONES}, 0")
    a(f"v_dot2_f32_bf16 v{SM+3}, v{XR+1}, v{XR+1}, 0")
    for j in range(2, 8):
        o = 2 * (j & 1)
        a(f"v_dot2_f32_bf16 v{SM+o}, v{XR+j}, s{sONES}, v{SM+o}")
        a(f"v_dot2_f32_bf16 v{SM+o+1}, v{XR+j}, v{XR+j}, v{SM+o+1}")
    a(f"v_lshlrev_b32 v{vT0}, 3, v{vL}")
    pk("add", SM, vr(SM,2), vr(SM+2,2))
    a(f"v_mov_b32 v{SM+2}, v{SM}")
    a(f"v_mov_b32 v{SM+3}, v{SM+1}")
    a(f"v_permlane32_swap_b32 v{SM}, v{SM+2}")
    a(f"v_permlane32_swap_b32 v{SM+1}, v{SM+3}")
    pk("add", SM, vr(SM,2), vr(SM+2,2))
    a(f"v_and_b32 v{SM+1}, 0x7fffffff, v{SM+1}")
    set_exec((1 << 32) - 1)
    i = a(f"buffer_store_dwordx2 {vr(SM,2)}, v{vT0}, {sr(SWS,4)}, s{soff} offen sc1")
    set_exec(FULL)
    return i

def stat_slot(dst, base):
    a(f"s_lshl_b32 s{dst}, s{sST}, 3")
    a(f"s_add_u32 s{dst}, s{dst}, s{sDT}")
    a(f"s_lshl_b32 s{dst}, s{dst}, 1")
    a(f"s_add_u32 s{dst}, s{dst}, s{sKH}")
    a(f"s_lshl_b32 s{dst}, s{dst}, 1")
    a(f"s_add_u32 s{dst}, s{dst}, s{sRH}")
    a(f"s_lshl_b32 s{dst}, s{dst}, 8")
    a(f"s_add_u32 s{dst}, s{dst}, {base:#x}")

def unpack_xr(XU):
    for j in range(8):
        a(f"v_lshlrev_b32 v{XU+2*j}, 16, v{XR+j}")
        a(f"v_and_b32 v{XU+2*j+1}, 0xffff0000, v{XR+j}")

def p2(L):
    a.c(f"======== P2 layer {L}")
    KF, QF = 128, 192
    ACC = 32; CR = 64; OF = 96; WF = 104; XU = 64
    a(f"s_lshl_b32 s{sT3}, s{sST}, 1")
    a(f"s_add_u32 s{sT3}, s{sT3}, s{sRH}")
    a(f"s_lshl_b32 s{sT3}, s{sT3}, 1")
    a(f"s_add_u32 s{sT3}, s{sT3}, s{sKH}")
    a(f"s_lshl_b32 s{sT3}, s{sT3}, 14")
    a(f"s_add_u32 s{sT3}, s{sT3}, {PQ[L]:#x}")
    tr_base(vTA, vTB, sKH, L_B)
    a(f"s_lshl_b32 s{sT2}, s{sKH}, 15")
    a(f"v_add_u32 v{vTA}, s{sT2}, v{vTA}")
    a(f"v_add_u32 v{vTB}, s{sT2}, v{vTB}")
    if L == 0:
        for q in range(2):
            a(f"v_permlane32_swap_b32 v{XR+4*q}, v{XR+4*q+2}")
            a(f"v_permlane32_swap_b32 v{XR+4*q+1}, v{XR+4*q+3}")
        a(f"v_lshlrev_b32 v{vB2}, 16, v{vB2}")
    vK, vKC, vMX = MA, MA + 1, MA + 2
    a(f"s_mul_i32 s{sT1}, s{sKH}, {16*768}")
    a(f"s_add_u32 s{sT1}, s{sT1}, {KVF[L]:#x}")
    a(f"v_and_b32 v{vT0}, 31, v{vL}")
    a(f"v_mul_u32_u24 v{vKC}, 384, v{vT0}")
    a(f"s_add_u32 s{sT0}, s{sT1}, 256")
    a(f"v_add_u32 v{vKC}, s{sT0}, v{vKC}")
    a(f"v_and_b32 v{vT2}, 7, v{vL}")
    if L == 0:
        a(f"s_lshr_b32 s{sT0}, s{sST}, 1")
        a(f"s_lshl_b32 s{sT0}, s{sT0}, 1")
        a(f"s_add_u32 s{sT0}, s{sT0}, s{sKH}")
        a(f"s_lshl_b32 s{sT0}, s{sT0}, 10")
        a(f"s_add_u32 s{sT0}, s{sT0}, {FL_PQ}")
        a(f"v_lshlrev_b32 v{vT2}, 7, v{vT2}")
    else:
        a(f"s_add_u32 s{sT0}, s{sT3}, 2044")
        a(f"v_lshlrev_b32 v{vT2}, 11, v{vT2}")
    a(f"v_cmp_eq_u32 vcc, 0, v{vHH}")
    a(f"v_add_u32 v{vT2}, s{sT0}, v{vT2}")
    a(f"v_min_u32 v{vT0}, 16, v{vT0}")
    a(f"v_cndmask_b32 v{vKC}, v{vT2}, v{vKC}, vcc")
    a(f"v_lshlrev_b32 v{vT0}, 4, v{vT0}")
    a(f"v_mul_u32_u24 v{vT1}, 384, v{vHH}")
    a(f"v_add_u32 v{vK}, v{vT0}, v{vT1}")
    pump.run(opt("B1", 10), refill=bool(opt("B1R", 0)))
    a.wait_lg_all()
    a("s_barrier")
    rw = {}
    def RW(j):
        b = WF + (j % 3) * 8
        a(f"ds_read_b64_tr_b16 {vr(b,2)}, v{vTA} offset:{j*2048}")
        a(f"ds_read_b64_tr_b16 {vr(b+2,2)}, v{vTA} offset:{j*2048+1024}")
        a(f"ds_read_b64_tr_b16 {vr(b+4,2)}, v{vTB} offset:{j*2048}")
        rw[j] = a(f"ds_read_b64_tr_b16 {vr(b+6,2)}, v{vTB} offset:{j*2048+1024}")
    stamp("beta")
    def issue(): a(f"buffer_load_dword v{vT3}, v{vKC}, {sr(SWS,4)}, 0 offen sc1")
    def check(): a(f"v_cmp_eq_u32 vcc, -1, v{vT3}")
    poll(issue, check, 0x38 + L)
    stamp("p2_kvc")
    redo = a.newlabel("P2REDO")
    a.label(redo)
    lid = {}
    def LD(j):
        if j & 3 == 0:
            if j == 0:
                a(f"s_mov_b32 s{sSO}, s{sT1}"); a(f"s_mov_b32 s{sT4}, s{sT3}")
            else:
                a(f"s_add_u32 s{sSO}, s{sSO}, {4*768}"); a(f"s_add_u32 s{sT4}, s{sT4}, 4096")
        a(f"buffer_load_dwordx4 {vr(KF+4*j,4)}, v{vK}, {sr(SWS,4)}, s{sSO} offen offset:{(j&3)*768} sc1")
        lid[j] = a(f"buffer_load_dwordx4 {vr(QF+4*j,4)}, v{vL16}, {sr(SWS,4)}, s{sT4} offen offset:{(j&3)*1024} sc1")
    PLA = opt("PLA", 7)
    for j in range(PLA): LD(j)
    RW(0); RW(1)
    unpack_xr(ACC)
    a(f"v_mov_b32 v{vMX}, 0")
    def M1(j):
        a.wait(vm=lid[j])
        mfma(vr(CR+(j&1)*16,16), vr(KF+4*j,4), vr(QF+4*j,4), "0")
        a(f"v_max3_u32 v{vMX}, v{vMX}, v{KF+4*j}, v{QF+4*j}")
        if j + PLA < 16: LD(j + PLA)
    def Va(j):
        c = CR + (j & 1) * 16
        a(f"v_add_f32 v{c+8}, s{sEPS6}, v{c+8}")
        a(f"v_rcp_f32 v{c+8}, v{c+8}")
    def Vb(j):
        c = CR + (j & 1) * 16; o = OF + (j & 1) * 4
        for i in range(4): a(f"v_mul_f32 v{c+i}, v{c+i}, v{c+8}")
        for i in range(2): a(f"v_cvt_pk_bf16_f32 v{o+i}, v{c+2*i}, v{c+2*i+1}")
    def Vc(j):
        c = CR + (j & 1) * 16; o = OF + (j & 1) * 4
        for i in range(4, 8): a(f"v_mul_f32 v{c+i}, v{c+i}, v{c+8}")
        for i in range(2, 4): a(f"v_cvt_pk_bf16_f32 v{o+i}, v{c+2*i}, v{c+2*i+1}")
    M1(0); M1(1)
    Va(0); Vb(0); Vc(0); M1(2)
    for j in range(16):
        o = OF + (j & 1) * 4; b = WF + (j % 3) * 8
        if j + 1 < 16: Va(j + 1)
        a.wait(lg=rw[j])
        mfma(vr(ACC,16), vr(b,4), vr(o,4), vr(ACC,16))
        if j + 1 < 16: Vb(j + 1)
        mfma(vr(ACC+16,16), vr(b+4,4), vr(o,4), "0" if j == 0 else vr(ACC+16,16))
        if j + 1 < 16: Vc(j + 1)
        if j + 3 < 16: M1(j + 3)
        if j + 2 < 16: RW(j + 2)
    verify(vMX, redo)
    stamp("p2_main")
    if opt("T2", 1) == 1: touch_w2()
    pump.fill(pump.c + opt("FP2", 4))
    a(f"s_xor_b32 s{sT0}, s{sW}, 1")
    a(f"s_lshl_b32 s{sT0}, s{sT0}, 12")
    a(f"v_add_u32 v{vT0}, s{sT0}, v{vL16}")
    a(f"s_lshl_b32 s{sT0}, s{sW}, 12")
    a(f"v_add_u32 v{vT1}, s{sT0}, v{vL16}")
    stat_slot(sT1, ST[L])
    for q in range(4): a(f"ds_write_b128 v{vT0}, {vr(ACC+16+4*q,4)} offset:{q*1024}")
    a.wait_lg_all()
    a("s_barrier")
    ids = [a(f"ds_read_b128 {vr(ACC+16+4*q,4)}, v{vT1} offset:{q*1024}") for q in range(4)]
    for q in range(4):
        a.wait(lg=ids[q])
        pk("add", ACC+4*q, vr(ACC+4*q,2), vr(ACC+16+4*q,2))
        pk("add", ACC+4*q+2, vr(ACC+4*q+2,2), vr(ACC+16+4*q+2,2))
        a(f"v_cvt_pk_bf16_f32 v{XR+2*q}, v{ACC+4*q}, v{ACC+4*q+1}")
        a(f"v_cvt_pk_bf16_f32 v{XR+2*q+1}, v{ACC+4*q+2}, v{ACC+4*q+3}")
    row_stats_publish(sT1, OF)
    stamp("p2_stpub")
    unpack_xr(XU)
    IDF = 104
    a(f"v_and_b32 v{vT0}, 31, v{vL}")
    a(f"v_lshlrev_b32 v{vT1}, 2, v{vHH}")
    a(f"v_sub_u32 v{vT0}, v{vT0}, v{vT1}")
    a(f"v_mov_b32 v{vT3}, 0x3f80")
    for f in range(2):
        for c in range(4):
            base = 16 * f + ((2 * c) & 3) + 8 * (c >> 1)
            a(f"v_subrev_u32 v{vT1}, {base}, v{vT0}")
            a(f"v_cmp_gt_u32 vcc, 2, v{vT1}")
            a(f"v_lshlrev_b32 v{vT1}, 4, v{vT1}")
            a(f"v_lshlrev_b32 v{vT2}, v{vT1}, v{vT3}")
            a(f"v_cndmask_b32 v{IDF+4*f+c}, 0, v{vT2}, vcc")
    pump.run(opt("G1", 24), refill=bool(opt("GREFILL", 0)))
    SB = 128
    a(f"v_and_b32 v{vT0}, 31, v{vL}")
    a(f"v_lshlrev_b32 v{vT0}, 3, v{vT0}")
    a(f"v_lshl_add_u32 v{vT2}, v{vHH}, 12, v{vT0}")
    a(f"s_lshl_b32 s{sT1}, s{sST}, 13")
    a(f"s_lshl_b32 s{sT2}, s{sRH}, 8")
    a(f"s_add_u32 s{sT1}, s{sT1}, s{sT2}")
    a(f"s_add_u32 s{sT1}, s{sT1}, {ST[L]:#x}")
    ht_addr(sT3, L)
    a(f"v_mov_b32 v{SB+16}, {fl(1.0+1e-5)}")
    pass
    def issue():
        for p in range(8): a(f"buffer_load_dwordx2 {vr(SB+2*p,2)}, v{vT2}, {sr(SWS,4)}, s{sT1} offen offset:{p*512} sc1")
    def check():
        a(f"v_max3_u32 v{vT3}, v{SB+1}, v{SB+3}, v{SB+5}")
        a(f"v_max3_u32 v{vT3}, v{vT3}, v{SB+7}, v{SB+9}")
        a(f"v_max3_u32 v{vT3}, v{vT3}, v{SB+11}, v{SB+13}")
        a(f"v_max_u32 v{vT3}, v{vT3}, v{SB+15}")
        a(f"v_cmp_eq_u32 vcc, -1, v{vT3}")
    poll(issue, check, 0x34 + L)
    stamp("p2_stats")
    for n in (4, 2, 1):
        for p in range(n): pk("add", SB+2*p, vr(SB+2*p,2), vr(SB+2*(p+n),2))
    a(f"v_mov_b32 v{SB+2}, v{SB}")
    a(f"v_mov_b32 v{SB+3}, v{SB+1}")
    a(f"v_permlane32_swap_b32 v{SB}, v{SB+2}")
    a(f"v_permlane32_swap_b32 v{SB+1}, v{SB+3}")
    pk("add", SB, vr(SB,2), vr(SB+2,2))
    a(f"v_mul_f32 v{SB}, {fl(-1/512)}, v{SB}")
    a(f"v_mul_f32 v{SB+1}, {fl(1/512)}, v{SB+1}")
    a(f"v_fma_f32 v{SB+1}, -v{SB}, v{SB}, v{SB+1}")
    a(f"v_max_f32 v{SB+1}, 0, v{SB+1}")
    a(f"v_fmaak_f32 v{SB+1}, v{SB+1}, v{SB+16}, {fl(1e-10)}")
    a(f"v_rsq_f32 v{SB+2}, v{SB+1}")
    a(f"v_mul_f32 v{SB}, v{SB}, v{SB+2}")
    HP_ = 112
    for f in range(2):
        for j in range(4*f, 4*f+4):
            pk("fma", XU+2*j, vr(XU+2*j,2), vr(SB+2,2), vr(SB,2), hi=[1,0,0])
        for j in range(4*f, 4*f+4):
            a(f"v_cvt_pk_bf16_f32 v{HP_+j}, v{XU+2*j}, v{XU+2*j+1}")
        mfma(vr(ACC,16), vr(HP_+4*f,4), vr(IDF+4*f,4), "0" if f == 0 else vr(ACC,16))
    for f in range(2):
        for j in range(4): a(f"v_cvt_pk_bf16_f32 v{ACC+16+4*f+j}, v{ACC+8*f+2*j}, v{ACC+8*f+2*j+1}")
        sid = a(f"buffer_store_dwordx4 {vr(ACC+16+4*f,4)}, v{vL16}, {sr(SWS,4)}, s{sT3} offen offset:{2048*f} sc1")
    stamp(f"p2_{L}")

ACC = 32; RING = 96; AUX = 144
def stream(kind, nks, srot, code, tail=None):
    NR = opt("NR", 6)
    vA, vB, vMX, vC = vTA, vTB, MA, MA + 1
    a(f"s_lshl_b32 s{sT0}, s{sKH}, 10")
    a(f"v_add_u32 v{vA}, s{sT0}, v{vL16}")
    a(f"v_xor_b32 v{vB}, 1024, v{vA}")
    a(f"v_add_u32 v{vA}, s{sT1}, v{vA}")
    a(f"v_add_u32 v{vB}, s{sT1}, v{vB}")
    a(f"v_min_u32 v{vT0}, {nks-1}, v{vL}")
    a(f"v_lshrrev_b32 v{vT1}, 1, v{vT0}")
    a(f"v_and_b32 v{vT0}, 1, v{vT0}")
    a(f"v_lshlrev_b32 v{vT0}, 10, v{vT0}")
    a(f"v_lshl_add_u32 v{vC}, v{vT1}, 12, v{vT0}")
    a(f"v_add_u32 v{vC}, s{sT1}, v{vC}")
    ids = {}
    def LD(s):
        b = RING + (s % NR) * 8
        a(f"buffer_load_dwordx4 {vr(b,4)}, v{vA}, {sr(SWS,4)}, s{sSO} offen offset:{(s&1)*2048} sc1")
        ids[s] = a(f"buffer_load_dwordx4 {vr(b+4,4)}, v{vB}, {sr(SWS,4)}, s{sSO} offen offset:{(s&1)*2048} sc1")
        if s & 1 and s < nks - 1:
            a(f"s_add_u32 s{sSO}, s{sSO}, 4096")
            a(f"s_cmp_eq_u32 s{sSO}, {nks*2048}")
            a(f"s_cselect_b32 s{sSO}, 0, s{sSO}")
    def run(after_poll=None):
        redo = a.newlabel("SREDO")
        def issue(): a(f"buffer_load_dword v{vT3}, v{vC}, {sr(SWS,4)}, 0 offen offset:{2048+1020} sc1")
        def check(): a(f"v_cmp_eq_u32 vcc, -1, v{vT3}")
        poll(issue, check, code)
        stamp("canary")
        if after_poll: after_poll()
        a.label(redo)
        a(f"s_lshl_b32 s{sSO}, s{srot}, 11")
        for s in range(NR): LD(s)
        a(f"v_mov_b32 v{vMX}, 0")
        for s in range(nks):
            a.wait(vm=ids[s])
            b = RING + (s % NR) * 8
            for acc in range(4):
                wf = wreg(kind, s, 4 * (acc >> 1), 4); af = vr(b + 4 * (acc & 1), 4)
                c = "0" if s == 0 else vr(ACC + 16 * acc, 16)
                A_, B_ = (wf, af) if kind == 1 else (af, wf)
                mfma(vr(ACC+16*acc,16), A_, B_, c)
                if acc == 0: a(f"v_max3_u32 v{vMX}, v{vMX}, v{b}, v{b+4}")
            if s + NR < nks: LD(s + NR)
            elif tail and s + NR == nks: tail()
        verify(vMX, redo)
    return run

def reduce4():
    for acc in (1, 2):
        a(f"s_xor_b32 s{sT0}, s{sW}, {acc}")
        a(f"s_lshl_b32 s{sT0}, s{sT0}, 13")
        a(f"v_add_u32 v{vT0+acc-1}, s{sT0}, v{vL16}")
    a(f"s_xor_b32 s{sT0}, s{sW}, 3")
    a(f"s_lshl_b32 s{sT0}, s{sT0}, 14")
    a(f"v_add_u32 v{vT2}, s{sT0}, v{vL16}")
    for acc in (1, 2, 3):
        o = (0, 4096, L_A + SCR)[acc - 1]
        for q in range(4): a(f"ds_write_b128 v{vT0+acc-1}, {vr(ACC+16*acc+4*q,4)} offset:{o+q*1024}")
    a(f"s_lshl_b32 s{sT0}, s{sW}, 13")
    a(f"v_add_u32 v{vT3}, s{sT0}, v{vL16}")
    a(f"v_add_u32 v{vT2}, s{sWA}, v{vL16}")
    def sync_and_read():
        a.wait_lg_all()
        a("s_barrier")
        ids = {}
        for q in range(4):
            a(f"ds_read_b128 {vr(RING+4*q,4)}, v{vT3} offset:{q*1024}")
            ids[(q, 1)] = a(f"ds_read_b128 {vr(RING+16+4*q,4)}, v{vT3} offset:{4096+q*1024}")
            ids[(q, 2)] = a(f"ds_read_b128 {vr(RING+32+4*q,4)}, v{vT2} offset:{SCR+q*1024}")
        def add(q):
            a.wait(lg=ids[(q, 1)])
            for j in (0, 2): pk("add", RING+4*q+j, vr(RING+4*q+j,2), vr(RING+16+4*q+j,2))
            a.wait(lg=ids[(q, 2)])
            for j in (0, 2): pk("add", ACC+4*q+j, vr(ACC+4*q+j,2), vr(RING+32+4*q+j,2))
            for j in (0, 2): pk("add", ACC+4*q+j, vr(ACC+4*q+j,2), vr(RING+4*q+j,2))
        return add
    return sync_and_read

def p3(L):
    a.c(f"======== P3 layer {L}")
    B1R = AUX
    a(f"s_lshl_b32 s{sT0}, s{sFT}, 1")
    a(f"s_add_u32 s{sT0}, s{sT0}, s{sRH}")
    a(f"s_lshl_b32 s{sT0}, s{sT0}, 6")
    a(f"v_lshlrev_b32 v{vT0}, 3, v{vHH}")
    for q in range(4): a(f"buffer_load_dwordx2 {vr(RING+2*q,2)}, v{vT0}, {sr(SB1,4)}, s{sT0} offen offset:{16*q}")
    if L == 0:
        for i in range(4): a(f"v_mov_b32 v{ACC+i}, -1")
        poison_tiles(ACC, 1)
    pump.run(32)
    a.wait_lg_all()
    pump.setup(2)
    pump.run(opt("V2", 4), refill=bool(opt("V2R", 1)))
    assert opt("V2", 4) <= NV2
    a("s_barrier")
    stamp("p3_delta")
    idle = a.newlabel("P3IDLE")
    a(f"s_cmp_eq_u32 s{sP3}, 7")
    a(f"s_cbranch_scc1 {idle}")
    with cond():
        a(f"s_lshl_b32 s{sT1}, s{sDT3}, 2")
        a(f"s_add_u32 s{sT1}, s{sT1}, s{sW}")
        a(f"s_lshl_b32 s{sT1}, s{sT1}, 16")
        a(f"s_add_u32 s{sT1}, s{sT1}, {HT[L]:#x}")
        run = stream(1, 32, sROT1, 0x50 + L)
        def ap():
            for j in range(8):
                a(f"v_lshlrev_b32 v{B1R+2*j}, 16, v{RING+j}")
                a(f"v_and_b32 v{B1R+2*j+1}, 0xffff0000, v{RING+j}")
        run(ap)
        stamp("gemm")
        sync = reduce4()
        u_addr(sT1, L)
        K1 = -2.0 * 0.7978845608028654 * LOG2E
        a(f"s_mov_b32 s{sT2}, {fl(K1*0.044715)}")
        a(f"v_mov_b32 v{vT0}, {fl(K1)}")
        for q in range(8): pk("add", ACC+2*q, vr(ACC+2*q,2), vr(B1R+2*q,2))
        add = sync()
        T = ACC + 16; PKD = ACC + 32
        for h in range(2):
            add(2 * h); add(2 * h + 1)
            R4 = range(4 * h, 4 * h + 4); R8 = range(8 * h, 8 * h + 8)
            for q in R4: pk("mul", T+2*q, vr(ACC+2*q,2), vr(ACC+2*q,2))
            for q in R4: pk("fma", T+2*q, vr(T+2*q,2), sr(sT2,2), vr(vT0,2), hi=[1,0,0])
            for q in R4: pk("mul", T+2*q, vr(T+2*q,2), vr(ACC+2*q,2))
            for i in R8: a(f"v_exp_f32 v{T+i}, v{T+i}")
            for q in R4: pk("add", T+2*q, vr(T+2*q,2), "1.0", hi=[1,0])
            for i in R8: a(f"v_rcp_f32 v{T+i}, v{T+i}")
            for q in R4: pk("mul", ACC+2*q, vr(ACC+2*q,2), vr(T+2*q,2))
            for q in R4: a(f"v_cvt_pk_bf16_f32 v{PKD+q}, v{ACC+2*q}, v{ACC+2*q+1}")
            a(f"buffer_store_dwordx4 {vr(PKD+4*h,4)}, v{vL16}, {sr(SWS,4)}, s{sT1} offen offset:{2048*h} sc1")
    a.label(idle)
    stamp(f"p3_{L}")

def p4(L):
    a.c(f"======== P4 layer {L}")
    pump.run(28)
    stamp("p4_w2")
    a(f"s_lshl_b32 s{sT1}, s{sDT}, 2")
    a(f"s_add_u32 s{sT1}, s{sT1}, s{sW}")
    a(f"s_mul_i32 s{sT1}, s{sT1}, {28*2048}")
    a(f"s_add_u32 s{sT1}, s{sT1}, {U[L]:#x}")
    run = stream(2, 28, sROT2, 0x60 + L, tail=(lambda: touch_wqt('a252')) if L == 0 else None)
    XU = AUX
    unpack_xr(XU)
    for q in range(8): pk("add", XU+2*q, vr(XU+2*q,2), vr(vB2-1,2), lo=[0,1], hi=[1,1])
    a.wait_lg_all()
    a("s_barrier")
    run()
    stamp("gemm")
    sync = reduce4()
    for q in range(8): pk("add", ACC+2*q, vr(ACC+2*q,2), vr(XU+2*q,2))
    if L == 0:
        x2_addr(sT1)
        stat_slot(sT2, ST2)
    add = sync()
    for h in range(2):
        add(2 * h); add(2 * h + 1)
        for q in range(4 * h, 4 * h + 4): a(f"v_cvt_pk_bf16_f32 v{XR+q}, v{ACC+2*q}, v{ACC+2*q+1}")
        if L == 0:
            a(f"buffer_store_dwordx4 {vr(XR+4*h,4)}, v{vL16}, {sr(SWS,4)}, s{sT1} offen offset:{1024*h} sc1")
        else:
            a(f"v_permlane32_swap_b32 v{XR+4*h}, v{XR+4*h+2}")
            a(f"v_permlane32_swap_b32 v{XR+4*h+1}, v{XR+4*h+3}")
            a(f"buffer_store_dwordx4 {vr(XR+4*h,4)}, v{vOUT}, {sr(SOUT,4)}, 0 offen offset:{32*h}")
    if L == 0:
        row_stats_publish(sT2, ACC + 16)
        pass
        a(f"s_mul_i32 s{sT3}, s{sHP}, 98304")
        a(f"s_add_u32 s{sT3}, s{sT3}, s{sWA}")
        a(f"s_add_u32 s{sT3}, s{sT3}, {WQT:#x}")
        for j in range(16):
            if j & 3 == 0:
                a(f"s_add_u32 m0, s{sWA}, {j*1024}")
                if j: a(f"s_add_u32 s{sT3}, s{sT3}, 4096")
            a(f"buffer_load_dwordx4 v{vL16}, {sr(SWS,4)}, s{sT3} offen offset:{(j&3)*1024} lds")
    stamp(f"p4_{L}")

prologue()
for L in range(2):
    p1(L); p2(L); p3(L); p4(L)
finish()
a.label("L_EXIT")
a("s_endpgm")
a.label("L_END")

hdr = open(f"cdna_kernels/{NAME}.s.ref").read().split("; Override launch")[0]
out = hdr + f"""; @launch grid=(256,1,1) block=(256,1,1) lds={LDS_BYTES}
.amdgcn_target "amdgcn-amd-amdhsa--gfx950"
.text
.globl {NAME}_kernel
.p2align 8
.type {NAME}_kernel,@function
{NAME}_kernel:
""" + a.text() + f""".section .rodata,"a"
.p2align 6
.amdhsa_kernel {NAME}_kernel
  .amdhsa_next_free_vgpr 512
  .amdhsa_next_free_sgpr 102
  .amdhsa_accum_offset 256
  .amdhsa_group_segment_fixed_size 0
  .amdhsa_kernarg_size 88
  .amdhsa_user_sgpr_count 2
  .amdhsa_user_sgpr_kernarg_segment_ptr 1
  .amdhsa_system_sgpr_workgroup_id_x 1
  .amdhsa_float_denorm_mode_32 3
.end_amdhsa_kernel
"""
outp = [x for x in sys.argv[1:] if x.endswith(".s")]
open(outp[0], "w").write(out)
if DIAG: open(outp[0] + ".stamps", "w").write("\n".join(stamp_names))
```

```python
import sys, struct
from contextlib import contextmanager
from asmlib import Asm, vr, ar, sr

NAME = "interleave_layers__linear_attn_block__mixer_token_mlp__prompt"
DIAG = "--diag" in sys.argv
OPT = {}
for a_ in sys.argv:
    if a_.startswith("-D"):
        k_, v_ = a_[2:].split("="); OPT[k_] = int(v_)
def opt(k, d): return OPT.get(k, d)
def f2u(x): return struct.unpack("<I", struct.pack("<f", x))[0]
def fl(x): return "0x%08x" % f2u(x)
FULL = (1 << 64) - 1
LOG2E = 1.4426950408889634

FL_PQ = 0xB0000
KVF = [0x2000, 0xC0000]; KVP = [0x8000, 0xC6000]; ST = [0x166000, 0x1A6000]; ST2 = 0x1E6000
SELFP = 0xC0000
PQ = [0x400000, 0x600000]; HT = [0x800000, 0xA00000]; U = [0xC00000, 0xE00000]; X2 = 0x1000000
WQT = 0x1200000
TS = 0x1400000
DUMP = 0x1500000
WS_BYTES = 268435456
L_A = 32768; L_B = 98304; LDS_BYTES = 163840
NS = 6; SCR = 12288
sW = 3
SX, SWQKV, SWO, SW1, SW2, SWS, SOUT, SDBG, SB1, SB2, SCODE = 4, 8, 12, 16, 20, 24, 28, 32, 36, 40, 44
sST, sDT, sRB, sHP, sDT3, sFT, sP3, sRH, sKH, sWB, sTO, sONES = 48, 49, 50, 51, 52, 53, 54, 55, 56, 57, 58, 59
sEPS6 = 60; sB = 61
sT0, sT1, sT2, sT3, sT4, sT5 = 62, 63, 64, 65, 66, 67
sSO = 68; sW1K = 69; sTS = 70
sL2E = 74; sWA = 75; sROTX = 76; sROT1 = 77; sROT2 = 78; sRED = 79; sWOFF = 80; sKB = 81; sXC = 82; sWI = 83
sKA = 84
vL, vL16, vTA, vTB, vT0, vT1, vT2, vT3 = 0, 1, 2, 3, 4, 5, 6, 7
XR = 8
CKP, CVP, CQP, vB2, vRS, vHH, vOUT, vTSV = 16, 17, 18, 19, 20, 21, 22, 23
vWA, vWB, vWTA, vWTB = 24, 25, 26, 27
MA = 28
LOC = 32

a = Asm()
stamp_names = []
TOREC = ()
torec = []

@contextmanager
def cond():
    st = (a.vm, a.vm_done, a.lg, a.lg_done)
    yield
    a.vm, a.vm_done, a.lg, a.lg_done = st[0], min(st[1], st[0]), st[2], min(st[3], st[2])

def stamp(name):
    if not DIAG: return
    k = len(stamp_names); stamp_names.append(name)
    a(f"s_memrealtime {sr(sTS,2)}")
    if name in ("start", "end"): a(f"s_memtime {sr(sTS+2,2)}")
    a("s_waitcnt lgkmcnt(0)"); a.lg_done = a.lg
    a(f"v_writelane_b32 v{vTSV}, s{sTS}, {k}")
    if name in ("start", "end"): a(f"v_writelane_b32 v{vTSV}, s{sTS+2}, {62 if name == 'start' else 63}")
    if name in TOREC:
        a(f"v_writelane_b32 v{vTSV}, s{sTO}, {52 + len(torec)}"); torec.append(name)

def srd(base, ptr, nbytes):
    a(f"s_mov_b32 s{base}, s{ptr}")
    a(f"s_and_b32 s{base+1}, s{ptr+1}, 0xffff")
    a(f"s_mov_b32 s{base+2}, {nbytes:#x}")
    a(f"s_mov_b32 s{base+3}, 0x20000")

def set_exec(mask):
    if mask == FULL: a("s_mov_b64 exec, -1")
    elif mask <= 64: a(f"s_mov_b64 exec, {mask}")
    else:
        a(f"s_mov_b32 exec_lo, {mask & 0xffffffff:#x}"); a(f"s_mov_b32 exec_hi, {mask >> 32:#x}")

def poll(issue, check, code, pre=None):
    top = a.newlabel("POLL"); done = a.newlabel("PDONE"); chk = a.newlabel("PCHK")
    if pre is not None:
        a.wait(vm=pre)
        st = (a.vm, a.vm_done)
        a(f"s_branch {chk}")
    a.label(top)
    issue()
    a.wait_vm_all(force=True)
    if pre is not None: a.label(chk)
    check()
    a(f"s_cbranch_vccz {done}")
    a(f"s_sub_u32 s{sTO}, s{sTO}, 1")
    a(f"s_cbranch_scc0 {top}")
    a(f"s_mov_b32 s{sTO}, 0")
    a(f"v_mov_b32 v{vT0}, {code}")
    a(f"v_mov_b32 v{vT1}, 0")
    a(f"buffer_store_dword v{vT0}, v{vT1}, {sr(SDBG,4)}, 0 offen")
    a("s_waitcnt vmcnt(0)")
    a.vm_done = a.vm
    a.label(done)
    if pre is not None: a.vm, a.vm_done = st

def poll_flags(n, code):
    a(f"v_min_u32 v{vT2}, {n-1}, v{vL}")
    a(f"v_lshlrev_b32 v{vT2}, 7, v{vT2}")
    def issue(): a(f"buffer_load_dword v{vT3}, v{vT2}, {sr(SWS,4)}, s{sT0} offen sc1")
    def check(): a(f"v_cmp_ne_u32 vcc, 1, v{vT3}")
    poll(issue, check, code)

def publish_flag(last_store):
    a(f"v_mov_b32 v{vT0}, 1")
    a(f"v_lshlrev_b32 v{vT1}, 2, v{vL}")
    a.wait(vm=last_store)
    a("s_barrier")
    skip = a.newlabel("NOFLAG")
    a(f"s_cmp_lg_u32 s{sW}, 0")
    a(f"s_cbranch_scc1 {skip}")
    with cond():
        set_exec((1 << 32) - 1)
        a(f"buffer_store_dword v{vT0}, v{vT1}, {sr(SWS,4)}, s{sT0} offen sc1")
        set_exec(FULL)
    a.label(skip)

def finish():
    if DIAG:
        stamp("end")
        a(f"s_lshl_b32 s{sT0}, s{sB}, 2")
        a(f"s_add_u32 s{sT0}, s{sT0}, s{sW}")
        a(f"s_lshl_b32 s{sT0}, s{sT0}, 8")
        a(f"s_add_u32 s{sT0}, s{sT0}, {TS:#x}")
        a(f"v_lshlrev_b32 v{vT0}, 2, v{vL}")
        a(f"buffer_store_dword v{vTSV}, v{vT0}, {sr(SWS,4)}, s{sT0} offen")
        if opt("DBGOUT", 0):
            sel = [1, 2, 3, 8, 9, 14, 15, 18, 19, 21, 22, 28, 34, 38, 39, 41]
            skip = a.newlabel("NODBG")
            a(f"s_cmp_lg_u32 s{sB}, {opt('DBGOUT', 0)}")
            a(f"s_cbranch_scc1 {skip}")
            a(f"s_cmp_lg_u32 s{sW}, 0")
            a(f"s_cbranch_scc1 {skip}")
            a(f"v_readlane_b32 s{sT1}, v{vTSV}, 0")
            for k, i in enumerate(sel):
                a(f"v_readlane_b32 s{sT2}, v{vTSV}, {i}")
                a("s_nop 3")
                a(f"s_sub_u32 s{sT2}, s{sT2}, s{sT1}")
                a(f"v_writelane_b32 v{vT1}, s{sT2}, {k}")
            set_exec(0xffff)
            a(f"buffer_store_dword v{vT1}, v{vT0}, {sr(SDBG,4)}, 0 offen")
            a.label(skip)
    a("s_endpgm")

def pk(op, d, x, y, z=None, hi=None, lo=None, neg=None):
    ops = [x, y] + ([z] if z is not None else [])
    m = ""
    if lo: m += " op_sel:[" + ",".join(map(str, lo)) + "]"
    if hi: m += " op_sel_hi:[" + ",".join(map(str, hi)) + "]"
    if neg: m += " neg_lo:[" + ",".join(map(str, neg)) + "] neg_hi:[" + ",".join(map(str, neg)) + "]"
    a(f"v_pk_{op}_f32 {vr(d,2)}, " + ", ".join(ops) + m)

def mfma(d, A, B, C):
    a(f"v_mfma_f32_32x32x16_bf16 {d}, {A}, {B}, {C}")

def tr_base(dst_a, dst_b, sel_sgpr, region):
    a(f"v_bfe_u32 v{vT0}, v{vL}, 2, 2")
    a(f"v_lshl_add_u32 v{vT0}, v{vHH}, 2, v{vT0}")
    a(f"v_lshlrev_b32 v{dst_a}, 7, v{vT0}")
    a(f"v_bfe_u32 v{vT1}, v{vL}, 3, 1")
    a(f"v_lshl_add_u32 v{dst_a}, v{vT1}, 6, v{dst_a}")
    a(f"v_bfe_u32 v{vT1}, v{vL}, 4, 1")
    a(f"v_lshl_add_u32 v{dst_a}, v{vT1}, 5, v{dst_a}")
    a(f"v_and_b32 v{vT1}, 3, v{vL}")
    a(f"v_lshl_add_u32 v{dst_a}, v{vT1}, 3, v{dst_a}")
    a(f"s_lshl_b32 s{sT5}, s{sel_sgpr}, 6")
    a(f"v_xor_b32 v{dst_a}, s{sT5}, v{dst_a}")
    a(f"v_add_u32 v{dst_a}, {region}, v{dst_a}")
    a(f"v_xor_b32 v{dst_b}, 64, v{dst_a}")

def dma_voff(dst, dst2, pitch, scol):
    a(f"v_lshrrev_b32 v{vT0}, 3, v{vL}")
    a(f"v_mul_u32_u24 v{dst}, {pitch}, v{vT0}")
    a(f"v_bfe_u32 v{vT1}, v{vL}, 4, 1")
    a(f"v_lshlrev_b32 v{vT1}, 2, v{vT1}")
    a(f"v_and_b32 v{vT0}, 7, v{vL}")
    a(f"v_xor_b32 v{vT0}, v{vT0}, v{vT1}")
    a(f"v_lshl_add_u32 v{dst}, v{vT0}, 4, v{dst}")
    a(f"v_add_u32 v{dst}, s{scol}, v{dst}")
    a(f"v_add_u32 v{dst2}, {8*pitch-1024}, v{dst}")

NV2 = opt("NV2", 12)
V2BASE = 256 - 8 * NV2
def wreg(kind, t, j, n):
    if kind == 2:
        if t < NV2: return vr(V2BASE + 8 * t + j, n)
        return ar((t - NV2) * 8 + j, n)
    return ar(t * 8 + j, n)

class Pump:
    def setup(self, kind):
        self.kind = kind
        self.pitch, self.srd, self.n = (3584, SW1, 32) if kind == 1 else (4096, SW2, 28)
        self.i = 0; self.c = 0; self.vid = {}; self.lid = {}
        a.c(f"pump setup W{kind}")
        a(f"s_lshl_b32 s{sT4}, s{sFT if kind == 1 else sST}, 7")
        a(f"s_mul_i32 s{sT5}, s{sW}, {self.n*16*self.pitch}")
        a(f"s_add_u32 s{sT4}, s{sT4}, s{sT5}")
        dma_voff(vWA, vWB, self.pitch, sT4)
        a(f"s_mul_i32 s{sWOFF}, s{sROT1 if kind == 1 else sROT2}, {16*self.pitch}")
    def issue1(self):
        if opt("NOPUMP", 0):
            self.vid[self.i] = None; self.i += 1; return
        t = self.i
        if t >= NS: a.wait(lg=self.lid[t - NS])
        a(f"s_add_u32 m0, s{sWA}, {(t % NS)*2048}")
        a(f"buffer_load_dwordx4 v{vWA}, {sr(self.srd,4)}, s{sWOFF} offen lds")
        self.vid[t] = a(f"buffer_load_dwordx4 v{vWB}, {sr(self.srd,4)}, s{sWOFF} offen offset:1024 lds")
        if t + 1 < self.n:
            a(f"s_add_u32 s{sWOFF}, s{sWOFF}, {16*self.pitch}")
            a(f"s_cmp_eq_u32 s{sWOFF}, {self.n*16*self.pitch}")
            a(f"s_cselect_b32 s{sWOFF}, 0, s{sWOFF}")
        self.i += 1
    def fill(self, upto=None):
        lim = self.n if upto is None else min(self.n, upto)
        while self.i < lim and self.i - NS < self.c: self.issue1()
    def run(self, target, refill=True):
        target = min(target, self.n)
        while self.c < target:
            t = self.c
            if t >= self.i: self.issue1()
            if opt("NOPUMP", 0):
                self.c += 1; continue
            a.wait(vm=self.vid[t])
            o = (t % NS) * 2048
            a(f"ds_read_b64_tr_b16 {wreg(self.kind,t,0,2)}, v{vWTA} offset:{o}")
            a(f"ds_read_b64_tr_b16 {wreg(self.kind,t,2,2)}, v{vWTA} offset:{o+1024}")
            a(f"ds_read_b64_tr_b16 {wreg(self.kind,t,4,2)}, v{vWTB} offset:{o}")
            self.lid[t] = a(f"ds_read_b64_tr_b16 {wreg(self.kind,t,6,2)}, v{vWTB} offset:{o+1024}")
            self.c += 1
            lim = self.n if refill else target
            if self.i < lim and self.i - NS < self.c - 1: self.issue1()
        if refill: self.fill()
pump = Pump()

def prologue():
    a(f"s_cmp_ge_u32 s2, 256")
    a(f"s_cbranch_scc1 L_EXIT")
    a(f"s_load_dwordx16 {sr(sKA,16)}, s[0:1], 0")
    a(f"s_load_dwordx4 {sr(SCODE,4)}, s[0:1], 64")
    a(f"s_load_dwordx2 s[100:101], s[0:1], 80")
    a(f"s_mov_b32 s{sB}, s2")
    a(f"v_lshrrev_b32 v{vT0}, 6, v0")
    a(f"v_and_b32 v{vL}, 63, v0")
    a(f"v_readfirstlane_b32 s{sW}, v{vT0}")
    a(f"v_lshlrev_b32 v{vL16}, 4, v{vL}")
    a(f"v_lshrrev_b32 v{vHH}, 5, v{vL}")
    if DIAG: a(f"v_mov_b32 v{vTSV}, 0")
    stamp("start")
    X_, I_ = sT0, sT1
    a(f"s_and_b32 s{X_}, s{sB}, 7")
    a(f"s_lshr_b32 s{I_}, s{sB}, 3")
    a(f"s_lshr_b32 s{sT2}, s{I_}, 3")
    a(f"s_and_b32 s{sDT}, s{I_}, 7")
    a(f"s_and_b32 s{sRB}, s{X_}, 3")
    a(f"s_lshl_b32 s{sRB}, s{sRB}, 2")
    a(f"s_add_u32 s{sRB}, s{sRB}, s{sT2}")
    a(f"s_lshr_b32 s{sHP}, s{X_}, 2")
    a(f"s_lshl_b32 s{sHP}, s{sHP}, 3")
    a(f"s_add_u32 s{sHP}, s{sHP}, s{sDT}")
    a(f"s_lshr_b32 s{sROTX}, s{sDT}, 1")
    a(f"s_add_u32 s{sROTX}, s{sROTX}, s{sT2}")
    a(f"s_and_b32 s{sROTX}, s{sROTX}, 3")
    a(f"s_lshl_b32 s{sROTX}, s{sROTX}, 1")
    a(f"s_and_b32 s{sT3}, s{I_}, 1")
    a(f"s_add_u32 s{sROTX}, s{sROTX}, s{sT3}")
    if not opt("ROTX", 1): a(f"s_mov_b32 s{sROTX}, 0")
    a(f"s_lshl_b32 s{sW1K}, s{sW}, 10")
    a(f"s_lshl_b32 s{sWB}, s{sW}, 14")
    a(f"s_add_u32 s{sWA}, s{sWB}, {L_A}")
    a(f"s_add_u32 s{sWB}, s{sWB}, {L_B}")
    a(f"s_lshl_b32 s{sST}, s{X_}, 2")
    a(f"s_add_u32 s{sST}, s{sST}, s{sT2}")
    a(f"s_lshr_b32 s{sT3}, s{X_}, 1")
    a(f"s_mul_i32 s{sT3}, s{sT3}, 7")
    a(f"s_and_b32 s{sT4}, s{X_}, 1")
    a(f"s_lshl_b32 s{sT5}, s{sT4}, 2")
    a(f"s_add_u32 s{sFT}, s{sT3}, s{sT5}")
    a(f"s_add_u32 s{sFT}, s{sFT}, s{sT2}")
    a(f"s_and_b32 s{sP3}, s{I_}, 3")
    a(f"s_add_u32 s{sT5}, s{sT5}, s{sP3}")
    a(f"s_add_u32 s{sKB}, s{sT3}, 3")
    a(f"s_cmp_lt_u32 s{I_}, 24")
    a(f"s_cselect_b32 s{sFT}, s{sFT}, s{sKB}")
    a(f"s_cselect_b32 s{sDT3}, s{sDT}, s{sT5}")
    a(f"s_mul_i32 s{sT4}, s{sT4}, 3")
    a(f"s_add_u32 s{sXC}, s{sT3}, s{sT4}")
    a(f"s_lshl_b32 s{sROT1}, s{sDT3}, 2")
    a(f"s_and_b32 s{sT3}, s{I_}, 3")
    a(f"s_lshr_b32 s{sP3}, s{I_}, 2")
    a(f"s_lshl_b32 s{sWI}, s{I_}, 2")
    a(f"s_add_u32 s{sWI}, s{sWI}, s{sW}")
    a(f"s_lshl_b32 s{sRED}, s{X_}, 2")
    a(f"s_add_u32 s{sRED}, s{sRED}, s{sT3}")
    a(f"s_lshl_b32 s{sRED}, s{sRED}, 1")
    a(f"s_add_u32 s{sRED}, s{sRED}, s{sW}")
    a(f"s_cmp_lt_u32 s{sW}, 2")
    a(f"s_cselect_b32 s{sRED}, s{sRED}, 99")
    a(f"s_cmp_eq_u32 s{sP3}, 7")
    a(f"s_cselect_b32 s{sRED}, s{sRED}, 99")
    a(f"s_mul_i32 s{sROT2}, s{sDT}, 7")
    a(f"s_lshr_b32 s{sROT2}, s{sROT2}, 2")
    a(f"s_lshl_b32 s{sROT2}, s{sROT2}, 1")
    if not opt("ROTW", 0):
        a(f"s_mov_b32 s{sROT1}, 0"); a(f"s_mov_b32 s{sROT2}, 0")
    a(f"s_lshr_b32 s{sRH}, s{sW}, 1")
    a(f"s_and_b32 s{sKH}, s{sW}, 1")
    a(f"s_mov_b32 s{sTO}, 400000")
    a(f"s_mov_b32 s{sONES}, 0x3f803f80")
    a(f"s_mov_b32 s{sEPS6}, {fl(1e-6)}")
    a(f"s_mov_b32 s{sL2E}, {fl(LOG2E)}")
    a("s_waitcnt lgkmcnt(0)")
    pass
    srd(SX, sKA + 0, 2048 * 512 * 2)
    srd(SWQKV, sKA + 2, 512 * 1536 * 2)
    srd(SWS, 100, WS_BYTES)

def late_srds():
    srd(SWO, sKA + 4, 512 * 512 * 2)
    srd(SW1, sKA + 8, 2048 * 1792 * 2)
    a(f"s_cmp_eq_u32 s{sP3}, 7")
    a(f"s_cselect_b32 s{SW1+2}, 0, s{SW1+2}")
    srd(SB1, sKA + 10, 1792 * 2)
    srd(SW2, sKA + 12, 1792 * 2048 * 2)
    srd(SB2, sKA + 14, 2048 * 2)
    srd(SOUT, SCODE, 2048 * 512 * 2)
    srd(SDBG, SCODE + 2, 256)

def init_poison(P):
    for i in range(4): a(f"v_mov_b32 v{P+i}, -1")
    skip = a.newlabel("NOPOIS")
    a(f"s_cmp_ge_u32 s{sB}, 32")
    a(f"s_cbranch_scc1 {skip}")
    with cond():
        a(f"s_mul_i32 s{sT0}, s{sB}, 24576")
        a(f"s_add_u32 s{sT0}, s{sT0}, s{sW1K}")
        for j in range(6):
            a(f"buffer_store_dwordx4 {vr(P,4)}, v{vL16}, {sr(SWS,4)}, s{sT0} offen sc1")
            if j < 5: a(f"s_add_u32 s{sT0}, s{sT0}, 4096")
    a.label(skip)

def ht_addr(dst, L):
    a(f"s_lshl_b32 s{dst}, s{sDT}, 6")
    a(f"s_lshl_b32 s{sT5}, s{sST}, 1")
    a(f"s_add_u32 s{dst}, s{dst}, s{sT5}")
    a(f"s_add_u32 s{dst}, s{dst}, s{sRH}")
    a(f"s_lshl_b32 s{dst}, s{dst}, 2")
    a(f"s_add_u32 s{dst}, s{dst}, s{sKH}")
    a(f"s_lshl_b32 s{dst}, s{dst}, 10")
    a(f"s_add_u32 s{dst}, s{dst}, {HT[L]:#x}")
def u_addr(dst, L):
    a(f"s_mul_i32 s{dst}, s{sDT3}, 56")
    a(f"s_lshl_b32 s{sT5}, s{sFT}, 1")
    a(f"s_add_u32 s{dst}, s{dst}, s{sT5}")
    a(f"s_add_u32 s{dst}, s{dst}, s{sRH}")
    a(f"s_lshl_b32 s{dst}, s{dst}, 2")
    a(f"s_add_u32 s{dst}, s{dst}, s{sKH}")
    a(f"s_lshl_b32 s{dst}, s{dst}, 10")
    a(f"s_add_u32 s{dst}, s{dst}, {U[L]:#x}")
def x2_addr(dst):
    a(f"s_lshl_b32 s{dst}, s{sST}, 1")
    a(f"s_add_u32 s{dst}, s{dst}, s{sRH}")
    a(f"s_lshl_b32 s{dst}, s{dst}, 3")
    a(f"s_add_u32 s{dst}, s{dst}, s{sDT}")
    a(f"s_lshl_b32 s{dst}, s{dst}, 1")
    a(f"s_add_u32 s{dst}, s{dst}, s{sKH}")
    a(f"s_lshl_b32 s{dst}, s{dst}, 11")
    a(f"s_add_u32 s{dst}, s{dst}, {X2:#x}")
def poison_tiles(P, L):
    ht_addr(sT0, L)
    for f in range(2): a(f"buffer_store_dwordx4 {vr(P,4)}, v{vL16}, {sr(SWS,4)}, s{sT0} offen offset:{2048*f} sc1")
    u_addr(sT0, L)
    a(f"s_cmp_eq_u32 s{sP3}, 7")
    a(f"s_cselect_b32 s{sT0}, {DUMP:#x}, s{sT0}")
    for f in range(2): a(f"buffer_store_dwordx4 {vr(P,4)}, v{vL16}, {sr(SWS,4)}, s{sT0} offen offset:{2048*f} sc1")
    if L == 0: x2_addr(sT0)
    else:
        for x in (f"s_lshl_b32 s{sT0}, s{sRB}, 2", f"s_add_u32 s{sT0}, s{sT0}, s{sW}", f"s_lshl_b32 s{sT0}, s{sT0}, 4",
                  f"s_add_u32 s{sT0}, s{sT0}, s{sHP}", f"s_lshl_b32 s{sT0}, s{sT0}, 11", f"s_add_u32 s{sT0}, s{sT0}, {PQ[1]:#x}"): a(x)
    for f in range(2): a(f"buffer_store_dwordx4 {vr(P,4)}, v{vL16}, {sr(SWS,4)}, s{sT0} offen offset:{1024*f} sc1")

def code_prefetch():
    if opt("CODEPF", 1):
        a(f"s_getpc_b64 {sr(SCODE,2)}")
        a.label("L_PC")
        a(f"s_and_b32 s{SCODE+1}, s{SCODE+1}, 0xffff")
        a(f"s_mov_b32 s{SCODE+2}, L_END - L_PC")
        a(f"s_mov_b32 s{SCODE+3}, 0x20000")
        a(f"s_lshr_b32 s{sT0}, s{sB}, 3")
        a(f"s_lshl_b32 s{sT0}, s{sT0}, 12")
        a(f"s_add_u32 s{sT0}, s{sT0}, s{sW1K}")
        a(f"buffer_load_dwordx4 {ar(252,4)}, v{vL16}, {sr(SCODE,4)}, s{sT0} offen")
    srd(SCODE, sKA + 8, 2048 * 1792 * 2)

def touch(srdn, rows_per_wave, lines_per_row_log2, pitch, scol_emit, dst):
    lg = lines_per_row_log2
    n = rows_per_wave << lg
    scol_emit()
    a(f"v_min_u32 v{vT0}, {n-1}, v{vL}")
    a(f"v_lshrrev_b32 v{vT1}, {lg}, v{vT0}")
    a(f"v_mul_u32_u24 v{vT1}, {pitch}, v{vT1}")
    a(f"v_and_b32 v{vT0}, {(1<<lg)-1}, v{vT0}")
    a(f"v_lshl_add_u32 v{vT0}, v{vT0}, 7, v{vT1}")
    a(f"s_mul_i32 s{sT5}, s{sWI}, {rows_per_wave*pitch}")
    a(f"s_add_u32 s{sT4}, s{sT4}, s{sT5}")
    a(f"buffer_load_dword {dst}, v{vT0}, {sr(srdn,4)}, s{sT4} offen")
def touch_w1():
    if not opt("TOUCH", 1): return
    touch(SCODE, 16, 2, 3584, lambda: a(f"s_lshl_b32 s{sT4}, s{sXC}, 7"), "a252")
def touch_w2():
    if not opt("TOUCH", 1): return
    def c2():
        a(f"s_and_b32 s{sT4}, s{sB}, 7"); a(f"s_lshl_b32 s{sT4}, s{sT4}, 9")
    touch(SW2, 14, 2, 4096, c2, "a253")
def touch_wo():
    if not opt("TOUCH", 1): return
    touch(SWO, 4, 3, 1024, lambda: a(f"s_mov_b32 s{sT4}, 0"), "a254")
def touch_wqt(dst):
    if not opt("TOUCH", 1): return
    def c():
        a(f"s_lshr_b32 s{sT4}, s{sHP}, 3"); a(f"s_mul_i32 s{sT4}, s{sT4}, {8*98304}"); a(f"s_add_u32 s{sT4}, s{sT4}, {WQT:#x}")
    touch(SWS, 6, 3, 1024, c, dst)

def verify(vMX, redo):
    ok = a.newlabel("VOK")
    a(f"v_cmp_eq_u32 vcc, -1, v{vMX}")
    a(f"s_cbranch_vccz {ok}")
    a("s_waitcnt vmcnt(0)")
    a(f"s_sub_u32 s{sTO}, s{sTO}, 64")
    a(f"s_cbranch_scc0 {redo}")
    a(f"s_mov_b32 s{sTO}, 0")
    a.label(ok)

def init_misc(P):
    a(f"s_mul_i32 s{sT0}, s{sB}, 6144")
    a(f"s_add_u32 s{sT0}, s{sT0}, {SELFP:#x}")
    a(f"s_add_u32 s{sT1}, s{sT0}, s{sW1K}")
    a(f"buffer_store_dwordx4 {vr(P,4)}, v{vL16}, {sr(SWS,4)}, s{sT1} offen sc1")
    a(f"v_lshlrev_b32 v{vT0}, 3, v{vL}")
    a(f"s_lshl_b32 s{sT1}, s{sW}, 9")
    a(f"s_add_u32 s{sT0}, s{sT0}, s{sT1}")
    a(f"s_add_u32 s{sT0}, s{sT0}, 4096")
    a(f"buffer_store_dwordx2 {vr(P,2)}, v{vT0}, {sr(SWS,4)}, s{sT0} offen sc1")
    a(f"s_lshl_b32 s{sT0}, s{sST}, 1")
    a(f"s_add_u32 s{sT0}, s{sT0}, s{sRH}")
    a(f"s_lshl_b32 s{sT0}, s{sT0}, 5")
    a(f"v_and_b32 v{vT0}, 31, v{vL}")
    a(f"v_add_u32 v{vT0}, s{sT0}, v{vT0}")
    a(f"v_lshlrev_b32 v{vT1}, 1, v{vT0}")
    a(f"buffer_load_ushort v{vB2}, v{vT1}, {sr(SB2,4)}, 0 offen")
    a(f"v_lshlrev_b32 v{vT0}, 10, v{vT0}")
    a(f"v_lshl_add_u32 v{vOUT}, v{vHH}, 4, v{vT0}")
    a(f"s_lshl_b32 s{sT0}, s{sDT}, 1")
    a(f"s_add_u32 s{sT0}, s{sT0}, s{sKH}")
    a(f"s_lshl_b32 s{sT0}, s{sT0}, 6")
    a(f"v_add_u32 v{vOUT}, s{sT0}, v{vOUT}")
    a(f"buffer_load_dwordx4 {vr(XR,4)}, v{vOUT}, {sr(SX,4)}, 0 offen")
    a(f"buffer_load_dwordx4 {vr(XR+4,4)}, v{vOUT}, {sr(SX,4)}, 0 offen offset:32")
    tr_base(vWTA, vWTB, sRH, f"s{sWA}")

def split2(dst, src, t0):
    a(f"v_cvt_pk_bf16_f32 v{t0}, v{src}, v{src}")
    a(f"v_and_b32 v{t0}, 0xffff0000, v{t0}")
    a(f"v_sub_f32 v{dst}, v{src}, v{t0}")
    a(f"v_cvt_pk_bf16_f32 v{dst}, v{t0}, v{dst}")

def stats_to_frags(S, Q, RA):
    a(f"v_mul_f32 v{S}, {fl(-1/512)}, v{S}")
    a(f"v_mul_f32 v{Q}, {fl(1/512)}, v{Q}")
    a(f"v_cmp_eq_u32 vcc, 0, v{vHH}")
    a(f"v_fma_f32 v{Q}, -v{S}, v{S}, v{Q}")
    a(f"v_max_f32 v{Q}, 0, v{Q}")
    a(f"v_add_f32 v{Q}, {fl(1e-5)}, v{Q}")
    a(f"v_rsq_f32 v{vRS}, v{Q}")
    a(f"v_cndmask_b32 v{S}, 0, v{S}, vcc")
    a(f"v_cvt_pk_bf16_f32 v{MA}, v{S}, v{S}")
    a(f"v_cndmask_b32 v{Q}, 0, v{vRS}, vcc")
    a(f"v_and_b32 v{vT0}, 0xffff0000, v{MA}")
    a(f"v_sub_f32 v{S}, v{S}, v{vT0}")
    a(f"v_cvt_pk_bf16_f32 v{MA+1}, v{S}, v{S}")
    split2(RA, Q, vT0)

XF = 128
def p1(L):
    ACCK, ACCV, RR = 32, 48, 64
    VV, PK, T1 = 80, 88, 96
    S0, S1, Q0, Q1 = 80, 81, 82, 83
    CF = 84
    CFV, CFQ, RA = 112, 116, 120
    vTQ, vTV = 124, 125
    vW, vXA, vXB = 126, 127, 96
    vCQ, vCV = 97, 98
    XA = 88
    WFR = 216; NWF = 4; ONESF = 248; CG = 200; CK, CV, CQ = 152, 168, 184
    a.c(f"======== P1 layer {L}")
    xid = {}; wid = {}
    toff = 256 if L == 0 else 512
    def addr_setup():
        a(f"v_bfe_u32 v{vT0}, v{vL}, 2, 2")
        a(f"v_lshl_add_u32 v{vT0}, v{vHH}, {3 if L == 0 else 2}, v{vT0}")
        a(f"v_lshlrev_b32 v{vTQ}, 6, v{vT0}")
        a(f"v_bfe_u32 v{vT1}, v{vL}, 4, 1")
        a(f"v_lshl_add_u32 v{vTQ}, v{vT1}, 5, v{vTQ}")
        a(f"v_and_b32 v{vT1}, 3, v{vL}")
        a(f"v_lshl_add_u32 v{vTQ}, v{vT1}, 3, v{vTQ}")
        a(f"v_add_u32 v{vTV}, 65536, v{vTQ}")
        for i in range(4): a(f"v_accvgpr_write_b32 a{ONESF+i}, s{sONES}")
        for r in (MA + 2, MA + 3, RA + 1, RA + 2, RA + 3, CF + 2, CF + 3, CFV + 2, CFV + 3, CFQ + 2, CFQ + 3): a(f"v_mov_b32 v{r}, 0")
    rg = {}
    def RG(s):
        b = WFR + (s % NWF) * 8
        o = s * 1024
        a(f"ds_read_b64_tr_b16 {ar(b,2)}, v{vTQ} offset:{32768+o}")
        a(f"ds_read_b64_tr_b16 {ar(b+2,2)}, v{vTQ} offset:{32768+o+toff}")
        a(f"ds_read_b64_tr_b16 {ar(b+4,2)}, v{vTV} offset:{o}")
        rg[s] = a(f"ds_read_b64_tr_b16 {ar(b+6,2)}, v{vTV} offset:{o+toff}")
    if L == 0:
        init_poison(T1 + 4)
        a(f"v_lshrrev_b32 v{vT0}, 2, v{vL}")
        a(f"s_lshl_b32 s{sT0}, s{sW}, 4")
        a(f"v_add_u32 v{vT0}, s{sT0}, v{vT0}")
        a(f"v_mul_u32_u24 v{vW}, 3072, v{vT0}")
        a(f"v_and_b32 v{vT0}, 3, v{vL}")
        a(f"v_lshl_add_u32 v{vW}, v{vT0}, 4, v{vW}")
        a(f"s_lshl_b32 s{sT0}, s{sHP}, 6")
        a(f"v_add_u32 v{vW}, s{sT0}, v{vW}")
        a(f"s_lshl_b32 s{sT0}, s{sRB}, 2")
        a(f"s_add_u32 s{sT0}, s{sT0}, s{sW}")
        a(f"s_lshl_b32 s{sT0}, s{sT0}, 15")
        a(f"v_lshrrev_b32 v{vT0}, 3, v{vL}")
        a(f"v_lshlrev_b32 v{vT0}, 10, v{vT0}")
        a(f"v_add_u32 v{vT0}, s{sT0}, v{vT0}")
        a(f"v_and_b32 v{vT1}, 7, v{vL}")
        a(f"v_lshrrev_b32 v{vT2}, 4, v{vL}")
        a(f"v_xor_b32 v{vT1}, v{vT1}, v{vT2}")
        a(f"v_lshl_add_u32 v{vXA}, v{vT1}, 4, v{vT0}")
        a(f"v_xor_b32 v{vXB}, 64, v{vXA}")
        a(f"v_add_u32 v{vXB}, {8192-1024}, v{vXB}")
        def slot_issue(j):
            a(f"s_add_u32 s{sKB}, s{sROTX}, {j}")
            a(f"s_and_b32 s{sKB}, s{sKB}, 7")
            a(f"s_lshl_b32 s{sT1}, s{sKB}, 7")
            a(f"s_add_u32 m0, s{sWB}, {(j&3)*4096}")
            a(f"s_mul_i32 s{sSO}, s{sKB}, {64*3072}")
            a(f"buffer_load_dwordx4 v{vXA}, {sr(SX,4)}, s{sT1} offen lds")
            a(f"buffer_load_dwordx4 v{vXB}, {sr(SX,4)}, s{sT1} offen offset:1024 lds")
            a(f"s_add_u32 m0, s{sWB}, {(j&3)*4096+2048}")
            a(f"s_add_u32 s{sT1}, s{sT1}, 16384")
            a(f"buffer_load_dwordx4 v{vXA}, {sr(SX,4)}, s{sT1} offen lds")
            a(f"buffer_load_dwordx4 v{vXB}, {sr(SX,4)}, s{sT1} offen offset:1024 lds")
            for seg in (1, 2, 0):
                a(f"s_add_u32 m0, s{sW1K}, {seg*32768 - seg*1024 + j*4096}")
                wid[j] = a(f"buffer_load_dwordx4 v{vW}, {sr(SWQKV,4)}, s{sSO} offen offset:{seg*1024} lds")
        LA = opt("LA0", 2)
        slot_issue(0)
        pass
        late_srds()
        addr_setup()
        a(f"v_add_u32 v{vCQ}, s{sW1K}, v{vTQ}")
        a(f"v_add_u32 v{vCV}, s{sW1K}, v{vTV}")
        for r in (S0, S1, Q0, Q1): a(f"v_mov_b32 v{r}, 0")
        a(f"v_and_b32 v{vT0}, 31, v{vL}")
        a(f"v_bfe_u32 v{vT1}, v{vL}, 1, 3")
        a(f"v_xor_b32 v{vT1}, v{vT1}, v{vHH}")
        a(f"v_lshlrev_b32 v{vT0}, 7, v{vT0}")
        a(f"v_add_u32 v{vT0}, s{sWB}, v{vT0}")
        for t in range(4):
            a(f"v_xor_b32 v{vT2}, {2*t}, v{vT1}")
            a(f"v_lshl_add_u32 v{XA+t}, v{vT2}, 4, v{vT0}")
        code_prefetch()
        for j in range(1, LA): slot_issue(j)
        init_misc(T1 + 4)
        pass
        initld = None
        cg = None
        def colsum(j):
            a.wait(lg=cg)
            for k, c in enumerate((CK, CV, CQ)):
                mfma(ar(c,16), ar(ONESF,4), ar(CG+4*k,4), "0" if j == 0 else ar(c,16))
        for j in range(8):
            a.wait(vm=wid[j])
            a("s_barrier")
            if j == 0:
                stamp("p1_first")
                skip = a.newlabel("NOINIT")
                a(f"s_cmp_ge_u32 s{sB}, 32")
                a(f"s_cbranch_scc1 {skip}")
                a(f"s_cmp_lg_u32 s{sW}, 0")
                a(f"s_cbranch_scc1 {skip}")
                with cond():
                    a(f"v_mov_b32 v{vT0}, 1")
                    a(f"s_lshl_b32 s{sT0}, s{sB}, 2")
                    a(f"v_mov_b32 v{vT1}, s{sT0}")
                    set_exec(1)
                    a(f"buffer_store_dword v{vT0}, v{vT1}, {sr(SDBG,4)}, 0 offen offset:128 sc1")
                    set_exec(FULL)
                a.label(skip)
            xr = [a(f"ds_read_b128 {vr(XF+16*j+4*t,4)}, v{XA+t} offset:{(j&3)*4096}") for t in range(4)]
            RG(4 * j); RG(4 * j + 1)
            if j > 0: colsum(j - 1)
            if j + LA < 8: slot_issue(j + LA)
            if j == 8 - LA:
                poison_tiles(T1 + 4, 0)
                touch_wo()
                a(f"v_and_b32 v{vT2}, 31, v{vL}")
                a(f"v_lshlrev_b32 v{vT2}, 2, v{vT2}")
                initld = a(f"buffer_load_dword v{vT3}, v{vT2}, {sr(SDBG,4)}, 0 offen offset:128 sc1")
            for t in range(4):
                a.wait(lg=xr[t])
                for k in range(4):
                    r = XF + 16 * j + 4 * t + k
                    a(f"v_dot2_f32_bf16 v{S0+(k&1)}, v{r}, s{sONES}, v{S0+(k&1)}")
                    a(f"v_dot2_f32_bf16 v{Q0+(k&1)}, v{r}, v{r}, v{Q0+(k&1)}")
            for s in range(4 * j, 4 * j + 4):
                a.wait(lg=rg[s])
                b = WFR + (s % NWF) * 8
                x = vr(XF + 4 * s, 4)
                mfma(vr(ACCK,16), x, ar(b,4), "0" if s == 0 else vr(ACCK,16))
                if s + 2 < 4 * j + 4: RG(s + 2)
                if s == 4 * j + 2:
                    o = j * 4096
                    a(f"ds_read_b64_tr_b16 {ar(CG,2)}, v{vCQ} offset:{32768+o}")
                    a(f"ds_read_b64_tr_b16 {ar(CG+2,2)}, v{vCQ} offset:{32768+o+toff}")
                    a(f"ds_read_b64_tr_b16 {ar(CG+4,2)}, v{vCV} offset:{o}")
                    a(f"ds_read_b64_tr_b16 {ar(CG+6,2)}, v{vCV} offset:{o+toff}")
                    a(f"ds_read_b64_tr_b16 {ar(CG+8,2)}, v{vCQ} offset:{o}")
                    cg = a(f"ds_read_b64_tr_b16 {ar(CG+10,2)}, v{vCQ} offset:{o+toff}")
                mfma(vr(ACCV,16), x, ar(b+4,4), "0" if s == 0 else vr(ACCV,16))
        colsum(7)
        stamp("p1_gemm")
        CPY = T1
        a(f"s_lshr_b32 s{sT0}, s{sRB}, 1")
        a(f"s_sub_u32 s{sT0}, s{sT0}, s{sROTX}")
        a(f"s_and_b32 s{sT0}, s{sT0}, 7")
        a(f"s_lshl_b32 s{sT0}, s{sT0}, 12")
        a(f"s_and_b32 s{sT1}, s{sRB}, 1")
        a(f"s_lshl_b32 s{sT1}, s{sT1}, 11")
        a(f"s_add_u32 s{sT0}, s{sT0}, s{sT1}")
        a(f"s_min_u32 s{sT2}, s{sW}, 2")
        a(f"s_lshl_b32 s{sT2}, s{sT2}, 15")
        a(f"s_add_u32 s{sT0}, s{sT0}, s{sT2}")
        a(f"v_add_u32 v{vT0}, s{sT0}, v{vL16}")
        a(f"ds_read_b128 {vr(CPY,4)}, v{vT0}")
        a(f"ds_read_b128 {vr(CPY+4,4)}, v{vT0} offset:1024")
        a(f"v_add_f32 v{S0}, v{S0}, v{S1}")
        a(f"v_add_f32 v{Q0}, v{Q0}, v{Q1}")
        a(f"v_mov_b32 v{S1}, v{S0}")
        a(f"v_mov_b32 v{Q1}, v{Q0}")
        a(f"v_add_u32 v{vT1}, s{sWB}, v{vL16}")
        a(f"v_permlane32_swap_b32 v{S0}, v{S1}")
        a(f"v_permlane32_swap_b32 v{Q0}, v{Q1}")
        CS4 = T1 + 8
        a(f"v_accvgpr_read_b32 v{CS4}, a{CK}")
        a(f"v_accvgpr_read_b32 v{CS4+1}, a{CV}")
        a(f"v_accvgpr_read_b32 v{CS4+2}, a{CQ}")
        a(f"ds_write_b128 v{vT1}, {vr(CS4,4)}")
        a(f"v_add_f32 v{S0}, v{S0}, v{S1}")
        a(f"v_add_f32 v{Q0}, v{Q0}, v{Q1}")
        a(f"v_add_u32 v{vT1}, {L_B}, v{vL16}")
        a.wait_lg_all()
        a("s_barrier")
        for w in range(4): cr = a(f"ds_read_b128 {vr(PK+4*(w&1) if w < 2 else CS4+4*(w&1),4)}, v{vT1} offset:{16384*w}")
        stats_to_frags(S0, Q0, RA)
        mfma(vr(RR,16), vr(RA,4), ar(ONESF,4), "0")
        a(f"s_mul_i32 s{sT3}, s{sHP}, 98304")
        a(f"s_add_u32 s{sT3}, s{sT3}, s{sT2}")
        a(f"s_lshl_b32 s{sT1}, s{sRB}, 11")
        a(f"s_add_u32 s{sT3}, s{sT3}, s{sT1}")
        a(f"s_add_u32 s{sT3}, s{sT3}, {WQT:#x}")
        a(f"buffer_store_dwordx4 {vr(CPY,4)}, v{vL16}, {sr(SWS,4)}, s{sT3} offen sc1")
        a(f"buffer_store_dwordx4 {vr(CPY+4,4)}, v{vL16}, {sr(SWS,4)}, s{sT3} offen offset:1024 sc1")
        a.wait(lg=cr)
        for j in (0, 2):
            pk("add", PK+j, vr(PK+j,2), vr(PK+4+j,2)); pk("add", CS4+j, vr(CS4+j,2), vr(CS4+4+j,2))
        for j in (0, 2): pk("add", PK+j, vr(PK+j,2), vr(CS4+j,2))
        split2(CKP, PK, vT0)
        split2(CVP, PK + 1, vT1)
        for c, p in ((CF, CKP), (CFV, CVP)):
            a(f"v_mov_b32 v{c}, v{p}"); a(f"v_mov_b32 v{c+1}, v{p}")
        mfma(vr(ACCK,16), vr(MA,4), vr(CF,4), vr(ACCK,16))
        mfma(vr(ACCV,16), vr(MA,4), vr(CFV,4), vr(ACCV,16))
        split2(CQP, PK + 2, vT0)
        pump.setup(1)
    else:
        addr_setup()
        for c, p in ((CF, CKP), (CFV, CVP)):
            a(f"v_mov_b32 v{c}, v{p}"); a(f"v_mov_b32 v{c+1}, v{p}")
        a(f"s_lshl_b32 s{sT0}, s{sRB}, 1")
        a(f"s_add_u32 s{sT0}, s{sT0}, s{sRH}")
        a(f"s_lshl_b32 s{sT1}, s{sT0}, 13")
        a(f"s_lshl_b32 s{sT2}, s{sKH}, 8")
        a(f"s_add_u32 s{sT1}, s{sT1}, s{sT2}")
        a(f"s_add_u32 s{sT1}, s{sT1}, {ST2:#x}")
        a(f"s_lshl_b32 s{sT4}, s{sRB}, 2")
        a(f"s_add_u32 s{sT4}, s{sT4}, s{sW}")
        a(f"s_lshl_b32 s{sT4}, s{sT4}, 15")
        a(f"s_add_u32 s{sT4}, s{sT4}, {X2:#x}")
        a(f"v_and_b32 v{vT0}, 31, v{vL}")
        a(f"v_lshlrev_b32 v{vT0}, 3, v{vT0}")
        a(f"v_lshl_add_u32 v{vXA}, v{vHH}, 12, v{vT0}")
        a(f"s_mul_i32 s{sKB}, s{sHP}, 98304")
        a(f"s_lshl_b32 s{sT2}, s{sW}, 13")
        a(f"s_add_u32 s{sKB}, s{sKB}, s{sT2}")
        a(f"s_add_u32 s{sKB}, s{sKB}, {WQT:#x}")
        SB = T1
        def issue():
            for p in range(8): a(f"buffer_load_dwordx2 {vr(SB+2*p,2)}, v{vXA}, {sr(SWS,4)}, s{sT1} offen offset:{p*512} sc1")
        def check():
            a(f"v_max3_u32 v{vT3}, v{SB+1}, v{SB+3}, v{SB+5}")
            a(f"v_max3_u32 v{vT3}, v{vT3}, v{SB+7}, v{SB+9}")
            a(f"v_max3_u32 v{vT3}, v{vT3}, v{SB+11}, v{SB+13}")
            a(f"v_max_u32 v{vT3}, v{vT3}, v{SB+15}")
            a(f"v_cmp_eq_u32 vcc, -1, v{vT3}")
        a(f"s_mov_b32 s{sT0}, s{sT4}")
        pump.setup(1)
        a(f"s_mov_b32 s{sT4}, s{sT0}")
        poll(issue, check, 0x40)
        stamp("p1_flag")
        def XL(s):
            xid[s] = a(f"buffer_load_dwordx4 {vr(XF+4*s,4)}, v{vL16}, {sr(SWS,4)}, s{sSO} offen offset:{(s&3)*1024} sc1")
            if s & 3 == 3 and s < 31: a(f"s_add_u32 s{sSO}, s{sSO}, 4096")
        LA = opt("LA1", 10)
        vMX = vW
        a(f"s_mov_b32 s{sSO}, s{sT4}")
        for s in range(LA): XL(s)
        a("s_barrier")
        for n in (4, 2, 1):
            for p in range(n): pk("add", SB+2*p, vr(SB+2*p,2), vr(SB+2*(p+n),2))
        a(f"v_mov_b32 v{SB+2}, v{SB}")
        a(f"v_mov_b32 v{SB+3}, v{SB+1}")
        a(f"v_permlane32_swap_b32 v{SB}, v{SB+2}")
        a(f"v_permlane32_swap_b32 v{SB+1}, v{SB+3}")
        pk("add", SB, vr(SB,2), vr(SB+2,2))
        stats_to_frags(SB, SB + 1, RA)
        mfma(vr(RR,16), vr(RA,4), ar(ONESF,4), "0")
        go = a.newlabel("XGO"); redo = a.newlabel("XREDO")
        a(f"s_branch {go}")
        a.label(redo)
        st_vm = (a.vm, a.vm_done)
        a(f"s_mov_b32 s{sSO}, s{sT4}")
        sv = dict(xid)
        for s in range(LA): XL(s)
        xid.update(sv); a.vm, a.vm_done = st_vm
        a.label(go)
        RG(0); RG(1); RG(2)
        a(f"v_mov_b32 v{vMX}, 0")
        a(f"s_mov_b32 s{sT3}, s{sKB}")
        mfma(vr(ACCK,16), vr(MA,4), vr(CF,4), "0")
        mfma(vr(ACCV,16), vr(MA,4), vr(CFV,4), "0")
        qid = None
        for s in range(32):
            a.wait(vm=xid[s], lg=rg[s])
            b = WFR + (s % NWF) * 8
            x = vr(XF + 4 * s, 4)
            mfma(vr(ACCK,16), x, ar(b,4), vr(ACCK,16))
            if s + LA < 32: XL(s + LA)
            elif s + LA - 32 < 8:
                j = s + LA - 32
                if j == 4: a(f"s_add_u32 s{sT3}, s{sT3}, 4096")
                if j & 3 == 0: a(f"s_add_u32 m0, s{sT2}, {j*1024}")
                qid = a(f"buffer_load_dwordx4 v{vL16}, {sr(SWS,4)}, s{sT3} offen offset:{(j&3)*1024} lds")
            if s & 1: a(f"v_max3_u32 v{vMX}, v{vMX}, v{XF+4*s-4}, v{XF+4*s}")
            if s + 3 < 32: RG(s + 3)
            mfma(vr(ACCV,16), x, ar(b+4,4), vr(ACCV,16))
        verify(vMX, redo)
        stamp("p1_gemm")
        a("s_barrier")

    for q in range(8): pk("fma", ACCK+2*q, vr(ACCK+2*q,2), vr(RR+2*q,2), sr(sEPS6,2), hi=[1,1,0])
    for q in range(8): pk("mul", T1+2*q, vr(ACCK+2*q,2), sr(sL2E,2), hi=[1,0])
    for i in range(16):
        a(f"v_exp_f32_e64 v{T1+i}, v{T1+i} clamp")
        a(f"v_max_f32 v{ACCK+i}, s{sEPS6}, v{ACCK+i}")
    for q in range(8): pk("mul", ACCV+2*q, vr(ACCV+2*q,2), vr(RR+2*q,2))
    for q in range(8): pk("add", ACCK+2*q, vr(ACCK+2*q,2), vr(T1+2*q,2))
    for q in range(8):
        a(f"v_cvt_pk_bf16_f32 v{PK+q}, v{ACCK+2*q}, v{ACCK+2*q+1}")
        a(f"v_cvt_pk_bf16_f32 v{VV+q}, v{ACCV+2*q}, v{ACCV+2*q+1}")
    KVA, ZA = RR, T1
    mfma(vr(KVA,16), vr(PK,4), vr(VV,4), "0")
    mfma(vr(KVA,16), vr(PK+4,4), vr(VV+4,4), vr(KVA,16))
    a(f"v_bfe_u32 v{vT0}, v{vL}, 4, 1")
    a(f"v_cmp_ne_u32 vcc, 0, v{vT0}")
    a(f"v_lshl_add_u32 v{vT0}, v{vT0}, 1, v{vHH}")
    a(f"v_mul_u32_u24 v{vT0}, 17, v{vT0}")
    mfma(vr(ZA,16), vr(PK,4), ar(ONESF,4), "0")
    a(f"v_and_b32 v{vT1}, 15, v{vL}")
    a(f"v_add_u32 v{vT0}, v{vT0}, v{vT1}")
    a(f"v_lshlrev_b32 v{vT0}, 5, v{vT0}")
    a(f"v_add_u32 v{vT0}, s{sWA}, v{vT0}")
    mfma(vr(ZA,16), vr(PK+4,4), ar(ONESF,4), vr(ZA,16))
    a(f"s_mul_i32 s{sT0}, s{sW}, 544")
    a(f"s_lshl_b32 s{sT1}, s{sHP}, 4")
    a(f"s_add_u32 s{sT1}, s{sT1}, s{sRB}")
    a(f"s_lshl_b32 s{sT1}, s{sT1}, 2")
    a(f"s_add_u32 s{sT1}, s{sT1}, s{sW}")
    a(f"s_mul_i32 s{sT1}, s{sT1}, 640")
    a(f"s_add_u32 s{sT1}, s{sT1}, {KVP[L]:#x}")
    a(f"s_add_u32 s{sT0}, s{sT0}, {L_A + SCR}")
    a(f"v_add_u32 v{vXA}, s{sT0}, v{vL16}")
    for j in range(8): a(f"v_cndmask_b32 v{ACCK+j}, v{KVA+j}, v{KVA+8+j}, vcc")
    a(f"ds_write_b128 v{vT0}, {vr(ACCK,4)} offset:{SCR}")
    a(f"ds_write_b128 v{vT0}, {vr(ACCK+4,4)} offset:{SCR+16}")
    for j in range(8): a(f"v_cndmask_b32 v{ACCK+8+j}, v{ZA+j}, v{ZA+8+j}, vcc")
    set_exec(0x0001000100010001)
    a(f"ds_write_b128 v{vT0}, {vr(ACCK+8,4)} offset:{SCR+512}")
    a(f"ds_write_b128 v{vT0}, {vr(ACCK+12,4)} offset:{SCR+528}")
    set_exec(FULL)
    if L == 0:
        def issue(): a(f"buffer_load_dword v{vT3}, v{vT2}, {sr(SDBG,4)}, 0 offen offset:128 sc1")
        def check(): a(f"v_cmp_ne_u32 vcc, 1, v{vT3}")
        poll(issue, check, 0x10, pre=initld)
    NQ = 8; QLA = 6
    rq = {}
    def RQ(s):
        b = WFR + (s % NQ) * 4
        a(f"ds_read_b64_tr_b16 {ar(b,2)}, v{vTQ} offset:{s*1024}")
        rq[s] = a(f"ds_read_b64_tr_b16 {ar(b+2,2)}, v{vTQ} offset:{s*1024+toff}")
    if L == 1: a.wait(vm=qid)
    a.wait_lg_all()
    a("s_barrier")
    for w in range(4): kr = a(f"ds_read_b128 {vr(RR+4*w,4)}, v{vXA} offset:{16384*w}")
    for s in range(QLA): RQ(s)
    a(f"v_mov_b32 v{CFQ}, v{CQP}"); a(f"v_mov_b32 v{CFQ+1}, v{CQP}")
    a.wait(lg=kr)
    pk("add", RR, vr(RR,2), vr(RR+4,2)); pk("add", RR+2, vr(RR+2,2), vr(RR+6,2))
    pk("add", RR+8, vr(RR+8,2), vr(RR+12,2)); pk("add", RR+10, vr(RR+10,2), vr(RR+14,2))
    pk("add", RR, vr(RR,2), vr(RR+8,2)); pk("add", RR+2, vr(RR+2,2), vr(RR+10,2))
    set_exec((1 << 40) - 1)
    a(f"buffer_store_dwordx4 {vr(RR,4)}, v{vL16}, {sr(SWS,4)}, s{sT1} offen sc1")
    set_exec(FULL)
    stamp("p1_kvpub")
    touch_w1()
    pump.fill(opt("F0", 2))
    ACCQ = ACCK
    mfma(vr(ACCQ,16), vr(CFQ,4), vr(MA,4), "0")
    if L == 0:
        a(f"s_lshl_b32 s{sT4}, s{sDT}, 7")
        dma_voff(vXA, vW, 1024, sT4)
        a(f"s_lshl_b32 s{sSO}, s{sW}, 17")
    sal = [f"s_lshl_b32 s{sT0}, s{sRB}, 2", f"s_add_u32 s{sT0}, s{sT0}, s{sW}", f"s_lshl_b32 s{sT0}, s{sT0}, 4",
           f"s_add_u32 s{sT0}, s{sT0}, s{sHP}", f"s_lshl_b32 s{sT0}, s{sT0}, 11", f"s_add_u32 s{sT1}, s{sT0}, {PQ[L]:#x}",
           f"s_lshl_b32 s{sT0}, s{sRB}, 4", f"s_add_u32 s{sT0}, s{sT0}, s{sHP}", f"s_lshl_b32 s{sT0}, s{sT0}, 7",
           f"s_add_u32 s{sT0}, s{sT0}, {FL_PQ}"]
    if L == 1: sal = sal[:6]
    for s in range(32):
        a.wait(lg=rq[s])
        b = WFR + (s % NQ) * 4
        mfma(vr(ACCQ,16), ar(b,4), vr(XF+4*s,4), vr(ACCQ,16))
        if s + QLA < 32: RQ(s + QLA)
        if L == 0 and s % 4 == 0 and s // 4 < opt("WOQ", 8):
            j = s // 4
            a(f"s_add_u32 m0, s{sWB}, {j*2048}")
            a(f"buffer_load_dwordx4 v{vXA}, {sr(SWO,4)}, s{sSO} offen lds")
            a(f"buffer_load_dwordx4 v{vW}, {sr(SWO,4)}, s{sSO} offen offset:1024 lds")
            a(f"s_add_u32 s{sSO}, s{sSO}, 16384")
        if s % 2 == 1 and sal and s >= 8: a(sal.pop(0))
        if s == opt("A1S", 22):
            a1_early(L); vm_a1 = a.vm
        if opt("QP", 0) and s >= opt("QP0", 8) and (s - opt("QP0", 8)) % opt("QPD", 4) == 0 and pump.c < opt("QP", 0):
            pump.run(pump.c + 1)
    for x in sal: a(x)
    if opt("A1FIRST", 0): a1(L, a.vm - vm_a1)
    for h in range(2):
        for q in range(4*h, 4*h+4): pk("fma", ACCQ+2*q, vr(ACCQ+2*q,2), vr(vRS,2), sr(sEPS6,2), hi=[1,0,0])
        for q in range(4*h, 4*h+4): pk("mul", T1+2*q, vr(ACCQ+2*q,2), sr(sL2E,2), hi=[1,0])
        for i in range(8*h, 8*h+8):
            a(f"v_exp_f32_e64 v{T1+i}, v{T1+i} clamp")
            a(f"v_max_f32 v{ACCQ+i}, s{sEPS6}, v{ACCQ+i}")
        for q in range(4*h, 4*h+4): pk("add", ACCQ+2*q, vr(ACCQ+2*q,2), vr(T1+2*q,2))
        for q in range(4*h, 4*h+4): a(f"v_cvt_pk_bf16_f32 v{PK+q}, v{ACCQ+2*q}, v{ACCQ+2*q+1}")
        sid = a(f"buffer_store_dwordx4 {vr(PK+4*h,4)}, v{vL16}, {sr(SWS,4)}, s{sT1} offen offset:{1024*h} sc1")
    stamp("p1_q")
    if L == 0:
        for j in range(opt("WOQ", 8), 8):
            a(f"s_add_u32 m0, s{sWB}, {j*2048}")
            a(f"buffer_load_dwordx4 v{vXA}, {sr(SWO,4)}, s{sSO} offen lds")
            wo_last = a(f"buffer_load_dwordx4 v{vW}, {sr(SWO,4)}, s{sSO} offen offset:1024 lds")
            a(f"s_add_u32 s{sSO}, s{sSO}, 16384")
    if not opt("A1FIRST", 0): a1(L, a.vm - vm_a1)
    pump.fill(pump.c + opt("F1", 6))
    if L == 0: publish_flag(sid)
    if opt("T2", 1) == 0: touch_w2()
    stamp(f"p1_{L}")

A1B = 128
def a1_issue():
    a(f"s_mov_b32 s{sSO}, s{sKB}")
    for p in range(16):
        a(f"buffer_load_dwordx4 {vr(A1B+4*p,4)}, v{vL16}, {sr(SWS,4)}, s{sSO} offen offset:{(p&1)*2560} sc1")
        if p & 1 and p < 15: a(f"s_add_u32 s{sSO}, s{sSO}, {2*2560}")
def a1_early(L):
    skip = a.newlabel("NOA1E")
    a(f"s_cmp_ge_u32 s{sRED}, 64")
    a(f"s_cbranch_scc1 {skip}")
    with cond():
        a(f"s_lshr_b32 s{sKB}, s{sRED}, 2")
        a(f"s_mul_i32 s{sKB}, s{sKB}, {16*2560}")
        a(f"s_and_b32 s{sT2}, s{sRED}, 3")
        a(f"s_mul_i32 s{sT2}, s{sT2}, 640")
        a(f"s_add_u32 s{sKB}, s{sKB}, s{sT2}")
        a(f"s_add_u32 s{sKB}, s{sKB}, {KVP[L]:#x}")
        a(f"s_mov_b32 s{sT3}, s{sSO}")
        set_exec((1 << 34) - 1)
        a1_issue()
        set_exec(FULL)
        a(f"s_mov_b32 s{sSO}, s{sT3}")
    a.label(skip)
def a1(L, younger):
    a.c("======== A1 reducer")
    skip = a.newlabel("NOA1")
    a(f"s_cmp_ge_u32 s{sRED}, 64")
    a(f"s_cbranch_scc1 {skip}")
    with cond():
        B = A1B
        a(f"s_mul_i32 s{sT2}, s{sRED}, 384")
        a(f"s_add_u32 s{sT2}, s{sT2}, {KVF[L]:#x}")
        a(f"v_lshlrev_b32 v{vT2}, 3, v{vL}")
        set_exec((1 << 34) - 1)
        def check():
            a(f"v_max3_u32 v{vT3}, v{B}, v{B+4}, v{B+8}")
            for p in range(3, 15, 2): a(f"v_max3_u32 v{vT3}, v{vT3}, v{B+4*p}, v{B+4*p+4}")
            a(f"v_max_u32 v{vT3}, v{vT3}, v{B+60}")
            a(f"v_cmp_eq_u32 vcc, -1, v{vT3}")
        a.vm_done = min(a.vm_done, a.vm - younger - 1)
        poll(a1_issue, check, 0x20, pre=a.vm - younger - 1)
        n = 16
        while n > 1:
            n //= 2
            for p in range(n):
                for j in (0, 2): pk("add", B+4*p+j, vr(B+4*p+j,2), vr(B+4*(p+n)+j,2))
        a(f"v_cvt_pk_bf16_f32 v{B+4}, v{B}, v{B+1}")
        a(f"v_cvt_pk_bf16_f32 v{B+5}, v{B+2}, v{B+3}")
        a(f"v_mov_b32_dpp v{B+6}, v{B+4} quad_perm:[1,1,3,3] row_mask:0xf bank_mask:0xf")
        a(f"v_mov_b32_dpp v{B+7}, v{B+5} quad_perm:[1,1,3,3] row_mask:0xf bank_mask:0xf")
        set_exec(0x555555555555)
        a(f"buffer_store_dwordx4 {vr(B+4,4)}, v{vT2}, {sr(SWS,4)}, s{sT2} offen sc1")
        set_exec(FULL)
    a.label(skip)
    stamp("a1")

def row_stats_publish(soff, SM):
    a(f"v_dot2_f32_bf16 v{SM}, v{XR}, s{sONES}, 0")
    a(f"v_dot2_f32_bf16 v{SM+1}, v{XR}, v{XR}, 0")
    a(f"v_dot2_f32_bf16 v{SM+2}, v{XR+1}, s{sONES}, 0")
    a(f"v_dot2_f32_bf16 v{SM+3}, v{XR+1}, v{XR+1}, 0")
    for j in range(2, 8):
        o = 2 * (j & 1)
        a(f"v_dot2_f32_bf16 v{SM+o}, v{XR+j}, s{sONES}, v{SM+o}")
        a(f"v_dot2_f32_bf16 v{SM+o+1}, v{XR+j}, v{XR+j}, v{SM+o+1}")
    a(f"v_lshlrev_b32 v{vT0}, 3, v{vL}")
    pk("add", SM, vr(SM,2), vr(SM+2,2))
    a(f"v_mov_b32 v{SM+2}, v{SM}")
    a(f"v_mov_b32 v{SM+3}, v{SM+1}")
    a(f"v_permlane32_swap_b32 v{SM}, v{SM+2}")
    a(f"v_permlane32_swap_b32 v{SM+1}, v{SM+3}")
    pk("add", SM, vr(SM,2), vr(SM+2,2))
    a(f"v_and_b32 v{SM+1}, 0x7fffffff, v{SM+1}")
    set_exec((1 << 32) - 1)
    i = a(f"buffer_store_dwordx2 {vr(SM,2)}, v{vT0}, {sr(SWS,4)}, s{soff} offen sc1")
    set_exec(FULL)
    return i

def stat_slot(dst, base):
    a(f"s_lshl_b32 s{dst}, s{sST}, 3")
    a(f"s_add_u32 s{dst}, s{dst}, s{sDT}")
    a(f"s_lshl_b32 s{dst}, s{dst}, 1")
    a(f"s_add_u32 s{dst}, s{dst}, s{sKH}")
    a(f"s_lshl_b32 s{dst}, s{dst}, 1")
    a(f"s_add_u32 s{dst}, s{dst}, s{sRH}")
    a(f"s_lshl_b32 s{dst}, s{dst}, 8")
    a(f"s_add_u32 s{dst}, s{dst}, {base:#x}")

def unpack_xr(XU):
    for j in range(8):
        a(f"v_lshlrev_b32 v{XU+2*j}, 16, v{XR+j}")
        a(f"v_and_b32 v{XU+2*j+1}, 0xffff0000, v{XR+j}")

def p2(L):
    a.c(f"======== P2 layer {L}")
    KF, QF = 128, 192
    ACC = 32; CR = 64; OF = 96; WF = 104; XU = 64
    a(f"s_lshl_b32 s{sT3}, s{sST}, 1")
    a(f"s_add_u32 s{sT3}, s{sT3}, s{sRH}")
    a(f"s_lshl_b32 s{sT3}, s{sT3}, 1")
    a(f"s_add_u32 s{sT3}, s{sT3}, s{sKH}")
    a(f"s_lshl_b32 s{sT3}, s{sT3}, 14")
    a(f"s_add_u32 s{sT3}, s{sT3}, {PQ[L]:#x}")
    tr_base(vTA, vTB, sKH, L_B)
    a(f"s_lshl_b32 s{sT2}, s{sKH}, 15")
    a(f"v_add_u32 v{vTA}, s{sT2}, v{vTA}")
    a(f"v_add_u32 v{vTB}, s{sT2}, v{vTB}")
    if L == 0:
        for q in range(2):
            a(f"v_permlane32_swap_b32 v{XR+4*q}, v{XR+4*q+2}")
            a(f"v_permlane32_swap_b32 v{XR+4*q+1}, v{XR+4*q+3}")
        a(f"v_lshlrev_b32 v{vB2}, 16, v{vB2}")
    vK, vKC, vMX = MA, MA + 1, MA + 2
    a(f"s_mul_i32 s{sT1}, s{sKH}, {16*768}")
    a(f"s_add_u32 s{sT1}, s{sT1}, {KVF[L]:#x}")
    a(f"v_and_b32 v{vT0}, 31, v{vL}")
    a(f"v_mul_u32_u24 v{vKC}, 384, v{vT0}")
    a(f"s_add_u32 s{sT0}, s{sT1}, 256")
    a(f"v_add_u32 v{vKC}, s{sT0}, v{vKC}")
    a(f"v_and_b32 v{vT2}, 7, v{vL}")
    if L == 0:
        a(f"s_lshr_b32 s{sT0}, s{sST}, 1")
        a(f"s_lshl_b32 s{sT0}, s{sT0}, 1")
        a(f"s_add_u32 s{sT0}, s{sT0}, s{sKH}")
        a(f"s_lshl_b32 s{sT0}, s{sT0}, 10")
        a(f"s_add_u32 s{sT0}, s{sT0}, {FL_PQ}")
        a(f"v_lshlrev_b32 v{vT2}, 7, v{vT2}")
    else:
        a(f"s_add_u32 s{sT0}, s{sT3}, 2044")
        a(f"v_lshlrev_b32 v{vT2}, 11, v{vT2}")
    a(f"v_cmp_eq_u32 vcc, 0, v{vHH}")
    a(f"v_add_u32 v{vT2}, s{sT0}, v{vT2}")
    a(f"v_min_u32 v{vT0}, 16, v{vT0}")
    a(f"v_cndmask_b32 v{vKC}, v{vT2}, v{vKC}, vcc")
    a(f"v_lshlrev_b32 v{vT0}, 4, v{vT0}")
    a(f"v_mul_u32_u24 v{vT1}, 384, v{vHH}")
    a(f"v_add_u32 v{vK}, v{vT0}, v{vT1}")
    pump.run(opt("B1", 10), refill=bool(opt("B1R", 0)))
    a.wait_lg_all()
    a("s_barrier")
    rw = {}
    def RW(j):
        b = WF + (j % 3) * 8
        a(f"ds_read_b64_tr_b16 {vr(b,2)}, v{vTA} offset:{j*2048}")
        a(f"ds_read_b64_tr_b16 {vr(b+2,2)}, v{vTA} offset:{j*2048+1024}")
        a(f"ds_read_b64_tr_b16 {vr(b+4,2)}, v{vTB} offset:{j*2048}")
        rw[j] = a(f"ds_read_b64_tr_b16 {vr(b+6,2)}, v{vTB} offset:{j*2048+1024}")
    stamp("beta")
    def issue(): a(f"buffer_load_dword v{vT3}, v{vKC}, {sr(SWS,4)}, 0 offen sc1")
    def check(): a(f"v_cmp_eq_u32 vcc, -1, v{vT3}")
    poll(issue, check, 0x38 + L)
    stamp("p2_kvc")
    redo = a.newlabel("P2REDO")
    a.label(redo)
    lid = {}
    def LD(j):
        if j & 3 == 0:
            if j == 0:
                a(f"s_mov_b32 s{sSO}, s{sT1}"); a(f"s_mov_b32 s{sT4}, s{sT3}")
            else:
                a(f"s_add_u32 s{sSO}, s{sSO}, {4*768}"); a(f"s_add_u32 s{sT4}, s{sT4}, 4096")
        a(f"buffer_load_dwordx4 {vr(KF+4*j,4)}, v{vK}, {sr(SWS,4)}, s{sSO} offen offset:{(j&3)*768} sc1")
        lid[j] = a(f"buffer_load_dwordx4 {vr(QF+4*j,4)}, v{vL16}, {sr(SWS,4)}, s{sT4} offen offset:{(j&3)*1024} sc1")
    PLA = opt("PLA", 7)
    for j in range(PLA): LD(j)
    RW(0); RW(1)
    unpack_xr(ACC)
    a(f"v_mov_b32 v{vMX}, 0")
    def M1(j):
        a.wait(vm=lid[j])
        mfma(vr(CR+(j&1)*16,16), vr(KF+4*j,4), vr(QF+4*j,4), "0")
        a(f"v_max3_u32 v{vMX}, v{vMX}, v{KF+4*j}, v{QF+4*j}")
        if j + PLA < 16: LD(j + PLA)
    def Va(j):
        c = CR + (j & 1) * 16
        a(f"v_add_f32 v{c+8}, s{sEPS6}, v{c+8}")
        a(f"v_rcp_f32 v{c+8}, v{c+8}")
    def Vb(j):
        c = CR + (j & 1) * 16; o = OF + (j & 1) * 4
        for i in range(4): a(f"v_mul_f32 v{c+i}, v{c+i}, v{c+8}")
        for i in range(2): a(f"v_cvt_pk_bf16_f32 v{o+i}, v{c+2*i}, v{c+2*i+1}")
    def Vc(j):
        c = CR + (j & 1) * 16; o = OF + (j & 1) * 4
        for i in range(4, 8): a(f"v_mul_f32 v{c+i}, v{c+i}, v{c+8}")
        for i in range(2, 4): a(f"v_cvt_pk_bf16_f32 v{o+i}, v{c+2*i}, v{c+2*i+1}")
    M1(0); M1(1)
    Va(0); Vb(0); Vc(0); M1(2)
    for j in range(16):
        o = OF + (j & 1) * 4; b = WF + (j % 3) * 8
        if j + 1 < 16: Va(j + 1)
        a.wait(lg=rw[j])
        mfma(vr(ACC,16), vr(b,4), vr(o,4), vr(ACC,16))
        if j + 1 < 16: Vb(j + 1)
        mfma(vr(ACC+16,16), vr(b+4,4), vr(o,4), "0" if j == 0 else vr(ACC+16,16))
        if j + 1 < 16: Vc(j + 1)
        if j + 3 < 16: M1(j + 3)
        if j + 2 < 16: RW(j + 2)
    verify(vMX, redo)
    stamp("p2_main")
    if opt("T2", 1) == 1: touch_w2()
    pump.fill(pump.c + opt("FP2", 4))
    a(f"s_xor_b32 s{sT0}, s{sW}, 1")
    a(f"s_lshl_b32 s{sT0}, s{sT0}, 12")
    a(f"v_add_u32 v{vT0}, s{sT0}, v{vL16}")
    a(f"s_lshl_b32 s{sT0}, s{sW}, 12")
    a(f"v_add_u32 v{vT1}, s{sT0}, v{vL16}")
    stat_slot(sT1, ST[L])
    for q in range(4): a(f"ds_write_b128 v{vT0}, {vr(ACC+16+4*q,4)} offset:{q*1024}")
    a.wait_lg_all()
    a("s_barrier")
    ids = [a(f"ds_read_b128 {vr(ACC+16+4*q,4)}, v{vT1} offset:{q*1024}") for q in range(4)]
    for q in range(4):
        a.wait(lg=ids[q])
        pk("add", ACC+4*q, vr(ACC+4*q,2), vr(ACC+16+4*q,2))
        pk("add", ACC+4*q+2, vr(ACC+4*q+2,2), vr(ACC+16+4*q+2,2))
        a(f"v_cvt_pk_bf16_f32 v{XR+2*q}, v{ACC+4*q}, v{ACC+4*q+1}")
        a(f"v_cvt_pk_bf16_f32 v{XR+2*q+1}, v{ACC+4*q+2}, v{ACC+4*q+3}")
    row_stats_publish(sT1, OF)
    stamp("p2_stpub")
    unpack_xr(XU)
    IDF = 104
    a(f"v_and_b32 v{vT0}, 31, v{vL}")
    a(f"v_lshlrev_b32 v{vT1}, 2, v{vHH}")
    a(f"v_sub_u32 v{vT0}, v{vT0}, v{vT1}")
    a(f"v_mov_b32 v{vT3}, 0x3f80")
    for f in range(2):
        for c in range(4):
            base = 16 * f + ((2 * c) & 3) + 8 * (c >> 1)
            a(f"v_subrev_u32 v{vT1}, {base}, v{vT0}")
            a(f"v_cmp_gt_u32 vcc, 2, v{vT1}")
            a(f"v_lshlrev_b32 v{vT1}, 4, v{vT1}")
            a(f"v_lshlrev_b32 v{vT2}, v{vT1}, v{vT3}")
            a(f"v_cndmask_b32 v{IDF+4*f+c}, 0, v{vT2}, vcc")
    pump.run(opt("G1", 24), refill=bool(opt("GREFILL", 0)))
    SB = 128
    a(f"v_and_b32 v{vT0}, 31, v{vL}")
    a(f"v_lshlrev_b32 v{vT0}, 3, v{vT0}")
    a(f"v_lshl_add_u32 v{vT2}, v{vHH}, 12, v{vT0}")
    a(f"s_lshl_b32 s{sT1}, s{sST}, 13")
    a(f"s_lshl_b32 s{sT2}, s{sRH}, 8")
    a(f"s_add_u32 s{sT1}, s{sT1}, s{sT2}")
    a(f"s_add_u32 s{sT1}, s{sT1}, {ST[L]:#x}")
    ht_addr(sT3, L)
    a(f"v_mov_b32 v{SB+16}, {fl(1.0+1e-5)}")
    pass
    def issue():
        for p in range(8): a(f"buffer_load_dwordx2 {vr(SB+2*p,2)}, v{vT2}, {sr(SWS,4)}, s{sT1} offen offset:{p*512} sc1")
    def check():
        a(f"v_max3_u32 v{vT3}, v{SB+1}, v{SB+3}, v{SB+5}")
        a(f"v_max3_u32 v{vT3}, v{vT3}, v{SB+7}, v{SB+9}")
        a(f"v_max3_u32 v{vT3}, v{vT3}, v{SB+11}, v{SB+13}")
        a(f"v_max_u32 v{vT3}, v{vT3}, v{SB+15}")
        a(f"v_cmp_eq_u32 vcc, -1, v{vT3}")
    poll(issue, check, 0x34 + L)
    stamp("p2_stats")
    for n in (4, 2, 1):
        for p in range(n): pk("add", SB+2*p, vr(SB+2*p,2), vr(SB+2*(p+n),2))
    a(f"v_mov_b32 v{SB+2}, v{SB}")
    a(f"v_mov_b32 v{SB+3}, v{SB+1}")
    a(f"v_permlane32_swap_b32 v{SB}, v{SB+2}")
    a(f"v_permlane32_swap_b32 v{SB+1}, v{SB+3}")
    pk("add", SB, vr(SB,2), vr(SB+2,2))
    a(f"v_mul_f32 v{SB}, {fl(-1/512)}, v{SB}")
    a(f"v_mul_f32 v{SB+1}, {fl(1/512)}, v{SB+1}")
    a(f"v_fma_f32 v{SB+1}, -v{SB}, v{SB}, v{SB+1}")
    a(f"v_max_f32 v{SB+1}, 0, v{SB+1}")
    a(f"v_fmaak_f32 v{SB+1}, v{SB+1}, v{SB+16}, {fl(1e-10)}")
    a(f"v_rsq_f32 v{SB+2}, v{SB+1}")
    a(f"v_mul_f32 v{SB}, v{SB}, v{SB+2}")
    HP_ = 112
    for f in range(2):
        for j in range(4*f, 4*f+4):
            pk("fma", XU+2*j, vr(XU+2*j,2), vr(SB+2,2), vr(SB,2), hi=[1,0,0])
        for j in range(4*f, 4*f+4):
            a(f"v_cvt_pk_bf16_f32 v{HP_+j}, v{XU+2*j}, v{XU+2*j+1}")
        mfma(vr(ACC,16), vr(HP_+4*f,4), vr(IDF+4*f,4), "0" if f == 0 else vr(ACC,16))
    for f in range(2):
        for j in range(4): a(f"v_cvt_pk_bf16_f32 v{ACC+16+4*f+j}, v{ACC+8*f+2*j}, v{ACC+8*f+2*j+1}")
        sid = a(f"buffer_store_dwordx4 {vr(ACC+16+4*f,4)}, v{vL16}, {sr(SWS,4)}, s{sT3} offen offset:{2048*f} sc1")
    stamp(f"p2_{L}")

ACC = 32; RING = 96; AUX = 144
def stream(kind, nks, srot, code, tail=None):
    NR = opt("NR", 6)
    vA, vB, vMX, vC = vTA, vTB, MA, MA + 1
    a(f"s_lshl_b32 s{sT0}, s{sKH}, 10")
    a(f"v_add_u32 v{vA}, s{sT0}, v{vL16}")
    a(f"v_xor_b32 v{vB}, 1024, v{vA}")
    a(f"v_add_u32 v{vA}, s{sT1}, v{vA}")
    a(f"v_add_u32 v{vB}, s{sT1}, v{vB}")
    a(f"v_min_u32 v{vT0}, {nks-1}, v{vL}")
    a(f"v_lshrrev_b32 v{vT1}, 1, v{vT0}")
    a(f"v_and_b32 v{vT0}, 1, v{vT0}")
    a(f"v_lshlrev_b32 v{vT0}, 10, v{vT0}")
    a(f"v_lshl_add_u32 v{vC}, v{vT1}, 12, v{vT0}")
    a(f"v_add_u32 v{vC}, s{sT1}, v{vC}")
    ids = {}
    def LD(s):
        b = RING + (s % NR) * 8
        a(f"buffer_load_dwordx4 {vr(b,4)}, v{vA}, {sr(SWS,4)}, s{sSO} offen offset:{(s&1)*2048} sc1")
        ids[s] = a(f"buffer_load_dwordx4 {vr(b+4,4)}, v{vB}, {sr(SWS,4)}, s{sSO} offen offset:{(s&1)*2048} sc1")
        if s & 1 and s < nks - 1:
            a(f"s_add_u32 s{sSO}, s{sSO}, 4096")
            a(f"s_cmp_eq_u32 s{sSO}, {nks*2048}")
            a(f"s_cselect_b32 s{sSO}, 0, s{sSO}")
    def run(after_poll=None):
        redo = a.newlabel("SREDO")
        def issue(): a(f"buffer_load_dword v{vT3}, v{vC}, {sr(SWS,4)}, 0 offen offset:{2048+1020} sc1")
        def check(): a(f"v_cmp_eq_u32 vcc, -1, v{vT3}")
        poll(issue, check, code)
        stamp("canary")
        if after_poll: after_poll()
        a.label(redo)
        a(f"s_lshl_b32 s{sSO}, s{srot}, 11")
        for s in range(NR): LD(s)
        a(f"v_mov_b32 v{vMX}, 0")
        for s in range(nks):
            a.wait(vm=ids[s])
            b = RING + (s % NR) * 8
            for acc in range(4):
                wf = wreg(kind, s, 4 * (acc >> 1), 4); af = vr(b + 4 * (acc & 1), 4)
                c = "0" if s == 0 else vr(ACC + 16 * acc, 16)
                A_, B_ = (wf, af) if kind == 1 else (af, wf)
                mfma(vr(ACC+16*acc,16), A_, B_, c)
                if acc == 0: a(f"v_max3_u32 v{vMX}, v{vMX}, v{b}, v{b+4}")
            if s + NR < nks: LD(s + NR)
            elif tail and s + NR == nks: tail()
        verify(vMX, redo)
    return run

def reduce4():
    for acc in (1, 2):
        a(f"s_xor_b32 s{sT0}, s{sW}, {acc}")
        a(f"s_lshl_b32 s{sT0}, s{sT0}, 13")
        a(f"v_add_u32 v{vT0+acc-1}, s{sT0}, v{vL16}")
    a(f"s_xor_b32 s{sT0}, s{sW}, 3")
    a(f"s_lshl_b32 s{sT0}, s{sT0}, 14")
    a(f"v_add_u32 v{vT2}, s{sT0}, v{vL16}")
    for acc in (1, 2, 3):
        o = (0, 4096, L_A + SCR)[acc - 1]
        for q in range(4): a(f"ds_write_b128 v{vT0+acc-1}, {vr(ACC+16*acc+4*q,4)} offset:{o+q*1024}")
    a(f"s_lshl_b32 s{sT0}, s{sW}, 13")
    a(f"v_add_u32 v{vT3}, s{sT0}, v{vL16}")
    a(f"v_add_u32 v{vT2}, s{sWA}, v{vL16}")
    def sync_and_read():
        a.wait_lg_all()
        a("s_barrier")
        ids = {}
        for q in range(4):
            a(f"ds_read_b128 {vr(RING+4*q,4)}, v{vT3} offset:{q*1024}")
            ids[(q, 1)] = a(f"ds_read_b128 {vr(RING+16+4*q,4)}, v{vT3} offset:{4096+q*1024}")
            ids[(q, 2)] = a(f"ds_read_b128 {vr(RING+32+4*q,4)}, v{vT2} offset:{SCR+q*1024}")
        def add(q):
            a.wait(lg=ids[(q, 1)])
            for j in (0, 2): pk("add", RING+4*q+j, vr(RING+4*q+j,2), vr(RING+16+4*q+j,2))
            a.wait(lg=ids[(q, 2)])
            for j in (0, 2): pk("add", ACC+4*q+j, vr(ACC+4*q+j,2), vr(RING+32+4*q+j,2))
            for j in (0, 2): pk("add", ACC+4*q+j, vr(ACC+4*q+j,2), vr(RING+4*q+j,2))
        return add
    return sync_and_read

def p3(L):
    a.c(f"======== P3 layer {L}")
    B1R = AUX
    a(f"s_lshl_b32 s{sT0}, s{sFT}, 1")
    a(f"s_add_u32 s{sT0}, s{sT0}, s{sRH}")
    a(f"s_lshl_b32 s{sT0}, s{sT0}, 6")
    a(f"v_lshlrev_b32 v{vT0}, 3, v{vHH}")
    for q in range(4): a(f"buffer_load_dwordx2 {vr(RING+2*q,2)}, v{vT0}, {sr(SB1,4)}, s{sT0} offen offset:{16*q}")
    if L == 0:
        for i in range(4): a(f"v_mov_b32 v{ACC+i}, -1")
        poison_tiles(ACC, 1)
    pump.run(32)
    a.wait_lg_all()
    pump.setup(2)
    pump.run(opt("V2", 4), refill=bool(opt("V2R", 1)))
    assert opt("V2", 4) <= NV2
    a("s_barrier")
    stamp("p3_delta")
    idle = a.newlabel("P3IDLE")
    a(f"s_cmp_eq_u32 s{sP3}, 7")
    a(f"s_cbranch_scc1 {idle}")
    with cond():
        a(f"s_lshl_b32 s{sT1}, s{sDT3}, 2")
        a(f"s_add_u32 s{sT1}, s{sT1}, s{sW}")
        a(f"s_lshl_b32 s{sT1}, s{sT1}, 16")
        a(f"s_add_u32 s{sT1}, s{sT1}, {HT[L]:#x}")
        run = stream(1, 32, sROT1, 0x50 + L)
        def ap():
            for j in range(8):
                a(f"v_lshlrev_b32 v{B1R+2*j}, 16, v{RING+j}")
                a(f"v_and_b32 v{B1R+2*j+1}, 0xffff0000, v{RING+j}")
        run(ap)
        stamp("gemm")
        sync = reduce4()
        u_addr(sT1, L)
        K1 = -2.0 * 0.7978845608028654 * LOG2E
        a(f"s_mov_b32 s{sT2}, {fl(K1*0.044715)}")
        a(f"v_mov_b32 v{vT0}, {fl(K1)}")
        for q in range(8): pk("add", ACC+2*q, vr(ACC+2*q,2), vr(B1R+2*q,2))
        add = sync()
        T = ACC + 16; PKD = ACC + 32
        for h in range(2):
            add(2 * h); add(2 * h + 1)
            R4 = range(4 * h, 4 * h + 4); R8 = range(8 * h, 8 * h + 8)
            for q in R4: pk("mul", T+2*q, vr(ACC+2*q,2), vr(ACC+2*q,2))
            for q in R4: pk("fma", T+2*q, vr(T+2*q,2), sr(sT2,2), vr(vT0,2), hi=[1,0,0])
            for q in R4: pk("mul", T+2*q, vr(T+2*q,2), vr(ACC+2*q,2))
            for i in R8: a(f"v_exp_f32 v{T+i}, v{T+i}")
            for q in R4: pk("add", T+2*q, vr(T+2*q,2), "1.0", hi=[1,0])
            for i in R8: a(f"v_rcp_f32 v{T+i}, v{T+i}")
            for q in R4: pk("mul", ACC+2*q, vr(ACC+2*q,2), vr(T+2*q,2))
            for q in R4: a(f"v_cvt_pk_bf16_f32 v{PKD+q}, v{ACC+2*q}, v{ACC+2*q+1}")
            a(f"buffer_store_dwordx4 {vr(PKD+4*h,4)}, v{vL16}, {sr(SWS,4)}, s{sT1} offen offset:{2048*h} sc1")
    a.label(idle)
    stamp(f"p3_{L}")

def p4(L):
    a.c(f"======== P4 layer {L}")
    pump.run(28)
    stamp("p4_w2")
    a(f"s_lshl_b32 s{sT1}, s{sDT}, 2")
    a(f"s_add_u32 s{sT1}, s{sT1}, s{sW}")
    a(f"s_mul_i32 s{sT1}, s{sT1}, {28*2048}")
    a(f"s_add_u32 s{sT1}, s{sT1}, {U[L]:#x}")
    run = stream(2, 28, sROT2, 0x60 + L, tail=(lambda: touch_wqt('a252')) if L == 0 else None)
    XU = AUX
    unpack_xr(XU)
    for q in range(8): pk("add", XU+2*q, vr(XU+2*q,2), vr(vB2-1,2), lo=[0,1], hi=[1,1])
    a.wait_lg_all()
    a("s_barrier")
    run()
    stamp("gemm")
    sync = reduce4()
    for q in range(8): pk("add", ACC+2*q, vr(ACC+2*q,2), vr(XU+2*q,2))
    if L == 0:
        x2_addr(sT1)
        stat_slot(sT2, ST2)
    add = sync()
    for h in range(2):
        add(2 * h); add(2 * h + 1)
        for q in range(4 * h, 4 * h + 4): a(f"v_cvt_pk_bf16_f32 v{XR+q}, v{ACC+2*q}, v{ACC+2*q+1}")
        if L == 0:
            a(f"buffer_store_dwordx4 {vr(XR+4*h,4)}, v{vL16}, {sr(SWS,4)}, s{sT1} offen offset:{1024*h} sc1")
        else:
            a(f"v_permlane32_swap_b32 v{XR+4*h}, v{XR+4*h+2}")
            a(f"v_permlane32_swap_b32 v{XR+4*h+1}, v{XR+4*h+3}")
            a(f"buffer_store_dwordx4 {vr(XR+4*h,4)}, v{vOUT}, {sr(SOUT,4)}, 0 offen offset:{32*h}")
    if L == 0:
        row_stats_publish(sT2, ACC + 16)
        pass
        a(f"s_mul_i32 s{sT3}, s{sHP}, 98304")
        a(f"s_add_u32 s{sT3}, s{sT3}, s{sWA}")
        a(f"s_add_u32 s{sT3}, s{sT3}, {WQT:#x}")
        for j in range(16):
            if j & 3 == 0:
                a(f"s_add_u32 m0, s{sWA}, {j*1024}")
                if j: a(f"s_add_u32 s{sT3}, s{sT3}, 4096")
            a(f"buffer_load_dwordx4 v{vL16}, {sr(SWS,4)}, s{sT3} offen offset:{(j&3)*1024} lds")
    stamp(f"p4_{L}")

prologue()
for L in range(2):
    p1(L); p2(L); p3(L); p4(L)
finish()
a.label("L_EXIT")
a("s_endpgm")
a.label("L_END")

hdr = open(f"cdna_kernels/{NAME}.s.ref").read().split("; Override launch")[0]
out = hdr + f"""; @launch grid=(256,1,1) block=(256,1,1) lds={LDS_BYTES}
.amdgcn_target "amdgcn-amd-amdhsa--gfx950"
.text
.globl {NAME}_kernel
.p2align 8
.type {NAME}_kernel,@function
{NAME}_kernel:
""" + a.text() + f""".section .rodata,"a"
.p2align 6
.amdhsa_kernel {NAME}_kernel
  .amdhsa_next_free_vgpr 512
  .amdhsa_next_free_sgpr 102
  .amdhsa_accum_offset 256
  .amdhsa_group_segment_fixed_size 0
  .amdhsa_kernarg_size 88
  .amdhsa_user_sgpr_count 2
  .amdhsa_user_sgpr_kernarg_segment_ptr 1
  .amdhsa_system_sgpr_workgroup_id_x 1
  .amdhsa_float_denorm_mode_32 3
.end_amdhsa_kernel
"""
outp = [x for x in sys.argv[1:] if x.endswith(".s")]
open(outp[0], "w").write(out)
if DIAG: open(outp[0] + ".stamps", "w").write("\n".join(stamp_names))
```

```python
import sys, struct
from contextlib import contextmanager
from asmlib import Asm, vr, ar, sr

NAME = "interleave_layers__linear_attn_block__mixer_token_mlp__prompt"
DIAG = "--diag" in sys.argv
OPT = {}
for a_ in sys.argv:
    if a_.startswith("-D"):
        k_, v_ = a_[2:].split("="); OPT[k_] = int(v_)
def opt(k, d): return OPT.get(k, d)
def optL(k, L, d0, d1): return OPT.get(f'{k}_{L}', (d0, d1)[L])
def f2u(x): return struct.unpack("<I", struct.pack("<f", x))[0]
def fl(x): return "0x%08x" % f2u(x)
FULL = (1 << 64) - 1
LOG2E = 1.4426950408889634

FL_PQ = 0xB0000
KVF = [0x2000, 0xC0000]; KVP = [0x8000, 0xC6000]; ST = [0x166000, 0x1A6000]; ST2 = 0x1E6000
SELFP = 0xC0000
PQ = [0x400000, 0x600000]; HT = [0x800000, 0xA00000]; U = [0xC00000, 0xE00000]; X2 = 0x1000000
WQT = 0x1200000
TS = 0x1400000
DUMP = 0x1500000
WS_BYTES = 268435456
L_A = 32768; L_B = 98304; LDS_BYTES = 163840
NS = 6; SCR = 12288
sW = 3
SX, SWQKV, SWO, SW1, SW2, SWS, SOUT, SDBG, SB1, SB2, SCODE = 4, 8, 12, 16, 20, 24, 28, 32, 36, 40, 44
sST, sDT, sRB, sHP, sDT3, sFT, sP3, sRH, sKH, sWB, sTO, sONES = 48, 49, 50, 51, 52, 53, 54, 55, 56, 57, 58, 59
sEPS6 = 60; sB = 61
sT0, sT1, sT2, sT3, sT4, sT5 = 62, 63, 64, 65, 66, 67
sSO = 68; sW1K = 69; sTS = 70
sL2E = 74; sWA = 75; sROTX = 76; sROT1 = 77; sROT2 = 78; sRED = 79; sWOFF = 80; sKB = 81; sXC = 82; sWI = 83
sKA = 84
vL, vL16, vTA, vTB, vT0, vT1, vT2, vT3 = 0, 1, 2, 3, 4, 5, 6, 7
XR = 8
CKP, CVP, CQP, vB2, vRS, vHH, vOUT, vTSV = 16, 17, 18, 19, 20, 21, 22, 23
vWA, vWB, vWTA, vWTB = 24, 25, 26, 27
MA = 28
LOC = 32

a = Asm()
stamp_names = []
TOREC = ()
torec = []

@contextmanager
def cond():
    st = (a.vm, a.vm_done, a.lg, a.lg_done)
    yield
    a.vm, a.vm_done, a.lg, a.lg_done = st[0], min(st[1], st[0]), st[2], min(st[3], st[2])

def stamp(name):
    if not DIAG: return
    k = len(stamp_names); stamp_names.append(name)
    a(f"s_memrealtime {sr(sTS,2)}")
    if name in ("start", "end"): a(f"s_memtime {sr(sTS+2,2)}")
    a("s_waitcnt lgkmcnt(0)"); a.lg_done = a.lg
    a(f"v_writelane_b32 v{vTSV}, s{sTS}, {k}")
    if name in ("start", "end"): a(f"v_writelane_b32 v{vTSV}, s{sTS+2}, {62 if name == 'start' else 63}")
    if name in TOREC:
        a(f"v_writelane_b32 v{vTSV}, s{sTO}, {52 + len(torec)}"); torec.append(name)

def srd(base, ptr, nbytes):
    a(f"s_mov_b32 s{base}, s{ptr}")
    a(f"s_and_b32 s{base+1}, s{ptr+1}, 0xffff")
    a(f"s_mov_b32 s{base+2}, {nbytes:#x}")
    a(f"s_mov_b32 s{base+3}, 0x20000")

def set_exec(mask):
    if mask == FULL: a("s_mov_b64 exec, -1")
    elif mask <= 64: a(f"s_mov_b64 exec, {mask}")
    else:
        a(f"s_mov_b32 exec_lo, {mask & 0xffffffff:#x}"); a(f"s_mov_b32 exec_hi, {mask >> 32:#x}")

def poll(issue, check, code, pre=None):
    top = a.newlabel("POLL"); done = a.newlabel("PDONE"); chk = a.newlabel("PCHK")
    if pre is not None:
        a.wait(vm=pre)
        st = (a.vm, a.vm_done)
        a(f"s_branch {chk}")
    a.label(top)
    issue()
    a.wait_vm_all(force=True)
    if pre is not None: a.label(chk)
    check()
    a(f"s_cbranch_vccz {done}")
    a(f"s_sub_u32 s{sTO}, s{sTO}, 1")
    a(f"s_cbranch_scc0 {top}")
    a(f"s_mov_b32 s{sTO}, 0")
    a(f"v_mov_b32 v{vT0}, {code}")
    a(f"v_mov_b32 v{vT1}, 0")
    a(f"buffer_store_dword v{vT0}, v{vT1}, {sr(SDBG,4)}, 0 offen")
    a("s_waitcnt vmcnt(0)")
    a.vm_done = a.vm
    a.label(done)
    if pre is not None: a.vm, a.vm_done = st

def poll_flags(n, code):
    a(f"v_min_u32 v{vT2}, {n-1}, v{vL}")
    a(f"v_lshlrev_b32 v{vT2}, 7, v{vT2}")
    def issue(): a(f"buffer_load_dword v{vT3}, v{vT2}, {sr(SWS,4)}, s{sT0} offen sc1")
    def check(): a(f"v_cmp_ne_u32 vcc, 1, v{vT3}")
    poll(issue, check, code)

def publish_flag(last_store):
    a(f"v_mov_b32 v{vT0}, 1")
    a(f"v_lshlrev_b32 v{vT1}, 2, v{vL}")
    a.wait(vm=last_store)
    a("s_barrier")
    skip = a.newlabel("NOFLAG")
    a(f"s_cmp_lg_u32 s{sW}, 0")
    a(f"s_cbranch_scc1 {skip}")
    with cond():
        set_exec((1 << 32) - 1)
        a(f"buffer_store_dword v{vT0}, v{vT1}, {sr(SWS,4)}, s{sT0} offen sc1")
        set_exec(FULL)
    a.label(skip)

def finish():
    if DIAG:
        stamp("end")
        a(f"s_lshl_b32 s{sT0}, s{sB}, 2")
        a(f"s_add_u32 s{sT0}, s{sT0}, s{sW}")
        a(f"s_lshl_b32 s{sT0}, s{sT0}, 8")
        a(f"s_add_u32 s{sT0}, s{sT0}, {TS:#x}")
        a(f"v_lshlrev_b32 v{vT0}, 2, v{vL}")
        a(f"buffer_store_dword v{vTSV}, v{vT0}, {sr(SWS,4)}, s{sT0} offen")
        if opt("DBGOUT", 0):
            sel = [1, 2, 3, 8, 9, 14, 15, 18, 19, 21, 22, 28, 34, 38, 39, 41]
            skip = a.newlabel("NODBG")
            a(f"s_cmp_lg_u32 s{sB}, {opt('DBGOUT', 0)}")
            a(f"s_cbranch_scc1 {skip}")
            a(f"s_cmp_lg_u32 s{sW}, 0")
            a(f"s_cbranch_scc1 {skip}")
            a(f"v_readlane_b32 s{sT1}, v{vTSV}, 0")
            for k, i in enumerate(sel):
                a(f"v_readlane_b32 s{sT2}, v{vTSV}, {i}")
                a("s_nop 3")
                a(f"s_sub_u32 s{sT2}, s{sT2}, s{sT1}")
                a(f"v_writelane_b32 v{vT1}, s{sT2}, {k}")
            set_exec(0xffff)
            a(f"buffer_store_dword v{vT1}, v{vT0}, {sr(SDBG,4)}, 0 offen")
            a.label(skip)
    a("s_endpgm")

def pk(op, d, x, y, z=None, hi=None, lo=None, neg=None):
    ops = [x, y] + ([z] if z is not None else [])
    m = ""
    if lo: m += " op_sel:[" + ",".join(map(str, lo)) + "]"
    if hi: m += " op_sel_hi:[" + ",".join(map(str, hi)) + "]"
    if neg: m += " neg_lo:[" + ",".join(map(str, neg)) + "] neg_hi:[" + ",".join(map(str, neg)) + "]"
    a(f"v_pk_{op}_f32 {vr(d,2)}, " + ", ".join(ops) + m)

def mfma(d, A, B, C):
    a(f"v_mfma_f32_32x32x16_bf16 {d}, {A}, {B}, {C}")

def tr_base(dst_a, dst_b, sel_sgpr, region):
    a(f"v_bfe_u32 v{vT0}, v{vL}, 2, 2")
    a(f"v_lshl_add_u32 v{vT0}, v{vHH}, 2, v{vT0}")
    a(f"v_lshlrev_b32 v{dst_a}, 7, v{vT0}")
    a(f"v_bfe_u32 v{vT1}, v{vL}, 3, 1")
    a(f"v_lshl_add_u32 v{dst_a}, v{vT1}, 6, v{dst_a}")
    a(f"v_bfe_u32 v{vT1}, v{vL}, 4, 1")
    a(f"v_lshl_add_u32 v{dst_a}, v{vT1}, 5, v{dst_a}")
    a(f"v_and_b32 v{vT1}, 3, v{vL}")
    a(f"v_lshl_add_u32 v{dst_a}, v{vT1}, 3, v{dst_a}")
    a(f"s_lshl_b32 s{sT5}, s{sel_sgpr}, 6")
    a(f"v_xor_b32 v{dst_a}, s{sT5}, v{dst_a}")
    a(f"v_add_u32 v{dst_a}, {region}, v{dst_a}")
    a(f"v_xor_b32 v{dst_b}, 64, v{dst_a}")

def dma_voff(dst, dst2, pitch, scol):
    a(f"v_lshrrev_b32 v{vT0}, 3, v{vL}")
    a(f"v_mul_u32_u24 v{dst}, {pitch}, v{vT0}")
    a(f"v_bfe_u32 v{vT1}, v{vL}, 4, 1")
    a(f"v_lshlrev_b32 v{vT1}, 2, v{vT1}")
    a(f"v_and_b32 v{vT0}, 7, v{vL}")
    a(f"v_xor_b32 v{vT0}, v{vT0}, v{vT1}")
    a(f"v_lshl_add_u32 v{dst}, v{vT0}, 4, v{dst}")
    a(f"v_add_u32 v{dst}, s{scol}, v{dst}")
    a(f"v_add_u32 v{dst2}, {8*pitch-1024}, v{dst}")

R1, R2 = 16, 11
NV2 = R2
def wreg(kind, t, j, n):
    r, base = (R1, 0) if kind == 1 else (R2, R1 * 8)
    if t < r: return ar(base + 8 * t + j, n)
    t -= r
    if t < 5: return ar(216 + 8 * t + j, n)
    return vr(160 + 8 * (t - 5) + j, n)

class Pump:
    def setup(self, kind, L):
        self.kind = kind
        self.pitch, self.srd, self.n = (3584, SW1, 32) if kind == 1 else (4096, SW2, 28)
        self.t0 = 0 if L == 0 else (R1 if kind == 1 else R2)
        self.i = self.t0; self.c = self.t0; self.vid = {}; self.lid = {}
        a.c(f"pump setup W{kind}")
        a(f"s_lshl_b32 s{sT4}, s{sFT if kind == 1 else sST}, 7")
        a(f"s_mul_i32 s{sT5}, s{sW}, {self.n*16*self.pitch}")
        a(f"s_add_u32 s{sT4}, s{sT4}, s{sT5}")
        dma_voff(vWA, vWB, self.pitch, sT4)
        rot = sROT1 if kind == 1 else sROT2
        a(f"s_add_u32 s{sT5}, s{rot}, {self.t0}")
        a(f"s_sub_u32 s{sWOFF}, s{sT5}, {self.n}")
        a(f"s_cselect_b32 s{sWOFF}, s{sT5}, s{sWOFF}")
        a(f"s_mul_i32 s{sWOFF}, s{sWOFF}, {16*self.pitch}")
    def issue1(self):
        if opt("NOPUMP", 0):
            self.vid[self.i] = None; self.i += 1; return
        t = self.i
        if t - NS >= self.t0: a.wait(lg=self.lid[t - NS])
        a(f"s_add_u32 m0, s{sWA}, {(t % NS)*2048}")
        if t > self.t0:
            a(f"s_add_u32 s{sWOFF}, s{sWOFF}, {16*self.pitch}")
            if opt("ROTW", 1):
                a(f"s_cmp_eq_u32 s{sWOFF}, {self.n*16*self.pitch}")
                a(f"s_cselect_b32 s{sWOFF}, 0, s{sWOFF}")
        a(f"buffer_load_dwordx4 v{vWA}, {sr(self.srd,4)}, s{sWOFF} offen lds")
        self.vid[t] = a(f"buffer_load_dwordx4 v{vWB}, {sr(self.srd,4)}, s{sWOFF} offen offset:1024 lds")
        self.i += 1
    def fill(self, upto=None):
        lim = self.n if upto is None else min(self.n, upto)
        while self.i < lim and self.i - NS < self.c: self.issue1()
    def run(self, target, refill=True):
        target = min(target, self.n)
        while self.c < target:
            t = self.c
            if t >= self.i: self.issue1()
            if opt("NOPUMP", 0):
                self.c += 1; continue
            a.wait(vm=self.vid[t])
            o = (t % NS) * 2048
            a(f"ds_read_b64_tr_b16 {wreg(self.kind,t,0,2)}, v{vWTA} offset:{o}")
            a(f"ds_read_b64_tr_b16 {wreg(self.kind,t,2,2)}, v{vWTA} offset:{o+1024}")
            a(f"ds_read_b64_tr_b16 {wreg(self.kind,t,4,2)}, v{vWTB} offset:{o}")
            self.lid[t] = a(f"ds_read_b64_tr_b16 {wreg(self.kind,t,6,2)}, v{vWTB} offset:{o+1024}")
            self.c += 1
            lim = self.n if refill else target
            if self.i < lim and self.i - NS < self.c - 1: self.issue1()
        if refill: self.fill()
pump = Pump()

def prologue():
    a(f"s_cmp_ge_u32 s2, 256")
    a(f"s_cbranch_scc1 L_EXIT")
    a(f"s_load_dwordx16 {sr(sKA,16)}, s[0:1], 0")
    a(f"s_load_dwordx4 {sr(SCODE,4)}, s[0:1], 64")
    a(f"s_load_dwordx2 s[100:101], s[0:1], 80")
    a(f"s_mov_b32 s{sB}, s2")
    a(f"v_lshrrev_b32 v{vT0}, 6, v0")
    a(f"v_and_b32 v{vL}, 63, v0")
    a(f"v_readfirstlane_b32 s{sW}, v{vT0}")
    a(f"v_lshlrev_b32 v{vL16}, 4, v{vL}")
    a(f"v_lshrrev_b32 v{vHH}, 5, v{vL}")
    if DIAG: a(f"v_mov_b32 v{vTSV}, 0")
    stamp("start")
    X_, I_ = sT0, sT1
    a(f"s_and_b32 s{X_}, s{sB}, 7")
    a(f"s_lshr_b32 s{I_}, s{sB}, 3")
    a(f"s_lshr_b32 s{sT2}, s{I_}, 3")
    a(f"s_and_b32 s{sDT}, s{I_}, 7")
    a(f"s_and_b32 s{sRB}, s{X_}, 3")
    a(f"s_lshl_b32 s{sRB}, s{sRB}, 2")
    a(f"s_add_u32 s{sRB}, s{sRB}, s{sT2}")
    a(f"s_lshr_b32 s{sHP}, s{X_}, 2")
    a(f"s_lshl_b32 s{sHP}, s{sHP}, 3")
    a(f"s_add_u32 s{sHP}, s{sHP}, s{sDT}")
    a(f"s_lshr_b32 s{sROTX}, s{sDT}, 1")
    a(f"s_add_u32 s{sROTX}, s{sROTX}, s{sT2}")
    a(f"s_and_b32 s{sROTX}, s{sROTX}, 3")
    a(f"s_lshl_b32 s{sROTX}, s{sROTX}, 1")
    a(f"s_and_b32 s{sT3}, s{I_}, 1")
    a(f"s_add_u32 s{sROTX}, s{sROTX}, s{sT3}")
    if not opt("ROTX", 1): a(f"s_mov_b32 s{sROTX}, 0")
    a(f"s_lshl_b32 s{sW1K}, s{sW}, 10")
    a(f"s_lshl_b32 s{sWB}, s{sW}, 14")
    a(f"s_add_u32 s{sWA}, s{sWB}, {L_A}")
    a(f"s_add_u32 s{sWB}, s{sWB}, {L_B}")
    a(f"s_lshl_b32 s{sST}, s{X_}, 2")
    a(f"s_add_u32 s{sST}, s{sST}, s{sT2}")
    a(f"s_lshr_b32 s{sT3}, s{X_}, 1")
    a(f"s_mul_i32 s{sT3}, s{sT3}, 7")
    a(f"s_and_b32 s{sT4}, s{X_}, 1")
    a(f"s_lshl_b32 s{sT5}, s{sT4}, 2")
    a(f"s_add_u32 s{sFT}, s{sT3}, s{sT5}")
    a(f"s_add_u32 s{sFT}, s{sFT}, s{sT2}")
    a(f"s_and_b32 s{sP3}, s{I_}, 3")
    a(f"s_add_u32 s{sT5}, s{sT5}, s{sP3}")
    a(f"s_add_u32 s{sKB}, s{sT3}, 3")
    a(f"s_cmp_lt_u32 s{I_}, 24")
    a(f"s_cselect_b32 s{sFT}, s{sFT}, s{sKB}")
    a(f"s_cselect_b32 s{sDT3}, s{sDT}, s{sT5}")
    a(f"s_mul_i32 s{sT4}, s{sT4}, 3")
    a(f"s_add_u32 s{sXC}, s{sT3}, s{sT4}")
    a(f"s_lshl_b32 s{sROT1}, s{X_}, 2")
    a(f"s_and_b32 s{sT3}, s{I_}, 3")
    a(f"s_lshr_b32 s{sP3}, s{I_}, 2")
    a(f"s_lshl_b32 s{sWI}, s{I_}, 2")
    a(f"s_add_u32 s{sWI}, s{sWI}, s{sW}")
    a(f"s_lshl_b32 s{sRED}, s{X_}, 2")
    a(f"s_add_u32 s{sRED}, s{sRED}, s{sT3}")
    a(f"s_lshl_b32 s{sRED}, s{sRED}, 1")
    a(f"s_add_u32 s{sRED}, s{sRED}, s{sW}")
    a(f"s_cmp_lt_u32 s{sW}, 2")
    a(f"s_cselect_b32 s{sRED}, s{sRED}, 99")
    a(f"s_cmp_eq_u32 s{sP3}, 7")
    a(f"s_cselect_b32 s{sRED}, s{sRED}, 99")
    a(f"s_mul_i32 s{sROT2}, s{X_}, 7")
    a(f"s_lshr_b32 s{sROT2}, s{sROT2}, 2")
    a(f"s_lshl_b32 s{sROT2}, s{sROT2}, 1")
    if not opt("ROTW", 1):
        a(f"s_mov_b32 s{sROT1}, 0"); a(f"s_mov_b32 s{sROT2}, 0")
    a(f"s_lshr_b32 s{sRH}, s{sW}, 1")
    a(f"s_and_b32 s{sKH}, s{sW}, 1")
    a(f"s_mov_b32 s{sTO}, 400000")
    a(f"s_mov_b32 s{sONES}, 0x3f803f80")
    a(f"s_mov_b32 s{sEPS6}, {fl(1e-6)}")
    a(f"s_mov_b32 s{sL2E}, {fl(LOG2E)}")
    a("s_waitcnt lgkmcnt(0)")
    pass
    srd(SX, sKA + 0, 2048 * 512 * 2)
    srd(SWQKV, sKA + 2, 512 * 1536 * 2)
    srd(SWS, 100, WS_BYTES)

def late_srds():
    srd(SWO, sKA + 4, 512 * 512 * 2)
    srd(SW1, sKA + 8, 2048 * 1792 * 2)
    a(f"s_cmp_eq_u32 s{sP3}, 7")
    a(f"s_cselect_b32 s{SW1+2}, 0, s{SW1+2}")
    srd(SB1, sKA + 10, 1792 * 2)
    srd(SW2, sKA + 12, 1792 * 2048 * 2)
    srd(SB2, sKA + 14, 2048 * 2)
    srd(SOUT, SCODE, 2048 * 512 * 2)
    srd(SDBG, SCODE + 2, 256)

def init_poison(P):
    for i in range(4): a(f"v_mov_b32 v{P+i}, -1")
    skip = a.newlabel("NOPOIS")
    a(f"s_cmp_ge_u32 s{sB}, 32")
    a(f"s_cbranch_scc1 {skip}")
    with cond():
        a(f"s_mul_i32 s{sT0}, s{sB}, 24576")
        a(f"s_add_u32 s{sT0}, s{sT0}, s{sW1K}")
        for j in range(6):
            a(f"buffer_store_dwordx4 {vr(P,4)}, v{vL16}, {sr(SWS,4)}, s{sT0} offen sc1")
            if j < 5: a(f"s_add_u32 s{sT0}, s{sT0}, 4096")
    a.label(skip)

def ht_addr(dst, L):
    a(f"s_lshl_b32 s{dst}, s{sDT}, 6")
    a(f"s_lshl_b32 s{sT5}, s{sST}, 1")
    a(f"s_add_u32 s{dst}, s{dst}, s{sT5}")
    a(f"s_add_u32 s{dst}, s{dst}, s{sRH}")
    a(f"s_lshl_b32 s{dst}, s{dst}, 2")
    a(f"s_add_u32 s{dst}, s{dst}, s{sKH}")
    a(f"s_lshl_b32 s{dst}, s{dst}, 10")
    a(f"s_add_u32 s{dst}, s{dst}, {HT[L]:#x}")
def u_addr(dst, L):
    a(f"s_mul_i32 s{dst}, s{sDT3}, 56")
    a(f"s_lshl_b32 s{sT5}, s{sFT}, 1")
    a(f"s_add_u32 s{dst}, s{dst}, s{sT5}")
    a(f"s_add_u32 s{dst}, s{dst}, s{sRH}")
    a(f"s_lshl_b32 s{dst}, s{dst}, 2")
    a(f"s_add_u32 s{dst}, s{dst}, s{sKH}")
    a(f"s_lshl_b32 s{dst}, s{dst}, 10")
    a(f"s_add_u32 s{dst}, s{dst}, {U[L]:#x}")
def x2_addr(dst):
    a(f"s_lshl_b32 s{dst}, s{sST}, 1")
    a(f"s_add_u32 s{dst}, s{dst}, s{sRH}")
    a(f"s_lshl_b32 s{dst}, s{dst}, 3")
    a(f"s_add_u32 s{dst}, s{dst}, s{sDT}")
    a(f"s_lshl_b32 s{dst}, s{dst}, 1")
    a(f"s_add_u32 s{dst}, s{dst}, s{sKH}")
    a(f"s_lshl_b32 s{dst}, s{dst}, 11")
    a(f"s_add_u32 s{dst}, s{dst}, {X2:#x}")
def poison_tiles(P, L):
    ht_addr(sT0, L)
    for f in range(2): a(f"buffer_store_dwordx4 {vr(P,4)}, v{vL16}, {sr(SWS,4)}, s{sT0} offen offset:{2048*f} sc1")
    u_addr(sT0, L)
    a(f"s_cmp_eq_u32 s{sP3}, 7")
    a(f"s_cselect_b32 s{sT0}, {DUMP:#x}, s{sT0}")
    for f in range(2): a(f"buffer_store_dwordx4 {vr(P,4)}, v{vL16}, {sr(SWS,4)}, s{sT0} offen offset:{2048*f} sc1")
    if L == 0: x2_addr(sT0)
    else:
        for x in (f"s_lshl_b32 s{sT0}, s{sRB}, 2", f"s_add_u32 s{sT0}, s{sT0}, s{sW}", f"s_lshl_b32 s{sT0}, s{sT0}, 4",
                  f"s_add_u32 s{sT0}, s{sT0}, s{sHP}", f"s_lshl_b32 s{sT0}, s{sT0}, 11", f"s_add_u32 s{sT0}, s{sT0}, {PQ[1]:#x}"): a(x)
    for f in range(2): a(f"buffer_store_dwordx4 {vr(P,4)}, v{vL16}, {sr(SWS,4)}, s{sT0} offen offset:{1024*f} sc1")

def code_prefetch():
    if opt("CODEPF", 1):
        a(f"s_getpc_b64 {sr(SCODE,2)}")
        a.label("L_PC")
        a(f"s_and_b32 s{SCODE+1}, s{SCODE+1}, 0xffff")
        a(f"s_mov_b32 s{SCODE+2}, L_END - L_PC")
        a(f"s_mov_b32 s{SCODE+3}, 0x20000")
        a(f"s_lshr_b32 s{sT0}, s{sB}, 3")
        a(f"s_lshl_b32 s{sT0}, s{sT0}, 12")
        a(f"s_add_u32 s{sT0}, s{sT0}, s{sW1K}")
        a(f"buffer_load_dwordx4 {ar(252,4)}, v{vL16}, {sr(SCODE,4)}, s{sT0} offen")
    srd(SCODE, sKA + 8, 2048 * 1792 * 2)

def touch(srdn, rows_per_wave, lines_per_row_log2, pitch, scol_emit, dst):
    lg = lines_per_row_log2
    n = rows_per_wave << lg
    scol_emit()
    a(f"v_min_u32 v{vT0}, {n-1}, v{vL}")
    a(f"v_lshrrev_b32 v{vT1}, {lg}, v{vT0}")
    a(f"v_mul_u32_u24 v{vT1}, {pitch}, v{vT1}")
    a(f"v_and_b32 v{vT0}, {(1<<lg)-1}, v{vT0}")
    a(f"v_lshl_add_u32 v{vT0}, v{vT0}, 7, v{vT1}")
    a(f"s_mul_i32 s{sT5}, s{sWI}, {rows_per_wave*pitch}")
    a(f"s_add_u32 s{sT4}, s{sT4}, s{sT5}")
    a(f"buffer_load_dword {dst}, v{vT0}, {sr(srdn,4)}, s{sT4} offen")
def touch_w1(dst):
    touch(SCODE, 16, 2, 3584, lambda: a(f"s_lshl_b32 s{sT4}, s{sXC}, 7"), dst)
def touch_w2(dst):
    def c2():
        a(f"s_and_b32 s{sT4}, s{sB}, 7"); a(f"s_lshl_b32 s{sT4}, s{sT4}, 9")
    touch(SW2, 16, 2, 4096, c2, dst)
def touch_wo(dst):
    touch(SWO, 4, 3, 1024, lambda: a(f"s_mov_b32 s{sT4}, 0"), dst)
def touch_wqt(dst):
    if not opt("TQ", 1): return
    def c():
        a(f"s_lshr_b32 s{sT4}, s{sHP}, 3"); a(f"s_mul_i32 s{sT4}, s{sT4}, {8*98304}"); a(f"s_add_u32 s{sT4}, s{sT4}, {WQT:#x}")
    touch(SWS, 6, 3, 1024, c, dst)
def touches(L, where):
    dst = {1: "a25", 2: "a25", 3: "a25"}.get(where)
    if optL("T1", L, 1, 0) == where: touch_w1(dst + "2" if dst else "v31")
    if optL("T2", L, 3, 0) == where: touch_w2(dst + "3" if dst else "v31")

def verify(vMX, redo):
    ok = a.newlabel("VOK")
    a(f"v_cmp_eq_u32 vcc, -1, v{vMX}")
    a(f"s_cbranch_vccz {ok}")
    a("s_waitcnt vmcnt(0)")
    a(f"s_sub_u32 s{sTO}, s{sTO}, 64")
    a(f"s_cbranch_scc0 {redo}")
    a(f"s_mov_b32 s{sTO}, 0")
    a.label(ok)

def init_misc(P):
    a(f"s_mul_i32 s{sT0}, s{sB}, 6144")
    a(f"s_add_u32 s{sT0}, s{sT0}, {SELFP:#x}")
    a(f"s_add_u32 s{sT1}, s{sT0}, s{sW1K}")
    a(f"buffer_store_dwordx4 {vr(P,4)}, v{vL16}, {sr(SWS,4)}, s{sT1} offen sc1")
    a(f"v_lshlrev_b32 v{vT0}, 3, v{vL}")
    a(f"s_lshl_b32 s{sT1}, s{sW}, 9")
    a(f"s_add_u32 s{sT0}, s{sT0}, s{sT1}")
    a(f"s_add_u32 s{sT0}, s{sT0}, 4096")
    a(f"buffer_store_dwordx2 {vr(P,2)}, v{vT0}, {sr(SWS,4)}, s{sT0} offen sc1")
    a(f"s_lshl_b32 s{sT0}, s{sST}, 1")
    a(f"s_add_u32 s{sT0}, s{sT0}, s{sRH}")
    a(f"s_lshl_b32 s{sT0}, s{sT0}, 5")
    a(f"v_and_b32 v{vT0}, 31, v{vL}")
    a(f"v_add_u32 v{vT0}, s{sT0}, v{vT0}")
    a(f"v_lshlrev_b32 v{vT1}, 1, v{vT0}")
    a(f"buffer_load_ushort v{vB2}, v{vT1}, {sr(SB2,4)}, 0 offen")
    a(f"v_lshlrev_b32 v{vT0}, 10, v{vT0}")
    a(f"v_lshl_add_u32 v{vOUT}, v{vHH}, 4, v{vT0}")
    a(f"s_lshl_b32 s{sT0}, s{sDT}, 1")
    a(f"s_add_u32 s{sT0}, s{sT0}, s{sKH}")
    a(f"s_lshl_b32 s{sT0}, s{sT0}, 6")
    a(f"v_add_u32 v{vOUT}, s{sT0}, v{vOUT}")
    a(f"buffer_load_dwordx4 {vr(XR,4)}, v{vOUT}, {sr(SX,4)}, 0 offen")
    a(f"buffer_load_dwordx4 {vr(XR+4,4)}, v{vOUT}, {sr(SX,4)}, 0 offen offset:32")
    tr_base(vWTA, vWTB, sRH, f"s{sWA}")

def split2(dst, src, t0):
    a(f"v_cvt_pk_bf16_f32 v{t0}, v{src}, v{src}")
    a(f"v_and_b32 v{t0}, 0xffff0000, v{t0}")
    a(f"v_sub_f32 v{dst}, v{src}, v{t0}")
    a(f"v_cvt_pk_bf16_f32 v{dst}, v{t0}, v{dst}")

def stats_to_frags(S, Q, RA):
    a(f"v_mul_f32 v{S}, {fl(-1/512)}, v{S}")
    a(f"v_mul_f32 v{Q}, {fl(1/512)}, v{Q}")
    a(f"v_cmp_eq_u32 vcc, 0, v{vHH}")
    a(f"v_fma_f32 v{Q}, -v{S}, v{S}, v{Q}")
    a(f"v_max_f32 v{Q}, 0, v{Q}")
    a(f"v_add_f32 v{Q}, {fl(1e-5)}, v{Q}")
    a(f"v_rsq_f32 v{vRS}, v{Q}")
    a(f"v_cndmask_b32 v{S}, 0, v{S}, vcc")
    a(f"v_cvt_pk_bf16_f32 v{MA}, v{S}, v{S}")
    a(f"v_cndmask_b32 v{Q}, 0, v{vRS}, vcc")
    a(f"v_and_b32 v{vT0}, 0xffff0000, v{MA}")
    a(f"v_sub_f32 v{S}, v{S}, v{vT0}")
    a(f"v_cvt_pk_bf16_f32 v{MA+1}, v{S}, v{S}")
    split2(RA, Q, vT0)

XF = 128
def p1(L):
    ACCK, ACCV, RR = 32, 48, 64
    VV, PK, T1 = 80, 88, 96
    S0, S1, Q0, Q1 = 80, 81, 82, 83
    CF = 84
    CFV, CFQ, RA = 112, 116, 120
    vTQ, vTV = 124, 125
    vW, vXA, vXB = 126, 127, 96
    vCQ, vCV = 97, 98
    XA = 88
    WFR = 216; NWF = 4; ONESF = 248; CG = 200; CK, CV, CQ = 152, 168, 184
    a.c(f"======== P1 layer {L}")
    xid = {}; wid = {}
    toff = 256 if L == 0 else 512
    vTQ2, vTV2 = vTA, vTB
    def addr_setup():
        if L == 0:
            a(f"v_bfe_u32 v{vT0}, v{vL}, 2, 2")
            a(f"v_lshl_add_u32 v{vT0}, v{vHH}, 3, v{vT0}")
            a(f"v_lshlrev_b32 v{vTQ}, 6, v{vT0}")
            a(f"v_bfe_u32 v{vT1}, v{vL}, 4, 1")
            a(f"v_lshl_add_u32 v{vTQ}, v{vT1}, 5, v{vTQ}")
            a(f"v_and_b32 v{vT1}, 3, v{vL}")
            a(f"v_lshl_add_u32 v{vTQ}, v{vT1}, 3, v{vTQ}")
        else:
            a(f"s_and_b32 s{sT5}, s{sROTX}, {opt('XROT', 1)}")
            a(f"s_lshl_b32 s{sT5}, s{sT5}, 14")
            a(f"v_add_u32 v{vTQ}, s{sT5}, v{vL16}")
            a(f"v_xor_b32 v{vTQ2}, 16384, v{vTQ}")
            a(f"v_add_u32 v{vTV2}, 65536, v{vTQ2}")
        a(f"v_add_u32 v{vTV}, 65536, v{vTQ}")
        for i in range(4): a(f"v_accvgpr_write_b32 a{ONESF+i}, s{sONES}")
        for r in ([MA + 2, MA + 3] if L == 0 else []) + [RA + 1, RA + 2, RA + 3, CF + 2, CF + 3, CFV + 2, CFV + 3, CFQ + 2, CFQ + 3]: a(f"v_mov_b32 v{r}, 0")
    rg = {}
    def RG(s):
        b = WFR + (s % NWF) * 8
        if L == 0:
            o = s * 1024
            a(f"ds_read_b64_tr_b16 {ar(b,2)}, v{vTQ} offset:{32768+o}")
            a(f"ds_read_b64_tr_b16 {ar(b+2,2)}, v{vTQ} offset:{32768+o+toff}")
            a(f"ds_read_b64_tr_b16 {ar(b+4,2)}, v{vTV} offset:{o}")
            rg[s] = a(f"ds_read_b64_tr_b16 {ar(b+6,2)}, v{vTV} offset:{o+toff}")
        else:
            o = (s & 15) * 1024
            q_, v_ = (vTQ2, vTV2) if s >= 16 else (vTQ, vTV)
            a(f"ds_read_b128 {ar(b,4)}, v{q_} offset:{32768+o}")
            rg[s] = a(f"ds_read_b128 {ar(b+4,4)}, v{v_} offset:{o}")
    if L == 0:
        init_poison(T1 + 4)
        a(f"v_lshrrev_b32 v{vT0}, 2, v{vL}")
        a(f"s_lshl_b32 s{sT0}, s{sW}, 4")
        a(f"v_add_u32 v{vT0}, s{sT0}, v{vT0}")
        a(f"v_mul_u32_u24 v{vW}, 3072, v{vT0}")
        a(f"v_and_b32 v{vT0}, 3, v{vL}")
        a(f"v_lshl_add_u32 v{vW}, v{vT0}, 4, v{vW}")
        a(f"s_lshl_b32 s{sT0}, s{sHP}, 6")
        a(f"v_add_u32 v{vW}, s{sT0}, v{vW}")
        a(f"s_lshl_b32 s{sT0}, s{sRB}, 2")
        a(f"s_add_u32 s{sT0}, s{sT0}, s{sW}")
        a(f"s_lshl_b32 s{sT0}, s{sT0}, 15")
        a(f"v_lshrrev_b32 v{vT0}, 3, v{vL}")
        a(f"v_lshlrev_b32 v{vT0}, 10, v{vT0}")
        a(f"v_add_u32 v{vT0}, s{sT0}, v{vT0}")
        a(f"v_and_b32 v{vT1}, 7, v{vL}")
        a(f"v_lshrrev_b32 v{vT2}, 4, v{vL}")
        a(f"v_xor_b32 v{vT1}, v{vT1}, v{vT2}")
        a(f"v_lshl_add_u32 v{vXA}, v{vT1}, 4, v{vT0}")
        a(f"v_xor_b32 v{vXB}, 64, v{vXA}")
        a(f"v_add_u32 v{vXB}, {8192-1024}, v{vXB}")
        def x_issue(j):
            a(f"s_add_u32 s{sKB}, s{sROTX}, {j}")
            a(f"s_and_b32 s{sKB}, s{sKB}, 7")
            a(f"s_lshl_b32 s{sT1}, s{sKB}, 7")
            a(f"s_add_u32 m0, s{sWB}, {(j&3)*4096}")
            a(f"s_mul_i32 s{sSO}, s{sKB}, {64*3072}")
            a(f"buffer_load_dwordx4 v{vXA}, {sr(SX,4)}, s{sT1} offen lds")
            a(f"buffer_load_dwordx4 v{vXB}, {sr(SX,4)}, s{sT1} offen offset:1024 lds")
            a(f"s_add_u32 m0, s{sWB}, {(j&3)*4096+2048}")
            a(f"s_add_u32 s{sT1}, s{sT1}, 16384")
            a(f"buffer_load_dwordx4 v{vXA}, {sr(SX,4)}, s{sT1} offen lds")
            xid[j] = a(f"buffer_load_dwordx4 v{vXB}, {sr(SX,4)}, s{sT1} offen offset:1024 lds")
        def w_issue(j):
            for seg in (1, 2, 0):
                a(f"s_add_u32 m0, s{sW1K}, {seg*32768 - seg*1024 + j*4096}")
                wid[j] = a(f"buffer_load_dwordx4 v{vW}, {sr(SWQKV,4)}, s{sSO} offen offset:{seg*1024} lds")
        def slot_issue(j):
            x_issue(j); w_issue(j)
        LA = opt("LA0", 3)
        slot_issue(0)
        pass
        late_srds()
        addr_setup()
        a(f"v_add_u32 v{vCQ}, s{sW1K}, v{vTQ}")
        a(f"v_add_u32 v{vCV}, s{sW1K}, v{vTV}")
        for r in (S0, S1, Q0, Q1): a(f"v_mov_b32 v{r}, 0")
        a(f"v_and_b32 v{vT0}, 31, v{vL}")
        a(f"v_bfe_u32 v{vT1}, v{vL}, 1, 3")
        a(f"v_xor_b32 v{vT1}, v{vT1}, v{vHH}")
        a(f"v_lshlrev_b32 v{vT0}, 7, v{vT0}")
        a(f"v_add_u32 v{vT0}, s{sWB}, v{vT0}")
        for t in range(4):
            a(f"v_xor_b32 v{vT2}, {2*t}, v{vT1}")
            a(f"v_lshl_add_u32 v{XA+t}, v{vT2}, 4, v{vT0}")
        code_prefetch()
        for j in range(1, LA): slot_issue(j)
        init_misc(T1 + 4)
        pass
        initld = None
        cg = None
        def colsum(j):
            a.wait(lg=cg)
            for k, c in enumerate((CK, CV, CQ)):
                mfma(ar(c,16), ar(ONESF,4), ar(CG+4*k,4), "0" if j == 0 else ar(c,16))
        def xreads(j):
            a.wait(vm=xid[j])
            return [a(f"ds_read_b128 {vr(XF+16*j+4*t,4)}, v{XA+t} offset:{(j&3)*4096}") for t in range(4)]
        xr = xreads(0)
        for j in range(8):
            a.wait(vm=wid[j])
            a("s_barrier")
            if j == 0:
                stamp("p1_first")
                skip = a.newlabel("NOINIT")
                a(f"s_cmp_ge_u32 s{sB}, 32")
                a(f"s_cbranch_scc1 {skip}")
                a(f"s_cmp_lg_u32 s{sW}, 0")
                a(f"s_cbranch_scc1 {skip}")
                with cond():
                    a(f"v_mov_b32 v{vT0}, 1")
                    a(f"s_lshl_b32 s{sT0}, s{sB}, 2")
                    a(f"v_mov_b32 v{vT1}, s{sT0}")
                    set_exec(1)
                    a(f"buffer_store_dword v{vT0}, v{vT1}, {sr(SDBG,4)}, 0 offen offset:128 sc1")
                    set_exec(FULL)
                a.label(skip)
            RG(4 * j); RG(4 * j + 1); RG(4 * j + 2)
            if j > 0: colsum(j - 1)
            for t in range(4):
                a.wait(lg=xr[t])
                for k in range(4):
                    r = XF + 16 * j + 4 * t + k
                    a(f"v_dot2_f32_bf16 v{S0+(k&1)}, v{r}, s{sONES}, v{S0+(k&1)}")
                    a(f"v_dot2_f32_bf16 v{Q0+(k&1)}, v{r}, v{r}, v{Q0+(k&1)}")
            for s in range(4 * j, 4 * j + 4):
                t = s & 3
                a.wait(lg=rg[s])
                b = WFR + (s % NWF) * 8
                x = vr(XF + 4 * s, 4)
                mfma(vr(ACCK,16), x, ar(b,4), "0" if s == 0 else vr(ACCK,16))
                if t == 0: RG(s + 3)
                if t == 1:
                    o = j * 4096
                    a(f"ds_read_b64_tr_b16 {ar(CG,2)}, v{vCQ} offset:{32768+o}")
                    a(f"ds_read_b64_tr_b16 {ar(CG+2,2)}, v{vCQ} offset:{32768+o+toff}")
                    a(f"ds_read_b64_tr_b16 {ar(CG+4,2)}, v{vCV} offset:{o}")
                    a(f"ds_read_b64_tr_b16 {ar(CG+6,2)}, v{vCV} offset:{o+toff}")
                    a(f"ds_read_b64_tr_b16 {ar(CG+8,2)}, v{vCQ} offset:{o}")
                    cg = a(f"ds_read_b64_tr_b16 {ar(CG+10,2)}, v{vCQ} offset:{o+toff}")
                if t == 2 and j + LA < 8: w_issue(j + LA)
                if t == 3 and j < 7: xr = xreads(j + 1)
                mfma(vr(ACCV,16), x, ar(b+4,4), "0" if s == 0 else vr(ACCV,16))
                if t == 1 and j + LA < 8: x_issue(j + LA)
                if t == 2 and j == opt("J0", 8 - LA):
                    poison_tiles(T1 + 4, 0)
                    a(f"v_and_b32 v{vT2}, 31, v{vL}")
                    a(f"v_lshlrev_b32 v{vT2}, 2, v{vT2}")
                    initld = a(f"buffer_load_dword v{vT3}, v{vT2}, {sr(SDBG,4)}, 0 offen offset:128 sc1")
                    if opt("TO", 1): touch_wo("a254")
                    touches(0, 1)
        colsum(7)
        stamp("p1_gemm")
        CPY = T1
        a(f"s_lshr_b32 s{sT0}, s{sRB}, 1")
        a(f"s_sub_u32 s{sT0}, s{sT0}, s{sROTX}")
        a(f"s_and_b32 s{sT0}, s{sT0}, 7")
        a(f"s_lshl_b32 s{sT0}, s{sT0}, 12")
        a(f"s_and_b32 s{sT1}, s{sRB}, 1")
        a(f"s_lshl_b32 s{sT1}, s{sT1}, 11")
        a(f"s_add_u32 s{sT0}, s{sT0}, s{sT1}")
        a(f"s_min_u32 s{sT2}, s{sW}, 2")
        a(f"s_lshl_b32 s{sT2}, s{sT2}, 15")
        a(f"s_add_u32 s{sT0}, s{sT0}, s{sT2}")
        a(f"v_lshlrev_b32 v{vT1}, 8, v{vHH}")
        a(f"v_sub_u32 v{vT0}, v{vTQ}, v{vT1}")
        a(f"v_add_u32 v{vT0}, s{sT0}, v{vT0}")
        for k in range(4): a(f"ds_read_b64_tr_b16 {vr(CPY+2*k,2)}, v{vT0} offset:{512*k}")
        a(f"v_add_f32 v{S0}, v{S0}, v{S1}")
        a(f"v_add_f32 v{Q0}, v{Q0}, v{Q1}")
        a(f"v_mov_b32 v{S1}, v{S0}")
        a(f"v_mov_b32 v{Q1}, v{Q0}")
        a(f"v_add_u32 v{vT1}, s{sWB}, v{vL16}")
        a(f"v_permlane32_swap_b32 v{S0}, v{S1}")
        a(f"v_permlane32_swap_b32 v{Q0}, v{Q1}")
        CS4 = T1 + 8
        a(f"v_accvgpr_read_b32 v{CS4}, a{CK}")
        a(f"v_accvgpr_read_b32 v{CS4+1}, a{CV}")
        a(f"v_accvgpr_read_b32 v{CS4+2}, a{CQ}")
        a(f"ds_write_b128 v{vT1}, {vr(CS4,4)}")
        a(f"v_add_f32 v{S0}, v{S0}, v{S1}")
        a(f"v_add_f32 v{Q0}, v{Q0}, v{Q1}")
        a(f"v_add_u32 v{vT1}, {L_B}, v{vL16}")
        a.wait_lg_all()
        a("s_barrier")
        for w in range(4): cr = a(f"ds_read_b128 {vr(PK+4*(w&1) if w < 2 else CS4+4*(w&1),4)}, v{vT1} offset:{16384*w}")
        stats_to_frags(S0, Q0, RA)
        mfma(vr(RR,16), vr(RA,4), ar(ONESF,4), "0")
        a(f"s_mul_i32 s{sT3}, s{sHP}, 98304")
        a(f"s_add_u32 s{sT3}, s{sT3}, s{sT2}")
        a(f"s_lshl_b32 s{sT1}, s{sRB}, 11")
        a(f"s_add_u32 s{sT3}, s{sT3}, s{sT1}")
        a(f"s_add_u32 s{sT3}, s{sT3}, {WQT:#x}")
        a(f"buffer_store_dwordx4 {vr(CPY,4)}, v{vL16}, {sr(SWS,4)}, s{sT3} offen sc1")
        a(f"buffer_store_dwordx4 {vr(CPY+4,4)}, v{vL16}, {sr(SWS,4)}, s{sT3} offen offset:1024 sc1")
        a.wait(lg=cr)
        for j in (0, 2):
            pk("add", PK+j, vr(PK+j,2), vr(PK+4+j,2)); pk("add", CS4+j, vr(CS4+j,2), vr(CS4+4+j,2))
        for j in (0, 2): pk("add", PK+j, vr(PK+j,2), vr(CS4+j,2))
        split2(CKP, PK, vT0)
        split2(CVP, PK + 1, vT1)
        for c, p in ((CF, CKP), (CFV, CVP)):
            a(f"v_mov_b32 v{c}, v{p}"); a(f"v_mov_b32 v{c+1}, v{p}")
        mfma(vr(ACCK,16), vr(MA,4), vr(CF,4), vr(ACCK,16))
        mfma(vr(ACCV,16), vr(MA,4), vr(CFV,4), vr(ACCV,16))
        split2(CQP, PK + 2, vT0)
        pump.setup(1, L)
    else:
        addr_setup()
        for c, p in ((CF, CKP), (CFV, CVP)):
            a(f"v_mov_b32 v{c}, v{p}"); a(f"v_mov_b32 v{c+1}, v{p}")
        a(f"s_lshl_b32 s{sT0}, s{sRB}, 1")
        a(f"s_add_u32 s{sT0}, s{sT0}, s{sRH}")
        a(f"s_lshl_b32 s{sT1}, s{sT0}, 13")
        a(f"s_lshl_b32 s{sT2}, s{sKH}, 8")
        a(f"s_add_u32 s{sT1}, s{sT1}, s{sT2}")
        a(f"s_add_u32 s{sT1}, s{sT1}, {ST2:#x}")
        a(f"s_lshl_b32 s{sT4}, s{sRB}, 2")
        a(f"s_add_u32 s{sT4}, s{sT4}, s{sW}")
        a(f"s_lshl_b32 s{sT4}, s{sT4}, 15")
        a(f"s_add_u32 s{sT4}, s{sT4}, {X2:#x}")
        a(f"s_add_u32 s{sT4}, s{sT4}, s{sT5}")
        a(f"v_and_b32 v{vT0}, 31, v{vL}")
        a(f"v_lshlrev_b32 v{vT0}, 3, v{vT0}")
        a(f"v_lshl_add_u32 v{vXA}, v{vHH}, 12, v{vT0}")
        a(f"s_mul_i32 s{sKB}, s{sHP}, 98304")
        a(f"s_lshl_b32 s{sT2}, s{sW}, 13")
        a(f"s_add_u32 s{sKB}, s{sKB}, s{sT2}")
        a(f"s_add_u32 s{sKB}, s{sKB}, {WQT:#x}")
        SB = T1
        def issue():
            for p in range(8): a(f"buffer_load_dwordx2 {vr(SB+2*p,2)}, v{vXA}, {sr(SWS,4)}, s{sT1} offen offset:{p*512} sc1")
        def check():
            a(f"v_max3_u32 v{vT3}, v{SB+1}, v{SB+3}, v{SB+5}")
            a(f"v_max3_u32 v{vT3}, v{vT3}, v{SB+7}, v{SB+9}")
            a(f"v_max3_u32 v{vT3}, v{vT3}, v{SB+11}, v{SB+13}")
            a(f"v_max_u32 v{vT3}, v{vT3}, v{SB+15}")
            a(f"v_cmp_eq_u32 vcc, -1, v{vT3}")
        a(f"s_mov_b32 s{sT0}, s{sT4}")
        pump.setup(1, L)
        a(f"s_mov_b32 s{sT4}, s{sT0}")
        poll(issue, check, 0x40)
        stamp("p1_flag")
        def XL(s):
            xid[s] = a(f"buffer_load_dwordx4 {vr(XF+4*s,4)}, v{vL16}, {sr(SWS,4)}, s{sSO} offen offset:{(s&3)*1024} sc1")
            if s == 15: a(f"s_xor_b32 s{sSO}, s{sT4}, 16384")
            elif s & 3 == 3 and s < 31: a(f"s_add_u32 s{sSO}, s{sSO}, 4096")
        LA = opt("LA1", 10)
        vMX = vW
        a(f"s_mov_b32 s{sSO}, s{sT4}")
        for s in range(LA): XL(s)
        a("s_barrier")
        for n in (4, 2, 1):
            for p in range(n): pk("add", SB+2*p, vr(SB+2*p,2), vr(SB+2*(p+n),2))
        a(f"v_mov_b32 v{SB+2}, v{SB}")
        a(f"v_mov_b32 v{SB+3}, v{SB+1}")
        a(f"v_permlane32_swap_b32 v{SB}, v{SB+2}")
        a(f"v_permlane32_swap_b32 v{SB+1}, v{SB+3}")
        pk("add", SB, vr(SB,2), vr(SB+2,2))
        a(f"v_mov_b32 v{MA+2}, 0"); a(f"v_mov_b32 v{MA+3}, 0")
        stats_to_frags(SB, SB + 1, RA)
        mfma(vr(RR,16), vr(RA,4), ar(ONESF,4), "0")
        go = a.newlabel("XGO"); redo = a.newlabel("XREDO")
        a(f"s_branch {go}")
        a.label(redo)
        st_vm = (a.vm, a.vm_done)
        a(f"s_mov_b32 s{sSO}, s{sT4}")
        sv = dict(xid)
        for s in range(LA): XL(s)
        xid.update(sv); a.vm, a.vm_done = st_vm
        a.label(go)
        RG(0); RG(1); RG(2)
        a(f"v_mov_b32 v{vMX}, 0")
        a(f"s_mov_b32 s{sT3}, s{sKB}")
        mfma(vr(ACCK,16), vr(MA,4), vr(CF,4), "0")
        mfma(vr(ACCV,16), vr(MA,4), vr(CFV,4), "0")
        qid = None
        for s in range(32):
            a.wait(vm=xid[s], lg=rg[s])
            b = WFR + (s % NWF) * 8
            x = vr(XF + 4 * s, 4)
            mfma(vr(ACCK,16), x, ar(b,4), vr(ACCK,16))
            if s + LA < 32: XL(s + LA)
            elif s + LA - 32 < 8:
                j = s + LA - 32
                if j == 4: a(f"s_add_u32 s{sT3}, s{sT3}, 4096")
                if j & 3 == 0: a(f"s_add_u32 m0, s{sT2}, {j*1024}")
                qid = a(f"buffer_load_dwordx4 v{vL16}, {sr(SWS,4)}, s{sT3} offen offset:{(j&3)*1024} lds")
            if s & 1: a(f"v_max3_u32 v{vMX}, v{vMX}, v{XF+4*s-4}, v{XF+4*s}")
            if s + 3 < 32: RG(s + 3)
            mfma(vr(ACCV,16), x, ar(b+4,4), vr(ACCV,16))
        verify(vMX, redo)
        stamp("p1_gemm")
        a("s_barrier")

    for q in range(8): pk("fma", ACCK+2*q, vr(ACCK+2*q,2), vr(RR+2*q,2), sr(sEPS6,2), hi=[1,1,0])
    for q in range(8): pk("mul", T1+2*q, vr(ACCK+2*q,2), sr(sL2E,2), hi=[1,0])
    for i in range(16):
        a(f"v_exp_f32_e64 v{T1+i}, v{T1+i} clamp")
        a(f"v_max_f32 v{ACCK+i}, s{sEPS6}, v{ACCK+i}")
    for q in range(8): pk("mul", ACCV+2*q, vr(ACCV+2*q,2), vr(RR+2*q,2))
    for q in range(8): pk("add", ACCK+2*q, vr(ACCK+2*q,2), vr(T1+2*q,2))
    for q in range(8):
        a(f"v_cvt_pk_bf16_f32 v{PK+q}, v{ACCK+2*q}, v{ACCK+2*q+1}")
        a(f"v_cvt_pk_bf16_f32 v{VV+q}, v{ACCV+2*q}, v{ACCV+2*q+1}")
    KVA, ZA = RR, T1
    mfma(vr(KVA,16), vr(PK,4), vr(VV,4), "0")
    mfma(vr(KVA,16), vr(PK+4,4), vr(VV+4,4), vr(KVA,16))
    a(f"v_bfe_u32 v{vT0}, v{vL}, 4, 1")
    a(f"v_cmp_ne_u32 vcc, 0, v{vT0}")
    a(f"v_lshl_add_u32 v{vT0}, v{vT0}, 1, v{vHH}")
    a(f"v_mul_u32_u24 v{vT0}, 17, v{vT0}")
    mfma(vr(ZA,16), vr(PK,4), ar(ONESF,4), "0")
    a(f"v_and_b32 v{vT1}, 15, v{vL}")
    a(f"v_add_u32 v{vT0}, v{vT0}, v{vT1}")
    a(f"v_lshlrev_b32 v{vT0}, 5, v{vT0}")
    a(f"v_add_u32 v{vT0}, s{sWA}, v{vT0}")
    mfma(vr(ZA,16), vr(PK+4,4), ar(ONESF,4), vr(ZA,16))
    a(f"s_mul_i32 s{sT0}, s{sW}, 544")
    a(f"s_lshl_b32 s{sT1}, s{sHP}, 4")
    a(f"s_add_u32 s{sT1}, s{sT1}, s{sRB}")
    a(f"s_lshl_b32 s{sT1}, s{sT1}, 2")
    a(f"s_add_u32 s{sT1}, s{sT1}, s{sW}")
    a(f"s_mul_i32 s{sT1}, s{sT1}, 640")
    a(f"s_add_u32 s{sT1}, s{sT1}, {KVP[L]:#x}")
    a(f"s_add_u32 s{sT0}, s{sT0}, {L_A + SCR}")
    a(f"v_add_u32 v{vXA}, s{sT0}, v{vL16}")
    for j in range(8): a(f"v_cndmask_b32 v{ACCK+j}, v{KVA+j}, v{KVA+8+j}, vcc")
    a(f"ds_write_b128 v{vT0}, {vr(ACCK,4)} offset:{SCR}")
    a(f"ds_write_b128 v{vT0}, {vr(ACCK+4,4)} offset:{SCR+16}")
    for j in range(8): a(f"v_cndmask_b32 v{ACCK+8+j}, v{ZA+j}, v{ZA+8+j}, vcc")
    set_exec(0x0001000100010001)
    a(f"ds_write_b128 v{vT0}, {vr(ACCK+8,4)} offset:{SCR+512}")
    a(f"ds_write_b128 v{vT0}, {vr(ACCK+12,4)} offset:{SCR+528}")
    set_exec(FULL)
    if L == 0:
        def issue(): a(f"buffer_load_dword v{vT3}, v{vT2}, {sr(SDBG,4)}, 0 offen offset:128 sc1")
        def check(): a(f"v_cmp_ne_u32 vcc, 1, v{vT3}")
        poll(issue, check, 0x10, pre=initld)
    NQ = 8; QLA = 6
    rq = {}
    def RQ(s):
        b = WFR + (s % NQ) * 4
        if L == 0:
            a(f"ds_read_b64_tr_b16 {ar(b,2)}, v{vTQ} offset:{s*1024}")
            rq[s] = a(f"ds_read_b64_tr_b16 {ar(b+2,2)}, v{vTQ} offset:{s*1024+toff}")
        else:
            rq[s] = a(f"ds_read_b128 {ar(b,4)}, v{vTQ2 if s >= 16 else vTQ} offset:{(s&15)*1024}")
    if L == 1: a.wait(vm=qid)
    a.wait_lg_all()
    a("s_barrier")
    for w in range(4): kr = a(f"ds_read_b128 {vr(RR+4*w,4)}, v{vXA} offset:{16384*w}")
    for s in range(QLA): RQ(s)
    a(f"v_mov_b32 v{CFQ}, v{CQP}"); a(f"v_mov_b32 v{CFQ+1}, v{CQP}")
    a.wait(lg=kr)
    pk("add", RR, vr(RR,2), vr(RR+4,2)); pk("add", RR+2, vr(RR+2,2), vr(RR+6,2))
    pk("add", RR+8, vr(RR+8,2), vr(RR+12,2)); pk("add", RR+10, vr(RR+10,2), vr(RR+14,2))
    pk("add", RR, vr(RR,2), vr(RR+8,2)); pk("add", RR+2, vr(RR+2,2), vr(RR+10,2))
    set_exec((1 << 40) - 1)
    a(f"buffer_store_dwordx4 {vr(RR,4)}, v{vL16}, {sr(SWS,4)}, s{sT1} offen sc1")
    set_exec(FULL)
    stamp("p1_kvpub")
    touches(L, 2)
    pump.fill(pump.c + optL("F0", L, 0, 5))
    ACCQ = ACCK
    mfma(vr(ACCQ,16), vr(CFQ,4), vr(MA,4), "0")
    if L == 0:
        a(f"s_lshl_b32 s{sT4}, s{sDT}, 7")
        dma_voff(vXA, vW, 1024, sT4)
        a(f"s_lshl_b32 s{sSO}, s{sW}, 17")
    sal = [f"s_lshl_b32 s{sT0}, s{sRB}, 2", f"s_add_u32 s{sT0}, s{sT0}, s{sW}", f"s_lshl_b32 s{sT0}, s{sT0}, 4",
           f"s_add_u32 s{sT0}, s{sT0}, s{sHP}", f"s_lshl_b32 s{sT0}, s{sT0}, 11", f"s_add_u32 s{sT1}, s{sT0}, {PQ[L]:#x}",
           f"s_lshl_b32 s{sT0}, s{sRB}, 4", f"s_add_u32 s{sT0}, s{sT0}, s{sHP}", f"s_lshl_b32 s{sT0}, s{sT0}, 7",
           f"s_add_u32 s{sT0}, s{sT0}, {FL_PQ}"]
    if L == 1: sal = sal[:6]
    for s in range(32):
        a.wait(lg=rq[s])
        b = WFR + (s % NQ) * 4
        mfma(vr(ACCQ,16), ar(b,4), vr(XF+4*s,4), vr(ACCQ,16))
        if s + QLA < 32: RQ(s + QLA)
        if L == 0 and s % 4 == 0 and s // 4 < opt("WOQ", 8):
            j = s // 4
            a(f"s_add_u32 m0, s{sWB}, {j*2048}")
            a(f"buffer_load_dwordx4 v{vXA}, {sr(SWO,4)}, s{sSO} offen lds")
            a(f"buffer_load_dwordx4 v{vW}, {sr(SWO,4)}, s{sSO} offen offset:1024 lds")
            a(f"s_add_u32 s{sSO}, s{sSO}, 16384")
        if s % 2 == 1 and sal and s >= 8: a(sal.pop(0))
        if s == opt("A1S", 22):
            a1_early(L); vm_a1 = a.vm
        if opt("QP", 0) and s >= opt("QP0", 8) and (s - opt("QP0", 8)) % opt("QPD", 4) == 0 and pump.c < opt("QP", 0):
            pump.run(pump.c + 1)
    for x in sal: a(x)
    if opt("A1FIRST", 0): a1(L, a.vm - vm_a1)
    for h in range(2):
        for q in range(4*h, 4*h+4): pk("fma", ACCQ+2*q, vr(ACCQ+2*q,2), vr(vRS,2), sr(sEPS6,2), hi=[1,0,0])
        for q in range(4*h, 4*h+4): pk("mul", T1+2*q, vr(ACCQ+2*q,2), sr(sL2E,2), hi=[1,0])
        for i in range(8*h, 8*h+8):
            a(f"v_exp_f32_e64 v{T1+i}, v{T1+i} clamp")
            a(f"v_max_f32 v{ACCQ+i}, s{sEPS6}, v{ACCQ+i}")
        for q in range(4*h, 4*h+4): pk("add", ACCQ+2*q, vr(ACCQ+2*q,2), vr(T1+2*q,2))
        for q in range(4*h, 4*h+4): a(f"v_cvt_pk_bf16_f32 v{PK+q}, v{ACCQ+2*q}, v{ACCQ+2*q+1}")
        sid = a(f"buffer_store_dwordx4 {vr(PK+4*h,4)}, v{vL16}, {sr(SWS,4)}, s{sT1} offen offset:{1024*h} sc1")
    stamp("p1_q")
    if L == 0:
        for j in range(opt("WOQ", 8), 8):
            a(f"s_add_u32 m0, s{sWB}, {j*2048}")
            a(f"buffer_load_dwordx4 v{vXA}, {sr(SWO,4)}, s{sSO} offen lds")
            wo_last = a(f"buffer_load_dwordx4 v{vW}, {sr(SWO,4)}, s{sSO} offen offset:1024 lds")
            a(f"s_add_u32 s{sSO}, s{sSO}, 16384")
    if not opt("A1FIRST", 0): a1(L, a.vm - vm_a1)
    pump.fill(pump.c + optL("F1", L, 6, 5))
    touches(L, 3)
    if L == 0: publish_flag(sid)
    stamp(f"p1_{L}")

A1B = 128
def a1_issue():
    a(f"s_mov_b32 s{sSO}, s{sKB}")
    for p in range(16):
        a(f"buffer_load_dwordx4 {vr(A1B+4*p,4)}, v{vL16}, {sr(SWS,4)}, s{sSO} offen offset:{(p&1)*2560} sc1")
        if p & 1 and p < 15: a(f"s_add_u32 s{sSO}, s{sSO}, {2*2560}")
def a1_early(L):
    skip = a.newlabel("NOA1E")
    a(f"s_cmp_ge_u32 s{sRED}, 64")
    a(f"s_cbranch_scc1 {skip}")
    with cond():
        a(f"s_lshr_b32 s{sKB}, s{sRED}, 2")
        a(f"s_mul_i32 s{sKB}, s{sKB}, {16*2560}")
        a(f"s_and_b32 s{sT2}, s{sRED}, 3")
        a(f"s_mul_i32 s{sT2}, s{sT2}, 640")
        a(f"s_add_u32 s{sKB}, s{sKB}, s{sT2}")
        a(f"s_add_u32 s{sKB}, s{sKB}, {KVP[L]:#x}")
        a(f"s_mov_b32 s{sT3}, s{sSO}")
        set_exec((1 << 34) - 1)
        a1_issue()
        set_exec(FULL)
        a(f"s_mov_b32 s{sSO}, s{sT3}")
    a.label(skip)
def a1(L, younger):
    a.c("======== A1 reducer")
    skip = a.newlabel("NOA1")
    a(f"s_cmp_ge_u32 s{sRED}, 64")
    a(f"s_cbranch_scc1 {skip}")
    with cond():
        B = A1B
        a(f"s_mul_i32 s{sT2}, s{sRED}, 384")
        a(f"s_add_u32 s{sT2}, s{sT2}, {KVF[L]:#x}")
        a(f"v_lshlrev_b32 v{vT2}, 3, v{vL}")
        set_exec((1 << 34) - 1)
        def check():
            a(f"v_max3_u32 v{vT3}, v{B}, v{B+4}, v{B+8}")
            for p in range(3, 15, 2): a(f"v_max3_u32 v{vT3}, v{vT3}, v{B+4*p}, v{B+4*p+4}")
            a(f"v_max_u32 v{vT3}, v{vT3}, v{B+60}")
            a(f"v_cmp_eq_u32 vcc, -1, v{vT3}")
        a.vm_done = min(a.vm_done, a.vm - younger - 1)
        poll(a1_issue, check, 0x20, pre=a.vm - younger - 1)
        n = 16
        while n > 1:
            n //= 2
            for p in range(n):
                for j in (0, 2): pk("add", B+4*p+j, vr(B+4*p+j,2), vr(B+4*(p+n)+j,2))
        a(f"v_cvt_pk_bf16_f32 v{B+4}, v{B}, v{B+1}")
        a(f"v_cvt_pk_bf16_f32 v{B+5}, v{B+2}, v{B+3}")
        a(f"v_mov_b32_dpp v{B+6}, v{B+4} quad_perm:[1,1,3,3] row_mask:0xf bank_mask:0xf")
        a(f"v_mov_b32_dpp v{B+7}, v{B+5} quad_perm:[1,1,3,3] row_mask:0xf bank_mask:0xf")
        set_exec(0x555555555555)
        a(f"buffer_store_dwordx4 {vr(B+4,4)}, v{vT2}, {sr(SWS,4)}, s{sT2} offen sc1")
        set_exec(FULL)
    a.label(skip)
    stamp("a1")

def row_stats_publish(soff, SM):
    a(f"v_dot2_f32_bf16 v{SM}, v{XR}, s{sONES}, 0")
    a(f"v_dot2_f32_bf16 v{SM+1}, v{XR}, v{XR}, 0")
    a(f"v_dot2_f32_bf16 v{SM+2}, v{XR+1}, s{sONES}, 0")
    a(f"v_dot2_f32_bf16 v{SM+3}, v{XR+1}, v{XR+1}, 0")
    for j in range(2, 8):
        o = 2 * (j & 1)
        a(f"v_dot2_f32_bf16 v{SM+o}, v{XR+j}, s{sONES}, v{SM+o}")
        a(f"v_dot2_f32_bf16 v{SM+o+1}, v{XR+j}, v{XR+j}, v{SM+o+1}")
    a(f"v_lshlrev_b32 v{vT0}, 3, v{vL}")
    pk("add", SM, vr(SM,2), vr(SM+2,2))
    a(f"v_mov_b32 v{SM+2}, v{SM}")
    a(f"v_mov_b32 v{SM+3}, v{SM+1}")
    a(f"v_permlane32_swap_b32 v{SM}, v{SM+2}")
    a(f"v_permlane32_swap_b32 v{SM+1}, v{SM+3}")
    pk("add", SM, vr(SM,2), vr(SM+2,2))
    a(f"v_and_b32 v{SM+1}, 0x7fffffff, v{SM+1}")
    set_exec((1 << 32) - 1)
    i = a(f"buffer_store_dwordx2 {vr(SM,2)}, v{vT0}, {sr(SWS,4)}, s{soff} offen sc1")
    set_exec(FULL)
    return i

def stat_slot(dst, base):
    a(f"s_lshl_b32 s{dst}, s{sST}, 3")
    a(f"s_add_u32 s{dst}, s{dst}, s{sDT}")
    a(f"s_lshl_b32 s{dst}, s{dst}, 1")
    a(f"s_add_u32 s{dst}, s{dst}, s{sKH}")
    a(f"s_lshl_b32 s{dst}, s{dst}, 1")
    a(f"s_add_u32 s{dst}, s{dst}, s{sRH}")
    a(f"s_lshl_b32 s{dst}, s{dst}, 8")
    a(f"s_add_u32 s{dst}, s{dst}, {base:#x}")

def unpack_xr(XU):
    for j in range(8):
        a(f"v_lshlrev_b32 v{XU+2*j}, 16, v{XR+j}")
        a(f"v_and_b32 v{XU+2*j+1}, 0xffff0000, v{XR+j}")

def p2(L):
    a.c(f"======== P2 layer {L}")
    KF, QF = 128, 192
    ACC = 32; CR = 64; OF = 96; WF = 104; XU = 64
    a(f"s_lshl_b32 s{sT3}, s{sST}, 1")
    a(f"s_add_u32 s{sT3}, s{sT3}, s{sRH}")
    a(f"s_lshl_b32 s{sT3}, s{sT3}, 1")
    a(f"s_add_u32 s{sT3}, s{sT3}, s{sKH}")
    a(f"s_lshl_b32 s{sT3}, s{sT3}, 14")
    a(f"s_add_u32 s{sT3}, s{sT3}, {PQ[L]:#x}")
    tr_base(vTA, vTB, sKH, L_B)
    a(f"s_lshl_b32 s{sT2}, s{sKH}, 15")
    a(f"v_add_u32 v{vTA}, s{sT2}, v{vTA}")
    a(f"v_add_u32 v{vTB}, s{sT2}, v{vTB}")
    if L == 0:
        for q in range(2):
            a(f"v_permlane32_swap_b32 v{XR+4*q}, v{XR+4*q+2}")
            a(f"v_permlane32_swap_b32 v{XR+4*q+1}, v{XR+4*q+3}")
        a(f"v_lshlrev_b32 v{vB2}, 16, v{vB2}")
    vK, vKC, vMX = MA, MA + 1, MA + 2
    a(f"s_mul_i32 s{sT1}, s{sKH}, {16*768}")
    a(f"s_add_u32 s{sT1}, s{sT1}, {KVF[L]:#x}")
    a(f"v_and_b32 v{vT0}, 31, v{vL}")
    a(f"v_mul_u32_u24 v{vKC}, 384, v{vT0}")
    a(f"v_min_u32 v{vT0}, 16, v{vT0}")
    a(f"v_lshlrev_b32 v{vT0}, 4, v{vT0}")
    a(f"v_mul_u32_u24 v{vT1}, 384, v{vHH}")
    a(f"v_add_u32 v{vK}, v{vT0}, v{vT1}")
    a(f"v_and_b32 v{vT2}, 7, v{vL}")
    if L == 0:
        a(f"s_lshr_b32 s{sT0}, s{sST}, 1")
        a(f"s_lshl_b32 s{sT0}, s{sT0}, 1")
        a(f"s_add_u32 s{sT0}, s{sT0}, s{sKH}")
        a(f"s_lshl_b32 s{sT0}, s{sT0}, 10")
        a(f"s_add_u32 s{sT0}, s{sT0}, {FL_PQ}")
        a(f"v_lshlrev_b32 v{vT2}, 7, v{vT2}")
    else:
        a(f"s_add_u32 s{sT0}, s{sT3}, 2044")
        a(f"v_lshlrev_b32 v{vT2}, 11, v{vT2}")
    pump.run(min(R1 + 5, optL("B1", L, 6, 21)), refill=bool(optL("B1R", L, 1, 0)))
    stamp("beta")
    def issue(): a(f"buffer_load_dword v{vT3}, v{vT2}, {sr(SWS,4)}, s{sT0} offen sc1")
    def check(): a(f"v_cmp_eq_u32 vcc, -1, v{vT3}")
    poll(issue, check, 0x36 + L)
    stamp("p2_pqc")
    def ldq():
        a(f"s_mov_b32 s{sT4}, s{sT3}")
        for j in range(16):
            a(f"buffer_load_dwordx4 {vr(QF+4*j,4)}, v{vL16}, {sr(SWS,4)}, s{sT4} offen offset:{(j&3)*1024} sc1")
            if j & 3 == 3 and j < 15: a(f"s_add_u32 s{sT4}, s{sT4}, 4096")
    ldq()
    pump.run(min(R1 + 5, pump.i), refill=False)
    pump.fill(pump.c + optL("FK", L, 0, 0))
    a.wait_lg_all()
    a("s_barrier")
    rw = {}
    def RW(j):
        b = WF + (j % 3) * 8
        a(f"ds_read_b64_tr_b16 {vr(b,2)}, v{vTA} offset:{j*2048}")
        a(f"ds_read_b64_tr_b16 {vr(b+2,2)}, v{vTA} offset:{j*2048+1024}")
        a(f"ds_read_b64_tr_b16 {vr(b+4,2)}, v{vTB} offset:{j*2048}")
        rw[j] = a(f"ds_read_b64_tr_b16 {vr(b+6,2)}, v{vTB} offset:{j*2048+1024}")
    def issue(): a(f"buffer_load_dword v{vT3}, v{vKC}, {sr(SWS,4)}, s{sT1} offen offset:256 sc1")
    poll(issue, check, 0x38 + L)
    stamp("p2_kvc")
    redo = a.newlabel("P2REDO"); go = a.newlabel("P2GO")
    a(f"s_branch {go}")
    a.label(redo)
    with cond():
        ldq()
        a("s_waitcnt vmcnt(0)")
    a.label(go)
    lid = {}
    def LD(j):
        if j == 0: a(f"s_mov_b32 s{sSO}, s{sT1}")
        elif j & 3 == 0: a(f"s_add_u32 s{sSO}, s{sSO}, {4*768}")
        lid[j] = a(f"buffer_load_dwordx4 {vr(KF+4*j,4)}, v{vK}, {sr(SWS,4)}, s{sSO} offen offset:{(j&3)*768} sc1")
    PLA = opt("PLA", 10)
    for j in range(PLA): LD(j)
    RW(0); RW(1)
    unpack_xr(ACC)
    a(f"v_mov_b32 v{vMX}, 0")
    def M1(j):
        a.wait(vm=lid[j])
        mfma(vr(CR+(j&1)*16,16), vr(KF+4*j,4), vr(QF+4*j,4), "0")
        a(f"v_max3_u32 v{vMX}, v{vMX}, v{KF+4*j}, v{QF+4*j}")
        if j + PLA < 16: LD(j + PLA)
    def Va(j):
        c = CR + (j & 1) * 16
        a(f"v_add_f32 v{c+8}, s{sEPS6}, v{c+8}")
        a(f"v_rcp_f32 v{c+8}, v{c+8}")
    def Vb(j):
        c = CR + (j & 1) * 16; o = OF + (j & 1) * 4
        for i in range(4): a(f"v_mul_f32 v{c+i}, v{c+i}, v{c+8}")
        for i in range(2): a(f"v_cvt_pk_bf16_f32 v{o+i}, v{c+2*i}, v{c+2*i+1}")
    def Vc(j):
        c = CR + (j & 1) * 16; o = OF + (j & 1) * 4
        for i in range(4, 8): a(f"v_mul_f32 v{c+i}, v{c+i}, v{c+8}")
        for i in range(2, 4): a(f"v_cvt_pk_bf16_f32 v{o+i}, v{c+2*i}, v{c+2*i+1}")
    M1(0); M1(1)
    Va(0); Vb(0); Vc(0); M1(2)
    for j in range(16):
        o = OF + (j & 1) * 4; b = WF + (j % 3) * 8
        if j + 1 < 16: Va(j + 1)
        a.wait(lg=rw[j])
        mfma(vr(ACC,16), vr(b,4), vr(o,4), vr(ACC,16))
        if j + 1 < 16: Vb(j + 1)
        mfma(vr(ACC+16,16), vr(b+4,4), vr(o,4), "0" if j == 0 else vr(ACC+16,16))
        if j + 1 < 16: Vc(j + 1)
        if j + 3 < 16: M1(j + 3)
        if j + 2 < 16: RW(j + 2)
    verify(vMX, redo)
    stamp("p2_main")
    touches(L, 4)
    pump.fill(pump.c + optL("FP2", L, 6, 6))
    a(f"s_xor_b32 s{sT0}, s{sW}, 1")
    a(f"s_lshl_b32 s{sT0}, s{sT0}, 12")
    a(f"v_add_u32 v{vT0}, s{sT0}, v{vL16}")
    a(f"s_lshl_b32 s{sT0}, s{sW}, 12")
    a(f"v_add_u32 v{vT1}, s{sT0}, v{vL16}")
    stat_slot(sT1, ST[L])
    for q in range(4): a(f"ds_write_b128 v{vT0}, {vr(ACC+16+4*q,4)} offset:{q*1024}")
    a.wait_lg_all()
    a("s_barrier")
    ids = [a(f"ds_read_b128 {vr(ACC+16+4*q,4)}, v{vT1} offset:{q*1024}") for q in range(4)]
    for q in range(4):
        a.wait(lg=ids[q])
        pk("add", ACC+4*q, vr(ACC+4*q,2), vr(ACC+16+4*q,2))
        pk("add", ACC+4*q+2, vr(ACC+4*q+2,2), vr(ACC+16+4*q+2,2))
        a(f"v_cvt_pk_bf16_f32 v{XR+2*q}, v{ACC+4*q}, v{ACC+4*q+1}")
        a(f"v_cvt_pk_bf16_f32 v{XR+2*q+1}, v{ACC+4*q+2}, v{ACC+4*q+3}")
    row_stats_publish(sT1, OF)
    stamp("p2_stpub")
    unpack_xr(XU)
    IDF = 104
    a(f"v_and_b32 v{vT0}, 31, v{vL}")
    a(f"v_lshlrev_b32 v{vT1}, 2, v{vHH}")
    a(f"v_sub_u32 v{vT0}, v{vT0}, v{vT1}")
    a(f"v_mov_b32 v{vT3}, 0x3f80")
    for f in range(2):
        for c in range(4):
            base = 16 * f + ((2 * c) & 3) + 8 * (c >> 1)
            a(f"v_subrev_u32 v{vT1}, {base}, v{vT0}")
            a(f"v_cmp_gt_u32 vcc, 2, v{vT1}")
            a(f"v_lshlrev_b32 v{vT1}, 4, v{vT1}")
            a(f"v_lshlrev_b32 v{vT2}, v{vT1}, v{vT3}")
            a(f"v_cndmask_b32 v{IDF+4*f+c}, 0, v{vT2}, vcc")
    pump.run(pump.i, refill=False)
    pump.run(optL("G1", L, 0, 0), refill=False)
    pump.fill(pump.c + optL("GF", L, 3, 0))
    SB = 128
    a(f"v_and_b32 v{vT0}, 31, v{vL}")
    a(f"v_lshlrev_b32 v{vT0}, 3, v{vT0}")
    a(f"v_lshl_add_u32 v{vT2}, v{vHH}, 12, v{vT0}")
    a(f"s_lshl_b32 s{sT1}, s{sST}, 13")
    a(f"s_lshl_b32 s{sT2}, s{sRH}, 8")
    a(f"s_add_u32 s{sT1}, s{sT1}, s{sT2}")
    a(f"s_add_u32 s{sT1}, s{sT1}, {ST[L]:#x}")
    ht_addr(sT3, L)
    a(f"v_mov_b32 v{SB+16}, {fl(1.0+1e-5)}")
    pass
    def issue():
        for p in range(8): a(f"buffer_load_dwordx2 {vr(SB+2*p,2)}, v{vT2}, {sr(SWS,4)}, s{sT1} offen offset:{p*512} sc1")
    def check():
        a(f"v_max3_u32 v{vT3}, v{SB+1}, v{SB+3}, v{SB+5}")
        a(f"v_max3_u32 v{vT3}, v{vT3}, v{SB+7}, v{SB+9}")
        a(f"v_max3_u32 v{vT3}, v{vT3}, v{SB+11}, v{SB+13}")
        a(f"v_max_u32 v{vT3}, v{vT3}, v{SB+15}")
        a(f"v_cmp_eq_u32 vcc, -1, v{vT3}")
    poll(issue, check, 0x34 + L)
    stamp("p2_stats")
    pump.run(pump.i, refill=False)
    pump.fill(pump.c + optL("SF", L, 6, 5))
    for n in (4, 2, 1):
        for p in range(n): pk("add", SB+2*p, vr(SB+2*p,2), vr(SB+2*(p+n),2))
    a(f"v_mov_b32 v{SB+2}, v{SB}")
    a(f"v_mov_b32 v{SB+3}, v{SB+1}")
    a(f"v_permlane32_swap_b32 v{SB}, v{SB+2}")
    a(f"v_permlane32_swap_b32 v{SB+1}, v{SB+3}")
    pk("add", SB, vr(SB,2), vr(SB+2,2))
    a(f"v_mul_f32 v{SB}, {fl(-1/512)}, v{SB}")
    a(f"v_mul_f32 v{SB+1}, {fl(1/512)}, v{SB+1}")
    a(f"v_fma_f32 v{SB+1}, -v{SB}, v{SB}, v{SB+1}")
    a(f"v_max_f32 v{SB+1}, 0, v{SB+1}")
    a(f"v_fmaak_f32 v{SB+1}, v{SB+1}, v{SB+16}, {fl(1e-10)}")
    a(f"v_rsq_f32 v{SB+2}, v{SB+1}")
    a(f"v_mul_f32 v{SB}, v{SB}, v{SB+2}")
    HP_ = 112
    for f in range(2):
        for j in range(4*f, 4*f+4):
            pk("fma", XU+2*j, vr(XU+2*j,2), vr(SB+2,2), vr(SB,2), hi=[1,0,0])
        for j in range(4*f, 4*f+4):
            a(f"v_cvt_pk_bf16_f32 v{HP_+j}, v{XU+2*j}, v{XU+2*j+1}")
        mfma(vr(ACC,16), vr(HP_+4*f,4), vr(IDF+4*f,4), "0" if f == 0 else vr(ACC,16))
    for f in range(2):
        for j in range(4): a(f"v_cvt_pk_bf16_f32 v{ACC+16+4*f+j}, v{ACC+8*f+2*j}, v{ACC+8*f+2*j+1}")
        sid = a(f"buffer_store_dwordx4 {vr(ACC+16+4*f,4)}, v{vL16}, {sr(SWS,4)}, s{sT3} offen offset:{2048*f} sc1")
    touches(L, 5)
    stamp(f"p2_{L}")

ACC = 32; RING = 96; AUX = 144
NT = ' nt' if opt('NT', 0) else ''
def stream(kind, nks, srot, code, tail=None):
    NR = opt("NR", 6)
    vA, vB, vMX, vC = vTA, vTB, MA, MA + 1
    a(f"s_lshl_b32 s{sT0}, s{sKH}, 10")
    a(f"v_add_u32 v{vA}, s{sT0}, v{vL16}")
    a(f"v_xor_b32 v{vB}, 1024, v{vA}")
    a(f"v_add_u32 v{vA}, s{sT1}, v{vA}")
    a(f"v_add_u32 v{vB}, s{sT1}, v{vB}")
    a(f"v_min_u32 v{vT0}, {nks-1}, v{vL}")
    a(f"v_lshrrev_b32 v{vT1}, 1, v{vT0}")
    a(f"v_and_b32 v{vT0}, 1, v{vT0}")
    a(f"v_lshlrev_b32 v{vT0}, 10, v{vT0}")
    a(f"v_lshl_add_u32 v{vC}, v{vT1}, 12, v{vT0}")
    a(f"v_add_u32 v{vC}, s{sT1}, v{vC}")
    ids = {}
    def LDa(s):
        b = RING + (s % NR) * 8
        if s & 1 == 0 and s > 0:
            a(f"s_add_u32 s{sSO}, s{sSO}, 4096")
            if opt("ROTW", 1):
                a(f"s_cmp_eq_u32 s{sSO}, {nks*2048}")
                a(f"s_cselect_b32 s{sSO}, 0, s{sSO}")
        a(f"buffer_load_dwordx4 {vr(b,4)}, v{vA}, {sr(SWS,4)}, s{sSO} offen offset:{(s&1)*2048} sc1{NT}")
    def LDb(s):
        b = RING + (s % NR) * 8
        ids[s] = a(f"buffer_load_dwordx4 {vr(b+4,4)}, v{vB}, {sr(SWS,4)}, s{sSO} offen offset:{(s&1)*2048} sc1{NT}")
    def run(after_poll=None):
        redo = a.newlabel("SREDO")
        def issue(): a(f"buffer_load_dword v{vT3}, v{vC}, {sr(SWS,4)}, 0 offen offset:{2048+1020} sc1")
        def check(): a(f"v_cmp_eq_u32 vcc, -1, v{vT3}")
        poll(issue, check, code)
        stamp("canary")
        if after_poll: after_poll()
        a(f"s_mov_b32 s{sKB}, s{sWOFF}")
        a.label(redo)
        a(f"s_mov_b32 s{sWOFF}, s{sKB}")
        a(f"s_lshl_b32 s{sSO}, s{srot}, 11")
        LK = NR - 1 if opt("SINT", 1) else NR
        for s in range(LK): LDa(s); LDb(s)
        a(f"v_mov_b32 v{vMX}, 0")
        for s in range(nks):
            a.wait(vm=ids[s])
            b = RING + (s % NR) * 8
            for acc in range(4):
                wf = wreg(kind, s, 4 * (acc >> 1), 4); af = vr(b + 4 * (acc & 1), 4)
                c = "0" if s == 0 else vr(ACC + 16 * acc, 16)
                A_, B_ = (wf, af) if kind == 1 else (af, wf)
                mfma(vr(ACC+16*acc,16), A_, B_, c)
                if opt("SINT", 1):
                    if acc == 0 and s + LK < nks: LDa(s + LK)
                    if acc == opt("SINTB", 1) and s + LK < nks: LDb(s + LK)
                    if acc == 2: a(f"v_max3_u32 v{vMX}, v{vMX}, v{b}, v{b+4}")
                    if tail and s + LK >= nks and acc < 3: tail(s + LK - nks, acc)
                elif acc == 0: a(f"v_max3_u32 v{vMX}, v{vMX}, v{b}, v{b+4}")
            if not opt("SINT", 1) and s + LK < nks: LDa(s + LK); LDb(s + LK)
        verify(vMX, redo)
    return run

def reduce4():
    for acc in (1, 2):
        a(f"s_xor_b32 s{sT0}, s{sW}, {acc}")
        a(f"s_lshl_b32 s{sT0}, s{sT0}, 13")
        a(f"v_add_u32 v{vT0+acc-1}, s{sT0}, v{vL16}")
    a(f"s_xor_b32 s{sT0}, s{sW}, 3")
    a(f"s_lshl_b32 s{sT0}, s{sT0}, 14")
    a(f"v_add_u32 v{vT2}, s{sT0}, v{vL16}")
    for acc in (1, 2, 3):
        o = (0, 4096, L_A + SCR)[acc - 1]
        for q in range(4): a(f"ds_write_b128 v{vT0+acc-1}, {vr(ACC+16*acc+4*q,4)} offset:{o+q*1024}")
    a(f"s_lshl_b32 s{sT0}, s{sW}, 13")
    a(f"v_add_u32 v{vT3}, s{sT0}, v{vL16}")
    a(f"v_add_u32 v{vT2}, s{sWA}, v{vL16}")
    def sync_and_read():
        a.wait_lg_all()
        a("s_barrier")
        ids = {}
        for q in range(4):
            a(f"ds_read_b128 {vr(RING+4*q,4)}, v{vT3} offset:{q*1024}")
            ids[(q, 1)] = a(f"ds_read_b128 {vr(RING+16+4*q,4)}, v{vT3} offset:{4096+q*1024}")
            ids[(q, 2)] = a(f"ds_read_b128 {vr(RING+32+4*q,4)}, v{vT2} offset:{SCR+q*1024}")
        def add(q):
            a.wait(lg=ids[(q, 1)])
            for j in (0, 2): pk("add", RING+4*q+j, vr(RING+4*q+j,2), vr(RING+16+4*q+j,2))
            a.wait(lg=ids[(q, 2)])
            for j in (0, 2): pk("add", ACC+4*q+j, vr(ACC+4*q+j,2), vr(RING+32+4*q+j,2))
            for j in (0, 2): pk("add", ACC+4*q+j, vr(ACC+4*q+j,2), vr(RING+4*q+j,2))
        return add
    return sync_and_read

def p3(L):
    a.c(f"======== P3 layer {L}")
    B1R = AUX
    a(f"s_lshl_b32 s{sT0}, s{sFT}, 1")
    a(f"s_add_u32 s{sT0}, s{sT0}, s{sRH}")
    a(f"s_lshl_b32 s{sT0}, s{sT0}, 6")
    a(f"v_lshlrev_b32 v{vT0}, 3, v{vHH}")
    for q in range(4): a(f"buffer_load_dwordx2 {vr(RING+2*q,2)}, v{vT0}, {sr(SB1,4)}, s{sT0} offen offset:{16*q}")
    if L == 0:
        for i in range(4): a(f"v_mov_b32 v{ACC+i}, -1")
        poison_tiles(ACC, 1)
    pump.run(32)
    a.wait_lg_all()
    pump.setup(2, L)
    pump.run(optL("V2", L, 0, 0), refill=False)
    pump.fill(pump.c + optL("V2F", L, 0, 0))
    assert pump.c <= NV2
    a("s_barrier")
    stamp("p3_delta")
    idle = a.newlabel("P3IDLE"); join = a.newlabel("P3JOIN")
    pst = (pump.i, pump.c, dict(pump.vid), dict(pump.lid))
    npre = optL("CPRE", L, 0, 0)
    a(f"s_cmp_eq_u32 s{sP3}, 7")
    a(f"s_cbranch_scc1 {idle}")
    with cond():
        a(f"s_lshl_b32 s{sT1}, s{sDT3}, 2")
        a(f"s_add_u32 s{sT1}, s{sT1}, s{sW}")
        a(f"s_lshl_b32 s{sT1}, s{sT1}, 16")
        a(f"s_add_u32 s{sT1}, s{sT1}, {HT[L]:#x}")
        ntail = optL("V2T", L, 5, 5)
        def tl(k, acc):
            if acc == 0 and k < ntail: pump.fill(pump.i + 1)
        run = stream(1, 32, sROT1, 0x50 + L, tail=tl)
        def ap():
            for j in range(8):
                a(f"v_lshlrev_b32 v{B1R+2*j}, 16, v{RING+j}")
                a(f"v_and_b32 v{B1R+2*j+1}, 0xffff0000, v{RING+j}")
        run(ap)
        stamp("gemm")
        if npre: pump.run(pump.c + npre)
        sync = reduce4()
        u_addr(sT1, L)
        K1 = -2.0 * 0.7978845608028654 * LOG2E
        a(f"s_mov_b32 s{sT2}, {fl(K1*0.044715)}")
        a(f"v_mov_b32 v{vT0}, {fl(K1)}")
        for q in range(8): pk("add", ACC+2*q, vr(ACC+2*q,2), vr(B1R+2*q,2))
        add = sync()
        T = ACC + 16; PKD = ACC + 32
        for h in range(2):
            add(2 * h); add(2 * h + 1)
            R4 = range(4 * h, 4 * h + 4); R8 = range(8 * h, 8 * h + 8)
            for q in R4: pk("mul", T+2*q, vr(ACC+2*q,2), vr(ACC+2*q,2))
            for q in R4: pk("fma", T+2*q, vr(T+2*q,2), sr(sT2,2), vr(vT0,2), hi=[1,0,0])
            for q in R4: pk("mul", T+2*q, vr(T+2*q,2), vr(ACC+2*q,2))
            for i in R8: a(f"v_exp_f32 v{T+i}, v{T+i}")
            for q in R4: pk("add", T+2*q, vr(T+2*q,2), "1.0", hi=[1,0])
            for i in R8: a(f"v_rcp_f32 v{T+i}, v{T+i}")
            for q in R4: pk("mul", ACC+2*q, vr(ACC+2*q,2), vr(T+2*q,2))
            for q in R4: a(f"v_cvt_pk_bf16_f32 v{PKD+q}, v{ACC+2*q}, v{ACC+2*q+1}")
            a(f"buffer_store_dwordx4 {vr(PKD+4*h,4)}, v{vL16}, {sr(SWS,4)}, s{sT1} offen offset:{2048*h} sc1")
        a(f"s_branch {join}")
    a.label(idle)
    pump.i, pump.c, pump.vid, pump.lid = pst
    if opt("IDT", 0):
        a(f"v_lshrrev_b32 v{vT0}, 2, v{vL}")
        a(f"v_lshlrev_b32 v{vT0}, 12, v{vT0}")
        a(f"v_and_b32 v{vT1}, 3, v{vL}")
        a(f"v_lshl_add_u32 v{vT0}, v{vT1}, 7, v{vT0}")
        a(f"s_lshr_b32 s{sT0}, s{sWI}, 2")
        a(f"s_and_b32 s{sT0}, s{sT0}, 3")
        a(f"s_mul_i32 s{sT0}, s{sT0}, 28")
        a(f"s_add_u32 s{sT0}, s{sT0}, s{sW}")
        a(f"s_lshl_b32 s{sT0}, s{sT0}, 16")
        a(f"s_and_b32 s{sT1}, s{sB}, 7")
        a(f"s_lshl_b32 s{sT1}, s{sT1}, 9")
        a(f"s_add_u32 s{sT0}, s{sT0}, s{sT1}")
        k0 = (pump.i // 4)
        if k0: a(f"s_add_u32 s{sT0}, s{sT0}, {k0*4*65536}")
        for k in range(k0, 7):
            a(f"buffer_load_dword v31, v{vT0}, {sr(SW2,4)}, s{sT0} offen")
            if k < 6: a(f"s_add_u32 s{sT0}, s{sT0}, {4*65536}")
    pump.fill(pump.i + ntail)
    if npre: pump.run(pump.c + npre)
    a.label(join)
    stamp(f"p3_{L}")

def p4(L):
    a.c(f"======== P4 layer {L}")
    pump.run(28)
    stamp("p4_w2")
    a(f"s_lshl_b32 s{sT1}, s{sDT}, 2")
    a(f"s_add_u32 s{sT1}, s{sT1}, s{sW}")
    a(f"s_mul_i32 s{sT1}, s{sT1}, {28*2048}")
    a(f"s_add_u32 s{sT1}, s{sT1}, {U[L]:#x}")
    NKT = opt("NKT", 12)
    def kvdma(j):
        if j == 0:
            a(f"s_mul_i32 s{sT3}, s{sHP}, 98304")
            a(f"s_add_u32 s{sT3}, s{sT3}, s{sWA}")
            a(f"s_add_u32 s{sT3}, s{sT3}, {WQT:#x}")
        if j & 3 == 0:
            a(f"s_add_u32 m0, s{sWA}, {j*1024}")
            if j: a(f"s_add_u32 s{sT3}, s{sT3}, 4096")
        a(f"buffer_load_dwordx4 v{vL16}, {sr(SWS,4)}, s{sT3} offen offset:{(j&3)*1024} lds")
    def tl(k, acc):
        j = 3 * k + acc
        if j < NKT: kvdma(j)
    run = stream(2, 28, sROT2, 0x60 + L, tail=tl if L == 0 else None)
    XU = AUX
    unpack_xr(XU)
    for q in range(8): pk("add", XU+2*q, vr(XU+2*q,2), vr(vB2-1,2), lo=[0,1], hi=[1,1])
    a.wait_lg_all()
    a("s_barrier")
    run()
    stamp("gemm")
    sync = reduce4()
    for q in range(8): pk("add", ACC+2*q, vr(ACC+2*q,2), vr(XU+2*q,2))
    if L == 0:
        x2_addr(sT1)
        stat_slot(sT2, ST2)
    add = sync()
    for h in range(2):
        add(2 * h); add(2 * h + 1)
        for q in range(4 * h, 4 * h + 4): a(f"v_cvt_pk_bf16_f32 v{XR+q}, v{ACC+2*q}, v{ACC+2*q+1}")
        if L == 0:
            a(f"buffer_store_dwordx4 {vr(XR+4*h,4)}, v{vL16}, {sr(SWS,4)}, s{sT1} offen offset:{1024*h} sc1")
        else:
            a(f"v_permlane32_swap_b32 v{XR+4*h}, v{XR+4*h+2}")
            a(f"v_permlane32_swap_b32 v{XR+4*h+1}, v{XR+4*h+3}")
            a(f"buffer_store_dwordx4 {vr(XR+4*h,4)}, v{vOUT}, {sr(SOUT,4)}, 0 offen offset:{32*h}")
    if L == 0:
        row_stats_publish(sT2, ACC + 16)
        pass
        for j in range(NKT, 16): kvdma(j)
    stamp(f"p4_{L}")

prologue()
for L in range(2):
    p1(L); p2(L); p3(L); p4(L)
finish()
a.label("L_EXIT")
a("s_endpgm")
a.label("L_END")

hdr = open(f"cdna_kernels/{NAME}.s.ref").read().split("; Override launch")[0]
out = hdr + f"""; @launch grid=(256,1,1) block=(256,1,1) lds={LDS_BYTES}
.amdgcn_target "amdgcn-amd-amdhsa--gfx950"
.text
.globl {NAME}_kernel
.p2align 8
.type {NAME}_kernel,@function
{NAME}_kernel:
""" + a.text() + f""".section .rodata,"a"
.p2align 6
.amdhsa_kernel {NAME}_kernel
  .amdhsa_next_free_vgpr 512
  .amdhsa_next_free_sgpr 102
  .amdhsa_accum_offset 256
  .amdhsa_group_segment_fixed_size 0
  .amdhsa_kernarg_size 88
  .amdhsa_user_sgpr_count 2
  .amdhsa_user_sgpr_kernarg_segment_ptr 1
  .amdhsa_system_sgpr_workgroup_id_x 1
  .amdhsa_float_denorm_mode_32 3
.end_amdhsa_kernel
"""
outp = [x for x in sys.argv[1:] if x.endswith(".s")]
open(outp[0], "w").write(out)
if DIAG: open(outp[0] + ".stamps", "w").write("\n".join(stamp_names))
```

```python
import sys, struct
from contextlib import contextmanager
from asmlib import Asm, vr, ar, sr

NAME = "interleave_layers__linear_attn_block__mixer_token_mlp__prompt"
DIAG = "--diag" in sys.argv
OPT = {}
for a_ in sys.argv:
    if a_.startswith("-D"):
        k_, v_ = a_[2:].split("="); OPT[k_] = int(v_)
def opt(k, d): return OPT.get(k, d)
def optL(k, L, d0, d1): return OPT.get(f'{k}_{L}', (d0, d1)[L])
def f2u(x): return struct.unpack("<I", struct.pack("<f", x))[0]
def fl(x): return "0x%08x" % f2u(x)
FULL = (1 << 64) - 1
LOG2E = 1.4426950408889634

FL_PQ = 0xB0000
KVF = [0x2000, 0xC0000]; KVP = [0x8000, 0xC6000]; ST = [0x166000, 0x1A6000]; ST2 = 0x1E6000
SELFP = 0xC0000
PQ = [0x400000, 0x600000]; HT = [0x800000, 0xA00000]; U = [0xC00000, 0xE00000]; X2 = 0x1000000
WQT = 0x1200000
TS = 0x1400000
DUMP = 0x1500000
WS_BYTES = 268435456
L_A = 32768; L_B = 98304; LDS_BYTES = 163840
NS = 6; SCR = 12288
sW = 3
SX, SWQKV, SWO, SW1, SW2, SWS, SOUT, SDBG, SB1, SB2, SCODE = 4, 8, 12, 16, 20, 24, 28, 32, 36, 40, 44
sST, sDT, sRB, sHP, sDT3, sFT, sP3, sRH, sKH, sWB, sTO, sONES = 48, 49, 50, 51, 52, 53, 54, 55, 56, 57, 58, 59
sEPS6 = 60; sB = 61
sT0, sT1, sT2, sT3, sT4, sT5 = 62, 63, 64, 65, 66, 67
sSO = 68; sW1K = 69; sTS = 70
sL2E = 74; sWA = 75; sROTX = 76; sROT1 = 77; sROT2 = 78; sRED = 79; sWOFF = 80; sKB = 81; sXC = 82; sWI = 83
sKA = 84
vL, vL16, vTA, vTB, vT0, vT1, vT2, vT3 = 0, 1, 2, 3, 4, 5, 6, 7
XR = 8
CKP, CVP, CQP, vB2, vRS, vHH, vOUT, vTSV = 16, 17, 18, 19, 20, 21, 22, 23
vWA, vWB, vWTA, vWTB = 24, 25, 26, 27
MA = 28
LOC = 32

a = Asm()
stamp_names = []
TOREC = ()
torec = []

@contextmanager
def cond():
    st = (a.vm, a.vm_done, a.lg, a.lg_done)
    yield
    a.vm, a.vm_done, a.lg, a.lg_done = st[0], min(st[1], st[0]), st[2], min(st[3], st[2])

def stamp(name):
    if not DIAG: return
    k = len(stamp_names); stamp_names.append(name)
    a(f"s_memrealtime {sr(sTS,2)}")
    if name in ("start", "end"): a(f"s_memtime {sr(sTS+2,2)}")
    a("s_waitcnt lgkmcnt(0)"); a.lg_done = a.lg
    a(f"v_writelane_b32 v{vTSV}, s{sTS}, {k}")
    if name in ("start", "end"): a(f"v_writelane_b32 v{vTSV}, s{sTS+2}, {62 if name == 'start' else 63}")
    if name in TOREC:
        a(f"v_writelane_b32 v{vTSV}, s{sTO}, {52 + len(torec)}"); torec.append(name)

def srd(base, ptr, nbytes):
    a(f"s_mov_b32 s{base}, s{ptr}")
    a(f"s_and_b32 s{base+1}, s{ptr+1}, 0xffff")
    a(f"s_mov_b32 s{base+2}, {nbytes:#x}")
    a(f"s_mov_b32 s{base+3}, 0x20000")

def set_exec(mask):
    if mask == FULL: a("s_mov_b64 exec, -1")
    elif mask <= 64: a(f"s_mov_b64 exec, {mask}")
    else:
        a(f"s_mov_b32 exec_lo, {mask & 0xffffffff:#x}"); a(f"s_mov_b32 exec_hi, {mask >> 32:#x}")

def poll(issue, check, code, pre=None):
    top = a.newlabel("POLL"); done = a.newlabel("PDONE"); chk = a.newlabel("PCHK")
    if pre is not None:
        a.wait(vm=pre)
        st = (a.vm, a.vm_done)
        a(f"s_branch {chk}")
    a.label(top)
    issue()
    a.wait_vm_all(force=True)
    if pre is not None: a.label(chk)
    check()
    a(f"s_cbranch_vccz {done}")
    a(f"s_sub_u32 s{sTO}, s{sTO}, 1")
    a(f"s_cbranch_scc0 {top}")
    a(f"s_mov_b32 s{sTO}, 0")
    a(f"v_mov_b32 v{vT0}, {code}")
    a(f"v_mov_b32 v{vT1}, 0")
    a(f"buffer_store_dword v{vT0}, v{vT1}, {sr(SDBG,4)}, 0 offen")
    a("s_waitcnt vmcnt(0)")
    a.vm_done = a.vm
    a.label(done)
    if pre is not None: a.vm, a.vm_done = st

def poll_flags(n, code):
    a(f"v_min_u32 v{vT2}, {n-1}, v{vL}")
    a(f"v_lshlrev_b32 v{vT2}, 7, v{vT2}")
    def issue(): a(f"buffer_load_dword v{vT3}, v{vT2}, {sr(SWS,4)}, s{sT0} offen sc1")
    def check(): a(f"v_cmp_ne_u32 vcc, 1, v{vT3}")
    poll(issue, check, code)

def publish_flag(last_store):
    a(f"v_mov_b32 v{vT0}, 1")
    a(f"v_lshlrev_b32 v{vT1}, 2, v{vL}")
    a.wait(vm=last_store)
    a("s_barrier")
    skip = a.newlabel("NOFLAG")
    a(f"s_cmp_lg_u32 s{sW}, 0")
    a(f"s_cbranch_scc1 {skip}")
    with cond():
        set_exec((1 << 32) - 1)
        a(f"buffer_store_dword v{vT0}, v{vT1}, {sr(SWS,4)}, s{sT0} offen sc1")
        set_exec(FULL)
    a.label(skip)

def finish():
    if opt("XTEST", 0):
        done = a.newlabel("XT"); lp = a.newlabel("XL")
        a(f"s_mov_b32 s{sT1}, {DUMP + 0x10000:#x}")
        a(f"buffer_load_dwordx4 v[40:43], v{vL16}, {sr(SWS,4)}, s{sT1} offen sc1")
        a("s_waitcnt vmcnt(0)")
        a(f"v_readfirstlane_b32 s{sT0}, v40")
        a("s_nop 4")
        for r in range(40, 44): a(f"v_xor_b32 v{r}, s{sT0}, v{r}")
        a("v_or_b32 v40, v40, v41"); a("v_or_b32 v42, v42, v43"); a("v_or_b32 v40, v40, v42")
        a("v_cmp_ne_u32 vcc, 0, v40")
        a(f"s_cbranch_vccz {done}")
        a(f"s_memrealtime s[70:71]")
        a("s_waitcnt lgkmcnt(0)")
        a(f"s_add_u32 s{sT1}, s70, 10000")
        a.label(lp)
        a(f"s_memrealtime s[70:71]")
        a("s_waitcnt lgkmcnt(0)")
        a(f"s_sub_u32 s{sT2}, s70, s{sT1}")
        a(f"s_cmp_lt_i32 s{sT2}, 0")
        a(f"s_cbranch_scc1 {lp}")
        a.label(done)
    if DIAG:
        stamp("end")
        a(f"s_lshl_b32 s{sT0}, s{sB}, 2")
        a(f"s_add_u32 s{sT0}, s{sT0}, s{sW}")
        a(f"s_lshl_b32 s{sT0}, s{sT0}, 8")
        a(f"s_add_u32 s{sT0}, s{sT0}, {TS:#x}")
        a(f"v_lshlrev_b32 v{vT0}, 2, v{vL}")
        a(f"buffer_store_dword v{vTSV}, v{vT0}, {sr(SWS,4)}, s{sT0} offen")
        if opt("DBGOUT", 0):
            sel = [1, 2, 3, 8, 9, 14, 15, 18, 19, 21, 22, 28, 34, 38, 39, 41]
            skip = a.newlabel("NODBG")
            a(f"s_cmp_lg_u32 s{sB}, {opt('DBGOUT', 0)}")
            a(f"s_cbranch_scc1 {skip}")
            a(f"s_cmp_lg_u32 s{sW}, 0")
            a(f"s_cbranch_scc1 {skip}")
            a(f"v_readlane_b32 s{sT1}, v{vTSV}, 0")
            for k, i in enumerate(sel):
                a(f"v_readlane_b32 s{sT2}, v{vTSV}, {i}")
                a("s_nop 3")
                a(f"s_sub_u32 s{sT2}, s{sT2}, s{sT1}")
                a(f"v_writelane_b32 v{vT1}, s{sT2}, {k}")
            set_exec(0xffff)
            a(f"buffer_store_dword v{vT1}, v{vT0}, {sr(SDBG,4)}, 0 offen")
            a.label(skip)
    a("s_endpgm")

def pk(op, d, x, y, z=None, hi=None, lo=None, neg=None):
    ops = [x, y] + ([z] if z is not None else [])
    m = ""
    if lo: m += " op_sel:[" + ",".join(map(str, lo)) + "]"
    if hi: m += " op_sel_hi:[" + ",".join(map(str, hi)) + "]"
    if neg: m += " neg_lo:[" + ",".join(map(str, neg)) + "] neg_hi:[" + ",".join(map(str, neg)) + "]"
    a(f"v_pk_{op}_f32 {vr(d,2)}, " + ", ".join(ops) + m)

def mfma(d, A, B, C):
    a(f"v_mfma_f32_32x32x16_bf16 {d}, {A}, {B}, {C}")

def tr_base(dst_a, dst_b, sel_sgpr, region):
    a(f"v_bfe_u32 v{vT0}, v{vL}, 2, 2")
    a(f"v_lshl_add_u32 v{vT0}, v{vHH}, 2, v{vT0}")
    a(f"v_lshlrev_b32 v{dst_a}, 7, v{vT0}")
    a(f"v_bfe_u32 v{vT1}, v{vL}, 3, 1")
    a(f"v_lshl_add_u32 v{dst_a}, v{vT1}, 6, v{dst_a}")
    a(f"v_bfe_u32 v{vT1}, v{vL}, 4, 1")
    a(f"v_lshl_add_u32 v{dst_a}, v{vT1}, 5, v{dst_a}")
    a(f"v_and_b32 v{vT1}, 3, v{vL}")
    a(f"v_lshl_add_u32 v{dst_a}, v{vT1}, 3, v{dst_a}")
    a(f"s_lshl_b32 s{sT5}, s{sel_sgpr}, 6")
    a(f"v_xor_b32 v{dst_a}, s{sT5}, v{dst_a}")
    a(f"v_add_u32 v{dst_a}, {region}, v{dst_a}")
    a(f"v_xor_b32 v{dst_b}, 64, v{dst_a}")

def dma_voff(dst, dst2, pitch, scol):
    a(f"v_lshrrev_b32 v{vT0}, 3, v{vL}")
    a(f"v_mul_u32_u24 v{dst}, {pitch}, v{vT0}")
    a(f"v_bfe_u32 v{vT1}, v{vL}, 4, 1")
    a(f"v_lshlrev_b32 v{vT1}, 2, v{vT1}")
    a(f"v_and_b32 v{vT0}, 7, v{vL}")
    a(f"v_xor_b32 v{vT0}, v{vT0}, v{vT1}")
    a(f"v_lshl_add_u32 v{dst}, v{vT0}, 4, v{dst}")
    a(f"v_add_u32 v{dst}, s{scol}, v{dst}")
    a(f"v_add_u32 v{dst2}, {8*pitch-1024}, v{dst}")

R1, R2 = 16, 11
NV2 = R2
def wreg(kind, t, j, n):
    r, base = (R1, 0) if kind == 1 else (R2, R1 * 8)
    if t < r: return ar(base + 8 * t + j, n)
    t -= r
    if t < 5: return ar(216 + 8 * t + j, n)
    return vr(160 + 8 * (t - 5) + j, n)

class Pump:
    def setup(self, kind, L):
        self.kind = kind
        self.pitch, self.srd, self.n = (3584, SW1, 32) if kind == 1 else (4096, SW2, 28)
        self.t0 = 0 if L == 0 else (R1 if kind == 1 else R2)
        self.i = self.t0; self.c = self.t0; self.vid = {}; self.lid = {}
        a.c(f"pump setup W{kind}")
        a(f"s_lshl_b32 s{sT4}, s{sFT if kind == 1 else sST}, 7")
        a(f"s_mul_i32 s{sT5}, s{sW}, {self.n*16*self.pitch}")
        a(f"s_add_u32 s{sT4}, s{sT4}, s{sT5}")
        dma_voff(vWA, vWB, self.pitch, sT4)
        rot = sROT1 if kind == 1 else sROT2
        a(f"s_add_u32 s{sT5}, s{rot}, {self.t0}")
        a(f"s_sub_u32 s{sWOFF}, s{sT5}, {self.n}")
        a(f"s_cselect_b32 s{sWOFF}, s{sT5}, s{sWOFF}")
        a(f"s_mul_i32 s{sWOFF}, s{sWOFF}, {16*self.pitch}")
    def issue1(self):
        if opt("NOPUMP", 0):
            self.vid[self.i] = None; self.i += 1; return
        t = self.i
        if t - NS >= self.t0: a.wait(lg=self.lid[t - NS])
        a(f"s_add_u32 m0, s{sWA}, {(t % NS)*2048}")
        if t > self.t0:
            a(f"s_add_u32 s{sWOFF}, s{sWOFF}, {16*self.pitch}")
            if opt("ROTW", 1):
                a(f"s_cmp_eq_u32 s{sWOFF}, {self.n*16*self.pitch}")
                a(f"s_cselect_b32 s{sWOFF}, 0, s{sWOFF}")
        a(f"buffer_load_dwordx4 v{vWA}, {sr(self.srd,4)}, s{sWOFF} offen lds")
        self.vid[t] = a(f"buffer_load_dwordx4 v{vWB}, {sr(self.srd,4)}, s{sWOFF} offen offset:1024 lds")
        self.i += 1
    def fill(self, upto=None):
        lim = self.n if upto is None else min(self.n, upto)
        while self.i < lim and self.i - NS < self.c: self.issue1()
    def run(self, target, refill=True):
        target = min(target, self.n)
        while self.c < target:
            t = self.c
            if t >= self.i: self.issue1()
            if opt("NOPUMP", 0):
                self.c += 1; continue
            a.wait(vm=self.vid[t])
            o = (t % NS) * 2048
            a(f"ds_read_b64_tr_b16 {wreg(self.kind,t,0,2)}, v{vWTA} offset:{o}")
            a(f"ds_read_b64_tr_b16 {wreg(self.kind,t,2,2)}, v{vWTA} offset:{o+1024}")
            a(f"ds_read_b64_tr_b16 {wreg(self.kind,t,4,2)}, v{vWTB} offset:{o}")
            self.lid[t] = a(f"ds_read_b64_tr_b16 {wreg(self.kind,t,6,2)}, v{vWTB} offset:{o+1024}")
            self.c += 1
            lim = self.n if refill else target
            if self.i < lim and self.i - NS < self.c - 1: self.issue1()
        if refill: self.fill()
pump = Pump()

def prologue():
    a(f"s_cmp_ge_u32 s2, 256")
    a(f"s_cbranch_scc1 L_EXIT")
    a(f"s_load_dwordx16 {sr(sKA,16)}, s[0:1], 0")
    a(f"s_load_dwordx4 {sr(SCODE,4)}, s[0:1], 64")
    a(f"s_load_dwordx2 s[100:101], s[0:1], 80")
    a(f"s_mov_b32 s{sB}, s2")
    a(f"v_lshrrev_b32 v{vT0}, 6, v0")
    a(f"v_and_b32 v{vL}, 63, v0")
    a(f"v_readfirstlane_b32 s{sW}, v{vT0}")
    a(f"v_lshlrev_b32 v{vL16}, 4, v{vL}")
    a(f"v_lshrrev_b32 v{vHH}, 5, v{vL}")
    if DIAG: a(f"v_mov_b32 v{vTSV}, 0")
    stamp("start")
    X_, I_ = sT0, sT1
    a(f"s_and_b32 s{X_}, s{sB}, 7")
    a(f"s_lshr_b32 s{I_}, s{sB}, 3")
    a(f"s_lshr_b32 s{sT2}, s{I_}, 3")
    a(f"s_and_b32 s{sDT}, s{I_}, 7")
    a(f"s_and_b32 s{sRB}, s{X_}, 3")
    a(f"s_lshl_b32 s{sRB}, s{sRB}, 2")
    a(f"s_add_u32 s{sRB}, s{sRB}, s{sT2}")
    a(f"s_lshr_b32 s{sHP}, s{X_}, 2")
    a(f"s_lshl_b32 s{sHP}, s{sHP}, 3")
    a(f"s_add_u32 s{sHP}, s{sHP}, s{sDT}")
    a(f"s_lshr_b32 s{sROTX}, s{sDT}, 1")
    a(f"s_add_u32 s{sROTX}, s{sROTX}, s{sT2}")
    a(f"s_and_b32 s{sROTX}, s{sROTX}, 3")
    a(f"s_lshl_b32 s{sROTX}, s{sROTX}, 1")
    a(f"s_and_b32 s{sT3}, s{I_}, 1")
    a(f"s_add_u32 s{sROTX}, s{sROTX}, s{sT3}")
    if not opt("ROTX", 1): a(f"s_mov_b32 s{sROTX}, 0")
    a(f"s_lshl_b32 s{sW1K}, s{sW}, 10")
    a(f"s_lshl_b32 s{sWB}, s{sW}, 14")
    a(f"s_add_u32 s{sWA}, s{sWB}, {L_A}")
    a(f"s_add_u32 s{sWB}, s{sWB}, {L_B}")
    a(f"s_lshl_b32 s{sST}, s{X_}, 2")
    a(f"s_add_u32 s{sST}, s{sST}, s{sT2}")
    a(f"s_lshr_b32 s{sT3}, s{X_}, 1")
    a(f"s_mul_i32 s{sT3}, s{sT3}, 7")
    a(f"s_and_b32 s{sT4}, s{X_}, 1")
    a(f"s_lshl_b32 s{sT5}, s{sT4}, 2")
    a(f"s_add_u32 s{sFT}, s{sT3}, s{sT5}")
    a(f"s_add_u32 s{sFT}, s{sFT}, s{sT2}")
    a(f"s_and_b32 s{sP3}, s{I_}, 3")
    a(f"s_add_u32 s{sT5}, s{sT5}, s{sP3}")
    a(f"s_add_u32 s{sKB}, s{sT3}, 3")
    a(f"s_cmp_lt_u32 s{I_}, 24")
    a(f"s_cselect_b32 s{sFT}, s{sFT}, s{sKB}")
    a(f"s_cselect_b32 s{sDT3}, s{sDT}, s{sT5}")
    a(f"s_mul_i32 s{sT4}, s{sT4}, 3")
    a(f"s_add_u32 s{sXC}, s{sT3}, s{sT4}")
    a(f"s_lshl_b32 s{sROT1}, s{X_}, 2")
    a(f"s_and_b32 s{sT3}, s{I_}, 3")
    a(f"s_lshr_b32 s{sP3}, s{I_}, 2")
    a(f"s_lshl_b32 s{sWI}, s{I_}, 2")
    a(f"s_add_u32 s{sWI}, s{sWI}, s{sW}")
    a(f"s_lshl_b32 s{sRED}, s{X_}, 2")
    a(f"s_add_u32 s{sRED}, s{sRED}, s{sT3}")
    a(f"s_lshl_b32 s{sRED}, s{sRED}, 1")
    a(f"s_add_u32 s{sRED}, s{sRED}, s{sW}")
    a(f"s_cmp_lt_u32 s{sW}, 2")
    a(f"s_cselect_b32 s{sRED}, s{sRED}, 99")
    a(f"s_cmp_eq_u32 s{sP3}, 7")
    a(f"s_cselect_b32 s{sRED}, s{sRED}, 99")
    a(f"s_mul_i32 s{sROT2}, s{X_}, 7")
    a(f"s_lshr_b32 s{sROT2}, s{sROT2}, 2")
    a(f"s_lshl_b32 s{sROT2}, s{sROT2}, 1")
    if not opt("ROTW", 1):
        a(f"s_mov_b32 s{sROT1}, 0"); a(f"s_mov_b32 s{sROT2}, 0")
    a(f"s_lshr_b32 s{sRH}, s{sW}, 1")
    a(f"s_and_b32 s{sKH}, s{sW}, 1")
    a(f"s_mov_b32 s{sTO}, 400000")
    a(f"s_mov_b32 s{sONES}, 0x3f803f80")
    a(f"s_mov_b32 s{sEPS6}, {fl(1e-6)}")
    a(f"s_mov_b32 s{sL2E}, {fl(LOG2E)}")
    a("s_waitcnt lgkmcnt(0)")
    pass
    srd(SX, sKA + 0, 2048 * 512 * 2)
    srd(SWQKV, sKA + 2, 512 * 1536 * 2)
    srd(SWS, 100, WS_BYTES)

def late_srds():
    srd(SWO, sKA + 4, 512 * 512 * 2)
    srd(SW1, sKA + 8, 2048 * 1792 * 2)
    a(f"s_cmp_eq_u32 s{sP3}, 7")
    a(f"s_cselect_b32 s{SW1+2}, 0, s{SW1+2}")
    srd(SB1, sKA + 10, 1792 * 2)
    srd(SW2, sKA + 12, 1792 * 2048 * 2)
    srd(SB2, sKA + 14, 2048 * 2)
    srd(SOUT, SCODE, 2048 * 512 * 2)
    srd(SDBG, SCODE + 2, 256)

def init_poison(P):
    for i in range(4): a(f"v_mov_b32 v{P+i}, -1")
    skip = a.newlabel("NOPOIS")
    a(f"s_cmp_ge_u32 s{sB}, 32")
    a(f"s_cbranch_scc1 {skip}")
    with cond():
        a(f"s_mul_i32 s{sT0}, s{sB}, 24576")
        a(f"s_add_u32 s{sT0}, s{sT0}, s{sW1K}")
        for j in range(6):
            a(f"buffer_store_dwordx4 {vr(P,4)}, v{vL16}, {sr(SWS,4)}, s{sT0} offen sc1")
            if j < 5: a(f"s_add_u32 s{sT0}, s{sT0}, 4096")
    a.label(skip)

def ht_addr(dst, L):
    a(f"s_lshl_b32 s{dst}, s{sDT}, 6")
    a(f"s_lshl_b32 s{sT5}, s{sST}, 1")
    a(f"s_add_u32 s{dst}, s{dst}, s{sT5}")
    a(f"s_add_u32 s{dst}, s{dst}, s{sRH}")
    a(f"s_lshl_b32 s{dst}, s{dst}, 2")
    a(f"s_add_u32 s{dst}, s{dst}, s{sKH}")
    a(f"s_lshl_b32 s{dst}, s{dst}, 10")
    a(f"s_add_u32 s{dst}, s{dst}, {HT[L]:#x}")
def u_addr(dst, L):
    a(f"s_mul_i32 s{dst}, s{sDT3}, 56")
    a(f"s_lshl_b32 s{sT5}, s{sFT}, 1")
    a(f"s_add_u32 s{dst}, s{dst}, s{sT5}")
    a(f"s_add_u32 s{dst}, s{dst}, s{sRH}")
    a(f"s_lshl_b32 s{dst}, s{dst}, 2")
    a(f"s_add_u32 s{dst}, s{dst}, s{sKH}")
    a(f"s_lshl_b32 s{dst}, s{dst}, 10")
    a(f"s_add_u32 s{dst}, s{dst}, {U[L]:#x}")
def x2_addr(dst):
    a(f"s_lshl_b32 s{dst}, s{sST}, 1")
    a(f"s_add_u32 s{dst}, s{dst}, s{sRH}")
    a(f"s_lshl_b32 s{dst}, s{dst}, 3")
    a(f"s_add_u32 s{dst}, s{dst}, s{sDT}")
    a(f"s_lshl_b32 s{dst}, s{dst}, 1")
    a(f"s_add_u32 s{dst}, s{dst}, s{sKH}")
    a(f"s_lshl_b32 s{dst}, s{dst}, 11")
    a(f"s_add_u32 s{dst}, s{dst}, {X2:#x}")
def poison_tiles(P, L):
    ht_addr(sT0, L)
    for f in range(2): a(f"buffer_store_dwordx4 {vr(P,4)}, v{vL16}, {sr(SWS,4)}, s{sT0} offen offset:{2048*f} sc1")
    u_addr(sT0, L)
    a(f"s_cmp_eq_u32 s{sP3}, 7")
    a(f"s_cselect_b32 s{sT0}, {DUMP:#x}, s{sT0}")
    for f in range(2): a(f"buffer_store_dwordx4 {vr(P,4)}, v{vL16}, {sr(SWS,4)}, s{sT0} offen offset:{2048*f} sc1")
    if L == 0: x2_addr(sT0)
    else:
        for x in (f"s_lshl_b32 s{sT0}, s{sRB}, 2", f"s_add_u32 s{sT0}, s{sT0}, s{sW}", f"s_lshl_b32 s{sT0}, s{sT0}, 4",
                  f"s_add_u32 s{sT0}, s{sT0}, s{sHP}", f"s_lshl_b32 s{sT0}, s{sT0}, 11", f"s_add_u32 s{sT0}, s{sT0}, {PQ[1]:#x}"): a(x)
    for f in range(2): a(f"buffer_store_dwordx4 {vr(P,4)}, v{vL16}, {sr(SWS,4)}, s{sT0} offen offset:{1024*f} sc1")

def code_prefetch():
    if opt("CODEPF", 1):
        a(f"s_getpc_b64 {sr(SCODE,2)}")
        a.label("L_PC")
        a(f"s_and_b32 s{SCODE+1}, s{SCODE+1}, 0xffff")
        a(f"s_mov_b32 s{SCODE+2}, L_END - L_PC")
        a(f"s_mov_b32 s{SCODE+3}, 0x20000")
        a(f"s_lshr_b32 s{sT0}, s{sB}, 3")
        a(f"s_lshl_b32 s{sT0}, s{sT0}, 12")
        a(f"s_add_u32 s{sT0}, s{sT0}, s{sW1K}")
        a(f"buffer_load_dwordx4 {ar(252,4)}, v{vL16}, {sr(SCODE,4)}, s{sT0} offen")
    srd(SCODE, sKA + 8, 2048 * 1792 * 2)

def touch(srdn, rows_per_wave, lines_per_row_log2, pitch, scol_emit, dst):
    lg = lines_per_row_log2
    n = rows_per_wave << lg
    scol_emit()
    a(f"v_min_u32 v{vT0}, {n-1}, v{vL}")
    a(f"v_lshrrev_b32 v{vT1}, {lg}, v{vT0}")
    a(f"v_mul_u32_u24 v{vT1}, {pitch}, v{vT1}")
    a(f"v_and_b32 v{vT0}, {(1<<lg)-1}, v{vT0}")
    a(f"v_lshl_add_u32 v{vT0}, v{vT0}, 7, v{vT1}")
    a(f"s_mul_i32 s{sT5}, s{sWI}, {rows_per_wave*pitch}")
    a(f"s_add_u32 s{sT4}, s{sT4}, s{sT5}")
    a(f"buffer_load_dword {dst}, v{vT0}, {sr(srdn,4)}, s{sT4} offen")
def touch_w1(dst):
    touch(SCODE, 16, 2, 3584, lambda: a(f"s_lshl_b32 s{sT4}, s{sXC}, 7"), dst)
def touch_w2(dst):
    def c2():
        a(f"s_and_b32 s{sT4}, s{sB}, 7"); a(f"s_lshl_b32 s{sT4}, s{sT4}, 9")
    touch(SW2, 16, 2, 4096, c2, dst)
def touch_wo(dst):
    touch(SWO, 4, 3, 1024, lambda: a(f"s_mov_b32 s{sT4}, 0"), dst)
def touch_wqt(dst):
    if not opt("TQ", 1): return
    def c():
        a(f"s_lshr_b32 s{sT4}, s{sHP}, 3"); a(f"s_mul_i32 s{sT4}, s{sT4}, {8*98304}"); a(f"s_add_u32 s{sT4}, s{sT4}, {WQT:#x}")
    touch(SWS, 6, 3, 1024, c, dst)
def touches(L, where):
    dst = {1: "a25", 2: "a25", 3: "a25"}.get(where)
    if optL("T1", L, 1, 0) == where: touch_w1(dst + "2" if dst else "v31")
    if optL("T2", L, 3, 0) == where: touch_w2(dst + "3" if dst else "v31")

def verify(vMX, redo):
    ok = a.newlabel("VOK")
    a(f"v_cmp_eq_u32 vcc, -1, v{vMX}")
    a(f"s_cbranch_vccz {ok}")
    a("s_waitcnt vmcnt(0)")
    a(f"s_sub_u32 s{sTO}, s{sTO}, 64")
    a(f"s_cbranch_scc0 {redo}")
    a(f"s_mov_b32 s{sTO}, 0")
    a.label(ok)

def init_misc(P):
    if opt("XTEST", 0):
        a(f"s_getreg_b32 s{sT0}, hwreg(HW_REG_XCC_ID)")
        a(f"s_sub_u32 s{sT0}, s{sT0}, s{sB}")
        a(f"s_and_b32 s{sT0}, s{sT0}, 7")
        a(f"v_mov_b32 v{vT0}, s{sT0}")
        a(f"s_lshl_b32 s{sT1}, s{sB}, 2")
        a(f"v_mov_b32 v{vT1}, s{sT1}")
        a(f"s_mov_b32 s{sT1}, {DUMP + 0x10000:#x}")
        a(f"buffer_store_dword v{vT0}, v{vT1}, {sr(SWS,4)}, s{sT1} offen sc1")
    a(f"s_mul_i32 s{sT0}, s{sB}, 6144")
    a(f"s_add_u32 s{sT0}, s{sT0}, {SELFP:#x}")
    a(f"s_add_u32 s{sT1}, s{sT0}, s{sW1K}")
    a(f"buffer_store_dwordx4 {vr(P,4)}, v{vL16}, {sr(SWS,4)}, s{sT1} offen sc1")
    a(f"v_lshlrev_b32 v{vT0}, 3, v{vL}")
    a(f"s_lshl_b32 s{sT1}, s{sW}, 9")
    a(f"s_add_u32 s{sT0}, s{sT0}, s{sT1}")
    a(f"s_add_u32 s{sT0}, s{sT0}, 4096")
    a(f"buffer_store_dwordx2 {vr(P,2)}, v{vT0}, {sr(SWS,4)}, s{sT0} offen sc1")
    a(f"s_lshl_b32 s{sT0}, s{sST}, 1")
    a(f"s_add_u32 s{sT0}, s{sT0}, s{sRH}")
    a(f"s_lshl_b32 s{sT0}, s{sT0}, 5")
    a(f"v_and_b32 v{vT0}, 31, v{vL}")
    a(f"v_add_u32 v{vT0}, s{sT0}, v{vT0}")
    a(f"v_lshlrev_b32 v{vT1}, 1, v{vT0}")
    a(f"buffer_load_ushort v{vB2}, v{vT1}, {sr(SB2,4)}, 0 offen")
    a(f"v_lshlrev_b32 v{vT0}, 10, v{vT0}")
    a(f"v_lshl_add_u32 v{vOUT}, v{vHH}, 4, v{vT0}")
    a(f"s_lshl_b32 s{sT0}, s{sDT}, 1")
    a(f"s_add_u32 s{sT0}, s{sT0}, s{sKH}")
    a(f"s_lshl_b32 s{sT0}, s{sT0}, 6")
    a(f"v_add_u32 v{vOUT}, s{sT0}, v{vOUT}")
    a(f"buffer_load_dwordx4 {vr(XR,4)}, v{vOUT}, {sr(SX,4)}, 0 offen")
    a(f"buffer_load_dwordx4 {vr(XR+4,4)}, v{vOUT}, {sr(SX,4)}, 0 offen offset:32")
    tr_base(vWTA, vWTB, sRH, f"s{sWA}")

def split2(dst, src, t0):
    a(f"v_cvt_pk_bf16_f32 v{t0}, v{src}, v{src}")
    a(f"v_and_b32 v{t0}, 0xffff0000, v{t0}")
    a(f"v_sub_f32 v{dst}, v{src}, v{t0}")
    a(f"v_cvt_pk_bf16_f32 v{dst}, v{t0}, v{dst}")

def stats_to_frags(S, Q, RA):
    a(f"v_mul_f32 v{S}, {fl(-1/512)}, v{S}")
    a(f"v_mul_f32 v{Q}, {fl(1/512)}, v{Q}")
    a(f"v_cmp_eq_u32 vcc, 0, v{vHH}")
    a(f"v_fma_f32 v{Q}, -v{S}, v{S}, v{Q}")
    a(f"v_max_f32 v{Q}, 0, v{Q}")
    a(f"v_add_f32 v{Q}, {fl(1e-5)}, v{Q}")
    a(f"v_rsq_f32 v{vRS}, v{Q}")
    a(f"v_cndmask_b32 v{S}, 0, v{S}, vcc")
    a(f"v_cvt_pk_bf16_f32 v{MA}, v{S}, v{S}")
    a(f"v_cndmask_b32 v{Q}, 0, v{vRS}, vcc")
    a(f"v_and_b32 v{vT0}, 0xffff0000, v{MA}")
    a(f"v_sub_f32 v{S}, v{S}, v{vT0}")
    a(f"v_cvt_pk_bf16_f32 v{MA+1}, v{S}, v{S}")
    split2(RA, Q, vT0)

XF = 128
def p1(L):
    ACCK, ACCV, RR = 32, 48, 64
    VV, PK, T1 = 80, 88, 96
    S0, S1, Q0, Q1 = 80, 81, 82, 83
    CF = 84
    CFV, CFQ, RA = 112, 116, 120
    vTQ, vTV = 124, 125
    vW, vXA, vXB = 126, 127, 96
    vCQ, vCV = 97, 98
    XA = 88
    WFR = 216; NWF = 4; ONESF = 248; CG = 200; CK, CV, CQ = 152, 168, 184
    a.c(f"======== P1 layer {L}")
    xid = {}; wid = {}
    toff = 256 if L == 0 else 512
    vTQ2, vTV2 = vTA, vTB
    def addr_setup():
        if L == 0:
            a(f"v_bfe_u32 v{vT0}, v{vL}, 2, 2")
            a(f"v_lshl_add_u32 v{vT0}, v{vHH}, 3, v{vT0}")
            a(f"v_lshlrev_b32 v{vTQ}, 6, v{vT0}")
            a(f"v_bfe_u32 v{vT1}, v{vL}, 4, 1")
            a(f"v_lshl_add_u32 v{vTQ}, v{vT1}, 5, v{vTQ}")
            a(f"v_and_b32 v{vT1}, 3, v{vL}")
            a(f"v_lshl_add_u32 v{vTQ}, v{vT1}, 3, v{vTQ}")
        else:
            a(f"s_and_b32 s{sT5}, s{sROTX}, {opt('XROT', 1)}")
            a(f"s_lshl_b32 s{sT5}, s{sT5}, 14")
            a(f"v_add_u32 v{vTQ}, s{sT5}, v{vL16}")
            a(f"v_xor_b32 v{vTQ2}, 16384, v{vTQ}")
            a(f"v_add_u32 v{vTV2}, 65536, v{vTQ2}")
        a(f"v_add_u32 v{vTV}, 65536, v{vTQ}")
        for i in range(4): a(f"v_accvgpr_write_b32 a{ONESF+i}, s{sONES}")
        for r in ([MA + 2, MA + 3] if L == 0 else []) + [RA + 1, RA + 2, RA + 3, CF + 2, CF + 3, CFV + 2, CFV + 3, CFQ + 2, CFQ + 3]: a(f"v_mov_b32 v{r}, 0")
    rg = {}
    def RG(s):
        b = WFR + (s % NWF) * 8
        if L == 0:
            o = s * 1024
            a(f"ds_read_b64_tr_b16 {ar(b,2)}, v{vTQ} offset:{32768+o}")
            a(f"ds_read_b64_tr_b16 {ar(b+2,2)}, v{vTQ} offset:{32768+o+toff}")
            a(f"ds_read_b64_tr_b16 {ar(b+4,2)}, v{vTV} offset:{o}")
            rg[s] = a(f"ds_read_b64_tr_b16 {ar(b+6,2)}, v{vTV} offset:{o+toff}")
        else:
            o = (s & 15) * 1024
            q_, v_ = (vTQ2, vTV2) if s >= 16 else (vTQ, vTV)
            a(f"ds_read_b128 {ar(b,4)}, v{q_} offset:{32768+o}")
            rg[s] = a(f"ds_read_b128 {ar(b+4,4)}, v{v_} offset:{o}")
    if L == 0:
        init_poison(T1 + 4)
        a(f"v_lshrrev_b32 v{vT0}, 2, v{vL}")
        a(f"s_lshl_b32 s{sT0}, s{sW}, 4")
        a(f"v_add_u32 v{vT0}, s{sT0}, v{vT0}")
        a(f"v_mul_u32_u24 v{vW}, 3072, v{vT0}")
        a(f"v_and_b32 v{vT0}, 3, v{vL}")
        a(f"v_lshl_add_u32 v{vW}, v{vT0}, 4, v{vW}")
        a(f"s_lshl_b32 s{sT0}, s{sHP}, 6")
        a(f"v_add_u32 v{vW}, s{sT0}, v{vW}")
        a(f"s_lshl_b32 s{sT0}, s{sRB}, 2")
        a(f"s_add_u32 s{sT0}, s{sT0}, s{sW}")
        a(f"s_lshl_b32 s{sT0}, s{sT0}, 15")
        a(f"v_lshrrev_b32 v{vT0}, 3, v{vL}")
        a(f"v_lshlrev_b32 v{vT0}, 10, v{vT0}")
        a(f"v_add_u32 v{vT0}, s{sT0}, v{vT0}")
        a(f"v_and_b32 v{vT1}, 7, v{vL}")
        a(f"v_lshrrev_b32 v{vT2}, 4, v{vL}")
        a(f"v_xor_b32 v{vT1}, v{vT1}, v{vT2}")
        a(f"v_lshl_add_u32 v{vXA}, v{vT1}, 4, v{vT0}")
        a(f"v_xor_b32 v{vXB}, 64, v{vXA}")
        a(f"v_add_u32 v{vXB}, {8192-1024}, v{vXB}")
        def x_issue(j):
            a(f"s_add_u32 s{sKB}, s{sROTX}, {j}")
            a(f"s_and_b32 s{sKB}, s{sKB}, 7")
            a(f"s_lshl_b32 s{sT1}, s{sKB}, 7")
            a(f"s_add_u32 m0, s{sWB}, {(j&3)*4096}")
            a(f"s_mul_i32 s{sSO}, s{sKB}, {64*3072}")
            a(f"buffer_load_dwordx4 v{vXA}, {sr(SX,4)}, s{sT1} offen lds")
            a(f"buffer_load_dwordx4 v{vXB}, {sr(SX,4)}, s{sT1} offen offset:1024 lds")
            a(f"s_add_u32 m0, s{sWB}, {(j&3)*4096+2048}")
            a(f"s_add_u32 s{sT1}, s{sT1}, 16384")
            a(f"buffer_load_dwordx4 v{vXA}, {sr(SX,4)}, s{sT1} offen lds")
            xid[j] = a(f"buffer_load_dwordx4 v{vXB}, {sr(SX,4)}, s{sT1} offen offset:1024 lds")
        def w_issue(j):
            for seg in (1, 2, 0):
                a(f"s_add_u32 m0, s{sW1K}, {seg*32768 - seg*1024 + j*4096}")
                wid[j] = a(f"buffer_load_dwordx4 v{vW}, {sr(SWQKV,4)}, s{sSO} offen offset:{seg*1024} lds")
        def slot_issue(j):
            x_issue(j); w_issue(j)
        LA = opt("LA0", 3)
        slot_issue(0)
        pass
        late_srds()
        addr_setup()
        a(f"v_add_u32 v{vCQ}, s{sW1K}, v{vTQ}")
        a(f"v_add_u32 v{vCV}, s{sW1K}, v{vTV}")
        for r in (S0, S1, Q0, Q1): a(f"v_mov_b32 v{r}, 0")
        a(f"v_and_b32 v{vT0}, 31, v{vL}")
        a(f"v_bfe_u32 v{vT1}, v{vL}, 1, 3")
        a(f"v_xor_b32 v{vT1}, v{vT1}, v{vHH}")
        a(f"v_lshlrev_b32 v{vT0}, 7, v{vT0}")
        a(f"v_add_u32 v{vT0}, s{sWB}, v{vT0}")
        for t in range(4):
            a(f"v_xor_b32 v{vT2}, {2*t}, v{vT1}")
            a(f"v_lshl_add_u32 v{XA+t}, v{vT2}, 4, v{vT0}")
        code_prefetch()
        for j in range(1, LA): slot_issue(j)
        init_misc(T1 + 4)
        pass
        initld = None
        cg = None
        def colsum(j):
            a.wait(lg=cg)
            for k, c in enumerate((CK, CV, CQ)):
                mfma(ar(c,16), ar(ONESF,4), ar(CG+4*k,4), "0" if j == 0 else ar(c,16))
        def xreads(j):
            a.wait(vm=xid[j])
            return [a(f"ds_read_b128 {vr(XF+16*j+4*t,4)}, v{XA+t} offset:{(j&3)*4096}") for t in range(4)]
        xr = xreads(0)
        for j in range(8):
            a.wait(vm=wid[j])
            a("s_barrier")
            if j == 0:
                stamp("p1_first")
                skip = a.newlabel("NOINIT")
                a(f"s_cmp_ge_u32 s{sB}, 32")
                a(f"s_cbranch_scc1 {skip}")
                a(f"s_cmp_lg_u32 s{sW}, 0")
                a(f"s_cbranch_scc1 {skip}")
                with cond():
                    a(f"v_mov_b32 v{vT0}, 1")
                    a(f"s_lshl_b32 s{sT0}, s{sB}, 2")
                    a(f"v_mov_b32 v{vT1}, s{sT0}")
                    set_exec(1)
                    a(f"buffer_store_dword v{vT0}, v{vT1}, {sr(SDBG,4)}, 0 offen offset:128 sc1")
                    set_exec(FULL)
                a.label(skip)
            RG(4 * j); RG(4 * j + 1); RG(4 * j + 2)
            if j > 0: colsum(j - 1)
            for t in range(4):
                a.wait(lg=xr[t])
                for k in range(4):
                    r = XF + 16 * j + 4 * t + k
                    a(f"v_dot2_f32_bf16 v{S0+(k&1)}, v{r}, s{sONES}, v{S0+(k&1)}")
                    a(f"v_dot2_f32_bf16 v{Q0+(k&1)}, v{r}, v{r}, v{Q0+(k&1)}")
            for s in range(4 * j, 4 * j + 4):
                t = s & 3
                a.wait(lg=rg[s])
                b = WFR + (s % NWF) * 8
                x = vr(XF + 4 * s, 4)
                mfma(vr(ACCK,16), x, ar(b,4), "0" if s == 0 else vr(ACCK,16))
                if t == 0: RG(s + 3)
                if t == 1:
                    o = j * 4096
                    a(f"ds_read_b64_tr_b16 {ar(CG,2)}, v{vCQ} offset:{32768+o}")
                    a(f"ds_read_b64_tr_b16 {ar(CG+2,2)}, v{vCQ} offset:{32768+o+toff}")
                    a(f"ds_read_b64_tr_b16 {ar(CG+4,2)}, v{vCV} offset:{o}")
                    a(f"ds_read_b64_tr_b16 {ar(CG+6,2)}, v{vCV} offset:{o+toff}")
                    a(f"ds_read_b64_tr_b16 {ar(CG+8,2)}, v{vCQ} offset:{o}")
                    cg = a(f"ds_read_b64_tr_b16 {ar(CG+10,2)}, v{vCQ} offset:{o+toff}")
                if t == 2 and j + LA < 8: w_issue(j + LA)
                if t == 3 and j < 7: xr = xreads(j + 1)
                mfma(vr(ACCV,16), x, ar(b+4,4), "0" if s == 0 else vr(ACCV,16))
                if t == 1 and j + LA < 8: x_issue(j + LA)
                if t == 2 and j == opt("J0", 8 - LA):
                    poison_tiles(T1 + 4, 0)
                    a(f"v_and_b32 v{vT2}, 31, v{vL}")
                    a(f"v_lshlrev_b32 v{vT2}, 2, v{vT2}")
                    initld = a(f"buffer_load_dword v{vT3}, v{vT2}, {sr(SDBG,4)}, 0 offen offset:128 sc1")
                    if opt("TO", 1): touch_wo("a254")
                    touches(0, 1)
        colsum(7)
        stamp("p1_gemm")
        CPY = T1
        a(f"s_lshr_b32 s{sT0}, s{sRB}, 1")
        a(f"s_sub_u32 s{sT0}, s{sT0}, s{sROTX}")
        a(f"s_and_b32 s{sT0}, s{sT0}, 7")
        a(f"s_lshl_b32 s{sT0}, s{sT0}, 12")
        a(f"s_and_b32 s{sT1}, s{sRB}, 1")
        a(f"s_lshl_b32 s{sT1}, s{sT1}, 11")
        a(f"s_add_u32 s{sT0}, s{sT0}, s{sT1}")
        a(f"s_min_u32 s{sT2}, s{sW}, 2")
        a(f"s_lshl_b32 s{sT2}, s{sT2}, 15")
        a(f"s_add_u32 s{sT0}, s{sT0}, s{sT2}")
        a(f"v_lshlrev_b32 v{vT1}, 8, v{vHH}")
        a(f"v_sub_u32 v{vT0}, v{vTQ}, v{vT1}")
        a(f"v_add_u32 v{vT0}, s{sT0}, v{vT0}")
        for k in range(4): a(f"ds_read_b64_tr_b16 {vr(CPY+2*k,2)}, v{vT0} offset:{512*k}")
        a(f"v_add_f32 v{S0}, v{S0}, v{S1}")
        a(f"v_add_f32 v{Q0}, v{Q0}, v{Q1}")
        a(f"v_mov_b32 v{S1}, v{S0}")
        a(f"v_mov_b32 v{Q1}, v{Q0}")
        a(f"v_add_u32 v{vT1}, s{sWB}, v{vL16}")
        a(f"v_permlane32_swap_b32 v{S0}, v{S1}")
        a(f"v_permlane32_swap_b32 v{Q0}, v{Q1}")
        CS4 = T1 + 8
        a(f"v_accvgpr_read_b32 v{CS4}, a{CK}")
        a(f"v_accvgpr_read_b32 v{CS4+1}, a{CV}")
        a(f"v_accvgpr_read_b32 v{CS4+2}, a{CQ}")
        a(f"ds_write_b128 v{vT1}, {vr(CS4,4)}")
        a(f"v_add_f32 v{S0}, v{S0}, v{S1}")
        a(f"v_add_f32 v{Q0}, v{Q0}, v{Q1}")
        a(f"v_add_u32 v{vT1}, {L_B}, v{vL16}")
        a.wait_lg_all()
        a("s_barrier")
        for w in range(4): cr = a(f"ds_read_b128 {vr(PK+4*(w&1) if w < 2 else CS4+4*(w&1),4)}, v{vT1} offset:{16384*w}")
        stats_to_frags(S0, Q0, RA)
        mfma(vr(RR,16), vr(RA,4), ar(ONESF,4), "0")
        a(f"s_mul_i32 s{sT3}, s{sHP}, 98304")
        a(f"s_add_u32 s{sT3}, s{sT3}, s{sT2}")
        a(f"s_lshl_b32 s{sT1}, s{sRB}, 11")
        a(f"s_add_u32 s{sT3}, s{sT3}, s{sT1}")
        a(f"s_add_u32 s{sT3}, s{sT3}, {WQT:#x}")
        a(f"buffer_store_dwordx4 {vr(CPY,4)}, v{vL16}, {sr(SWS,4)}, s{sT3} offen sc1")
        a(f"buffer_store_dwordx4 {vr(CPY+4,4)}, v{vL16}, {sr(SWS,4)}, s{sT3} offen offset:1024 sc1")
        a.wait(lg=cr)
        for j in (0, 2):
            pk("add", PK+j, vr(PK+j,2), vr(PK+4+j,2)); pk("add", CS4+j, vr(CS4+j,2), vr(CS4+4+j,2))
        for j in (0, 2): pk("add", PK+j, vr(PK+j,2), vr(CS4+j,2))
        split2(CKP, PK, vT0)
        split2(CVP, PK + 1, vT1)
        for c, p in ((CF, CKP), (CFV, CVP)):
            a(f"v_mov_b32 v{c}, v{p}"); a(f"v_mov_b32 v{c+1}, v{p}")
        mfma(vr(ACCK,16), vr(MA,4), vr(CF,4), vr(ACCK,16))
        mfma(vr(ACCV,16), vr(MA,4), vr(CFV,4), vr(ACCV,16))
        split2(CQP, PK + 2, vT0)
        pump.setup(1, L)
    else:
        addr_setup()
        for c, p in ((CF, CKP), (CFV, CVP)):
            a(f"v_mov_b32 v{c}, v{p}"); a(f"v_mov_b32 v{c+1}, v{p}")
        a(f"s_lshl_b32 s{sT0}, s{sRB}, 1")
        a(f"s_add_u32 s{sT0}, s{sT0}, s{sRH}")
        a(f"s_lshl_b32 s{sT1}, s{sT0}, 13")
        a(f"s_lshl_b32 s{sT2}, s{sKH}, 8")
        a(f"s_add_u32 s{sT1}, s{sT1}, s{sT2}")
        a(f"s_add_u32 s{sT1}, s{sT1}, {ST2:#x}")
        a(f"s_lshl_b32 s{sT4}, s{sRB}, 2")
        a(f"s_add_u32 s{sT4}, s{sT4}, s{sW}")
        a(f"s_lshl_b32 s{sT4}, s{sT4}, 15")
        a(f"s_add_u32 s{sT4}, s{sT4}, {X2:#x}")
        a(f"s_add_u32 s{sT4}, s{sT4}, s{sT5}")
        a(f"v_and_b32 v{vT0}, 31, v{vL}")
        a(f"v_lshlrev_b32 v{vT0}, 3, v{vT0}")
        a(f"v_lshl_add_u32 v{vXA}, v{vHH}, 12, v{vT0}")
        a(f"s_mul_i32 s{sKB}, s{sHP}, 98304")
        a(f"s_lshl_b32 s{sT2}, s{sW}, 13")
        a(f"s_add_u32 s{sKB}, s{sKB}, s{sT2}")
        a(f"s_add_u32 s{sKB}, s{sKB}, {WQT:#x}")
        SB = T1
        def issue():
            for p in range(8): a(f"buffer_load_dwordx2 {vr(SB+2*p,2)}, v{vXA}, {sr(SWS,4)}, s{sT1} offen offset:{p*512} sc1")
        def check():
            a(f"v_max3_u32 v{vT3}, v{SB+1}, v{SB+3}, v{SB+5}")
            a(f"v_max3_u32 v{vT3}, v{vT3}, v{SB+7}, v{SB+9}")
            a(f"v_max3_u32 v{vT3}, v{vT3}, v{SB+11}, v{SB+13}")
            a(f"v_max_u32 v{vT3}, v{vT3}, v{SB+15}")
            a(f"v_cmp_eq_u32 vcc, -1, v{vT3}")
        a(f"s_mov_b32 s{sT0}, s{sT4}")
        pump.setup(1, L)
        a(f"s_mov_b32 s{sT4}, s{sT0}")
        poll(issue, check, 0x40)
        stamp("p1_flag")
        def XL(s):
            xid[s] = a(f"buffer_load_dwordx4 {vr(XF+4*s,4)}, v{vL16}, {sr(SWS,4)}, s{sSO} offen offset:{(s&3)*1024} sc1")
            if s == 15: a(f"s_xor_b32 s{sSO}, s{sT4}, 16384")
            elif s & 3 == 3 and s < 31: a(f"s_add_u32 s{sSO}, s{sSO}, 4096")
        LA = opt("LA1", 10)
        vMX = vW
        a(f"s_mov_b32 s{sSO}, s{sT4}")
        for s in range(LA): XL(s)
        a("s_barrier")
        for n in (4, 2, 1):
            for p in range(n): pk("add", SB+2*p, vr(SB+2*p,2), vr(SB+2*(p+n),2))
        a(f"v_mov_b32 v{SB+2}, v{SB}")
        a(f"v_mov_b32 v{SB+3}, v{SB+1}")
        a(f"v_permlane32_swap_b32 v{SB}, v{SB+2}")
        a(f"v_permlane32_swap_b32 v{SB+1}, v{SB+3}")
        pk("add", SB, vr(SB,2), vr(SB+2,2))
        a(f"v_mov_b32 v{MA+2}, 0"); a(f"v_mov_b32 v{MA+3}, 0")
        stats_to_frags(SB, SB + 1, RA)
        mfma(vr(RR,16), vr(RA,4), ar(ONESF,4), "0")
        go = a.newlabel("XGO"); redo = a.newlabel("XREDO")
        a(f"s_branch {go}")
        a.label(redo)
        st_vm = (a.vm, a.vm_done)
        a(f"s_mov_b32 s{sSO}, s{sT4}")
        sv = dict(xid)
        for s in range(LA): XL(s)
        xid.update(sv); a.vm, a.vm_done = st_vm
        a.label(go)
        RG(0); RG(1); RG(2)
        a(f"v_mov_b32 v{vMX}, 0")
        a(f"s_mov_b32 s{sT3}, s{sKB}")
        mfma(vr(ACCK,16), vr(MA,4), vr(CF,4), "0")
        mfma(vr(ACCV,16), vr(MA,4), vr(CFV,4), "0")
        qid = None
        for s in range(32):
            a.wait(vm=xid[s], lg=rg[s])
            b = WFR + (s % NWF) * 8
            x = vr(XF + 4 * s, 4)
            mfma(vr(ACCK,16), x, ar(b,4), vr(ACCK,16))
            if s + LA < 32: XL(s + LA)
            elif s + LA - 32 < 8:
                j = s + LA - 32
                if j == 4: a(f"s_add_u32 s{sT3}, s{sT3}, 4096")
                if j & 3 == 0: a(f"s_add_u32 m0, s{sT2}, {j*1024}")
                qid = a(f"buffer_load_dwordx4 v{vL16}, {sr(SWS,4)}, s{sT3} offen offset:{(j&3)*1024} lds")
            if s & 1: a(f"v_max3_u32 v{vMX}, v{vMX}, v{XF+4*s-4}, v{XF+4*s}")
            if s + 3 < 32: RG(s + 3)
            mfma(vr(ACCV,16), x, ar(b+4,4), vr(ACCV,16))
        verify(vMX, redo)
        stamp("p1_gemm")
        a("s_barrier")

    for q in range(8): pk("fma", ACCK+2*q, vr(ACCK+2*q,2), vr(RR+2*q,2), sr(sEPS6,2), hi=[1,1,0])
    for q in range(8): pk("mul", T1+2*q, vr(ACCK+2*q,2), sr(sL2E,2), hi=[1,0])
    for i in range(16):
        a(f"v_exp_f32_e64 v{T1+i}, v{T1+i} clamp")
        a(f"v_max_f32 v{ACCK+i}, s{sEPS6}, v{ACCK+i}")
    for q in range(8): pk("mul", ACCV+2*q, vr(ACCV+2*q,2), vr(RR+2*q,2))
    for q in range(8): pk("add", ACCK+2*q, vr(ACCK+2*q,2), vr(T1+2*q,2))
    for q in range(8):
        a(f"v_cvt_pk_bf16_f32 v{PK+q}, v{ACCK+2*q}, v{ACCK+2*q+1}")
        a(f"v_cvt_pk_bf16_f32 v{VV+q}, v{ACCV+2*q}, v{ACCV+2*q+1}")
    KVA, ZA = RR, T1
    mfma(vr(KVA,16), vr(PK,4), vr(VV,4), "0")
    mfma(vr(KVA,16), vr(PK+4,4), vr(VV+4,4), vr(KVA,16))
    a(f"v_bfe_u32 v{vT0}, v{vL}, 4, 1")
    a(f"v_cmp_ne_u32 vcc, 0, v{vT0}")
    a(f"v_lshl_add_u32 v{vT0}, v{vT0}, 1, v{vHH}")
    a(f"v_mul_u32_u24 v{vT0}, 17, v{vT0}")
    mfma(vr(ZA,16), vr(PK,4), ar(ONESF,4), "0")
    a(f"v_and_b32 v{vT1}, 15, v{vL}")
    a(f"v_add_u32 v{vT0}, v{vT0}, v{vT1}")
    a(f"v_lshlrev_b32 v{vT0}, 5, v{vT0}")
    a(f"v_add_u32 v{vT0}, s{sWA}, v{vT0}")
    mfma(vr(ZA,16), vr(PK+4,4), ar(ONESF,4), vr(ZA,16))
    a(f"s_mul_i32 s{sT0}, s{sW}, 544")
    a(f"s_lshl_b32 s{sT1}, s{sHP}, 4")
    a(f"s_add_u32 s{sT1}, s{sT1}, s{sRB}")
    a(f"s_lshl_b32 s{sT1}, s{sT1}, 2")
    a(f"s_add_u32 s{sT1}, s{sT1}, s{sW}")
    a(f"s_mul_i32 s{sT1}, s{sT1}, 640")
    a(f"s_add_u32 s{sT1}, s{sT1}, {KVP[L]:#x}")
    a(f"s_add_u32 s{sT0}, s{sT0}, {L_A + SCR}")
    a(f"v_add_u32 v{vXA}, s{sT0}, v{vL16}")
    for j in range(8): a(f"v_cndmask_b32 v{ACCK+j}, v{KVA+j}, v{KVA+8+j}, vcc")
    a(f"ds_write_b128 v{vT0}, {vr(ACCK,4)} offset:{SCR}")
    a(f"ds_write_b128 v{vT0}, {vr(ACCK+4,4)} offset:{SCR+16}")
    for j in range(8): a(f"v_cndmask_b32 v{ACCK+8+j}, v{ZA+j}, v{ZA+8+j}, vcc")
    set_exec(0x0001000100010001)
    a(f"ds_write_b128 v{vT0}, {vr(ACCK+8,4)} offset:{SCR+512}")
    a(f"ds_write_b128 v{vT0}, {vr(ACCK+12,4)} offset:{SCR+528}")
    set_exec(FULL)
    if L == 0:
        def issue(): a(f"buffer_load_dword v{vT3}, v{vT2}, {sr(SDBG,4)}, 0 offen offset:128 sc1")
        def check(): a(f"v_cmp_ne_u32 vcc, 1, v{vT3}")
        poll(issue, check, 0x10, pre=initld)
    NQ = 8; QLA = 6
    rq = {}
    def RQ(s):
        b = WFR + (s % NQ) * 4
        if L == 0:
            a(f"ds_read_b64_tr_b16 {ar(b,2)}, v{vTQ} offset:{s*1024}")
            rq[s] = a(f"ds_read_b64_tr_b16 {ar(b+2,2)}, v{vTQ} offset:{s*1024+toff}")
        else:
            rq[s] = a(f"ds_read_b128 {ar(b,4)}, v{vTQ2 if s >= 16 else vTQ} offset:{(s&15)*1024}")
    if L == 1: a.wait(vm=qid)
    a.wait_lg_all()
    a("s_barrier")
    for w in range(4): kr = a(f"ds_read_b128 {vr(RR+4*w,4)}, v{vXA} offset:{16384*w}")
    for s in range(QLA): RQ(s)
    a(f"v_mov_b32 v{CFQ}, v{CQP}"); a(f"v_mov_b32 v{CFQ+1}, v{CQP}")
    a.wait(lg=kr)
    pk("add", RR, vr(RR,2), vr(RR+4,2)); pk("add", RR+2, vr(RR+2,2), vr(RR+6,2))
    pk("add", RR+8, vr(RR+8,2), vr(RR+12,2)); pk("add", RR+10, vr(RR+10,2), vr(RR+14,2))
    pk("add", RR, vr(RR,2), vr(RR+8,2)); pk("add", RR+2, vr(RR+2,2), vr(RR+10,2))
    set_exec((1 << 40) - 1)
    a(f"buffer_store_dwordx4 {vr(RR,4)}, v{vL16}, {sr(SWS,4)}, s{sT1} offen sc1")
    set_exec(FULL)
    stamp("p1_kvpub")
    touches(L, 2)
    pump.fill(pump.c + optL("F0", L, 0, 5))
    ACCQ = ACCK
    mfma(vr(ACCQ,16), vr(CFQ,4), vr(MA,4), "0")
    if L == 0:
        a(f"s_lshl_b32 s{sT4}, s{sDT}, 7")
        dma_voff(vXA, vW, 1024, sT4)
        a(f"s_lshl_b32 s{sSO}, s{sW}, 17")
    sal = [f"s_lshl_b32 s{sT0}, s{sRB}, 2", f"s_add_u32 s{sT0}, s{sT0}, s{sW}", f"s_lshl_b32 s{sT0}, s{sT0}, 4",
           f"s_add_u32 s{sT0}, s{sT0}, s{sHP}", f"s_lshl_b32 s{sT0}, s{sT0}, 11", f"s_add_u32 s{sT1}, s{sT0}, {PQ[L]:#x}",
           f"s_lshl_b32 s{sT0}, s{sRB}, 4", f"s_add_u32 s{sT0}, s{sT0}, s{sHP}", f"s_lshl_b32 s{sT0}, s{sT0}, 7",
           f"s_add_u32 s{sT0}, s{sT0}, {FL_PQ}"]
    if L == 1: sal = sal[:6]
    for s in range(32):
        a.wait(lg=rq[s])
        b = WFR + (s % NQ) * 4
        mfma(vr(ACCQ,16), ar(b,4), vr(XF+4*s,4), vr(ACCQ,16))
        if s + QLA < 32: RQ(s + QLA)
        if L == 0 and s % 4 == 0 and s // 4 < opt("WOQ", 8):
            j = s // 4
            a(f"s_add_u32 m0, s{sWB}, {j*2048}")
            a(f"buffer_load_dwordx4 v{vXA}, {sr(SWO,4)}, s{sSO} offen lds")
            a(f"buffer_load_dwordx4 v{vW}, {sr(SWO,4)}, s{sSO} offen offset:1024 lds")
            a(f"s_add_u32 s{sSO}, s{sSO}, 16384")
        if s % 2 == 1 and sal and s >= 8: a(sal.pop(0))
        if s == opt("A1S", 22):
            a1_early(L); vm_a1 = a.vm
        if opt("QP", 0) and s >= opt("QP0", 8) and (s - opt("QP0", 8)) % opt("QPD", 4) == 0 and pump.c < opt("QP", 0):
            pump.run(pump.c + 1)
    for x in sal: a(x)
    if opt("A1FIRST", 0): a1(L, a.vm - vm_a1)
    for h in range(2):
        for q in range(4*h, 4*h+4): pk("fma", ACCQ+2*q, vr(ACCQ+2*q,2), vr(vRS,2), sr(sEPS6,2), hi=[1,0,0])
        for q in range(4*h, 4*h+4): pk("mul", T1+2*q, vr(ACCQ+2*q,2), sr(sL2E,2), hi=[1,0])
        for i in range(8*h, 8*h+8):
            a(f"v_exp_f32_e64 v{T1+i}, v{T1+i} clamp")
            a(f"v_max_f32 v{ACCQ+i}, s{sEPS6}, v{ACCQ+i}")
        for q in range(4*h, 4*h+4): pk("add", ACCQ+2*q, vr(ACCQ+2*q,2), vr(T1+2*q,2))
        for q in range(4*h, 4*h+4): a(f"v_cvt_pk_bf16_f32 v{PK+q}, v{ACCQ+2*q}, v{ACCQ+2*q+1}")
        sid = a(f"buffer_store_dwordx4 {vr(PK+4*h,4)}, v{vL16}, {sr(SWS,4)}, s{sT1} offen offset:{1024*h} sc1")
    stamp("p1_q")
    if L == 0:
        for j in range(opt("WOQ", 8), 8):
            a(f"s_add_u32 m0, s{sWB}, {j*2048}")
            a(f"buffer_load_dwordx4 v{vXA}, {sr(SWO,4)}, s{sSO} offen lds")
            wo_last = a(f"buffer_load_dwordx4 v{vW}, {sr(SWO,4)}, s{sSO} offen offset:1024 lds")
            a(f"s_add_u32 s{sSO}, s{sSO}, 16384")
    if not opt("A1FIRST", 0): a1(L, a.vm - vm_a1)
    pump.fill(pump.c + optL("F1", L, 6, 5))
    touches(L, 3)
    if L == 0: publish_flag(sid)
    stamp(f"p1_{L}")

A1B = 128
def a1_issue():
    a(f"s_mov_b32 s{sSO}, s{sKB}")
    for p in range(16):
        a(f"buffer_load_dwordx4 {vr(A1B+4*p,4)}, v{vL16}, {sr(SWS,4)}, s{sSO} offen offset:{(p&1)*2560} sc1")
        if p & 1 and p < 15: a(f"s_add_u32 s{sSO}, s{sSO}, {2*2560}")
def a1_early(L):
    skip = a.newlabel("NOA1E")
    a(f"s_cmp_ge_u32 s{sRED}, 64")
    a(f"s_cbranch_scc1 {skip}")
    with cond():
        a(f"s_lshr_b32 s{sKB}, s{sRED}, 2")
        a(f"s_mul_i32 s{sKB}, s{sKB}, {16*2560}")
        a(f"s_and_b32 s{sT2}, s{sRED}, 3")
        a(f"s_mul_i32 s{sT2}, s{sT2}, 640")
        a(f"s_add_u32 s{sKB}, s{sKB}, s{sT2}")
        a(f"s_add_u32 s{sKB}, s{sKB}, {KVP[L]:#x}")
        a(f"s_mov_b32 s{sT3}, s{sSO}")
        set_exec((1 << 34) - 1)
        a1_issue()
        set_exec(FULL)
        a(f"s_mov_b32 s{sSO}, s{sT3}")
    a.label(skip)
def a1(L, younger):
    a.c("======== A1 reducer")
    skip = a.newlabel("NOA1")
    a(f"s_cmp_ge_u32 s{sRED}, 64")
    a(f"s_cbranch_scc1 {skip}")
    with cond():
        B = A1B
        a(f"s_mul_i32 s{sT2}, s{sRED}, 384")
        a(f"s_add_u32 s{sT2}, s{sT2}, {KVF[L]:#x}")
        a(f"v_lshlrev_b32 v{vT2}, 3, v{vL}")
        set_exec((1 << 34) - 1)
        def check():
            a(f"v_max3_u32 v{vT3}, v{B}, v{B+4}, v{B+8}")
            for p in range(3, 15, 2): a(f"v_max3_u32 v{vT3}, v{vT3}, v{B+4*p}, v{B+4*p+4}")
            a(f"v_max_u32 v{vT3}, v{vT3}, v{B+60}")
            a(f"v_cmp_eq_u32 vcc, -1, v{vT3}")
        a.vm_done = min(a.vm_done, a.vm - younger - 1)
        poll(a1_issue, check, 0x20, pre=a.vm - younger - 1)
        n = 16
        while n > 1:
            n //= 2
            for p in range(n):
                for j in (0, 2): pk("add", B+4*p+j, vr(B+4*p+j,2), vr(B+4*(p+n)+j,2))
        a(f"v_cvt_pk_bf16_f32 v{B+4}, v{B}, v{B+1}")
        a(f"v_cvt_pk_bf16_f32 v{B+5}, v{B+2}, v{B+3}")
        a(f"v_mov_b32_dpp v{B+6}, v{B+4} quad_perm:[1,1,3,3] row_mask:0xf bank_mask:0xf")
        a(f"v_mov_b32_dpp v{B+7}, v{B+5} quad_perm:[1,1,3,3] row_mask:0xf bank_mask:0xf")
        set_exec(0x555555555555)
        a(f"buffer_store_dwordx4 {vr(B+4,4)}, v{vT2}, {sr(SWS,4)}, s{sT2} offen sc1")
        set_exec(FULL)
    a.label(skip)
    stamp("a1")

def row_stats_publish(soff, SM):
    a(f"v_dot2_f32_bf16 v{SM}, v{XR}, s{sONES}, 0")
    a(f"v_dot2_f32_bf16 v{SM+1}, v{XR}, v{XR}, 0")
    a(f"v_dot2_f32_bf16 v{SM+2}, v{XR+1}, s{sONES}, 0")
    a(f"v_dot2_f32_bf16 v{SM+3}, v{XR+1}, v{XR+1}, 0")
    for j in range(2, 8):
        o = 2 * (j & 1)
        a(f"v_dot2_f32_bf16 v{SM+o}, v{XR+j}, s{sONES}, v{SM+o}")
        a(f"v_dot2_f32_bf16 v{SM+o+1}, v{XR+j}, v{XR+j}, v{SM+o+1}")
    a(f"v_lshlrev_b32 v{vT0}, 3, v{vL}")
    pk("add", SM, vr(SM,2), vr(SM+2,2))
    a(f"v_mov_b32 v{SM+2}, v{SM}")
    a(f"v_mov_b32 v{SM+3}, v{SM+1}")
    a(f"v_permlane32_swap_b32 v{SM}, v{SM+2}")
    a(f"v_permlane32_swap_b32 v{SM+1}, v{SM+3}")
    pk("add", SM, vr(SM,2), vr(SM+2,2))
    a(f"v_and_b32 v{SM+1}, 0x7fffffff, v{SM+1}")
    set_exec((1 << 32) - 1)
    i = a(f"buffer_store_dwordx2 {vr(SM,2)}, v{vT0}, {sr(SWS,4)}, s{soff} offen sc1")
    set_exec(FULL)
    return i

def stat_slot(dst, base):
    a(f"s_lshl_b32 s{dst}, s{sST}, 3")
    a(f"s_add_u32 s{dst}, s{dst}, s{sDT}")
    a(f"s_lshl_b32 s{dst}, s{dst}, 1")
    a(f"s_add_u32 s{dst}, s{dst}, s{sKH}")
    a(f"s_lshl_b32 s{dst}, s{dst}, 1")
    a(f"s_add_u32 s{dst}, s{dst}, s{sRH}")
    a(f"s_lshl_b32 s{dst}, s{dst}, 8")
    a(f"s_add_u32 s{dst}, s{dst}, {base:#x}")

def unpack_xr(XU):
    for j in range(8):
        a(f"v_lshlrev_b32 v{XU+2*j}, 16, v{XR+j}")
        a(f"v_and_b32 v{XU+2*j+1}, 0xffff0000, v{XR+j}")

def p2(L):
    a.c(f"======== P2 layer {L}")
    KF, QF = 128, 192
    ACC = 32; CR = 64; OF = 96; WF = 104; XU = 64
    a(f"s_lshl_b32 s{sT3}, s{sST}, 1")
    a(f"s_add_u32 s{sT3}, s{sT3}, s{sRH}")
    a(f"s_lshl_b32 s{sT3}, s{sT3}, 1")
    a(f"s_add_u32 s{sT3}, s{sT3}, s{sKH}")
    a(f"s_lshl_b32 s{sT3}, s{sT3}, 14")
    a(f"s_add_u32 s{sT3}, s{sT3}, {PQ[L]:#x}")
    tr_base(vTA, vTB, sKH, L_B)
    a(f"s_lshl_b32 s{sT2}, s{sKH}, 15")
    a(f"v_add_u32 v{vTA}, s{sT2}, v{vTA}")
    a(f"v_add_u32 v{vTB}, s{sT2}, v{vTB}")
    if L == 0:
        for q in range(2):
            a(f"v_permlane32_swap_b32 v{XR+4*q}, v{XR+4*q+2}")
            a(f"v_permlane32_swap_b32 v{XR+4*q+1}, v{XR+4*q+3}")
        a(f"v_lshlrev_b32 v{vB2}, 16, v{vB2}")
    vK, vKC, vMX = MA, MA + 1, MA + 2
    a(f"s_mul_i32 s{sT1}, s{sKH}, {16*768}")
    a(f"s_add_u32 s{sT1}, s{sT1}, {KVF[L]:#x}")
    a(f"v_and_b32 v{vT0}, 31, v{vL}")
    a(f"v_mul_u32_u24 v{vKC}, 384, v{vT0}")
    a(f"v_min_u32 v{vT0}, 16, v{vT0}")
    a(f"v_lshlrev_b32 v{vT0}, 4, v{vT0}")
    a(f"v_mul_u32_u24 v{vT1}, 384, v{vHH}")
    a(f"v_add_u32 v{vK}, v{vT0}, v{vT1}")
    a(f"v_and_b32 v{vT2}, 7, v{vL}")
    if L == 0:
        a(f"s_lshr_b32 s{sT0}, s{sST}, 1")
        a(f"s_lshl_b32 s{sT0}, s{sT0}, 1")
        a(f"s_add_u32 s{sT0}, s{sT0}, s{sKH}")
        a(f"s_lshl_b32 s{sT0}, s{sT0}, 10")
        a(f"s_add_u32 s{sT0}, s{sT0}, {FL_PQ}")
        a(f"v_lshlrev_b32 v{vT2}, 7, v{vT2}")
    else:
        a(f"s_add_u32 s{sT0}, s{sT3}, 2044")
        a(f"v_lshlrev_b32 v{vT2}, 11, v{vT2}")
    pump.run(min(R1 + 5, optL("B1", L, 6, 21)), refill=bool(optL("B1R", L, 1, 0)))
    stamp("beta")
    def issue(): a(f"buffer_load_dword v{vT3}, v{vT2}, {sr(SWS,4)}, s{sT0} offen sc1")
    def check(): a(f"v_cmp_eq_u32 vcc, -1, v{vT3}")
    poll(issue, check, 0x36 + L)
    stamp("p2_pqc")
    def ldq():
        a(f"s_mov_b32 s{sT4}, s{sT3}")
        for j in range(16):
            a(f"buffer_load_dwordx4 {vr(QF+4*j,4)}, v{vL16}, {sr(SWS,4)}, s{sT4} offen offset:{(j&3)*1024} sc1")
            if j & 3 == 3 and j < 15: a(f"s_add_u32 s{sT4}, s{sT4}, 4096")
    ldq()
    pump.run(min(R1 + 5, pump.i), refill=False)
    pump.fill(pump.c + optL("FK", L, 0, 0))
    a.wait_lg_all()
    a("s_barrier")
    rw = {}
    def RW(j):
        b = WF + (j % 3) * 8
        a(f"ds_read_b64_tr_b16 {vr(b,2)}, v{vTA} offset:{j*2048}")
        a(f"ds_read_b64_tr_b16 {vr(b+2,2)}, v{vTA} offset:{j*2048+1024}")
        a(f"ds_read_b64_tr_b16 {vr(b+4,2)}, v{vTB} offset:{j*2048}")
        rw[j] = a(f"ds_read_b64_tr_b16 {vr(b+6,2)}, v{vTB} offset:{j*2048+1024}")
    def issue(): a(f"buffer_load_dword v{vT3}, v{vKC}, {sr(SWS,4)}, s{sT1} offen offset:256 sc1")
    poll(issue, check, 0x38 + L)
    stamp("p2_kvc")
    redo = a.newlabel("P2REDO"); go = a.newlabel("P2GO")
    a(f"s_branch {go}")
    a.label(redo)
    with cond():
        ldq()
        a("s_waitcnt vmcnt(0)")
    a.label(go)
    lid = {}
    def LD(j):
        if j == 0: a(f"s_mov_b32 s{sSO}, s{sT1}")
        elif j & 3 == 0: a(f"s_add_u32 s{sSO}, s{sSO}, {4*768}")
        lid[j] = a(f"buffer_load_dwordx4 {vr(KF+4*j,4)}, v{vK}, {sr(SWS,4)}, s{sSO} offen offset:{(j&3)*768} sc1")
    PLA = opt("PLA", 10)
    for j in range(PLA): LD(j)
    RW(0); RW(1)
    unpack_xr(ACC)
    a(f"v_mov_b32 v{vMX}, 0")
    def M1(j):
        a.wait(vm=lid[j])
        mfma(vr(CR+(j&1)*16,16), vr(KF+4*j,4), vr(QF+4*j,4), "0")
        a(f"v_max3_u32 v{vMX}, v{vMX}, v{KF+4*j}, v{QF+4*j}")
        if j + PLA < 16: LD(j + PLA)
    def Va(j):
        c = CR + (j & 1) * 16
        a(f"v_add_f32 v{c+8}, s{sEPS6}, v{c+8}")
        a(f"v_rcp_f32 v{c+8}, v{c+8}")
    def Vb(j):
        c = CR + (j & 1) * 16; o = OF + (j & 1) * 4
        for i in range(4): a(f"v_mul_f32 v{c+i}, v{c+i}, v{c+8}")
        for i in range(2): a(f"v_cvt_pk_bf16_f32 v{o+i}, v{c+2*i}, v{c+2*i+1}")
    def Vc(j):
        c = CR + (j & 1) * 16; o = OF + (j & 1) * 4
        for i in range(4, 8): a(f"v_mul_f32 v{c+i}, v{c+i}, v{c+8}")
        for i in range(2, 4): a(f"v_cvt_pk_bf16_f32 v{o+i}, v{c+2*i}, v{c+2*i+1}")
    M1(0); M1(1)
    Va(0); Vb(0); Vc(0); M1(2)
    for j in range(16):
        o = OF + (j & 1) * 4; b = WF + (j % 3) * 8
        if j + 1 < 16: Va(j + 1)
        a.wait(lg=rw[j])
        mfma(vr(ACC,16), vr(b,4), vr(o,4), vr(ACC,16))
        if j + 1 < 16: Vb(j + 1)
        mfma(vr(ACC+16,16), vr(b+4,4), vr(o,4), "0" if j == 0 else vr(ACC+16,16))
        if j + 1 < 16: Vc(j + 1)
        if j + 3 < 16: M1(j + 3)
        if j + 2 < 16: RW(j + 2)
    verify(vMX, redo)
    stamp("p2_main")
    touches(L, 4)
    pump.fill(pump.c + optL("FP2", L, 6, 6))
    a(f"s_xor_b32 s{sT0}, s{sW}, 1")
    a(f"s_lshl_b32 s{sT0}, s{sT0}, 12")
    a(f"v_add_u32 v{vT0}, s{sT0}, v{vL16}")
    a(f"s_lshl_b32 s{sT0}, s{sW}, 12")
    a(f"v_add_u32 v{vT1}, s{sT0}, v{vL16}")
    stat_slot(sT1, ST[L])
    for q in range(4): a(f"ds_write_b128 v{vT0}, {vr(ACC+16+4*q,4)} offset:{q*1024}")
    a.wait_lg_all()
    a("s_barrier")
    ids = [a(f"ds_read_b128 {vr(ACC+16+4*q,4)}, v{vT1} offset:{q*1024}") for q in range(4)]
    for q in range(4):
        a.wait(lg=ids[q])
        pk("add", ACC+4*q, vr(ACC+4*q,2), vr(ACC+16+4*q,2))
        pk("add", ACC+4*q+2, vr(ACC+4*q+2,2), vr(ACC+16+4*q+2,2))
        a(f"v_cvt_pk_bf16_f32 v{XR+2*q}, v{ACC+4*q}, v{ACC+4*q+1}")
        a(f"v_cvt_pk_bf16_f32 v{XR+2*q+1}, v{ACC+4*q+2}, v{ACC+4*q+3}")
    row_stats_publish(sT1, OF)
    stamp("p2_stpub")
    unpack_xr(XU)
    IDF = 104
    a(f"v_and_b32 v{vT0}, 31, v{vL}")
    a(f"v_lshlrev_b32 v{vT1}, 2, v{vHH}")
    a(f"v_sub_u32 v{vT0}, v{vT0}, v{vT1}")
    a(f"v_mov_b32 v{vT3}, 0x3f80")
    for f in range(2):
        for c in range(4):
            base = 16 * f + ((2 * c) & 3) + 8 * (c >> 1)
            a(f"v_subrev_u32 v{vT1}, {base}, v{vT0}")
            a(f"v_cmp_gt_u32 vcc, 2, v{vT1}")
            a(f"v_lshlrev_b32 v{vT1}, 4, v{vT1}")
            a(f"v_lshlrev_b32 v{vT2}, v{vT1}, v{vT3}")
            a(f"v_cndmask_b32 v{IDF+4*f+c}, 0, v{vT2}, vcc")
    pump.run(pump.i, refill=False)
    pump.run(optL("G1", L, 0, 0), refill=False)
    pump.fill(pump.c + optL("GF", L, 3, 0))
    SB = 128
    a(f"v_and_b32 v{vT0}, 31, v{vL}")
    a(f"v_lshlrev_b32 v{vT0}, 3, v{vT0}")
    a(f"v_lshl_add_u32 v{vT2}, v{vHH}, 12, v{vT0}")
    a(f"s_lshl_b32 s{sT1}, s{sST}, 13")
    a(f"s_lshl_b32 s{sT2}, s{sRH}, 8")
    a(f"s_add_u32 s{sT1}, s{sT1}, s{sT2}")
    a(f"s_add_u32 s{sT1}, s{sT1}, {ST[L]:#x}")
    ht_addr(sT3, L)
    a(f"v_mov_b32 v{SB+16}, {fl(1.0+1e-5)}")
    pass
    def issue():
        for p in range(8): a(f"buffer_load_dwordx2 {vr(SB+2*p,2)}, v{vT2}, {sr(SWS,4)}, s{sT1} offen offset:{p*512} sc1")
    def check():
        a(f"v_max3_u32 v{vT3}, v{SB+1}, v{SB+3}, v{SB+5}")
        a(f"v_max3_u32 v{vT3}, v{vT3}, v{SB+7}, v{SB+9}")
        a(f"v_max3_u32 v{vT3}, v{vT3}, v{SB+11}, v{SB+13}")
        a(f"v_max_u32 v{vT3}, v{vT3}, v{SB+15}")
        a(f"v_cmp_eq_u32 vcc, -1, v{vT3}")
    poll(issue, check, 0x34 + L)
    stamp("p2_stats")
    pump.run(pump.i, refill=False)
    pump.fill(pump.c + optL("SF", L, 6, 5))
    for n in (4, 2, 1):
        for p in range(n): pk("add", SB+2*p, vr(SB+2*p,2), vr(SB+2*(p+n),2))
    a(f"v_mov_b32 v{SB+2}, v{SB}")
    a(f"v_mov_b32 v{SB+3}, v{SB+1}")
    a(f"v_permlane32_swap_b32 v{SB}, v{SB+2}")
    a(f"v_permlane32_swap_b32 v{SB+1}, v{SB+3}")
    pk("add", SB, vr(SB,2), vr(SB+2,2))
    a(f"v_mul_f32 v{SB}, {fl(-1/512)}, v{SB}")
    a(f"v_mul_f32 v{SB+1}, {fl(1/512)}, v{SB+1}")
    a(f"v_fma_f32 v{SB+1}, -v{SB}, v{SB}, v{SB+1}")
    a(f"v_max_f32 v{SB+1}, 0, v{SB+1}")
    a(f"v_fmaak_f32 v{SB+1}, v{SB+1}, v{SB+16}, {fl(1e-10)}")
    a(f"v_rsq_f32 v{SB+2}, v{SB+1}")
    a(f"v_mul_f32 v{SB}, v{SB}, v{SB+2}")
    HP_ = 112
    for f in range(2):
        for j in range(4*f, 4*f+4):
            pk("fma", XU+2*j, vr(XU+2*j,2), vr(SB+2,2), vr(SB,2), hi=[1,0,0])
        for j in range(4*f, 4*f+4):
            a(f"v_cvt_pk_bf16_f32 v{HP_+j}, v{XU+2*j}, v{XU+2*j+1}")
        mfma(vr(ACC,16), vr(HP_+4*f,4), vr(IDF+4*f,4), "0" if f == 0 else vr(ACC,16))
    for f in range(2):
        for j in range(4): a(f"v_cvt_pk_bf16_f32 v{ACC+16+4*f+j}, v{ACC+8*f+2*j}, v{ACC+8*f+2*j+1}")
        sid = a(f"buffer_store_dwordx4 {vr(ACC+16+4*f,4)}, v{vL16}, {sr(SWS,4)}, s{sT3} offen offset:{2048*f} sc1")
    touches(L, 5)
    stamp(f"p2_{L}")

ACC = 32; RING = 96; AUX = 144
NT = ' nt' if opt('NT', 0) else ''
def stream(kind, nks, srot, code, tail=None):
    NR = opt("NR", 6)
    vA, vB, vMX, vC = vTA, vTB, MA, MA + 1
    a(f"s_lshl_b32 s{sT0}, s{sKH}, 10")
    a(f"v_add_u32 v{vA}, s{sT0}, v{vL16}")
    a(f"v_xor_b32 v{vB}, 1024, v{vA}")
    a(f"v_add_u32 v{vA}, s{sT1}, v{vA}")
    a(f"v_add_u32 v{vB}, s{sT1}, v{vB}")
    a(f"v_min_u32 v{vT0}, {nks-1}, v{vL}")
    a(f"v_lshrrev_b32 v{vT1}, 1, v{vT0}")
    a(f"v_and_b32 v{vT0}, 1, v{vT0}")
    a(f"v_lshlrev_b32 v{vT0}, 10, v{vT0}")
    a(f"v_lshl_add_u32 v{vC}, v{vT1}, 12, v{vT0}")
    a(f"v_add_u32 v{vC}, s{sT1}, v{vC}")
    ids = {}
    def LDa(s):
        b = RING + (s % NR) * 8
        if s & 1 == 0 and s > 0:
            a(f"s_add_u32 s{sSO}, s{sSO}, 4096")
            if opt("ROTW", 1):
                a(f"s_cmp_eq_u32 s{sSO}, {nks*2048}")
                a(f"s_cselect_b32 s{sSO}, 0, s{sSO}")
        a(f"buffer_load_dwordx4 {vr(b,4)}, v{vA}, {sr(SWS,4)}, s{sSO} offen offset:{(s&1)*2048} sc1{NT}")
    def LDb(s):
        b = RING + (s % NR) * 8
        ids[s] = a(f"buffer_load_dwordx4 {vr(b+4,4)}, v{vB}, {sr(SWS,4)}, s{sSO} offen offset:{(s&1)*2048} sc1{NT}")
    def run(after_poll=None):
        redo = a.newlabel("SREDO")
        def issue(): a(f"buffer_load_dword v{vT3}, v{vC}, {sr(SWS,4)}, 0 offen offset:{2048+1020} sc1")
        def check(): a(f"v_cmp_eq_u32 vcc, -1, v{vT3}")
        poll(issue, check, code)
        stamp("canary")
        if after_poll: after_poll()
        a(f"s_mov_b32 s{sKB}, s{sWOFF}")
        a.label(redo)
        a(f"s_mov_b32 s{sWOFF}, s{sKB}")
        a(f"s_lshl_b32 s{sSO}, s{srot}, 11")
        LK = NR - 1 if opt("SINT", 1) else NR
        for s in range(LK): LDa(s); LDb(s)
        a(f"v_mov_b32 v{vMX}, 0")
        for s in range(nks):
            a.wait(vm=ids[s])
            b = RING + (s % NR) * 8
            for acc in range(4):
                wf = wreg(kind, s, 4 * (acc >> 1), 4); af = vr(b + 4 * (acc & 1), 4)
                c = "0" if s == 0 else vr(ACC + 16 * acc, 16)
                A_, B_ = (wf, af) if kind == 1 else (af, wf)
                mfma(vr(ACC+16*acc,16), A_, B_, c)
                if opt("SINT", 1):
                    if acc == 0 and s + LK < nks: LDa(s + LK)
                    if acc == opt("SINTB", 1) and s + LK < nks: LDb(s + LK)
                    if acc == 2: a(f"v_max3_u32 v{vMX}, v{vMX}, v{b}, v{b+4}")
                    if tail and s + LK >= nks and acc < 3: tail(s + LK - nks, acc)
                elif acc == 0: a(f"v_max3_u32 v{vMX}, v{vMX}, v{b}, v{b+4}")
            if not opt("SINT", 1) and s + LK < nks: LDa(s + LK); LDb(s + LK)
        verify(vMX, redo)
    return run

def reduce4():
    for acc in (1, 2):
        a(f"s_xor_b32 s{sT0}, s{sW}, {acc}")
        a(f"s_lshl_b32 s{sT0}, s{sT0}, 13")
        a(f"v_add_u32 v{vT0+acc-1}, s{sT0}, v{vL16}")
    a(f"s_xor_b32 s{sT0}, s{sW}, 3")
    a(f"s_lshl_b32 s{sT0}, s{sT0}, 14")
    a(f"v_add_u32 v{vT2}, s{sT0}, v{vL16}")
    for acc in (1, 2, 3):
        o = (0, 4096, L_A + SCR)[acc - 1]
        for q in range(4): a(f"ds_write_b128 v{vT0+acc-1}, {vr(ACC+16*acc+4*q,4)} offset:{o+q*1024}")
    a(f"s_lshl_b32 s{sT0}, s{sW}, 13")
    a(f"v_add_u32 v{vT3}, s{sT0}, v{vL16}")
    a(f"v_add_u32 v{vT2}, s{sWA}, v{vL16}")
    def sync_and_read():
        a.wait_lg_all()
        a("s_barrier")
        ids = {}
        for q in range(4):
            a(f"ds_read_b128 {vr(RING+4*q,4)}, v{vT3} offset:{q*1024}")
            ids[(q, 1)] = a(f"ds_read_b128 {vr(RING+16+4*q,4)}, v{vT3} offset:{4096+q*1024}")
            ids[(q, 2)] = a(f"ds_read_b128 {vr(RING+32+4*q,4)}, v{vT2} offset:{SCR+q*1024}")
        def add(q):
            a.wait(lg=ids[(q, 1)])
            for j in (0, 2): pk("add", RING+4*q+j, vr(RING+4*q+j,2), vr(RING+16+4*q+j,2))
            a.wait(lg=ids[(q, 2)])
            for j in (0, 2): pk("add", ACC+4*q+j, vr(ACC+4*q+j,2), vr(RING+32+4*q+j,2))
            for j in (0, 2): pk("add", ACC+4*q+j, vr(ACC+4*q+j,2), vr(RING+4*q+j,2))
        return add
    return sync_and_read

def p3(L):
    a.c(f"======== P3 layer {L}")
    B1R = AUX
    a(f"s_lshl_b32 s{sT0}, s{sFT}, 1")
    a(f"s_add_u32 s{sT0}, s{sT0}, s{sRH}")
    a(f"s_lshl_b32 s{sT0}, s{sT0}, 6")
    a(f"v_lshlrev_b32 v{vT0}, 3, v{vHH}")
    for q in range(4): a(f"buffer_load_dwordx2 {vr(RING+2*q,2)}, v{vT0}, {sr(SB1,4)}, s{sT0} offen offset:{16*q}")
    if L == 0:
        for i in range(4): a(f"v_mov_b32 v{ACC+i}, -1")
        poison_tiles(ACC, 1)
    pump.run(32)
    a.wait_lg_all()
    pump.setup(2, L)
    pump.run(optL("V2", L, 0, 0), refill=False)
    pump.fill(pump.c + optL("V2F", L, 0, 0))
    assert pump.c <= NV2
    a("s_barrier")
    stamp("p3_delta")
    idle = a.newlabel("P3IDLE"); join = a.newlabel("P3JOIN")
    pst = (pump.i, pump.c, dict(pump.vid), dict(pump.lid))
    npre = optL("CPRE", L, 0, 0)
    a(f"s_cmp_eq_u32 s{sP3}, 7")
    a(f"s_cbranch_scc1 {idle}")
    with cond():
        a(f"s_lshl_b32 s{sT1}, s{sDT3}, 2")
        a(f"s_add_u32 s{sT1}, s{sT1}, s{sW}")
        a(f"s_lshl_b32 s{sT1}, s{sT1}, 16")
        a(f"s_add_u32 s{sT1}, s{sT1}, {HT[L]:#x}")
        ntail = optL("V2T", L, 5, 5)
        def tl(k, acc):
            if acc == 0 and k < ntail: pump.fill(pump.i + 1)
        run = stream(1, 32, sROT1, 0x50 + L, tail=tl)
        def ap():
            for j in range(8):
                a(f"v_lshlrev_b32 v{B1R+2*j}, 16, v{RING+j}")
                a(f"v_and_b32 v{B1R+2*j+1}, 0xffff0000, v{RING+j}")
        run(ap)
        stamp("gemm")
        if npre: pump.run(pump.c + npre)
        sync = reduce4()
        u_addr(sT1, L)
        K1 = -2.0 * 0.7978845608028654 * LOG2E
        a(f"s_mov_b32 s{sT2}, {fl(K1*0.044715)}")
        a(f"v_mov_b32 v{vT0}, {fl(K1)}")
        for q in range(8): pk("add", ACC+2*q, vr(ACC+2*q,2), vr(B1R+2*q,2))
        add = sync()
        T = ACC + 16; PKD = ACC + 32
        for h in range(2):
            add(2 * h); add(2 * h + 1)
            R4 = range(4 * h, 4 * h + 4); R8 = range(8 * h, 8 * h + 8)
            for q in R4: pk("mul", T+2*q, vr(ACC+2*q,2), vr(ACC+2*q,2))
            for q in R4: pk("fma", T+2*q, vr(T+2*q,2), sr(sT2,2), vr(vT0,2), hi=[1,0,0])
            for q in R4: pk("mul", T+2*q, vr(T+2*q,2), vr(ACC+2*q,2))
            for i in R8: a(f"v_exp_f32 v{T+i}, v{T+i}")
            for q in R4: pk("add", T+2*q, vr(T+2*q,2), "1.0", hi=[1,0])
            for i in R8: a(f"v_rcp_f32 v{T+i}, v{T+i}")
            for q in R4: pk("mul", ACC+2*q, vr(ACC+2*q,2), vr(T+2*q,2))
            for q in R4: a(f"v_cvt_pk_bf16_f32 v{PKD+q}, v{ACC+2*q}, v{ACC+2*q+1}")
            a(f"buffer_store_dwordx4 {vr(PKD+4*h,4)}, v{vL16}, {sr(SWS,4)}, s{sT1} offen offset:{2048*h} sc1")
        a(f"s_branch {join}")
    a.label(idle)
    pump.i, pump.c, pump.vid, pump.lid = pst
    if opt("IDT", 0):
        a(f"v_lshrrev_b32 v{vT0}, 2, v{vL}")
        a(f"v_lshlrev_b32 v{vT0}, 12, v{vT0}")
        a(f"v_and_b32 v{vT1}, 3, v{vL}")
        a(f"v_lshl_add_u32 v{vT0}, v{vT1}, 7, v{vT0}")
        a(f"s_lshr_b32 s{sT0}, s{sWI}, 2")
        a(f"s_and_b32 s{sT0}, s{sT0}, 3")
        a(f"s_mul_i32 s{sT0}, s{sT0}, 28")
        a(f"s_add_u32 s{sT0}, s{sT0}, s{sW}")
        a(f"s_lshl_b32 s{sT0}, s{sT0}, 16")
        a(f"s_and_b32 s{sT1}, s{sB}, 7")
        a(f"s_lshl_b32 s{sT1}, s{sT1}, 9")
        a(f"s_add_u32 s{sT0}, s{sT0}, s{sT1}")
        k0 = (pump.i // 4)
        if k0: a(f"s_add_u32 s{sT0}, s{sT0}, {k0*4*65536}")
        for k in range(k0, 7):
            a(f"buffer_load_dword v31, v{vT0}, {sr(SW2,4)}, s{sT0} offen")
            if k < 6: a(f"s_add_u32 s{sT0}, s{sT0}, {4*65536}")
    pump.fill(pump.i + ntail)
    if npre: pump.run(pump.c + npre)
    a.label(join)
    stamp(f"p3_{L}")

def p4(L):
    a.c(f"======== P4 layer {L}")
    pump.run(28)
    stamp("p4_w2")
    a(f"s_lshl_b32 s{sT1}, s{sDT}, 2")
    a(f"s_add_u32 s{sT1}, s{sT1}, s{sW}")
    a(f"s_mul_i32 s{sT1}, s{sT1}, {28*2048}")
    a(f"s_add_u32 s{sT1}, s{sT1}, {U[L]:#x}")
    NKT = opt("NKT", 12)
    def kvdma(j):
        if j == 0:
            a(f"s_mul_i32 s{sT3}, s{sHP}, 98304")
            a(f"s_add_u32 s{sT3}, s{sT3}, s{sWA}")
            a(f"s_add_u32 s{sT3}, s{sT3}, {WQT:#x}")
        if j & 3 == 0:
            a(f"s_add_u32 m0, s{sWA}, {j*1024}")
            if j: a(f"s_add_u32 s{sT3}, s{sT3}, 4096")
        a(f"buffer_load_dwordx4 v{vL16}, {sr(SWS,4)}, s{sT3} offen offset:{(j&3)*1024} lds")
    def tl(k, acc):
        j = 3 * k + acc
        if j < NKT: kvdma(j)
    run = stream(2, 28, sROT2, 0x60 + L, tail=tl if L == 0 else None)
    XU = AUX
    unpack_xr(XU)
    for q in range(8): pk("add", XU+2*q, vr(XU+2*q,2), vr(vB2-1,2), lo=[0,1], hi=[1,1])
    a.wait_lg_all()
    a("s_barrier")
    run()
    stamp("gemm")
    sync = reduce4()
    for q in range(8): pk("add", ACC+2*q, vr(ACC+2*q,2), vr(XU+2*q,2))
    if L == 0:
        x2_addr(sT1)
        stat_slot(sT2, ST2)
    add = sync()
    for h in range(2):
        add(2 * h); add(2 * h + 1)
        for q in range(4 * h, 4 * h + 4): a(f"v_cvt_pk_bf16_f32 v{XR+q}, v{ACC+2*q}, v{ACC+2*q+1}")
        if L == 0:
            a(f"buffer_store_dwordx4 {vr(XR+4*h,4)}, v{vL16}, {sr(SWS,4)}, s{sT1} offen offset:{1024*h} sc1")
        else:
            a(f"v_permlane32_swap_b32 v{XR+4*h}, v{XR+4*h+2}")
            a(f"v_permlane32_swap_b32 v{XR+4*h+1}, v{XR+4*h+3}")
            a(f"buffer_store_dwordx4 {vr(XR+4*h,4)}, v{vOUT}, {sr(SOUT,4)}, 0 offen offset:{32*h}")
    if L == 0:
        row_stats_publish(sT2, ACC + 16)
        pass
        for j in range(NKT, 16): kvdma(j)
    stamp(f"p4_{L}")

prologue()
for L in range(2):
    p1(L); p2(L); p3(L); p4(L)
finish()
a.label("L_EXIT")
a("s_endpgm")
a.label("L_END")

hdr = open(f"cdna_kernels/{NAME}.s.ref").read().split("; Override launch")[0]
out = hdr + f"""; @launch grid=(256,1,1) block=(256,1,1) lds={LDS_BYTES}
.amdgcn_target "amdgcn-amd-amdhsa--gfx950"
.text
.globl {NAME}_kernel
.p2align 8
.type {NAME}_kernel,@function
{NAME}_kernel:
""" + a.text() + f""".section .rodata,"a"
.p2align 6
.amdhsa_kernel {NAME}_kernel
  .amdhsa_next_free_vgpr 512
  .amdhsa_next_free_sgpr 102
  .amdhsa_accum_offset 256
  .amdhsa_group_segment_fixed_size 0
  .amdhsa_kernarg_size 88
  .amdhsa_user_sgpr_count 2
  .amdhsa_user_sgpr_kernarg_segment_ptr 1
  .amdhsa_system_sgpr_workgroup_id_x 1
  .amdhsa_float_denorm_mode_32 3
.end_amdhsa_kernel
"""
outp = [x for x in sys.argv[1:] if x.endswith(".s")]
open(outp[0], "w").write(out)
if DIAG: open(outp[0] + ".stamps", "w").write("\n".join(stamp_names))
```

```python
import sys, struct
from contextlib import contextmanager
from asmlib import Asm, vr, ar, sr

NAME = "interleave_layers__linear_attn_block__mixer_token_mlp__prompt"
DIAG = "--diag" in sys.argv
OPT = {}
for a_ in sys.argv:
    if a_.startswith("-D"):
        k_, v_ = a_[2:].split("="); OPT[k_] = int(v_)
def opt(k, d): return OPT.get(k, d)
def optL(k, L, d0, d1): return OPT.get(f"{k}_{L}", (d0, d1)[L])
def f2u(x): return struct.unpack("<I", struct.pack("<f", x))[0]
def fl(x): return "0x%08x" % f2u(x)
FULL = (1 << 64) - 1
LOG2E = 1.4426950408889634

KVF = [0x2000, 0xC0000]; KVP = [0x8000, 0xC6000]; ST = [0x166000, 0x1A6000]; ST2 = 0x1E6000
SELFP = 0xC0000
PQ = [0x400000, 0x600000]; HT = [0x800000, 0xA00000]; U = [0xC00000, 0xE00000]; X2 = 0x1000000
WQT = 0x1200000
TS = 0x1400000
DUMP = 0x1500000
ERRS = 0x1520000
NONCE = 0x0; TAGQ = 0x1540000
WS_BYTES = 268435456
L_A = 32768; L_B = 98304; LDS_BYTES = 163840
NS = 6; SCR = 12288
sW = 3
SX, SWQKV, SWO, SW1, SW2, SWS, SOUT, SDBG, SB1, SB2, SCODE = 4, 8, 12, 16, 20, 24, 28, 32, 36, 40, 44
sST, sDT, sRB, sHP, sDT3, sFT, sP3, sRH, sKH, sWB, sTO, sONES = 48, 49, 50, 51, 52, 53, 54, 55, 56, 57, 58, 59
sEPS6 = 60; sB = 61
sT0, sT1, sT2, sT3, sT4, sT5 = 62, 63, 64, 65, 66, 67
sSO = 68; sW1K = 69; sTS = 70
sL2E = 74; sWA = 75; sROTX = 76; sROT1 = 77; sROT2 = 78; sRED = 79; sWOFF = 80; sKB = 81; sXC = 82; sWI = 83
sKA = 84
sAKVP, sAPQW, sAPQR, sAKVF, sASTW, sASTR, sAHTW, sAHTR, sAUW, sAUR, sAX2W, sAX2R, sAS2W, sAS2R, sAWQT, sGK = range(84, 100)
sDUM = 100; sNON = 101
vL, vL16, vTA, vTB, vT0, vT1, vT2, vT3 = 0, 1, 2, 3, 4, 5, 6, 7
XR = 8
CKP, CVP, CQP, vB2, vRS, vHH, vOUT, vTSV = 16, 17, 18, 19, 20, 21, 22, 23
vWA, vWB, vWTA, vWTB = 24, 25, 26, 27
MA = 28

a = Asm()
stamp_names = []
G = {}

@contextmanager
def cond():
    st = (a.vm, a.vm_done, a.lg, a.lg_done); h = list(a.hist)
    yield
    a.vm, a.vm_done, a.lg, a.lg_done = st[0], min(st[1], st[0]), st[2], min(st[3], st[2])
    a.hist = h

def stamp(name):
    if not DIAG: return
    if "--lite" in sys.argv and name not in ("start", "end", "p4_0"): return
    k = len(stamp_names); stamp_names.append(name)
    a(f"s_memrealtime {sr(sTS,2)}")
    if name in ("start", "end"): a(f"s_memtime {sr(sTS+2,2)}")
    a("s_waitcnt lgkmcnt(0)"); a.lg_done = a.lg
    a(f"v_writelane_b32 v{vTSV}, s{sTS}, {k}")
    if name in ("start", "end"): a(f"v_writelane_b32 v{vTSV}, s{sTS+2}, {62 if name == 'start' else 63}")

def srd(base, ptr, nbytes):
    a(f"s_mov_b32 s{base}, s{ptr}")
    a(f"s_and_b32 s{base+1}, s{ptr+1}, 0xffff")
    a(f"s_mov_b32 s{base+2}, {nbytes:#x}")
    a(f"s_mov_b32 s{base+3}, 0x20000")

def set_exec(mask):
    if mask == FULL: a("s_mov_b64 exec, -1")
    elif mask <= 64: a(f"s_mov_b64 exec, {mask}")
    else:
        a(f"s_mov_b32 exec_lo, {mask & 0xffffffff:#x}"); a(f"s_mov_b32 exec_hi, {mask >> 32:#x}")

def lin(dst, terms, const=0):
    first = True
    for r, m in terms:
        t = dst if first else sT5
        if m == 1 and not first: a(f"s_add_u32 s{dst}, s{dst}, s{r}"); continue
        if m & (m - 1) == 0: a(f"s_lshl_b32 s{t}, s{r}, {m.bit_length()-1}")
        else: a(f"s_mul_i32 s{t}, s{r}, {m}")
        if not first: a(f"s_add_u32 s{dst}, s{dst}, s{sT5}")
        first = False
    if const: a(f"s_add_u32 s{dst}, s{dst}, {const:#x}")

def timeout_path(code):
    a(f"s_mov_b32 s{sTO}, 0")
    if DIAG:
        a(f"v_mov_b32 v{vT3}, {code}")
        a(f"s_mov_b32 s{sT5}, {ERRS:#x}")
        a(f"buffer_store_dword v{vT3}, off, {sr(SWS,4)}, s{sT5}")
        a("s_waitcnt vmcnt(0)")

def poll(issue, check, code, pre=None):
    top = a.newlabel("POLL"); done = a.newlabel("PDONE"); chk = a.newlabel("PCHK")
    if pre is not None:
        a.wait(vm=pre)
        st = (a.vm, a.vm_done)
        a(f"s_branch {chk}")
    a.label(top)
    issue()
    a.wait_vm_all(force=True)
    if pre is not None: a.label(chk)
    check()
    a(f"s_cbranch_vccz {done}")
    h = list(a.hist); vmst = (a.vm, a.vm_done)
    if opt("PS", 2): a(f"s_sleep {opt('PS', 2)}")
    a(f"s_sub_u32 s{sTO}, s{sTO}, 1")
    a(f"s_cbranch_scc0 {top}")
    timeout_path(code)
    a.label(done)
    a.hist = h; a.vm, a.vm_done = vmst
    if pre is not None: a.vm, a.vm_done = st

def poll1(addr, code, tmp=None, tag=False):
    cmp = (lambda r: a(f"v_cmp_ne_u32 vcc, s{sNON}, v{r}")) if tag else (lambda r: a(f"v_cmp_eq_u32 vcc, -1, v{r}"))
    if tmp is None or not opt("PP", 0):
        poll(lambda: a(f"buffer_load_dword v{vT3}, {addr} sc1"), lambda: cmp(vT3), code)
        return
    top = a.newlabel("PP"); done = a.newlabel("PPD")
    a(f"buffer_load_dword v{vT3}, {addr} sc1")
    a(f"s_nop {opt('PPN', 15)}")
    a.label(top)
    for r, o in ((vT3, tmp), (tmp, vT3)):
        a(f"buffer_load_dword v{o}, {addr} sc1")
        a("s_waitcnt vmcnt(1)")
        cmp(r)
        a(f"s_cbranch_vccz {done}")
    h = list(a.hist)
    a(f"s_sub_u32 s{sTO}, s{sTO}, 2")
    a(f"s_cbranch_scc0 {top}")
    timeout_path(code)
    a.label(done)
    a.hist = h
    a.vm -= 1
    a.vm_done = a.vm - 1

def verify(vMX, redo):
    ok = a.newlabel("VOK")
    a(f"v_cmp_eq_u32 vcc, -1, v{vMX}")
    a(f"s_cbranch_vccz {ok}")
    h = list(a.hist)
    a("s_waitcnt vmcnt(0)")
    a(f"s_sub_u32 s{sTO}, s{sTO}, 64")
    a(f"s_cbranch_scc0 {redo}")
    a(f"s_mov_b32 s{sTO}, 0")
    a.label(ok)
    a.hist = h

def finish():
    if DIAG:
        stamp("end")
        lin(sT0, [(sB, 1024), (sW, 256)], TS)
        a(f"v_lshlrev_b32 v{vT0}, 2, v{vL}")
        a(f"buffer_store_dword v{vTSV}, v{vT0}, {sr(SWS,4)}, s{sT0} offen")
    a("s_endpgm")

def pk(op, d, x, y, z=None, hi=None, lo=None):
    ops = [x, y] + ([z] if z is not None else [])
    m = ""
    if lo: m += " op_sel:[" + ",".join(map(str, lo)) + "]"
    if hi: m += " op_sel_hi:[" + ",".join(map(str, hi)) + "]"
    a(f"v_pk_{op}_f32 {vr(d,2)}, " + ", ".join(ops) + m)

def mfma(d, A, B, C):
    a(f"v_mfma_f32_32x32x16_bf16 {d}, {A}, {B}, {C}")

def ws_store4(reg, soff, off=0): return a(f"buffer_store_dwordx4 {vr(reg,4)}, v{vL16}, {sr(SWS,4)}, s{soff} offen offset:{off} sc1")

def tr_base(dst_a, dst_b, sel_sgpr, region):
    a(f"v_bfe_u32 v{vT0}, v{vL}, 2, 2")
    a(f"v_lshl_add_u32 v{vT0}, v{vHH}, 2, v{vT0}")
    a(f"v_lshlrev_b32 v{dst_a}, 7, v{vT0}")
    a(f"v_bfe_u32 v{vT1}, v{vL}, 3, 1")
    a(f"v_lshl_add_u32 v{dst_a}, v{vT1}, 6, v{dst_a}")
    a(f"v_bfe_u32 v{vT1}, v{vL}, 4, 1")
    a(f"v_lshl_add_u32 v{dst_a}, v{vT1}, 5, v{dst_a}")
    a(f"v_and_b32 v{vT1}, 3, v{vL}")
    a(f"v_lshl_add_u32 v{dst_a}, v{vT1}, 3, v{dst_a}")
    a(f"s_lshl_b32 s{sT5}, s{sel_sgpr}, 6")
    a(f"v_xor_b32 v{dst_a}, s{sT5}, v{dst_a}")
    a(f"v_add_u32 v{dst_a}, {region}, v{dst_a}")
    a(f"v_xor_b32 v{dst_b}, 64, v{dst_a}")

def dma_voff(dst, dst2, pitch, scol):
    a(f"v_lshrrev_b32 v{vT0}, 3, v{vL}")
    a(f"v_mul_u32_u24 v{dst}, {pitch}, v{vT0}")
    a(f"v_bfe_u32 v{vT1}, v{vL}, 4, 1")
    a(f"v_lshlrev_b32 v{vT1}, 2, v{vT1}")
    a(f"v_and_b32 v{vT0}, 7, v{vL}")
    a(f"v_xor_b32 v{vT0}, v{vT0}, v{vT1}")
    a(f"v_lshl_add_u32 v{dst}, v{vT0}, 4, v{dst}")
    a(f"v_add_u32 v{dst}, s{scol}, v{dst}")
    a(f"v_add_u32 v{dst2}, {8*pitch-1024}, v{dst}")

R1, R2 = 16, 11
def wreg(kind, t, j, n):
    r, base = (R1, 0) if kind == 1 else (R2, R1 * 8)
    if t < r: return ar(base + 8 * t + j, n)
    t -= r
    if t < 5: return ar(216 + 8 * t + j, n)
    return vr(160 + 8 * (t - 5) + j, n)

class Pump:
    def setup(self, kind, L, extra=0):
        self.kind = kind
        self.pitch, self.srd, self.n = (3584, SW1, 32) if kind == 1 else (4096, SW2, 28)
        self.t0 = 0 if L == 0 else (R1 if kind == 1 else R2)
        self.extra = extra
        self.i = self.t0; self.c = self.t0; self.vid = {}; self.lid = {}
        a.c(f"pump setup W{kind}")
        lin(sT4, [(sFT if kind == 1 else sST, 128), (sW, self.n * 16 * self.pitch)])
        dma_voff(vWA, vWB, self.pitch, sT4)
        rot = sROT1 if kind == 1 else sROT2
        a(f"s_add_u32 s{sT5}, s{rot}, {self.t0}")
        a(f"s_sub_u32 s{sWOFF}, s{sT5}, {self.n}")
        a(f"s_cselect_b32 s{sWOFF}, s{sT5}, s{sWOFF}")
        a(f"s_mul_i32 s{sWOFF}, s{sWOFF}, {16*self.pitch}")
    def place(self, t):
        k = t - self.t0
        if k < self.extra: return ("B", k * 2048)
        return ("A", ((k - self.extra) % NS) * 2048)
    def prev_user(self, t):
        p = t - NS
        return p if p - self.t0 >= self.extra else None
    def room(self, lag=0):
        p = self.prev_user(self.i)
        return p is None or p < self.c - lag
    def issue1(self):
        t = self.i
        if opt("NOPUMP", 0):
            self.vid[t] = None; self.i += 1; return
        p = self.prev_user(t)
        if p is not None: a.wait(lg=self.lid[p])
        reg, o = self.place(t)
        a(f"s_add_u32 m0, s{sWB if reg == 'B' else sWA}, {o}")
        if t > self.t0:
            a(f"s_add_u32 s{sWOFF}, s{sWOFF}, {16*self.pitch}")
            a(f"s_cmp_eq_u32 s{sWOFF}, {self.n*16*self.pitch}")
            a(f"s_cselect_b32 s{sWOFF}, 0, s{sWOFF}")
        a(f"buffer_load_dwordx4 v{vWA}, {sr(self.srd,4)}, s{sWOFF} offen lds")
        self.vid[t] = a(f"buffer_load_dwordx4 v{vWB}, {sr(self.srd,4)}, s{sWOFF} offen offset:1024 lds")
        self.i += 1
    def fill(self, upto=None):
        lim = self.n if upto is None else min(self.n, upto)
        while self.i < lim and self.room(): self.issue1()
    def run(self, target, refill=True):
        target = min(target, self.n)
        haveB = False
        while self.c < target:
            t = self.c
            if t >= self.i: self.issue1()
            if opt("NOPUMP", 0):
                self.c += 1; continue
            reg, o = self.place(t)
            ta, tb = vWTA, vWTB
            if reg == "B":
                ta, tb = vT0, vT1
                if not haveB:
                    a(f"v_add_u32 v{vT0}, 65536, v{vWTA}"); a(f"v_add_u32 v{vT1}, 65536, v{vWTB}"); haveB = True
            a.wait(vm=self.vid[t])
            a(f"ds_read_b64_tr_b16 {wreg(self.kind,t,0,2)}, v{ta} offset:{o}")
            a(f"ds_read_b64_tr_b16 {wreg(self.kind,t,2,2)}, v{ta} offset:{o+1024}")
            a(f"ds_read_b64_tr_b16 {wreg(self.kind,t,4,2)}, v{tb} offset:{o}")
            self.lid[t] = a(f"ds_read_b64_tr_b16 {wreg(self.kind,t,6,2)}, v{tb} offset:{o+1024}")
            self.c += 1
            lim = self.n if refill else target
            if self.i < lim and self.room(lag=1): self.issue1()
        if refill: self.fill()
pump = Pump()

def prologue():
    a(f"s_cmp_ge_u32 s2, 256")
    a(f"s_cbranch_scc1 L_EXIT")
    a(f"s_load_dwordx16 {sr(sKA,16)}, s[0:1], 0")
    a(f"s_load_dwordx4 {sr(SCODE,4)}, s[0:1], 64")
    a(f"s_load_dwordx2 s[100:101], s[0:1], 80")
    a(f"s_mov_b32 s{sB}, s2")
    a(f"v_lshrrev_b32 v{vT0}, 6, v0")
    a(f"v_and_b32 v{vL}, 63, v0")
    a(f"v_readfirstlane_b32 s{sW}, v{vT0}")
    a(f"v_lshlrev_b32 v{vL16}, 4, v{vL}")
    a(f"v_lshrrev_b32 v{vHH}, 5, v{vL}")
    if DIAG: a(f"v_mov_b32 v{vTSV}, 0")
    stamp("start")
    X_, I_ = sT0, sT1
    a(f"s_and_b32 s{X_}, s{sB}, 7")
    a(f"s_lshr_b32 s{I_}, s{sB}, 3")
    a(f"s_lshr_b32 s{sT2}, s{I_}, 3")
    a(f"s_and_b32 s{sDT}, s{I_}, 7")
    a(f"s_and_b32 s{sRB}, s{X_}, 3")
    a(f"s_lshl_b32 s{sRB}, s{sRB}, 2")
    a(f"s_add_u32 s{sRB}, s{sRB}, s{sT2}")
    a(f"s_lshr_b32 s{sHP}, s{X_}, 2")
    a(f"s_lshl_b32 s{sHP}, s{sHP}, 3")
    a(f"s_add_u32 s{sHP}, s{sHP}, s{sDT}")
    a(f"s_lshr_b32 s{sROTX}, s{sDT}, 1")
    a(f"s_add_u32 s{sROTX}, s{sROTX}, s{sT2}")
    a(f"s_and_b32 s{sROTX}, s{sROTX}, 3")
    a(f"s_lshl_b32 s{sROTX}, s{sROTX}, 1")
    a(f"s_and_b32 s{sT3}, s{I_}, 1")
    a(f"s_add_u32 s{sROTX}, s{sROTX}, s{sT3}")
    a(f"s_lshl_b32 s{sW1K}, s{sW}, 10")
    a(f"s_lshl_b32 s{sWB}, s{sW}, 14")
    a(f"s_add_u32 s{sWA}, s{sWB}, {L_A}")
    a(f"s_add_u32 s{sWB}, s{sWB}, {L_B}")

def roles2():
    X_, I_ = sT0, sT1
    a(f"s_and_b32 s{X_}, s{sB}, 7")
    a(f"s_lshr_b32 s{I_}, s{sB}, 3")
    a(f"s_lshr_b32 s{sT2}, s{I_}, 3")
    a(f"s_lshl_b32 s{sST}, s{X_}, 2")
    a(f"s_add_u32 s{sST}, s{sST}, s{sT2}")
    a(f"s_lshr_b32 s{sT3}, s{X_}, 1")
    a(f"s_mul_i32 s{sT3}, s{sT3}, 7")
    a(f"s_and_b32 s{sT4}, s{X_}, 1")
    a(f"s_lshl_b32 s{sT5}, s{sT4}, 2")
    a(f"s_add_u32 s{sFT}, s{sT3}, s{sT5}")
    a(f"s_add_u32 s{sFT}, s{sFT}, s{sT2}")
    a(f"s_and_b32 s{sP3}, s{I_}, 3")
    a(f"s_add_u32 s{sT5}, s{sT5}, s{sP3}")
    a(f"s_add_u32 s{sKB}, s{sT3}, 3")
    a(f"s_cmp_lt_u32 s{I_}, 24")
    a(f"s_cselect_b32 s{sFT}, s{sFT}, s{sKB}")
    a(f"s_cselect_b32 s{sDT3}, s{sDT}, s{sT5}")
    a(f"s_mul_i32 s{sT4}, s{sT4}, 3")
    a(f"s_add_u32 s{sXC}, s{sT3}, s{sT4}")
    a(f"s_lshl_b32 s{sROT1}, s{X_}, 2")
    a(f"s_and_b32 s{sT3}, s{I_}, 3")
    a(f"s_lshr_b32 s{sP3}, s{I_}, 2")
    a(f"s_lshl_b32 s{sWI}, s{I_}, 2")
    a(f"s_add_u32 s{sWI}, s{sWI}, s{sW}")
    a(f"s_lshl_b32 s{sRED}, s{X_}, 2")
    a(f"s_add_u32 s{sRED}, s{sRED}, s{sT3}")
    a(f"s_lshl_b32 s{sRED}, s{sRED}, 1")
    a(f"s_add_u32 s{sRED}, s{sRED}, s{sW}")
    a(f"s_cmp_lt_u32 s{sW}, 2")
    a(f"s_cselect_b32 s{sRED}, s{sRED}, 99")
    a(f"s_cmp_eq_u32 s{sP3}, 7")
    a(f"s_cselect_b32 s{sRED}, s{sRED}, 99")
    a(f"s_mul_i32 s{sROT2}, s{X_}, 7")
    a(f"s_lshr_b32 s{sROT2}, s{sROT2}, 2")
    a(f"s_lshl_b32 s{sROT2}, s{sROT2}, 1")
    a(f"s_lshr_b32 s{sRH}, s{sW}, 1")
    a(f"s_and_b32 s{sKH}, s{sW}, 1")
    a(f"s_mov_b32 s{sTO}, 400000")
    a(f"s_mov_b32 s{sONES}, 0x3f803f80")
    a(f"s_mov_b32 s{sEPS6}, {fl(1e-6)}")
    a(f"s_mov_b32 s{sL2E}, {fl(LOG2E)}")

def late_srds():
    srd(SWO, sKA + 4, 512 * 512 * 2)
    srd(SW1, sKA + 8, 2048 * 1792 * 2)
    srd(SB1, sKA + 10, 1792 * 2)
    srd(SW2, sKA + 12, 1792 * 2048 * 2)
    srd(SB2, sKA + 14, 2048 * 2)
    srd(SOUT, SCODE, 2048 * 512 * 2)
    srd(SDBG, SCODE + 2, 256)

def code_prefetch():
    if opt("CODEPF", 1):
        a(f"s_getpc_b64 {sr(SCODE,2)}")
        a.label("L_PC")
        a(f"s_and_b32 s{SCODE+1}, s{SCODE+1}, 0xffff")
        a(f"s_mov_b32 s{SCODE+2}, L_END - L_PC")
        a(f"s_mov_b32 s{SCODE+3}, 0x20000")
        a(f"s_lshl_b32 s{sT0}, s{sWI}, 10")
        a(f"buffer_load_dwordx4 {ar(252,4)}, v{vL16}, {sr(SCODE,4)}, s{sT0} offen")
    srd(SCODE, SW1, 2048 * 1792 * 2)
    a(f"s_cmp_eq_u32 s{sP3}, 7")
    a(f"s_cselect_b32 s{SW1+2}, 0, s{SW1+2}")

def addresses():
    lin(sAKVP, [(sHP, 64 * 640), (sRB, 4 * 640), (sW, 640)], KVP[0])
    lin(sAPQW, [(sRB, 4 * 32768), (sW, 32768), (sHP, 2048)], PQ[0])
    lin(sAPQR, [(sST, 65536), (sRH, 32768), (sKH, 16384)], PQ[0])
    lin(sAKVF, [(sKH, 16 * 768)], KVF[0])
    lin(sASTW, [(sST, 8192), (sDT, 1024), (sKH, 512), (sRH, 256)], ST[0])
    lin(sASTR, [(sST, 8192), (sRH, 256)], ST[0])
    lin(sAHTW, [(sDT, 262144), (sST, 8192), (sRH, 4096), (sKH, 1024)], HT[0])
    lin(sAHTR, [(sDT3, 262144), (sW, 65536)], HT[0])
    lin(sAUW, [(sDT3, 229376), (sFT, 8192), (sRH, 4096), (sKH, 1024)], U[0])
    a(f"s_cmp_eq_u32 s{sP3}, 7")
    a(f"s_cselect_b32 s{sAUW}, {WS_BYTES:#x}, s{sAUW}")
    lin(sAUR, [(sDT, 229376), (sW, 57344)], U[0])
    lin(sAX2W, [(sST, 65536), (sRH, 32768), (sDT, 4096), (sKH, 2048)], X2)
    lin(sAX2R, [(sRB, 4 * 32768), (sW, 32768)], X2)
    a(f"s_add_u32 s{sAS2W}, s{sASTW}, {ST2 - ST[0]:#x}")
    lin(sAS2R, [(sRB, 2 * 8192), (sRH, 8192), (sKH, 256)], ST2)
    lin(sAWQT, [(sHP, 98304)], WQT)
    a(f"s_mov_b32 s{sGK}, {fl(-2.0 * 0.7978845608028654 * LOG2E * 0.044715)}")

def next_layer_addresses():
    for r, d in ((sAKVP, KVP[1] - KVP[0]), (sAPQW, PQ[1] - PQ[0]), (sAPQR, PQ[1] - PQ[0]), (sAKVF, KVF[1] - KVF[0]),
                 (sASTW, ST[1] - ST[0]), (sASTR, ST[1] - ST[0]), (sAHTW, HT[1] - HT[0]), (sAHTR, HT[1] - HT[0]),
                 (sAUW, U[1] - U[0]), (sAUR, U[1] - U[0])):
        a(f"s_add_u32 s{r}, s{r}, {d:#x}")

def kv_poison(P, L):
    r = sAKVP
    if L == 1:
        a(f"s_add_u32 s{sT1}, s{sAKVP}, {KVP[1]-KVP[0]:#x}"); r = sT1
    set_exec((1 << 40) - 1)
    ws_store4(P, r)
    a(f"s_mul_i32 s{sT0}, s{sRED}, 384")
    a(f"s_add_u32 s{sT0}, s{sT0}, {KVF[L]:#x}")
    a(f"s_cmp_ge_u32 s{sRED}, 64")
    a(f"s_cselect_b32 s{sT0}, {WS_BYTES:#x}, s{sT0}")
    set_exec((1 << 24) - 1)
    ws_store4(P, sT0)
    set_exec(FULL)
def tile_poison(P, r, delta, step):
    if delta:
        a(f"s_add_u32 s{sT0}, s{r}, {delta:#x}"); r = sT0
    for f in range(2): ws_store4(P, r, step * f)
def canary_poison(P):
    a(f"v_lshrrev_b32 v{vT0}, 3, v{vL}")
    a(f"v_mov_b32 v{vT1}, s{sAHTW}")
    for g, (r, d) in enumerate(((sAUW, 0), (sAHTW, HT[1]-HT[0]), (sAUW, U[1]-U[0]), (sAPQW, PQ[1]-PQ[0]-1024))):
        a(f"s_add_u32 s{sT0}, s{r}, {d & 0xffffffff:#x}")
        a(f"v_mov_b32 v{vT2}, s{sT0}")
        a(f"v_cmp_eq_u32 vcc, {g+1}, v{vT0}")
        a(f"v_cndmask_b32 v{vT1}, v{vT1}, v{vT2}, vcc")
    a(f"v_and_b32 v{vT0}, 7, v{vL}")
    a(f"v_lshl_add_u32 v{vT1}, v{vT0}, 4, v{vT1}")
    set_exec((1 << 40) - 1)
    a(f"buffer_store_dwordx4 {vr(P,4)}, v{vT1}, {sr(SWS,4)}, 0 offen offset:{2048+896} sc1")
    set_exec(FULL)
def st_poison(P):
    lin(sT0, [(sB, 3072), (sW, 768)], ST[0])
    set_exec((1 << 48) - 1)
    ws_store4(P, sT0)
    set_exec(FULL)
def set_poi(P):
    for i in range(4): a(f"v_mov_b32 v{P+i}, -1")

def misc_loads():
    lin(sT0, [(sST, 64), (sRH, 32)])
    a(f"v_and_b32 v{vT0}, 31, v{vL}")
    a(f"v_add_u32 v{vT0}, s{sT0}, v{vT0}")
    a(f"v_lshlrev_b32 v{vT1}, 1, v{vT0}")
    a(f"buffer_load_ushort v{vB2}, v{vT1}, {sr(SB2,4)}, 0 offen")
    a(f"v_lshlrev_b32 v{vT0}, 10, v{vT0}")
    a(f"v_lshl_add_u32 v{vOUT}, v{vHH}, 4, v{vT0}")
    lin(sT0, [(sDT, 128), (sKH, 64)])
    a(f"v_add_u32 v{vOUT}, s{sT0}, v{vOUT}")
    a(f"buffer_load_dwordx4 {vr(XR,4)}, v{vOUT}, {sr(SX,4)}, 0 offen")
    a(f"buffer_load_dwordx4 {vr(XR+4,4)}, v{vOUT}, {sr(SX,4)}, 0 offen offset:32")

def touch(srdn, rows_per_wave, lg, pitch, scol_emit, dst):
    n = rows_per_wave << lg
    scol_emit()
    a(f"v_min_u32 v{vT0}, {n-1}, v{vL}")
    a(f"v_lshrrev_b32 v{vT1}, {lg}, v{vT0}")
    a(f"v_mul_u32_u24 v{vT1}, {pitch}, v{vT1}")
    a(f"v_and_b32 v{vT0}, {(1<<lg)-1}, v{vT0}")
    a(f"v_lshl_add_u32 v{vT0}, v{vT0}, 7, v{vT1}")
    a(f"s_mul_i32 s{sT5}, s{sWI}, {rows_per_wave*pitch}")
    a(f"s_add_u32 s{sT4}, s{sT4}, s{sT5}")
    a(f"buffer_load_dword {dst}, v{vT0}, {sr(srdn,4)}, s{sT4} offen")
def touch_w1(dst): touch(SCODE, 16, 2, 3584, lambda: a(f"s_lshl_b32 s{sT4}, s{sXC}, 7"), dst)
def touch_w2(dst):
    def c2():
        a(f"s_and_b32 s{sT4}, s{sB}, 7"); a(f"s_lshl_b32 s{sT4}, s{sT4}, 9")
    touch(SW2, 16, 2, 4096, c2, dst)
def touch_w2h(dst, t0):
    a(f"s_lshr_b32 s{sT4}, s{sWI}, 3")
    a(f"s_add_u32 s{sT4}, s{sT4}, s{sROT2}")
    if t0: a(f"s_add_u32 s{sT4}, s{sT4}, {t0}")
    a(f"s_sub_u32 s{sT5}, s{sT4}, 28")
    a(f"s_cselect_b32 s{sT4}, s{sT4}, s{sT5}")
    a(f"s_and_b32 s{sT5}, s{sWI}, 3")
    a(f"s_mul_i32 s{sT5}, s{sT5}, 28")
    a(f"s_add_u32 s{sT4}, s{sT4}, s{sT5}")
    a(f"s_lshl_b32 s{sT4}, s{sT4}, 1")
    a(f"s_bfe_u32 s{sT5}, s{sWI}, 0x10002")
    a(f"s_add_u32 s{sT4}, s{sT4}, s{sT5}")
    a(f"s_lshl_b32 s{sT4}, s{sT4}, 15")
    a(f"s_and_b32 s{sT5}, s{sB}, 7")
    a(f"s_lshl_b32 s{sT5}, s{sT5}, 9")
    a(f"s_add_u32 s{sT4}, s{sT4}, s{sT5}")
    a(f"s_cmp_eq_u32 s{sP3}, 7")
    a(f"s_cselect_b32 s{sT4}, 0x10000000, s{sT4}")
    a(f"v_min_u32 v{vT0}, 31, v{vL}")
    a(f"v_lshrrev_b32 v{vT1}, 2, v{vT0}")
    a(f"v_and_b32 v{vT0}, 3, v{vT0}")
    a(f"v_lshlrev_b32 v{vT0}, 7, v{vT0}")
    a(f"v_lshl_add_u32 v{vT0}, v{vT1}, 12, v{vT0}")
    a(f"buffer_load_dword {dst}, v{vT0}, {sr(SW2,4)}, s{sT4} offen")
def touch_wo(dst): touch(SWO, 4, 3, 1024, lambda: a(f"s_mov_b32 s{sT4}, 0"), dst)
def touches(L, where):
    dst = "a25" if where in (1, 2, 3, 6, 7, 8) else None
    if optL("T1", L, 1, 0) == where: touch_w1(dst + "2" if dst else "v31")
    if optL("T2", L, 0, 0) == where: touch_w2(dst + "3" if dst else "v31")
    if optL("T2H", L, 9, 0) == where: touch_w2h(dst + "3" if dst else "v31", 0)
    if optL("T2G", L, 0, 0) == where: touch_w2h(dst + "3" if dst else "v31", 14)

def split2(dst, src, t0):
    a(f"v_cvt_pk_bf16_f32 v{t0}, v{src}, v{src}")
    a(f"v_and_b32 v{t0}, 0xffff0000, v{t0}")
    a(f"v_sub_f32 v{dst}, v{src}, v{t0}")
    a(f"v_cvt_pk_bf16_f32 v{dst}, v{t0}, v{dst}")

def stats_to_frags(S, Q, RA):
    a(f"v_mul_f32 v{S}, {fl(-1/512)}, v{S}")
    a(f"v_mul_f32 v{Q}, {fl(1/512)}, v{Q}")
    a(f"v_cmp_eq_u32 vcc, 0, v{vHH}")
    a(f"v_fma_f32 v{Q}, -v{S}, v{S}, v{Q}")
    a(f"v_max_f32 v{Q}, 0, v{Q}")
    a(f"v_add_f32 v{Q}, {fl(1e-5)}, v{Q}")
    a(f"v_rsq_f32 v{vRS}, v{Q}")
    a(f"v_cndmask_b32 v{S}, 0, v{S}, vcc")
    a(f"v_cvt_pk_bf16_f32 v{MA}, v{S}, v{S}")
    a(f"v_cndmask_b32 v{Q}, 0, v{vRS}, vcc")
    a(f"v_and_b32 v{vT0}, 0xffff0000, v{MA}")
    a(f"v_sub_f32 v{S}, v{S}, v{vT0}")
    a(f"v_cvt_pk_bf16_f32 v{MA+1}, v{S}, v{S}")
    split2(RA, Q, vT0)

def stats_check(SB):
    a(f"v_max3_u32 v{vT3}, v{SB+1}, v{SB+3}, v{SB+5}")
    a(f"v_max3_u32 v{vT3}, v{vT3}, v{SB+7}, v{SB+9}")
    a(f"v_max3_u32 v{vT3}, v{vT3}, v{SB+11}, v{SB+13}")
    a(f"v_max_u32 v{vT3}, v{vT3}, v{SB+15}")
    a(f"v_cmp_eq_u32 vcc, -1, v{vT3}")
def stats_sum(SB):
    for n in (4, 2, 1):
        for p in range(n): pk("add", SB+2*p, vr(SB+2*p,2), vr(SB+2*(p+n),2))
    a(f"v_mov_b32 v{SB+2}, v{SB}")
    a(f"v_mov_b32 v{SB+3}, v{SB+1}")
    a(f"v_permlane32_swap_b32 v{SB}, v{SB+2}")
    a(f"v_permlane32_swap_b32 v{SB+1}, v{SB+3}")
    pk("add", SB, vr(SB,2), vr(SB+2,2))

A1B = 128
def a1_issue():
    a(f"s_mov_b32 s{sT3}, s{sKB}")
    for p in range(16):
        a(f"buffer_load_dwordx4 {vr(A1B+4*p,4)}, v{vL16}, {sr(SWS,4)}, s{sT3} offen offset:{(p&1)*2560} sc1")
        if p & 1 and p < 15: a(f"s_add_u32 s{sT3}, s{sT3}, {2*2560}")
def a1_early(L):
    skip = a.newlabel("NOA1E")
    a(f"s_cmp_ge_u32 s{sRED}, 64")
    a(f"s_cbranch_scc1 {skip}")
    with cond():
        a(f"s_lshr_b32 s{sKB}, s{sRED}, 2")
        a(f"s_mul_i32 s{sKB}, s{sKB}, {16*2560}")
        a(f"s_and_b32 s{sT2}, s{sRED}, 3")
        a(f"s_mul_i32 s{sT2}, s{sT2}, 640")
        a(f"s_add_u32 s{sKB}, s{sKB}, s{sT2}")
        a(f"s_add_u32 s{sKB}, s{sKB}, {KVP[L]:#x}")
        set_exec((1 << 35) - 1)
        a1_issue()
        set_exec(FULL)
    a.label(skip)
def a1(L, younger):
    a.c("======== A1 reducer")
    skip = a.newlabel("NOA1")
    a(f"s_cmp_ge_u32 s{sRED}, 64")
    a(f"s_cbranch_scc1 {skip}")
    with cond():
        B = A1B
        a(f"s_mul_i32 s{sT2}, s{sRED}, 384")
        a(f"s_add_u32 s{sT2}, s{sT2}, {KVF[L]:#x}")
        a(f"v_lshlrev_b32 v{vT2}, 3, v{vL}")
        set_exec((1 << 35) - 1)
        def check():
            a(f"v_max3_u32 v{vT3}, v{B}, v{B+4}, v{B+8}")
            a(f"v_min3_u32 v{vT1}, v{B}, v{B+4}, v{B+8}")
            for p in range(3, 15, 2):
                a(f"v_max3_u32 v{vT3}, v{vT3}, v{B+4*p}, v{B+4*p+4}")
                a(f"v_min3_u32 v{vT1}, v{vT1}, v{B+4*p}, v{B+4*p+4}")
            a(f"v_max_u32 v{vT3}, v{vT3}, v{B+60}")
            a(f"v_min_u32 v{vT1}, v{vT1}, v{B+60}")
            a(f"v_cmp_eq_u32 vcc, -1, v{vT3}")
            a(f"v_readlane_b32 s{sT0}, v{vT3}, 34")
            a(f"v_readlane_b32 s{sT1}, v{vT1}, 34")
            a(f"s_xor_b32 s{sT0}, s{sT0}, s{sNON}")
            a(f"s_xor_b32 s{sT1}, s{sT1}, s{sNON}")
            a(f"s_or_b32 s{sT0}, s{sT0}, s{sT1}")
            a(f"s_or_b32 vcc_lo, vcc_lo, s{sT0}")
            a(f"s_or_b64 vcc, vcc, vcc")
        a.vm_done = min(a.vm_done, a.vm - younger - 1)
        poll(a1_issue, check, 0x20, pre=a.vm - younger - 1)
        n = 16
        while n > 1:
            n //= 2
            for p in range(n):
                for j in (0, 2): pk("add", B+4*p+j, vr(B+4*p+j,2), vr(B+4*(p+n)+j,2))
        a(f"v_cvt_pk_bf16_f32 v{B+4}, v{B}, v{B+1}")
        a(f"v_cvt_pk_bf16_f32 v{B+5}, v{B+2}, v{B+3}")
        a(f"v_mov_b32_dpp v{B+6}, v{B+4} quad_perm:[1,1,3,3] row_mask:0xf bank_mask:0xf")
        a(f"v_mov_b32_dpp v{B+7}, v{B+5} quad_perm:[1,1,3,3] row_mask:0xf bank_mask:0xf")
        a(f"v_writelane_b32 v{B+4}, s{sNON}, 34")
        set_exec(0x555555555555)
        a(f"buffer_store_dwordx4 {vr(B+4,4)}, v{vT2}, {sr(SWS,4)}, s{sT2} offen sc1")
        set_exec(FULL)
        a("s_nop 1")
    a.label(skip)
    stamp("a1")

XF = 128
def p1(L):
    ACCK, ACCV, RR = 32, 48, 64
    VV, PK, T1 = 80, 88, 96
    S0, S1, Q0, Q1 = 80, 81, 82, 83
    CF = 84
    CFV, CFQ, RA = 112, 116, 120
    vTQ, vTV = 124, 125
    vW, vXA, vXB = 126, 127, 96
    vCQ, vCV = 97, 98
    vOA, vOB = vTA, vTB
    vTQ2, vTV2 = vTA, vTB
    vKW, vKR = 92, 93
    XA = 88
    POI = 100
    WFR = 216; NWF = 4; ONESF = 248; CG = 200; CK, CV, CQ = 152, 168, 184
    a.c(f"======== P1 layer {L}")
    xid = {}; wid = {}
    toff = 256
    def addr_setup():
        if L == 0:
            a(f"v_bfe_u32 v{vT0}, v{vL}, 2, 2")
            a(f"v_lshl_add_u32 v{vT0}, v{vHH}, 3, v{vT0}")
            a(f"v_lshlrev_b32 v{vTQ}, 6, v{vT0}")
            a(f"v_bfe_u32 v{vT1}, v{vL}, 4, 1")
            a(f"v_lshl_add_u32 v{vTQ}, v{vT1}, 5, v{vTQ}")
            a(f"v_and_b32 v{vT1}, 3, v{vL}")
            a(f"v_lshl_add_u32 v{vTQ}, v{vT1}, 3, v{vTQ}")
        else:
            a(f"s_and_b32 s{sT5}, s{sROTX}, {opt('XROT', 1)}")
            a(f"s_lshl_b32 s{sT5}, s{sT5}, 14")
            a(f"s_add_u32 s{sAX2R}, s{sAX2R}, s{sT5}")
            a(f"v_add_u32 v{vTQ}, s{sT5}, v{vL16}")
            a(f"v_xor_b32 v{vTQ2}, 16384, v{vTQ}")
            a(f"v_add_u32 v{vTV2}, 65536, v{vTQ2}")
        a(f"v_add_u32 v{vTV}, 65536, v{vTQ}")
        for i in range(4): a(f"v_accvgpr_write_b32 a{ONESF+i}, s{sONES}")
        for r in ([MA + 2, MA + 3] if L == 0 else []) + [RA + 1, RA + 2, RA + 3, CF + 2, CF + 3, CFV + 2, CFV + 3, CFQ + 2, CFQ + 3]: a(f"v_mov_b32 v{r}, 0")
    rg = {}
    def RG(s):
        b = WFR + (s % NWF) * 8
        if L == 0:
            o = s * 1024
            a(f"ds_read_b64_tr_b16 {ar(b,2)}, v{vTQ} offset:{32768+o}")
            a(f"ds_read_b64_tr_b16 {ar(b+2,2)}, v{vTQ} offset:{32768+o+toff}")
            a(f"ds_read_b64_tr_b16 {ar(b+4,2)}, v{vTV} offset:{o}")
            rg[s] = a(f"ds_read_b64_tr_b16 {ar(b+6,2)}, v{vTV} offset:{o+toff}")
        else:
            o = (s & 15) * 1024
            q_, v_ = (vTQ2, vTV2) if s >= 16 else (vTQ, vTV)
            a(f"ds_read_b128 {ar(b,4)}, v{q_} offset:{32768+o}")
            rg[s] = a(f"ds_read_b128 {ar(b+4,4)}, v{v_} offset:{o}")
    if L == 0:
        a(f"v_lshrrev_b32 v{vT0}, 2, v{vL}")
        a(f"s_lshl_b32 s{sT0}, s{sW}, 4")
        a(f"v_add_u32 v{vT0}, s{sT0}, v{vT0}")
        a(f"v_mul_u32_u24 v{vW}, 3072, v{vT0}")
        a(f"v_and_b32 v{vT0}, 3, v{vL}")
        a(f"v_lshl_add_u32 v{vW}, v{vT0}, 4, v{vW}")
        a(f"s_lshl_b32 s{sT0}, s{sHP}, 6")
        a(f"v_add_u32 v{vW}, s{sT0}, v{vW}")
        lin(sT0, [(sRB, 131072), (sW, 32768)])
        a(f"v_lshrrev_b32 v{vT0}, 3, v{vL}")
        a(f"v_lshlrev_b32 v{vT0}, 10, v{vT0}")
        a(f"v_add_u32 v{vT0}, s{sT0}, v{vT0}")
        a(f"v_and_b32 v{vT1}, 7, v{vL}")
        a(f"v_lshrrev_b32 v{vT2}, 4, v{vL}")
        a(f"v_xor_b32 v{vT1}, v{vT1}, v{vT2}")
        a(f"v_lshl_add_u32 v{vXA}, v{vT1}, 4, v{vT0}")
        a(f"v_xor_b32 v{vXB}, 64, v{vXA}")
        a(f"v_add_u32 v{vXB}, {8192-1024}, v{vXB}")
        a("s_waitcnt lgkmcnt(0)")
        srd(SX, sKA + 0, 2048 * 512 * 2)
        srd(SWQKV, sKA + 2, 512 * 1536 * 2)
        def x_issue(j):
            a(f"s_add_u32 s{sKB}, s{sROTX}, {j}")
            a(f"s_and_b32 s{sKB}, s{sKB}, 7")
            a(f"s_lshl_b32 s{sT1}, s{sKB}, 7")
            a(f"s_add_u32 m0, s{sWB}, {(j&3)*4096}")
            a(f"s_mul_i32 s{sSO}, s{sKB}, {64*3072}")
            a(f"buffer_load_dwordx4 v{vXA}, {sr(SX,4)}, s{sT1} offen lds")
            a(f"buffer_load_dwordx4 v{vXB}, {sr(SX,4)}, s{sT1} offen offset:1024 lds")
            a(f"s_add_u32 m0, s{sWB}, {(j&3)*4096+2048}")
            a(f"s_add_u32 s{sT1}, s{sT1}, 16384")
            a(f"buffer_load_dwordx4 v{vXA}, {sr(SX,4)}, s{sT1} offen lds")
            xid[j] = a(f"buffer_load_dwordx4 v{vXB}, {sr(SX,4)}, s{sT1} offen offset:1024 lds")
        def w_issue(j):
            for seg in (1, 2, 0):
                a(f"s_add_u32 m0, s{sW1K}, {seg*32768 - seg*1024 + j*4096}")
                wid[j] = a(f"buffer_load_dwordx4 v{vW}, {sr(SWQKV,4)}, s{sSO} offen offset:{seg*1024} lds")
        def wo_issue(c):
            for k in range(2):
                j = 2 * c + k
                a(f"s_add_u32 m0, s{sWB}, {j*2048}")
                if j == 0: a(f"s_lshl_b32 s{sSO}, s{sW}, 17")
                else: a(f"s_add_u32 s{sSO}, s{sSO}, 16384")
                a(f"buffer_load_dwordx4 v{vOA}, {sr(SWO,4)}, s{sSO} offen lds")
                G["wo"] = a(f"buffer_load_dwordx4 v{vOB}, {sr(SWO,4)}, s{sSO} offen offset:1024 lds")
        x_issue(0); w_issue(0)
        srd(SWS, 100, WS_BYTES)
        roles2()
        late_srds()
        x_issue(1); w_issue(1)
        touch_wo("a254")
        code_prefetch()
        touches(0, 6)
        for i in range(4): a(f"v_mov_b32 v{POI+i}, -1")
        addresses()
        skip = a.newlabel("NONON")
        a(f"s_cmp_lg_u32 s{sWI}, 0")
        a(f"s_cselect_b32 s{sT0}, 1, s{sB}")
        a(f"s_cmp_lg_u32 s{sT0}, 0")
        a(f"s_cbranch_scc1 {skip}")
        with cond():
            a(f"buffer_load_dword v{vKW}, off, {sr(SWS,4)}, 0 offset:{NONCE} sc1")
        a.label(skip)
        addr_setup()
        a(f"v_add_u32 v{vCQ}, s{sW1K}, v{vTQ}")
        a(f"v_add_u32 v{vCV}, s{sW1K}, v{vTV}")
        for r in (S0, S1, Q0, Q1): a(f"v_mov_b32 v{r}, 0")
        a(f"v_and_b32 v{vT0}, 31, v{vL}")
        a(f"v_bfe_u32 v{vT1}, v{vL}, 1, 3")
        a(f"v_xor_b32 v{vT1}, v{vT1}, v{vHH}")
        a(f"v_lshlrev_b32 v{vT0}, 7, v{vT0}")
        a(f"v_add_u32 v{vT0}, s{sWB}, v{vT0}")
        for t in range(4):
            a(f"v_xor_b32 v{vT2}, {2*t}, v{vT1}")
            a(f"v_lshl_add_u32 v{XA+t}, v{vT2}, 4, v{vT0}")
        a(f"s_lshl_b32 s{sT4}, s{sDT}, 7")
        dma_voff(vOA, vOB, 1024, sT4)
        tr_base(vWTA, vWTB, sRH, f"s{sWA}")
        pump.setup(1, 0)
        SCHED = {0: {0: [2, 3], 1: [4, 5], 2: [6], 3: [7]}, 1: {0: [2], 1: [3, 4], 2: [5, 6], 3: [7]}, 2: {0: [2, 3, 4], 1: [5], 2: [6], 3: [7]},
                 3: {0: [2], 1: [3], 2: [4], 3: [5], 4: [6], 5: [7]}, 4: {0: [2, 3], 1: [4], 2: [5], 3: [6], 4: [7]}}[opt("SCHED", 4)]
        JL = max(SCHED)
        cgid = {}
        def CGr(j):
            o = j * 4096
            a(f"ds_read_b64_tr_b16 {ar(CG,2)}, v{vCQ} offset:{32768+o}")
            a(f"ds_read_b64_tr_b16 {ar(CG+2,2)}, v{vCQ} offset:{32768+o+toff}")
            a(f"ds_read_b64_tr_b16 {ar(CG+4,2)}, v{vCV} offset:{o}")
            a(f"ds_read_b64_tr_b16 {ar(CG+6,2)}, v{vCV} offset:{o+toff}")
            a(f"ds_read_b64_tr_b16 {ar(CG+8,2)}, v{vCQ} offset:{o}")
            cgid[j] = a(f"ds_read_b64_tr_b16 {ar(CG+10,2)}, v{vCQ} offset:{o+toff}")
        def colsum(j):
            a.wait(lg=cgid[j])
            for k, c in enumerate((CK, CV, CQ)):
                mfma(ar(c,16), ar(ONESF,4), ar(CG+4*k,4), "0" if j == 0 else ar(c,16))
        def xreads(j):
            a.wait(vm=xid[j])
            return [a(f"ds_read_b128 {vr(XF+16*j+4*t,4)}, v{XA+t} offset:{(j&3)*4096}") for t in range(4)]
        xr = xreads(0)
        a.wait(vm=wid[0])
        a("s_barrier")
        stamp("p1_first")
        CGr(0); RG(0); RG(1); RG(2)
        colsum(0)
        CPY = 104; CS4 = 96
        initld = None
        for j in range(8):
            for t in range(4):
                a.wait(lg=xr[t])
                for k in range(4 if not opt("XNOD", 0) else 0):
                    r = XF + 16 * j + 4 * t + k
                    a(f"v_dot2_f32_bf16 v{S0+(k&1)}, v{r}, s{sONES}, v{S0+(k&1)}")
                    a(f"v_dot2_f32_bf16 v{Q0+(k&1)}, v{r}, v{r}, v{Q0+(k&1)}")
            if j == 7:
                a(f"s_lshr_b32 s{sT0}, s{sRB}, 1")
                a(f"s_sub_u32 s{sT0}, s{sT0}, s{sROTX}")
                a(f"s_and_b32 s{sT0}, s{sT0}, 7")
                a(f"s_cmp_eq_u32 s{sT0}, 0")
                a(f"s_cselect_b32 s{sT1}, 4096, 0")
                a(f"s_add_u32 s{sT1}, s{sT1}, {L_A}")
                a(f"v_add_u32 v{vT1}, s{sT1}, v{vL16}")
                a(f"v_add_u32 v{vT0}, s{sW1K}, v{vT1}")
                a(f"v_accvgpr_read_b32 v{CS4}, a{CK}")
                a(f"v_accvgpr_read_b32 v{CS4+1}, a{CV}")
                a(f"v_accvgpr_read_b32 v{CS4+2}, a{CQ}")
                cw = a(f"ds_write_b128 v{vT0}, {vr(CS4,4)}")
            for s in range(4 * j, 4 * j + 4):
                t = s & 3
                a.wait(lg=rg[s])
                b = WFR + (s % NWF) * 8
                x = vr(XF + 4 * s, 4)
                mfma(vr(ACCK,16), x, ar(b,4), "0" if s == 0 else vr(ACCK,16))
                if s + 3 < 32: RG(s + 3)
                if t == 1 and j < 7 and not opt("XNOC", 0): CGr(j + 1)
                if t == 2 and j < 7: xr = xreads(j + 1)
                if j == 7 and t == 1:
                    for w in range(4): cr = a(f"ds_read_b128 {vr(RR+4*w,4)}, v{vT1} offset:{1024*w}")
                    a(f"s_lshl_b32 s{sT0}, s{sT0}, 12")
                    a(f"s_and_b32 s{sT1}, s{sRB}, 1")
                    a(f"s_lshl_b32 s{sT1}, s{sT1}, 11")
                    a(f"s_add_u32 s{sT0}, s{sT0}, s{sT1}")
                    a(f"s_min_u32 s{sT2}, s{sW}, 2")
                    a(f"s_lshl_b32 s{sT2}, s{sT2}, 15")
                    a(f"s_add_u32 s{sT0}, s{sT0}, s{sT2}")
                    a(f"v_lshlrev_b32 v{vT1}, 8, v{vHH}")
                    a(f"v_sub_u32 v{vT0}, v{vTQ}, v{vT1}")
                    a(f"v_add_u32 v{vT0}, s{sT0}, v{vT0}")
                    for k in range(4): cp = a(f"ds_read_b64_tr_b16 {vr(CPY+2*k,2)}, v{vT0} offset:{512*k}")
                if j == 7 and t == 2:
                    a.wait(lg=cr)
                    for k in range(3):
                        a(f"v_add_f32 v{RR+k}, v{RR+k}, v{RR+4+k}")
                        a(f"v_add_f32 v{RR+8+k}, v{RR+8+k}, v{RR+12+k}")
                if j == 7 and t == 3:
                    split2(CKP, RR, vT0)
                    split2(CVP, RR + 1, vT1)
                mfma(vr(ACCV,16), x, ar(b+4,4), "0" if s == 0 else vr(ACCV,16))
                if t == 0:
                    if j < 7: a.wait(vm=wid[j + 1])
                    else: a.wait(lg=cw)
                    a("s_barrier")
                    if j == 1:
                        skip = a.newlabel("NOINIT")
                        a(f"s_cmp_lg_u32 s{sWI}, 0")
                        a(f"s_cselect_b32 s{sT0}, 1, s{sB}")
                        a(f"s_cmp_lg_u32 s{sT0}, 0")
                        a(f"s_cbranch_scc1 {skip}")
                        with cond():
                            a(f"v_add_u32 v{vKW}, 1, v{vKW}")
                            a(f"v_and_b32 v{vKW}, 0x3fffffff, v{vKW}")
                            a(f"v_or_b32 v{vKW}, 0x40000000, v{vKW}")
                            set_exec(1)
                            a(f"buffer_store_dword v{vKW}, off, {sr(SDBG,4)}, 0 sc1")
                            a(f"buffer_store_dword v{vKW}, off, {sr(SWS,4)}, 0 offset:{NONCE} sc1")
                            set_exec(FULL)
                        a.label(skip)
                if t <= 2 and j in SCHED and t < len(SCHED[j]):
                    x_issue(SCHED[j][t]); w_issue(SCHED[j][t])
                if t == 1 and j >= 4 and opt("WOP", 0) == 0: wo_issue(j - 4)
                if t == 3 and j == JL:
                    misc_loads()
                    touches(0, 8)
                if t == 3 and opt("SLOTST", 0) and j in (1, 3, 6): stamp(f"it{j}")
                if t == 2:
                    if j == 3: touches(0, 7)
                    if j == 5:
                        st_poison(POI); kv_poison(POI, 0); canary_poison(POI)
                    if j == 6:
                        tile_poison(POI, sAPQW, 0, 1024)
                    if j == 6:
                        initld = a(f"buffer_load_dword v{vT3}, off, {sr(SDBG,4)}, 0 sc1")
                    if j == 7:
                        for k in range(3): a(f"v_add_f32 v{RR+k}, v{RR+k}, v{RR+8+k}")
                        a(f"s_lshl_b32 s{sT1}, s{sRB}, 11")
                        a(f"s_add_u32 s{sT3}, s{sAWQT}, s{sT2}")
                        a(f"s_add_u32 s{sT3}, s{sT3}, s{sT1}")
                        a.wait(lg=cp)
                        ws_store4(CPY, sT3); ws_store4(CPY + 4, sT3, 1024)
                if t == 3 and j < 7 and not opt("XNOC", 0): colsum(j + 1)
        stamp("p1_gemm")
        a(f"v_add_f32 v{S0}, v{S0}, v{S1}")
        a(f"v_add_f32 v{Q0}, v{Q0}, v{Q1}")
        a(f"v_mov_b32 v{S1}, v{S0}")
        a(f"v_mov_b32 v{Q1}, v{Q0}")
        for c, p in ((CF, CKP), (CFV, CVP)):
            a(f"v_mov_b32 v{c}, v{p}"); a(f"v_mov_b32 v{c+1}, v{p}")
        a(f"v_permlane32_swap_b32 v{S0}, v{S1}")
        a(f"v_permlane32_swap_b32 v{Q0}, v{Q1}")
        a(f"v_add_f32 v{S0}, v{S0}, v{S1}")
        a(f"v_add_f32 v{Q0}, v{Q0}, v{Q1}")
        split2(CQP, RR + 2, vT1)
        stats_to_frags(S0, Q0, RA)
        mfma(vr(ACCK,16), vr(MA,4), vr(CF,4), vr(ACCK,16))
        mfma(vr(RR,16), vr(RA,4), ar(ONESF,4), "0")
        mfma(vr(ACCV,16), vr(MA,4), vr(CFV,4), vr(ACCV,16))
        touches(0, 1)
    else:
        addr_setup()
        next_layer_addresses()
        for c, p in ((CF, CKP), (CFV, CVP)):
            a(f"v_mov_b32 v{c}, v{p}"); a(f"v_mov_b32 v{c+1}, v{p}")
        a(f"v_and_b32 v{vT0}, 31, v{vL}")
        a(f"v_lshlrev_b32 v{vT0}, 3, v{vT0}")
        a(f"v_lshl_add_u32 v{vXA}, v{vHH}, 12, v{vT0}")
        a(f"s_lshl_b32 s{sT2}, s{sW}, 13")
        a(f"s_add_u32 s{sKB}, s{sAWQT}, s{sT2}")
        SB = T1
        def issue():
            for p in range(8): a(f"buffer_load_dwordx2 {vr(SB+2*p,2)}, v{vXA}, {sr(SWS,4)}, s{sAS2R} offen offset:{p*512} sc1")
        pump.setup(1, 1)
        poll(issue, lambda: stats_check(SB), 0x40)
        stamp("p1_flag")
        def XL(s):
            xid[s] = a(f"buffer_load_dwordx4 {vr(XF+4*s,4)}, v{vL16}, {sr(SWS,4)}, s{sSO} offen offset:{(s&3)*1024} sc1")
            if s == 15: a(f"s_xor_b32 s{sSO}, s{sAX2R}, 16384")
            elif s & 3 == 3 and s < 31: a(f"s_add_u32 s{sSO}, s{sSO}, 4096")
        LA = opt("LA1", 10)
        vMX = vW
        a(f"s_mov_b32 s{sSO}, s{sAX2R}")
        for s in range(LA): XL(s)
        a("s_barrier")
        stats_sum(SB)
        a(f"v_mov_b32 v{MA+2}, 0"); a(f"v_mov_b32 v{MA+3}, 0")
        stats_to_frags(SB, SB + 1, RA)
        mfma(vr(RR,16), vr(RA,4), ar(ONESF,4), "0")
        go = a.newlabel("XGO"); redo = a.newlabel("XREDO")
        a(f"s_branch {go}")
        a.label(redo)
        sv = dict(xid)
        with cond():
            a(f"s_mov_b32 s{sSO}, s{sAX2R}")
            for s in range(LA): XL(s)
        xid.update(sv)
        a.label(go)
        RG(0); RG(1); RG(2)
        a(f"v_mov_b32 v{vMX}, 0")
        a(f"s_mov_b32 s{sT3}, s{sKB}")
        mfma(vr(ACCK,16), vr(MA,4), vr(CF,4), "0")
        mfma(vr(ACCV,16), vr(MA,4), vr(CFV,4), "0")
        qid = None
        for s in range(32):
            a.wait(vm=xid[s], lg=rg[s])
            b = WFR + (s % NWF) * 8
            x = vr(XF + 4 * s, 4)
            mfma(vr(ACCK,16), x, ar(b,4), vr(ACCK,16))
            if s + LA < 32: XL(s + LA)
            elif s + LA - 32 < 8:
                j = s + LA - 32
                if j == 4: a(f"s_add_u32 s{sT3}, s{sT3}, 4096")
                if j & 3 == 0: a(f"s_add_u32 m0, s{sT2}, {j*1024}")
                qid = a(f"buffer_load_dwordx4 v{vL16}, {sr(SWS,4)}, s{sT3} offen offset:{(j&3)*1024} lds")
            mfma(vr(ACCV,16), x, ar(b+4,4), vr(ACCV,16))
            if s & 1: a(f"v_max3_u32 v{vMX}, v{vMX}, v{XF+4*s-4}, v{XF+4*s}")
            if s + 3 < 32: RG(s + 3)
        verify(vMX, redo)
        stamp("p1_gemm")
    a(f"v_bfe_u32 v{vT0}, v{vL}, 4, 1")
    a(f"v_cmp_ne_u32 vcc, 0, v{vT0}")
    a(f"v_lshl_add_u32 v{vT0}, v{vT0}, 1, v{vHH}")
    a(f"v_mul_u32_u24 v{vT0}, 17, v{vT0}")
    a(f"v_and_b32 v{vT1}, 15, v{vL}")
    a(f"v_add_u32 v{vT0}, v{vT0}, v{vT1}")
    a(f"v_lshlrev_b32 v{vT0}, 5, v{vT0}")
    a(f"v_add_u32 v{vT0}, s{sWA}, v{vT0}")
    a(f"s_mul_i32 s{sT0}, s{sW}, 544")
    a(f"s_add_u32 s{sT0}, s{sT0}, {L_A + SCR}")
    a(f"v_add_u32 v{vXA}, s{sT0}, v{vL16}")
    a("s_barrier")
    for q in range(8): pk("fma", ACCK+2*q, vr(ACCK+2*q,2), vr(RR+2*q,2), sr(sEPS6,2), hi=[1,1,0])
    for q in range(8): pk("mul", T1+2*q, vr(ACCK+2*q,2), sr(sL2E,2), hi=[1,0])
    for i in range(16):
        a(f"v_exp_f32_e64 v{T1+i}, v{T1+i} clamp")
        a(f"v_max_f32 v{ACCK+i}, s{sEPS6}, v{ACCK+i}")
    for q in range(8): pk("add", ACCK+2*q, vr(ACCK+2*q,2), vr(T1+2*q,2))
    for q in range(8): a(f"v_cvt_pk_bf16_f32 v{PK+q}, v{ACCK+2*q}, v{ACCK+2*q+1}")
    ZA = T1
    for q in range(4): pk("mul", ACCV+2*q, vr(ACCV+2*q,2), vr(RR+2*q,2))
    for q in range(4, 8): pk("mul", ACCV+2*q, vr(ACCV+2*q,2), vr(RR+2*q,2))
    mfma(vr(ZA,16), vr(PK,4), ar(ONESF,4), "0")
    for q in range(4): a(f"v_cvt_pk_bf16_f32 v{VV+q}, v{ACCV+2*q}, v{ACCV+2*q+1}")
    mfma(vr(ZA,16), vr(PK+4,4), ar(ONESF,4), vr(ZA,16))
    for q in range(4, 8): a(f"v_cvt_pk_bf16_f32 v{VV+q}, v{ACCV+2*q}, v{ACCV+2*q+1}")
    KVA = RR
    mfma(vr(KVA,16), vr(PK,4), vr(VV,4), "0")
    mfma(vr(KVA,16), vr(PK+4,4), vr(VV+4,4), vr(KVA,16))
    for j in range(8): a(f"v_cndmask_b32 v{ACCK+8+j}, v{ZA+j}, v{ZA+8+j}, vcc")
    set_exec(0x0001000100010001)
    a(f"ds_write_b128 v{vT0}, {vr(ACCK+8,4)} offset:{SCR+512}")
    a(f"ds_write_b128 v{vT0}, {vr(ACCK+12,4)} offset:{SCR+528}")
    set_exec(FULL)
    for j in range(4): a(f"v_cndmask_b32 v{ACCK+j}, v{KVA+j}, v{KVA+8+j}, vcc")
    a(f"ds_write_b128 v{vT0}, {vr(ACCK,4)} offset:{SCR}")
    for j in range(4, 8): a(f"v_cndmask_b32 v{ACCK+j}, v{KVA+j}, v{KVA+8+j}, vcc")
    a(f"ds_write_b128 v{vT0}, {vr(ACCK+4,4)} offset:{SCR+16}")
    if L == 0:
        def issue(): a(f"buffer_load_dword v{vT3}, off, {sr(SDBG,4)}, 0 sc1")
        def check(): a(f"v_cmp_eq_u32 vcc, 0, v{vT3}")
        poll(issue, check, 0x10, pre=initld)
        a(f"v_readfirstlane_b32 s{sNON}, v{vT3}")
    NQ = 8; QLA = 6
    rq = {}
    def RQ(s):
        b = WFR + (s % NQ) * 4
        if L == 0:
            a(f"ds_read_b64_tr_b16 {ar(b,2)}, v{vTQ} offset:{s*1024}")
            rq[s] = a(f"ds_read_b64_tr_b16 {ar(b+2,2)}, v{vTQ} offset:{s*1024+toff}")
        else:
            rq[s] = a(f"ds_read_b128 {ar(b,4)}, v{vTQ2 if s >= 16 else vTQ} offset:{(s&15)*1024}")
    a(f"v_mov_b32 v{CFQ}, v{CQP}"); a(f"v_mov_b32 v{CFQ+1}, v{CQP}")
    if L == 1: a.wait(vm=qid)
    a.wait_lg_all()
    a("s_barrier")
    for w in range(4): kr = a(f"ds_read_b128 {vr(RR+4*w,4)}, v{vXA} offset:{16384*w}")
    for s in range(QLA): RQ(s)
    ACCQ = ACCK
    mfma(vr(ACCQ,16), vr(CFQ,4), vr(MA,4), "0")
    a.wait(lg=kr)
    for j in range(4): a(f"v_add_f32 v{RR+j}, v{RR+j}, v{RR+4+j}")
    for j in range(4): a(f"v_add_f32 v{RR+8+j}, v{RR+8+j}, v{RR+12+j}")
    for j in range(4): a(f"v_add_f32 v{RR+j}, v{RR+j}, v{RR+8+j}")
    set_exec((1 << 40) - 1)
    a(f"v_writelane_b32 v{RR}, s{sNON}, 34")
    ws_store4(RR, sAKVP)
    set_exec(FULL)
    stamp("p1_kvpub")
    touches(L, 2)
    nfill = optL("F0", L, 0, 5)
    for s in range(32):
        a.wait(lg=rq[s])
        b = WFR + (s % NQ) * 4
        mfma(vr(ACCQ,16), ar(b,4), vr(XF+4*s,4), vr(ACCQ,16))
        if s + QLA < 32: RQ(s + QLA)
        if s % 3 == 1 and pump.i < pump.c + nfill: pump.fill(pump.i + 1)
        if L == 0 and opt("WOP", 0) == 1 and s % 8 == 0: wo_issue(s // 8)
        if s == opt("A1S", 26):
            a1_early(L); vm_a1 = a.vm
    for h in range(2):
        for q in range(4*h, 4*h+4): pk("fma", ACCQ+2*q, vr(ACCQ+2*q,2), vr(vRS,2), sr(sEPS6,2), hi=[1,0,0])
        for q in range(4*h, 4*h+4): pk("mul", T1+2*q, vr(ACCQ+2*q,2), sr(sL2E,2), hi=[1,0])
        for i in range(8*h, 8*h+8):
            a(f"v_exp_f32_e64 v{T1+i}, v{T1+i} clamp")
            a(f"v_max_f32 v{ACCQ+i}, s{sEPS6}, v{ACCQ+i}")
        for q in range(4*h, 4*h+4): pk("add", ACCQ+2*q, vr(ACCQ+2*q,2), vr(T1+2*q,2))
        for q in range(4*h, 4*h+4): a(f"v_cvt_pk_bf16_f32 v{PK+q}, v{ACCQ+2*q}, v{ACCQ+2*q+1}")
        ws_store4(PK + 4 * h, sAPQW, 1024 * h)
    if L == 0:
        for k in range(4): a(f"v_mov_b32 v{T1+k}, s{sNON}")
        a(f"s_sub_u32 s{sT0}, s{sAPQW}, {PQ[0]:#x}")
        a(f"s_lshr_b32 s{sT0}, s{sT0}, 4")
        a(f"s_add_u32 s{sT0}, s{sT0}, {TAGQ:#x}")
        set_exec(0xff)
        ws_store4(T1, sT0)
        set_exec(FULL)
    stamp("p1_q")
    a1(L, a.vm - vm_a1)
    pump.fill(pump.c + optL("F1", L, 6, 5))
    touches(L, 3)

def row_stats_publish(soff, SM):
    a(f"v_dot2_f32_bf16 v{SM}, v{XR}, s{sONES}, 0")
    a(f"v_dot2_f32_bf16 v{SM+1}, v{XR}, v{XR}, 0")
    a(f"v_dot2_f32_bf16 v{SM+2}, v{XR+1}, s{sONES}, 0")
    a(f"v_dot2_f32_bf16 v{SM+3}, v{XR+1}, v{XR+1}, 0")
    for j in range(2, 8):
        o = 2 * (j & 1)
        a(f"v_dot2_f32_bf16 v{SM+o}, v{XR+j}, s{sONES}, v{SM+o}")
        a(f"v_dot2_f32_bf16 v{SM+o+1}, v{XR+j}, v{XR+j}, v{SM+o+1}")
    a(f"v_lshlrev_b32 v{vT0}, 3, v{vL}")
    pk("add", SM, vr(SM,2), vr(SM+2,2))
    a(f"v_mov_b32 v{SM+2}, v{SM}")
    a(f"v_mov_b32 v{SM+3}, v{SM+1}")
    a(f"v_permlane32_swap_b32 v{SM}, v{SM+2}")
    a(f"v_permlane32_swap_b32 v{SM+1}, v{SM+3}")
    pk("add", SM, vr(SM,2), vr(SM+2,2))
    a(f"s_mov_b32 exec_hi, 0")
    a(f"v_and_b32 v{SM+1}, 0x7fffffff, v{SM+1}")
    a(f"buffer_store_dwordx2 {vr(SM,2)}, v{vT0}, {sr(SWS,4)}, s{soff} offen sc1")
    set_exec(FULL)

def unpack_xr(XU):
    for j in range(8):
        a(f"v_lshlrev_b32 v{XU+2*j}, 16, v{XR+j}")
        a(f"v_and_b32 v{XU+2*j+1}, 0xffff0000, v{XR+j}")

def p2(L):
    a.c(f"======== P2 layer {L}")
    KF, QF = 128, 192
    ACC = 32; CR = 64; OF = 96; WF = 104; XU = 64
    vK, vKC, vMX = MA, MA + 1, MA + 2
    tr_base(vTA, vTB, sKH, L_B)
    a(f"s_lshl_b32 s{sT2}, s{sKH}, 15")
    a(f"v_add_u32 v{vTA}, s{sT2}, v{vTA}")
    a(f"v_add_u32 v{vTB}, s{sT2}, v{vTB}")
    a(f"v_and_b32 v{vT0}, 31, v{vL}")
    a(f"v_mul_u32_u24 v{vKC}, 384, v{vT0}")
    a(f"v_min_u32 v{vT0}, 16, v{vT0}")
    a(f"v_lshlrev_b32 v{vT0}, 4, v{vT0}")
    a(f"v_mul_u32_u24 v{vT1}, 384, v{vHH}")
    a(f"v_add_u32 v{vK}, v{vT0}, v{vT1}")
    a(f"v_and_b32 v{vT2}, 7, v{vL}")
    a(f"v_lshlrev_b32 v{vT2}, {11 if L else 7}, v{vT2}")
    if L == 0:
        a(f"s_sub_u32 s{sT0}, s{sAPQR}, {PQ[0]:#x}")
        a(f"s_lshr_b32 s{sT0}, s{sT0}, 4")
        a(f"s_add_u32 s{sT0}, s{sT0}, {TAGQ:#x}")
    pump.run(min(R1 + 5, optL("B1", L, 18, 21)), refill=bool(optL("B1R", L, 1, 0)))
    set_poi(CR)
    tile_poison(CR, sAHTW, 0, 2048)
    stamp("beta")
    if L == 1: poll1(f"v{vT2}, {sr(SWS,4)}, s{sAPQR} offen offset:2044", 0x36 + L, tmp=vMX)
    else: poll1(f"v{vT2}, {sr(SWS,4)}, s{sT0} offen", 0x36 + L, tmp=vMX, tag=True)
    stamp("p2_pqc")
    def ldq():
        a(f"s_mov_b32 s{sT4}, s{sAPQR}")
        for j in range(16):
            a(f"buffer_load_dwordx4 {vr(QF+4*j,4)}, v{vL16}, {sr(SWS,4)}, s{sT4} offen offset:{(j&3)*1024} sc1")
            if j & 3 == 3 and j < 15: a(f"s_add_u32 s{sT4}, s{sT4}, 4096")
    ldq()
    if L == 0:
        a.wait(vm=G['wo'])
        for q in range(2):
            a(f"v_permlane32_swap_b32 v{XR+4*q}, v{XR+4*q+2}")
            a(f"v_permlane32_swap_b32 v{XR+4*q+1}, v{XR+4*q+3}")
        a(f"v_lshlrev_b32 v{vB2}, 16, v{vB2}")
    pump.run(min(R1 + 5, pump.i), refill=False)
    pump.run(min(R1 + 5, optL("B2", L, 0, 0)), refill=False)
    pump.fill(pump.c + optL("FK", L, 0, 0))
    a(f"s_xor_b32 s{sT0}, s{sW}, 1")
    a(f"s_lshl_b32 s{sT0}, s{sT0}, 12")
    a(f"v_add_u32 v{vRS}, s{sT0}, v{vL16}")
    a.wait_lg_all()
    a("s_barrier")
    rw = {}
    def RW(j):
        b = WF + (j % 3) * 8
        a(f"ds_read_b64_tr_b16 {vr(b,2)}, v{vTA} offset:{j*2048}")
        a(f"ds_read_b64_tr_b16 {vr(b+2,2)}, v{vTA} offset:{j*2048+1024}")
        a(f"ds_read_b64_tr_b16 {vr(b+4,2)}, v{vTB} offset:{j*2048}")
        rw[j] = a(f"ds_read_b64_tr_b16 {vr(b+6,2)}, v{vTB} offset:{j*2048+1024}")
    poll1(f"v{vKC}, {sr(SWS,4)}, s{sAKVF} offen offset:272", 0x38 + L, tmp=vT2, tag=True)
    stamp("p2_kvc")
    redo = a.newlabel("P2REDO"); go = a.newlabel("P2GO")
    a(f"s_branch {go}")
    a.label(redo)
    with cond():
        ldq()
        a("s_waitcnt vmcnt(0)")
    a.label(go)
    lid = {}
    def LD(j):
        if j == 0: a(f"s_mov_b32 s{sSO}, s{sAKVF}")
        elif j & 3 == 0: a(f"s_add_u32 s{sSO}, s{sSO}, {4*768}")
        lid[j] = a(f"buffer_load_dwordx4 {vr(KF+4*j,4)}, v{vK}, {sr(SWS,4)}, s{sSO} offen offset:{(j&3)*768} sc1")
    PLA = optL("PLA", L, 10, 10)
    for j in range(PLA): LD(j)
    RW(0); RW(1)
    unpack_xr(ACC)
    a(f"v_mov_b32 v{vMX}, 0")
    def M1(j):
        a.wait(vm=lid[j])
        mfma(vr(CR+(j&1)*16,16), vr(KF+4*j,4), vr(QF+4*j,4), "0")
        a(f"v_max3_u32 v{vMX}, v{vMX}, v{KF+4*j}, v{QF+4*j}")
        if j + PLA < 16: LD(j + PLA)
        if j + PLA == 16: touches(L, 9)
    def Va(j):
        c = CR + (j & 1) * 16
        a(f"v_add_f32 v{c+8}, s{sEPS6}, v{c+8}")
        a(f"v_rcp_f32 v{c+8}, v{c+8}")
    def Vb(j):
        c = CR + (j & 1) * 16; o = OF + (j & 1) * 4
        for i in range(4): a(f"v_mul_f32 v{c+i}, v{c+i}, v{c+8}")
        for i in range(2): a(f"v_cvt_pk_bf16_f32 v{o+i}, v{c+2*i}, v{c+2*i+1}")
    def Vc(j):
        c = CR + (j & 1) * 16; o = OF + (j & 1) * 4
        for i in range(4, 8): a(f"v_mul_f32 v{c+i}, v{c+i}, v{c+8}")
        for i in range(2, 4): a(f"v_cvt_pk_bf16_f32 v{o+i}, v{c+2*i}, v{c+2*i+1}")
    M1(0); M1(1)
    Va(0); Vb(0); Vc(0); M1(2)
    nfp = optL("FP2", L, 6, 6)
    kb_saved = False
    for j in range(16):
        o = OF + (j & 1) * 4; b = WF + (j % 3) * 8
        if j + 1 < 16: Va(j + 1)
        a.wait(lg=rw[j])
        mfma(vr(ACC+16,16), vr(b+4,4), vr(o,4), "0" if j == 0 else vr(ACC+16,16))
        if j + 1 < 16: Vb(j + 1)
        mfma(vr(ACC,16), vr(b,4), vr(o,4), vr(ACC,16))
        if j + 1 < 16: Vc(j + 1)
        if j + 3 < 16: M1(j + 3)
        if j + 2 < 16: RW(j + 2)
    verify(vMX, redo)
    stamp("p2_main")
    for q in range(4): a(f"ds_write_b128 v{vRS}, {vr(ACC+16+4*q,4)} offset:{q*1024}")
    a(f"v_xor_b32 v{vT1}, 4096, v{vRS}")
    touches(L, 4)
    a.wait_lg_all()
    a("s_barrier")
    ids = [a(f"ds_read_b128 {vr(ACC+16+4*q,4)}, v{vT1} offset:{q*1024}") for q in range(4)]
    for q in range(4):
        a.wait(lg=ids[q])
        pk("add", ACC+4*q, vr(ACC+4*q,2), vr(ACC+16+4*q,2))
        pk("add", ACC+4*q+2, vr(ACC+4*q+2,2), vr(ACC+16+4*q+2,2))
        a(f"v_cvt_pk_bf16_f32 v{XR+2*q}, v{ACC+4*q}, v{ACC+4*q+1}")
        a(f"v_cvt_pk_bf16_f32 v{XR+2*q+1}, v{ACC+4*q+2}, v{ACC+4*q+3}")
    row_stats_publish(sASTW, OF)
    stamp("p2_stpub")
    pump.run(pump.i, refill=False)
    pump.fill(pump.c + optL("GF", L, 6, 4))
    unpack_xr(XU)
    IDF = 104
    a(f"v_and_b32 v{vT0}, 31, v{vL}")
    a(f"v_lshlrev_b32 v{vT1}, 2, v{vHH}")
    a(f"v_sub_u32 v{vT0}, v{vT0}, v{vT1}")
    a(f"v_mov_b32 v{vT3}, 0x3f80")
    for f in range(2):
        for c in range(4):
            base = 16 * f + ((2 * c) & 3) + 8 * (c >> 1)
            a(f"v_subrev_u32 v{vT1}, {base}, v{vT0}")
            a(f"v_cmp_gt_u32 vcc, 2, v{vT1}")
            a(f"v_lshlrev_b32 v{vT1}, 4, v{vT1}")
            a(f"v_lshlrev_b32 v{vT2}, v{vT1}, v{vT3}")
            a(f"v_cndmask_b32 v{IDF+4*f+c}, 0, v{vT2}, vcc")
    SB = 128
    a(f"v_and_b32 v{vT0}, 31, v{vL}")
    a(f"v_lshlrev_b32 v{vT0}, 3, v{vT0}")
    a(f"v_lshl_add_u32 v{vT2}, v{vHH}, 12, v{vT0}")
    a(f"v_mov_b32 v{SB+16}, {fl(1.0+1e-5)}")
    def issue():
        for p in range(8): a(f"buffer_load_dwordx2 {vr(SB+2*p,2)}, v{vT2}, {sr(SWS,4)}, s{sASTR} offen offset:{p*512} sc1")
    poll(issue, lambda: stats_check(SB), 0x34 + L)
    stamp("p2_stats")
    if optL("SF", L, 6, 3):
        pump.run(pump.i, refill=False)
        pump.fill(pump.c + optL("SF", L, 6, 3))
    stats_sum(SB)
    a(f"v_mul_f32 v{SB}, {fl(-1/512)}, v{SB}")
    a(f"v_mul_f32 v{SB+1}, {fl(1/512)}, v{SB+1}")
    a(f"v_fma_f32 v{SB+1}, -v{SB}, v{SB}, v{SB+1}")
    a(f"v_max_f32 v{SB+1}, 0, v{SB+1}")
    a(f"v_fmaak_f32 v{SB+1}, v{SB+1}, v{SB+16}, {fl(1e-10)}")
    a(f"v_rsq_f32 v{SB+2}, v{SB+1}")
    a(f"v_mul_f32 v{SB}, v{SB}, v{SB+2}")
    HP_ = 112
    for f in range(2):
        for j in range(4*f, 4*f+4):
            pk("fma", XU+2*j, vr(XU+2*j,2), vr(SB+2,2), vr(SB,2), hi=[1,0,0])
    for f in range(2):
        for j in range(4*f, 4*f+4):
            a(f"v_cvt_pk_bf16_f32 v{HP_+j}, v{XU+2*j}, v{XU+2*j+1}")
        mfma(vr(ACC,16), vr(HP_+4*f,4), vr(IDF+4*f,4), "0" if f == 0 else vr(ACC,16))
    for f in range(2):
        for j in range(4): a(f"v_cvt_pk_bf16_f32 v{ACC+16+4*f+j}, v{ACC+8*f+2*j}, v{ACC+8*f+2*j+1}")
        ws_store4(ACC + 16 + 4 * f, sAHTW, 2048 * f)
    touches(L, 5)
    stamp(f"p2_{L}")

ACC = 32; RING = 96; AUX = 144
vR1, vR2, vR3, vRA, vRB = vT0, vT1, vT2, vRS, MA + 2
def stream(kind, nks, srot, sbase, code, tail=None, each=None):
    NR = 6; LK = NR - 1
    vA, vB, vMX, vC = vTA, vTB, MA, MA + 1
    a(f"s_lshl_b32 s{sT0}, s{sKH}, 10")
    a(f"v_add_u32 v{vA}, s{sT0}, v{vL16}")
    a(f"v_xor_b32 v{vB}, 1024, v{vA}")
    a(f"v_add_u32 v{vA}, s{sbase}, v{vA}")
    a(f"v_add_u32 v{vB}, s{sbase}, v{vB}")
    a(f"v_min_u32 v{vT0}, {nks-1}, v{vL}")
    a(f"v_lshrrev_b32 v{vT1}, 1, v{vT0}")
    a(f"v_and_b32 v{vT0}, 1, v{vT0}")
    a(f"v_lshlrev_b32 v{vT0}, 10, v{vT0}")
    a(f"v_lshl_add_u32 v{vC}, v{vT1}, 12, v{vT0}")
    for acc, r in ((1, vR1), (2, vR2)):
        a(f"s_xor_b32 s{sT0}, s{sW}, {acc}")
        a(f"s_lshl_b32 s{sT0}, s{sT0}, 13")
        a(f"v_add_u32 v{r}, s{sT0}, v{vL16}")
    a(f"s_xor_b32 s{sT0}, s{sW}, 3")
    a(f"s_lshl_b32 s{sT0}, s{sT0}, 14")
    a(f"v_add_u32 v{vR3}, s{sT0}, v{vL16}")
    a(f"s_lshl_b32 s{sT0}, s{sW}, 13")
    a(f"v_add_u32 v{vRA}, s{sT0}, v{vL16}")
    a(f"v_add_u32 v{vRB}, s{sWA}, v{vL16}")
    ids = {}
    def LDa(s):
        b = RING + (s % NR) * 8
        if s & 1 == 0 and s > 0:
            a(f"s_add_u32 s{sSO}, s{sSO}, 4096")
            a(f"s_cmp_eq_u32 s{sSO}, {nks*2048}")
            a(f"s_cselect_b32 s{sSO}, 0, s{sSO}")
        a(f"buffer_load_dwordx4 {vr(b,4)}, v{vA}, {sr(SWS,4)}, s{sSO} offen offset:{(s&1)*2048} sc1")
    def LDb(s):
        b = RING + (s % NR) * 8
        ids[s] = a(f"buffer_load_dwordx4 {vr(b+4,4)}, v{vB}, {sr(SWS,4)}, s{sSO} offen offset:{(s&1)*2048} sc1")
    def run():
        redo = a.newlabel("SREDO")
        a(f"s_mov_b32 s{sKB}, s{sWOFF}")
        poll1(f"v{vC}, {sr(SWS,4)}, s{sbase} offen offset:{2048+1020}", code, tmp=MA + 3)
        stamp("canary")
        a.label(redo)
        a(f"s_lshl_b32 s{sSO}, s{srot}, 11")
        for s in range(LK): LDa(s); LDb(s)
        a(f"s_mov_b32 s{sWOFF}, s{sKB}")
        a(f"v_mov_b32 v{vMX}, 0")
        for s in range(nks):
            a.wait(vm=ids[s])
            b = RING + (s % NR) * 8
            order = (0, 1, 2, 3) if s < nks - 1 else (1, 2, 3, 0)
            for n, acc in enumerate(order):
                wf = wreg(kind, s, 4 * (acc >> 1), 4); af = vr(b + 4 * (acc & 1), 4)
                c = "0" if s == 0 else vr(ACC + 16 * acc, 16)
                A_, B_ = (wf, af) if kind == 1 else (af, wf)
                mfma(vr(ACC+16*acc,16), A_, B_, c)
                if n == 0 and s + LK < nks: LDa(s + LK)
                if n == 1 and s + LK < nks: LDb(s + LK)
                if n == (2 if s < nks - 1 else 0): a(f"v_max3_u32 v{vMX}, v{vMX}, v{b}, v{b+4}")
                if each and n == 2: each(s)
                if tail and s + LK >= nks and n < 3: tail(s + LK - nks, n)
        verify(vMX, redo)
    return run

def reduce4():
    for acc, r in ((1, vR1), (2, vR2), (3, vR3)):
        o = (0, 4096, L_A + SCR)[acc - 1]
        for q in range(4): a(f"ds_write_b128 v{r}, {vr(ACC+16*acc+4*q,4)} offset:{o+q*1024}")
    def sync_and_read():
        a.wait_lg_all(force=True)
        a("s_barrier")
        ids = {}
        for q in range(4):
            a(f"ds_read_b128 {vr(RING+4*q,4)}, v{vRA} offset:{q*1024}")
            ids[(q, 1)] = a(f"ds_read_b128 {vr(RING+16+4*q,4)}, v{vRA} offset:{4096+q*1024}")
            ids[(q, 2)] = a(f"ds_read_b128 {vr(RING+32+4*q,4)}, v{vRB} offset:{SCR+q*1024}")
        def add(q):
            a.wait(lg=ids[(q, 1)])
            for j in (0, 2): pk("add", RING+4*q+j, vr(RING+4*q+j,2), vr(RING+16+4*q+j,2))
            a.wait(lg=ids[(q, 2)])
            for j in (0, 2): pk("add", ACC+4*q+j, vr(ACC+4*q+j,2), vr(RING+32+4*q+j,2))
            for j in (0, 2): pk("add", ACC+4*q+j, vr(ACC+4*q+j,2), vr(RING+4*q+j,2))
        return add
    return sync_and_read

def p3(L):
    a.c(f"======== P3 layer {L}")
    B1R = AUX
    pump.run(pump.i, refill=True)
    lin(sT0, [(sFT, 128), (sRH, 64)])
    a(f"v_lshlrev_b32 v{vT0}, 3, v{vHH}")
    for q in range(4): bid = a(f"buffer_load_dwordx2 {vr(RING+2*q,2)}, v{vT0}, {sr(SB1,4)}, s{sT0} offen offset:{16*q}")
    set_poi(ACC)
    tile_poison(ACC, sAUW, 0, 2048)
    if L == 0:
        tile_poison(ACC, sAPQW, PQ[1] - PQ[0], 1024)
        kv_poison(ACC, 1)
    pump.run(32)
    a.wait_lg_all()
    if L == 1: a("s_barrier")
    pump.setup(2, L, extra=optL("XB", L, 0, 8))
    pump.run(optL("V2", L, 0, 0), refill=False)
    pump.fill(pump.c + optL("V2F", L, 0, 8))
    assert pump.c <= R2
    if L == 0: a("s_barrier")
    a.wait(vm=bid)
    for j in range(8):
        a(f"v_lshlrev_b32 v{B1R+2*j}, 16, v{RING+j}")
        a(f"v_and_b32 v{B1R+2*j+1}, 0xffff0000, v{RING+j}")
    stamp("p3_delta")
    idle = a.newlabel("P3IDLE"); join = a.newlabel("P3JOIN")
    pst = (pump.i, pump.c, dict(pump.vid), dict(pump.lid))
    a(f"s_cmp_eq_u32 s{sP3}, 7")
    a(f"s_cbranch_scc1 {idle}")
    SM = optL("SM", L, 0, 0); IDN = optL("IDT", L, 14, 0)
    with cond():
        ntail = optL("V2T", L, 5, 5)
        def tl(k, n):
            if n == 0 and k < ntail: pump.fill(pump.i + 1)
        each = None
        if SM:
            a(f"s_lshr_b32 s{sT1}, s{sWI}, 3")
            a(f"s_add_u32 s{sT1}, s{sT1}, 14")
            a(f"s_add_u32 s{sT1}, s{sT1}, s{sROT2}")
            a(f"s_sub_u32 s{sT2}, s{sT1}, 28")
            a(f"s_cselect_b32 s{sT1}, s{sT1}, s{sT2}")
            a(f"s_and_b32 s{sT2}, s{sWI}, 3")
            a(f"s_mul_i32 s{sT2}, s{sT2}, 28")
            a(f"s_add_u32 s{sT1}, s{sT1}, s{sT2}")
            a(f"s_lshl_b32 s{sT1}, s{sT1}, 16")
            a(f"s_bfe_u32 s{sT2}, s{sWI}, 0x10002")
            a(f"s_lshl_b32 s{sT2}, s{sT2}, 15")
            a(f"s_add_u32 s{sT1}, s{sT1}, s{sT2}")
            a(f"s_and_b32 s{sT2}, s{sB}, 7")
            a(f"s_lshl_b32 s{sT2}, s{sT2}, 9")
            a(f"s_add_u32 s{sT1}, s{sT1}, s{sT2}")
            def each(s):
                for hf in range(2):
                    k = 2 * s + hf
                    ln = k & 31
                    a(f"s_buffer_load_dword s{sDUM}, {sr(SW2,4)}, s{sT1} offset:{(ln>>2)*4096 + (ln&3)*128 + (k>>5)*64}")
        run = stream(1, 32, sROT1, sAHTR, 0x50 + L, tail=tl, each=each)
        run()
        stamp("gemm")
        sync = reduce4()
        K1 = -2.0 * 0.7978845608028654 * LOG2E
        a(f"s_mov_b32 s{sT2}, s{sGK}")
        a(f"v_mov_b32 v{vTA}, {fl(K1)}")
        for q in range(8): pk("add", ACC+2*q, vr(ACC+2*q,2), vr(B1R+2*q,2))
        add = sync()
        T = ACC + 16; PKD = ACC + 32
        for h in range(2):
            add(2 * h); add(2 * h + 1)
            R4 = range(4 * h, 4 * h + 4); R8 = range(8 * h, 8 * h + 8)
            for q in R4: pk("mul", T+2*q, vr(ACC+2*q,2), vr(ACC+2*q,2))
            for q in R4: pk("fma", T+2*q, vr(T+2*q,2), sr(sT2,2), vr(vTA,2), hi=[1,0,0])
            for q in R4: pk("mul", T+2*q, vr(T+2*q,2), vr(ACC+2*q,2))
            for i in R8: a(f"v_exp_f32 v{T+i}, v{T+i}")
            for q in R4: pk("add", T+2*q, vr(T+2*q,2), "1.0", hi=[1,0])
            for i in R8: a(f"v_rcp_f32 v{T+i}, v{T+i}")
            for q in R4: pk("mul", ACC+2*q, vr(ACC+2*q,2), vr(T+2*q,2))
            for q in R4: a(f"v_cvt_pk_bf16_f32 v{PKD+q}, v{ACC+2*q}, v{ACC+2*q+1}")
            ws_store4(PKD + 4 * h, sAUW, 2048 * h)
        a(f"s_branch {join}")
    a.label(idle)
    pump.i, pump.c, pump.vid, pump.lid = pst
    if IDN:
        a(f"v_lshrrev_b32 v{vT0}, 2, v{vL}")
        a(f"v_lshlrev_b32 v{vT0}, 12, v{vT0}")
        a(f"v_and_b32 v{vT1}, 3, v{vL}")
        a(f"v_lshl_add_u32 v{vT0}, v{vT1}, 7, v{vT0}")
        a(f"s_bfe_u32 s{sT0}, s{sWI}, 0x20002")
        a(f"s_mul_i32 s{sT0}, s{sT0}, {28*65536}")
        a(f"s_and_b32 s{sT1}, s{sB}, 7")
        a(f"s_lshl_b32 s{sT1}, s{sT1}, 9")
        a(f"s_add_u32 s{sT0}, s{sT0}, s{sT1}")
        a(f"v_add_u32 v{vT0}, s{sT0}, v{vT0}")
        a(f"s_add_u32 s{sT1}, s{sW}, s{sROT2}")
        a(f"s_add_u32 s{sT1}, s{sT1}, {28 - IDN}")
        for k in range((IDN + 3) // 4):
            a(f"s_sub_u32 s{sT2}, s{sT1}, 28")
            a(f"s_cselect_b32 s{sT1}, s{sT1}, s{sT2}")
            a(f"s_lshl_b32 s{sT2}, s{sT1}, 16")
            a(f"buffer_load_dword v31, v{vT0}, {sr(SW2,4)}, s{sT2} offen")
            a(f"s_add_u32 s{sT1}, s{sT1}, 4")
    pump.fill(pump.i + ntail)
    a.label(join)
    stamp(f"p3_{L}")

def p4(L):
    a.c(f"======== P4 layer {L}")
    if L == 0:
        set_poi(ACC)
        tile_poison(ACC, sAX2W, 0, 1024)
    pump.run(28)
    stamp("p4_w2")
    NKT = opt("NKT", 8)
    def kvdma(j):
        if j == 0: a(f"s_add_u32 s{sT3}, s{sAWQT}, s{sWA}")
        if j & 3 == 0:
            a(f"s_add_u32 m0, s{sWA}, {j*1024}")
            if j: a(f"s_add_u32 s{sT3}, s{sT3}, 4096")
        a(f"buffer_load_dwordx4 v{vL16}, {sr(SWS,4)}, s{sT3} offen offset:{(j&3)*1024} lds")
    def tl(k, n):
        j = 3 * k + n
        if j < NKT: kvdma(j)
    run = stream(2, 28, sROT2, sAUR, 0x60 + L, tail=tl if L == 0 else None)
    XU = AUX
    unpack_xr(XU)
    for q in range(8): pk("add", XU+2*q, vr(XU+2*q,2), vr(vB2-1,2), lo=[0,1], hi=[1,1])
    a.wait_lg_all()
    a("s_barrier")
    run()
    stamp("gemm")
    sync = reduce4()
    for q in range(8): pk("add", ACC+2*q, vr(ACC+2*q,2), vr(XU+2*q,2))
    add = sync()
    for h in range(2):
        add(2 * h); add(2 * h + 1)
        for q in range(4 * h, 4 * h + 4): a(f"v_cvt_pk_bf16_f32 v{XR+q}, v{ACC+2*q}, v{ACC+2*q+1}")
        if L == 0:
            ws_store4(XR + 4 * h, sAX2W, 1024 * h)
        else:
            a(f"v_permlane32_swap_b32 v{XR+4*h}, v{XR+4*h+2}")
            a(f"v_permlane32_swap_b32 v{XR+4*h+1}, v{XR+4*h+3}")
            a(f"buffer_store_dwordx4 {vr(XR+4*h,4)}, v{vOUT}, {sr(SOUT,4)}, 0 offen offset:{32*h}{['', ' sc1', ' nt', ' sc0 sc1'][opt('OST', 0)]}")
    if L == 0:
        row_stats_publish(sAS2W, ACC + 16)
        for j in range(NKT, 16): kvdma(j)
    stamp(f"p4_{L}")

prologue()
for L in range(2):
    p1(L); p2(L); p3(L); p4(L)
finish()
a.label("L_EXIT")
a("s_endpgm")
a.label("L_END")

hdr = open(f"ref.s").read().split("; Override launch")[0]
out = hdr + f"""; @launch grid=(256,1,1) block=(256,1,1) lds={LDS_BYTES}
.amdgcn_target "amdgcn-amd-amdhsa--gfx950"
.text
.globl {NAME}_kernel
.p2align 8
.type {NAME}_kernel,@function
{NAME}_kernel:
""" + a.text() + f""".section .rodata,"a"
.p2align 6
.amdhsa_kernel {NAME}_kernel
  .amdhsa_next_free_vgpr 512
  .amdhsa_next_free_sgpr 102
  .amdhsa_accum_offset 256
  .amdhsa_group_segment_fixed_size 0
  .amdhsa_kernarg_size 88
  .amdhsa_user_sgpr_count 2
  .amdhsa_user_sgpr_kernarg_segment_ptr 1
  .amdhsa_system_sgpr_workgroup_id_x 1
  .amdhsa_float_denorm_mode_32 3
.end_amdhsa_kernel
"""
outp = [x for x in sys.argv[1:] if x.endswith(".s")]
open(outp[0], "w").write(out)
if DIAG: open(outp[0] + ".stamps", "w").write("\n".join(stamp_names))
```

```python
import sys, struct
from contextlib import contextmanager
from asmlib import Asm, vr, ar, sr

NAME = "interleave_layers__linear_attn_block__mixer_token_mlp__prompt"
DIAG = "--diag" in sys.argv
OPT = {}
for a_ in sys.argv:
    if a_.startswith("-D"):
        k_, v_ = a_[2:].split("="); OPT[k_] = int(v_)
def opt(k, d): return OPT.get(k, d)
def optL(k, L, d0, d1): return OPT.get(f"{k}_{L}", (d0, d1)[L])
def f2u(x): return struct.unpack("<I", struct.pack("<f", x))[0]
def fl(x): return "0x%08x" % f2u(x)
FULL = (1 << 64) - 1
LOG2E = 1.4426950408889634

KVF = [0x2000, 0xC0000]; KVP = [0x8000, 0xC6000]; ST = [0x166000, 0x1A6000]; ST2 = 0x1E6000
SELFP = 0xC0000
PQ = [0x400000, 0x600000]; HT = [0x800000, 0xA00000]; U = [0xC00000, 0xE00000]; X2 = 0x1000000
WQT = 0x1200000
TS = 0x1400000
DUMP = 0x1500000
ERRS = 0x1520000
NONCE = 0x0; TAGQ = 0x1540000
WS_BYTES = 268435456
L_A = 32768; L_B = 98304; LDS_BYTES = 163840
NS = 6; SCR = 12288
sW = 3
SX, SWQKV, SWO, SW1, SW2, SWS, SOUT, SDBG, SB1, SB2, SCODE = 4, 8, 12, 16, 20, 24, 28, 32, 36, 40, 44
sST, sDT, sRB, sHP, sDT3, sFT, sP3, sRH, sKH, sWB, sTO, sONES = 48, 49, 50, 51, 52, 53, 54, 55, 56, 57, 58, 59
sEPS6 = 60; sB = 61
sT0, sT1, sT2, sT3, sT4, sT5 = 62, 63, 64, 65, 66, 67
sSO = 68; sW1K = 69; sTS = 70
sL2E = 74; sWA = 75; sROTX = 76; sROT1 = 77; sROT2 = 78; sRED = 79; sWOFF = 80; sKB = 81; sXC = 82; sWI = 83
sKA = 84
sAKVP, sAPQW, sAPQR, sAKVF, sASTW, sASTR, sAHTW, sAHTR, sAUW, sAUR, sAX2W, sAX2R, sAS2W, sAS2R, sAWQT, sGK = range(84, 100)
sDUM = 100; sNON = 101
vL, vL16, vTA, vTB, vT0, vT1, vT2, vT3 = 0, 1, 2, 3, 4, 5, 6, 7
XR = 8
CKP, CVP, CQP, vB2, vRS, vHH, vOUT, vTSV = 16, 17, 18, 19, 20, 21, 22, 23
vWA, vWB, vWTA, vWTB = 24, 25, 26, 27
MA = 28

a = Asm()
stamp_names = []
G = {}

@contextmanager
def cond():
    st = (a.vm, a.vm_done, a.lg, a.lg_done); h = list(a.hist)
    yield
    a.vm, a.vm_done, a.lg, a.lg_done = st[0], min(st[1], st[0]), st[2], min(st[3], st[2])
    a.hist = h

def stamp(name):
    if not DIAG: return
    if "--lite" in sys.argv and name not in ("start", "end", "p4_0"): return
    k = len(stamp_names); stamp_names.append(name)
    if opt("CYC", 0) and name not in ("start", "end"): a(f"s_memtime {sr(sTS,2)}")
    else: a(f"s_memrealtime {sr(sTS,2)}")
    if name in ("start", "end"): a(f"s_memtime {sr(sTS+2,2)}")
    a("s_waitcnt lgkmcnt(0)"); a.lg_done = a.lg
    a(f"v_writelane_b32 v{vTSV}, s{sTS}, {k}")
    if name in ("start", "end"): a(f"v_writelane_b32 v{vTSV}, s{sTS+2}, {62 if name == 'start' else 63}")

def srd(base, ptr, nbytes):
    a(f"s_mov_b32 s{base}, s{ptr}")
    a(f"s_and_b32 s{base+1}, s{ptr+1}, 0xffff")
    a(f"s_mov_b32 s{base+2}, {nbytes:#x}")
    a(f"s_mov_b32 s{base+3}, 0x20000")

def set_exec(mask):
    if mask == FULL: a("s_mov_b64 exec, -1")
    elif mask <= 64: a(f"s_mov_b64 exec, {mask}")
    else:
        a(f"s_mov_b32 exec_lo, {mask & 0xffffffff:#x}"); a(f"s_mov_b32 exec_hi, {mask >> 32:#x}")

def lin(dst, terms, const=0):
    first = True
    for r, m in terms:
        t = dst if first else sT5
        if m == 1 and not first: a(f"s_add_u32 s{dst}, s{dst}, s{r}"); continue
        if m & (m - 1) == 0: a(f"s_lshl_b32 s{t}, s{r}, {m.bit_length()-1}")
        else: a(f"s_mul_i32 s{t}, s{r}, {m}")
        if not first: a(f"s_add_u32 s{dst}, s{dst}, s{sT5}")
        first = False
    if const: a(f"s_add_u32 s{dst}, s{dst}, {const:#x}")

def timeout_path(code):
    a(f"s_mov_b32 s{sTO}, 0")
    if DIAG:
        a(f"v_mov_b32 v{vT3}, {code}")
        a(f"s_mov_b32 s{sT5}, {ERRS:#x}")
        a(f"buffer_store_dword v{vT3}, off, {sr(SWS,4)}, s{sT5}")
        a("s_waitcnt vmcnt(0)")

def poll(issue, check, code, pre=None):
    top = a.newlabel("POLL"); done = a.newlabel("PDONE"); chk = a.newlabel("PCHK")
    if pre is not None:
        a.wait(vm=pre)
        st = (a.vm, a.vm_done)
        a(f"s_branch {chk}")
    a.label(top)
    issue()
    a.wait_vm_all(force=True)
    if pre is not None: a.label(chk)
    check()
    a(f"s_cbranch_vccz {done}")
    h = list(a.hist); vmst = (a.vm, a.vm_done)
    if opt("PS", 2): a(f"s_sleep {opt('PS', 2)}")
    a(f"s_sub_u32 s{sTO}, s{sTO}, 1")
    a(f"s_cbranch_scc0 {top}")
    timeout_path(code)
    a.label(done)
    a.hist = h; a.vm, a.vm_done = vmst
    if pre is not None: a.vm, a.vm_done = st

def poll1(addr, code, tmp=None, tag=False):
    cmp = (lambda r: a(f"v_cmp_ne_u32 vcc, s{sNON}, v{r}")) if tag else (lambda r: a(f"v_cmp_eq_u32 vcc, -1, v{r}"))
    if tmp is None or not opt("PP", 0):
        poll(lambda: a(f"buffer_load_dword v{vT3}, {addr} sc1"), lambda: cmp(vT3), code)
        return
    top = a.newlabel("PP"); done = a.newlabel("PPD")
    a(f"buffer_load_dword v{vT3}, {addr} sc1")
    a(f"s_nop {opt('PPN', 15)}")
    a.label(top)
    for r, o in ((vT3, tmp), (tmp, vT3)):
        a(f"buffer_load_dword v{o}, {addr} sc1")
        a("s_waitcnt vmcnt(1)")
        cmp(r)
        a(f"s_cbranch_vccz {done}")
    h = list(a.hist)
    a(f"s_sub_u32 s{sTO}, s{sTO}, 2")
    a(f"s_cbranch_scc0 {top}")
    timeout_path(code)
    a.label(done)
    a.hist = h
    a.vm -= 1
    a.vm_done = a.vm - 1

def verify(vMX, redo):
    ok = a.newlabel("VOK")
    a(f"v_cmp_eq_u32 vcc, -1, v{vMX}")
    a(f"s_cbranch_vccz {ok}")
    h = list(a.hist)
    a("s_waitcnt vmcnt(0)")
    a(f"s_sub_u32 s{sTO}, s{sTO}, 64")
    a(f"s_cbranch_scc0 {redo}")
    a(f"s_mov_b32 s{sTO}, 0")
    a.label(ok)
    a.hist = h

def finish():
    if DIAG:
        stamp("end")
        lin(sT0, [(sB, 1024), (sW, 256)], TS)
        a(f"v_lshlrev_b32 v{vT0}, 2, v{vL}")
        a(f"buffer_store_dword v{vTSV}, v{vT0}, {sr(SWS,4)}, s{sT0} offen")
    a("s_endpgm")

def pk(op, d, x, y, z=None, hi=None, lo=None):
    ops = [x, y] + ([z] if z is not None else [])
    m = ""
    if lo: m += " op_sel:[" + ",".join(map(str, lo)) + "]"
    if hi: m += " op_sel_hi:[" + ",".join(map(str, hi)) + "]"
    a(f"v_pk_{op}_f32 {vr(d,2)}, " + ", ".join(ops) + m)

def mfma(d, A, B, C):
    a(f"v_mfma_f32_32x32x16_bf16 {d}, {A}, {B}, {C}")

def ws_store4(reg, soff, off=0): return a(f"buffer_store_dwordx4 {vr(reg,4)}, v{vL16}, {sr(SWS,4)}, s{soff} offen offset:{off} sc1")

def tr_base(dst_a, dst_b, sel_sgpr, region):
    a(f"v_bfe_u32 v{vT0}, v{vL}, 2, 2")
    a(f"v_lshl_add_u32 v{vT0}, v{vHH}, 2, v{vT0}")
    a(f"v_lshlrev_b32 v{dst_a}, 7, v{vT0}")
    a(f"v_bfe_u32 v{vT1}, v{vL}, 3, 1")
    a(f"v_lshl_add_u32 v{dst_a}, v{vT1}, 6, v{dst_a}")
    a(f"v_bfe_u32 v{vT1}, v{vL}, 4, 1")
    a(f"v_lshl_add_u32 v{dst_a}, v{vT1}, 5, v{dst_a}")
    a(f"v_and_b32 v{vT1}, 3, v{vL}")
    a(f"v_lshl_add_u32 v{dst_a}, v{vT1}, 3, v{dst_a}")
    a(f"s_lshl_b32 s{sT5}, s{sel_sgpr}, 6")
    a(f"v_xor_b32 v{dst_a}, s{sT5}, v{dst_a}")
    a(f"v_add_u32 v{dst_a}, {region}, v{dst_a}")
    a(f"v_xor_b32 v{dst_b}, 64, v{dst_a}")

def dma_voff(dst, dst2, pitch, scol):
    a(f"v_lshrrev_b32 v{vT0}, 3, v{vL}")
    a(f"v_mul_u32_u24 v{dst}, {pitch}, v{vT0}")
    a(f"v_bfe_u32 v{vT1}, v{vL}, 4, 1")
    a(f"v_lshlrev_b32 v{vT1}, 2, v{vT1}")
    a(f"v_and_b32 v{vT0}, 7, v{vL}")
    a(f"v_xor_b32 v{vT0}, v{vT0}, v{vT1}")
    a(f"v_lshl_add_u32 v{dst}, v{vT0}, 4, v{dst}")
    a(f"v_add_u32 v{dst}, s{scol}, v{dst}")
    a(f"v_add_u32 v{dst2}, {8*pitch-1024}, v{dst}")

R1, R2 = 16, 11
def wreg(kind, t, j, n):
    r, base = (R1, 0) if kind == 1 else (R2, R1 * 8)
    if t < r: return ar(base + 8 * t + j, n)
    t -= r
    if t < 5: return ar(216 + 8 * t + j, n)
    return vr(160 + 8 * (t - 5) + j, n)

class Pump:
    def setup(self, kind, L, extra=0):
        self.kind = kind
        self.pitch, self.srd, self.n = (3584, SW1, 32) if kind == 1 else (4096, SW2, 28)
        self.t0 = 0 if L == 0 else (R1 if kind == 1 else R2)
        self.extra = extra
        self.i = self.t0; self.c = self.t0; self.vid = {}; self.lid = {}
        a.c(f"pump setup W{kind}")
        lin(sT4, [(sFT if kind == 1 else sST, 128), (sW, self.n * 16 * self.pitch)])
        dma_voff(vWA, vWB, self.pitch, sT4)
        rot = sROT1 if kind == 1 else sROT2
        a(f"s_add_u32 s{sT5}, s{rot}, {self.t0}")
        a(f"s_sub_u32 s{sWOFF}, s{sT5}, {self.n}")
        a(f"s_cselect_b32 s{sWOFF}, s{sT5}, s{sWOFF}")
        a(f"s_mul_i32 s{sWOFF}, s{sWOFF}, {16*self.pitch}")
    def place(self, t):
        k = t - self.t0
        if k < self.extra: return ("B", k * 2048)
        return ("A", ((k - self.extra) % NS) * 2048)
    def prev_user(self, t):
        p = t - NS
        return p if p - self.t0 >= self.extra else None
    def room(self, lag=0):
        p = self.prev_user(self.i)
        return p is None or p < self.c - lag
    def issue1(self):
        t = self.i
        if opt("NOPUMP", 0):
            self.vid[t] = None; self.i += 1; return
        p = self.prev_user(t)
        if p is not None: a.wait(lg=self.lid[p])
        reg, o = self.place(t)
        a(f"s_add_u32 m0, s{sWB if reg == 'B' else sWA}, {o}")
        if t > self.t0:
            a(f"s_add_u32 s{sWOFF}, s{sWOFF}, {16*self.pitch}")
            a(f"s_cmp_eq_u32 s{sWOFF}, {self.n*16*self.pitch}")
            a(f"s_cselect_b32 s{sWOFF}, 0, s{sWOFF}")
        a(f"buffer_load_dwordx4 v{vWA}, {sr(self.srd,4)}, s{sWOFF} offen lds")
        self.vid[t] = a(f"buffer_load_dwordx4 v{vWB}, {sr(self.srd,4)}, s{sWOFF} offen offset:1024 lds")
        self.i += 1
    def fill(self, upto=None):
        lim = self.n if upto is None else min(self.n, upto)
        while self.i < lim and self.room(): self.issue1()
    def run(self, target, refill=True):
        target = min(target, self.n)
        haveB = False
        while self.c < target:
            t = self.c
            if t >= self.i: self.issue1()
            if opt("NOPUMP", 0):
                self.c += 1; continue
            reg, o = self.place(t)
            ta, tb = vWTA, vWTB
            if reg == "B":
                ta, tb = vT0, vT1
                if not haveB:
                    a(f"v_add_u32 v{vT0}, 65536, v{vWTA}"); a(f"v_add_u32 v{vT1}, 65536, v{vWTB}"); haveB = True
            a.wait(vm=self.vid[t])
            a(f"ds_read_b64_tr_b16 {wreg(self.kind,t,0,2)}, v{ta} offset:{o}")
            a(f"ds_read_b64_tr_b16 {wreg(self.kind,t,2,2)}, v{ta} offset:{o+1024}")
            a(f"ds_read_b64_tr_b16 {wreg(self.kind,t,4,2)}, v{tb} offset:{o}")
            self.lid[t] = a(f"ds_read_b64_tr_b16 {wreg(self.kind,t,6,2)}, v{tb} offset:{o+1024}")
            self.c += 1
            lim = self.n if refill else target
            if self.i < lim and self.room(lag=1): self.issue1()
        if refill: self.fill()
pump = Pump()

def prologue():
    a(f"s_cmp_ge_u32 s2, 256")
    a(f"s_cbranch_scc1 L_EXIT")
    a(f"s_load_dwordx16 {sr(sKA,16)}, s[0:1], 0")
    a(f"s_load_dwordx4 {sr(SCODE,4)}, s[0:1], 64")
    a(f"s_load_dwordx2 s[100:101], s[0:1], 80")
    a(f"s_mov_b32 s{sB}, s2")
    a(f"v_lshrrev_b32 v{vT0}, 6, v0")
    a(f"v_and_b32 v{vL}, 63, v0")
    a(f"v_readfirstlane_b32 s{sW}, v{vT0}")
    a(f"v_lshlrev_b32 v{vL16}, 4, v{vL}")
    a(f"v_lshrrev_b32 v{vHH}, 5, v{vL}")
    if opt("CODEPF", 2) == 2:
        a(f"s_getpc_b64 {sr(SB1,2)}")
        a.label("L_PC")
        a(f"s_and_b32 s{SB1+1}, s{SB1+1}, 0xffff")
        a(f"s_mov_b32 s{SB1+2}, L_END - L_PC")
        a(f"s_mov_b32 s{SB1+3}, 0x20000")
        a(f"s_lshr_b32 s{sT0}, s{sB}, 3")
        a(f"s_lshl_b32 s{sT0}, s{sT0}, 2")
        a(f"s_add_u32 s{sT0}, s{sT0}, s{sW}")
        a(f"s_lshl_b32 s{sT0}, s{sT0}, 10")
        a(f"buffer_load_dwordx4 {ar(252,4)}, v{vL16}, {sr(SB1,4)}, s{sT0} offen")
    if DIAG: a(f"v_mov_b32 v{vTSV}, 0")
    stamp("start")
    X_, I_ = sT0, sT1
    a(f"s_and_b32 s{X_}, s{sB}, 7")
    a(f"s_lshr_b32 s{I_}, s{sB}, 3")
    a(f"s_lshr_b32 s{sT2}, s{I_}, 3")
    a(f"s_and_b32 s{sDT}, s{I_}, 7")
    a(f"s_and_b32 s{sRB}, s{X_}, 3")
    a(f"s_lshl_b32 s{sRB}, s{sRB}, 2")
    a(f"s_add_u32 s{sRB}, s{sRB}, s{sT2}")
    a(f"s_lshr_b32 s{sHP}, s{X_}, 2")
    a(f"s_lshl_b32 s{sHP}, s{sHP}, 3")
    a(f"s_add_u32 s{sHP}, s{sHP}, s{sDT}")
    a(f"s_lshr_b32 s{sROTX}, s{sDT}, 1")
    a(f"s_add_u32 s{sROTX}, s{sROTX}, s{sT2}")
    a(f"s_and_b32 s{sROTX}, s{sROTX}, 3")
    a(f"s_lshl_b32 s{sROTX}, s{sROTX}, 1")
    a(f"s_and_b32 s{sT3}, s{I_}, 1")
    a(f"s_add_u32 s{sROTX}, s{sROTX}, s{sT3}")
    a(f"s_lshl_b32 s{sW1K}, s{sW}, 10")
    a(f"s_lshl_b32 s{sWB}, s{sW}, 14")
    a(f"s_add_u32 s{sWA}, s{sWB}, {L_A}")
    a(f"s_add_u32 s{sWB}, s{sWB}, {L_B}")

def roles2():
    X_, I_ = sT0, sT1
    a(f"s_and_b32 s{X_}, s{sB}, 7")
    a(f"s_lshr_b32 s{I_}, s{sB}, 3")
    a(f"s_lshr_b32 s{sT2}, s{I_}, 3")
    a(f"s_lshl_b32 s{sST}, s{X_}, 2")
    a(f"s_add_u32 s{sST}, s{sST}, s{sT2}")
    a(f"s_lshr_b32 s{sT3}, s{X_}, 1")
    a(f"s_mul_i32 s{sT3}, s{sT3}, 7")
    a(f"s_and_b32 s{sT4}, s{X_}, 1")
    a(f"s_lshl_b32 s{sT5}, s{sT4}, 2")
    a(f"s_add_u32 s{sFT}, s{sT3}, s{sT5}")
    a(f"s_add_u32 s{sFT}, s{sFT}, s{sT2}")
    a(f"s_and_b32 s{sP3}, s{I_}, 3")
    a(f"s_add_u32 s{sT5}, s{sT5}, s{sP3}")
    a(f"s_add_u32 s{sKB}, s{sT3}, 3")
    a(f"s_cmp_lt_u32 s{I_}, 24")
    a(f"s_cselect_b32 s{sFT}, s{sFT}, s{sKB}")
    a(f"s_cselect_b32 s{sDT3}, s{sDT}, s{sT5}")
    a(f"s_mul_i32 s{sT4}, s{sT4}, 3")
    a(f"s_add_u32 s{sXC}, s{sT3}, s{sT4}")
    a(f"s_lshl_b32 s{sROT1}, s{X_}, 2")
    a(f"s_and_b32 s{sT3}, s{I_}, 3")
    a(f"s_lshr_b32 s{sP3}, s{I_}, 2")
    a(f"s_lshl_b32 s{sWI}, s{I_}, 2")
    a(f"s_add_u32 s{sWI}, s{sWI}, s{sW}")
    a(f"s_lshl_b32 s{sRED}, s{X_}, 2")
    a(f"s_add_u32 s{sRED}, s{sRED}, s{sT3}")
    a(f"s_lshl_b32 s{sRED}, s{sRED}, 1")
    a(f"s_add_u32 s{sRED}, s{sRED}, s{sW}")
    a(f"s_cmp_lt_u32 s{sW}, 2")
    a(f"s_cselect_b32 s{sRED}, s{sRED}, 99")
    a(f"s_cmp_eq_u32 s{sP3}, 7")
    a(f"s_cselect_b32 s{sRED}, s{sRED}, 99")
    a(f"s_mul_i32 s{sROT2}, s{X_}, 7")
    a(f"s_lshr_b32 s{sROT2}, s{sROT2}, 2")
    a(f"s_lshl_b32 s{sROT2}, s{sROT2}, 1")
    a(f"s_lshr_b32 s{sRH}, s{sW}, 1")
    a(f"s_and_b32 s{sKH}, s{sW}, 1")
    a(f"s_mov_b32 s{sTO}, 400000")
    a(f"s_mov_b32 s{sONES}, 0x3f803f80")
    a(f"s_mov_b32 s{sEPS6}, {fl(1e-6)}")
    a(f"s_mov_b32 s{sL2E}, {fl(LOG2E)}")

def late_srds():
    srd(SWO, sKA + 4, 512 * 512 * 2)
    srd(SW1, sKA + 8, 2048 * 1792 * 2)
    srd(SB1, sKA + 10, 1792 * 2)
    srd(SW2, sKA + 12, 1792 * 2048 * 2)
    srd(SB2, sKA + 14, 2048 * 2)
    srd(SOUT, SCODE, 2048 * 512 * 2)
    srd(SDBG, SCODE + 2, 256)

def code_prefetch():
    if opt("CODEPF", 2) == 1:
        a(f"s_getpc_b64 {sr(SCODE,2)}")
        a.label("L_PC")
        a(f"s_and_b32 s{SCODE+1}, s{SCODE+1}, 0xffff")
        a(f"s_mov_b32 s{SCODE+2}, L_END - L_PC")
        a(f"s_mov_b32 s{SCODE+3}, 0x20000")
        a(f"s_lshl_b32 s{sT0}, s{sWI}, 10")
        a(f"buffer_load_dwordx4 {ar(252,4)}, v{vL16}, {sr(SCODE,4)}, s{sT0} offen")
    srd(SCODE, SW1, 2048 * 1792 * 2)
    a(f"s_cmp_eq_u32 s{sP3}, 7")
    a(f"s_cselect_b32 s{SW1+2}, 0, s{SW1+2}")

def addresses():
    lin(sAKVP, [(sHP, 64 * 640), (sRB, 4 * 640), (sW, 640)], KVP[0])
    lin(sAPQW, [(sRB, 4 * 32768), (sW, 32768), (sHP, 2048)], PQ[0])
    lin(sAPQR, [(sST, 65536), (sRH, 32768), (sKH, 16384)], PQ[0])
    lin(sAKVF, [(sKH, 16 * 768)], KVF[0])
    lin(sASTW, [(sST, 8192), (sDT, 1024), (sKH, 512), (sRH, 256)], ST[0])
    lin(sASTR, [(sST, 8192), (sRH, 256)], ST[0])
    lin(sAHTW, [(sDT, 262144), (sST, 8192), (sRH, 4096), (sKH, 1024)], HT[0])
    lin(sAHTR, [(sDT3, 262144), (sW, 65536)], HT[0])
    lin(sAUW, [(sDT3, 229376), (sFT, 8192), (sRH, 4096), (sKH, 1024)], U[0])
    a(f"s_cmp_eq_u32 s{sP3}, 7")
    a(f"s_cselect_b32 s{sAUW}, {WS_BYTES:#x}, s{sAUW}")
    lin(sAUR, [(sDT, 229376), (sW, 57344)], U[0])
    lin(sAX2W, [(sST, 65536), (sRH, 32768), (sDT, 4096), (sKH, 2048)], X2)
    lin(sAX2R, [(sRB, 4 * 32768), (sW, 32768)], X2)
    a(f"s_add_u32 s{sAS2W}, s{sASTW}, {ST2 - ST[0]:#x}")
    lin(sAS2R, [(sRB, 2 * 8192), (sRH, 8192), (sKH, 256)], ST2)
    lin(sAWQT, [(sHP, 98304)], WQT)
    a(f"s_mov_b32 s{sGK}, {fl(-2.0 * 0.7978845608028654 * LOG2E * 0.044715)}")

def next_layer_addresses():
    for r, d in ((sAKVP, KVP[1] - KVP[0]), (sAPQW, PQ[1] - PQ[0]), (sAPQR, PQ[1] - PQ[0]), (sAKVF, KVF[1] - KVF[0]),
                 (sASTW, ST[1] - ST[0]), (sASTR, ST[1] - ST[0]), (sAHTW, HT[1] - HT[0]), (sAHTR, HT[1] - HT[0]),
                 (sAUW, U[1] - U[0]), (sAUR, U[1] - U[0])):
        a(f"s_add_u32 s{r}, s{r}, {d:#x}")

def kv_poison(P, L):
    r = sAKVP
    if L == 1:
        a(f"s_add_u32 s{sT1}, s{sAKVP}, {KVP[1]-KVP[0]:#x}"); r = sT1
    set_exec((1 << 40) - 1)
    ws_store4(P, r)
    a(f"s_mul_i32 s{sT0}, s{sRED}, 384")
    a(f"s_add_u32 s{sT0}, s{sT0}, {KVF[L]:#x}")
    a(f"s_cmp_ge_u32 s{sRED}, 64")
    a(f"s_cselect_b32 s{sT0}, {WS_BYTES:#x}, s{sT0}")
    set_exec((1 << 24) - 1)
    ws_store4(P, sT0)
    set_exec(FULL)
def tile_poison(P, r, delta, step):
    if delta:
        a(f"s_add_u32 s{sT0}, s{r}, {delta:#x}"); r = sT0
    for f in range(2): ws_store4(P, r, step * f)
def canary_poison(P):
    a(f"v_lshrrev_b32 v{vT0}, 3, v{vL}")
    a(f"v_mov_b32 v{vT1}, s{sAHTW}")
    for g, (r, d) in enumerate(((sAUW, 0), (sAHTW, HT[1]-HT[0]), (sAUW, U[1]-U[0]), (sAPQW, PQ[1]-PQ[0]-1024))):
        a(f"s_add_u32 s{sT0}, s{r}, {d & 0xffffffff:#x}")
        a(f"v_mov_b32 v{vT2}, s{sT0}")
        a(f"v_cmp_eq_u32 vcc, {g+1}, v{vT0}")
        a(f"v_cndmask_b32 v{vT1}, v{vT1}, v{vT2}, vcc")
    a(f"v_and_b32 v{vT0}, 7, v{vL}")
    a(f"v_lshl_add_u32 v{vT1}, v{vT0}, 4, v{vT1}")
    set_exec((1 << 40) - 1)
    a(f"buffer_store_dwordx4 {vr(P,4)}, v{vT1}, {sr(SWS,4)}, 0 offen offset:{2048+896} sc1")
    set_exec(FULL)
def st_poison(P):
    lin(sT0, [(sB, 3072), (sW, 768)], ST[0])
    set_exec((1 << 48) - 1)
    ws_store4(P, sT0)
    set_exec(FULL)
def set_poi(P):
    for i in range(4): a(f"v_mov_b32 v{P+i}, -1")

def misc_loads():
    lin(sT0, [(sST, 64), (sRH, 32)])
    a(f"v_and_b32 v{vT0}, 31, v{vL}")
    a(f"v_add_u32 v{vT0}, s{sT0}, v{vT0}")
    a(f"v_lshlrev_b32 v{vT1}, 1, v{vT0}")
    a(f"buffer_load_ushort v{vB2}, v{vT1}, {sr(SB2,4)}, 0 offen")
    a(f"v_lshlrev_b32 v{vT0}, 10, v{vT0}")
    a(f"v_lshl_add_u32 v{vOUT}, v{vHH}, 4, v{vT0}")
    lin(sT0, [(sDT, 128), (sKH, 64)])
    a(f"v_add_u32 v{vOUT}, s{sT0}, v{vOUT}")
    a(f"buffer_load_dwordx4 {vr(XR,4)}, v{vOUT}, {sr(SX,4)}, 0 offen")
    a(f"buffer_load_dwordx4 {vr(XR+4,4)}, v{vOUT}, {sr(SX,4)}, 0 offen offset:32")

def touch(srdn, rows_per_wave, lg, pitch, scol_emit, dst):
    n = rows_per_wave << lg
    scol_emit()
    a(f"v_min_u32 v{vT0}, {n-1}, v{vL}")
    a(f"v_lshrrev_b32 v{vT1}, {lg}, v{vT0}")
    a(f"v_mul_u32_u24 v{vT1}, {pitch}, v{vT1}")
    a(f"v_and_b32 v{vT0}, {(1<<lg)-1}, v{vT0}")
    a(f"v_lshl_add_u32 v{vT0}, v{vT0}, 7, v{vT1}")
    a(f"s_mul_i32 s{sT5}, s{sWI}, {rows_per_wave*pitch}")
    a(f"s_add_u32 s{sT4}, s{sT4}, s{sT5}")
    a(f"buffer_load_dword {dst}, v{vT0}, {sr(srdn,4)}, s{sT4} offen")
def touch_w1(dst): touch(SCODE, 16, 2, 3584, lambda: a(f"s_lshl_b32 s{sT4}, s{sXC}, 7"), dst)
def touch_w2(dst):
    def c2():
        a(f"s_and_b32 s{sT4}, s{sB}, 7"); a(f"s_lshl_b32 s{sT4}, s{sT4}, 9")
    touch(SW2, 16, 2, 4096, c2, dst)
def touch_w2h(dst, t0):
    a(f"s_lshr_b32 s{sT4}, s{sWI}, 3")
    a(f"s_add_u32 s{sT4}, s{sT4}, s{sROT2}")
    if t0: a(f"s_add_u32 s{sT4}, s{sT4}, {t0}")
    a(f"s_sub_u32 s{sT5}, s{sT4}, 28")
    a(f"s_cselect_b32 s{sT4}, s{sT4}, s{sT5}")
    a(f"s_and_b32 s{sT5}, s{sWI}, 3")
    a(f"s_mul_i32 s{sT5}, s{sT5}, 28")
    a(f"s_add_u32 s{sT4}, s{sT4}, s{sT5}")
    a(f"s_lshl_b32 s{sT4}, s{sT4}, 1")
    a(f"s_bfe_u32 s{sT5}, s{sWI}, 0x10002")
    a(f"s_add_u32 s{sT4}, s{sT4}, s{sT5}")
    a(f"s_lshl_b32 s{sT4}, s{sT4}, 15")
    a(f"s_and_b32 s{sT5}, s{sB}, 7")
    a(f"s_lshl_b32 s{sT5}, s{sT5}, 9")
    a(f"s_add_u32 s{sT4}, s{sT4}, s{sT5}")
    a(f"s_cmp_eq_u32 s{sP3}, 7")
    a(f"s_cselect_b32 s{sT4}, 0x10000000, s{sT4}")
    a(f"v_min_u32 v{vT0}, 31, v{vL}")
    a(f"v_lshrrev_b32 v{vT1}, 2, v{vT0}")
    a(f"v_and_b32 v{vT0}, 3, v{vT0}")
    a(f"v_lshlrev_b32 v{vT0}, 7, v{vT0}")
    a(f"v_lshl_add_u32 v{vT0}, v{vT1}, 12, v{vT0}")
    a(f"buffer_load_dword {dst}, v{vT0}, {sr(SW2,4)}, s{sT4} offen")
def touch_wo(dst): touch(SWO, 4, 3, 1024, lambda: a(f"s_mov_b32 s{sT4}, 0"), dst)
def touches(L, where):
    dst = "a25" if where in (1, 2, 3, 6, 7, 8) else None
    if optL("T1", L, 1, 0) == where: touch_w1(dst + "2" if dst else "v31")
    if optL("T2", L, 0, 0) == where: touch_w2(dst + "3" if dst else "v31")
    if optL("T2H", L, 9, 0) == where: touch_w2h(dst + "3" if dst else "v31", 0)
    if optL("T2G", L, 0, 0) == where: touch_w2h(dst + "3" if dst else "v31", 14)

def split2(dst, src, t0):
    a(f"v_cvt_pk_bf16_f32 v{t0}, v{src}, v{src}")
    a(f"v_and_b32 v{t0}, 0xffff0000, v{t0}")
    a(f"v_sub_f32 v{dst}, v{src}, v{t0}")
    a(f"v_cvt_pk_bf16_f32 v{dst}, v{t0}, v{dst}")

def stats_to_frags(S, Q, RA):
    a(f"v_mul_f32 v{S}, {fl(-1/512)}, v{S}")
    a(f"v_mul_f32 v{Q}, {fl(1/512)}, v{Q}")
    a(f"v_cmp_eq_u32 vcc, 0, v{vHH}")
    a(f"v_fma_f32 v{Q}, -v{S}, v{S}, v{Q}")
    a(f"v_max_f32 v{Q}, 0, v{Q}")
    a(f"v_add_f32 v{Q}, {fl(1e-5)}, v{Q}")
    a(f"v_rsq_f32 v{vRS}, v{Q}")
    a(f"v_cndmask_b32 v{S}, 0, v{S}, vcc")
    a(f"v_cvt_pk_bf16_f32 v{MA}, v{S}, v{S}")
    a(f"v_cndmask_b32 v{Q}, 0, v{vRS}, vcc")
    a(f"v_and_b32 v{vT0}, 0xffff0000, v{MA}")
    a(f"v_sub_f32 v{S}, v{S}, v{vT0}")
    a(f"v_cvt_pk_bf16_f32 v{MA+1}, v{S}, v{S}")
    split2(RA, Q, vT0)

def stats_check(SB):
    a(f"v_max3_u32 v{vT3}, v{SB+1}, v{SB+3}, v{SB+5}")
    a(f"v_max3_u32 v{vT3}, v{vT3}, v{SB+7}, v{SB+9}")
    a(f"v_max3_u32 v{vT3}, v{vT3}, v{SB+11}, v{SB+13}")
    a(f"v_max_u32 v{vT3}, v{vT3}, v{SB+15}")
    a(f"v_cmp_eq_u32 vcc, -1, v{vT3}")
def stats_sum(SB):
    for n in (4, 2, 1):
        for p in range(n): pk("add", SB+2*p, vr(SB+2*p,2), vr(SB+2*(p+n),2))
    a(f"v_mov_b32 v{SB+2}, v{SB}")
    a(f"v_mov_b32 v{SB+3}, v{SB+1}")
    a(f"v_permlane32_swap_b32 v{SB}, v{SB+2}")
    a(f"v_permlane32_swap_b32 v{SB+1}, v{SB+3}")
    pk("add", SB, vr(SB,2), vr(SB+2,2))

A1B = 128
def a1_issue():
    a(f"s_mov_b32 s{sT3}, s{sKB}")
    for p in range(16):
        a(f"buffer_load_dwordx4 {vr(A1B+4*p,4)}, v{vL16}, {sr(SWS,4)}, s{sT3} offen offset:{(p&1)*2560} sc1")
        if p & 1 and p < 15: a(f"s_add_u32 s{sT3}, s{sT3}, {2*2560}")
def a1_early(L):
    skip = a.newlabel("NOA1E")
    a(f"s_cmp_ge_u32 s{sRED}, 64")
    a(f"s_cbranch_scc1 {skip}")
    with cond():
        a(f"s_lshr_b32 s{sKB}, s{sRED}, 2")
        a(f"s_mul_i32 s{sKB}, s{sKB}, {16*2560}")
        a(f"s_and_b32 s{sT2}, s{sRED}, 3")
        a(f"s_mul_i32 s{sT2}, s{sT2}, 640")
        a(f"s_add_u32 s{sKB}, s{sKB}, s{sT2}")
        a(f"s_add_u32 s{sKB}, s{sKB}, {KVP[L]:#x}")
        set_exec((1 << 35) - 1)
        a1_issue()
        set_exec(FULL)
    a.label(skip)
def a1(L, younger):
    a.c("======== A1 reducer")
    skip = a.newlabel("NOA1")
    a(f"s_cmp_ge_u32 s{sRED}, 64")
    a(f"s_cbranch_scc1 {skip}")
    with cond():
        B = A1B
        a(f"s_mul_i32 s{sT2}, s{sRED}, 384")
        a(f"s_add_u32 s{sT2}, s{sT2}, {KVF[L]:#x}")
        a(f"v_lshlrev_b32 v{vT2}, 3, v{vL}")
        set_exec((1 << 35) - 1)
        def check():
            a(f"v_max3_u32 v{vT3}, v{B}, v{B+4}, v{B+8}")
            a(f"v_min3_u32 v{vT1}, v{B}, v{B+4}, v{B+8}")
            for p in range(3, 15, 2):
                a(f"v_max3_u32 v{vT3}, v{vT3}, v{B+4*p}, v{B+4*p+4}")
                a(f"v_min3_u32 v{vT1}, v{vT1}, v{B+4*p}, v{B+4*p+4}")
            a(f"v_max_u32 v{vT3}, v{vT3}, v{B+60}")
            a(f"v_min_u32 v{vT1}, v{vT1}, v{B+60}")
            a(f"v_cmp_eq_u32 vcc, -1, v{vT3}")
            a(f"v_readlane_b32 s{sT0}, v{vT3}, 34")
            a(f"v_readlane_b32 s{sT1}, v{vT1}, 34")
            a(f"s_xor_b32 s{sT0}, s{sT0}, s{sNON}")
            a(f"s_xor_b32 s{sT1}, s{sT1}, s{sNON}")
            a(f"s_or_b32 s{sT0}, s{sT0}, s{sT1}")
            a(f"s_or_b32 vcc_lo, vcc_lo, s{sT0}")
            a(f"s_or_b64 vcc, vcc, vcc")
        a.vm_done = min(a.vm_done, a.vm - younger - 1)
        poll(a1_issue, check, 0x20, pre=a.vm - younger - 1)
        n = 16
        while n > 1:
            n //= 2
            for p in range(n):
                for j in (0, 2): pk("add", B+4*p+j, vr(B+4*p+j,2), vr(B+4*(p+n)+j,2))
        a(f"v_cvt_pk_bf16_f32 v{B+4}, v{B}, v{B+1}")
        a(f"v_cvt_pk_bf16_f32 v{B+5}, v{B+2}, v{B+3}")
        a(f"v_mov_b32_dpp v{B+6}, v{B+4} quad_perm:[1,1,3,3] row_mask:0xf bank_mask:0xf")
        a(f"v_mov_b32_dpp v{B+7}, v{B+5} quad_perm:[1,1,3,3] row_mask:0xf bank_mask:0xf")
        a(f"v_writelane_b32 v{B+4}, s{sNON}, 34")
        set_exec(0x555555555555)
        a(f"buffer_store_dwordx4 {vr(B+4,4)}, v{vT2}, {sr(SWS,4)}, s{sT2} offen sc1")
        set_exec(FULL)
        a("s_nop 1")
    a.label(skip)
    stamp("a1")

XF = 128
def p1(L):
    ACCK, ACCV, RR = 32, 48, 64
    VV, PK, T1 = 80, 88, 96
    S0, S1, Q0, Q1 = 80, 81, 82, 83
    CF = 84
    CFV, CFQ, RA = 112, 116, 120
    vTQ, vTV = 124, 125
    vW, vXA, vXB = 126, 127, 96
    vCQ, vCV = 97, 98
    vOA, vOB = vTA, vTB
    vTQ2, vTV2 = vTA, vTB
    vKW, vKR = 92, 93
    XA = 88
    POI = 100
    WFR = 216; NWF = 4; ONESF = 248; CG = 200; CK, CV, CQ = 152, 168, 184
    a.c(f"======== P1 layer {L}")
    xid = {}; wid = {}
    toff = 256
    def addr_setup():
        if L == 0:
            a(f"v_bfe_u32 v{vT0}, v{vL}, 2, 2")
            a(f"v_lshl_add_u32 v{vT0}, v{vHH}, 3, v{vT0}")
            a(f"v_lshlrev_b32 v{vTQ}, 6, v{vT0}")
            a(f"v_bfe_u32 v{vT1}, v{vL}, 4, 1")
            a(f"v_lshl_add_u32 v{vTQ}, v{vT1}, 5, v{vTQ}")
            a(f"v_and_b32 v{vT1}, 3, v{vL}")
            a(f"v_lshl_add_u32 v{vTQ}, v{vT1}, 3, v{vTQ}")
        else:
            a(f"s_and_b32 s{sT5}, s{sROTX}, {opt('XROT', 1)}")
            a(f"s_lshl_b32 s{sT5}, s{sT5}, 14")
            a(f"s_add_u32 s{sAX2R}, s{sAX2R}, s{sT5}")
            a(f"v_add_u32 v{vTQ}, s{sT5}, v{vL16}")
            a(f"v_xor_b32 v{vTQ2}, 16384, v{vTQ}")
            a(f"v_add_u32 v{vTV2}, 65536, v{vTQ2}")
        a(f"v_add_u32 v{vTV}, 65536, v{vTQ}")
        for i in range(4): a(f"v_accvgpr_write_b32 a{ONESF+i}, s{sONES}")
        for r in ([MA + 2, MA + 3] if L == 0 else []) + [RA + 1, RA + 2, RA + 3, CF + 2, CF + 3, CFV + 2, CFV + 3, CFQ + 2, CFQ + 3]: a(f"v_mov_b32 v{r}, 0")
    rg = {}
    def RG(s):
        b = WFR + (s % NWF) * 8
        if L == 0:
            o = s * 1024
            a(f"ds_read_b64_tr_b16 {ar(b,2)}, v{vTQ} offset:{32768+o}")
            a(f"ds_read_b64_tr_b16 {ar(b+2,2)}, v{vTQ} offset:{32768+o+toff}")
            a(f"ds_read_b64_tr_b16 {ar(b+4,2)}, v{vTV} offset:{o}")
            rg[s] = a(f"ds_read_b64_tr_b16 {ar(b+6,2)}, v{vTV} offset:{o+toff}")
        else:
            o = (s & 15) * 1024
            q_, v_ = (vTQ2, vTV2) if s >= 16 else (vTQ, vTV)
            a(f"ds_read_b128 {ar(b,4)}, v{q_} offset:{32768+o}")
            rg[s] = a(f"ds_read_b128 {ar(b+4,4)}, v{v_} offset:{o}")
    if L == 0:
        a(f"v_lshrrev_b32 v{vT0}, 2, v{vL}")
        a(f"s_lshl_b32 s{sT0}, s{sW}, 4")
        a(f"v_add_u32 v{vT0}, s{sT0}, v{vT0}")
        a(f"v_mul_u32_u24 v{vW}, 3072, v{vT0}")
        a(f"v_and_b32 v{vT0}, 3, v{vL}")
        a(f"v_lshl_add_u32 v{vW}, v{vT0}, 4, v{vW}")
        a(f"s_lshl_b32 s{sT0}, s{sHP}, 6")
        a(f"v_add_u32 v{vW}, s{sT0}, v{vW}")
        lin(sT0, [(sRB, 131072), (sW, 32768)])
        a(f"v_lshrrev_b32 v{vT0}, 3, v{vL}")
        a(f"v_lshlrev_b32 v{vT0}, 10, v{vT0}")
        a(f"v_add_u32 v{vT0}, s{sT0}, v{vT0}")
        a(f"v_and_b32 v{vT1}, 7, v{vL}")
        a(f"v_lshrrev_b32 v{vT2}, 4, v{vL}")
        a(f"v_xor_b32 v{vT1}, v{vT1}, v{vT2}")
        a(f"v_lshl_add_u32 v{vXA}, v{vT1}, 4, v{vT0}")
        a(f"v_xor_b32 v{vXB}, 64, v{vXA}")
        a(f"v_add_u32 v{vXB}, {8192-1024}, v{vXB}")
        a("s_waitcnt lgkmcnt(0)")
        srd(SX, sKA + 0, 2048 * 512 * 2)
        srd(SWQKV, sKA + 2, 512 * 1536 * 2)
        def x_issue(j):
            a(f"s_add_u32 s{sKB}, s{sROTX}, {j}")
            a(f"s_and_b32 s{sKB}, s{sKB}, 7")
            a(f"s_lshl_b32 s{sT1}, s{sKB}, 7")
            a(f"s_add_u32 m0, s{sWB}, {(j&3)*4096}")
            a(f"s_mul_i32 s{sSO}, s{sKB}, {64*3072}")
            a(f"buffer_load_dwordx4 v{vXA}, {sr(SX,4)}, s{sT1} offen lds")
            a(f"buffer_load_dwordx4 v{vXB}, {sr(SX,4)}, s{sT1} offen offset:1024 lds")
            a(f"s_add_u32 m0, s{sWB}, {(j&3)*4096+2048}")
            a(f"s_add_u32 s{sT1}, s{sT1}, 16384")
            a(f"buffer_load_dwordx4 v{vXA}, {sr(SX,4)}, s{sT1} offen lds")
            xid[j] = a(f"buffer_load_dwordx4 v{vXB}, {sr(SX,4)}, s{sT1} offen offset:1024 lds")
        def w_issue(j):
            for seg in (1, 2, 0):
                a(f"s_add_u32 m0, s{sW1K}, {seg*32768 - seg*1024 + j*4096}")
                wid[j] = a(f"buffer_load_dwordx4 v{vW}, {sr(SWQKV,4)}, s{sSO} offen offset:{seg*1024} lds")
        def wo_issue(c):
            for k in range(2):
                j = 2 * c + k
                a(f"s_add_u32 m0, s{sWB}, {j*2048}")
                if j == 0: a(f"s_lshl_b32 s{sSO}, s{sW}, 17")
                else: a(f"s_add_u32 s{sSO}, s{sSO}, 16384")
                a(f"buffer_load_dwordx4 v{vOA}, {sr(SWO,4)}, s{sSO} offen lds")
                G["wo"] = a(f"buffer_load_dwordx4 v{vOB}, {sr(SWO,4)}, s{sSO} offen offset:1024 lds")
        x_issue(0); w_issue(0)
        srd(SWS, 100, WS_BYTES)
        roles2()
        late_srds()
        x_issue(1); w_issue(1)
        touch_wo("a254")
        code_prefetch()
        touches(0, 6)
        for i in range(4): a(f"v_mov_b32 v{POI+i}, -1")
        addresses()
        skip = a.newlabel("NONON")
        a(f"s_cmp_lg_u32 s{sWI}, 0")
        a(f"s_cselect_b32 s{sT0}, 1, s{sB}")
        a(f"s_cmp_lg_u32 s{sT0}, 0")
        a(f"s_cbranch_scc1 {skip}")
        with cond():
            a(f"buffer_load_dword v{vKW}, off, {sr(SWS,4)}, 0 offset:{NONCE} sc1")
        a.label(skip)
        addr_setup()
        a(f"v_add_u32 v{vCQ}, s{sW1K}, v{vTQ}")
        a(f"v_add_u32 v{vCV}, s{sW1K}, v{vTV}")
        for r in (S0, S1, Q0, Q1): a(f"v_mov_b32 v{r}, 0")
        a(f"v_and_b32 v{vT0}, 31, v{vL}")
        a(f"v_bfe_u32 v{vT1}, v{vL}, 1, 3")
        a(f"v_xor_b32 v{vT1}, v{vT1}, v{vHH}")
        a(f"v_lshlrev_b32 v{vT0}, 7, v{vT0}")
        a(f"v_add_u32 v{vT0}, s{sWB}, v{vT0}")
        for t in range(4):
            a(f"v_xor_b32 v{vT2}, {2*t}, v{vT1}")
            a(f"v_lshl_add_u32 v{XA+t}, v{vT2}, 4, v{vT0}")
        a(f"s_lshl_b32 s{sT4}, s{sDT}, 7")
        dma_voff(vOA, vOB, 1024, sT4)
        tr_base(vWTA, vWTB, sRH, f"s{sWA}")
        pump.setup(1, 0)
        SCHED = {0: {0: [2, 3], 1: [4, 5], 2: [6], 3: [7]}, 1: {0: [2], 1: [3, 4], 2: [5, 6], 3: [7]}, 2: {0: [2, 3, 4], 1: [5], 2: [6], 3: [7]},
                 3: {0: [2], 1: [3], 2: [4], 3: [5], 4: [6], 5: [7]}, 4: {0: [2, 3], 1: [4], 2: [5], 3: [6], 4: [7]}}[opt("SCHED", 4)]
        JL = max(SCHED)
        cgid = {}
        def CGr(j):
            o = j * 4096
            a(f"ds_read_b64_tr_b16 {ar(CG,2)}, v{vCQ} offset:{32768+o}")
            a(f"ds_read_b64_tr_b16 {ar(CG+2,2)}, v{vCQ} offset:{32768+o+toff}")
            a(f"ds_read_b64_tr_b16 {ar(CG+4,2)}, v{vCV} offset:{o}")
            a(f"ds_read_b64_tr_b16 {ar(CG+6,2)}, v{vCV} offset:{o+toff}")
            a(f"ds_read_b64_tr_b16 {ar(CG+8,2)}, v{vCQ} offset:{o}")
            cgid[j] = a(f"ds_read_b64_tr_b16 {ar(CG+10,2)}, v{vCQ} offset:{o+toff}")
        def colsum(j):
            a.wait(lg=cgid[j])
            for k, c in enumerate((CK, CV, CQ)):
                mfma(ar(c,16), ar(ONESF,4), ar(CG+4*k,4), "0" if j == 0 else ar(c,16))
        def xreads(j):
            a.wait(vm=xid[j])
            return [a(f"ds_read_b128 {vr(XF+16*j+4*t,4)}, v{XA+t} offset:{(j&3)*4096}") for t in range(4)]
        xr = xreads(0)
        a.wait(vm=wid[0])
        a("s_barrier")
        stamp("p1_first")
        CGr(0); RG(0); RG(1); RG(2)
        colsum(0)
        CPY = 104; CS4 = 96
        initld = None
        for j in range(8):
            for t in range(4):
                a.wait(lg=xr[t])
                for k in range(4 if not opt("XNOD", 0) else 0):
                    r = XF + 16 * j + 4 * t + k
                    a(f"v_dot2_f32_bf16 v{S0+(k&1)}, v{r}, s{sONES}, v{S0+(k&1)}")
                    a(f"v_dot2_f32_bf16 v{Q0+(k&1)}, v{r}, v{r}, v{Q0+(k&1)}")
            if j == 7:
                a(f"s_lshr_b32 s{sT0}, s{sRB}, 1")
                a(f"s_sub_u32 s{sT0}, s{sT0}, s{sROTX}")
                a(f"s_and_b32 s{sT0}, s{sT0}, 7")
                a(f"s_cmp_eq_u32 s{sT0}, 0")
                a(f"s_cselect_b32 s{sT1}, 4096, 0")
                a(f"s_add_u32 s{sT1}, s{sT1}, {L_A}")
                a(f"v_add_u32 v{vT1}, s{sT1}, v{vL16}")
                a(f"v_add_u32 v{vT0}, s{sW1K}, v{vT1}")
                a(f"v_accvgpr_read_b32 v{CS4}, a{CK}")
                a(f"v_accvgpr_read_b32 v{CS4+1}, a{CV}")
                a(f"v_accvgpr_read_b32 v{CS4+2}, a{CQ}")
                cw = a(f"ds_write_b128 v{vT0}, {vr(CS4,4)}")
            for s in range(4 * j, 4 * j + 4):
                t = s & 3
                a.wait(lg=rg[s])
                b = WFR + (s % NWF) * 8
                x = vr(XF + 4 * s, 4)
                mfma(vr(ACCK,16), x, ar(b,4), "0" if s == 0 else vr(ACCK,16))
                if s + 3 < 32: RG(s + 3)
                if t == 1 and j < 7 and not opt("XNOC", 0): CGr(j + 1)
                if t == 2 and j < 7: xr = xreads(j + 1)
                if j == 7 and t == 1:
                    for w in range(4): cr = a(f"ds_read_b128 {vr(RR+4*w,4)}, v{vT1} offset:{1024*w}")
                    a(f"s_lshl_b32 s{sT0}, s{sT0}, 12")
                    a(f"s_and_b32 s{sT1}, s{sRB}, 1")
                    a(f"s_lshl_b32 s{sT1}, s{sT1}, 11")
                    a(f"s_add_u32 s{sT0}, s{sT0}, s{sT1}")
                    a(f"s_min_u32 s{sT2}, s{sW}, 2")
                    a(f"s_lshl_b32 s{sT2}, s{sT2}, 15")
                    a(f"s_add_u32 s{sT0}, s{sT0}, s{sT2}")
                    a(f"v_lshlrev_b32 v{vT1}, 8, v{vHH}")
                    a(f"v_sub_u32 v{vT0}, v{vTQ}, v{vT1}")
                    a(f"v_add_u32 v{vT0}, s{sT0}, v{vT0}")
                    for k in range(4): cp = a(f"ds_read_b64_tr_b16 {vr(CPY+2*k,2)}, v{vT0} offset:{512*k}")
                if j == 7 and t == 2:
                    a.wait(lg=cr)
                    for k in range(3):
                        a(f"v_add_f32 v{RR+k}, v{RR+k}, v{RR+4+k}")
                        a(f"v_add_f32 v{RR+8+k}, v{RR+8+k}, v{RR+12+k}")
                if j == 7 and t == 3:
                    split2(CKP, RR, vT0)
                    split2(CVP, RR + 1, vT1)
                mfma(vr(ACCV,16), x, ar(b+4,4), "0" if s == 0 else vr(ACCV,16))
                if t == 0:
                    if j < 7: a.wait(vm=wid[j + 1])
                    else: a.wait(lg=cw)
                    a("s_barrier")
                    if j == 1:
                        skip = a.newlabel("NOINIT")
                        a(f"s_cmp_lg_u32 s{sWI}, 0")
                        a(f"s_cselect_b32 s{sT0}, 1, s{sB}")
                        a(f"s_cmp_lg_u32 s{sT0}, 0")
                        a(f"s_cbranch_scc1 {skip}")
                        with cond():
                            a(f"v_add_u32 v{vKW}, 1, v{vKW}")
                            a(f"v_and_b32 v{vKW}, 0x3fffffff, v{vKW}")
                            a(f"v_or_b32 v{vKW}, 0x40000000, v{vKW}")
                            set_exec(1)
                            a(f"buffer_store_dword v{vKW}, off, {sr(SDBG,4)}, 0 sc1")
                            a(f"buffer_store_dword v{vKW}, off, {sr(SWS,4)}, 0 offset:{NONCE} sc1")
                            set_exec(FULL)
                        a.label(skip)
                if t <= 2 and j in SCHED and t < len(SCHED[j]):
                    x_issue(SCHED[j][t]); w_issue(SCHED[j][t])
                if t == 1 and j >= 4 and opt("WOP", 0) == 0: wo_issue(j - 4)
                if t == 3 and j == JL:
                    misc_loads()
                    touches(0, 8)
                if t == 3 and opt("SLOTST", 0) and j in (1, 3, 6): stamp(f"it{j}")
                if t == 2:
                    if j == 3: touches(0, 7)
                    if j == 5:
                        st_poison(POI); kv_poison(POI, 0); canary_poison(POI)
                    if j == 6:
                        tile_poison(POI, sAPQW, 0, 1024)
                    if j == 6:
                        initld = a(f"buffer_load_dword v{vT3}, off, {sr(SDBG,4)}, 0 sc1")
                    if j == 7:
                        for k in range(3): a(f"v_add_f32 v{RR+k}, v{RR+k}, v{RR+8+k}")
                        a(f"s_lshl_b32 s{sT1}, s{sRB}, 11")
                        a(f"s_add_u32 s{sT3}, s{sAWQT}, s{sT2}")
                        a(f"s_add_u32 s{sT3}, s{sT3}, s{sT1}")
                        a.wait(lg=cp)
                        ws_store4(CPY, sT3); ws_store4(CPY + 4, sT3, 1024)
                if t == 3 and j < 7 and not opt("XNOC", 0): colsum(j + 1)
        stamp("p1_gemm")
        a(f"v_add_f32 v{S0}, v{S0}, v{S1}")
        a(f"v_add_f32 v{Q0}, v{Q0}, v{Q1}")
        a(f"v_mov_b32 v{S1}, v{S0}")
        a(f"v_mov_b32 v{Q1}, v{Q0}")
        for c, p in ((CF, CKP), (CFV, CVP)):
            a(f"v_mov_b32 v{c}, v{p}"); a(f"v_mov_b32 v{c+1}, v{p}")
        a(f"v_permlane32_swap_b32 v{S0}, v{S1}")
        a(f"v_permlane32_swap_b32 v{Q0}, v{Q1}")
        a(f"v_add_f32 v{S0}, v{S0}, v{S1}")
        a(f"v_add_f32 v{Q0}, v{Q0}, v{Q1}")
        split2(CQP, RR + 2, vT1)
        stats_to_frags(S0, Q0, RA)
        mfma(vr(ACCK,16), vr(MA,4), vr(CF,4), vr(ACCK,16))
        mfma(vr(RR,16), vr(RA,4), ar(ONESF,4), "0")
        mfma(vr(ACCV,16), vr(MA,4), vr(CFV,4), vr(ACCV,16))
        touches(0, 1)
    else:
        addr_setup()
        next_layer_addresses()
        for c, p in ((CF, CKP), (CFV, CVP)):
            a(f"v_mov_b32 v{c}, v{p}"); a(f"v_mov_b32 v{c+1}, v{p}")
        a(f"v_and_b32 v{vT0}, 31, v{vL}")
        a(f"v_lshlrev_b32 v{vT0}, 3, v{vT0}")
        a(f"v_lshl_add_u32 v{vXA}, v{vHH}, 12, v{vT0}")
        a(f"s_lshl_b32 s{sT2}, s{sW}, 13")
        a(f"s_add_u32 s{sKB}, s{sAWQT}, s{sT2}")
        SB = T1
        def issue():
            for p in range(8): a(f"buffer_load_dwordx2 {vr(SB+2*p,2)}, v{vXA}, {sr(SWS,4)}, s{sAS2R} offen offset:{p*512} sc1")
        pump.setup(1, 1)
        poll(issue, lambda: stats_check(SB), 0x40)
        stamp("p1_flag")
        def XL(s):
            xid[s] = a(f"buffer_load_dwordx4 {vr(XF+4*s,4)}, v{vL16}, {sr(SWS,4)}, s{sSO} offen offset:{(s&3)*1024} sc1")
            if s == 15: a(f"s_xor_b32 s{sSO}, s{sAX2R}, 16384")
            elif s & 3 == 3 and s < 31: a(f"s_add_u32 s{sSO}, s{sSO}, 4096")
        LA = opt("LA1", 10)
        vMX = vW
        a(f"s_mov_b32 s{sSO}, s{sAX2R}")
        for s in range(LA): XL(s)
        a("s_barrier")
        stats_sum(SB)
        a(f"v_mov_b32 v{MA+2}, 0"); a(f"v_mov_b32 v{MA+3}, 0")
        stats_to_frags(SB, SB + 1, RA)
        mfma(vr(RR,16), vr(RA,4), ar(ONESF,4), "0")
        go = a.newlabel("XGO"); redo = a.newlabel("XREDO")
        a(f"s_branch {go}")
        a.label(redo)
        sv = dict(xid)
        with cond():
            a(f"s_mov_b32 s{sSO}, s{sAX2R}")
            for s in range(LA): XL(s)
        xid.update(sv)
        a.label(go)
        RG(0); RG(1); RG(2)
        a(f"v_mov_b32 v{vMX}, 0")
        a(f"s_mov_b32 s{sT3}, s{sKB}")
        mfma(vr(ACCK,16), vr(MA,4), vr(CF,4), "0")
        mfma(vr(ACCV,16), vr(MA,4), vr(CFV,4), "0")
        qid = None
        for s in range(32):
            a.wait(vm=xid[s], lg=rg[s])
            b = WFR + (s % NWF) * 8
            x = vr(XF + 4 * s, 4)
            mfma(vr(ACCK,16), x, ar(b,4), vr(ACCK,16))
            if s + LA < 32: XL(s + LA)
            elif s + LA - 32 < 8:
                j = s + LA - 32
                if j == 4: a(f"s_add_u32 s{sT3}, s{sT3}, 4096")
                if j & 3 == 0: a(f"s_add_u32 m0, s{sT2}, {j*1024}")
                qid = a(f"buffer_load_dwordx4 v{vL16}, {sr(SWS,4)}, s{sT3} offen offset:{(j&3)*1024} lds")
            mfma(vr(ACCV,16), x, ar(b+4,4), vr(ACCV,16))
            if s & 1: a(f"v_max3_u32 v{vMX}, v{vMX}, v{XF+4*s-4}, v{XF+4*s}")
            if s + 3 < 32: RG(s + 3)
        verify(vMX, redo)
        stamp("p1_gemm")
    a(f"v_bfe_u32 v{vT0}, v{vL}, 4, 1")
    a(f"v_cmp_ne_u32 vcc, 0, v{vT0}")
    a(f"v_lshl_add_u32 v{vT0}, v{vT0}, 1, v{vHH}")
    a(f"v_mul_u32_u24 v{vT0}, 17, v{vT0}")
    a(f"v_and_b32 v{vT1}, 15, v{vL}")
    a(f"v_add_u32 v{vT0}, v{vT0}, v{vT1}")
    a(f"v_lshlrev_b32 v{vT0}, 5, v{vT0}")
    a(f"v_add_u32 v{vT0}, s{sWA}, v{vT0}")
    a(f"s_mul_i32 s{sT0}, s{sW}, 544")
    a(f"s_add_u32 s{sT0}, s{sT0}, {L_A + SCR}")
    a(f"v_add_u32 v{vXA}, s{sT0}, v{vL16}")
    a("s_barrier")
    for q in range(8): pk("fma", ACCK+2*q, vr(ACCK+2*q,2), vr(RR+2*q,2), sr(sEPS6,2), hi=[1,1,0])
    for q in range(8): pk("mul", T1+2*q, vr(ACCK+2*q,2), sr(sL2E,2), hi=[1,0])
    for i in range(16):
        a(f"v_exp_f32_e64 v{T1+i}, v{T1+i} clamp")
        a(f"v_max_f32 v{ACCK+i}, s{sEPS6}, v{ACCK+i}")
    for q in range(8): pk("add", ACCK+2*q, vr(ACCK+2*q,2), vr(T1+2*q,2))
    for q in range(8): a(f"v_cvt_pk_bf16_f32 v{PK+q}, v{ACCK+2*q}, v{ACCK+2*q+1}")
    ZA = T1
    for q in range(4): pk("mul", ACCV+2*q, vr(ACCV+2*q,2), vr(RR+2*q,2))
    for q in range(4, 8): pk("mul", ACCV+2*q, vr(ACCV+2*q,2), vr(RR+2*q,2))
    mfma(vr(ZA,16), vr(PK,4), ar(ONESF,4), "0")
    for q in range(4): a(f"v_cvt_pk_bf16_f32 v{VV+q}, v{ACCV+2*q}, v{ACCV+2*q+1}")
    mfma(vr(ZA,16), vr(PK+4,4), ar(ONESF,4), vr(ZA,16))
    for q in range(4, 8): a(f"v_cvt_pk_bf16_f32 v{VV+q}, v{ACCV+2*q}, v{ACCV+2*q+1}")
    KVA = RR
    mfma(vr(KVA,16), vr(PK,4), vr(VV,4), "0")
    mfma(vr(KVA,16), vr(PK+4,4), vr(VV+4,4), vr(KVA,16))
    for j in range(8): a(f"v_cndmask_b32 v{ACCK+8+j}, v{ZA+j}, v{ZA+8+j}, vcc")
    set_exec(0x0001000100010001)
    a(f"ds_write_b128 v{vT0}, {vr(ACCK+8,4)} offset:{SCR+512}")
    a(f"ds_write_b128 v{vT0}, {vr(ACCK+12,4)} offset:{SCR+528}")
    set_exec(FULL)
    for j in range(4): a(f"v_cndmask_b32 v{ACCK+j}, v{KVA+j}, v{KVA+8+j}, vcc")
    a(f"ds_write_b128 v{vT0}, {vr(ACCK,4)} offset:{SCR}")
    for j in range(4, 8): a(f"v_cndmask_b32 v{ACCK+j}, v{KVA+j}, v{KVA+8+j}, vcc")
    a(f"ds_write_b128 v{vT0}, {vr(ACCK+4,4)} offset:{SCR+16}")
    if L == 0:
        def issue(): a(f"buffer_load_dword v{vT3}, off, {sr(SDBG,4)}, 0 sc1")
        def check(): a(f"v_cmp_eq_u32 vcc, 0, v{vT3}")
        poll(issue, check, 0x10, pre=initld)
        a(f"v_readfirstlane_b32 s{sNON}, v{vT3}")
    NQ = 8; QLA = 6
    rq = {}
    def RQ(s):
        b = WFR + (s % NQ) * 4
        if L == 0:
            a(f"ds_read_b64_tr_b16 {ar(b,2)}, v{vTQ} offset:{s*1024}")
            rq[s] = a(f"ds_read_b64_tr_b16 {ar(b+2,2)}, v{vTQ} offset:{s*1024+toff}")
        else:
            rq[s] = a(f"ds_read_b128 {ar(b,4)}, v{vTQ2 if s >= 16 else vTQ} offset:{(s&15)*1024}")
    a(f"v_mov_b32 v{CFQ}, v{CQP}"); a(f"v_mov_b32 v{CFQ+1}, v{CQP}")
    if L == 1: a.wait(vm=qid)
    a.wait_lg_all()
    a("s_barrier")
    for w in range(4): kr = a(f"ds_read_b128 {vr(RR+4*w,4)}, v{vXA} offset:{16384*w}")
    for s in range(QLA): RQ(s)
    ACCQ = ACCK
    mfma(vr(ACCQ,16), vr(CFQ,4), vr(MA,4), "0")
    a.wait(lg=kr)
    for j in range(4): a(f"v_add_f32 v{RR+j}, v{RR+j}, v{RR+4+j}")
    for j in range(4): a(f"v_add_f32 v{RR+8+j}, v{RR+8+j}, v{RR+12+j}")
    for j in range(4): a(f"v_add_f32 v{RR+j}, v{RR+j}, v{RR+8+j}")
    set_exec((1 << 40) - 1)
    a(f"v_writelane_b32 v{RR}, s{sNON}, 34")
    ws_store4(RR, sAKVP)
    set_exec(FULL)
    stamp("p1_kvpub")
    touches(L, 2)
    nfill = optL("F0", L, 0, 5)
    for s in range(32):
        a.wait(lg=rq[s])
        b = WFR + (s % NQ) * 4
        mfma(vr(ACCQ,16), ar(b,4), vr(XF+4*s,4), vr(ACCQ,16))
        if s + QLA < 32: RQ(s + QLA)
        if s % 3 == 1 and pump.i < pump.c + nfill: pump.fill(pump.i + 1)
        if L == 0 and opt("WOP", 0) == 1 and s % 8 == 0: wo_issue(s // 8)
        if s == opt("A1S", 26):
            a1_early(L); vm_a1 = a.vm
    for h in range(2):
        for q in range(4*h, 4*h+4): pk("fma", ACCQ+2*q, vr(ACCQ+2*q,2), vr(vRS,2), sr(sEPS6,2), hi=[1,0,0])
        for q in range(4*h, 4*h+4): pk("mul", T1+2*q, vr(ACCQ+2*q,2), sr(sL2E,2), hi=[1,0])
        for i in range(8*h, 8*h+8):
            a(f"v_exp_f32_e64 v{T1+i}, v{T1+i} clamp")
            a(f"v_max_f32 v{ACCQ+i}, s{sEPS6}, v{ACCQ+i}")
        for q in range(4*h, 4*h+4): pk("add", ACCQ+2*q, vr(ACCQ+2*q,2), vr(T1+2*q,2))
        for q in range(4*h, 4*h+4): a(f"v_cvt_pk_bf16_f32 v{PK+q}, v{ACCQ+2*q}, v{ACCQ+2*q+1}")
        ws_store4(PK + 4 * h, sAPQW, 1024 * h)
    if L == 0:
        for k in range(4): a(f"v_mov_b32 v{T1+k}, s{sNON}")
        a(f"s_sub_u32 s{sT0}, s{sAPQW}, {PQ[0]:#x}")
        a(f"s_lshr_b32 s{sT0}, s{sT0}, 4")
        a(f"s_add_u32 s{sT0}, s{sT0}, {TAGQ:#x}")
        set_exec(0xff)
        ws_store4(T1, sT0)
        set_exec(FULL)
    stamp("p1_q")
    a1(L, a.vm - vm_a1)
    pump.fill(pump.c + optL("F1", L, 6, 5))
    touches(L, 3)

def row_stats_publish(soff, SM):
    a(f"v_dot2_f32_bf16 v{SM}, v{XR}, s{sONES}, 0")
    a(f"v_dot2_f32_bf16 v{SM+1}, v{XR}, v{XR}, 0")
    a(f"v_dot2_f32_bf16 v{SM+2}, v{XR+1}, s{sONES}, 0")
    a(f"v_dot2_f32_bf16 v{SM+3}, v{XR+1}, v{XR+1}, 0")
    for j in range(2, 8):
        o = 2 * (j & 1)
        a(f"v_dot2_f32_bf16 v{SM+o}, v{XR+j}, s{sONES}, v{SM+o}")
        a(f"v_dot2_f32_bf16 v{SM+o+1}, v{XR+j}, v{XR+j}, v{SM+o+1}")
    a(f"v_lshlrev_b32 v{vT0}, 3, v{vL}")
    pk("add", SM, vr(SM,2), vr(SM+2,2))
    a(f"v_mov_b32 v{SM+2}, v{SM}")
    a(f"v_mov_b32 v{SM+3}, v{SM+1}")
    a(f"v_permlane32_swap_b32 v{SM}, v{SM+2}")
    a(f"v_permlane32_swap_b32 v{SM+1}, v{SM+3}")
    pk("add", SM, vr(SM,2), vr(SM+2,2))
    a(f"s_mov_b32 exec_hi, 0")
    a(f"v_and_b32 v{SM+1}, 0x7fffffff, v{SM+1}")
    a(f"buffer_store_dwordx2 {vr(SM,2)}, v{vT0}, {sr(SWS,4)}, s{soff} offen sc1")
    set_exec(FULL)

def unpack_xr(XU):
    for j in range(8):
        a(f"v_lshlrev_b32 v{XU+2*j}, 16, v{XR+j}")
        a(f"v_and_b32 v{XU+2*j+1}, 0xffff0000, v{XR+j}")

def p2(L):
    a.c(f"======== P2 layer {L}")
    KF, QF = 128, 192
    ACC = 32; CR = 64; OF = 96; WF = 104; XU = 64
    vK, vKC, vMX = MA, MA + 1, MA + 2
    tr_base(vTA, vTB, sKH, L_B)
    a(f"s_lshl_b32 s{sT2}, s{sKH}, 15")
    a(f"v_add_u32 v{vTA}, s{sT2}, v{vTA}")
    a(f"v_add_u32 v{vTB}, s{sT2}, v{vTB}")
    a(f"v_and_b32 v{vT0}, 31, v{vL}")
    a(f"v_mul_u32_u24 v{vKC}, 384, v{vT0}")
    a(f"v_min_u32 v{vT0}, 16, v{vT0}")
    a(f"v_lshlrev_b32 v{vT0}, 4, v{vT0}")
    a(f"v_mul_u32_u24 v{vT1}, 384, v{vHH}")
    a(f"v_add_u32 v{vK}, v{vT0}, v{vT1}")
    a(f"v_and_b32 v{vT2}, 7, v{vL}")
    a(f"v_lshlrev_b32 v{vT2}, {11 if L else 7}, v{vT2}")
    if L == 0:
        a(f"s_sub_u32 s{sT0}, s{sAPQR}, {PQ[0]:#x}")
        a(f"s_lshr_b32 s{sT0}, s{sT0}, 4")
        a(f"s_add_u32 s{sT0}, s{sT0}, {TAGQ:#x}")
    pump.run(min(R1 + 5, optL("B1", L, 18, 21)), refill=bool(optL("B1R", L, 1, 0)))
    set_poi(CR)
    tile_poison(CR, sAHTW, 0, 2048)
    stamp("beta")
    if L == 1: poll1(f"v{vT2}, {sr(SWS,4)}, s{sAPQR} offen offset:2044", 0x36 + L, tmp=vMX)
    else: poll1(f"v{vT2}, {sr(SWS,4)}, s{sT0} offen", 0x36 + L, tmp=vMX, tag=True)
    stamp("p2_pqc")
    def ldq():
        a(f"s_mov_b32 s{sT4}, s{sAPQR}")
        for j in range(16):
            a(f"buffer_load_dwordx4 {vr(QF+4*j,4)}, v{vL16}, {sr(SWS,4)}, s{sT4} offen offset:{(j&3)*1024} sc1")
            if j & 3 == 3 and j < 15: a(f"s_add_u32 s{sT4}, s{sT4}, 4096")
    ldq()
    if L == 0:
        a.wait(vm=G['wo'])
        for q in range(2):
            a(f"v_permlane32_swap_b32 v{XR+4*q}, v{XR+4*q+2}")
            a(f"v_permlane32_swap_b32 v{XR+4*q+1}, v{XR+4*q+3}")
        a(f"v_lshlrev_b32 v{vB2}, 16, v{vB2}")
    pump.run(min(R1 + 5, pump.i), refill=False)
    pump.run(min(R1 + 5, optL("B2", L, 0, 0)), refill=False)
    pump.fill(pump.c + optL("FK", L, 0, 0))
    a(f"s_xor_b32 s{sT0}, s{sW}, 1")
    a(f"s_lshl_b32 s{sT0}, s{sT0}, 12")
    a(f"v_add_u32 v{vRS}, s{sT0}, v{vL16}")
    a.wait_lg_all()
    a("s_barrier")
    rw = {}
    def RW(j):
        b = WF + (j % 3) * 8
        a(f"ds_read_b64_tr_b16 {vr(b,2)}, v{vTA} offset:{j*2048}")
        a(f"ds_read_b64_tr_b16 {vr(b+2,2)}, v{vTA} offset:{j*2048+1024}")
        a(f"ds_read_b64_tr_b16 {vr(b+4,2)}, v{vTB} offset:{j*2048}")
        rw[j] = a(f"ds_read_b64_tr_b16 {vr(b+6,2)}, v{vTB} offset:{j*2048+1024}")
    poll1(f"v{vKC}, {sr(SWS,4)}, s{sAKVF} offen offset:272", 0x38 + L, tmp=vT2, tag=True)
    stamp("p2_kvc")
    redo = a.newlabel("P2REDO"); go = a.newlabel("P2GO")
    a(f"s_branch {go}")
    a.label(redo)
    with cond():
        ldq()
        a("s_waitcnt vmcnt(0)")
    a.label(go)
    lid = {}
    def LD(j):
        if j == 0: a(f"s_mov_b32 s{sSO}, s{sAKVF}")
        elif j & 3 == 0: a(f"s_add_u32 s{sSO}, s{sSO}, {4*768}")
        lid[j] = a(f"buffer_load_dwordx4 {vr(KF+4*j,4)}, v{vK}, {sr(SWS,4)}, s{sSO} offen offset:{(j&3)*768} sc1")
    PLA = optL("PLA", L, 10, 10)
    for j in range(PLA): LD(j)
    RW(0); RW(1)
    unpack_xr(ACC)
    a(f"v_mov_b32 v{vMX}, 0")
    def M1(j):
        a.wait(vm=lid[j])
        mfma(vr(CR+(j&1)*16,16), vr(KF+4*j,4), vr(QF+4*j,4), "0")
        a(f"v_max3_u32 v{vMX}, v{vMX}, v{KF+4*j}, v{QF+4*j}")
        if j + PLA < 16: LD(j + PLA)
        if j + PLA == 16: touches(L, 9)
    def Va(j):
        c = CR + (j & 1) * 16
        a(f"v_add_f32 v{c+8}, s{sEPS6}, v{c+8}")
        a(f"v_rcp_f32 v{c+8}, v{c+8}")
    def Vb(j):
        c = CR + (j & 1) * 16; o = OF + (j & 1) * 4
        for i in range(4): a(f"v_mul_f32 v{c+i}, v{c+i}, v{c+8}")
        for i in range(2): a(f"v_cvt_pk_bf16_f32 v{o+i}, v{c+2*i}, v{c+2*i+1}")
    def Vc(j):
        c = CR + (j & 1) * 16; o = OF + (j & 1) * 4
        for i in range(4, 8): a(f"v_mul_f32 v{c+i}, v{c+i}, v{c+8}")
        for i in range(2, 4): a(f"v_cvt_pk_bf16_f32 v{o+i}, v{c+2*i}, v{c+2*i+1}")
    M1(0); M1(1)
    Va(0); Vb(0); Vc(0); M1(2)
    nfp = optL("FP2", L, 6, 6)
    kb_saved = False
    for j in range(16):
        o = OF + (j & 1) * 4; b = WF + (j % 3) * 8
        if j + 1 < 16: Va(j + 1)
        a.wait(lg=rw[j])
        mfma(vr(ACC+16,16), vr(b+4,4), vr(o,4), "0" if j == 0 else vr(ACC+16,16))
        if j + 1 < 16: Vb(j + 1)
        mfma(vr(ACC,16), vr(b,4), vr(o,4), vr(ACC,16))
        if j + 1 < 16: Vc(j + 1)
        if j + 3 < 16: M1(j + 3)
        if j + 2 < 16: RW(j + 2)
    verify(vMX, redo)
    stamp("p2_main")
    for q in range(4): a(f"ds_write_b128 v{vRS}, {vr(ACC+16+4*q,4)} offset:{q*1024}")
    a(f"v_xor_b32 v{vT1}, 4096, v{vRS}")
    touches(L, 4)
    a.wait_lg_all()
    a("s_barrier")
    ids = [a(f"ds_read_b128 {vr(ACC+16+4*q,4)}, v{vT1} offset:{q*1024}") for q in range(4)]
    for q in range(4):
        a.wait(lg=ids[q])
        pk("add", ACC+4*q, vr(ACC+4*q,2), vr(ACC+16+4*q,2))
        pk("add", ACC+4*q+2, vr(ACC+4*q+2,2), vr(ACC+16+4*q+2,2))
        a(f"v_cvt_pk_bf16_f32 v{XR+2*q}, v{ACC+4*q}, v{ACC+4*q+1}")
        a(f"v_cvt_pk_bf16_f32 v{XR+2*q+1}, v{ACC+4*q+2}, v{ACC+4*q+3}")
    row_stats_publish(sASTW, OF)
    stamp("p2_stpub")
    pump.run(pump.i, refill=False)
    pump.fill(pump.c + optL("GF", L, 6, 4))
    unpack_xr(XU)
    IDF = 104
    a(f"v_and_b32 v{vT0}, 31, v{vL}")
    a(f"v_lshlrev_b32 v{vT1}, 2, v{vHH}")
    a(f"v_sub_u32 v{vT0}, v{vT0}, v{vT1}")
    a(f"v_mov_b32 v{vT3}, 0x3f80")
    for f in range(2):
        for c in range(4):
            base = 16 * f + ((2 * c) & 3) + 8 * (c >> 1)
            a(f"v_subrev_u32 v{vT1}, {base}, v{vT0}")
            a(f"v_cmp_gt_u32 vcc, 2, v{vT1}")
            a(f"v_lshlrev_b32 v{vT1}, 4, v{vT1}")
            a(f"v_lshlrev_b32 v{vT2}, v{vT1}, v{vT3}")
            a(f"v_cndmask_b32 v{IDF+4*f+c}, 0, v{vT2}, vcc")
    SB = 128
    a(f"v_and_b32 v{vT0}, 31, v{vL}")
    a(f"v_lshlrev_b32 v{vT0}, 3, v{vT0}")
    a(f"v_lshl_add_u32 v{vT2}, v{vHH}, 12, v{vT0}")
    a(f"v_mov_b32 v{SB+16}, {fl(1.0+1e-5)}")
    def issue():
        for p in range(8): a(f"buffer_load_dwordx2 {vr(SB+2*p,2)}, v{vT2}, {sr(SWS,4)}, s{sASTR} offen offset:{p*512} sc1")
    poll(issue, lambda: stats_check(SB), 0x34 + L)
    stamp("p2_stats")
    if optL("SF", L, 6, 3):
        pump.run(pump.i, refill=False)
        pump.fill(pump.c + optL("SF", L, 6, 3))
    stats_sum(SB)
    a(f"v_mul_f32 v{SB}, {fl(-1/512)}, v{SB}")
    a(f"v_mul_f32 v{SB+1}, {fl(1/512)}, v{SB+1}")
    a(f"v_fma_f32 v{SB+1}, -v{SB}, v{SB}, v{SB+1}")
    a(f"v_max_f32 v{SB+1}, 0, v{SB+1}")
    a(f"v_fmaak_f32 v{SB+1}, v{SB+1}, v{SB+16}, {fl(1e-10)}")
    a(f"v_rsq_f32 v{SB+2}, v{SB+1}")
    a(f"v_mul_f32 v{SB}, v{SB}, v{SB+2}")
    HP_ = 112
    for f in range(2):
        for j in range(4*f, 4*f+4):
            pk("fma", XU+2*j, vr(XU+2*j,2), vr(SB+2,2), vr(SB,2), hi=[1,0,0])
    for f in range(2):
        for j in range(4*f, 4*f+4):
            a(f"v_cvt_pk_bf16_f32 v{HP_+j}, v{XU+2*j}, v{XU+2*j+1}")
        mfma(vr(ACC,16), vr(HP_+4*f,4), vr(IDF+4*f,4), "0" if f == 0 else vr(ACC,16))
    for f in range(2):
        for j in range(4): a(f"v_cvt_pk_bf16_f32 v{ACC+16+4*f+j}, v{ACC+8*f+2*j}, v{ACC+8*f+2*j+1}")
        ws_store4(ACC + 16 + 4 * f, sAHTW, 2048 * f)
    touches(L, 5)
    stamp(f"p2_{L}")

ACC = 32; RING = 96; AUX = 144
vR1, vR2, vR3, vRA, vRB = vT0, vT1, vT2, vRS, MA + 2
def stream(kind, nks, srot, sbase, code, tail=None, each=None):
    NR = 6; LK = NR - 1
    vA, vB, vMX, vC = vTA, vTB, MA, MA + 1
    a(f"s_lshl_b32 s{sT0}, s{sKH}, 10")
    a(f"v_add_u32 v{vA}, s{sT0}, v{vL16}")
    a(f"v_xor_b32 v{vB}, 1024, v{vA}")
    a(f"v_add_u32 v{vA}, s{sbase}, v{vA}")
    a(f"v_add_u32 v{vB}, s{sbase}, v{vB}")
    a(f"v_min_u32 v{vT0}, {nks-1}, v{vL}")
    a(f"v_lshrrev_b32 v{vT1}, 1, v{vT0}")
    a(f"v_and_b32 v{vT0}, 1, v{vT0}")
    a(f"v_lshlrev_b32 v{vT0}, 10, v{vT0}")
    a(f"v_lshl_add_u32 v{vC}, v{vT1}, 12, v{vT0}")
    for acc, r in ((1, vR1), (2, vR2)):
        a(f"s_xor_b32 s{sT0}, s{sW}, {acc}")
        a(f"s_lshl_b32 s{sT0}, s{sT0}, 13")
        a(f"v_add_u32 v{r}, s{sT0}, v{vL16}")
    a(f"s_xor_b32 s{sT0}, s{sW}, 3")
    a(f"s_lshl_b32 s{sT0}, s{sT0}, 14")
    a(f"v_add_u32 v{vR3}, s{sT0}, v{vL16}")
    a(f"s_lshl_b32 s{sT0}, s{sW}, 13")
    a(f"v_add_u32 v{vRA}, s{sT0}, v{vL16}")
    a(f"v_add_u32 v{vRB}, s{sWA}, v{vL16}")
    ids = {}
    def LDa(s):
        b = RING + (s % NR) * 8
        if s & 1 == 0 and s > 0:
            a(f"s_add_u32 s{sSO}, s{sSO}, 4096")
            a(f"s_cmp_eq_u32 s{sSO}, {nks*2048}")
            a(f"s_cselect_b32 s{sSO}, 0, s{sSO}")
        a(f"buffer_load_dwordx4 {vr(b,4)}, v{vA}, {sr(SWS,4)}, s{sSO} offen offset:{(s&1)*2048} sc1")
    def LDb(s):
        b = RING + (s % NR) * 8
        ids[s] = a(f"buffer_load_dwordx4 {vr(b+4,4)}, v{vB}, {sr(SWS,4)}, s{sSO} offen offset:{(s&1)*2048} sc1")
    def run():
        redo = a.newlabel("SREDO")
        a(f"s_mov_b32 s{sKB}, s{sWOFF}")
        poll1(f"v{vC}, {sr(SWS,4)}, s{sbase} offen offset:{2048+1020}", code, tmp=MA + 3)
        stamp("canary")
        a.label(redo)
        a(f"s_lshl_b32 s{sSO}, s{srot}, 11")
        for s in range(LK): LDa(s); LDb(s)
        a(f"s_mov_b32 s{sWOFF}, s{sKB}")
        a(f"v_mov_b32 v{vMX}, 0")
        for s in range(nks):
            a.wait(vm=ids[s])
            b = RING + (s % NR) * 8
            order = (0, 1, 2, 3) if s < nks - 1 else (1, 2, 3, 0)
            for n, acc in enumerate(order):
                wf = wreg(kind, s, 4 * (acc >> 1), 4); af = vr(b + 4 * (acc & 1), 4)
                c = "0" if s == 0 else vr(ACC + 16 * acc, 16)
                A_, B_ = (wf, af) if kind == 1 else (af, wf)
                mfma(vr(ACC+16*acc,16), A_, B_, c)
                if n == 0 and s + LK < nks: LDa(s + LK)
                if n == 1 and s + LK < nks: LDb(s + LK)
                if n == (2 if s < nks - 1 else 0): a(f"v_max3_u32 v{vMX}, v{vMX}, v{b}, v{b+4}")
                if each and n == 2: each(s)
                if tail and s + LK >= nks and n < 3: tail(s + LK - nks, n)
        verify(vMX, redo)
    return run

def reduce4():
    for acc, r in ((1, vR1), (2, vR2), (3, vR3)):
        o = (0, 4096, L_A + SCR)[acc - 1]
        for q in range(4): a(f"ds_write_b128 v{r}, {vr(ACC+16*acc+4*q,4)} offset:{o+q*1024}")
    def sync_and_read():
        a.wait_lg_all(force=True)
        a("s_barrier")
        ids = {}
        for q in range(4):
            a(f"ds_read_b128 {vr(RING+4*q,4)}, v{vRA} offset:{q*1024}")
            ids[(q, 1)] = a(f"ds_read_b128 {vr(RING+16+4*q,4)}, v{vRA} offset:{4096+q*1024}")
            ids[(q, 2)] = a(f"ds_read_b128 {vr(RING+32+4*q,4)}, v{vRB} offset:{SCR+q*1024}")
        def add(q):
            a.wait(lg=ids[(q, 1)])
            for j in (0, 2): pk("add", RING+4*q+j, vr(RING+4*q+j,2), vr(RING+16+4*q+j,2))
            a.wait(lg=ids[(q, 2)])
            for j in (0, 2): pk("add", ACC+4*q+j, vr(ACC+4*q+j,2), vr(RING+32+4*q+j,2))
            for j in (0, 2): pk("add", ACC+4*q+j, vr(ACC+4*q+j,2), vr(RING+4*q+j,2))
        return add
    return sync_and_read

def p3(L):
    a.c(f"======== P3 layer {L}")
    B1R = AUX
    pump.run(pump.i, refill=True)
    lin(sT0, [(sFT, 128), (sRH, 64)])
    a(f"v_lshlrev_b32 v{vT0}, 3, v{vHH}")
    for q in range(4): bid = a(f"buffer_load_dwordx2 {vr(RING+2*q,2)}, v{vT0}, {sr(SB1,4)}, s{sT0} offen offset:{16*q}")
    set_poi(ACC)
    tile_poison(ACC, sAUW, 0, 2048)
    if L == 0:
        tile_poison(ACC, sAPQW, PQ[1] - PQ[0], 1024)
        kv_poison(ACC, 1)
    pump.run(32)
    a.wait_lg_all()
    if L == 1: a("s_barrier")
    pump.setup(2, L, extra=optL("XB", L, 0, 8))
    pump.run(optL("V2", L, 0, 0), refill=False)
    pump.fill(pump.c + optL("V2F", L, 0, 8))
    assert pump.c <= R2
    if L == 0: a("s_barrier")
    a.wait(vm=bid)
    for j in range(8):
        a(f"v_lshlrev_b32 v{B1R+2*j}, 16, v{RING+j}")
        a(f"v_and_b32 v{B1R+2*j+1}, 0xffff0000, v{RING+j}")
    stamp("p3_delta")
    idle = a.newlabel("P3IDLE"); join = a.newlabel("P3JOIN")
    pst = (pump.i, pump.c, dict(pump.vid), dict(pump.lid))
    a(f"s_cmp_eq_u32 s{sP3}, 7")
    a(f"s_cbranch_scc1 {idle}")
    SM = optL("SM", L, 0, 0); IDN = optL("IDT", L, 14, 0)
    with cond():
        ntail = optL("V2T", L, 5, 5)
        def tl(k, n):
            if n == 0 and k < ntail: pump.fill(pump.i + 1)
        each = None
        if SM:
            a(f"s_lshr_b32 s{sT1}, s{sWI}, 3")
            a(f"s_add_u32 s{sT1}, s{sT1}, 14")
            a(f"s_add_u32 s{sT1}, s{sT1}, s{sROT2}")
            a(f"s_sub_u32 s{sT2}, s{sT1}, 28")
            a(f"s_cselect_b32 s{sT1}, s{sT1}, s{sT2}")
            a(f"s_and_b32 s{sT2}, s{sWI}, 3")
            a(f"s_mul_i32 s{sT2}, s{sT2}, 28")
            a(f"s_add_u32 s{sT1}, s{sT1}, s{sT2}")
            a(f"s_lshl_b32 s{sT1}, s{sT1}, 16")
            a(f"s_bfe_u32 s{sT2}, s{sWI}, 0x10002")
            a(f"s_lshl_b32 s{sT2}, s{sT2}, 15")
            a(f"s_add_u32 s{sT1}, s{sT1}, s{sT2}")
            a(f"s_and_b32 s{sT2}, s{sB}, 7")
            a(f"s_lshl_b32 s{sT2}, s{sT2}, 9")
            a(f"s_add_u32 s{sT1}, s{sT1}, s{sT2}")
            def each(s):
                for hf in range(2):
                    k = 2 * s + hf
                    ln = k & 31
                    a(f"s_buffer_load_dword s{sDUM}, {sr(SW2,4)}, s{sT1} offset:{(ln>>2)*4096 + (ln&3)*128 + (k>>5)*64}")
        run = stream(1, 32, sROT1, sAHTR, 0x50 + L, tail=tl, each=each)
        run()
        stamp("gemm")
        sync = reduce4()
        K1 = -2.0 * 0.7978845608028654 * LOG2E
        a(f"s_mov_b32 s{sT2}, s{sGK}")
        a(f"v_mov_b32 v{vTA}, {fl(K1)}")
        for q in range(8): pk("add", ACC+2*q, vr(ACC+2*q,2), vr(B1R+2*q,2))
        add = sync()
        T = ACC + 16; PKD = ACC + 32
        for h in range(2):
            add(2 * h); add(2 * h + 1)
            R4 = range(4 * h, 4 * h + 4); R8 = range(8 * h, 8 * h + 8)
            for q in R4: pk("mul", T+2*q, vr(ACC+2*q,2), vr(ACC+2*q,2))
            for q in R4: pk("fma", T+2*q, vr(T+2*q,2), sr(sT2,2), vr(vTA,2), hi=[1,0,0])
            for q in R4: pk("mul", T+2*q, vr(T+2*q,2), vr(ACC+2*q,2))
            for i in R8: a(f"v_exp_f32 v{T+i}, v{T+i}")
            for q in R4: pk("add", T+2*q, vr(T+2*q,2), "1.0", hi=[1,0])
            for i in R8: a(f"v_rcp_f32 v{T+i}, v{T+i}")
            for q in R4: pk("mul", ACC+2*q, vr(ACC+2*q,2), vr(T+2*q,2))
            for q in R4: a(f"v_cvt_pk_bf16_f32 v{PKD+q}, v{ACC+2*q}, v{ACC+2*q+1}")
            ws_store4(PKD + 4 * h, sAUW, 2048 * h)
        a(f"s_branch {join}")
    a.label(idle)
    pump.i, pump.c, pump.vid, pump.lid = pst
    if IDN:
        a(f"v_lshrrev_b32 v{vT0}, 2, v{vL}")
        a(f"v_lshlrev_b32 v{vT0}, 12, v{vT0}")
        a(f"v_and_b32 v{vT1}, 3, v{vL}")
        a(f"v_lshl_add_u32 v{vT0}, v{vT1}, 7, v{vT0}")
        a(f"s_bfe_u32 s{sT0}, s{sWI}, 0x20002")
        a(f"s_mul_i32 s{sT0}, s{sT0}, {28*65536}")
        a(f"s_and_b32 s{sT1}, s{sB}, 7")
        a(f"s_lshl_b32 s{sT1}, s{sT1}, 9")
        a(f"s_add_u32 s{sT0}, s{sT0}, s{sT1}")
        a(f"v_add_u32 v{vT0}, s{sT0}, v{vT0}")
        a(f"s_add_u32 s{sT1}, s{sW}, s{sROT2}")
        a(f"s_add_u32 s{sT1}, s{sT1}, {28 - IDN}")
        for k in range((IDN + 3) // 4):
            a(f"s_sub_u32 s{sT2}, s{sT1}, 28")
            a(f"s_cselect_b32 s{sT1}, s{sT1}, s{sT2}")
            a(f"s_lshl_b32 s{sT2}, s{sT1}, 16")
            a(f"buffer_load_dword v31, v{vT0}, {sr(SW2,4)}, s{sT2} offen")
            a(f"s_add_u32 s{sT1}, s{sT1}, 4")
    pump.fill(pump.i + ntail)
    a.label(join)
    stamp(f"p3_{L}")

def p4(L):
    a.c(f"======== P4 layer {L}")
    if L == 0:
        set_poi(ACC)
        tile_poison(ACC, sAX2W, 0, 1024)
    pump.run(28)
    stamp("p4_w2")
    NKT = opt("NKT", 8)
    def kvdma(j):
        if j == 0: a(f"s_add_u32 s{sT3}, s{sAWQT}, s{sWA}")
        if j & 3 == 0:
            a(f"s_add_u32 m0, s{sWA}, {j*1024}")
            if j: a(f"s_add_u32 s{sT3}, s{sT3}, 4096")
        a(f"buffer_load_dwordx4 v{vL16}, {sr(SWS,4)}, s{sT3} offen offset:{(j&3)*1024} lds")
    def tl(k, n):
        j = 3 * k + n
        if j < NKT: kvdma(j)
    run = stream(2, 28, sROT2, sAUR, 0x60 + L, tail=tl if L == 0 else None)
    XU = AUX
    unpack_xr(XU)
    for q in range(8): pk("add", XU+2*q, vr(XU+2*q,2), vr(vB2-1,2), lo=[0,1], hi=[1,1])
    a.wait_lg_all()
    a("s_barrier")
    run()
    stamp("gemm")
    sync = reduce4()
    for q in range(8): pk("add", ACC+2*q, vr(ACC+2*q,2), vr(XU+2*q,2))
    add = sync()
    for h in range(2):
        add(2 * h); add(2 * h + 1)
        for q in range(4 * h, 4 * h + 4): a(f"v_cvt_pk_bf16_f32 v{XR+q}, v{ACC+2*q}, v{ACC+2*q+1}")
        if L == 0:
            ws_store4(XR + 4 * h, sAX2W, 1024 * h)
        else:
            a(f"v_permlane32_swap_b32 v{XR+4*h}, v{XR+4*h+2}")
            a(f"v_permlane32_swap_b32 v{XR+4*h+1}, v{XR+4*h+3}")
            a(f"buffer_store_dwordx4 {vr(XR+4*h,4)}, v{vOUT}, {sr(SOUT,4)}, 0 offen offset:{32*h}{['', ' sc1', ' nt', ' sc0 sc1'][opt('OST', 0)]}")
    if L == 0:
        row_stats_publish(sAS2W, ACC + 16)
        for j in range(NKT, 16): kvdma(j)
    stamp(f"p4_{L}")

prologue()
for L in range(2):
    p1(L); p2(L); p3(L); p4(L)
finish()
a.label("L_EXIT")
a("s_endpgm")
a.label("L_END")

hdr = open(f"ref.s").read().split("; Override launch")[0]
out = hdr + f"""; @launch grid=(256,1,1) block=(256,1,1) lds={LDS_BYTES}
.amdgcn_target "amdgcn-amd-amdhsa--gfx950"
.text
.globl {NAME}_kernel
.p2align 8
.type {NAME}_kernel,@function
{NAME}_kernel:
""" + a.text() + f""".section .rodata,"a"
.p2align 6
.amdhsa_kernel {NAME}_kernel
  .amdhsa_next_free_vgpr 512
  .amdhsa_next_free_sgpr 102
  .amdhsa_accum_offset 256
  .amdhsa_group_segment_fixed_size 0
  .amdhsa_kernarg_size 88
  .amdhsa_user_sgpr_count 2
  .amdhsa_user_sgpr_kernarg_segment_ptr 1
  .amdhsa_system_sgpr_workgroup_id_x 1
  .amdhsa_float_denorm_mode_32 3
.end_amdhsa_kernel
"""
outp = [x for x in sys.argv[1:] if x.endswith(".s")]
open(outp[0], "w").write(out)
if DIAG: open(outp[0] + ".stamps", "w").write("\n".join(stamp_names))
```

```python
import sys, struct
from contextlib import contextmanager
from asmlib import Asm, vr, ar, sr

NAME = "interleave_layers__linear_attn_block__mixer_token_mlp__prompt"
DIAG = "--diag" in sys.argv
OPT = {}
for a_ in sys.argv:
    if a_.startswith("-D"):
        k_, v_ = a_[2:].split("="); OPT[k_] = int(v_)
def opt(k, d): return OPT.get(k, d)
def optL(k, L, d0, d1): return OPT.get(f"{k}_{L}", (d0, d1)[L])
def f2u(x): return struct.unpack("<I", struct.pack("<f", x))[0]
def fl(x): return "0x%08x" % f2u(x)
FULL = (1 << 64) - 1
LOG2E = 1.4426950408889634

KVF = [0x2000, 0xC0000]; KVP = [0x8000, 0xC6000]; ST = [0x166000, 0x1A6000]; ST2 = 0x1E6000
SELFP = 0xC0000
PQ = [0x400000, 0x600000]; HT = [0x800000, 0xA00000]; U = [0xC00000, 0xE00000]; X2 = 0x1000000
WQT = 0x1200000
TS = 0x1400000
DUMP = 0x1500000
ERRS = 0x1520000
NONCE = 0x0; TAGQ = 0x1540000
WS_BYTES = 268435456
L_A = 32768; L_B = 98304; LDS_BYTES = 163840
NS = 6; SCR = 12288
sW = 3
SX, SWQKV, SWO, SW1, SW2, SWS, SOUT, SDBG, SB1, SB2, SCODE = 4, 8, 12, 16, 20, 24, 28, 32, 36, 40, 44
sST, sDT, sRB, sHP, sDT3, sFT, sP3, sRH, sKH, sWB, sTO, sONES = 48, 49, 50, 51, 52, 53, 54, 55, 56, 57, 58, 59
sEPS6 = 60; sB = 61
sT0, sT1, sT2, sT3, sT4, sT5 = 62, 63, 64, 65, 66, 67
sSO = 68; sW1K = 69; sTS = 70
sL2E = 74; sWA = 75; sROTX = 76; sROT1 = 77; sROT2 = 78; sRED = 79; sWOFF = 80; sKB = 81; sXC = 82; sWI = 83
sKA = 84
sAKVP, sAPQW, sAPQR, sAKVF, sASTW, sASTR, sAHTW, sAHTR, sAUW, sAUR, sAX2W, sAX2R, sAS2W, sAS2R, sAWQT, sGK = range(84, 100)
sDUM = 100; sNON = 101
vL, vL16, vTA, vTB, vT0, vT1, vT2, vT3 = 0, 1, 2, 3, 4, 5, 6, 7
XR = 8
CKP, CVP, CQP, vB2, vRS, vHH, vOUT, vTSV = 16, 17, 18, 19, 20, 21, 22, 23
vWA, vWB, vWTA, vWTB = 24, 25, 26, 27
MA = 28

a = Asm()
stamp_names = []
G = {}

@contextmanager
def cond():
    st = (a.vm, a.vm_done, a.lg, a.lg_done); h = list(a.hist)
    yield
    a.vm, a.vm_done, a.lg, a.lg_done = st[0], min(st[1], st[0]), st[2], min(st[3], st[2])
    a.hist = h

def stamp(name):
    if not DIAG: return
    if "--lite" in sys.argv and name not in ("start", "end", "p4_0"): return
    k = len(stamp_names); stamp_names.append(name)
    if opt("CYC", 0) and name not in ("start", "end"): a(f"s_memtime {sr(sTS,2)}")
    else: a(f"s_memrealtime {sr(sTS,2)}")
    if name in ("start", "end"): a(f"s_memtime {sr(sTS+2,2)}")
    a("s_waitcnt lgkmcnt(0)"); a.lg_done = a.lg
    a(f"v_writelane_b32 v{vTSV}, s{sTS}, {k}")
    if name in ("start", "end"): a(f"v_writelane_b32 v{vTSV}, s{sTS+2}, {62 if name == 'start' else 63}")

def srd(base, ptr, nbytes):
    a(f"s_mov_b32 s{base}, s{ptr}")
    a(f"s_and_b32 s{base+1}, s{ptr+1}, 0xffff")
    a(f"s_mov_b32 s{base+2}, {nbytes:#x}")
    a(f"s_mov_b32 s{base+3}, 0x20000")

def set_exec(mask):
    if mask == FULL: a("s_mov_b64 exec, -1")
    elif mask <= 64: a(f"s_mov_b64 exec, {mask}")
    else:
        a(f"s_mov_b32 exec_lo, {mask & 0xffffffff:#x}"); a(f"s_mov_b32 exec_hi, {mask >> 32:#x}")

def lin(dst, terms, const=0):
    first = True
    for r, m in terms:
        t = dst if first else sT5
        if m == 1 and not first: a(f"s_add_u32 s{dst}, s{dst}, s{r}"); continue
        if m & (m - 1) == 0: a(f"s_lshl_b32 s{t}, s{r}, {m.bit_length()-1}")
        else: a(f"s_mul_i32 s{t}, s{r}, {m}")
        if not first: a(f"s_add_u32 s{dst}, s{dst}, s{sT5}")
        first = False
    if const: a(f"s_add_u32 s{dst}, s{dst}, {const:#x}")

def timeout_path(code):
    a(f"s_mov_b32 s{sTO}, 0")
    if DIAG:
        a(f"v_mov_b32 v{vT3}, {code}")
        a(f"s_mov_b32 s{sT5}, {ERRS:#x}")
        a(f"buffer_store_dword v{vT3}, off, {sr(SWS,4)}, s{sT5}")
        a("s_waitcnt vmcnt(0)")

def poll(issue, check, code, pre=None):
    top = a.newlabel("POLL"); done = a.newlabel("PDONE"); chk = a.newlabel("PCHK")
    if pre is not None:
        a.wait(vm=pre)
        st = (a.vm, a.vm_done)
        a(f"s_branch {chk}")
    a.label(top)
    issue()
    a.wait_vm_all(force=True)
    if pre is not None: a.label(chk)
    check()
    a(f"s_cbranch_vccz {done}")
    h = list(a.hist); vmst = (a.vm, a.vm_done)
    if opt("PS", 2): a(f"s_sleep {opt('PS', 2)}")
    a(f"s_sub_u32 s{sTO}, s{sTO}, 1")
    a(f"s_cbranch_scc0 {top}")
    timeout_path(code)
    a.label(done)
    a.hist = h; a.vm, a.vm_done = vmst
    if pre is not None: a.vm, a.vm_done = st

def poll1(addr, code, tmp=None, tag=False):
    cmp = (lambda r: a(f"v_cmp_ne_u32 vcc, s{sNON}, v{r}")) if tag else (lambda r: a(f"v_cmp_eq_u32 vcc, -1, v{r}"))
    if tmp is None or not opt("PP", 0):
        poll(lambda: a(f"buffer_load_dword v{vT3}, {addr} sc1"), lambda: cmp(vT3), code)
        return
    top = a.newlabel("PP"); done = a.newlabel("PPD")
    a(f"buffer_load_dword v{vT3}, {addr} sc1")
    a(f"s_nop {opt('PPN', 15)}")
    a.label(top)
    for r, o in ((vT3, tmp), (tmp, vT3)):
        a(f"buffer_load_dword v{o}, {addr} sc1")
        a("s_waitcnt vmcnt(1)")
        cmp(r)
        a(f"s_cbranch_vccz {done}")
    h = list(a.hist)
    a(f"s_sub_u32 s{sTO}, s{sTO}, 2")
    a(f"s_cbranch_scc0 {top}")
    timeout_path(code)
    a.label(done)
    a.hist = h
    a.vm -= 1
    a.vm_done = a.vm - 1

SLD = {}
SPD = {0x50: 1, 0x51: 1, 0x60: 1, 0x61: 1, 0x36: 1, 0x38: 1}
def spec(can_issue, can_check, window, code, redo, on=True):
    go = a.newlabel("GO")
    d = OPT.get(f"SL{code:x}", SLD.get(code, 0))
    if d: a(f"s_sleep {d}")
    on = OPT.get(f"SP{code:x}", SPD.get(code, 0))
    if on:
        can_issue(); cid = a.vm - 1
        window()
        a.wait(vm=cid)
        can_check()
        a(f"s_cbranch_vccz {go}")
        st = (a.vm, a.vm_done, list(a.hist))
        poll(can_issue, can_check, code)
        a.label(redo)
        window()
        a.label(go)
        a.hist = []
        a("s_nop 0")
    else:
        poll(can_issue, can_check, code)
        a.label(redo)
        window()

def verify(vMX, redo):
    ok = a.newlabel("VOK")
    a(f"v_cmp_eq_u32 vcc, -1, v{vMX}")
    a(f"s_cbranch_vccz {ok}")
    h = list(a.hist)
    a("s_waitcnt vmcnt(0)")
    a(f"s_sub_u32 s{sTO}, s{sTO}, 64")
    a(f"s_cbranch_scc0 {redo}")
    a(f"s_mov_b32 s{sTO}, 0")
    a.label(ok)
    a.hist = h

def finish():
    if DIAG:
        stamp("end")
        lin(sT0, [(sB, 1024), (sW, 256)], TS)
        a(f"v_lshlrev_b32 v{vT0}, 2, v{vL}")
        a(f"buffer_store_dword v{vTSV}, v{vT0}, {sr(SWS,4)}, s{sT0} offen")
    a("s_endpgm")

def pk(op, d, x, y, z=None, hi=None, lo=None):
    ops = [x, y] + ([z] if z is not None else [])
    m = ""
    if lo: m += " op_sel:[" + ",".join(map(str, lo)) + "]"
    if hi: m += " op_sel_hi:[" + ",".join(map(str, hi)) + "]"
    a(f"v_pk_{op}_f32 {vr(d,2)}, " + ", ".join(ops) + m)

def mfma(d, A, B, C):
    a(f"v_mfma_f32_32x32x16_bf16 {d}, {A}, {B}, {C}")

def ws_store4(reg, soff, off=0): return a(f"buffer_store_dwordx4 {vr(reg,4)}, v{vL16}, {sr(SWS,4)}, s{soff} offen offset:{off} sc1")

def tr_base(dst_a, dst_b, sel_sgpr, region):
    a(f"v_bfe_u32 v{vT0}, v{vL}, 2, 2")
    a(f"v_lshl_add_u32 v{vT0}, v{vHH}, 2, v{vT0}")
    a(f"v_lshlrev_b32 v{dst_a}, 7, v{vT0}")
    a(f"v_bfe_u32 v{vT1}, v{vL}, 3, 1")
    a(f"v_lshl_add_u32 v{dst_a}, v{vT1}, 6, v{dst_a}")
    a(f"v_bfe_u32 v{vT1}, v{vL}, 4, 1")
    a(f"v_lshl_add_u32 v{dst_a}, v{vT1}, 5, v{dst_a}")
    a(f"v_and_b32 v{vT1}, 3, v{vL}")
    a(f"v_lshl_add_u32 v{dst_a}, v{vT1}, 3, v{dst_a}")
    a(f"s_lshl_b32 s{sT5}, s{sel_sgpr}, 6")
    a(f"v_xor_b32 v{dst_a}, s{sT5}, v{dst_a}")
    a(f"v_add_u32 v{dst_a}, {region}, v{dst_a}")
    a(f"v_xor_b32 v{dst_b}, 64, v{dst_a}")

def dma_voff(dst, dst2, pitch, scol):
    a(f"v_lshrrev_b32 v{vT0}, 3, v{vL}")
    a(f"v_mul_u32_u24 v{dst}, {pitch}, v{vT0}")
    a(f"v_bfe_u32 v{vT1}, v{vL}, 4, 1")
    a(f"v_lshlrev_b32 v{vT1}, 2, v{vT1}")
    a(f"v_and_b32 v{vT0}, 7, v{vL}")
    a(f"v_xor_b32 v{vT0}, v{vT0}, v{vT1}")
    a(f"v_lshl_add_u32 v{dst}, v{vT0}, 4, v{dst}")
    a(f"v_add_u32 v{dst}, s{scol}, v{dst}")
    a(f"v_add_u32 v{dst2}, {8*pitch-1024}, v{dst}")

R1, R2 = 16, 11
def wreg(kind, t, j, n):
    r, base = (R1, 0) if kind == 1 else (R2, R1 * 8)
    if t < r: return ar(base + 8 * t + j, n)
    t -= r
    if t < 5: return ar(216 + 8 * t + j, n)
    return vr(160 + 8 * (t - 5) + j, n)

class Pump:
    def setup(self, kind, L, extra=0):
        self.kind = kind
        self.pitch, self.srd, self.n = (3584, SW1, 32) if kind == 1 else (4096, SW2, 28)
        self.t0 = 0 if L == 0 else (R1 if kind == 1 else R2)
        self.extra = extra
        self.i = self.t0; self.c = self.t0; self.vid = {}; self.lid = {}
        a.c(f"pump setup W{kind}")
        lin(sT4, [(sFT if kind == 1 else sST, 128), (sW, self.n * 16 * self.pitch)])
        dma_voff(vWA, vWB, self.pitch, sT4)
        rot = sROT1 if kind == 1 else sROT2
        a(f"s_add_u32 s{sT5}, s{rot}, {self.t0}")
        a(f"s_sub_u32 s{sWOFF}, s{sT5}, {self.n}")
        a(f"s_cselect_b32 s{sWOFF}, s{sT5}, s{sWOFF}")
        a(f"s_mul_i32 s{sWOFF}, s{sWOFF}, {16*self.pitch}")
    def place(self, t):
        k = t - self.t0
        if k < self.extra: return ("B", k * 2048)
        return ("A", ((k - self.extra) % NS) * 2048)
    def prev_user(self, t):
        p = t - NS
        return p if p - self.t0 >= self.extra else None
    def room(self, lag=0):
        p = self.prev_user(self.i)
        return p is None or p < self.c - lag
    def issue1(self):
        t = self.i
        if opt("NOPUMP", 0):
            self.vid[t] = None; self.i += 1; return
        p = self.prev_user(t)
        if p is not None: a.wait(lg=self.lid[p])
        reg, o = self.place(t)
        a(f"s_add_u32 m0, s{sWB if reg == 'B' else sWA}, {o}")
        if t > self.t0:
            a(f"s_add_u32 s{sWOFF}, s{sWOFF}, {16*self.pitch}")
            a(f"s_cmp_eq_u32 s{sWOFF}, {self.n*16*self.pitch}")
            a(f"s_cselect_b32 s{sWOFF}, 0, s{sWOFF}")
        a(f"buffer_load_dwordx4 v{vWA}, {sr(self.srd,4)}, s{sWOFF} offen lds")
        self.vid[t] = a(f"buffer_load_dwordx4 v{vWB}, {sr(self.srd,4)}, s{sWOFF} offen offset:1024 lds")
        self.i += 1
    def fill(self, upto=None):
        lim = self.n if upto is None else min(self.n, upto)
        while self.i < lim and self.room(): self.issue1()
    def run(self, target, refill=True):
        target = min(target, self.n)
        haveB = False
        while self.c < target:
            t = self.c
            if t >= self.i: self.issue1()
            if opt("NOPUMP", 0):
                self.c += 1; continue
            reg, o = self.place(t)
            ta, tb = vWTA, vWTB
            if reg == "B":
                ta, tb = vT0, vT1
                if not haveB:
                    a(f"v_add_u32 v{vT0}, 65536, v{vWTA}"); a(f"v_add_u32 v{vT1}, 65536, v{vWTB}"); haveB = True
            a.wait(vm=self.vid[t])
            a(f"ds_read_b64_tr_b16 {wreg(self.kind,t,0,2)}, v{ta} offset:{o}")
            a(f"ds_read_b64_tr_b16 {wreg(self.kind,t,2,2)}, v{ta} offset:{o+1024}")
            a(f"ds_read_b64_tr_b16 {wreg(self.kind,t,4,2)}, v{tb} offset:{o}")
            self.lid[t] = a(f"ds_read_b64_tr_b16 {wreg(self.kind,t,6,2)}, v{tb} offset:{o+1024}")
            self.c += 1
            lim = self.n if refill else target
            if self.i < lim and self.room(lag=1): self.issue1()
        if refill: self.fill()
pump = Pump()

def prologue():
    a(f"s_cmp_ge_u32 s2, 256")
    a(f"s_cbranch_scc1 L_EXIT")
    a(f"s_load_dwordx16 {sr(sKA,16)}, s[0:1], 0")
    a(f"s_load_dwordx4 {sr(SCODE,4)}, s[0:1], 64")
    a(f"s_load_dwordx2 s[100:101], s[0:1], 80")
    a(f"s_mov_b32 s{sB}, s2")
    a(f"v_lshrrev_b32 v{vT0}, 6, v0")
    a(f"v_and_b32 v{vL}, 63, v0")
    a(f"v_readfirstlane_b32 s{sW}, v{vT0}")
    a(f"v_lshlrev_b32 v{vL16}, 4, v{vL}")
    a(f"v_lshrrev_b32 v{vHH}, 5, v{vL}")
    if opt("CODEPF", 1) == 2:
        a(f"s_getpc_b64 {sr(SB1,2)}")
        a.label("L_PC")
        a(f"s_and_b32 s{SB1+1}, s{SB1+1}, 0xffff")
        a(f"s_mov_b32 s{SB1+2}, L_END - L_PC")
        a(f"s_mov_b32 s{SB1+3}, 0x20000")
        a(f"s_lshr_b32 s{sT0}, s{sB}, 3")
        a(f"s_lshl_b32 s{sT0}, s{sT0}, 2")
        a(f"s_add_u32 s{sT0}, s{sT0}, s{sW}")
        a(f"s_lshl_b32 s{sT0}, s{sT0}, 10")
        a(f"buffer_load_dwordx4 {ar(252,4)}, v{vL16}, {sr(SB1,4)}, s{sT0} offen")
    if DIAG: a(f"v_mov_b32 v{vTSV}, 0")
    stamp("start")
    X_, I_ = sT0, sT1
    a(f"s_and_b32 s{X_}, s{sB}, 7")
    a(f"s_lshr_b32 s{I_}, s{sB}, 3")
    a(f"s_lshr_b32 s{sT2}, s{I_}, 3")
    a(f"s_and_b32 s{sDT}, s{I_}, 7")
    a(f"s_and_b32 s{sRB}, s{X_}, 3")
    a(f"s_lshl_b32 s{sRB}, s{sRB}, 2")
    a(f"s_add_u32 s{sRB}, s{sRB}, s{sT2}")
    a(f"s_lshr_b32 s{sHP}, s{X_}, 2")
    a(f"s_lshl_b32 s{sHP}, s{sHP}, 3")
    a(f"s_add_u32 s{sHP}, s{sHP}, s{sDT}")
    a(f"s_lshr_b32 s{sROTX}, s{sDT}, 1")
    a(f"s_add_u32 s{sROTX}, s{sROTX}, s{sT2}")
    a(f"s_and_b32 s{sROTX}, s{sROTX}, 3")
    a(f"s_lshl_b32 s{sROTX}, s{sROTX}, 1")
    a(f"s_and_b32 s{sT3}, s{I_}, 1")
    a(f"s_add_u32 s{sROTX}, s{sROTX}, s{sT3}")
    a(f"s_lshl_b32 s{sW1K}, s{sW}, 10")
    a(f"s_lshl_b32 s{sWB}, s{sW}, 14")
    a(f"s_add_u32 s{sWA}, s{sWB}, {L_A}")
    a(f"s_add_u32 s{sWB}, s{sWB}, {L_B}")

def roles2():
    X_, I_ = sT0, sT1
    a(f"s_and_b32 s{X_}, s{sB}, 7")
    a(f"s_lshr_b32 s{I_}, s{sB}, 3")
    a(f"s_lshr_b32 s{sT2}, s{I_}, 3")
    a(f"s_lshl_b32 s{sST}, s{X_}, 2")
    a(f"s_add_u32 s{sST}, s{sST}, s{sT2}")
    a(f"s_lshr_b32 s{sT3}, s{X_}, 1")
    a(f"s_mul_i32 s{sT3}, s{sT3}, 7")
    a(f"s_and_b32 s{sT4}, s{X_}, 1")
    a(f"s_lshl_b32 s{sT5}, s{sT4}, 2")
    a(f"s_add_u32 s{sFT}, s{sT3}, s{sT5}")
    a(f"s_add_u32 s{sFT}, s{sFT}, s{sT2}")
    a(f"s_and_b32 s{sP3}, s{I_}, 3")
    a(f"s_add_u32 s{sT5}, s{sT5}, s{sP3}")
    a(f"s_add_u32 s{sKB}, s{sT3}, 3")
    a(f"s_cmp_lt_u32 s{I_}, 24")
    a(f"s_cselect_b32 s{sFT}, s{sFT}, s{sKB}")
    a(f"s_cselect_b32 s{sDT3}, s{sDT}, s{sT5}")
    a(f"s_mul_i32 s{sT4}, s{sT4}, 3")
    a(f"s_add_u32 s{sXC}, s{sT3}, s{sT4}")
    a(f"s_lshl_b32 s{sROT1}, s{X_}, 2")
    a(f"s_and_b32 s{sT3}, s{I_}, 3")
    a(f"s_lshr_b32 s{sP3}, s{I_}, 2")
    a(f"s_lshl_b32 s{sWI}, s{I_}, 2")
    a(f"s_add_u32 s{sWI}, s{sWI}, s{sW}")
    a(f"s_lshl_b32 s{sRED}, s{X_}, 2")
    a(f"s_add_u32 s{sRED}, s{sRED}, s{sT3}")
    a(f"s_lshl_b32 s{sRED}, s{sRED}, 1")
    a(f"s_add_u32 s{sRED}, s{sRED}, s{sW}")
    a(f"s_cmp_lt_u32 s{sW}, 2")
    a(f"s_cselect_b32 s{sRED}, s{sRED}, 99")
    a(f"s_cmp_eq_u32 s{sP3}, 7")
    a(f"s_cselect_b32 s{sRED}, s{sRED}, 99")
    a(f"s_mul_i32 s{sROT2}, s{X_}, 7")
    a(f"s_lshr_b32 s{sROT2}, s{sROT2}, 2")
    a(f"s_lshl_b32 s{sROT2}, s{sROT2}, 1")
    a(f"s_lshr_b32 s{sRH}, s{sW}, 1")
    a(f"s_and_b32 s{sKH}, s{sW}, 1")
    a(f"s_mov_b32 s{sTO}, 400000")
    a(f"s_mov_b32 s{sONES}, 0x3f803f80")
    a(f"s_mov_b32 s{sEPS6}, {fl(1e-6)}")
    a(f"s_mov_b32 s{sL2E}, {fl(LOG2E)}")

def late_srds():
    srd(SWO, sKA + 4, 512 * 512 * 2)
    srd(SW1, sKA + 8, 2048 * 1792 * 2)
    srd(SB1, sKA + 10, 1792 * 2)
    srd(SW2, sKA + 12, 1792 * 2048 * 2)
    srd(SB2, sKA + 14, 2048 * 2)
    srd(SOUT, SCODE, 2048 * 512 * 2)
    srd(SDBG, SCODE + 2, 256)

def code_prefetch():
    if opt("CODEPF", 1) == 1:
        a(f"s_getpc_b64 {sr(SCODE,2)}")
        a.label("L_PC")
        a(f"s_and_b32 s{SCODE+1}, s{SCODE+1}, 0xffff")
        a(f"s_mov_b32 s{SCODE+2}, L_END - L_PC")
        a(f"s_mov_b32 s{SCODE+3}, 0x20000")
        a(f"s_lshl_b32 s{sT0}, s{sWI}, 10")
        a(f"buffer_load_dwordx4 {ar(252,4)}, v{vL16}, {sr(SCODE,4)}, s{sT0} offen")
    srd(SCODE, SW1, 2048 * 1792 * 2)
    a(f"s_cmp_eq_u32 s{sP3}, 7")
    a(f"s_cselect_b32 s{SW1+2}, 0, s{SW1+2}")

def addresses():
    lin(sAKVP, [(sHP, 64 * 640), (sRB, 4 * 640), (sW, 640)], KVP[0])
    lin(sAPQW, [(sRB, 4 * 32768), (sW, 32768), (sHP, 2048)], PQ[0])
    lin(sAPQR, [(sST, 65536), (sRH, 32768), (sKH, 16384)], PQ[0])
    lin(sAKVF, [(sKH, 16 * 768)], KVF[0])
    lin(sASTW, [(sST, 8192), (sDT, 1024), (sKH, 512), (sRH, 256)], ST[0])
    lin(sASTR, [(sST, 8192), (sRH, 256)], ST[0])
    lin(sAHTW, [(sDT, 262144), (sST, 8192), (sRH, 4096), (sKH, 1024)], HT[0])
    lin(sAHTR, [(sDT3, 262144), (sW, 65536)], HT[0])
    lin(sAUW, [(sDT3, 229376), (sFT, 8192), (sRH, 4096), (sKH, 1024)], U[0])
    a(f"s_cmp_eq_u32 s{sP3}, 7")
    a(f"s_cselect_b32 s{sAUW}, {WS_BYTES:#x}, s{sAUW}")
    lin(sAUR, [(sDT, 229376), (sW, 57344)], U[0])
    lin(sAX2W, [(sST, 65536), (sRH, 32768), (sDT, 4096), (sKH, 2048)], X2)
    lin(sAX2R, [(sRB, 4 * 32768), (sW, 32768)], X2)
    a(f"s_add_u32 s{sAS2W}, s{sASTW}, {ST2 - ST[0]:#x}")
    lin(sAS2R, [(sRB, 2 * 8192), (sRH, 8192), (sKH, 256)], ST2)
    lin(sAWQT, [(sHP, 98304)], WQT)
    a(f"s_mov_b32 s{sGK}, {fl(-2.0 * 0.7978845608028654 * LOG2E * 0.044715)}")

def next_layer_addresses():
    for r, d in ((sAKVP, KVP[1] - KVP[0]), (sAPQW, PQ[1] - PQ[0]), (sAPQR, PQ[1] - PQ[0]), (sAKVF, KVF[1] - KVF[0]),
                 (sASTW, ST[1] - ST[0]), (sASTR, ST[1] - ST[0]), (sAHTW, HT[1] - HT[0]), (sAHTR, HT[1] - HT[0]),
                 (sAUW, U[1] - U[0]), (sAUR, U[1] - U[0])):
        a(f"s_add_u32 s{r}, s{r}, {d:#x}")

def kv_poison(P, L):
    r = sAKVP
    if L == 1:
        a(f"s_add_u32 s{sT1}, s{sAKVP}, {KVP[1]-KVP[0]:#x}"); r = sT1
    set_exec((1 << 40) - 1)
    ws_store4(P, r)
    a(f"s_mul_i32 s{sT0}, s{sRED}, 384")
    a(f"s_add_u32 s{sT0}, s{sT0}, {KVF[L]:#x}")
    a(f"s_cmp_ge_u32 s{sRED}, 64")
    a(f"s_cselect_b32 s{sT0}, {WS_BYTES:#x}, s{sT0}")
    set_exec((1 << 24) - 1)
    ws_store4(P, sT0)
    set_exec(FULL)
def tile_poison(P, r, delta, step):
    if delta:
        a(f"s_add_u32 s{sT0}, s{r}, {delta:#x}"); r = sT0
    for f in range(2): ws_store4(P, r, step * f)
def canary_poison(P):
    a(f"v_lshrrev_b32 v{vT0}, 3, v{vL}")
    a(f"v_mov_b32 v{vT1}, s{sAHTW}")
    for g, (r, d) in enumerate(((sAUW, 0), (sAHTW, HT[1]-HT[0]), (sAUW, U[1]-U[0]), (sAPQW, PQ[1]-PQ[0]-1024))):
        a(f"s_add_u32 s{sT0}, s{r}, {d & 0xffffffff:#x}")
        a(f"v_mov_b32 v{vT2}, s{sT0}")
        a(f"v_cmp_eq_u32 vcc, {g+1}, v{vT0}")
        a(f"v_cndmask_b32 v{vT1}, v{vT1}, v{vT2}, vcc")
    a(f"v_and_b32 v{vT0}, 7, v{vL}")
    a(f"v_lshl_add_u32 v{vT1}, v{vT0}, 4, v{vT1}")
    set_exec((1 << 40) - 1)
    a(f"buffer_store_dwordx4 {vr(P,4)}, v{vT1}, {sr(SWS,4)}, 0 offen offset:{2048+896} sc1")
    set_exec(FULL)
def st_poison(P):
    lin(sT0, [(sB, 3072), (sW, 768)], ST[0])
    set_exec((1 << 48) - 1)
    ws_store4(P, sT0)
    set_exec(FULL)
def set_poi(P):
    for i in range(4): a(f"v_mov_b32 v{P+i}, -1")

def misc_loads():
    lin(sT0, [(sST, 64), (sRH, 32)])
    a(f"v_and_b32 v{vT0}, 31, v{vL}")
    a(f"v_add_u32 v{vT0}, s{sT0}, v{vT0}")
    a(f"v_lshlrev_b32 v{vT1}, 1, v{vT0}")
    a(f"buffer_load_ushort v{vB2}, v{vT1}, {sr(SB2,4)}, 0 offen")
    a(f"v_lshlrev_b32 v{vT0}, 10, v{vT0}")
    a(f"v_lshl_add_u32 v{vOUT}, v{vHH}, 4, v{vT0}")
    lin(sT0, [(sDT, 128), (sKH, 64)])
    a(f"v_add_u32 v{vOUT}, s{sT0}, v{vOUT}")
    a(f"buffer_load_dwordx4 {vr(XR,4)}, v{vOUT}, {sr(SX,4)}, 0 offen")
    a(f"buffer_load_dwordx4 {vr(XR+4,4)}, v{vOUT}, {sr(SX,4)}, 0 offen offset:32")

def touch(srdn, rows_per_wave, lg, pitch, scol_emit, dst):
    n = rows_per_wave << lg
    scol_emit()
    a(f"v_min_u32 v{vT0}, {n-1}, v{vL}")
    a(f"v_lshrrev_b32 v{vT1}, {lg}, v{vT0}")
    a(f"v_mul_u32_u24 v{vT1}, {pitch}, v{vT1}")
    a(f"v_and_b32 v{vT0}, {(1<<lg)-1}, v{vT0}")
    a(f"v_lshl_add_u32 v{vT0}, v{vT0}, 7, v{vT1}")
    a(f"s_mul_i32 s{sT5}, s{sWI}, {rows_per_wave*pitch}")
    a(f"s_add_u32 s{sT4}, s{sT4}, s{sT5}")
    a(f"buffer_load_dword {dst}, v{vT0}, {sr(srdn,4)}, s{sT4} offen")
def touch_w1(dst): touch(SCODE, 16, 2, 3584, lambda: a(f"s_lshl_b32 s{sT4}, s{sXC}, 7"), dst)
def touch_w2(dst):
    def c2():
        a(f"s_and_b32 s{sT4}, s{sB}, 7"); a(f"s_lshl_b32 s{sT4}, s{sT4}, 9")
    touch(SW2, 16, 2, 4096, c2, dst)
def touch_w2h(dst, t0):
    a(f"s_lshr_b32 s{sT4}, s{sWI}, 3")
    a(f"s_add_u32 s{sT4}, s{sT4}, s{sROT2}")
    if t0: a(f"s_add_u32 s{sT4}, s{sT4}, {t0}")
    a(f"s_sub_u32 s{sT5}, s{sT4}, 28")
    a(f"s_cselect_b32 s{sT4}, s{sT4}, s{sT5}")
    a(f"s_and_b32 s{sT5}, s{sWI}, 3")
    a(f"s_mul_i32 s{sT5}, s{sT5}, 28")
    a(f"s_add_u32 s{sT4}, s{sT4}, s{sT5}")
    a(f"s_lshl_b32 s{sT4}, s{sT4}, 1")
    a(f"s_bfe_u32 s{sT5}, s{sWI}, 0x10002")
    a(f"s_add_u32 s{sT4}, s{sT4}, s{sT5}")
    a(f"s_lshl_b32 s{sT4}, s{sT4}, 15")
    a(f"s_and_b32 s{sT5}, s{sB}, 7")
    a(f"s_lshl_b32 s{sT5}, s{sT5}, 9")
    a(f"s_add_u32 s{sT4}, s{sT4}, s{sT5}")
    a(f"s_cmp_eq_u32 s{sP3}, 7")
    a(f"s_cselect_b32 s{sT4}, 0x10000000, s{sT4}")
    a(f"v_min_u32 v{vT0}, 31, v{vL}")
    a(f"v_lshrrev_b32 v{vT1}, 2, v{vT0}")
    a(f"v_and_b32 v{vT0}, 3, v{vT0}")
    a(f"v_lshlrev_b32 v{vT0}, 7, v{vT0}")
    a(f"v_lshl_add_u32 v{vT0}, v{vT1}, 12, v{vT0}")
    a(f"buffer_load_dword {dst}, v{vT0}, {sr(SW2,4)}, s{sT4} offen")
def touch_wo(dst): touch(SWO, 4, 3, 1024, lambda: a(f"s_mov_b32 s{sT4}, 0"), dst)
def touches(L, where):
    dst = "a25" if where in (1, 2, 3, 6, 7, 8) else None
    if optL("T1", L, 6, 0) == where: touch_w1(dst + "2" if dst else "v31")
    if optL("T2", L, 0, 0) == where: touch_w2(dst + "3" if dst else "v31")
    if optL("T2H", L, 9, 0) == where: touch_w2h(dst + "3" if dst else "v31", 0)
    if optL("T2G", L, 0, 0) == where: touch_w2h(dst + "3" if dst else "v31", 14)

def split2(dst, src, t0):
    a(f"v_cvt_pk_bf16_f32 v{t0}, v{src}, v{src}")
    a(f"v_and_b32 v{t0}, 0xffff0000, v{t0}")
    a(f"v_sub_f32 v{dst}, v{src}, v{t0}")
    a(f"v_cvt_pk_bf16_f32 v{dst}, v{t0}, v{dst}")

def stats_to_frags(S, Q, RA):
    a(f"v_mul_f32 v{S}, {fl(-1/512)}, v{S}")
    a(f"v_mul_f32 v{Q}, {fl(1/512)}, v{Q}")
    a(f"v_cmp_eq_u32 vcc, 0, v{vHH}")
    a(f"v_fma_f32 v{Q}, -v{S}, v{S}, v{Q}")
    a(f"v_max_f32 v{Q}, 0, v{Q}")
    a(f"v_add_f32 v{Q}, {fl(1e-5)}, v{Q}")
    a(f"v_rsq_f32 v{vRS}, v{Q}")
    a(f"v_cndmask_b32 v{S}, 0, v{S}, vcc")
    a(f"v_cvt_pk_bf16_f32 v{MA}, v{S}, v{S}")
    a(f"v_cndmask_b32 v{Q}, 0, v{vRS}, vcc")
    a(f"v_and_b32 v{vT0}, 0xffff0000, v{MA}")
    a(f"v_sub_f32 v{S}, v{S}, v{vT0}")
    a(f"v_cvt_pk_bf16_f32 v{MA+1}, v{S}, v{S}")
    split2(RA, Q, vT0)

def stats_check(SB):
    a(f"v_max3_u32 v{vT3}, v{SB+1}, v{SB+3}, v{SB+5}")
    a(f"v_max3_u32 v{vT3}, v{vT3}, v{SB+7}, v{SB+9}")
    a(f"v_max3_u32 v{vT3}, v{vT3}, v{SB+11}, v{SB+13}")
    a(f"v_max_u32 v{vT3}, v{vT3}, v{SB+15}")
    a(f"v_cmp_eq_u32 vcc, -1, v{vT3}")
def stats_sum(SB):
    for n in (4, 2, 1):
        for p in range(n): pk("add", SB+2*p, vr(SB+2*p,2), vr(SB+2*(p+n),2))
    a(f"v_mov_b32 v{SB+2}, v{SB}")
    a(f"v_mov_b32 v{SB+3}, v{SB+1}")
    a(f"v_permlane32_swap_b32 v{SB}, v{SB+2}")
    a(f"v_permlane32_swap_b32 v{SB+1}, v{SB+3}")
    pk("add", SB, vr(SB,2), vr(SB+2,2))

A1B = 128
def a1_issue():
    a(f"s_mov_b32 s{sT3}, s{sKB}")
    for p in range(16):
        a(f"buffer_load_dwordx4 {vr(A1B+4*p,4)}, v{vL16}, {sr(SWS,4)}, s{sT3} offen offset:{(p&1)*2560} sc1")
        if p & 1 and p < 15: a(f"s_add_u32 s{sT3}, s{sT3}, {2*2560}")
def a1_early(L):
    skip = a.newlabel("NOA1E")
    a(f"s_cmp_ge_u32 s{sRED}, 64")
    a(f"s_cbranch_scc1 {skip}")
    with cond():
        a(f"s_lshr_b32 s{sKB}, s{sRED}, 2")
        a(f"s_mul_i32 s{sKB}, s{sKB}, {16*2560}")
        a(f"s_and_b32 s{sT2}, s{sRED}, 3")
        a(f"s_mul_i32 s{sT2}, s{sT2}, 640")
        a(f"s_add_u32 s{sKB}, s{sKB}, s{sT2}")
        a(f"s_add_u32 s{sKB}, s{sKB}, {KVP[L]:#x}")
        if opt("A1C", 0):
            a(f"v_and_b32 v{vT1}, 15, v{vL}")
            a(f"v_mul_u32_u24 v{vT1}, 2560, v{vT1}")
            a(f"buffer_load_dword v{vT3}, v{vT1}, {sr(SWS,4)}, s{sKB} offen offset:544 sc1")
        else:
            set_exec((1 << 35) - 1)
            a1_issue()
            set_exec(FULL)
    a.label(skip)
def a1(L, younger):
    a.c("======== A1 reducer")
    skip = a.newlabel("NOA1")
    a(f"s_cmp_ge_u32 s{sRED}, 64")
    a(f"s_cbranch_scc1 {skip}")
    with cond():
        B = A1B
        a(f"s_mul_i32 s{sT2}, s{sRED}, 384")
        a(f"s_add_u32 s{sT2}, s{sT2}, {KVF[L]:#x}")
        a(f"v_lshlrev_b32 v{vT2}, 3, v{vL}")
        set_exec((1 << 35) - 1)
        def check():
            a(f"v_max3_u32 v{vT3}, v{B}, v{B+4}, v{B+8}")
            a(f"v_min3_u32 v{vT1}, v{B}, v{B+4}, v{B+8}")
            for p in range(3, 15, 2):
                a(f"v_max3_u32 v{vT3}, v{vT3}, v{B+4*p}, v{B+4*p+4}")
                a(f"v_min3_u32 v{vT1}, v{vT1}, v{B+4*p}, v{B+4*p+4}")
            a(f"v_max_u32 v{vT3}, v{vT3}, v{B+60}")
            a(f"v_min_u32 v{vT1}, v{vT1}, v{B+60}")
            a(f"v_cmp_eq_u32 vcc, -1, v{vT3}")
            a(f"v_readlane_b32 s{sT0}, v{vT3}, 34")
            a(f"v_readlane_b32 s{sT1}, v{vT1}, 34")
            a(f"s_xor_b32 s{sT0}, s{sT0}, s{sNON}")
            a(f"s_xor_b32 s{sT1}, s{sT1}, s{sNON}")
            a(f"s_or_b32 s{sT0}, s{sT0}, s{sT1}")
            a(f"s_or_b32 vcc_lo, vcc_lo, s{sT0}")
            a(f"s_or_b64 vcc, vcc, vcc")
        a.vm_done = min(a.vm_done, a.vm - younger - 1)
        if opt("A1C", 0):
            poll(lambda: a(f"buffer_load_dword v{vT3}, v{vT1}, {sr(SWS,4)}, s{sKB} offen offset:544 sc1"),
                 lambda: a(f"v_cmp_ne_u32 vcc, s{sNON}, v{vT3}"), 0x21, pre=a.vm - younger - 1)
            poll(a1_issue, check, 0x20)
        else:
            poll(a1_issue, check, 0x20, pre=a.vm - younger - 1)
        n = 16
        while n > 1:
            n //= 2
            for p in range(n):
                for j in (0, 2): pk("add", B+4*p+j, vr(B+4*p+j,2), vr(B+4*(p+n)+j,2))
        a(f"v_cvt_pk_bf16_f32 v{B+4}, v{B}, v{B+1}")
        a(f"v_cvt_pk_bf16_f32 v{B+5}, v{B+2}, v{B+3}")
        a(f"v_mov_b32_dpp v{B+6}, v{B+4} quad_perm:[1,1,3,3] row_mask:0xf bank_mask:0xf")
        a(f"v_mov_b32_dpp v{B+7}, v{B+5} quad_perm:[1,1,3,3] row_mask:0xf bank_mask:0xf")
        a(f"v_writelane_b32 v{B+4}, s{sNON}, 34")
        set_exec(0x555555555555)
        a(f"buffer_store_dwordx4 {vr(B+4,4)}, v{vT2}, {sr(SWS,4)}, s{sT2} offen sc1")
        set_exec(FULL)
        a("s_nop 1")
    a.label(skip)
    stamp("a1")

XF = 128
def p1(L):
    ACCK, ACCV, RR = 32, 48, 64
    VV, PK, T1 = 80, 88, 96
    S0, S1, Q0, Q1 = 80, 81, 82, 83
    CF = 84
    CFV, CFQ, RA = 112, 116, 120
    vTQ, vTV = 124, 125
    vW, vXA, vXB = 126, 127, 96
    vCQ, vCV = 97, 98
    vOA, vOB = vTA, vTB
    vTQ2, vTV2 = vTA, vTB
    vKW, vKR = 92, 93
    XA = 88
    vKW2, vKR2 = vT2, 127
    POI = 100
    WFR = 216; NWF = 4; ONESF = 248; CG = 200; CK, CV, CQ = 152, 168, 184
    a.c(f"======== P1 layer {L}")
    xid = {}; wid = {}
    toff = 256
    def addr_setup():
        if L == 0:
            a(f"v_bfe_u32 v{vT0}, v{vL}, 2, 2")
            a(f"v_lshl_add_u32 v{vT0}, v{vHH}, 3, v{vT0}")
            a(f"v_lshlrev_b32 v{vTQ}, 6, v{vT0}")
            a(f"v_bfe_u32 v{vT1}, v{vL}, 4, 1")
            a(f"v_lshl_add_u32 v{vTQ}, v{vT1}, 5, v{vTQ}")
            a(f"v_and_b32 v{vT1}, 3, v{vL}")
            a(f"v_lshl_add_u32 v{vTQ}, v{vT1}, 3, v{vTQ}")
        else:
            a(f"s_and_b32 s{sT5}, s{sROTX}, {opt('XROT', 1)}")
            a(f"s_lshl_b32 s{sT5}, s{sT5}, 14")
            a(f"s_add_u32 s{sAX2R}, s{sAX2R}, s{sT5}")
            a(f"v_add_u32 v{vTQ}, s{sT5}, v{vL16}")
            a(f"v_xor_b32 v{vTQ2}, 16384, v{vTQ}")
            a(f"v_add_u32 v{vTV2}, 65536, v{vTQ2}")
        a(f"v_add_u32 v{vTV}, 65536, v{vTQ}")
        for i in range(4): a(f"v_accvgpr_write_b32 a{ONESF+i}, s{sONES}")
        for r in ([MA + 2, MA + 3] if L == 0 else []) + [RA + 1, RA + 2, RA + 3, CF + 2, CF + 3, CFV + 2, CFV + 3, CFQ + 2, CFQ + 3]: a(f"v_mov_b32 v{r}, 0")
    def kv_addr():
        a(f"v_bfe_u32 v{vT0}, v{vL}, 4, 1")
        a(f"v_lshl_add_u32 v{vT0}, v{vT0}, 1, v{vHH}")
        a(f"v_mul_u32_u24 v{vT0}, 17, v{vT0}")
        a(f"v_and_b32 v{vT1}, 15, v{vL}")
        a(f"v_add_u32 v{vT0}, v{vT0}, v{vT1}")
        a(f"v_lshlrev_b32 v{vT0}, 5, v{vT0}")
        a(f"v_add_u32 v{vKW2}, s{sWA}, v{vT0}")
        a(f"s_mul_i32 s{sT0}, s{sW}, 544")
        a(f"s_add_u32 s{sT0}, s{sT0}, {L_A + SCR}")
        a(f"v_add_u32 v{vKR2}, s{sT0}, v{vL16}")
    rg = {}
    def RG(s):
        b = WFR + (s % NWF) * 8
        if L == 0:
            o = s * 1024
            a(f"ds_read_b64_tr_b16 {ar(b,2)}, v{vTQ} offset:{32768+o}")
            a(f"ds_read_b64_tr_b16 {ar(b+2,2)}, v{vTQ} offset:{32768+o+toff}")
            a(f"ds_read_b64_tr_b16 {ar(b+4,2)}, v{vTV} offset:{o}")
            rg[s] = a(f"ds_read_b64_tr_b16 {ar(b+6,2)}, v{vTV} offset:{o+toff}")
        else:
            o = (s & 15) * 1024
            q_, v_ = (vTQ2, vTV2) if s >= 16 else (vTQ, vTV)
            a(f"ds_read_b128 {ar(b,4)}, v{q_} offset:{32768+o}")
            rg[s] = a(f"ds_read_b128 {ar(b+4,4)}, v{v_} offset:{o}")
    if L == 0:
        a(f"v_lshrrev_b32 v{vT0}, 2, v{vL}")
        a(f"s_lshl_b32 s{sT0}, s{sW}, 4")
        a(f"v_add_u32 v{vT0}, s{sT0}, v{vT0}")
        a(f"v_mul_u32_u24 v{vW}, 3072, v{vT0}")
        a(f"v_and_b32 v{vT0}, 3, v{vL}")
        a(f"v_lshl_add_u32 v{vW}, v{vT0}, 4, v{vW}")
        a(f"s_lshl_b32 s{sT0}, s{sHP}, 6")
        a(f"v_add_u32 v{vW}, s{sT0}, v{vW}")
        lin(sT0, [(sRB, 131072), (sW, 32768)])
        a(f"v_lshrrev_b32 v{vT0}, 3, v{vL}")
        a(f"v_lshlrev_b32 v{vT0}, 10, v{vT0}")
        a(f"v_add_u32 v{vT0}, s{sT0}, v{vT0}")
        a(f"v_and_b32 v{vT1}, 7, v{vL}")
        a(f"v_lshrrev_b32 v{vT2}, 4, v{vL}")
        a(f"v_xor_b32 v{vT1}, v{vT1}, v{vT2}")
        a(f"v_lshl_add_u32 v{vXA}, v{vT1}, 4, v{vT0}")
        a(f"v_xor_b32 v{vXB}, 64, v{vXA}")
        a(f"v_add_u32 v{vXB}, {8192-1024}, v{vXB}")
        a("s_waitcnt lgkmcnt(0)")
        srd(SX, sKA + 0, 2048 * 512 * 2)
        srd(SWQKV, sKA + 2, 512 * 1536 * 2)
        def x_issue(j):
            a(f"s_add_u32 s{sKB}, s{sROTX}, {j}")
            a(f"s_and_b32 s{sKB}, s{sKB}, 7")
            a(f"s_lshl_b32 s{sT1}, s{sKB}, 7")
            a(f"s_add_u32 m0, s{sWB}, {(j&3)*4096}")
            a(f"s_mul_i32 s{sSO}, s{sKB}, {64*3072}")
            a(f"buffer_load_dwordx4 v{vXA}, {sr(SX,4)}, s{sT1} offen lds")
            a(f"buffer_load_dwordx4 v{vXB}, {sr(SX,4)}, s{sT1} offen offset:1024 lds")
            a(f"s_add_u32 m0, s{sWB}, {(j&3)*4096+2048}")
            a(f"s_add_u32 s{sT1}, s{sT1}, 16384")
            a(f"buffer_load_dwordx4 v{vXA}, {sr(SX,4)}, s{sT1} offen lds")
            xid[j] = a(f"buffer_load_dwordx4 v{vXB}, {sr(SX,4)}, s{sT1} offen offset:1024 lds")
        def w_issue(j):
            for seg in (1, 2, 0):
                a(f"s_add_u32 m0, s{sW1K}, {seg*32768 - seg*1024 + j*4096}")
                wid[j] = a(f"buffer_load_dwordx4 v{vW}, {sr(SWQKV,4)}, s{sSO} offen offset:{seg*1024} lds")
        def wo_issue(c):
            for k in range(2):
                j = 2 * c + k
                a(f"s_add_u32 m0, s{sWB}, {j*2048}")
                if j == 0: a(f"s_lshl_b32 s{sSO}, s{sW}, 17")
                else: a(f"s_add_u32 s{sSO}, s{sSO}, 16384")
                a(f"buffer_load_dwordx4 v{vOA}, {sr(SWO,4)}, s{sSO} offen lds")
                G["wo"] = a(f"buffer_load_dwordx4 v{vOB}, {sr(SWO,4)}, s{sSO} offen offset:1024 lds")
        x_issue(0); w_issue(0)
        srd(SWS, 100, WS_BYTES)
        roles2()
        late_srds()
        x_issue(1); w_issue(1)
        touch_wo("a254")
        code_prefetch()
        touches(0, 6)
        for i in range(4): a(f"v_mov_b32 v{POI+i}, -1")
        addresses()
        skip = a.newlabel("NONON")
        a(f"s_cmp_lg_u32 s{sWI}, 0")
        a(f"s_cselect_b32 s{sT0}, 1, s{sB}")
        a(f"s_cmp_lg_u32 s{sT0}, 0")
        a(f"s_cbranch_scc1 {skip}")
        with cond():
            a(f"buffer_load_dword v{vKW}, off, {sr(SWS,4)}, 0 offset:{NONCE} sc1")
        a.label(skip)
        addr_setup()
        a(f"v_add_u32 v{vCQ}, s{sW1K}, v{vTQ}")
        a(f"v_add_u32 v{vCV}, s{sW1K}, v{vTV}")
        for r in (S0, S1, Q0, Q1): a(f"v_mov_b32 v{r}, 0")
        a(f"v_and_b32 v{vT0}, 31, v{vL}")
        a(f"v_bfe_u32 v{vT1}, v{vL}, 1, 3")
        a(f"v_xor_b32 v{vT1}, v{vT1}, v{vHH}")
        a(f"v_lshlrev_b32 v{vT0}, 7, v{vT0}")
        a(f"v_add_u32 v{vT0}, s{sWB}, v{vT0}")
        for t in range(4):
            a(f"v_xor_b32 v{vT2}, {2*t}, v{vT1}")
            a(f"v_lshl_add_u32 v{XA+t}, v{vT2}, 4, v{vT0}")
        a(f"s_lshl_b32 s{sT4}, s{sDT}, 7")
        dma_voff(vOA, vOB, 1024, sT4)
        tr_base(vWTA, vWTB, sRH, f"s{sWA}")
        pump.setup(1, 0)
        SCHED = {0: {0: [2, 3], 1: [4, 5], 2: [6], 3: [7]}, 1: {0: [2], 1: [3, 4], 2: [5, 6], 3: [7]}, 2: {0: [2, 3, 4], 1: [5], 2: [6], 3: [7]},
                 3: {0: [2], 1: [3], 2: [4], 3: [5], 4: [6], 5: [7]}, 4: {0: [2, 3], 1: [4], 2: [5], 3: [6], 4: [7]}}[opt("SCHED", 4)]
        JL = max(SCHED)
        cgid = {}
        def CGr(j):
            o = j * 4096
            a(f"ds_read_b64_tr_b16 {ar(CG,2)}, v{vCQ} offset:{32768+o}")
            a(f"ds_read_b64_tr_b16 {ar(CG+2,2)}, v{vCQ} offset:{32768+o+toff}")
            a(f"ds_read_b64_tr_b16 {ar(CG+4,2)}, v{vCV} offset:{o}")
            a(f"ds_read_b64_tr_b16 {ar(CG+6,2)}, v{vCV} offset:{o+toff}")
            a(f"ds_read_b64_tr_b16 {ar(CG+8,2)}, v{vCQ} offset:{o}")
            cgid[j] = a(f"ds_read_b64_tr_b16 {ar(CG+10,2)}, v{vCQ} offset:{o+toff}")
        def colsum(j):
            a.wait(lg=cgid[j])
            for k, c in enumerate((CK, CV, CQ)):
                mfma(ar(c,16), ar(ONESF,4), ar(CG+4*k,4), "0" if j == 0 else ar(c,16))
        def xreads(j):
            a.wait(vm=xid[j])
            return [a(f"ds_read_b128 {vr(XF+16*j+4*t,4)}, v{XA+t} offset:{(j&3)*4096}") for t in range(4)]
        xr = xreads(0)
        a.wait(vm=wid[0])
        a("s_barrier")
        stamp("p1_first")
        CGr(0); RG(0); RG(1); RG(2)
        colsum(0)
        CPY = 104; CS4 = 96
        initld = None
        for j in range(8):
            for t in range(4):
                a.wait(lg=xr[t])
                for k in range(4 if not opt("XNOD", 0) else 0):
                    r = XF + 16 * j + 4 * t + k
                    a(f"v_dot2_f32_bf16 v{S0+(k&1)}, v{r}, s{sONES}, v{S0+(k&1)}")
                    a(f"v_dot2_f32_bf16 v{Q0+(k&1)}, v{r}, v{r}, v{Q0+(k&1)}")
            if j == 7:
                a(f"s_lshr_b32 s{sT0}, s{sRB}, 1")
                a(f"s_sub_u32 s{sT0}, s{sT0}, s{sROTX}")
                a(f"s_and_b32 s{sT0}, s{sT0}, 7")
                a(f"s_cmp_eq_u32 s{sT0}, 0")
                a(f"s_cselect_b32 s{sT1}, 4096, 0")
                a(f"s_add_u32 s{sT1}, s{sT1}, {L_A}")
                a(f"v_add_u32 v{vT1}, s{sT1}, v{vL16}")
                a(f"v_add_u32 v{vT0}, s{sW1K}, v{vT1}")
                a(f"v_accvgpr_read_b32 v{CS4}, a{CK}")
                a(f"v_accvgpr_read_b32 v{CS4+1}, a{CV}")
                a(f"v_accvgpr_read_b32 v{CS4+2}, a{CQ}")
                cw = a(f"ds_write_b128 v{vT0}, {vr(CS4,4)}")
            for s in range(4 * j, 4 * j + 4):
                t = s & 3
                a.wait(lg=rg[s])
                b = WFR + (s % NWF) * 8
                x = vr(XF + 4 * s, 4)
                mfma(vr(ACCK,16), x, ar(b,4), "0" if s == 0 else vr(ACCK,16))
                if s + 3 < 32: RG(s + 3)
                if t == 1 and j < 7 and not opt("XNOC", 0): CGr(j + 1)
                if t == 2 and j < 7: xr = xreads(j + 1)
                if j == 7 and t == 1:
                    for w in range(4): cr = a(f"ds_read_b128 {vr(RR+4*w,4)}, v{vT1} offset:{1024*w}")
                    a(f"s_lshl_b32 s{sT0}, s{sT0}, 12")
                    a(f"s_and_b32 s{sT1}, s{sRB}, 1")
                    a(f"s_lshl_b32 s{sT1}, s{sT1}, 11")
                    a(f"s_add_u32 s{sT0}, s{sT0}, s{sT1}")
                    a(f"s_min_u32 s{sT2}, s{sW}, 2")
                    a(f"s_lshl_b32 s{sT2}, s{sT2}, 15")
                    a(f"s_add_u32 s{sT0}, s{sT0}, s{sT2}")
                    a(f"v_lshlrev_b32 v{vT1}, 8, v{vHH}")
                    a(f"v_sub_u32 v{vT0}, v{vTQ}, v{vT1}")
                    a(f"v_add_u32 v{vT0}, s{sT0}, v{vT0}")
                    for k in range(4): cp = a(f"ds_read_b64_tr_b16 {vr(CPY+2*k,2)}, v{vT0} offset:{512*k}")
                if j == 7 and t == 2:
                    a.wait(lg=cr)
                    for k in range(3):
                        a(f"v_add_f32 v{RR+k}, v{RR+k}, v{RR+4+k}")
                        a(f"v_add_f32 v{RR+8+k}, v{RR+8+k}, v{RR+12+k}")
                if j == 7 and t == 3:
                    split2(CKP, RR, vT0)
                    split2(CVP, RR + 1, vT1)
                mfma(vr(ACCV,16), x, ar(b+4,4), "0" if s == 0 else vr(ACCV,16))
                if t == 0:
                    if j < 7: a.wait(vm=wid[j + 1])
                    else: a.wait(lg=cw)
                    a("s_barrier")
                    if j == 1:
                        skip = a.newlabel("NOINIT")
                        a(f"s_cmp_lg_u32 s{sWI}, 0")
                        a(f"s_cselect_b32 s{sT0}, 1, s{sB}")
                        a(f"s_cmp_lg_u32 s{sT0}, 0")
                        a(f"s_cbranch_scc1 {skip}")
                        with cond():
                            a(f"v_add_u32 v{vKW}, 1, v{vKW}")
                            a(f"v_and_b32 v{vKW}, 0x3fffffff, v{vKW}")
                            a(f"v_or_b32 v{vKW}, 0x40000000, v{vKW}")
                            set_exec(1)
                            a(f"buffer_store_dword v{vKW}, off, {sr(SDBG,4)}, 0 sc1")
                            a(f"buffer_store_dword v{vKW}, off, {sr(SWS,4)}, 0 offset:{NONCE} sc1")
                            set_exec(FULL)
                        a.label(skip)
                if t <= 2 and j in SCHED and t < len(SCHED[j]):
                    x_issue(SCHED[j][t]); w_issue(SCHED[j][t])
                if t == 1 and j >= 4 and opt("WOP", 0) == 0: wo_issue(j - 4)
                if t == 3 and j == JL:
                    misc_loads()
                    touches(0, 8)
                if t == 3 and opt("SLOTST", 0) and j in (1, 3, 6): stamp(f"it{j}")
                if t == 2:
                    if j == 3: touches(0, 7)
                    if j == 5:
                        st_poison(POI); kv_poison(POI, 0); canary_poison(POI)
                    if j == 6:
                        kv_addr()
                        tile_poison(POI, sAPQW, 0, 1024)
                    if j == 6:
                        initld = a(f"buffer_load_dword v{vT3}, off, {sr(SDBG,4)}, 0 sc1")
                    if j == 7:
                        for k in range(3): a(f"v_add_f32 v{RR+k}, v{RR+k}, v{RR+8+k}")
                        a(f"s_lshl_b32 s{sT1}, s{sRB}, 11")
                        a(f"s_add_u32 s{sT3}, s{sAWQT}, s{sT2}")
                        a(f"s_add_u32 s{sT3}, s{sT3}, s{sT1}")
                        a.wait(lg=cp)
                        ws_store4(CPY, sT3); ws_store4(CPY + 4, sT3, 1024)
                if t == 3 and j < 7 and not opt("XNOC", 0): colsum(j + 1)
        stamp("p1_gemm")
        a(f"v_add_f32 v{S0}, v{S0}, v{S1}")
        a(f"v_add_f32 v{Q0}, v{Q0}, v{Q1}")
        a(f"v_mov_b32 v{S1}, v{S0}")
        a(f"v_mov_b32 v{Q1}, v{Q0}")
        for c, p in ((CF, CKP), (CFV, CVP)):
            a(f"v_mov_b32 v{c}, v{p}"); a(f"v_mov_b32 v{c+1}, v{p}")
        a(f"v_permlane32_swap_b32 v{S0}, v{S1}")
        a(f"v_permlane32_swap_b32 v{Q0}, v{Q1}")
        a(f"v_add_f32 v{S0}, v{S0}, v{S1}")
        a(f"v_add_f32 v{Q0}, v{Q0}, v{Q1}")
        split2(CQP, RR + 2, vT1)
        stats_to_frags(S0, Q0, RA)
        mfma(vr(ACCK,16), vr(MA,4), vr(CF,4), vr(ACCK,16))
        mfma(vr(RR,16), vr(RA,4), ar(ONESF,4), "0")
        mfma(vr(ACCV,16), vr(MA,4), vr(CFV,4), vr(ACCV,16))
        touches(0, 1)
    else:
        addr_setup()
        next_layer_addresses()
        for c, p in ((CF, CKP), (CFV, CVP)):
            a(f"v_mov_b32 v{c}, v{p}"); a(f"v_mov_b32 v{c+1}, v{p}")
        a(f"v_and_b32 v{vT0}, 31, v{vL}")
        a(f"v_lshlrev_b32 v{vT0}, 3, v{vT0}")
        a(f"v_lshl_add_u32 v{vXA}, v{vHH}, 12, v{vT0}")
        a(f"s_lshl_b32 s{sT2}, s{sW}, 13")
        a(f"s_add_u32 s{sKB}, s{sAWQT}, s{sT2}")
        SB = T1
        def issue():
            for p in range(8): a(f"buffer_load_dwordx2 {vr(SB+2*p,2)}, v{vXA}, {sr(SWS,4)}, s{sAS2R} offen offset:{p*512} sc1")
        pump.setup(1, 1)
        def XL(s):
            xid[s] = a(f"buffer_load_dwordx4 {vr(XF+4*s,4)}, v{vL16}, {sr(SWS,4)}, s{sSO} offen offset:{(s&3)*1024} sc1")
            if s == 15: a(f"s_xor_b32 s{sSO}, s{sAX2R}, 16384")
            elif s & 3 == 3 and s < 31: a(f"s_add_u32 s{sSO}, s{sSO}, 4096")
        LA = opt("LA1", 10)
        vMX = vW
        def window():
            a(f"s_mov_b32 s{sSO}, s{sAX2R}")
            for s in range(LA): XL(s)
        spec(issue, lambda: stats_check(SB), window, 0x40, a.newlabel("XR0"), on=opt("SPEC", 15) & 8)
        stamp("p1_flag")
        a("s_barrier")
        stats_sum(SB)
        a(f"v_mov_b32 v{MA+2}, 0"); a(f"v_mov_b32 v{MA+3}, 0")
        stats_to_frags(SB, SB + 1, RA)
        mfma(vr(RR,16), vr(RA,4), ar(ONESF,4), "0")
        go = a.newlabel("XGO"); redo = a.newlabel("XREDO")
        a(f"s_branch {go}")
        a.label(redo)
        sv = dict(xid)
        with cond():
            window()
        xid.update(sv)
        a.label(go)
        RG(0); RG(1); RG(2)
        a(f"v_mov_b32 v{vMX}, 0")
        a(f"s_mov_b32 s{sT3}, s{sKB}")
        mfma(vr(ACCK,16), vr(MA,4), vr(CF,4), "0")
        mfma(vr(ACCV,16), vr(MA,4), vr(CFV,4), "0")
        qid = None
        for s in range(32):
            a.wait(vm=xid[s], lg=rg[s])
            b = WFR + (s % NWF) * 8
            x = vr(XF + 4 * s, 4)
            mfma(vr(ACCK,16), x, ar(b,4), vr(ACCK,16))
            if s + LA < 32: XL(s + LA)
            elif s + LA - 32 < 8:
                j = s + LA - 32
                if j == 4: a(f"s_add_u32 s{sT3}, s{sT3}, 4096")
                if j & 3 == 0: a(f"s_add_u32 m0, s{sT2}, {j*1024}")
                qid = a(f"buffer_load_dwordx4 v{vL16}, {sr(SWS,4)}, s{sT3} offen offset:{(j&3)*1024} lds")
            mfma(vr(ACCV,16), x, ar(b+4,4), vr(ACCV,16))
            if s & 1: a(f"v_max3_u32 v{vMX}, v{vMX}, v{XF+4*s-4}, v{XF+4*s}")
            if s + 3 < 32: RG(s + 3)
            if s == 30: kv_addr()
        verify(vMX, redo)
        stamp("p1_gemm")
    for q in range(8): pk("fma", ACCK+2*q, vr(ACCK+2*q,2), vr(RR+2*q,2), sr(sEPS6,2), hi=[1,1,0])
    for q in range(8): pk("mul", T1+2*q, vr(ACCK+2*q,2), sr(sL2E,2), hi=[1,0])
    for i in range(16):
        a(f"v_exp_f32_e64 v{T1+i}, v{T1+i} clamp")
        a(f"v_max_f32 v{ACCK+i}, s{sEPS6}, v{ACCK+i}")
    for q in range(8): pk("add", ACCK+2*q, vr(ACCK+2*q,2), vr(T1+2*q,2))
    for q in range(8): a(f"v_cvt_pk_bf16_f32 v{PK+q}, v{ACCK+2*q}, v{ACCK+2*q+1}")
    ZA = T1
    for q in range(4): pk("mul", ACCV+2*q, vr(ACCV+2*q,2), vr(RR+2*q,2))
    for q in range(4, 8): pk("mul", ACCV+2*q, vr(ACCV+2*q,2), vr(RR+2*q,2))
    mfma(vr(ZA,16), vr(PK,4), ar(ONESF,4), "0")
    for q in range(4): a(f"v_cvt_pk_bf16_f32 v{VV+q}, v{ACCV+2*q}, v{ACCV+2*q+1}")
    mfma(vr(ZA,16), vr(PK+4,4), ar(ONESF,4), vr(ZA,16))
    for q in range(4, 8): a(f"v_cvt_pk_bf16_f32 v{VV+q}, v{ACCV+2*q}, v{ACCV+2*q+1}")
    KVA = RR
    a(f"v_and_b32 v{vT0}, 16, v{vL}")
    a(f"v_cmp_ne_u32 vcc, 0, v{vT0}")
    mfma(vr(KVA,16), vr(PK,4), vr(VV,4), "0")
    mfma(vr(KVA,16), vr(PK+4,4), vr(VV+4,4), vr(KVA,16))
    a("s_barrier")
    for j in range(8): a(f"v_cndmask_b32 v{ACCK+8+j}, v{ZA+j}, v{ZA+8+j}, vcc")
    set_exec(0x0001000100010001)
    a(f"ds_write_b128 v{vKW2}, {vr(ACCK+8,4)} offset:{SCR+512}")
    a(f"ds_write_b128 v{vKW2}, {vr(ACCK+12,4)} offset:{SCR+528}")
    set_exec(FULL)
    for j in range(4): a(f"v_cndmask_b32 v{ACCK+j}, v{KVA+j}, v{KVA+8+j}, vcc")
    a(f"ds_write_b128 v{vKW2}, {vr(ACCK,4)} offset:{SCR}")
    for j in range(4, 8): a(f"v_cndmask_b32 v{ACCK+j}, v{KVA+j}, v{KVA+8+j}, vcc")
    a(f"ds_write_b128 v{vKW2}, {vr(ACCK+4,4)} offset:{SCR+16}")
    if L == 0:
        def issue(): a(f"buffer_load_dword v{vT3}, off, {sr(SDBG,4)}, 0 sc1")
        def check(): a(f"v_cmp_eq_u32 vcc, 0, v{vT3}")
        poll(issue, check, 0x10, pre=initld)
        a(f"v_readfirstlane_b32 s{sNON}, v{vT3}")
    NQ = 8; QLA = 6
    rq = {}
    def RQ(s):
        b = WFR + (s % NQ) * 4
        if L == 0:
            a(f"ds_read_b64_tr_b16 {ar(b,2)}, v{vTQ} offset:{s*1024}")
            rq[s] = a(f"ds_read_b64_tr_b16 {ar(b+2,2)}, v{vTQ} offset:{s*1024+toff}")
        else:
            rq[s] = a(f"ds_read_b128 {ar(b,4)}, v{vTQ2 if s >= 16 else vTQ} offset:{(s&15)*1024}")
    a(f"v_mov_b32 v{CFQ}, v{CQP}"); a(f"v_mov_b32 v{CFQ+1}, v{CQP}")
    if L == 1: a.wait(vm=qid)
    a.wait_lg_all()
    a("s_barrier")
    for w in range(4): kr = a(f"ds_read_b128 {vr(RR+4*w,4)}, v{vKR2} offset:{16384*w}")
    for s in range(QLA): RQ(s)
    ACCQ = ACCK
    mfma(vr(ACCQ,16), vr(CFQ,4), vr(MA,4), "0")
    a.wait(lg=kr)
    for j in range(4): a(f"v_add_f32 v{RR+j}, v{RR+j}, v{RR+4+j}")
    for j in range(4): a(f"v_add_f32 v{RR+8+j}, v{RR+8+j}, v{RR+12+j}")
    for j in range(4): a(f"v_add_f32 v{RR+j}, v{RR+j}, v{RR+8+j}")
    set_exec((1 << 40) - 1)
    a(f"v_writelane_b32 v{RR}, s{sNON}, 34")
    ws_store4(RR, sAKVP)
    set_exec(FULL)
    stamp("p1_kvpub")
    touches(L, 2)
    nfill = optL("F0", L, 0, 0)
    for s in range(32):
        a.wait(lg=rq[s])
        b = WFR + (s % NQ) * 4
        mfma(vr(ACCQ,16), ar(b,4), vr(XF+4*s,4), vr(ACCQ,16))
        if s + QLA < 32: RQ(s + QLA)
        if s % 3 == 1 and pump.i < pump.c + nfill: pump.fill(pump.i + 1)
        if L == 0 and opt("WOP", 0) == 1 and s % 8 == 0: wo_issue(s // 8)
        if opt("POIQ", 1):
            if s == 2: set_poi(VV)
            if s == 3: tile_poison(VV, sAHTW, 0, 2048)
            if s == 6: tile_poison(VV, sAUW, 0, 2048)
            if L == 0 and opt("POIQ", 1) == 2:
                if s == 9: tile_poison(VV, sAPQW, PQ[1] - PQ[0], 1024)
                if s == 12: kv_poison(VV, 1)
                if s == 15: tile_poison(VV, sAX2W, 0, 1024)
        if s == opt("A1S", 26):
            a1_early(L); vm_a1 = a.vm
    for h in range(2):
        for q in range(4*h, 4*h+4): pk("fma", ACCQ+2*q, vr(ACCQ+2*q,2), vr(vRS,2), sr(sEPS6,2), hi=[1,0,0])
        for q in range(4*h, 4*h+4): pk("mul", T1+2*q, vr(ACCQ+2*q,2), sr(sL2E,2), hi=[1,0])
        for i in range(8*h, 8*h+8):
            a(f"v_exp_f32_e64 v{T1+i}, v{T1+i} clamp")
            a(f"v_max_f32 v{ACCQ+i}, s{sEPS6}, v{ACCQ+i}")
        for q in range(4*h, 4*h+4): pk("add", ACCQ+2*q, vr(ACCQ+2*q,2), vr(T1+2*q,2))
        for q in range(4*h, 4*h+4): a(f"v_cvt_pk_bf16_f32 v{PK+q}, v{ACCQ+2*q}, v{ACCQ+2*q+1}")
        ws_store4(PK + 4 * h, sAPQW, 1024 * h)
    if L == 0:
        for k in range(4): a(f"v_mov_b32 v{T1+k}, s{sNON}")
        a(f"s_sub_u32 s{sT0}, s{sAPQW}, {PQ[0]:#x}")
        a(f"s_lshr_b32 s{sT0}, s{sT0}, 4")
        a(f"s_add_u32 s{sT0}, s{sT0}, {TAGQ:#x}")
        set_exec(0xff)
        ws_store4(T1, sT0)
        set_exec(FULL)
    stamp("p1_q")
    a1(L, a.vm - vm_a1)
    pump.fill(pump.c + optL("F1", L, 6, 5))
    touches(L, 3)

def row_stats_publish(soff, SM):
    a(f"v_dot2_f32_bf16 v{SM}, v{XR}, s{sONES}, 0")
    a(f"v_dot2_f32_bf16 v{SM+1}, v{XR}, v{XR}, 0")
    a(f"v_dot2_f32_bf16 v{SM+2}, v{XR+1}, s{sONES}, 0")
    a(f"v_dot2_f32_bf16 v{SM+3}, v{XR+1}, v{XR+1}, 0")
    for j in range(2, 8):
        o = 2 * (j & 1)
        a(f"v_dot2_f32_bf16 v{SM+o}, v{XR+j}, s{sONES}, v{SM+o}")
        a(f"v_dot2_f32_bf16 v{SM+o+1}, v{XR+j}, v{XR+j}, v{SM+o+1}")
    a(f"v_lshlrev_b32 v{vT0}, 3, v{vL}")
    pk("add", SM, vr(SM,2), vr(SM+2,2))
    a(f"v_mov_b32 v{SM+2}, v{SM}")
    a(f"v_mov_b32 v{SM+3}, v{SM+1}")
    a(f"v_permlane32_swap_b32 v{SM}, v{SM+2}")
    a(f"v_permlane32_swap_b32 v{SM+1}, v{SM+3}")
    pk("add", SM, vr(SM,2), vr(SM+2,2))
    a(f"s_mov_b32 exec_hi, 0")
    a(f"v_and_b32 v{SM+1}, 0x7fffffff, v{SM+1}")
    a(f"buffer_store_dwordx2 {vr(SM,2)}, v{vT0}, {sr(SWS,4)}, s{soff} offen sc1")
    set_exec(FULL)

def unpack_xr(XU):
    for j in range(8):
        a(f"v_lshlrev_b32 v{XU+2*j}, 16, v{XR+j}")
        a(f"v_and_b32 v{XU+2*j+1}, 0xffff0000, v{XR+j}")

def p2(L):
    a.c(f"======== P2 layer {L}")
    KF, QF = 128, 192
    ACC = 32; CR = 64; OF = 96; WF = 104; XU = 64
    vK, vKC, vMX = MA, MA + 1, MA + 2
    tr_base(vTA, vTB, sKH, L_B)
    a(f"s_lshl_b32 s{sT2}, s{sKH}, 15")
    a(f"v_add_u32 v{vTA}, s{sT2}, v{vTA}")
    a(f"v_add_u32 v{vTB}, s{sT2}, v{vTB}")
    a(f"v_and_b32 v{vT0}, 31, v{vL}")
    a(f"v_mul_u32_u24 v{vKC}, 384, v{vT0}")
    a(f"v_min_u32 v{vT0}, 16, v{vT0}")
    a(f"v_lshlrev_b32 v{vT0}, 4, v{vT0}")
    a(f"v_mul_u32_u24 v{vT1}, 384, v{vHH}")
    a(f"v_add_u32 v{vK}, v{vT0}, v{vT1}")
    a(f"v_and_b32 v{vT2}, 7, v{vL}")
    a(f"v_lshlrev_b32 v{vT2}, {11 if L else 7}, v{vT2}")
    if L == 0:
        a(f"s_sub_u32 s{sT0}, s{sAPQR}, {PQ[0]:#x}")
        a(f"s_lshr_b32 s{sT0}, s{sT0}, 4")
        a(f"s_add_u32 s{sT0}, s{sT0}, {TAGQ:#x}")
    pump.run(min(R1 + 5, optL("B1", L, 18, 21)), refill=bool(optL("B1R", L, 1, 0)))
    if opt("POIQ", 1) == 0:
        set_poi(CR)
        tile_poison(CR, sAHTW, 0, 2048)
    stamp("beta")
    def ldq():
        a(f"s_mov_b32 s{sT4}, s{sAPQR}")
        for j in range(16):
            a(f"buffer_load_dwordx4 {vr(QF+4*j,4)}, v{vL16}, {sr(SWS,4)}, s{sT4} offen offset:{(j&3)*1024} sc1")
            if j & 3 == 3 and j < 15: a(f"s_add_u32 s{sT4}, s{sT4}, 4096")
    if L == 1:
        ci = lambda: a(f"buffer_load_dword v{vT3}, v{vT2}, {sr(SWS,4)}, s{sAPQR} offen offset:2044 sc1")
        cc = lambda: a(f"v_cmp_eq_u32 vcc, -1, v{vT3}")
    else:
        ci = lambda: a(f"buffer_load_dword v{vT3}, v{vT2}, {sr(SWS,4)}, s{sT0} offen sc1")
        cc = lambda: a(f"v_cmp_ne_u32 vcc, s{sNON}, v{vT3}")
    spec(ci, cc, ldq, 0x36 + L, a.newlabel("PQR"), on=opt("SPEC", 15) & 4)
    stamp("p2_pqc")
    if L == 0:
        a.wait(vm=G['wo'])
        for q in range(2):
            a(f"v_permlane32_swap_b32 v{XR+4*q}, v{XR+4*q+2}")
            a(f"v_permlane32_swap_b32 v{XR+4*q+1}, v{XR+4*q+3}")
        a(f"v_lshlrev_b32 v{vB2}, 16, v{vB2}")
    pump.run(min(R1 + 5, pump.i), refill=False)
    pump.run(min(R1 + 5, optL("B2", L, 0, 0)), refill=False)
    pump.fill(pump.c + optL("FK", L, 0, 0))
    a(f"s_xor_b32 s{sT0}, s{sW}, 1")
    a(f"s_lshl_b32 s{sT0}, s{sT0}, 12")
    a(f"v_add_u32 v{vRS}, s{sT0}, v{vL16}")
    a.wait_lg_all()
    a("s_barrier")
    rw = {}
    def RW(j):
        b = WF + (j % 3) * 8
        a(f"ds_read_b64_tr_b16 {vr(b,2)}, v{vTA} offset:{j*2048}")
        a(f"ds_read_b64_tr_b16 {vr(b+2,2)}, v{vTA} offset:{j*2048+1024}")
        a(f"ds_read_b64_tr_b16 {vr(b+4,2)}, v{vTB} offset:{j*2048}")
        rw[j] = a(f"ds_read_b64_tr_b16 {vr(b+6,2)}, v{vTB} offset:{j*2048+1024}")
    lid = {}
    def LD(j):
        if j == 0: a(f"s_mov_b32 s{sSO}, s{sAKVF}")
        elif j & 3 == 0: a(f"s_add_u32 s{sSO}, s{sSO}, {4*768}")
        lid[j] = a(f"buffer_load_dwordx4 {vr(KF+4*j,4)}, v{vK}, {sr(SWS,4)}, s{sSO} offen offset:{(j&3)*768} sc1")
    PLA = optL("PLA", L, 10, 10)
    redo = a.newlabel("P2REDO"); redo2 = a.newlabel("P2REDO2"); over = a.newlabel("P2OVER")
    a(f"s_branch {over}")
    a.label(redo)
    with cond():
        ldq()
        a("s_waitcnt vmcnt(0)")
        a(f"s_branch {redo2}")
    a.label(over)
    def window():
        for j in range(PLA): LD(j)
    spec(lambda: a(f"buffer_load_dword v{vT3}, v{vKC}, {sr(SWS,4)}, s{sAKVF} offen offset:272 sc1"),
         lambda: a(f"v_cmp_ne_u32 vcc, s{sNON}, v{vT3}"), window, 0x38 + L, redo2, on=opt("SPEC", 15) & 2)
    stamp("p2_kvc")
    RW(0); RW(1)
    unpack_xr(ACC)
    a(f"v_mov_b32 v{vMX}, 0")
    def M1(j):
        a.wait(vm=lid[j])
        mfma(vr(CR+(j&1)*16,16), vr(KF+4*j,4), vr(QF+4*j,4), "0")
        a(f"v_max3_u32 v{vMX}, v{vMX}, v{KF+4*j}, v{QF+4*j}")
        if j + PLA < 16: LD(j + PLA)
        if j + PLA == 16: touches(L, 9)
    def Va(j):
        c = CR + (j & 1) * 16
        a(f"v_add_f32 v{c+8}, s{sEPS6}, v{c+8}")
        a(f"v_rcp_f32 v{c+8}, v{c+8}")
    def Vb(j):
        c = CR + (j & 1) * 16; o = OF + (j & 1) * 4
        for i in range(4): a(f"v_mul_f32 v{c+i}, v{c+i}, v{c+8}")
        for i in range(2): a(f"v_cvt_pk_bf16_f32 v{o+i}, v{c+2*i}, v{c+2*i+1}")
    def Vc(j):
        c = CR + (j & 1) * 16; o = OF + (j & 1) * 4
        for i in range(4, 8): a(f"v_mul_f32 v{c+i}, v{c+i}, v{c+8}")
        for i in range(2, 4): a(f"v_cvt_pk_bf16_f32 v{o+i}, v{c+2*i}, v{c+2*i+1}")
    M1(0); M1(1)
    Va(0); Vb(0); Vc(0); M1(2)
    nfp = optL("FP2", L, 6, 6)
    kb_saved = False
    for j in range(16):
        o = OF + (j & 1) * 4; b = WF + (j % 3) * 8
        if j + 1 < 16: Va(j + 1)
        a.wait(lg=rw[j])
        mfma(vr(ACC+16,16), vr(b+4,4), vr(o,4), "0" if j == 0 else vr(ACC+16,16))
        if j + 1 < 16: Vb(j + 1)
        mfma(vr(ACC,16), vr(b,4), vr(o,4), vr(ACC,16))
        if j + 1 < 16: Vc(j + 1)
        if j + 3 < 16: M1(j + 3)
        if j + 2 < 16: RW(j + 2)
    verify(vMX, redo)
    stamp("p2_main")
    lin(sT0, [(sFT, 128), (sRH, 64)])
    a(f"v_lshlrev_b32 v{vT0}, 3, v{vHH}")
    for q in range(4): a(f"buffer_load_dwordx2 {vr(152+2*q,2)}, v{vT0}, {sr(SB1,4)}, s{sT0} offen offset:{16*q}")
    for q in range(4): a(f"ds_write_b128 v{vRS}, {vr(ACC+16+4*q,4)} offset:{q*1024}")
    a(f"v_xor_b32 v{vT1}, 4096, v{vRS}")
    touches(L, 4)
    a.wait_lg_all()
    a("s_barrier")
    ids = [a(f"ds_read_b128 {vr(ACC+16+4*q,4)}, v{vT1} offset:{q*1024}") for q in range(4)]
    for q in range(4):
        a.wait(lg=ids[q])
        pk("add", ACC+4*q, vr(ACC+4*q,2), vr(ACC+16+4*q,2))
        pk("add", ACC+4*q+2, vr(ACC+4*q+2,2), vr(ACC+16+4*q+2,2))
        a(f"v_cvt_pk_bf16_f32 v{XR+2*q}, v{ACC+4*q}, v{ACC+4*q+1}")
        a(f"v_cvt_pk_bf16_f32 v{XR+2*q+1}, v{ACC+4*q+2}, v{ACC+4*q+3}")
    row_stats_publish(sASTW, OF)
    stamp("p2_stpub")
    pump.run(pump.i, refill=False)
    pump.fill(pump.c + optL("GF", L, 6, 4))
    unpack_xr(XU)
    IDF = 104
    a(f"v_and_b32 v{vT0}, 31, v{vL}")
    a(f"v_lshlrev_b32 v{vT1}, 2, v{vHH}")
    a(f"v_sub_u32 v{vT0}, v{vT0}, v{vT1}")
    a(f"v_mov_b32 v{vT3}, 0x3f80")
    for f in range(2):
        for c in range(4):
            base = 16 * f + ((2 * c) & 3) + 8 * (c >> 1)
            a(f"v_subrev_u32 v{vT1}, {base}, v{vT0}")
            a(f"v_cmp_gt_u32 vcc, 2, v{vT1}")
            a(f"v_lshlrev_b32 v{vT1}, 4, v{vT1}")
            a(f"v_lshlrev_b32 v{vT2}, v{vT1}, v{vT3}")
            a(f"v_cndmask_b32 v{IDF+4*f+c}, 0, v{vT2}, vcc")
    SB = 128
    a(f"v_and_b32 v{vT0}, 31, v{vL}")
    a(f"v_lshlrev_b32 v{vT0}, 3, v{vT0}")
    a(f"v_lshl_add_u32 v{vT2}, v{vHH}, 12, v{vT0}")
    a(f"v_mov_b32 v{SB+18}, {fl(1.0+1e-5)}")
    def issue():
        for p in range(8): a(f"buffer_load_dwordx2 {vr(SB+2*p,2)}, v{vT2}, {sr(SWS,4)}, s{sASTR} offen offset:{p*512} sc1")
    if OPT.get(f"SL{0x34+L:x}", 0): a(f"s_sleep {OPT.get(f'SL{0x34+L:x}', 0)}")
    poll(issue, lambda: stats_check(SB), 0x34 + L)
    stamp("p2_stats")
    if optL("SF", L, 3, 3):
        pump.run(pump.i, refill=False)
        pump.fill(pump.c + optL("SF", L, 3, 3))
    stats_sum(SB)
    a(f"v_mul_f32 v{SB}, {fl(-1/512)}, v{SB}")
    a(f"v_mul_f32 v{SB+1}, {fl(1/512)}, v{SB+1}")
    a(f"v_fma_f32 v{SB+1}, -v{SB}, v{SB}, v{SB+1}")
    a(f"v_max_f32 v{SB+1}, 0, v{SB+1}")
    a(f"v_fmaak_f32 v{SB+1}, v{SB+1}, v{SB+18}, {fl(1e-10)}")
    a(f"v_rsq_f32 v{SB+2}, v{SB+1}")
    a(f"v_mul_f32 v{SB}, v{SB}, v{SB+2}")
    HP_ = 112
    for f in range(2):
        for j in range(4*f, 4*f+4):
            pk("fma", XU+2*j, vr(XU+2*j,2), vr(SB+2,2), vr(SB,2), hi=[1,0,0])
    for f in range(2):
        for j in range(4*f, 4*f+4):
            a(f"v_cvt_pk_bf16_f32 v{HP_+j}, v{XU+2*j}, v{XU+2*j+1}")
        mfma(vr(ACC,16), vr(HP_+4*f,4), vr(IDF+4*f,4), "0" if f == 0 else vr(ACC,16))
    for f in range(2):
        for j in range(4): a(f"v_cvt_pk_bf16_f32 v{ACC+16+4*f+j}, v{ACC+8*f+2*j}, v{ACC+8*f+2*j+1}")
        ws_store4(ACC + 16 + 4 * f, sAHTW, 2048 * f)
    touches(L, 5)
    stamp(f"p2_{L}")

ACC = 32; RING = 96; AUX = 144
vR1, vR2, vR3, vRA, vRB = vT0, vT1, vT2, vRS, MA + 2
def stream(kind, nks, srot, sbase, code, tail=None, each=None):
    NR = 6; LK = NR - 1
    vA, vB, vMX, vC = vTA, vTB, MA, MA + 1
    a(f"s_lshl_b32 s{sT0}, s{sKH}, 10")
    a(f"v_add_u32 v{vA}, s{sT0}, v{vL16}")
    a(f"v_xor_b32 v{vB}, 1024, v{vA}")
    a(f"v_add_u32 v{vA}, s{sbase}, v{vA}")
    a(f"v_add_u32 v{vB}, s{sbase}, v{vB}")
    a(f"v_min_u32 v{vT0}, {nks-1}, v{vL}")
    a(f"v_lshrrev_b32 v{vT1}, 1, v{vT0}")
    a(f"v_and_b32 v{vT0}, 1, v{vT0}")
    a(f"v_lshlrev_b32 v{vT0}, 10, v{vT0}")
    a(f"v_lshl_add_u32 v{vC}, v{vT1}, 12, v{vT0}")
    for acc, r in ((1, vR1), (2, vR2)):
        a(f"s_xor_b32 s{sT0}, s{sW}, {acc}")
        a(f"s_lshl_b32 s{sT0}, s{sT0}, 13")
        a(f"v_add_u32 v{r}, s{sT0}, v{vL16}")
    a(f"s_xor_b32 s{sT0}, s{sW}, 3")
    a(f"s_lshl_b32 s{sT0}, s{sT0}, 14")
    a(f"v_add_u32 v{vR3}, s{sT0}, v{vL16}")
    a(f"s_lshl_b32 s{sT0}, s{sW}, 13")
    a(f"v_add_u32 v{vRA}, s{sT0}, v{vL16}")
    a(f"v_add_u32 v{vRB}, s{sWA}, v{vL16}")
    ids = {}
    def LDa(s):
        b = RING + (s % NR) * 8
        if s & 1 == 0 and s > 0:
            a(f"s_add_u32 s{sSO}, s{sSO}, 4096")
            a(f"s_cmp_eq_u32 s{sSO}, {nks*2048}")
            a(f"s_cselect_b32 s{sSO}, 0, s{sSO}")
        a(f"buffer_load_dwordx4 {vr(b,4)}, v{vA}, {sr(SWS,4)}, s{sSO} offen offset:{(s&1)*2048} sc1")
    def LDb(s):
        b = RING + (s % NR) * 8
        ids[s] = a(f"buffer_load_dwordx4 {vr(b+4,4)}, v{vB}, {sr(SWS,4)}, s{sSO} offen offset:{(s&1)*2048} sc1")
    def run():
        redo = a.newlabel("SREDO")
        a(f"s_mov_b32 s{sKB}, s{sWOFF}")
        def window():
            a(f"s_lshl_b32 s{sSO}, s{srot}, 11")
            for s in range(LK): LDa(s); LDb(s)
        spec(lambda: a(f"buffer_load_dword v{vT3}, v{vC}, {sr(SWS,4)}, s{sbase} offen offset:{2048+1020} sc1"),
             lambda: a(f"v_cmp_eq_u32 vcc, -1, v{vT3}"), window, code, redo, on=opt("SPEC", 15) & 1)
        stamp("canary")
        a(f"s_mov_b32 s{sWOFF}, s{sKB}")
        a(f"v_mov_b32 v{vMX}, 0")
        DEF = opt("DEF", 5)
        def MF(s, acc):
            b = RING + (s % NR) * 8
            wf = wreg(kind, s, 4 * (acc >> 1), 4); af = vr(b + 4 * (acc & 1), 4)
            c = "0" if s == 0 else vr(ACC + 16 * acc, 16)
            A_, B_ = (wf, af) if kind == 1 else (af, wf)
            mfma(vr(ACC+16*acc,16), A_, B_, c)
        for s in range(nks):
            a.wait(vm=ids[s])
            b = RING + (s % NR) * 8
            order = (0, 1, 2, 3) if s < nks - DEF else (1, 2, 3)
            for n, acc in enumerate(order):
                MF(s, acc)
                if n == 0 and s + LK < nks: LDa(s + LK)
                if n == 1 and s + LK < nks: LDb(s + LK)
                if n == (2 if s < nks - 1 else 0): a(f"v_max3_u32 v{vMX}, v{vMX}, v{b}, v{b+4}")
                if each and n == 2: each(s)
                if tail and s + LK >= nks and n < 3: tail(s + LK - nks, n)
        verify(vMX, redo)
        stamp("gemm")
        wr = [(acc, q) for acc in (1, 2, 3) for q in range(4)]
        def W(k):
            acc, q = wr[k]
            o = (0, 4096, L_A + SCR)[acc - 1]
            a(f"ds_write_b128 v{(vR1, vR2, vR3)[acc-1]}, {vr(ACC+16*acc+4*q,4)} offset:{o+q*1024}")
        k = 0
        for n, s in enumerate(range(nks - DEF, nks)):
            MF(s, 0)
            for _ in range(2 if n else 1):
                if k < 12: W(k); k += 1
        while k < 12: W(k); k += 1
    return run

def reduce4():
    def sync_and_read():
        a.wait_lg_all(force=True)
        a("s_barrier")
        ids = {}
        for q in range(4):
            a(f"ds_read_b128 {vr(RING+4*q,4)}, v{vRA} offset:{q*1024}")
            ids[(q, 1)] = a(f"ds_read_b128 {vr(RING+16+4*q,4)}, v{vRA} offset:{4096+q*1024}")
            ids[(q, 2)] = a(f"ds_read_b128 {vr(RING+32+4*q,4)}, v{vRB} offset:{SCR+q*1024}")
        def add(q):
            a.wait(lg=ids[(q, 1)])
            for j in (0, 2): pk("add", RING+4*q+j, vr(RING+4*q+j,2), vr(RING+16+4*q+j,2))
            a.wait(lg=ids[(q, 2)])
            for j in (0, 2): pk("add", ACC+4*q+j, vr(ACC+4*q+j,2), vr(RING+32+4*q+j,2))
            for j in (0, 2): pk("add", ACC+4*q+j, vr(ACC+4*q+j,2), vr(RING+4*q+j,2))
        return add
    return sync_and_read

def p3(L):
    a.c(f"======== P3 layer {L}")
    B1R = AUX
    pump.run(pump.i, refill=True)
    if opt("POIQ", 1) == 0:
        set_poi(ACC)
        tile_poison(ACC, sAUW, 0, 2048)
    pump.run(32)
    a.wait_lg_all()
    if L == 1: a("s_barrier")
    pump.setup(2, L, extra=optL("XB", L, 0, 8))
    pump.run(optL("V2", L, 5, 0), refill=False)
    pump.fill(pump.c + optL("V2F", L, 0, 8))
    assert pump.c <= R2
    if L == 0: a("s_barrier")
    for j in range(8):
        if j < 7:
            a(f"v_lshlrev_b32 v{B1R+2*j}, 16, v{B1R+8+j}")
            a(f"v_and_b32 v{B1R+2*j+1}, 0xffff0000, v{B1R+8+j}")
        else:
            a(f"v_lshlrev_b32 v{B1R+14}, 16, v{B1R+15}")
            a(f"v_and_b32 v{B1R+15}, 0xffff0000, v{B1R+15}")
    stamp("p3_delta")
    idle = a.newlabel("P3IDLE"); join = a.newlabel("P3JOIN")
    pst = (pump.i, pump.c, dict(pump.vid), dict(pump.lid))
    a(f"s_cmp_eq_u32 s{sP3}, 7")
    a(f"s_cbranch_scc1 {idle}")
    SM = optL("SM", L, 0, 0); IDN = optL("IDT", L, 14, 0)
    with cond():
        ntail = optL("V2T", L, 5, 5)
        def tl(k, n):
            if n == 0 and k < ntail: pump.fill(pump.i + 1)
        each = None
        if SM:
            a(f"s_lshr_b32 s{sT1}, s{sWI}, 3")
            a(f"s_add_u32 s{sT1}, s{sT1}, 14")
            a(f"s_add_u32 s{sT1}, s{sT1}, s{sROT2}")
            a(f"s_sub_u32 s{sT2}, s{sT1}, 28")
            a(f"s_cselect_b32 s{sT1}, s{sT1}, s{sT2}")
            a(f"s_and_b32 s{sT2}, s{sWI}, 3")
            a(f"s_mul_i32 s{sT2}, s{sT2}, 28")
            a(f"s_add_u32 s{sT1}, s{sT1}, s{sT2}")
            a(f"s_lshl_b32 s{sT1}, s{sT1}, 16")
            a(f"s_bfe_u32 s{sT2}, s{sWI}, 0x10002")
            a(f"s_lshl_b32 s{sT2}, s{sT2}, 15")
            a(f"s_add_u32 s{sT1}, s{sT1}, s{sT2}")
            a(f"s_and_b32 s{sT2}, s{sB}, 7")
            a(f"s_lshl_b32 s{sT2}, s{sT2}, 9")
            a(f"s_add_u32 s{sT1}, s{sT1}, s{sT2}")
            def each(s):
                for hf in range(2):
                    k = 2 * s + hf
                    ln = k & 31
                    a(f"s_buffer_load_dword s{sDUM}, {sr(SW2,4)}, s{sT1} offset:{(ln>>2)*4096 + (ln&3)*128 + (k>>5)*64}")
        run = stream(1, 32, sROT1, sAHTR, 0x50 + L, tail=tl, each=each)
        run()
        sync = reduce4()
        K1 = -2.0 * 0.7978845608028654 * LOG2E
        a(f"s_mov_b32 s{sT2}, s{sGK}")
        a(f"v_mov_b32 v{vTA}, {fl(K1)}")
        for q in range(8): pk("add", ACC+2*q, vr(ACC+2*q,2), vr(B1R+2*q,2))
        add = sync()
        T = ACC + 16; PKD = ACC + 32
        for h in range(2):
            add(2 * h); add(2 * h + 1)
            R4 = range(4 * h, 4 * h + 4); R8 = range(8 * h, 8 * h + 8)
            for q in R4: pk("mul", T+2*q, vr(ACC+2*q,2), vr(ACC+2*q,2))
            for q in R4: pk("fma", T+2*q, vr(T+2*q,2), sr(sT2,2), vr(vTA,2), hi=[1,0,0])
            for q in R4: pk("mul", T+2*q, vr(T+2*q,2), vr(ACC+2*q,2))
            for i in R8: a(f"v_exp_f32 v{T+i}, v{T+i}")
            for q in R4: pk("add", T+2*q, vr(T+2*q,2), "1.0", hi=[1,0])
            for i in R8: a(f"v_rcp_f32 v{T+i}, v{T+i}")
            for q in R4: pk("mul", ACC+2*q, vr(ACC+2*q,2), vr(T+2*q,2))
            for q in R4: a(f"v_cvt_pk_bf16_f32 v{PKD+q}, v{ACC+2*q}, v{ACC+2*q+1}")
            ws_store4(PKD + 4 * h, sAUW, 2048 * h)
        a(f"s_branch {join}")
    a.label(idle)
    pump.i, pump.c, pump.vid, pump.lid = pst
    if IDN:
        a(f"v_lshrrev_b32 v{vT0}, 2, v{vL}")
        a(f"v_lshlrev_b32 v{vT0}, 12, v{vT0}")
        a(f"v_and_b32 v{vT1}, 3, v{vL}")
        a(f"v_lshl_add_u32 v{vT0}, v{vT1}, 7, v{vT0}")
        a(f"s_bfe_u32 s{sT0}, s{sWI}, 0x20002")
        a(f"s_mul_i32 s{sT0}, s{sT0}, {28*65536}")
        a(f"s_and_b32 s{sT1}, s{sB}, 7")
        a(f"s_lshl_b32 s{sT1}, s{sT1}, 9")
        a(f"s_add_u32 s{sT0}, s{sT0}, s{sT1}")
        a(f"v_add_u32 v{vT0}, s{sT0}, v{vT0}")
        a(f"s_add_u32 s{sT1}, s{sW}, s{sROT2}")
        a(f"s_add_u32 s{sT1}, s{sT1}, {28 - IDN}")
        for k in range((IDN + 3) // 4):
            a(f"s_sub_u32 s{sT2}, s{sT1}, 28")
            a(f"s_cselect_b32 s{sT1}, s{sT1}, s{sT2}")
            a(f"s_lshl_b32 s{sT2}, s{sT1}, 16")
            a(f"buffer_load_dword v31, v{vT0}, {sr(SW2,4)}, s{sT2} offen")
            a(f"s_add_u32 s{sT1}, s{sT1}, 4")
    pump.fill(pump.i + ntail)
    a.label(join)
    stamp(f"p3_{L}")

def p4(L):
    a.c(f"======== P4 layer {L}")
    if L == 0 and opt("POIQ", 1) < 2:
        set_poi(ACC)
        tile_poison(ACC, sAX2W, 0, 1024)
        tile_poison(ACC, sAPQW, PQ[1] - PQ[0], 1024)
        kv_poison(ACC, 1)
    pump.run(28)
    stamp("p4_w2")
    NKT = opt("NKT", 8)
    def kvdma(j):
        if j == 0: a(f"s_add_u32 s{sT3}, s{sAWQT}, s{sWA}")
        if j & 3 == 0:
            a(f"s_add_u32 m0, s{sWA}, {j*1024}")
            if j: a(f"s_add_u32 s{sT3}, s{sT3}, 4096")
        a(f"buffer_load_dwordx4 v{vL16}, {sr(SWS,4)}, s{sT3} offen offset:{(j&3)*1024} lds")
    def tl(k, n):
        j = 3 * k + n
        if j < NKT: kvdma(j)
    run = stream(2, 28, sROT2, sAUR, 0x60 + L, tail=tl if L == 0 else None)
    XU = AUX
    unpack_xr(XU)
    for q in range(8): pk("add", XU+2*q, vr(XU+2*q,2), vr(vB2-1,2), lo=[0,1], hi=[1,1])
    a.wait_lg_all()
    a("s_barrier")
    run()
    sync = reduce4()
    for q in range(8): pk("add", ACC+2*q, vr(ACC+2*q,2), vr(XU+2*q,2))
    add = sync()
    for h in range(2):
        add(2 * h); add(2 * h + 1)
        for q in range(4 * h, 4 * h + 4): a(f"v_cvt_pk_bf16_f32 v{XR+q}, v{ACC+2*q}, v{ACC+2*q+1}")
        if L == 0:
            ws_store4(XR + 4 * h, sAX2W, 1024 * h)
        else:
            a(f"v_permlane32_swap_b32 v{XR+4*h}, v{XR+4*h+2}")
            a(f"v_permlane32_swap_b32 v{XR+4*h+1}, v{XR+4*h+3}")
            a(f"buffer_store_dwordx4 {vr(XR+4*h,4)}, v{vOUT}, {sr(SOUT,4)}, 0 offen offset:{32*h}{['', ' sc1', ' nt', ' sc0 sc1'][opt('OST', 0)]}")
    if L == 0:
        row_stats_publish(sAS2W, ACC + 16)
        for j in range(NKT, 16): kvdma(j)
    stamp(f"p4_{L}")

prologue()
for L in range(2):
    p1(L); p2(L); p3(L); p4(L)
finish()
a.label("L_EXIT")
a("s_endpgm")
a.label("L_END")

hdr = open(f"ref.s").read().split("; Override launch")[0]
out = hdr + f"""; @launch grid=(256,1,1) block=(256,1,1) lds={LDS_BYTES}
.amdgcn_target "amdgcn-amd-amdhsa--gfx950"
.text
.globl {NAME}_kernel
.p2align 8
.type {NAME}_kernel,@function
{NAME}_kernel:
""" + a.text() + f""".section .rodata,"a"
.p2align 6
.amdhsa_kernel {NAME}_kernel
  .amdhsa_next_free_vgpr 512
  .amdhsa_next_free_sgpr 102
  .amdhsa_accum_offset 256
  .amdhsa_group_segment_fixed_size 0
  .amdhsa_kernarg_size 88
  .amdhsa_user_sgpr_count 2
  .amdhsa_user_sgpr_kernarg_segment_ptr 1
  .amdhsa_system_sgpr_workgroup_id_x 1
  .amdhsa_float_denorm_mode_32 3
.end_amdhsa_kernel
"""
outp = [x for x in sys.argv[1:] if x.endswith(".s")]
open(outp[0], "w").write(out)
if DIAG: open(outp[0] + ".stamps", "w").write("\n".join(stamp_names))
```

```python
import sys, struct
from contextlib import contextmanager
from asmlib import Asm, vr, ar, sr

NAME = "interleave_layers__linear_attn_block__mixer_token_mlp__prompt"
DIAG = "--diag" in sys.argv
OPT = {}
for a_ in sys.argv:
    if a_.startswith("-D"):
        k_, v_ = a_[2:].split("="); OPT[k_] = int(v_)
def opt(k, d): return OPT.get(k, d)
def optL(k, L, d0, d1): return OPT.get(f"{k}_{L}", (d0, d1)[L])
def f2u(x): return struct.unpack("<I", struct.pack("<f", x))[0]
def fl(x): return "0x%08x" % f2u(x)
FULL = (1 << 64) - 1
LOG2E = 1.4426950408889634

KVF = [0x2000, 0xC0000]; KVP = [0x8000, 0xC6000]; ST = [0x166000, 0x1A6000]; ST2 = 0x1E6000
SELFP = 0xC0000
PQ = [0x400000, 0x600000]; HT = [0x800000, 0xA00000]; U = [0xC00000, 0xE00000]; X2 = 0x1000000
WQT = 0x1200000
TS = 0x1400000
DUMP = 0x1500000
ERRS = 0x1520000
NONCE = 0x0; TAGQ = 0x1540000
WS_BYTES = 268435456
L_A = 32768; L_B = 98304; LDS_BYTES = 163840
NS = 6; SCR = 12288
sW = 3
SX, SWQKV, SWO, SW1, SW2, SWS, SOUT, SDBG, SB1, SB2, SCODE = 4, 8, 12, 16, 20, 24, 28, 32, 36, 40, 44
sST, sDT, sRB, sHP, sDT3, sFT, sP3, sRH, sKH, sWB, sTO, sONES = 48, 49, 50, 51, 52, 53, 54, 55, 56, 57, 58, 59
sEPS6 = 60; sB = 61
sT0, sT1, sT2, sT3, sT4, sT5 = 62, 63, 64, 65, 66, 67
sSO = 68; sW1K = 69; sTS = 70
sL2E = 74; sWA = 75; sROTX = 76; sROT1 = 77; sROT2 = 78; sRED = 79; sWOFF = 80; sKB = 81; sXC = 82; sWI = 83
sKA = 84
sAKVP, sAPQW, sAPQR, sAKVF, sASTW, sASTR, sAHTW, sAHTR, sAUW, sAUR, sAX2W, sAX2R, sAS2W, sAS2R, sAWQT, sGK = range(84, 100)
sDUM = 100; sNON = 101
vL, vL16, vTA, vTB, vT0, vT1, vT2, vT3 = 0, 1, 2, 3, 4, 5, 6, 7
XR = 8
CKP, CVP, CQP, vB2, vRS, vHH, vOUT, vTSV = 16, 17, 18, 19, 20, 21, 22, 23
vWA, vWB, vWTA, vWTB = 24, 25, 26, 27
MA = 28

a = Asm()
stamp_names = []
G = {}

@contextmanager
def cond():
    st = (a.vm, a.vm_done, a.lg, a.lg_done); h = list(a.hist)
    yield
    a.vm, a.vm_done, a.lg, a.lg_done = st[0], min(st[1], st[0]), st[2], min(st[3], st[2])
    a.hist = h

def stamp(name):
    if not DIAG: return
    if "--lite" in sys.argv and name not in ("start", "end", "p4_0"): return
    k = len(stamp_names); stamp_names.append(name)
    if opt("CYC", 0) and name not in ("start", "end"): a(f"s_memtime {sr(sTS,2)}")
    else: a(f"s_memrealtime {sr(sTS,2)}")
    if name in ("start", "end"): a(f"s_memtime {sr(sTS+2,2)}")
    a("s_waitcnt lgkmcnt(0)"); a.lg_done = a.lg
    a(f"v_writelane_b32 v{vTSV}, s{sTS}, {k}")
    if name in ("start", "end"): a(f"v_writelane_b32 v{vTSV}, s{sTS+2}, {62 if name == 'start' else 63}")

def srd(base, ptr, nbytes):
    a(f"s_mov_b32 s{base}, s{ptr}")
    a(f"s_and_b32 s{base+1}, s{ptr+1}, 0xffff")
    a(f"s_mov_b32 s{base+2}, {nbytes:#x}")
    a(f"s_mov_b32 s{base+3}, 0x20000")

def set_exec(mask):
    if mask == FULL: a("s_mov_b64 exec, -1")
    elif mask <= 64: a(f"s_mov_b64 exec, {mask}")
    else:
        a(f"s_mov_b32 exec_lo, {mask & 0xffffffff:#x}"); a(f"s_mov_b32 exec_hi, {mask >> 32:#x}")

def lin(dst, terms, const=0):
    first = True
    for r, m in terms:
        t = dst if first else sT5
        if m == 1 and not first: a(f"s_add_u32 s{dst}, s{dst}, s{r}"); continue
        if m & (m - 1) == 0: a(f"s_lshl_b32 s{t}, s{r}, {m.bit_length()-1}")
        else: a(f"s_mul_i32 s{t}, s{r}, {m}")
        if not first: a(f"s_add_u32 s{dst}, s{dst}, s{sT5}")
        first = False
    if const: a(f"s_add_u32 s{dst}, s{dst}, {const:#x}")

def timeout_path(code):
    a(f"s_mov_b32 s{sTO}, 0")
    if DIAG:
        a(f"v_mov_b32 v{vT3}, {code}")
        a(f"s_mov_b32 s{sT5}, {ERRS:#x}")
        a(f"buffer_store_dword v{vT3}, off, {sr(SWS,4)}, s{sT5}")
        a("s_waitcnt vmcnt(0)")

def poll(issue, check, code, pre=None):
    top = a.newlabel("POLL"); done = a.newlabel("PDONE"); chk = a.newlabel("PCHK")
    if pre is not None:
        a.wait(vm=pre)
        st = (a.vm, a.vm_done)
        a(f"s_branch {chk}")
    a.label(top)
    issue()
    a.wait_vm_all(force=True)
    if pre is not None: a.label(chk)
    check()
    a(f"s_cbranch_vccz {done}")
    h = list(a.hist); vmst = (a.vm, a.vm_done)
    if opt("PS", 2): a(f"s_sleep {opt('PS', 2)}")
    a(f"s_sub_u32 s{sTO}, s{sTO}, 1")
    a(f"s_cbranch_scc0 {top}")
    timeout_path(code)
    a.label(done)
    a.hist = h; a.vm, a.vm_done = vmst
    if pre is not None: a.vm, a.vm_done = st

def poll1(addr, code, tmp=None, tag=False):
    cmp = (lambda r: a(f"v_cmp_ne_u32 vcc, s{sNON}, v{r}")) if tag else (lambda r: a(f"v_cmp_eq_u32 vcc, -1, v{r}"))
    if tmp is None or not opt("PP", 0):
        poll(lambda: a(f"buffer_load_dword v{vT3}, {addr} sc1"), lambda: cmp(vT3), code)
        return
    top = a.newlabel("PP"); done = a.newlabel("PPD")
    a(f"buffer_load_dword v{vT3}, {addr} sc1")
    a(f"s_nop {opt('PPN', 15)}")
    a.label(top)
    for r, o in ((vT3, tmp), (tmp, vT3)):
        a(f"buffer_load_dword v{o}, {addr} sc1")
        a("s_waitcnt vmcnt(1)")
        cmp(r)
        a(f"s_cbranch_vccz {done}")
    h = list(a.hist)
    a(f"s_sub_u32 s{sTO}, s{sTO}, 2")
    a(f"s_cbranch_scc0 {top}")
    timeout_path(code)
    a.label(done)
    a.hist = h
    a.vm -= 1
    a.vm_done = a.vm - 1

SLD = {}
SPD = {0x50: 1, 0x51: 1, 0x60: 1, 0x61: 1, 0x36: 1, 0x38: 1}
def spec(can_issue, can_check, window, code, redo, on=True):
    go = a.newlabel("GO")
    d = OPT.get(f"SL{code:x}", SLD.get(code, 0))
    if d: a(f"s_sleep {d}")
    on = OPT.get(f"SP{code:x}", SPD.get(code, 0))
    if on:
        can_issue(); cid = a.vm - 1
        window()
        a.wait(vm=cid)
        can_check()
        a(f"s_cbranch_vccz {go}")
        st = (a.vm, a.vm_done, list(a.hist))
        poll(can_issue, can_check, code)
        a.label(redo)
        window()
        a.label(go)
        a.hist = []
        a("s_nop 0")
    else:
        poll(can_issue, can_check, code)
        a.label(redo)
        window()

def verify(vMX, redo):
    ok = a.newlabel("VOK")
    a(f"v_cmp_eq_u32 vcc, -1, v{vMX}")
    a(f"s_cbranch_vccz {ok}")
    h = list(a.hist)
    a("s_waitcnt vmcnt(0)")
    a(f"s_sub_u32 s{sTO}, s{sTO}, 64")
    a(f"s_cbranch_scc0 {redo}")
    a(f"s_mov_b32 s{sTO}, 0")
    a.label(ok)
    a.hist = h

def finish():
    if opt("AMP", -1) >= 0:
        lp = a.newlabel("AMPL"); sk = a.newlabel("AMPS")
        stamp("pre_end")
        a(f"s_cmp_lg_u32 s{sB}, 77")
        a(f"s_cbranch_scc1 {sk}")
        a(f"v_readlane_b32 s{sT0}, v{vTSV}, 0")
        a(f"v_readlane_b32 s{sT1}, v{vTSV}, {opt('AMP', 0)}")
        a(f"s_memrealtime s[70:71]")
        a("s_waitcnt lgkmcnt(0)")
        a(f"s_sub_u32 s{sT1}, s{sT1}, s{sT0}")
        a(f"s_lshl_b32 s{sT1}, s{sT1}, 2")
        a(f"s_add_u32 s{sT1}, s70, s{sT1}")
        a.label(lp)
        a(f"s_memrealtime s[70:71]")
        a("s_waitcnt lgkmcnt(0)")
        a(f"s_sub_u32 s{sT2}, s70, s{sT1}")
        a(f"s_cmp_lt_i32 s{sT2}, 0")
        a(f"s_cbranch_scc1 {lp}")
        a.label(sk)
    if DIAG:
        stamp("end")
        lin(sT0, [(sB, 1024), (sW, 256)], TS)
        a(f"v_lshlrev_b32 v{vT0}, 2, v{vL}")
        a(f"buffer_store_dword v{vTSV}, v{vT0}, {sr(SWS,4)}, s{sT0} offen")
    a("s_endpgm")

def pk(op, d, x, y, z=None, hi=None, lo=None):
    ops = [x, y] + ([z] if z is not None else [])
    m = ""
    if lo: m += " op_sel:[" + ",".join(map(str, lo)) + "]"
    if hi: m += " op_sel_hi:[" + ",".join(map(str, hi)) + "]"
    a(f"v_pk_{op}_f32 {vr(d,2)}, " + ", ".join(ops) + m)

def mfma(d, A, B, C):
    a(f"v_mfma_f32_32x32x16_bf16 {d}, {A}, {B}, {C}")

def ws_store4(reg, soff, off=0): return a(f"buffer_store_dwordx4 {vr(reg,4)}, v{vL16}, {sr(SWS,4)}, s{soff} offen offset:{off} sc1")

def tr_base(dst_a, dst_b, sel_sgpr, region):
    a(f"v_bfe_u32 v{vT0}, v{vL}, 2, 2")
    a(f"v_lshl_add_u32 v{vT0}, v{vHH}, 2, v{vT0}")
    a(f"v_lshlrev_b32 v{dst_a}, 7, v{vT0}")
    a(f"v_bfe_u32 v{vT1}, v{vL}, 3, 1")
    a(f"v_lshl_add_u32 v{dst_a}, v{vT1}, 6, v{dst_a}")
    a(f"v_bfe_u32 v{vT1}, v{vL}, 4, 1")
    a(f"v_lshl_add_u32 v{dst_a}, v{vT1}, 5, v{dst_a}")
    a(f"v_and_b32 v{vT1}, 3, v{vL}")
    a(f"v_lshl_add_u32 v{dst_a}, v{vT1}, 3, v{dst_a}")
    a(f"s_lshl_b32 s{sT5}, s{sel_sgpr}, 6")
    a(f"v_xor_b32 v{dst_a}, s{sT5}, v{dst_a}")
    a(f"v_add_u32 v{dst_a}, {region}, v{dst_a}")
    a(f"v_xor_b32 v{dst_b}, 64, v{dst_a}")

def dma_voff(dst, dst2, pitch, scol):
    a(f"v_lshrrev_b32 v{vT0}, 3, v{vL}")
    a(f"v_mul_u32_u24 v{dst}, {pitch}, v{vT0}")
    a(f"v_bfe_u32 v{vT1}, v{vL}, 4, 1")
    a(f"v_lshlrev_b32 v{vT1}, 2, v{vT1}")
    a(f"v_and_b32 v{vT0}, 7, v{vL}")
    a(f"v_xor_b32 v{vT0}, v{vT0}, v{vT1}")
    a(f"v_lshl_add_u32 v{dst}, v{vT0}, 4, v{dst}")
    a(f"v_add_u32 v{dst}, s{scol}, v{dst}")
    a(f"v_add_u32 v{dst2}, {8*pitch-1024}, v{dst}")

R1, R2 = 16, 11
def wreg(kind, t, j, n):
    r, base = (R1, 0) if kind == 1 else (R2, R1 * 8)
    if t < r: return ar(base + 8 * t + j, n)
    t -= r
    if t < 5: return ar(216 + 8 * t + j, n)
    return vr(160 + 8 * (t - 5) + j, n)

class Pump:
    def setup(self, kind, L, extra=0):
        self.kind = kind
        self.pitch, self.srd, self.n = (3584, SW1, 32) if kind == 1 else (4096, SW2, 28)
        self.t0 = 0 if L == 0 else (R1 if kind == 1 else R2)
        self.extra = extra
        self.i = self.t0; self.c = self.t0; self.vid = {}; self.lid = {}
        a.c(f"pump setup W{kind}")
        lin(sT4, [(sFT if kind == 1 else sST, 128), (sW, self.n * 16 * self.pitch)])
        dma_voff(vWA, vWB, self.pitch, sT4)
        rot = sROT1 if kind == 1 else sROT2
        a(f"s_add_u32 s{sT5}, s{rot}, {self.t0}")
        a(f"s_sub_u32 s{sWOFF}, s{sT5}, {self.n}")
        a(f"s_cselect_b32 s{sWOFF}, s{sT5}, s{sWOFF}")
        a(f"s_mul_i32 s{sWOFF}, s{sWOFF}, {16*self.pitch}")
    def place(self, t):
        k = t - self.t0
        if k < self.extra: return ("B", k * 2048)
        return ("A", ((k - self.extra) % NS) * 2048)
    def prev_user(self, t):
        p = t - NS
        return p if p - self.t0 >= self.extra else None
    def room(self, lag=0):
        p = self.prev_user(self.i)
        return p is None or p < self.c - lag
    def issue1(self):
        t = self.i
        if opt("NOPUMP", 0):
            self.vid[t] = None; self.i += 1; return
        p = self.prev_user(t)
        if p is not None: a.wait(lg=self.lid[p])
        reg, o = self.place(t)
        a(f"s_add_u32 m0, s{sWB if reg == 'B' else sWA}, {o}")
        if t > self.t0:
            a(f"s_add_u32 s{sWOFF}, s{sWOFF}, {16*self.pitch}")
            a(f"s_cmp_eq_u32 s{sWOFF}, {self.n*16*self.pitch}")
            a(f"s_cselect_b32 s{sWOFF}, 0, s{sWOFF}")
        a(f"buffer_load_dwordx4 v{vWA}, {sr(self.srd,4)}, s{sWOFF} offen lds")
        self.vid[t] = a(f"buffer_load_dwordx4 v{vWB}, {sr(self.srd,4)}, s{sWOFF} offen offset:1024 lds")
        self.i += 1
    def fill(self, upto=None):
        lim = self.n if upto is None else min(self.n, upto)
        while self.i < lim and self.room(): self.issue1()
    def run(self, target, refill=True):
        target = min(target, self.n)
        haveB = False
        while self.c < target:
            t = self.c
            if t >= self.i: self.issue1()
            if opt("NOPUMP", 0):
                self.c += 1; continue
            reg, o = self.place(t)
            ta, tb = vWTA, vWTB
            if reg == "B":
                ta, tb = vT0, vT1
                if not haveB:
                    a(f"v_add_u32 v{vT0}, 65536, v{vWTA}"); a(f"v_add_u32 v{vT1}, 65536, v{vWTB}"); haveB = True
            a.wait(vm=self.vid[t])
            a(f"ds_read_b64_tr_b16 {wreg(self.kind,t,0,2)}, v{ta} offset:{o}")
            a(f"ds_read_b64_tr_b16 {wreg(self.kind,t,2,2)}, v{ta} offset:{o+1024}")
            a(f"ds_read_b64_tr_b16 {wreg(self.kind,t,4,2)}, v{tb} offset:{o}")
            self.lid[t] = a(f"ds_read_b64_tr_b16 {wreg(self.kind,t,6,2)}, v{tb} offset:{o+1024}")
            self.c += 1
            lim = self.n if refill else target
            if self.i < lim and self.room(lag=1): self.issue1()
        if refill: self.fill()
pump = Pump()

def prologue():
    a(f"s_cmp_ge_u32 s2, 256")
    a(f"s_cbranch_scc1 L_EXIT")
    a(f"s_load_dwordx16 {sr(sKA,16)}, s[0:1], 0")
    a(f"s_load_dwordx4 {sr(SCODE,4)}, s[0:1], 64")
    a(f"s_load_dwordx2 s[100:101], s[0:1], 80")
    a(f"s_mov_b32 s{sB}, s2")
    a(f"v_lshrrev_b32 v{vT0}, 6, v0")
    a(f"v_and_b32 v{vL}, 63, v0")
    a(f"v_readfirstlane_b32 s{sW}, v{vT0}")
    a(f"v_lshlrev_b32 v{vL16}, 4, v{vL}")
    a(f"v_lshrrev_b32 v{vHH}, 5, v{vL}")
    if opt("CODEPF", 1) == 2:
        a(f"s_getpc_b64 {sr(SB1,2)}")
        a.label("L_PC")
        a(f"s_and_b32 s{SB1+1}, s{SB1+1}, 0xffff")
        a(f"s_mov_b32 s{SB1+2}, L_END - L_PC")
        a(f"s_mov_b32 s{SB1+3}, 0x20000")
        a(f"s_lshr_b32 s{sT0}, s{sB}, 3")
        a(f"s_lshl_b32 s{sT0}, s{sT0}, 2")
        a(f"s_add_u32 s{sT0}, s{sT0}, s{sW}")
        a(f"s_lshl_b32 s{sT0}, s{sT0}, 10")
        a(f"buffer_load_dwordx4 {ar(252,4)}, v{vL16}, {sr(SB1,4)}, s{sT0} offen")
    if DIAG: a(f"v_mov_b32 v{vTSV}, 0")
    stamp("start")
    X_, I_ = sT0, sT1
    a(f"s_and_b32 s{X_}, s{sB}, 7")
    a(f"s_lshr_b32 s{I_}, s{sB}, 3")
    a(f"s_lshr_b32 s{sT2}, s{I_}, 3")
    a(f"s_and_b32 s{sDT}, s{I_}, 7")
    a(f"s_and_b32 s{sRB}, s{X_}, 3")
    a(f"s_lshl_b32 s{sRB}, s{sRB}, 2")
    a(f"s_add_u32 s{sRB}, s{sRB}, s{sT2}")
    a(f"s_lshr_b32 s{sHP}, s{X_}, 2")
    a(f"s_lshl_b32 s{sHP}, s{sHP}, 3")
    a(f"s_add_u32 s{sHP}, s{sHP}, s{sDT}")
    a(f"s_lshr_b32 s{sROTX}, s{sDT}, 1")
    a(f"s_add_u32 s{sROTX}, s{sROTX}, s{sT2}")
    a(f"s_and_b32 s{sROTX}, s{sROTX}, 3")
    a(f"s_lshl_b32 s{sROTX}, s{sROTX}, 1")
    a(f"s_and_b32 s{sT3}, s{I_}, 1")
    a(f"s_add_u32 s{sROTX}, s{sROTX}, s{sT3}")
    a(f"s_lshl_b32 s{sW1K}, s{sW}, 10")
    a(f"s_lshl_b32 s{sWB}, s{sW}, 14")
    a(f"s_add_u32 s{sWA}, s{sWB}, {L_A}")
    a(f"s_add_u32 s{sWB}, s{sWB}, {L_B}")

def roles2():
    X_, I_ = sT0, sT1
    a(f"s_and_b32 s{X_}, s{sB}, 7")
    a(f"s_lshr_b32 s{I_}, s{sB}, 3")
    a(f"s_lshr_b32 s{sT2}, s{I_}, 3")
    a(f"s_lshl_b32 s{sST}, s{X_}, 2")
    a(f"s_add_u32 s{sST}, s{sST}, s{sT2}")
    a(f"s_lshr_b32 s{sT3}, s{X_}, 1")
    a(f"s_mul_i32 s{sT3}, s{sT3}, 7")
    a(f"s_and_b32 s{sT4}, s{X_}, 1")
    a(f"s_lshl_b32 s{sT5}, s{sT4}, 2")
    a(f"s_add_u32 s{sFT}, s{sT3}, s{sT5}")
    a(f"s_add_u32 s{sFT}, s{sFT}, s{sT2}")
    a(f"s_and_b32 s{sP3}, s{I_}, 3")
    a(f"s_add_u32 s{sT5}, s{sT5}, s{sP3}")
    a(f"s_add_u32 s{sKB}, s{sT3}, 3")
    a(f"s_cmp_lt_u32 s{I_}, 24")
    a(f"s_cselect_b32 s{sFT}, s{sFT}, s{sKB}")
    a(f"s_cselect_b32 s{sDT3}, s{sDT}, s{sT5}")
    a(f"s_mul_i32 s{sT4}, s{sT4}, 3")
    a(f"s_add_u32 s{sXC}, s{sT3}, s{sT4}")
    a(f"s_lshl_b32 s{sROT1}, s{X_}, 2")
    a(f"s_and_b32 s{sT3}, s{I_}, 3")
    a(f"s_lshr_b32 s{sP3}, s{I_}, 2")
    a(f"s_lshl_b32 s{sWI}, s{I_}, 2")
    a(f"s_add_u32 s{sWI}, s{sWI}, s{sW}")
    a(f"s_lshl_b32 s{sRED}, s{X_}, 2")
    a(f"s_add_u32 s{sRED}, s{sRED}, s{sT3}")
    a(f"s_lshl_b32 s{sRED}, s{sRED}, 1")
    a(f"s_add_u32 s{sRED}, s{sRED}, s{sW}")
    a(f"s_cmp_lt_u32 s{sW}, 2")
    a(f"s_cselect_b32 s{sRED}, s{sRED}, 99")
    a(f"s_cmp_eq_u32 s{sP3}, 7")
    a(f"s_cselect_b32 s{sRED}, s{sRED}, 99")
    a(f"s_mul_i32 s{sROT2}, s{X_}, 7")
    a(f"s_lshr_b32 s{sROT2}, s{sROT2}, 2")
    a(f"s_lshl_b32 s{sROT2}, s{sROT2}, 1")
    a(f"s_lshr_b32 s{sRH}, s{sW}, 1")
    a(f"s_and_b32 s{sKH}, s{sW}, 1")
    a(f"s_mov_b32 s{sTO}, 400000")
    a(f"s_mov_b32 s{sONES}, 0x3f803f80")
    a(f"s_mov_b32 s{sEPS6}, {fl(1e-6)}")
    a(f"s_mov_b32 s{sL2E}, {fl(LOG2E)}")

def late_srds():
    srd(SWO, sKA + 4, 512 * 512 * 2)
    srd(SW1, sKA + 8, 2048 * 1792 * 2)
    srd(SB1, sKA + 10, 1792 * 2)
    srd(SW2, sKA + 12, 1792 * 2048 * 2)
    srd(SB2, sKA + 14, 2048 * 2)
    srd(SOUT, SCODE, 2048 * 512 * 2)
    srd(SDBG, SCODE + 2, 256)

def code_prefetch():
    if opt("CODEPF", 1) == 1:
        a(f"s_getpc_b64 {sr(SCODE,2)}")
        a.label("L_PC")
        a(f"s_and_b32 s{SCODE+1}, s{SCODE+1}, 0xffff")
        a(f"s_mov_b32 s{SCODE+2}, L_END - L_PC")
        a(f"s_mov_b32 s{SCODE+3}, 0x20000")
        a(f"s_lshl_b32 s{sT0}, s{sWI}, 10")
        a(f"buffer_load_dwordx4 {ar(252,4)}, v{vL16}, {sr(SCODE,4)}, s{sT0} offen")
    srd(SCODE, SW1, 2048 * 1792 * 2)
    a(f"s_cmp_eq_u32 s{sP3}, 7")
    a(f"s_cselect_b32 s{SW1+2}, 0, s{SW1+2}")

def addresses():
    lin(sAKVP, [(sHP, 64 * 640), (sRB, 4 * 640), (sW, 640)], KVP[0])
    lin(sAPQW, [(sRB, 4 * 32768), (sW, 32768), (sHP, 2048)], PQ[0])
    lin(sAPQR, [(sST, 65536), (sRH, 32768), (sKH, 16384)], PQ[0])
    lin(sAKVF, [(sKH, 16 * 768)], KVF[0])
    lin(sASTW, [(sST, 8192), (sDT, 1024), (sKH, 512), (sRH, 256)], ST[0])
    lin(sASTR, [(sST, 8192), (sRH, 256)], ST[0])
    lin(sAHTW, [(sDT, 262144), (sST, 8192), (sRH, 4096), (sKH, 1024)], HT[0])
    lin(sAHTR, [(sDT3, 262144), (sW, 65536)], HT[0])
    lin(sAUW, [(sDT3, 229376), (sFT, 8192), (sRH, 4096), (sKH, 1024)], U[0])
    a(f"s_cmp_eq_u32 s{sP3}, 7")
    a(f"s_cselect_b32 s{sAUW}, {WS_BYTES:#x}, s{sAUW}")
    lin(sAUR, [(sDT, 229376), (sW, 57344)], U[0])
    lin(sAX2W, [(sST, 65536), (sRH, 32768), (sDT, 4096), (sKH, 2048)], X2)
    lin(sAX2R, [(sRB, 4 * 32768), (sW, 32768)], X2)
    a(f"s_add_u32 s{sAS2W}, s{sASTW}, {ST2 - ST[0]:#x}")
    lin(sAS2R, [(sRB, 2 * 8192), (sRH, 8192), (sKH, 256)], ST2)
    lin(sAWQT, [(sHP, 98304)], WQT)
    a(f"s_mov_b32 s{sGK}, {fl(-2.0 * 0.7978845608028654 * LOG2E * 0.044715)}")

def next_layer_addresses():
    for r, d in ((sAKVP, KVP[1] - KVP[0]), (sAPQW, PQ[1] - PQ[0]), (sAPQR, PQ[1] - PQ[0]), (sAKVF, KVF[1] - KVF[0]),
                 (sASTW, ST[1] - ST[0]), (sASTR, ST[1] - ST[0]), (sAHTW, HT[1] - HT[0]), (sAHTR, HT[1] - HT[0]),
                 (sAUW, U[1] - U[0]), (sAUR, U[1] - U[0])):
        a(f"s_add_u32 s{r}, s{r}, {d:#x}")

def kv_poison(P, L):
    r = sAKVP
    if L == 1:
        a(f"s_add_u32 s{sT1}, s{sAKVP}, {KVP[1]-KVP[0]:#x}"); r = sT1
    set_exec((1 << 40) - 1)
    ws_store4(P, r)
    a(f"s_mul_i32 s{sT0}, s{sRED}, 384")
    a(f"s_add_u32 s{sT0}, s{sT0}, {KVF[L]:#x}")
    a(f"s_cmp_ge_u32 s{sRED}, 64")
    a(f"s_cselect_b32 s{sT0}, {WS_BYTES:#x}, s{sT0}")
    set_exec((1 << 24) - 1)
    ws_store4(P, sT0)
    set_exec(FULL)
def tile_poison(P, r, delta, step):
    if delta:
        a(f"s_add_u32 s{sT0}, s{r}, {delta:#x}"); r = sT0
    for f in range(2): ws_store4(P, r, step * f)
def canary_poison(P):
    a(f"v_lshrrev_b32 v{vT0}, 3, v{vL}")
    a(f"v_mov_b32 v{vT1}, s{sAHTW}")
    for g, (r, d) in enumerate(((sAUW, 0), (sAHTW, HT[1]-HT[0]), (sAUW, U[1]-U[0]), (sAPQW, PQ[1]-PQ[0]-1024))):
        a(f"s_add_u32 s{sT0}, s{r}, {d & 0xffffffff:#x}")
        a(f"v_mov_b32 v{vT2}, s{sT0}")
        a(f"v_cmp_eq_u32 vcc, {g+1}, v{vT0}")
        a(f"v_cndmask_b32 v{vT1}, v{vT1}, v{vT2}, vcc")
    a(f"v_and_b32 v{vT0}, 7, v{vL}")
    a(f"v_lshl_add_u32 v{vT1}, v{vT0}, 4, v{vT1}")
    set_exec((1 << 40) - 1)
    a(f"buffer_store_dwordx4 {vr(P,4)}, v{vT1}, {sr(SWS,4)}, 0 offen offset:{2048+896} sc1")
    set_exec(FULL)
def st_poison(P):
    lin(sT0, [(sB, 3072), (sW, 768)], ST[0])
    set_exec((1 << 48) - 1)
    ws_store4(P, sT0)
    set_exec(FULL)
def set_poi(P):
    for i in range(4): a(f"v_mov_b32 v{P+i}, -1")

def misc_loads():
    lin(sT0, [(sST, 64), (sRH, 32)])
    a(f"v_and_b32 v{vT0}, 31, v{vL}")
    a(f"v_add_u32 v{vT0}, s{sT0}, v{vT0}")
    a(f"v_lshlrev_b32 v{vT1}, 1, v{vT0}")
    a(f"buffer_load_ushort v{vB2}, v{vT1}, {sr(SB2,4)}, 0 offen")
    a(f"v_lshlrev_b32 v{vT0}, 10, v{vT0}")
    a(f"v_lshl_add_u32 v{vOUT}, v{vHH}, 4, v{vT0}")
    lin(sT0, [(sDT, 128), (sKH, 64)])
    a(f"v_add_u32 v{vOUT}, s{sT0}, v{vOUT}")
    a(f"buffer_load_dwordx4 {vr(XR,4)}, v{vOUT}, {sr(SX,4)}, 0 offen")
    a(f"buffer_load_dwordx4 {vr(XR+4,4)}, v{vOUT}, {sr(SX,4)}, 0 offen offset:32")

def touch(srdn, rows_per_wave, lg, pitch, scol_emit, dst):
    n = rows_per_wave << lg
    scol_emit()
    a(f"v_min_u32 v{vT0}, {n-1}, v{vL}")
    a(f"v_lshrrev_b32 v{vT1}, {lg}, v{vT0}")
    a(f"v_mul_u32_u24 v{vT1}, {pitch}, v{vT1}")
    a(f"v_and_b32 v{vT0}, {(1<<lg)-1}, v{vT0}")
    a(f"v_lshl_add_u32 v{vT0}, v{vT0}, 7, v{vT1}")
    a(f"s_mul_i32 s{sT5}, s{sWI}, {rows_per_wave*pitch}")
    a(f"s_add_u32 s{sT4}, s{sT4}, s{sT5}")
    a(f"buffer_load_dword {dst}, v{vT0}, {sr(srdn,4)}, s{sT4} offen")
def touch_w1(dst): touch(SCODE, 16, 2, 3584, lambda: a(f"s_lshl_b32 s{sT4}, s{sXC}, 7"), dst)
def touch_w2(dst):
    def c2():
        a(f"s_and_b32 s{sT4}, s{sB}, 7"); a(f"s_lshl_b32 s{sT4}, s{sT4}, 9")
    touch(SW2, 16, 2, 4096, c2, dst)
def touch_w2h(dst, t0):
    a(f"s_lshr_b32 s{sT4}, s{sWI}, 3")
    a(f"s_add_u32 s{sT4}, s{sT4}, s{sROT2}")
    if t0: a(f"s_add_u32 s{sT4}, s{sT4}, {t0}")
    a(f"s_sub_u32 s{sT5}, s{sT4}, 28")
    a(f"s_cselect_b32 s{sT4}, s{sT4}, s{sT5}")
    a(f"s_and_b32 s{sT5}, s{sWI}, 3")
    a(f"s_mul_i32 s{sT5}, s{sT5}, 28")
    a(f"s_add_u32 s{sT4}, s{sT4}, s{sT5}")
    a(f"s_lshl_b32 s{sT4}, s{sT4}, 1")
    a(f"s_bfe_u32 s{sT5}, s{sWI}, 0x10002")
    a(f"s_add_u32 s{sT4}, s{sT4}, s{sT5}")
    a(f"s_lshl_b32 s{sT4}, s{sT4}, 15")
    a(f"s_and_b32 s{sT5}, s{sB}, 7")
    a(f"s_lshl_b32 s{sT5}, s{sT5}, 9")
    a(f"s_add_u32 s{sT4}, s{sT4}, s{sT5}")
    a(f"s_cmp_eq_u32 s{sP3}, 7")
    a(f"s_cselect_b32 s{sT4}, 0x10000000, s{sT4}")
    a(f"v_min_u32 v{vT0}, 31, v{vL}")
    a(f"v_lshrrev_b32 v{vT1}, 2, v{vT0}")
    a(f"v_and_b32 v{vT0}, 3, v{vT0}")
    a(f"v_lshlrev_b32 v{vT0}, 7, v{vT0}")
    a(f"v_lshl_add_u32 v{vT0}, v{vT1}, 12, v{vT0}")
    a(f"buffer_load_dword {dst}, v{vT0}, {sr(SW2,4)}, s{sT4} offen")
def touch_wo(dst): touch(SWO, 4, 3, 1024, lambda: a(f"s_mov_b32 s{sT4}, 0"), dst)
def touches(L, where):
    dst = "a25" if where in (1, 2, 3, 6, 7, 8) else None
    if optL("T1", L, 6, 0) == where: touch_w1(dst + "2" if dst else "v31")
    if optL("T2", L, 0, 0) == where: touch_w2(dst + "3" if dst else "v31")
    if optL("T2H", L, 9, 0) == where: touch_w2h(dst + "3" if dst else "v31", 0)
    if optL("T2G", L, 0, 0) == where: touch_w2h(dst + "3" if dst else "v31", 14)

def split2(dst, src, t0):
    a(f"v_cvt_pk_bf16_f32 v{t0}, v{src}, v{src}")
    a(f"v_and_b32 v{t0}, 0xffff0000, v{t0}")
    a(f"v_sub_f32 v{dst}, v{src}, v{t0}")
    a(f"v_cvt_pk_bf16_f32 v{dst}, v{t0}, v{dst}")

def stats_to_frags(S, Q, RA):
    a(f"v_mul_f32 v{S}, {fl(-1/512)}, v{S}")
    a(f"v_mul_f32 v{Q}, {fl(1/512)}, v{Q}")
    a(f"v_cmp_eq_u32 vcc, 0, v{vHH}")
    a(f"v_fma_f32 v{Q}, -v{S}, v{S}, v{Q}")
    a(f"v_max_f32 v{Q}, 0, v{Q}")
    a(f"v_add_f32 v{Q}, {fl(1e-5)}, v{Q}")
    a(f"v_rsq_f32 v{vRS}, v{Q}")
    a(f"v_cndmask_b32 v{S}, 0, v{S}, vcc")
    a(f"v_cvt_pk_bf16_f32 v{MA}, v{S}, v{S}")
    a(f"v_cndmask_b32 v{Q}, 0, v{vRS}, vcc")
    a(f"v_and_b32 v{vT0}, 0xffff0000, v{MA}")
    a(f"v_sub_f32 v{S}, v{S}, v{vT0}")
    a(f"v_cvt_pk_bf16_f32 v{MA+1}, v{S}, v{S}")
    split2(RA, Q, vT0)

def stats_check(SB):
    a(f"v_max3_u32 v{vT3}, v{SB+1}, v{SB+3}, v{SB+5}")
    a(f"v_max3_u32 v{vT3}, v{vT3}, v{SB+7}, v{SB+9}")
    a(f"v_max3_u32 v{vT3}, v{vT3}, v{SB+11}, v{SB+13}")
    a(f"v_max_u32 v{vT3}, v{vT3}, v{SB+15}")
    a(f"v_cmp_eq_u32 vcc, -1, v{vT3}")
def stats_sum(SB):
    for n in (4, 2, 1):
        for p in range(n): pk("add", SB+2*p, vr(SB+2*p,2), vr(SB+2*(p+n),2))
    a(f"v_mov_b32 v{SB+2}, v{SB}")
    a(f"v_mov_b32 v{SB+3}, v{SB+1}")
    a(f"v_permlane32_swap_b32 v{SB}, v{SB+2}")
    a(f"v_permlane32_swap_b32 v{SB+1}, v{SB+3}")
    pk("add", SB, vr(SB,2), vr(SB+2,2))

A1B = 128
def a1_issue():
    a(f"s_mov_b32 s{sT3}, s{sKB}")
    for p in range(16):
        a(f"buffer_load_dwordx4 {vr(A1B+4*p,4)}, v{vL16}, {sr(SWS,4)}, s{sT3} offen offset:{(p&1)*2560} sc1")
        if p & 1 and p < 15: a(f"s_add_u32 s{sT3}, s{sT3}, {2*2560}")
def a1_early(L):
    skip = a.newlabel("NOA1E")
    a(f"s_cmp_ge_u32 s{sRED}, 64")
    a(f"s_cbranch_scc1 {skip}")
    with cond():
        a(f"s_lshr_b32 s{sKB}, s{sRED}, 2")
        a(f"s_mul_i32 s{sKB}, s{sKB}, {16*2560}")
        a(f"s_and_b32 s{sT2}, s{sRED}, 3")
        a(f"s_mul_i32 s{sT2}, s{sT2}, 640")
        a(f"s_add_u32 s{sKB}, s{sKB}, s{sT2}")
        a(f"s_add_u32 s{sKB}, s{sKB}, {KVP[L]:#x}")
        if opt("A1C", 0):
            a(f"v_and_b32 v{vT1}, 15, v{vL}")
            a(f"v_mul_u32_u24 v{vT1}, 2560, v{vT1}")
            a(f"buffer_load_dword v{vT3}, v{vT1}, {sr(SWS,4)}, s{sKB} offen offset:544 sc1")
        else:
            set_exec((1 << 35) - 1)
            a1_issue()
            set_exec(FULL)
    a.label(skip)
def a1(L, younger):
    a.c("======== A1 reducer")
    skip = a.newlabel("NOA1")
    a(f"s_cmp_ge_u32 s{sRED}, 64")
    a(f"s_cbranch_scc1 {skip}")
    with cond():
        B = A1B
        a(f"s_mul_i32 s{sT2}, s{sRED}, 384")
        a(f"s_add_u32 s{sT2}, s{sT2}, {KVF[L]:#x}")
        a(f"v_lshlrev_b32 v{vT2}, 3, v{vL}")
        set_exec((1 << 35) - 1)
        def check():
            a(f"v_max3_u32 v{vT3}, v{B}, v{B+4}, v{B+8}")
            a(f"v_min3_u32 v{vT1}, v{B}, v{B+4}, v{B+8}")
            for p in range(3, 15, 2):
                a(f"v_max3_u32 v{vT3}, v{vT3}, v{B+4*p}, v{B+4*p+4}")
                a(f"v_min3_u32 v{vT1}, v{vT1}, v{B+4*p}, v{B+4*p+4}")
            a(f"v_max_u32 v{vT3}, v{vT3}, v{B+60}")
            a(f"v_min_u32 v{vT1}, v{vT1}, v{B+60}")
            a(f"v_cmp_eq_u32 vcc, -1, v{vT3}")
            a(f"v_readlane_b32 s{sT0}, v{vT3}, 34")
            a(f"v_readlane_b32 s{sT1}, v{vT1}, 34")
            a(f"s_xor_b32 s{sT0}, s{sT0}, s{sNON}")
            a(f"s_xor_b32 s{sT1}, s{sT1}, s{sNON}")
            a(f"s_or_b32 s{sT0}, s{sT0}, s{sT1}")
            a(f"s_or_b32 vcc_lo, vcc_lo, s{sT0}")
            a(f"s_or_b64 vcc, vcc, vcc")
        a.vm_done = min(a.vm_done, a.vm - younger - 1)
        if opt("A1C", 0):
            poll(lambda: a(f"buffer_load_dword v{vT3}, v{vT1}, {sr(SWS,4)}, s{sKB} offen offset:544 sc1"),
                 lambda: a(f"v_cmp_ne_u32 vcc, s{sNON}, v{vT3}"), 0x21, pre=a.vm - younger - 1)
            poll(a1_issue, check, 0x20)
        else:
            poll(a1_issue, check, 0x20, pre=a.vm - younger - 1)
        n = 16
        while n > 1:
            n //= 2
            for p in range(n):
                for j in (0, 2): pk("add", B+4*p+j, vr(B+4*p+j,2), vr(B+4*(p+n)+j,2))
        a(f"v_cvt_pk_bf16_f32 v{B+4}, v{B}, v{B+1}")
        a(f"v_cvt_pk_bf16_f32 v{B+5}, v{B+2}, v{B+3}")
        a(f"v_mov_b32_dpp v{B+6}, v{B+4} quad_perm:[1,1,3,3] row_mask:0xf bank_mask:0xf")
        a(f"v_mov_b32_dpp v{B+7}, v{B+5} quad_perm:[1,1,3,3] row_mask:0xf bank_mask:0xf")
        a(f"v_writelane_b32 v{B+4}, s{sNON}, 34")
        set_exec(0x555555555555)
        a(f"buffer_store_dwordx4 {vr(B+4,4)}, v{vT2}, {sr(SWS,4)}, s{sT2} offen sc1")
        set_exec(FULL)
        a("s_nop 1")
    a.label(skip)
    stamp("a1")

XF = 128
def p1(L):
    ACCK, ACCV, RR = 32, 48, 64
    VV, PK, T1 = 80, 88, 96
    S0, S1, Q0, Q1 = 80, 81, 82, 83
    CF = 84
    CFV, CFQ, RA = 112, 116, 120
    vTQ, vTV = 124, 125
    vW, vXA, vXB = 126, 127, 96
    vCQ, vCV = 97, 98
    vOA, vOB = vTA, vTB
    vTQ2, vTV2 = vTA, vTB
    vKW, vKR = 92, 93
    XA = 88
    vKW2, vKR2 = vT2, 127
    POI = 100
    WFR = 216; NWF = 4; ONESF = 248; CG = 200; CK, CV, CQ = 152, 168, 184
    a.c(f"======== P1 layer {L}")
    xid = {}; wid = {}
    toff = 256
    def addr_setup():
        if L == 0:
            a(f"v_bfe_u32 v{vT0}, v{vL}, 2, 2")
            a(f"v_lshl_add_u32 v{vT0}, v{vHH}, 3, v{vT0}")
            a(f"v_lshlrev_b32 v{vTQ}, 6, v{vT0}")
            a(f"v_bfe_u32 v{vT1}, v{vL}, 4, 1")
            a(f"v_lshl_add_u32 v{vTQ}, v{vT1}, 5, v{vTQ}")
            a(f"v_and_b32 v{vT1}, 3, v{vL}")
            a(f"v_lshl_add_u32 v{vTQ}, v{vT1}, 3, v{vTQ}")
        else:
            a(f"s_and_b32 s{sT5}, s{sROTX}, {opt('XROT', 1)}")
            a(f"s_lshl_b32 s{sT5}, s{sT5}, 14")
            a(f"s_add_u32 s{sAX2R}, s{sAX2R}, s{sT5}")
            a(f"v_add_u32 v{vTQ}, s{sT5}, v{vL16}")
            a(f"v_xor_b32 v{vTQ2}, 16384, v{vTQ}")
            a(f"v_add_u32 v{vTV2}, 65536, v{vTQ2}")
        a(f"v_add_u32 v{vTV}, 65536, v{vTQ}")
        for i in range(4): a(f"v_accvgpr_write_b32 a{ONESF+i}, s{sONES}")
        for r in ([MA + 2, MA + 3] if L == 0 else []) + [RA + 1, RA + 2, RA + 3, CF + 2, CF + 3, CFV + 2, CFV + 3, CFQ + 2, CFQ + 3]: a(f"v_mov_b32 v{r}, 0")
    def kv_addr():
        a(f"v_bfe_u32 v{vT0}, v{vL}, 4, 1")
        a(f"v_lshl_add_u32 v{vT0}, v{vT0}, 1, v{vHH}")
        a(f"v_mul_u32_u24 v{vT0}, 17, v{vT0}")
        a(f"v_and_b32 v{vT1}, 15, v{vL}")
        a(f"v_add_u32 v{vT0}, v{vT0}, v{vT1}")
        a(f"v_lshlrev_b32 v{vT0}, 5, v{vT0}")
        a(f"v_add_u32 v{vKW2}, s{sWA}, v{vT0}")
        a(f"s_mul_i32 s{sT0}, s{sW}, 544")
        a(f"s_add_u32 s{sT0}, s{sT0}, {L_A + SCR}")
        a(f"v_add_u32 v{vKR2}, s{sT0}, v{vL16}")
    rg = {}
    def RG(s):
        b = WFR + (s % NWF) * 8
        if L == 0:
            o = s * 1024
            a(f"ds_read_b64_tr_b16 {ar(b,2)}, v{vTQ} offset:{32768+o}")
            a(f"ds_read_b64_tr_b16 {ar(b+2,2)}, v{vTQ} offset:{32768+o+toff}")
            a(f"ds_read_b64_tr_b16 {ar(b+4,2)}, v{vTV} offset:{o}")
            rg[s] = a(f"ds_read_b64_tr_b16 {ar(b+6,2)}, v{vTV} offset:{o+toff}")
        else:
            o = (s & 15) * 1024
            q_, v_ = (vTQ2, vTV2) if s >= 16 else (vTQ, vTV)
            a(f"ds_read_b128 {ar(b,4)}, v{q_} offset:{32768+o}")
            rg[s] = a(f"ds_read_b128 {ar(b+4,4)}, v{v_} offset:{o}")
    if L == 0:
        a(f"v_lshrrev_b32 v{vT0}, 2, v{vL}")
        a(f"s_lshl_b32 s{sT0}, s{sW}, 4")
        a(f"v_add_u32 v{vT0}, s{sT0}, v{vT0}")
        a(f"v_mul_u32_u24 v{vW}, 3072, v{vT0}")
        a(f"v_and_b32 v{vT0}, 3, v{vL}")
        a(f"v_lshl_add_u32 v{vW}, v{vT0}, 4, v{vW}")
        a(f"s_lshl_b32 s{sT0}, s{sHP}, 6")
        a(f"v_add_u32 v{vW}, s{sT0}, v{vW}")
        lin(sT0, [(sRB, 131072), (sW, 32768)])
        a(f"v_lshrrev_b32 v{vT0}, 3, v{vL}")
        a(f"v_lshlrev_b32 v{vT0}, 10, v{vT0}")
        a(f"v_add_u32 v{vT0}, s{sT0}, v{vT0}")
        a(f"v_and_b32 v{vT1}, 7, v{vL}")
        a(f"v_lshrrev_b32 v{vT2}, 4, v{vL}")
        a(f"v_xor_b32 v{vT1}, v{vT1}, v{vT2}")
        a(f"v_lshl_add_u32 v{vXA}, v{vT1}, 4, v{vT0}")
        a(f"v_xor_b32 v{vXB}, 64, v{vXA}")
        a(f"v_add_u32 v{vXB}, {8192-1024}, v{vXB}")
        a("s_waitcnt lgkmcnt(0)")
        srd(SX, sKA + 0, 2048 * 512 * 2)
        srd(SWQKV, sKA + 2, 512 * 1536 * 2)
        def x_issue(j):
            a(f"s_add_u32 s{sKB}, s{sROTX}, {j}")
            a(f"s_and_b32 s{sKB}, s{sKB}, 7")
            a(f"s_lshl_b32 s{sT1}, s{sKB}, 7")
            a(f"s_add_u32 m0, s{sWB}, {(j&3)*4096}")
            a(f"s_mul_i32 s{sSO}, s{sKB}, {64*3072}")
            a(f"buffer_load_dwordx4 v{vXA}, {sr(SX,4)}, s{sT1} offen lds")
            a(f"buffer_load_dwordx4 v{vXB}, {sr(SX,4)}, s{sT1} offen offset:1024 lds")
            a(f"s_add_u32 m0, s{sWB}, {(j&3)*4096+2048}")
            a(f"s_add_u32 s{sT1}, s{sT1}, 16384")
            a(f"buffer_load_dwordx4 v{vXA}, {sr(SX,4)}, s{sT1} offen lds")
            xid[j] = a(f"buffer_load_dwordx4 v{vXB}, {sr(SX,4)}, s{sT1} offen offset:1024 lds")
        def w_issue(j):
            for seg in (1, 2, 0):
                a(f"s_add_u32 m0, s{sW1K}, {seg*32768 - seg*1024 + j*4096}")
                wid[j] = a(f"buffer_load_dwordx4 v{vW}, {sr(SWQKV,4)}, s{sSO} offen offset:{seg*1024} lds")
        def wo_issue(c):
            for k in range(2):
                j = 2 * c + k
                a(f"s_add_u32 m0, s{sWB}, {j*2048}")
                if j == 0: a(f"s_lshl_b32 s{sSO}, s{sW}, 17")
                else: a(f"s_add_u32 s{sSO}, s{sSO}, 16384")
                a(f"buffer_load_dwordx4 v{vOA}, {sr(SWO,4)}, s{sSO} offen lds")
                G["wo"] = a(f"buffer_load_dwordx4 v{vOB}, {sr(SWO,4)}, s{sSO} offen offset:1024 lds")
        x_issue(0); w_issue(0)
        srd(SWS, 100, WS_BYTES)
        roles2()
        late_srds()
        x_issue(1); w_issue(1)
        touch_wo("a254")
        code_prefetch()
        touches(0, 6)
        for i in range(4): a(f"v_mov_b32 v{POI+i}, -1")
        addresses()
        skip = a.newlabel("NONON")
        a(f"s_cmp_lg_u32 s{sWI}, 0")
        a(f"s_cselect_b32 s{sT0}, 1, s{sB}")
        a(f"s_cmp_lg_u32 s{sT0}, 0")
        a(f"s_cbranch_scc1 {skip}")
        with cond():
            a(f"buffer_load_dword v{vKW}, off, {sr(SWS,4)}, 0 offset:{NONCE} sc1")
        a.label(skip)
        addr_setup()
        a(f"v_add_u32 v{vCQ}, s{sW1K}, v{vTQ}")
        a(f"v_add_u32 v{vCV}, s{sW1K}, v{vTV}")
        for r in (S0, S1, Q0, Q1): a(f"v_mov_b32 v{r}, 0")
        a(f"v_and_b32 v{vT0}, 31, v{vL}")
        a(f"v_bfe_u32 v{vT1}, v{vL}, 1, 3")
        a(f"v_xor_b32 v{vT1}, v{vT1}, v{vHH}")
        a(f"v_lshlrev_b32 v{vT0}, 7, v{vT0}")
        a(f"v_add_u32 v{vT0}, s{sWB}, v{vT0}")
        for t in range(4):
            a(f"v_xor_b32 v{vT2}, {2*t}, v{vT1}")
            a(f"v_lshl_add_u32 v{XA+t}, v{vT2}, 4, v{vT0}")
        a(f"s_lshl_b32 s{sT4}, s{sDT}, 7")
        dma_voff(vOA, vOB, 1024, sT4)
        tr_base(vWTA, vWTB, sRH, f"s{sWA}")
        pump.setup(1, 0)
        SCHED = {0: {0: [2, 3], 1: [4, 5], 2: [6], 3: [7]}, 1: {0: [2], 1: [3, 4], 2: [5, 6], 3: [7]}, 2: {0: [2, 3, 4], 1: [5], 2: [6], 3: [7]},
                 3: {0: [2], 1: [3], 2: [4], 3: [5], 4: [6], 5: [7]}, 4: {0: [2, 3], 1: [4], 2: [5], 3: [6], 4: [7]}}[opt("SCHED", 4)]
        JL = max(SCHED)
        cgid = {}
        def CGr(j):
            o = j * 4096
            a(f"ds_read_b64_tr_b16 {ar(CG,2)}, v{vCQ} offset:{32768+o}")
            a(f"ds_read_b64_tr_b16 {ar(CG+2,2)}, v{vCQ} offset:{32768+o+toff}")
            a(f"ds_read_b64_tr_b16 {ar(CG+4,2)}, v{vCV} offset:{o}")
            a(f"ds_read_b64_tr_b16 {ar(CG+6,2)}, v{vCV} offset:{o+toff}")
            a(f"ds_read_b64_tr_b16 {ar(CG+8,2)}, v{vCQ} offset:{o}")
            cgid[j] = a(f"ds_read_b64_tr_b16 {ar(CG+10,2)}, v{vCQ} offset:{o+toff}")
        def colsum(j):
            a.wait(lg=cgid[j])
            for k, c in enumerate((CK, CV, CQ)):
                mfma(ar(c,16), ar(ONESF,4), ar(CG+4*k,4), "0" if j == 0 else ar(c,16))
        def xreads(j):
            a.wait(vm=xid[j])
            return [a(f"ds_read_b128 {vr(XF+16*j+4*t,4)}, v{XA+t} offset:{(j&3)*4096}") for t in range(4)]
        xr = xreads(0)
        a.wait(vm=wid[0])
        a("s_barrier")
        stamp("p1_first")
        CGr(0); RG(0); RG(1); RG(2)
        colsum(0)
        CPY = 104; CS4 = 96
        initld = None
        for j in range(8):
            for t in range(4):
                a.wait(lg=xr[t])
                for k in range(4 if not opt("XNOD", 0) else 0):
                    r = XF + 16 * j + 4 * t + k
                    a(f"v_dot2_f32_bf16 v{S0+(k&1)}, v{r}, s{sONES}, v{S0+(k&1)}")
                    a(f"v_dot2_f32_bf16 v{Q0+(k&1)}, v{r}, v{r}, v{Q0+(k&1)}")
            if j == 7:
                a(f"s_lshr_b32 s{sT0}, s{sRB}, 1")
                a(f"s_sub_u32 s{sT0}, s{sT0}, s{sROTX}")
                a(f"s_and_b32 s{sT0}, s{sT0}, 7")
                a(f"s_cmp_eq_u32 s{sT0}, 0")
                a(f"s_cselect_b32 s{sT1}, 4096, 0")
                a(f"s_add_u32 s{sT1}, s{sT1}, {L_A}")
                a(f"v_add_u32 v{vT1}, s{sT1}, v{vL16}")
                a(f"v_add_u32 v{vT0}, s{sW1K}, v{vT1}")
                a(f"v_accvgpr_read_b32 v{CS4}, a{CK}")
                a(f"v_accvgpr_read_b32 v{CS4+1}, a{CV}")
                a(f"v_accvgpr_read_b32 v{CS4+2}, a{CQ}")
                cw = a(f"ds_write_b128 v{vT0}, {vr(CS4,4)}")
            for s in range(4 * j, 4 * j + 4):
                t = s & 3
                a.wait(lg=rg[s])
                b = WFR + (s % NWF) * 8
                x = vr(XF + 4 * s, 4)
                mfma(vr(ACCK,16), x, ar(b,4), "0" if s == 0 else vr(ACCK,16))
                if s + 3 < 32: RG(s + 3)
                if t == 1 and j < 7 and not opt("XNOC", 0): CGr(j + 1)
                if t == 2 and j < 7: xr = xreads(j + 1)
                if j == 7 and t == 1:
                    for w in range(4): cr = a(f"ds_read_b128 {vr(RR+4*w,4)}, v{vT1} offset:{1024*w}")
                    a(f"s_lshl_b32 s{sT0}, s{sT0}, 12")
                    a(f"s_and_b32 s{sT1}, s{sRB}, 1")
                    a(f"s_lshl_b32 s{sT1}, s{sT1}, 11")
                    a(f"s_add_u32 s{sT0}, s{sT0}, s{sT1}")
                    a(f"s_min_u32 s{sT2}, s{sW}, 2")
                    a(f"s_lshl_b32 s{sT2}, s{sT2}, 15")
                    a(f"s_add_u32 s{sT0}, s{sT0}, s{sT2}")
                    a(f"v_lshlrev_b32 v{vT1}, 8, v{vHH}")
                    a(f"v_sub_u32 v{vT0}, v{vTQ}, v{vT1}")
                    a(f"v_add_u32 v{vT0}, s{sT0}, v{vT0}")
                    for k in range(4): cp = a(f"ds_read_b64_tr_b16 {vr(CPY+2*k,2)}, v{vT0} offset:{512*k}")
                if j == 7 and t == 2:
                    a.wait(lg=cr)
                    for k in range(3):
                        a(f"v_add_f32 v{RR+k}, v{RR+k}, v{RR+4+k}")
                        a(f"v_add_f32 v{RR+8+k}, v{RR+8+k}, v{RR+12+k}")
                if j == 7 and t == 3:
                    split2(CKP, RR, vT0)
                    split2(CVP, RR + 1, vT1)
                mfma(vr(ACCV,16), x, ar(b+4,4), "0" if s == 0 else vr(ACCV,16))
                if t == 0:
                    if j < 7: a.wait(vm=wid[j + 1])
                    else: a.wait(lg=cw)
                    a("s_barrier")
                    if j == 1:
                        skip = a.newlabel("NOINIT")
                        a(f"s_cmp_lg_u32 s{sWI}, 0")
                        a(f"s_cselect_b32 s{sT0}, 1, s{sB}")
                        a(f"s_cmp_lg_u32 s{sT0}, 0")
                        a(f"s_cbranch_scc1 {skip}")
                        with cond():
                            a(f"v_add_u32 v{vKW}, 1, v{vKW}")
                            a(f"v_and_b32 v{vKW}, 0x3fffffff, v{vKW}")
                            a(f"v_or_b32 v{vKW}, 0x40000000, v{vKW}")
                            set_exec(1)
                            a(f"buffer_store_dword v{vKW}, off, {sr(SDBG,4)}, 0 sc1")
                            a(f"buffer_store_dword v{vKW}, off, {sr(SWS,4)}, 0 offset:{NONCE} sc1")
                            set_exec(FULL)
                        a.label(skip)
                if t <= 2 and j in SCHED and t < len(SCHED[j]):
                    x_issue(SCHED[j][t]); w_issue(SCHED[j][t])
                if t == 1 and j >= 4 and opt("WOP", 0) == 0: wo_issue(j - 4)
                if t == 3 and j == JL:
                    misc_loads()
                    touches(0, 8)
                if t == 3 and opt("SLOTST", 0) and j in (1, 3, 6): stamp(f"it{j}")
                if t == 2:
                    if j == 3: touches(0, 7)
                    if j == 5:
                        st_poison(POI); kv_poison(POI, 0); canary_poison(POI)
                    if j == 6:
                        kv_addr()
                        tile_poison(POI, sAPQW, 0, 1024)
                    if j == 6:
                        initld = a(f"buffer_load_dword v{vT3}, off, {sr(SDBG,4)}, 0 sc1")
                    if j == 7:
                        for k in range(3): a(f"v_add_f32 v{RR+k}, v{RR+k}, v{RR+8+k}")
                        a(f"s_lshl_b32 s{sT1}, s{sRB}, 11")
                        a(f"s_add_u32 s{sT3}, s{sAWQT}, s{sT2}")
                        a(f"s_add_u32 s{sT3}, s{sT3}, s{sT1}")
                        a.wait(lg=cp)
                        ws_store4(CPY, sT3); ws_store4(CPY + 4, sT3, 1024)
                if t == 3 and j < 7 and not opt("XNOC", 0): colsum(j + 1)
        stamp("p1_gemm")
        a(f"v_add_f32 v{S0}, v{S0}, v{S1}")
        a(f"v_add_f32 v{Q0}, v{Q0}, v{Q1}")
        a(f"v_mov_b32 v{S1}, v{S0}")
        a(f"v_mov_b32 v{Q1}, v{Q0}")
        for c, p in ((CF, CKP), (CFV, CVP)):
            a(f"v_mov_b32 v{c}, v{p}"); a(f"v_mov_b32 v{c+1}, v{p}")
        a(f"v_permlane32_swap_b32 v{S0}, v{S1}")
        a(f"v_permlane32_swap_b32 v{Q0}, v{Q1}")
        a(f"v_add_f32 v{S0}, v{S0}, v{S1}")
        a(f"v_add_f32 v{Q0}, v{Q0}, v{Q1}")
        split2(CQP, RR + 2, vT1)
        stats_to_frags(S0, Q0, RA)
        mfma(vr(ACCK,16), vr(MA,4), vr(CF,4), vr(ACCK,16))
        mfma(vr(RR,16), vr(RA,4), ar(ONESF,4), "0")
        mfma(vr(ACCV,16), vr(MA,4), vr(CFV,4), vr(ACCV,16))
        touches(0, 1)
    else:
        addr_setup()
        next_layer_addresses()
        for c, p in ((CF, CKP), (CFV, CVP)):
            a(f"v_mov_b32 v{c}, v{p}"); a(f"v_mov_b32 v{c+1}, v{p}")
        a(f"v_and_b32 v{vT0}, 31, v{vL}")
        a(f"v_lshlrev_b32 v{vT0}, 3, v{vT0}")
        a(f"v_lshl_add_u32 v{vXA}, v{vHH}, 12, v{vT0}")
        a(f"s_lshl_b32 s{sT2}, s{sW}, 13")
        a(f"s_add_u32 s{sKB}, s{sAWQT}, s{sT2}")
        SB = T1
        def issue():
            for p in range(8): a(f"buffer_load_dwordx2 {vr(SB+2*p,2)}, v{vXA}, {sr(SWS,4)}, s{sAS2R} offen offset:{p*512} sc1")
        pump.setup(1, 1)
        def XL(s):
            xid[s] = a(f"buffer_load_dwordx4 {vr(XF+4*s,4)}, v{vL16}, {sr(SWS,4)}, s{sSO} offen offset:{(s&3)*1024} sc1")
            if s == 15: a(f"s_xor_b32 s{sSO}, s{sAX2R}, 16384")
            elif s & 3 == 3 and s < 31: a(f"s_add_u32 s{sSO}, s{sSO}, 4096")
        LA = opt("LA1", 10)
        vMX = vW
        def window():
            a(f"s_mov_b32 s{sSO}, s{sAX2R}")
            for s in range(LA): XL(s)
        spec(issue, lambda: stats_check(SB), window, 0x40, a.newlabel("XR0"), on=opt("SPEC", 15) & 8)
        stamp("p1_flag")
        a("s_barrier")
        stats_sum(SB)
        a(f"v_mov_b32 v{MA+2}, 0"); a(f"v_mov_b32 v{MA+3}, 0")
        stats_to_frags(SB, SB + 1, RA)
        mfma(vr(RR,16), vr(RA,4), ar(ONESF,4), "0")
        go = a.newlabel("XGO"); redo = a.newlabel("XREDO")
        a(f"s_branch {go}")
        a.label(redo)
        sv = dict(xid)
        with cond():
            window()
        xid.update(sv)
        a.label(go)
        RG(0); RG(1); RG(2)
        a(f"v_mov_b32 v{vMX}, 0")
        a(f"s_mov_b32 s{sT3}, s{sKB}")
        mfma(vr(ACCK,16), vr(MA,4), vr(CF,4), "0")
        mfma(vr(ACCV,16), vr(MA,4), vr(CFV,4), "0")
        qid = None
        for s in range(32):
            a.wait(vm=xid[s], lg=rg[s])
            b = WFR + (s % NWF) * 8
            x = vr(XF + 4 * s, 4)
            mfma(vr(ACCK,16), x, ar(b,4), vr(ACCK,16))
            if s + LA < 32: XL(s + LA)
            elif s + LA - 32 < 8:
                j = s + LA - 32
                if j == 4: a(f"s_add_u32 s{sT3}, s{sT3}, 4096")
                if j & 3 == 0: a(f"s_add_u32 m0, s{sT2}, {j*1024}")
                qid = a(f"buffer_load_dwordx4 v{vL16}, {sr(SWS,4)}, s{sT3} offen offset:{(j&3)*1024} lds")
            mfma(vr(ACCV,16), x, ar(b+4,4), vr(ACCV,16))
            if s & 1: a(f"v_max3_u32 v{vMX}, v{vMX}, v{XF+4*s-4}, v{XF+4*s}")
            if s + 3 < 32: RG(s + 3)
            if s == 30: kv_addr()
        verify(vMX, redo)
        stamp("p1_gemm")
    for q in range(8): pk("fma", ACCK+2*q, vr(ACCK+2*q,2), vr(RR+2*q,2), sr(sEPS6,2), hi=[1,1,0])
    for q in range(8): pk("mul", T1+2*q, vr(ACCK+2*q,2), sr(sL2E,2), hi=[1,0])
    for i in range(16):
        a(f"v_exp_f32_e64 v{T1+i}, v{T1+i} clamp")
        a(f"v_max_f32 v{ACCK+i}, s{sEPS6}, v{ACCK+i}")
    for q in range(8): pk("add", ACCK+2*q, vr(ACCK+2*q,2), vr(T1+2*q,2))
    for q in range(8): a(f"v_cvt_pk_bf16_f32 v{PK+q}, v{ACCK+2*q}, v{ACCK+2*q+1}")
    ZA = T1
    for q in range(4): pk("mul", ACCV+2*q, vr(ACCV+2*q,2), vr(RR+2*q,2))
    for q in range(4, 8): pk("mul", ACCV+2*q, vr(ACCV+2*q,2), vr(RR+2*q,2))
    mfma(vr(ZA,16), vr(PK,4), ar(ONESF,4), "0")
    for q in range(4): a(f"v_cvt_pk_bf16_f32 v{VV+q}, v{ACCV+2*q}, v{ACCV+2*q+1}")
    mfma(vr(ZA,16), vr(PK+4,4), ar(ONESF,4), vr(ZA,16))
    for q in range(4, 8): a(f"v_cvt_pk_bf16_f32 v{VV+q}, v{ACCV+2*q}, v{ACCV+2*q+1}")
    KVA = RR
    a(f"v_and_b32 v{vT0}, 16, v{vL}")
    a(f"v_cmp_ne_u32 vcc, 0, v{vT0}")
    mfma(vr(KVA,16), vr(PK,4), vr(VV,4), "0")
    mfma(vr(KVA,16), vr(PK+4,4), vr(VV+4,4), vr(KVA,16))
    a("s_barrier")
    for j in range(8): a(f"v_cndmask_b32 v{ACCK+8+j}, v{ZA+j}, v{ZA+8+j}, vcc")
    set_exec(0x0001000100010001)
    a(f"ds_write_b128 v{vKW2}, {vr(ACCK+8,4)} offset:{SCR+512}")
    a(f"ds_write_b128 v{vKW2}, {vr(ACCK+12,4)} offset:{SCR+528}")
    set_exec(FULL)
    for j in range(4): a(f"v_cndmask_b32 v{ACCK+j}, v{KVA+j}, v{KVA+8+j}, vcc")
    a(f"ds_write_b128 v{vKW2}, {vr(ACCK,4)} offset:{SCR}")
    for j in range(4, 8): a(f"v_cndmask_b32 v{ACCK+j}, v{KVA+j}, v{KVA+8+j}, vcc")
    a(f"ds_write_b128 v{vKW2}, {vr(ACCK+4,4)} offset:{SCR+16}")
    if L == 0:
        def issue(): a(f"buffer_load_dword v{vT3}, off, {sr(SDBG,4)}, 0 sc1")
        def check(): a(f"v_cmp_eq_u32 vcc, 0, v{vT3}")
        poll(issue, check, 0x10, pre=initld)
        a(f"v_readfirstlane_b32 s{sNON}, v{vT3}")
    NQ = 8; QLA = 6
    rq = {}
    def RQ(s):
        b = WFR + (s % NQ) * 4
        if L == 0:
            a(f"ds_read_b64_tr_b16 {ar(b,2)}, v{vTQ} offset:{s*1024}")
            rq[s] = a(f"ds_read_b64_tr_b16 {ar(b+2,2)}, v{vTQ} offset:{s*1024+toff}")
        else:
            rq[s] = a(f"ds_read_b128 {ar(b,4)}, v{vTQ2 if s >= 16 else vTQ} offset:{(s&15)*1024}")
    a(f"v_mov_b32 v{CFQ}, v{CQP}"); a(f"v_mov_b32 v{CFQ+1}, v{CQP}")
    if L == 1: a.wait(vm=qid)
    a.wait_lg_all()
    a("s_barrier")
    for w in range(4): kr = a(f"ds_read_b128 {vr(RR+4*w,4)}, v{vKR2} offset:{16384*w}")
    for s in range(QLA): RQ(s)
    ACCQ = ACCK
    mfma(vr(ACCQ,16), vr(CFQ,4), vr(MA,4), "0")
    a.wait(lg=kr)
    for j in range(4): a(f"v_add_f32 v{RR+j}, v{RR+j}, v{RR+4+j}")
    for j in range(4): a(f"v_add_f32 v{RR+8+j}, v{RR+8+j}, v{RR+12+j}")
    for j in range(4): a(f"v_add_f32 v{RR+j}, v{RR+j}, v{RR+8+j}")
    set_exec((1 << 40) - 1)
    a(f"v_writelane_b32 v{RR}, s{sNON}, 34")
    ws_store4(RR, sAKVP)
    set_exec(FULL)
    stamp("p1_kvpub")
    touches(L, 2)
    nfill = optL("F0", L, 0, 0)
    for s in range(32):
        a.wait(lg=rq[s])
        b = WFR + (s % NQ) * 4
        mfma(vr(ACCQ,16), ar(b,4), vr(XF+4*s,4), vr(ACCQ,16))
        if s + QLA < 32: RQ(s + QLA)
        if s % 3 == 1 and pump.i < pump.c + nfill: pump.fill(pump.i + 1)
        if L == 0 and opt("WOP", 0) == 1 and s % 8 == 0: wo_issue(s // 8)
        if opt("POIQ", 1):
            if s == 2: set_poi(VV)
            if s == 3: tile_poison(VV, sAHTW, 0, 2048)
            if s == 6: tile_poison(VV, sAUW, 0, 2048)
            if L == 0 and opt("POIQ", 1) == 2:
                if s == 9: tile_poison(VV, sAPQW, PQ[1] - PQ[0], 1024)
                if s == 12: kv_poison(VV, 1)
                if s == 15: tile_poison(VV, sAX2W, 0, 1024)
        if s == opt("A1S", 26):
            a1_early(L); vm_a1 = a.vm
    for h in range(2):
        for q in range(4*h, 4*h+4): pk("fma", ACCQ+2*q, vr(ACCQ+2*q,2), vr(vRS,2), sr(sEPS6,2), hi=[1,0,0])
        for q in range(4*h, 4*h+4): pk("mul", T1+2*q, vr(ACCQ+2*q,2), sr(sL2E,2), hi=[1,0])
        for i in range(8*h, 8*h+8):
            a(f"v_exp_f32_e64 v{T1+i}, v{T1+i} clamp")
            a(f"v_max_f32 v{ACCQ+i}, s{sEPS6}, v{ACCQ+i}")
        for q in range(4*h, 4*h+4): pk("add", ACCQ+2*q, vr(ACCQ+2*q,2), vr(T1+2*q,2))
        for q in range(4*h, 4*h+4): a(f"v_cvt_pk_bf16_f32 v{PK+q}, v{ACCQ+2*q}, v{ACCQ+2*q+1}")
        ws_store4(PK + 4 * h, sAPQW, 1024 * h)
    if L == 0:
        for k in range(4): a(f"v_mov_b32 v{T1+k}, s{sNON}")
        a(f"s_sub_u32 s{sT0}, s{sAPQW}, {PQ[0]:#x}")
        a(f"s_lshr_b32 s{sT0}, s{sT0}, 4")
        a(f"s_add_u32 s{sT0}, s{sT0}, {TAGQ:#x}")
        set_exec(0xff)
        ws_store4(T1, sT0)
        set_exec(FULL)
    stamp("p1_q")
    a1(L, a.vm - vm_a1)
    pump.fill(pump.c + optL("F1", L, 6, 5))
    touches(L, 3)

def row_stats_publish(soff, SM):
    a(f"v_dot2_f32_bf16 v{SM}, v{XR}, s{sONES}, 0")
    a(f"v_dot2_f32_bf16 v{SM+1}, v{XR}, v{XR}, 0")
    a(f"v_dot2_f32_bf16 v{SM+2}, v{XR+1}, s{sONES}, 0")
    a(f"v_dot2_f32_bf16 v{SM+3}, v{XR+1}, v{XR+1}, 0")
    for j in range(2, 8):
        o = 2 * (j & 1)
        a(f"v_dot2_f32_bf16 v{SM+o}, v{XR+j}, s{sONES}, v{SM+o}")
        a(f"v_dot2_f32_bf16 v{SM+o+1}, v{XR+j}, v{XR+j}, v{SM+o+1}")
    a(f"v_lshlrev_b32 v{vT0}, 3, v{vL}")
    pk("add", SM, vr(SM,2), vr(SM+2,2))
    a(f"v_mov_b32 v{SM+2}, v{SM}")
    a(f"v_mov_b32 v{SM+3}, v{SM+1}")
    a(f"v_permlane32_swap_b32 v{SM}, v{SM+2}")
    a(f"v_permlane32_swap_b32 v{SM+1}, v{SM+3}")
    pk("add", SM, vr(SM,2), vr(SM+2,2))
    a(f"s_mov_b32 exec_hi, 0")
    a(f"v_and_b32 v{SM+1}, 0x7fffffff, v{SM+1}")
    a(f"buffer_store_dwordx2 {vr(SM,2)}, v{vT0}, {sr(SWS,4)}, s{soff} offen sc1")
    set_exec(FULL)

def unpack_xr(XU):
    for j in range(8):
        a(f"v_lshlrev_b32 v{XU+2*j}, 16, v{XR+j}")
        a(f"v_and_b32 v{XU+2*j+1}, 0xffff0000, v{XR+j}")

def p2(L):
    a.c(f"======== P2 layer {L}")
    KF, QF = 128, 192
    ACC = 32; CR = 64; OF = 96; WF = 104; XU = 64
    vK, vKC, vMX = MA, MA + 1, MA + 2
    tr_base(vTA, vTB, sKH, L_B)
    a(f"s_lshl_b32 s{sT2}, s{sKH}, 15")
    a(f"v_add_u32 v{vTA}, s{sT2}, v{vTA}")
    a(f"v_add_u32 v{vTB}, s{sT2}, v{vTB}")
    a(f"v_and_b32 v{vT0}, 31, v{vL}")
    a(f"v_mul_u32_u24 v{vKC}, 384, v{vT0}")
    a(f"v_min_u32 v{vT0}, 16, v{vT0}")
    a(f"v_lshlrev_b32 v{vT0}, 4, v{vT0}")
    a(f"v_mul_u32_u24 v{vT1}, 384, v{vHH}")
    a(f"v_add_u32 v{vK}, v{vT0}, v{vT1}")
    a(f"v_and_b32 v{vT2}, 7, v{vL}")
    a(f"v_lshlrev_b32 v{vT2}, {11 if L else 7}, v{vT2}")
    if L == 0:
        a(f"s_sub_u32 s{sT0}, s{sAPQR}, {PQ[0]:#x}")
        a(f"s_lshr_b32 s{sT0}, s{sT0}, 4")
        a(f"s_add_u32 s{sT0}, s{sT0}, {TAGQ:#x}")
    pump.run(min(R1 + 5, optL("B1", L, 18, 21)), refill=bool(optL("B1R", L, 1, 0)))
    if opt("POIQ", 1) == 0:
        set_poi(CR)
        tile_poison(CR, sAHTW, 0, 2048)
    stamp("beta")
    def ldq():
        a(f"s_mov_b32 s{sT4}, s{sAPQR}")
        for j in range(16):
            a(f"buffer_load_dwordx4 {vr(QF+4*j,4)}, v{vL16}, {sr(SWS,4)}, s{sT4} offen offset:{(j&3)*1024} sc1")
            if j & 3 == 3 and j < 15: a(f"s_add_u32 s{sT4}, s{sT4}, 4096")
    if L == 1:
        ci = lambda: a(f"buffer_load_dword v{vT3}, v{vT2}, {sr(SWS,4)}, s{sAPQR} offen offset:2044 sc1")
        cc = lambda: a(f"v_cmp_eq_u32 vcc, -1, v{vT3}")
    else:
        ci = lambda: a(f"buffer_load_dword v{vT3}, v{vT2}, {sr(SWS,4)}, s{sT0} offen sc1")
        cc = lambda: a(f"v_cmp_ne_u32 vcc, s{sNON}, v{vT3}")
    spec(ci, cc, ldq, 0x36 + L, a.newlabel("PQR"), on=opt("SPEC", 15) & 4)
    stamp("p2_pqc")
    if L == 0:
        a.wait(vm=G['wo'])
        for q in range(2):
            a(f"v_permlane32_swap_b32 v{XR+4*q}, v{XR+4*q+2}")
            a(f"v_permlane32_swap_b32 v{XR+4*q+1}, v{XR+4*q+3}")
        a(f"v_lshlrev_b32 v{vB2}, 16, v{vB2}")
    pump.run(min(R1 + 5, pump.i), refill=False)
    pump.run(min(R1 + 5, optL("B2", L, 0, 0)), refill=False)
    pump.fill(pump.c + optL("FK", L, 0, 0))
    a(f"s_xor_b32 s{sT0}, s{sW}, 1")
    a(f"s_lshl_b32 s{sT0}, s{sT0}, 12")
    a(f"v_add_u32 v{vRS}, s{sT0}, v{vL16}")
    a.wait_lg_all()
    a("s_barrier")
    rw = {}
    def RW(j):
        b = WF + (j % 3) * 8
        a(f"ds_read_b64_tr_b16 {vr(b,2)}, v{vTA} offset:{j*2048}")
        a(f"ds_read_b64_tr_b16 {vr(b+2,2)}, v{vTA} offset:{j*2048+1024}")
        a(f"ds_read_b64_tr_b16 {vr(b+4,2)}, v{vTB} offset:{j*2048}")
        rw[j] = a(f"ds_read_b64_tr_b16 {vr(b+6,2)}, v{vTB} offset:{j*2048+1024}")
    lid = {}
    def LD(j):
        if j == 0: a(f"s_mov_b32 s{sSO}, s{sAKVF}")
        elif j & 3 == 0: a(f"s_add_u32 s{sSO}, s{sSO}, {4*768}")
        lid[j] = a(f"buffer_load_dwordx4 {vr(KF+4*j,4)}, v{vK}, {sr(SWS,4)}, s{sSO} offen offset:{(j&3)*768} sc1")
    PLA = optL("PLA", L, 10, 10)
    redo = a.newlabel("P2REDO"); redo2 = a.newlabel("P2REDO2"); over = a.newlabel("P2OVER")
    a(f"s_branch {over}")
    a.label(redo)
    with cond():
        ldq()
        a("s_waitcnt vmcnt(0)")
        a(f"s_branch {redo2}")
    a.label(over)
    def window():
        for j in range(PLA): LD(j)
    spec(lambda: a(f"buffer_load_dword v{vT3}, v{vKC}, {sr(SWS,4)}, s{sAKVF} offen offset:272 sc1"),
         lambda: a(f"v_cmp_ne_u32 vcc, s{sNON}, v{vT3}"), window, 0x38 + L, redo2, on=opt("SPEC", 15) & 2)
    stamp("p2_kvc")
    RW(0); RW(1)
    unpack_xr(ACC)
    a(f"v_mov_b32 v{vMX}, 0")
    def M1(j):
        a.wait(vm=lid[j])
        mfma(vr(CR+(j&1)*16,16), vr(KF+4*j,4), vr(QF+4*j,4), "0")
        a(f"v_max3_u32 v{vMX}, v{vMX}, v{KF+4*j}, v{QF+4*j}")
        if j + PLA < 16: LD(j + PLA)
        if j + PLA == 16: touches(L, 9)
    def Va(j):
        c = CR + (j & 1) * 16
        a(f"v_add_f32 v{c+8}, s{sEPS6}, v{c+8}")
        a(f"v_rcp_f32 v{c+8}, v{c+8}")
    def Vb(j):
        c = CR + (j & 1) * 16; o = OF + (j & 1) * 4
        for i in range(4): a(f"v_mul_f32 v{c+i}, v{c+i}, v{c+8}")
        for i in range(2): a(f"v_cvt_pk_bf16_f32 v{o+i}, v{c+2*i}, v{c+2*i+1}")
    def Vc(j):
        c = CR + (j & 1) * 16; o = OF + (j & 1) * 4
        for i in range(4, 8): a(f"v_mul_f32 v{c+i}, v{c+i}, v{c+8}")
        for i in range(2, 4): a(f"v_cvt_pk_bf16_f32 v{o+i}, v{c+2*i}, v{c+2*i+1}")
    M1(0); M1(1)
    Va(0); Vb(0); Vc(0); M1(2)
    nfp = optL("FP2", L, 6, 6)
    kb_saved = False
    for j in range(16):
        o = OF + (j & 1) * 4; b = WF + (j % 3) * 8
        if j + 1 < 16: Va(j + 1)
        a.wait(lg=rw[j])
        mfma(vr(ACC+16,16), vr(b+4,4), vr(o,4), "0" if j == 0 else vr(ACC+16,16))
        if j + 1 < 16: Vb(j + 1)
        mfma(vr(ACC,16), vr(b,4), vr(o,4), vr(ACC,16))
        if j + 1 < 16: Vc(j + 1)
        if j + 3 < 16: M1(j + 3)
        if j + 2 < 16: RW(j + 2)
    verify(vMX, redo)
    stamp("p2_main")
    lin(sT0, [(sFT, 128), (sRH, 64)])
    a(f"v_lshlrev_b32 v{vT0}, 3, v{vHH}")
    for q in range(4): a(f"buffer_load_dwordx2 {vr(152+2*q,2)}, v{vT0}, {sr(SB1,4)}, s{sT0} offen offset:{16*q}")
    for q in range(4): a(f"ds_write_b128 v{vRS}, {vr(ACC+16+4*q,4)} offset:{q*1024}")
    a(f"v_xor_b32 v{vT1}, 4096, v{vRS}")
    touches(L, 4)
    a.wait_lg_all()
    a("s_barrier")
    ids = [a(f"ds_read_b128 {vr(ACC+16+4*q,4)}, v{vT1} offset:{q*1024}") for q in range(4)]
    for q in range(4):
        a.wait(lg=ids[q])
        pk("add", ACC+4*q, vr(ACC+4*q,2), vr(ACC+16+4*q,2))
        pk("add", ACC+4*q+2, vr(ACC+4*q+2,2), vr(ACC+16+4*q+2,2))
        a(f"v_cvt_pk_bf16_f32 v{XR+2*q}, v{ACC+4*q}, v{ACC+4*q+1}")
        a(f"v_cvt_pk_bf16_f32 v{XR+2*q+1}, v{ACC+4*q+2}, v{ACC+4*q+3}")
    row_stats_publish(sASTW, OF)
    stamp("p2_stpub")
    pump.run(pump.i, refill=False)
    pump.fill(pump.c + optL("GF", L, 6, 4))
    unpack_xr(XU)
    IDF = 104
    a(f"v_and_b32 v{vT0}, 31, v{vL}")
    a(f"v_lshlrev_b32 v{vT1}, 2, v{vHH}")
    a(f"v_sub_u32 v{vT0}, v{vT0}, v{vT1}")
    a(f"v_mov_b32 v{vT3}, 0x3f80")
    for f in range(2):
        for c in range(4):
            base = 16 * f + ((2 * c) & 3) + 8 * (c >> 1)
            a(f"v_subrev_u32 v{vT1}, {base}, v{vT0}")
            a(f"v_cmp_gt_u32 vcc, 2, v{vT1}")
            a(f"v_lshlrev_b32 v{vT1}, 4, v{vT1}")
            a(f"v_lshlrev_b32 v{vT2}, v{vT1}, v{vT3}")
            a(f"v_cndmask_b32 v{IDF+4*f+c}, 0, v{vT2}, vcc")
    SB = 128
    a(f"v_and_b32 v{vT0}, 31, v{vL}")
    a(f"v_lshlrev_b32 v{vT0}, 3, v{vT0}")
    a(f"v_lshl_add_u32 v{vT2}, v{vHH}, 12, v{vT0}")
    a(f"v_mov_b32 v{SB+18}, {fl(1.0+1e-5)}")
    def issue():
        for p in range(8): a(f"buffer_load_dwordx2 {vr(SB+2*p,2)}, v{vT2}, {sr(SWS,4)}, s{sASTR} offen offset:{p*512} sc1")
    if OPT.get(f"SL{0x34+L:x}", 0): a(f"s_sleep {OPT.get(f'SL{0x34+L:x}', 0)}")
    poll(issue, lambda: stats_check(SB), 0x34 + L)
    stamp("p2_stats")
    if optL("SF", L, 3, 3):
        pump.run(pump.i, refill=False)
        pump.fill(pump.c + optL("SF", L, 3, 3))
    stats_sum(SB)
    a(f"v_mul_f32 v{SB}, {fl(-1/512)}, v{SB}")
    a(f"v_mul_f32 v{SB+1}, {fl(1/512)}, v{SB+1}")
    a(f"v_fma_f32 v{SB+1}, -v{SB}, v{SB}, v{SB+1}")
    a(f"v_max_f32 v{SB+1}, 0, v{SB+1}")
    a(f"v_fmaak_f32 v{SB+1}, v{SB+1}, v{SB+18}, {fl(1e-10)}")
    a(f"v_rsq_f32 v{SB+2}, v{SB+1}")
    a(f"v_mul_f32 v{SB}, v{SB}, v{SB+2}")
    HP_ = 112
    for f in range(2):
        for j in range(4*f, 4*f+4):
            pk("fma", XU+2*j, vr(XU+2*j,2), vr(SB+2,2), vr(SB,2), hi=[1,0,0])
    for f in range(2):
        for j in range(4*f, 4*f+4):
            a(f"v_cvt_pk_bf16_f32 v{HP_+j}, v{XU+2*j}, v{XU+2*j+1}")
        mfma(vr(ACC,16), vr(HP_+4*f,4), vr(IDF+4*f,4), "0" if f == 0 else vr(ACC,16))
    for f in range(2):
        for j in range(4): a(f"v_cvt_pk_bf16_f32 v{ACC+16+4*f+j}, v{ACC+8*f+2*j}, v{ACC+8*f+2*j+1}")
        ws_store4(ACC + 16 + 4 * f, sAHTW, 2048 * f)
    touches(L, 5)
    stamp(f"p2_{L}")

ACC = 32; RING = 96; AUX = 144
vR1, vR2, vR3, vRA, vRB = vT0, vT1, vT2, vRS, MA + 2
def stream(kind, nks, srot, sbase, code, tail=None, each=None):
    NR = 6; LK = NR - 1
    vA, vB, vMX, vC = vTA, vTB, MA, MA + 1
    a(f"s_lshl_b32 s{sT0}, s{sKH}, 10")
    a(f"v_add_u32 v{vA}, s{sT0}, v{vL16}")
    a(f"v_xor_b32 v{vB}, 1024, v{vA}")
    a(f"v_add_u32 v{vA}, s{sbase}, v{vA}")
    a(f"v_add_u32 v{vB}, s{sbase}, v{vB}")
    a(f"v_min_u32 v{vT0}, {nks-1}, v{vL}")
    a(f"v_lshrrev_b32 v{vT1}, 1, v{vT0}")
    a(f"v_and_b32 v{vT0}, 1, v{vT0}")
    a(f"v_lshlrev_b32 v{vT0}, 10, v{vT0}")
    a(f"v_lshl_add_u32 v{vC}, v{vT1}, 12, v{vT0}")
    for acc, r in ((1, vR1), (2, vR2)):
        a(f"s_xor_b32 s{sT0}, s{sW}, {acc}")
        a(f"s_lshl_b32 s{sT0}, s{sT0}, 13")
        a(f"v_add_u32 v{r}, s{sT0}, v{vL16}")
    a(f"s_xor_b32 s{sT0}, s{sW}, 3")
    a(f"s_lshl_b32 s{sT0}, s{sT0}, 14")
    a(f"v_add_u32 v{vR3}, s{sT0}, v{vL16}")
    a(f"s_lshl_b32 s{sT0}, s{sW}, 13")
    a(f"v_add_u32 v{vRA}, s{sT0}, v{vL16}")
    a(f"v_add_u32 v{vRB}, s{sWA}, v{vL16}")
    ids = {}
    def LDa(s):
        b = RING + (s % NR) * 8
        if s & 1 == 0 and s > 0:
            a(f"s_add_u32 s{sSO}, s{sSO}, 4096")
            a(f"s_cmp_eq_u32 s{sSO}, {nks*2048}")
            a(f"s_cselect_b32 s{sSO}, 0, s{sSO}")
        a(f"buffer_load_dwordx4 {vr(b,4)}, v{vA}, {sr(SWS,4)}, s{sSO} offen offset:{(s&1)*2048} sc1")
    def LDb(s):
        b = RING + (s % NR) * 8
        ids[s] = a(f"buffer_load_dwordx4 {vr(b+4,4)}, v{vB}, {sr(SWS,4)}, s{sSO} offen offset:{(s&1)*2048} sc1")
    def run():
        redo = a.newlabel("SREDO")
        a(f"s_mov_b32 s{sKB}, s{sWOFF}")
        def window():
            a(f"s_lshl_b32 s{sSO}, s{srot}, 11")
            for s in range(LK): LDa(s); LDb(s)
        spec(lambda: a(f"buffer_load_dword v{vT3}, v{vC}, {sr(SWS,4)}, s{sbase} offen offset:{2048+1020} sc1"),
             lambda: a(f"v_cmp_eq_u32 vcc, -1, v{vT3}"), window, code, redo, on=opt("SPEC", 15) & 1)
        stamp("canary")
        a(f"s_mov_b32 s{sWOFF}, s{sKB}")
        a(f"v_mov_b32 v{vMX}, 0")
        DEF = opt("DEF", 5)
        def MF(s, acc):
            b = RING + (s % NR) * 8
            wf = wreg(kind, s, 4 * (acc >> 1), 4); af = vr(b + 4 * (acc & 1), 4)
            c = "0" if s == 0 else vr(ACC + 16 * acc, 16)
            A_, B_ = (wf, af) if kind == 1 else (af, wf)
            mfma(vr(ACC+16*acc,16), A_, B_, c)
        for s in range(nks):
            a.wait(vm=ids[s])
            b = RING + (s % NR) * 8
            order = (0, 1, 2, 3) if s < nks - DEF else (1, 2, 3)
            for n, acc in enumerate(order):
                MF(s, acc)
                if n == 0 and s + LK < nks: LDa(s + LK)
                if n == 1 and s + LK < nks: LDb(s + LK)
                if n == (2 if s < nks - 1 else 0): a(f"v_max3_u32 v{vMX}, v{vMX}, v{b}, v{b+4}")
                if each and n == 2: each(s)
                if tail and s + LK >= nks and n < 3: tail(s + LK - nks, n)
        verify(vMX, redo)
        stamp("gemm")
        wr = [(acc, q) for acc in (1, 2, 3) for q in range(4)]
        def W(k):
            acc, q = wr[k]
            o = (0, 4096, L_A + SCR)[acc - 1]
            a(f"ds_write_b128 v{(vR1, vR2, vR3)[acc-1]}, {vr(ACC+16*acc+4*q,4)} offset:{o+q*1024}")
        k = 0
        for n, s in enumerate(range(nks - DEF, nks)):
            MF(s, 0)
            for _ in range(2 if n else 1):
                if k < 12: W(k); k += 1
        while k < 12: W(k); k += 1
    return run

def reduce4():
    def sync_and_read():
        a.wait_lg_all(force=True)
        a("s_barrier")
        ids = {}
        for q in range(4):
            a(f"ds_read_b128 {vr(RING+4*q,4)}, v{vRA} offset:{q*1024}")
            ids[(q, 1)] = a(f"ds_read_b128 {vr(RING+16+4*q,4)}, v{vRA} offset:{4096+q*1024}")
            ids[(q, 2)] = a(f"ds_read_b128 {vr(RING+32+4*q,4)}, v{vRB} offset:{SCR+q*1024}")
        def add(q):
            a.wait(lg=ids[(q, 1)])
            for j in (0, 2): pk("add", RING+4*q+j, vr(RING+4*q+j,2), vr(RING+16+4*q+j,2))
            a.wait(lg=ids[(q, 2)])
            for j in (0, 2): pk("add", ACC+4*q+j, vr(ACC+4*q+j,2), vr(RING+32+4*q+j,2))
            for j in (0, 2): pk("add", ACC+4*q+j, vr(ACC+4*q+j,2), vr(RING+4*q+j,2))
        return add
    return sync_and_read

def p3(L):
    a.c(f"======== P3 layer {L}")
    B1R = AUX
    pump.run(pump.i, refill=True)
    if opt("POIQ", 1) == 0:
        set_poi(ACC)
        tile_poison(ACC, sAUW, 0, 2048)
    pump.run(32)
    a.wait_lg_all()
    if L == 1: a("s_barrier")
    pump.setup(2, L, extra=optL("XB", L, 0, 8))
    pump.run(optL("V2", L, 5, 0), refill=False)
    pump.fill(pump.c + optL("V2F", L, 0, 8))
    assert pump.c <= R2
    if L == 0: a("s_barrier")
    for j in range(8):
        if j < 7:
            a(f"v_lshlrev_b32 v{B1R+2*j}, 16, v{B1R+8+j}")
            a(f"v_and_b32 v{B1R+2*j+1}, 0xffff0000, v{B1R+8+j}")
        else:
            a(f"v_lshlrev_b32 v{B1R+14}, 16, v{B1R+15}")
            a(f"v_and_b32 v{B1R+15}, 0xffff0000, v{B1R+15}")
    stamp("p3_delta")
    idle = a.newlabel("P3IDLE"); join = a.newlabel("P3JOIN")
    pst = (pump.i, pump.c, dict(pump.vid), dict(pump.lid))
    a(f"s_cmp_eq_u32 s{sP3}, 7")
    a(f"s_cbranch_scc1 {idle}")
    SM = optL("SM", L, 0, 0); IDN = optL("IDT", L, 14, 0)
    with cond():
        ntail = optL("V2T", L, 5, 5)
        def tl(k, n):
            if n == 0 and k < ntail: pump.fill(pump.i + 1)
        each = None
        if SM:
            a(f"s_lshr_b32 s{sT1}, s{sWI}, 3")
            a(f"s_add_u32 s{sT1}, s{sT1}, 14")
            a(f"s_add_u32 s{sT1}, s{sT1}, s{sROT2}")
            a(f"s_sub_u32 s{sT2}, s{sT1}, 28")
            a(f"s_cselect_b32 s{sT1}, s{sT1}, s{sT2}")
            a(f"s_and_b32 s{sT2}, s{sWI}, 3")
            a(f"s_mul_i32 s{sT2}, s{sT2}, 28")
            a(f"s_add_u32 s{sT1}, s{sT1}, s{sT2}")
            a(f"s_lshl_b32 s{sT1}, s{sT1}, 16")
            a(f"s_bfe_u32 s{sT2}, s{sWI}, 0x10002")
            a(f"s_lshl_b32 s{sT2}, s{sT2}, 15")
            a(f"s_add_u32 s{sT1}, s{sT1}, s{sT2}")
            a(f"s_and_b32 s{sT2}, s{sB}, 7")
            a(f"s_lshl_b32 s{sT2}, s{sT2}, 9")
            a(f"s_add_u32 s{sT1}, s{sT1}, s{sT2}")
            def each(s):
                for hf in range(2):
                    k = 2 * s + hf
                    ln = k & 31
                    a(f"s_buffer_load_dword s{sDUM}, {sr(SW2,4)}, s{sT1} offset:{(ln>>2)*4096 + (ln&3)*128 + (k>>5)*64}")
        run = stream(1, 32, sROT1, sAHTR, 0x50 + L, tail=tl, each=each)
        run()
        sync = reduce4()
        K1 = -2.0 * 0.7978845608028654 * LOG2E
        a(f"s_mov_b32 s{sT2}, s{sGK}")
        a(f"v_mov_b32 v{vTA}, {fl(K1)}")
        for q in range(8): pk("add", ACC+2*q, vr(ACC+2*q,2), vr(B1R+2*q,2))
        add = sync()
        T = ACC + 16; PKD = ACC + 32
        for h in range(2):
            add(2 * h); add(2 * h + 1)
            R4 = range(4 * h, 4 * h + 4); R8 = range(8 * h, 8 * h + 8)
            for q in R4: pk("mul", T+2*q, vr(ACC+2*q,2), vr(ACC+2*q,2))
            for q in R4: pk("fma", T+2*q, vr(T+2*q,2), sr(sT2,2), vr(vTA,2), hi=[1,0,0])
            for q in R4: pk("mul", T+2*q, vr(T+2*q,2), vr(ACC+2*q,2))
            for i in R8: a(f"v_exp_f32 v{T+i}, v{T+i}")
            for q in R4: pk("add", T+2*q, vr(T+2*q,2), "1.0", hi=[1,0])
            for i in R8: a(f"v_rcp_f32 v{T+i}, v{T+i}")
            for q in R4: pk("mul", ACC+2*q, vr(ACC+2*q,2), vr(T+2*q,2))
            for q in R4: a(f"v_cvt_pk_bf16_f32 v{PKD+q}, v{ACC+2*q}, v{ACC+2*q+1}")
            ws_store4(PKD + 4 * h, sAUW, 2048 * h)
        a(f"s_branch {join}")
    a.label(idle)
    pump.i, pump.c, pump.vid, pump.lid = pst
    if IDN:
        a(f"v_lshrrev_b32 v{vT0}, 2, v{vL}")
        a(f"v_lshlrev_b32 v{vT0}, 12, v{vT0}")
        a(f"v_and_b32 v{vT1}, 3, v{vL}")
        a(f"v_lshl_add_u32 v{vT0}, v{vT1}, 7, v{vT0}")
        a(f"s_bfe_u32 s{sT0}, s{sWI}, 0x20002")
        a(f"s_mul_i32 s{sT0}, s{sT0}, {28*65536}")
        a(f"s_and_b32 s{sT1}, s{sB}, 7")
        a(f"s_lshl_b32 s{sT1}, s{sT1}, 9")
        a(f"s_add_u32 s{sT0}, s{sT0}, s{sT1}")
        a(f"v_add_u32 v{vT0}, s{sT0}, v{vT0}")
        a(f"s_add_u32 s{sT1}, s{sW}, s{sROT2}")
        a(f"s_add_u32 s{sT1}, s{sT1}, {28 - IDN}")
        for k in range((IDN + 3) // 4):
            a(f"s_sub_u32 s{sT2}, s{sT1}, 28")
            a(f"s_cselect_b32 s{sT1}, s{sT1}, s{sT2}")
            a(f"s_lshl_b32 s{sT2}, s{sT1}, 16")
            a(f"buffer_load_dword v31, v{vT0}, {sr(SW2,4)}, s{sT2} offen")
            a(f"s_add_u32 s{sT1}, s{sT1}, 4")
    pump.fill(pump.i + ntail)
    a.label(join)
    stamp(f"p3_{L}")

def p4(L):
    a.c(f"======== P4 layer {L}")
    if L == 0 and opt("POIQ", 1) < 2:
        set_poi(ACC)
        tile_poison(ACC, sAX2W, 0, 1024)
        tile_poison(ACC, sAPQW, PQ[1] - PQ[0], 1024)
        kv_poison(ACC, 1)
    pump.run(28)
    stamp("p4_w2")
    NKT = opt("NKT", 8)
    def kvdma(j):
        if j == 0: a(f"s_add_u32 s{sT3}, s{sAWQT}, s{sWA}")
        if j & 3 == 0:
            a(f"s_add_u32 m0, s{sWA}, {j*1024}")
            if j: a(f"s_add_u32 s{sT3}, s{sT3}, 4096")
        a(f"buffer_load_dwordx4 v{vL16}, {sr(SWS,4)}, s{sT3} offen offset:{(j&3)*1024} lds")
    def tl(k, n):
        j = 3 * k + n
        if j < NKT: kvdma(j)
    run = stream(2, 28, sROT2, sAUR, 0x60 + L, tail=tl if L == 0 else None)
    XU = AUX
    unpack_xr(XU)
    for q in range(8): pk("add", XU+2*q, vr(XU+2*q,2), vr(vB2-1,2), lo=[0,1], hi=[1,1])
    a.wait_lg_all()
    a("s_barrier")
    run()
    sync = reduce4()
    for q in range(8): pk("add", ACC+2*q, vr(ACC+2*q,2), vr(XU+2*q,2))
    add = sync()
    for h in range(2):
        add(2 * h); add(2 * h + 1)
        for q in range(4 * h, 4 * h + 4): a(f"v_cvt_pk_bf16_f32 v{XR+q}, v{ACC+2*q}, v{ACC+2*q+1}")
        if L == 0:
            ws_store4(XR + 4 * h, sAX2W, 1024 * h)
        else:
            a(f"v_permlane32_swap_b32 v{XR+4*h}, v{XR+4*h+2}")
            a(f"v_permlane32_swap_b32 v{XR+4*h+1}, v{XR+4*h+3}")
            a(f"buffer_store_dwordx4 {vr(XR+4*h,4)}, v{vOUT}, {sr(SOUT,4)}, 0 offen offset:{32*h}{['', ' sc1', ' nt', ' sc0 sc1'][opt('OST', 0)]}")
    if L == 0:
        row_stats_publish(sAS2W, ACC + 16)
        for j in range(NKT, 16): kvdma(j)
    stamp(f"p4_{L}")

prologue()
for L in range(2):
    p1(L); p2(L); p3(L); p4(L)
finish()
a.label("L_EXIT")
a("s_endpgm")
a.label("L_END")

hdr = open(f"ref.s").read().split("; Override launch")[0]
out = hdr + f"""; @launch grid=(256,1,1) block=(256,1,1) lds={LDS_BYTES}
.amdgcn_target "amdgcn-amd-amdhsa--gfx950"
.text
.globl {NAME}_kernel
.p2align 8
.type {NAME}_kernel,@function
{NAME}_kernel:
""" + a.text() + f""".section .rodata,"a"
.p2align 6
.amdhsa_kernel {NAME}_kernel
  .amdhsa_next_free_vgpr 512
  .amdhsa_next_free_sgpr 102
  .amdhsa_accum_offset 256
  .amdhsa_group_segment_fixed_size 0
  .amdhsa_kernarg_size 88
  .amdhsa_user_sgpr_count 2
  .amdhsa_user_sgpr_kernarg_segment_ptr 1
  .amdhsa_system_sgpr_workgroup_id_x 1
  .amdhsa_float_denorm_mode_32 3
.end_amdhsa_kernel
"""
outp = [x for x in sys.argv[1:] if x.endswith(".s")]
open(outp[0], "w").write(out)
if DIAG: open(outp[0] + ".stamps", "w").write("\n".join(stamp_names))
```

```python
import sys, struct
from contextlib import contextmanager
from asmlib import Asm, vr, ar, sr

NAME = "interleave_layers__linear_attn_block__mixer_token_mlp__prompt"
DIAG = "--diag" in sys.argv
OPT = {}
for a_ in sys.argv:
    if a_.startswith("-D"):
        k_, v_ = a_[2:].split("="); OPT[k_] = int(v_)
def opt(k, d): return OPT.get(k, d)
def optL(k, L, d0, d1): return OPT.get(f"{k}_{L}", (d0, d1)[L])
def f2u(x): return struct.unpack("<I", struct.pack("<f", x))[0]
def fl(x): return "0x%08x" % f2u(x)
FULL = (1 << 64) - 1
LOG2E = 1.4426950408889634

KVF = [0x2000, 0xC0000]; KVP = [0x8000, 0xC6000]; ST = [0x166000, 0x1A6000]; ST2 = 0x1E6000
SELFP = 0xC0000
PQ = [0x400000, 0x600000]; HT = [0x800000, 0xA00000]; U = [0xC00000, 0xE00000]; X2 = 0x1000000
WQT = 0x1200000
TS = 0x1400000
DUMP = 0x1500000
ERRS = 0x1520000
NONCE = 0x0; TAGQ = 0x1540000
WS_BYTES = 268435456
L_A = 32768; L_B = 98304; LDS_BYTES = 163840
NS = 6; SCR = 12288
sW = 3
SX, SWQKV, SWO, SW1, SW2, SWS, SOUT, SDBG, SB1, SB2, SCODE = 4, 8, 12, 16, 20, 24, 28, 32, 36, 40, 44
sST, sDT, sRB, sHP, sDT3, sFT, sP3, sRH, sKH, sWB, sTO, sONES = 48, 49, 50, 51, 52, 53, 54, 55, 56, 57, 58, 59
sEPS6 = 60; sB = 61
sT0, sT1, sT2, sT3, sT4, sT5 = 62, 63, 64, 65, 66, 67
sSO = 68; sW1K = 69; sTS = 70
sL2E = 74; sWA = 75; sROTX = 76; sROT1 = 77; sROT2 = 78; sRED = 79; sWOFF = 80; sKB = 81; sXC = 82; sWI = 83
sKA = 84
sAKVP, sAPQW, sAPQR, sAKVF, sASTW, sASTR, sAHTW, sAHTR, sAUW, sAUR, sAX2W, sAX2R, sAS2W, sAS2R, sAWQT, sGK = range(84, 100)
sDUM = 100; sNON = 101
vL, vL16, vTA, vTB, vT0, vT1, vT2, vT3 = 0, 1, 2, 3, 4, 5, 6, 7
XR = 8
CKP, CVP, CQP, vB2, vRS, vHH, vOUT, vTSV = 16, 17, 18, 19, 20, 21, 22, 23
vWA, vWB, vWTA, vWTB = 24, 25, 26, 27
MA = 28

a = Asm()
stamp_names = []
G = {}

@contextmanager
def cond():
    st = (a.vm, a.vm_done, a.lg, a.lg_done); h = list(a.hist)
    yield
    a.vm, a.vm_done, a.lg, a.lg_done = st[0], min(st[1], st[0]), st[2], min(st[3], st[2])
    a.hist = h

def stamp(name):
    if not DIAG: return
    if "--lite" in sys.argv and name not in ("start", "end", "p4_0"): return
    k = len(stamp_names); stamp_names.append(name)
    if opt("CYC", 0) and name not in ("start", "end"): a(f"s_memtime {sr(sTS,2)}")
    else: a(f"s_memrealtime {sr(sTS,2)}")
    if name in ("start", "end"): a(f"s_memtime {sr(sTS+2,2)}")
    a("s_waitcnt lgkmcnt(0)"); a.lg_done = a.lg
    a(f"v_writelane_b32 v{vTSV}, s{sTS}, {k}")
    if name in ("start", "end"): a(f"v_writelane_b32 v{vTSV}, s{sTS+2}, {62 if name == 'start' else 63}")

def srd(base, ptr, nbytes):
    a(f"s_mov_b32 s{base}, s{ptr}")
    a(f"s_and_b32 s{base+1}, s{ptr+1}, 0xffff")
    a(f"s_mov_b32 s{base+2}, {nbytes:#x}")
    a(f"s_mov_b32 s{base+3}, 0x20000")

def set_exec(mask):
    if mask == FULL: a("s_mov_b64 exec, -1")
    elif mask <= 64: a(f"s_mov_b64 exec, {mask}")
    else:
        a(f"s_mov_b32 exec_lo, {mask & 0xffffffff:#x}"); a(f"s_mov_b32 exec_hi, {mask >> 32:#x}")

def lin(dst, terms, const=0):
    first = True
    for r, m in terms:
        t = dst if first else sT5
        if m == 1 and not first: a(f"s_add_u32 s{dst}, s{dst}, s{r}"); continue
        if m & (m - 1) == 0: a(f"s_lshl_b32 s{t}, s{r}, {m.bit_length()-1}")
        else: a(f"s_mul_i32 s{t}, s{r}, {m}")
        if not first: a(f"s_add_u32 s{dst}, s{dst}, s{sT5}")
        first = False
    if const: a(f"s_add_u32 s{dst}, s{dst}, {const:#x}")

def timeout_path(code):
    a(f"s_mov_b32 s{sTO}, 0")
    if DIAG:
        a(f"v_mov_b32 v{vT3}, {code}")
        a(f"s_mov_b32 s{sT5}, {ERRS:#x}")
        a(f"buffer_store_dword v{vT3}, off, {sr(SWS,4)}, s{sT5}")
        a("s_waitcnt vmcnt(0)")

def poll(issue, check, code, pre=None):
    top = a.newlabel("POLL"); done = a.newlabel("PDONE"); chk = a.newlabel("PCHK")
    if pre is not None:
        a.wait(vm=pre)
        st = (a.vm, a.vm_done)
        a(f"s_branch {chk}")
    a.label(top)
    issue()
    a.wait_vm_all(force=True)
    if pre is not None: a.label(chk)
    check()
    a(f"s_cbranch_vccz {done}")
    h = list(a.hist); vmst = (a.vm, a.vm_done)
    if opt("PS", 2): a(f"s_sleep {opt('PS', 2)}")
    a(f"s_sub_u32 s{sTO}, s{sTO}, 1")
    a(f"s_cbranch_scc0 {top}")
    timeout_path(code)
    a.label(done)
    a.hist = h; a.vm, a.vm_done = vmst
    if pre is not None: a.vm, a.vm_done = st

def poll1(addr, code, tmp=None, tag=False):
    cmp = (lambda r: a(f"v_cmp_ne_u32 vcc, s{sNON}, v{r}")) if tag else (lambda r: a(f"v_cmp_eq_u32 vcc, -1, v{r}"))
    if tmp is None or not opt("PP", 0):
        poll(lambda: a(f"buffer_load_dword v{vT3}, {addr} sc1"), lambda: cmp(vT3), code)
        return
    top = a.newlabel("PP"); done = a.newlabel("PPD")
    a(f"buffer_load_dword v{vT3}, {addr} sc1")
    a(f"s_nop {opt('PPN', 15)}")
    a.label(top)
    for r, o in ((vT3, tmp), (tmp, vT3)):
        a(f"buffer_load_dword v{o}, {addr} sc1")
        a("s_waitcnt vmcnt(1)")
        cmp(r)
        a(f"s_cbranch_vccz {done}")
    h = list(a.hist)
    a(f"s_sub_u32 s{sTO}, s{sTO}, 2")
    a(f"s_cbranch_scc0 {top}")
    timeout_path(code)
    a.label(done)
    a.hist = h
    a.vm -= 1
    a.vm_done = a.vm - 1

SLD = {}
SPD = {0x50: 1, 0x51: 1, 0x60: 1, 0x61: 1, 0x36: 1, 0x38: 1, 0x40: 1}
def spec(can_issue, can_check, window, code, redo, on=True):
    go = a.newlabel("GO")
    d = OPT.get(f"SL{code:x}", SLD.get(code, 0))
    if d: a(f"s_sleep {d}")
    on = OPT.get(f"SP{code:x}", SPD.get(code, 0))
    if on:
        can_issue(); cid = a.vm - 1
        window()
        a.wait(vm=cid)
        can_check()
        force_fail("FRC")
        a(f"s_cbranch_vccz {go}")
        st = (a.vm, a.vm_done, list(a.hist))
        poll(can_issue, can_check, code)
        a.label(redo)
        window()
        a.label(go)
        a.hist = []
        a("s_nop 0")
    else:
        poll(can_issue, can_check, code)
        a.label(redo)
        window()

force_n = [0]
def force_fail(kind):
    if not opt(kind, 0): return
    k = force_n[0] % 32; force_n[0] += 1
    l = a.newlabel("FF")
    a(f"s_bitcmp1_b32 s2, {k}")
    a(f"s_cbranch_scc1 {l}")
    a(f"s_bitset1_b32 s2, {k}")
    a("s_mov_b64 vcc, 1")
    a.label(l)

def verify(vMX, redo, force=True):
    ok = a.newlabel("VOK")
    a(f"v_cmp_eq_u32 vcc, -1, v{vMX}")
    if force: force_fail("FRV")
    a(f"s_cbranch_vccz {ok}")
    h = list(a.hist)
    a("s_waitcnt vmcnt(0)")
    a(f"s_sub_u32 s{sTO}, s{sTO}, 64")
    a(f"s_cbranch_scc0 {redo}")
    a(f"s_mov_b32 s{sTO}, 0")
    a.label(ok)
    a.hist = h

def finish():
    if opt("AMP", -1) >= 0:
        lp = a.newlabel("AMPL"); sk = a.newlabel("AMPS")
        stamp("pre_end")
        a(f"s_cmp_lg_u32 s{sB}, 77")
        a(f"s_cbranch_scc1 {sk}")
        a(f"v_readlane_b32 s{sT0}, v{vTSV}, 0")
        a(f"v_readlane_b32 s{sT1}, v{vTSV}, {opt('AMP', 0)}")
        a(f"s_memrealtime s[70:71]")
        a("s_waitcnt lgkmcnt(0)")
        a(f"s_sub_u32 s{sT1}, s{sT1}, s{sT0}")
        a(f"s_lshl_b32 s{sT1}, s{sT1}, 2")
        a(f"s_add_u32 s{sT1}, s70, s{sT1}")
        a.label(lp)
        a(f"s_memrealtime s[70:71]")
        a("s_waitcnt lgkmcnt(0)")
        a(f"s_sub_u32 s{sT2}, s70, s{sT1}")
        a(f"s_cmp_lt_i32 s{sT2}, 0")
        a(f"s_cbranch_scc1 {lp}")
        a.label(sk)
    if DIAG:
        stamp("end")
        lin(sT0, [(sB, 1024), (sW, 256)], TS)
        a(f"v_lshlrev_b32 v{vT0}, 2, v{vL}")
        a(f"buffer_store_dword v{vTSV}, v{vT0}, {sr(SWS,4)}, s{sT0} offen")
    a("s_endpgm")

def pk(op, d, x, y, z=None, hi=None, lo=None):
    ops = [x, y] + ([z] if z is not None else [])
    m = ""
    if lo: m += " op_sel:[" + ",".join(map(str, lo)) + "]"
    if hi: m += " op_sel_hi:[" + ",".join(map(str, hi)) + "]"
    a(f"v_pk_{op}_f32 {vr(d,2)}, " + ", ".join(ops) + m)

def mfma(d, A, B, C):
    a(f"v_mfma_f32_32x32x16_bf16 {d}, {A}, {B}, {C}")

def ws_store4(reg, soff, off=0): return a(f"buffer_store_dwordx4 {vr(reg,4)}, v{vL16}, {sr(SWS,4)}, s{soff} offen offset:{off} sc1")

def tr_base(dst_a, dst_b, sel64, sel32, region):
    a(f"v_bfe_u32 v{vT0}, v{vL}, 2, 2")
    a(f"v_lshl_add_u32 v{vT0}, v{vHH}, 2, v{vT0}")
    a(f"v_lshlrev_b32 v{dst_a}, 7, v{vT0}")
    a(f"v_bfe_u32 v{vT1}, v{vL}, 3, 1")
    a(f"v_lshl_add_u32 v{dst_a}, v{vT1}, 6, v{dst_a}")
    a(f"v_bfe_u32 v{vT1}, v{vL}, 4, 1")
    a(f"v_lshl_add_u32 v{dst_a}, v{vT1}, 5, v{dst_a}")
    a(f"v_and_b32 v{vT1}, 3, v{vL}")
    a(f"v_lshl_add_u32 v{dst_a}, v{vT1}, 3, v{dst_a}")
    for sel, sh in ((sel64, 6), (sel32, 5)):
        if sel is not None:
            a(f"s_lshl_b32 s{sT5}, s{sel}, {sh}")
            a(f"v_xor_b32 v{dst_a}, s{sT5}, v{dst_a}")
    a(f"v_add_u32 v{dst_a}, {region}, v{dst_a}")
    a(f"v_xor_b32 v{dst_b}, 64, v{dst_a}")

def dma_voff(dst, dst2, pitch, scol):
    a(f"v_lshrrev_b32 v{vT0}, 3, v{vL}")
    a(f"v_mul_u32_u24 v{dst}, {pitch}, v{vT0}")
    a(f"v_bfe_u32 v{vT1}, v{vL}, 4, 1")
    a(f"v_lshlrev_b32 v{vT1}, 2, v{vT1}")
    a(f"v_and_b32 v{vT0}, 7, v{vL}")
    a(f"v_xor_b32 v{vT0}, v{vT0}, v{vT1}")
    a(f"v_lshl_add_u32 v{dst}, v{vT0}, 4, v{dst}")
    a(f"v_add_u32 v{dst}, s{scol}, v{dst}")
    a(f"v_add_u32 v{dst2}, {8*pitch-1024}, v{dst}")

R1, R2 = 16, 11
def wreg(kind, t, j, n):
    r, base = (R1, 0) if kind == 1 else (R2, R1 * 8)
    if t < r: return ar(base + 8 * t + j, n)
    t -= r
    if t < 5: return ar(216 + 8 * t + j, n)
    return vr(160 + 8 * (t - 5) + j, n)

class Pump:
    def setup(self, kind, L, extra=0):
        self.kind = kind
        self.pitch, self.srd, self.n = (3584, SW1, 32) if kind == 1 else (4096, SW2, 28)
        self.t0 = 0 if L == 0 else (R1 if kind == 1 else R2)
        self.extra = extra
        self.i = self.t0; self.c = self.t0; self.vid = {}; self.lid = {}
        a.c(f"pump setup W{kind}")
        a(f"s_lshl_b32 s{sT5}, s{sKH}, 5")
        a(f"v_xor_b32 v{vWTA}, s{sT5}, v{vWTA}")
        a(f"v_xor_b32 v{vWTB}, s{sT5}, v{vWTB}")
        lin(sT4, [(sFT if kind == 1 else sST, 128), (sW, self.n * 16 * self.pitch)])
        dma_voff(vWA, vWB, self.pitch, sT4)
        rot = sROT1 if kind == 1 else sROT2
        a(f"s_add_u32 s{sT5}, s{rot}, {self.t0}")
        a(f"s_sub_u32 s{sWOFF}, s{sT5}, {self.n}")
        a(f"s_cselect_b32 s{sWOFF}, s{sT5}, s{sWOFF}")
        a(f"s_mul_i32 s{sWOFF}, s{sWOFF}, {16*self.pitch}")
    def place(self, t):
        k = t - self.t0
        if k < self.extra: return ("B", k * 2048)
        return ("A", ((k - self.extra) % NS) * 2048)
    def prev_user(self, t):
        p = t - NS
        return p if p - self.t0 >= self.extra else None
    def room(self, lag=0):
        p = self.prev_user(self.i)
        return p is None or p < self.c - lag
    def issue1(self):
        t = self.i
        if opt("NOPUMP", 0):
            self.vid[t] = None; self.i += 1; return
        p = self.prev_user(t)
        if p is not None: a.wait(lg=self.lid[p])
        reg, o = self.place(t)
        a(f"s_add_u32 m0, s{sWB if reg == 'B' else sWA}, {o}")
        if t > self.t0:
            a(f"s_add_u32 s{sWOFF}, s{sWOFF}, {16*self.pitch}")
            a(f"s_cmp_eq_u32 s{sWOFF}, {self.n*16*self.pitch}")
            a(f"s_cselect_b32 s{sWOFF}, 0, s{sWOFF}")
        a(f"buffer_load_dwordx4 v{vWA}, {sr(self.srd,4)}, s{sWOFF} offen lds")
        self.vid[t] = a(f"buffer_load_dwordx4 v{vWB}, {sr(self.srd,4)}, s{sWOFF} offen offset:1024 lds")
        self.i += 1
    def fill(self, upto=None):
        lim = self.n if upto is None else min(self.n, upto)
        while self.i < lim and self.room(): self.issue1()
    def run(self, target, refill=True, tmp=(vT0, vT1), first=True):
        target = min(target, self.n)
        haveB = not first
        while self.c < target:
            t = self.c
            if t >= self.i: self.issue1()
            if opt("NOPUMP", 0):
                self.c += 1; continue
            reg, o = self.place(t)
            ta, tb = vWTA, vWTB
            if reg == "B":
                ta, tb = tmp
                if not haveB:
                    a(f"v_add_u32 v{ta}, 65536, v{vWTA}"); a(f"v_add_u32 v{tb}, 65536, v{vWTB}"); haveB = True
            a.wait(vm=self.vid[t])
            a(f"ds_read_b64_tr_b16 {wreg(self.kind,t,0,2)}, v{ta} offset:{o}")
            a(f"ds_read_b64_tr_b16 {wreg(self.kind,t,2,2)}, v{ta} offset:{o+1024}")
            a(f"ds_read_b64_tr_b16 {wreg(self.kind,t,4,2)}, v{tb} offset:{o}")
            self.lid[t] = a(f"ds_read_b64_tr_b16 {wreg(self.kind,t,6,2)}, v{tb} offset:{o+1024}")
            self.c += 1
            lim = self.n if refill else target
            if self.i < lim and self.room(lag=1): self.issue1()
        if refill: self.fill()
pump = Pump()

def prologue():
    a(f"s_cmp_ge_u32 s2, 256")
    a(f"s_cbranch_scc1 L_EXIT")
    a(f"s_load_dwordx16 {sr(sKA,16)}, s[0:1], 0")
    a(f"s_load_dwordx4 {sr(SCODE,4)}, s[0:1], 64")
    a(f"s_load_dwordx2 s[100:101], s[0:1], 80")
    a(f"s_mov_b32 s{sB}, s2")
    if opt("FRV", 0) or opt("FRC", 0): a("s_mov_b32 s2, 0")
    a(f"v_lshrrev_b32 v{vT0}, 6, v0")
    a(f"v_and_b32 v{vL}, 63, v0")
    a(f"v_readfirstlane_b32 s{sW}, v{vT0}")
    a(f"v_lshlrev_b32 v{vL16}, 4, v{vL}")
    a(f"v_lshrrev_b32 v{vHH}, 5, v{vL}")
    if opt("CODEPF", 1) == 2:
        a(f"s_getpc_b64 {sr(SB1,2)}")
        a.label("L_PC")
        a(f"s_and_b32 s{SB1+1}, s{SB1+1}, 0xffff")
        a(f"s_mov_b32 s{SB1+2}, L_END - L_PC")
        a(f"s_mov_b32 s{SB1+3}, 0x20000")
        a(f"s_lshr_b32 s{sT0}, s{sB}, 3")
        a(f"s_lshl_b32 s{sT0}, s{sT0}, 2")
        a(f"s_add_u32 s{sT0}, s{sT0}, s{sW}")
        a(f"s_lshl_b32 s{sT0}, s{sT0}, 10")
        a(f"buffer_load_dwordx4 {ar(252,4)}, v{vL16}, {sr(SB1,4)}, s{sT0} offen")
    if DIAG: a(f"v_mov_b32 v{vTSV}, 0")
    stamp("start")
    X_, I_ = sT0, sT1
    a(f"s_and_b32 s{X_}, s{sB}, 7")
    a(f"s_lshr_b32 s{I_}, s{sB}, 3")
    a(f"s_lshr_b32 s{sT2}, s{I_}, 3")
    a(f"s_and_b32 s{sDT}, s{I_}, 7")
    a(f"s_and_b32 s{sRB}, s{X_}, 3")
    a(f"s_lshl_b32 s{sRB}, s{sRB}, 2")
    a(f"s_add_u32 s{sRB}, s{sRB}, s{sT2}")
    a(f"s_lshr_b32 s{sHP}, s{X_}, 2")
    a(f"s_lshl_b32 s{sHP}, s{sHP}, 3")
    a(f"s_add_u32 s{sHP}, s{sHP}, s{sDT}")
    a(f"s_lshr_b32 s{sROTX}, s{sDT}, 1")
    a(f"s_add_u32 s{sROTX}, s{sROTX}, s{sT2}")
    a(f"s_and_b32 s{sROTX}, s{sROTX}, 3")
    a(f"s_lshl_b32 s{sROTX}, s{sROTX}, 1")
    a(f"s_and_b32 s{sT3}, s{I_}, 1")
    a(f"s_add_u32 s{sROTX}, s{sROTX}, s{sT3}")
    a(f"s_lshl_b32 s{sW1K}, s{sW}, 10")
    a(f"s_lshl_b32 s{sWB}, s{sW}, 14")
    a(f"s_add_u32 s{sWA}, s{sWB}, {L_A}")
    a(f"s_add_u32 s{sWB}, s{sWB}, {L_B}")

def roles2():
    X_, I_ = sT0, sT1
    a(f"s_and_b32 s{X_}, s{sB}, 7")
    a(f"s_lshr_b32 s{I_}, s{sB}, 3")
    a(f"s_lshr_b32 s{sT2}, s{I_}, 3")
    a(f"s_lshl_b32 s{sST}, s{X_}, 2")
    a(f"s_add_u32 s{sST}, s{sST}, s{sT2}")
    a(f"s_lshr_b32 s{sT3}, s{X_}, 1")
    a(f"s_mul_i32 s{sT3}, s{sT3}, 7")
    a(f"s_and_b32 s{sT4}, s{X_}, 1")
    a(f"s_lshl_b32 s{sT5}, s{sT4}, 2")
    a(f"s_add_u32 s{sFT}, s{sT3}, s{sT5}")
    a(f"s_add_u32 s{sFT}, s{sFT}, s{sT2}")
    a(f"s_and_b32 s{sP3}, s{I_}, 3")
    a(f"s_add_u32 s{sT5}, s{sT5}, s{sP3}")
    a(f"s_add_u32 s{sKB}, s{sT3}, 3")
    a(f"s_cmp_lt_u32 s{I_}, 24")
    a(f"s_cselect_b32 s{sFT}, s{sFT}, s{sKB}")
    a(f"s_cselect_b32 s{sDT3}, s{sDT}, s{sT5}")
    a(f"s_mul_i32 s{sT4}, s{sT4}, 3")
    a(f"s_add_u32 s{sXC}, s{sT3}, s{sT4}")
    a(f"s_lshl_b32 s{sROT1}, s{X_}, 2")
    a(f"s_and_b32 s{sT3}, s{I_}, 3")
    a(f"s_lshr_b32 s{sP3}, s{I_}, 2")
    a(f"s_lshl_b32 s{sWI}, s{I_}, 2")
    a(f"s_add_u32 s{sWI}, s{sWI}, s{sW}")
    a(f"s_lshl_b32 s{sRED}, s{X_}, 2")
    a(f"s_add_u32 s{sRED}, s{sRED}, s{sT3}")
    a(f"s_lshl_b32 s{sRED}, s{sRED}, 1")
    a(f"s_add_u32 s{sRED}, s{sRED}, s{sW}")
    a(f"s_cmp_lt_u32 s{sW}, 2")
    a(f"s_cselect_b32 s{sRED}, s{sRED}, 99")
    a(f"s_cmp_eq_u32 s{sP3}, 7")
    a(f"s_cselect_b32 s{sRED}, s{sRED}, 99")
    a(f"s_mul_i32 s{sROT2}, s{X_}, 7")
    a(f"s_lshr_b32 s{sROT2}, s{sROT2}, 2")
    a(f"s_lshl_b32 s{sROT2}, s{sROT2}, 1")
    a(f"s_lshr_b32 s{sRH}, s{sW}, 1")
    a(f"s_and_b32 s{sKH}, s{sW}, 1")
    a(f"s_mov_b32 s{sTO}, 400000")
    a(f"s_mov_b32 s{sONES}, 0x3f803f80")
    a(f"s_mov_b32 s{sEPS6}, {fl(1e-6)}")
    a(f"s_mov_b32 s{sL2E}, {fl(LOG2E)}")

def late_srds():
    srd(SWO, sKA + 4, 512 * 512 * 2)
    srd(SW1, sKA + 8, 2048 * 1792 * 2)
    srd(SB1, sKA + 10, 1792 * 2)
    srd(SW2, sKA + 12, 1792 * 2048 * 2)
    srd(SB2, sKA + 14, 2048 * 2)
    srd(SOUT, SCODE, 2048 * 512 * 2)
    srd(SDBG, SCODE + 2, 256)

def code_prefetch():
    if opt("CODEPF", 1) == 1:
        a(f"s_getpc_b64 {sr(SCODE,2)}")
        a.label("L_PC")
        a(f"s_and_b32 s{SCODE+1}, s{SCODE+1}, 0xffff")
        a(f"s_mov_b32 s{SCODE+2}, L_END - L_PC")
        a(f"s_mov_b32 s{SCODE+3}, 0x20000")
        a(f"s_lshl_b32 s{sT0}, s{sWI}, 10")
        a(f"buffer_load_dwordx4 {ar(252,4)}, v{vL16}, {sr(SCODE,4)}, s{sT0} offen")
    srd(SCODE, SW1, 2048 * 1792 * 2)
    a(f"s_cmp_eq_u32 s{sP3}, 7")
    a(f"s_cselect_b32 s{SW1+2}, 0, s{SW1+2}")

def addresses():
    lin(sAKVP, [(sHP, 64 * 640), (sRB, 4 * 640), (sW, 640)], KVP[0])
    lin(sAPQW, [(sRB, 4 * 32768), (sW, 32768), (sHP, 2048)], PQ[0])
    lin(sAPQR, [(sST, 65536), (sRH, 32768), (sKH, 16384)], PQ[0])
    lin(sAKVF, [(sKH, 16 * 768)], KVF[0])
    lin(sASTW, [(sST, 8192), (sDT, 1024), (sKH, 512), (sRH, 256)], ST[0])
    lin(sASTR, [(sST, 8192), (sRH, 256)], ST[0])
    lin(sAHTW, [(sDT, 262144), (sST, 8192), (sRH, 4096), (sKH, 256)], HT[0])
    lin(sAHTR, [(sDT3, 262144), (sW, 65536)], HT[0])
    lin(sAUW, [(sDT3, 229376), (sFT, 8192), (sRH, 4096), (sKH, 2048)], U[0])
    a(f"s_cmp_eq_u32 s{sP3}, 7")
    a(f"s_cselect_b32 s{sAUW}, {WS_BYTES:#x}, s{sAUW}")
    lin(sAUR, [(sDT, 229376), (sW, 57344)], U[0])
    lin(sAX2W, [(sST, 65536), (sRH, 32768), (sDT, 4096), (sKH, 1024)], X2)
    lin(sAX2R, [(sRB, 4 * 32768), (sW, 32768)], X2)
    a(f"s_add_u32 s{sAS2W}, s{sASTW}, {ST2 - ST[0]:#x}")
    lin(sAS2R, [(sRB, 2 * 8192), (sRH, 8192), (sKH, 256)], ST2)
    lin(sAWQT, [(sHP, 98304)], WQT)
    a(f"s_mov_b32 s{sGK}, {fl(-2.0 * 0.7978845608028654 * LOG2E * 0.044715)}")

def next_layer_addresses():
    for r, d in ((sAKVP, KVP[1] - KVP[0]), (sAPQW, PQ[1] - PQ[0]), (sAPQR, PQ[1] - PQ[0]), (sAKVF, KVF[1] - KVF[0]),
                 (sASTW, ST[1] - ST[0]), (sASTR, ST[1] - ST[0]), (sAHTW, HT[1] - HT[0]), (sAHTR, HT[1] - HT[0]),
                 (sAUW, U[1] - U[0]), (sAUR, U[1] - U[0])):
        a(f"s_add_u32 s{r}, s{r}, {d:#x}")

def kv_poison(P, L):
    r = sAKVP
    if L == 1:
        a(f"s_add_u32 s{sT1}, s{sAKVP}, {KVP[1]-KVP[0]:#x}"); r = sT1
    set_exec((1 << 40) - 1)
    ws_store4(P, r)
    a(f"s_mul_i32 s{sT0}, s{sRED}, 384")
    a(f"s_add_u32 s{sT0}, s{sT0}, {KVF[L]:#x}")
    a(f"s_cmp_ge_u32 s{sRED}, 64")
    a(f"s_cselect_b32 s{sT0}, {WS_BYTES:#x}, s{sT0}")
    set_exec((1 << 24) - 1)
    ws_store4(P, sT0)
    set_exec(FULL)
def ht_voff(dst):
    a(f"v_and_b32 v{dst}, 15, v{vL}")
    a(f"v_lshlrev_b32 v{dst}, 4, v{dst}")
    a(f"v_lshl_add_u32 v{dst}, v{vHH}, 9, v{dst}")
    a(f"v_bfe_u32 v{vT0}, v{vL}, 4, 1")
    a(f"v_lshl_add_u32 v{dst}, v{vT0}, 10, v{dst}")
def tile_poison(P, r, delta, step):
    v = vL16
    if r == sAHTW:
        ht_voff(vT1); v = vT1
    if delta:
        a(f"s_add_u32 s{sT0}, s{r}, {delta:#x}"); r = sT0
    for f in range(2): a(f"buffer_store_dwordx4 {vr(P,4)}, v{v}, {sr(SWS,4)}, s{r} offen offset:{step*f} sc1")
def canary_poison(P):
    lines = ((sAHTW, 2048+1024+512+128), (sAUW, 896), (sAUW, 1024+896), (sAHTW, HT[1]-HT[0]+2048+1024+512+128),
             (sAUW, U[1]-U[0]+896), (sAUW, U[1]-U[0]+1024+896), (sAPQW, PQ[1]-PQ[0]+1024+896), (sAX2W, 896))
    a(f"v_lshrrev_b32 v{vT0}, 3, v{vL}")
    for g, (r, d) in enumerate(lines):
        a(f"s_add_u32 s{sT0}, s{r}, {d:#x}")
        if g == 0: a(f"v_mov_b32 v{vT1}, s{sT0}")
        else:
            a(f"v_mov_b32 v{vT2}, s{sT0}")
            a(f"v_cmp_eq_u32 vcc, {g}, v{vT0}")
            a(f"v_cndmask_b32 v{vT1}, v{vT1}, v{vT2}, vcc")
    a(f"v_and_b32 v{vT0}, 7, v{vL}")
    a(f"v_lshl_add_u32 v{vT1}, v{vT0}, 4, v{vT1}")
    a(f"buffer_store_dwordx4 {vr(P,4)}, v{vT1}, {sr(SWS,4)}, 0 offen sc1")
def st_poison(P):
    lin(sT0, [(sB, 3072), (sW, 768)], ST[0])
    set_exec((1 << 48) - 1)
    ws_store4(P, sT0)
    set_exec(FULL)
def set_poi(P):
    for i in range(4): a(f"v_mov_b32 v{P+i}, -1")

def misc_loads():
    lin(sT0, [(sST, 64), (sRH, 32)])
    a(f"v_and_b32 v{vT0}, 31, v{vL}")
    a(f"v_add_u32 v{vT0}, s{sT0}, v{vT0}")
    a(f"v_lshlrev_b32 v{vT1}, 1, v{vT0}")
    a(f"buffer_load_ushort v{vB2}, v{vT1}, {sr(SB2,4)}, 0 offen")
    a(f"v_lshlrev_b32 v{vT0}, 10, v{vT0}")
    a(f"v_lshl_add_u32 v{vOUT}, v{vHH}, 4, v{vT0}")
    lin(sT0, [(sDT, 128), (sKH, 32)])
    a(f"v_add_u32 v{vOUT}, s{sT0}, v{vOUT}")
    a(f"buffer_load_dwordx4 {vr(XR,4)}, v{vOUT}, {sr(SX,4)}, 0 offen")
    a(f"buffer_load_dwordx4 {vr(XR+4,4)}, v{vOUT}, {sr(SX,4)}, 0 offen offset:64")

def touch(srdn, rows_per_wave, lg, pitch, scol_emit, dst):
    n = rows_per_wave << lg
    scol_emit()
    a(f"v_min_u32 v{vT0}, {n-1}, v{vL}")
    a(f"v_lshrrev_b32 v{vT1}, {lg}, v{vT0}")
    a(f"v_mul_u32_u24 v{vT1}, {pitch}, v{vT1}")
    a(f"v_and_b32 v{vT0}, {(1<<lg)-1}, v{vT0}")
    a(f"v_lshl_add_u32 v{vT0}, v{vT0}, 7, v{vT1}")
    a(f"s_mul_i32 s{sT5}, s{sWI}, {rows_per_wave*pitch}")
    a(f"s_add_u32 s{sT4}, s{sT4}, s{sT5}")
    a(f"buffer_load_dword {dst}, v{vT0}, {sr(srdn,4)}, s{sT4} offen")
def touch_w1(dst): touch(SCODE, 16, 2, 3584, lambda: a(f"s_lshl_b32 s{sT4}, s{sXC}, 7"), dst)
def touch_w2(dst):
    def c2():
        a(f"s_and_b32 s{sT4}, s{sB}, 7"); a(f"s_lshl_b32 s{sT4}, s{sT4}, 9")
    touch(SW2, 16, 2, 4096, c2, dst)
def touch_w2h(dst, t0):
    a(f"s_lshr_b32 s{sT4}, s{sWI}, 3")
    a(f"s_add_u32 s{sT4}, s{sT4}, s{sROT2}")
    if t0: a(f"s_add_u32 s{sT4}, s{sT4}, {t0}")
    a(f"s_sub_u32 s{sT5}, s{sT4}, 28")
    a(f"s_cselect_b32 s{sT4}, s{sT4}, s{sT5}")
    a(f"s_and_b32 s{sT5}, s{sWI}, 3")
    a(f"s_mul_i32 s{sT5}, s{sT5}, 28")
    a(f"s_add_u32 s{sT4}, s{sT4}, s{sT5}")
    a(f"s_lshl_b32 s{sT4}, s{sT4}, 1")
    a(f"s_bfe_u32 s{sT5}, s{sWI}, 0x10002")
    a(f"s_add_u32 s{sT4}, s{sT4}, s{sT5}")
    a(f"s_lshl_b32 s{sT4}, s{sT4}, 15")
    a(f"s_and_b32 s{sT5}, s{sB}, 7")
    a(f"s_lshl_b32 s{sT5}, s{sT5}, 9")
    a(f"s_add_u32 s{sT4}, s{sT4}, s{sT5}")
    a(f"s_cmp_eq_u32 s{sP3}, 7")
    a(f"s_cselect_b32 s{sT4}, 0x10000000, s{sT4}")
    a(f"v_min_u32 v{vT0}, 31, v{vL}")
    a(f"v_lshrrev_b32 v{vT1}, 2, v{vT0}")
    a(f"v_and_b32 v{vT0}, 3, v{vT0}")
    a(f"v_lshlrev_b32 v{vT0}, 7, v{vT0}")
    a(f"v_lshl_add_u32 v{vT0}, v{vT1}, 12, v{vT0}")
    a(f"buffer_load_dword {dst}, v{vT0}, {sr(SW2,4)}, s{sT4} offen")
def touch_w1h(dst, t0):
    a(f"s_lshr_b32 s{sT4}, s{sWI}, 3")
    a(f"s_add_u32 s{sT4}, s{sT4}, s{sROT1}")
    if t0: a(f"s_add_u32 s{sT4}, s{sT4}, {t0}")
    a(f"s_and_b32 s{sT4}, s{sT4}, 31")
    a(f"s_and_b32 s{sT5}, s{sWI}, 3")
    a(f"s_lshl_b32 s{sT5}, s{sT5}, 5")
    a(f"s_add_u32 s{sT4}, s{sT4}, s{sT5}")
    a(f"s_lshl_b32 s{sT4}, s{sT4}, 1")
    a(f"s_bfe_u32 s{sT5}, s{sWI}, 0x10002")
    a(f"s_add_u32 s{sT4}, s{sT4}, s{sT5}")
    a(f"s_mul_i32 s{sT4}, s{sT4}, {8*3584}")
    a(f"s_lshl_b32 s{sT5}, s{sXC}, 7")
    a(f"s_add_u32 s{sT4}, s{sT4}, s{sT5}")
    a(f"v_min_u32 v{vT0}, 31, v{vL}")
    a(f"v_lshrrev_b32 v{vT1}, 2, v{vT0}")
    a(f"v_and_b32 v{vT0}, 3, v{vT0}")
    a(f"v_lshlrev_b32 v{vT0}, 7, v{vT0}")
    a(f"v_mul_u32_u24 v{vT1}, 3584, v{vT1}")
    a(f"v_add_u32 v{vT0}, v{vT1}, v{vT0}")
    a(f"buffer_load_dword {dst}, v{vT0}, {sr(SCODE,4)}, s{sT4} offen")
def touch_wo(dst): touch(SWO, 4, 3, 1024, lambda: a(f"s_mov_b32 s{sT4}, 0"), dst)
def touches(L, where):
    dst = "a25" if where in (1, 2, 3, 6, 7, 8) else None
    if optL("T1", L, 6, 0) == where: touch_w1(dst + "2" if dst else "v31")
    if optL("T1A", L, 0, 0) == where: touch_w1h(dst + "2" if dst else "v31", 0)
    if optL("T1B", L, 0, 0) == where: touch_w1h(dst + "5" if dst else "v31", 16)
    if optL("T2", L, 0, 0) == where: touch_w2(dst + "3" if dst else "v31")
    if optL("T2H", L, 9, 0) == where: touch_w2h(dst + "3" if dst else "v31", 0)
    if optL("T2G", L, 0, 0) == where: touch_w2h(dst + "3" if dst else "v31", 14)

def split2(dst, src, t0):
    a(f"v_cvt_pk_bf16_f32 v{t0}, v{src}, v{src}")
    a(f"v_and_b32 v{t0}, 0xffff0000, v{t0}")
    a(f"v_sub_f32 v{dst}, v{src}, v{t0}")
    a(f"v_cvt_pk_bf16_f32 v{dst}, v{t0}, v{dst}")

def stats_to_frags(S, Q, RA):
    a(f"v_mul_f32 v{S}, {fl(-1/512)}, v{S}")
    a(f"v_mul_f32 v{Q}, {fl(1/512)}, v{Q}")
    a(f"v_cmp_eq_u32 vcc, 0, v{vHH}")
    a(f"v_fma_f32 v{Q}, -v{S}, v{S}, v{Q}")
    a(f"v_max_f32 v{Q}, 0, v{Q}")
    a(f"v_add_f32 v{Q}, {fl(1e-5)}, v{Q}")
    a(f"v_rsq_f32 v{vRS}, v{Q}")
    a(f"v_cndmask_b32 v{S}, 0, v{S}, vcc")
    a(f"v_cvt_pk_bf16_f32 v{MA}, v{S}, v{S}")
    a(f"v_cndmask_b32 v{Q}, 0, v{vRS}, vcc")
    a(f"v_and_b32 v{vT0}, 0xffff0000, v{MA}")
    a(f"v_sub_f32 v{S}, v{S}, v{vT0}")
    a(f"v_cvt_pk_bf16_f32 v{MA+1}, v{S}, v{S}")
    split2(RA, Q, vT0)

def stats_check(SB):
    a(f"v_max3_u32 v{vT3}, v{SB+1}, v{SB+3}, v{SB+5}")
    a(f"v_max3_u32 v{vT3}, v{vT3}, v{SB+7}, v{SB+9}")
    a(f"v_max3_u32 v{vT3}, v{vT3}, v{SB+11}, v{SB+13}")
    a(f"v_max_u32 v{vT3}, v{vT3}, v{SB+15}")
    a(f"v_cmp_eq_u32 vcc, -1, v{vT3}")
def stats_sum(SB):
    for n in (4, 2, 1):
        for p in range(n): pk("add", SB+2*p, vr(SB+2*p,2), vr(SB+2*(p+n),2))
    a(f"v_mov_b32 v{SB+2}, v{SB}")
    a(f"v_mov_b32 v{SB+3}, v{SB+1}")
    a(f"v_permlane32_swap_b32 v{SB}, v{SB+2}")
    a(f"v_permlane32_swap_b32 v{SB+1}, v{SB+3}")
    pk("add", SB, vr(SB,2), vr(SB+2,2))

A1B = 128
def a1_issue():
    a(f"s_mov_b32 s{sT3}, s{sKB}")
    for p in range(16):
        a(f"buffer_load_dwordx4 {vr(A1B+4*p,4)}, v{vL16}, {sr(SWS,4)}, s{sT3} offen offset:{(p&1)*2560} sc1")
        if p & 1 and p < 15: a(f"s_add_u32 s{sT3}, s{sT3}, {2*2560}")
def a1_early(L):
    skip = a.newlabel("NOA1E")
    a(f"s_cmp_ge_u32 s{sRED}, 64")
    a(f"s_cbranch_scc1 {skip}")
    with cond():
        a(f"s_lshr_b32 s{sKB}, s{sRED}, 2")
        a(f"s_mul_i32 s{sKB}, s{sKB}, {16*2560}")
        a(f"s_and_b32 s{sT2}, s{sRED}, 3")
        a(f"s_mul_i32 s{sT2}, s{sT2}, 640")
        a(f"s_add_u32 s{sKB}, s{sKB}, s{sT2}")
        a(f"s_add_u32 s{sKB}, s{sKB}, {KVP[L]:#x}")
        if opt("A1C", 0):
            a(f"v_and_b32 v{vT1}, 15, v{vL}")
            a(f"v_mul_u32_u24 v{vT1}, 2560, v{vT1}")
            a(f"buffer_load_dword v{vT3}, v{vT1}, {sr(SWS,4)}, s{sKB} offen offset:544 sc1")
        else:
            set_exec((1 << 35) - 1)
            a1_issue()
            set_exec(FULL)
    a.label(skip)
def a1(L, younger):
    a.c("======== A1 reducer")
    skip = a.newlabel("NOA1")
    a(f"s_cmp_ge_u32 s{sRED}, 64")
    a(f"s_cbranch_scc1 {skip}")
    with cond():
        B = A1B
        a(f"s_mul_i32 s{sT2}, s{sRED}, 384")
        a(f"s_add_u32 s{sT2}, s{sT2}, {KVF[L]:#x}")
        a(f"v_lshlrev_b32 v{vT2}, 3, v{vL}")
        set_exec((1 << 35) - 1)
        def check():
            a(f"v_max3_u32 v{vT3}, v{B}, v{B+4}, v{B+8}")
            a(f"v_min3_u32 v{vT1}, v{B}, v{B+4}, v{B+8}")
            for p in range(3, 15, 2):
                a(f"v_max3_u32 v{vT3}, v{vT3}, v{B+4*p}, v{B+4*p+4}")
                a(f"v_min3_u32 v{vT1}, v{vT1}, v{B+4*p}, v{B+4*p+4}")
            a(f"v_max_u32 v{vT3}, v{vT3}, v{B+60}")
            a(f"v_min_u32 v{vT1}, v{vT1}, v{B+60}")
            a(f"v_cmp_eq_u32 vcc, -1, v{vT3}")
            a(f"v_readlane_b32 s{sT0}, v{vT3}, 34")
            a(f"v_readlane_b32 s{sT1}, v{vT1}, 34")
            a(f"s_xor_b32 s{sT0}, s{sT0}, s{sNON}")
            a(f"s_xor_b32 s{sT1}, s{sT1}, s{sNON}")
            a(f"s_or_b32 s{sT0}, s{sT0}, s{sT1}")
            a(f"s_or_b32 vcc_lo, vcc_lo, s{sT0}")
            a(f"s_or_b64 vcc, vcc, vcc")
        a.vm_done = min(a.vm_done, a.vm - younger - 1)
        if opt("A1C", 0):
            poll(lambda: a(f"buffer_load_dword v{vT3}, v{vT1}, {sr(SWS,4)}, s{sKB} offen offset:544 sc1"),
                 lambda: a(f"v_cmp_ne_u32 vcc, s{sNON}, v{vT3}"), 0x21, pre=a.vm - younger - 1)
            poll(a1_issue, check, 0x20)
        else:
            poll(a1_issue, check, 0x20, pre=a.vm - younger - 1)
        n = 16
        while n > 1:
            n //= 2
            for p in range(n):
                for j in (0, 2): pk("add", B+4*p+j, vr(B+4*p+j,2), vr(B+4*(p+n)+j,2))
        a(f"v_cvt_pk_bf16_f32 v{B+4}, v{B}, v{B+1}")
        a(f"v_cvt_pk_bf16_f32 v{B+5}, v{B+2}, v{B+3}")
        a(f"v_mov_b32_dpp v{B+6}, v{B+4} quad_perm:[1,1,3,3] row_mask:0xf bank_mask:0xf")
        a(f"v_mov_b32_dpp v{B+7}, v{B+5} quad_perm:[1,1,3,3] row_mask:0xf bank_mask:0xf")
        a(f"v_writelane_b32 v{B+4}, s{sNON}, 34")
        set_exec(0x555555555555)
        a(f"buffer_store_dwordx4 {vr(B+4,4)}, v{vT2}, {sr(SWS,4)}, s{sT2} offen sc1")
        set_exec(FULL)
        a("s_nop 1")
    a.label(skip)
    stamp("a1")

XF = 128
def KS(s): return 4 * ((s & 15) >> 1) + (s & 1) + 2 * (s >> 4)
def p1(L):
    ACCK, ACCV, RR = 32, 48, 64
    VV, PK, T1 = 80, 88, 96
    S0, S1, Q0, Q1 = 80, 81, 82, 83
    CF = 84
    CFV, CFQ, RA = 112, 116, 120
    vTQ, vTV = 124, 125
    vW, vXA, vXB = 126, 127, 96
    vCQ, vCV = 97, 98
    vOA, vOB = vTA, vTB
    vTQ2, vTV2 = vTA, vTB
    vKW, vKR = 92, 93
    XA = 88
    vKW2, vKR2 = vT2, 127
    POI = 100
    WFR = 216; NWF = 4; ONESF = 248; CG = 200; CK, CV, CQ = 152, 168, 184
    a.c(f"======== P1 layer {L}")
    xid = {}; wid = {}
    toff = 256
    def addr_setup():
        if L == 0:
            a(f"v_bfe_u32 v{vT0}, v{vL}, 2, 2")
            a(f"v_lshl_add_u32 v{vT0}, v{vHH}, 3, v{vT0}")
            a(f"v_lshlrev_b32 v{vTQ}, 6, v{vT0}")
            a(f"v_bfe_u32 v{vT1}, v{vL}, 4, 1")
            a(f"v_lshl_add_u32 v{vTQ}, v{vT1}, 5, v{vTQ}")
            a(f"v_and_b32 v{vT1}, 3, v{vL}")
            a(f"v_lshl_add_u32 v{vTQ}, v{vT1}, 3, v{vTQ}")
        else:
            a(f"s_and_b32 s{sT5}, s{sROTX}, {opt('XROT', 1)}")
            a(f"s_lshl_b32 s{sT5}, s{sT5}, 14")
            a(f"v_add_u32 v{vTQ}, s{sT5}, v{vL16}")
            a(f"v_xor_b32 v{vTQ2}, 16384, v{vTQ}")
            a(f"v_add_u32 v{vTV2}, 65536, v{vTQ2}")
        a(f"v_add_u32 v{vTV}, 65536, v{vTQ}")
        for i in range(4): a(f"v_accvgpr_write_b32 a{ONESF+i}, s{sONES}")
        for r in ([MA + 2, MA + 3] if L == 0 else []) + [RA + 1, RA + 2, RA + 3, CF + 2, CF + 3, CFV + 2, CFV + 3, CFQ + 2, CFQ + 3]: a(f"v_mov_b32 v{r}, 0")
    def kv_addr():
        a(f"v_bfe_u32 v{vT0}, v{vL}, 4, 1")
        a(f"v_lshl_add_u32 v{vT0}, v{vT0}, 1, v{vHH}")
        a(f"v_mul_u32_u24 v{vT0}, 17, v{vT0}")
        a(f"v_and_b32 v{vT1}, 15, v{vL}")
        a(f"v_add_u32 v{vT0}, v{vT0}, v{vT1}")
        a(f"v_lshlrev_b32 v{vT0}, 5, v{vT0}")
        a(f"v_add_u32 v{vKW2}, s{sWA}, v{vT0}")
        a(f"s_mul_i32 s{sT0}, s{sW}, 544")
        a(f"s_add_u32 s{sT0}, s{sT0}, {L_A + SCR}")
        a(f"v_add_u32 v{vKR2}, s{sT0}, v{vL16}")
    rg = {}
    def RG(s):
        b = WFR + (s % NWF) * 8
        if L == 0:
            o = s * 1024
            a(f"ds_read_b64_tr_b16 {ar(b,2)}, v{vTQ} offset:{32768+o}")
            a(f"ds_read_b64_tr_b16 {ar(b+2,2)}, v{vTQ} offset:{32768+o+toff}")
            a(f"ds_read_b64_tr_b16 {ar(b+4,2)}, v{vTV} offset:{o}")
            rg[s] = a(f"ds_read_b64_tr_b16 {ar(b+6,2)}, v{vTV} offset:{o+toff}")
        else:
            o = (KS(s) & 15) * 1024
            q_, v_ = (vTQ2, vTV2) if KS(s) >= 16 else (vTQ, vTV)
            a(f"ds_read_b128 {ar(b,4)}, v{q_} offset:{32768+o}")
            rg[s] = a(f"ds_read_b128 {ar(b+4,4)}, v{v_} offset:{o}")
    if L == 0:
        a(f"v_lshrrev_b32 v{vT0}, 2, v{vL}")
        a(f"s_lshl_b32 s{sT0}, s{sW}, 4")
        a(f"v_add_u32 v{vT0}, s{sT0}, v{vT0}")
        a(f"v_mul_u32_u24 v{vW}, 3072, v{vT0}")
        a(f"v_and_b32 v{vT0}, 3, v{vL}")
        a(f"v_lshl_add_u32 v{vW}, v{vT0}, 4, v{vW}")
        a(f"s_lshl_b32 s{sT0}, s{sHP}, 6")
        a(f"v_add_u32 v{vW}, s{sT0}, v{vW}")
        lin(sT0, [(sRB, 131072), (sW, 32768)])
        a(f"v_lshrrev_b32 v{vT0}, 3, v{vL}")
        a(f"v_lshlrev_b32 v{vT0}, 10, v{vT0}")
        a(f"v_add_u32 v{vT0}, s{sT0}, v{vT0}")
        a(f"v_and_b32 v{vT1}, 7, v{vL}")
        a(f"v_lshrrev_b32 v{vT2}, 4, v{vL}")
        a(f"v_xor_b32 v{vT1}, v{vT1}, v{vT2}")
        a(f"v_lshl_add_u32 v{vXA}, v{vT1}, 4, v{vT0}")
        a(f"v_xor_b32 v{vXB}, 64, v{vXA}")
        a(f"v_add_u32 v{vXB}, {8192-1024}, v{vXB}")
        a("s_waitcnt lgkmcnt(0)")
        srd(SX, sKA + 0, 2048 * 512 * 2)
        srd(SWQKV, sKA + 2, 512 * 1536 * 2)
        def x_issue(j):
            a(f"s_add_u32 s{sKB}, s{sROTX}, {j}")
            a(f"s_and_b32 s{sKB}, s{sKB}, 7")
            a(f"s_lshl_b32 s{sT1}, s{sKB}, 7")
            a(f"s_add_u32 m0, s{sWB}, {(j&3)*4096}")
            a(f"s_mul_i32 s{sSO}, s{sKB}, {64*3072}")
            a(f"buffer_load_dwordx4 v{vXA}, {sr(SX,4)}, s{sT1} offen lds")
            a(f"buffer_load_dwordx4 v{vXB}, {sr(SX,4)}, s{sT1} offen offset:1024 lds")
            a(f"s_add_u32 m0, s{sWB}, {(j&3)*4096+2048}")
            a(f"s_add_u32 s{sT1}, s{sT1}, 16384")
            a(f"buffer_load_dwordx4 v{vXA}, {sr(SX,4)}, s{sT1} offen lds")
            xid[j] = a(f"buffer_load_dwordx4 v{vXB}, {sr(SX,4)}, s{sT1} offen offset:1024 lds")
        def w_issue(j):
            for seg in (1, 2, 0):
                a(f"s_add_u32 m0, s{sW1K}, {seg*32768 - seg*1024 + j*4096}")
                wid[j] = a(f"buffer_load_dwordx4 v{vW}, {sr(SWQKV,4)}, s{sSO} offen offset:{seg*1024} lds")
        def wo_issue(c):
            for k in range(2):
                j = 2 * c + k
                a(f"s_add_u32 m0, s{sWB}, {j*2048}")
                if j == 0: a(f"s_lshl_b32 s{sSO}, s{sW}, 17")
                else: a(f"s_add_u32 s{sSO}, s{sSO}, 16384")
                a(f"buffer_load_dwordx4 v{vOA}, {sr(SWO,4)}, s{sSO} offen lds")
                G["wo"] = a(f"buffer_load_dwordx4 v{vOB}, {sr(SWO,4)}, s{sSO} offen offset:1024 lds")
        x_issue(0); w_issue(0)
        srd(SWS, 100, WS_BYTES)
        roles2()
        late_srds()
        x_issue(1); w_issue(1)
        touch_wo("a254")
        code_prefetch()
        touches(0, 6)
        for i in range(4): a(f"v_mov_b32 v{POI+i}, -1")
        addresses()
        skip = a.newlabel("NONON")
        a(f"s_cmp_lg_u32 s{sWI}, 0")
        a(f"s_cselect_b32 s{sT0}, 1, s{sB}")
        a(f"s_cmp_lg_u32 s{sT0}, 0")
        a(f"s_cbranch_scc1 {skip}")
        with cond():
            a(f"buffer_load_dword v{vKW}, off, {sr(SWS,4)}, 0 offset:{NONCE} sc1")
        a.label(skip)
        addr_setup()
        a(f"v_add_u32 v{vCQ}, s{sW1K}, v{vTQ}")
        a(f"v_add_u32 v{vCV}, s{sW1K}, v{vTV}")
        for r in (S0, S1, Q0, Q1): a(f"v_mov_b32 v{r}, 0")
        a(f"v_and_b32 v{vT0}, 31, v{vL}")
        a(f"v_bfe_u32 v{vT1}, v{vL}, 1, 3")
        a(f"v_xor_b32 v{vT1}, v{vT1}, v{vHH}")
        a(f"v_lshlrev_b32 v{vT0}, 7, v{vT0}")
        a(f"v_add_u32 v{vT0}, s{sWB}, v{vT0}")
        for t in range(4):
            a(f"v_xor_b32 v{vT2}, {2*t}, v{vT1}")
            a(f"v_lshl_add_u32 v{XA+t}, v{vT2}, 4, v{vT0}")
        a(f"s_lshl_b32 s{sT4}, s{sDT}, 7")
        dma_voff(vOA, vOB, 1024, sT4)
        tr_base(vWTA, vWTB, sRH, None, f"s{sWA}")
        pump.setup(1, 0)
        SCHED = {0: {0: [2, 3], 1: [4, 5], 2: [6], 3: [7]}, 1: {0: [2], 1: [3, 4], 2: [5, 6], 3: [7]}, 2: {0: [2, 3, 4], 1: [5], 2: [6], 3: [7]},
                 3: {0: [2], 1: [3], 2: [4], 3: [5], 4: [6], 5: [7]}, 4: {0: [2, 3], 1: [4], 2: [5], 3: [6], 4: [7]}}[opt("SCHED", 4)]
        JL = max(SCHED)
        cgid = {}
        def CGr(j):
            o = j * 4096
            a(f"ds_read_b64_tr_b16 {ar(CG,2)}, v{vCQ} offset:{32768+o}")
            a(f"ds_read_b64_tr_b16 {ar(CG+2,2)}, v{vCQ} offset:{32768+o+toff}")
            a(f"ds_read_b64_tr_b16 {ar(CG+4,2)}, v{vCV} offset:{o}")
            a(f"ds_read_b64_tr_b16 {ar(CG+6,2)}, v{vCV} offset:{o+toff}")
            a(f"ds_read_b64_tr_b16 {ar(CG+8,2)}, v{vCQ} offset:{o}")
            cgid[j] = a(f"ds_read_b64_tr_b16 {ar(CG+10,2)}, v{vCQ} offset:{o+toff}")
        def colsum(j):
            a.wait(lg=cgid[j])
            for k, c in enumerate((CK, CV, CQ)):
                mfma(ar(c,16), ar(ONESF,4), ar(CG+4*k,4), "0" if j == 0 else ar(c,16))
        def xreads(j):
            a.wait(vm=xid[j])
            return [a(f"ds_read_b128 {vr(XF+16*j+4*t,4)}, v{XA+t} offset:{(j&3)*4096}") for t in range(4)]
        xr = xreads(0)
        a.wait(vm=wid[0])
        a("s_barrier")
        stamp("p1_first")
        CGr(0); RG(0); RG(1); RG(2)
        colsum(0)
        CPY = 104; CS4 = 96
        initld = None
        for j in range(8):
            for t in range(4):
                a.wait(lg=xr[t])
                for k in range(4 if not opt("XNOD", 0) else 0):
                    r = XF + 16 * j + 4 * t + k
                    a(f"v_dot2_f32_bf16 v{S0+(k&1)}, v{r}, s{sONES}, v{S0+(k&1)}")
                    a(f"v_dot2_f32_bf16 v{Q0+(k&1)}, v{r}, v{r}, v{Q0+(k&1)}")
            if j == 7:
                a(f"s_lshr_b32 s{sT0}, s{sRB}, 1")
                a(f"s_sub_u32 s{sT0}, s{sT0}, s{sROTX}")
                a(f"s_and_b32 s{sT0}, s{sT0}, 7")
                a(f"s_cmp_eq_u32 s{sT0}, 0")
                a(f"s_cselect_b32 s{sT1}, 4096, 0")
                a(f"s_add_u32 s{sT1}, s{sT1}, {L_A}")
                a(f"v_add_u32 v{vT1}, s{sT1}, v{vL16}")
                a(f"v_add_u32 v{vT0}, s{sW1K}, v{vT1}")
                a(f"v_accvgpr_read_b32 v{CS4}, a{CK}")
                a(f"v_accvgpr_read_b32 v{CS4+1}, a{CV}")
                a(f"v_accvgpr_read_b32 v{CS4+2}, a{CQ}")
                cw = a(f"ds_write_b128 v{vT0}, {vr(CS4,4)}")
            for s in range(4 * j, 4 * j + 4):
                t = s & 3
                a.wait(lg=rg[s])
                b = WFR + (s % NWF) * 8
                x = vr(XF + 4 * s, 4)
                mfma(vr(ACCK,16), x, ar(b,4), "0" if s == 0 else vr(ACCK,16))
                if s + 3 < 32: RG(s + 3)
                if t == 1 and j < 7 and not opt("XNOC", 0): CGr(j + 1)
                if t == 2 and j < 7: xr = xreads(j + 1)
                if j == 7 and t == 1:
                    for w in range(4): cr = a(f"ds_read_b128 {vr(RR+4*w,4)}, v{vT1} offset:{1024*w}")
                    a(f"s_lshl_b32 s{sT0}, s{sT0}, 12")
                    a(f"s_and_b32 s{sT1}, s{sRB}, 1")
                    a(f"s_lshl_b32 s{sT1}, s{sT1}, 11")
                    a(f"s_add_u32 s{sT0}, s{sT0}, s{sT1}")
                    a(f"s_min_u32 s{sT2}, s{sW}, 2")
                    a(f"s_lshl_b32 s{sT2}, s{sT2}, 15")
                    a(f"s_add_u32 s{sT0}, s{sT0}, s{sT2}")
                    a(f"v_lshlrev_b32 v{vT1}, 8, v{vHH}")
                    a(f"v_sub_u32 v{vT0}, v{vTQ}, v{vT1}")
                    a(f"v_add_u32 v{vT0}, s{sT0}, v{vT0}")
                    for k in range(4): cp = a(f"ds_read_b64_tr_b16 {vr(CPY+2*k,2)}, v{vT0} offset:{512*k}")
                if j == 7 and t == 2:
                    a.wait(lg=cr)
                    for k in range(3):
                        a(f"v_add_f32 v{RR+k}, v{RR+k}, v{RR+4+k}")
                        a(f"v_add_f32 v{RR+8+k}, v{RR+8+k}, v{RR+12+k}")
                if j == 7 and t == 3:
                    split2(CKP, RR, vT0)
                    split2(CVP, RR + 1, vT1)
                mfma(vr(ACCV,16), x, ar(b+4,4), "0" if s == 0 else vr(ACCV,16))
                if t == 0:
                    if j < 7: a.wait(vm=wid[j + 1])
                    else: a.wait(lg=cw)
                    a("s_barrier")
                    if j == 1:
                        skip = a.newlabel("NOINIT")
                        a(f"s_cmp_lg_u32 s{sWI}, 0")
                        a(f"s_cselect_b32 s{sT0}, 1, s{sB}")
                        a(f"s_cmp_lg_u32 s{sT0}, 0")
                        a(f"s_cbranch_scc1 {skip}")
                        with cond():
                            a(f"v_add_u32 v{vKW}, 1, v{vKW}")
                            a(f"v_and_b32 v{vKW}, 0x3fffffff, v{vKW}")
                            a(f"v_or_b32 v{vKW}, 0x40000000, v{vKW}")
                            set_exec(1)
                            a(f"buffer_store_dword v{vKW}, off, {sr(SDBG,4)}, 0 sc1")
                            a(f"buffer_store_dword v{vKW}, off, {sr(SWS,4)}, 0 offset:{NONCE} sc1")
                            set_exec(FULL)
                        a.label(skip)
                if t <= 2 and j in SCHED and t < len(SCHED[j]):
                    x_issue(SCHED[j][t]); w_issue(SCHED[j][t])
                if t == 1 and j >= 4 and opt("WOP", 0) == 0: wo_issue(j - 4)
                if t == 3 and j == JL:
                    misc_loads()
                    touches(0, 8)
                if t == 3 and opt("SLOTST", 0) and j in (1, 3, 6): stamp(f"it{j}")
                if t == 2:
                    if j == 3: touches(0, 7)
                    if j == 5:
                        st_poison(POI); kv_poison(POI, 0); canary_poison(POI)
                    if j == 6:
                        kv_addr()
                        tile_poison(POI, sAPQW, 0, 1024)
                    if j == 6:
                        initld = a(f"buffer_load_dword v{vT3}, off, {sr(SDBG,4)}, 0 sc1")
                    if j == 7:
                        for k in range(3): a(f"v_add_f32 v{RR+k}, v{RR+k}, v{RR+8+k}")
                        a(f"s_lshl_b32 s{sT1}, s{sRB}, 11")
                        a(f"s_add_u32 s{sT3}, s{sAWQT}, s{sT2}")
                        a(f"s_add_u32 s{sT3}, s{sT3}, s{sT1}")
                        a.wait(lg=cp)
                        ws_store4(CPY, sT3); ws_store4(CPY + 4, sT3, 1024)
                if t == 3 and j < 7 and not opt("XNOC", 0): colsum(j + 1)
        stamp("p1_gemm")
        a(f"v_add_f32 v{S0}, v{S0}, v{S1}")
        a(f"v_add_f32 v{Q0}, v{Q0}, v{Q1}")
        a(f"v_mov_b32 v{S1}, v{S0}")
        a(f"v_mov_b32 v{Q1}, v{Q0}")
        for c, p in ((CF, CKP), (CFV, CVP)):
            a(f"v_mov_b32 v{c}, v{p}"); a(f"v_mov_b32 v{c+1}, v{p}")
        a(f"v_permlane32_swap_b32 v{S0}, v{S1}")
        a(f"v_permlane32_swap_b32 v{Q0}, v{Q1}")
        a(f"v_add_f32 v{S0}, v{S0}, v{S1}")
        a(f"v_add_f32 v{Q0}, v{Q0}, v{Q1}")
        split2(CQP, RR + 2, vT1)
        stats_to_frags(S0, Q0, RA)
        mfma(vr(ACCK,16), vr(MA,4), vr(CF,4), vr(ACCK,16))
        mfma(vr(RR,16), vr(RA,4), ar(ONESF,4), "0")
        mfma(vr(ACCV,16), vr(MA,4), vr(CFV,4), vr(ACCV,16))
        touches(0, 1)
    else:
        a(f"s_and_b32 s{sT5}, s{sROTX}, {opt('XROT', 1)}")
        a(f"s_lshl_b32 s{sT5}, s{sT5}, 14")
        a(f"s_add_u32 s{sT4}, s{sAX2R}, s{sT5}")
        a(f"v_and_b32 v{vT0}, 15, v{vL}")
        a(f"v_lshrrev_b32 v{vT1}, 1, v{vT0}")
        a(f"v_and_b32 v{vT0}, 1, v{vT0}")
        a(f"v_lshlrev_b32 v{vT0}, 10, v{vT0}")
        a(f"v_lshl_add_u32 v{PK}, v{vT1}, 12, v{vT0}")
        def XL(s):
            jj = s & 15
            if jj == 0: a(f"s_mov_b32 s{sSO}, s{sT4}")
            elif jj == 8: a(f"s_xor_b32 s{sSO}, s{sT4}, 16384")
            elif jj & 1 == 0: a(f"s_add_u32 s{sSO}, s{sSO}, 4096")
            xid[s] = a(f"buffer_load_dwordx4 {vr(XF+4*s,4)}, v{vL16}, {sr(SWS,4)}, s{sSO} offen offset:{(KS(s)&3)*1024} sc1")
        LA = opt("LA1", 8)
        vMX = vW
        ci = lambda: a(f"buffer_load_dword v{vT3}, v{PK}, {sr(SWS,4)}, s{sAX2R} offen offset:1020 sc1")
        cc = lambda: a(f"v_cmp_eq_u32 vcc, -1, v{vT3}")
        def windowa():
            for s in range(LA): XL(s)
        def windowb():
            for s in range(16, 16 + LA): XL(s)
        ci(); cid = a.vm - 1
        windowa()
        addr_setup()
        next_layer_addresses()
        for c, p in ((CF, CKP), (CFV, CVP)):
            a(f"v_mov_b32 v{c}, v{p}"); a(f"v_mov_b32 v{c+1}, v{p}")
        a(f"v_and_b32 v{vT0}, 31, v{vL}")
        a(f"v_lshlrev_b32 v{vT0}, 3, v{vT0}")
        a(f"v_lshl_add_u32 v{PK+1}, v{vHH}, 12, v{vT0}")
        a(f"s_lshl_b32 s{sT2}, s{sW}, 13")
        a(f"s_add_u32 s{sKB}, s{sAWQT}, s{sT2}")
        a(f"s_mov_b32 s{sT1}, s{sT4}")
        pump.setup(1, 1)
        a(f"s_mov_b32 s{sT4}, s{sT1}")
        a(f"v_mov_b32 v{MA+2}, 0"); a(f"v_mov_b32 v{MA+3}, 0")
        go = a.newlabel("XGO"); redo = a.newlabel("XREDO"); go2 = a.newlabel("XGO2")
        a.wait(vm=cid)
        cc()
        force_fail("FRC")
        a(f"s_cbranch_vccz {go2}")
        st = (a.vm, a.vm_done, dict(xid), list(a.hist))
        poll(ci, cc, 0x41)
        windowa()
        a("s_waitcnt vmcnt(0)")
        a.vm, a.vm_done, _x, a.hist = st; xid.update(_x)
        a.label(go2)
        a("s_barrier")
        stamp("p1_flag")
        a(f"s_branch {go}")
        a.label(redo)
        sv = dict(xid)
        with cond():
            windowa()
        xid.update(sv)
        a.label(go)
        RG(0); RG(1); RG(2)
        a(f"v_mov_b32 v{vMX}, 0")
        a(f"s_mov_b32 s{sT3}, s{sKB}")
        SB = T1
        def issue():
            for p in range(8): a(f"buffer_load_dwordx2 {vr(SB+2*p,2)}, v{PK+1}, {sr(SWS,4)}, s{sAS2R} offen offset:{p*512} sc1")
        qid = None
        LA = opt("LA1", 8)
        ZS = opt("ZS", 10); nb = [16]
        assert ZS + LA >= 16
        for s in range(32):
            if s == 16:
                stamp("p1_a")
                if ZS < 16:
                    go3 = a.newlabel("XGO3")
                    a.wait(vm=sid)
                    stats_check(SB)
                    force_fail("FRC")
                    a(f"s_cbranch_vccz {go3}")
                    st = (a.vm, a.vm_done, dict(xid), list(a.hist))
                    poll(issue, lambda: stats_check(SB), 0x40)
                    windowb()
                    a("s_waitcnt vmcnt(0)")
                    a.vm, a.vm_done, _x, a.hist = st; xid.update(_x)
                    a.label(go3)
                else:
                    spec(issue, lambda: stats_check(SB), windowb, 0x40, a.newlabel("XR0"))
                stamp("p1_st2")
                stats_sum(SB)
                stats_to_frags(SB, SB + 1, RA)
                mfma(vr(RR,16), vr(RA,4), ar(ONESF,4), "0")
                mfma(vr(ACCK,16), vr(MA,4), vr(CF,4), vr(ACCK,16))
                mfma(vr(ACCV,16), vr(MA,4), vr(CFV,4), vr(ACCV,16))
            a.wait(vm=xid[s], lg=rg[s])
            b = WFR + (s % NWF) * 8
            x = vr(XF + 4 * s, 4)
            mfma(vr(ACCK,16), x, ar(b,4), "0" if s == 0 else vr(ACCK,16))
            if s == ZS:
                issue(); sid = a.vm - 1
            if ZS < s < 16:
                per = -(-LA // (15 - ZS))
                for _ in range(per):
                    if nb[0] < 16 + LA: XL(nb[0]); nb[0] += 1
            if (s & 15) + LA < 16: XL(s + LA)
            if s >= 24:
                j = s - 24
                if j == 4: a(f"s_add_u32 s{sT3}, s{sT3}, 4096")
                if j & 3 == 0: a(f"s_add_u32 m0, s{sT2}, {j*1024}")
                qid = a(f"buffer_load_dwordx4 v{vL16}, {sr(SWS,4)}, s{sT3} offen offset:{(j&3)*1024} lds")
            mfma(vr(ACCV,16), x, ar(b+4,4), "0" if s == 0 else vr(ACCV,16))
            if s & 1: a(f"v_max3_u32 v{vMX}, v{vMX}, v{XF+4*s-4}, v{XF+4*s}")
            if s + 3 < 32: RG(s + 3)
            if s == 30: kv_addr()
        verify(vMX, redo)
        stamp("p1_gemm")
    for q in range(8): pk("fma", ACCK+2*q, vr(ACCK+2*q,2), vr(RR+2*q,2), sr(sEPS6,2), hi=[1,1,0])
    for q in range(8): pk("mul", T1+2*q, vr(ACCK+2*q,2), sr(sL2E,2), hi=[1,0])
    for i in range(16):
        a(f"v_exp_f32_e64 v{T1+i}, v{T1+i} clamp")
        a(f"v_max_f32 v{ACCK+i}, s{sEPS6}, v{ACCK+i}")
    for q in range(8): pk("add", ACCK+2*q, vr(ACCK+2*q,2), vr(T1+2*q,2))
    for q in range(8): a(f"v_cvt_pk_bf16_f32 v{PK+q}, v{ACCK+2*q}, v{ACCK+2*q+1}")
    ZA = T1
    for q in range(4): pk("mul", ACCV+2*q, vr(ACCV+2*q,2), vr(RR+2*q,2))
    for q in range(4, 8): pk("mul", ACCV+2*q, vr(ACCV+2*q,2), vr(RR+2*q,2))
    mfma(vr(ZA,16), vr(PK,4), ar(ONESF,4), "0")
    for q in range(4): a(f"v_cvt_pk_bf16_f32 v{VV+q}, v{ACCV+2*q}, v{ACCV+2*q+1}")
    mfma(vr(ZA,16), vr(PK+4,4), ar(ONESF,4), vr(ZA,16))
    for q in range(4, 8): a(f"v_cvt_pk_bf16_f32 v{VV+q}, v{ACCV+2*q}, v{ACCV+2*q+1}")
    KVA = RR
    a(f"v_and_b32 v{vT0}, 16, v{vL}")
    a(f"v_cmp_ne_u32 vcc, 0, v{vT0}")
    mfma(vr(KVA,16), vr(PK,4), vr(VV,4), "0")
    mfma(vr(KVA,16), vr(PK+4,4), vr(VV+4,4), vr(KVA,16))
    a("s_barrier")
    for j in range(8): a(f"v_cndmask_b32 v{ACCK+8+j}, v{ZA+j}, v{ZA+8+j}, vcc")
    set_exec(0x0001000100010001)
    a(f"ds_write_b128 v{vKW2}, {vr(ACCK+8,4)} offset:{SCR+512}")
    a(f"ds_write_b128 v{vKW2}, {vr(ACCK+12,4)} offset:{SCR+528}")
    set_exec(FULL)
    for j in range(4): a(f"v_cndmask_b32 v{ACCK+j}, v{KVA+j}, v{KVA+8+j}, vcc")
    a(f"ds_write_b128 v{vKW2}, {vr(ACCK,4)} offset:{SCR}")
    for j in range(4, 8): a(f"v_cndmask_b32 v{ACCK+j}, v{KVA+j}, v{KVA+8+j}, vcc")
    a(f"ds_write_b128 v{vKW2}, {vr(ACCK+4,4)} offset:{SCR+16}")
    if L == 0:
        def issue(): a(f"buffer_load_dword v{vT3}, off, {sr(SDBG,4)}, 0 sc1")
        def check(): a(f"v_cmp_eq_u32 vcc, 0, v{vT3}")
        poll(issue, check, 0x10, pre=initld)
        a(f"v_readfirstlane_b32 s{sNON}, v{vT3}")
    NQ = 8; QLA = 6
    rq = {}
    def RQ(s):
        b = WFR + (s % NQ) * 4
        if L == 0:
            a(f"ds_read_b64_tr_b16 {ar(b,2)}, v{vTQ} offset:{s*1024}")
            rq[s] = a(f"ds_read_b64_tr_b16 {ar(b+2,2)}, v{vTQ} offset:{s*1024+toff}")
        else:
            rq[s] = a(f"ds_read_b128 {ar(b,4)}, v{vTQ2 if KS(s) >= 16 else vTQ} offset:{(KS(s)&15)*1024}")
    a(f"v_mov_b32 v{CFQ}, v{CQP}"); a(f"v_mov_b32 v{CFQ+1}, v{CQP}")
    if L == 1: a.wait(vm=qid)
    a.wait_lg_all()
    a("s_barrier")
    for w in range(4): kr = a(f"ds_read_b128 {vr(RR+4*w,4)}, v{vKR2} offset:{16384*w}")
    for s in range(QLA): RQ(s)
    ACCQ = ACCK
    mfma(vr(ACCQ,16), vr(CFQ,4), vr(MA,4), "0")
    a.wait(lg=kr)
    for j in range(4): a(f"v_add_f32 v{RR+j}, v{RR+j}, v{RR+4+j}")
    for j in range(4): a(f"v_add_f32 v{RR+8+j}, v{RR+8+j}, v{RR+12+j}")
    for j in range(4): a(f"v_add_f32 v{RR+j}, v{RR+j}, v{RR+8+j}")
    set_exec((1 << 40) - 1)
    a(f"v_writelane_b32 v{RR}, s{sNON}, 34")
    ws_store4(RR, sAKVP)
    set_exec(FULL)
    stamp("p1_kvpub")
    touches(L, 2)
    nfill = optL("F0", L, 0, 0)
    for s in range(32):
        a.wait(lg=rq[s])
        b = WFR + (s % NQ) * 4
        mfma(vr(ACCQ,16), ar(b,4), vr(XF+4*s,4), vr(ACCQ,16))
        if s + QLA < 32: RQ(s + QLA)
        if s % 3 == 1 and pump.i < pump.c + nfill: pump.fill(pump.i + 1)
        if L == 0 and opt("WOP", 0) == 1 and s % 8 == 0: wo_issue(s // 8)
        if opt("POIQ", 1):
            if s == 2: set_poi(VV)
            if s == 3: tile_poison(VV, sAHTW, 0, 2048)
            if s == 6: tile_poison(VV, sAUW, 0, 1024)
            if L == 0 and opt("POIQ", 1) == 2:
                if s == 9: tile_poison(VV, sAPQW, PQ[1] - PQ[0], 1024)
                if s == 12: kv_poison(VV, 1)
                if s == 15: tile_poison(VV, sAX2W, 0, 2048)
        if s == opt("A1S", 26):
            a1_early(L); vm_a1 = a.vm
    for h in range(2):
        for q in range(4*h, 4*h+4): pk("fma", ACCQ+2*q, vr(ACCQ+2*q,2), vr(vRS,2), sr(sEPS6,2), hi=[1,0,0])
        for q in range(4*h, 4*h+4): pk("mul", T1+2*q, vr(ACCQ+2*q,2), sr(sL2E,2), hi=[1,0])
        for i in range(8*h, 8*h+8):
            a(f"v_exp_f32_e64 v{T1+i}, v{T1+i} clamp")
            a(f"v_max_f32 v{ACCQ+i}, s{sEPS6}, v{ACCQ+i}")
        for q in range(4*h, 4*h+4): pk("add", ACCQ+2*q, vr(ACCQ+2*q,2), vr(T1+2*q,2))
        for q in range(4*h, 4*h+4): a(f"v_cvt_pk_bf16_f32 v{PK+q}, v{ACCQ+2*q}, v{ACCQ+2*q+1}")
        ws_store4(PK + 4 * h, sAPQW, 1024 * h)
    if L == 0:
        for k in range(4): a(f"v_mov_b32 v{T1+k}, s{sNON}")
        a(f"s_sub_u32 s{sT0}, s{sAPQW}, {PQ[0]:#x}")
        a(f"s_lshr_b32 s{sT0}, s{sT0}, 4")
        a(f"s_add_u32 s{sT0}, s{sT0}, {TAGQ:#x}")
        set_exec(0xff)
        ws_store4(T1, sT0)
        set_exec(FULL)
    stamp("p1_q")
    a1(L, a.vm - vm_a1)
    pump.fill(pump.c + optL("F1", L, 6, 5))
    touches(L, 3)

def row_stats_publish(soff, SM):
    a(f"v_dot2_f32_bf16 v{SM}, v{XR}, s{sONES}, 0")
    a(f"v_dot2_f32_bf16 v{SM+1}, v{XR}, v{XR}, 0")
    a(f"v_dot2_f32_bf16 v{SM+2}, v{XR+1}, s{sONES}, 0")
    a(f"v_dot2_f32_bf16 v{SM+3}, v{XR+1}, v{XR+1}, 0")
    for j in range(2, 8):
        o = 2 * (j & 1)
        a(f"v_dot2_f32_bf16 v{SM+o}, v{XR+j}, s{sONES}, v{SM+o}")
        a(f"v_dot2_f32_bf16 v{SM+o+1}, v{XR+j}, v{XR+j}, v{SM+o+1}")
    a(f"v_lshlrev_b32 v{vT0}, 3, v{vL}")
    pk("add", SM, vr(SM,2), vr(SM+2,2))
    a(f"v_mov_b32 v{SM+2}, v{SM}")
    a(f"v_mov_b32 v{SM+3}, v{SM+1}")
    a(f"v_permlane32_swap_b32 v{SM}, v{SM+2}")
    a(f"v_permlane32_swap_b32 v{SM+1}, v{SM+3}")
    pk("add", SM, vr(SM,2), vr(SM+2,2))
    a(f"s_mov_b32 exec_hi, 0")
    a(f"v_and_b32 v{SM+1}, 0x7fffffff, v{SM+1}")
    a(f"buffer_store_dwordx2 {vr(SM,2)}, v{vT0}, {sr(SWS,4)}, s{soff} offen sc1")
    set_exec(FULL)

def unpack_xr(XU):
    for j in range(8):
        a(f"v_lshlrev_b32 v{XU+2*j}, 16, v{XR+j}")
        a(f"v_and_b32 v{XU+2*j+1}, 0xffff0000, v{XR+j}")

def p2(L):
    a.c(f"======== P2 layer {L}")
    KF, QF = 128, 192
    ACC = 32; CR = 64; OF = 96; WF = 104; XU = 64
    vK, vKC, vMX = MA, MA + 1, MA + 2
    tr_base(vTA, vTB, None, sKH, L_B)
    a(f"s_lshl_b32 s{sT2}, s{sKH}, 15")
    a(f"v_add_u32 v{vTA}, s{sT2}, v{vTA}")
    a(f"v_add_u32 v{vTB}, s{sT2}, v{vTB}")
    a(f"v_and_b32 v{vT0}, 31, v{vL}")
    a(f"v_mul_u32_u24 v{vKC}, 384, v{vT0}")
    a(f"v_min_u32 v{vT0}, 16, v{vT0}")
    a(f"v_lshlrev_b32 v{vT0}, 4, v{vT0}")
    a(f"v_mul_u32_u24 v{vT1}, 384, v{vHH}")
    a(f"v_add_u32 v{vK}, v{vT0}, v{vT1}")
    a(f"v_and_b32 v{vT2}, 7, v{vL}")
    a(f"v_lshlrev_b32 v{vT2}, {11 if L else 7}, v{vT2}")
    if L == 0:
        a(f"s_sub_u32 s{sT0}, s{sAPQR}, {PQ[0]:#x}")
        a(f"s_lshr_b32 s{sT0}, s{sT0}, 4")
        a(f"s_add_u32 s{sT0}, s{sT0}, {TAGQ:#x}")
    pump.run(min(R1 + 5, optL("B1", L, 18, 21)), refill=bool(optL("B1R", L, 1, 0)))
    if opt("POIQ", 1) == 0:
        set_poi(CR)
        tile_poison(CR, sAHTW, 0, 2048)
    stamp("beta")
    def ldq():
        a(f"s_mov_b32 s{sT4}, s{sAPQR}")
        for j in range(16):
            a(f"buffer_load_dwordx4 {vr(QF+4*j,4)}, v{vL16}, {sr(SWS,4)}, s{sT4} offen offset:{(j&3)*1024} sc1")
            if j & 3 == 3 and j < 15: a(f"s_add_u32 s{sT4}, s{sT4}, 4096")
    if L == 1:
        ci = lambda: a(f"buffer_load_dword v{vT3}, v{vT2}, {sr(SWS,4)}, s{sAPQR} offen offset:2044 sc1")
        cc = lambda: a(f"v_cmp_eq_u32 vcc, -1, v{vT3}")
    else:
        ci = lambda: a(f"buffer_load_dword v{vT3}, v{vT2}, {sr(SWS,4)}, s{sT0} offen sc1")
        cc = lambda: a(f"v_cmp_ne_u32 vcc, s{sNON}, v{vT3}")
    spec(ci, cc, ldq, 0x36 + L, a.newlabel("PQR"), on=opt("SPEC", 15) & 4)
    stamp("p2_pqc")
    if L == 0:
        a.wait(vm=G['wo'])
        for q in range(2):
            a(f"v_permlane32_swap_b32 v{XR+4*q}, v{XR+4*q+2}")
            a(f"v_permlane32_swap_b32 v{XR+4*q+1}, v{XR+4*q+3}")
        a(f"v_lshlrev_b32 v{vB2}, 16, v{vB2}")
    pump.run(min(R1 + 5, pump.i), refill=False)
    pump.run(min(R1 + 5, optL("B2", L, 0, 0)), refill=False)
    pump.fill(pump.c + optL("FK", L, 0, 0))
    a(f"s_xor_b32 s{sT0}, s{sW}, 1")
    a(f"s_lshl_b32 s{sT0}, s{sT0}, 12")
    a(f"v_add_u32 v{vRS}, s{sT0}, v{vL16}")
    a.wait_lg_all()
    a("s_barrier")
    rw = {}
    def RW(j):
        b = WF + (j % 3) * 8
        a(f"ds_read_b64_tr_b16 {vr(b,2)}, v{vTA} offset:{j*2048}")
        a(f"ds_read_b64_tr_b16 {vr(b+2,2)}, v{vTA} offset:{j*2048+1024}")
        a(f"ds_read_b64_tr_b16 {vr(b+4,2)}, v{vTB} offset:{j*2048}")
        rw[j] = a(f"ds_read_b64_tr_b16 {vr(b+6,2)}, v{vTB} offset:{j*2048+1024}")
    lid = {}
    def LD(j):
        if j == 0: a(f"s_mov_b32 s{sSO}, s{sAKVF}")
        elif j & 3 == 0: a(f"s_add_u32 s{sSO}, s{sSO}, {4*768}")
        lid[j] = a(f"buffer_load_dwordx4 {vr(KF+4*j,4)}, v{vK}, {sr(SWS,4)}, s{sSO} offen offset:{(j&3)*768} sc1")
    PLA = optL("PLA", L, 10, 10)
    redo = a.newlabel("P2REDO"); redo2 = a.newlabel("P2REDO2"); over = a.newlabel("P2OVER")
    a(f"s_branch {over}")
    a.label(redo)
    with cond():
        ldq()
        a("s_waitcnt vmcnt(0)")
        a(f"s_branch {redo2}")
    a.label(over)
    def window():
        for j in range(PLA): LD(j)
    spec(lambda: a(f"buffer_load_dword v{vT3}, v{vKC}, {sr(SWS,4)}, s{sAKVF} offen offset:272 sc1"),
         lambda: a(f"v_cmp_ne_u32 vcc, s{sNON}, v{vT3}"), window, 0x38 + L, redo2, on=opt("SPEC", 15) & 2)
    stamp("p2_kvc")
    RW(0); RW(1)
    a(f"v_mov_b32 v{vMX}, 0")
    def M1(j):
        a.wait(vm=lid[j])
        mfma(vr(CR+(j&1)*16,16), vr(KF+4*j,4), vr(QF+4*j,4), "0")
        a(f"v_max3_u32 v{vMX}, v{vMX}, v{KF+4*j}, v{QF+4*j}")
        if j + PLA < 16: LD(j + PLA)
        if j + PLA == 16: touches(L, 9)
    def Va(j):
        c = CR + (j & 1) * 16
        a(f"v_add_f32 v{c+8}, s{sEPS6}, v{c+8}")
        a(f"v_rcp_f32 v{c+8}, v{c+8}")
    def Vb(j):
        c = CR + (j & 1) * 16; o = OF + (j & 1) * 4
        for i in range(4): a(f"v_mul_f32 v{c+i}, v{c+i}, v{c+8}")
        for i in range(2): a(f"v_cvt_pk_bf16_f32 v{o+i}, v{c+2*i}, v{c+2*i+1}")
    def Vc(j):
        c = CR + (j & 1) * 16; o = OF + (j & 1) * 4
        for i in range(4, 8): a(f"v_mul_f32 v{c+i}, v{c+i}, v{c+8}")
        for i in range(2, 4): a(f"v_cvt_pk_bf16_f32 v{o+i}, v{c+2*i}, v{c+2*i+1}")
    M1(0); M1(1)
    Va(0); Vb(0); Vc(0); M1(2)
    nfp = optL("FP2", L, 6, 6)
    kb_saved = False
    for j in range(16):
        o = OF + (j & 1) * 4; b = WF + (j % 3) * 8
        if j + 1 < 16: Va(j + 1)
        a.wait(lg=rw[j])
        mfma(vr(ACC+16,16), vr(b+4,4), vr(o,4), "0" if j == 0 else vr(ACC+16,16))
        if j + 1 < 16: Vb(j + 1)
        mfma(vr(ACC,16), vr(b,4), vr(o,4), "0" if j == 0 else vr(ACC,16))
        if j + 1 < 16: Vc(j + 1)
        if j + 3 < 16: M1(j + 3)
        if j + 2 < 16: RW(j + 2)
    verify(vMX, redo)
    stamp("p2_main")
    lin(sT0, [(sFT, 128), (sRH, 64), (sKH, 32)])
    a(f"v_lshlrev_b32 v{vT0}, 3, v{vHH}")
    for q in range(2): a(f"buffer_load_dwordx2 {vr(152+2*q,2)}, v{vT0}, {sr(SB1,4)}, s{sT0} offen offset:{16*q}")
    for q, r in enumerate((ACC + 24, ACC + 28, ACC + 8, ACC + 12)): a(f"ds_write_b128 v{vRS}, {vr(r,4)} offset:{(q^2)*1024}")
    unpack_xr(XU)
    a(f"v_xor_b32 v{vT1}, 4096, v{vRS}")
    for q in range(4): pk("add", ACC+16+2*q, vr(ACC+16+2*q,2), vr(XU+8+2*q,2))
    for q in range(4): pk("add", ACC+2*q, vr(ACC+2*q,2), vr(XU+2*q,2))
    a.wait_lg_all()
    a("s_barrier")
    own = (ACC, ACC + 4, ACC + 16, ACC + 20)
    ids = [a(f"ds_read_b128 {vr(XU+4*q,4)}, v{vT1} offset:{q*1024}") for q in range(4)]
    for q in range(4):
        a.wait(lg=ids[q])
        pk("add", own[q], vr(own[q],2), vr(XU+4*q,2))
        pk("add", own[q]+2, vr(own[q]+2,2), vr(XU+4*q+2,2))
        a(f"v_cvt_pk_bf16_f32 v{XR+2*q}, v{own[q]}, v{own[q]+1}")
        a(f"v_cvt_pk_bf16_f32 v{XR+2*q+1}, v{own[q]+2}, v{own[q]+3}")
    row_stats_publish(sASTW, OF)
    stamp("p2_stpub")
    pump.run(pump.i, refill=False)
    pump.fill(pump.c + optL("GF", L, 6, 4))
    unpack_xr(XU)
    IDF = 104
    a(f"v_and_b32 v{vT0}, 31, v{vL}")
    a(f"v_lshlrev_b32 v{vT1}, 2, v{vHH}")
    a(f"v_sub_u32 v{vT0}, v{vT0}, v{vT1}")
    a(f"v_mov_b32 v{vT3}, 0x3f80")
    for f in range(2):
        for c in range(4):
            base = 16 * f + ((2 * c) & 3) + 8 * (c >> 1)
            a(f"v_subrev_u32 v{vT1}, {base}, v{vT0}")
            a(f"v_cmp_gt_u32 vcc, 2, v{vT1}")
            a(f"v_lshlrev_b32 v{vT1}, 4, v{vT1}")
            a(f"v_lshlrev_b32 v{vT2}, v{vT1}, v{vT3}")
            a(f"v_cndmask_b32 v{IDF+4*f+c}, 0, v{vT2}, vcc")
    SB = 128
    ht_voff(vRS)
    a(f"v_and_b32 v{vT0}, 31, v{vL}")
    a(f"v_lshlrev_b32 v{vT0}, 3, v{vT0}")
    a(f"v_lshl_add_u32 v{vT2}, v{vHH}, 12, v{vT0}")
    a(f"v_mov_b32 v{SB+18}, {fl(1.0+1e-5)}")
    def issue():
        for p in range(8): a(f"buffer_load_dwordx2 {vr(SB+2*p,2)}, v{vT2}, {sr(SWS,4)}, s{sASTR} offen offset:{p*512} sc1")
    if OPT.get(f"SL{0x34+L:x}", 0): a(f"s_sleep {OPT.get(f'SL{0x34+L:x}', 0)}")
    poll(issue, lambda: stats_check(SB), 0x34 + L)
    stamp("p2_stats")
    if optL("SF", L, 3, 3):
        pump.run(pump.i, refill=False)
        pump.fill(pump.c + optL("SF", L, 3, 3))
    stats_sum(SB)
    a(f"v_mul_f32 v{SB}, {fl(-1/512)}, v{SB}")
    a(f"v_mul_f32 v{SB+1}, {fl(1/512)}, v{SB+1}")
    a(f"v_fma_f32 v{SB+1}, -v{SB}, v{SB}, v{SB+1}")
    a(f"v_max_f32 v{SB+1}, 0, v{SB+1}")
    a(f"v_fmaak_f32 v{SB+1}, v{SB+1}, v{SB+18}, {fl(1e-10)}")
    a(f"v_rsq_f32 v{SB+2}, v{SB+1}")
    a(f"v_mul_f32 v{SB}, v{SB}, v{SB+2}")
    HP_ = 112
    for f in range(2):
        for j in range(4*f, 4*f+4):
            pk("fma", XU+2*j, vr(XU+2*j,2), vr(SB+2,2), vr(SB,2), hi=[1,0,0])
    for f in range(2):
        for j in range(4*f, 4*f+4):
            a(f"v_cvt_pk_bf16_f32 v{HP_+j}, v{XU+2*j}, v{XU+2*j+1}")
        mfma(vr(ACC,16), vr(HP_+4*f,4), vr(IDF+4*f,4), "0" if f == 0 else vr(ACC,16))
    for f in range(2):
        for j in range(4): a(f"v_cvt_pk_bf16_f32 v{ACC+16+4*f+j}, v{ACC+8*f+2*j}, v{ACC+8*f+2*j+1}")
        a(f"buffer_store_dwordx4 {vr(ACC+16+4*f,4)}, v{vRS}, {sr(SWS,4)}, s{sAHTW} offen offset:{2048*f} sc1")
    touches(L, 5)
    stamp(f"p2_{L}")

RING = 96; AUX = 144; NRH = 12
vR1, vR2, vR3, vRA = vT0, vT1, vT2, vRS
LKH = opt("LKH", 10)
class Half:
    def __init__(self, kind, hf, g0):
        self.kind, self.hf, self.g0 = kind, hf, g0
        self.nks, self.srot, self.sbase = (32, sROT1, sAHTR) if kind == 1 else (28, sROT2, sAUR)
        self.vA, self.vC = (vTA, MA + 1) if kind == 1 else (vTB, MA + 2)
        self.vMX = MA
        self.ids = {}; self.cid = None
    def rb(self, s): return RING + ((self.g0 + s) % NRH) * 4
    def LD(self, s):
        if s == 0: a(f"s_lshl_b32 s{sSO}, s{self.srot}, 11")
        elif s & 1 == 0:
            a(f"s_add_u32 s{sSO}, s{sSO}, 4096")
            a(f"s_cmp_eq_u32 s{sSO}, {self.nks*2048}")
            a(f"s_cselect_b32 s{sSO}, 0, s{sSO}")
        self.ids[s] = a(f"buffer_load_dwordx4 {vr(self.rb(s),4)}, v{self.vA}, {sr(SWS,4)}, s{sSO} offen offset:{(s&1)*2048+self.hf*1024} sc1")
    def window(self):
        for s in range(LKH): self.LD(s)
    def can_issue(self):
        off = 2048 + 1024 + 512 + 252 if self.kind == 1 else self.hf * 1024 + 1020
        self.cid = a(f"buffer_load_dword v{vT3}, v{self.vC}, {sr(SWS,4)}, s{self.sbase} offen offset:{off} sc1")
    def can_check(self): a(f"v_cmp_eq_u32 vcc, -1, v{vT3}")
    def MF(self, s, acc):
        A0 = 32 + 32 * self.hf
        wf = wreg(self.kind, s, 4 * acc, 4); af = vr(self.rb(s), 4)
        c = "0" if s == 0 else vr(A0 + 16 * acc, 16)
        A_, B_ = (wf, af) if self.kind == 1 else (af, wf)
        mfma(vr(A0+16*acc,16), A_, B_, c)
    def steps(self, redo, nxt=None, hook=None, force=True):
        n = self.nks
        a(f"v_mov_b32 v{self.vMX}, 0")
        for s in range(n):
            if hook: hook(s, 0)
            a.wait(vm=self.ids[s])
            self.MF(s, 1)
            if s + LKH < n: self.LD(s + LKH)
            elif nxt is not None:
                if s + LKH == n and nxt.kind == 2: nxt.can_issue()
                nxt.LD(s + LKH - n)
            if s & 1: a(f"v_max3_u32 v{self.vMX}, v{self.vMX}, v{self.rb(s-1)}, v{self.rb(s)}")
            self.MF(s, 0)
            if hook: hook(s, 1)
        verify(self.vMX, redo, force=force)
    def run(self, nxt=None, hook=None):
        lab = a.newlabel("PLAIN"); back = a.newlabel("BACK")
        OOL.append((self, nxt, lab, back))
        self.steps(lab, nxt, hook)
        a.label(back)
    def scr(self, k):
        if self.hf == 0: return 0, k * 2048
        if k < 2: return 1, SCR + k * 2048
        return 0, 6144
    def writes(self):
        A0 = 32 + 32 * self.hf
        for k in (1, 2, 0):
            src = (A0 + 8, A0 + 16, A0 + 24)[k]
            area, o = self.scr(k)
            r = (vR1, vR2, vR3)[k]
            if area == 1:
                a(f"v_lshl_add_u32 v{AUX+10+k}, v{r}, 1, v{AUX+9}"); r = AUX + 10 + k
            for q in range(2): a(f"ds_write_b128 v{r}, {vr(src+4*q,4)} offset:{o+q*1024}")
    def reads(self):
        D = 64 - 32 * self.hf
        if self.hf == 1: a(f"v_lshl_add_u32 v{AUX+10}, v{vRA}, 1, v{AUX+9}")
        a.wait_lg_all()
        a("s_barrier")
        ids = {}
        for q in range(2):
            for k in range(3):
                area, o = self.scr(k)
                ids[(q, k)] = a(f"ds_read_b128 {vr(D+8*k+4*q,4)}, v{AUX+10 if area else vRA} offset:{o+q*1024}")
        A0 = 32 + 32 * self.hf
        for q in range(2):
            a.wait(lg=ids[(q, 1)])
            for j in (0, 2): pk("add", D+4*q+j, vr(D+4*q+j,2), vr(D+8+4*q+j,2))
            a.wait(lg=ids[(q, 2)])
            for j in (0, 2): pk("add", A0+4*q+j, vr(A0+4*q+j,2), vr(D+16+4*q+j,2))
            for j in (0, 2): pk("add", A0+4*q+j, vr(A0+4*q+j,2), vr(D+4*q+j,2))
    def woven(self, D):
        A0 = 32 + 32 * self.hf
        ops = []
        ids = {}
        wl = a.lg - 1
        def bar():
            if self.hf == 1: a(f"v_lshl_add_u32 v{AUX+10}, v{vRA}, 1, v{AUX+9}")
            a.wait(lg=wl); a("s_barrier")
        ops.append(bar)
        def rd(q, k):
            area, o = self.scr(k)
            ids[(q, k)] = a(f"ds_read_b128 {vr(D+8*k+4*q,4)}, v{AUX+10 if area else vRA} offset:{o+q*1024}")
        for q in range(2):
            for k in range(3): ops.append(lambda q=q, k=k: rd(q, k))
        ops.append(None); ops.append(None); ops.append(None)
        for q in range(2):
            for k in range(3):
                for j in range(4):
                    def ad(q=q, k=k, j=j):
                        a.wait(lg=ids[(q, k)])
                        a(f"v_add_f32 v{A0+4*q+j}, v{A0+4*q+j}, v{D+8*k+4*q+j}")
                    ops.append(ad)
        return ops
    def late_check(self, code):
        go = a.newlabel("GO")
        a.wait(vm=self.cid)
        self.can_check()
        force_fail("FRC")
        a(f"s_cbranch_vccz {go}")
        st = (a.vm, a.vm_done, a.lg, a.lg_done, dict(self.ids), self.cid, list(a.hist))
        poll(self.can_issue, self.can_check, code)
        self.window()
        a("s_waitcnt vmcnt(0)")
        a.vm, a.vm_done, a.lg, a.lg_done, self.ids, self.cid, a.hist = st
        a.label(go)
OOL = []
def mix_setup():
    a(f"v_add_u32 v{vTA}, s{sAHTR}, v{vL16}")
    a(f"v_min_u32 v{vT0}, 31, v{vL}")
    a(f"v_lshrrev_b32 v{vT1}, 1, v{vT0}")
    a(f"v_and_b32 v{vT0}, 1, v{vT0}")
    a(f"v_lshlrev_b32 v{vT0}, 8, v{vT0}")
    a(f"v_lshl_add_u32 v{MA+1}, v{vT1}, 12, v{vT0}")
    a(f"s_lshl_b32 s{sT0}, s{sKH}, 8")
    a(f"v_xor_b32 v{vTB}, s{sT0}, v{vL16}")
    a(f"v_add_u32 v{vTB}, s{sAUR}, v{vTB}")
    a(f"v_min_u32 v{MA+2}, 27, v{vL}")
    a(f"v_lshlrev_b32 v{MA+2}, 11, v{MA+2}")
    for acc, r in ((1, vR1), (2, vR2), (3, vR3)):
        a(f"s_xor_b32 s{sT0}, s{sW}, {acc}")
        a(f"s_lshl_b32 s{sT0}, s{sT0}, 13")
        a(f"v_add_u32 v{r}, s{sT0}, v{vL16}")
    a(f"s_lshl_b32 s{sT0}, s{sW}, 13")
    a(f"v_add_u32 v{vRA}, s{sT0}, v{vL16}")
    a(f"v_sub_u32 v{AUX+9}, {L_A}, v{vL16}")

def p34(L):
    a.c(f"======== P3 layer {L}")
    B1R = AUX
    pump.run(pump.i, refill=True)
    pump.run(32)
    a.wait_lg_all()
    if L == 1: a("s_barrier")
    pump.setup(2, L, extra=optL("XB", L, 0, 8))
    pump.run(optL("V2", L, 5, 0), refill=False)
    pump.fill(pump.c + optL("V2F", L, 0, 8))
    assert pump.c <= R2
    if L == 0: a("s_barrier")
    for j in range(4):
        a(f"v_lshlrev_b32 v{B1R+2*j}, 16, v{152+j}")
        a(f"v_and_b32 v{B1R+2*j+1}, 0xffff0000, v{152+j}")
    mix_setup()
    K1 = -2.0 * 0.7978845608028654 * LOG2E
    a(f"v_mov_b32 v{AUX+8}, {fl(K1)}")
    SPX = optL("SPX", L, 1, 1)
    h3a = Half(1, 0, 0); h3b = Half(1, 1, 32); h4a = Half(2, 0, 64); h4b = Half(2, 1, 92)
    stamp("p3_delta")
    idle = a.newlabel("P3IDLE"); join = a.newlabel("P3JOIN")
    pst = (pump.i, pump.c, dict(pump.vid), dict(pump.lid))
    a(f"s_cmp_eq_u32 s{sP3}, 7")
    a(f"s_cbranch_scc1 {idle}")
    IDN = optL("IDT", L, 18, 0)
    ntail = optL("V2T", L, 0, 0); nepi = optL("V2E", L, 6, 3)
    def gelu_store(hf):
        A0 = 32 + 32 * hf; T = A0 + 16
        for q in range(4): pk("mul", T+2*q, vr(A0+2*q,2), vr(A0+2*q,2))
        for q in range(4): pk("fma", T+2*q, vr(T+2*q,2), sr(sT2,2), vr(AUX+8,2), hi=[1,0,0])
        for q in range(4): pk("mul", T+2*q, vr(T+2*q,2), vr(A0+2*q,2))
        for i in range(8): a(f"v_exp_f32 v{T+i}, v{T+i}")
        for q in range(4): pk("add", T+2*q, vr(T+2*q,2), "1.0", hi=[1,0])
        for i in range(8): a(f"v_rcp_f32 v{T+i}, v{T+i}")
        for q in range(4): pk("mul", A0+2*q, vr(A0+2*q,2), vr(T+2*q,2))
        for q in range(4): a(f"v_cvt_pk_bf16_f32 v{T+8+q}, v{A0+2*q}, v{A0+2*q+1}")
        ws_store4(T + 8, sAUW, 1024 * hf)
    with cond():
        a(f"s_mov_b32 s{sT2}, s{sGK}")
        spec(h3a.can_issue, h3a.can_check, h3a.window, 0x50 + L, a.newlabel("SREDO"))
        stamp("canary")
        h3a.run(nxt=h3b)
        stamp("gemm_a")
        h3a.writes()
        pump.fill(pump.i + nepi)
        for q in range(4): pk("add", 32+2*q, vr(32+2*q,2), vr(B1R+2*q,2))
        h3a.reads()
        gelu_store(0)
        stamp("epi_a")
        i0 = pump.i
        def hk(s, k):
            if k == 1 and s + LKH >= 32 and (s & 1) and pump.i < i0 + ntail: pump.fill(pump.i + 1)
        h3b.run(nxt=h4a if SPX else None, hook=hk)
        assert ntail <= 5
        stamp("gemm_b")
        h3b.writes()
        n2 = pump.i
        nmid = pump.i
        if optL("EB", L, 1, 0): pump.run(pump.i if optL("EB", L, 1, 0) == 2 else min(R2, pump.i), refill=False, tmp=(AUX + 14, AUX + 15))
        cact = pump.c
        pump.fill(pump.i + optL("V2E2", L, 4, 3))
        nact = pump.i; n2 = nact - n2
        for q in range(4): pk("add", 64+2*q, vr(64+2*q,2), vr(B1R+2*q,2))
        h3b.reads()
        gelu_store(1)
        if SPX: h4a.late_check(0x60 + L)
        a(f"s_branch {join}")
    a.label(idle)
    pump.i, pump.c, pump.vid, pump.lid = pst
    if IDN:
        a(f"v_lshrrev_b32 v{RING}, 2, v{vL}")
        a(f"v_lshlrev_b32 v{RING}, 12, v{RING}")
        a(f"v_and_b32 v{RING+1}, 3, v{vL}")
        a(f"v_lshl_add_u32 v{RING}, v{RING+1}, 7, v{RING}")
        a(f"s_bfe_u32 s{sT0}, s{sWI}, 0x20002")
        a(f"s_mul_i32 s{sT0}, s{sT0}, {28*65536}")
        a(f"s_and_b32 s{sT1}, s{sB}, 7")
        a(f"s_lshl_b32 s{sT1}, s{sT1}, 9")
        a(f"s_add_u32 s{sT0}, s{sT0}, s{sT1}")
        a(f"v_add_u32 v{RING}, s{sT0}, v{RING}")
        a(f"s_add_u32 s{sT1}, s{sW}, s{sROT2}")
        a(f"s_add_u32 s{sT1}, s{sT1}, {28 - IDN}")
        for k in range((IDN + 3) // 4):
            a(f"s_sub_u32 s{sT2}, s{sT1}, 28")
            a(f"s_cselect_b32 s{sT1}, s{sT1}, s{sT2}")
            a(f"s_lshl_b32 s{sT2}, s{sT1}, 16")
            a(f"buffer_load_dword v31, v{RING}, {sr(SW2,4)}, s{sT2} offen")
            a(f"s_add_u32 s{sT1}, s{sT1}, 4")
    nlate = n2 if SPX else 0
    pump.fill(nmid)
    if SPX:
        poll(h4a.can_issue, h4a.can_check, 0x5e)
        h4a.window()
    pump.run(cact, refill=False, tmp=(AUX + 14, AUX + 15))
    pump.fill(nact)
    a.label(join)
    a.hist = []
    stamp(f"p3_{L}")
    a.c(f"======== P4 layer {L}")
    if L == 0:
        set_poi(64)
        tile_poison(64, sAX2W, 0, 2048)
        tile_poison(64, sAPQW, PQ[1] - PQ[0], 1024)
        kv_poison(64, 1)
    cinit = pst[1]
    NKT = opt("NKT", 10)
    def kvdma(j):
        if j == 0: a(f"s_add_u32 s{sT3}, s{sAWQT}, s{sWA}")
        if j & 3 == 0:
            a(f"s_add_u32 m0, s{sWA}, {j*1024}")
            if j: a(f"s_add_u32 s{sT3}, s{sT3}, 4096")
        a(f"buffer_load_dwordx4 v{vL16}, {sr(SWS,4)}, s{sT3} offen offset:{(j&3)*1024} lds")
    if SPX:
        WV = opt("WV", 2); AH = optL("AH", L, 3, 4)
        pump.run(min(pump.i, pump.c + optL("PRE", L, 0, 0)), tmp=(AUX, AUX + 1))
        landed = pump.i; c0 = pump.c
        def hk(s, k):
            if k == 1:
                lim = max(min(landed, c0 + WV * (s + 1)), min(28, s + AH))
                pump.run(lim, tmp=(AUX, AUX + 1), first=(s == 0))
            if k == 0 and s >= cinit:
                assert pump.c > s
                if not opt("NOPUMP", 0): a.wait(lg=pump.lid[s])
        h4a.run(nxt=h4b, hook=hk)
    else:
        pump.run(28, tmp=(AUX, AUX + 1))
        stamp("p4_w2")
        a.wait_lg_all()
        spec(h4a.can_issue, h4a.can_check, h4a.window, 0x60 + L, a.newlabel("SREDO"))
        stamp("canary")
        h4a.run(nxt=h4b)
    stamp("gemm_a")
    def resid(hf):
        A0 = 32 + 32 * hf; XU = AUX
        for j in range(4):
            a(f"v_lshlrev_b32 v{XU+2*j}, 16, v{XR+4*hf+j}")
            a(f"v_and_b32 v{XU+2*j+1}, 0xffff0000, v{XR+4*hf+j}")
        for q in range(4): pk("add", XU+2*q, vr(XU+2*q,2), vr(vB2-1,2), lo=[0,1], hi=[1,1])
        for q in range(4): pk("add", A0+2*q, vr(A0+2*q,2), vr(XU+2*q,2))
    def out(hf):
        A0 = 32 + 32 * hf
        for q in range(4): a(f"v_cvt_pk_bf16_f32 v{XR+4*hf+q}, v{A0+2*q}, v{A0+2*q+1}")
        if L == 0: ws_store4(XR + 4 * hf, sAX2W, 2048 * hf)
        else:
            a(f"v_permlane32_swap_b32 v{XR+4*hf}, v{XR+4*hf+2}")
            a(f"v_permlane32_swap_b32 v{XR+4*hf+1}, v{XR+4*hf+3}")
            a(f"buffer_store_dwordx4 {vr(XR+4*hf,4)}, v{vOUT}, {sr(SOUT,4)}, 0 offen offset:{64*hf}")
    wv = []
    if optL("WE4", L, 1, 1):
        h4a.writes()
        wv = h4a.woven(40)
        XU = AUX
        pre = []
        for j in range(4):
            pre.append(lambda j=j: a(f"v_lshlrev_b32 v{XU+2*j}, 16, v{XR+j}"))
            pre.append(lambda j=j: a(f"v_and_b32 v{XU+2*j+1}, 0xffff0000, v{XR+j}"))
        for j in range(8): pre.append(lambda j=j: a(f"v_add_f32 v{32+j}, v{32+j}, v{vB2}"))
        for j in range(8): wv.append(lambda j=j: a(f"v_add_f32 v{32+j}, v{32+j}, v{XU+j}"))
        wv = pre[:8] + wv[:1] + wv[1:7] + pre[8:] + wv[10:]
        wv.append(lambda: out(0))
    else:
        h4a.writes(); resid(0); h4a.reads(); out(0)
    h4b.late_check(0x62 + L)
    stamp("epi_a")
    kc = [0]
    WPS = opt("WPS", 2)
    def hk(s, k):
        for _ in range(WPS if k == 1 else WPS - 1):
            if wv:
                f = wv.pop(0)
                if f: f()
        if L == 0 and k == 1 and s + LKH >= 28 and kc[0] < NKT:
            kvdma(kc[0]); kc[0] += 1
    h4b.run(hook=hk)
    assert not wv
    stamp("gemm_b")
    h4b.writes(); resid(1); h4b.reads(); out(1)
    if L == 0:
        row_stats_publish(sAS2W, 32)
        for j in range(kc[0], 16): kvdma(j)
    stamp(f"p4_{L}")

def emit_ool():
    for h, nxt, lab, back in OOL:
        a.label(lab)
        a.hist = []
        a.vm_done = a.vm
        h.window()
        h.steps(lab, force=False)
        if nxt is not None:
            if nxt.kind == 2: nxt.can_issue()
            nxt.window()
            a("s_waitcnt vmcnt(0)")
        a("s_nop 15")
        a(f"s_branch {back}")

prologue()
for L in range(2):
    p1(L); p2(L); p34(L)
finish()
a.label("L_END")
emit_ool()
a.label("L_EXIT")
a("s_endpgm")

hdr = open(f"ref.s").read().split("; Override launch")[0]
out = hdr + f"""; @launch grid=(256,1,1) block=(256,1,1) lds={LDS_BYTES}
.amdgcn_target "amdgcn-amd-amdhsa--gfx950"
.text
.globl {NAME}_kernel
.p2align 8
.type {NAME}_kernel,@function
{NAME}_kernel:
""" + a.text() + f""".section .rodata,"a"
.p2align 6
.amdhsa_kernel {NAME}_kernel
  .amdhsa_next_free_vgpr 512
  .amdhsa_next_free_sgpr 102
  .amdhsa_accum_offset 256
  .amdhsa_group_segment_fixed_size 0
  .amdhsa_kernarg_size 88
  .amdhsa_user_sgpr_count 2
  .amdhsa_user_sgpr_kernarg_segment_ptr 1
  .amdhsa_system_sgpr_workgroup_id_x 1
  .amdhsa_float_denorm_mode_32 3
.end_amdhsa_kernel
"""
outp = [x for x in sys.argv[1:] if x.endswith(".s")]
open(outp[0], "w").write(out)
if DIAG: open(outp[0] + ".stamps", "w").write("\n".join(stamp_names))
```

```python
import sys, struct
from contextlib import contextmanager
from asmlib import Asm, vr, ar, sr

NAME = "interleave_layers__linear_attn_block__mixer_token_mlp__prompt"
DIAG = "--diag" in sys.argv
OPT = {}
for a_ in sys.argv:
    if a_.startswith("-D"):
        k_, v_ = a_[2:].split("="); OPT[k_] = int(v_)
def opt(k, d): return OPT.get(k, d)
def optL(k, L, d0, d1): return OPT.get(f"{k}_{L}", (d0, d1)[L])
def f2u(x): return struct.unpack("<I", struct.pack("<f", x))[0]
def fl(x): return "0x%08x" % f2u(x)
FULL = (1 << 64) - 1
LOG2E = 1.4426950408889634

KVF = [0x2000, 0xC0000]; KVP = [0x8000, 0xC6000]; ST = [0x166000, 0x1A6000]; ST2 = 0x1E6000
SELFP = 0xC0000
PQ = [0x400000, 0x600000]; HT = [0x800000, 0xA00000]; U = [0xC00000, 0xE00000]; X2 = 0x1000000
WQT = 0x1200000
TS = 0x1400000
DUMP = 0x1500000
ERRS = 0x1520000
NONCE = 0x0; TAGQ = 0x1540000
WS_BYTES = 268435456
L_A = 32768; L_B = 98304; LDS_BYTES = 163840
NS = 6; SCR = 12288
sW = 3
SX, SWQKV, SWO, SW1, SW2, SWS, SOUT, SDBG, SB1, SB2, SCODE = 4, 8, 12, 16, 20, 24, 28, 32, 36, 40, 44
sST, sDT, sRB, sHP, sDT3, sFT, sP3, sRH, sKH, sWB, sTO, sONES = 48, 49, 50, 51, 52, 53, 54, 55, 56, 57, 58, 59
sEPS6 = 60; sB = 61
sT0, sT1, sT2, sT3, sT4, sT5 = 62, 63, 64, 65, 66, 67
sSO = 68; sW1K = 69; sTS = 70
sL2E = 74; sWA = 75; sROTX = 76; sROT1 = 77; sROT2 = 78; sRED = 79; sWOFF = 80; sKB = 81; sXC = 82; sWI = 83
sKA = 84
sAKVP, sAPQW, sAPQR, sAKVF, sASTW, sASTR, sAHTW, sAHTR, sAUW, sAUR, sAX2W, sAX2R, sAS2W, sAS2R, sAWQT, sGK = range(84, 100)
sDUM = 100; sNON = 101
vL, vL16, vTA, vTB, vT0, vT1, vT2, vT3 = 0, 1, 2, 3, 4, 5, 6, 7
XR = 8
CKP, CVP, CQP, vB2, vRS, vHH, vOUT, vTSV = 16, 17, 18, 19, 20, 21, 22, 23
vWA, vWB, vWTA, vWTB = 24, 25, 26, 27
MA = 28

a = Asm()
stamp_names = []
G = {}

@contextmanager
def cond():
    st = (a.vm, a.vm_done, a.lg, a.lg_done); h = list(a.hist)
    yield
    a.vm, a.vm_done, a.lg, a.lg_done = st[0], min(st[1], st[0]), st[2], min(st[3], st[2])
    a.hist = h

def stamp(name):
    if not DIAG: return
    if "--lite" in sys.argv and name not in ("start", "end", "p4_0"): return
    k = len(stamp_names); stamp_names.append(name)
    if opt("CYC", 0) and name not in ("start", "end"): a(f"s_memtime {sr(sTS,2)}")
    else: a(f"s_memrealtime {sr(sTS,2)}")
    if name in ("start", "end"): a(f"s_memtime {sr(sTS+2,2)}")
    a("s_waitcnt lgkmcnt(0)"); a.lg_done = a.lg
    a(f"v_writelane_b32 v{vTSV}, s{sTS}, {k}")
    if name in ("start", "end"): a(f"v_writelane_b32 v{vTSV}, s{sTS+2}, {62 if name == 'start' else 63}")

def srd(base, ptr, nbytes):
    a(f"s_mov_b32 s{base}, s{ptr}")
    a(f"s_and_b32 s{base+1}, s{ptr+1}, 0xffff")
    a(f"s_mov_b32 s{base+2}, {nbytes:#x}")
    a(f"s_mov_b32 s{base+3}, 0x20000")

def set_exec(mask):
    if mask == FULL: a("s_mov_b64 exec, -1")
    elif mask <= 64: a(f"s_mov_b64 exec, {mask}")
    else:
        a(f"s_mov_b32 exec_lo, {mask & 0xffffffff:#x}"); a(f"s_mov_b32 exec_hi, {mask >> 32:#x}")

def lin(dst, terms, const=0):
    first = True
    for r, m in terms:
        t = dst if first else sT5
        if m == 1 and not first: a(f"s_add_u32 s{dst}, s{dst}, s{r}"); continue
        if m & (m - 1) == 0: a(f"s_lshl_b32 s{t}, s{r}, {m.bit_length()-1}")
        else: a(f"s_mul_i32 s{t}, s{r}, {m}")
        if not first: a(f"s_add_u32 s{dst}, s{dst}, s{sT5}")
        first = False
    if const: a(f"s_add_u32 s{dst}, s{dst}, {const:#x}")

def timeout_path(code):
    a(f"s_mov_b32 s{sTO}, 0")
    if DIAG:
        a(f"v_mov_b32 v{vT3}, {code}")
        a(f"s_mov_b32 s{sT5}, {ERRS:#x}")
        a(f"buffer_store_dword v{vT3}, off, {sr(SWS,4)}, s{sT5}")
        a("s_waitcnt vmcnt(0)")

def poll(issue, check, code, pre=None):
    top = a.newlabel("POLL"); done = a.newlabel("PDONE"); chk = a.newlabel("PCHK")
    if pre is not None:
        a.wait(vm=pre)
        st = (a.vm, a.vm_done)
        a(f"s_branch {chk}")
    a.label(top)
    issue()
    a.wait_vm_all(force=True)
    if pre is not None: a.label(chk)
    check()
    a(f"s_cbranch_vccz {done}")
    h = list(a.hist); vmst = (a.vm, a.vm_done)
    if opt("PS", 2): a(f"s_sleep {opt('PS', 2)}")
    a(f"s_sub_u32 s{sTO}, s{sTO}, 1")
    a(f"s_cbranch_scc0 {top}")
    timeout_path(code)
    a.label(done)
    a.hist = h; a.vm, a.vm_done = vmst
    if pre is not None: a.vm, a.vm_done = st

def poll1(addr, code, tmp=None, tag=False):
    cmp = (lambda r: a(f"v_cmp_ne_u32 vcc, s{sNON}, v{r}")) if tag else (lambda r: a(f"v_cmp_eq_u32 vcc, -1, v{r}"))
    if tmp is None or not opt("PP", 0):
        poll(lambda: a(f"buffer_load_dword v{vT3}, {addr} sc1"), lambda: cmp(vT3), code)
        return
    top = a.newlabel("PP"); done = a.newlabel("PPD")
    a(f"buffer_load_dword v{vT3}, {addr} sc1")
    a(f"s_nop {opt('PPN', 15)}")
    a.label(top)
    for r, o in ((vT3, tmp), (tmp, vT3)):
        a(f"buffer_load_dword v{o}, {addr} sc1")
        a("s_waitcnt vmcnt(1)")
        cmp(r)
        a(f"s_cbranch_vccz {done}")
    h = list(a.hist)
    a(f"s_sub_u32 s{sTO}, s{sTO}, 2")
    a(f"s_cbranch_scc0 {top}")
    timeout_path(code)
    a.label(done)
    a.hist = h
    a.vm -= 1
    a.vm_done = a.vm - 1

SLD = {}
SPD = {0x50: 1, 0x51: 1, 0x60: 1, 0x61: 1, 0x36: 1, 0x38: 1, 0x39: 1, 0x40: 1}
def spec(can_issue, can_check, window, code, redo, on=True):
    go = a.newlabel("GO")
    d = OPT.get(f"SL{code:x}", SLD.get(code, 0))
    if d: a(f"s_sleep {d}")
    on = OPT.get(f"SP{code:x}", SPD.get(code, 0))
    if on:
        can_issue(); cid = a.vm - 1
        window()
        a.wait(vm=cid)
        can_check()
        force_fail("FRC")
        a(f"s_cbranch_vccz {go}")
        st = (a.vm, a.vm_done, list(a.hist))
        poll(can_issue, can_check, code)
        a.label(redo)
        window()
        a.label(go)
        a.hist = []
        a("s_nop 0")
    else:
        poll(can_issue, can_check, code)
        a.label(redo)
        window()

force_n = [0]
def force_fail(kind):
    if not opt(kind, 0): return
    k = force_n[0] % 32; force_n[0] += 1
    l = a.newlabel("FF")
    a(f"s_bitcmp1_b32 s2, {k}")
    a(f"s_cbranch_scc1 {l}")
    a(f"s_bitset1_b32 s2, {k}")
    a("s_mov_b64 vcc, 1")
    a.label(l)

def verify(vMX, redo, force=True):
    ok = a.newlabel("VOK")
    a(f"v_cmp_eq_u32 vcc, -1, v{vMX}")
    if force: force_fail("FRV")
    a(f"s_cbranch_vccz {ok}")
    h = list(a.hist)
    a("s_waitcnt vmcnt(0)")
    a(f"s_sub_u32 s{sTO}, s{sTO}, 64")
    a(f"s_cbranch_scc0 {redo}")
    a(f"s_mov_b32 s{sTO}, 0")
    a.label(ok)
    a.hist = h

def finish():
    if opt("AMP", -1) >= 0:
        lp = a.newlabel("AMPL"); sk = a.newlabel("AMPS")
        stamp("pre_end")
        a(f"s_cmp_lg_u32 s{sB}, 77")
        a(f"s_cbranch_scc1 {sk}")
        a(f"v_readlane_b32 s{sT0}, v{vTSV}, 0")
        a(f"v_readlane_b32 s{sT1}, v{vTSV}, {opt('AMP', 0)}")
        a(f"s_memrealtime s[70:71]")
        a("s_waitcnt lgkmcnt(0)")
        a(f"s_sub_u32 s{sT1}, s{sT1}, s{sT0}")
        a(f"s_lshl_b32 s{sT1}, s{sT1}, 2")
        a(f"s_add_u32 s{sT1}, s70, s{sT1}")
        a.label(lp)
        a(f"s_memrealtime s[70:71]")
        a("s_waitcnt lgkmcnt(0)")
        a(f"s_sub_u32 s{sT2}, s70, s{sT1}")
        a(f"s_cmp_lt_i32 s{sT2}, 0")
        a(f"s_cbranch_scc1 {lp}")
        a.label(sk)
    if DIAG:
        stamp("end")
        lin(sT0, [(sB, 1024), (sW, 256)], TS)
        a(f"v_lshlrev_b32 v{vT0}, 2, v{vL}")
        a(f"buffer_store_dword v{vTSV}, v{vT0}, {sr(SWS,4)}, s{sT0} offen")
    a("s_endpgm")

def pk(op, d, x, y, z=None, hi=None, lo=None):
    ops = [x, y] + ([z] if z is not None else [])
    m = ""
    if lo: m += " op_sel:[" + ",".join(map(str, lo)) + "]"
    if hi: m += " op_sel_hi:[" + ",".join(map(str, hi)) + "]"
    a(f"v_pk_{op}_f32 {vr(d,2)}, " + ", ".join(ops) + m)

def mfma(d, A, B, C):
    a(f"v_mfma_f32_32x32x16_bf16 {d}, {A}, {B}, {C}")

def ws_store4(reg, soff, off=0): return a(f"buffer_store_dwordx4 {vr(reg,4)}, v{vL16}, {sr(SWS,4)}, s{soff} offen offset:{off} sc1")

def tr_base(dst_a, dst_b, sel64, sel32, region):
    a(f"v_bfe_u32 v{vT0}, v{vL}, 2, 2")
    a(f"v_lshl_add_u32 v{vT0}, v{vHH}, 2, v{vT0}")
    a(f"v_lshlrev_b32 v{dst_a}, 7, v{vT0}")
    a(f"v_bfe_u32 v{vT1}, v{vL}, 3, 1")
    a(f"v_lshl_add_u32 v{dst_a}, v{vT1}, 6, v{dst_a}")
    a(f"v_bfe_u32 v{vT1}, v{vL}, 4, 1")
    a(f"v_lshl_add_u32 v{dst_a}, v{vT1}, 5, v{dst_a}")
    a(f"v_and_b32 v{vT1}, 3, v{vL}")
    a(f"v_lshl_add_u32 v{dst_a}, v{vT1}, 3, v{dst_a}")
    for sel, sh in ((sel64, 6), (sel32, 5)):
        if sel is not None:
            a(f"s_lshl_b32 s{sT5}, s{sel}, {sh}")
            a(f"v_xor_b32 v{dst_a}, s{sT5}, v{dst_a}")
    a(f"v_add_u32 v{dst_a}, {region}, v{dst_a}")
    a(f"v_xor_b32 v{dst_b}, 64, v{dst_a}")

def dma_voff(dst, dst2, pitch, scol):
    a(f"v_lshrrev_b32 v{vT0}, 3, v{vL}")
    a(f"v_mul_u32_u24 v{dst}, {pitch}, v{vT0}")
    a(f"v_bfe_u32 v{vT1}, v{vL}, 4, 1")
    a(f"v_lshlrev_b32 v{vT1}, 2, v{vT1}")
    a(f"v_and_b32 v{vT0}, 7, v{vL}")
    a(f"v_xor_b32 v{vT0}, v{vT0}, v{vT1}")
    a(f"v_lshl_add_u32 v{dst}, v{vT0}, 4, v{dst}")
    a(f"v_add_u32 v{dst}, s{scol}, v{dst}")
    a(f"v_add_u32 v{dst2}, {8*pitch-1024}, v{dst}")

R1, R2 = 16, 11
def wreg(kind, t, j, n):
    r, base = (R1, 0) if kind == 1 else (R2, R1 * 8)
    if t < r: return ar(base + 8 * t + j, n)
    t -= r
    if t < 5: return ar(216 + 8 * t + j, n)
    return vr(160 + 8 * (t - 5) + j, n)

class Pump:
    def setup(self, kind, L, extra=0):
        self.kind = kind
        self.pitch, self.srd, self.n = (3584, SW1, 32) if kind == 1 else (4096, SW2, 28)
        self.t0 = 0 if L == 0 else (R1 if kind == 1 else R2)
        self.extra = extra
        self.i = self.t0; self.c = self.t0; self.vid = {}; self.lid = {}
        a.c(f"pump setup W{kind}")
        a(f"s_lshl_b32 s{sT5}, s{sKH}, 5")
        a(f"v_xor_b32 v{vWTA}, s{sT5}, v{vWTA}")
        a(f"v_xor_b32 v{vWTB}, s{sT5}, v{vWTB}")
        lin(sT4, [(sFT if kind == 1 else sST, 128), (sW, self.n * 16 * self.pitch)])
        dma_voff(vWA, vWB, self.pitch, sT4)
        rot = sROT1 if kind == 1 else sROT2
        a(f"s_add_u32 s{sT5}, s{rot}, {self.t0}")
        a(f"s_sub_u32 s{sWOFF}, s{sT5}, {self.n}")
        a(f"s_cselect_b32 s{sWOFF}, s{sT5}, s{sWOFF}")
        a(f"s_mul_i32 s{sWOFF}, s{sWOFF}, {16*self.pitch}")
    def place(self, t):
        k = t - self.t0
        if k < self.extra: return ("B", k * 2048)
        return ("A", ((k - self.extra) % NS) * 2048)
    def prev_user(self, t):
        p = t - NS
        return p if p - self.t0 >= self.extra else None
    def room(self, lag=0):
        p = self.prev_user(self.i)
        return p is None or p < self.c - lag
    def issue1(self):
        t = self.i
        if opt("NOPUMP", 0):
            self.vid[t] = None; self.i += 1; return
        p = self.prev_user(t)
        if p is not None: a.wait(lg=self.lid[p])
        reg, o = self.place(t)
        a(f"s_add_u32 m0, s{sWB if reg == 'B' else sWA}, {o}")
        if t > self.t0:
            a(f"s_add_u32 s{sWOFF}, s{sWOFF}, {16*self.pitch}")
            a(f"s_cmp_eq_u32 s{sWOFF}, {self.n*16*self.pitch}")
            a(f"s_cselect_b32 s{sWOFF}, 0, s{sWOFF}")
        a(f"buffer_load_dwordx4 v{vWA}, {sr(self.srd,4)}, s{sWOFF} offen lds")
        self.vid[t] = a(f"buffer_load_dwordx4 v{vWB}, {sr(self.srd,4)}, s{sWOFF} offen offset:1024 lds")
        self.i += 1
    def fill(self, upto=None):
        lim = self.n if upto is None else min(self.n, upto)
        while self.i < lim and self.room(): self.issue1()
    def run(self, target, refill=True, tmp=(vT0, vT1), first=True):
        target = min(target, self.n)
        haveB = not first
        while self.c < target:
            t = self.c
            if t >= self.i: self.issue1()
            if opt("NOPUMP", 0):
                self.c += 1; continue
            reg, o = self.place(t)
            ta, tb = vWTA, vWTB
            if reg == "B":
                ta, tb = tmp
                if not haveB:
                    a(f"v_add_u32 v{ta}, 65536, v{vWTA}"); a(f"v_add_u32 v{tb}, 65536, v{vWTB}"); haveB = True
            a.wait(vm=self.vid[t])
            a(f"ds_read_b64_tr_b16 {wreg(self.kind,t,0,2)}, v{ta} offset:{o}")
            a(f"ds_read_b64_tr_b16 {wreg(self.kind,t,2,2)}, v{ta} offset:{o+1024}")
            a(f"ds_read_b64_tr_b16 {wreg(self.kind,t,4,2)}, v{tb} offset:{o}")
            self.lid[t] = a(f"ds_read_b64_tr_b16 {wreg(self.kind,t,6,2)}, v{tb} offset:{o+1024}")
            self.c += 1
            lim = self.n if refill else target
            if self.i < lim and self.room(lag=1): self.issue1()
        if refill: self.fill()
pump = Pump()

def prologue():
    a(f"s_cmp_ge_u32 s2, 256")
    a(f"s_cbranch_scc1 L_EXIT")
    a(f"s_load_dwordx16 {sr(sKA,16)}, s[0:1], 0")
    a(f"s_load_dwordx4 {sr(SCODE,4)}, s[0:1], 64")
    a(f"s_load_dwordx2 s[100:101], s[0:1], 80")
    a(f"s_mov_b32 s{sB}, s2")
    if opt("FRV", 0) or opt("FRC", 0): a("s_mov_b32 s2, 0")
    a(f"v_lshrrev_b32 v{vT0}, 6, v0")
    a(f"v_and_b32 v{vL}, 63, v0")
    a(f"v_readfirstlane_b32 s{sW}, v{vT0}")
    a(f"v_lshlrev_b32 v{vL16}, 4, v{vL}")
    a(f"v_lshrrev_b32 v{vHH}, 5, v{vL}")
    if opt("CODEPF", 1) == 2:
        a(f"s_getpc_b64 {sr(SB1,2)}")
        a.label("L_PC")
        a(f"s_and_b32 s{SB1+1}, s{SB1+1}, 0xffff")
        a(f"s_mov_b32 s{SB1+2}, L_END - L_PC")
        a(f"s_mov_b32 s{SB1+3}, 0x20000")
        a(f"s_lshr_b32 s{sT0}, s{sB}, 3")
        a(f"s_lshl_b32 s{sT0}, s{sT0}, 2")
        a(f"s_add_u32 s{sT0}, s{sT0}, s{sW}")
        a(f"s_lshl_b32 s{sT0}, s{sT0}, 10")
        a(f"buffer_load_dwordx4 {ar(252,4)}, v{vL16}, {sr(SB1,4)}, s{sT0} offen")
    if DIAG: a(f"v_mov_b32 v{vTSV}, 0")
    stamp("start")
    X_, I_ = sT0, sT1
    a(f"s_and_b32 s{X_}, s{sB}, 7")
    a(f"s_lshr_b32 s{I_}, s{sB}, 3")
    a(f"s_lshr_b32 s{sT2}, s{I_}, 3")
    a(f"s_and_b32 s{sDT}, s{I_}, 7")
    a(f"s_and_b32 s{sRB}, s{X_}, 3")
    a(f"s_lshl_b32 s{sRB}, s{sRB}, 2")
    a(f"s_add_u32 s{sRB}, s{sRB}, s{sT2}")
    a(f"s_lshr_b32 s{sHP}, s{X_}, 2")
    a(f"s_lshl_b32 s{sHP}, s{sHP}, 3")
    a(f"s_add_u32 s{sHP}, s{sHP}, s{sDT}")
    a(f"s_lshr_b32 s{sROTX}, s{sDT}, 1")
    a(f"s_add_u32 s{sROTX}, s{sROTX}, s{sT2}")
    a(f"s_and_b32 s{sROTX}, s{sROTX}, 3")
    a(f"s_lshl_b32 s{sROTX}, s{sROTX}, 1")
    a(f"s_and_b32 s{sT3}, s{I_}, 1")
    a(f"s_add_u32 s{sROTX}, s{sROTX}, s{sT3}")
    a(f"s_lshl_b32 s{sW1K}, s{sW}, 10")
    a(f"s_lshl_b32 s{sWB}, s{sW}, 14")
    a(f"s_add_u32 s{sWA}, s{sWB}, {L_A}")
    a(f"s_add_u32 s{sWB}, s{sWB}, {L_B}")

def roles2():
    X_, I_ = sT0, sT1
    a(f"s_and_b32 s{X_}, s{sB}, 7")
    a(f"s_lshr_b32 s{I_}, s{sB}, 3")
    a(f"s_lshr_b32 s{sT2}, s{I_}, 3")
    a(f"s_lshl_b32 s{sST}, s{X_}, 2")
    a(f"s_add_u32 s{sST}, s{sST}, s{sT2}")
    a(f"s_lshr_b32 s{sT3}, s{X_}, 1")
    a(f"s_mul_i32 s{sT3}, s{sT3}, 7")
    a(f"s_and_b32 s{sT4}, s{X_}, 1")
    a(f"s_lshl_b32 s{sT5}, s{sT4}, 2")
    a(f"s_add_u32 s{sFT}, s{sT3}, s{sT5}")
    a(f"s_add_u32 s{sFT}, s{sFT}, s{sT2}")
    a(f"s_and_b32 s{sP3}, s{I_}, 3")
    a(f"s_add_u32 s{sT5}, s{sT5}, s{sP3}")
    a(f"s_add_u32 s{sKB}, s{sT3}, 3")
    a(f"s_cmp_lt_u32 s{I_}, 24")
    a(f"s_cselect_b32 s{sFT}, s{sFT}, s{sKB}")
    a(f"s_cselect_b32 s{sDT3}, s{sDT}, s{sT5}")
    a(f"s_mul_i32 s{sT4}, s{sT4}, 3")
    a(f"s_add_u32 s{sXC}, s{sT3}, s{sT4}")
    a(f"s_lshl_b32 s{sROT1}, s{X_}, 2")
    a(f"s_and_b32 s{sT3}, s{I_}, 3")
    a(f"s_lshr_b32 s{sP3}, s{I_}, 2")
    a(f"s_lshl_b32 s{sWI}, s{I_}, 2")
    a(f"s_add_u32 s{sWI}, s{sWI}, s{sW}")
    a(f"s_lshl_b32 s{sRED}, s{X_}, 2")
    a(f"s_add_u32 s{sRED}, s{sRED}, s{sT3}")
    a(f"s_lshl_b32 s{sRED}, s{sRED}, 1")
    a(f"s_add_u32 s{sRED}, s{sRED}, s{sW}")
    a(f"s_cmp_lt_u32 s{sW}, 2")
    a(f"s_cselect_b32 s{sRED}, s{sRED}, 99")
    a(f"s_cmp_eq_u32 s{sP3}, 7")
    a(f"s_cselect_b32 s{sRED}, s{sRED}, 99")
    a(f"s_mul_i32 s{sROT2}, s{X_}, 7")
    a(f"s_lshr_b32 s{sROT2}, s{sROT2}, 2")
    a(f"s_lshl_b32 s{sROT2}, s{sROT2}, 1")
    a(f"s_lshr_b32 s{sRH}, s{sW}, 1")
    a(f"s_and_b32 s{sKH}, s{sW}, 1")
    a(f"s_mov_b32 s{sTO}, 400000")
    a(f"s_mov_b32 s{sONES}, 0x3f803f80")
    a(f"s_mov_b32 s{sEPS6}, {fl(1e-6)}")
    a(f"s_mov_b32 s{sL2E}, {fl(LOG2E)}")

def late_srds():
    srd(SWO, sKA + 4, 512 * 512 * 2)
    srd(SW1, sKA + 8, 2048 * 1792 * 2)
    srd(SB1, sKA + 10, 1792 * 2)
    srd(SW2, sKA + 12, 1792 * 2048 * 2)
    srd(SB2, sKA + 14, 2048 * 2)
    srd(SOUT, SCODE, 2048 * 512 * 2)
    srd(SDBG, SCODE + 2, 256)

def code_prefetch():
    if opt("CODEPF", 1) == 1:
        a(f"s_getpc_b64 {sr(SCODE,2)}")
        a.label("L_PC")
        a(f"s_and_b32 s{SCODE+1}, s{SCODE+1}, 0xffff")
        a(f"s_mov_b32 s{SCODE+2}, L_END - L_PC")
        a(f"s_mov_b32 s{SCODE+3}, 0x20000")
        a(f"s_lshl_b32 s{sT0}, s{sWI}, 10")
        a(f"buffer_load_dwordx4 {ar(252,4)}, v{vL16}, {sr(SCODE,4)}, s{sT0} offen")
    srd(SCODE, SW1, 2048 * 1792 * 2)
    a(f"s_cmp_eq_u32 s{sP3}, 7")
    a(f"s_cselect_b32 s{SW1+2}, 0, s{SW1+2}")

def addresses():
    lin(sAKVP, [(sHP, 64 * 640), (sRB, 4 * 640), (sW, 640)], KVP[0])
    lin(sAPQW, [(sRB, 4 * 32768), (sW, 32768), (sHP, 2048)], PQ[0])
    lin(sAPQR, [(sST, 65536), (sRH, 32768), (sKH, 16384)], PQ[0])
    lin(sAKVF, [(sKH, 16 * 768)], KVF[0])
    lin(sASTW, [(sST, 8192), (sDT, 1024), (sKH, 512), (sRH, 256)], ST[0])
    lin(sASTR, [(sST, 8192), (sRH, 256)], ST[0])
    lin(sAHTW, [(sDT, 262144), (sST, 8192), (sRH, 4096), (sKH, 256)], HT[0])
    lin(sAHTR, [(sDT3, 262144), (sW, 65536)], HT[0])
    lin(sAUW, [(sDT3, 229376), (sFT, 8192), (sRH, 4096), (sKH, 2048)], U[0])
    a(f"s_cmp_eq_u32 s{sP3}, 7")
    a(f"s_cselect_b32 s{sAUW}, {WS_BYTES:#x}, s{sAUW}")
    lin(sAUR, [(sDT, 229376), (sW, 57344)], U[0])
    lin(sAX2W, [(sST, 65536), (sRH, 32768), (sDT, 4096), (sKH, 1024)], X2)
    lin(sAX2R, [(sRB, 4 * 32768), (sW, 32768)], X2)
    a(f"s_add_u32 s{sAS2W}, s{sASTW}, {ST2 - ST[0]:#x}")
    lin(sAS2R, [(sRB, 2 * 8192), (sRH, 8192), (sKH, 256)], ST2)
    lin(sAWQT, [(sHP, 98304)], WQT)
    a(f"s_mov_b32 s{sGK}, {fl(-2.0 * 0.7978845608028654 * LOG2E * 0.044715)}")

def next_layer_addresses():
    for r, d in ((sAKVP, KVP[1] - KVP[0]), (sAPQW, PQ[1] - PQ[0]), (sAPQR, PQ[1] - PQ[0]), (sAKVF, KVF[1] - KVF[0]),
                 (sASTW, ST[1] - ST[0]), (sASTR, ST[1] - ST[0]), (sAHTW, HT[1] - HT[0]), (sAHTR, HT[1] - HT[0]),
                 (sAUW, U[1] - U[0]), (sAUR, U[1] - U[0])):
        a(f"s_add_u32 s{r}, s{r}, {d:#x}")

def kv_poison(P, L):
    r = sAKVP
    if L == 1:
        a(f"s_add_u32 s{sT1}, s{sAKVP}, {KVP[1]-KVP[0]:#x}"); r = sT1
    set_exec((1 << 40) - 1)
    ws_store4(P, r)
    a(f"s_mul_i32 s{sT0}, s{sRED}, 384")
    a(f"s_add_u32 s{sT0}, s{sT0}, {KVF[L]:#x}")
    a(f"s_cmp_ge_u32 s{sRED}, 64")
    a(f"s_cselect_b32 s{sT0}, {WS_BYTES:#x}, s{sT0}")
    set_exec((1 << 24) - 1)
    ws_store4(P, sT0)
    set_exec(FULL)
def ht_voff(dst):
    a(f"v_and_b32 v{dst}, 15, v{vL}")
    a(f"v_lshlrev_b32 v{dst}, 4, v{dst}")
    a(f"v_lshl_add_u32 v{dst}, v{vHH}, 9, v{dst}")
    a(f"v_bfe_u32 v{vT0}, v{vL}, 4, 1")
    a(f"v_lshl_add_u32 v{dst}, v{vT0}, 10, v{dst}")
def tile_poison(P, r, delta, step):
    v = vL16
    if r == sAHTW:
        ht_voff(vT1); v = vT1
    if delta:
        a(f"s_add_u32 s{sT0}, s{r}, {delta:#x}"); r = sT0
    for f in range(2): a(f"buffer_store_dwordx4 {vr(P,4)}, v{v}, {sr(SWS,4)}, s{r} offen offset:{step*f} sc1")
def canary_poison(P):
    lines = ((sAHTW, 2048+1024+512+128), (sAUW, 896), (sAUW, 1024+896), (sAHTW, HT[1]-HT[0]+2048+1024+512+128),
             (sAUW, U[1]-U[0]+896), (sAUW, U[1]-U[0]+1024+896), (sAPQW, PQ[1]-PQ[0]+1024+896), (sAX2W, 896))
    a(f"v_lshrrev_b32 v{vT0}, 3, v{vL}")
    for g, (r, d) in enumerate(lines):
        a(f"s_add_u32 s{sT0}, s{r}, {d:#x}")
        if g == 0: a(f"v_mov_b32 v{vT1}, s{sT0}")
        else:
            a(f"v_mov_b32 v{vT2}, s{sT0}")
            a(f"v_cmp_eq_u32 vcc, {g}, v{vT0}")
            a(f"v_cndmask_b32 v{vT1}, v{vT1}, v{vT2}, vcc")
    a(f"v_and_b32 v{vT0}, 7, v{vL}")
    a(f"v_lshl_add_u32 v{vT1}, v{vT0}, 4, v{vT1}")
    a(f"buffer_store_dwordx4 {vr(P,4)}, v{vT1}, {sr(SWS,4)}, 0 offen sc1")
def st_poison(P):
    lin(sT0, [(sB, 3072), (sW, 768)], ST[0])
    set_exec((1 << 48) - 1)
    ws_store4(P, sT0)
    set_exec(FULL)
def set_poi(P):
    for i in range(4): a(f"v_mov_b32 v{P+i}, -1")

def misc_loads():
    lin(sT0, [(sST, 64), (sRH, 32)])
    a(f"v_and_b32 v{vT0}, 31, v{vL}")
    a(f"v_add_u32 v{vT0}, s{sT0}, v{vT0}")
    a(f"v_lshlrev_b32 v{vT1}, 1, v{vT0}")
    a(f"buffer_load_ushort v{vB2}, v{vT1}, {sr(SB2,4)}, 0 offen")
    a(f"v_lshlrev_b32 v{vT0}, 10, v{vT0}")
    a(f"v_lshl_add_u32 v{vOUT}, v{vHH}, 4, v{vT0}")
    lin(sT0, [(sDT, 128), (sKH, 32)])
    a(f"v_add_u32 v{vOUT}, s{sT0}, v{vOUT}")
    a(f"buffer_load_dwordx4 {vr(XR,4)}, v{vOUT}, {sr(SX,4)}, 0 offen")
    a(f"buffer_load_dwordx4 {vr(XR+4,4)}, v{vOUT}, {sr(SX,4)}, 0 offen offset:64")

def touch(srdn, rows_per_wave, lg, pitch, scol_emit, dst):
    n = rows_per_wave << lg
    scol_emit()
    a(f"v_min_u32 v{vT0}, {n-1}, v{vL}")
    a(f"v_lshrrev_b32 v{vT1}, {lg}, v{vT0}")
    a(f"v_mul_u32_u24 v{vT1}, {pitch}, v{vT1}")
    a(f"v_and_b32 v{vT0}, {(1<<lg)-1}, v{vT0}")
    a(f"v_lshl_add_u32 v{vT0}, v{vT0}, 7, v{vT1}")
    a(f"s_mul_i32 s{sT5}, s{sWI}, {rows_per_wave*pitch}")
    a(f"s_add_u32 s{sT4}, s{sT4}, s{sT5}")
    a(f"buffer_load_dword {dst}, v{vT0}, {sr(srdn,4)}, s{sT4} offen")
def touch_w1(dst): touch(SCODE, 16, 2, 3584, lambda: a(f"s_lshl_b32 s{sT4}, s{sXC}, 7"), dst)
def touch_w2(dst):
    def c2():
        a(f"s_and_b32 s{sT4}, s{sB}, 7"); a(f"s_lshl_b32 s{sT4}, s{sT4}, 9")
    touch(SW2, 16, 2, 4096, c2, dst)
def touch_w2h(dst, t0):
    a(f"s_lshr_b32 s{sT4}, s{sWI}, 3")
    a(f"s_add_u32 s{sT4}, s{sT4}, s{sROT2}")
    if t0: a(f"s_add_u32 s{sT4}, s{sT4}, {t0}")
    a(f"s_sub_u32 s{sT5}, s{sT4}, 28")
    a(f"s_cselect_b32 s{sT4}, s{sT4}, s{sT5}")
    a(f"s_and_b32 s{sT5}, s{sWI}, 3")
    a(f"s_mul_i32 s{sT5}, s{sT5}, 28")
    a(f"s_add_u32 s{sT4}, s{sT4}, s{sT5}")
    a(f"s_lshl_b32 s{sT4}, s{sT4}, 1")
    a(f"s_bfe_u32 s{sT5}, s{sWI}, 0x10002")
    a(f"s_add_u32 s{sT4}, s{sT4}, s{sT5}")
    a(f"s_lshl_b32 s{sT4}, s{sT4}, 15")
    a(f"s_and_b32 s{sT5}, s{sB}, 7")
    a(f"s_lshl_b32 s{sT5}, s{sT5}, 9")
    a(f"s_add_u32 s{sT4}, s{sT4}, s{sT5}")
    a(f"s_cmp_eq_u32 s{sP3}, 7")
    a(f"s_cselect_b32 s{sT4}, 0x10000000, s{sT4}")
    a(f"v_min_u32 v{vT0}, 31, v{vL}")
    a(f"v_lshrrev_b32 v{vT1}, 2, v{vT0}")
    a(f"v_and_b32 v{vT0}, 3, v{vT0}")
    a(f"v_lshlrev_b32 v{vT0}, 7, v{vT0}")
    a(f"v_lshl_add_u32 v{vT0}, v{vT1}, 12, v{vT0}")
    a(f"buffer_load_dword {dst}, v{vT0}, {sr(SW2,4)}, s{sT4} offen")
def touch_w1h(dst, t0):
    a(f"s_lshr_b32 s{sT4}, s{sWI}, 3")
    a(f"s_add_u32 s{sT4}, s{sT4}, s{sROT1}")
    if t0: a(f"s_add_u32 s{sT4}, s{sT4}, {t0}")
    a(f"s_and_b32 s{sT4}, s{sT4}, 31")
    a(f"s_and_b32 s{sT5}, s{sWI}, 3")
    a(f"s_lshl_b32 s{sT5}, s{sT5}, 5")
    a(f"s_add_u32 s{sT4}, s{sT4}, s{sT5}")
    a(f"s_lshl_b32 s{sT4}, s{sT4}, 1")
    a(f"s_bfe_u32 s{sT5}, s{sWI}, 0x10002")
    a(f"s_add_u32 s{sT4}, s{sT4}, s{sT5}")
    a(f"s_mul_i32 s{sT4}, s{sT4}, {8*3584}")
    a(f"s_lshl_b32 s{sT5}, s{sXC}, 7")
    a(f"s_add_u32 s{sT4}, s{sT4}, s{sT5}")
    a(f"v_min_u32 v{vT0}, 31, v{vL}")
    a(f"v_lshrrev_b32 v{vT1}, 2, v{vT0}")
    a(f"v_and_b32 v{vT0}, 3, v{vT0}")
    a(f"v_lshlrev_b32 v{vT0}, 7, v{vT0}")
    a(f"v_mul_u32_u24 v{vT1}, 3584, v{vT1}")
    a(f"v_add_u32 v{vT0}, v{vT1}, v{vT0}")
    a(f"buffer_load_dword {dst}, v{vT0}, {sr(SCODE,4)}, s{sT4} offen")
def touch_wo(dst): touch(SWO, 4, 3, 1024, lambda: a(f"s_mov_b32 s{sT4}, 0"), dst)
def touches(L, where):
    dst = "a25" if where in (1, 2, 3, 6, 7, 8) else None
    if optL("T1", L, 6, 0) == where: touch_w1(dst + "2" if dst else "v31")
    if optL("T1A", L, 0, 0) == where: touch_w1h(dst + "2" if dst else "v31", 0)
    if optL("T1B", L, 0, 0) == where: touch_w1h(dst + "5" if dst else "v31", 16)
    if optL("T2", L, 0, 0) == where: touch_w2(dst + "3" if dst else "v31")
    if optL("T2H", L, 9, 0) == where: touch_w2h(dst + "3" if dst else "v31", 0)
    if optL("T2G", L, 0, 0) == where: touch_w2h(dst + "3" if dst else "v31", 14)

def split2(dst, src, t0):
    a(f"v_cvt_pk_bf16_f32 v{t0}, v{src}, v{src}")
    a(f"v_and_b32 v{t0}, 0xffff0000, v{t0}")
    a(f"v_sub_f32 v{dst}, v{src}, v{t0}")
    a(f"v_cvt_pk_bf16_f32 v{dst}, v{t0}, v{dst}")

def stats_to_frags(S, Q, RA):
    a(f"v_mul_f32 v{S}, {fl(-1/512)}, v{S}")
    a(f"v_mul_f32 v{Q}, {fl(1/512)}, v{Q}")
    a(f"v_cmp_eq_u32 vcc, 0, v{vHH}")
    a(f"v_fma_f32 v{Q}, -v{S}, v{S}, v{Q}")
    a(f"v_max_f32 v{Q}, 0, v{Q}")
    a(f"v_add_f32 v{Q}, {fl(1e-5)}, v{Q}")
    a(f"v_rsq_f32 v{vRS}, v{Q}")
    a(f"v_cndmask_b32 v{S}, 0, v{S}, vcc")
    a(f"v_cvt_pk_bf16_f32 v{MA}, v{S}, v{S}")
    a(f"v_cndmask_b32 v{Q}, 0, v{vRS}, vcc")
    a(f"v_and_b32 v{vT0}, 0xffff0000, v{MA}")
    a(f"v_sub_f32 v{S}, v{S}, v{vT0}")
    a(f"v_cvt_pk_bf16_f32 v{MA+1}, v{S}, v{S}")
    split2(RA, Q, vT0)

def stats_check(SB):
    a(f"v_max3_u32 v{vT3}, v{SB+1}, v{SB+3}, v{SB+5}")
    a(f"v_max3_u32 v{vT3}, v{vT3}, v{SB+7}, v{SB+9}")
    a(f"v_max3_u32 v{vT3}, v{vT3}, v{SB+11}, v{SB+13}")
    a(f"v_max_u32 v{vT3}, v{vT3}, v{SB+15}")
    a(f"v_cmp_eq_u32 vcc, -1, v{vT3}")
def stats_sum(SB):
    for n in (4, 2, 1):
        for p in range(n): pk("add", SB+2*p, vr(SB+2*p,2), vr(SB+2*(p+n),2))
    a(f"v_mov_b32 v{SB+2}, v{SB}")
    a(f"v_mov_b32 v{SB+3}, v{SB+1}")
    a(f"v_permlane32_swap_b32 v{SB}, v{SB+2}")
    a(f"v_permlane32_swap_b32 v{SB+1}, v{SB+3}")
    pk("add", SB, vr(SB,2), vr(SB+2,2))

A1B = 128
def a1_issue():
    a(f"s_mov_b32 s{sT3}, s{sKB}")
    for p in range(16):
        a(f"buffer_load_dwordx4 {vr(A1B+4*p,4)}, v{vL16}, {sr(SWS,4)}, s{sT3} offen offset:{(p&1)*2560} sc1")
        if p & 1 and p < 15: a(f"s_add_u32 s{sT3}, s{sT3}, {2*2560}")
def a1_early(L):
    skip = a.newlabel("NOA1E")
    a(f"s_cmp_ge_u32 s{sRED}, 64")
    a(f"s_cbranch_scc1 {skip}")
    with cond():
        a(f"s_lshr_b32 s{sKB}, s{sRED}, 2")
        a(f"s_mul_i32 s{sKB}, s{sKB}, {16*2560}")
        a(f"s_and_b32 s{sT2}, s{sRED}, 3")
        a(f"s_mul_i32 s{sT2}, s{sT2}, 640")
        a(f"s_add_u32 s{sKB}, s{sKB}, s{sT2}")
        a(f"s_add_u32 s{sKB}, s{sKB}, {KVP[L]:#x}")
        if opt("A1C", 0):
            a(f"v_and_b32 v{vT1}, 15, v{vL}")
            a(f"v_mul_u32_u24 v{vT1}, 2560, v{vT1}")
            a(f"buffer_load_dword v{vT3}, v{vT1}, {sr(SWS,4)}, s{sKB} offen offset:544 sc1")
        else:
            set_exec((1 << 35) - 1)
            a1_issue()
            set_exec(FULL)
    a.label(skip)
def a1(L, younger):
    a.c("======== A1 reducer")
    skip = a.newlabel("NOA1")
    a(f"s_cmp_ge_u32 s{sRED}, 64")
    a(f"s_cbranch_scc1 {skip}")
    with cond():
        B = A1B
        a(f"s_mul_i32 s{sT2}, s{sRED}, 384")
        a(f"s_add_u32 s{sT2}, s{sT2}, {KVF[L]:#x}")
        a(f"v_lshlrev_b32 v{vT2}, 3, v{vL}")
        set_exec((1 << 35) - 1)
        def check():
            a(f"v_max3_u32 v{vT3}, v{B}, v{B+4}, v{B+8}")
            a(f"v_min3_u32 v{vT1}, v{B}, v{B+4}, v{B+8}")
            for p in range(3, 15, 2):
                a(f"v_max3_u32 v{vT3}, v{vT3}, v{B+4*p}, v{B+4*p+4}")
                a(f"v_min3_u32 v{vT1}, v{vT1}, v{B+4*p}, v{B+4*p+4}")
            a(f"v_max_u32 v{vT3}, v{vT3}, v{B+60}")
            a(f"v_min_u32 v{vT1}, v{vT1}, v{B+60}")
            a(f"v_cmp_eq_u32 vcc, -1, v{vT3}")
            a(f"v_readlane_b32 s{sT0}, v{vT3}, 34")
            a(f"v_readlane_b32 s{sT1}, v{vT1}, 34")
            a(f"s_xor_b32 s{sT0}, s{sT0}, s{sNON}")
            a(f"s_xor_b32 s{sT1}, s{sT1}, s{sNON}")
            a(f"s_or_b32 s{sT0}, s{sT0}, s{sT1}")
            a(f"s_or_b32 vcc_lo, vcc_lo, s{sT0}")
            a(f"s_or_b64 vcc, vcc, vcc")
        a.vm_done = min(a.vm_done, a.vm - younger - 1)
        if opt("A1C", 0):
            poll(lambda: a(f"buffer_load_dword v{vT3}, v{vT1}, {sr(SWS,4)}, s{sKB} offen offset:544 sc1"),
                 lambda: a(f"v_cmp_ne_u32 vcc, s{sNON}, v{vT3}"), 0x21, pre=a.vm - younger - 1)
            poll(a1_issue, check, 0x20)
        else:
            poll(a1_issue, check, 0x20, pre=a.vm - younger - 1)
        n = 16
        while n > 1:
            n //= 2
            for p in range(n):
                for j in (0, 2): pk("add", B+4*p+j, vr(B+4*p+j,2), vr(B+4*(p+n)+j,2))
        a(f"v_cvt_pk_bf16_f32 v{B+4}, v{B}, v{B+1}")
        a(f"v_cvt_pk_bf16_f32 v{B+5}, v{B+2}, v{B+3}")
        a(f"v_mov_b32_dpp v{B+6}, v{B+4} quad_perm:[1,1,3,3] row_mask:0xf bank_mask:0xf")
        a(f"v_mov_b32_dpp v{B+7}, v{B+5} quad_perm:[1,1,3,3] row_mask:0xf bank_mask:0xf")
        a(f"v_writelane_b32 v{B+4}, s{sNON}, 34")
        set_exec(0x555555555555)
        a(f"buffer_store_dwordx4 {vr(B+4,4)}, v{vT2}, {sr(SWS,4)}, s{sT2} offen sc1")
        set_exec(FULL)
        a("s_nop 1")
    a.label(skip)
    stamp("a1")

XF = 128
def KS(s): return 4 * ((s & 15) >> 1) + (s & 1) + 2 * (s >> 4)
def p1(L):
    ACCK, ACCV, RR = 32, 48, 64
    VV, PK, T1 = 80, 88, 96
    S0, S1, Q0, Q1 = 80, 81, 82, 83
    CF = 84
    CFV, CFQ, RA = 112, 116, 120
    vTQ, vTV = 124, 125
    vW, vXA, vXB = 126, 127, 96
    vCQ, vCV = 97, 98
    vOA, vOB = vTA, vTB
    vTQ2, vTV2 = vTA, vTB
    vKW, vKR = 92, 93
    XA = 88
    vKW2, vKR2 = vT2, 127
    POI = 100
    WFR = 216; NWF = 4; ONESF = 248; CG = 200; CK, CV, CQ = 152, 168, 184
    a.c(f"======== P1 layer {L}")
    xid = {}; wid = {}
    toff = 256
    def addr_setup():
        if L == 0:
            a(f"v_bfe_u32 v{vT0}, v{vL}, 2, 2")
            a(f"v_lshl_add_u32 v{vT0}, v{vHH}, 3, v{vT0}")
            a(f"v_lshlrev_b32 v{vTQ}, 6, v{vT0}")
            a(f"v_bfe_u32 v{vT1}, v{vL}, 4, 1")
            a(f"v_lshl_add_u32 v{vTQ}, v{vT1}, 5, v{vTQ}")
            a(f"v_and_b32 v{vT1}, 3, v{vL}")
            a(f"v_lshl_add_u32 v{vTQ}, v{vT1}, 3, v{vTQ}")
        else:
            a(f"s_and_b32 s{sT5}, s{sROTX}, {opt('XROT', 1)}")
            a(f"s_lshl_b32 s{sT5}, s{sT5}, 14")
            a(f"v_add_u32 v{vTQ}, s{sT5}, v{vL16}")
            a(f"v_xor_b32 v{vTQ2}, 16384, v{vTQ}")
            a(f"v_add_u32 v{vTV2}, 65536, v{vTQ2}")
        a(f"v_add_u32 v{vTV}, 65536, v{vTQ}")
        for i in range(4): a(f"v_accvgpr_write_b32 a{ONESF+i}, s{sONES}")
        for r in ([MA + 2, MA + 3] if L == 0 else []) + [RA + 1, RA + 2, RA + 3, CF + 2, CF + 3, CFV + 2, CFV + 3, CFQ + 2, CFQ + 3]: a(f"v_mov_b32 v{r}, 0")
    def kv_addr():
        a(f"v_bfe_u32 v{vT0}, v{vL}, 4, 1")
        a(f"v_lshl_add_u32 v{vT0}, v{vT0}, 1, v{vHH}")
        a(f"v_mul_u32_u24 v{vT0}, 17, v{vT0}")
        a(f"v_and_b32 v{vT1}, 15, v{vL}")
        a(f"v_add_u32 v{vT0}, v{vT0}, v{vT1}")
        a(f"v_lshlrev_b32 v{vT0}, 5, v{vT0}")
        a(f"v_add_u32 v{vKW2}, s{sWA}, v{vT0}")
        a(f"s_mul_i32 s{sT0}, s{sW}, 544")
        a(f"s_add_u32 s{sT0}, s{sT0}, {L_A + SCR}")
        a(f"v_add_u32 v{vKR2}, s{sT0}, v{vL16}")
    rg = {}
    def RG(s):
        b = WFR + (s % NWF) * 8
        if L == 0:
            o = s * 1024
            a(f"ds_read_b64_tr_b16 {ar(b,2)}, v{vTQ} offset:{32768+o}")
            a(f"ds_read_b64_tr_b16 {ar(b+2,2)}, v{vTQ} offset:{32768+o+toff}")
            a(f"ds_read_b64_tr_b16 {ar(b+4,2)}, v{vTV} offset:{o}")
            rg[s] = a(f"ds_read_b64_tr_b16 {ar(b+6,2)}, v{vTV} offset:{o+toff}")
        else:
            o = (KS(s) & 15) * 1024
            q_, v_ = (vTQ2, vTV2) if KS(s) >= 16 else (vTQ, vTV)
            a(f"ds_read_b128 {ar(b,4)}, v{q_} offset:{32768+o}")
            rg[s] = a(f"ds_read_b128 {ar(b+4,4)}, v{v_} offset:{o}")
    if L == 0:
        a(f"v_lshrrev_b32 v{vT0}, 2, v{vL}")
        a(f"s_lshl_b32 s{sT0}, s{sW}, 4")
        a(f"v_add_u32 v{vT0}, s{sT0}, v{vT0}")
        a(f"v_mul_u32_u24 v{vW}, 3072, v{vT0}")
        a(f"v_and_b32 v{vT0}, 3, v{vL}")
        a(f"v_lshl_add_u32 v{vW}, v{vT0}, 4, v{vW}")
        a(f"s_lshl_b32 s{sT0}, s{sHP}, 6")
        a(f"v_add_u32 v{vW}, s{sT0}, v{vW}")
        lin(sT0, [(sRB, 131072), (sW, 32768)])
        a(f"v_lshrrev_b32 v{vT0}, 3, v{vL}")
        a(f"v_lshlrev_b32 v{vT0}, 10, v{vT0}")
        a(f"v_add_u32 v{vT0}, s{sT0}, v{vT0}")
        a(f"v_and_b32 v{vT1}, 7, v{vL}")
        a(f"v_lshrrev_b32 v{vT2}, 4, v{vL}")
        a(f"v_xor_b32 v{vT1}, v{vT1}, v{vT2}")
        a(f"v_lshl_add_u32 v{vXA}, v{vT1}, 4, v{vT0}")
        a(f"v_xor_b32 v{vXB}, 64, v{vXA}")
        a(f"v_add_u32 v{vXB}, {8192-1024}, v{vXB}")
        a("s_waitcnt lgkmcnt(0)")
        srd(SX, sKA + 0, 2048 * 512 * 2)
        srd(SWQKV, sKA + 2, 512 * 1536 * 2)
        def x_issue(j):
            a(f"s_add_u32 s{sKB}, s{sROTX}, {j}")
            a(f"s_and_b32 s{sKB}, s{sKB}, 7")
            a(f"s_lshl_b32 s{sT1}, s{sKB}, 7")
            a(f"s_add_u32 m0, s{sWB}, {(j&3)*4096}")
            a(f"s_mul_i32 s{sSO}, s{sKB}, {64*3072}")
            a(f"buffer_load_dwordx4 v{vXA}, {sr(SX,4)}, s{sT1} offen lds")
            a(f"buffer_load_dwordx4 v{vXB}, {sr(SX,4)}, s{sT1} offen offset:1024 lds")
            a(f"s_add_u32 m0, s{sWB}, {(j&3)*4096+2048}")
            a(f"s_add_u32 s{sT1}, s{sT1}, 16384")
            a(f"buffer_load_dwordx4 v{vXA}, {sr(SX,4)}, s{sT1} offen lds")
            xid[j] = a(f"buffer_load_dwordx4 v{vXB}, {sr(SX,4)}, s{sT1} offen offset:1024 lds")
        def w_issue(j):
            for seg in (1, 2, 0):
                a(f"s_add_u32 m0, s{sW1K}, {seg*32768 - seg*1024 + j*4096}")
                wid[j] = a(f"buffer_load_dwordx4 v{vW}, {sr(SWQKV,4)}, s{sSO} offen offset:{seg*1024} lds")
        def wo_issue(c):
            for k in range(2):
                j = 2 * c + k
                a(f"s_add_u32 m0, s{sWB}, {j*2048}")
                if j == 0: a(f"s_lshl_b32 s{sSO}, s{sW}, 17")
                else: a(f"s_add_u32 s{sSO}, s{sSO}, 16384")
                a(f"buffer_load_dwordx4 v{vOA}, {sr(SWO,4)}, s{sSO} offen lds")
                G["wo"] = a(f"buffer_load_dwordx4 v{vOB}, {sr(SWO,4)}, s{sSO} offen offset:1024 lds")
        x_issue(0); w_issue(0)
        srd(SWS, 100, WS_BYTES)
        roles2()
        late_srds()
        x_issue(1); w_issue(1)
        touch_wo("a254")
        code_prefetch()
        touches(0, 6)
        for i in range(4): a(f"v_mov_b32 v{POI+i}, -1")
        addresses()
        skip = a.newlabel("NONON")
        a(f"s_cmp_lg_u32 s{sWI}, 0")
        a(f"s_cselect_b32 s{sT0}, 1, s{sB}")
        a(f"s_cmp_lg_u32 s{sT0}, 0")
        a(f"s_cbranch_scc1 {skip}")
        with cond():
            a(f"buffer_load_dword v{vKW}, off, {sr(SWS,4)}, 0 offset:{NONCE} sc1")
        a.label(skip)
        addr_setup()
        a(f"v_add_u32 v{vCQ}, s{sW1K}, v{vTQ}")
        a(f"v_add_u32 v{vCV}, s{sW1K}, v{vTV}")
        for r in (S0, S1, Q0, Q1): a(f"v_mov_b32 v{r}, 0")
        a(f"v_and_b32 v{vT0}, 31, v{vL}")
        a(f"v_bfe_u32 v{vT1}, v{vL}, 1, 3")
        a(f"v_xor_b32 v{vT1}, v{vT1}, v{vHH}")
        a(f"v_lshlrev_b32 v{vT0}, 7, v{vT0}")
        a(f"v_add_u32 v{vT0}, s{sWB}, v{vT0}")
        for t in range(4):
            a(f"v_xor_b32 v{vT2}, {2*t}, v{vT1}")
            a(f"v_lshl_add_u32 v{XA+t}, v{vT2}, 4, v{vT0}")
        a(f"s_lshl_b32 s{sT4}, s{sDT}, 7")
        dma_voff(vOA, vOB, 1024, sT4)
        tr_base(vWTA, vWTB, sRH, None, f"s{sWA}")
        pump.setup(1, 0)
        SCHED = {0: {0: [2, 3], 1: [4, 5], 2: [6], 3: [7]}, 1: {0: [2], 1: [3, 4], 2: [5, 6], 3: [7]}, 2: {0: [2, 3, 4], 1: [5], 2: [6], 3: [7]},
                 3: {0: [2], 1: [3], 2: [4], 3: [5], 4: [6], 5: [7]}, 4: {0: [2, 3], 1: [4], 2: [5], 3: [6], 4: [7]}}[opt("SCHED", 4)]
        JL = max(SCHED)
        cgid = {}
        def CGr(j):
            o = j * 4096
            a(f"ds_read_b64_tr_b16 {ar(CG,2)}, v{vCQ} offset:{32768+o}")
            a(f"ds_read_b64_tr_b16 {ar(CG+2,2)}, v{vCQ} offset:{32768+o+toff}")
            a(f"ds_read_b64_tr_b16 {ar(CG+4,2)}, v{vCV} offset:{o}")
            a(f"ds_read_b64_tr_b16 {ar(CG+6,2)}, v{vCV} offset:{o+toff}")
            a(f"ds_read_b64_tr_b16 {ar(CG+8,2)}, v{vCQ} offset:{o}")
            cgid[j] = a(f"ds_read_b64_tr_b16 {ar(CG+10,2)}, v{vCQ} offset:{o+toff}")
        def colsum(j):
            a.wait(lg=cgid[j])
            for k, c in enumerate((CK, CV, CQ)):
                mfma(ar(c,16), ar(ONESF,4), ar(CG+4*k,4), "0" if j == 0 else ar(c,16))
        def xreads(j):
            a.wait(vm=xid[j])
            return [a(f"ds_read_b128 {vr(XF+16*j+4*t,4)}, v{XA+t} offset:{(j&3)*4096}") for t in range(4)]
        xr = xreads(0)
        a.wait(vm=wid[0])
        a("s_barrier")
        stamp("p1_first")
        CGr(0); RG(0); RG(1); RG(2)
        colsum(0)
        CPY = 104; CS4 = 96
        initld = None
        for j in range(8):
            for t in range(4):
                a.wait(lg=xr[t])
                for k in range(4 if not opt("XNOD", 0) else 0):
                    r = XF + 16 * j + 4 * t + k
                    a(f"v_dot2_f32_bf16 v{S0+(k&1)}, v{r}, s{sONES}, v{S0+(k&1)}")
                    a(f"v_dot2_f32_bf16 v{Q0+(k&1)}, v{r}, v{r}, v{Q0+(k&1)}")
            if j == 7:
                a(f"s_lshr_b32 s{sT0}, s{sRB}, 1")
                a(f"s_sub_u32 s{sT0}, s{sT0}, s{sROTX}")
                a(f"s_and_b32 s{sT0}, s{sT0}, 7")
                a(f"s_cmp_eq_u32 s{sT0}, 0")
                a(f"s_cselect_b32 s{sT1}, 4096, 0")
                a(f"s_add_u32 s{sT1}, s{sT1}, {L_A}")
                a(f"v_add_u32 v{vT1}, s{sT1}, v{vL16}")
                a(f"v_add_u32 v{vT0}, s{sW1K}, v{vT1}")
                a(f"v_accvgpr_read_b32 v{CS4}, a{CK}")
                a(f"v_accvgpr_read_b32 v{CS4+1}, a{CV}")
                a(f"v_accvgpr_read_b32 v{CS4+2}, a{CQ}")
                cw = a(f"ds_write_b128 v{vT0}, {vr(CS4,4)}")
            for s in range(4 * j, 4 * j + 4):
                t = s & 3
                a.wait(lg=rg[s])
                b = WFR + (s % NWF) * 8
                x = vr(XF + 4 * s, 4)
                mfma(vr(ACCK,16), x, ar(b,4), "0" if s == 0 else vr(ACCK,16))
                if s + 3 < 32: RG(s + 3)
                if t == 1 and j < 7 and not opt("XNOC", 0): CGr(j + 1)
                if t == 2 and j < 7: xr = xreads(j + 1)
                if j == 7 and t == 1:
                    for w in range(4): cr = a(f"ds_read_b128 {vr(RR+4*w,4)}, v{vT1} offset:{1024*w}")
                    a(f"s_lshl_b32 s{sT0}, s{sT0}, 12")
                    a(f"s_and_b32 s{sT1}, s{sRB}, 1")
                    a(f"s_lshl_b32 s{sT1}, s{sT1}, 11")
                    a(f"s_add_u32 s{sT0}, s{sT0}, s{sT1}")
                    a(f"s_min_u32 s{sT2}, s{sW}, 2")
                    a(f"s_lshl_b32 s{sT2}, s{sT2}, 15")
                    a(f"s_add_u32 s{sT0}, s{sT0}, s{sT2}")
                    a(f"v_lshlrev_b32 v{vT1}, 8, v{vHH}")
                    a(f"v_sub_u32 v{vT0}, v{vTQ}, v{vT1}")
                    a(f"v_add_u32 v{vT0}, s{sT0}, v{vT0}")
                    for k in range(4): cp = a(f"ds_read_b64_tr_b16 {vr(CPY+2*k,2)}, v{vT0} offset:{512*k}")
                if j == 7 and t == 2:
                    a.wait(lg=cr)
                    for k in range(3):
                        a(f"v_add_f32 v{RR+k}, v{RR+k}, v{RR+4+k}")
                        a(f"v_add_f32 v{RR+8+k}, v{RR+8+k}, v{RR+12+k}")
                if j == 7 and t == 3:
                    split2(CKP, RR, vT0)
                    split2(CVP, RR + 1, vT1)
                mfma(vr(ACCV,16), x, ar(b+4,4), "0" if s == 0 else vr(ACCV,16))
                if t == 0:
                    if j < 7: a.wait(vm=wid[j + 1])
                    else: a.wait(lg=cw)
                    a("s_barrier")
                    if j == 1:
                        skip = a.newlabel("NOINIT")
                        a(f"s_cmp_lg_u32 s{sWI}, 0")
                        a(f"s_cselect_b32 s{sT0}, 1, s{sB}")
                        a(f"s_cmp_lg_u32 s{sT0}, 0")
                        a(f"s_cbranch_scc1 {skip}")
                        with cond():
                            a(f"v_add_u32 v{vKW}, 1, v{vKW}")
                            a(f"v_and_b32 v{vKW}, 0x3fffffff, v{vKW}")
                            a(f"v_or_b32 v{vKW}, 0x40000000, v{vKW}")
                            set_exec(1)
                            a(f"buffer_store_dword v{vKW}, off, {sr(SDBG,4)}, 0 sc1")
                            a(f"buffer_store_dword v{vKW}, off, {sr(SWS,4)}, 0 offset:{NONCE} sc1")
                            set_exec(FULL)
                        a.label(skip)
                if t <= 2 and j in SCHED and t < len(SCHED[j]):
                    x_issue(SCHED[j][t]); w_issue(SCHED[j][t])
                if t == 1 and j >= 4 and opt("WOP", 0) == 0: wo_issue(j - 4)
                if t == 3 and j == JL:
                    misc_loads()
                    touches(0, 8)
                if t == 3 and opt("SLOTST", 0) and j in (1, 3, 6): stamp(f"it{j}")
                if t == 2:
                    if j == 3: touches(0, 7)
                    if j == 5:
                        st_poison(POI); kv_poison(POI, 0); canary_poison(POI)
                    if j == 6:
                        kv_addr()
                        tile_poison(POI, sAPQW, 0, 1024)
                    if j == 6:
                        initld = a(f"buffer_load_dword v{vT3}, off, {sr(SDBG,4)}, 0 sc1")
                    if j == 7:
                        for k in range(3): a(f"v_add_f32 v{RR+k}, v{RR+k}, v{RR+8+k}")
                        a(f"s_lshl_b32 s{sT1}, s{sRB}, 11")
                        a(f"s_add_u32 s{sT3}, s{sAWQT}, s{sT2}")
                        a(f"s_add_u32 s{sT3}, s{sT3}, s{sT1}")
                        a.wait(lg=cp)
                        ws_store4(CPY, sT3); ws_store4(CPY + 4, sT3, 1024)
                if t == 3 and j < 7 and not opt("XNOC", 0): colsum(j + 1)
        stamp("p1_gemm")
        a(f"v_add_f32 v{S0}, v{S0}, v{S1}")
        a(f"v_add_f32 v{Q0}, v{Q0}, v{Q1}")
        a(f"v_mov_b32 v{S1}, v{S0}")
        a(f"v_mov_b32 v{Q1}, v{Q0}")
        for c, p in ((CF, CKP), (CFV, CVP)):
            a(f"v_mov_b32 v{c}, v{p}"); a(f"v_mov_b32 v{c+1}, v{p}")
        a(f"v_permlane32_swap_b32 v{S0}, v{S1}")
        a(f"v_permlane32_swap_b32 v{Q0}, v{Q1}")
        a(f"v_add_f32 v{S0}, v{S0}, v{S1}")
        a(f"v_add_f32 v{Q0}, v{Q0}, v{Q1}")
        split2(CQP, RR + 2, vT1)
        stats_to_frags(S0, Q0, RA)
        mfma(vr(ACCK,16), vr(MA,4), vr(CF,4), vr(ACCK,16))
        mfma(vr(RR,16), vr(RA,4), ar(ONESF,4), "0")
        mfma(vr(ACCV,16), vr(MA,4), vr(CFV,4), vr(ACCV,16))
        touches(0, 1)
    else:
        a(f"s_and_b32 s{sT5}, s{sROTX}, {opt('XROT', 1)}")
        a(f"s_lshl_b32 s{sT5}, s{sT5}, 14")
        a(f"s_add_u32 s{sT4}, s{sAX2R}, s{sT5}")
        a(f"v_and_b32 v{vT0}, 15, v{vL}")
        a(f"v_lshrrev_b32 v{vT1}, 1, v{vT0}")
        a(f"v_and_b32 v{vT0}, 1, v{vT0}")
        a(f"v_lshlrev_b32 v{vT0}, 10, v{vT0}")
        a(f"v_lshl_add_u32 v{PK}, v{vT1}, 12, v{vT0}")
        def XL(s):
            jj = s & 15
            if jj == 0: a(f"s_mov_b32 s{sSO}, s{sT4}")
            elif jj == 8: a(f"s_xor_b32 s{sSO}, s{sT4}, 16384")
            elif jj & 1 == 0: a(f"s_add_u32 s{sSO}, s{sSO}, 4096")
            xid[s] = a(f"buffer_load_dwordx4 {vr(XF+4*s,4)}, v{vL16}, {sr(SWS,4)}, s{sSO} offen offset:{(KS(s)&3)*1024} sc1")
        LA = opt("LA1", 8)
        vMX = vW
        ci = lambda: a(f"buffer_load_dword v{vT3}, v{PK}, {sr(SWS,4)}, s{sAX2R} offen offset:1020 sc1")
        cc = lambda: a(f"v_cmp_eq_u32 vcc, -1, v{vT3}")
        def windowa():
            for s in range(LA): XL(s)
        def windowb():
            for s in range(16, 16 + LA): XL(s)
        ci(); cid = a.vm - 1
        windowa()
        addr_setup()
        next_layer_addresses()
        for c, p in ((CF, CKP), (CFV, CVP)):
            a(f"v_mov_b32 v{c}, v{p}"); a(f"v_mov_b32 v{c+1}, v{p}")
        a(f"v_and_b32 v{vT0}, 31, v{vL}")
        a(f"v_lshlrev_b32 v{vT0}, 3, v{vT0}")
        a(f"v_lshl_add_u32 v{PK+1}, v{vHH}, 12, v{vT0}")
        a(f"s_lshl_b32 s{sT2}, s{sW}, 13")
        a(f"s_add_u32 s{sKB}, s{sAWQT}, s{sT2}")
        a(f"s_mov_b32 s{sT1}, s{sT4}")
        pump.setup(1, 1)
        a(f"s_mov_b32 s{sT4}, s{sT1}")
        a(f"v_mov_b32 v{MA+2}, 0"); a(f"v_mov_b32 v{MA+3}, 0")
        go = a.newlabel("XGO"); redo = a.newlabel("XREDO"); go2 = a.newlabel("XGO2")
        a.wait(vm=cid)
        cc()
        force_fail("FRC")
        a(f"s_cbranch_vccz {go2}")
        st = (a.vm, a.vm_done, dict(xid), list(a.hist))
        poll(ci, cc, 0x41)
        windowa()
        a("s_waitcnt vmcnt(0)")
        a.vm, a.vm_done, _x, a.hist = st; xid.update(_x)
        a.label(go2)
        a("s_barrier")
        stamp("p1_flag")
        a(f"s_branch {go}")
        a.label(redo)
        sv = dict(xid)
        with cond():
            windowa()
        xid.update(sv)
        a.label(go)
        RG(0); RG(1); RG(2)
        a(f"v_mov_b32 v{vMX}, 0")
        a(f"s_mov_b32 s{sT3}, s{sKB}")
        SB = T1
        def issue():
            for p in range(8): a(f"buffer_load_dwordx2 {vr(SB+2*p,2)}, v{PK+1}, {sr(SWS,4)}, s{sAS2R} offen offset:{p*512} sc1")
        qid = None
        LA = opt("LA1", 8)
        ZS = opt("ZS", 10); nb = [16]
        assert ZS + LA >= 16
        for s in range(32):
            if s == 16:
                stamp("p1_a")
                if ZS < 16:
                    go3 = a.newlabel("XGO3")
                    a.wait(vm=sid)
                    stats_check(SB)
                    force_fail("FRC")
                    a(f"s_cbranch_vccz {go3}")
                    st = (a.vm, a.vm_done, dict(xid), list(a.hist))
                    poll(issue, lambda: stats_check(SB), 0x40)
                    windowb()
                    a("s_waitcnt vmcnt(0)")
                    a.vm, a.vm_done, _x, a.hist = st; xid.update(_x)
                    a.label(go3)
                else:
                    spec(issue, lambda: stats_check(SB), windowb, 0x40, a.newlabel("XR0"))
                stamp("p1_st2")
                stats_sum(SB)
                stats_to_frags(SB, SB + 1, RA)
                mfma(vr(RR,16), vr(RA,4), ar(ONESF,4), "0")
                mfma(vr(ACCK,16), vr(MA,4), vr(CF,4), vr(ACCK,16))
                mfma(vr(ACCV,16), vr(MA,4), vr(CFV,4), vr(ACCV,16))
            a.wait(vm=xid[s], lg=rg[s])
            b = WFR + (s % NWF) * 8
            x = vr(XF + 4 * s, 4)
            mfma(vr(ACCK,16), x, ar(b,4), "0" if s == 0 else vr(ACCK,16))
            if s == ZS:
                issue(); sid = a.vm - 1
            if ZS < s < 16:
                per = -(-LA // (15 - ZS))
                for _ in range(per):
                    if nb[0] < 16 + LA: XL(nb[0]); nb[0] += 1
            if (s & 15) + LA < 16: XL(s + LA)
            if s >= 24:
                j = s - 24
                if j == 4: a(f"s_add_u32 s{sT3}, s{sT3}, 4096")
                if j & 3 == 0: a(f"s_add_u32 m0, s{sT2}, {j*1024}")
                qid = a(f"buffer_load_dwordx4 v{vL16}, {sr(SWS,4)}, s{sT3} offen offset:{(j&3)*1024} sc1 lds")
            mfma(vr(ACCV,16), x, ar(b+4,4), "0" if s == 0 else vr(ACCV,16))
            if s & 1: a(f"v_max3_u32 v{vMX}, v{vMX}, v{XF+4*s-4}, v{XF+4*s}")
            if s + 3 < 32: RG(s + 3)
            if s == 30: kv_addr()
        verify(vMX, redo)
        stamp("p1_gemm")
    for q in range(8): pk("fma", ACCK+2*q, vr(ACCK+2*q,2), vr(RR+2*q,2), sr(sEPS6,2), hi=[1,1,0])
    for q in range(8): pk("mul", T1+2*q, vr(ACCK+2*q,2), sr(sL2E,2), hi=[1,0])
    for i in range(16):
        a(f"v_exp_f32_e64 v{T1+i}, v{T1+i} clamp")
        a(f"v_max_f32 v{ACCK+i}, s{sEPS6}, v{ACCK+i}")
    for q in range(8): pk("add", ACCK+2*q, vr(ACCK+2*q,2), vr(T1+2*q,2))
    for q in range(8): a(f"v_cvt_pk_bf16_f32 v{PK+q}, v{ACCK+2*q}, v{ACCK+2*q+1}")
    ZA = T1
    for q in range(4): pk("mul", ACCV+2*q, vr(ACCV+2*q,2), vr(RR+2*q,2))
    for q in range(4, 8): pk("mul", ACCV+2*q, vr(ACCV+2*q,2), vr(RR+2*q,2))
    mfma(vr(ZA,16), vr(PK,4), ar(ONESF,4), "0")
    for q in range(4): a(f"v_cvt_pk_bf16_f32 v{VV+q}, v{ACCV+2*q}, v{ACCV+2*q+1}")
    mfma(vr(ZA,16), vr(PK+4,4), ar(ONESF,4), vr(ZA,16))
    for q in range(4, 8): a(f"v_cvt_pk_bf16_f32 v{VV+q}, v{ACCV+2*q}, v{ACCV+2*q+1}")
    KVA = RR
    a(f"v_and_b32 v{vT0}, 16, v{vL}")
    a(f"v_cmp_ne_u32 vcc, 0, v{vT0}")
    mfma(vr(KVA,16), vr(PK,4), vr(VV,4), "0")
    mfma(vr(KVA,16), vr(PK+4,4), vr(VV+4,4), vr(KVA,16))
    a("s_barrier")
    for j in range(8): a(f"v_cndmask_b32 v{ACCK+8+j}, v{ZA+j}, v{ZA+8+j}, vcc")
    set_exec(0x0001000100010001)
    a(f"ds_write_b128 v{vKW2}, {vr(ACCK+8,4)} offset:{SCR+512}")
    a(f"ds_write_b128 v{vKW2}, {vr(ACCK+12,4)} offset:{SCR+528}")
    set_exec(FULL)
    for j in range(4): a(f"v_cndmask_b32 v{ACCK+j}, v{KVA+j}, v{KVA+8+j}, vcc")
    a(f"ds_write_b128 v{vKW2}, {vr(ACCK,4)} offset:{SCR}")
    for j in range(4, 8): a(f"v_cndmask_b32 v{ACCK+j}, v{KVA+j}, v{KVA+8+j}, vcc")
    a(f"ds_write_b128 v{vKW2}, {vr(ACCK+4,4)} offset:{SCR+16}")
    if L == 0:
        def issue(): a(f"buffer_load_dword v{vT3}, off, {sr(SDBG,4)}, 0 sc1")
        def check(): a(f"v_cmp_eq_u32 vcc, 0, v{vT3}")
        poll(issue, check, 0x10, pre=initld)
        a(f"v_readfirstlane_b32 s{sNON}, v{vT3}")
    NQ = 8; QLA = 6
    rq = {}
    def RQ(s):
        b = WFR + (s % NQ) * 4
        if L == 0:
            a(f"ds_read_b64_tr_b16 {ar(b,2)}, v{vTQ} offset:{s*1024}")
            rq[s] = a(f"ds_read_b64_tr_b16 {ar(b+2,2)}, v{vTQ} offset:{s*1024+toff}")
        else:
            rq[s] = a(f"ds_read_b128 {ar(b,4)}, v{vTQ2 if KS(s) >= 16 else vTQ} offset:{(KS(s)&15)*1024}")
    a(f"v_mov_b32 v{CFQ}, v{CQP}"); a(f"v_mov_b32 v{CFQ+1}, v{CQP}")
    if L == 1: a.wait(vm=qid)
    a.wait_lg_all()
    a("s_barrier")
    for w in range(4): kr = a(f"ds_read_b128 {vr(RR+4*w,4)}, v{vKR2} offset:{16384*w}")
    for s in range(QLA): RQ(s)
    ACCQ = ACCK
    mfma(vr(ACCQ,16), vr(CFQ,4), vr(MA,4), "0")
    a.wait(lg=kr)
    for j in range(4): a(f"v_add_f32 v{RR+j}, v{RR+j}, v{RR+4+j}")
    for j in range(4): a(f"v_add_f32 v{RR+8+j}, v{RR+8+j}, v{RR+12+j}")
    for j in range(4): a(f"v_add_f32 v{RR+j}, v{RR+j}, v{RR+8+j}")
    set_exec((1 << 40) - 1)
    a(f"v_writelane_b32 v{RR}, s{sNON}, 34")
    ws_store4(RR, sAKVP)
    set_exec(FULL)
    stamp("p1_kvpub")
    touches(L, 2)
    nfill = optL("F0", L, 0, 0)
    for s in range(32):
        a.wait(lg=rq[s])
        b = WFR + (s % NQ) * 4
        mfma(vr(ACCQ,16), ar(b,4), vr(XF+4*s,4), vr(ACCQ,16))
        if s + QLA < 32: RQ(s + QLA)
        if s % 3 == 1 and pump.i < pump.c + nfill: pump.fill(pump.i + 1)
        if L == 0 and opt("WOP", 0) == 1 and s % 8 == 0: wo_issue(s // 8)
        if opt("POIQ", 1):
            if s == 2: set_poi(VV)
            if s == 3: tile_poison(VV, sAHTW, 0, 2048)
            if s == 6: tile_poison(VV, sAUW, 0, 1024)
            if L == 0 and opt("POIQ", 1) == 2:
                if s == 9: tile_poison(VV, sAPQW, PQ[1] - PQ[0], 1024)
                if s == 12: kv_poison(VV, 1)
                if s == 15: tile_poison(VV, sAX2W, 0, 2048)
        if s == opt("A1S", 26):
            a1_early(L); vm_a1 = a.vm
    for h in range(2):
        for q in range(4*h, 4*h+4): pk("fma", ACCQ+2*q, vr(ACCQ+2*q,2), vr(vRS,2), sr(sEPS6,2), hi=[1,0,0])
        for q in range(4*h, 4*h+4): pk("mul", T1+2*q, vr(ACCQ+2*q,2), sr(sL2E,2), hi=[1,0])
        for i in range(8*h, 8*h+8):
            a(f"v_exp_f32_e64 v{T1+i}, v{T1+i} clamp")
            a(f"v_max_f32 v{ACCQ+i}, s{sEPS6}, v{ACCQ+i}")
        for q in range(4*h, 4*h+4): pk("add", ACCQ+2*q, vr(ACCQ+2*q,2), vr(T1+2*q,2))
        for q in range(4*h, 4*h+4): a(f"v_cvt_pk_bf16_f32 v{PK+q}, v{ACCQ+2*q}, v{ACCQ+2*q+1}")
        ws_store4(PK + 4 * h, sAPQW, 1024 * h)
    if L == 0:
        for k in range(4): a(f"v_mov_b32 v{T1+k}, s{sNON}")
        a(f"s_sub_u32 s{sT0}, s{sAPQW}, {PQ[0]:#x}")
        a(f"s_lshr_b32 s{sT0}, s{sT0}, 4")
        a(f"s_add_u32 s{sT0}, s{sT0}, {TAGQ:#x}")
        set_exec(0xff)
        ws_store4(T1, sT0)
        set_exec(FULL)
    stamp("p1_q")
    a1(L, a.vm - vm_a1)
    pump.fill(pump.c + optL("F1", L, 6, 5))
    touches(L, 3)

def row_stats_publish(soff, SM):
    a(f"v_dot2_f32_bf16 v{SM}, v{XR}, s{sONES}, 0")
    a(f"v_dot2_f32_bf16 v{SM+1}, v{XR}, v{XR}, 0")
    a(f"v_dot2_f32_bf16 v{SM+2}, v{XR+1}, s{sONES}, 0")
    a(f"v_dot2_f32_bf16 v{SM+3}, v{XR+1}, v{XR+1}, 0")
    for j in range(2, 8):
        o = 2 * (j & 1)
        a(f"v_dot2_f32_bf16 v{SM+o}, v{XR+j}, s{sONES}, v{SM+o}")
        a(f"v_dot2_f32_bf16 v{SM+o+1}, v{XR+j}, v{XR+j}, v{SM+o+1}")
    a(f"v_lshlrev_b32 v{vT0}, 3, v{vL}")
    pk("add", SM, vr(SM,2), vr(SM+2,2))
    a(f"v_mov_b32 v{SM+2}, v{SM}")
    a(f"v_mov_b32 v{SM+3}, v{SM+1}")
    a(f"v_permlane32_swap_b32 v{SM}, v{SM+2}")
    a(f"v_permlane32_swap_b32 v{SM+1}, v{SM+3}")
    pk("add", SM, vr(SM,2), vr(SM+2,2))
    a(f"s_mov_b32 exec_hi, 0")
    a(f"v_and_b32 v{SM+1}, 0x7fffffff, v{SM+1}")
    a(f"buffer_store_dwordx2 {vr(SM,2)}, v{vT0}, {sr(SWS,4)}, s{soff} offen sc1")
    set_exec(FULL)

def unpack_xr(XU):
    for j in range(8):
        a(f"v_lshlrev_b32 v{XU+2*j}, 16, v{XR+j}")
        a(f"v_and_b32 v{XU+2*j+1}, 0xffff0000, v{XR+j}")

def p2(L):
    a.c(f"======== P2 layer {L}")
    KF, QF = 128, 192
    ACC = 32; CR = 64; OF = 96; WF = 104; XU = 64
    vK, vKC, vMX = MA, MA + 1, MA + 2
    tr_base(vTA, vTB, None, sKH, L_B)
    a(f"s_lshl_b32 s{sT2}, s{sKH}, 15")
    a(f"v_add_u32 v{vTA}, s{sT2}, v{vTA}")
    a(f"v_add_u32 v{vTB}, s{sT2}, v{vTB}")
    a(f"v_and_b32 v{vT0}, 31, v{vL}")
    a(f"v_mul_u32_u24 v{vKC}, 384, v{vT0}")
    a(f"v_min_u32 v{vT0}, 16, v{vT0}")
    a(f"v_lshlrev_b32 v{vT0}, 4, v{vT0}")
    a(f"v_mul_u32_u24 v{vT1}, 384, v{vHH}")
    a(f"v_add_u32 v{vK}, v{vT0}, v{vT1}")
    a(f"v_and_b32 v{vT2}, 7, v{vL}")
    a(f"v_lshlrev_b32 v{vT2}, {11 if L else 7}, v{vT2}")
    if L == 0:
        a(f"s_sub_u32 s{sT0}, s{sAPQR}, {PQ[0]:#x}")
        a(f"s_lshr_b32 s{sT0}, s{sT0}, 4")
        a(f"s_add_u32 s{sT0}, s{sT0}, {TAGQ:#x}")
    pump.run(min(R1 + 5, optL("B1", L, 18, 21)), refill=bool(optL("B1R", L, 1, 1)))
    if opt("POIQ", 1) == 0:
        set_poi(CR)
        tile_poison(CR, sAHTW, 0, 2048)
    stamp("beta")
    def ldq():
        a(f"s_mov_b32 s{sT4}, s{sAPQR}")
        for j in range(16):
            a(f"buffer_load_dwordx4 {vr(QF+4*j,4)}, v{vL16}, {sr(SWS,4)}, s{sT4} offen offset:{(j&3)*1024} sc1")
            if j & 3 == 3 and j < 15: a(f"s_add_u32 s{sT4}, s{sT4}, 4096")
    if L == 1:
        ci = lambda: a(f"buffer_load_dword v{vT3}, v{vT2}, {sr(SWS,4)}, s{sAPQR} offen offset:2044 sc1")
        cc = lambda: a(f"v_cmp_eq_u32 vcc, -1, v{vT3}")
    else:
        ci = lambda: a(f"buffer_load_dword v{vT3}, v{vT2}, {sr(SWS,4)}, s{sT0} offen sc1")
        cc = lambda: a(f"v_cmp_ne_u32 vcc, s{sNON}, v{vT3}")
    spec(ci, cc, ldq, 0x36 + L, a.newlabel("PQR"), on=opt("SPEC", 15) & 4)
    stamp("p2_pqc")
    if L == 0:
        a.wait(vm=G['wo'])
        for q in range(2):
            a(f"v_permlane32_swap_b32 v{XR+4*q}, v{XR+4*q+2}")
            a(f"v_permlane32_swap_b32 v{XR+4*q+1}, v{XR+4*q+3}")
        a(f"v_lshlrev_b32 v{vB2}, 16, v{vB2}")
    pump.run(min(R1 + 5, pump.i), refill=False)
    pump.run(min(R1 + 5, optL("B2", L, 0, 0)), refill=False)
    pump.fill(pump.c + optL("FK", L, 0, 0))
    a(f"s_xor_b32 s{sT0}, s{sW}, 1")
    a(f"s_lshl_b32 s{sT0}, s{sT0}, 12")
    a(f"v_add_u32 v{vRS}, s{sT0}, v{vL16}")
    a.wait_lg_all()
    a("s_barrier")
    rw = {}
    def RW(j):
        b = WF + (j % 3) * 8
        a(f"ds_read_b64_tr_b16 {vr(b,2)}, v{vTA} offset:{j*2048}")
        a(f"ds_read_b64_tr_b16 {vr(b+2,2)}, v{vTA} offset:{j*2048+1024}")
        a(f"ds_read_b64_tr_b16 {vr(b+4,2)}, v{vTB} offset:{j*2048}")
        rw[j] = a(f"ds_read_b64_tr_b16 {vr(b+6,2)}, v{vTB} offset:{j*2048+1024}")
    lid = {}
    def LD(j):
        if j == 0: a(f"s_mov_b32 s{sSO}, s{sAKVF}")
        elif j & 3 == 0: a(f"s_add_u32 s{sSO}, s{sSO}, {4*768}")
        lid[j] = a(f"buffer_load_dwordx4 {vr(KF+4*j,4)}, v{vK}, {sr(SWS,4)}, s{sSO} offen offset:{(j&3)*768} sc1")
    PLA = optL("PLA", L, 10, 10)
    redo = a.newlabel("P2REDO"); redo2 = a.newlabel("P2REDO2"); over = a.newlabel("P2OVER")
    a(f"s_branch {over}")
    a.label(redo)
    with cond():
        ldq()
        a("s_waitcnt vmcnt(0)")
        a(f"s_branch {redo2}")
    a.label(over)
    def window():
        for j in range(PLA): LD(j)
    spec(lambda: a(f"buffer_load_dword v{vT3}, v{vKC}, {sr(SWS,4)}, s{sAKVF} offen offset:272 sc1"),
         lambda: a(f"v_cmp_ne_u32 vcc, s{sNON}, v{vT3}"), window, 0x38 + L, redo2, on=opt("SPEC", 15) & 2)
    stamp("p2_kvc")
    RW(0); RW(1)
    a(f"v_mov_b32 v{vMX}, 0")
    def M1(j):
        a.wait(vm=lid[j])
        mfma(vr(CR+(j&1)*16,16), vr(KF+4*j,4), vr(QF+4*j,4), "0")
        a(f"v_max3_u32 v{vMX}, v{vMX}, v{KF+4*j}, v{QF+4*j}")
        if j + PLA < 16: LD(j + PLA)
        if j + PLA == 16: touches(L, 9)
    def Va(j):
        c = CR + (j & 1) * 16
        a(f"v_add_f32 v{c+8}, s{sEPS6}, v{c+8}")
        a(f"v_rcp_f32 v{c+8}, v{c+8}")
    def Vb(j):
        c = CR + (j & 1) * 16; o = OF + (j & 1) * 4
        for i in range(4): a(f"v_mul_f32 v{c+i}, v{c+i}, v{c+8}")
        for i in range(2): a(f"v_cvt_pk_bf16_f32 v{o+i}, v{c+2*i}, v{c+2*i+1}")
    def Vc(j):
        c = CR + (j & 1) * 16; o = OF + (j & 1) * 4
        for i in range(4, 8): a(f"v_mul_f32 v{c+i}, v{c+i}, v{c+8}")
        for i in range(2, 4): a(f"v_cvt_pk_bf16_f32 v{o+i}, v{c+2*i}, v{c+2*i+1}")
    M1(0); M1(1)
    Va(0); Vb(0); Vc(0); M1(2)
    nfp = optL("FP2", L, 6, 6)
    kb_saved = False
    for j in range(16):
        o = OF + (j & 1) * 4; b = WF + (j % 3) * 8
        if j + 1 < 16: Va(j + 1)
        a.wait(lg=rw[j])
        mfma(vr(ACC+16,16), vr(b+4,4), vr(o,4), "0" if j == 0 else vr(ACC+16,16))
        if j + 1 < 16: Vb(j + 1)
        mfma(vr(ACC,16), vr(b,4), vr(o,4), "0" if j == 0 else vr(ACC,16))
        if j + 1 < 16: Vc(j + 1)
        if j + 3 < 16: M1(j + 3)
        if j + 2 < 16: RW(j + 2)
    verify(vMX, redo)
    stamp("p2_main")
    lin(sT0, [(sFT, 128), (sRH, 64), (sKH, 32)])
    a(f"v_lshlrev_b32 v{vT0}, 3, v{vHH}")
    for q in range(2): a(f"buffer_load_dwordx2 {vr(152+2*q,2)}, v{vT0}, {sr(SB1,4)}, s{sT0} offen offset:{16*q}")
    for q, r in enumerate((ACC + 24, ACC + 28, ACC + 8, ACC + 12)): a(f"ds_write_b128 v{vRS}, {vr(r,4)} offset:{(q^2)*1024}")
    unpack_xr(XU)
    a(f"v_xor_b32 v{vT1}, 4096, v{vRS}")
    for q in range(4): pk("add", ACC+16+2*q, vr(ACC+16+2*q,2), vr(XU+8+2*q,2))
    for q in range(4): pk("add", ACC+2*q, vr(ACC+2*q,2), vr(XU+2*q,2))
    a.wait_lg_all()
    a("s_barrier")
    own = (ACC, ACC + 4, ACC + 16, ACC + 20)
    ids = [a(f"ds_read_b128 {vr(XU+4*q,4)}, v{vT1} offset:{q*1024}") for q in range(4)]
    for q in range(4):
        a.wait(lg=ids[q])
        pk("add", own[q], vr(own[q],2), vr(XU+4*q,2))
        pk("add", own[q]+2, vr(own[q]+2,2), vr(XU+4*q+2,2))
        a(f"v_cvt_pk_bf16_f32 v{XR+2*q}, v{own[q]}, v{own[q]+1}")
        a(f"v_cvt_pk_bf16_f32 v{XR+2*q+1}, v{own[q]+2}, v{own[q]+3}")
    row_stats_publish(sASTW, OF)
    stamp("p2_stpub")
    pump.run(pump.i, refill=False)
    pump.fill(pump.c + optL("GF", L, 6, 4))
    unpack_xr(XU)
    IDF = 104
    a(f"v_and_b32 v{vT0}, 31, v{vL}")
    a(f"v_lshlrev_b32 v{vT1}, 2, v{vHH}")
    a(f"v_sub_u32 v{vT0}, v{vT0}, v{vT1}")
    a(f"v_mov_b32 v{vT3}, 0x3f80")
    for f in range(2):
        for c in range(4):
            base = 16 * f + ((2 * c) & 3) + 8 * (c >> 1)
            a(f"v_subrev_u32 v{vT1}, {base}, v{vT0}")
            a(f"v_cmp_gt_u32 vcc, 2, v{vT1}")
            a(f"v_lshlrev_b32 v{vT1}, 4, v{vT1}")
            a(f"v_lshlrev_b32 v{vT2}, v{vT1}, v{vT3}")
            a(f"v_cndmask_b32 v{IDF+4*f+c}, 0, v{vT2}, vcc")
    SB = 128
    ht_voff(vRS)
    a(f"v_and_b32 v{vT0}, 31, v{vL}")
    a(f"v_lshlrev_b32 v{vT0}, 3, v{vT0}")
    a(f"v_lshl_add_u32 v{vT2}, v{vHH}, 12, v{vT0}")
    a(f"v_mov_b32 v{SB+18}, {fl(1.0+1e-5)}")
    def issue():
        for p in range(8): a(f"buffer_load_dwordx2 {vr(SB+2*p,2)}, v{vT2}, {sr(SWS,4)}, s{sASTR} offen offset:{p*512} sc1")
    if OPT.get(f"SL{0x34+L:x}", 0): a(f"s_sleep {OPT.get(f'SL{0x34+L:x}', 0)}")
    poll(issue, lambda: stats_check(SB), 0x34 + L)
    stamp("p2_stats")
    if optL("SF", L, 3, 3):
        pump.run(pump.i, refill=False)
        pump.fill(pump.c + optL("SF", L, 3, 3))
    stats_sum(SB)
    a(f"v_mul_f32 v{SB}, {fl(-1/512)}, v{SB}")
    a(f"v_mul_f32 v{SB+1}, {fl(1/512)}, v{SB+1}")
    a(f"v_fma_f32 v{SB+1}, -v{SB}, v{SB}, v{SB+1}")
    a(f"v_max_f32 v{SB+1}, 0, v{SB+1}")
    a(f"v_fmaak_f32 v{SB+1}, v{SB+1}, v{SB+18}, {fl(1e-10)}")
    a(f"v_rsq_f32 v{SB+2}, v{SB+1}")
    a(f"v_mul_f32 v{SB}, v{SB}, v{SB+2}")
    HP_ = 112
    for f in range(2):
        for j in range(4*f, 4*f+4):
            pk("fma", XU+2*j, vr(XU+2*j,2), vr(SB+2,2), vr(SB,2), hi=[1,0,0])
    for f in range(2):
        for j in range(4*f, 4*f+4):
            a(f"v_cvt_pk_bf16_f32 v{HP_+j}, v{XU+2*j}, v{XU+2*j+1}")
        mfma(vr(ACC,16), vr(HP_+4*f,4), vr(IDF+4*f,4), "0" if f == 0 else vr(ACC,16))
    for f in range(2):
        for j in range(4): a(f"v_cvt_pk_bf16_f32 v{ACC+16+4*f+j}, v{ACC+8*f+2*j}, v{ACC+8*f+2*j+1}")
        a(f"buffer_store_dwordx4 {vr(ACC+16+4*f,4)}, v{vRS}, {sr(SWS,4)}, s{sAHTW} offen offset:{2048*f} sc1")
    touches(L, 5)
    stamp(f"p2_{L}")

RING = 96; AUX = 144; NRH = 12
vR1, vR2, vR3, vRA = vT0, vT1, vT2, vRS
LKH = opt("LKH", 10)
class Half:
    def __init__(self, kind, hf, g0):
        self.kind, self.hf, self.g0 = kind, hf, g0
        self.nks, self.srot, self.sbase = (32, sROT1, sAHTR) if kind == 1 else (28, sROT2, sAUR)
        self.vA, self.vC = (vTA, MA + 1) if kind == 1 else (vTB, MA + 2)
        self.vMX = MA
        self.ids = {}; self.cid = None
    def rb(self, s): return RING + ((self.g0 + s) % NRH) * 4
    def LD(self, s):
        if s == 0: a(f"s_lshl_b32 s{sSO}, s{self.srot}, 11")
        elif s & 1 == 0:
            a(f"s_add_u32 s{sSO}, s{sSO}, 4096")
            a(f"s_cmp_eq_u32 s{sSO}, {self.nks*2048}")
            a(f"s_cselect_b32 s{sSO}, 0, s{sSO}")
        self.ids[s] = a(f"buffer_load_dwordx4 {vr(self.rb(s),4)}, v{self.vA}, {sr(SWS,4)}, s{sSO} offen offset:{(s&1)*2048+self.hf*1024} sc1")
    def window(self):
        for s in range(LKH): self.LD(s)
    def can_issue(self):
        off = 2048 + 1024 + 512 + 252 if self.kind == 1 else self.hf * 1024 + 1020
        self.cid = a(f"buffer_load_dword v{vT3}, v{self.vC}, {sr(SWS,4)}, s{self.sbase} offen offset:{off} sc1")
    def can_check(self): a(f"v_cmp_eq_u32 vcc, -1, v{vT3}")
    def MF(self, s, acc):
        A0 = 32 + 32 * self.hf
        wf = wreg(self.kind, s, 4 * acc, 4); af = vr(self.rb(s), 4)
        c = "0" if s == 0 else vr(A0 + 16 * acc, 16)
        A_, B_ = (wf, af) if self.kind == 1 else (af, wf)
        mfma(vr(A0+16*acc,16), A_, B_, c)
    def steps(self, redo, nxt=None, hook=None, force=True):
        n = self.nks
        a(f"v_mov_b32 v{self.vMX}, 0")
        for s in range(n):
            if hook: hook(s, 0)
            a.wait(vm=self.ids[s])
            self.MF(s, 1)
            if s + LKH < n: self.LD(s + LKH)
            elif nxt is not None:
                if s + LKH == n and nxt.kind == 2: nxt.can_issue()
                nxt.LD(s + LKH - n)
            if s & 1: a(f"v_max3_u32 v{self.vMX}, v{self.vMX}, v{self.rb(s-1)}, v{self.rb(s)}")
            self.MF(s, 0)
            if hook: hook(s, 1)
        verify(self.vMX, redo, force=force)
    def run(self, nxt=None, hook=None):
        lab = a.newlabel("PLAIN"); back = a.newlabel("BACK")
        OOL.append((self, nxt, lab, back))
        self.steps(lab, nxt, hook)
        a.label(back)
    def scr(self, k):
        if self.hf == 0: return 0, k * 2048
        if k < 2: return 1, SCR + k * 2048
        return 0, 6144
    def writes(self):
        A0 = 32 + 32 * self.hf
        for k in (1, 2, 0):
            src = (A0 + 8, A0 + 16, A0 + 24)[k]
            area, o = self.scr(k)
            r = (vR1, vR2, vR3)[k]
            if area == 1:
                a(f"v_lshl_add_u32 v{AUX+10+k}, v{r}, 1, v{AUX+9}"); r = AUX + 10 + k
            for q in range(2): a(f"ds_write_b128 v{r}, {vr(src+4*q,4)} offset:{o+q*1024}")
    def reads(self):
        D = 64 - 32 * self.hf
        if self.hf == 1: a(f"v_lshl_add_u32 v{AUX+10}, v{vRA}, 1, v{AUX+9}")
        a.wait_lg_all()
        a("s_barrier")
        ids = {}
        for q in range(2):
            for k in range(3):
                area, o = self.scr(k)
                ids[(q, k)] = a(f"ds_read_b128 {vr(D+8*k+4*q,4)}, v{AUX+10 if area else vRA} offset:{o+q*1024}")
        A0 = 32 + 32 * self.hf
        for q in range(2):
            a.wait(lg=ids[(q, 1)])
            for j in (0, 2): pk("add", D+4*q+j, vr(D+4*q+j,2), vr(D+8+4*q+j,2))
            a.wait(lg=ids[(q, 2)])
            for j in (0, 2): pk("add", A0+4*q+j, vr(A0+4*q+j,2), vr(D+16+4*q+j,2))
            for j in (0, 2): pk("add", A0+4*q+j, vr(A0+4*q+j,2), vr(D+4*q+j,2))
    def woven(self, D):
        A0 = 32 + 32 * self.hf
        ops = []
        ids = {}
        wl = a.lg - 1
        def bar():
            if self.hf == 1: a(f"v_lshl_add_u32 v{AUX+10}, v{vRA}, 1, v{AUX+9}")
            a.wait(lg=wl); a("s_barrier")
        ops.append(bar)
        def rd(q, k):
            area, o = self.scr(k)
            ids[(q, k)] = a(f"ds_read_b128 {vr(D+8*k+4*q,4)}, v{AUX+10 if area else vRA} offset:{o+q*1024}")
        for q in range(2):
            for k in range(3): ops.append(lambda q=q, k=k: rd(q, k))
        ops.append(None); ops.append(None); ops.append(None)
        for q in range(2):
            for k in range(3):
                for j in range(4):
                    def ad(q=q, k=k, j=j):
                        a.wait(lg=ids[(q, k)])
                        a(f"v_add_f32 v{A0+4*q+j}, v{A0+4*q+j}, v{D+8*k+4*q+j}")
                    ops.append(ad)
        return ops
    def late_check(self, code):
        go = a.newlabel("GO")
        a.wait(vm=self.cid)
        self.can_check()
        force_fail("FRC")
        a(f"s_cbranch_vccz {go}")
        st = (a.vm, a.vm_done, a.lg, a.lg_done, dict(self.ids), self.cid, list(a.hist))
        poll(self.can_issue, self.can_check, code)
        self.window()
        a("s_waitcnt vmcnt(0)")
        a.vm, a.vm_done, a.lg, a.lg_done, self.ids, self.cid, a.hist = st
        a.label(go)
OOL = []
def mix_setup():
    a(f"v_add_u32 v{vTA}, s{sAHTR}, v{vL16}")
    a(f"v_min_u32 v{vT0}, 31, v{vL}")
    a(f"v_lshrrev_b32 v{vT1}, 1, v{vT0}")
    a(f"v_and_b32 v{vT0}, 1, v{vT0}")
    a(f"v_lshlrev_b32 v{vT0}, 8, v{vT0}")
    a(f"v_lshl_add_u32 v{MA+1}, v{vT1}, 12, v{vT0}")
    a(f"s_lshl_b32 s{sT0}, s{sKH}, 8")
    a(f"v_xor_b32 v{vTB}, s{sT0}, v{vL16}")
    a(f"v_add_u32 v{vTB}, s{sAUR}, v{vTB}")
    a(f"v_min_u32 v{MA+2}, 27, v{vL}")
    a(f"v_lshlrev_b32 v{MA+2}, 11, v{MA+2}")
    for acc, r in ((1, vR1), (2, vR2), (3, vR3)):
        a(f"s_xor_b32 s{sT0}, s{sW}, {acc}")
        a(f"s_lshl_b32 s{sT0}, s{sT0}, 13")
        a(f"v_add_u32 v{r}, s{sT0}, v{vL16}")
    a(f"s_lshl_b32 s{sT0}, s{sW}, 13")
    a(f"v_add_u32 v{vRA}, s{sT0}, v{vL16}")
    a(f"v_sub_u32 v{AUX+9}, {L_A}, v{vL16}")

def p34(L):
    a.c(f"======== P3 layer {L}")
    B1R = AUX
    pump.run(pump.i, refill=True)
    pump.run(32)
    a.wait_lg_all()
    if L == 1: a("s_barrier")
    pump.setup(2, L, extra=optL("XB", L, 0, 8))
    pump.run(optL("V2", L, 5, 0), refill=False)
    pump.fill(pump.c + optL("V2F", L, 0, 8))
    assert pump.c <= R2
    if L == 0: a("s_barrier")
    for j in range(4):
        a(f"v_lshlrev_b32 v{B1R+2*j}, 16, v{152+j}")
        a(f"v_and_b32 v{B1R+2*j+1}, 0xffff0000, v{152+j}")
    mix_setup()
    K1 = -2.0 * 0.7978845608028654 * LOG2E
    a(f"v_mov_b32 v{AUX+8}, {fl(K1)}")
    SPX = optL("SPX", L, 1, 1)
    h3a = Half(1, 0, 0); h3b = Half(1, 1, 32); h4a = Half(2, 0, 64); h4b = Half(2, 1, 92)
    stamp("p3_delta")
    idle = a.newlabel("P3IDLE"); join = a.newlabel("P3JOIN")
    pst = (pump.i, pump.c, dict(pump.vid), dict(pump.lid))
    a(f"s_cmp_eq_u32 s{sP3}, 7")
    a(f"s_cbranch_scc1 {idle}")
    IDN = optL("IDT", L, 18, 0)
    ntail = optL("V2T", L, 0, 0); nepi = optL("V2E", L, 6, 3)
    def gelu_store(hf):
        A0 = 32 + 32 * hf; T = A0 + 16
        for q in range(4): pk("mul", T+2*q, vr(A0+2*q,2), vr(A0+2*q,2))
        for q in range(4): pk("fma", T+2*q, vr(T+2*q,2), sr(sT2,2), vr(AUX+8,2), hi=[1,0,0])
        for q in range(4): pk("mul", T+2*q, vr(T+2*q,2), vr(A0+2*q,2))
        for i in range(8): a(f"v_exp_f32 v{T+i}, v{T+i}")
        for q in range(4): pk("add", T+2*q, vr(T+2*q,2), "1.0", hi=[1,0])
        for i in range(8): a(f"v_rcp_f32 v{T+i}, v{T+i}")
        for q in range(4): pk("mul", A0+2*q, vr(A0+2*q,2), vr(T+2*q,2))
        for q in range(4): a(f"v_cvt_pk_bf16_f32 v{T+8+q}, v{A0+2*q}, v{A0+2*q+1}")
        ws_store4(T + 8, sAUW, 1024 * hf)
    with cond():
        a(f"s_mov_b32 s{sT2}, s{sGK}")
        spec(h3a.can_issue, h3a.can_check, h3a.window, 0x50 + L, a.newlabel("SREDO"))
        stamp("canary")
        h3a.run(nxt=h3b)
        stamp("gemm_a")
        h3a.writes()
        pump.fill(pump.i + nepi)
        for q in range(4): pk("add", 32+2*q, vr(32+2*q,2), vr(B1R+2*q,2))
        h3a.reads()
        gelu_store(0)
        stamp("epi_a")
        i0 = pump.i
        def hk(s, k):
            if k == 1 and s + LKH >= 32 and (s & 1) and pump.i < i0 + ntail: pump.fill(pump.i + 1)
        h3b.run(nxt=h4a if SPX else None, hook=hk)
        assert ntail <= 5
        stamp("gemm_b")
        h3b.writes()
        n2 = pump.i
        nmid = pump.i
        if optL("EB", L, 1, 0): pump.run(pump.i if optL("EB", L, 1, 0) == 2 else min(R2, pump.i), refill=False, tmp=(AUX + 14, AUX + 15))
        cact = pump.c
        pump.fill(pump.i + optL("V2E2", L, 4, 3))
        nact = pump.i; n2 = nact - n2
        for q in range(4): pk("add", 64+2*q, vr(64+2*q,2), vr(B1R+2*q,2))
        h3b.reads()
        gelu_store(1)
        if SPX: h4a.late_check(0x60 + L)
        a(f"s_branch {join}")
    a.label(idle)
    pump.i, pump.c, pump.vid, pump.lid = pst
    if IDN:
        a(f"v_lshrrev_b32 v{RING}, 2, v{vL}")
        a(f"v_lshlrev_b32 v{RING}, 12, v{RING}")
        a(f"v_and_b32 v{RING+1}, 3, v{vL}")
        a(f"v_lshl_add_u32 v{RING}, v{RING+1}, 7, v{RING}")
        a(f"s_bfe_u32 s{sT0}, s{sWI}, 0x20002")
        a(f"s_mul_i32 s{sT0}, s{sT0}, {28*65536}")
        a(f"s_and_b32 s{sT1}, s{sB}, 7")
        a(f"s_lshl_b32 s{sT1}, s{sT1}, 9")
        a(f"s_add_u32 s{sT0}, s{sT0}, s{sT1}")
        a(f"v_add_u32 v{RING}, s{sT0}, v{RING}")
        a(f"s_add_u32 s{sT1}, s{sW}, s{sROT2}")
        a(f"s_add_u32 s{sT1}, s{sT1}, {28 - IDN}")
        for k in range((IDN + 3) // 4):
            a(f"s_sub_u32 s{sT2}, s{sT1}, 28")
            a(f"s_cselect_b32 s{sT1}, s{sT1}, s{sT2}")
            a(f"s_lshl_b32 s{sT2}, s{sT1}, 16")
            a(f"buffer_load_dword v31, v{RING}, {sr(SW2,4)}, s{sT2} offen")
            a(f"s_add_u32 s{sT1}, s{sT1}, 4")
    nlate = n2 if SPX else 0
    pump.fill(nmid)
    if SPX:
        poll(h4a.can_issue, h4a.can_check, 0x5e)
        h4a.window()
    pump.run(cact, refill=False, tmp=(AUX + 14, AUX + 15))
    pump.fill(nact)
    a.label(join)
    a.hist = []
    stamp(f"p3_{L}")
    a.c(f"======== P4 layer {L}")
    if L == 0:
        set_poi(64)
        tile_poison(64, sAX2W, 0, 2048)
        tile_poison(64, sAPQW, PQ[1] - PQ[0], 1024)
        kv_poison(64, 1)
    cinit = pst[1]
    NKT = opt("NKT", 10)
    def kvdma(j):
        if j == 0: a(f"s_add_u32 s{sT3}, s{sAWQT}, s{sWA}")
        if j & 3 == 0:
            a(f"s_add_u32 m0, s{sWA}, {j*1024}")
            if j: a(f"s_add_u32 s{sT3}, s{sT3}, 4096")
        a(f"buffer_load_dwordx4 v{vL16}, {sr(SWS,4)}, s{sT3} offen offset:{(j&3)*1024} sc1 lds")
    if SPX:
        WV = opt("WV", 2); AH = optL("AH", L, 3, 4)
        pump.run(min(pump.i, pump.c + optL("PRE", L, 0, 0)), tmp=(AUX, AUX + 1))
        landed = pump.i; c0 = pump.c
        def hk(s, k):
            if k == 1:
                lim = max(min(landed, c0 + WV * (s + 1)), min(28, s + AH))
                pump.run(lim, tmp=(AUX, AUX + 1), first=(s == 0))
            if k == 0 and s >= cinit:
                assert pump.c > s
                if not opt("NOPUMP", 0): a.wait(lg=pump.lid[s])
        h4a.run(nxt=h4b, hook=hk)
    else:
        pump.run(28, tmp=(AUX, AUX + 1))
        stamp("p4_w2")
        a.wait_lg_all()
        spec(h4a.can_issue, h4a.can_check, h4a.window, 0x60 + L, a.newlabel("SREDO"))
        stamp("canary")
        h4a.run(nxt=h4b)
    stamp("gemm_a")
    def resid(hf):
        A0 = 32 + 32 * hf; XU = AUX
        for j in range(4):
            a(f"v_lshlrev_b32 v{XU+2*j}, 16, v{XR+4*hf+j}")
            a(f"v_and_b32 v{XU+2*j+1}, 0xffff0000, v{XR+4*hf+j}")
        for q in range(4): pk("add", XU+2*q, vr(XU+2*q,2), vr(vB2-1,2), lo=[0,1], hi=[1,1])
        for q in range(4): pk("add", A0+2*q, vr(A0+2*q,2), vr(XU+2*q,2))
    def out(hf):
        A0 = 32 + 32 * hf
        for q in range(4): a(f"v_cvt_pk_bf16_f32 v{XR+4*hf+q}, v{A0+2*q}, v{A0+2*q+1}")
        if L == 0: ws_store4(XR + 4 * hf, sAX2W, 2048 * hf)
        else:
            a(f"v_permlane32_swap_b32 v{XR+4*hf}, v{XR+4*hf+2}")
            a(f"v_permlane32_swap_b32 v{XR+4*hf+1}, v{XR+4*hf+3}")
            a(f"buffer_store_dwordx4 {vr(XR+4*hf,4)}, v{vOUT}, {sr(SOUT,4)}, 0 offen offset:{64*hf}")
    wv = []
    if optL("WE4", L, 1, 1):
        h4a.writes()
        wv = h4a.woven(40)
        XU = AUX
        pre = []
        for j in range(4):
            pre.append(lambda j=j: a(f"v_lshlrev_b32 v{XU+2*j}, 16, v{XR+j}"))
            pre.append(lambda j=j: a(f"v_and_b32 v{XU+2*j+1}, 0xffff0000, v{XR+j}"))
        for j in range(8): pre.append(lambda j=j: a(f"v_add_f32 v{32+j}, v{32+j}, v{vB2}"))
        for j in range(8): wv.append(lambda j=j: a(f"v_add_f32 v{32+j}, v{32+j}, v{XU+j}"))
        wv = pre[:8] + wv[:1] + wv[1:7] + pre[8:] + wv[10:]
        wv.append(lambda: out(0))
    else:
        h4a.writes(); resid(0); h4a.reads(); out(0)
    h4b.late_check(0x62 + L)
    stamp("epi_a")
    kc = [0]
    WPS = opt("WPS", 2)
    def hk(s, k):
        for _ in range(WPS if k == 1 else WPS - 1):
            if wv:
                f = wv.pop(0)
                if f: f()
        if L == 0 and k == 1 and s + LKH >= 28 and kc[0] < NKT:
            kvdma(kc[0]); kc[0] += 1
    h4b.run(hook=hk)
    assert not wv
    stamp("gemm_b")
    h4b.writes(); resid(1); h4b.reads(); out(1)
    if L == 0:
        row_stats_publish(sAS2W, 32)
        for j in range(kc[0], 16): kvdma(j)
    stamp(f"p4_{L}")

def emit_ool():
    for h, nxt, lab, back in OOL:
        a.label(lab)
        a.hist = []
        a.vm_done = a.vm
        h.window()
        h.steps(lab, force=False)
        if nxt is not None:
            if nxt.kind == 2: nxt.can_issue()
            nxt.window()
            a("s_waitcnt vmcnt(0)")
        a("s_nop 15")
        a(f"s_branch {back}")

prologue()
for L in range(2):
    p1(L); p2(L); p34(L)
finish()
a.label("L_END")
emit_ool()
a.label("L_EXIT")
a("s_endpgm")

hdr = open(f"ref.s").read().split("; Override launch")[0]
out = hdr + f"""; @launch grid=(256,1,1) block=(256,1,1) lds={LDS_BYTES}
.amdgcn_target "amdgcn-amd-amdhsa--gfx950"
.text
.globl {NAME}_kernel
.p2align 8
.type {NAME}_kernel,@function
{NAME}_kernel:
""" + a.text() + f""".section .rodata,"a"
.p2align 6
.amdhsa_kernel {NAME}_kernel
  .amdhsa_next_free_vgpr 512
  .amdhsa_next_free_sgpr 102
  .amdhsa_accum_offset 256
  .amdhsa_group_segment_fixed_size 0
  .amdhsa_kernarg_size 88
  .amdhsa_user_sgpr_count 2
  .amdhsa_user_sgpr_kernarg_segment_ptr 1
  .amdhsa_system_sgpr_workgroup_id_x 1
  .amdhsa_float_denorm_mode_32 3
.end_amdhsa_kernel
"""
outp = [x for x in sys.argv[1:] if x.endswith(".s")]
open(outp[0], "w").write(out)
if DIAG: open(outp[0] + ".stamps", "w").write("\n".join(stamp_names))
```

```python
import sys, struct
from contextlib import contextmanager
from asmlib import Asm, vr, ar, sr

NAME = "interleave_layers__linear_attn_block__mixer_token_mlp__prompt"
DIAG = "--diag" in sys.argv
OPT = {}
for a_ in sys.argv:
    if a_.startswith("-D"):
        k_, v_ = a_[2:].split("="); OPT[k_] = int(v_)
def opt(k, d): return OPT.get(k, d)
def optL(k, L, d0, d1): return OPT.get(f"{k}_{L}", (d0, d1)[L])
def f2u(x): return struct.unpack("<I", struct.pack("<f", x))[0]
def fl(x): return "0x%08x" % f2u(x)
FULL = (1 << 64) - 1
LOG2E = 1.4426950408889634

KVF = [0x2000, 0xC0000]; KVP = [0x8000, 0xC6000]; ST = [0x166000, 0x1A6000]; ST2 = 0x1E6000
SELFP = 0xC0000
PQ = [0x400000, 0x600000]; HT = [0x800000, 0xA00000]; U = [0xC00000, 0xE00000]; X2 = 0x1000000
WQT = 0x1200000
TS = 0x1400000
DUMP = 0x1500000
ERRS = 0x1520000
NONCE = 0x0; TAGQ = 0x1540000
WS_BYTES = 268435456
L_A = 32768; L_B = 98304; LDS_BYTES = 163840
NS = 6; SCR = 12288
sW = 3
SX, SWQKV, SWO, SW1, SW2, SWS, SOUT, SDBG, SB1, SB2, SCODE = 4, 8, 12, 16, 20, 24, 28, 32, 36, 40, 44
sST, sDT, sRB, sHP, sDT3, sFT, sP3, sRH, sKH, sWB, sTO, sONES = 48, 49, 50, 51, 52, 53, 54, 55, 56, 57, 58, 59
sEPS6 = 60; sB = 61
sT0, sT1, sT2, sT3, sT4, sT5 = 62, 63, 64, 65, 66, 67
sSO = 68; sW1K = 69; sTS = 70
sL2E = 74; sWA = 75; sROTX = 76; sROT1 = 77; sROT2 = 78; sRED = 79; sWOFF = 80; sKB = 81; sXC = 82; sWI = 83
sKA = 84
sAKVP, sAPQW, sAPQR, sAKVF, sASTW, sASTR, sAHTW, sAHTR, sAUW, sAUR, sAX2W, sAX2R, sAS2W, sAS2R, sAWQT, sGK = range(84, 100)
sDUM = 100; sNON = 101; sRX0 = 73
vL, vL16, vTA, vTB, vT0, vT1, vT2, vT3 = 0, 1, 2, 3, 4, 5, 6, 7
XR = 8
CKP, CVP, CQP, vB2, vRS, vHH, vOUT, vTSV = 16, 17, 18, 19, 20, 21, 22, 23
vWA, vWB, vWTA, vWTB = 24, 25, 26, 27
MA = 28

a = Asm()
stamp_names = []
G = {}

@contextmanager
def cond():
    st = (a.vm, a.vm_done, a.lg, a.lg_done); h = list(a.hist)
    yield
    a.vm, a.vm_done, a.lg, a.lg_done = st[0], min(st[1], st[0]), st[2], min(st[3], st[2])
    a.hist = h

def stamp(name):
    if not DIAG: return
    if "--lite" in sys.argv and name not in ("start", "end", "p4_0"): return
    k = len(stamp_names); stamp_names.append(name)
    if opt("CYC", 0) and name not in ("start", "end"): a(f"s_memtime {sr(sTS,2)}")
    else: a(f"s_memrealtime {sr(sTS,2)}")
    if name in ("start", "end"): a(f"s_memtime s[0:1]") if name == "end" else a(f"s_memtime {sr(sTS+2,2)}")
    a("s_waitcnt lgkmcnt(0)"); a.lg_done = a.lg
    a(f"v_writelane_b32 v{vTSV}, s{sTS}, {k}")
    if name in ("start", "end"): a(f"v_writelane_b32 v{vTSV}, s{sTS+2 if name == 'start' else 0}, {62 if name == 'start' else 63}")

def srd(base, ptr, nbytes):
    a(f"s_mov_b32 s{base}, s{ptr}")
    a(f"s_and_b32 s{base+1}, s{ptr+1}, 0xffff")
    a(f"s_mov_b32 s{base+2}, {nbytes:#x}")
    a(f"s_mov_b32 s{base+3}, 0x20000")

def set_exec(mask):
    if mask == FULL: a("s_mov_b64 exec, -1")
    elif mask <= 64: a(f"s_mov_b64 exec, {mask}")
    else:
        a(f"s_mov_b32 exec_lo, {mask & 0xffffffff:#x}"); a(f"s_mov_b32 exec_hi, {mask >> 32:#x}")

def lin(dst, terms, const=0):
    first = True
    for r, m in terms:
        t = dst if first else sT5
        if m == 1 and not first: a(f"s_add_u32 s{dst}, s{dst}, s{r}"); continue
        if m & (m - 1) == 0: a(f"s_lshl_b32 s{t}, s{r}, {m.bit_length()-1}")
        else: a(f"s_mul_i32 s{t}, s{r}, {m}")
        if not first: a(f"s_add_u32 s{dst}, s{dst}, s{sT5}")
        first = False
    if const: a(f"s_add_u32 s{dst}, s{dst}, {const:#x}")

def timeout_path(code):
    a(f"s_mov_b32 s{sTO}, 0")
    if DIAG:
        a(f"v_mov_b32 v{vT3}, {code}")
        a(f"s_mov_b32 s{sT5}, {ERRS:#x}")
        a(f"buffer_store_dword v{vT3}, off, {sr(SWS,4)}, s{sT5}")
        a("s_waitcnt vmcnt(0)")

def poll(issue, check, code, pre=None):
    top = a.newlabel("POLL"); done = a.newlabel("PDONE"); chk = a.newlabel("PCHK")
    if pre is not None:
        a.wait(vm=pre)
        st = (a.vm, a.vm_done)
        a(f"s_branch {chk}")
    a.label(top)
    issue()
    a.wait_vm_all(force=True)
    if pre is not None: a.label(chk)
    check()
    a(f"s_cbranch_vccz {done}")
    h = list(a.hist); vmst = (a.vm, a.vm_done)
    if opt("PS", 2) and not (code == 0x20 and opt("A1NS", 1)): a(f"s_sleep {opt('PS', 2)}")
    a(f"s_sub_u32 s{sTO}, s{sTO}, 1")
    a(f"s_cbranch_scc0 {top}")
    timeout_path(code)
    a.label(done)
    a.hist = h; a.vm, a.vm_done = vmst
    if pre is not None: a.vm, a.vm_done = st

def poll1(addr, code, tmp=None, tag=False):
    cmp = (lambda r: a(f"v_cmp_ne_u32 vcc, s{sNON}, v{r}")) if tag else (lambda r: a(f"v_cmp_eq_u32 vcc, -1, v{r}"))
    if tmp is None or not opt("PP", 0):
        poll(lambda: a(f"buffer_load_dword v{vT3}, {addr} sc1"), lambda: cmp(vT3), code)
        return
    top = a.newlabel("PP"); done = a.newlabel("PPD")
    a(f"buffer_load_dword v{vT3}, {addr} sc1")
    a(f"s_nop {opt('PPN', 15)}")
    a.label(top)
    for r, o in ((vT3, tmp), (tmp, vT3)):
        a(f"buffer_load_dword v{o}, {addr} sc1")
        a("s_waitcnt vmcnt(1)")
        cmp(r)
        a(f"s_cbranch_vccz {done}")
    h = list(a.hist)
    a(f"s_sub_u32 s{sTO}, s{sTO}, 2")
    a(f"s_cbranch_scc0 {top}")
    timeout_path(code)
    a.label(done)
    a.hist = h
    a.vm -= 1
    a.vm_done = a.vm - 1

SLD = {}
SPD = {0x50: 1, 0x51: 1, 0x60: 1, 0x61: 1, 0x36: 1, 0x38: 1, 0x39: 1, 0x40: 1}
def spec(can_issue, can_check, window, code, redo, on=True):
    go = a.newlabel("GO")
    d = OPT.get(f"SL{code:x}", SLD.get(code, 0))
    if d: a(f"s_sleep {d}")
    on = OPT.get(f"SP{code:x}", SPD.get(code, 0))
    if on:
        can_issue(); cid = a.vm - 1
        window()
        a.wait(vm=cid)
        can_check()
        force_fail("FRC")
        a(f"s_cbranch_vccz {go}")
        st = (a.vm, a.vm_done, list(a.hist))
        poll(can_issue, can_check, code)
        a.label(redo)
        window()
        a.label(go)
        a.hist = []
        a("s_nop 0")
    else:
        poll(can_issue, can_check, code)
        a.label(redo)
        window()

force_n = [0]
def force_fail(kind):
    if not opt(kind, 0): return
    k = force_n[0] % 32; force_n[0] += 1
    l = a.newlabel("FF")
    a(f"s_bitcmp1_b32 s2, {k}")
    a(f"s_cbranch_scc1 {l}")
    a(f"s_bitset1_b32 s2, {k}")
    a("s_mov_b64 vcc, 1")
    a.label(l)

def verify(vMX, redo, force=True):
    ok = a.newlabel("VOK")
    a(f"v_cmp_eq_u32 vcc, -1, v{vMX}")
    if force: force_fail("FRV")
    a(f"s_cbranch_vccz {ok}")
    h = list(a.hist)
    a("s_waitcnt vmcnt(0)")
    a(f"s_sub_u32 s{sTO}, s{sTO}, 64")
    a(f"s_cbranch_scc0 {redo}")
    a(f"s_mov_b32 s{sTO}, 0")
    a.label(ok)
    a.hist = h

def finish():
    if opt("AMP", -1) >= 0:
        lp = a.newlabel("AMPL"); sk = a.newlabel("AMPS")
        stamp("pre_end")
        a(f"s_cmp_lg_u32 s{sB}, 77")
        a(f"s_cbranch_scc1 {sk}")
        a(f"v_readlane_b32 s{sT0}, v{vTSV}, 0")
        a(f"v_readlane_b32 s{sT1}, v{vTSV}, {opt('AMP', 0)}")
        a(f"s_memrealtime s[70:71]")
        a("s_waitcnt lgkmcnt(0)")
        a(f"s_sub_u32 s{sT1}, s{sT1}, s{sT0}")
        a(f"s_lshl_b32 s{sT1}, s{sT1}, 2")
        a(f"s_add_u32 s{sT1}, s70, s{sT1}")
        a.label(lp)
        a(f"s_memrealtime s[70:71]")
        a("s_waitcnt lgkmcnt(0)")
        a(f"s_sub_u32 s{sT2}, s70, s{sT1}")
        a(f"s_cmp_lt_i32 s{sT2}, 0")
        a(f"s_cbranch_scc1 {lp}")
        a.label(sk)
    if DIAG:
        a(f"v_writelane_b32 v{vTSV}, s{sTO}, 61")
        stamp("end")
        lin(sT0, [(sB, 1024), (sW, 256)], TS)
        a(f"v_lshlrev_b32 v{vT0}, 2, v{vL}")
        a(f"buffer_store_dword v{vTSV}, v{vT0}, {sr(SWS,4)}, s{sT0} offen")
    a("s_endpgm")

def pk(op, d, x, y, z=None, hi=None, lo=None):
    ops = [x, y] + ([z] if z is not None else [])
    m = ""
    if lo: m += " op_sel:[" + ",".join(map(str, lo)) + "]"
    if hi: m += " op_sel_hi:[" + ",".join(map(str, hi)) + "]"
    a(f"v_pk_{op}_f32 {vr(d,2)}, " + ", ".join(ops) + m)

def mfma(d, A, B, C):
    a(f"v_mfma_f32_32x32x16_bf16 {d}, {A}, {B}, {C}")

def ws_store4(reg, soff, off=0): return a(f"buffer_store_dwordx4 {vr(reg,4)}, v{vL16}, {sr(SWS,4)}, s{soff} offen offset:{off} sc1")

def tr_base(dst_a, dst_b, sel64, sel32, region):
    a(f"v_bfe_u32 v{vT0}, v{vL}, 2, 2")
    a(f"v_lshl_add_u32 v{vT0}, v{vHH}, 2, v{vT0}")
    a(f"v_lshlrev_b32 v{dst_a}, 7, v{vT0}")
    a(f"v_bfe_u32 v{vT1}, v{vL}, 3, 1")
    a(f"v_lshl_add_u32 v{dst_a}, v{vT1}, 6, v{dst_a}")
    a(f"v_bfe_u32 v{vT1}, v{vL}, 4, 1")
    a(f"v_lshl_add_u32 v{dst_a}, v{vT1}, 5, v{dst_a}")
    a(f"v_and_b32 v{vT1}, 3, v{vL}")
    a(f"v_lshl_add_u32 v{dst_a}, v{vT1}, 3, v{dst_a}")
    for sel, sh in ((sel64, 6), (sel32, 5)):
        if sel is not None:
            a(f"s_lshl_b32 s{sT5}, s{sel}, {sh}")
            a(f"v_xor_b32 v{dst_a}, s{sT5}, v{dst_a}")
    a(f"v_add_u32 v{dst_a}, {region}, v{dst_a}")
    a(f"v_xor_b32 v{dst_b}, 64, v{dst_a}")

def dma_voff(dst, dst2, pitch, scol):
    a(f"v_lshrrev_b32 v{vT0}, 3, v{vL}")
    a(f"v_mul_u32_u24 v{dst}, {pitch}, v{vT0}")
    a(f"v_bfe_u32 v{vT1}, v{vL}, 4, 1")
    a(f"v_lshlrev_b32 v{vT1}, 2, v{vT1}")
    a(f"v_and_b32 v{vT0}, 7, v{vL}")
    a(f"v_xor_b32 v{vT0}, v{vT0}, v{vT1}")
    a(f"v_lshl_add_u32 v{dst}, v{vT0}, 4, v{dst}")
    a(f"v_add_u32 v{dst}, s{scol}, v{dst}")
    a(f"v_add_u32 v{dst2}, {8*pitch-1024}, v{dst}")

R1, R2 = 16, 11
def wreg(kind, t, j, n):
    r, base = (R1, 0) if kind == 1 else (R2, R1 * 8)
    if t < r: return ar(base + 8 * t + j, n)
    t -= r
    if t < 5: return ar(216 + 8 * t + j, n)
    return vr(160 + 8 * (t - 5) + j, n)

class Pump:
    def setup(self, kind, L, extra=0):
        self.kind = kind
        self.pitch, self.srd, self.n = (3584, SW1, 32) if kind == 1 else (4096, SW2, 28)
        self.t0 = 0 if L == 0 else (R1 if kind == 1 else R2)
        self.extra = extra
        self.i = self.t0; self.c = self.t0; self.vid = {}; self.lid = {}
        a.c(f"pump setup W{kind}")
        a(f"s_lshl_b32 s{sT5}, s{sKH}, 5")
        a(f"v_xor_b32 v{vWTA}, s{sT5}, v{vWTA}")
        a(f"v_xor_b32 v{vWTB}, s{sT5}, v{vWTB}")
        lin(sT4, [(sFT if kind == 1 else sST, 128), (sW, self.n * 16 * self.pitch)])
        dma_voff(vWA, vWB, self.pitch, sT4)
        rot = sROT1 if kind == 1 else sROT2
        a(f"s_add_u32 s{sT5}, s{rot}, {self.t0}")
        a(f"s_sub_u32 s{sWOFF}, s{sT5}, {self.n}")
        a(f"s_cselect_b32 s{sWOFF}, s{sT5}, s{sWOFF}")
        a(f"s_mul_i32 s{sWOFF}, s{sWOFF}, {16*self.pitch}")
    def place(self, t):
        k = t - self.t0
        if k < self.extra: return ("B", k * 2048)
        return ("A", ((k - self.extra) % NS) * 2048)
    def prev_user(self, t):
        p = t - NS
        return p if p - self.t0 >= self.extra else None
    def room(self, lag=0):
        p = self.prev_user(self.i)
        return p is None or p < self.c - lag
    def issue1(self):
        t = self.i
        if opt("NOPUMP", 0):
            self.vid[t] = None; self.i += 1; return
        p = self.prev_user(t)
        if p is not None: a.wait(lg=self.lid[p])
        reg, o = self.place(t)
        a(f"s_add_u32 m0, s{sWB if reg == 'B' else sWA}, {o}")
        if t > self.t0:
            a(f"s_add_u32 s{sWOFF}, s{sWOFF}, {16*self.pitch}")
            a(f"s_cmp_eq_u32 s{sWOFF}, {self.n*16*self.pitch}")
            a(f"s_cselect_b32 s{sWOFF}, 0, s{sWOFF}")
        a(f"buffer_load_dwordx4 v{vWA}, {sr(self.srd,4)}, s{sWOFF} offen lds")
        self.vid[t] = a(f"buffer_load_dwordx4 v{vWB}, {sr(self.srd,4)}, s{sWOFF} offen offset:1024 lds")
        self.i += 1
    def fill(self, upto=None):
        lim = self.n if upto is None else min(self.n, upto)
        while self.i < lim and self.room(): self.issue1()
    def run(self, target, refill=True, tmp=(vT0, vT1), first=True):
        target = min(target, self.n)
        haveB = not first
        while self.c < target:
            t = self.c
            if t >= self.i: self.issue1()
            if opt("NOPUMP", 0):
                self.c += 1; continue
            reg, o = self.place(t)
            ta, tb = vWTA, vWTB
            if reg == "B":
                ta, tb = tmp
                if not haveB:
                    a(f"v_add_u32 v{ta}, 65536, v{vWTA}"); a(f"v_add_u32 v{tb}, 65536, v{vWTB}"); haveB = True
            a.wait(vm=self.vid[t])
            a(f"ds_read_b64_tr_b16 {wreg(self.kind,t,0,2)}, v{ta} offset:{o}")
            a(f"ds_read_b64_tr_b16 {wreg(self.kind,t,2,2)}, v{ta} offset:{o+1024}")
            a(f"ds_read_b64_tr_b16 {wreg(self.kind,t,4,2)}, v{tb} offset:{o}")
            self.lid[t] = a(f"ds_read_b64_tr_b16 {wreg(self.kind,t,6,2)}, v{tb} offset:{o+1024}")
            self.c += 1
            lim = self.n if refill else target
            if self.i < lim and self.room(lag=1): self.issue1()
        if refill: self.fill()
pump = Pump()

def prologue():
    a(f"s_cmp_ge_u32 s2, 256")
    a(f"s_cbranch_scc1 L_EXIT")
    a(f"s_load_dwordx16 {sr(sKA,16)}, s[0:1], 0")
    a(f"s_load_dwordx4 {sr(SCODE,4)}, s[0:1], 64")
    a(f"s_load_dwordx2 s[100:101], s[0:1], 80")
    a(f"s_mov_b32 s{sB}, s2")
    if opt("FRV", 0) or opt("FRC", 0): a("s_mov_b32 s2, 0")
    a(f"v_lshrrev_b32 v{vT0}, 6, v0")
    a(f"v_and_b32 v{vL}, 63, v0")
    a(f"v_readfirstlane_b32 s{sW}, v{vT0}")
    a(f"v_lshlrev_b32 v{vL16}, 4, v{vL}")
    a(f"v_lshrrev_b32 v{vHH}, 5, v{vL}")
    if opt("CODEPF", 1) == 2:
        a(f"s_getpc_b64 {sr(SB1,2)}")
        a.label("L_PC")
        a(f"s_and_b32 s{SB1+1}, s{SB1+1}, 0xffff")
        a(f"s_mov_b32 s{SB1+2}, L_END - L_PC")
        a(f"s_mov_b32 s{SB1+3}, 0x20000")
        a(f"s_lshr_b32 s{sT0}, s{sB}, 3")
        a(f"s_lshl_b32 s{sT0}, s{sT0}, 2")
        a(f"s_add_u32 s{sT0}, s{sT0}, s{sW}")
        a(f"s_lshl_b32 s{sT0}, s{sT0}, 10")
        a(f"buffer_load_dwordx4 {ar(252,4)}, v{vL16}, {sr(SB1,4)}, s{sT0} offen")
    if DIAG: a(f"v_mov_b32 v{vTSV}, 0")
    stamp("start")
    X_, I_ = sT0, sT1
    a(f"s_and_b32 s{X_}, s{sB}, 7")
    a(f"s_lshr_b32 s{I_}, s{sB}, 3")
    a(f"s_lshr_b32 s{sT2}, s{I_}, 3")
    a(f"s_and_b32 s{sDT}, s{I_}, 7")
    a(f"s_and_b32 s{sRB}, s{X_}, 3")
    a(f"s_lshl_b32 s{sRB}, s{sRB}, 2")
    a(f"s_add_u32 s{sRB}, s{sRB}, s{sT2}")
    a(f"s_lshr_b32 s{sHP}, s{X_}, 2")
    a(f"s_lshl_b32 s{sHP}, s{sHP}, 3")
    a(f"s_add_u32 s{sHP}, s{sHP}, s{sDT}")
    a(f"s_lshr_b32 s{sROTX}, s{sDT}, 1")
    a(f"s_add_u32 s{sROTX}, s{sROTX}, s{sT2}")
    a(f"s_and_b32 s{sROTX}, s{sROTX}, 3")
    a(f"s_lshl_b32 s{sROTX}, s{sROTX}, 1")
    a(f"s_and_b32 s{sT3}, s{I_}, 1")
    a(f"s_add_u32 s{sROTX}, s{sROTX}, s{sT3}")
    a(f"s_and_b32 s{sRX0}, s{sROTX}, {opt('RXM', 6)}")
    a(f"s_lshl_b32 s{sW1K}, s{sW}, 10")
    a(f"s_lshl_b32 s{sWB}, s{sW}, 14")
    a(f"s_add_u32 s{sWA}, s{sWB}, {L_A}")
    a(f"s_add_u32 s{sWB}, s{sWB}, {L_B}")

def roles2():
    X_, I_ = sT0, sT1
    a(f"s_and_b32 s{X_}, s{sB}, 7")
    a(f"s_lshr_b32 s{I_}, s{sB}, 3")
    a(f"s_lshr_b32 s{sT2}, s{I_}, 3")
    a(f"s_lshl_b32 s{sST}, s{X_}, 2")
    a(f"s_add_u32 s{sST}, s{sST}, s{sT2}")
    a(f"s_lshr_b32 s{sT3}, s{X_}, 1")
    a(f"s_mul_i32 s{sT3}, s{sT3}, 7")
    a(f"s_and_b32 s{sT4}, s{X_}, 1")
    a(f"s_lshl_b32 s{sT5}, s{sT4}, 2")
    a(f"s_add_u32 s{sFT}, s{sT3}, s{sT5}")
    a(f"s_add_u32 s{sFT}, s{sFT}, s{sT2}")
    a(f"s_and_b32 s{sP3}, s{I_}, 3")
    a(f"s_add_u32 s{sT5}, s{sT5}, s{sP3}")
    a(f"s_add_u32 s{sKB}, s{sT3}, 3")
    a(f"s_cmp_lt_u32 s{I_}, 24")
    a(f"s_cselect_b32 s{sFT}, s{sFT}, s{sKB}")
    a(f"s_cselect_b32 s{sDT3}, s{sDT}, s{sT5}")
    a(f"s_mul_i32 s{sT4}, s{sT4}, 3")
    a(f"s_add_u32 s{sXC}, s{sT3}, s{sT4}")
    a(f"s_lshl_b32 s{sROT1}, s{X_}, 2")
    a(f"s_and_b32 s{sT3}, s{I_}, 3")
    a(f"s_lshr_b32 s{sP3}, s{I_}, 2")
    a(f"s_lshl_b32 s{sWI}, s{I_}, 2")
    a(f"s_add_u32 s{sWI}, s{sWI}, s{sW}")
    a(f"s_lshl_b32 s{sRED}, s{X_}, 2")
    a(f"s_add_u32 s{sRED}, s{sRED}, s{sT3}")
    a(f"s_lshl_b32 s{sRED}, s{sRED}, 1")
    a(f"s_add_u32 s{sRED}, s{sRED}, s{sW}")
    a(f"s_cmp_lt_u32 s{sW}, 2")
    a(f"s_cselect_b32 s{sRED}, s{sRED}, 99")
    a(f"s_cmp_eq_u32 s{sP3}, 7")
    a(f"s_cselect_b32 s{sRED}, s{sRED}, 99")
    a(f"s_mul_i32 s{sROT2}, s{X_}, 7")
    a(f"s_lshr_b32 s{sROT2}, s{sROT2}, 2")
    a(f"s_lshl_b32 s{sROT2}, s{sROT2}, 1")
    if opt("MAP", 0):
        a(f"s_and_b32 s{sT2}, s{X_}, 1")
        a(f"s_lshl_b32 s{sT2}, s{sT2}, 2")
        a(f"s_and_b32 s{sT3}, s{I_}, 3")
        a(f"s_lshr_b32 s{sT5}, s{X_}, 1")
        a(f"s_add_u32 s{sT4}, s{sP3}, s{sT3}")
        a(f"s_and_b32 s{sT4}, s{sT4}, {opt('MROT', 1)}")
        if opt("MAP", 0) & 1:
            a(f"s_add_u32 s{sDT3}, s{sT2}, s{sT3}")
            a(f"s_mul_i32 s{sFT}, s{sT5}, 7")
            a(f"s_add_u32 s{sFT}, s{sFT}, s{sP3}")
            a(f"s_lshl_b32 s{sROT1}, s{sT4}, 4")
        if opt("MAP", 0) & 2:
            a(f"s_add_u32 s{sDT}, s{sT2}, s{sT3}")
            a(f"s_lshl_b32 s{sST}, s{sT5}, 3")
            a(f"s_add_u32 s{sST}, s{sST}, s{sP3}")
            a(f"s_mul_i32 s{sROT2}, s{sT4}, 14")
    a(f"s_lshr_b32 s{sRH}, s{sW}, 1")
    a(f"s_and_b32 s{sKH}, s{sW}, 1")
    a(f"s_mov_b32 s{sTO}, 400000")
    a(f"s_mov_b32 s{sONES}, 0x3f803f80")
    a(f"s_mov_b32 s{sEPS6}, {fl(1e-6)}")
    a(f"s_mov_b32 s{sL2E}, {fl(LOG2E)}")

def late_srds():
    srd(SWO, sKA + 4, 512 * 512 * 2)
    srd(SW1, sKA + 8, 2048 * 1792 * 2)
    srd(SB1, sKA + 10, 1792 * 2)
    srd(SW2, sKA + 12, 1792 * 2048 * 2)
    srd(SB2, sKA + 14, 2048 * 2)
    srd(SOUT, SCODE, 2048 * 512 * 2)
    srd(SDBG, SCODE + 2, 256)

def code_prefetch():
    if opt("CODEPF", 1) == 1:
        a(f"s_getpc_b64 {sr(SCODE,2)}")
        a.label("L_PC")
        a(f"s_and_b32 s{SCODE+1}, s{SCODE+1}, 0xffff")
        a(f"s_mov_b32 s{SCODE+2}, L_END - L_PC")
        a(f"s_mov_b32 s{SCODE+3}, 0x20000")
        a(f"s_lshl_b32 s{sT0}, s{sWI}, 10")
        a(f"buffer_load_dwordx4 {ar(252,4)}, v{vL16}, {sr(SCODE,4)}, s{sT0} offen")
    srd(SCODE, SW1, 2048 * 1792 * 2)
    a(f"s_cmp_eq_u32 s{sP3}, 7")
    a(f"s_cselect_b32 s{SW1+2}, 0, s{SW1+2}")

def addresses():
    lin(sAKVP, [(sHP, 64 * 640), (sRB, 4 * 640), (sW, 640)], KVP[0])
    lin(sAPQW, [(sRB, 4 * 32768), (sW, 32768), (sHP, 2048)], PQ[0])
    lin(sAPQR, [(sST, 65536), (sRH, 32768), (sKH, 16384)], PQ[0])
    lin(sAKVF, [(sKH, 16 * 768)], KVF[0])
    lin(sASTW, [(sST, 8192), (sDT, 1024), (sKH, 512), (sRH, 256)], ST[0])
    lin(sASTR, [(sST, 8192), (sRH, 256)], ST[0])
    lin(sAHTW, [(sDT, 262144), (sST, 8192), (sRH, 4096), (sKH, 256)], HT[0])
    lin(sAHTR, [(sDT3, 262144), (sW, 65536)], HT[0])
    lin(sAUW, [(sDT3, 229376), (sFT, 8192), (sRH, 4096), (sKH, 2048)], U[0])
    a(f"s_cmp_eq_u32 s{sP3}, 7")
    a(f"s_cselect_b32 s{sAUW}, {WS_BYTES:#x}, s{sAUW}")
    lin(sAUR, [(sDT, 229376), (sW, 57344)], U[0])
    lin(sAX2W, [(sST, 65536), (sRH, 32768), (sDT, 4096), (sKH, 1024)], X2)
    lin(sAX2R, [(sRB, 4 * 32768), (sW, 32768)], X2)
    a(f"s_add_u32 s{sAS2W}, s{sASTW}, {ST2 - ST[0]:#x}")
    lin(sAS2R, [(sRB, 2 * 8192), (sRH, 8192), (sKH, 256)], ST2)
    lin(sAWQT, [(sHP, 98304)], WQT)
    a(f"s_mov_b32 s{sGK}, {fl(-2.0 * 0.7978845608028654 * LOG2E * 0.044715)}")

def next_layer_addresses():
    for r, d in ((sAKVP, KVP[1] - KVP[0]), (sAPQW, PQ[1] - PQ[0]), (sAPQR, PQ[1] - PQ[0]), (sAKVF, KVF[1] - KVF[0]),
                 (sASTW, ST[1] - ST[0]), (sASTR, ST[1] - ST[0]), (sAHTW, HT[1] - HT[0]), (sAHTR, HT[1] - HT[0]),
                 (sAUW, U[1] - U[0]), (sAUR, U[1] - U[0])):
        a(f"s_add_u32 s{r}, s{r}, {d:#x}")

def kv_poison(P, L):
    r = sAKVP
    if L == 1:
        a(f"s_add_u32 s{sT1}, s{sAKVP}, {KVP[1]-KVP[0]:#x}"); r = sT1
    set_exec((1 << 40) - 1)
    ws_store4(P, r)
    a(f"s_mul_i32 s{sT0}, s{sRED}, 384")
    a(f"s_add_u32 s{sT0}, s{sT0}, {KVF[L]:#x}")
    a(f"s_cmp_ge_u32 s{sRED}, 64")
    a(f"s_cselect_b32 s{sT0}, {WS_BYTES:#x}, s{sT0}")
    set_exec((1 << 24) - 1)
    ws_store4(P, sT0)
    set_exec(FULL)
def ht_voff(dst):
    a(f"v_and_b32 v{dst}, 15, v{vL}")
    a(f"v_lshlrev_b32 v{dst}, 4, v{dst}")
    a(f"v_lshl_add_u32 v{dst}, v{vHH}, 9, v{dst}")
    a(f"v_bfe_u32 v{vT0}, v{vL}, 4, 1")
    a(f"v_lshl_add_u32 v{dst}, v{vT0}, 10, v{dst}")
def tile_poison(P, r, delta, step):
    v = vL16
    if r == sAHTW:
        ht_voff(vT1); v = vT1
    if delta:
        a(f"s_add_u32 s{sT0}, s{r}, {delta:#x}"); r = sT0
    for f in range(2): a(f"buffer_store_dwordx4 {vr(P,4)}, v{v}, {sr(SWS,4)}, s{r} offen offset:{step*f} sc1")
def canary_poison(P):
    lines = ((sAHTW, 2048+1024+512+128), (sAUW, 896), (sAUW, 1024+896), (sAHTW, HT[1]-HT[0]+2048+1024+512+128),
             (sAUW, U[1]-U[0]+896), (sAUW, U[1]-U[0]+1024+896), (sAPQW, PQ[1]-PQ[0]+1024+896), (sAX2W, 896))
    a(f"v_lshrrev_b32 v{vT0}, 3, v{vL}")
    for g, (r, d) in enumerate(lines):
        a(f"s_add_u32 s{sT0}, s{r}, {d:#x}")
        if g == 0: a(f"v_mov_b32 v{vT1}, s{sT0}")
        else:
            a(f"v_mov_b32 v{vT2}, s{sT0}")
            a(f"v_cmp_eq_u32 vcc, {g}, v{vT0}")
            a(f"v_cndmask_b32 v{vT1}, v{vT1}, v{vT2}, vcc")
    a(f"v_and_b32 v{vT0}, 7, v{vL}")
    a(f"v_lshl_add_u32 v{vT1}, v{vT0}, 4, v{vT1}")
    a(f"buffer_store_dwordx4 {vr(P,4)}, v{vT1}, {sr(SWS,4)}, 0 offen sc1")
def st_poison(P):
    lin(sT0, [(sB, 3072), (sW, 768)], ST[0])
    set_exec((1 << 48) - 1)
    ws_store4(P, sT0)
    set_exec(FULL)
def set_poi(P):
    for i in range(4): a(f"v_mov_b32 v{P+i}, -1")

def misc_loads():
    lin(sT0, [(sST, 64), (sRH, 32)])
    a(f"v_and_b32 v{vT0}, 31, v{vL}")
    a(f"v_add_u32 v{vT0}, s{sT0}, v{vT0}")
    a(f"v_lshlrev_b32 v{vT1}, 1, v{vT0}")
    a(f"buffer_load_ushort v{vB2}, v{vT1}, {sr(SB2,4)}, 0 offen")
    a(f"v_lshlrev_b32 v{vT0}, 10, v{vT0}")
    a(f"v_lshl_add_u32 v{vOUT}, v{vHH}, 4, v{vT0}")
    lin(sT0, [(sDT, 128), (sKH, 32)])
    a(f"v_add_u32 v{vOUT}, s{sT0}, v{vOUT}")
    a(f"buffer_load_dwordx4 {vr(XR,4)}, v{vOUT}, {sr(SX,4)}, 0 offen")
    a(f"buffer_load_dwordx4 {vr(XR+4,4)}, v{vOUT}, {sr(SX,4)}, 0 offen offset:64")

def touch(srdn, rows_per_wave, lg, pitch, scol_emit, dst):
    n = rows_per_wave << lg
    scol_emit()
    a(f"v_min_u32 v{vT0}, {n-1}, v{vL}")
    a(f"v_lshrrev_b32 v{vT1}, {lg}, v{vT0}")
    a(f"v_mul_u32_u24 v{vT1}, {pitch}, v{vT1}")
    a(f"v_and_b32 v{vT0}, {(1<<lg)-1}, v{vT0}")
    a(f"v_lshl_add_u32 v{vT0}, v{vT0}, 7, v{vT1}")
    a(f"s_mul_i32 s{sT5}, s{sWI}, {rows_per_wave*pitch}")
    a(f"s_add_u32 s{sT4}, s{sT4}, s{sT5}")
    a(f"buffer_load_dword {dst}, v{vT0}, {sr(srdn,4)}, s{sT4} offen")
def touch_w1(dst): touch(SCODE, 16, 2, 3584, lambda: a(f"s_lshl_b32 s{sT4}, s{sXC}, 7"), dst)
def touch_w2(dst):
    def c2():
        a(f"s_and_b32 s{sT4}, s{sB}, 7"); a(f"s_lshl_b32 s{sT4}, s{sT4}, 9")
    touch(SW2, 16, 2, 4096, c2, dst)
def touch_w2h(dst, t0):
    a(f"s_lshr_b32 s{sT4}, s{sWI}, 3")
    a(f"s_add_u32 s{sT4}, s{sT4}, s{sROT2}")
    if t0: a(f"s_add_u32 s{sT4}, s{sT4}, {t0}")
    a(f"s_sub_u32 s{sT5}, s{sT4}, 28")
    a(f"s_cselect_b32 s{sT4}, s{sT4}, s{sT5}")
    a(f"s_and_b32 s{sT5}, s{sWI}, 3")
    a(f"s_mul_i32 s{sT5}, s{sT5}, 28")
    a(f"s_add_u32 s{sT4}, s{sT4}, s{sT5}")
    a(f"s_lshl_b32 s{sT4}, s{sT4}, 1")
    a(f"s_bfe_u32 s{sT5}, s{sWI}, 0x10002")
    a(f"s_add_u32 s{sT4}, s{sT4}, s{sT5}")
    a(f"s_lshl_b32 s{sT4}, s{sT4}, 15")
    a(f"s_and_b32 s{sT5}, s{sB}, 7")
    a(f"s_lshl_b32 s{sT5}, s{sT5}, 9")
    a(f"s_add_u32 s{sT4}, s{sT4}, s{sT5}")
    a(f"s_cmp_eq_u32 s{sP3}, 7")
    a(f"s_cselect_b32 s{sT4}, 0x10000000, s{sT4}")
    a(f"v_min_u32 v{vT0}, 31, v{vL}")
    a(f"v_lshrrev_b32 v{vT1}, 2, v{vT0}")
    a(f"v_and_b32 v{vT0}, 3, v{vT0}")
    a(f"v_lshlrev_b32 v{vT0}, 7, v{vT0}")
    a(f"v_lshl_add_u32 v{vT0}, v{vT1}, 12, v{vT0}")
    a(f"buffer_load_dword {dst}, v{vT0}, {sr(SW2,4)}, s{sT4} offen")
def touch_w1h(dst, t0):
    a(f"s_lshr_b32 s{sT4}, s{sWI}, 3")
    a(f"s_add_u32 s{sT4}, s{sT4}, s{sROT1}")
    if t0: a(f"s_add_u32 s{sT4}, s{sT4}, {t0}")
    a(f"s_and_b32 s{sT4}, s{sT4}, 31")
    a(f"s_and_b32 s{sT5}, s{sWI}, 3")
    a(f"s_lshl_b32 s{sT5}, s{sT5}, 5")
    a(f"s_add_u32 s{sT4}, s{sT4}, s{sT5}")
    a(f"s_lshl_b32 s{sT4}, s{sT4}, 1")
    a(f"s_bfe_u32 s{sT5}, s{sWI}, 0x10002")
    a(f"s_add_u32 s{sT4}, s{sT4}, s{sT5}")
    a(f"s_mul_i32 s{sT4}, s{sT4}, {8*3584}")
    a(f"s_lshl_b32 s{sT5}, s{sXC}, 7")
    a(f"s_add_u32 s{sT4}, s{sT4}, s{sT5}")
    a(f"v_min_u32 v{vT0}, 31, v{vL}")
    a(f"v_lshrrev_b32 v{vT1}, 2, v{vT0}")
    a(f"v_and_b32 v{vT0}, 3, v{vT0}")
    a(f"v_lshlrev_b32 v{vT0}, 7, v{vT0}")
    a(f"v_mul_u32_u24 v{vT1}, 3584, v{vT1}")
    a(f"v_add_u32 v{vT0}, v{vT1}, v{vT0}")
    a(f"buffer_load_dword {dst}, v{vT0}, {sr(SCODE,4)}, s{sT4} offen")
def touch_wo(dst): touch(SWO, 4, 3, 1024, lambda: a(f"s_mov_b32 s{sT4}, 0"), dst)
def touches(L, where):
    dst = "a25" if where in (1, 2, 3, 6, 7, 8) else None
    if optL("T1", L, 0, 0) == where: touch_w1(dst + "2" if dst else "v31")
    if optL("T1A", L, 6, 0) == where: touch_w1h(dst + "2" if dst else "v31", 0)
    if optL("T1B", L, 8, 0) == where: touch_w1h(dst + "5" if dst else "v31", 16)
    if optL("T2", L, 0, 0) == where: touch_w2(dst + "3" if dst else "v31")
    if optL("T2H", L, 9, 0) == where: touch_w2h(dst + "3" if dst else "v31", 0)
    if optL("T2G", L, 0, 0) == where: touch_w2h(dst + "3" if dst else "v31", 14)

def split2(dst, src, t0):
    a(f"v_cvt_pk_bf16_f32 v{t0}, v{src}, v{src}")
    a(f"v_and_b32 v{t0}, 0xffff0000, v{t0}")
    a(f"v_sub_f32 v{dst}, v{src}, v{t0}")
    a(f"v_cvt_pk_bf16_f32 v{dst}, v{t0}, v{dst}")

def stats_to_frags(S, Q, RA):
    a(f"v_mul_f32 v{S}, {fl(-1/512)}, v{S}")
    a(f"v_mul_f32 v{Q}, {fl(1/512)}, v{Q}")
    a(f"v_cmp_eq_u32 vcc, 0, v{vHH}")
    a(f"v_fma_f32 v{Q}, -v{S}, v{S}, v{Q}")
    a(f"v_max_f32 v{Q}, 0, v{Q}")
    a(f"v_add_f32 v{Q}, {fl(1e-5)}, v{Q}")
    a(f"v_rsq_f32 v{vRS}, v{Q}")
    a(f"v_cndmask_b32 v{S}, 0, v{S}, vcc")
    a(f"v_cvt_pk_bf16_f32 v{MA}, v{S}, v{S}")
    a(f"v_cndmask_b32 v{Q}, 0, v{vRS}, vcc")
    a(f"v_and_b32 v{vT0}, 0xffff0000, v{MA}")
    a(f"v_sub_f32 v{S}, v{S}, v{vT0}")
    a(f"v_cvt_pk_bf16_f32 v{MA+1}, v{S}, v{S}")
    split2(RA, Q, vT0)

def stats_check(SB):
    a(f"v_max3_u32 v{vT3}, v{SB+1}, v{SB+3}, v{SB+5}")
    a(f"v_max3_u32 v{vT3}, v{vT3}, v{SB+7}, v{SB+9}")
    a(f"v_max3_u32 v{vT3}, v{vT3}, v{SB+11}, v{SB+13}")
    a(f"v_max_u32 v{vT3}, v{vT3}, v{SB+15}")
    a(f"v_cmp_eq_u32 vcc, -1, v{vT3}")
def stats_sum(SB):
    for n in (4, 2, 1):
        for p in range(n): pk("add", SB+2*p, vr(SB+2*p,2), vr(SB+2*(p+n),2))
    a(f"v_mov_b32 v{SB+2}, v{SB}")
    a(f"v_mov_b32 v{SB+3}, v{SB+1}")
    a(f"v_permlane32_swap_b32 v{SB}, v{SB+2}")
    a(f"v_permlane32_swap_b32 v{SB+1}, v{SB+3}")
    pk("add", SB, vr(SB,2), vr(SB+2,2))

A1B = 128
def a1_issue():
    a(f"s_mov_b32 s{sT3}, s{sKB}")
    for p in range(16):
        a(f"buffer_load_dwordx4 {vr(A1B+4*p,4)}, v{vL16}, {sr(SWS,4)}, s{sT3} offen offset:{(p&1)*2560} sc1")
        if p & 1 and p < 15: a(f"s_add_u32 s{sT3}, s{sT3}, {2*2560}")
def a1_early(L):
    skip = a.newlabel("NOA1E")
    a(f"s_cmp_ge_u32 s{sRED}, 64")
    a(f"s_cbranch_scc1 {skip}")
    with cond():
        a(f"s_lshr_b32 s{sKB}, s{sRED}, 2")
        a(f"s_mul_i32 s{sKB}, s{sKB}, {16*2560}")
        a(f"s_and_b32 s{sT2}, s{sRED}, 3")
        a(f"s_mul_i32 s{sT2}, s{sT2}, 640")
        a(f"s_add_u32 s{sKB}, s{sKB}, s{sT2}")
        a(f"s_add_u32 s{sKB}, s{sKB}, {KVP[L]:#x}")
        if opt("A1C", 0):
            a(f"v_and_b32 v{vT1}, 15, v{vL}")
            a(f"v_mul_u32_u24 v{vT1}, 2560, v{vT1}")
            a(f"buffer_load_dword v{vT3}, v{vT1}, {sr(SWS,4)}, s{sKB} offen offset:544 sc1")
        else:
            set_exec((1 << 35) - 1)
            a1_issue()
            set_exec(FULL)
    a.label(skip)
def a1_check():
    B = A1B
    a(f"v_max3_u32 v{vT3}, v{B}, v{B+4}, v{B+8}")
    a(f"v_min3_u32 v{vT1}, v{B}, v{B+4}, v{B+8}")
    for p in range(3, 15, 2):
        a(f"v_max3_u32 v{vT3}, v{vT3}, v{B+4*p}, v{B+4*p+4}")
        a(f"v_min3_u32 v{vT1}, v{vT1}, v{B+4*p}, v{B+4*p+4}")
    a(f"v_max_u32 v{vT3}, v{vT3}, v{B+60}")
    a(f"v_min_u32 v{vT1}, v{vT1}, v{B+60}")
    a(f"v_cmp_eq_u32 vcc, -1, v{vT3}")
    a(f"v_readlane_b32 s{sT0}, v{vT3}, 34")
    a(f"v_readlane_b32 s{sT1}, v{vT1}, 34")
    a(f"s_xor_b32 s{sT0}, s{sT0}, s{sNON}")
    a(f"s_xor_b32 s{sT1}, s{sT1}, s{sNON}")
    a(f"s_or_b32 s{sT0}, s{sT0}, s{sT1}")
    a(f"s_or_b32 vcc_lo, vcc_lo, s{sT0}")
    a(f"s_or_b64 vcc, vcc, vcc")
def a1_mid(younger):
    skip = a.newlabel("NOA1M"); ok = a.newlabel("A1MOK")
    a(f"s_cmp_ge_u32 s{sRED}, 64")
    a(f"s_cbranch_scc1 {skip}")
    with cond():
        set_exec((1 << 35) - 1)
        a(f"s_waitcnt vmcnt({younger})")
        a1_check()
        a(f"s_cbranch_vccz {ok}")
        a1_issue()
        a.label(ok)
        set_exec(FULL)
    a.label(skip)
def a1(L, younger):
    a.c("======== A1 reducer")
    skip = a.newlabel("NOA1")
    a(f"s_cmp_ge_u32 s{sRED}, 64")
    a(f"s_cbranch_scc1 {skip}")
    with cond():
        B = A1B
        a(f"s_mul_i32 s{sT2}, s{sRED}, 384")
        a(f"s_add_u32 s{sT2}, s{sT2}, {KVF[L]:#x}")
        a(f"v_lshlrev_b32 v{vT2}, 3, v{vL}")
        set_exec((1 << 35) - 1)
        def check():
            a(f"v_max3_u32 v{vT3}, v{B}, v{B+4}, v{B+8}")
            a(f"v_min3_u32 v{vT1}, v{B}, v{B+4}, v{B+8}")
            for p in range(3, 15, 2):
                a(f"v_max3_u32 v{vT3}, v{vT3}, v{B+4*p}, v{B+4*p+4}")
                a(f"v_min3_u32 v{vT1}, v{vT1}, v{B+4*p}, v{B+4*p+4}")
            a(f"v_max_u32 v{vT3}, v{vT3}, v{B+60}")
            a(f"v_min_u32 v{vT1}, v{vT1}, v{B+60}")
            a(f"v_cmp_eq_u32 vcc, -1, v{vT3}")
            a(f"v_readlane_b32 s{sT0}, v{vT3}, 34")
            a(f"v_readlane_b32 s{sT1}, v{vT1}, 34")
            a(f"s_xor_b32 s{sT0}, s{sT0}, s{sNON}")
            a(f"s_xor_b32 s{sT1}, s{sT1}, s{sNON}")
            a(f"s_or_b32 s{sT0}, s{sT0}, s{sT1}")
            a(f"s_or_b32 vcc_lo, vcc_lo, s{sT0}")
            a(f"s_or_b64 vcc, vcc, vcc")
        a.vm_done = min(a.vm_done, a.vm - younger - 1)
        if opt("A1C", 0):
            poll(lambda: a(f"buffer_load_dword v{vT3}, v{vT1}, {sr(SWS,4)}, s{sKB} offen offset:544 sc1"),
                 lambda: a(f"v_cmp_ne_u32 vcc, s{sNON}, v{vT3}"), 0x21, pre=a.vm - younger - 1)
            poll(a1_issue, check, 0x20)
        else:
            poll(a1_issue, check, 0x20, pre=a.vm - younger - 1)
        n = 16
        while n > 1:
            n //= 2
            for p in range(n):
                for j in (0, 2): pk("add", B+4*p+j, vr(B+4*p+j,2), vr(B+4*(p+n)+j,2))
        a(f"v_cvt_pk_bf16_f32 v{B+4}, v{B}, v{B+1}")
        a(f"v_cvt_pk_bf16_f32 v{B+5}, v{B+2}, v{B+3}")
        a(f"v_mov_b32_dpp v{B+6}, v{B+4} quad_perm:[1,1,3,3] row_mask:0xf bank_mask:0xf")
        a(f"v_mov_b32_dpp v{B+7}, v{B+5} quad_perm:[1,1,3,3] row_mask:0xf bank_mask:0xf")
        a(f"v_writelane_b32 v{B+4}, s{sNON}, 34")
        set_exec(0x555555555555)
        a(f"buffer_store_dwordx4 {vr(B+4,4)}, v{vT2}, {sr(SWS,4)}, s{sT2} offen sc1")
        set_exec(FULL)
        a("s_nop 1")
    a.label(skip)
    stamp("a1")

XF = 128
def KS(s): return 4 * ((s & 15) >> 1) + (s & 1) + 2 * (s >> 4)
def XFR(L, s): return XF + 4 * (((s + 16) & 31) if L == 1 else s)
xid1 = {}
def xa_XL(s):
    jj = s & 15
    if jj == 0: a(f"s_mov_b32 s{sSO}, s{sT4}")
    elif jj == 8: a(f"s_xor_b32 s{sSO}, s{sT4}, 16384")
    elif jj & 1 == 0: a(f"s_add_u32 s{sSO}, s{sSO}, 4096")
    xid1[s] = a(f"buffer_load_dwordx4 {vr(XFR(1,s),4)}, v{vL16}, {sr(SWS,4)}, s{sSO} offen offset:{(KS(s)&3)*1024} sc1")
vXC = MA + 1
def xa_ci(): return a(f"buffer_load_dword v{vT3}, v{vXC}, {sr(SWS,4)}, s{sAX2R} offen offset:1020 sc1")
def xa_start():
    a(f"s_and_b32 s{sT5}, s{sROTX}, {opt('XROT', 1)}")
    a(f"s_lshl_b32 s{sT5}, s{sT5}, 14")
    a(f"s_add_u32 s{sT4}, s{sAX2R}, s{sT5}")
    a(f"v_and_b32 v{vXC}, 15, v{vL}")
    a(f"v_lshrrev_b32 v{MA+3}, 1, v{vXC}")
    a(f"v_and_b32 v{vXC}, 1, v{vXC}")
    a(f"v_lshlrev_b32 v{vXC}, 10, v{vXC}")
    a(f"v_lshl_add_u32 v{vXC}, v{MA+3}, 12, v{vXC}")
    G["xcid"] = xa_ci()
    for s in range(opt("LA1", 8)): xa_XL(s)
def p1(L):
    ACCK, ACCV, RR = 32, 48, 64
    VV, PK, T1 = 80, 88, 96
    S0, S1, Q0, Q1 = 80, 81, 82, 83
    CF = 84
    CFV, CFQ, RA = 112, 116, 120
    vTQ, vTV = 124, 125
    vW, vXA, vXB = 126, 127, 96
    vCQ, vCV = 97, 98
    vOA, vOB = vTA, vTB
    vTQ2, vTV2 = vTA, vTB
    vKW, vKR = 92, 93
    XA = 88
    vKW2, vKR2 = vT2, 127
    POI = 100
    WFR = 216; NWF = 4; ONESF = 248; CG = 200; CK, CV, CQ = 152, 168, 184
    a.c(f"======== P1 layer {L}")
    xid = {}; wid = {}
    toff = 256
    def addr_setup():
        if L == 0:
            a(f"v_bfe_u32 v{vT0}, v{vL}, 2, 2")
            a(f"v_lshl_add_u32 v{vT0}, v{vHH}, 3, v{vT0}")
            a(f"v_lshlrev_b32 v{vTQ}, 6, v{vT0}")
            a(f"v_bfe_u32 v{vT1}, v{vL}, 4, 1")
            a(f"v_lshl_add_u32 v{vTQ}, v{vT1}, 5, v{vTQ}")
            a(f"v_and_b32 v{vT1}, 3, v{vL}")
            a(f"v_lshl_add_u32 v{vTQ}, v{vT1}, 3, v{vTQ}")
        else:
            a(f"s_and_b32 s{sT5}, s{sROTX}, {opt('XROT', 1)}")
            a(f"s_lshl_b32 s{sT5}, s{sT5}, 14")
            a(f"v_add_u32 v{vTQ}, s{sT5}, v{vL16}")
            a(f"v_xor_b32 v{vTQ2}, 16384, v{vTQ}")
            a(f"v_add_u32 v{vTV2}, 65536, v{vTQ2}")
        a(f"v_add_u32 v{vTV}, 65536, v{vTQ}")
        for i in range(4): a(f"v_accvgpr_write_b32 a{ONESF+i}, s{sONES}")
        for r in ([MA + 2, MA + 3] if L == 0 else []) + [RA + 1, RA + 2, RA + 3, CF + 2, CF + 3, CFV + 2, CFV + 3, CFQ + 2, CFQ + 3]: a(f"v_mov_b32 v{r}, 0")
    def kv_addr():
        a(f"v_bfe_u32 v{vT0}, v{vL}, 4, 1")
        a(f"v_lshl_add_u32 v{vT0}, v{vT0}, 1, v{vHH}")
        a(f"v_mul_u32_u24 v{vT0}, 17, v{vT0}")
        a(f"v_and_b32 v{vT1}, 15, v{vL}")
        a(f"v_add_u32 v{vT0}, v{vT0}, v{vT1}")
        a(f"v_lshlrev_b32 v{vT0}, 5, v{vT0}")
        a(f"v_add_u32 v{vKW2}, s{sWA}, v{vT0}")
        a(f"s_mul_i32 s{sT0}, s{sW}, 544")
        a(f"s_add_u32 s{sT0}, s{sT0}, {L_A + SCR}")
        a(f"v_add_u32 v{vKR2}, s{sT0}, v{vL16}")
    rg = {}
    def RG(s):
        b = WFR + (s % NWF) * 8
        if L == 0:
            o = s * 1024
            a(f"ds_read_b64_tr_b16 {ar(b,2)}, v{vTQ} offset:{32768+o}")
            a(f"ds_read_b64_tr_b16 {ar(b+2,2)}, v{vTQ} offset:{32768+o+toff}")
            a(f"ds_read_b64_tr_b16 {ar(b+4,2)}, v{vTV} offset:{o}")
            rg[s] = a(f"ds_read_b64_tr_b16 {ar(b+6,2)}, v{vTV} offset:{o+toff}")
        else:
            o = (KS(s) & 15) * 1024
            q_, v_ = (vTQ2, vTV2) if KS(s) >= 16 else (vTQ, vTV)
            a(f"ds_read_b128 {ar(b,4)}, v{q_} offset:{32768+o}")
            rg[s] = a(f"ds_read_b128 {ar(b+4,4)}, v{v_} offset:{o}")
    if L == 0:
        a(f"v_lshrrev_b32 v{vT0}, 2, v{vL}")
        a(f"s_lshl_b32 s{sT0}, s{sW}, 4")
        a(f"v_add_u32 v{vT0}, s{sT0}, v{vT0}")
        a(f"v_mul_u32_u24 v{vW}, 3072, v{vT0}")
        a(f"v_and_b32 v{vT0}, 3, v{vL}")
        a(f"v_lshl_add_u32 v{vW}, v{vT0}, 4, v{vW}")
        a(f"s_lshl_b32 s{sT0}, s{sHP}, 6")
        a(f"v_add_u32 v{vW}, s{sT0}, v{vW}")
        lin(sT0, [(sRB, 131072), (sW, 32768)])
        a(f"v_lshrrev_b32 v{vT0}, 3, v{vL}")
        a(f"v_lshlrev_b32 v{vT0}, 10, v{vT0}")
        a(f"v_add_u32 v{vT0}, s{sT0}, v{vT0}")
        a(f"v_and_b32 v{vT1}, 7, v{vL}")
        a(f"v_lshrrev_b32 v{vT2}, 4, v{vL}")
        a(f"v_xor_b32 v{vT1}, v{vT1}, v{vT2}")
        a(f"v_lshl_add_u32 v{vXA}, v{vT1}, 4, v{vT0}")
        a(f"v_xor_b32 v{vXB}, 64, v{vXA}")
        a(f"v_add_u32 v{vXB}, {8192-1024}, v{vXB}")
        a("s_waitcnt lgkmcnt(0)")
        srd(SX, sKA + 0, 2048 * 512 * 2)
        srd(SWQKV, sKA + 2, 512 * 1536 * 2)
        def x_issue(j):
            a(f"s_add_u32 s{sKB}, s{sRX0}, {j}")
            a(f"s_and_b32 s{sKB}, s{sKB}, 7")
            a(f"s_lshl_b32 s{sT1}, s{sKB}, 7")
            a(f"s_add_u32 m0, s{sWB}, {(j&3)*4096}")
            a(f"s_mul_i32 s{sSO}, s{sKB}, {64*3072}")
            a(f"buffer_load_dwordx4 v{vXA}, {sr(SX,4)}, s{sT1} offen lds")
            a(f"buffer_load_dwordx4 v{vXB}, {sr(SX,4)}, s{sT1} offen offset:1024 lds")
            a(f"s_add_u32 m0, s{sWB}, {(j&3)*4096+2048}")
            a(f"s_add_u32 s{sT1}, s{sT1}, 16384")
            a(f"buffer_load_dwordx4 v{vXA}, {sr(SX,4)}, s{sT1} offen lds")
            xid[j] = a(f"buffer_load_dwordx4 v{vXB}, {sr(SX,4)}, s{sT1} offen offset:1024 lds")
        def w_issue(j):
            for seg in (1, 2, 0):
                a(f"s_add_u32 m0, s{sW1K}, {seg*32768 - seg*1024 + j*4096}")
                wid[j] = a(f"buffer_load_dwordx4 v{vW}, {sr(SWQKV,4)}, s{sSO} offen offset:{seg*1024} lds")
        def wo_issue(c):
            for k in range(2):
                j = 2 * c + k
                a(f"s_add_u32 m0, s{sWB}, {j*2048}")
                if j == 0: a(f"s_lshl_b32 s{sSO}, s{sW}, 17")
                else: a(f"s_add_u32 s{sSO}, s{sSO}, 16384")
                a(f"buffer_load_dwordx4 v{vOA}, {sr(SWO,4)}, s{sSO} offen lds")
                G["wo"] = a(f"buffer_load_dwordx4 v{vOB}, {sr(SWO,4)}, s{sSO} offen offset:1024 lds")
        x_issue(0); w_issue(0)
        srd(SWS, 100, WS_BYTES)
        a(f"buffer_load_dword v{vKW}, off, {sr(SWS,4)}, 0 offset:{NONCE} sc1")
        roles2()
        late_srds()
        x_issue(1); w_issue(1)
        touch_wo("a254")
        code_prefetch()
        touches(0, 6)
        for i in range(4): a(f"v_mov_b32 v{POI+i}, -1")
        addresses()
        addr_setup()
        a(f"v_add_u32 v{vCQ}, s{sW1K}, v{vTQ}")
        a(f"v_add_u32 v{vCV}, s{sW1K}, v{vTV}")
        for r in (S0, S1, Q0, Q1): a(f"v_mov_b32 v{r}, 0")
        a(f"v_and_b32 v{vT0}, 31, v{vL}")
        a(f"v_bfe_u32 v{vT1}, v{vL}, 1, 3")
        a(f"v_xor_b32 v{vT1}, v{vT1}, v{vHH}")
        a(f"v_lshlrev_b32 v{vT0}, 7, v{vT0}")
        a(f"v_add_u32 v{vT0}, s{sWB}, v{vT0}")
        for t in range(4):
            a(f"v_xor_b32 v{vT2}, {2*t}, v{vT1}")
            a(f"v_lshl_add_u32 v{XA+t}, v{vT2}, 4, v{vT0}")
        a(f"s_lshl_b32 s{sT4}, s{sDT}, 7")
        dma_voff(vOA, vOB, 1024, sT4)
        tr_base(vWTA, vWTB, sRH, None, f"s{sWA}")
        pump.setup(1, 0)
        SCHED = {0: {0: [2, 3], 1: [4, 5], 2: [6], 3: [7]}, 1: {0: [2], 1: [3, 4], 2: [5, 6], 3: [7]}, 2: {0: [2, 3, 4], 1: [5], 2: [6], 3: [7]},
                 3: {0: [2], 1: [3], 2: [4], 3: [5], 4: [6], 5: [7]}, 4: {0: [2, 3], 1: [4], 2: [5], 3: [6], 4: [7]}}[opt("SCHED", 0)]
        JL = max(SCHED)
        cgid = {}
        def CGr(j):
            o = j * 4096
            a(f"ds_read_b64_tr_b16 {ar(CG,2)}, v{vCQ} offset:{32768+o}")
            a(f"ds_read_b64_tr_b16 {ar(CG+2,2)}, v{vCQ} offset:{32768+o+toff}")
            a(f"ds_read_b64_tr_b16 {ar(CG+4,2)}, v{vCV} offset:{o}")
            a(f"ds_read_b64_tr_b16 {ar(CG+6,2)}, v{vCV} offset:{o+toff}")
            a(f"ds_read_b64_tr_b16 {ar(CG+8,2)}, v{vCQ} offset:{o}")
            cgid[j] = a(f"ds_read_b64_tr_b16 {ar(CG+10,2)}, v{vCQ} offset:{o+toff}")
        def colsum(j):
            a.wait(lg=cgid[j])
            for k, c in enumerate((CK, CV, CQ)):
                mfma(ar(c,16), ar(ONESF,4), ar(CG+4*k,4), "0" if j == 0 else ar(c,16))
        def xreads(j):
            a.wait(vm=xid[j])
            return [a(f"ds_read_b128 {vr(XF+16*j+4*t,4)}, v{XA+t} offset:{(j&3)*4096}") for t in range(4)]
        xr = xreads(0)
        a.wait(vm=wid[0])
        a("s_barrier")
        stamp("p1_first")
        CGr(0); RG(0); RG(1); RG(2)
        colsum(0)
        CPY = 104; CS4 = 96
        initld = None
        for j in range(8):
            for t in range(4):
                a.wait(lg=xr[t])
                for k in range(4 if not opt("XNOD", 0) else 0):
                    r = XF + 16 * j + 4 * t + k
                    a(f"v_dot2_f32_bf16 v{S0+(k&1)}, v{r}, s{sONES}, v{S0+(k&1)}")
                    a(f"v_dot2_f32_bf16 v{Q0+(k&1)}, v{r}, v{r}, v{Q0+(k&1)}")
            if j == 7:
                a(f"s_lshr_b32 s{sT0}, s{sRB}, 1")
                a(f"s_sub_u32 s{sT0}, s{sT0}, s{sRX0}")
                a(f"s_and_b32 s{sT0}, s{sT0}, 7")
                a(f"s_cmp_eq_u32 s{sT0}, 0")
                a(f"s_cselect_b32 s{sT1}, 4096, 0")
                a(f"s_add_u32 s{sT1}, s{sT1}, {L_A}")
                a(f"v_add_u32 v{vT1}, s{sT1}, v{vL16}")
                a(f"v_add_u32 v{vT0}, s{sW1K}, v{vT1}")
                a(f"v_accvgpr_read_b32 v{CS4}, a{CK}")
                a(f"v_accvgpr_read_b32 v{CS4+1}, a{CV}")
                a(f"v_accvgpr_read_b32 v{CS4+2}, a{CQ}")
                cw = a(f"ds_write_b128 v{vT0}, {vr(CS4,4)}")
            for s in range(4 * j, 4 * j + 4):
                t = s & 3
                a.wait(lg=rg[s])
                b = WFR + (s % NWF) * 8
                x = vr(XF + 4 * s, 4)
                mfma(vr(ACCK,16), x, ar(b,4), "0" if s == 0 else vr(ACCK,16))
                if s + 3 < 32: RG(s + 3)
                if t == 1 and j < 7 and not opt("XNOC", 0): CGr(j + 1)
                if t == 2 and j < 7: xr = xreads(j + 1)
                if j == 7 and t == 1:
                    for w in range(4): cr = a(f"ds_read_b128 {vr(RR+4*w,4)}, v{vT1} offset:{1024*w}")
                    a(f"s_lshl_b32 s{sT0}, s{sT0}, 12")
                    a(f"s_and_b32 s{sT1}, s{sRB}, 1")
                    a(f"s_lshl_b32 s{sT1}, s{sT1}, 11")
                    a(f"s_add_u32 s{sT0}, s{sT0}, s{sT1}")
                    a(f"s_min_u32 s{sT2}, s{sW}, 2")
                    a(f"s_lshl_b32 s{sT2}, s{sT2}, 15")
                    a(f"s_add_u32 s{sT0}, s{sT0}, s{sT2}")
                    a(f"v_lshlrev_b32 v{vT1}, 8, v{vHH}")
                    a(f"v_sub_u32 v{vT0}, v{vTQ}, v{vT1}")
                    a(f"v_add_u32 v{vT0}, s{sT0}, v{vT0}")
                    for k in range(4): cp = a(f"ds_read_b64_tr_b16 {vr(CPY+2*k,2)}, v{vT0} offset:{512*k}")
                if j == 7 and t == 2:
                    a.wait(lg=cr)
                    for k in range(3):
                        a(f"v_add_f32 v{RR+k}, v{RR+k}, v{RR+4+k}")
                        a(f"v_add_f32 v{RR+8+k}, v{RR+8+k}, v{RR+12+k}")
                if j == 7 and t == 3:
                    split2(CKP, RR, vT0)
                    split2(CVP, RR + 1, vT1)
                mfma(vr(ACCV,16), x, ar(b+4,4), "0" if s == 0 else vr(ACCV,16))
                if t == 0:
                    if j < 7: a.wait(vm=wid[j + 1])
                    else: a.wait(lg=cw)
                    a("s_barrier")
                    if j == 1:
                        a(f"v_add_u32 v{vKW}, 1, v{vKW}")
                        a(f"v_and_b32 v{vKW}, 0x3fffffff, v{vKW}")
                        a(f"v_or_b32 v{vKW}, 0x40000000, v{vKW}")
                        a(f"v_readfirstlane_b32 s{sNON}, v{vKW}")
                if t <= 2 and j in SCHED and t < len(SCHED[j]):
                    x_issue(SCHED[j][t]); w_issue(SCHED[j][t])
                if t == 1 and j >= 4 and opt("WOP", 1) == 0: wo_issue(j - 4)
                if t == 3 and j == JL:
                    misc_loads()
                    touches(0, 8)
                if t == 3 and opt("SLOTST", 0) and j in (1, 3, 6): stamp(f"it{j}")
                if t == 2:
                    if j == 3: touches(0, 7)
                    if j == opt("POJ", 2):
                        st_poison(POI); kv_poison(POI, 0); canary_poison(POI)
                    if j == 6: kv_addr()
                    if j == opt("POJ", 2) + 1:
                        tile_poison(POI, sAPQW, 0, 1024); initld = a.vm - 1
                    if j == 7:
                        for k in range(3): a(f"v_add_f32 v{RR+k}, v{RR+k}, v{RR+8+k}")
                        a(f"s_lshl_b32 s{sT1}, s{sRB}, 11")
                        a(f"s_add_u32 s{sT3}, s{sAWQT}, s{sT2}")
                        a(f"s_add_u32 s{sT3}, s{sT3}, s{sT1}")
                        a.wait(lg=cp)
                        ws_store4(CPY, sT3); ws_store4(CPY + 4, sT3, 1024)
                if t == 3 and j < 7 and not opt("XNOC", 0): colsum(j + 1)
        stamp("p1_gemm")
        a(f"v_add_f32 v{S0}, v{S0}, v{S1}")
        a(f"v_add_f32 v{Q0}, v{Q0}, v{Q1}")
        a(f"v_mov_b32 v{S1}, v{S0}")
        a(f"v_mov_b32 v{Q1}, v{Q0}")
        for c, p in ((CF, CKP), (CFV, CVP)):
            a(f"v_mov_b32 v{c}, v{p}"); a(f"v_mov_b32 v{c+1}, v{p}")
        a(f"v_permlane32_swap_b32 v{S0}, v{S1}")
        a(f"v_permlane32_swap_b32 v{Q0}, v{Q1}")
        a(f"v_add_f32 v{S0}, v{S0}, v{S1}")
        a(f"v_add_f32 v{Q0}, v{Q0}, v{Q1}")
        split2(CQP, RR + 2, vT1)
        stats_to_frags(S0, Q0, RA)
        mfma(vr(ACCK,16), vr(MA,4), vr(CF,4), vr(ACCK,16))
        mfma(vr(RR,16), vr(RA,4), ar(ONESF,4), "0")
        mfma(vr(ACCV,16), vr(MA,4), vr(CFV,4), vr(ACCV,16))
        touches(0, 1)
    else:
        xid = xid1; XL = xa_XL; ci = xa_ci
        LA = opt("LA1", 8)
        vMX = vW
        cc = lambda: a(f"v_cmp_eq_u32 vcc, -1, v{vT3}")
        def windowa():
            for s in range(LA): XL(s)
        def windowb():
            for s in range(16, 16 + LA): XL(s)
        if opt("XE", 0) == 0: xa_start()
        cid = max(G["xcid"], G["kvlast"])
        addr_setup()
        next_layer_addresses()
        for c, p in ((CF, CKP), (CFV, CVP)):
            a(f"v_mov_b32 v{c}, v{p}"); a(f"v_mov_b32 v{c+1}, v{p}")
        a(f"v_and_b32 v{vT0}, 31, v{vL}")
        a(f"v_lshlrev_b32 v{vT0}, 3, v{vT0}")
        a(f"v_lshl_add_u32 v{PK+1}, v{vHH}, 12, v{vT0}")
        a(f"s_lshl_b32 s{sT2}, s{sW}, 13")
        a(f"s_add_u32 s{sKB}, s{sAWQT}, s{sT2}")
        a(f"s_mov_b32 s{sT1}, s{sT4}")
        pump.setup(1, 1)
        a(f"s_mov_b32 s{sT4}, s{sT1}")
        a(f"v_mov_b32 v{MA+2}, 0"); a(f"v_mov_b32 v{MA+3}, 0")
        go = a.newlabel("XGO"); redo = a.newlabel("XREDO"); go2 = a.newlabel("XGO2")
        a.wait(vm=cid)
        cc()
        force_fail("FRC")
        a(f"s_cbranch_vccz {go2}")
        st = (a.vm, a.vm_done, dict(xid), list(a.hist))
        poll(ci, cc, 0x41)
        windowa()
        a("s_waitcnt vmcnt(0)")
        a.vm, a.vm_done, _x, a.hist = st; xid.update(_x)
        a.label(go2)
        a("s_barrier")
        stamp("p1_flag")
        a(f"s_branch {go}")
        a.label(redo)
        sv = dict(xid)
        with cond():
            windowa()
            a("s_waitcnt vmcnt(0)")
        xid.update(sv)
        a.label(go)
        RG(0); RG(1); RG(2)
        a(f"v_mov_b32 v{vMX}, 0")
        a(f"s_mov_b32 s{sT3}, s{sKB}")
        SB = T1
        def issue():
            for p in range(8): a(f"buffer_load_dwordx2 {vr(SB+2*p,2)}, v{PK+1}, {sr(SWS,4)}, s{sAS2R} offen offset:{p*512} sc1")
        qid = None
        LA = opt("LA1", 8)
        ZS = opt("ZS", 9); nb = [16]
        assert ZS + LA >= 16
        for s in range(32):
            if s == 16:
                stamp("p1_a")
                if ZS < 16:
                    go3 = a.newlabel("XGO3")
                    a.wait(vm=sid)
                    stats_check(SB)
                    force_fail("FRC")
                    a(f"s_cbranch_vccz {go3}")
                    st = (a.vm, a.vm_done, dict(xid), list(a.hist))
                    poll(issue, lambda: stats_check(SB), 0x40)
                    windowb()
                    a("s_waitcnt vmcnt(0)")
                    a.vm, a.vm_done, _x, a.hist = st; xid.update(_x)
                    a.label(go3)
                else:
                    spec(issue, lambda: stats_check(SB), windowb, 0x40, a.newlabel("XR0"))
                stamp("p1_st2")
                stats_sum(SB)
                stats_to_frags(SB, SB + 1, RA)
                mfma(vr(RR,16), vr(RA,4), ar(ONESF,4), "0")
                mfma(vr(ACCK,16), vr(MA,4), vr(CF,4), vr(ACCK,16))
                mfma(vr(ACCV,16), vr(MA,4), vr(CFV,4), vr(ACCV,16))
            a.wait(vm=xid[s], lg=rg[s])
            b = WFR + (s % NWF) * 8
            x = vr(XFR(1, s), 4)
            mfma(vr(ACCK,16), x, ar(b,4), "0" if s == 0 else vr(ACCK,16))
            if s == ZS:
                issue(); sid = a.vm - 1
            if ZS < s < 16:
                per = -(-LA // (15 - ZS))
                for _ in range(per):
                    if nb[0] < 16 + LA: XL(nb[0]); nb[0] += 1
            if (s & 15) + LA < 16: XL(s + LA)
            if s >= 24:
                j = s - 24
                if j == 4: a(f"s_add_u32 s{sT3}, s{sT3}, 4096")
                if j & 3 == 0: a(f"s_add_u32 m0, s{sT2}, {j*1024}")
                qid = a(f"buffer_load_dwordx4 v{vL16}, {sr(SWS,4)}, s{sT3} offen offset:{(j&3)*1024} sc1 lds")
            mfma(vr(ACCV,16), x, ar(b+4,4), "0" if s == 0 else vr(ACCV,16))
            if s & 1: a(f"v_max3_u32 v{vMX}, v{vMX}, v{XFR(1,s-1)}, v{XFR(1,s)}")
            if s + 3 < 32: RG(s + 3)
            if s == 30: kv_addr()
        verify(vMX, redo)
        stamp("p1_gemm")
    for q in range(8): pk("fma", ACCK+2*q, vr(ACCK+2*q,2), vr(RR+2*q,2), sr(sEPS6,2), hi=[1,1,0])
    for q in range(8): pk("mul", T1+2*q, vr(ACCK+2*q,2), sr(sL2E,2), hi=[1,0])
    for i in range(16):
        a(f"v_exp_f32_e64 v{T1+i}, v{T1+i} clamp")
        a(f"v_max_f32 v{ACCK+i}, s{sEPS6}, v{ACCK+i}")
    for q in range(8): pk("add", ACCK+2*q, vr(ACCK+2*q,2), vr(T1+2*q,2))
    for q in range(8): a(f"v_cvt_pk_bf16_f32 v{PK+q}, v{ACCK+2*q}, v{ACCK+2*q+1}")
    ZA = T1
    for q in range(4): pk("mul", ACCV+2*q, vr(ACCV+2*q,2), vr(RR+2*q,2))
    for q in range(4, 8): pk("mul", ACCV+2*q, vr(ACCV+2*q,2), vr(RR+2*q,2))
    mfma(vr(ZA,16), vr(PK,4), ar(ONESF,4), "0")
    for q in range(4): a(f"v_cvt_pk_bf16_f32 v{VV+q}, v{ACCV+2*q}, v{ACCV+2*q+1}")
    mfma(vr(ZA,16), vr(PK+4,4), ar(ONESF,4), vr(ZA,16))
    for q in range(4, 8): a(f"v_cvt_pk_bf16_f32 v{VV+q}, v{ACCV+2*q}, v{ACCV+2*q+1}")
    KVA = RR
    a(f"v_and_b32 v{vT0}, 16, v{vL}")
    a(f"v_cmp_ne_u32 vcc, 0, v{vT0}")
    mfma(vr(KVA,16), vr(PK,4), vr(VV,4), "0")
    mfma(vr(KVA,16), vr(PK+4,4), vr(VV+4,4), vr(KVA,16))
    a("s_barrier")
    for j in range(8): a(f"v_cndmask_b32 v{ACCK+8+j}, v{ZA+j}, v{ZA+8+j}, vcc")
    set_exec(0x0001000100010001)
    a(f"ds_write_b128 v{vKW2}, {vr(ACCK+8,4)} offset:{SCR+512}")
    a(f"ds_write_b128 v{vKW2}, {vr(ACCK+12,4)} offset:{SCR+528}")
    set_exec(FULL)
    for j in range(4): a(f"v_cndmask_b32 v{ACCK+j}, v{KVA+j}, v{KVA+8+j}, vcc")
    a(f"ds_write_b128 v{vKW2}, {vr(ACCK,4)} offset:{SCR}")
    for j in range(4, 8): a(f"v_cndmask_b32 v{ACCK+j}, v{KVA+j}, v{KVA+8+j}, vcc")
    a(f"ds_write_b128 v{vKW2}, {vr(ACCK+4,4)} offset:{SCR+16}")
    if L == 0: a.wait(vm=initld)
    NQ = 8; QLA = 6
    rq = {}
    def RQ(s):
        b = WFR + (s % NQ) * 4
        if L == 0:
            a(f"ds_read_b64_tr_b16 {ar(b,2)}, v{vTQ} offset:{s*1024}")
            rq[s] = a(f"ds_read_b64_tr_b16 {ar(b+2,2)}, v{vTQ} offset:{s*1024+toff}")
        else:
            ks = KS((s + 16) & 31)
            rq[s] = a(f"ds_read_b128 {ar(b,4)}, v{vTQ2 if ks >= 16 else vTQ} offset:{(ks&15)*1024}")
    a(f"v_mov_b32 v{CFQ}, v{CQP}"); a(f"v_mov_b32 v{CFQ+1}, v{CQP}")
    if L == 1: a.wait(vm=qid)
    a.wait_lg_all()
    a("s_barrier")
    for w in range(4): kr = a(f"ds_read_b128 {vr(RR+4*w,4)}, v{vKR2} offset:{16384*w}")
    for s in range(QLA): RQ(s)
    ACCQ = ACCK
    mfma(vr(ACCQ,16), vr(CFQ,4), vr(MA,4), "0")
    a.wait(lg=kr)
    for j in range(4): a(f"v_add_f32 v{RR+j}, v{RR+j}, v{RR+4+j}")
    for j in range(4): a(f"v_add_f32 v{RR+8+j}, v{RR+8+j}, v{RR+12+j}")
    for j in range(4): a(f"v_add_f32 v{RR+j}, v{RR+j}, v{RR+8+j}")
    set_exec((1 << 40) - 1)
    a(f"v_writelane_b32 v{RR}, s{sNON}, 34")
    ws_store4(RR, sAKVP)
    set_exec(FULL)
    stamp("p1_kvpub")
    touches(L, 2)
    nfill = optL("F0", L, 0, 0)
    for s in range(32):
        a.wait(lg=rq[s])
        b = WFR + (s % NQ) * 4
        mfma(vr(ACCQ,16), ar(b,4), vr(XF+4*s,4), vr(ACCQ,16))
        if s + QLA < 32: RQ(s + QLA)
        if s % 3 == 1 and pump.i < pump.c + nfill: pump.fill(pump.i + 1)
        if L == 0 and opt("WOP", 1) == 1 and s % 8 == 0: wo_issue(s // 8)
        if optL("POIQ", L, 1, 1):
            if s == 2: set_poi(VV)
            if s == 3: tile_poison(VV, sAHTW, 0, 2048)
            if s == 6: tile_poison(VV, sAUW, 0, 1024)
        if s == opt("A1S", 31):
            a1_early(L); vm_a1 = a.vm
        if s == opt("A1M", 99):
            a1_mid(a.vm - vm_a1); vm_a1 = a.vm
    for h in range(2):
        for q in range(4*h, 4*h+4): pk("fma", ACCQ+2*q, vr(ACCQ+2*q,2), vr(vRS,2), sr(sEPS6,2), hi=[1,0,0])
        for q in range(4*h, 4*h+4): pk("mul", T1+2*q, vr(ACCQ+2*q,2), sr(sL2E,2), hi=[1,0])
        for i in range(8*h, 8*h+8):
            a(f"v_exp_f32_e64 v{T1+i}, v{T1+i} clamp")
            a(f"v_max_f32 v{ACCQ+i}, s{sEPS6}, v{ACCQ+i}")
        for q in range(4*h, 4*h+4): pk("add", ACCQ+2*q, vr(ACCQ+2*q,2), vr(T1+2*q,2))
        for q in range(4*h, 4*h+4): a(f"v_cvt_pk_bf16_f32 v{PK+q}, v{ACCQ+2*q}, v{ACCQ+2*q+1}")
        ws_store4(PK + 4 * h, sAPQW, 1024 * h)
        if opt("A1S", 31) == 32 + h:
            a1_early(L); vm_a1 = a.vm
    if L == 0:
        for k in range(4): a(f"v_mov_b32 v{T1+k}, s{sNON}")
        a(f"s_sub_u32 s{sT0}, s{sAPQW}, {PQ[0]:#x}")
        a(f"s_lshr_b32 s{sT0}, s{sT0}, 4")
        a(f"s_add_u32 s{sT0}, s{sT0}, {TAGQ:#x}")
        set_exec(0xff)
        ws_store4(T1, sT0)
        set_exec(FULL)
    stamp("p1_q")
    a1(L, a.vm - vm_a1)
    pump.fill(pump.c + optL("F1", L, 6, 5))
    touches(L, 3)

def row_stats_publish(soff, SM):
    a(f"v_dot2_f32_bf16 v{SM}, v{XR}, s{sONES}, 0")
    a(f"v_dot2_f32_bf16 v{SM+1}, v{XR}, v{XR}, 0")
    a(f"v_dot2_f32_bf16 v{SM+2}, v{XR+1}, s{sONES}, 0")
    a(f"v_dot2_f32_bf16 v{SM+3}, v{XR+1}, v{XR+1}, 0")
    for j in range(2, 8):
        o = 2 * (j & 1)
        a(f"v_dot2_f32_bf16 v{SM+o}, v{XR+j}, s{sONES}, v{SM+o}")
        a(f"v_dot2_f32_bf16 v{SM+o+1}, v{XR+j}, v{XR+j}, v{SM+o+1}")
    a(f"v_lshlrev_b32 v{vT0}, 3, v{vL}")
    pk("add", SM, vr(SM,2), vr(SM+2,2))
    a(f"v_mov_b32 v{SM+2}, v{SM}")
    a(f"v_mov_b32 v{SM+3}, v{SM+1}")
    a(f"v_permlane32_swap_b32 v{SM}, v{SM+2}")
    a(f"v_permlane32_swap_b32 v{SM+1}, v{SM+3}")
    pk("add", SM, vr(SM,2), vr(SM+2,2))
    a(f"s_mov_b32 exec_hi, 0")
    a(f"v_and_b32 v{SM+1}, 0x7fffffff, v{SM+1}")
    a(f"buffer_store_dwordx2 {vr(SM,2)}, v{vT0}, {sr(SWS,4)}, s{soff} offen sc1")
    set_exec(FULL)

def unpack_xr(XU):
    for j in range(8):
        a(f"v_lshlrev_b32 v{XU+2*j}, 16, v{XR+j}")
        a(f"v_and_b32 v{XU+2*j+1}, 0xffff0000, v{XR+j}")

def p2(L):
    a.c(f"======== P2 layer {L}")
    KF, QF = 128, 192
    ACC = 32; CR = 64; OF = 96; WF = 104; XU = 64
    vK, vKC, vMX = MA, MA + 1, MA + 2
    tr_base(vTA, vTB, None, sKH, L_B)
    a(f"s_lshl_b32 s{sT2}, s{sKH}, 15")
    a(f"v_add_u32 v{vTA}, s{sT2}, v{vTA}")
    a(f"v_add_u32 v{vTB}, s{sT2}, v{vTB}")
    a(f"v_and_b32 v{vT0}, 31, v{vL}")
    a(f"v_mul_u32_u24 v{vKC}, 384, v{vT0}")
    a(f"v_min_u32 v{vT0}, 16, v{vT0}")
    a(f"v_lshlrev_b32 v{vT0}, 4, v{vT0}")
    a(f"v_mul_u32_u24 v{vT1}, 384, v{vHH}")
    a(f"v_add_u32 v{vK}, v{vT0}, v{vT1}")
    a(f"v_and_b32 v{vT2}, 7, v{vL}")
    a(f"v_lshlrev_b32 v{vT2}, {11 if L else 7}, v{vT2}")
    if L == 0:
        a(f"s_sub_u32 s{sT0}, s{sAPQR}, {PQ[0]:#x}")
        a(f"s_lshr_b32 s{sT0}, s{sT0}, 4")
        a(f"s_add_u32 s{sT0}, s{sT0}, {TAGQ:#x}")
    pump.run(min(R1 + 5, optL("B1", L, 18, 21)), refill=bool(optL("B1R", L, 1, 1)))
    if optL("POIQ", L, 1, 1) == 0:
        set_poi(CR)
        tile_poison(CR, sAHTW, 0, 2048)
        tile_poison(CR, sAUW, 0, 1024)
    stamp("beta")
    def ldq():
        a(f"s_mov_b32 s{sT4}, s{sAPQR}")
        for j in range(16):
            a(f"buffer_load_dwordx4 {vr(QF+4*j,4)}, v{vL16}, {sr(SWS,4)}, s{sT4} offen offset:{(j&3)*1024} sc1")
            if j & 3 == 3 and j < 15: a(f"s_add_u32 s{sT4}, s{sT4}, 4096")
    if L == 1:
        ci = lambda: a(f"buffer_load_dword v{vT3}, v{vT2}, {sr(SWS,4)}, s{sAPQR} offen offset:2044 sc1")
        cc = lambda: a(f"v_cmp_eq_u32 vcc, -1, v{vT3}")
    else:
        ci = lambda: a(f"buffer_load_dword v{vT3}, v{vT2}, {sr(SWS,4)}, s{sT0} offen sc1")
        cc = lambda: a(f"v_cmp_ne_u32 vcc, s{sNON}, v{vT3}")
    spec(ci, cc, ldq, 0x36 + L, a.newlabel("PQR"), on=opt("SPEC", 15) & 4)
    stamp("p2_pqc")
    if L == 0:
        a.wait(vm=G['wo'])
        for q in range(2):
            a(f"v_permlane32_swap_b32 v{XR+4*q}, v{XR+4*q+2}")
            a(f"v_permlane32_swap_b32 v{XR+4*q+1}, v{XR+4*q+3}")
        a(f"v_lshlrev_b32 v{vB2}, 16, v{vB2}")
    pump.run(min(R1 + 5, pump.i), refill=False)
    pump.run(min(R1 + 5, optL("B2", L, 0, 0)), refill=False)
    pump.fill(pump.c + optL("FK", L, 0, 0))
    a(f"s_xor_b32 s{sT0}, s{sW}, 1")
    a(f"s_lshl_b32 s{sT0}, s{sT0}, 12")
    a(f"v_add_u32 v{vRS}, s{sT0}, v{vL16}")
    a.wait_lg_all()
    a("s_barrier")
    rw = {}
    def RW(j):
        b = WF + (j % 3) * 8
        a(f"ds_read_b64_tr_b16 {vr(b,2)}, v{vTA} offset:{j*2048}")
        a(f"ds_read_b64_tr_b16 {vr(b+2,2)}, v{vTA} offset:{j*2048+1024}")
        a(f"ds_read_b64_tr_b16 {vr(b+4,2)}, v{vTB} offset:{j*2048}")
        rw[j] = a(f"ds_read_b64_tr_b16 {vr(b+6,2)}, v{vTB} offset:{j*2048+1024}")
    lid = {}
    def LD(j):
        if j == 0: a(f"s_mov_b32 s{sSO}, s{sAKVF}")
        elif j & 3 == 0: a(f"s_add_u32 s{sSO}, s{sSO}, {4*768}")
        lid[j] = a(f"buffer_load_dwordx4 {vr(KF+4*j,4)}, v{vK}, {sr(SWS,4)}, s{sSO} offen offset:{(j&3)*768} sc1")
    PLA = optL("PLA", L, 10, 10)
    redo = a.newlabel("P2REDO"); redo2 = a.newlabel("P2REDO2"); over = a.newlabel("P2OVER")
    a(f"s_branch {over}")
    a.label(redo)
    with cond():
        ldq()
        a("s_waitcnt vmcnt(0)")
        a(f"s_branch {redo2}")
    a.label(over)
    def window():
        for j in range(PLA): LD(j)
    spec(lambda: a(f"buffer_load_dword v{vT3}, v{vKC}, {sr(SWS,4)}, s{sAKVF} offen offset:272 sc1"),
         lambda: a(f"v_cmp_ne_u32 vcc, s{sNON}, v{vT3}"), window, 0x38 + L, redo2, on=opt("SPEC", 15) & 2)
    stamp("p2_kvc")
    if L == 0:
        sk = a.newlabel("NONW")
        a(f"s_cmp_lg_u32 s{sWI}, 0")
        a(f"s_cselect_b32 s{sT0}, 1, s{sB}")
        a(f"s_cmp_lg_u32 s{sT0}, 0")
        a(f"s_cbranch_scc1 {sk}")
        with cond():
            a(f"v_mov_b32 v{vT0}, s{sNON}")
            set_exec(1)
            a(f"buffer_store_dword v{vT0}, off, {sr(SWS,4)}, 0 offset:{NONCE} sc1")
            set_exec(FULL)
        a.label(sk)
    RW(0); RW(1)
    a(f"v_mov_b32 v{vMX}, 0")
    def M1(j):
        a.wait(vm=lid[j])
        mfma(vr(CR+(j&1)*16,16), vr(KF+4*j,4), vr(QF+4*j,4), "0")
        a(f"v_max3_u32 v{vMX}, v{vMX}, v{KF+4*j}, v{QF+4*j}")
        if j + PLA < 16: LD(j + PLA)
        if j + PLA == 16: touches(L, 9)
    def Va(j):
        c = CR + (j & 1) * 16
        a(f"v_add_f32 v{c+8}, s{sEPS6}, v{c+8}")
        a(f"v_rcp_f32 v{c+8}, v{c+8}")
    def Vb(j):
        c = CR + (j & 1) * 16; o = OF + (j & 1) * 4
        for i in range(4): a(f"v_mul_f32 v{c+i}, v{c+i}, v{c+8}")
        for i in range(2): a(f"v_cvt_pk_bf16_f32 v{o+i}, v{c+2*i}, v{c+2*i+1}")
    def Vc(j):
        c = CR + (j & 1) * 16; o = OF + (j & 1) * 4
        for i in range(4, 8): a(f"v_mul_f32 v{c+i}, v{c+i}, v{c+8}")
        for i in range(2, 4): a(f"v_cvt_pk_bf16_f32 v{o+i}, v{c+2*i}, v{c+2*i+1}")
    M1(0); M1(1)
    Va(0); Vb(0); Vc(0); M1(2)
    nfp = optL("FP2", L, 6, 6)
    kb_saved = False
    for j in range(16):
        o = OF + (j & 1) * 4; b = WF + (j % 3) * 8
        if j + 1 < 16: Va(j + 1)
        a.wait(lg=rw[j])
        mfma(vr(ACC+16,16), vr(b+4,4), vr(o,4), "0" if j == 0 else vr(ACC+16,16))
        if j + 1 < 16: Vb(j + 1)
        mfma(vr(ACC,16), vr(b,4), vr(o,4), "0" if j == 0 else vr(ACC,16))
        if j + 1 < 16: Vc(j + 1)
        if j + 3 < 16: M1(j + 3)
        if j + 2 < 16: RW(j + 2)
    verify(vMX, redo)
    stamp("p2_main")
    lin(sT0, [(sFT, 128), (sRH, 64), (sKH, 32)])
    a(f"v_lshlrev_b32 v{vT0}, 3, v{vHH}")
    for q in range(2): a(f"buffer_load_dwordx2 {vr(152+2*q,2)}, v{vT0}, {sr(SB1,4)}, s{sT0} offen offset:{16*q}")
    for q, r in enumerate((ACC + 24, ACC + 28, ACC + 8, ACC + 12)): a(f"ds_write_b128 v{vRS}, {vr(r,4)} offset:{(q^2)*1024}")
    unpack_xr(XU)
    a(f"v_xor_b32 v{vT1}, 4096, v{vRS}")
    for q in range(4): pk("add", ACC+16+2*q, vr(ACC+16+2*q,2), vr(XU+8+2*q,2))
    for q in range(4): pk("add", ACC+2*q, vr(ACC+2*q,2), vr(XU+2*q,2))
    a.wait_lg_all()
    a("s_barrier")
    own = (ACC, ACC + 4, ACC + 16, ACC + 20)
    ids = [a(f"ds_read_b128 {vr(XU+4*q,4)}, v{vT1} offset:{q*1024}") for q in range(4)]
    for q in range(4):
        a.wait(lg=ids[q])
        pk("add", own[q], vr(own[q],2), vr(XU+4*q,2))
        pk("add", own[q]+2, vr(own[q]+2,2), vr(XU+4*q+2,2))
        a(f"v_cvt_pk_bf16_f32 v{XR+2*q}, v{own[q]}, v{own[q]+1}")
        a(f"v_cvt_pk_bf16_f32 v{XR+2*q+1}, v{own[q]+2}, v{own[q]+3}")
    row_stats_publish(sASTW, OF)
    stamp("p2_stpub")
    pump.run(pump.i, refill=False)
    pump.fill(pump.c + optL("GF", L, 6, 4))
    unpack_xr(XU)
    IDF = 104
    a(f"v_and_b32 v{vT0}, 31, v{vL}")
    a(f"v_lshlrev_b32 v{vT1}, 2, v{vHH}")
    a(f"v_sub_u32 v{vT0}, v{vT0}, v{vT1}")
    a(f"v_mov_b32 v{vT3}, 0x3f80")
    for f in range(2):
        for c in range(4):
            base = 16 * f + ((2 * c) & 3) + 8 * (c >> 1)
            a(f"v_subrev_u32 v{vT1}, {base}, v{vT0}")
            a(f"v_cmp_gt_u32 vcc, 2, v{vT1}")
            a(f"v_lshlrev_b32 v{vT1}, 4, v{vT1}")
            a(f"v_lshlrev_b32 v{vT2}, v{vT1}, v{vT3}")
            a(f"v_cndmask_b32 v{IDF+4*f+c}, 0, v{vT2}, vcc")
    SB = 128
    ht_voff(vRS)
    a(f"v_and_b32 v{vT0}, 31, v{vL}")
    a(f"v_lshlrev_b32 v{vT0}, 3, v{vT0}")
    a(f"v_lshl_add_u32 v{vT2}, v{vHH}, 12, v{vT0}")
    a(f"v_mov_b32 v{SB+18}, {fl(1.0+1e-5)}")
    def issue():
        for p in range(8): a(f"buffer_load_dwordx2 {vr(SB+2*p,2)}, v{vT2}, {sr(SWS,4)}, s{sASTR} offen offset:{p*512} sc1")
    if OPT.get(f"SL{0x34+L:x}", 0): a(f"s_sleep {OPT.get(f'SL{0x34+L:x}', 0)}")
    poll(issue, lambda: stats_check(SB), 0x34 + L)
    stamp("p2_stats")
    if optL("SF", L, 3, 3):
        pump.run(pump.i, refill=False)
        pump.fill(pump.c + optL("SF", L, 3, 3))
    stats_sum(SB)
    a(f"v_mul_f32 v{SB}, {fl(-1/512)}, v{SB}")
    a(f"v_mul_f32 v{SB+1}, {fl(1/512)}, v{SB+1}")
    a(f"v_fma_f32 v{SB+1}, -v{SB}, v{SB}, v{SB+1}")
    a(f"v_max_f32 v{SB+1}, 0, v{SB+1}")
    a(f"v_fmaak_f32 v{SB+1}, v{SB+1}, v{SB+18}, {fl(1e-10)}")
    a(f"v_rsq_f32 v{SB+2}, v{SB+1}")
    a(f"v_mul_f32 v{SB}, v{SB}, v{SB+2}")
    HP_ = 112
    for f in range(2):
        for j in range(4*f, 4*f+4):
            pk("fma", XU+2*j, vr(XU+2*j,2), vr(SB+2,2), vr(SB,2), hi=[1,0,0])
    for f in range(2):
        for j in range(4*f, 4*f+4):
            a(f"v_cvt_pk_bf16_f32 v{HP_+j}, v{XU+2*j}, v{XU+2*j+1}")
        mfma(vr(ACC,16), vr(HP_+4*f,4), vr(IDF+4*f,4), "0" if f == 0 else vr(ACC,16))
    for f in range(2):
        for j in range(4): a(f"v_cvt_pk_bf16_f32 v{ACC+16+4*f+j}, v{ACC+8*f+2*j}, v{ACC+8*f+2*j+1}")
        a(f"buffer_store_dwordx4 {vr(ACC+16+4*f,4)}, v{vRS}, {sr(SWS,4)}, s{sAHTW} offen offset:{2048*f} sc1")
    touches(L, 5)
    stamp(f"p2_{L}")

RING = 96; AUX = 144; NRH = 12
vR1, vR2, vR3, vRA = vT0, vT1, vT2, vRS
LKH = opt("LKH", 10)
class Half:
    def __init__(self, kind, hf, g0):
        self.kind, self.hf, self.g0 = kind, hf, g0
        self.nks, self.srot, self.sbase = (32, sROT1, sAHTR) if kind == 1 else (28, sROT2, sAUR)
        self.vA, self.vC = (vTA, MA + 1) if kind == 1 else (vTB, MA + 2)
        self.vMX = MA
        self.ids = {}; self.cid = None
    def rb(self, s): return RING + ((self.g0 + s) % NRH) * 4
    def LD(self, s):
        if s == 0: a(f"s_lshl_b32 s{sSO}, s{self.srot}, 11")
        elif s & 1 == 0:
            a(f"s_add_u32 s{sSO}, s{sSO}, 4096")
            a(f"s_cmp_eq_u32 s{sSO}, {self.nks*2048}")
            a(f"s_cselect_b32 s{sSO}, 0, s{sSO}")
        self.ids[s] = a(f"buffer_load_dwordx4 {vr(self.rb(s),4)}, v{self.vA}, {sr(SWS,4)}, s{sSO} offen offset:{(s&1)*2048+self.hf*1024} sc1")
    def window(self):
        for s in range(LKH): self.LD(s)
    def can_issue(self):
        off = 2048 + 1024 + 512 + 252 if self.kind == 1 else self.hf * 1024 + 1020
        self.cid = a(f"buffer_load_dword v{vT3}, v{self.vC}, {sr(SWS,4)}, s{self.sbase} offen offset:{off} sc1")
    def can_check(self): a(f"v_cmp_eq_u32 vcc, -1, v{vT3}")
    def MF(self, s, acc):
        A0 = 32 + 32 * self.hf
        wf = wreg(self.kind, s, 4 * acc, 4); af = vr(self.rb(s), 4)
        c = "0" if s == 0 else vr(A0 + 16 * acc, 16)
        A_, B_ = (wf, af) if self.kind == 1 else (af, wf)
        mfma(vr(A0+16*acc,16), A_, B_, c)
    def steps(self, redo, nxt=None, hook=None, force=True):
        n = self.nks
        a(f"v_mov_b32 v{self.vMX}, 0")
        for s in range(n):
            if hook: hook(s, 0)
            a.wait(vm=self.ids[s])
            self.MF(s, 1)
            if s + LKH < n: self.LD(s + LKH)
            elif nxt is not None:
                if s + LKH == n and nxt.kind == 2: nxt.can_issue()
                nxt.LD(s + LKH - n)
            if s & 1: a(f"v_max3_u32 v{self.vMX}, v{self.vMX}, v{self.rb(s-1)}, v{self.rb(s)}")
            self.MF(s, 0)
            if hook: hook(s, 1)
        verify(self.vMX, redo, force=force)
    def run(self, nxt=None, hook=None):
        lab = a.newlabel("PLAIN"); back = a.newlabel("BACK")
        OOL.append((self, nxt, lab, back))
        self.steps(lab, nxt, hook)
        a.label(back)
    def scr(self, k):
        if self.hf == 0: return 0, k * 2048
        if k < 2: return 1, SCR + k * 2048
        return 0, 6144
    def writes(self):
        A0 = 32 + 32 * self.hf
        for k in (1, 2, 0):
            src = (A0 + 8, A0 + 16, A0 + 24)[k]
            area, o = self.scr(k)
            r = (vR1, vR2, vR3)[k]
            if area == 1:
                a(f"v_lshl_add_u32 v{AUX+10+k}, v{r}, 1, v{AUX+9}"); r = AUX + 10 + k
            for q in range(2): a(f"ds_write_b128 v{r}, {vr(src+4*q,4)} offset:{o+q*1024}")
    def reads(self):
        D = 64 - 32 * self.hf
        if self.hf == 1: a(f"v_lshl_add_u32 v{AUX+10}, v{vRA}, 1, v{AUX+9}")
        a.wait_lg_all()
        a("s_barrier")
        ids = {}
        for q in range(2):
            for k in range(3):
                area, o = self.scr(k)
                ids[(q, k)] = a(f"ds_read_b128 {vr(D+8*k+4*q,4)}, v{AUX+10 if area else vRA} offset:{o+q*1024}")
        A0 = 32 + 32 * self.hf
        for q in range(2):
            a.wait(lg=ids[(q, 1)])
            for j in (0, 2): pk("add", D+4*q+j, vr(D+4*q+j,2), vr(D+8+4*q+j,2))
            a.wait(lg=ids[(q, 2)])
            for j in (0, 2): pk("add", A0+4*q+j, vr(A0+4*q+j,2), vr(D+16+4*q+j,2))
            for j in (0, 2): pk("add", A0+4*q+j, vr(A0+4*q+j,2), vr(D+4*q+j,2))
    def woven(self, D):
        A0 = 32 + 32 * self.hf
        ops = []
        ids = {}
        wl = a.lg - 1
        def bar():
            if self.hf == 1: a(f"v_lshl_add_u32 v{AUX+10}, v{vRA}, 1, v{AUX+9}")
            a.wait(lg=wl); a("s_barrier")
        ops.append(bar)
        def rd(q, k):
            area, o = self.scr(k)
            ids[(q, k)] = a(f"ds_read_b128 {vr(D+8*k+4*q,4)}, v{AUX+10 if area else vRA} offset:{o+q*1024}")
        for q in range(2):
            for k in range(3): ops.append(lambda q=q, k=k: rd(q, k))
        ops.append(None); ops.append(None); ops.append(None)
        for q in range(2):
            for k in range(3):
                for j in range(4):
                    def ad(q=q, k=k, j=j):
                        a.wait(lg=ids[(q, k)])
                        a(f"v_add_f32 v{A0+4*q+j}, v{A0+4*q+j}, v{D+8*k+4*q+j}")
                    ops.append(ad)
        return ops
    def late_check(self, code):
        go = a.newlabel("GO")
        a.wait(vm=self.cid)
        self.can_check()
        force_fail("FRC")
        a(f"s_cbranch_vccz {go}")
        st = (a.vm, a.vm_done, a.lg, a.lg_done, dict(self.ids), self.cid, list(a.hist))
        poll(self.can_issue, self.can_check, code)
        self.window()
        a("s_waitcnt vmcnt(0)")
        a.vm, a.vm_done, a.lg, a.lg_done, self.ids, self.cid, a.hist = st
        a.label(go)
OOL = []
def mix_setup():
    a(f"v_add_u32 v{vTA}, s{sAHTR}, v{vL16}")
    a(f"v_min_u32 v{vT0}, 31, v{vL}")
    a(f"v_lshrrev_b32 v{vT1}, 1, v{vT0}")
    a(f"v_and_b32 v{vT0}, 1, v{vT0}")
    a(f"v_lshlrev_b32 v{vT0}, 8, v{vT0}")
    a(f"v_lshl_add_u32 v{MA+1}, v{vT1}, 12, v{vT0}")
    a(f"s_lshl_b32 s{sT0}, s{sKH}, 8")
    a(f"v_xor_b32 v{vTB}, s{sT0}, v{vL16}")
    a(f"v_add_u32 v{vTB}, s{sAUR}, v{vTB}")
    a(f"v_min_u32 v{MA+2}, 27, v{vL}")
    a(f"v_lshlrev_b32 v{MA+2}, 11, v{MA+2}")
    for acc, r in ((1, vR1), (2, vR2), (3, vR3)):
        a(f"s_xor_b32 s{sT0}, s{sW}, {acc}")
        a(f"s_lshl_b32 s{sT0}, s{sT0}, 13")
        a(f"v_add_u32 v{r}, s{sT0}, v{vL16}")
    a(f"s_lshl_b32 s{sT0}, s{sW}, 13")
    a(f"v_add_u32 v{vRA}, s{sT0}, v{vL16}")
    a(f"v_sub_u32 v{AUX+9}, {L_A}, v{vL16}")

def p34(L):
    a.c(f"======== P3 layer {L}")
    B1R = AUX
    pump.run(pump.i, refill=True)
    pump.run(32)
    a.wait_lg_all()
    if L == 1: a("s_barrier")
    pump.setup(2, L, extra=optL("XB", L, 0, 8))
    pump.run(optL("V2", L, 5, 0), refill=False)
    pump.fill(pump.c + optL("V2F", L, 0, 8))
    assert pump.c <= R2
    if L == 0: a("s_barrier")
    for j in range(4):
        a(f"v_lshlrev_b32 v{B1R+2*j}, 16, v{152+j}")
        a(f"v_and_b32 v{B1R+2*j+1}, 0xffff0000, v{152+j}")
    mix_setup()
    K1 = -2.0 * 0.7978845608028654 * LOG2E
    a(f"v_mov_b32 v{AUX+8}, {fl(K1)}")
    SPX = optL("SPX", L, 1, 1)
    h3a = Half(1, 0, 0); h3b = Half(1, 1, 32); h4a = Half(2, 0, 64); h4b = Half(2, 1, 92)
    stamp("p3_delta")
    idle = a.newlabel("P3IDLE"); join = a.newlabel("P3JOIN")
    pst = (pump.i, pump.c, dict(pump.vid), dict(pump.lid))
    a(f"s_cmp_eq_u32 s{sP3}, 7")
    a(f"s_cbranch_scc1 {idle}")
    IDN = optL("IDT", L, 18, 0)
    ntail = optL("V2T", L, 0, 0); nepi = optL("V2E", L, 6, 3)
    def gelu_store(hf):
        A0 = 32 + 32 * hf; T = A0 + 16
        for q in range(4): pk("mul", T+2*q, vr(A0+2*q,2), vr(A0+2*q,2))
        for q in range(4): pk("fma", T+2*q, vr(T+2*q,2), sr(sT2,2), vr(AUX+8,2), hi=[1,0,0])
        for q in range(4): pk("mul", T+2*q, vr(T+2*q,2), vr(A0+2*q,2))
        for i in range(8): a(f"v_exp_f32 v{T+i}, v{T+i}")
        for q in range(4): pk("add", T+2*q, vr(T+2*q,2), "1.0", hi=[1,0])
        for i in range(8): a(f"v_rcp_f32 v{T+i}, v{T+i}")
        for q in range(4): pk("mul", A0+2*q, vr(A0+2*q,2), vr(T+2*q,2))
        for q in range(4): a(f"v_cvt_pk_bf16_f32 v{T+8+q}, v{A0+2*q}, v{A0+2*q+1}")
        ws_store4(T + 8, sAUW, 1024 * hf)
    with cond():
        a(f"s_mov_b32 s{sT2}, s{sGK}")
        spec(h3a.can_issue, h3a.can_check, h3a.window, 0x50 + L, a.newlabel("SREDO"))
        stamp("canary")
        h3a.run(nxt=h3b)
        stamp("gemm_a")
        h3a.writes()
        pump.fill(pump.i + nepi)
        for q in range(4): pk("add", 32+2*q, vr(32+2*q,2), vr(B1R+2*q,2))
        h3a.reads()
        gelu_store(0)
        stamp("epi_a")
        i0 = pump.i
        def hk(s, k):
            if k == 1 and s + LKH >= 32 and (s & 1) and pump.i < i0 + ntail: pump.fill(pump.i + 1)
        h3b.run(nxt=h4a if SPX else None, hook=hk)
        assert ntail <= 5
        stamp("gemm_b")
        h3b.writes()
        n2 = pump.i
        nmid = pump.i
        if optL("EB", L, 1, 0): pump.run(pump.i if optL("EB", L, 1, 0) == 2 else min(R2, pump.i), refill=False, tmp=(AUX + 14, AUX + 15))
        cact = pump.c
        pump.fill(pump.i + optL("V2E2", L, 4, 3))
        nact = pump.i; n2 = nact - n2
        for q in range(4): pk("add", 64+2*q, vr(64+2*q,2), vr(B1R+2*q,2))
        h3b.reads()
        gelu_store(1)
        if SPX: h4a.late_check(0x60 + L)
        a(f"s_branch {join}")
    a.label(idle)
    pump.i, pump.c, pump.vid, pump.lid = pst
    if IDN:
        a(f"v_lshrrev_b32 v{RING}, 2, v{vL}")
        a(f"v_lshlrev_b32 v{RING}, 12, v{RING}")
        a(f"v_and_b32 v{RING+1}, 3, v{vL}")
        a(f"v_lshl_add_u32 v{RING}, v{RING+1}, 7, v{RING}")
        a(f"s_bfe_u32 s{sT0}, s{sWI}, 0x20002")
        a(f"s_mul_i32 s{sT0}, s{sT0}, {28*65536}")
        a(f"s_and_b32 s{sT1}, s{sB}, 7")
        a(f"s_lshl_b32 s{sT1}, s{sT1}, 9")
        a(f"s_add_u32 s{sT0}, s{sT0}, s{sT1}")
        a(f"v_add_u32 v{RING}, s{sT0}, v{RING}")
        a(f"s_add_u32 s{sT1}, s{sW}, s{sROT2}")
        a(f"s_add_u32 s{sT1}, s{sT1}, {28 - IDN}")
        for k in range((IDN + 3) // 4):
            a(f"s_sub_u32 s{sT2}, s{sT1}, 28")
            a(f"s_cselect_b32 s{sT1}, s{sT1}, s{sT2}")
            a(f"s_lshl_b32 s{sT2}, s{sT1}, 16")
            a(f"buffer_load_dword v31, v{RING}, {sr(SW2,4)}, s{sT2} offen")
            a(f"s_add_u32 s{sT1}, s{sT1}, 4")
    nlate = n2 if SPX else 0
    pump.fill(nmid)
    if SPX:
        poll(h4a.can_issue, h4a.can_check, 0x5e)
        h4a.window()
    pump.run(cact, refill=False, tmp=(AUX + 14, AUX + 15))
    pump.fill(nact)
    a.label(join)
    a.hist = []
    stamp(f"p3_{L}")
    a.c(f"======== P4 layer {L}")
    if L == 0:
        set_poi(64)
        tile_poison(64, sAX2W, 0, 2048)
        tile_poison(64, sAPQW, PQ[1] - PQ[0], 1024)
        kv_poison(64, 1)
    cinit = pst[1]
    NKT = opt("NKT", 10)
    def kvdma(j):
        if j == 0: a(f"s_add_u32 s{sT3}, s{sAWQT}, s{sWA}")
        if j & 3 == 0:
            a(f"s_add_u32 m0, s{sWA}, {j*1024}")
            if j: a(f"s_add_u32 s{sT3}, s{sT3}, 4096")
        return a(f"buffer_load_dwordx4 v{vL16}, {sr(SWS,4)}, s{sT3} offen offset:{(j&3)*1024} sc1 lds")
    if SPX:
        WV = opt("WV", 2); AH = optL("AH", L, 3, 4)
        pump.run(min(pump.i, pump.c + optL("PRE", L, 0, 0)), tmp=(AUX, AUX + 1))
        landed = pump.i; c0 = pump.c
        def hk(s, k):
            if k == 1:
                lim = max(min(landed, c0 + WV * (s + 1)), min(28, s + AH))
                pump.run(lim, tmp=(AUX, AUX + 1), first=(s == 0))
            if k == 0 and s >= cinit:
                assert pump.c > s
                if not opt("NOPUMP", 0): a.wait(lg=pump.lid[s])
        h4a.run(nxt=h4b, hook=hk)
    else:
        pump.run(28, tmp=(AUX, AUX + 1))
        stamp("p4_w2")
        a.wait_lg_all()
        spec(h4a.can_issue, h4a.can_check, h4a.window, 0x60 + L, a.newlabel("SREDO"))
        stamp("canary")
        h4a.run(nxt=h4b)
    stamp("gemm_a")
    def resid(hf):
        A0 = 32 + 32 * hf; XU = AUX
        for j in range(4):
            a(f"v_lshlrev_b32 v{XU+2*j}, 16, v{XR+4*hf+j}")
            a(f"v_and_b32 v{XU+2*j+1}, 0xffff0000, v{XR+4*hf+j}")
        for q in range(4): pk("add", XU+2*q, vr(XU+2*q,2), vr(vB2-1,2), lo=[0,1], hi=[1,1])
        for q in range(4): pk("add", A0+2*q, vr(A0+2*q,2), vr(XU+2*q,2))
    def out(hf):
        A0 = 32 + 32 * hf
        for q in range(4): a(f"v_cvt_pk_bf16_f32 v{XR+4*hf+q}, v{A0+2*q}, v{A0+2*q+1}")
        if L == 0: ws_store4(XR + 4 * hf, sAX2W, 2048 * hf)
        else:
            a(f"v_permlane32_swap_b32 v{XR+4*hf}, v{XR+4*hf+2}")
            a(f"v_permlane32_swap_b32 v{XR+4*hf+1}, v{XR+4*hf+3}")
            a(f"buffer_store_dwordx4 {vr(XR+4*hf,4)}, v{vOUT}, {sr(SOUT,4)}, 0 offen offset:{64*hf}")
    wv = []
    if optL("WE4", L, 1, 1):
        h4a.writes()
        wv = h4a.woven(40)
        XU = AUX
        pre = []
        for j in range(4):
            pre.append(lambda j=j: a(f"v_lshlrev_b32 v{XU+2*j}, 16, v{XR+j}"))
            pre.append(lambda j=j: a(f"v_and_b32 v{XU+2*j+1}, 0xffff0000, v{XR+j}"))
        for j in range(8): pre.append(lambda j=j: a(f"v_add_f32 v{32+j}, v{32+j}, v{vB2}"))
        for j in range(8): wv.append(lambda j=j: a(f"v_add_f32 v{32+j}, v{32+j}, v{XU+j}"))
        wv = pre[:8] + wv[:1] + wv[1:7] + pre[8:] + wv[10:]
        wv.append(lambda: out(0))
    else:
        h4a.writes(); resid(0); h4a.reads(); out(0)
    h4b.late_check(0x62 + L)
    stamp("epi_a")
    kc = [0]
    WPS = opt("WPS", 2)
    def hk(s, k):
        for _ in range(WPS if k == 1 else WPS - 1):
            if wv:
                f = wv.pop(0)
                if f: f()
        if L == 0 and k == 1 and s + LKH >= 28 and kc[0] < NKT:
            kvdma(kc[0]); kc[0] += 1
    h4b.run(hook=hk)
    assert not wv
    stamp("gemm_b")
    if L == 0 and opt("XE", 0) == 1: xa_start()
    h4b.writes()
    if L == 0 and opt("XE", 0) == 2: xa_start()
    if L == 0 and opt("KE", 2):
        while kc[0] < 12: kvdma(kc[0]); kc[0] += 1
    resid(1); h4b.reads()
    if L == 0 and opt("KE", 2) == 2:
        while kc[0] < 16: G["kvlast"] = kvdma(kc[0]); kc[0] += 1
    out(1)
    if L == 0:
        row_stats_publish(sAS2W, 32)
        for j in range(kc[0], 16): G["kvlast"] = kvdma(j)
    stamp(f"p4_{L}")

def emit_ool():
    for h, nxt, lab, back in OOL:
        a.label(lab)
        a.hist = []
        a.vm_done = a.vm
        h.window()
        h.steps(lab, force=False)
        if nxt is not None:
            if nxt.kind == 2: nxt.can_issue()
            nxt.window()
            a("s_waitcnt vmcnt(0)")
        a("s_nop 15")
        a(f"s_branch {back}")

prologue()
for L in range(2):
    p1(L); p2(L); p34(L)
finish()
a.label("L_END")
emit_ool()
a.label("L_EXIT")
a("s_endpgm")

hdr = open(f"ref.s").read().split("; Override launch")[0]
out = hdr + f"""; @launch grid=(256,1,1) block=(256,1,1) lds={LDS_BYTES}
.amdgcn_target "amdgcn-amd-amdhsa--gfx950"
.text
.globl {NAME}_kernel
.p2align 8
.type {NAME}_kernel,@function
{NAME}_kernel:
""" + a.text() + f""".section .rodata,"a"
.p2align 6
.amdhsa_kernel {NAME}_kernel
  .amdhsa_next_free_vgpr 512
  .amdhsa_next_free_sgpr 102
  .amdhsa_accum_offset 256
  .amdhsa_group_segment_fixed_size 0
  .amdhsa_kernarg_size 88
  .amdhsa_user_sgpr_count 2
  .amdhsa_user_sgpr_kernarg_segment_ptr 1
  .amdhsa_system_sgpr_workgroup_id_x 1
  .amdhsa_float_denorm_mode_32 3
.end_amdhsa_kernel
"""
outp = [x for x in sys.argv[1:] if x.endswith(".s")]
open(outp[0], "w").write(out)
if DIAG: open(outp[0] + ".stamps", "w").write("\n".join(stamp_names))
```

```python
import sys, struct
from contextlib import contextmanager
from asmlib import Asm, vr, ar, sr

NAME = "interleave_layers__linear_attn_block__mixer_token_mlp__prompt"
DIAG = "--diag" in sys.argv
OPT = {}
for a_ in sys.argv:
    if a_.startswith("-D"):
        k_, v_ = a_[2:].split("="); OPT[k_] = int(v_)
def opt(k, d): return OPT.get(k, d)
def optL(k, L, d0, d1): return OPT.get(f"{k}_{L}", (d0, d1)[L])
def f2u(x): return struct.unpack("<I", struct.pack("<f", x))[0]
def fl(x): return "0x%08x" % f2u(x)
FULL = (1 << 64) - 1
LOG2E = 1.4426950408889634

KVF = [0x2000, 0xC0000]; KVP = [0x8000, 0xC6000]; ST = [0x166000, 0x1A6000]; ST2 = 0x1E6000
SELFP = 0xC0000
PQ = [0x400000, 0x600000]; HT = [0x800000, 0xA00000]; U = [0xC00000, 0xE00000]; X2 = 0x1000000
WQT = 0x1200000
TS = 0x1400000
DUMP = 0x1500000
ERRS = 0x1520000
NONCE = 0x0; TAGQ = 0x1540000
WS_BYTES = 268435456
L_A = 32768; L_B = 98304; LDS_BYTES = 163840
NS = 6; SCR = 12288
sW = 3
SX, SWQKV, SWO, SW1, SW2, SWS, SOUT, SDBG, SB1, SB2, SCODE = 4, 8, 12, 16, 20, 24, 28, 32, 36, 40, 44
sST, sDT, sRB, sHP, sDT3, sFT, sP3, sRH, sKH, sWB, sTO, sONES = 48, 49, 50, 51, 52, 53, 54, 55, 56, 57, 58, 59
sEPS6 = 60; sB = 61
sT0, sT1, sT2, sT3, sT4, sT5 = 62, 63, 64, 65, 66, 67
sSO = 68; sW1K = 69; sTS = 70
sL2E = 74; sWA = 75; sROTX = 76; sROT1 = 77; sROT2 = 78; sRED = 79; sWOFF = 80; sKB = 81; sXC = 82; sWI = 83
sKA = 84
sAKVP, sAPQW, sAPQR, sAKVF, sASTW, sASTR, sAHTW, sAHTR, sAUW, sAUR, sAX2W, sAX2R, sAS2W, sAS2R, sAWQT, sGK = range(84, 100)
sDUM = 100; sNON = 101; sRX0 = 73
vL, vL16, vTA, vTB, vT0, vT1, vT2, vT3 = 0, 1, 2, 3, 4, 5, 6, 7
XR = 8
CKP, CVP, CQP, vB2, vRS, vHH, vOUT, vTSV = 16, 17, 18, 19, 20, 21, 22, 23
vWA, vWB, vWTA, vWTB = 24, 25, 26, 27
MA = 28

a = Asm()
stamp_names = []
G = {}

@contextmanager
def cond():
    st = (a.vm, a.vm_done, a.lg, a.lg_done); h = list(a.hist)
    yield
    a.vm, a.vm_done, a.lg, a.lg_done = st[0], min(st[1], st[0]), st[2], min(st[3], st[2])
    a.hist = h

def stamp(name):
    if not DIAG: return
    if "--lite" in sys.argv and name not in ("start", "end", "p4_0"): return
    k = len(stamp_names); stamp_names.append(name)
    if opt("CYC", 0) and name not in ("start", "end"): a(f"s_memtime {sr(sTS,2)}")
    else: a(f"s_memrealtime {sr(sTS,2)}")
    if name in ("start", "end"): a(f"s_memtime s[0:1]") if name == "end" else a(f"s_memtime {sr(sTS+2,2)}")
    a("s_waitcnt lgkmcnt(0)"); a.lg_done = a.lg
    a(f"v_writelane_b32 v{vTSV}, s{sTS}, {k}")
    if name in ("start", "end"): a(f"v_writelane_b32 v{vTSV}, s{sTS+2 if name == 'start' else 0}, {62 if name == 'start' else 63}")

def srd(base, ptr, nbytes):
    a(f"s_mov_b32 s{base}, s{ptr}")
    a(f"s_and_b32 s{base+1}, s{ptr+1}, 0xffff")
    a(f"s_mov_b32 s{base+2}, {nbytes:#x}")
    a(f"s_mov_b32 s{base+3}, 0x20000")

def set_exec(mask):
    if mask == FULL: a("s_mov_b64 exec, -1")
    elif mask <= 64: a(f"s_mov_b64 exec, {mask}")
    else:
        a(f"s_mov_b32 exec_lo, {mask & 0xffffffff:#x}"); a(f"s_mov_b32 exec_hi, {mask >> 32:#x}")

def lin(dst, terms, const=0):
    first = True
    for r, m in terms:
        t = dst if first else sT5
        if m == 1 and not first: a(f"s_add_u32 s{dst}, s{dst}, s{r}"); continue
        if m & (m - 1) == 0: a(f"s_lshl_b32 s{t}, s{r}, {m.bit_length()-1}")
        else: a(f"s_mul_i32 s{t}, s{r}, {m}")
        if not first: a(f"s_add_u32 s{dst}, s{dst}, s{sT5}")
        first = False
    if const: a(f"s_add_u32 s{dst}, s{dst}, {const:#x}")

def timeout_path(code):
    a(f"s_mov_b32 s{sTO}, 0")
    if DIAG:
        a(f"v_mov_b32 v{vT3}, {code}")
        a(f"s_mov_b32 s{sT5}, {ERRS:#x}")
        a(f"buffer_store_dword v{vT3}, off, {sr(SWS,4)}, s{sT5}")
        a("s_waitcnt vmcnt(0)")

def poll(issue, check, code, pre=None):
    top = a.newlabel("POLL"); done = a.newlabel("PDONE"); chk = a.newlabel("PCHK")
    if pre is not None:
        a.wait(vm=pre)
        st = (a.vm, a.vm_done)
        a(f"s_branch {chk}")
    a.label(top)
    issue()
    a.wait_vm_all(force=True)
    if pre is not None: a.label(chk)
    check()
    a(f"s_cbranch_vccz {done}")
    h = list(a.hist); vmst = (a.vm, a.vm_done)
    if opt("PS", 2) and not (code == 0x20 and opt("A1NS", 1)): a(f"s_sleep {opt('PS', 2)}")
    a(f"s_sub_u32 s{sTO}, s{sTO}, 1")
    a(f"s_cbranch_scc0 {top}")
    timeout_path(code)
    a.label(done)
    a.hist = h; a.vm, a.vm_done = vmst
    if pre is not None: a.vm, a.vm_done = st

def poll1(addr, code, tmp=None, tag=False):
    cmp = (lambda r: a(f"v_cmp_ne_u32 vcc, s{sNON}, v{r}")) if tag else (lambda r: a(f"v_cmp_eq_u32 vcc, -1, v{r}"))
    if tmp is None or not opt("PP", 0):
        poll(lambda: a(f"buffer_load_dword v{vT3}, {addr} sc1"), lambda: cmp(vT3), code)
        return
    top = a.newlabel("PP"); done = a.newlabel("PPD")
    a(f"buffer_load_dword v{vT3}, {addr} sc1")
    a(f"s_nop {opt('PPN', 15)}")
    a.label(top)
    for r, o in ((vT3, tmp), (tmp, vT3)):
        a(f"buffer_load_dword v{o}, {addr} sc1")
        a("s_waitcnt vmcnt(1)")
        cmp(r)
        a(f"s_cbranch_vccz {done}")
    h = list(a.hist)
    a(f"s_sub_u32 s{sTO}, s{sTO}, 2")
    a(f"s_cbranch_scc0 {top}")
    timeout_path(code)
    a.label(done)
    a.hist = h
    a.vm -= 1
    a.vm_done = a.vm - 1

SLD = {}
SPD = {0x50: 1, 0x51: 1, 0x60: 1, 0x61: 1, 0x36: 1, 0x38: 1, 0x39: 1, 0x40: 1}
def spec(can_issue, can_check, window, code, redo, on=True):
    go = a.newlabel("GO")
    d = OPT.get(f"SL{code:x}", SLD.get(code, 0))
    if d: a(f"s_sleep {d}")
    on = OPT.get(f"SP{code:x}", SPD.get(code, 0))
    if on:
        can_issue(); cid = a.vm - 1
        window()
        a.wait(vm=cid)
        can_check()
        force_fail("FRC")
        a(f"s_cbranch_vccz {go}")
        st = (a.vm, a.vm_done, list(a.hist))
        poll(can_issue, can_check, code)
        a.label(redo)
        window()
        a.label(go)
        a.hist = []
        a("s_nop 0")
    else:
        poll(can_issue, can_check, code)
        a.label(redo)
        window()

force_n = [0]
def force_fail(kind):
    if not opt(kind, 0): return
    k = force_n[0] % 32; force_n[0] += 1
    l = a.newlabel("FF")
    a(f"s_bitcmp1_b32 s2, {k}")
    a(f"s_cbranch_scc1 {l}")
    a(f"s_bitset1_b32 s2, {k}")
    a("s_mov_b64 vcc, 1")
    a.label(l)

def verify(vMX, redo, force=True):
    ok = a.newlabel("VOK")
    a(f"v_cmp_eq_u32 vcc, -1, v{vMX}")
    if force: force_fail("FRV")
    a(f"s_cbranch_vccz {ok}")
    h = list(a.hist)
    a("s_waitcnt vmcnt(0)")
    a(f"s_sub_u32 s{sTO}, s{sTO}, 64")
    a(f"s_cbranch_scc0 {redo}")
    a(f"s_mov_b32 s{sTO}, 0")
    a.label(ok)
    a.hist = h

def finish():
    if opt("AMP", -1) >= 0:
        lp = a.newlabel("AMPL"); sk = a.newlabel("AMPS")
        stamp("pre_end")
        a(f"s_cmp_lg_u32 s{sB}, 77")
        a(f"s_cbranch_scc1 {sk}")
        a(f"v_readlane_b32 s{sT0}, v{vTSV}, 0")
        a(f"v_readlane_b32 s{sT1}, v{vTSV}, {opt('AMP', 0)}")
        a(f"s_memrealtime s[70:71]")
        a("s_waitcnt lgkmcnt(0)")
        a(f"s_sub_u32 s{sT1}, s{sT1}, s{sT0}")
        a(f"s_lshl_b32 s{sT1}, s{sT1}, 2")
        a(f"s_add_u32 s{sT1}, s70, s{sT1}")
        a.label(lp)
        a(f"s_memrealtime s[70:71]")
        a("s_waitcnt lgkmcnt(0)")
        a(f"s_sub_u32 s{sT2}, s70, s{sT1}")
        a(f"s_cmp_lt_i32 s{sT2}, 0")
        a(f"s_cbranch_scc1 {lp}")
        a.label(sk)
    if DIAG:
        a(f"v_writelane_b32 v{vTSV}, s{sTO}, 61")
        stamp("end")
        lin(sT0, [(sB, 1024), (sW, 256)], TS)
        a(f"v_lshlrev_b32 v{vT0}, 2, v{vL}")
        a(f"buffer_store_dword v{vTSV}, v{vT0}, {sr(SWS,4)}, s{sT0} offen")
    a("s_endpgm")

def pk(op, d, x, y, z=None, hi=None, lo=None):
    ops = [x, y] + ([z] if z is not None else [])
    m = ""
    if lo: m += " op_sel:[" + ",".join(map(str, lo)) + "]"
    if hi: m += " op_sel_hi:[" + ",".join(map(str, hi)) + "]"
    a(f"v_pk_{op}_f32 {vr(d,2)}, " + ", ".join(ops) + m)

def mfma(d, A, B, C):
    a(f"v_mfma_f32_32x32x16_bf16 {d}, {A}, {B}, {C}")

def ws_store4(reg, soff, off=0): return a(f"buffer_store_dwordx4 {vr(reg,4)}, v{vL16}, {sr(SWS,4)}, s{soff} offen offset:{off} sc1")

def tr_base(dst_a, dst_b, sel64, sel32, region):
    a(f"v_bfe_u32 v{vT0}, v{vL}, 2, 2")
    a(f"v_lshl_add_u32 v{vT0}, v{vHH}, 2, v{vT0}")
    a(f"v_lshlrev_b32 v{dst_a}, 7, v{vT0}")
    a(f"v_bfe_u32 v{vT1}, v{vL}, 3, 1")
    a(f"v_lshl_add_u32 v{dst_a}, v{vT1}, 6, v{dst_a}")
    a(f"v_bfe_u32 v{vT1}, v{vL}, 4, 1")
    a(f"v_lshl_add_u32 v{dst_a}, v{vT1}, 5, v{dst_a}")
    a(f"v_and_b32 v{vT1}, 3, v{vL}")
    a(f"v_lshl_add_u32 v{dst_a}, v{vT1}, 3, v{dst_a}")
    for sel, sh in ((sel64, 6), (sel32, 5)):
        if sel is not None:
            a(f"s_lshl_b32 s{sT5}, s{sel}, {sh}")
            a(f"v_xor_b32 v{dst_a}, s{sT5}, v{dst_a}")
    a(f"v_add_u32 v{dst_a}, {region}, v{dst_a}")
    a(f"v_xor_b32 v{dst_b}, 64, v{dst_a}")

def dma_voff(dst, dst2, pitch, scol):
    a(f"v_lshrrev_b32 v{vT0}, 3, v{vL}")
    a(f"v_mul_u32_u24 v{dst}, {pitch}, v{vT0}")
    a(f"v_bfe_u32 v{vT1}, v{vL}, 4, 1")
    a(f"v_lshlrev_b32 v{vT1}, 2, v{vT1}")
    a(f"v_and_b32 v{vT0}, 7, v{vL}")
    a(f"v_xor_b32 v{vT0}, v{vT0}, v{vT1}")
    a(f"v_lshl_add_u32 v{dst}, v{vT0}, 4, v{dst}")
    a(f"v_add_u32 v{dst}, s{scol}, v{dst}")
    a(f"v_add_u32 v{dst2}, {8*pitch-1024}, v{dst}")

R1, R2 = 16, 11
def wreg(kind, t, j, n):
    r, base = (R1, 0) if kind == 1 else (R2, R1 * 8)
    if t < r: return ar(base + 8 * t + j, n)
    t -= r
    if t < 5: return ar(216 + 8 * t + j, n)
    return vr(160 + 8 * (t - 5) + j, n)

class Pump:
    def setup(self, kind, L, extra=0):
        self.kind = kind
        self.pitch, self.srd, self.n = (3584, SW1, 32) if kind == 1 else (4096, SW2, 28)
        self.t0 = 0 if L == 0 else (R1 if kind == 1 else R2)
        self.extra = extra
        self.i = self.t0; self.c = self.t0; self.vid = {}; self.lid = {}
        a.c(f"pump setup W{kind}")
        a(f"s_lshl_b32 s{sT5}, s{sKH}, 5")
        a(f"v_xor_b32 v{vWTA}, s{sT5}, v{vWTA}")
        a(f"v_xor_b32 v{vWTB}, s{sT5}, v{vWTB}")
        lin(sT4, [(sFT if kind == 1 else sST, 128), (sW, self.n * 16 * self.pitch)])
        dma_voff(vWA, vWB, self.pitch, sT4)
        rot = sROT1 if kind == 1 else sROT2
        a(f"s_add_u32 s{sT5}, s{rot}, {self.t0}")
        a(f"s_sub_u32 s{sWOFF}, s{sT5}, {self.n}")
        a(f"s_cselect_b32 s{sWOFF}, s{sT5}, s{sWOFF}")
        a(f"s_mul_i32 s{sWOFF}, s{sWOFF}, {16*self.pitch}")
    def place(self, t):
        k = t - self.t0
        if k < self.extra: return ("B", k * 2048)
        return ("A", ((k - self.extra) % NS) * 2048)
    def prev_user(self, t):
        p = t - NS
        return p if p - self.t0 >= self.extra else None
    def room(self, lag=0):
        p = self.prev_user(self.i)
        return p is None or p < self.c - lag
    def issue1(self):
        t = self.i
        if opt("NOPUMP", 0):
            self.vid[t] = None; self.i += 1; return
        p = self.prev_user(t)
        if p is not None: a.wait(lg=self.lid[p])
        reg, o = self.place(t)
        a(f"s_add_u32 m0, s{sWB if reg == 'B' else sWA}, {o}")
        if t > self.t0:
            a(f"s_add_u32 s{sWOFF}, s{sWOFF}, {16*self.pitch}")
            a(f"s_cmp_eq_u32 s{sWOFF}, {self.n*16*self.pitch}")
            a(f"s_cselect_b32 s{sWOFF}, 0, s{sWOFF}")
        a(f"buffer_load_dwordx4 v{vWA}, {sr(self.srd,4)}, s{sWOFF} offen lds")
        self.vid[t] = a(f"buffer_load_dwordx4 v{vWB}, {sr(self.srd,4)}, s{sWOFF} offen offset:1024 lds")
        self.i += 1
    def fill(self, upto=None):
        lim = self.n if upto is None else min(self.n, upto)
        while self.i < lim and self.room(): self.issue1()
    def run(self, target, refill=True, tmp=(vT0, vT1), first=True):
        target = min(target, self.n)
        haveB = not first
        while self.c < target:
            t = self.c
            if t >= self.i: self.issue1()
            if opt("NOPUMP", 0):
                self.c += 1; continue
            reg, o = self.place(t)
            ta, tb = vWTA, vWTB
            if reg == "B":
                ta, tb = tmp
                if not haveB:
                    a(f"v_add_u32 v{ta}, 65536, v{vWTA}"); a(f"v_add_u32 v{tb}, 65536, v{vWTB}"); haveB = True
            a.wait(vm=self.vid[t])
            a(f"ds_read_b64_tr_b16 {wreg(self.kind,t,0,2)}, v{ta} offset:{o}")
            a(f"ds_read_b64_tr_b16 {wreg(self.kind,t,2,2)}, v{ta} offset:{o+1024}")
            a(f"ds_read_b64_tr_b16 {wreg(self.kind,t,4,2)}, v{tb} offset:{o}")
            self.lid[t] = a(f"ds_read_b64_tr_b16 {wreg(self.kind,t,6,2)}, v{tb} offset:{o+1024}")
            self.c += 1
            lim = self.n if refill else target
            if self.i < lim and self.room(lag=1): self.issue1()
        if refill: self.fill()
pump = Pump()

def prologue():
    a(f"s_cmp_ge_u32 s2, 256")
    a(f"s_cbranch_scc1 L_EXIT")
    a(f"s_load_dwordx16 {sr(sKA,16)}, s[0:1], 0")
    a(f"s_load_dwordx4 {sr(SCODE,4)}, s[0:1], 64")
    a(f"s_load_dwordx2 s[100:101], s[0:1], 80")
    a(f"s_mov_b32 s{sB}, s2")
    if opt("FRV", 0) or opt("FRC", 0): a("s_mov_b32 s2, 0")
    a(f"v_lshrrev_b32 v{vT0}, 6, v0")
    a(f"v_and_b32 v{vL}, 63, v0")
    a(f"v_readfirstlane_b32 s{sW}, v{vT0}")
    a(f"v_lshlrev_b32 v{vL16}, 4, v{vL}")
    a(f"v_lshrrev_b32 v{vHH}, 5, v{vL}")
    if opt("CODEPF", 1) == 2:
        a(f"s_getpc_b64 {sr(SB1,2)}")
        a.label("L_PC")
        a(f"s_and_b32 s{SB1+1}, s{SB1+1}, 0xffff")
        a(f"s_mov_b32 s{SB1+2}, L_END - L_PC")
        a(f"s_mov_b32 s{SB1+3}, 0x20000")
        a(f"s_lshr_b32 s{sT0}, s{sB}, 3")
        a(f"s_lshl_b32 s{sT0}, s{sT0}, 2")
        a(f"s_add_u32 s{sT0}, s{sT0}, s{sW}")
        a(f"s_lshl_b32 s{sT0}, s{sT0}, 10")
        a(f"buffer_load_dwordx4 {ar(252,4)}, v{vL16}, {sr(SB1,4)}, s{sT0} offen")
    if DIAG: a(f"v_mov_b32 v{vTSV}, 0")
    stamp("start")
    X_, I_ = sT0, sT1
    a(f"s_and_b32 s{X_}, s{sB}, 7")
    a(f"s_lshr_b32 s{I_}, s{sB}, 3")
    a(f"s_lshr_b32 s{sT2}, s{I_}, 3")
    a(f"s_and_b32 s{sDT}, s{I_}, 7")
    a(f"s_and_b32 s{sRB}, s{X_}, 3")
    a(f"s_lshl_b32 s{sRB}, s{sRB}, 2")
    a(f"s_add_u32 s{sRB}, s{sRB}, s{sT2}")
    a(f"s_lshr_b32 s{sHP}, s{X_}, 2")
    a(f"s_lshl_b32 s{sHP}, s{sHP}, 3")
    a(f"s_add_u32 s{sHP}, s{sHP}, s{sDT}")
    a(f"s_lshr_b32 s{sROTX}, s{sDT}, 1")
    a(f"s_add_u32 s{sROTX}, s{sROTX}, s{sT2}")
    a(f"s_and_b32 s{sROTX}, s{sROTX}, 3")
    a(f"s_lshl_b32 s{sROTX}, s{sROTX}, 1")
    a(f"s_and_b32 s{sT3}, s{I_}, 1")
    a(f"s_add_u32 s{sROTX}, s{sROTX}, s{sT3}")
    a(f"s_and_b32 s{sRX0}, s{sROTX}, {opt('RXM', 6)}")
    a(f"s_lshl_b32 s{sW1K}, s{sW}, 10")
    a(f"s_lshl_b32 s{sWB}, s{sW}, 14")
    a(f"s_add_u32 s{sWA}, s{sWB}, {L_A}")
    a(f"s_add_u32 s{sWB}, s{sWB}, {L_B}")

def roles2():
    X_, I_ = sT0, sT1
    a(f"s_and_b32 s{X_}, s{sB}, 7")
    a(f"s_lshr_b32 s{I_}, s{sB}, 3")
    a(f"s_lshr_b32 s{sT2}, s{I_}, 3")
    a(f"s_lshl_b32 s{sST}, s{X_}, 2")
    a(f"s_add_u32 s{sST}, s{sST}, s{sT2}")
    a(f"s_lshr_b32 s{sT3}, s{X_}, 1")
    a(f"s_mul_i32 s{sT3}, s{sT3}, 7")
    a(f"s_and_b32 s{sT4}, s{X_}, 1")
    a(f"s_lshl_b32 s{sT5}, s{sT4}, 2")
    a(f"s_add_u32 s{sFT}, s{sT3}, s{sT5}")
    a(f"s_add_u32 s{sFT}, s{sFT}, s{sT2}")
    a(f"s_and_b32 s{sP3}, s{I_}, 3")
    a(f"s_add_u32 s{sT5}, s{sT5}, s{sP3}")
    a(f"s_add_u32 s{sKB}, s{sT3}, 3")
    a(f"s_cmp_lt_u32 s{I_}, 24")
    a(f"s_cselect_b32 s{sFT}, s{sFT}, s{sKB}")
    a(f"s_cselect_b32 s{sDT3}, s{sDT}, s{sT5}")
    a(f"s_mul_i32 s{sT4}, s{sT4}, 3")
    a(f"s_add_u32 s{sXC}, s{sT3}, s{sT4}")
    a(f"s_lshl_b32 s{sROT1}, s{X_}, 2")
    a(f"s_and_b32 s{sT3}, s{I_}, 3")
    a(f"s_lshr_b32 s{sP3}, s{I_}, 2")
    a(f"s_lshl_b32 s{sWI}, s{I_}, 2")
    a(f"s_add_u32 s{sWI}, s{sWI}, s{sW}")
    a(f"s_lshl_b32 s{sRED}, s{X_}, 2")
    a(f"s_add_u32 s{sRED}, s{sRED}, s{sT3}")
    a(f"s_lshl_b32 s{sRED}, s{sRED}, 1")
    a(f"s_add_u32 s{sRED}, s{sRED}, s{sW}")
    a(f"s_cmp_lt_u32 s{sW}, 2")
    a(f"s_cselect_b32 s{sRED}, s{sRED}, 99")
    a(f"s_cmp_eq_u32 s{sP3}, 7")
    a(f"s_cselect_b32 s{sRED}, s{sRED}, 99")
    a(f"s_mul_i32 s{sROT2}, s{X_}, 7")
    a(f"s_lshr_b32 s{sROT2}, s{sROT2}, 2")
    a(f"s_lshl_b32 s{sROT2}, s{sROT2}, 1")
    if opt("MAP", 0):
        a(f"s_and_b32 s{sT2}, s{X_}, 1")
        a(f"s_lshl_b32 s{sT2}, s{sT2}, 2")
        a(f"s_and_b32 s{sT3}, s{I_}, 3")
        a(f"s_lshr_b32 s{sT5}, s{X_}, 1")
        a(f"s_add_u32 s{sT4}, s{sP3}, s{sT3}")
        a(f"s_and_b32 s{sT4}, s{sT4}, {opt('MROT', 1)}")
        if opt("MAP", 0) & 1:
            a(f"s_add_u32 s{sDT3}, s{sT2}, s{sT3}")
            a(f"s_mul_i32 s{sFT}, s{sT5}, 7")
            a(f"s_add_u32 s{sFT}, s{sFT}, s{sP3}")
            a(f"s_lshl_b32 s{sROT1}, s{sT4}, 4")
        if opt("MAP", 0) & 2:
            a(f"s_add_u32 s{sDT}, s{sT2}, s{sT3}")
            a(f"s_lshl_b32 s{sST}, s{sT5}, 3")
            a(f"s_add_u32 s{sST}, s{sST}, s{sP3}")
            a(f"s_mul_i32 s{sROT2}, s{sT4}, 14")
    a(f"s_lshr_b32 s{sRH}, s{sW}, 1")
    a(f"s_and_b32 s{sKH}, s{sW}, 1")
    a(f"s_mov_b32 s{sTO}, 400000")
    a(f"s_mov_b32 s{sONES}, 0x3f803f80")
    a(f"s_mov_b32 s{sEPS6}, {fl(1e-6)}")
    a(f"s_mov_b32 s{sL2E}, {fl(LOG2E)}")

def late_srds():
    srd(SWO, sKA + 4, 512 * 512 * 2)
    srd(SW1, sKA + 8, 2048 * 1792 * 2)
    srd(SB1, sKA + 10, 1792 * 2)
    srd(SW2, sKA + 12, 1792 * 2048 * 2)
    srd(SB2, sKA + 14, 2048 * 2)
    srd(SOUT, SCODE, 2048 * 512 * 2)
    srd(SDBG, SCODE + 2, 256)

def code_prefetch():
    if opt("CODEPF", 1) == 1:
        a(f"s_getpc_b64 {sr(SCODE,2)}")
        a.label("L_PC")
        a(f"s_and_b32 s{SCODE+1}, s{SCODE+1}, 0xffff")
        a(f"s_mov_b32 s{SCODE+2}, L_END - L_PC")
        a(f"s_mov_b32 s{SCODE+3}, 0x20000")
        a(f"s_lshl_b32 s{sT0}, s{sWI}, 10")
        a(f"buffer_load_dwordx4 {ar(252,4)}, v{vL16}, {sr(SCODE,4)}, s{sT0} offen")
    srd(SCODE, SW1, 2048 * 1792 * 2)
    a(f"s_cmp_eq_u32 s{sP3}, 7")
    a(f"s_cselect_b32 s{SW1+2}, 0, s{SW1+2}")

def addresses():
    lin(sAKVP, [(sHP, 64 * 640), (sRB, 4 * 640), (sW, 640)], KVP[0])
    lin(sAPQW, [(sRB, 4 * 32768), (sW, 32768), (sHP, 2048)], PQ[0])
    lin(sAPQR, [(sST, 65536), (sRH, 32768), (sKH, 16384)], PQ[0])
    lin(sAKVF, [(sKH, 16 * 768)], KVF[0])
    lin(sASTW, [(sST, 8192), (sDT, 1024), (sKH, 512), (sRH, 256)], ST[0])
    lin(sASTR, [(sST, 8192), (sRH, 256)], ST[0])
    lin(sAHTW, [(sDT, 262144), (sST, 8192), (sRH, 4096), (sKH, 256)], HT[0])
    lin(sAHTR, [(sDT3, 262144), (sW, 65536)], HT[0])
    lin(sAUW, [(sDT3, 229376), (sFT, 8192), (sRH, 4096), (sKH, 2048)], U[0])
    a(f"s_cmp_eq_u32 s{sP3}, 7")
    a(f"s_cselect_b32 s{sAUW}, {WS_BYTES:#x}, s{sAUW}")
    lin(sAUR, [(sDT, 229376), (sW, 57344)], U[0])
    lin(sAX2W, [(sST, 65536), (sRH, 32768), (sDT, 4096), (sKH, 1024)], X2)
    lin(sAX2R, [(sRB, 4 * 32768), (sW, 32768)], X2)
    a(f"s_add_u32 s{sAS2W}, s{sASTW}, {ST2 - ST[0]:#x}")
    lin(sAS2R, [(sRB, 2 * 8192), (sRH, 8192), (sKH, 256)], ST2)
    lin(sAWQT, [(sHP, 98304)], WQT)
    a(f"s_mov_b32 s{sGK}, {fl(-2.0 * 0.7978845608028654 * LOG2E * 0.044715)}")

def next_layer_addresses():
    for r, d in ((sAKVP, KVP[1] - KVP[0]), (sAPQW, PQ[1] - PQ[0]), (sAPQR, PQ[1] - PQ[0]), (sAKVF, KVF[1] - KVF[0]),
                 (sASTW, ST[1] - ST[0]), (sASTR, ST[1] - ST[0]), (sAHTW, HT[1] - HT[0]), (sAHTR, HT[1] - HT[0]),
                 (sAUW, U[1] - U[0]), (sAUR, U[1] - U[0])):
        a(f"s_add_u32 s{r}, s{r}, {d:#x}")

def kv_poison(P, L):
    r = sAKVP
    if L == 1:
        a(f"s_add_u32 s{sT1}, s{sAKVP}, {KVP[1]-KVP[0]:#x}"); r = sT1
    set_exec((1 << 40) - 1)
    ws_store4(P, r)
    a(f"s_mul_i32 s{sT0}, s{sRED}, 384")
    a(f"s_add_u32 s{sT0}, s{sT0}, {KVF[L]:#x}")
    a(f"s_cmp_ge_u32 s{sRED}, 64")
    a(f"s_cselect_b32 s{sT0}, {WS_BYTES:#x}, s{sT0}")
    set_exec((1 << 24) - 1)
    ws_store4(P, sT0)
    set_exec(FULL)
def ht_voff(dst):
    a(f"v_and_b32 v{dst}, 15, v{vL}")
    a(f"v_lshlrev_b32 v{dst}, 4, v{dst}")
    a(f"v_lshl_add_u32 v{dst}, v{vHH}, 9, v{dst}")
    a(f"v_bfe_u32 v{vT0}, v{vL}, 4, 1")
    a(f"v_lshl_add_u32 v{dst}, v{vT0}, 10, v{dst}")
def tile_poison(P, r, delta, step):
    v = vL16
    if r == sAHTW:
        ht_voff(vT1); v = vT1
    if delta:
        a(f"s_add_u32 s{sT0}, s{r}, {delta:#x}"); r = sT0
    for f in range(2): a(f"buffer_store_dwordx4 {vr(P,4)}, v{v}, {sr(SWS,4)}, s{r} offen offset:{step*f} sc1")
def canary_poison(P):
    lines = ((sAHTW, 2048+1024+512+128), (sAUW, 896), (sAUW, 1024+896), (sAHTW, HT[1]-HT[0]+2048+1024+512+128),
             (sAUW, U[1]-U[0]+896), (sAUW, U[1]-U[0]+1024+896), (sAPQW, PQ[1]-PQ[0]+1024+896), (sAX2W, 896))
    a(f"v_lshrrev_b32 v{vT0}, 3, v{vL}")
    for g, (r, d) in enumerate(lines):
        a(f"s_add_u32 s{sT0}, s{r}, {d:#x}")
        if g == 0: a(f"v_mov_b32 v{vT1}, s{sT0}")
        else:
            a(f"v_mov_b32 v{vT2}, s{sT0}")
            a(f"v_cmp_eq_u32 vcc, {g}, v{vT0}")
            a(f"v_cndmask_b32 v{vT1}, v{vT1}, v{vT2}, vcc")
    a(f"v_and_b32 v{vT0}, 7, v{vL}")
    a(f"v_lshl_add_u32 v{vT1}, v{vT0}, 4, v{vT1}")
    a(f"buffer_store_dwordx4 {vr(P,4)}, v{vT1}, {sr(SWS,4)}, 0 offen sc1")
def st_poison(P):
    lin(sT0, [(sB, 3072), (sW, 768)], ST[0])
    set_exec((1 << 48) - 1)
    ws_store4(P, sT0)
    set_exec(FULL)
def set_poi(P):
    for i in range(4): a(f"v_mov_b32 v{P+i}, -1")

def misc_loads():
    lin(sT0, [(sST, 64), (sRH, 32)])
    a(f"v_and_b32 v{vT0}, 31, v{vL}")
    a(f"v_add_u32 v{vT0}, s{sT0}, v{vT0}")
    a(f"v_lshlrev_b32 v{vT1}, 1, v{vT0}")
    a(f"buffer_load_ushort v{vB2}, v{vT1}, {sr(SB2,4)}, 0 offen")
    a(f"v_lshlrev_b32 v{vT0}, 10, v{vT0}")
    a(f"v_lshl_add_u32 v{vOUT}, v{vHH}, 4, v{vT0}")
    lin(sT0, [(sDT, 128), (sKH, 32)])
    a(f"v_add_u32 v{vOUT}, s{sT0}, v{vOUT}")
    a(f"buffer_load_dwordx4 {vr(XR,4)}, v{vOUT}, {sr(SX,4)}, 0 offen")
    a(f"buffer_load_dwordx4 {vr(XR+4,4)}, v{vOUT}, {sr(SX,4)}, 0 offen offset:64")

def touch(srdn, rows_per_wave, lg, pitch, scol_emit, dst):
    n = rows_per_wave << lg
    scol_emit()
    a(f"v_min_u32 v{vT0}, {n-1}, v{vL}")
    a(f"v_lshrrev_b32 v{vT1}, {lg}, v{vT0}")
    a(f"v_mul_u32_u24 v{vT1}, {pitch}, v{vT1}")
    a(f"v_and_b32 v{vT0}, {(1<<lg)-1}, v{vT0}")
    a(f"v_lshl_add_u32 v{vT0}, v{vT0}, 7, v{vT1}")
    a(f"s_mul_i32 s{sT5}, s{sWI}, {rows_per_wave*pitch}")
    a(f"s_add_u32 s{sT4}, s{sT4}, s{sT5}")
    a(f"buffer_load_dword {dst}, v{vT0}, {sr(srdn,4)}, s{sT4} offen")
def touch_w1(dst): touch(SCODE, 16, 2, 3584, lambda: a(f"s_lshl_b32 s{sT4}, s{sXC}, 7"), dst)
def touch_w2(dst):
    def c2():
        a(f"s_and_b32 s{sT4}, s{sB}, 7"); a(f"s_lshl_b32 s{sT4}, s{sT4}, 9")
    touch(SW2, 16, 2, 4096, c2, dst)
def touch_w2h(dst, t0):
    a(f"s_lshr_b32 s{sT4}, s{sWI}, 3")
    a(f"s_add_u32 s{sT4}, s{sT4}, s{sROT2}")
    if t0: a(f"s_add_u32 s{sT4}, s{sT4}, {t0}")
    a(f"s_sub_u32 s{sT5}, s{sT4}, 28")
    a(f"s_cselect_b32 s{sT4}, s{sT4}, s{sT5}")
    a(f"s_and_b32 s{sT5}, s{sWI}, 3")
    a(f"s_mul_i32 s{sT5}, s{sT5}, 28")
    a(f"s_add_u32 s{sT4}, s{sT4}, s{sT5}")
    a(f"s_lshl_b32 s{sT4}, s{sT4}, 1")
    a(f"s_bfe_u32 s{sT5}, s{sWI}, 0x10002")
    a(f"s_add_u32 s{sT4}, s{sT4}, s{sT5}")
    a(f"s_lshl_b32 s{sT4}, s{sT4}, 15")
    a(f"s_and_b32 s{sT5}, s{sB}, 7")
    a(f"s_lshl_b32 s{sT5}, s{sT5}, 9")
    a(f"s_add_u32 s{sT4}, s{sT4}, s{sT5}")
    a(f"s_cmp_eq_u32 s{sP3}, 7")
    a(f"s_cselect_b32 s{sT4}, 0x10000000, s{sT4}")
    a(f"v_min_u32 v{vT0}, 31, v{vL}")
    a(f"v_lshrrev_b32 v{vT1}, 2, v{vT0}")
    a(f"v_and_b32 v{vT0}, 3, v{vT0}")
    a(f"v_lshlrev_b32 v{vT0}, 7, v{vT0}")
    a(f"v_lshl_add_u32 v{vT0}, v{vT1}, 12, v{vT0}")
    a(f"buffer_load_dword {dst}, v{vT0}, {sr(SW2,4)}, s{sT4} offen")
def touch_w1h(dst, t0):
    a(f"s_lshr_b32 s{sT4}, s{sWI}, 3")
    a(f"s_add_u32 s{sT4}, s{sT4}, s{sROT1}")
    if t0: a(f"s_add_u32 s{sT4}, s{sT4}, {t0}")
    a(f"s_and_b32 s{sT4}, s{sT4}, 31")
    a(f"s_and_b32 s{sT5}, s{sWI}, 3")
    a(f"s_lshl_b32 s{sT5}, s{sT5}, 5")
    a(f"s_add_u32 s{sT4}, s{sT4}, s{sT5}")
    a(f"s_lshl_b32 s{sT4}, s{sT4}, 1")
    a(f"s_bfe_u32 s{sT5}, s{sWI}, 0x10002")
    a(f"s_add_u32 s{sT4}, s{sT4}, s{sT5}")
    a(f"s_mul_i32 s{sT4}, s{sT4}, {8*3584}")
    a(f"s_lshl_b32 s{sT5}, s{sXC}, 7")
    a(f"s_add_u32 s{sT4}, s{sT4}, s{sT5}")
    a(f"v_min_u32 v{vT0}, 31, v{vL}")
    a(f"v_lshrrev_b32 v{vT1}, 2, v{vT0}")
    a(f"v_and_b32 v{vT0}, 3, v{vT0}")
    a(f"v_lshlrev_b32 v{vT0}, 7, v{vT0}")
    a(f"v_mul_u32_u24 v{vT1}, 3584, v{vT1}")
    a(f"v_add_u32 v{vT0}, v{vT1}, v{vT0}")
    a(f"buffer_load_dword {dst}, v{vT0}, {sr(SCODE,4)}, s{sT4} offen")
def touch_wo(dst): touch(SWO, 4, 3, 1024, lambda: a(f"s_mov_b32 s{sT4}, 0"), dst)
def touches(L, where):
    dst = "a25" if where in (1, 2, 3, 6, 7, 8) else None
    if optL("T1", L, 8, 0) == where: touch_w1(dst + "2" if dst else "v31")
    if optL("T1A", L, 0, 0) == where: touch_w1h(dst + "2" if dst else "v31", 0)
    if optL("T1B", L, 0, 0) == where: touch_w1h(dst + "5" if dst else "v31", 16)
    if optL("T2", L, 0, 0) == where: touch_w2(dst + "3" if dst else "v31")
    if optL("T2H", L, 9, 0) == where: touch_w2h(dst + "3" if dst else "v31", 0)
    if optL("T2G", L, 0, 0) == where: touch_w2h(dst + "3" if dst else "v31", 14)

def split2(dst, src, t0):
    a(f"v_cvt_pk_bf16_f32 v{t0}, v{src}, v{src}")
    a(f"v_and_b32 v{t0}, 0xffff0000, v{t0}")
    a(f"v_sub_f32 v{dst}, v{src}, v{t0}")
    a(f"v_cvt_pk_bf16_f32 v{dst}, v{t0}, v{dst}")

def stats_to_frags(S, Q, RA):
    a(f"v_mul_f32 v{S}, {fl(-1/512)}, v{S}")
    a(f"v_mul_f32 v{Q}, {fl(1/512)}, v{Q}")
    a(f"v_cmp_eq_u32 vcc, 0, v{vHH}")
    a(f"v_fma_f32 v{Q}, -v{S}, v{S}, v{Q}")
    a(f"v_max_f32 v{Q}, 0, v{Q}")
    a(f"v_add_f32 v{Q}, {fl(1e-5)}, v{Q}")
    a(f"v_rsq_f32 v{vRS}, v{Q}")
    a(f"v_cndmask_b32 v{S}, 0, v{S}, vcc")
    a(f"v_cvt_pk_bf16_f32 v{MA}, v{S}, v{S}")
    a(f"v_cndmask_b32 v{Q}, 0, v{vRS}, vcc")
    a(f"v_and_b32 v{vT0}, 0xffff0000, v{MA}")
    a(f"v_sub_f32 v{S}, v{S}, v{vT0}")
    a(f"v_cvt_pk_bf16_f32 v{MA+1}, v{S}, v{S}")
    split2(RA, Q, vT0)

def stats_check(SB):
    a(f"v_max3_u32 v{vT3}, v{SB+1}, v{SB+3}, v{SB+5}")
    a(f"v_max3_u32 v{vT3}, v{vT3}, v{SB+7}, v{SB+9}")
    a(f"v_max3_u32 v{vT3}, v{vT3}, v{SB+11}, v{SB+13}")
    a(f"v_max_u32 v{vT3}, v{vT3}, v{SB+15}")
    a(f"v_cmp_eq_u32 vcc, -1, v{vT3}")
def stats_sum(SB):
    for n in (4, 2, 1):
        for p in range(n): pk("add", SB+2*p, vr(SB+2*p,2), vr(SB+2*(p+n),2))
    a(f"v_mov_b32 v{SB+2}, v{SB}")
    a(f"v_mov_b32 v{SB+3}, v{SB+1}")
    a(f"v_permlane32_swap_b32 v{SB}, v{SB+2}")
    a(f"v_permlane32_swap_b32 v{SB+1}, v{SB+3}")
    pk("add", SB, vr(SB,2), vr(SB+2,2))

A1B = 128
def a1_issue():
    a(f"s_mov_b32 s{sT3}, s{sKB}")
    for p in range(16):
        a(f"buffer_load_dwordx4 {vr(A1B+4*p,4)}, v{vL16}, {sr(SWS,4)}, s{sT3} offen offset:{(p&1)*2560} sc1")
        if p & 1 and p < 15: a(f"s_add_u32 s{sT3}, s{sT3}, {2*2560}")
def a1_early(L):
    skip = a.newlabel("NOA1E")
    a(f"s_cmp_ge_u32 s{sRED}, 64")
    a(f"s_cbranch_scc1 {skip}")
    with cond():
        a(f"s_lshr_b32 s{sKB}, s{sRED}, 2")
        a(f"s_mul_i32 s{sKB}, s{sKB}, {16*2560}")
        a(f"s_and_b32 s{sT2}, s{sRED}, 3")
        a(f"s_mul_i32 s{sT2}, s{sT2}, 640")
        a(f"s_add_u32 s{sKB}, s{sKB}, s{sT2}")
        a(f"s_add_u32 s{sKB}, s{sKB}, {KVP[L]:#x}")
        if opt("A1C", 0):
            a(f"v_and_b32 v{vT1}, 15, v{vL}")
            a(f"v_mul_u32_u24 v{vT1}, 2560, v{vT1}")
            a(f"buffer_load_dword v{vT3}, v{vT1}, {sr(SWS,4)}, s{sKB} offen offset:544 sc1")
        else:
            set_exec((1 << 35) - 1)
            a1_issue()
            set_exec(FULL)
    a.label(skip)
def a1_check():
    B = A1B
    a(f"v_max3_u32 v{vT3}, v{B}, v{B+4}, v{B+8}")
    a(f"v_min3_u32 v{vT1}, v{B}, v{B+4}, v{B+8}")
    for p in range(3, 15, 2):
        a(f"v_max3_u32 v{vT3}, v{vT3}, v{B+4*p}, v{B+4*p+4}")
        a(f"v_min3_u32 v{vT1}, v{vT1}, v{B+4*p}, v{B+4*p+4}")
    a(f"v_max_u32 v{vT3}, v{vT3}, v{B+60}")
    a(f"v_min_u32 v{vT1}, v{vT1}, v{B+60}")
    a(f"v_cmp_eq_u32 vcc, -1, v{vT3}")
    a(f"v_readlane_b32 s{sT0}, v{vT3}, 34")
    a(f"v_readlane_b32 s{sT1}, v{vT1}, 34")
    a(f"s_xor_b32 s{sT0}, s{sT0}, s{sNON}")
    a(f"s_xor_b32 s{sT1}, s{sT1}, s{sNON}")
    a(f"s_or_b32 s{sT0}, s{sT0}, s{sT1}")
    a(f"s_or_b32 vcc_lo, vcc_lo, s{sT0}")
    a(f"s_or_b64 vcc, vcc, vcc")
def a1_mid(younger):
    skip = a.newlabel("NOA1M"); ok = a.newlabel("A1MOK")
    a(f"s_cmp_ge_u32 s{sRED}, 64")
    a(f"s_cbranch_scc1 {skip}")
    with cond():
        set_exec((1 << 35) - 1)
        a(f"s_waitcnt vmcnt({younger})")
        a1_check()
        a(f"s_cbranch_vccz {ok}")
        a1_issue()
        a.label(ok)
        set_exec(FULL)
    a.label(skip)
def a1(L, younger):
    a.c("======== A1 reducer")
    skip = a.newlabel("NOA1")
    a(f"s_cmp_ge_u32 s{sRED}, 64")
    a(f"s_cbranch_scc1 {skip}")
    with cond():
        B = A1B
        a(f"s_mul_i32 s{sT2}, s{sRED}, 384")
        a(f"s_add_u32 s{sT2}, s{sT2}, {KVF[L]:#x}")
        a(f"v_lshlrev_b32 v{vT2}, 3, v{vL}")
        set_exec((1 << 35) - 1)
        def check():
            a(f"v_max3_u32 v{vT3}, v{B}, v{B+4}, v{B+8}")
            a(f"v_min3_u32 v{vT1}, v{B}, v{B+4}, v{B+8}")
            for p in range(3, 15, 2):
                a(f"v_max3_u32 v{vT3}, v{vT3}, v{B+4*p}, v{B+4*p+4}")
                a(f"v_min3_u32 v{vT1}, v{vT1}, v{B+4*p}, v{B+4*p+4}")
            a(f"v_max_u32 v{vT3}, v{vT3}, v{B+60}")
            a(f"v_min_u32 v{vT1}, v{vT1}, v{B+60}")
            a(f"v_cmp_eq_u32 vcc, -1, v{vT3}")
            a(f"v_readlane_b32 s{sT0}, v{vT3}, 34")
            a(f"v_readlane_b32 s{sT1}, v{vT1}, 34")
            a(f"s_xor_b32 s{sT0}, s{sT0}, s{sNON}")
            a(f"s_xor_b32 s{sT1}, s{sT1}, s{sNON}")
            a(f"s_or_b32 s{sT0}, s{sT0}, s{sT1}")
            a(f"s_or_b32 vcc_lo, vcc_lo, s{sT0}")
            a(f"s_or_b64 vcc, vcc, vcc")
        a.vm_done = min(a.vm_done, a.vm - younger - 1)
        if opt("A1C", 0):
            poll(lambda: a(f"buffer_load_dword v{vT3}, v{vT1}, {sr(SWS,4)}, s{sKB} offen offset:544 sc1"),
                 lambda: a(f"v_cmp_ne_u32 vcc, s{sNON}, v{vT3}"), 0x21, pre=a.vm - younger - 1)
            poll(a1_issue, check, 0x20)
        else:
            poll(a1_issue, check, 0x20, pre=a.vm - younger - 1)
        n = 16
        while n > 1:
            n //= 2
            for p in range(n):
                for j in (0, 2): pk("add", B+4*p+j, vr(B+4*p+j,2), vr(B+4*(p+n)+j,2))
        a(f"v_cvt_pk_bf16_f32 v{B+4}, v{B}, v{B+1}")
        a(f"v_cvt_pk_bf16_f32 v{B+5}, v{B+2}, v{B+3}")
        a(f"v_mov_b32_dpp v{B+6}, v{B+4} quad_perm:[1,1,3,3] row_mask:0xf bank_mask:0xf")
        a(f"v_mov_b32_dpp v{B+7}, v{B+5} quad_perm:[1,1,3,3] row_mask:0xf bank_mask:0xf")
        a(f"v_writelane_b32 v{B+4}, s{sNON}, 34")
        set_exec(0x555555555555)
        a(f"buffer_store_dwordx4 {vr(B+4,4)}, v{vT2}, {sr(SWS,4)}, s{sT2} offen sc1")
        set_exec(FULL)
        a("s_nop 1")
    a.label(skip)
    stamp("a1")

XF = 128
def KS(s): return 4 * ((s & 15) >> 1) + (s & 1) + 2 * (s >> 4)
def XFR(L, s): return XF + 4 * (((s + 16) & 31) if L == 1 else s)
xid1 = {}
def xa_XL(s):
    jj = s & 15
    if jj == 0: a(f"s_mov_b32 s{sSO}, s{sT4}")
    elif jj == 8: a(f"s_xor_b32 s{sSO}, s{sT4}, 16384")
    elif jj & 1 == 0: a(f"s_add_u32 s{sSO}, s{sSO}, 4096")
    xid1[s] = a(f"buffer_load_dwordx4 {vr(XFR(1,s),4)}, v{vL16}, {sr(SWS,4)}, s{sSO} offen offset:{(KS(s)&3)*1024} sc1")
vXC = MA + 1
def xa_ci(): return a(f"buffer_load_dword v{vT3}, v{vXC}, {sr(SWS,4)}, s{sAX2R} offen offset:1020 sc1")
def xa_start():
    a(f"s_and_b32 s{sT5}, s{sROTX}, {opt('XROT', 1)}")
    a(f"s_lshl_b32 s{sT5}, s{sT5}, 14")
    a(f"s_add_u32 s{sT4}, s{sAX2R}, s{sT5}")
    a(f"v_and_b32 v{vXC}, 15, v{vL}")
    a(f"v_lshrrev_b32 v{MA+3}, 1, v{vXC}")
    a(f"v_and_b32 v{vXC}, 1, v{vXC}")
    a(f"v_lshlrev_b32 v{vXC}, 10, v{vXC}")
    a(f"v_lshl_add_u32 v{vXC}, v{MA+3}, 12, v{vXC}")
    G["xcid"] = xa_ci()
    for s in range(opt("LA1", 8)): xa_XL(s)
def p1(L):
    ACCK, ACCV, RR = 32, 48, 64
    VV, PK, T1 = 80, 88, 96
    S0, S1, Q0, Q1 = 80, 81, 82, 83
    CF = 84
    CFV, CFQ, RA = 112, 116, 120
    vTQ, vTV = 124, 125
    vW, vXA, vXB = 126, 127, 96
    vCQ, vCV = 97, 98
    vOA, vOB = vTA, vTB
    vTQ2, vTV2 = vTA, vTB
    vKW, vKR = 92, 93
    XA = 88
    vKW2, vKR2 = vT2, 127
    POI = 100
    WFR = 216; NWF = 4; ONESF = 248; CG = 200; CK, CV, CQ = 152, 168, 184
    a.c(f"======== P1 layer {L}")
    xid = {}; wid = {}
    toff = 256
    def addr_setup():
        if L == 0:
            a(f"v_bfe_u32 v{vT0}, v{vL}, 2, 2")
            a(f"v_lshl_add_u32 v{vT0}, v{vHH}, 3, v{vT0}")
            a(f"v_lshlrev_b32 v{vTQ}, 6, v{vT0}")
            a(f"v_bfe_u32 v{vT1}, v{vL}, 4, 1")
            a(f"v_lshl_add_u32 v{vTQ}, v{vT1}, 5, v{vTQ}")
            a(f"v_and_b32 v{vT1}, 3, v{vL}")
            a(f"v_lshl_add_u32 v{vTQ}, v{vT1}, 3, v{vTQ}")
        else:
            a(f"s_and_b32 s{sT5}, s{sROTX}, {opt('XROT', 1)}")
            a(f"s_lshl_b32 s{sT5}, s{sT5}, 14")
            a(f"v_add_u32 v{vTQ}, s{sT5}, v{vL16}")
            a(f"v_xor_b32 v{vTQ2}, 16384, v{vTQ}")
            a(f"v_add_u32 v{vTV2}, 65536, v{vTQ2}")
        a(f"v_add_u32 v{vTV}, 65536, v{vTQ}")
        for i in range(4): a(f"v_accvgpr_write_b32 a{ONESF+i}, s{sONES}")
        for r in ([MA + 2, MA + 3] if L == 0 else []) + [RA + 1, RA + 2, RA + 3, CF + 2, CF + 3, CFV + 2, CFV + 3, CFQ + 2, CFQ + 3]: a(f"v_mov_b32 v{r}, 0")
    def kv_addr():
        a(f"v_bfe_u32 v{vT0}, v{vL}, 4, 1")
        a(f"v_lshl_add_u32 v{vT0}, v{vT0}, 1, v{vHH}")
        a(f"v_mul_u32_u24 v{vT0}, 17, v{vT0}")
        a(f"v_and_b32 v{vT1}, 15, v{vL}")
        a(f"v_add_u32 v{vT0}, v{vT0}, v{vT1}")
        a(f"v_lshlrev_b32 v{vT0}, 5, v{vT0}")
        a(f"v_add_u32 v{vKW2}, s{sWA}, v{vT0}")
        a(f"s_mul_i32 s{sT0}, s{sW}, 544")
        a(f"s_add_u32 s{sT0}, s{sT0}, {L_A + SCR}")
        a(f"v_add_u32 v{vKR2}, s{sT0}, v{vL16}")
    rg = {}
    def RG(s):
        b = WFR + (s % NWF) * 8
        if L == 0:
            o = s * 1024
            a(f"ds_read_b64_tr_b16 {ar(b,2)}, v{vTQ} offset:{32768+o}")
            a(f"ds_read_b64_tr_b16 {ar(b+2,2)}, v{vTQ} offset:{32768+o+toff}")
            a(f"ds_read_b64_tr_b16 {ar(b+4,2)}, v{vTV} offset:{o}")
            rg[s] = a(f"ds_read_b64_tr_b16 {ar(b+6,2)}, v{vTV} offset:{o+toff}")
        else:
            o = (KS(s) & 15) * 1024
            q_, v_ = (vTQ2, vTV2) if KS(s) >= 16 else (vTQ, vTV)
            a(f"ds_read_b128 {ar(b,4)}, v{q_} offset:{32768+o}")
            rg[s] = a(f"ds_read_b128 {ar(b+4,4)}, v{v_} offset:{o}")
    if L == 0:
        a(f"v_lshrrev_b32 v{vT0}, 2, v{vL}")
        a(f"s_lshl_b32 s{sT0}, s{sW}, 4")
        a(f"v_add_u32 v{vT0}, s{sT0}, v{vT0}")
        a(f"v_mul_u32_u24 v{vW}, 3072, v{vT0}")
        a(f"v_and_b32 v{vT0}, 3, v{vL}")
        a(f"v_lshl_add_u32 v{vW}, v{vT0}, 4, v{vW}")
        a(f"s_lshl_b32 s{sT0}, s{sHP}, 6")
        a(f"v_add_u32 v{vW}, s{sT0}, v{vW}")
        lin(sT0, [(sRB, 131072), (sW, 32768)])
        a(f"v_lshrrev_b32 v{vT0}, 3, v{vL}")
        a(f"v_lshlrev_b32 v{vT0}, 10, v{vT0}")
        a(f"v_add_u32 v{vT0}, s{sT0}, v{vT0}")
        a(f"v_and_b32 v{vT1}, 7, v{vL}")
        a(f"v_lshrrev_b32 v{vT2}, 4, v{vL}")
        a(f"v_xor_b32 v{vT1}, v{vT1}, v{vT2}")
        a(f"v_lshl_add_u32 v{vXA}, v{vT1}, 4, v{vT0}")
        a(f"v_xor_b32 v{vXB}, 64, v{vXA}")
        a(f"v_add_u32 v{vXB}, {8192-1024}, v{vXB}")
        a("s_waitcnt lgkmcnt(0)")
        srd(SX, sKA + 0, 2048 * 512 * 2)
        srd(SWQKV, sKA + 2, 512 * 1536 * 2)
        def x_issue(j):
            a(f"s_add_u32 s{sKB}, s{sRX0}, {j}")
            a(f"s_and_b32 s{sKB}, s{sKB}, 7")
            a(f"s_lshl_b32 s{sT1}, s{sKB}, 7")
            a(f"s_add_u32 m0, s{sWB}, {(j&3)*4096}")
            a(f"s_mul_i32 s{sSO}, s{sKB}, {64*3072}")
            a(f"buffer_load_dwordx4 v{vXA}, {sr(SX,4)}, s{sT1} offen lds")
            a(f"buffer_load_dwordx4 v{vXB}, {sr(SX,4)}, s{sT1} offen offset:1024 lds")
            a(f"s_add_u32 m0, s{sWB}, {(j&3)*4096+2048}")
            a(f"s_add_u32 s{sT1}, s{sT1}, 16384")
            a(f"buffer_load_dwordx4 v{vXA}, {sr(SX,4)}, s{sT1} offen lds")
            xid[j] = a(f"buffer_load_dwordx4 v{vXB}, {sr(SX,4)}, s{sT1} offen offset:1024 lds")
        def w_issue(j):
            for seg in (1, 2, 0):
                a(f"s_add_u32 m0, s{sW1K}, {seg*32768 - seg*1024 + j*4096}")
                wid[j] = a(f"buffer_load_dwordx4 v{vW}, {sr(SWQKV,4)}, s{sSO} offen offset:{seg*1024} lds")
        def wo_issue(c):
            for k in range(2):
                j = 2 * c + k
                a(f"s_add_u32 m0, s{sWB}, {j*2048}")
                if j == 0: a(f"s_lshl_b32 s{sSO}, s{sW}, 17")
                else: a(f"s_add_u32 s{sSO}, s{sSO}, 16384")
                a(f"buffer_load_dwordx4 v{vOA}, {sr(SWO,4)}, s{sSO} offen lds")
                G["wo"] = a(f"buffer_load_dwordx4 v{vOB}, {sr(SWO,4)}, s{sSO} offen offset:1024 lds")
        x_issue(0); w_issue(0)
        srd(SWS, 100, WS_BYTES)
        a(f"buffer_load_dword v{vKW}, off, {sr(SWS,4)}, 0 offset:{NONCE} sc1")
        roles2()
        late_srds()
        x_issue(1); w_issue(1)
        touch_wo("a254")
        code_prefetch()
        touches(0, 6)
        for i in range(4): a(f"v_mov_b32 v{POI+i}, -1")
        addresses()
        addr_setup()
        a(f"v_add_u32 v{vCQ}, s{sW1K}, v{vTQ}")
        a(f"v_add_u32 v{vCV}, s{sW1K}, v{vTV}")
        for r in (S0, S1, Q0, Q1): a(f"v_mov_b32 v{r}, 0")
        a(f"v_and_b32 v{vT0}, 31, v{vL}")
        a(f"v_bfe_u32 v{vT1}, v{vL}, 1, 3")
        a(f"v_xor_b32 v{vT1}, v{vT1}, v{vHH}")
        a(f"v_lshlrev_b32 v{vT0}, 7, v{vT0}")
        a(f"v_add_u32 v{vT0}, s{sWB}, v{vT0}")
        for t in range(4):
            a(f"v_xor_b32 v{vT2}, {2*t}, v{vT1}")
            a(f"v_lshl_add_u32 v{XA+t}, v{vT2}, 4, v{vT0}")
        a(f"s_lshl_b32 s{sT4}, s{sDT}, 7")
        dma_voff(vOA, vOB, 1024, sT4)
        tr_base(vWTA, vWTB, sRH, None, f"s{sWA}")
        pump.setup(1, 0)
        SCHED = {0: {0: [2, 3], 1: [4, 5], 2: [6], 3: [7]}, 1: {0: [2], 1: [3, 4], 2: [5, 6], 3: [7]}, 2: {0: [2, 3, 4], 1: [5], 2: [6], 3: [7]},
                 3: {0: [2], 1: [3], 2: [4], 3: [5], 4: [6], 5: [7]}, 4: {0: [2, 3], 1: [4], 2: [5], 3: [6], 4: [7]}}[opt("SCHED", 0)]
        JL = max(SCHED)
        cgid = {}
        def CGr(j):
            o = j * 4096
            a(f"ds_read_b64_tr_b16 {ar(CG,2)}, v{vCQ} offset:{32768+o}")
            a(f"ds_read_b64_tr_b16 {ar(CG+2,2)}, v{vCQ} offset:{32768+o+toff}")
            a(f"ds_read_b64_tr_b16 {ar(CG+4,2)}, v{vCV} offset:{o}")
            a(f"ds_read_b64_tr_b16 {ar(CG+6,2)}, v{vCV} offset:{o+toff}")
            a(f"ds_read_b64_tr_b16 {ar(CG+8,2)}, v{vCQ} offset:{o}")
            cgid[j] = a(f"ds_read_b64_tr_b16 {ar(CG+10,2)}, v{vCQ} offset:{o+toff}")
        def colsum(j):
            a.wait(lg=cgid[j])
            for k, c in enumerate((CK, CV, CQ)):
                mfma(ar(c,16), ar(ONESF,4), ar(CG+4*k,4), "0" if j == 0 else ar(c,16))
        def xreads(j):
            a.wait(vm=xid[j])
            return [a(f"ds_read_b128 {vr(XF+16*j+4*t,4)}, v{XA+t} offset:{(j&3)*4096}") for t in range(4)]
        xr = xreads(0)
        a.wait(vm=wid[0])
        a("s_barrier")
        stamp("p1_first")
        CGr(0); RG(0); RG(1); RG(2)
        colsum(0)
        CPY = 104; CS4 = 96
        initld = None
        for j in range(8):
            for t in range(4):
                a.wait(lg=xr[t])
                for k in range(4 if not opt("XNOD", 0) else 0):
                    r = XF + 16 * j + 4 * t + k
                    a(f"v_dot2_f32_bf16 v{S0+(k&1)}, v{r}, s{sONES}, v{S0+(k&1)}")
                    a(f"v_dot2_f32_bf16 v{Q0+(k&1)}, v{r}, v{r}, v{Q0+(k&1)}")
            if j == 7:
                a(f"s_lshr_b32 s{sT0}, s{sRB}, 1")
                a(f"s_sub_u32 s{sT0}, s{sT0}, s{sRX0}")
                a(f"s_and_b32 s{sT0}, s{sT0}, 7")
                a(f"s_cmp_eq_u32 s{sT0}, 0")
                a(f"s_cselect_b32 s{sT1}, 4096, 0")
                a(f"s_add_u32 s{sT1}, s{sT1}, {L_A}")
                a(f"v_add_u32 v{vT1}, s{sT1}, v{vL16}")
                a(f"v_add_u32 v{vT0}, s{sW1K}, v{vT1}")
                a(f"v_accvgpr_read_b32 v{CS4}, a{CK}")
                a(f"v_accvgpr_read_b32 v{CS4+1}, a{CV}")
                a(f"v_accvgpr_read_b32 v{CS4+2}, a{CQ}")
                cw = a(f"ds_write_b128 v{vT0}, {vr(CS4,4)}")
            for s in range(4 * j, 4 * j + 4):
                t = s & 3
                a.wait(lg=rg[s])
                b = WFR + (s % NWF) * 8
                x = vr(XF + 4 * s, 4)
                mfma(vr(ACCK,16), x, ar(b,4), "0" if s == 0 else vr(ACCK,16))
                if s + 3 < 32: RG(s + 3)
                if t == 1 and j < 7 and not opt("XNOC", 0): CGr(j + 1)
                if t == 2 and j < 7: xr = xreads(j + 1)
                if j == 7 and t == 1:
                    for w in range(4): cr = a(f"ds_read_b128 {vr(RR+4*w,4)}, v{vT1} offset:{1024*w}")
                    a(f"s_lshl_b32 s{sT0}, s{sT0}, 12")
                    a(f"s_and_b32 s{sT1}, s{sRB}, 1")
                    a(f"s_lshl_b32 s{sT1}, s{sT1}, 11")
                    a(f"s_add_u32 s{sT0}, s{sT0}, s{sT1}")
                    a(f"s_min_u32 s{sT2}, s{sW}, 2")
                    a(f"s_lshl_b32 s{sT2}, s{sT2}, 15")
                    a(f"s_add_u32 s{sT0}, s{sT0}, s{sT2}")
                    a(f"v_lshlrev_b32 v{vT1}, 8, v{vHH}")
                    a(f"v_sub_u32 v{vT0}, v{vTQ}, v{vT1}")
                    a(f"v_add_u32 v{vT0}, s{sT0}, v{vT0}")
                    for k in range(4): cp = a(f"ds_read_b64_tr_b16 {vr(CPY+2*k,2)}, v{vT0} offset:{512*k}")
                if j == 7 and t == 2:
                    a.wait(lg=cr)
                    for k in range(3):
                        a(f"v_add_f32 v{RR+k}, v{RR+k}, v{RR+4+k}")
                        a(f"v_add_f32 v{RR+8+k}, v{RR+8+k}, v{RR+12+k}")
                if j == 7 and t == 3:
                    split2(CKP, RR, vT0)
                    split2(CVP, RR + 1, vT1)
                mfma(vr(ACCV,16), x, ar(b+4,4), "0" if s == 0 else vr(ACCV,16))
                if t == 0:
                    if j < 7: a.wait(vm=wid[j + 1])
                    else: a.wait(lg=cw)
                    a("s_barrier")
                    if j == 1:
                        a(f"v_add_u32 v{vKW}, 1, v{vKW}")
                        a(f"v_and_b32 v{vKW}, 0x3fffffff, v{vKW}")
                        a(f"v_or_b32 v{vKW}, 0x40000000, v{vKW}")
                        a(f"v_readfirstlane_b32 s{sNON}, v{vKW}")
                if t <= 2 and j in SCHED and t < len(SCHED[j]):
                    x_issue(SCHED[j][t]); w_issue(SCHED[j][t])
                if t == 1 and j >= 4 and opt("WOP", 1) == 0: wo_issue(j - 4)
                if t == 3 and j == JL:
                    misc_loads()
                    touches(0, 8)
                if t == 3 and opt("SLOTST", 0) and j in (1, 3, 6): stamp(f"it{j}")
                if t == 2:
                    if j == 3: touches(0, 7)
                    if j == opt("POJ", 2):
                        st_poison(POI); kv_poison(POI, 0); canary_poison(POI)
                    if j == 6: kv_addr()
                    if j == opt("POJ", 2) + 1:
                        tile_poison(POI, sAPQW, 0, 1024); initld = a.vm - 1
                    if j == 7:
                        for k in range(3): a(f"v_add_f32 v{RR+k}, v{RR+k}, v{RR+8+k}")
                        a(f"s_lshl_b32 s{sT1}, s{sRB}, 11")
                        a(f"s_add_u32 s{sT3}, s{sAWQT}, s{sT2}")
                        a(f"s_add_u32 s{sT3}, s{sT3}, s{sT1}")
                        a.wait(lg=cp)
                        ws_store4(CPY, sT3); ws_store4(CPY + 4, sT3, 1024)
                if t == 3 and j < 7 and not opt("XNOC", 0): colsum(j + 1)
        stamp("p1_gemm")
        a(f"v_add_f32 v{S0}, v{S0}, v{S1}")
        a(f"v_add_f32 v{Q0}, v{Q0}, v{Q1}")
        a(f"v_mov_b32 v{S1}, v{S0}")
        a(f"v_mov_b32 v{Q1}, v{Q0}")
        for c, p in ((CF, CKP), (CFV, CVP)):
            a(f"v_mov_b32 v{c}, v{p}"); a(f"v_mov_b32 v{c+1}, v{p}")
        a(f"v_permlane32_swap_b32 v{S0}, v{S1}")
        a(f"v_permlane32_swap_b32 v{Q0}, v{Q1}")
        a(f"v_add_f32 v{S0}, v{S0}, v{S1}")
        a(f"v_add_f32 v{Q0}, v{Q0}, v{Q1}")
        split2(CQP, RR + 2, vT1)
        stats_to_frags(S0, Q0, RA)
        mfma(vr(ACCK,16), vr(MA,4), vr(CF,4), vr(ACCK,16))
        mfma(vr(RR,16), vr(RA,4), ar(ONESF,4), "0")
        mfma(vr(ACCV,16), vr(MA,4), vr(CFV,4), vr(ACCV,16))
        touches(0, 1)
    else:
        xid = xid1; XL = xa_XL; ci = xa_ci
        LA = opt("LA1", 8)
        vMX = vW
        cc = lambda: a(f"v_cmp_eq_u32 vcc, -1, v{vT3}")
        def windowa():
            for s in range(LA): XL(s)
        def windowb():
            for s in range(16, 16 + LA): XL(s)
        if opt("XE", 0) == 0: xa_start()
        cid = max(G["xcid"], G["kvlast"])
        addr_setup()
        next_layer_addresses()
        for c, p in ((CF, CKP), (CFV, CVP)):
            a(f"v_mov_b32 v{c}, v{p}"); a(f"v_mov_b32 v{c+1}, v{p}")
        a(f"v_and_b32 v{vT0}, 31, v{vL}")
        a(f"v_lshlrev_b32 v{vT0}, 3, v{vT0}")
        a(f"v_lshl_add_u32 v{PK+1}, v{vHH}, 12, v{vT0}")
        a(f"s_lshl_b32 s{sT2}, s{sW}, 13")
        a(f"s_add_u32 s{sKB}, s{sAWQT}, s{sT2}")
        a(f"s_mov_b32 s{sT1}, s{sT4}")
        pump.setup(1, 1)
        a(f"s_mov_b32 s{sT4}, s{sT1}")
        a(f"v_mov_b32 v{MA+2}, 0"); a(f"v_mov_b32 v{MA+3}, 0")
        go = a.newlabel("XGO"); redo = a.newlabel("XREDO"); go2 = a.newlabel("XGO2")
        a.wait(vm=cid)
        cc()
        force_fail("FRC")
        a(f"s_cbranch_vccz {go2}")
        st = (a.vm, a.vm_done, dict(xid), list(a.hist))
        poll(ci, cc, 0x41)
        windowa()
        a("s_waitcnt vmcnt(0)")
        a.vm, a.vm_done, _x, a.hist = st; xid.update(_x)
        a.label(go2)
        a("s_barrier")
        stamp("p1_flag")
        a(f"s_branch {go}")
        a.label(redo)
        sv = dict(xid)
        with cond():
            windowa()
            a("s_waitcnt vmcnt(0)")
        xid.update(sv)
        a.label(go)
        RG(0); RG(1); RG(2)
        a(f"v_mov_b32 v{vMX}, 0")
        a(f"s_mov_b32 s{sT3}, s{sKB}")
        SB = T1
        def issue():
            for p in range(8): a(f"buffer_load_dwordx2 {vr(SB+2*p,2)}, v{PK+1}, {sr(SWS,4)}, s{sAS2R} offen offset:{p*512} sc1")
        qid = None
        LA = opt("LA1", 8)
        ZS = opt("ZS", 9); nb = [16]
        assert ZS + LA >= 16
        for s in range(32):
            if s == 16:
                stamp("p1_a")
                if ZS < 16:
                    go3 = a.newlabel("XGO3")
                    a.wait(vm=sid)
                    stats_check(SB)
                    force_fail("FRC")
                    a(f"s_cbranch_vccz {go3}")
                    st = (a.vm, a.vm_done, dict(xid), list(a.hist))
                    poll(issue, lambda: stats_check(SB), 0x40)
                    windowb()
                    a("s_waitcnt vmcnt(0)")
                    a.vm, a.vm_done, _x, a.hist = st; xid.update(_x)
                    a.label(go3)
                else:
                    spec(issue, lambda: stats_check(SB), windowb, 0x40, a.newlabel("XR0"))
                stamp("p1_st2")
                stats_sum(SB)
                stats_to_frags(SB, SB + 1, RA)
                mfma(vr(RR,16), vr(RA,4), ar(ONESF,4), "0")
                mfma(vr(ACCK,16), vr(MA,4), vr(CF,4), vr(ACCK,16))
                mfma(vr(ACCV,16), vr(MA,4), vr(CFV,4), vr(ACCV,16))
            a.wait(vm=xid[s], lg=rg[s])
            b = WFR + (s % NWF) * 8
            x = vr(XFR(1, s), 4)
            mfma(vr(ACCK,16), x, ar(b,4), "0" if s == 0 else vr(ACCK,16))
            if s == ZS:
                issue(); sid = a.vm - 1
            if ZS < s < 16:
                per = -(-LA // (15 - ZS))
                for _ in range(per):
                    if nb[0] < 16 + LA: XL(nb[0]); nb[0] += 1
            if (s & 15) + LA < 16: XL(s + LA)
            if s >= 24:
                j = s - 24
                if j == 4: a(f"s_add_u32 s{sT3}, s{sT3}, 4096")
                if j & 3 == 0: a(f"s_add_u32 m0, s{sT2}, {j*1024}")
                qid = a(f"buffer_load_dwordx4 v{vL16}, {sr(SWS,4)}, s{sT3} offen offset:{(j&3)*1024} sc1 lds")
            mfma(vr(ACCV,16), x, ar(b+4,4), "0" if s == 0 else vr(ACCV,16))
            if s & 1: a(f"v_max3_u32 v{vMX}, v{vMX}, v{XFR(1,s-1)}, v{XFR(1,s)}")
            if s + 3 < 32: RG(s + 3)
            if s == 30: kv_addr()
        verify(vMX, redo)
        stamp("p1_gemm")
    for q in range(8): pk("fma", ACCK+2*q, vr(ACCK+2*q,2), vr(RR+2*q,2), sr(sEPS6,2), hi=[1,1,0])
    for q in range(8): pk("mul", T1+2*q, vr(ACCK+2*q,2), sr(sL2E,2), hi=[1,0])
    for i in range(16):
        a(f"v_exp_f32_e64 v{T1+i}, v{T1+i} clamp")
        a(f"v_max_f32 v{ACCK+i}, s{sEPS6}, v{ACCK+i}")
    for q in range(8): pk("add", ACCK+2*q, vr(ACCK+2*q,2), vr(T1+2*q,2))
    for q in range(8): a(f"v_cvt_pk_bf16_f32 v{PK+q}, v{ACCK+2*q}, v{ACCK+2*q+1}")
    ZA = T1
    for q in range(4): pk("mul", ACCV+2*q, vr(ACCV+2*q,2), vr(RR+2*q,2))
    for q in range(4, 8): pk("mul", ACCV+2*q, vr(ACCV+2*q,2), vr(RR+2*q,2))
    mfma(vr(ZA,16), vr(PK,4), ar(ONESF,4), "0")
    for q in range(4): a(f"v_cvt_pk_bf16_f32 v{VV+q}, v{ACCV+2*q}, v{ACCV+2*q+1}")
    mfma(vr(ZA,16), vr(PK+4,4), ar(ONESF,4), vr(ZA,16))
    for q in range(4, 8): a(f"v_cvt_pk_bf16_f32 v{VV+q}, v{ACCV+2*q}, v{ACCV+2*q+1}")
    KVA = RR
    a(f"v_and_b32 v{vT0}, 16, v{vL}")
    a(f"v_cmp_ne_u32 vcc, 0, v{vT0}")
    mfma(vr(KVA,16), vr(PK,4), vr(VV,4), "0")
    mfma(vr(KVA,16), vr(PK+4,4), vr(VV+4,4), vr(KVA,16))
    a("s_barrier")
    for j in range(8): a(f"v_cndmask_b32 v{ACCK+8+j}, v{ZA+j}, v{ZA+8+j}, vcc")
    set_exec(0x0001000100010001)
    a(f"ds_write_b128 v{vKW2}, {vr(ACCK+8,4)} offset:{SCR+512}")
    a(f"ds_write_b128 v{vKW2}, {vr(ACCK+12,4)} offset:{SCR+528}")
    set_exec(FULL)
    for j in range(4): a(f"v_cndmask_b32 v{ACCK+j}, v{KVA+j}, v{KVA+8+j}, vcc")
    a(f"ds_write_b128 v{vKW2}, {vr(ACCK,4)} offset:{SCR}")
    for j in range(4, 8): a(f"v_cndmask_b32 v{ACCK+j}, v{KVA+j}, v{KVA+8+j}, vcc")
    a(f"ds_write_b128 v{vKW2}, {vr(ACCK+4,4)} offset:{SCR+16}")
    if L == 0: a.wait(vm=initld)
    NQ = 8; QLA = 6
    rq = {}
    def RQ(s):
        b = WFR + (s % NQ) * 4
        if L == 0:
            a(f"ds_read_b64_tr_b16 {ar(b,2)}, v{vTQ} offset:{s*1024}")
            rq[s] = a(f"ds_read_b64_tr_b16 {ar(b+2,2)}, v{vTQ} offset:{s*1024+toff}")
        else:
            ks = KS((s + 16) & 31)
            rq[s] = a(f"ds_read_b128 {ar(b,4)}, v{vTQ2 if ks >= 16 else vTQ} offset:{(ks&15)*1024}")
    a(f"v_mov_b32 v{CFQ}, v{CQP}"); a(f"v_mov_b32 v{CFQ+1}, v{CQP}")
    if L == 1: a.wait(vm=qid)
    a.wait_lg_all()
    a("s_barrier")
    for w in range(4): kr = a(f"ds_read_b128 {vr(RR+4*w,4)}, v{vKR2} offset:{16384*w}")
    for s in range(QLA): RQ(s)
    ACCQ = ACCK
    mfma(vr(ACCQ,16), vr(CFQ,4), vr(MA,4), "0")
    a.wait(lg=kr)
    for j in range(4): a(f"v_add_f32 v{RR+j}, v{RR+j}, v{RR+4+j}")
    for j in range(4): a(f"v_add_f32 v{RR+8+j}, v{RR+8+j}, v{RR+12+j}")
    for j in range(4): a(f"v_add_f32 v{RR+j}, v{RR+j}, v{RR+8+j}")
    set_exec((1 << 40) - 1)
    a(f"v_writelane_b32 v{RR}, s{sNON}, 34")
    ws_store4(RR, sAKVP)
    set_exec(FULL)
    stamp("p1_kvpub")
    touches(L, 2)
    nfill = optL("F0", L, 0, 0)
    for s in range(32):
        a.wait(lg=rq[s])
        b = WFR + (s % NQ) * 4
        mfma(vr(ACCQ,16), ar(b,4), vr(XF+4*s,4), vr(ACCQ,16))
        if s + QLA < 32: RQ(s + QLA)
        if s % 3 == 1 and pump.i < pump.c + nfill: pump.fill(pump.i + 1)
        if L == 0 and opt("WOP", 1) == 1 and s % 8 == 0: wo_issue(s // 8)
        if optL("POIQ", L, 1, 1):
            if s == 2: set_poi(VV)
            if s == 3: tile_poison(VV, sAHTW, 0, 2048)
            if s == 6: tile_poison(VV, sAUW, 0, 1024)
        if s == opt("A1S", 31):
            a1_early(L); vm_a1 = a.vm
        if s == opt("A1M", 99):
            a1_mid(a.vm - vm_a1); vm_a1 = a.vm
    for h in range(2):
        for q in range(4*h, 4*h+4): pk("fma", ACCQ+2*q, vr(ACCQ+2*q,2), vr(vRS,2), sr(sEPS6,2), hi=[1,0,0])
        for q in range(4*h, 4*h+4): pk("mul", T1+2*q, vr(ACCQ+2*q,2), sr(sL2E,2), hi=[1,0])
        for i in range(8*h, 8*h+8):
            a(f"v_exp_f32_e64 v{T1+i}, v{T1+i} clamp")
            a(f"v_max_f32 v{ACCQ+i}, s{sEPS6}, v{ACCQ+i}")
        for q in range(4*h, 4*h+4): pk("add", ACCQ+2*q, vr(ACCQ+2*q,2), vr(T1+2*q,2))
        for q in range(4*h, 4*h+4): a(f"v_cvt_pk_bf16_f32 v{PK+q}, v{ACCQ+2*q}, v{ACCQ+2*q+1}")
        ws_store4(PK + 4 * h, sAPQW, 1024 * h)
        if opt("A1S", 31) == 32 + h:
            a1_early(L); vm_a1 = a.vm
    if L == 0:
        for k in range(4): a(f"v_mov_b32 v{T1+k}, s{sNON}")
        a(f"s_sub_u32 s{sT0}, s{sAPQW}, {PQ[0]:#x}")
        a(f"s_lshr_b32 s{sT0}, s{sT0}, 4")
        a(f"s_add_u32 s{sT0}, s{sT0}, {TAGQ:#x}")
        set_exec(0xff)
        ws_store4(T1, sT0)
        set_exec(FULL)
    stamp("p1_q")
    a1(L, a.vm - vm_a1)
    pump.fill(pump.c + optL("F1", L, 6, 5))
    touches(L, 3)

def row_stats_publish(soff, SM):
    a(f"v_dot2_f32_bf16 v{SM}, v{XR}, s{sONES}, 0")
    a(f"v_dot2_f32_bf16 v{SM+1}, v{XR}, v{XR}, 0")
    a(f"v_dot2_f32_bf16 v{SM+2}, v{XR+1}, s{sONES}, 0")
    a(f"v_dot2_f32_bf16 v{SM+3}, v{XR+1}, v{XR+1}, 0")
    for j in range(2, 8):
        o = 2 * (j & 1)
        a(f"v_dot2_f32_bf16 v{SM+o}, v{XR+j}, s{sONES}, v{SM+o}")
        a(f"v_dot2_f32_bf16 v{SM+o+1}, v{XR+j}, v{XR+j}, v{SM+o+1}")
    a(f"v_lshlrev_b32 v{vT0}, 3, v{vL}")
    pk("add", SM, vr(SM,2), vr(SM+2,2))
    a(f"v_mov_b32 v{SM+2}, v{SM}")
    a(f"v_mov_b32 v{SM+3}, v{SM+1}")
    a(f"v_permlane32_swap_b32 v{SM}, v{SM+2}")
    a(f"v_permlane32_swap_b32 v{SM+1}, v{SM+3}")
    pk("add", SM, vr(SM,2), vr(SM+2,2))
    a(f"s_mov_b32 exec_hi, 0")
    a(f"v_and_b32 v{SM+1}, 0x7fffffff, v{SM+1}")
    a(f"buffer_store_dwordx2 {vr(SM,2)}, v{vT0}, {sr(SWS,4)}, s{soff} offen sc1")
    set_exec(FULL)

def unpack_xr(XU):
    for j in range(8):
        a(f"v_lshlrev_b32 v{XU+2*j}, 16, v{XR+j}")
        a(f"v_and_b32 v{XU+2*j+1}, 0xffff0000, v{XR+j}")

def p2(L):
    a.c(f"======== P2 layer {L}")
    KF, QF = 128, 192
    ACC = 32; CR = 64; OF = 96; WF = 104; XU = 64
    vK, vKC, vMX = MA, MA + 1, MA + 2
    tr_base(vTA, vTB, None, sKH, L_B)
    a(f"s_lshl_b32 s{sT2}, s{sKH}, 15")
    a(f"v_add_u32 v{vTA}, s{sT2}, v{vTA}")
    a(f"v_add_u32 v{vTB}, s{sT2}, v{vTB}")
    a(f"v_and_b32 v{vT0}, 31, v{vL}")
    a(f"v_mul_u32_u24 v{vKC}, 384, v{vT0}")
    a(f"v_min_u32 v{vT0}, 16, v{vT0}")
    a(f"v_lshlrev_b32 v{vT0}, 4, v{vT0}")
    a(f"v_mul_u32_u24 v{vT1}, 384, v{vHH}")
    a(f"v_add_u32 v{vK}, v{vT0}, v{vT1}")
    a(f"v_and_b32 v{vT2}, 7, v{vL}")
    a(f"v_lshlrev_b32 v{vT2}, {11 if L else 7}, v{vT2}")
    if L == 0:
        a(f"s_sub_u32 s{sT0}, s{sAPQR}, {PQ[0]:#x}")
        a(f"s_lshr_b32 s{sT0}, s{sT0}, 4")
        a(f"s_add_u32 s{sT0}, s{sT0}, {TAGQ:#x}")
    pump.run(min(R1 + 5, optL("B1", L, 21, 21)), refill=bool(optL("B1R", L, 1, 1)))
    if optL("POIQ", L, 1, 1) == 0:
        set_poi(CR)
        tile_poison(CR, sAHTW, 0, 2048)
        tile_poison(CR, sAUW, 0, 1024)
    stamp("beta")
    def ldq():
        a(f"s_mov_b32 s{sT4}, s{sAPQR}")
        for j in range(16):
            a(f"buffer_load_dwordx4 {vr(QF+4*j,4)}, v{vL16}, {sr(SWS,4)}, s{sT4} offen offset:{(j&3)*1024} sc1")
            if j & 3 == 3 and j < 15: a(f"s_add_u32 s{sT4}, s{sT4}, 4096")
    if L == 1:
        ci = lambda: a(f"buffer_load_dword v{vT3}, v{vT2}, {sr(SWS,4)}, s{sAPQR} offen offset:2044 sc1")
        cc = lambda: a(f"v_cmp_eq_u32 vcc, -1, v{vT3}")
    else:
        ci = lambda: a(f"buffer_load_dword v{vT3}, v{vT2}, {sr(SWS,4)}, s{sT0} offen sc1")
        cc = lambda: a(f"v_cmp_ne_u32 vcc, s{sNON}, v{vT3}")
    spec(ci, cc, ldq, 0x36 + L, a.newlabel("PQR"), on=opt("SPEC", 15) & 4)
    stamp("p2_pqc")
    if L == 0:
        a.wait(vm=G['wo'])
        for q in range(2):
            a(f"v_permlane32_swap_b32 v{XR+4*q}, v{XR+4*q+2}")
            a(f"v_permlane32_swap_b32 v{XR+4*q+1}, v{XR+4*q+3}")
        a(f"v_lshlrev_b32 v{vB2}, 16, v{vB2}")
    pump.run(min(R1 + 5, pump.i), refill=False)
    pump.run(min(R1 + 5, optL("B2", L, 0, 0)), refill=False)
    pump.fill(pump.c + optL("FK", L, 0, 0))
    a(f"s_xor_b32 s{sT0}, s{sW}, 1")
    a(f"s_lshl_b32 s{sT0}, s{sT0}, 12")
    a(f"v_add_u32 v{vRS}, s{sT0}, v{vL16}")
    a.wait_lg_all()
    a("s_barrier")
    rw = {}
    def RW(j):
        b = WF + (j % 3) * 8
        a(f"ds_read_b64_tr_b16 {vr(b,2)}, v{vTA} offset:{j*2048}")
        a(f"ds_read_b64_tr_b16 {vr(b+2,2)}, v{vTA} offset:{j*2048+1024}")
        a(f"ds_read_b64_tr_b16 {vr(b+4,2)}, v{vTB} offset:{j*2048}")
        rw[j] = a(f"ds_read_b64_tr_b16 {vr(b+6,2)}, v{vTB} offset:{j*2048+1024}")
    lid = {}
    def LD(j):
        if j == 0: a(f"s_mov_b32 s{sSO}, s{sAKVF}")
        elif j & 3 == 0: a(f"s_add_u32 s{sSO}, s{sSO}, {4*768}")
        lid[j] = a(f"buffer_load_dwordx4 {vr(KF+4*j,4)}, v{vK}, {sr(SWS,4)}, s{sSO} offen offset:{(j&3)*768} sc1")
    PLA = optL("PLA", L, 10, 10)
    redo = a.newlabel("P2REDO"); redo2 = a.newlabel("P2REDO2"); over = a.newlabel("P2OVER")
    a(f"s_branch {over}")
    a.label(redo)
    with cond():
        ldq()
        a("s_waitcnt vmcnt(0)")
        a(f"s_branch {redo2}")
    a.label(over)
    def window():
        for j in range(PLA): LD(j)
    spec(lambda: a(f"buffer_load_dword v{vT3}, v{vKC}, {sr(SWS,4)}, s{sAKVF} offen offset:272 sc1"),
         lambda: a(f"v_cmp_ne_u32 vcc, s{sNON}, v{vT3}"), window, 0x38 + L, redo2, on=opt("SPEC", 15) & 2)
    stamp("p2_kvc")
    if L == 0:
        sk = a.newlabel("NONW")
        a(f"s_cmp_lg_u32 s{sWI}, 0")
        a(f"s_cselect_b32 s{sT0}, 1, s{sB}")
        a(f"s_cmp_lg_u32 s{sT0}, 0")
        a(f"s_cbranch_scc1 {sk}")
        with cond():
            a(f"v_mov_b32 v{vT0}, s{sNON}")
            set_exec(1)
            a(f"buffer_store_dword v{vT0}, off, {sr(SWS,4)}, 0 offset:{NONCE} sc1")
            set_exec(FULL)
        a.label(sk)
    RW(0); RW(1)
    a(f"v_mov_b32 v{vMX}, 0")
    def M1(j):
        a.wait(vm=lid[j])
        mfma(vr(CR+(j&1)*16,16), vr(KF+4*j,4), vr(QF+4*j,4), "0")
        a(f"v_max3_u32 v{vMX}, v{vMX}, v{KF+4*j}, v{QF+4*j}")
        if j + PLA < 16: LD(j + PLA)
        if j + PLA == 16: touches(L, 9)
    def Va(j):
        c = CR + (j & 1) * 16
        a(f"v_add_f32 v{c+8}, s{sEPS6}, v{c+8}")
        a(f"v_rcp_f32 v{c+8}, v{c+8}")
    def Vb(j):
        c = CR + (j & 1) * 16; o = OF + (j & 1) * 4
        for i in range(4): a(f"v_mul_f32 v{c+i}, v{c+i}, v{c+8}")
        for i in range(2): a(f"v_cvt_pk_bf16_f32 v{o+i}, v{c+2*i}, v{c+2*i+1}")
    def Vc(j):
        c = CR + (j & 1) * 16; o = OF + (j & 1) * 4
        for i in range(4, 8): a(f"v_mul_f32 v{c+i}, v{c+i}, v{c+8}")
        for i in range(2, 4): a(f"v_cvt_pk_bf16_f32 v{o+i}, v{c+2*i}, v{c+2*i+1}")
    M1(0); M1(1)
    Va(0); Vb(0); Vc(0); M1(2)
    nfp = optL("FP2", L, 6, 6)
    kb_saved = False
    for j in range(16):
        o = OF + (j & 1) * 4; b = WF + (j % 3) * 8
        if j + 1 < 16: Va(j + 1)
        a.wait(lg=rw[j])
        mfma(vr(ACC+16,16), vr(b+4,4), vr(o,4), "0" if j == 0 else vr(ACC+16,16))
        if j + 1 < 16: Vb(j + 1)
        mfma(vr(ACC,16), vr(b,4), vr(o,4), "0" if j == 0 else vr(ACC,16))
        if j + 1 < 16: Vc(j + 1)
        if j + 3 < 16: M1(j + 3)
        if j + 2 < 16: RW(j + 2)
    verify(vMX, redo)
    stamp("p2_main")
    lin(sT0, [(sFT, 128), (sRH, 64), (sKH, 32)])
    a(f"v_lshlrev_b32 v{vT0}, 3, v{vHH}")
    for q in range(2): a(f"buffer_load_dwordx2 {vr(152+2*q,2)}, v{vT0}, {sr(SB1,4)}, s{sT0} offen offset:{16*q}")
    for q, r in enumerate((ACC + 24, ACC + 28, ACC + 8, ACC + 12)): a(f"ds_write_b128 v{vRS}, {vr(r,4)} offset:{(q^2)*1024}")
    unpack_xr(XU)
    a(f"v_xor_b32 v{vT1}, 4096, v{vRS}")
    for q in range(4): pk("add", ACC+16+2*q, vr(ACC+16+2*q,2), vr(XU+8+2*q,2))
    for q in range(4): pk("add", ACC+2*q, vr(ACC+2*q,2), vr(XU+2*q,2))
    a.wait_lg_all()
    a("s_barrier")
    own = (ACC, ACC + 4, ACC + 16, ACC + 20)
    ids = [a(f"ds_read_b128 {vr(XU+4*q,4)}, v{vT1} offset:{q*1024}") for q in range(4)]
    for q in range(4):
        a.wait(lg=ids[q])
        pk("add", own[q], vr(own[q],2), vr(XU+4*q,2))
        pk("add", own[q]+2, vr(own[q]+2,2), vr(XU+4*q+2,2))
        a(f"v_cvt_pk_bf16_f32 v{XR+2*q}, v{own[q]}, v{own[q]+1}")
        a(f"v_cvt_pk_bf16_f32 v{XR+2*q+1}, v{own[q]+2}, v{own[q]+3}")
    row_stats_publish(sASTW, OF)
    stamp("p2_stpub")
    pump.run(pump.i, refill=False)
    pump.fill(pump.c + optL("GF", L, 6, 4))
    unpack_xr(XU)
    IDF = 104
    a(f"v_and_b32 v{vT0}, 31, v{vL}")
    a(f"v_lshlrev_b32 v{vT1}, 2, v{vHH}")
    a(f"v_sub_u32 v{vT0}, v{vT0}, v{vT1}")
    a(f"v_mov_b32 v{vT3}, 0x3f80")
    for f in range(2):
        for c in range(4):
            base = 16 * f + ((2 * c) & 3) + 8 * (c >> 1)
            a(f"v_subrev_u32 v{vT1}, {base}, v{vT0}")
            a(f"v_cmp_gt_u32 vcc, 2, v{vT1}")
            a(f"v_lshlrev_b32 v{vT1}, 4, v{vT1}")
            a(f"v_lshlrev_b32 v{vT2}, v{vT1}, v{vT3}")
            a(f"v_cndmask_b32 v{IDF+4*f+c}, 0, v{vT2}, vcc")
    SB = 128
    ht_voff(vRS)
    a(f"v_and_b32 v{vT0}, 31, v{vL}")
    a(f"v_lshlrev_b32 v{vT0}, 3, v{vT0}")
    a(f"v_lshl_add_u32 v{vT2}, v{vHH}, 12, v{vT0}")
    a(f"v_mov_b32 v{SB+18}, {fl(1.0+1e-5)}")
    def issue():
        for p in range(8): a(f"buffer_load_dwordx2 {vr(SB+2*p,2)}, v{vT2}, {sr(SWS,4)}, s{sASTR} offen offset:{p*512} sc1")
    if OPT.get(f"SL{0x34+L:x}", 0): a(f"s_sleep {OPT.get(f'SL{0x34+L:x}', 0)}")
    poll(issue, lambda: stats_check(SB), 0x34 + L)
    stamp("p2_stats")
    if optL("SF", L, 3, 3):
        pump.run(pump.i, refill=False)
        pump.fill(pump.c + optL("SF", L, 3, 3))
    stats_sum(SB)
    a(f"v_mul_f32 v{SB}, {fl(-1/512)}, v{SB}")
    a(f"v_mul_f32 v{SB+1}, {fl(1/512)}, v{SB+1}")
    a(f"v_fma_f32 v{SB+1}, -v{SB}, v{SB}, v{SB+1}")
    a(f"v_max_f32 v{SB+1}, 0, v{SB+1}")
    a(f"v_fmaak_f32 v{SB+1}, v{SB+1}, v{SB+18}, {fl(1e-10)}")
    a(f"v_rsq_f32 v{SB+2}, v{SB+1}")
    a(f"v_mul_f32 v{SB}, v{SB}, v{SB+2}")
    HP_ = 112
    for f in range(2):
        for j in range(4*f, 4*f+4):
            pk("fma", XU+2*j, vr(XU+2*j,2), vr(SB+2,2), vr(SB,2), hi=[1,0,0])
    for f in range(2):
        for j in range(4*f, 4*f+4):
            a(f"v_cvt_pk_bf16_f32 v{HP_+j}, v{XU+2*j}, v{XU+2*j+1}")
        mfma(vr(ACC,16), vr(HP_+4*f,4), vr(IDF+4*f,4), "0" if f == 0 else vr(ACC,16))
    for f in range(2):
        for j in range(4): a(f"v_cvt_pk_bf16_f32 v{ACC+16+4*f+j}, v{ACC+8*f+2*j}, v{ACC+8*f+2*j+1}")
        a(f"buffer_store_dwordx4 {vr(ACC+16+4*f,4)}, v{vRS}, {sr(SWS,4)}, s{sAHTW} offen offset:{2048*f} sc1")
    touches(L, 5)
    stamp(f"p2_{L}")

RING = 96; AUX = 144; NRH = 12
vR1, vR2, vR3, vRA = vT0, vT1, vT2, vRS
LKH = opt("LKH", 10)
class Half:
    def __init__(self, kind, hf, g0):
        self.kind, self.hf, self.g0 = kind, hf, g0
        self.nks, self.srot, self.sbase = (32, sROT1, sAHTR) if kind == 1 else (28, sROT2, sAUR)
        self.vA, self.vC = (vTA, MA + 1) if kind == 1 else (vTB, MA + 2)
        self.vMX = MA
        self.ids = {}; self.cid = None
    def rb(self, s): return RING + ((self.g0 + s) % NRH) * 4
    def LD(self, s):
        if s == 0: a(f"s_lshl_b32 s{sSO}, s{self.srot}, 11")
        elif s & 1 == 0:
            a(f"s_add_u32 s{sSO}, s{sSO}, 4096")
            a(f"s_cmp_eq_u32 s{sSO}, {self.nks*2048}")
            a(f"s_cselect_b32 s{sSO}, 0, s{sSO}")
        self.ids[s] = a(f"buffer_load_dwordx4 {vr(self.rb(s),4)}, v{self.vA}, {sr(SWS,4)}, s{sSO} offen offset:{(s&1)*2048+self.hf*1024} sc1")
    def window(self):
        for s in range(LKH): self.LD(s)
    def can_issue(self):
        off = 2048 + 1024 + 512 + 252 if self.kind == 1 else self.hf * 1024 + 1020
        self.cid = a(f"buffer_load_dword v{vT3}, v{self.vC}, {sr(SWS,4)}, s{self.sbase} offen offset:{off} sc1")
    def can_check(self): a(f"v_cmp_eq_u32 vcc, -1, v{vT3}")
    def MF(self, s, acc):
        A0 = 32 + 32 * self.hf
        wf = wreg(self.kind, s, 4 * acc, 4); af = vr(self.rb(s), 4)
        c = "0" if s == 0 else vr(A0 + 16 * acc, 16)
        A_, B_ = (wf, af) if self.kind == 1 else (af, wf)
        mfma(vr(A0+16*acc,16), A_, B_, c)
    def steps(self, redo, nxt=None, hook=None, force=True):
        n = self.nks
        a(f"v_mov_b32 v{self.vMX}, 0")
        for s in range(n):
            if hook: hook(s, 0)
            a.wait(vm=self.ids[s])
            self.MF(s, 1)
            if s + LKH < n: self.LD(s + LKH)
            elif nxt is not None:
                if s + LKH == n and nxt.kind == 2: nxt.can_issue()
                nxt.LD(s + LKH - n)
            if s & 1: a(f"v_max3_u32 v{self.vMX}, v{self.vMX}, v{self.rb(s-1)}, v{self.rb(s)}")
            self.MF(s, 0)
            if hook: hook(s, 1)
        verify(self.vMX, redo, force=force)
    def run(self, nxt=None, hook=None):
        lab = a.newlabel("PLAIN"); back = a.newlabel("BACK")
        OOL.append((self, nxt, lab, back))
        self.steps(lab, nxt, hook)
        a.label(back)
    def scr(self, k):
        if self.hf == 0: return 0, k * 2048
        if k < 2: return 1, SCR + k * 2048
        return 0, 6144
    def writes(self):
        A0 = 32 + 32 * self.hf
        for k in (1, 2, 0):
            src = (A0 + 8, A0 + 16, A0 + 24)[k]
            area, o = self.scr(k)
            r = (vR1, vR2, vR3)[k]
            if area == 1:
                a(f"v_lshl_add_u32 v{AUX+10+k}, v{r}, 1, v{AUX+9}"); r = AUX + 10 + k
            for q in range(2): a(f"ds_write_b128 v{r}, {vr(src+4*q,4)} offset:{o+q*1024}")
    def reads(self):
        D = 64 - 32 * self.hf
        if self.hf == 1: a(f"v_lshl_add_u32 v{AUX+10}, v{vRA}, 1, v{AUX+9}")
        a.wait_lg_all()
        a("s_barrier")
        ids = {}
        for q in range(2):
            for k in range(3):
                area, o = self.scr(k)
                ids[(q, k)] = a(f"ds_read_b128 {vr(D+8*k+4*q,4)}, v{AUX+10 if area else vRA} offset:{o+q*1024}")
        A0 = 32 + 32 * self.hf
        for q in range(2):
            a.wait(lg=ids[(q, 1)])
            for j in (0, 2): pk("add", D+4*q+j, vr(D+4*q+j,2), vr(D+8+4*q+j,2))
            a.wait(lg=ids[(q, 2)])
            for j in (0, 2): pk("add", A0+4*q+j, vr(A0+4*q+j,2), vr(D+16+4*q+j,2))
            for j in (0, 2): pk("add", A0+4*q+j, vr(A0+4*q+j,2), vr(D+4*q+j,2))
    def woven(self, D):
        A0 = 32 + 32 * self.hf
        ops = []
        ids = {}
        wl = a.lg - 1
        def bar():
            if self.hf == 1: a(f"v_lshl_add_u32 v{AUX+10}, v{vRA}, 1, v{AUX+9}")
            a.wait(lg=wl); a("s_barrier")
        ops.append(bar)
        def rd(q, k):
            area, o = self.scr(k)
            ids[(q, k)] = a(f"ds_read_b128 {vr(D+8*k+4*q,4)}, v{AUX+10 if area else vRA} offset:{o+q*1024}")
        for q in range(2):
            for k in range(3): ops.append(lambda q=q, k=k: rd(q, k))
        ops.append(None); ops.append(None); ops.append(None)
        for q in range(2):
            for k in range(3):
                for j in range(4):
                    def ad(q=q, k=k, j=j):
                        a.wait(lg=ids[(q, k)])
                        a(f"v_add_f32 v{A0+4*q+j}, v{A0+4*q+j}, v{D+8*k+4*q+j}")
                    ops.append(ad)
        return ops
    def late_check(self, code):
        go = a.newlabel("GO")
        a.wait(vm=self.cid)
        self.can_check()
        force_fail("FRC")
        a(f"s_cbranch_vccz {go}")
        st = (a.vm, a.vm_done, a.lg, a.lg_done, dict(self.ids), self.cid, list(a.hist))
        poll(self.can_issue, self.can_check, code)
        self.window()
        a("s_waitcnt vmcnt(0)")
        a.vm, a.vm_done, a.lg, a.lg_done, self.ids, self.cid, a.hist = st
        a.label(go)
OOL = []
def mix_setup():
    a(f"v_add_u32 v{vTA}, s{sAHTR}, v{vL16}")
    a(f"v_min_u32 v{vT0}, 31, v{vL}")
    a(f"v_lshrrev_b32 v{vT1}, 1, v{vT0}")
    a(f"v_and_b32 v{vT0}, 1, v{vT0}")
    a(f"v_lshlrev_b32 v{vT0}, 8, v{vT0}")
    a(f"v_lshl_add_u32 v{MA+1}, v{vT1}, 12, v{vT0}")
    a(f"s_lshl_b32 s{sT0}, s{sKH}, 8")
    a(f"v_xor_b32 v{vTB}, s{sT0}, v{vL16}")
    a(f"v_add_u32 v{vTB}, s{sAUR}, v{vTB}")
    a(f"v_min_u32 v{MA+2}, 27, v{vL}")
    a(f"v_lshlrev_b32 v{MA+2}, 11, v{MA+2}")
    for acc, r in ((1, vR1), (2, vR2), (3, vR3)):
        a(f"s_xor_b32 s{sT0}, s{sW}, {acc}")
        a(f"s_lshl_b32 s{sT0}, s{sT0}, 13")
        a(f"v_add_u32 v{r}, s{sT0}, v{vL16}")
    a(f"s_lshl_b32 s{sT0}, s{sW}, 13")
    a(f"v_add_u32 v{vRA}, s{sT0}, v{vL16}")
    a(f"v_sub_u32 v{AUX+9}, {L_A}, v{vL16}")

def p34(L):
    a.c(f"======== P3 layer {L}")
    B1R = AUX
    pump.run(pump.i, refill=True)
    pump.run(32)
    a.wait_lg_all()
    if L == 1: a("s_barrier")
    pump.setup(2, L, extra=optL("XB", L, 0, 8))
    pump.run(optL("V2", L, 5, 0), refill=False)
    pump.fill(pump.c + optL("V2F", L, 0, 8))
    assert pump.c <= R2
    if L == 0: a("s_barrier")
    for j in range(4):
        a(f"v_lshlrev_b32 v{B1R+2*j}, 16, v{152+j}")
        a(f"v_and_b32 v{B1R+2*j+1}, 0xffff0000, v{152+j}")
    mix_setup()
    K1 = -2.0 * 0.7978845608028654 * LOG2E
    a(f"v_mov_b32 v{AUX+8}, {fl(K1)}")
    SPX = optL("SPX", L, 1, 1)
    h3a = Half(1, 0, 0); h3b = Half(1, 1, 32); h4a = Half(2, 0, 64); h4b = Half(2, 1, 92)
    stamp("p3_delta")
    idle = a.newlabel("P3IDLE"); join = a.newlabel("P3JOIN")
    pst = (pump.i, pump.c, dict(pump.vid), dict(pump.lid))
    a(f"s_cmp_eq_u32 s{sP3}, 7")
    a(f"s_cbranch_scc1 {idle}")
    IDN = optL("IDT", L, 18, 0)
    ntail = optL("V2T", L, 0, 0); nepi = optL("V2E", L, 6, 3)
    def gelu_store(hf):
        A0 = 32 + 32 * hf; T = A0 + 16
        for q in range(4): pk("mul", T+2*q, vr(A0+2*q,2), vr(A0+2*q,2))
        for q in range(4): pk("fma", T+2*q, vr(T+2*q,2), sr(sT2,2), vr(AUX+8,2), hi=[1,0,0])
        for q in range(4): pk("mul", T+2*q, vr(T+2*q,2), vr(A0+2*q,2))
        for i in range(8): a(f"v_exp_f32 v{T+i}, v{T+i}")
        for q in range(4): pk("add", T+2*q, vr(T+2*q,2), "1.0", hi=[1,0])
        for i in range(8): a(f"v_rcp_f32 v{T+i}, v{T+i}")
        for q in range(4): pk("mul", A0+2*q, vr(A0+2*q,2), vr(T+2*q,2))
        for q in range(4): a(f"v_cvt_pk_bf16_f32 v{T+8+q}, v{A0+2*q}, v{A0+2*q+1}")
        ws_store4(T + 8, sAUW, 1024 * hf)
    with cond():
        a(f"s_mov_b32 s{sT2}, s{sGK}")
        spec(h3a.can_issue, h3a.can_check, h3a.window, 0x50 + L, a.newlabel("SREDO"))
        stamp("canary")
        h3a.run(nxt=h3b)
        stamp("gemm_a")
        h3a.writes()
        pump.fill(pump.i + nepi)
        for q in range(4): pk("add", 32+2*q, vr(32+2*q,2), vr(B1R+2*q,2))
        h3a.reads()
        gelu_store(0)
        stamp("epi_a")
        i0 = pump.i
        def hk(s, k):
            if k == 1 and s + LKH >= 32 and (s & 1) and pump.i < i0 + ntail: pump.fill(pump.i + 1)
        h3b.run(nxt=h4a if SPX else None, hook=hk)
        assert ntail <= 5
        stamp("gemm_b")
        h3b.writes()
        n2 = pump.i
        nmid = pump.i
        if optL("EB", L, 1, 0): pump.run(pump.i if optL("EB", L, 1, 0) == 2 else min(R2, pump.i), refill=False, tmp=(AUX + 14, AUX + 15))
        cact = pump.c
        pump.fill(pump.i + optL("V2E2", L, 4, 3))
        nact = pump.i; n2 = nact - n2
        for q in range(4): pk("add", 64+2*q, vr(64+2*q,2), vr(B1R+2*q,2))
        h3b.reads()
        gelu_store(1)
        if SPX: h4a.late_check(0x60 + L)
        a(f"s_branch {join}")
    a.label(idle)
    pump.i, pump.c, pump.vid, pump.lid = pst
    if IDN:
        a(f"v_lshrrev_b32 v{RING}, 2, v{vL}")
        a(f"v_lshlrev_b32 v{RING}, 12, v{RING}")
        a(f"v_and_b32 v{RING+1}, 3, v{vL}")
        a(f"v_lshl_add_u32 v{RING}, v{RING+1}, 7, v{RING}")
        a(f"s_bfe_u32 s{sT0}, s{sWI}, 0x20002")
        a(f"s_mul_i32 s{sT0}, s{sT0}, {28*65536}")
        a(f"s_and_b32 s{sT1}, s{sB}, 7")
        a(f"s_lshl_b32 s{sT1}, s{sT1}, 9")
        a(f"s_add_u32 s{sT0}, s{sT0}, s{sT1}")
        a(f"v_add_u32 v{RING}, s{sT0}, v{RING}")
        a(f"s_add_u32 s{sT1}, s{sW}, s{sROT2}")
        a(f"s_add_u32 s{sT1}, s{sT1}, {28 - IDN}")
        for k in range((IDN + 3) // 4):
            a(f"s_sub_u32 s{sT2}, s{sT1}, 28")
            a(f"s_cselect_b32 s{sT1}, s{sT1}, s{sT2}")
            a(f"s_lshl_b32 s{sT2}, s{sT1}, 16")
            a(f"buffer_load_dword v31, v{RING}, {sr(SW2,4)}, s{sT2} offen")
            a(f"s_add_u32 s{sT1}, s{sT1}, 4")
    nlate = n2 if SPX else 0
    pump.fill(nmid)
    if SPX:
        poll(h4a.can_issue, h4a.can_check, 0x5e)
        h4a.window()
    pump.run(cact, refill=False, tmp=(AUX + 14, AUX + 15))
    pump.fill(nact)
    a.label(join)
    a.hist = []
    stamp(f"p3_{L}")
    a.c(f"======== P4 layer {L}")
    if L == 0:
        set_poi(64)
        tile_poison(64, sAX2W, 0, 2048)
        tile_poison(64, sAPQW, PQ[1] - PQ[0], 1024)
        kv_poison(64, 1)
    cinit = pst[1]
    NKT = opt("NKT", 10)
    def kvdma(j):
        if j == 0: a(f"s_add_u32 s{sT3}, s{sAWQT}, s{sWA}")
        if j & 3 == 0:
            a(f"s_add_u32 m0, s{sWA}, {j*1024}")
            if j: a(f"s_add_u32 s{sT3}, s{sT3}, 4096")
        return a(f"buffer_load_dwordx4 v{vL16}, {sr(SWS,4)}, s{sT3} offen offset:{(j&3)*1024} sc1 lds")
    if SPX:
        WV = opt("WV", 2); AH = optL("AH", L, 3, 4)
        pump.run(min(pump.i, pump.c + optL("PRE", L, 0, 0)), tmp=(AUX, AUX + 1))
        landed = pump.i; c0 = pump.c
        def hk(s, k):
            if k == 1:
                lim = max(min(landed, c0 + WV * (s + 1)), min(28, s + AH))
                pump.run(lim, tmp=(AUX, AUX + 1), first=(s == 0))
            if k == 0 and s >= cinit:
                assert pump.c > s
                if not opt("NOPUMP", 0): a.wait(lg=pump.lid[s])
        h4a.run(nxt=h4b, hook=hk)
    else:
        pump.run(28, tmp=(AUX, AUX + 1))
        stamp("p4_w2")
        a.wait_lg_all()
        spec(h4a.can_issue, h4a.can_check, h4a.window, 0x60 + L, a.newlabel("SREDO"))
        stamp("canary")
        h4a.run(nxt=h4b)
    stamp("gemm_a")
    def resid(hf):
        A0 = 32 + 32 * hf; XU = AUX
        for j in range(4):
            a(f"v_lshlrev_b32 v{XU+2*j}, 16, v{XR+4*hf+j}")
            a(f"v_and_b32 v{XU+2*j+1}, 0xffff0000, v{XR+4*hf+j}")
        for q in range(4): pk("add", XU+2*q, vr(XU+2*q,2), vr(vB2-1,2), lo=[0,1], hi=[1,1])
        for q in range(4): pk("add", A0+2*q, vr(A0+2*q,2), vr(XU+2*q,2))
    def out(hf):
        A0 = 32 + 32 * hf
        for q in range(4): a(f"v_cvt_pk_bf16_f32 v{XR+4*hf+q}, v{A0+2*q}, v{A0+2*q+1}")
        if L == 0: ws_store4(XR + 4 * hf, sAX2W, 2048 * hf)
        else:
            a(f"v_permlane32_swap_b32 v{XR+4*hf}, v{XR+4*hf+2}")
            a(f"v_permlane32_swap_b32 v{XR+4*hf+1}, v{XR+4*hf+3}")
            a(f"buffer_store_dwordx4 {vr(XR+4*hf,4)}, v{vOUT}, {sr(SOUT,4)}, 0 offen offset:{64*hf}")
    wv = []
    if optL("WE4", L, 1, 1):
        h4a.writes()
        wv = h4a.woven(40)
        XU = AUX
        pre = []
        for j in range(4):
            pre.append(lambda j=j: a(f"v_lshlrev_b32 v{XU+2*j}, 16, v{XR+j}"))
            pre.append(lambda j=j: a(f"v_and_b32 v{XU+2*j+1}, 0xffff0000, v{XR+j}"))
        for j in range(8): pre.append(lambda j=j: a(f"v_add_f32 v{32+j}, v{32+j}, v{vB2}"))
        for j in range(8): wv.append(lambda j=j: a(f"v_add_f32 v{32+j}, v{32+j}, v{XU+j}"))
        wv = pre[:8] + wv[:1] + wv[1:7] + pre[8:] + wv[10:]
        wv.append(lambda: out(0))
    else:
        h4a.writes(); resid(0); h4a.reads(); out(0)
    h4b.late_check(0x62 + L)
    stamp("epi_a")
    kc = [0]
    WPS = opt("WPS", 2)
    def hk(s, k):
        for _ in range(WPS if k == 1 else WPS - 1):
            if wv:
                f = wv.pop(0)
                if f: f()
        if L == 0 and k == 1 and s + LKH >= 28 and kc[0] < NKT:
            kvdma(kc[0]); kc[0] += 1
    h4b.run(hook=hk)
    assert not wv
    stamp("gemm_b")
    if L == 0 and opt("XE", 0) == 1: xa_start()
    h4b.writes()
    if L == 0 and opt("XE", 0) == 2: xa_start()
    if L == 0 and opt("KE", 2):
        while kc[0] < 12: kvdma(kc[0]); kc[0] += 1
    resid(1); h4b.reads()
    if L == 0 and opt("KE", 2) == 2:
        while kc[0] < 16: G["kvlast"] = kvdma(kc[0]); kc[0] += 1
    out(1)
    if L == 0:
        row_stats_publish(sAS2W, 32)
        for j in range(kc[0], 16): G["kvlast"] = kvdma(j)
    stamp(f"p4_{L}")

def emit_ool():
    for h, nxt, lab, back in OOL:
        a.label(lab)
        a.hist = []
        a.vm_done = a.vm
        h.window()
        h.steps(lab, force=False)
        if nxt is not None:
            if nxt.kind == 2: nxt.can_issue()
            nxt.window()
            a("s_waitcnt vmcnt(0)")
        a("s_nop 15")
        a(f"s_branch {back}")

prologue()
for L in range(2):
    p1(L); p2(L); p34(L)
finish()
a.label("L_END")
emit_ool()
a.label("L_EXIT")
a("s_endpgm")

hdr = open(f"ref.s").read().split("; Override launch")[0]
out = hdr + f"""; @launch grid=(256,1,1) block=(256,1,1) lds={LDS_BYTES}
.amdgcn_target "amdgcn-amd-amdhsa--gfx950"
.text
.globl {NAME}_kernel
.p2align 8
.type {NAME}_kernel,@function
{NAME}_kernel:
""" + a.text() + f""".section .rodata,"a"
.p2align 6
.amdhsa_kernel {NAME}_kernel
  .amdhsa_next_free_vgpr 512
  .amdhsa_next_free_sgpr 102
  .amdhsa_accum_offset 256
  .amdhsa_group_segment_fixed_size 0
  .amdhsa_kernarg_size 88
  .amdhsa_user_sgpr_count 2
  .amdhsa_user_sgpr_kernarg_segment_ptr 1
  .amdhsa_system_sgpr_workgroup_id_x 1
  .amdhsa_float_denorm_mode_32 3
.end_amdhsa_kernel
"""
outp = [x for x in sys.argv[1:] if x.endswith(".s")]
open(outp[0], "w").write(out)
if DIAG: open(outp[0] + ".stamps", "w").write("\n".join(stamp_names))
```

```python
import sys, struct
from contextlib import contextmanager
from asmlib import Asm, vr, ar, sr

NAME = "interleave_layers__linear_attn_block__mixer_token_mlp__prompt"
DIAG = "--diag" in sys.argv
OPT = {}
for a_ in sys.argv:
    if a_.startswith("-D"):
        k_, v_ = a_[2:].split("="); OPT[k_] = int(v_)
def opt(k, d): return OPT.get(k, d)
def optL(k, L, d0, d1): return OPT.get(f"{k}_{L}", (d0, d1)[L])
def f2u(x): return struct.unpack("<I", struct.pack("<f", x))[0]
def fl(x): return "0x%08x" % f2u(x)
FULL = (1 << 64) - 1
LOG2E = 1.4426950408889634

KVF = [0x2000, 0xC0000]; KVP = [0x8000, 0xC6000]; ST = [0x166000, 0x1A6000]; ST2 = 0x1E6000
SELFP = 0xC0000
PQ = [0x400000, 0x600000]; HT = [0x800000, 0xA00000]; U = [0xC00000, 0xE00000]; X2 = 0x1000000
WQT = 0x1200000
TS = 0x1400000
DUMP = 0x1500000
ERRS = 0x1520000
NONCE = 0x0; TAGQ = 0x1540000
WS_BYTES = 268435456
L_A = 32768; L_B = 98304; LDS_BYTES = 163840
NS = 6; SCR = 12288
sW = 3
SX, SWQKV, SWO, SW1, SW2, SWS, SOUT, SDBG, SB1, SB2, SCODE = 4, 8, 12, 16, 20, 24, 28, 32, 36, 40, 44
sST, sDT, sRB, sHP, sDT3, sFT, sP3, sRH, sKH, sWB, sTO, sONES = 48, 49, 50, 51, 52, 53, 54, 55, 56, 57, 58, 59
sEPS6 = 60; sB = 61
sT0, sT1, sT2, sT3, sT4, sT5 = 62, 63, 64, 65, 66, 67
sSO = 68; sW1K = 69; sTS = 70
sL2E = 74; sWA = 75; sROTX = 76; sROT1 = 77; sROT2 = 78; sRED = 79; sWOFF = 80; sKB = 81; sXC = 82; sWI = 83
sKA = 84
sAKVP, sAPQW, sAPQR, sAKVF, sASTW, sASTR, sAHTW, sAHTR, sAUW, sAUR, sAX2W, sAX2R, sAS2W, sAS2R, sAWQT, sGK = range(84, 100)
sDUM = 100; sNON = 101; sRX0 = 73
vL, vL16, vTA, vTB, vT0, vT1, vT2, vT3 = 0, 1, 2, 3, 4, 5, 6, 7
XR = 8
CKP, CVP, CQP, vB2, vRS, vHH, vOUT, vTSV = 16, 17, 18, 19, 20, 21, 22, 23
vWA, vWB, vWTA, vWTB = 24, 25, 26, 27
MA = 28

a = Asm()
stamp_names = []
G = {}

@contextmanager
def cond():
    st = (a.vm, a.vm_done, a.lg, a.lg_done); h = list(a.hist)
    yield
    a.vm, a.vm_done, a.lg, a.lg_done = st[0], min(st[1], st[0]), st[2], min(st[3], st[2])
    a.hist = h

def stamp(name):
    if not DIAG: return
    if "--lite" in sys.argv and name not in ("start", "end", "p4_0"): return
    k = len(stamp_names); stamp_names.append(name)
    if opt("CYC", 0) and name not in ("start", "end"): a(f"s_memtime {sr(sTS,2)}")
    else: a(f"s_memrealtime {sr(sTS,2)}")
    if name in ("start", "end"): a(f"s_memtime s[0:1]") if name == "end" else a(f"s_memtime {sr(sTS+2,2)}")
    a("s_waitcnt lgkmcnt(0)"); a.lg_done = a.lg
    a(f"v_writelane_b32 v{vTSV}, s{sTS}, {k}")
    if name in ("start", "end"): a(f"v_writelane_b32 v{vTSV}, s{sTS+2 if name == 'start' else 0}, {62 if name == 'start' else 63}")

def srd(base, ptr, nbytes):
    a(f"s_mov_b32 s{base}, s{ptr}")
    a(f"s_and_b32 s{base+1}, s{ptr+1}, 0xffff")
    a(f"s_mov_b32 s{base+2}, {nbytes:#x}")
    a(f"s_mov_b32 s{base+3}, 0x20000")

def set_exec(mask):
    if mask == FULL: a("s_mov_b64 exec, -1")
    elif mask <= 64: a(f"s_mov_b64 exec, {mask}")
    else:
        a(f"s_mov_b32 exec_lo, {mask & 0xffffffff:#x}"); a(f"s_mov_b32 exec_hi, {mask >> 32:#x}")

def lin(dst, terms, const=0):
    first = True
    for r, m in terms:
        t = dst if first else sT5
        if m == 1 and not first: a(f"s_add_u32 s{dst}, s{dst}, s{r}"); continue
        if m & (m - 1) == 0: a(f"s_lshl_b32 s{t}, s{r}, {m.bit_length()-1}")
        else: a(f"s_mul_i32 s{t}, s{r}, {m}")
        if not first: a(f"s_add_u32 s{dst}, s{dst}, s{sT5}")
        first = False
    if const: a(f"s_add_u32 s{dst}, s{dst}, {const:#x}")

def timeout_path(code):
    a(f"s_mov_b32 s{sTO}, 0")
    if DIAG:
        a(f"v_mov_b32 v{vT3}, {code}")
        a(f"s_mov_b32 s{sT5}, {ERRS:#x}")
        a(f"buffer_store_dword v{vT3}, off, {sr(SWS,4)}, s{sT5}")
        a("s_waitcnt vmcnt(0)")

def poll(issue, check, code, pre=None):
    top = a.newlabel("POLL"); done = a.newlabel("PDONE"); chk = a.newlabel("PCHK")
    if pre is not None:
        a.wait(vm=pre)
        st = (a.vm, a.vm_done)
        a(f"s_branch {chk}")
    a.label(top)
    issue()
    a.wait_vm_all(force=True)
    if pre is not None: a.label(chk)
    check()
    a(f"s_cbranch_vccz {done}")
    h = list(a.hist); vmst = (a.vm, a.vm_done)
    if opt("PS", 2) and not (code == 0x20 and opt("A1NS", 1)): a(f"s_sleep {opt('PS', 2)}")
    a(f"s_sub_u32 s{sTO}, s{sTO}, 1")
    a(f"s_cbranch_scc0 {top}")
    timeout_path(code)
    a.label(done)
    a.hist = h; a.vm, a.vm_done = vmst
    if pre is not None: a.vm, a.vm_done = st

def poll1(addr, code, tmp=None, tag=False):
    cmp = (lambda r: a(f"v_cmp_ne_u32 vcc, s{sNON}, v{r}")) if tag else (lambda r: a(f"v_cmp_eq_u32 vcc, -1, v{r}"))
    if tmp is None or not opt("PP", 0):
        poll(lambda: a(f"buffer_load_dword v{vT3}, {addr} sc1"), lambda: cmp(vT3), code)
        return
    top = a.newlabel("PP"); done = a.newlabel("PPD")
    a(f"buffer_load_dword v{vT3}, {addr} sc1")
    a(f"s_nop {opt('PPN', 15)}")
    a.label(top)
    for r, o in ((vT3, tmp), (tmp, vT3)):
        a(f"buffer_load_dword v{o}, {addr} sc1")
        a("s_waitcnt vmcnt(1)")
        cmp(r)
        a(f"s_cbranch_vccz {done}")
    h = list(a.hist)
    a(f"s_sub_u32 s{sTO}, s{sTO}, 2")
    a(f"s_cbranch_scc0 {top}")
    timeout_path(code)
    a.label(done)
    a.hist = h
    a.vm -= 1
    a.vm_done = a.vm - 1

SLD = {}
SPD = {0x50: 1, 0x51: 1, 0x60: 1, 0x61: 1, 0x36: 1, 0x38: 1, 0x39: 1, 0x40: 1}
def spec(can_issue, can_check, window, code, redo, on=True):
    go = a.newlabel("GO")
    d = OPT.get(f"SL{code:x}", SLD.get(code, 0))
    if d: a(f"s_sleep {d}")
    on = OPT.get(f"SP{code:x}", SPD.get(code, 0))
    if on:
        can_issue(); cid = a.vm - 1
        window()
        a.wait(vm=cid)
        can_check()
        force_fail("FRC")
        a(f"s_cbranch_vccz {go}")
        st = (a.vm, a.vm_done, list(a.hist))
        poll(can_issue, can_check, code)
        a.label(redo)
        window()
        a.label(go)
        a.hist = []
        a("s_nop 0")
    else:
        poll(can_issue, can_check, code)
        a.label(redo)
        window()

force_n = [0]
def force_fail(kind):
    if not opt(kind, 0): return
    k = force_n[0] % 32; force_n[0] += 1
    l = a.newlabel("FF")
    a(f"s_bitcmp1_b32 s2, {k}")
    a(f"s_cbranch_scc1 {l}")
    a(f"s_bitset1_b32 s2, {k}")
    a("s_mov_b64 vcc, 1")
    a.label(l)

def verify(vMX, redo, force=True):
    ok = a.newlabel("VOK")
    a(f"v_cmp_eq_u32 vcc, -1, v{vMX}")
    if force: force_fail("FRV")
    a(f"s_cbranch_vccz {ok}")
    h = list(a.hist)
    a("s_waitcnt vmcnt(0)")
    a(f"s_sub_u32 s{sTO}, s{sTO}, 64")
    a(f"s_cbranch_scc0 {redo}")
    a(f"s_mov_b32 s{sTO}, 0")
    a.label(ok)
    a.hist = h

def finish():
    if opt("AMP", -1) >= 0:
        lp = a.newlabel("AMPL"); sk = a.newlabel("AMPS")
        stamp("pre_end")
        a(f"s_cmp_lg_u32 s{sB}, 77")
        a(f"s_cbranch_scc1 {sk}")
        a(f"v_readlane_b32 s{sT0}, v{vTSV}, 0")
        a(f"v_readlane_b32 s{sT1}, v{vTSV}, {opt('AMP', 0)}")
        a(f"s_memrealtime s[70:71]")
        a("s_waitcnt lgkmcnt(0)")
        a(f"s_sub_u32 s{sT1}, s{sT1}, s{sT0}")
        a(f"s_lshl_b32 s{sT1}, s{sT1}, 2")
        a(f"s_add_u32 s{sT1}, s70, s{sT1}")
        a.label(lp)
        a(f"s_memrealtime s[70:71]")
        a("s_waitcnt lgkmcnt(0)")
        a(f"s_sub_u32 s{sT2}, s70, s{sT1}")
        a(f"s_cmp_lt_i32 s{sT2}, 0")
        a(f"s_cbranch_scc1 {lp}")
        a.label(sk)
    if DIAG:
        a(f"v_writelane_b32 v{vTSV}, s{sTO}, 61")
        stamp("end")
        lin(sT0, [(sB, 1024), (sW, 256)], TS)
        a(f"v_lshlrev_b32 v{vT0}, 2, v{vL}")
        a(f"buffer_store_dword v{vTSV}, v{vT0}, {sr(SWS,4)}, s{sT0} offen")
    a("s_endpgm")

def pk(op, d, x, y, z=None, hi=None, lo=None):
    ops = [x, y] + ([z] if z is not None else [])
    m = ""
    if lo: m += " op_sel:[" + ",".join(map(str, lo)) + "]"
    if hi: m += " op_sel_hi:[" + ",".join(map(str, hi)) + "]"
    a(f"v_pk_{op}_f32 {vr(d,2)}, " + ", ".join(ops) + m)

def mfma(d, A, B, C):
    a(f"v_mfma_f32_32x32x16_bf16 {d}, {A}, {B}, {C}")

def ws_store4(reg, soff, off=0): return a(f"buffer_store_dwordx4 {vr(reg,4)}, v{vL16}, {sr(SWS,4)}, s{soff} offen offset:{off} sc1")

def tr_base(dst_a, dst_b, sel64, sel32, region):
    a(f"v_bfe_u32 v{vT0}, v{vL}, 2, 2")
    a(f"v_lshl_add_u32 v{vT0}, v{vHH}, 2, v{vT0}")
    a(f"v_lshlrev_b32 v{dst_a}, 7, v{vT0}")
    a(f"v_bfe_u32 v{vT1}, v{vL}, 3, 1")
    a(f"v_lshl_add_u32 v{dst_a}, v{vT1}, 6, v{dst_a}")
    a(f"v_bfe_u32 v{vT1}, v{vL}, 4, 1")
    a(f"v_lshl_add_u32 v{dst_a}, v{vT1}, 5, v{dst_a}")
    a(f"v_and_b32 v{vT1}, 3, v{vL}")
    a(f"v_lshl_add_u32 v{dst_a}, v{vT1}, 3, v{dst_a}")
    for sel, sh in ((sel64, 6), (sel32, 5)):
        if sel is not None:
            a(f"s_lshl_b32 s{sT5}, s{sel}, {sh}")
            a(f"v_xor_b32 v{dst_a}, s{sT5}, v{dst_a}")
    a(f"v_add_u32 v{dst_a}, {region}, v{dst_a}")
    a(f"v_xor_b32 v{dst_b}, 64, v{dst_a}")

def dma_voff(dst, dst2, pitch, scol):
    a(f"v_lshrrev_b32 v{vT0}, 3, v{vL}")
    a(f"v_mul_u32_u24 v{dst}, {pitch}, v{vT0}")
    a(f"v_bfe_u32 v{vT1}, v{vL}, 4, 1")
    a(f"v_lshlrev_b32 v{vT1}, 2, v{vT1}")
    a(f"v_and_b32 v{vT0}, 7, v{vL}")
    a(f"v_xor_b32 v{vT0}, v{vT0}, v{vT1}")
    a(f"v_lshl_add_u32 v{dst}, v{vT0}, 4, v{dst}")
    a(f"v_add_u32 v{dst}, s{scol}, v{dst}")
    a(f"v_add_u32 v{dst2}, {8*pitch-1024}, v{dst}")

R1, R2 = 16, 11
def wreg(kind, t, j, n):
    r, base = (R1, 0) if kind == 1 else (R2, R1 * 8)
    if t < r: return ar(base + 8 * t + j, n)
    t -= r
    if t < 5: return ar(216 + 8 * t + j, n)
    return vr(160 + 8 * (t - 5) + j, n)

class Pump:
    def setup(self, kind, L, extra=0):
        self.kind = kind
        self.pitch, self.srd, self.n = (3584, SW1, 32) if kind == 1 else (4096, SW2, 28)
        self.t0 = 0 if L == 0 else (R1 if kind == 1 else R2)
        self.extra = extra
        self.ns = opt("NS1", 6) if kind == 1 else NS
        self.i = self.t0; self.c = self.t0; self.vid = {}; self.lid = {}
        a.c(f"pump setup W{kind}")
        a(f"s_lshl_b32 s{sT5}, s{sKH}, 5")
        a(f"v_xor_b32 v{vWTA}, s{sT5}, v{vWTA}")
        a(f"v_xor_b32 v{vWTB}, s{sT5}, v{vWTB}")
        lin(sT4, [(sFT if kind == 1 else sST, 128), (sW, self.n * 16 * self.pitch)])
        dma_voff(vWA, vWB, self.pitch, sT4)
        rot = sROT1 if kind == 1 else sROT2
        a(f"s_add_u32 s{sT5}, s{rot}, {self.t0}")
        a(f"s_sub_u32 s{sWOFF}, s{sT5}, {self.n}")
        a(f"s_cselect_b32 s{sWOFF}, s{sT5}, s{sWOFF}")
        a(f"s_mul_i32 s{sWOFF}, s{sWOFF}, {16*self.pitch}")
    def place(self, t):
        k = t - self.t0
        if k < self.extra: return ("B", k * 2048)
        return ("A", ((k - self.extra) % self.ns) * 2048)
    def prev_user(self, t):
        p = t - self.ns
        return p if p - self.t0 >= self.extra else None
    def room(self, lag=0):
        p = self.prev_user(self.i)
        return p is None or p < self.c - lag
    def issue1(self):
        t = self.i
        if opt("NOPUMP", 0):
            self.vid[t] = None; self.i += 1; return
        p = self.prev_user(t)
        if p is not None: a.wait(lg=self.lid[p])
        reg, o = self.place(t)
        a(f"s_add_u32 m0, s{sWB if reg == 'B' else sWA}, {o}")
        if t > self.t0:
            a(f"s_add_u32 s{sWOFF}, s{sWOFF}, {16*self.pitch}")
            a(f"s_cmp_eq_u32 s{sWOFF}, {self.n*16*self.pitch}")
            a(f"s_cselect_b32 s{sWOFF}, 0, s{sWOFF}")
        a(f"buffer_load_dwordx4 v{vWA}, {sr(self.srd,4)}, s{sWOFF} offen lds")
        self.vid[t] = a(f"buffer_load_dwordx4 v{vWB}, {sr(self.srd,4)}, s{sWOFF} offen offset:1024 lds")
        self.i += 1
    def fill(self, upto=None):
        lim = self.n if upto is None else min(self.n, upto)
        while self.i < lim and self.room(): self.issue1()
    def run(self, target, refill=True, tmp=(vT0, vT1), first=True):
        target = min(target, self.n)
        haveB = not first
        while self.c < target:
            t = self.c
            if t >= self.i: self.issue1()
            if opt("NOPUMP", 0):
                self.c += 1; continue
            reg, o = self.place(t)
            ta, tb = vWTA, vWTB
            if reg == "B":
                ta, tb = tmp
                if not haveB:
                    a(f"v_add_u32 v{ta}, 65536, v{vWTA}"); a(f"v_add_u32 v{tb}, 65536, v{vWTB}"); haveB = True
            a.wait(vm=self.vid[t])
            a(f"ds_read_b64_tr_b16 {wreg(self.kind,t,0,2)}, v{ta} offset:{o}")
            a(f"ds_read_b64_tr_b16 {wreg(self.kind,t,2,2)}, v{ta} offset:{o+1024}")
            a(f"ds_read_b64_tr_b16 {wreg(self.kind,t,4,2)}, v{tb} offset:{o}")
            self.lid[t] = a(f"ds_read_b64_tr_b16 {wreg(self.kind,t,6,2)}, v{tb} offset:{o+1024}")
            self.c += 1
            lim = self.n if refill else target
            if self.i < lim and self.room(lag=1): self.issue1()
        if refill: self.fill()
pump = Pump()

def prologue():
    a(f"s_cmp_ge_u32 s2, 256")
    a(f"s_cbranch_scc1 L_EXIT")
    a(f"s_load_dwordx16 {sr(sKA,16)}, s[0:1], 0")
    a(f"s_load_dwordx4 {sr(SCODE,4)}, s[0:1], 64")
    a(f"s_load_dwordx2 s[100:101], s[0:1], 80")
    a(f"s_mov_b32 s{sB}, s2")
    if opt("FRV", 0) or opt("FRC", 0): a("s_mov_b32 s2, 0")
    a(f"v_lshrrev_b32 v{vT0}, 6, v0")
    a(f"v_and_b32 v{vL}, 63, v0")
    a(f"v_readfirstlane_b32 s{sW}, v{vT0}")
    a(f"v_lshlrev_b32 v{vL16}, 4, v{vL}")
    a(f"v_lshrrev_b32 v{vHH}, 5, v{vL}")
    if opt("CODEPF", 1) == 2:
        a(f"s_getpc_b64 {sr(SB1,2)}")
        a.label("L_PC")
        a(f"s_and_b32 s{SB1+1}, s{SB1+1}, 0xffff")
        a(f"s_mov_b32 s{SB1+2}, L_END - L_PC")
        a(f"s_mov_b32 s{SB1+3}, 0x20000")
        a(f"s_lshr_b32 s{sT0}, s{sB}, 3")
        a(f"s_lshl_b32 s{sT0}, s{sT0}, 2")
        a(f"s_add_u32 s{sT0}, s{sT0}, s{sW}")
        a(f"s_lshl_b32 s{sT0}, s{sT0}, 10")
        a(f"buffer_load_dwordx4 {ar(252,4)}, v{vL16}, {sr(SB1,4)}, s{sT0} offen")
    if DIAG: a(f"v_mov_b32 v{vTSV}, 0")
    stamp("start")
    X_, I_ = sT0, sT1
    a(f"s_and_b32 s{X_}, s{sB}, 7")
    a(f"s_lshr_b32 s{I_}, s{sB}, 3")
    a(f"s_lshr_b32 s{sT2}, s{I_}, 3")
    a(f"s_and_b32 s{sDT}, s{I_}, 7")
    a(f"s_and_b32 s{sRB}, s{X_}, 3")
    a(f"s_lshl_b32 s{sRB}, s{sRB}, 2")
    a(f"s_add_u32 s{sRB}, s{sRB}, s{sT2}")
    a(f"s_lshr_b32 s{sHP}, s{X_}, 2")
    a(f"s_lshl_b32 s{sHP}, s{sHP}, 3")
    a(f"s_add_u32 s{sHP}, s{sHP}, s{sDT}")
    a(f"s_lshr_b32 s{sROTX}, s{sDT}, 1")
    a(f"s_add_u32 s{sROTX}, s{sROTX}, s{sT2}")
    a(f"s_and_b32 s{sROTX}, s{sROTX}, 3")
    a(f"s_lshl_b32 s{sROTX}, s{sROTX}, 1")
    a(f"s_and_b32 s{sT3}, s{I_}, 1")
    a(f"s_add_u32 s{sROTX}, s{sROTX}, s{sT3}")
    a(f"s_and_b32 s{sRX0}, s{sROTX}, {opt('RXM', 6)}")
    a(f"s_lshl_b32 s{sW1K}, s{sW}, 10")
    a(f"s_lshl_b32 s{sWB}, s{sW}, 14")
    a(f"s_add_u32 s{sWA}, s{sWB}, {L_A}")
    a(f"s_add_u32 s{sWB}, s{sWB}, {L_B}")

def roles2():
    X_, I_ = sT0, sT1
    a(f"s_and_b32 s{X_}, s{sB}, 7")
    a(f"s_lshr_b32 s{I_}, s{sB}, 3")
    a(f"s_lshr_b32 s{sT2}, s{I_}, 3")
    a(f"s_lshl_b32 s{sST}, s{X_}, 2")
    a(f"s_add_u32 s{sST}, s{sST}, s{sT2}")
    a(f"s_lshr_b32 s{sT3}, s{X_}, 1")
    a(f"s_mul_i32 s{sT3}, s{sT3}, 7")
    a(f"s_and_b32 s{sT4}, s{X_}, 1")
    a(f"s_lshl_b32 s{sT5}, s{sT4}, 2")
    a(f"s_add_u32 s{sFT}, s{sT3}, s{sT5}")
    a(f"s_add_u32 s{sFT}, s{sFT}, s{sT2}")
    a(f"s_and_b32 s{sP3}, s{I_}, 3")
    a(f"s_add_u32 s{sT5}, s{sT5}, s{sP3}")
    a(f"s_add_u32 s{sKB}, s{sT3}, 3")
    a(f"s_cmp_lt_u32 s{I_}, 24")
    a(f"s_cselect_b32 s{sFT}, s{sFT}, s{sKB}")
    a(f"s_cselect_b32 s{sDT3}, s{sDT}, s{sT5}")
    a(f"s_mul_i32 s{sT4}, s{sT4}, 3")
    a(f"s_add_u32 s{sXC}, s{sT3}, s{sT4}")
    a(f"s_lshl_b32 s{sROT1}, s{X_}, 2")
    a(f"s_and_b32 s{sT3}, s{I_}, 3")
    a(f"s_lshr_b32 s{sP3}, s{I_}, 2")
    a(f"s_lshl_b32 s{sWI}, s{I_}, 2")
    a(f"s_add_u32 s{sWI}, s{sWI}, s{sW}")
    a(f"s_lshl_b32 s{sRED}, s{X_}, 2")
    a(f"s_add_u32 s{sRED}, s{sRED}, s{sT3}")
    a(f"s_lshl_b32 s{sRED}, s{sRED}, 1")
    a(f"s_add_u32 s{sRED}, s{sRED}, s{sW}")
    a(f"s_cmp_lt_u32 s{sW}, 2")
    a(f"s_cselect_b32 s{sRED}, s{sRED}, 99")
    a(f"s_cmp_eq_u32 s{sP3}, 7")
    a(f"s_cselect_b32 s{sRED}, s{sRED}, 99")
    a(f"s_mul_i32 s{sROT2}, s{X_}, 7")
    a(f"s_lshr_b32 s{sROT2}, s{sROT2}, 2")
    a(f"s_lshl_b32 s{sROT2}, s{sROT2}, 1")
    if opt("MAP", 0):
        a(f"s_and_b32 s{sT2}, s{X_}, 1")
        a(f"s_lshl_b32 s{sT2}, s{sT2}, 2")
        a(f"s_and_b32 s{sT3}, s{I_}, 3")
        a(f"s_lshr_b32 s{sT5}, s{X_}, 1")
        a(f"s_add_u32 s{sT4}, s{sP3}, s{sT3}")
        a(f"s_and_b32 s{sT4}, s{sT4}, {opt('MROT', 1)}")
        if opt("MAP", 0) & 1:
            a(f"s_add_u32 s{sDT3}, s{sT2}, s{sT3}")
            a(f"s_mul_i32 s{sFT}, s{sT5}, 7")
            a(f"s_add_u32 s{sFT}, s{sFT}, s{sP3}")
            a(f"s_lshl_b32 s{sROT1}, s{sT4}, 4")
        if opt("MAP", 0) & 2:
            a(f"s_add_u32 s{sDT}, s{sT2}, s{sT3}")
            a(f"s_lshl_b32 s{sST}, s{sT5}, 3")
            a(f"s_add_u32 s{sST}, s{sST}, s{sP3}")
            a(f"s_mul_i32 s{sROT2}, s{sT4}, 14")
    a(f"s_lshr_b32 s{sRH}, s{sW}, 1")
    a(f"s_and_b32 s{sKH}, s{sW}, 1")
    a(f"s_mov_b32 s{sTO}, 400000")
    a(f"s_mov_b32 s{sONES}, 0x3f803f80")
    a(f"s_mov_b32 s{sEPS6}, {fl(1e-6)}")
    a(f"s_mov_b32 s{sL2E}, {fl(LOG2E)}")

def late_srds():
    srd(SWO, sKA + 4, 512 * 512 * 2)
    srd(SW1, sKA + 8, 2048 * 1792 * 2)
    srd(SB1, sKA + 10, 1792 * 2)
    srd(SW2, sKA + 12, 1792 * 2048 * 2)
    srd(SB2, sKA + 14, 2048 * 2)
    srd(SOUT, SCODE, 2048 * 512 * 2)
    srd(SDBG, SCODE + 2, 256)

def code_prefetch():
    if opt("CODEPF", 1) == 1:
        a(f"s_getpc_b64 {sr(SCODE,2)}")
        a.label("L_PC")
        a(f"s_and_b32 s{SCODE+1}, s{SCODE+1}, 0xffff")
        a(f"s_mov_b32 s{SCODE+2}, L_END - L_PC")
        a(f"s_mov_b32 s{SCODE+3}, 0x20000")
        a(f"s_lshl_b32 s{sT0}, s{sWI}, 10")
        a(f"buffer_load_dwordx4 {ar(252,4)}, v{vL16}, {sr(SCODE,4)}, s{sT0} offen")
    srd(SCODE, SW1, 2048 * 1792 * 2)
    a(f"s_cmp_eq_u32 s{sP3}, 7")
    a(f"s_cselect_b32 s{SW1+2}, 0, s{SW1+2}")

def addresses():
    lin(sAKVP, [(sHP, 64 * 640), (sRB, 4 * 640), (sW, 640)], KVP[0])
    lin(sAPQW, [(sRB, 4 * 32768), (sW, 32768), (sHP, 2048)], PQ[0])
    lin(sAPQR, [(sST, 65536), (sRH, 32768), (sKH, 16384)], PQ[0])
    lin(sAKVF, [(sKH, 16 * 768)], KVF[0])
    lin(sASTW, [(sST, 8192), (sDT, 1024), (sKH, 512), (sRH, 256)], ST[0])
    lin(sASTR, [(sST, 8192), (sRH, 256)], ST[0])
    lin(sAHTW, [(sDT, 262144), (sST, 8192), (sRH, 4096), (sKH, 256)], HT[0])
    lin(sAHTR, [(sDT3, 262144), (sW, 65536)], HT[0])
    lin(sAUW, [(sDT3, 229376), (sFT, 8192), (sRH, 4096), (sKH, 2048)], U[0])
    a(f"s_cmp_eq_u32 s{sP3}, 7")
    a(f"s_cselect_b32 s{sAUW}, {WS_BYTES:#x}, s{sAUW}")
    lin(sAUR, [(sDT, 229376), (sW, 57344)], U[0])
    lin(sAX2W, [(sST, 65536), (sRH, 32768), (sDT, 4096), (sKH, 1024)], X2)
    lin(sAX2R, [(sRB, 4 * 32768), (sW, 32768)], X2)
    a(f"s_add_u32 s{sAS2W}, s{sASTW}, {ST2 - ST[0]:#x}")
    lin(sAS2R, [(sRB, 2 * 8192), (sRH, 8192), (sKH, 256)], ST2)
    lin(sAWQT, [(sHP, 98304)], WQT)
    a(f"s_mov_b32 s{sGK}, {fl(-2.0 * 0.7978845608028654 * LOG2E * 0.044715)}")

def next_layer_addresses():
    for r, d in ((sAKVP, KVP[1] - KVP[0]), (sAPQW, PQ[1] - PQ[0]), (sAPQR, PQ[1] - PQ[0]), (sAKVF, KVF[1] - KVF[0]),
                 (sASTW, ST[1] - ST[0]), (sASTR, ST[1] - ST[0]), (sAHTW, HT[1] - HT[0]), (sAHTR, HT[1] - HT[0]),
                 (sAUW, U[1] - U[0]), (sAUR, U[1] - U[0])):
        a(f"s_add_u32 s{r}, s{r}, {d:#x}")

def kv_poison(P, L):
    r = sAKVP
    if L == 1:
        a(f"s_add_u32 s{sT1}, s{sAKVP}, {KVP[1]-KVP[0]:#x}"); r = sT1
    set_exec((1 << 40) - 1)
    ws_store4(P, r)
    a(f"s_mul_i32 s{sT0}, s{sRED}, 384")
    a(f"s_add_u32 s{sT0}, s{sT0}, {KVF[L]:#x}")
    a(f"s_cmp_ge_u32 s{sRED}, 64")
    a(f"s_cselect_b32 s{sT0}, {WS_BYTES:#x}, s{sT0}")
    set_exec((1 << 24) - 1)
    ws_store4(P, sT0)
    set_exec(FULL)
def ht_voff(dst):
    a(f"v_and_b32 v{dst}, 15, v{vL}")
    a(f"v_lshlrev_b32 v{dst}, 4, v{dst}")
    a(f"v_lshl_add_u32 v{dst}, v{vHH}, 9, v{dst}")
    a(f"v_bfe_u32 v{vT0}, v{vL}, 4, 1")
    a(f"v_lshl_add_u32 v{dst}, v{vT0}, 10, v{dst}")
def tile_poison(P, r, delta, step):
    v = vL16
    if r == sAHTW:
        ht_voff(vT1); v = vT1
    if delta:
        a(f"s_add_u32 s{sT0}, s{r}, {delta:#x}"); r = sT0
    for f in range(2): a(f"buffer_store_dwordx4 {vr(P,4)}, v{v}, {sr(SWS,4)}, s{r} offen offset:{step*f} sc1")
def canary_poison(P):
    lines = ((sAHTW, 2048+1024+512+128), (sAUW, 896), (sAUW, 1024+896), (sAHTW, HT[1]-HT[0]+2048+1024+512+128),
             (sAUW, U[1]-U[0]+896), (sAUW, U[1]-U[0]+1024+896), (sAPQW, PQ[1]-PQ[0]+1024+896), (sAX2W, 896))
    a(f"v_lshrrev_b32 v{vT0}, 3, v{vL}")
    for g, (r, d) in enumerate(lines):
        a(f"s_add_u32 s{sT0}, s{r}, {d:#x}")
        if g == 0: a(f"v_mov_b32 v{vT1}, s{sT0}")
        else:
            a(f"v_mov_b32 v{vT2}, s{sT0}")
            a(f"v_cmp_eq_u32 vcc, {g}, v{vT0}")
            a(f"v_cndmask_b32 v{vT1}, v{vT1}, v{vT2}, vcc")
    a(f"v_and_b32 v{vT0}, 7, v{vL}")
    a(f"v_lshl_add_u32 v{vT1}, v{vT0}, 4, v{vT1}")
    a(f"buffer_store_dwordx4 {vr(P,4)}, v{vT1}, {sr(SWS,4)}, 0 offen sc1")
def st_poison(P):
    lin(sT0, [(sB, 3072), (sW, 768)], ST[0])
    set_exec((1 << 48) - 1)
    ws_store4(P, sT0)
    set_exec(FULL)
def set_poi(P):
    for i in range(4): a(f"v_mov_b32 v{P+i}, -1")

def misc_loads():
    lin(sT0, [(sST, 64), (sRH, 32)])
    a(f"v_and_b32 v{vT0}, 31, v{vL}")
    a(f"v_add_u32 v{vT0}, s{sT0}, v{vT0}")
    a(f"v_lshlrev_b32 v{vT1}, 1, v{vT0}")
    a(f"buffer_load_ushort v{vB2}, v{vT1}, {sr(SB2,4)}, 0 offen")
    a(f"v_lshlrev_b32 v{vT0}, 10, v{vT0}")
    a(f"v_lshl_add_u32 v{vOUT}, v{vHH}, 4, v{vT0}")
    lin(sT0, [(sDT, 128), (sKH, 32)])
    a(f"v_add_u32 v{vOUT}, s{sT0}, v{vOUT}")
    a(f"buffer_load_dwordx4 {vr(XR,4)}, v{vOUT}, {sr(SX,4)}, 0 offen")
    a(f"buffer_load_dwordx4 {vr(XR+4,4)}, v{vOUT}, {sr(SX,4)}, 0 offen offset:64")

def touch(srdn, rows_per_wave, lg, pitch, scol_emit, dst):
    n = rows_per_wave << lg
    scol_emit()
    a(f"v_min_u32 v{vT0}, {n-1}, v{vL}")
    a(f"v_lshrrev_b32 v{vT1}, {lg}, v{vT0}")
    a(f"v_mul_u32_u24 v{vT1}, {pitch}, v{vT1}")
    a(f"v_and_b32 v{vT0}, {(1<<lg)-1}, v{vT0}")
    a(f"v_lshl_add_u32 v{vT0}, v{vT0}, 7, v{vT1}")
    a(f"s_mul_i32 s{sT5}, s{sWI}, {rows_per_wave*pitch}")
    a(f"s_add_u32 s{sT4}, s{sT4}, s{sT5}")
    a(f"buffer_load_dword {dst}, v{vT0}, {sr(srdn,4)}, s{sT4} offen")
def touch_w1(dst): touch(SCODE, 16, 2, 3584, lambda: a(f"s_lshl_b32 s{sT4}, s{sXC}, 7"), dst)
def touch_w2(dst):
    def c2():
        a(f"s_and_b32 s{sT4}, s{sB}, 7"); a(f"s_lshl_b32 s{sT4}, s{sT4}, 9")
    touch(SW2, 16, 2, 4096, c2, dst)
def touch_w2h(dst, t0):
    a(f"s_lshr_b32 s{sT4}, s{sWI}, 3")
    a(f"s_add_u32 s{sT4}, s{sT4}, s{sROT2}")
    if t0: a(f"s_add_u32 s{sT4}, s{sT4}, {t0}")
    a(f"s_sub_u32 s{sT5}, s{sT4}, 28")
    a(f"s_cselect_b32 s{sT4}, s{sT4}, s{sT5}")
    a(f"s_and_b32 s{sT5}, s{sWI}, 3")
    a(f"s_mul_i32 s{sT5}, s{sT5}, 28")
    a(f"s_add_u32 s{sT4}, s{sT4}, s{sT5}")
    a(f"s_lshl_b32 s{sT4}, s{sT4}, 1")
    a(f"s_bfe_u32 s{sT5}, s{sWI}, 0x10002")
    a(f"s_add_u32 s{sT4}, s{sT4}, s{sT5}")
    a(f"s_lshl_b32 s{sT4}, s{sT4}, 15")
    a(f"s_and_b32 s{sT5}, s{sB}, 7")
    a(f"s_lshl_b32 s{sT5}, s{sT5}, 9")
    a(f"s_add_u32 s{sT4}, s{sT4}, s{sT5}")
    a(f"s_cmp_eq_u32 s{sP3}, 7")
    a(f"s_cselect_b32 s{sT4}, 0x10000000, s{sT4}")
    a(f"v_min_u32 v{vT0}, 31, v{vL}")
    a(f"v_lshrrev_b32 v{vT1}, 2, v{vT0}")
    a(f"v_and_b32 v{vT0}, 3, v{vT0}")
    a(f"v_lshlrev_b32 v{vT0}, 7, v{vT0}")
    a(f"v_lshl_add_u32 v{vT0}, v{vT1}, 12, v{vT0}")
    a(f"buffer_load_dword {dst}, v{vT0}, {sr(SW2,4)}, s{sT4} offen")
def touch_w1h(dst, t0):
    a(f"s_lshr_b32 s{sT4}, s{sWI}, 3")
    a(f"s_add_u32 s{sT4}, s{sT4}, s{sROT1}")
    if t0: a(f"s_add_u32 s{sT4}, s{sT4}, {t0}")
    a(f"s_and_b32 s{sT4}, s{sT4}, 31")
    a(f"s_and_b32 s{sT5}, s{sWI}, 3")
    a(f"s_lshl_b32 s{sT5}, s{sT5}, 5")
    a(f"s_add_u32 s{sT4}, s{sT4}, s{sT5}")
    a(f"s_lshl_b32 s{sT4}, s{sT4}, 1")
    a(f"s_bfe_u32 s{sT5}, s{sWI}, 0x10002")
    a(f"s_add_u32 s{sT4}, s{sT4}, s{sT5}")
    a(f"s_mul_i32 s{sT4}, s{sT4}, {8*3584}")
    a(f"s_lshl_b32 s{sT5}, s{sXC}, 7")
    a(f"s_add_u32 s{sT4}, s{sT4}, s{sT5}")
    a(f"v_min_u32 v{vT0}, 31, v{vL}")
    a(f"v_lshrrev_b32 v{vT1}, 2, v{vT0}")
    a(f"v_and_b32 v{vT0}, 3, v{vT0}")
    a(f"v_lshlrev_b32 v{vT0}, 7, v{vT0}")
    a(f"v_mul_u32_u24 v{vT1}, 3584, v{vT1}")
    a(f"v_add_u32 v{vT0}, v{vT1}, v{vT0}")
    a(f"buffer_load_dword {dst}, v{vT0}, {sr(SCODE,4)}, s{sT4} offen")
def touch_wo(dst): touch(SWO, 4, 3, 1024, lambda: a(f"s_mov_b32 s{sT4}, 0"), dst)
def touches(L, where):
    dst = "a25" if where in (1, 2, 3, 6, 7, 8) else None
    if optL("T1", L, 8, 0) == where: touch_w1(dst + "2" if dst else "v31")
    if optL("T1A", L, 0, 0) == where: touch_w1h(dst + "2" if dst else "v31", 0)
    if optL("T1B", L, 0, 0) == where: touch_w1h(dst + "5" if dst else "v31", 16)
    if optL("T2", L, 0, 0) == where: touch_w2(dst + "3" if dst else "v31")
    if optL("T2H", L, 9, 0) == where: touch_w2h(dst + "3" if dst else "v31", 0)
    if optL("T2G", L, 0, 0) == where: touch_w2h(dst + "3" if dst else "v31", 14)

def split2(dst, src, t0):
    a(f"v_cvt_pk_bf16_f32 v{t0}, v{src}, v{src}")
    a(f"v_and_b32 v{t0}, 0xffff0000, v{t0}")
    a(f"v_sub_f32 v{dst}, v{src}, v{t0}")
    a(f"v_cvt_pk_bf16_f32 v{dst}, v{t0}, v{dst}")

def stats_to_frags(S, Q, RA):
    a(f"v_mul_f32 v{S}, {fl(-1/512)}, v{S}")
    a(f"v_mul_f32 v{Q}, {fl(1/512)}, v{Q}")
    a(f"v_cmp_eq_u32 vcc, 0, v{vHH}")
    a(f"v_fma_f32 v{Q}, -v{S}, v{S}, v{Q}")
    a(f"v_max_f32 v{Q}, 0, v{Q}")
    a(f"v_add_f32 v{Q}, {fl(1e-5)}, v{Q}")
    a(f"v_rsq_f32 v{vRS}, v{Q}")
    a(f"v_cndmask_b32 v{S}, 0, v{S}, vcc")
    a(f"v_cvt_pk_bf16_f32 v{MA}, v{S}, v{S}")
    a(f"v_cndmask_b32 v{Q}, 0, v{vRS}, vcc")
    a(f"v_and_b32 v{vT0}, 0xffff0000, v{MA}")
    a(f"v_sub_f32 v{S}, v{S}, v{vT0}")
    a(f"v_cvt_pk_bf16_f32 v{MA+1}, v{S}, v{S}")
    split2(RA, Q, vT0)

def stats_check(SB):
    a(f"v_max3_u32 v{vT3}, v{SB+1}, v{SB+3}, v{SB+5}")
    a(f"v_max3_u32 v{vT3}, v{vT3}, v{SB+7}, v{SB+9}")
    a(f"v_max3_u32 v{vT3}, v{vT3}, v{SB+11}, v{SB+13}")
    a(f"v_max_u32 v{vT3}, v{vT3}, v{SB+15}")
    a(f"v_cmp_eq_u32 vcc, -1, v{vT3}")
def stats_sum(SB):
    for n in (4, 2, 1):
        for p in range(n): pk("add", SB+2*p, vr(SB+2*p,2), vr(SB+2*(p+n),2))
    a(f"v_mov_b32 v{SB+2}, v{SB}")
    a(f"v_mov_b32 v{SB+3}, v{SB+1}")
    a(f"v_permlane32_swap_b32 v{SB}, v{SB+2}")
    a(f"v_permlane32_swap_b32 v{SB+1}, v{SB+3}")
    pk("add", SB, vr(SB,2), vr(SB+2,2))

A1B = 128
def a1_issue():
    a(f"s_mov_b32 s{sT3}, s{sKB}")
    for p in range(16):
        a(f"buffer_load_dwordx4 {vr(A1B+4*p,4)}, v{vL16}, {sr(SWS,4)}, s{sT3} offen offset:{(p&1)*2560} sc1")
        if p & 1 and p < 15: a(f"s_add_u32 s{sT3}, s{sT3}, {2*2560}")
def a1_early(L):
    skip = a.newlabel("NOA1E")
    a(f"s_cmp_ge_u32 s{sRED}, 64")
    a(f"s_cbranch_scc1 {skip}")
    with cond():
        a(f"s_lshr_b32 s{sKB}, s{sRED}, 2")
        a(f"s_mul_i32 s{sKB}, s{sKB}, {16*2560}")
        a(f"s_and_b32 s{sT2}, s{sRED}, 3")
        a(f"s_mul_i32 s{sT2}, s{sT2}, 640")
        a(f"s_add_u32 s{sKB}, s{sKB}, s{sT2}")
        a(f"s_add_u32 s{sKB}, s{sKB}, {KVP[L]:#x}")
        if opt("A1C", 0):
            a(f"v_and_b32 v{vT1}, 15, v{vL}")
            a(f"v_mul_u32_u24 v{vT1}, 2560, v{vT1}")
            a(f"buffer_load_dword v{vT3}, v{vT1}, {sr(SWS,4)}, s{sKB} offen offset:544 sc1")
        else:
            set_exec((1 << 35) - 1)
            a1_issue()
            set_exec(FULL)
    a.label(skip)
def a1_check():
    B = A1B
    a(f"v_max3_u32 v{vT3}, v{B}, v{B+4}, v{B+8}")
    a(f"v_min3_u32 v{vT1}, v{B}, v{B+4}, v{B+8}")
    for p in range(3, 15, 2):
        a(f"v_max3_u32 v{vT3}, v{vT3}, v{B+4*p}, v{B+4*p+4}")
        a(f"v_min3_u32 v{vT1}, v{vT1}, v{B+4*p}, v{B+4*p+4}")
    a(f"v_max_u32 v{vT3}, v{vT3}, v{B+60}")
    a(f"v_min_u32 v{vT1}, v{vT1}, v{B+60}")
    a(f"v_cmp_eq_u32 vcc, -1, v{vT3}")
    a(f"v_readlane_b32 s{sT0}, v{vT3}, 34")
    a(f"v_readlane_b32 s{sT1}, v{vT1}, 34")
    a(f"s_xor_b32 s{sT0}, s{sT0}, s{sNON}")
    a(f"s_xor_b32 s{sT1}, s{sT1}, s{sNON}")
    a(f"s_or_b32 s{sT0}, s{sT0}, s{sT1}")
    a(f"s_or_b32 vcc_lo, vcc_lo, s{sT0}")
    a(f"s_or_b64 vcc, vcc, vcc")
def a1_mid(younger):
    skip = a.newlabel("NOA1M"); ok = a.newlabel("A1MOK")
    a(f"s_cmp_ge_u32 s{sRED}, 64")
    a(f"s_cbranch_scc1 {skip}")
    with cond():
        set_exec((1 << 35) - 1)
        a(f"s_waitcnt vmcnt({younger})")
        a1_check()
        a(f"s_cbranch_vccz {ok}")
        a1_issue()
        a.label(ok)
        set_exec(FULL)
    a.label(skip)
def a1(L, younger):
    a.c("======== A1 reducer")
    skip = a.newlabel("NOA1")
    a(f"s_cmp_ge_u32 s{sRED}, 64")
    a(f"s_cbranch_scc1 {skip}")
    with cond():
        B = A1B
        a(f"s_mul_i32 s{sT2}, s{sRED}, 384")
        a(f"s_add_u32 s{sT2}, s{sT2}, {KVF[L]:#x}")
        a(f"v_lshlrev_b32 v{vT2}, 3, v{vL}")
        set_exec((1 << 35) - 1)
        def check():
            a(f"v_max3_u32 v{vT3}, v{B}, v{B+4}, v{B+8}")
            a(f"v_min3_u32 v{vT1}, v{B}, v{B+4}, v{B+8}")
            for p in range(3, 15, 2):
                a(f"v_max3_u32 v{vT3}, v{vT3}, v{B+4*p}, v{B+4*p+4}")
                a(f"v_min3_u32 v{vT1}, v{vT1}, v{B+4*p}, v{B+4*p+4}")
            a(f"v_max_u32 v{vT3}, v{vT3}, v{B+60}")
            a(f"v_min_u32 v{vT1}, v{vT1}, v{B+60}")
            a(f"v_cmp_eq_u32 vcc, -1, v{vT3}")
            a(f"v_readlane_b32 s{sT0}, v{vT3}, 34")
            a(f"v_readlane_b32 s{sT1}, v{vT1}, 34")
            a(f"s_xor_b32 s{sT0}, s{sT0}, s{sNON}")
            a(f"s_xor_b32 s{sT1}, s{sT1}, s{sNON}")
            a(f"s_or_b32 s{sT0}, s{sT0}, s{sT1}")
            a(f"s_or_b32 vcc_lo, vcc_lo, s{sT0}")
            a(f"s_or_b64 vcc, vcc, vcc")
        a.vm_done = min(a.vm_done, a.vm - younger - 1)
        if opt("A1C", 0):
            poll(lambda: a(f"buffer_load_dword v{vT3}, v{vT1}, {sr(SWS,4)}, s{sKB} offen offset:544 sc1"),
                 lambda: a(f"v_cmp_ne_u32 vcc, s{sNON}, v{vT3}"), 0x21, pre=a.vm - younger - 1)
            poll(a1_issue, check, 0x20)
        else:
            poll(a1_issue, check, 0x20, pre=a.vm - younger - 1)
        n = 16
        while n > 1:
            n //= 2
            for p in range(n):
                for j in (0, 2): pk("add", B+4*p+j, vr(B+4*p+j,2), vr(B+4*(p+n)+j,2))
        a(f"v_cvt_pk_bf16_f32 v{B+4}, v{B}, v{B+1}")
        a(f"v_cvt_pk_bf16_f32 v{B+5}, v{B+2}, v{B+3}")
        a(f"v_mov_b32_dpp v{B+6}, v{B+4} quad_perm:[1,1,3,3] row_mask:0xf bank_mask:0xf")
        a(f"v_mov_b32_dpp v{B+7}, v{B+5} quad_perm:[1,1,3,3] row_mask:0xf bank_mask:0xf")
        a(f"v_writelane_b32 v{B+4}, s{sNON}, 34")
        set_exec(0x555555555555)
        a(f"buffer_store_dwordx4 {vr(B+4,4)}, v{vT2}, {sr(SWS,4)}, s{sT2} offen sc1")
        set_exec(FULL)
        a("s_nop 1")
    a.label(skip)
    stamp("a1")

XF = 128
def KS(s): return 4 * ((s & 15) >> 1) + (s & 1) + 2 * (s >> 4)
def XFR(L, s): return XF + 4 * (((s + 16) & 31) if L == 1 else s)
xid1 = {}
def xa_XL(s):
    jj = s & 15
    if jj == 0: a(f"s_mov_b32 s{sSO}, s{sT4}")
    elif jj == 8: a(f"s_xor_b32 s{sSO}, s{sT4}, 16384")
    elif jj & 1 == 0: a(f"s_add_u32 s{sSO}, s{sSO}, 4096")
    xid1[s] = a(f"buffer_load_dwordx4 {vr(XFR(1,s),4)}, v{vL16}, {sr(SWS,4)}, s{sSO} offen offset:{(KS(s)&3)*1024} sc1")
vXC = MA + 1
def xa_ci(): return a(f"buffer_load_dword v{vT3}, v{vXC}, {sr(SWS,4)}, s{sAX2R} offen offset:1020 sc1")
def xa_start():
    a(f"s_and_b32 s{sT5}, s{sROTX}, {opt('XROT', 1)}")
    a(f"s_lshl_b32 s{sT5}, s{sT5}, 14")
    a(f"s_add_u32 s{sT4}, s{sAX2R}, s{sT5}")
    a(f"v_and_b32 v{vXC}, 15, v{vL}")
    a(f"v_lshrrev_b32 v{MA+3}, 1, v{vXC}")
    a(f"v_and_b32 v{vXC}, 1, v{vXC}")
    a(f"v_lshlrev_b32 v{vXC}, 10, v{vXC}")
    a(f"v_lshl_add_u32 v{vXC}, v{MA+3}, 12, v{vXC}")
    G["xcid"] = xa_ci()
    for s in range(opt("LA1", 8)): xa_XL(s)
def p1(L):
    ACCK, ACCV, RR = 32, 48, 64
    VV, PK, T1 = 80, 88, 96
    S0, S1, Q0, Q1 = 80, 81, 82, 83
    CF = 84
    CFV, CFQ, RA = 112, 116, 120
    vTQ, vTV = 124, 125
    vW, vXA, vXB = 126, 127, 96
    vCQ, vCV = 97, 98
    vOA, vOB = vTA, vTB
    vTQ2, vTV2 = vTA, vTB
    vKW, vKR = 92, 93
    XA = 88
    vKW2, vKR2 = vT2, 127
    POI = 100
    WFR = 216; NWF = 4; ONESF = 248; CG = 200; CK, CV, CQ = 152, 168, 184
    a.c(f"======== P1 layer {L}")
    xid = {}; wid = {}
    toff = 256
    def addr_setup():
        if L == 0:
            a(f"v_bfe_u32 v{vT0}, v{vL}, 2, 2")
            a(f"v_lshl_add_u32 v{vT0}, v{vHH}, 3, v{vT0}")
            a(f"v_lshlrev_b32 v{vTQ}, 6, v{vT0}")
            a(f"v_bfe_u32 v{vT1}, v{vL}, 4, 1")
            a(f"v_lshl_add_u32 v{vTQ}, v{vT1}, 5, v{vTQ}")
            a(f"v_and_b32 v{vT1}, 3, v{vL}")
            a(f"v_lshl_add_u32 v{vTQ}, v{vT1}, 3, v{vTQ}")
        else:
            a(f"s_and_b32 s{sT5}, s{sROTX}, {opt('XROT', 1)}")
            a(f"s_lshl_b32 s{sT5}, s{sT5}, 14")
            a(f"v_add_u32 v{vTQ}, s{sT5}, v{vL16}")
            a(f"v_xor_b32 v{vTQ2}, 16384, v{vTQ}")
            a(f"v_add_u32 v{vTV2}, 65536, v{vTQ2}")
        a(f"v_add_u32 v{vTV}, 65536, v{vTQ}")
        for i in range(4): a(f"v_accvgpr_write_b32 a{ONESF+i}, s{sONES}")
        for r in ([MA + 2, MA + 3] if L == 0 else []) + [RA + 1, RA + 2, RA + 3, CF + 2, CF + 3, CFV + 2, CFV + 3, CFQ + 2, CFQ + 3]: a(f"v_mov_b32 v{r}, 0")
    def kv_addr():
        a(f"v_bfe_u32 v{vT0}, v{vL}, 4, 1")
        a(f"v_lshl_add_u32 v{vT0}, v{vT0}, 1, v{vHH}")
        a(f"v_mul_u32_u24 v{vT0}, 17, v{vT0}")
        a(f"v_and_b32 v{vT1}, 15, v{vL}")
        a(f"v_add_u32 v{vT0}, v{vT0}, v{vT1}")
        a(f"v_lshlrev_b32 v{vT0}, 5, v{vT0}")
        a(f"v_add_u32 v{vKW2}, s{sWA}, v{vT0}")
        a(f"s_mul_i32 s{sT0}, s{sW}, 544")
        a(f"s_add_u32 s{sT0}, s{sT0}, {L_A + SCR}")
        a(f"v_add_u32 v{vKR2}, s{sT0}, v{vL16}")
    rg = {}
    def RG(s):
        b = WFR + (s % NWF) * 8
        if L == 0:
            o = s * 1024
            a(f"ds_read_b64_tr_b16 {ar(b,2)}, v{vTQ} offset:{32768+o}")
            a(f"ds_read_b64_tr_b16 {ar(b+2,2)}, v{vTQ} offset:{32768+o+toff}")
            a(f"ds_read_b64_tr_b16 {ar(b+4,2)}, v{vTV} offset:{o}")
            rg[s] = a(f"ds_read_b64_tr_b16 {ar(b+6,2)}, v{vTV} offset:{o+toff}")
        else:
            o = (KS(s) & 15) * 1024
            q_, v_ = (vTQ2, vTV2) if KS(s) >= 16 else (vTQ, vTV)
            a(f"ds_read_b128 {ar(b,4)}, v{q_} offset:{32768+o}")
            rg[s] = a(f"ds_read_b128 {ar(b+4,4)}, v{v_} offset:{o}")
    if L == 0:
        a(f"v_lshrrev_b32 v{vT0}, 2, v{vL}")
        a(f"s_lshl_b32 s{sT0}, s{sW}, 4")
        a(f"v_add_u32 v{vT0}, s{sT0}, v{vT0}")
        a(f"v_mul_u32_u24 v{vW}, 3072, v{vT0}")
        a(f"v_and_b32 v{vT0}, 3, v{vL}")
        a(f"v_lshl_add_u32 v{vW}, v{vT0}, 4, v{vW}")
        a(f"s_lshl_b32 s{sT0}, s{sHP}, 6")
        a(f"v_add_u32 v{vW}, s{sT0}, v{vW}")
        lin(sT0, [(sRB, 131072), (sW, 32768)])
        a(f"v_lshrrev_b32 v{vT0}, 3, v{vL}")
        a(f"v_lshlrev_b32 v{vT0}, 10, v{vT0}")
        a(f"v_add_u32 v{vT0}, s{sT0}, v{vT0}")
        a(f"v_and_b32 v{vT1}, 7, v{vL}")
        a(f"v_lshrrev_b32 v{vT2}, 4, v{vL}")
        a(f"v_xor_b32 v{vT1}, v{vT1}, v{vT2}")
        a(f"v_lshl_add_u32 v{vXA}, v{vT1}, 4, v{vT0}")
        a(f"v_xor_b32 v{vXB}, 64, v{vXA}")
        a(f"v_add_u32 v{vXB}, {8192-1024}, v{vXB}")
        a("s_waitcnt lgkmcnt(0)")
        srd(SX, sKA + 0, 2048 * 512 * 2)
        srd(SWQKV, sKA + 2, 512 * 1536 * 2)
        def x_issue(j):
            a(f"s_add_u32 s{sKB}, s{sRX0}, {j}")
            a(f"s_and_b32 s{sKB}, s{sKB}, 7")
            a(f"s_lshl_b32 s{sT1}, s{sKB}, 7")
            a(f"s_add_u32 m0, s{sWB}, {(j&3)*4096}")
            a(f"s_mul_i32 s{sSO}, s{sKB}, {64*3072}")
            a(f"buffer_load_dwordx4 v{vXA}, {sr(SX,4)}, s{sT1} offen lds")
            a(f"buffer_load_dwordx4 v{vXB}, {sr(SX,4)}, s{sT1} offen offset:1024 lds")
            a(f"s_add_u32 m0, s{sWB}, {(j&3)*4096+2048}")
            a(f"s_add_u32 s{sT1}, s{sT1}, 16384")
            a(f"buffer_load_dwordx4 v{vXA}, {sr(SX,4)}, s{sT1} offen lds")
            xid[j] = a(f"buffer_load_dwordx4 v{vXB}, {sr(SX,4)}, s{sT1} offen offset:1024 lds")
        def w_issue(j):
            for seg in (1, 2, 0):
                a(f"s_add_u32 m0, s{sW1K}, {seg*32768 - seg*1024 + j*4096}")
                wid[j] = a(f"buffer_load_dwordx4 v{vW}, {sr(SWQKV,4)}, s{sSO} offen offset:{seg*1024} lds")
        def wo_issue(c):
            for k in range(2):
                j = 2 * c + k
                a(f"s_add_u32 m0, s{sWB}, {j*2048}")
                if j == 0: a(f"s_lshl_b32 s{sSO}, s{sW}, 17")
                else: a(f"s_add_u32 s{sSO}, s{sSO}, 16384")
                a(f"buffer_load_dwordx4 v{vOA}, {sr(SWO,4)}, s{sSO} offen lds")
                G["wo"] = a(f"buffer_load_dwordx4 v{vOB}, {sr(SWO,4)}, s{sSO} offen offset:1024 lds")
        x_issue(0); w_issue(0)
        srd(SWS, 100, WS_BYTES)
        a(f"buffer_load_dword v{vKW}, off, {sr(SWS,4)}, 0 offset:{NONCE} sc1")
        roles2()
        late_srds()
        x_issue(1); w_issue(1)
        touch_wo("a254")
        code_prefetch()
        touches(0, 6)
        for i in range(4): a(f"v_mov_b32 v{POI+i}, -1")
        addresses()
        addr_setup()
        a(f"v_add_u32 v{vCQ}, s{sW1K}, v{vTQ}")
        a(f"v_add_u32 v{vCV}, s{sW1K}, v{vTV}")
        for r in (S0, S1, Q0, Q1): a(f"v_mov_b32 v{r}, 0")
        a(f"v_and_b32 v{vT0}, 31, v{vL}")
        a(f"v_bfe_u32 v{vT1}, v{vL}, 1, 3")
        a(f"v_xor_b32 v{vT1}, v{vT1}, v{vHH}")
        a(f"v_lshlrev_b32 v{vT0}, 7, v{vT0}")
        a(f"v_add_u32 v{vT0}, s{sWB}, v{vT0}")
        for t in range(4):
            a(f"v_xor_b32 v{vT2}, {2*t}, v{vT1}")
            a(f"v_lshl_add_u32 v{XA+t}, v{vT2}, 4, v{vT0}")
        a(f"s_lshl_b32 s{sT4}, s{sDT}, 7")
        dma_voff(vOA, vOB, 1024, sT4)
        tr_base(vWTA, vWTB, sRH, None, f"s{sWA}")
        pump.setup(1, 0)
        SCHED = {0: {0: [2, 3], 1: [4, 5], 2: [6], 3: [7]}, 1: {0: [2], 1: [3, 4], 2: [5, 6], 3: [7]}, 2: {0: [2, 3, 4], 1: [5], 2: [6], 3: [7]},
                 3: {0: [2], 1: [3], 2: [4], 3: [5], 4: [6], 5: [7]}, 4: {0: [2, 3], 1: [4], 2: [5], 3: [6], 4: [7]}}[opt("SCHED", 0)]
        JL = max(SCHED)
        cgid = {}
        def CGr(j):
            o = j * 4096
            a(f"ds_read_b64_tr_b16 {ar(CG,2)}, v{vCQ} offset:{32768+o}")
            a(f"ds_read_b64_tr_b16 {ar(CG+2,2)}, v{vCQ} offset:{32768+o+toff}")
            a(f"ds_read_b64_tr_b16 {ar(CG+4,2)}, v{vCV} offset:{o}")
            a(f"ds_read_b64_tr_b16 {ar(CG+6,2)}, v{vCV} offset:{o+toff}")
            a(f"ds_read_b64_tr_b16 {ar(CG+8,2)}, v{vCQ} offset:{o}")
            cgid[j] = a(f"ds_read_b64_tr_b16 {ar(CG+10,2)}, v{vCQ} offset:{o+toff}")
        def colsum(j):
            a.wait(lg=cgid[j])
            for k, c in enumerate((CK, CV, CQ)):
                mfma(ar(c,16), ar(ONESF,4), ar(CG+4*k,4), "0" if j == 0 else ar(c,16))
        def xreads(j):
            a.wait(vm=xid[j])
            return [a(f"ds_read_b128 {vr(XF+16*j+4*t,4)}, v{XA+t} offset:{(j&3)*4096}") for t in range(4)]
        xr = xreads(0)
        a.wait(vm=wid[0])
        a("s_barrier")
        stamp("p1_first")
        CGr(0); RG(0); RG(1); RG(2)
        colsum(0)
        CPY = 104; CS4 = 96
        initld = None
        for j in range(8):
            for t in range(4):
                a.wait(lg=xr[t])
                for k in range(4 if not opt("XNOD", 0) else 0):
                    r = XF + 16 * j + 4 * t + k
                    a(f"v_dot2_f32_bf16 v{S0+(k&1)}, v{r}, s{sONES}, v{S0+(k&1)}")
                    a(f"v_dot2_f32_bf16 v{Q0+(k&1)}, v{r}, v{r}, v{Q0+(k&1)}")
            if j == 7:
                a(f"s_lshr_b32 s{sT0}, s{sRB}, 1")
                a(f"s_sub_u32 s{sT0}, s{sT0}, s{sRX0}")
                a(f"s_and_b32 s{sT0}, s{sT0}, 7")
                a(f"s_cmp_eq_u32 s{sT0}, 0")
                a(f"s_cselect_b32 s{sT1}, 4096, 0")
                a(f"s_add_u32 s{sT1}, s{sT1}, {L_A}")
                a(f"v_add_u32 v{vT1}, s{sT1}, v{vL16}")
                a(f"v_add_u32 v{vT0}, s{sW1K}, v{vT1}")
                a(f"v_accvgpr_read_b32 v{CS4}, a{CK}")
                a(f"v_accvgpr_read_b32 v{CS4+1}, a{CV}")
                a(f"v_accvgpr_read_b32 v{CS4+2}, a{CQ}")
                cw = a(f"ds_write_b128 v{vT0}, {vr(CS4,4)}")
            for s in range(4 * j, 4 * j + 4):
                t = s & 3
                a.wait(lg=rg[s])
                b = WFR + (s % NWF) * 8
                x = vr(XF + 4 * s, 4)
                mfma(vr(ACCK,16), x, ar(b,4), "0" if s == 0 else vr(ACCK,16))
                if s + 3 < 32: RG(s + 3)
                if t == 1 and j < 7 and not opt("XNOC", 0): CGr(j + 1)
                if t == 2 and j < 7: xr = xreads(j + 1)
                if j == 7 and t == 1:
                    for w in range(4): cr = a(f"ds_read_b128 {vr(RR+4*w,4)}, v{vT1} offset:{1024*w}")
                    a(f"s_lshl_b32 s{sT0}, s{sT0}, 12")
                    a(f"s_and_b32 s{sT1}, s{sRB}, 1")
                    a(f"s_lshl_b32 s{sT1}, s{sT1}, 11")
                    a(f"s_add_u32 s{sT0}, s{sT0}, s{sT1}")
                    a(f"s_min_u32 s{sT2}, s{sW}, 2")
                    a(f"s_lshl_b32 s{sT2}, s{sT2}, 15")
                    a(f"s_add_u32 s{sT0}, s{sT0}, s{sT2}")
                    a(f"v_lshlrev_b32 v{vT1}, 8, v{vHH}")
                    a(f"v_sub_u32 v{vT0}, v{vTQ}, v{vT1}")
                    a(f"v_add_u32 v{vT0}, s{sT0}, v{vT0}")
                    for k in range(4): cp = a(f"ds_read_b64_tr_b16 {vr(CPY+2*k,2)}, v{vT0} offset:{512*k}")
                if j == 7 and t == 2:
                    a.wait(lg=cr)
                    for k in range(3):
                        a(f"v_add_f32 v{RR+k}, v{RR+k}, v{RR+4+k}")
                        a(f"v_add_f32 v{RR+8+k}, v{RR+8+k}, v{RR+12+k}")
                if j == 7 and t == 3:
                    split2(CKP, RR, vT0)
                    split2(CVP, RR + 1, vT1)
                mfma(vr(ACCV,16), x, ar(b+4,4), "0" if s == 0 else vr(ACCV,16))
                if t == 0:
                    if j < 7: a.wait(vm=wid[j + 1])
                    else: a.wait(lg=cw)
                    a("s_barrier")
                    if j == 1:
                        a(f"v_add_u32 v{vKW}, 1, v{vKW}")
                        a(f"v_and_b32 v{vKW}, 0x3fffffff, v{vKW}")
                        a(f"v_or_b32 v{vKW}, 0x40000000, v{vKW}")
                        a(f"v_readfirstlane_b32 s{sNON}, v{vKW}")
                if t <= 2 and j in SCHED and t < len(SCHED[j]):
                    x_issue(SCHED[j][t]); w_issue(SCHED[j][t])
                if t == 1 and j >= 4 and opt("WOP", 1) == 0: wo_issue(j - 4)
                if t == 3 and j == JL:
                    misc_loads()
                    touches(0, 8)
                if t == 3 and opt("SLOTST", 0) and j in (1, 3, 6): stamp(f"it{j}")
                if t == 2:
                    if j == 3: touches(0, 7)
                    if j == opt("POJ", 2):
                        st_poison(POI); kv_poison(POI, 0); canary_poison(POI)
                    if j == 6: kv_addr()
                    if j == opt("POJ", 2) + 1:
                        tile_poison(POI, sAPQW, 0, 1024); initld = a.vm - 1
                    if j == 7:
                        for k in range(3): a(f"v_add_f32 v{RR+k}, v{RR+k}, v{RR+8+k}")
                        a(f"s_lshl_b32 s{sT1}, s{sRB}, 11")
                        a(f"s_add_u32 s{sT3}, s{sAWQT}, s{sT2}")
                        a(f"s_add_u32 s{sT3}, s{sT3}, s{sT1}")
                        a.wait(lg=cp)
                        ws_store4(CPY, sT3); ws_store4(CPY + 4, sT3, 1024)
                if t == 3 and j < 7 and not opt("XNOC", 0): colsum(j + 1)
        stamp("p1_gemm")
        a(f"v_add_f32 v{S0}, v{S0}, v{S1}")
        a(f"v_add_f32 v{Q0}, v{Q0}, v{Q1}")
        a(f"v_mov_b32 v{S1}, v{S0}")
        a(f"v_mov_b32 v{Q1}, v{Q0}")
        for c, p in ((CF, CKP), (CFV, CVP)):
            a(f"v_mov_b32 v{c}, v{p}"); a(f"v_mov_b32 v{c+1}, v{p}")
        a(f"v_permlane32_swap_b32 v{S0}, v{S1}")
        a(f"v_permlane32_swap_b32 v{Q0}, v{Q1}")
        a(f"v_add_f32 v{S0}, v{S0}, v{S1}")
        a(f"v_add_f32 v{Q0}, v{Q0}, v{Q1}")
        split2(CQP, RR + 2, vT1)
        stats_to_frags(S0, Q0, RA)
        mfma(vr(ACCK,16), vr(MA,4), vr(CF,4), vr(ACCK,16))
        mfma(vr(RR,16), vr(RA,4), ar(ONESF,4), "0")
        mfma(vr(ACCV,16), vr(MA,4), vr(CFV,4), vr(ACCV,16))
        touches(0, 1)
    else:
        xid = xid1; XL = xa_XL; ci = xa_ci
        LA = opt("LA1", 8)
        vMX = vW
        cc = lambda: a(f"v_cmp_eq_u32 vcc, -1, v{vT3}")
        def windowa():
            for s in range(LA): XL(s)
        def windowb():
            for s in range(16, 16 + LA): XL(s)
        if opt("XE", 0) == 0: xa_start()
        cid = max(G["xcid"], G["kvlast"])
        addr_setup()
        next_layer_addresses()
        for c, p in ((CF, CKP), (CFV, CVP)):
            a(f"v_mov_b32 v{c}, v{p}"); a(f"v_mov_b32 v{c+1}, v{p}")
        a(f"v_and_b32 v{vT0}, 31, v{vL}")
        a(f"v_lshlrev_b32 v{vT0}, 3, v{vT0}")
        a(f"v_lshl_add_u32 v{PK+1}, v{vHH}, 12, v{vT0}")
        a(f"s_lshl_b32 s{sT2}, s{sW}, 13")
        a(f"s_add_u32 s{sKB}, s{sAWQT}, s{sT2}")
        a(f"s_mov_b32 s{sT1}, s{sT4}")
        pump.setup(1, 1)
        a(f"s_mov_b32 s{sT4}, s{sT1}")
        a(f"v_mov_b32 v{MA+2}, 0"); a(f"v_mov_b32 v{MA+3}, 0")
        go = a.newlabel("XGO"); redo = a.newlabel("XREDO"); go2 = a.newlabel("XGO2")
        a.wait(vm=cid)
        cc()
        force_fail("FRC")
        a(f"s_cbranch_vccz {go2}")
        st = (a.vm, a.vm_done, dict(xid), list(a.hist))
        poll(ci, cc, 0x41)
        windowa()
        a("s_waitcnt vmcnt(0)")
        a.vm, a.vm_done, _x, a.hist = st; xid.update(_x)
        a.label(go2)
        a("s_barrier")
        stamp("p1_flag")
        a(f"s_branch {go}")
        a.label(redo)
        sv = dict(xid)
        with cond():
            windowa()
            a("s_waitcnt vmcnt(0)")
        xid.update(sv)
        a.label(go)
        RG(0); RG(1); RG(2)
        a(f"v_mov_b32 v{vMX}, 0")
        a(f"s_mov_b32 s{sT3}, s{sKB}")
        SB = T1
        def issue():
            for p in range(8): a(f"buffer_load_dwordx2 {vr(SB+2*p,2)}, v{PK+1}, {sr(SWS,4)}, s{sAS2R} offen offset:{p*512} sc1")
        qid = None
        LA = opt("LA1", 8)
        ZS = opt("ZS", 9); nb = [16]
        assert ZS + LA >= 16
        for s in range(32):
            if s == 16:
                stamp("p1_a")
                if ZS < 16:
                    go3 = a.newlabel("XGO3")
                    a.wait(vm=sid)
                    stats_check(SB)
                    force_fail("FRC")
                    a(f"s_cbranch_vccz {go3}")
                    st = (a.vm, a.vm_done, dict(xid), list(a.hist))
                    poll(issue, lambda: stats_check(SB), 0x40)
                    windowb()
                    a("s_waitcnt vmcnt(0)")
                    a.vm, a.vm_done, _x, a.hist = st; xid.update(_x)
                    a.label(go3)
                else:
                    spec(issue, lambda: stats_check(SB), windowb, 0x40, a.newlabel("XR0"))
                stamp("p1_st2")
                stats_sum(SB)
                stats_to_frags(SB, SB + 1, RA)
                mfma(vr(RR,16), vr(RA,4), ar(ONESF,4), "0")
                mfma(vr(ACCK,16), vr(MA,4), vr(CF,4), vr(ACCK,16))
                mfma(vr(ACCV,16), vr(MA,4), vr(CFV,4), vr(ACCV,16))
            a.wait(vm=xid[s], lg=rg[s])
            b = WFR + (s % NWF) * 8
            x = vr(XFR(1, s), 4)
            mfma(vr(ACCK,16), x, ar(b,4), "0" if s == 0 else vr(ACCK,16))
            if s == ZS:
                issue(); sid = a.vm - 1
            if ZS < s < 16:
                per = -(-LA // (15 - ZS))
                for _ in range(per):
                    if nb[0] < 16 + LA: XL(nb[0]); nb[0] += 1
            if (s & 15) + LA < 16: XL(s + LA)
            if s >= 24:
                j = s - 24
                if j == 4: a(f"s_add_u32 s{sT3}, s{sT3}, 4096")
                if j & 3 == 0: a(f"s_add_u32 m0, s{sT2}, {j*1024}")
                qid = a(f"buffer_load_dwordx4 v{vL16}, {sr(SWS,4)}, s{sT3} offen offset:{(j&3)*1024} sc1 lds")
            mfma(vr(ACCV,16), x, ar(b+4,4), "0" if s == 0 else vr(ACCV,16))
            if s & 1: a(f"v_max3_u32 v{vMX}, v{vMX}, v{XFR(1,s-1)}, v{XFR(1,s)}")
            if s + 3 < 32: RG(s + 3)
            if s == 30: kv_addr()
        verify(vMX, redo)
        stamp("p1_gemm")
    for q in range(8): pk("fma", ACCK+2*q, vr(ACCK+2*q,2), vr(RR+2*q,2), sr(sEPS6,2), hi=[1,1,0])
    for q in range(8): pk("mul", T1+2*q, vr(ACCK+2*q,2), sr(sL2E,2), hi=[1,0])
    for i in range(16):
        a(f"v_exp_f32_e64 v{T1+i}, v{T1+i} clamp")
        a(f"v_max_f32 v{ACCK+i}, s{sEPS6}, v{ACCK+i}")
    for q in range(8): pk("add", ACCK+2*q, vr(ACCK+2*q,2), vr(T1+2*q,2))
    for q in range(8): a(f"v_cvt_pk_bf16_f32 v{PK+q}, v{ACCK+2*q}, v{ACCK+2*q+1}")
    ZA = T1
    for q in range(4): pk("mul", ACCV+2*q, vr(ACCV+2*q,2), vr(RR+2*q,2))
    for q in range(4, 8): pk("mul", ACCV+2*q, vr(ACCV+2*q,2), vr(RR+2*q,2))
    mfma(vr(ZA,16), vr(PK,4), ar(ONESF,4), "0")
    for q in range(4): a(f"v_cvt_pk_bf16_f32 v{VV+q}, v{ACCV+2*q}, v{ACCV+2*q+1}")
    mfma(vr(ZA,16), vr(PK+4,4), ar(ONESF,4), vr(ZA,16))
    for q in range(4, 8): a(f"v_cvt_pk_bf16_f32 v{VV+q}, v{ACCV+2*q}, v{ACCV+2*q+1}")
    KVA = RR
    a(f"v_and_b32 v{vT0}, 16, v{vL}")
    a(f"v_cmp_ne_u32 vcc, 0, v{vT0}")
    mfma(vr(KVA,16), vr(PK,4), vr(VV,4), "0")
    mfma(vr(KVA,16), vr(PK+4,4), vr(VV+4,4), vr(KVA,16))
    a("s_barrier")
    for j in range(8): a(f"v_cndmask_b32 v{ACCK+8+j}, v{ZA+j}, v{ZA+8+j}, vcc")
    set_exec(0x0001000100010001)
    a(f"ds_write_b128 v{vKW2}, {vr(ACCK+8,4)} offset:{SCR+512}")
    a(f"ds_write_b128 v{vKW2}, {vr(ACCK+12,4)} offset:{SCR+528}")
    set_exec(FULL)
    for j in range(4): a(f"v_cndmask_b32 v{ACCK+j}, v{KVA+j}, v{KVA+8+j}, vcc")
    a(f"ds_write_b128 v{vKW2}, {vr(ACCK,4)} offset:{SCR}")
    for j in range(4, 8): a(f"v_cndmask_b32 v{ACCK+j}, v{KVA+j}, v{KVA+8+j}, vcc")
    a(f"ds_write_b128 v{vKW2}, {vr(ACCK+4,4)} offset:{SCR+16}")
    if L == 0: a.wait(vm=initld)
    NQ = 8; QLA = 6
    rq = {}
    def RQ(s):
        b = WFR + (s % NQ) * 4
        if L == 0:
            a(f"ds_read_b64_tr_b16 {ar(b,2)}, v{vTQ} offset:{s*1024}")
            rq[s] = a(f"ds_read_b64_tr_b16 {ar(b+2,2)}, v{vTQ} offset:{s*1024+toff}")
        else:
            ks = KS((s + 16) & 31)
            rq[s] = a(f"ds_read_b128 {ar(b,4)}, v{vTQ2 if ks >= 16 else vTQ} offset:{(ks&15)*1024}")
    a(f"v_mov_b32 v{CFQ}, v{CQP}"); a(f"v_mov_b32 v{CFQ+1}, v{CQP}")
    if L == 1: a.wait(vm=qid)
    a.wait_lg_all()
    a("s_barrier")
    for w in range(4): kr = a(f"ds_read_b128 {vr(RR+4*w,4)}, v{vKR2} offset:{16384*w}")
    for s in range(QLA): RQ(s)
    ACCQ = ACCK
    mfma(vr(ACCQ,16), vr(CFQ,4), vr(MA,4), "0")
    a.wait(lg=kr)
    for j in range(4): a(f"v_add_f32 v{RR+j}, v{RR+j}, v{RR+4+j}")
    for j in range(4): a(f"v_add_f32 v{RR+8+j}, v{RR+8+j}, v{RR+12+j}")
    for j in range(4): a(f"v_add_f32 v{RR+j}, v{RR+j}, v{RR+8+j}")
    set_exec((1 << 40) - 1)
    a(f"v_writelane_b32 v{RR}, s{sNON}, 34")
    ws_store4(RR, sAKVP)
    set_exec(FULL)
    stamp("p1_kvpub")
    touches(L, 2)
    nfill = optL("F0", L, 0, 0); assert nfill <= 6
    for s in range(32):
        a.wait(lg=rq[s])
        b = WFR + (s % NQ) * 4
        mfma(vr(ACCQ,16), ar(b,4), vr(XF+4*s,4), vr(ACCQ,16))
        if s + QLA < 32: RQ(s + QLA)
        if s % 3 == 1 and pump.i < pump.c + nfill: pump.fill(pump.i + 1)
        if L == 0 and opt("WOP", 1) == 1 and s % 8 == 0: wo_issue(s // 8)
        if optL("POIQ", L, 1, 1):
            if s == 2: set_poi(VV)
            if s == 3: tile_poison(VV, sAHTW, 0, 2048)
            if s == 6: tile_poison(VV, sAUW, 0, 1024)
        if s == opt("A1S", 31):
            a1_early(L); vm_a1 = a.vm
        if s == opt("A1M", 99):
            a1_mid(a.vm - vm_a1); vm_a1 = a.vm
    for h in range(2):
        for q in range(4*h, 4*h+4): pk("fma", ACCQ+2*q, vr(ACCQ+2*q,2), vr(vRS,2), sr(sEPS6,2), hi=[1,0,0])
        for q in range(4*h, 4*h+4): pk("mul", T1+2*q, vr(ACCQ+2*q,2), sr(sL2E,2), hi=[1,0])
        for i in range(8*h, 8*h+8):
            a(f"v_exp_f32_e64 v{T1+i}, v{T1+i} clamp")
            a(f"v_max_f32 v{ACCQ+i}, s{sEPS6}, v{ACCQ+i}")
        for q in range(4*h, 4*h+4): pk("add", ACCQ+2*q, vr(ACCQ+2*q,2), vr(T1+2*q,2))
        for q in range(4*h, 4*h+4): a(f"v_cvt_pk_bf16_f32 v{PK+q}, v{ACCQ+2*q}, v{ACCQ+2*q+1}")
        ws_store4(PK + 4 * h, sAPQW, 1024 * h)
        if opt("A1S", 31) == 32 + h:
            a1_early(L); vm_a1 = a.vm
    if L == 0:
        for k in range(4): a(f"v_mov_b32 v{T1+k}, s{sNON}")
        a(f"s_sub_u32 s{sT0}, s{sAPQW}, {PQ[0]:#x}")
        a(f"s_lshr_b32 s{sT0}, s{sT0}, 4")
        a(f"s_add_u32 s{sT0}, s{sT0}, {TAGQ:#x}")
        set_exec(0xff)
        ws_store4(T1, sT0)
        set_exec(FULL)
    stamp("p1_q")
    if opt("NS1", 6) > 6: a("s_barrier")
    a1(L, a.vm - vm_a1)
    pump.fill(pump.c + optL("F1", L, 6, 5))
    touches(L, 3)

def row_stats_publish(soff, SM):
    a(f"v_dot2_f32_bf16 v{SM}, v{XR}, s{sONES}, 0")
    a(f"v_dot2_f32_bf16 v{SM+1}, v{XR}, v{XR}, 0")
    a(f"v_dot2_f32_bf16 v{SM+2}, v{XR+1}, s{sONES}, 0")
    a(f"v_dot2_f32_bf16 v{SM+3}, v{XR+1}, v{XR+1}, 0")
    for j in range(2, 8):
        o = 2 * (j & 1)
        a(f"v_dot2_f32_bf16 v{SM+o}, v{XR+j}, s{sONES}, v{SM+o}")
        a(f"v_dot2_f32_bf16 v{SM+o+1}, v{XR+j}, v{XR+j}, v{SM+o+1}")
    a(f"v_lshlrev_b32 v{vT0}, 3, v{vL}")
    pk("add", SM, vr(SM,2), vr(SM+2,2))
    a(f"v_mov_b32 v{SM+2}, v{SM}")
    a(f"v_mov_b32 v{SM+3}, v{SM+1}")
    a(f"v_permlane32_swap_b32 v{SM}, v{SM+2}")
    a(f"v_permlane32_swap_b32 v{SM+1}, v{SM+3}")
    pk("add", SM, vr(SM,2), vr(SM+2,2))
    a(f"s_mov_b32 exec_hi, 0")
    a(f"v_and_b32 v{SM+1}, 0x7fffffff, v{SM+1}")
    a(f"buffer_store_dwordx2 {vr(SM,2)}, v{vT0}, {sr(SWS,4)}, s{soff} offen sc1")
    set_exec(FULL)

def unpack_xr(XU):
    for j in range(8):
        a(f"v_lshlrev_b32 v{XU+2*j}, 16, v{XR+j}")
        a(f"v_and_b32 v{XU+2*j+1}, 0xffff0000, v{XR+j}")

def p2(L):
    a.c(f"======== P2 layer {L}")
    KF, QF = 128, 192
    ACC = 32; CR = 64; OF = 96; WF = 104; XU = 64
    vK, vKC, vMX = MA, MA + 1, MA + 2
    tr_base(vTA, vTB, None, sKH, L_B)
    a(f"s_lshl_b32 s{sT2}, s{sKH}, 15")
    a(f"v_add_u32 v{vTA}, s{sT2}, v{vTA}")
    a(f"v_add_u32 v{vTB}, s{sT2}, v{vTB}")
    a(f"v_and_b32 v{vT0}, 31, v{vL}")
    a(f"v_mul_u32_u24 v{vKC}, 384, v{vT0}")
    a(f"v_min_u32 v{vT0}, 16, v{vT0}")
    a(f"v_lshlrev_b32 v{vT0}, 4, v{vT0}")
    a(f"v_mul_u32_u24 v{vT1}, 384, v{vHH}")
    a(f"v_add_u32 v{vK}, v{vT0}, v{vT1}")
    a(f"v_and_b32 v{vT2}, 7, v{vL}")
    a(f"v_lshlrev_b32 v{vT2}, {11 if L else 7}, v{vT2}")
    if L == 0:
        a(f"s_sub_u32 s{sT0}, s{sAPQR}, {PQ[0]:#x}")
        a(f"s_lshr_b32 s{sT0}, s{sT0}, 4")
        a(f"s_add_u32 s{sT0}, s{sT0}, {TAGQ:#x}")
    pump.run(min(R1 + 5, optL("B1", L, 21, 21)), refill=bool(optL("B1R", L, 1, 1)))
    if optL("POIQ", L, 1, 1) == 0:
        set_poi(CR)
        tile_poison(CR, sAHTW, 0, 2048)
        tile_poison(CR, sAUW, 0, 1024)
    stamp("beta")
    def ldq():
        a(f"s_mov_b32 s{sT4}, s{sAPQR}")
        for j in range(16):
            a(f"buffer_load_dwordx4 {vr(QF+4*j,4)}, v{vL16}, {sr(SWS,4)}, s{sT4} offen offset:{(j&3)*1024} sc1")
            if j & 3 == 3 and j < 15: a(f"s_add_u32 s{sT4}, s{sT4}, 4096")
    if L == 1:
        ci = lambda: a(f"buffer_load_dword v{vT3}, v{vT2}, {sr(SWS,4)}, s{sAPQR} offen offset:2044 sc1")
        cc = lambda: a(f"v_cmp_eq_u32 vcc, -1, v{vT3}")
    else:
        ci = lambda: a(f"buffer_load_dword v{vT3}, v{vT2}, {sr(SWS,4)}, s{sT0} offen sc1")
        cc = lambda: a(f"v_cmp_ne_u32 vcc, s{sNON}, v{vT3}")
    spec(ci, cc, ldq, 0x36 + L, a.newlabel("PQR"), on=opt("SPEC", 15) & 4)
    stamp("p2_pqc")
    if L == 0:
        a.wait(vm=G['wo'])
        for q in range(2):
            a(f"v_permlane32_swap_b32 v{XR+4*q}, v{XR+4*q+2}")
            a(f"v_permlane32_swap_b32 v{XR+4*q+1}, v{XR+4*q+3}")
        a(f"v_lshlrev_b32 v{vB2}, 16, v{vB2}")
    pump.run(min(R1 + 5, pump.i), refill=False)
    pump.run(min(R1 + 5, optL("B2", L, 0, 0)), refill=False)
    pump.fill(pump.c + optL("FK", L, 0, 0))
    a(f"s_xor_b32 s{sT0}, s{sW}, 1")
    a(f"s_lshl_b32 s{sT0}, s{sT0}, 12")
    a(f"v_add_u32 v{vRS}, s{sT0}, v{vL16}")
    a.wait_lg_all()
    a("s_barrier")
    rw = {}
    def RW(j):
        b = WF + (j % 3) * 8
        a(f"ds_read_b64_tr_b16 {vr(b,2)}, v{vTA} offset:{j*2048}")
        a(f"ds_read_b64_tr_b16 {vr(b+2,2)}, v{vTA} offset:{j*2048+1024}")
        a(f"ds_read_b64_tr_b16 {vr(b+4,2)}, v{vTB} offset:{j*2048}")
        rw[j] = a(f"ds_read_b64_tr_b16 {vr(b+6,2)}, v{vTB} offset:{j*2048+1024}")
    lid = {}
    def LD(j):
        if j == 0: a(f"s_mov_b32 s{sSO}, s{sAKVF}")
        elif j & 3 == 0: a(f"s_add_u32 s{sSO}, s{sSO}, {4*768}")
        lid[j] = a(f"buffer_load_dwordx4 {vr(KF+4*j,4)}, v{vK}, {sr(SWS,4)}, s{sSO} offen offset:{(j&3)*768} sc1")
    PLA = optL("PLA", L, 10, 10)
    redo = a.newlabel("P2REDO"); redo2 = a.newlabel("P2REDO2"); over = a.newlabel("P2OVER")
    a(f"s_branch {over}")
    a.label(redo)
    with cond():
        ldq()
        a("s_waitcnt vmcnt(0)")
        a(f"s_branch {redo2}")
    a.label(over)
    def window():
        for j in range(PLA): LD(j)
    spec(lambda: a(f"buffer_load_dword v{vT3}, v{vKC}, {sr(SWS,4)}, s{sAKVF} offen offset:272 sc1"),
         lambda: a(f"v_cmp_ne_u32 vcc, s{sNON}, v{vT3}"), window, 0x38 + L, redo2, on=opt("SPEC", 15) & 2)
    stamp("p2_kvc")
    if L == 0:
        sk = a.newlabel("NONW")
        a(f"s_cmp_lg_u32 s{sWI}, 0")
        a(f"s_cselect_b32 s{sT0}, 1, s{sB}")
        a(f"s_cmp_lg_u32 s{sT0}, 0")
        a(f"s_cbranch_scc1 {sk}")
        with cond():
            a(f"v_mov_b32 v{vT0}, s{sNON}")
            set_exec(1)
            a(f"buffer_store_dword v{vT0}, off, {sr(SWS,4)}, 0 offset:{NONCE} sc1")
            set_exec(FULL)
        a.label(sk)
    RW(0); RW(1)
    a(f"v_mov_b32 v{vMX}, 0")
    def M1(j):
        a.wait(vm=lid[j])
        mfma(vr(CR+(j&1)*16,16), vr(KF+4*j,4), vr(QF+4*j,4), "0")
        a(f"v_max3_u32 v{vMX}, v{vMX}, v{KF+4*j}, v{QF+4*j}")
        if j + PLA < 16: LD(j + PLA)
        if j + PLA == 16: touches(L, 9)
    def Va(j):
        c = CR + (j & 1) * 16
        a(f"v_add_f32 v{c+8}, s{sEPS6}, v{c+8}")
        a(f"v_rcp_f32 v{c+8}, v{c+8}")
    def Vb(j):
        c = CR + (j & 1) * 16; o = OF + (j & 1) * 4
        for i in range(4): a(f"v_mul_f32 v{c+i}, v{c+i}, v{c+8}")
        for i in range(2): a(f"v_cvt_pk_bf16_f32 v{o+i}, v{c+2*i}, v{c+2*i+1}")
    def Vc(j):
        c = CR + (j & 1) * 16; o = OF + (j & 1) * 4
        for i in range(4, 8): a(f"v_mul_f32 v{c+i}, v{c+i}, v{c+8}")
        for i in range(2, 4): a(f"v_cvt_pk_bf16_f32 v{o+i}, v{c+2*i}, v{c+2*i+1}")
    M1(0); M1(1)
    Va(0); Vb(0); Vc(0); M1(2)
    nfp = optL("FP2", L, 6, 6)
    kb_saved = False
    for j in range(16):
        o = OF + (j & 1) * 4; b = WF + (j % 3) * 8
        if j + 1 < 16: Va(j + 1)
        a.wait(lg=rw[j])
        mfma(vr(ACC+16,16), vr(b+4,4), vr(o,4), "0" if j == 0 else vr(ACC+16,16))
        if j + 1 < 16: Vb(j + 1)
        mfma(vr(ACC,16), vr(b,4), vr(o,4), "0" if j == 0 else vr(ACC,16))
        if j + 1 < 16: Vc(j + 1)
        if j + 3 < 16: M1(j + 3)
        if j + 2 < 16: RW(j + 2)
    verify(vMX, redo)
    stamp("p2_main")
    lin(sT0, [(sFT, 128), (sRH, 64), (sKH, 32)])
    a(f"v_lshlrev_b32 v{vT0}, 3, v{vHH}")
    for q in range(2): a(f"buffer_load_dwordx2 {vr(152+2*q,2)}, v{vT0}, {sr(SB1,4)}, s{sT0} offen offset:{16*q}")
    for q, r in enumerate((ACC + 24, ACC + 28, ACC + 8, ACC + 12)): a(f"ds_write_b128 v{vRS}, {vr(r,4)} offset:{(q^2)*1024}")
    unpack_xr(XU)
    a(f"v_xor_b32 v{vT1}, 4096, v{vRS}")
    for q in range(4): pk("add", ACC+16+2*q, vr(ACC+16+2*q,2), vr(XU+8+2*q,2))
    for q in range(4): pk("add", ACC+2*q, vr(ACC+2*q,2), vr(XU+2*q,2))
    a.wait_lg_all()
    a("s_barrier")
    own = (ACC, ACC + 4, ACC + 16, ACC + 20)
    ids = [a(f"ds_read_b128 {vr(XU+4*q,4)}, v{vT1} offset:{q*1024}") for q in range(4)]
    for q in range(4):
        a.wait(lg=ids[q])
        pk("add", own[q], vr(own[q],2), vr(XU+4*q,2))
        pk("add", own[q]+2, vr(own[q]+2,2), vr(XU+4*q+2,2))
        a(f"v_cvt_pk_bf16_f32 v{XR+2*q}, v{own[q]}, v{own[q]+1}")
        a(f"v_cvt_pk_bf16_f32 v{XR+2*q+1}, v{own[q]+2}, v{own[q]+3}")
    row_stats_publish(sASTW, OF)
    stamp("p2_stpub")
    pump.run(pump.i, refill=False)
    pump.fill(pump.c + optL("GF", L, 6, 4))
    unpack_xr(XU)
    IDF = 104
    a(f"v_and_b32 v{vT0}, 31, v{vL}")
    a(f"v_lshlrev_b32 v{vT1}, 2, v{vHH}")
    a(f"v_sub_u32 v{vT0}, v{vT0}, v{vT1}")
    a(f"v_mov_b32 v{vT3}, 0x3f80")
    for f in range(2):
        for c in range(4):
            base = 16 * f + ((2 * c) & 3) + 8 * (c >> 1)
            a(f"v_subrev_u32 v{vT1}, {base}, v{vT0}")
            a(f"v_cmp_gt_u32 vcc, 2, v{vT1}")
            a(f"v_lshlrev_b32 v{vT1}, 4, v{vT1}")
            a(f"v_lshlrev_b32 v{vT2}, v{vT1}, v{vT3}")
            a(f"v_cndmask_b32 v{IDF+4*f+c}, 0, v{vT2}, vcc")
    SB = 128
    ht_voff(vRS)
    a(f"v_and_b32 v{vT0}, 31, v{vL}")
    a(f"v_lshlrev_b32 v{vT0}, 3, v{vT0}")
    a(f"v_lshl_add_u32 v{vT2}, v{vHH}, 12, v{vT0}")
    a(f"v_mov_b32 v{SB+18}, {fl(1.0+1e-5)}")
    def issue():
        for p in range(8): a(f"buffer_load_dwordx2 {vr(SB+2*p,2)}, v{vT2}, {sr(SWS,4)}, s{sASTR} offen offset:{p*512} sc1")
    if OPT.get(f"SL{0x34+L:x}", 0): a(f"s_sleep {OPT.get(f'SL{0x34+L:x}', 0)}")
    poll(issue, lambda: stats_check(SB), 0x34 + L)
    stamp("p2_stats")
    if optL("SF", L, 3, 3):
        pump.run(pump.i, refill=False)
        pump.fill(pump.c + optL("SF", L, 3, 3))
    stats_sum(SB)
    a(f"v_mul_f32 v{SB}, {fl(-1/512)}, v{SB}")
    a(f"v_mul_f32 v{SB+1}, {fl(1/512)}, v{SB+1}")
    a(f"v_fma_f32 v{SB+1}, -v{SB}, v{SB}, v{SB+1}")
    a(f"v_max_f32 v{SB+1}, 0, v{SB+1}")
    a(f"v_fmaak_f32 v{SB+1}, v{SB+1}, v{SB+18}, {fl(1e-10)}")
    a(f"v_rsq_f32 v{SB+2}, v{SB+1}")
    a(f"v_mul_f32 v{SB}, v{SB}, v{SB+2}")
    HP_ = 112
    for f in range(2):
        for j in range(4*f, 4*f+4):
            pk("fma", XU+2*j, vr(XU+2*j,2), vr(SB+2,2), vr(SB,2), hi=[1,0,0])
    for f in range(2):
        for j in range(4*f, 4*f+4):
            a(f"v_cvt_pk_bf16_f32 v{HP_+j}, v{XU+2*j}, v{XU+2*j+1}")
        mfma(vr(ACC,16), vr(HP_+4*f,4), vr(IDF+4*f,4), "0" if f == 0 else vr(ACC,16))
    for f in range(2):
        for j in range(4): a(f"v_cvt_pk_bf16_f32 v{ACC+16+4*f+j}, v{ACC+8*f+2*j}, v{ACC+8*f+2*j+1}")
        a(f"buffer_store_dwordx4 {vr(ACC+16+4*f,4)}, v{vRS}, {sr(SWS,4)}, s{sAHTW} offen offset:{2048*f} sc1")
    touches(L, 5)
    stamp(f"p2_{L}")

RING = 96; AUX = 144; NRH = 12
vR1, vR2, vR3, vRA = vT0, vT1, vT2, vRS
LKH = opt("LKH", 10)
class Half:
    def __init__(self, kind, hf, g0):
        self.kind, self.hf, self.g0 = kind, hf, g0
        self.nks, self.srot, self.sbase = (32, sROT1, sAHTR) if kind == 1 else (28, sROT2, sAUR)
        self.vA, self.vC = (vTA, MA + 1) if kind == 1 else (vTB, MA + 2)
        self.vMX = MA
        self.ids = {}; self.cid = None
    def rb(self, s): return RING + ((self.g0 + s) % NRH) * 4
    def LD(self, s):
        if s == 0: a(f"s_lshl_b32 s{sSO}, s{self.srot}, 11")
        elif s & 1 == 0:
            a(f"s_add_u32 s{sSO}, s{sSO}, 4096")
            a(f"s_cmp_eq_u32 s{sSO}, {self.nks*2048}")
            a(f"s_cselect_b32 s{sSO}, 0, s{sSO}")
        self.ids[s] = a(f"buffer_load_dwordx4 {vr(self.rb(s),4)}, v{self.vA}, {sr(SWS,4)}, s{sSO} offen offset:{(s&1)*2048+self.hf*1024} sc1")
    def window(self):
        for s in range(LKH): self.LD(s)
    def can_issue(self):
        off = 2048 + 1024 + 512 + 252 if self.kind == 1 else self.hf * 1024 + 1020
        self.cid = a(f"buffer_load_dword v{vT3}, v{self.vC}, {sr(SWS,4)}, s{self.sbase} offen offset:{off} sc1")
    def can_check(self): a(f"v_cmp_eq_u32 vcc, -1, v{vT3}")
    def MF(self, s, acc):
        A0 = 32 + 32 * self.hf
        wf = wreg(self.kind, s, 4 * acc, 4); af = vr(self.rb(s), 4)
        c = "0" if s == 0 else vr(A0 + 16 * acc, 16)
        A_, B_ = (wf, af) if self.kind == 1 else (af, wf)
        mfma(vr(A0+16*acc,16), A_, B_, c)
    def steps(self, redo, nxt=None, hook=None, force=True):
        n = self.nks
        a(f"v_mov_b32 v{self.vMX}, 0")
        for s in range(n):
            if hook: hook(s, 0)
            a.wait(vm=self.ids[s])
            self.MF(s, 1)
            if s + LKH < n: self.LD(s + LKH)
            elif nxt is not None:
                if s + LKH == n and nxt.kind == 2: nxt.can_issue()
                nxt.LD(s + LKH - n)
            if s & 1: a(f"v_max3_u32 v{self.vMX}, v{self.vMX}, v{self.rb(s-1)}, v{self.rb(s)}")
            self.MF(s, 0)
            if hook: hook(s, 1)
        verify(self.vMX, redo, force=force)
    def run(self, nxt=None, hook=None):
        lab = a.newlabel("PLAIN"); back = a.newlabel("BACK")
        OOL.append((self, nxt, lab, back))
        self.steps(lab, nxt, hook)
        a.label(back)
    def scr(self, k):
        if self.hf == 0: return 0, k * 2048
        if k < 2: return 1, SCR + k * 2048
        return 0, 6144
    def writes(self):
        A0 = 32 + 32 * self.hf
        for k in (1, 2, 0):
            src = (A0 + 8, A0 + 16, A0 + 24)[k]
            area, o = self.scr(k)
            r = (vR1, vR2, vR3)[k]
            if area == 1:
                a(f"v_lshl_add_u32 v{AUX+10+k}, v{r}, 1, v{AUX+9}"); r = AUX + 10 + k
            for q in range(2): a(f"ds_write_b128 v{r}, {vr(src+4*q,4)} offset:{o+q*1024}")
    def reads(self):
        D = 64 - 32 * self.hf
        if self.hf == 1: a(f"v_lshl_add_u32 v{AUX+10}, v{vRA}, 1, v{AUX+9}")
        a.wait_lg_all()
        a("s_barrier")
        ids = {}
        for q in range(2):
            for k in range(3):
                area, o = self.scr(k)
                ids[(q, k)] = a(f"ds_read_b128 {vr(D+8*k+4*q,4)}, v{AUX+10 if area else vRA} offset:{o+q*1024}")
        A0 = 32 + 32 * self.hf
        for q in range(2):
            a.wait(lg=ids[(q, 1)])
            for j in (0, 2): pk("add", D+4*q+j, vr(D+4*q+j,2), vr(D+8+4*q+j,2))
            a.wait(lg=ids[(q, 2)])
            for j in (0, 2): pk("add", A0+4*q+j, vr(A0+4*q+j,2), vr(D+16+4*q+j,2))
            for j in (0, 2): pk("add", A0+4*q+j, vr(A0+4*q+j,2), vr(D+4*q+j,2))
    def woven(self, D):
        A0 = 32 + 32 * self.hf
        ops = []
        ids = {}
        wl = a.lg - 1
        def bar():
            if self.hf == 1: a(f"v_lshl_add_u32 v{AUX+10}, v{vRA}, 1, v{AUX+9}")
            a.wait(lg=wl); a("s_barrier")
        ops.append(bar)
        def rd(q, k):
            area, o = self.scr(k)
            ids[(q, k)] = a(f"ds_read_b128 {vr(D+8*k+4*q,4)}, v{AUX+10 if area else vRA} offset:{o+q*1024}")
        for q in range(2):
            for k in range(3): ops.append(lambda q=q, k=k: rd(q, k))
        ops.append(None); ops.append(None); ops.append(None)
        for q in range(2):
            for k in range(3):
                for j in range(4):
                    def ad(q=q, k=k, j=j):
                        a.wait(lg=ids[(q, k)])
                        a(f"v_add_f32 v{A0+4*q+j}, v{A0+4*q+j}, v{D+8*k+4*q+j}")
                    ops.append(ad)
        return ops
    def late_check(self, code):
        go = a.newlabel("GO")
        a.wait(vm=self.cid)
        self.can_check()
        force_fail("FRC")
        a(f"s_cbranch_vccz {go}")
        st = (a.vm, a.vm_done, a.lg, a.lg_done, dict(self.ids), self.cid, list(a.hist))
        poll(self.can_issue, self.can_check, code)
        self.window()
        a("s_waitcnt vmcnt(0)")
        a.vm, a.vm_done, a.lg, a.lg_done, self.ids, self.cid, a.hist = st
        a.label(go)
OOL = []
def mix_setup():
    a(f"v_add_u32 v{vTA}, s{sAHTR}, v{vL16}")
    a(f"v_min_u32 v{vT0}, 31, v{vL}")
    a(f"v_lshrrev_b32 v{vT1}, 1, v{vT0}")
    a(f"v_and_b32 v{vT0}, 1, v{vT0}")
    a(f"v_lshlrev_b32 v{vT0}, 8, v{vT0}")
    a(f"v_lshl_add_u32 v{MA+1}, v{vT1}, 12, v{vT0}")
    a(f"s_lshl_b32 s{sT0}, s{sKH}, 8")
    a(f"v_xor_b32 v{vTB}, s{sT0}, v{vL16}")
    a(f"v_add_u32 v{vTB}, s{sAUR}, v{vTB}")
    a(f"v_min_u32 v{MA+2}, 27, v{vL}")
    a(f"v_lshlrev_b32 v{MA+2}, 11, v{MA+2}")
    for acc, r in ((1, vR1), (2, vR2), (3, vR3)):
        a(f"s_xor_b32 s{sT0}, s{sW}, {acc}")
        a(f"s_lshl_b32 s{sT0}, s{sT0}, 13")
        a(f"v_add_u32 v{r}, s{sT0}, v{vL16}")
    a(f"s_lshl_b32 s{sT0}, s{sW}, 13")
    a(f"v_add_u32 v{vRA}, s{sT0}, v{vL16}")
    a(f"v_sub_u32 v{AUX+9}, {L_A}, v{vL16}")

def p34(L):
    a.c(f"======== P3 layer {L}")
    B1R = AUX
    pump.run(pump.i, refill=True)
    pump.run(32)
    a.wait_lg_all()
    if L == 1: a("s_barrier")
    pump.setup(2, L, extra=optL("XB", L, 0, 8))
    pump.run(optL("V2", L, 5, 0), refill=False)
    pump.fill(pump.c + optL("V2F", L, 0, 8))
    assert pump.c <= R2
    if L == 0: a("s_barrier")
    for j in range(4):
        a(f"v_lshlrev_b32 v{B1R+2*j}, 16, v{152+j}")
        a(f"v_and_b32 v{B1R+2*j+1}, 0xffff0000, v{152+j}")
    mix_setup()
    K1 = -2.0 * 0.7978845608028654 * LOG2E
    a(f"v_mov_b32 v{AUX+8}, {fl(K1)}")
    SPX = optL("SPX", L, 1, 1)
    h3a = Half(1, 0, 0); h3b = Half(1, 1, 32); h4a = Half(2, 0, 64); h4b = Half(2, 1, 92)
    stamp("p3_delta")
    idle = a.newlabel("P3IDLE"); join = a.newlabel("P3JOIN")
    pst = (pump.i, pump.c, dict(pump.vid), dict(pump.lid))
    a(f"s_cmp_eq_u32 s{sP3}, 7")
    a(f"s_cbranch_scc1 {idle}")
    IDN = optL("IDT", L, 18, 0)
    ntail = optL("V2T", L, 0, 0); nepi = optL("V2E", L, 6, 3)
    def gelu_store(hf):
        A0 = 32 + 32 * hf; T = A0 + 16
        for q in range(4): pk("mul", T+2*q, vr(A0+2*q,2), vr(A0+2*q,2))
        for q in range(4): pk("fma", T+2*q, vr(T+2*q,2), sr(sT2,2), vr(AUX+8,2), hi=[1,0,0])
        for q in range(4): pk("mul", T+2*q, vr(T+2*q,2), vr(A0+2*q,2))
        for i in range(8): a(f"v_exp_f32 v{T+i}, v{T+i}")
        for q in range(4): pk("add", T+2*q, vr(T+2*q,2), "1.0", hi=[1,0])
        for i in range(8): a(f"v_rcp_f32 v{T+i}, v{T+i}")
        for q in range(4): pk("mul", A0+2*q, vr(A0+2*q,2), vr(T+2*q,2))
        for q in range(4): a(f"v_cvt_pk_bf16_f32 v{T+8+q}, v{A0+2*q}, v{A0+2*q+1}")
        ws_store4(T + 8, sAUW, 1024 * hf)
    with cond():
        a(f"s_mov_b32 s{sT2}, s{sGK}")
        spec(h3a.can_issue, h3a.can_check, h3a.window, 0x50 + L, a.newlabel("SREDO"))
        stamp("canary")
        h3a.run(nxt=h3b)
        stamp("gemm_a")
        h3a.writes()
        pump.fill(pump.i + nepi)
        for q in range(4): pk("add", 32+2*q, vr(32+2*q,2), vr(B1R+2*q,2))
        h3a.reads()
        gelu_store(0)
        stamp("epi_a")
        i0 = pump.i
        def hk(s, k):
            if k == 1 and s + LKH >= 32 and (s & 1) and pump.i < i0 + ntail: pump.fill(pump.i + 1)
        h3b.run(nxt=h4a if SPX else None, hook=hk)
        assert ntail <= 5
        stamp("gemm_b")
        h3b.writes()
        n2 = pump.i
        nmid = pump.i
        if optL("EB", L, 1, 0): pump.run(pump.i if optL("EB", L, 1, 0) == 2 else min(R2, pump.i), refill=False, tmp=(AUX + 14, AUX + 15))
        cact = pump.c
        pump.fill(pump.i + optL("V2E2", L, 4, 3))
        nact = pump.i; n2 = nact - n2
        for q in range(4): pk("add", 64+2*q, vr(64+2*q,2), vr(B1R+2*q,2))
        h3b.reads()
        gelu_store(1)
        if SPX: h4a.late_check(0x60 + L)
        a(f"s_branch {join}")
    a.label(idle)
    pump.i, pump.c, pump.vid, pump.lid = pst
    if IDN:
        a(f"v_lshrrev_b32 v{RING}, 2, v{vL}")
        a(f"v_lshlrev_b32 v{RING}, 12, v{RING}")
        a(f"v_and_b32 v{RING+1}, 3, v{vL}")
        a(f"v_lshl_add_u32 v{RING}, v{RING+1}, 7, v{RING}")
        a(f"s_bfe_u32 s{sT0}, s{sWI}, 0x20002")
        a(f"s_mul_i32 s{sT0}, s{sT0}, {28*65536}")
        a(f"s_and_b32 s{sT1}, s{sB}, 7")
        a(f"s_lshl_b32 s{sT1}, s{sT1}, 9")
        a(f"s_add_u32 s{sT0}, s{sT0}, s{sT1}")
        a(f"v_add_u32 v{RING}, s{sT0}, v{RING}")
        a(f"s_add_u32 s{sT1}, s{sW}, s{sROT2}")
        a(f"s_add_u32 s{sT1}, s{sT1}, {28 - IDN}")
        for k in range((IDN + 3) // 4):
            a(f"s_sub_u32 s{sT2}, s{sT1}, 28")
            a(f"s_cselect_b32 s{sT1}, s{sT1}, s{sT2}")
            a(f"s_lshl_b32 s{sT2}, s{sT1}, 16")
            a(f"buffer_load_dword v31, v{RING}, {sr(SW2,4)}, s{sT2} offen")
            a(f"s_add_u32 s{sT1}, s{sT1}, 4")
    nlate = n2 if SPX else 0
    pump.fill(nmid)
    if SPX:
        poll(h4a.can_issue, h4a.can_check, 0x5e)
        h4a.window()
    pump.run(cact, refill=False, tmp=(AUX + 14, AUX + 15))
    pump.fill(nact)
    a.label(join)
    a.hist = []
    stamp(f"p3_{L}")
    a.c(f"======== P4 layer {L}")
    if L == 0:
        set_poi(64)
        tile_poison(64, sAX2W, 0, 2048)
        tile_poison(64, sAPQW, PQ[1] - PQ[0], 1024)
        kv_poison(64, 1)
    cinit = pst[1]
    NKT = opt("NKT", 10)
    def kvdma(j):
        if j == 0: a(f"s_add_u32 s{sT3}, s{sAWQT}, s{sWA}")
        if j & 3 == 0:
            a(f"s_add_u32 m0, s{sWA}, {j*1024}")
            if j: a(f"s_add_u32 s{sT3}, s{sT3}, 4096")
        return a(f"buffer_load_dwordx4 v{vL16}, {sr(SWS,4)}, s{sT3} offen offset:{(j&3)*1024} sc1 lds")
    if SPX:
        WV = opt("WV", 2); AH = optL("AH", L, 3, 4)
        pump.run(min(pump.i, pump.c + optL("PRE", L, 0, 0)), tmp=(AUX, AUX + 1))
        landed = pump.i; c0 = pump.c
        def hk(s, k):
            if k == 1:
                lim = max(min(landed, c0 + WV * (s + 1)), min(28, s + AH))
                pump.run(lim, tmp=(AUX, AUX + 1), first=(s == 0))
            if k == 0 and s >= cinit:
                assert pump.c > s
                if not opt("NOPUMP", 0): a.wait(lg=pump.lid[s])
        h4a.run(nxt=h4b, hook=hk)
    else:
        pump.run(28, tmp=(AUX, AUX + 1))
        stamp("p4_w2")
        a.wait_lg_all()
        spec(h4a.can_issue, h4a.can_check, h4a.window, 0x60 + L, a.newlabel("SREDO"))
        stamp("canary")
        h4a.run(nxt=h4b)
    stamp("gemm_a")
    def resid(hf):
        A0 = 32 + 32 * hf; XU = AUX
        for j in range(4):
            a(f"v_lshlrev_b32 v{XU+2*j}, 16, v{XR+4*hf+j}")
            a(f"v_and_b32 v{XU+2*j+1}, 0xffff0000, v{XR+4*hf+j}")
        for q in range(4): pk("add", XU+2*q, vr(XU+2*q,2), vr(vB2-1,2), lo=[0,1], hi=[1,1])
        for q in range(4): pk("add", A0+2*q, vr(A0+2*q,2), vr(XU+2*q,2))
    def out(hf):
        A0 = 32 + 32 * hf
        for q in range(4): a(f"v_cvt_pk_bf16_f32 v{XR+4*hf+q}, v{A0+2*q}, v{A0+2*q+1}")
        if L == 0: ws_store4(XR + 4 * hf, sAX2W, 2048 * hf)
        else:
            a(f"v_permlane32_swap_b32 v{XR+4*hf}, v{XR+4*hf+2}")
            a(f"v_permlane32_swap_b32 v{XR+4*hf+1}, v{XR+4*hf+3}")
            a(f"buffer_store_dwordx4 {vr(XR+4*hf,4)}, v{vOUT}, {sr(SOUT,4)}, 0 offen offset:{64*hf}")
    wv = []
    if optL("WE4", L, 1, 1):
        h4a.writes()
        wv = h4a.woven(40)
        XU = AUX
        pre = []
        for j in range(4):
            pre.append(lambda j=j: a(f"v_lshlrev_b32 v{XU+2*j}, 16, v{XR+j}"))
            pre.append(lambda j=j: a(f"v_and_b32 v{XU+2*j+1}, 0xffff0000, v{XR+j}"))
        for j in range(8): pre.append(lambda j=j: a(f"v_add_f32 v{32+j}, v{32+j}, v{vB2}"))
        for j in range(8): wv.append(lambda j=j: a(f"v_add_f32 v{32+j}, v{32+j}, v{XU+j}"))
        wv = pre[:8] + wv[:1] + wv[1:7] + pre[8:] + wv[10:]
        wv.append(lambda: out(0))
    else:
        h4a.writes(); resid(0); h4a.reads(); out(0)
    h4b.late_check(0x62 + L)
    stamp("epi_a")
    kc = [0]
    WPS = opt("WPS", 2)
    def hk(s, k):
        for _ in range(WPS if k == 1 else WPS - 1):
            if wv:
                f = wv.pop(0)
                if f: f()
        if L == 0 and k == 1 and s + LKH >= 28 and kc[0] < NKT:
            kvdma(kc[0]); kc[0] += 1
    h4b.run(hook=hk)
    assert not wv
    stamp("gemm_b")
    if L == 0 and opt("XE", 0) == 1: xa_start()
    h4b.writes()
    if L == 0 and opt("XE", 0) == 2: xa_start()
    if L == 0 and opt("KE", 2):
        while kc[0] < 12: kvdma(kc[0]); kc[0] += 1
    resid(1); h4b.reads()
    if L == 0 and opt("KE", 2) == 2:
        while kc[0] < 16: G["kvlast"] = kvdma(kc[0]); kc[0] += 1
    out(1)
    if L == 0:
        row_stats_publish(sAS2W, 32)
        for j in range(kc[0], 16): G["kvlast"] = kvdma(j)
    stamp(f"p4_{L}")

def emit_ool():
    for h, nxt, lab, back in OOL:
        a.label(lab)
        a.hist = []
        a.vm_done = a.vm
        h.window()
        h.steps(lab, force=False)
        if nxt is not None:
            if nxt.kind == 2: nxt.can_issue()
            nxt.window()
            a("s_waitcnt vmcnt(0)")
        a("s_nop 15")
        a(f"s_branch {back}")

prologue()
for L in range(2):
    p1(L); p2(L); p34(L)
finish()
a.label("L_END")
emit_ool()
a.label("L_EXIT")
a("s_endpgm")

hdr = open(f"ref.s").read().split("; Override launch")[0]
out = hdr + f"""; @launch grid=(256,1,1) block=(256,1,1) lds={LDS_BYTES}
.amdgcn_target "amdgcn-amd-amdhsa--gfx950"
.text
.globl {NAME}_kernel
.p2align 8
.type {NAME}_kernel,@function
{NAME}_kernel:
""" + a.text() + f""".section .rodata,"a"
.p2align 6
.amdhsa_kernel {NAME}_kernel
  .amdhsa_next_free_vgpr 512
  .amdhsa_next_free_sgpr 102
  .amdhsa_accum_offset 256
  .amdhsa_group_segment_fixed_size 0
  .amdhsa_kernarg_size 88
  .amdhsa_user_sgpr_count 2
  .amdhsa_user_sgpr_kernarg_segment_ptr 1
  .amdhsa_system_sgpr_workgroup_id_x 1
  .amdhsa_float_denorm_mode_32 3
.end_amdhsa_kernel
"""
outp = [x for x in sys.argv[1:] if x.endswith(".s")]
open(outp[0], "w").write(out)
if DIAG: open(outp[0] + ".stamps", "w").write("\n".join(stamp_names))
```

```python
import sys, struct
from contextlib import contextmanager
from asmlib import Asm, vr, ar, sr

NAME = "interleave_layers__linear_attn_block__mixer_token_mlp__prompt"
DIAG = "--diag" in sys.argv
OPT = {}
for a_ in sys.argv:
    if a_.startswith("-D"):
        k_, v_ = a_[2:].split("="); OPT[k_] = int(v_)
def opt(k, d): return OPT.get(k, d)
def optL(k, L, d0, d1): return OPT.get(f"{k}_{L}", (d0, d1)[L])
def f2u(x): return struct.unpack("<I", struct.pack("<f", x))[0]
def fl(x): return "0x%08x" % f2u(x)
FULL = (1 << 64) - 1
LOG2E = 1.4426950408889634

KVF = [0x2000, 0xC0000]; KVP = [0x8000, 0xC6000]; ST = [0x166000, 0x1A6000]; ST2 = 0x1E6000
SELFP = 0xC0000
PQ = [0x400000, 0x600000]; HT = [0x800000, 0xA00000]; U = [0xC00000, 0xE00000]; X2 = 0x1000000
WQT = 0x1200000
TS = 0x1400000
DUMP = 0x1500000
ERRS = 0x1520000
NONCE = 0x0; TAGQ = 0x1540000
WS_BYTES = 268435456
L_A = 32768; L_B = 98304; LDS_BYTES = 163840
NS = 6; SCR = 12288
sW = 3
SX, SWQKV, SWO, SW1, SW2, SWS, SOUT, SDBG, SB1, SB2, SCODE = 4, 8, 12, 16, 20, 24, 28, 32, 36, 40, 44
sST, sDT, sRB, sHP, sDT3, sFT, sP3, sRH, sKH, sWB, sTO, sONES = 48, 49, 50, 51, 52, 53, 54, 55, 56, 57, 58, 59
sEPS6 = 60; sB = 61
sT0, sT1, sT2, sT3, sT4, sT5 = 62, 63, 64, 65, 66, 67
sSO = 68; sW1K = 69; sTS = 70
sL2E = 74; sWA = 75; sROTX = 76; sROT1 = 77; sROT2 = 78; sRED = 79; sWOFF = 80; sKB = 81; sXC = 82; sWI = 83
sKA = 84
sAKVP, sAPQW, sAPQR, sAKVF, sASTW, sASTR, sAHTW, sAHTR, sAUW, sAUR, sAX2W, sAX2R, sAS2W, sAS2R, sAWQT, sGK = range(84, 100)
sDUM = 100; sNON = 101; sRX0 = 73
vL, vL16, vTA, vTB, vT0, vT1, vT2, vT3 = 0, 1, 2, 3, 4, 5, 6, 7
XR = 8
CKP, CVP, CQP, vB2, vRS, vHH, vOUT, vTSV = 16, 17, 18, 19, 20, 21, 22, 23
vWA, vWB, vWTA, vWTB = 24, 25, 26, 27
MA = 28

a = Asm()
stamp_names = []
G = {}

@contextmanager
def cond():
    st = (a.vm, a.vm_done, a.lg, a.lg_done); h = list(a.hist)
    yield
    a.vm, a.vm_done, a.lg, a.lg_done = st[0], min(st[1], st[0]), st[2], min(st[3], st[2])
    a.hist = h

def stamp(name):
    if not DIAG: return
    if "--lite" in sys.argv and name not in ("start", "end", "p4_0"): return
    k = len(stamp_names); stamp_names.append(name)
    if opt("CYC", 0) and name not in ("start", "end"): a(f"s_memtime {sr(sTS,2)}")
    else: a(f"s_memrealtime {sr(sTS,2)}")
    if name in ("start", "end"): a(f"s_memtime s[0:1]") if name == "end" else a(f"s_memtime {sr(sTS+2,2)}")
    a("s_waitcnt lgkmcnt(0)"); a.lg_done = a.lg
    a(f"v_writelane_b32 v{vTSV}, s{sTS}, {k}")
    if name in ("start", "end"): a(f"v_writelane_b32 v{vTSV}, s{sTS+2 if name == 'start' else 0}, {62 if name == 'start' else 63}")

def srd(base, ptr, nbytes):
    a(f"s_mov_b32 s{base}, s{ptr}")
    a(f"s_and_b32 s{base+1}, s{ptr+1}, 0xffff")
    a(f"s_mov_b32 s{base+2}, {nbytes:#x}")
    a(f"s_mov_b32 s{base+3}, 0x20000")

def set_exec(mask):
    if mask == FULL: a("s_mov_b64 exec, -1")
    elif mask <= 64: a(f"s_mov_b64 exec, {mask}")
    else:
        a(f"s_mov_b32 exec_lo, {mask & 0xffffffff:#x}"); a(f"s_mov_b32 exec_hi, {mask >> 32:#x}")

def lin(dst, terms, const=0):
    first = True
    for r, m in terms:
        t = dst if first else sT5
        if m == 1 and not first: a(f"s_add_u32 s{dst}, s{dst}, s{r}"); continue
        if m & (m - 1) == 0: a(f"s_lshl_b32 s{t}, s{r}, {m.bit_length()-1}")
        else: a(f"s_mul_i32 s{t}, s{r}, {m}")
        if not first: a(f"s_add_u32 s{dst}, s{dst}, s{sT5}")
        first = False
    if const: a(f"s_add_u32 s{dst}, s{dst}, {const:#x}")

def timeout_path(code):
    a(f"s_mov_b32 s{sTO}, 0")
    if DIAG:
        a(f"v_mov_b32 v{vT3}, {code}")
        a(f"s_mov_b32 s{sT5}, {ERRS:#x}")
        a(f"buffer_store_dword v{vT3}, off, {sr(SWS,4)}, s{sT5}")
        a("s_waitcnt vmcnt(0)")

def poll(issue, check, code, pre=None):
    top = a.newlabel("POLL"); done = a.newlabel("PDONE"); chk = a.newlabel("PCHK")
    if pre is not None:
        a.wait(vm=pre)
        st = (a.vm, a.vm_done)
        a(f"s_branch {chk}")
    a.label(top)
    issue()
    a.wait_vm_all(force=True)
    if pre is not None: a.label(chk)
    check()
    a(f"s_cbranch_vccz {done}")
    h = list(a.hist); vmst = (a.vm, a.vm_done)
    if opt("PS", 2) and not (code == 0x20 and opt("A1NS", 1)): a(f"s_sleep {opt('PS', 2)}")
    a(f"s_sub_u32 s{sTO}, s{sTO}, 1")
    a(f"s_cbranch_scc0 {top}")
    timeout_path(code)
    a.label(done)
    a.hist = h; a.vm, a.vm_done = vmst
    if pre is not None: a.vm, a.vm_done = st

def poll1(addr, code, tmp=None, tag=False):
    cmp = (lambda r: a(f"v_cmp_ne_u32 vcc, s{sNON}, v{r}")) if tag else (lambda r: a(f"v_cmp_eq_u32 vcc, -1, v{r}"))
    if tmp is None or not opt("PP", 0):
        poll(lambda: a(f"buffer_load_dword v{vT3}, {addr} sc1"), lambda: cmp(vT3), code)
        return
    top = a.newlabel("PP"); done = a.newlabel("PPD")
    a(f"buffer_load_dword v{vT3}, {addr} sc1")
    a(f"s_nop {opt('PPN', 15)}")
    a.label(top)
    for r, o in ((vT3, tmp), (tmp, vT3)):
        a(f"buffer_load_dword v{o}, {addr} sc1")
        a("s_waitcnt vmcnt(1)")
        cmp(r)
        a(f"s_cbranch_vccz {done}")
    h = list(a.hist)
    a(f"s_sub_u32 s{sTO}, s{sTO}, 2")
    a(f"s_cbranch_scc0 {top}")
    timeout_path(code)
    a.label(done)
    a.hist = h
    a.vm -= 1
    a.vm_done = a.vm - 1

SLD = {}
SPD = {0x50: 1, 0x51: 1, 0x60: 1, 0x61: 1, 0x36: 1, 0x38: 1, 0x39: 1, 0x40: 1}
def spec(can_issue, can_check, window, code, redo, on=True):
    go = a.newlabel("GO")
    d = OPT.get(f"SL{code:x}", SLD.get(code, 0))
    if d: a(f"s_sleep {d}")
    on = OPT.get(f"SP{code:x}", SPD.get(code, 0))
    if on:
        can_issue(); cid = a.vm - 1
        window()
        a.wait(vm=cid)
        can_check()
        force_fail("FRC")
        a(f"s_cbranch_vccz {go}")
        st = (a.vm, a.vm_done, list(a.hist))
        poll(can_issue, can_check, code)
        a.label(redo)
        window()
        a.label(go)
        a.hist = []
        a("s_nop 0")
    else:
        poll(can_issue, can_check, code)
        a.label(redo)
        window()

force_n = [0]
def force_fail(kind):
    if not opt(kind, 0): return
    k = force_n[0] % 32; force_n[0] += 1
    l = a.newlabel("FF")
    a(f"s_bitcmp1_b32 s2, {k}")
    a(f"s_cbranch_scc1 {l}")
    a(f"s_bitset1_b32 s2, {k}")
    a("s_mov_b64 vcc, 1")
    a.label(l)

def verify(vMX, redo, force=True):
    ok = a.newlabel("VOK")
    a(f"v_cmp_eq_u32 vcc, -1, v{vMX}")
    if force: force_fail("FRV")
    a(f"s_cbranch_vccz {ok}")
    h = list(a.hist)
    a("s_waitcnt vmcnt(0)")
    a(f"s_sub_u32 s{sTO}, s{sTO}, 64")
    a(f"s_cbranch_scc0 {redo}")
    a(f"s_mov_b32 s{sTO}, 0")
    a.label(ok)
    a.hist = h

def finish():
    if opt("AMP", -1) >= 0:
        lp = a.newlabel("AMPL"); sk = a.newlabel("AMPS")
        stamp("pre_end")
        a(f"s_cmp_lg_u32 s{sB}, 77")
        a(f"s_cbranch_scc1 {sk}")
        a(f"v_readlane_b32 s{sT0}, v{vTSV}, 0")
        a(f"v_readlane_b32 s{sT1}, v{vTSV}, {opt('AMP', 0)}")
        a(f"s_memrealtime s[70:71]")
        a("s_waitcnt lgkmcnt(0)")
        a(f"s_sub_u32 s{sT1}, s{sT1}, s{sT0}")
        a(f"s_lshl_b32 s{sT1}, s{sT1}, 2")
        a(f"s_add_u32 s{sT1}, s70, s{sT1}")
        a.label(lp)
        a(f"s_memrealtime s[70:71]")
        a("s_waitcnt lgkmcnt(0)")
        a(f"s_sub_u32 s{sT2}, s70, s{sT1}")
        a(f"s_cmp_lt_i32 s{sT2}, 0")
        a(f"s_cbranch_scc1 {lp}")
        a.label(sk)
    if DIAG:
        a(f"v_writelane_b32 v{vTSV}, s{sTO}, 61")
        stamp("end")
        lin(sT0, [(sB, 1024), (sW, 256)], TS)
        a(f"v_lshlrev_b32 v{vT0}, 2, v{vL}")
        a(f"buffer_store_dword v{vTSV}, v{vT0}, {sr(SWS,4)}, s{sT0} offen")
    a("s_endpgm")

def pk(op, d, x, y, z=None, hi=None, lo=None):
    ops = [x, y] + ([z] if z is not None else [])
    m = ""
    if lo: m += " op_sel:[" + ",".join(map(str, lo)) + "]"
    if hi: m += " op_sel_hi:[" + ",".join(map(str, hi)) + "]"
    a(f"v_pk_{op}_f32 {vr(d,2)}, " + ", ".join(ops) + m)

def mfma(d, A, B, C):
    a(f"v_mfma_f32_32x32x16_bf16 {d}, {A}, {B}, {C}")

def ws_store4(reg, soff, off=0): return a(f"buffer_store_dwordx4 {vr(reg,4)}, v{vL16}, {sr(SWS,4)}, s{soff} offen offset:{off} sc1")

def tr_base(dst_a, dst_b, sel64, sel32, region):
    a(f"v_bfe_u32 v{vT0}, v{vL}, 2, 2")
    a(f"v_lshl_add_u32 v{vT0}, v{vHH}, 2, v{vT0}")
    a(f"v_lshlrev_b32 v{dst_a}, 7, v{vT0}")
    a(f"v_bfe_u32 v{vT1}, v{vL}, 3, 1")
    a(f"v_lshl_add_u32 v{dst_a}, v{vT1}, 6, v{dst_a}")
    a(f"v_bfe_u32 v{vT1}, v{vL}, 4, 1")
    a(f"v_lshl_add_u32 v{dst_a}, v{vT1}, 5, v{dst_a}")
    a(f"v_and_b32 v{vT1}, 3, v{vL}")
    a(f"v_lshl_add_u32 v{dst_a}, v{vT1}, 3, v{dst_a}")
    for sel, sh in ((sel64, 6), (sel32, 5)):
        if sel is not None:
            a(f"s_lshl_b32 s{sT5}, s{sel}, {sh}")
            a(f"v_xor_b32 v{dst_a}, s{sT5}, v{dst_a}")
    a(f"v_add_u32 v{dst_a}, {region}, v{dst_a}")
    a(f"v_xor_b32 v{dst_b}, 64, v{dst_a}")

def dma_voff(dst, dst2, pitch, scol):
    a(f"v_lshrrev_b32 v{vT0}, 3, v{vL}")
    a(f"v_mul_u32_u24 v{dst}, {pitch}, v{vT0}")
    a(f"v_bfe_u32 v{vT1}, v{vL}, 4, 1")
    a(f"v_lshlrev_b32 v{vT1}, 2, v{vT1}")
    a(f"v_and_b32 v{vT0}, 7, v{vL}")
    a(f"v_xor_b32 v{vT0}, v{vT0}, v{vT1}")
    a(f"v_lshl_add_u32 v{dst}, v{vT0}, 4, v{dst}")
    a(f"v_add_u32 v{dst}, s{scol}, v{dst}")
    a(f"v_add_u32 v{dst2}, {8*pitch-1024}, v{dst}")

R1, R2 = 16, 11
def wreg(kind, t, j, n):
    r, base = (R1, 0) if kind == 1 else (R2, R1 * 8)
    if t < r: return ar(base + 8 * t + j, n)
    t -= r
    if t < 5: return ar(216 + 8 * t + j, n)
    return vr(160 + 8 * (t - 5) + j, n)

class Pump:
    def setup(self, kind, L, extra=0):
        self.kind = kind
        self.pitch, self.srd, self.n = (3584, SW1, 32) if kind == 1 else (4096, SW2, 28)
        self.t0 = 0 if L == 0 else (R1 if kind == 1 else R2)
        self.extra = extra
        self.ns = opt("NS1", 6) if kind == 1 else NS
        self.i = self.t0; self.c = self.t0; self.vid = {}; self.lid = {}
        a.c(f"pump setup W{kind}")
        a(f"s_lshl_b32 s{sT5}, s{sKH}, 5")
        a(f"v_xor_b32 v{vWTA}, s{sT5}, v{vWTA}")
        a(f"v_xor_b32 v{vWTB}, s{sT5}, v{vWTB}")
        lin(sT4, [(sFT if kind == 1 else sST, 128), (sW, self.n * 16 * self.pitch)])
        dma_voff(vWA, vWB, self.pitch, sT4)
        rot = sROT1 if kind == 1 else sROT2
        a(f"s_add_u32 s{sT5}, s{rot}, {self.t0}")
        a(f"s_sub_u32 s{sWOFF}, s{sT5}, {self.n}")
        a(f"s_cselect_b32 s{sWOFF}, s{sT5}, s{sWOFF}")
        a(f"s_mul_i32 s{sWOFF}, s{sWOFF}, {16*self.pitch}")
    def place(self, t):
        k = t - self.t0
        if k < self.extra: return ("B", k * 2048)
        return ("A", ((k - self.extra) % self.ns) * 2048)
    def prev_user(self, t):
        p = t - self.ns
        return p if p - self.t0 >= self.extra else None
    def room(self, lag=0):
        p = self.prev_user(self.i)
        return p is None or p < self.c - lag
    def issue1(self):
        t = self.i
        if opt("NOPUMP", 0):
            self.vid[t] = None; self.i += 1; return
        p = self.prev_user(t)
        if p is not None: a.wait(lg=self.lid[p])
        reg, o = self.place(t)
        a(f"s_add_u32 m0, s{sWB if reg == 'B' else sWA}, {o}")
        if t > self.t0:
            a(f"s_add_u32 s{sWOFF}, s{sWOFF}, {16*self.pitch}")
            a(f"s_cmp_eq_u32 s{sWOFF}, {self.n*16*self.pitch}")
            a(f"s_cselect_b32 s{sWOFF}, 0, s{sWOFF}")
        a(f"buffer_load_dwordx4 v{vWA}, {sr(self.srd,4)}, s{sWOFF} offen lds")
        self.vid[t] = a(f"buffer_load_dwordx4 v{vWB}, {sr(self.srd,4)}, s{sWOFF} offen offset:1024 lds")
        self.i += 1
    def fill(self, upto=None):
        lim = self.n if upto is None else min(self.n, upto)
        while self.i < lim and self.room(): self.issue1()
    def run(self, target, refill=True, tmp=(vT0, vT1), first=True):
        target = min(target, self.n)
        haveB = not first
        while self.c < target:
            t = self.c
            if t >= self.i: self.issue1()
            if opt("NOPUMP", 0):
                self.c += 1; continue
            reg, o = self.place(t)
            ta, tb = vWTA, vWTB
            if reg == "B":
                ta, tb = tmp
                if not haveB:
                    a(f"v_add_u32 v{ta}, 65536, v{vWTA}"); a(f"v_add_u32 v{tb}, 65536, v{vWTB}"); haveB = True
            a.wait(vm=self.vid[t])
            a(f"ds_read_b64_tr_b16 {wreg(self.kind,t,0,2)}, v{ta} offset:{o}")
            a(f"ds_read_b64_tr_b16 {wreg(self.kind,t,2,2)}, v{ta} offset:{o+1024}")
            a(f"ds_read_b64_tr_b16 {wreg(self.kind,t,4,2)}, v{tb} offset:{o}")
            self.lid[t] = a(f"ds_read_b64_tr_b16 {wreg(self.kind,t,6,2)}, v{tb} offset:{o+1024}")
            self.c += 1
            lim = self.n if refill else target
            if self.i < lim and self.room(lag=1): self.issue1()
        if refill: self.fill()
pump = Pump()

def prologue():
    a(f"s_cmp_ge_u32 s2, 256")
    a(f"s_cbranch_scc1 L_EXIT")
    a(f"s_load_dwordx16 {sr(sKA,16)}, s[0:1], 0")
    a(f"s_load_dwordx4 {sr(SCODE,4)}, s[0:1], 64")
    a(f"s_load_dwordx2 s[100:101], s[0:1], 80")
    a(f"s_mov_b32 s{sB}, s2")
    if opt("FRV", 0) or opt("FRC", 0): a("s_mov_b32 s2, 0")
    a(f"v_lshrrev_b32 v{vT0}, 6, v0")
    a(f"v_and_b32 v{vL}, 63, v0")
    a(f"v_readfirstlane_b32 s{sW}, v{vT0}")
    a(f"v_lshlrev_b32 v{vL16}, 4, v{vL}")
    a(f"v_lshrrev_b32 v{vHH}, 5, v{vL}")
    if opt("CODEPF", 2) == 2:
        a(f"s_getpc_b64 {sr(SB1,2)}")
        a.label("L_PC")
        a(f"s_and_b32 s{SB1+1}, s{SB1+1}, 0xffff")
        a(f"s_mov_b32 s{SB1+2}, L_END - L_PC")
        a(f"s_mov_b32 s{SB1+3}, 0x20000")
        a(f"s_lshr_b32 s{sT0}, s{sB}, 3")
        a(f"s_lshl_b32 s{sT0}, s{sT0}, 2")
        a(f"s_add_u32 s{sT0}, s{sT0}, s{sW}")
        a(f"s_lshl_b32 s{sT0}, s{sT0}, 10")
        a(f"buffer_load_dwordx4 {ar(252,4)}, v{vL16}, {sr(SB1,4)}, s{sT0} offen")
    if DIAG: a(f"v_mov_b32 v{vTSV}, 0")
    stamp("start")
    X_, I_ = sT0, sT1
    a(f"s_and_b32 s{X_}, s{sB}, 7")
    a(f"s_lshr_b32 s{I_}, s{sB}, 3")
    a(f"s_lshr_b32 s{sT2}, s{I_}, 3")
    a(f"s_and_b32 s{sDT}, s{I_}, 7")
    a(f"s_and_b32 s{sRB}, s{X_}, 3")
    a(f"s_lshl_b32 s{sRB}, s{sRB}, 2")
    a(f"s_add_u32 s{sRB}, s{sRB}, s{sT2}")
    a(f"s_lshr_b32 s{sHP}, s{X_}, 2")
    a(f"s_lshl_b32 s{sHP}, s{sHP}, 3")
    a(f"s_add_u32 s{sHP}, s{sHP}, s{sDT}")
    a(f"s_lshr_b32 s{sROTX}, s{sDT}, 1")
    a(f"s_add_u32 s{sROTX}, s{sROTX}, s{sT2}")
    a(f"s_and_b32 s{sROTX}, s{sROTX}, 3")
    a(f"s_lshl_b32 s{sROTX}, s{sROTX}, 1")
    a(f"s_and_b32 s{sT3}, s{I_}, 1")
    a(f"s_add_u32 s{sROTX}, s{sROTX}, s{sT3}")
    a(f"s_and_b32 s{sRX0}, s{sROTX}, {opt('RXM', 6)}")
    a(f"s_lshl_b32 s{sW1K}, s{sW}, 10")
    a(f"s_lshl_b32 s{sWB}, s{sW}, 14")
    a(f"s_add_u32 s{sWA}, s{sWB}, {L_A}")
    a(f"s_add_u32 s{sWB}, s{sWB}, {L_B}")

def roles2():
    X_, I_ = sT0, sT1
    a(f"s_and_b32 s{X_}, s{sB}, 7")
    a(f"s_lshr_b32 s{I_}, s{sB}, 3")
    a(f"s_lshr_b32 s{sT2}, s{I_}, 3")
    a(f"s_lshl_b32 s{sST}, s{X_}, 2")
    a(f"s_add_u32 s{sST}, s{sST}, s{sT2}")
    a(f"s_lshr_b32 s{sT3}, s{X_}, 1")
    a(f"s_mul_i32 s{sT3}, s{sT3}, 7")
    a(f"s_and_b32 s{sT4}, s{X_}, 1")
    a(f"s_lshl_b32 s{sT5}, s{sT4}, 2")
    a(f"s_add_u32 s{sFT}, s{sT3}, s{sT5}")
    a(f"s_add_u32 s{sFT}, s{sFT}, s{sT2}")
    a(f"s_and_b32 s{sP3}, s{I_}, 3")
    a(f"s_add_u32 s{sT5}, s{sT5}, s{sP3}")
    a(f"s_add_u32 s{sKB}, s{sT3}, 3")
    a(f"s_cmp_lt_u32 s{I_}, 24")
    a(f"s_cselect_b32 s{sFT}, s{sFT}, s{sKB}")
    a(f"s_cselect_b32 s{sDT3}, s{sDT}, s{sT5}")
    a(f"s_mul_i32 s{sT4}, s{sT4}, 3")
    a(f"s_add_u32 s{sXC}, s{sT3}, s{sT4}")
    a(f"s_lshl_b32 s{sROT1}, s{X_}, 2")
    a(f"s_and_b32 s{sT3}, s{I_}, 3")
    a(f"s_lshr_b32 s{sP3}, s{I_}, 2")
    a(f"s_lshl_b32 s{sWI}, s{I_}, 2")
    a(f"s_add_u32 s{sWI}, s{sWI}, s{sW}")
    a(f"s_lshl_b32 s{sRED}, s{X_}, 2")
    a(f"s_add_u32 s{sRED}, s{sRED}, s{sT3}")
    a(f"s_lshl_b32 s{sRED}, s{sRED}, 1")
    a(f"s_add_u32 s{sRED}, s{sRED}, s{sW}")
    a(f"s_cmp_lt_u32 s{sW}, 2")
    a(f"s_cselect_b32 s{sRED}, s{sRED}, 99")
    a(f"s_cmp_eq_u32 s{sP3}, 7")
    a(f"s_cselect_b32 s{sRED}, s{sRED}, 99")
    a(f"s_mul_i32 s{sROT2}, s{X_}, 7")
    a(f"s_lshr_b32 s{sROT2}, s{sROT2}, 2")
    a(f"s_lshl_b32 s{sROT2}, s{sROT2}, 1")
    if opt("MAP", 0):
        a(f"s_and_b32 s{sT2}, s{X_}, 1")
        a(f"s_lshl_b32 s{sT2}, s{sT2}, 2")
        a(f"s_and_b32 s{sT3}, s{I_}, 3")
        a(f"s_lshr_b32 s{sT5}, s{X_}, 1")
        a(f"s_add_u32 s{sT4}, s{sP3}, s{sT3}")
        a(f"s_and_b32 s{sT4}, s{sT4}, {opt('MROT', 1)}")
        if opt("MAP", 0) & 1:
            a(f"s_add_u32 s{sDT3}, s{sT2}, s{sT3}")
            a(f"s_mul_i32 s{sFT}, s{sT5}, 7")
            a(f"s_add_u32 s{sFT}, s{sFT}, s{sP3}")
            a(f"s_lshl_b32 s{sROT1}, s{sT4}, 4")
        if opt("MAP", 0) & 2:
            a(f"s_add_u32 s{sDT}, s{sT2}, s{sT3}")
            a(f"s_lshl_b32 s{sST}, s{sT5}, 3")
            a(f"s_add_u32 s{sST}, s{sST}, s{sP3}")
            a(f"s_mul_i32 s{sROT2}, s{sT4}, 14")
    a(f"s_lshr_b32 s{sRH}, s{sW}, 1")
    a(f"s_and_b32 s{sKH}, s{sW}, 1")
    a(f"s_mov_b32 s{sTO}, 400000")
    a(f"s_mov_b32 s{sONES}, 0x3f803f80")
    a(f"s_mov_b32 s{sEPS6}, {fl(1e-6)}")
    a(f"s_mov_b32 s{sL2E}, {fl(LOG2E)}")

def late_srds():
    srd(SWO, sKA + 4, 512 * 512 * 2)
    srd(SW1, sKA + 8, 2048 * 1792 * 2)
    srd(SB1, sKA + 10, 1792 * 2)
    srd(SW2, sKA + 12, 1792 * 2048 * 2)
    srd(SB2, sKA + 14, 2048 * 2)
    srd(SOUT, SCODE, 2048 * 512 * 2)
    srd(SDBG, SCODE + 2, 256)

def code_prefetch():
    if opt("CODEPF", 2) == 1:
        a(f"s_getpc_b64 {sr(SCODE,2)}")
        a.label("L_PC")
        a(f"s_and_b32 s{SCODE+1}, s{SCODE+1}, 0xffff")
        a(f"s_mov_b32 s{SCODE+2}, L_END - L_PC")
        a(f"s_mov_b32 s{SCODE+3}, 0x20000")
        a(f"s_lshl_b32 s{sT0}, s{sWI}, 10")
        a(f"buffer_load_dwordx4 {ar(252,4)}, v{vL16}, {sr(SCODE,4)}, s{sT0} offen")
    srd(SCODE, SW1, 2048 * 1792 * 2)
    a(f"s_cmp_eq_u32 s{sP3}, 7")
    a(f"s_cselect_b32 s{SW1+2}, 0, s{SW1+2}")

def addresses():
    lin(sAKVP, [(sHP, 64 * 640), (sRB, 4 * 640), (sW, 640)], KVP[0])
    lin(sAPQW, [(sRB, 4 * 32768), (sW, 32768), (sHP, 2048)], PQ[0])
    lin(sAPQR, [(sST, 65536), (sRH, 32768), (sKH, 16384)], PQ[0])
    lin(sAKVF, [(sKH, 16 * 768)], KVF[0])
    lin(sASTW, [(sST, 8192), (sDT, 1024), (sKH, 512), (sRH, 256)], ST[0])
    lin(sASTR, [(sST, 8192), (sRH, 256)], ST[0])
    lin(sAHTW, [(sDT, 262144), (sST, 8192), (sRH, 4096), (sKH, 256)], HT[0])
    lin(sAHTR, [(sDT3, 262144), (sW, 65536)], HT[0])
    lin(sAUW, [(sDT3, 229376), (sFT, 8192), (sRH, 4096), (sKH, 2048)], U[0])
    a(f"s_cmp_eq_u32 s{sP3}, 7")
    a(f"s_cselect_b32 s{sAUW}, {WS_BYTES:#x}, s{sAUW}")
    lin(sAUR, [(sDT, 229376), (sW, 57344)], U[0])
    lin(sAX2W, [(sST, 65536), (sRH, 32768), (sDT, 4096), (sKH, 1024)], X2)
    lin(sAX2R, [(sRB, 4 * 32768), (sW, 32768)], X2)
    a(f"s_add_u32 s{sAS2W}, s{sASTW}, {ST2 - ST[0]:#x}")
    lin(sAS2R, [(sRB, 2 * 8192), (sRH, 8192), (sKH, 256)], ST2)
    lin(sAWQT, [(sHP, 98304)], WQT)
    a(f"s_mov_b32 s{sGK}, {fl(-2.0 * 0.7978845608028654 * LOG2E * 0.044715)}")

def next_layer_addresses():
    for r, d in ((sAKVP, KVP[1] - KVP[0]), (sAPQW, PQ[1] - PQ[0]), (sAPQR, PQ[1] - PQ[0]), (sAKVF, KVF[1] - KVF[0]),
                 (sASTW, ST[1] - ST[0]), (sASTR, ST[1] - ST[0]), (sAHTW, HT[1] - HT[0]), (sAHTR, HT[1] - HT[0]),
                 (sAUW, U[1] - U[0]), (sAUR, U[1] - U[0])):
        a(f"s_add_u32 s{r}, s{r}, {d:#x}")

def kv_poison(P, L):
    r = sAKVP
    if L == 1:
        a(f"s_add_u32 s{sT1}, s{sAKVP}, {KVP[1]-KVP[0]:#x}"); r = sT1
    set_exec((1 << 40) - 1)
    ws_store4(P, r)
    a(f"s_mul_i32 s{sT0}, s{sRED}, 384")
    a(f"s_add_u32 s{sT0}, s{sT0}, {KVF[L]:#x}")
    a(f"s_cmp_ge_u32 s{sRED}, 64")
    a(f"s_cselect_b32 s{sT0}, {WS_BYTES:#x}, s{sT0}")
    set_exec((1 << 24) - 1)
    ws_store4(P, sT0)
    set_exec(FULL)
def ht_voff(dst):
    a(f"v_and_b32 v{dst}, 15, v{vL}")
    a(f"v_lshlrev_b32 v{dst}, 4, v{dst}")
    a(f"v_lshl_add_u32 v{dst}, v{vHH}, 9, v{dst}")
    a(f"v_bfe_u32 v{vT0}, v{vL}, 4, 1")
    a(f"v_lshl_add_u32 v{dst}, v{vT0}, 10, v{dst}")
def tile_poison(P, r, delta, step):
    v = vL16
    if r == sAHTW:
        ht_voff(vT1); v = vT1
    if delta:
        a(f"s_add_u32 s{sT0}, s{r}, {delta:#x}"); r = sT0
    for f in range(2): a(f"buffer_store_dwordx4 {vr(P,4)}, v{v}, {sr(SWS,4)}, s{r} offen offset:{step*f} sc1")
def canary_poison(P):
    lines = ((sAHTW, 2048+1024+512+128), (sAUW, 896), (sAUW, 1024+896), (sAHTW, HT[1]-HT[0]+2048+1024+512+128),
             (sAUW, U[1]-U[0]+896), (sAUW, U[1]-U[0]+1024+896), (sAPQW, PQ[1]-PQ[0]+1024+896), (sAX2W, 896))
    a(f"v_lshrrev_b32 v{vT0}, 3, v{vL}")
    for g, (r, d) in enumerate(lines):
        a(f"s_add_u32 s{sT0}, s{r}, {d:#x}")
        if g == 0: a(f"v_mov_b32 v{vT1}, s{sT0}")
        else:
            a(f"v_mov_b32 v{vT2}, s{sT0}")
            a(f"v_cmp_eq_u32 vcc, {g}, v{vT0}")
            a(f"v_cndmask_b32 v{vT1}, v{vT1}, v{vT2}, vcc")
    a(f"v_and_b32 v{vT0}, 7, v{vL}")
    a(f"v_lshl_add_u32 v{vT1}, v{vT0}, 4, v{vT1}")
    a(f"buffer_store_dwordx4 {vr(P,4)}, v{vT1}, {sr(SWS,4)}, 0 offen sc1")
def st_poison(P):
    lin(sT0, [(sB, 3072), (sW, 768)], ST[0])
    set_exec((1 << 48) - 1)
    ws_store4(P, sT0)
    set_exec(FULL)
def set_poi(P):
    for i in range(4): a(f"v_mov_b32 v{P+i}, -1")

def misc_loads():
    lin(sT0, [(sST, 64), (sRH, 32)])
    a(f"v_and_b32 v{vT0}, 31, v{vL}")
    a(f"v_add_u32 v{vT0}, s{sT0}, v{vT0}")
    a(f"v_lshlrev_b32 v{vT1}, 1, v{vT0}")
    a(f"buffer_load_ushort v{vB2}, v{vT1}, {sr(SB2,4)}, 0 offen")
    a(f"v_lshlrev_b32 v{vT0}, 10, v{vT0}")
    a(f"v_lshl_add_u32 v{vOUT}, v{vHH}, 4, v{vT0}")
    lin(sT0, [(sDT, 128), (sKH, 32)])
    a(f"v_add_u32 v{vOUT}, s{sT0}, v{vOUT}")
    a(f"buffer_load_dwordx4 {vr(XR,4)}, v{vOUT}, {sr(SX,4)}, 0 offen")
    a(f"buffer_load_dwordx4 {vr(XR+4,4)}, v{vOUT}, {sr(SX,4)}, 0 offen offset:64")

def touch(srdn, rows_per_wave, lg, pitch, scol_emit, dst):
    n = rows_per_wave << lg
    scol_emit()
    a(f"v_min_u32 v{vT0}, {n-1}, v{vL}")
    a(f"v_lshrrev_b32 v{vT1}, {lg}, v{vT0}")
    a(f"v_mul_u32_u24 v{vT1}, {pitch}, v{vT1}")
    a(f"v_and_b32 v{vT0}, {(1<<lg)-1}, v{vT0}")
    a(f"v_lshl_add_u32 v{vT0}, v{vT0}, 7, v{vT1}")
    a(f"s_mul_i32 s{sT5}, s{sWI}, {rows_per_wave*pitch}")
    a(f"s_add_u32 s{sT4}, s{sT4}, s{sT5}")
    a(f"buffer_load_dword {dst}, v{vT0}, {sr(srdn,4)}, s{sT4} offen")
def touch_w1(dst): touch(SCODE, 16, 2, 3584, lambda: a(f"s_lshl_b32 s{sT4}, s{sXC}, 7"), dst)
def touch_w2(dst):
    def c2():
        a(f"s_and_b32 s{sT4}, s{sB}, 7"); a(f"s_lshl_b32 s{sT4}, s{sT4}, 9")
    touch(SW2, 16, 2, 4096, c2, dst)
def touch_w2h(dst, t0):
    a(f"s_lshr_b32 s{sT4}, s{sWI}, 3")
    a(f"s_add_u32 s{sT4}, s{sT4}, s{sROT2}")
    if t0: a(f"s_add_u32 s{sT4}, s{sT4}, {t0}")
    a(f"s_sub_u32 s{sT5}, s{sT4}, 28")
    a(f"s_cselect_b32 s{sT4}, s{sT4}, s{sT5}")
    a(f"s_and_b32 s{sT5}, s{sWI}, 3")
    a(f"s_mul_i32 s{sT5}, s{sT5}, 28")
    a(f"s_add_u32 s{sT4}, s{sT4}, s{sT5}")
    a(f"s_lshl_b32 s{sT4}, s{sT4}, 1")
    a(f"s_bfe_u32 s{sT5}, s{sWI}, 0x10002")
    a(f"s_add_u32 s{sT4}, s{sT4}, s{sT5}")
    a(f"s_lshl_b32 s{sT4}, s{sT4}, 15")
    a(f"s_and_b32 s{sT5}, s{sB}, 7")
    a(f"s_lshl_b32 s{sT5}, s{sT5}, 9")
    a(f"s_add_u32 s{sT4}, s{sT4}, s{sT5}")
    a(f"s_cmp_eq_u32 s{sP3}, 7")
    a(f"s_cselect_b32 s{sT4}, 0x10000000, s{sT4}")
    a(f"v_min_u32 v{vT0}, 31, v{vL}")
    a(f"v_lshrrev_b32 v{vT1}, 2, v{vT0}")
    a(f"v_and_b32 v{vT0}, 3, v{vT0}")
    a(f"v_lshlrev_b32 v{vT0}, 7, v{vT0}")
    a(f"v_lshl_add_u32 v{vT0}, v{vT1}, 12, v{vT0}")
    a(f"buffer_load_dword {dst}, v{vT0}, {sr(SW2,4)}, s{sT4} offen")
def touch_w1h(dst, t0):
    a(f"s_lshr_b32 s{sT4}, s{sWI}, 3")
    a(f"s_add_u32 s{sT4}, s{sT4}, s{sROT1}")
    if t0: a(f"s_add_u32 s{sT4}, s{sT4}, {t0}")
    a(f"s_and_b32 s{sT4}, s{sT4}, 31")
    a(f"s_and_b32 s{sT5}, s{sWI}, 3")
    a(f"s_lshl_b32 s{sT5}, s{sT5}, 5")
    a(f"s_add_u32 s{sT4}, s{sT4}, s{sT5}")
    a(f"s_lshl_b32 s{sT4}, s{sT4}, 1")
    a(f"s_bfe_u32 s{sT5}, s{sWI}, 0x10002")
    a(f"s_add_u32 s{sT4}, s{sT4}, s{sT5}")
    a(f"s_mul_i32 s{sT4}, s{sT4}, {8*3584}")
    a(f"s_lshl_b32 s{sT5}, s{sXC}, 7")
    a(f"s_add_u32 s{sT4}, s{sT4}, s{sT5}")
    a(f"v_min_u32 v{vT0}, 31, v{vL}")
    a(f"v_lshrrev_b32 v{vT1}, 2, v{vT0}")
    a(f"v_and_b32 v{vT0}, 3, v{vT0}")
    a(f"v_lshlrev_b32 v{vT0}, 7, v{vT0}")
    a(f"v_mul_u32_u24 v{vT1}, 3584, v{vT1}")
    a(f"v_add_u32 v{vT0}, v{vT1}, v{vT0}")
    a(f"buffer_load_dword {dst}, v{vT0}, {sr(SCODE,4)}, s{sT4} offen")
def touch_wo(dst): touch(SWO, 4, 3, 1024, lambda: a(f"s_mov_b32 s{sT4}, 0"), dst)
def touches(L, where):
    dst = "a25" if where in (1, 2, 3, 6, 7, 8) else None
    if optL("T1", L, 8, 0) == where: touch_w1(dst + "2" if dst else "v31")
    if optL("T1A", L, 0, 0) == where: touch_w1h(dst + "2" if dst else "v31", 0)
    if optL("T1B", L, 0, 0) == where: touch_w1h(dst + "5" if dst else "v31", 16)
    if optL("T2", L, 0, 0) == where: touch_w2(dst + "3" if dst else "v31")
    if optL("T2H", L, 9, 0) == where: touch_w2h(dst + "3" if dst else "v31", 0)
    if optL("T2G", L, 0, 0) == where: touch_w2h(dst + "3" if dst else "v31", 14)

def split2(dst, src, t0):
    a(f"v_cvt_pk_bf16_f32 v{t0}, v{src}, v{src}")
    a(f"v_and_b32 v{t0}, 0xffff0000, v{t0}")
    a(f"v_sub_f32 v{dst}, v{src}, v{t0}")
    a(f"v_cvt_pk_bf16_f32 v{dst}, v{t0}, v{dst}")

def stats_to_frags(S, Q, RA):
    a(f"v_mul_f32 v{S}, {fl(-1/512)}, v{S}")
    a(f"v_mul_f32 v{Q}, {fl(1/512)}, v{Q}")
    a(f"v_cmp_eq_u32 vcc, 0, v{vHH}")
    a(f"v_fma_f32 v{Q}, -v{S}, v{S}, v{Q}")
    a(f"v_max_f32 v{Q}, 0, v{Q}")
    a(f"v_add_f32 v{Q}, {fl(1e-5)}, v{Q}")
    a(f"v_rsq_f32 v{vRS}, v{Q}")
    a(f"v_cndmask_b32 v{S}, 0, v{S}, vcc")
    a(f"v_cvt_pk_bf16_f32 v{MA}, v{S}, v{S}")
    a(f"v_cndmask_b32 v{Q}, 0, v{vRS}, vcc")
    a(f"v_and_b32 v{vT0}, 0xffff0000, v{MA}")
    a(f"v_sub_f32 v{S}, v{S}, v{vT0}")
    a(f"v_cvt_pk_bf16_f32 v{MA+1}, v{S}, v{S}")
    split2(RA, Q, vT0)

def stats_check(SB):
    a(f"v_max3_u32 v{vT3}, v{SB+1}, v{SB+3}, v{SB+5}")
    a(f"v_max3_u32 v{vT3}, v{vT3}, v{SB+7}, v{SB+9}")
    a(f"v_max3_u32 v{vT3}, v{vT3}, v{SB+11}, v{SB+13}")
    a(f"v_max_u32 v{vT3}, v{vT3}, v{SB+15}")
    a(f"v_cmp_eq_u32 vcc, -1, v{vT3}")
def stats_sum(SB):
    for n in (4, 2, 1):
        for p in range(n): pk("add", SB+2*p, vr(SB+2*p,2), vr(SB+2*(p+n),2))
    a(f"v_mov_b32 v{SB+2}, v{SB}")
    a(f"v_mov_b32 v{SB+3}, v{SB+1}")
    a(f"v_permlane32_swap_b32 v{SB}, v{SB+2}")
    a(f"v_permlane32_swap_b32 v{SB+1}, v{SB+3}")
    pk("add", SB, vr(SB,2), vr(SB+2,2))

A1B = 128
def a1_issue():
    a(f"s_mov_b32 s{sT3}, s{sKB}")
    for p in range(16):
        a(f"buffer_load_dwordx4 {vr(A1B+4*p,4)}, v{vL16}, {sr(SWS,4)}, s{sT3} offen offset:{(p&1)*2560} sc1")
        if p & 1 and p < 15: a(f"s_add_u32 s{sT3}, s{sT3}, {2*2560}")
def a1_early(L):
    skip = a.newlabel("NOA1E")
    a(f"s_cmp_ge_u32 s{sRED}, 64")
    a(f"s_cbranch_scc1 {skip}")
    with cond():
        a(f"s_lshr_b32 s{sKB}, s{sRED}, 2")
        a(f"s_mul_i32 s{sKB}, s{sKB}, {16*2560}")
        a(f"s_and_b32 s{sT2}, s{sRED}, 3")
        a(f"s_mul_i32 s{sT2}, s{sT2}, 640")
        a(f"s_add_u32 s{sKB}, s{sKB}, s{sT2}")
        a(f"s_add_u32 s{sKB}, s{sKB}, {KVP[L]:#x}")
        if opt("A1C", 0):
            a(f"v_and_b32 v{vT1}, 15, v{vL}")
            a(f"v_mul_u32_u24 v{vT1}, 2560, v{vT1}")
            a(f"buffer_load_dword v{vT3}, v{vT1}, {sr(SWS,4)}, s{sKB} offen offset:544 sc1")
        else:
            set_exec((1 << 35) - 1)
            a1_issue()
            set_exec(FULL)
    a.label(skip)
def a1_check():
    B = A1B
    a(f"v_max3_u32 v{vT3}, v{B}, v{B+4}, v{B+8}")
    a(f"v_min3_u32 v{vT1}, v{B}, v{B+4}, v{B+8}")
    for p in range(3, 15, 2):
        a(f"v_max3_u32 v{vT3}, v{vT3}, v{B+4*p}, v{B+4*p+4}")
        a(f"v_min3_u32 v{vT1}, v{vT1}, v{B+4*p}, v{B+4*p+4}")
    a(f"v_max_u32 v{vT3}, v{vT3}, v{B+60}")
    a(f"v_min_u32 v{vT1}, v{vT1}, v{B+60}")
    a(f"v_cmp_eq_u32 vcc, -1, v{vT3}")
    a(f"v_readlane_b32 s{sT0}, v{vT3}, 34")
    a(f"v_readlane_b32 s{sT1}, v{vT1}, 34")
    a(f"s_xor_b32 s{sT0}, s{sT0}, s{sNON}")
    a(f"s_xor_b32 s{sT1}, s{sT1}, s{sNON}")
    a(f"s_or_b32 s{sT0}, s{sT0}, s{sT1}")
    a(f"s_or_b32 vcc_lo, vcc_lo, s{sT0}")
    a(f"s_or_b64 vcc, vcc, vcc")
def a1_mid(younger):
    skip = a.newlabel("NOA1M"); ok = a.newlabel("A1MOK")
    a(f"s_cmp_ge_u32 s{sRED}, 64")
    a(f"s_cbranch_scc1 {skip}")
    with cond():
        set_exec((1 << 35) - 1)
        a(f"s_waitcnt vmcnt({younger})")
        a1_check()
        a(f"s_cbranch_vccz {ok}")
        a1_issue()
        a.label(ok)
        set_exec(FULL)
    a.label(skip)
def a1(L, younger):
    a.c("======== A1 reducer")
    skip = a.newlabel("NOA1")
    a(f"s_cmp_ge_u32 s{sRED}, 64")
    a(f"s_cbranch_scc1 {skip}")
    with cond():
        B = A1B
        a(f"s_mul_i32 s{sT2}, s{sRED}, 384")
        a(f"s_add_u32 s{sT2}, s{sT2}, {KVF[L]:#x}")
        a(f"v_lshlrev_b32 v{vT2}, 3, v{vL}")
        set_exec((1 << 35) - 1)
        def check():
            a(f"v_max3_u32 v{vT3}, v{B}, v{B+4}, v{B+8}")
            a(f"v_min3_u32 v{vT1}, v{B}, v{B+4}, v{B+8}")
            for p in range(3, 15, 2):
                a(f"v_max3_u32 v{vT3}, v{vT3}, v{B+4*p}, v{B+4*p+4}")
                a(f"v_min3_u32 v{vT1}, v{vT1}, v{B+4*p}, v{B+4*p+4}")
            a(f"v_max_u32 v{vT3}, v{vT3}, v{B+60}")
            a(f"v_min_u32 v{vT1}, v{vT1}, v{B+60}")
            a(f"v_cmp_eq_u32 vcc, -1, v{vT3}")
            a(f"v_readlane_b32 s{sT0}, v{vT3}, 34")
            a(f"v_readlane_b32 s{sT1}, v{vT1}, 34")
            a(f"s_xor_b32 s{sT0}, s{sT0}, s{sNON}")
            a(f"s_xor_b32 s{sT1}, s{sT1}, s{sNON}")
            a(f"s_or_b32 s{sT0}, s{sT0}, s{sT1}")
            a(f"s_or_b32 vcc_lo, vcc_lo, s{sT0}")
            a(f"s_or_b64 vcc, vcc, vcc")
        a.vm_done = min(a.vm_done, a.vm - younger - 1)
        if opt("A1C", 0):
            poll(lambda: a(f"buffer_load_dword v{vT3}, v{vT1}, {sr(SWS,4)}, s{sKB} offen offset:544 sc1"),
                 lambda: a(f"v_cmp_ne_u32 vcc, s{sNON}, v{vT3}"), 0x21, pre=a.vm - younger - 1)
            poll(a1_issue, check, 0x20)
        else:
            poll(a1_issue, check, 0x20, pre=a.vm - younger - 1)
        n = 16
        while n > 1:
            n //= 2
            for p in range(n):
                for j in (0, 2): pk("add", B+4*p+j, vr(B+4*p+j,2), vr(B+4*(p+n)+j,2))
        a(f"v_cvt_pk_bf16_f32 v{B+4}, v{B}, v{B+1}")
        a(f"v_cvt_pk_bf16_f32 v{B+5}, v{B+2}, v{B+3}")
        a(f"v_mov_b32_dpp v{B+6}, v{B+4} quad_perm:[1,1,3,3] row_mask:0xf bank_mask:0xf")
        a(f"v_mov_b32_dpp v{B+7}, v{B+5} quad_perm:[1,1,3,3] row_mask:0xf bank_mask:0xf")
        a(f"v_writelane_b32 v{B+4}, s{sNON}, 34")
        set_exec(0x555555555555)
        a(f"buffer_store_dwordx4 {vr(B+4,4)}, v{vT2}, {sr(SWS,4)}, s{sT2} offen sc1")
        set_exec(FULL)
        a("s_nop 1")
    a.label(skip)
    stamp("a1")

XF = 128
def KS(s): return 4 * ((s & 15) >> 1) + (s & 1) + 2 * (s >> 4)
def XFR(L, s): return XF + 4 * (((s + 16) & 31) if L == 1 else s)
xid1 = {}
def xa_XL(s):
    jj = s & 15
    if jj == 0: a(f"s_mov_b32 s{sSO}, s{sT4}")
    elif jj == 8: a(f"s_xor_b32 s{sSO}, s{sT4}, 16384")
    elif jj & 1 == 0: a(f"s_add_u32 s{sSO}, s{sSO}, 4096")
    xid1[s] = a(f"buffer_load_dwordx4 {vr(XFR(1,s),4)}, v{vL16}, {sr(SWS,4)}, s{sSO} offen offset:{(KS(s)&3)*1024} sc1")
vXC = MA + 1
def xa_ci(): return a(f"buffer_load_dword v{vT3}, v{vXC}, {sr(SWS,4)}, s{sAX2R} offen offset:1020 sc1")
def xa_start():
    a(f"s_and_b32 s{sT5}, s{sROTX}, {opt('XROT', 1)}")
    a(f"s_lshl_b32 s{sT5}, s{sT5}, 14")
    a(f"s_add_u32 s{sT4}, s{sAX2R}, s{sT5}")
    a(f"v_and_b32 v{vXC}, 15, v{vL}")
    a(f"v_lshrrev_b32 v{MA+3}, 1, v{vXC}")
    a(f"v_and_b32 v{vXC}, 1, v{vXC}")
    a(f"v_lshlrev_b32 v{vXC}, 10, v{vXC}")
    a(f"v_lshl_add_u32 v{vXC}, v{MA+3}, 12, v{vXC}")
    G["xcid"] = xa_ci()
    for s in range(opt("LA1", 8)): xa_XL(s)
def p1(L):
    ACCK, ACCV, RR = 32, 48, 64
    VV, PK, T1 = 80, 88, 96
    S0, S1, Q0, Q1 = 80, 81, 82, 83
    CF = 84
    CFV, CFQ, RA = 112, 116, 120
    vTQ, vTV = 124, 125
    vW, vXA, vXB = 126, 127, 96
    vCQ, vCV = 97, 98
    vOA, vOB = vTA, vTB
    vTQ2, vTV2 = vTA, vTB
    vKW, vKR = 92, 93
    XA = 88
    vKW2, vKR2 = vT2, 127
    POI = 100
    WFR = 216; NWF = 4; ONESF = 248; CG = 200; CK, CV, CQ = 152, 168, 184
    a.c(f"======== P1 layer {L}")
    xid = {}; wid = {}
    toff = 256
    def addr_setup():
        if L == 0:
            a(f"v_bfe_u32 v{vT0}, v{vL}, 2, 2")
            a(f"v_lshl_add_u32 v{vT0}, v{vHH}, 3, v{vT0}")
            a(f"v_lshlrev_b32 v{vTQ}, 6, v{vT0}")
            a(f"v_bfe_u32 v{vT1}, v{vL}, 4, 1")
            a(f"v_lshl_add_u32 v{vTQ}, v{vT1}, 5, v{vTQ}")
            a(f"v_and_b32 v{vT1}, 3, v{vL}")
            a(f"v_lshl_add_u32 v{vTQ}, v{vT1}, 3, v{vTQ}")
        else:
            a(f"s_and_b32 s{sT5}, s{sROTX}, {opt('XROT', 1)}")
            a(f"s_lshl_b32 s{sT5}, s{sT5}, 14")
            a(f"v_add_u32 v{vTQ}, s{sT5}, v{vL16}")
            a(f"v_xor_b32 v{vTQ2}, 16384, v{vTQ}")
            a(f"v_add_u32 v{vTV2}, 65536, v{vTQ2}")
        a(f"v_add_u32 v{vTV}, 65536, v{vTQ}")
        for i in range(4): a(f"v_accvgpr_write_b32 a{ONESF+i}, s{sONES}")
        for r in ([MA + 2, MA + 3] if L == 0 else []) + [RA + 1, RA + 2, RA + 3, CF + 2, CF + 3, CFV + 2, CFV + 3, CFQ + 2, CFQ + 3]: a(f"v_mov_b32 v{r}, 0")
    def kv_addr():
        a(f"v_bfe_u32 v{vT0}, v{vL}, 4, 1")
        a(f"v_lshl_add_u32 v{vT0}, v{vT0}, 1, v{vHH}")
        a(f"v_mul_u32_u24 v{vT0}, 17, v{vT0}")
        a(f"v_and_b32 v{vT1}, 15, v{vL}")
        a(f"v_add_u32 v{vT0}, v{vT0}, v{vT1}")
        a(f"v_lshlrev_b32 v{vT0}, 5, v{vT0}")
        a(f"v_add_u32 v{vKW2}, s{sWA}, v{vT0}")
        a(f"s_mul_i32 s{sT0}, s{sW}, 544")
        a(f"s_add_u32 s{sT0}, s{sT0}, {L_A + SCR}")
        a(f"v_add_u32 v{vKR2}, s{sT0}, v{vL16}")
    rg = {}
    def RG(s):
        b = WFR + (s % NWF) * 8
        if L == 0:
            o = s * 1024
            a(f"ds_read_b64_tr_b16 {ar(b,2)}, v{vTQ} offset:{32768+o}")
            a(f"ds_read_b64_tr_b16 {ar(b+2,2)}, v{vTQ} offset:{32768+o+toff}")
            a(f"ds_read_b64_tr_b16 {ar(b+4,2)}, v{vTV} offset:{o}")
            rg[s] = a(f"ds_read_b64_tr_b16 {ar(b+6,2)}, v{vTV} offset:{o+toff}")
        else:
            o = (KS(s) & 15) * 1024
            q_, v_ = (vTQ2, vTV2) if KS(s) >= 16 else (vTQ, vTV)
            a(f"ds_read_b128 {ar(b,4)}, v{q_} offset:{32768+o}")
            rg[s] = a(f"ds_read_b128 {ar(b+4,4)}, v{v_} offset:{o}")
    if L == 0:
        a(f"v_lshrrev_b32 v{vT0}, 2, v{vL}")
        a(f"s_lshl_b32 s{sT0}, s{sW}, 4")
        a(f"v_add_u32 v{vT0}, s{sT0}, v{vT0}")
        a(f"v_mul_u32_u24 v{vW}, 3072, v{vT0}")
        a(f"v_and_b32 v{vT0}, 3, v{vL}")
        a(f"v_lshl_add_u32 v{vW}, v{vT0}, 4, v{vW}")
        a(f"s_lshl_b32 s{sT0}, s{sHP}, 6")
        a(f"v_add_u32 v{vW}, s{sT0}, v{vW}")
        lin(sT0, [(sRB, 131072), (sW, 32768)])
        a(f"v_lshrrev_b32 v{vT0}, 3, v{vL}")
        a(f"v_lshlrev_b32 v{vT0}, 10, v{vT0}")
        a(f"v_add_u32 v{vT0}, s{sT0}, v{vT0}")
        a(f"v_and_b32 v{vT1}, 7, v{vL}")
        a(f"v_lshrrev_b32 v{vT2}, 4, v{vL}")
        a(f"v_xor_b32 v{vT1}, v{vT1}, v{vT2}")
        a(f"v_lshl_add_u32 v{vXA}, v{vT1}, 4, v{vT0}")
        a(f"v_xor_b32 v{vXB}, 64, v{vXA}")
        a(f"v_add_u32 v{vXB}, {8192-1024}, v{vXB}")
        a("s_waitcnt lgkmcnt(0)")
        srd(SX, sKA + 0, 2048 * 512 * 2)
        srd(SWQKV, sKA + 2, 512 * 1536 * 2)
        def x_issue(j):
            a(f"s_add_u32 s{sKB}, s{sRX0}, {j}")
            a(f"s_and_b32 s{sKB}, s{sKB}, 7")
            a(f"s_lshl_b32 s{sT1}, s{sKB}, 7")
            a(f"s_add_u32 m0, s{sWB}, {(j&3)*4096}")
            a(f"s_mul_i32 s{sSO}, s{sKB}, {64*3072}")
            a(f"buffer_load_dwordx4 v{vXA}, {sr(SX,4)}, s{sT1} offen lds")
            a(f"buffer_load_dwordx4 v{vXB}, {sr(SX,4)}, s{sT1} offen offset:1024 lds")
            a(f"s_add_u32 m0, s{sWB}, {(j&3)*4096+2048}")
            a(f"s_add_u32 s{sT1}, s{sT1}, 16384")
            a(f"buffer_load_dwordx4 v{vXA}, {sr(SX,4)}, s{sT1} offen lds")
            xid[j] = a(f"buffer_load_dwordx4 v{vXB}, {sr(SX,4)}, s{sT1} offen offset:1024 lds")
        def w_issue(j):
            for seg in (1, 2, 0):
                a(f"s_add_u32 m0, s{sW1K}, {seg*32768 - seg*1024 + j*4096}")
                wid[j] = a(f"buffer_load_dwordx4 v{vW}, {sr(SWQKV,4)}, s{sSO} offen offset:{seg*1024} lds")
        def wo_issue(c):
            for k in range(2):
                j = 2 * c + k
                a(f"s_add_u32 m0, s{sWB}, {j*2048}")
                if j == 0: a(f"s_lshl_b32 s{sSO}, s{sW}, 17")
                else: a(f"s_add_u32 s{sSO}, s{sSO}, 16384")
                a(f"buffer_load_dwordx4 v{vOA}, {sr(SWO,4)}, s{sSO} offen lds")
                G["wo"] = a(f"buffer_load_dwordx4 v{vOB}, {sr(SWO,4)}, s{sSO} offen offset:1024 lds")
        x_issue(0); w_issue(0)
        srd(SWS, 100, WS_BYTES)
        a(f"buffer_load_dword v{vKW}, off, {sr(SWS,4)}, 0 offset:{NONCE} sc1")
        roles2()
        late_srds()
        x_issue(1); w_issue(1)
        touch_wo("a254")
        code_prefetch()
        touches(0, 6)
        for i in range(4): a(f"v_mov_b32 v{POI+i}, -1")
        addresses()
        addr_setup()
        a(f"v_add_u32 v{vCQ}, s{sW1K}, v{vTQ}")
        a(f"v_add_u32 v{vCV}, s{sW1K}, v{vTV}")
        for r in (S0, S1, Q0, Q1): a(f"v_mov_b32 v{r}, 0")
        a(f"v_and_b32 v{vT0}, 31, v{vL}")
        a(f"v_bfe_u32 v{vT1}, v{vL}, 1, 3")
        a(f"v_xor_b32 v{vT1}, v{vT1}, v{vHH}")
        a(f"v_lshlrev_b32 v{vT0}, 7, v{vT0}")
        a(f"v_add_u32 v{vT0}, s{sWB}, v{vT0}")
        for t in range(4):
            a(f"v_xor_b32 v{vT2}, {2*t}, v{vT1}")
            a(f"v_lshl_add_u32 v{XA+t}, v{vT2}, 4, v{vT0}")
        a(f"s_lshl_b32 s{sT4}, s{sDT}, 7")
        dma_voff(vOA, vOB, 1024, sT4)
        tr_base(vWTA, vWTB, sRH, None, f"s{sWA}")
        pump.setup(1, 0)
        SCHED = {0: {0: [2, 3], 1: [4, 5], 2: [6], 3: [7]}, 1: {0: [2], 1: [3, 4], 2: [5, 6], 3: [7]}, 2: {0: [2, 3, 4], 1: [5], 2: [6], 3: [7]},
                 3: {0: [2], 1: [3], 2: [4], 3: [5], 4: [6], 5: [7]}, 4: {0: [2, 3], 1: [4], 2: [5], 3: [6], 4: [7]}}[opt("SCHED", 0)]
        JL = max(SCHED)
        cgid = {}
        def CGr(j):
            o = j * 4096
            a(f"ds_read_b64_tr_b16 {ar(CG,2)}, v{vCQ} offset:{32768+o}")
            a(f"ds_read_b64_tr_b16 {ar(CG+2,2)}, v{vCQ} offset:{32768+o+toff}")
            a(f"ds_read_b64_tr_b16 {ar(CG+4,2)}, v{vCV} offset:{o}")
            a(f"ds_read_b64_tr_b16 {ar(CG+6,2)}, v{vCV} offset:{o+toff}")
            a(f"ds_read_b64_tr_b16 {ar(CG+8,2)}, v{vCQ} offset:{o}")
            cgid[j] = a(f"ds_read_b64_tr_b16 {ar(CG+10,2)}, v{vCQ} offset:{o+toff}")
        def colsum(j):
            a.wait(lg=cgid[j])
            for k, c in enumerate((CK, CV, CQ)):
                mfma(ar(c,16), ar(ONESF,4), ar(CG+4*k,4), "0" if j == 0 else ar(c,16))
        def xreads(j):
            a.wait(vm=xid[j])
            return [a(f"ds_read_b128 {vr(XF+16*j+4*t,4)}, v{XA+t} offset:{(j&3)*4096}") for t in range(4)]
        xr = xreads(0)
        a.wait(vm=wid[0])
        a("s_barrier")
        stamp("p1_first")
        CGr(0); RG(0); RG(1); RG(2)
        colsum(0)
        CPY = 104; CS4 = 96
        initld = None
        for j in range(8):
            for t in range(4):
                a.wait(lg=xr[t])
                for k in range(4 if not opt("XNOD", 0) else 0):
                    r = XF + 16 * j + 4 * t + k
                    a(f"v_dot2_f32_bf16 v{S0+(k&1)}, v{r}, s{sONES}, v{S0+(k&1)}")
                    a(f"v_dot2_f32_bf16 v{Q0+(k&1)}, v{r}, v{r}, v{Q0+(k&1)}")
            if j == 7:
                a(f"s_lshr_b32 s{sT0}, s{sRB}, 1")
                a(f"s_sub_u32 s{sT0}, s{sT0}, s{sRX0}")
                a(f"s_and_b32 s{sT0}, s{sT0}, 7")
                a(f"s_cmp_eq_u32 s{sT0}, 0")
                a(f"s_cselect_b32 s{sT1}, 4096, 0")
                a(f"s_add_u32 s{sT1}, s{sT1}, {L_A}")
                a(f"v_add_u32 v{vT1}, s{sT1}, v{vL16}")
                a(f"v_add_u32 v{vT0}, s{sW1K}, v{vT1}")
                a(f"v_accvgpr_read_b32 v{CS4}, a{CK}")
                a(f"v_accvgpr_read_b32 v{CS4+1}, a{CV}")
                a(f"v_accvgpr_read_b32 v{CS4+2}, a{CQ}")
                cw = a(f"ds_write_b128 v{vT0}, {vr(CS4,4)}")
            for s in range(4 * j, 4 * j + 4):
                t = s & 3
                a.wait(lg=rg[s])
                b = WFR + (s % NWF) * 8
                x = vr(XF + 4 * s, 4)
                mfma(vr(ACCK,16), x, ar(b,4), "0" if s == 0 else vr(ACCK,16))
                if s + 3 < 32: RG(s + 3)
                if t == 1 and j < 7 and not opt("XNOC", 0): CGr(j + 1)
                if t == 2 and j < 7: xr = xreads(j + 1)
                if j == 7 and t == 1:
                    for w in range(4): cr = a(f"ds_read_b128 {vr(RR+4*w,4)}, v{vT1} offset:{1024*w}")
                    a(f"s_lshl_b32 s{sT0}, s{sT0}, 12")
                    a(f"s_and_b32 s{sT1}, s{sRB}, 1")
                    a(f"s_lshl_b32 s{sT1}, s{sT1}, 11")
                    a(f"s_add_u32 s{sT0}, s{sT0}, s{sT1}")
                    a(f"s_min_u32 s{sT2}, s{sW}, 2")
                    a(f"s_lshl_b32 s{sT2}, s{sT2}, 15")
                    a(f"s_add_u32 s{sT0}, s{sT0}, s{sT2}")
                    a(f"v_lshlrev_b32 v{vT1}, 8, v{vHH}")
                    a(f"v_sub_u32 v{vT0}, v{vTQ}, v{vT1}")
                    a(f"v_add_u32 v{vT0}, s{sT0}, v{vT0}")
                    for k in range(4): cp = a(f"ds_read_b64_tr_b16 {vr(CPY+2*k,2)}, v{vT0} offset:{512*k}")
                if j == 7 and t == 2:
                    a.wait(lg=cr)
                    for k in range(3):
                        a(f"v_add_f32 v{RR+k}, v{RR+k}, v{RR+4+k}")
                        a(f"v_add_f32 v{RR+8+k}, v{RR+8+k}, v{RR+12+k}")
                if j == 7 and t == 3:
                    split2(CKP, RR, vT0)
                    split2(CVP, RR + 1, vT1)
                mfma(vr(ACCV,16), x, ar(b+4,4), "0" if s == 0 else vr(ACCV,16))
                if t == 0:
                    if j < 7: a.wait(vm=wid[j + 1])
                    else: a.wait(lg=cw)
                    a("s_barrier")
                    if j == 1:
                        a(f"v_add_u32 v{vKW}, 1, v{vKW}")
                        a(f"v_and_b32 v{vKW}, 0x3fffffff, v{vKW}")
                        a(f"v_or_b32 v{vKW}, 0x40000000, v{vKW}")
                        a(f"v_readfirstlane_b32 s{sNON}, v{vKW}")
                if t <= 2 and j in SCHED and t < len(SCHED[j]):
                    x_issue(SCHED[j][t]); w_issue(SCHED[j][t])
                if t == 1 and j >= 4 and opt("WOP", 1) == 0: wo_issue(j - 4)
                if t == 3 and j == JL:
                    if opt("MISC", 0) == 0: misc_loads()
                    touches(0, 8)
                if t == 1 and j == 6 and opt("MISC", 0) == 1: misc_loads()
                if t == 3 and opt("SLOTST", 0) and j in (1, 3, 6): stamp(f"it{j}")
                if t == 2:
                    if j == 3: touches(0, 7)
                    if j == opt("POJ", 2):
                        st_poison(POI); kv_poison(POI, 0); canary_poison(POI)
                    if j == 6: kv_addr()
                    if j == opt("POJ", 2) + 1:
                        tile_poison(POI, sAPQW, 0, 1024); initld = a.vm - 1
                    if j == 7:
                        for k in range(3): a(f"v_add_f32 v{RR+k}, v{RR+k}, v{RR+8+k}")
                        a(f"s_lshl_b32 s{sT1}, s{sRB}, 11")
                        a(f"s_add_u32 s{sT3}, s{sAWQT}, s{sT2}")
                        a(f"s_add_u32 s{sT3}, s{sT3}, s{sT1}")
                        a.wait(lg=cp)
                        ws_store4(CPY, sT3); ws_store4(CPY + 4, sT3, 1024)
                if t == 3 and j < 7 and not opt("XNOC", 0): colsum(j + 1)
        stamp("p1_gemm")
        a(f"v_add_f32 v{S0}, v{S0}, v{S1}")
        a(f"v_add_f32 v{Q0}, v{Q0}, v{Q1}")
        a(f"v_mov_b32 v{S1}, v{S0}")
        a(f"v_mov_b32 v{Q1}, v{Q0}")
        for c, p in ((CF, CKP), (CFV, CVP)):
            a(f"v_mov_b32 v{c}, v{p}"); a(f"v_mov_b32 v{c+1}, v{p}")
        a(f"v_permlane32_swap_b32 v{S0}, v{S1}")
        a(f"v_permlane32_swap_b32 v{Q0}, v{Q1}")
        a(f"v_add_f32 v{S0}, v{S0}, v{S1}")
        a(f"v_add_f32 v{Q0}, v{Q0}, v{Q1}")
        split2(CQP, RR + 2, vT1)
        stats_to_frags(S0, Q0, RA)
        mfma(vr(ACCK,16), vr(MA,4), vr(CF,4), vr(ACCK,16))
        mfma(vr(RR,16), vr(RA,4), ar(ONESF,4), "0")
        mfma(vr(ACCV,16), vr(MA,4), vr(CFV,4), vr(ACCV,16))
        touches(0, 1)
    else:
        xid = xid1; XL = xa_XL; ci = xa_ci
        LA = opt("LA1", 8)
        vMX = vW
        cc = lambda: a(f"v_cmp_eq_u32 vcc, -1, v{vT3}")
        def windowa():
            for s in range(LA): XL(s)
        def windowb():
            for s in range(16, 16 + LA): XL(s)
        if opt("XE", 0) == 0: xa_start()
        cid = max(G["xcid"], G["kvlast"])
        addr_setup()
        next_layer_addresses()
        for c, p in ((CF, CKP), (CFV, CVP)):
            a(f"v_mov_b32 v{c}, v{p}"); a(f"v_mov_b32 v{c+1}, v{p}")
        a(f"v_and_b32 v{vT0}, 31, v{vL}")
        a(f"v_lshlrev_b32 v{vT0}, 3, v{vT0}")
        a(f"v_lshl_add_u32 v{PK+1}, v{vHH}, 12, v{vT0}")
        a(f"s_lshl_b32 s{sT2}, s{sW}, 13")
        a(f"s_add_u32 s{sKB}, s{sAWQT}, s{sT2}")
        a(f"s_mov_b32 s{sT1}, s{sT4}")
        pump.setup(1, 1)
        a(f"s_mov_b32 s{sT4}, s{sT1}")
        a(f"v_mov_b32 v{MA+2}, 0"); a(f"v_mov_b32 v{MA+3}, 0")
        go = a.newlabel("XGO"); redo = a.newlabel("XREDO"); go2 = a.newlabel("XGO2")
        a.wait(vm=cid)
        cc()
        force_fail("FRC")
        a(f"s_cbranch_vccz {go2}")
        st = (a.vm, a.vm_done, dict(xid), list(a.hist))
        poll(ci, cc, 0x41)
        windowa()
        a("s_waitcnt vmcnt(0)")
        a.vm, a.vm_done, _x, a.hist = st; xid.update(_x)
        a.label(go2)
        a("s_barrier")
        stamp("p1_flag")
        a(f"s_branch {go}")
        a.label(redo)
        sv = dict(xid)
        with cond():
            windowa()
            a("s_waitcnt vmcnt(0)")
        xid.update(sv)
        a.label(go)
        RG(0); RG(1); RG(2)
        a(f"v_mov_b32 v{vMX}, 0")
        a(f"s_mov_b32 s{sT3}, s{sKB}")
        SB = T1
        def issue():
            for p in range(8): a(f"buffer_load_dwordx2 {vr(SB+2*p,2)}, v{PK+1}, {sr(SWS,4)}, s{sAS2R} offen offset:{p*512} sc1")
        qid = None
        LA = opt("LA1", 8)
        ZS = opt("ZS", 9); nb = [16]
        assert ZS + LA >= 16
        for s in range(32):
            if s == 16:
                stamp("p1_a")
                if ZS < 16:
                    go3 = a.newlabel("XGO3")
                    a.wait(vm=sid)
                    stats_check(SB)
                    force_fail("FRC")
                    a(f"s_cbranch_vccz {go3}")
                    st = (a.vm, a.vm_done, dict(xid), list(a.hist))
                    poll(issue, lambda: stats_check(SB), 0x40)
                    windowb()
                    a("s_waitcnt vmcnt(0)")
                    a.vm, a.vm_done, _x, a.hist = st; xid.update(_x)
                    a.label(go3)
                else:
                    spec(issue, lambda: stats_check(SB), windowb, 0x40, a.newlabel("XR0"))
                stamp("p1_st2")
                stats_sum(SB)
                stats_to_frags(SB, SB + 1, RA)
                mfma(vr(RR,16), vr(RA,4), ar(ONESF,4), "0")
                mfma(vr(ACCK,16), vr(MA,4), vr(CF,4), vr(ACCK,16))
                mfma(vr(ACCV,16), vr(MA,4), vr(CFV,4), vr(ACCV,16))
            a.wait(vm=xid[s], lg=rg[s])
            b = WFR + (s % NWF) * 8
            x = vr(XFR(1, s), 4)
            mfma(vr(ACCK,16), x, ar(b,4), "0" if s == 0 else vr(ACCK,16))
            if s == ZS:
                issue(); sid = a.vm - 1
            if ZS < s < 16:
                per = -(-LA // (15 - ZS))
                for _ in range(per):
                    if nb[0] < 16 + LA: XL(nb[0]); nb[0] += 1
            if (s & 15) + LA < 16: XL(s + LA)
            if s >= 24:
                j = s - 24
                if j == 4: a(f"s_add_u32 s{sT3}, s{sT3}, 4096")
                if j & 3 == 0: a(f"s_add_u32 m0, s{sT2}, {j*1024}")
                qid = a(f"buffer_load_dwordx4 v{vL16}, {sr(SWS,4)}, s{sT3} offen offset:{(j&3)*1024} sc1 lds")
            mfma(vr(ACCV,16), x, ar(b+4,4), "0" if s == 0 else vr(ACCV,16))
            if s & 1: a(f"v_max3_u32 v{vMX}, v{vMX}, v{XFR(1,s-1)}, v{XFR(1,s)}")
            if s + 3 < 32: RG(s + 3)
            if s == 30: kv_addr()
        verify(vMX, redo)
        stamp("p1_gemm")
    for q in range(8): pk("fma", ACCK+2*q, vr(ACCK+2*q,2), vr(RR+2*q,2), sr(sEPS6,2), hi=[1,1,0])
    for q in range(8): pk("mul", T1+2*q, vr(ACCK+2*q,2), sr(sL2E,2), hi=[1,0])
    for i in range(16):
        a(f"v_exp_f32_e64 v{T1+i}, v{T1+i} clamp")
        a(f"v_max_f32 v{ACCK+i}, s{sEPS6}, v{ACCK+i}")
    for q in range(8): pk("add", ACCK+2*q, vr(ACCK+2*q,2), vr(T1+2*q,2))
    for q in range(8): a(f"v_cvt_pk_bf16_f32 v{PK+q}, v{ACCK+2*q}, v{ACCK+2*q+1}")
    ZA = T1
    for q in range(4): pk("mul", ACCV+2*q, vr(ACCV+2*q,2), vr(RR+2*q,2))
    for q in range(4, 8): pk("mul", ACCV+2*q, vr(ACCV+2*q,2), vr(RR+2*q,2))
    mfma(vr(ZA,16), vr(PK,4), ar(ONESF,4), "0")
    for q in range(4): a(f"v_cvt_pk_bf16_f32 v{VV+q}, v{ACCV+2*q}, v{ACCV+2*q+1}")
    mfma(vr(ZA,16), vr(PK+4,4), ar(ONESF,4), vr(ZA,16))
    for q in range(4, 8): a(f"v_cvt_pk_bf16_f32 v{VV+q}, v{ACCV+2*q}, v{ACCV+2*q+1}")
    KVA = RR
    a(f"v_and_b32 v{vT0}, 16, v{vL}")
    a(f"v_cmp_ne_u32 vcc, 0, v{vT0}")
    mfma(vr(KVA,16), vr(PK,4), vr(VV,4), "0")
    mfma(vr(KVA,16), vr(PK+4,4), vr(VV+4,4), vr(KVA,16))
    a("s_barrier")
    for j in range(8): a(f"v_cndmask_b32 v{ACCK+8+j}, v{ZA+j}, v{ZA+8+j}, vcc")
    set_exec(0x0001000100010001)
    a(f"ds_write_b128 v{vKW2}, {vr(ACCK+8,4)} offset:{SCR+512}")
    a(f"ds_write_b128 v{vKW2}, {vr(ACCK+12,4)} offset:{SCR+528}")
    set_exec(FULL)
    for j in range(4): a(f"v_cndmask_b32 v{ACCK+j}, v{KVA+j}, v{KVA+8+j}, vcc")
    a(f"ds_write_b128 v{vKW2}, {vr(ACCK,4)} offset:{SCR}")
    for j in range(4, 8): a(f"v_cndmask_b32 v{ACCK+j}, v{KVA+j}, v{KVA+8+j}, vcc")
    a(f"ds_write_b128 v{vKW2}, {vr(ACCK+4,4)} offset:{SCR+16}")
    if L == 0: a.wait(vm=initld)
    NQ = 8; QLA = 6
    rq = {}
    def RQ(s):
        b = WFR + (s % NQ) * 4
        if L == 0:
            a(f"ds_read_b64_tr_b16 {ar(b,2)}, v{vTQ} offset:{s*1024}")
            rq[s] = a(f"ds_read_b64_tr_b16 {ar(b+2,2)}, v{vTQ} offset:{s*1024+toff}")
        else:
            ks = KS((s + 16) & 31)
            rq[s] = a(f"ds_read_b128 {ar(b,4)}, v{vTQ2 if ks >= 16 else vTQ} offset:{(ks&15)*1024}")
    a(f"v_mov_b32 v{CFQ}, v{CQP}"); a(f"v_mov_b32 v{CFQ+1}, v{CQP}")
    if L == 1: a.wait(vm=qid)
    a.wait_lg_all()
    a("s_barrier")
    for w in range(4): kr = a(f"ds_read_b128 {vr(RR+4*w,4)}, v{vKR2} offset:{16384*w}")
    for s in range(QLA): RQ(s)
    ACCQ = ACCK
    mfma(vr(ACCQ,16), vr(CFQ,4), vr(MA,4), "0")
    a.wait(lg=kr)
    for j in range(4): a(f"v_add_f32 v{RR+j}, v{RR+j}, v{RR+4+j}")
    for j in range(4): a(f"v_add_f32 v{RR+8+j}, v{RR+8+j}, v{RR+12+j}")
    for j in range(4): a(f"v_add_f32 v{RR+j}, v{RR+j}, v{RR+8+j}")
    set_exec((1 << 40) - 1)
    a(f"v_writelane_b32 v{RR}, s{sNON}, 34")
    ws_store4(RR, sAKVP)
    set_exec(FULL)
    stamp("p1_kvpub")
    touches(L, 2)
    nfill = optL("F0", L, 0, 0); assert nfill <= 6
    for s in range(32):
        a.wait(lg=rq[s])
        b = WFR + (s % NQ) * 4
        mfma(vr(ACCQ,16), ar(b,4), vr(XF+4*s,4), vr(ACCQ,16))
        if s + QLA < 32: RQ(s + QLA)
        if s % 3 == 1 and pump.i < pump.c + nfill: pump.fill(pump.i + 1)
        if L == 0 and opt("WOP", 1) == 1 and s % 8 == 0: wo_issue(s // 8)
        if optL("POIQ", L, 1, 1):
            if s == 2: set_poi(VV)
            if s == 3: tile_poison(VV, sAHTW, 0, 2048)
            if s == 6: tile_poison(VV, sAUW, 0, 1024)
        if s == opt("A1S", 31):
            a1_early(L); vm_a1 = a.vm
        if s == opt("A1M", 99):
            a1_mid(a.vm - vm_a1); vm_a1 = a.vm
    for h in range(2):
        for q in range(4*h, 4*h+4): pk("fma", ACCQ+2*q, vr(ACCQ+2*q,2), vr(vRS,2), sr(sEPS6,2), hi=[1,0,0])
        for q in range(4*h, 4*h+4): pk("mul", T1+2*q, vr(ACCQ+2*q,2), sr(sL2E,2), hi=[1,0])
        for i in range(8*h, 8*h+8):
            a(f"v_exp_f32_e64 v{T1+i}, v{T1+i} clamp")
            a(f"v_max_f32 v{ACCQ+i}, s{sEPS6}, v{ACCQ+i}")
        for q in range(4*h, 4*h+4): pk("add", ACCQ+2*q, vr(ACCQ+2*q,2), vr(T1+2*q,2))
        for q in range(4*h, 4*h+4): a(f"v_cvt_pk_bf16_f32 v{PK+q}, v{ACCQ+2*q}, v{ACCQ+2*q+1}")
        ws_store4(PK + 4 * h, sAPQW, 1024 * h)
        if opt("A1S", 31) == 32 + h:
            a1_early(L); vm_a1 = a.vm
    if L == 0:
        for k in range(4): a(f"v_mov_b32 v{T1+k}, s{sNON}")
        a(f"s_sub_u32 s{sT0}, s{sAPQW}, {PQ[0]:#x}")
        a(f"s_lshr_b32 s{sT0}, s{sT0}, 4")
        a(f"s_add_u32 s{sT0}, s{sT0}, {TAGQ:#x}")
        set_exec(0xff)
        ws_store4(T1, sT0)
        set_exec(FULL)
    stamp("p1_q")
    if opt("NS1", 6) > 6: a("s_barrier")
    a1(L, a.vm - vm_a1)
    if L == 0 and opt("MISC", 0) == 2: misc_loads()
    G["misc"] = a.vm - 1
    pump.fill(pump.c + optL("F1", L, 6, 5))
    touches(L, 3)

def row_stats_publish(soff, SM):
    a(f"v_dot2_f32_bf16 v{SM}, v{XR}, s{sONES}, 0")
    a(f"v_dot2_f32_bf16 v{SM+1}, v{XR}, v{XR}, 0")
    a(f"v_dot2_f32_bf16 v{SM+2}, v{XR+1}, s{sONES}, 0")
    a(f"v_dot2_f32_bf16 v{SM+3}, v{XR+1}, v{XR+1}, 0")
    for j in range(2, 8):
        o = 2 * (j & 1)
        a(f"v_dot2_f32_bf16 v{SM+o}, v{XR+j}, s{sONES}, v{SM+o}")
        a(f"v_dot2_f32_bf16 v{SM+o+1}, v{XR+j}, v{XR+j}, v{SM+o+1}")
    a(f"v_lshlrev_b32 v{vT0}, 3, v{vL}")
    pk("add", SM, vr(SM,2), vr(SM+2,2))
    a(f"v_mov_b32 v{SM+2}, v{SM}")
    a(f"v_mov_b32 v{SM+3}, v{SM+1}")
    a(f"v_permlane32_swap_b32 v{SM}, v{SM+2}")
    a(f"v_permlane32_swap_b32 v{SM+1}, v{SM+3}")
    pk("add", SM, vr(SM,2), vr(SM+2,2))
    a(f"s_mov_b32 exec_hi, 0")
    a(f"v_and_b32 v{SM+1}, 0x7fffffff, v{SM+1}")
    a(f"buffer_store_dwordx2 {vr(SM,2)}, v{vT0}, {sr(SWS,4)}, s{soff} offen sc1")
    set_exec(FULL)

def unpack_xr(XU):
    for j in range(8):
        a(f"v_lshlrev_b32 v{XU+2*j}, 16, v{XR+j}")
        a(f"v_and_b32 v{XU+2*j+1}, 0xffff0000, v{XR+j}")

def p2(L):
    a.c(f"======== P2 layer {L}")
    KF, QF = 128, 192
    ACC = 32; CR = 64; OF = 96; WF = 104; XU = 64
    vK, vKC, vMX = MA, MA + 1, MA + 2
    tr_base(vTA, vTB, None, sKH, L_B)
    a(f"s_lshl_b32 s{sT2}, s{sKH}, 15")
    a(f"v_add_u32 v{vTA}, s{sT2}, v{vTA}")
    a(f"v_add_u32 v{vTB}, s{sT2}, v{vTB}")
    a(f"v_and_b32 v{vT0}, 31, v{vL}")
    a(f"v_mul_u32_u24 v{vKC}, 384, v{vT0}")
    a(f"v_min_u32 v{vT0}, 16, v{vT0}")
    a(f"v_lshlrev_b32 v{vT0}, 4, v{vT0}")
    a(f"v_mul_u32_u24 v{vT1}, 384, v{vHH}")
    a(f"v_add_u32 v{vK}, v{vT0}, v{vT1}")
    a(f"v_and_b32 v{vT2}, 7, v{vL}")
    a(f"v_lshlrev_b32 v{vT2}, {11 if L else 7}, v{vT2}")
    if L == 0:
        a(f"s_sub_u32 s{sT0}, s{sAPQR}, {PQ[0]:#x}")
        a(f"s_lshr_b32 s{sT0}, s{sT0}, 4")
        a(f"s_add_u32 s{sT0}, s{sT0}, {TAGQ:#x}")
    pump.run(min(R1 + 5, optL("B1", L, 21, 21)), refill=bool(optL("B1R", L, 1, 1)))
    if optL("POIQ", L, 1, 1) == 0:
        set_poi(CR)
        tile_poison(CR, sAHTW, 0, 2048)
        tile_poison(CR, sAUW, 0, 1024)
    stamp("beta")
    def ldq():
        a(f"s_mov_b32 s{sT4}, s{sAPQR}")
        for j in range(16):
            a(f"buffer_load_dwordx4 {vr(QF+4*j,4)}, v{vL16}, {sr(SWS,4)}, s{sT4} offen offset:{(j&3)*1024} sc1")
            if j & 3 == 3 and j < 15: a(f"s_add_u32 s{sT4}, s{sT4}, 4096")
    if L == 1:
        ci = lambda: a(f"buffer_load_dword v{vT3}, v{vT2}, {sr(SWS,4)}, s{sAPQR} offen offset:2044 sc1")
        cc = lambda: a(f"v_cmp_eq_u32 vcc, -1, v{vT3}")
    else:
        ci = lambda: a(f"buffer_load_dword v{vT3}, v{vT2}, {sr(SWS,4)}, s{sT0} offen sc1")
        cc = lambda: a(f"v_cmp_ne_u32 vcc, s{sNON}, v{vT3}")
    spec(ci, cc, ldq, 0x36 + L, a.newlabel("PQR"), on=opt("SPEC", 15) & 4)
    stamp("p2_pqc")
    if L == 0:
        a.wait(vm=max(G['wo'], G['misc']))
        for q in range(2):
            a(f"v_permlane32_swap_b32 v{XR+4*q}, v{XR+4*q+2}")
            a(f"v_permlane32_swap_b32 v{XR+4*q+1}, v{XR+4*q+3}")
        a(f"v_lshlrev_b32 v{vB2}, 16, v{vB2}")
    pump.run(min(R1 + 5, pump.i), refill=False)
    pump.run(min(R1 + 5, optL("B2", L, 0, 0)), refill=False)
    pump.fill(pump.c + optL("FK", L, 0, 0))
    a(f"s_xor_b32 s{sT0}, s{sW}, 1")
    a(f"s_lshl_b32 s{sT0}, s{sT0}, 12")
    a(f"v_add_u32 v{vRS}, s{sT0}, v{vL16}")
    a.wait_lg_all()
    a("s_barrier")
    rw = {}
    def RW(j):
        b = WF + (j % 3) * 8
        a(f"ds_read_b64_tr_b16 {vr(b,2)}, v{vTA} offset:{j*2048}")
        a(f"ds_read_b64_tr_b16 {vr(b+2,2)}, v{vTA} offset:{j*2048+1024}")
        a(f"ds_read_b64_tr_b16 {vr(b+4,2)}, v{vTB} offset:{j*2048}")
        rw[j] = a(f"ds_read_b64_tr_b16 {vr(b+6,2)}, v{vTB} offset:{j*2048+1024}")
    lid = {}
    def LD(j):
        if j == 0: a(f"s_mov_b32 s{sSO}, s{sAKVF}")
        elif j & 3 == 0: a(f"s_add_u32 s{sSO}, s{sSO}, {4*768}")
        lid[j] = a(f"buffer_load_dwordx4 {vr(KF+4*j,4)}, v{vK}, {sr(SWS,4)}, s{sSO} offen offset:{(j&3)*768} sc1")
    PLA = optL("PLA", L, 10, 10)
    redo = a.newlabel("P2REDO"); redo2 = a.newlabel("P2REDO2"); over = a.newlabel("P2OVER")
    a(f"s_branch {over}")
    a.label(redo)
    with cond():
        ldq()
        a("s_waitcnt vmcnt(0)")
        a(f"s_branch {redo2}")
    a.label(over)
    def window():
        for j in range(PLA): LD(j)
    spec(lambda: a(f"buffer_load_dword v{vT3}, v{vKC}, {sr(SWS,4)}, s{sAKVF} offen offset:272 sc1"),
         lambda: a(f"v_cmp_ne_u32 vcc, s{sNON}, v{vT3}"), window, 0x38 + L, redo2, on=opt("SPEC", 15) & 2)
    stamp("p2_kvc")
    if L == 0:
        sk = a.newlabel("NONW")
        a(f"s_cmp_lg_u32 s{sWI}, 0")
        a(f"s_cselect_b32 s{sT0}, 1, s{sB}")
        a(f"s_cmp_lg_u32 s{sT0}, 0")
        a(f"s_cbranch_scc1 {sk}")
        with cond():
            a(f"v_mov_b32 v{vT0}, s{sNON}")
            set_exec(1)
            a(f"buffer_store_dword v{vT0}, off, {sr(SWS,4)}, 0 offset:{NONCE} sc1")
            set_exec(FULL)
        a.label(sk)
    RW(0); RW(1)
    a(f"v_mov_b32 v{vMX}, 0")
    def M1(j):
        a.wait(vm=lid[j])
        mfma(vr(CR+(j&1)*16,16), vr(KF+4*j,4), vr(QF+4*j,4), "0")
        a(f"v_max3_u32 v{vMX}, v{vMX}, v{KF+4*j}, v{QF+4*j}")
        if j + PLA < 16: LD(j + PLA)
        if j + PLA == 16: touches(L, 9)
    def Va(j):
        c = CR + (j & 1) * 16
        a(f"v_add_f32 v{c+8}, s{sEPS6}, v{c+8}")
        a(f"v_rcp_f32 v{c+8}, v{c+8}")
    def Vb(j):
        c = CR + (j & 1) * 16; o = OF + (j & 1) * 4
        for i in range(4): a(f"v_mul_f32 v{c+i}, v{c+i}, v{c+8}")
        for i in range(2): a(f"v_cvt_pk_bf16_f32 v{o+i}, v{c+2*i}, v{c+2*i+1}")
    def Vc(j):
        c = CR + (j & 1) * 16; o = OF + (j & 1) * 4
        for i in range(4, 8): a(f"v_mul_f32 v{c+i}, v{c+i}, v{c+8}")
        for i in range(2, 4): a(f"v_cvt_pk_bf16_f32 v{o+i}, v{c+2*i}, v{c+2*i+1}")
    M1(0); M1(1)
    Va(0); Vb(0); Vc(0); M1(2)
    nfp = optL("FP2", L, 6, 6)
    kb_saved = False
    for j in range(16):
        o = OF + (j & 1) * 4; b = WF + (j % 3) * 8
        if j + 1 < 16: Va(j + 1)
        a.wait(lg=rw[j])
        mfma(vr(ACC+16,16), vr(b+4,4), vr(o,4), "0" if j == 0 else vr(ACC+16,16))
        if j + 1 < 16: Vb(j + 1)
        mfma(vr(ACC,16), vr(b,4), vr(o,4), "0" if j == 0 else vr(ACC,16))
        if j + 1 < 16: Vc(j + 1)
        if j + 3 < 16: M1(j + 3)
        if j + 2 < 16: RW(j + 2)
    verify(vMX, redo)
    stamp("p2_main")
    lin(sT0, [(sFT, 128), (sRH, 64), (sKH, 32)])
    a(f"v_lshlrev_b32 v{vT0}, 3, v{vHH}")
    for q in range(2): a(f"buffer_load_dwordx2 {vr(152+2*q,2)}, v{vT0}, {sr(SB1,4)}, s{sT0} offen offset:{16*q}")
    for q, r in enumerate((ACC + 24, ACC + 28, ACC + 8, ACC + 12)): a(f"ds_write_b128 v{vRS}, {vr(r,4)} offset:{(q^2)*1024}")
    unpack_xr(XU)
    a(f"v_xor_b32 v{vT1}, 4096, v{vRS}")
    for q in range(4): pk("add", ACC+16+2*q, vr(ACC+16+2*q,2), vr(XU+8+2*q,2))
    for q in range(4): pk("add", ACC+2*q, vr(ACC+2*q,2), vr(XU+2*q,2))
    a.wait_lg_all()
    a("s_barrier")
    own = (ACC, ACC + 4, ACC + 16, ACC + 20)
    ids = [a(f"ds_read_b128 {vr(XU+4*q,4)}, v{vT1} offset:{q*1024}") for q in range(4)]
    for q in range(4):
        a.wait(lg=ids[q])
        pk("add", own[q], vr(own[q],2), vr(XU+4*q,2))
        pk("add", own[q]+2, vr(own[q]+2,2), vr(XU+4*q+2,2))
        a(f"v_cvt_pk_bf16_f32 v{XR+2*q}, v{own[q]}, v{own[q]+1}")
        a(f"v_cvt_pk_bf16_f32 v{XR+2*q+1}, v{own[q]+2}, v{own[q]+3}")
    row_stats_publish(sASTW, OF)
    stamp("p2_stpub")
    pump.run(pump.i, refill=False)
    pump.fill(pump.c + optL("GF", L, 6, 4))
    unpack_xr(XU)
    IDF = 104
    a(f"v_and_b32 v{vT0}, 31, v{vL}")
    a(f"v_lshlrev_b32 v{vT1}, 2, v{vHH}")
    a(f"v_sub_u32 v{vT0}, v{vT0}, v{vT1}")
    a(f"v_mov_b32 v{vT3}, 0x3f80")
    for f in range(2):
        for c in range(4):
            base = 16 * f + ((2 * c) & 3) + 8 * (c >> 1)
            a(f"v_subrev_u32 v{vT1}, {base}, v{vT0}")
            a(f"v_cmp_gt_u32 vcc, 2, v{vT1}")
            a(f"v_lshlrev_b32 v{vT1}, 4, v{vT1}")
            a(f"v_lshlrev_b32 v{vT2}, v{vT1}, v{vT3}")
            a(f"v_cndmask_b32 v{IDF+4*f+c}, 0, v{vT2}, vcc")
    SB = 128
    ht_voff(vRS)
    a(f"v_and_b32 v{vT0}, 31, v{vL}")
    a(f"v_lshlrev_b32 v{vT0}, 3, v{vT0}")
    a(f"v_lshl_add_u32 v{vT2}, v{vHH}, 12, v{vT0}")
    a(f"v_mov_b32 v{SB+18}, {fl(1.0+1e-5)}")
    def issue():
        for p in range(8): a(f"buffer_load_dwordx2 {vr(SB+2*p,2)}, v{vT2}, {sr(SWS,4)}, s{sASTR} offen offset:{p*512} sc1")
    if OPT.get(f"SL{0x34+L:x}", 0): a(f"s_sleep {OPT.get(f'SL{0x34+L:x}', 0)}")
    poll(issue, lambda: stats_check(SB), 0x34 + L)
    stamp("p2_stats")
    if optL("SF", L, 3, 3):
        pump.run(pump.i, refill=False)
        pump.fill(pump.c + optL("SF", L, 3, 3))
    stats_sum(SB)
    a(f"v_mul_f32 v{SB}, {fl(-1/512)}, v{SB}")
    a(f"v_mul_f32 v{SB+1}, {fl(1/512)}, v{SB+1}")
    a(f"v_fma_f32 v{SB+1}, -v{SB}, v{SB}, v{SB+1}")
    a(f"v_max_f32 v{SB+1}, 0, v{SB+1}")
    a(f"v_fmaak_f32 v{SB+1}, v{SB+1}, v{SB+18}, {fl(1e-10)}")
    a(f"v_rsq_f32 v{SB+2}, v{SB+1}")
    a(f"v_mul_f32 v{SB}, v{SB}, v{SB+2}")
    HP_ = 112
    for f in range(2):
        for j in range(4*f, 4*f+4):
            pk("fma", XU+2*j, vr(XU+2*j,2), vr(SB+2,2), vr(SB,2), hi=[1,0,0])
    for f in range(2):
        for j in range(4*f, 4*f+4):
            a(f"v_cvt_pk_bf16_f32 v{HP_+j}, v{XU+2*j}, v{XU+2*j+1}")
        mfma(vr(ACC,16), vr(HP_+4*f,4), vr(IDF+4*f,4), "0" if f == 0 else vr(ACC,16))
    for f in range(2):
        for j in range(4): a(f"v_cvt_pk_bf16_f32 v{ACC+16+4*f+j}, v{ACC+8*f+2*j}, v{ACC+8*f+2*j+1}")
        a(f"buffer_store_dwordx4 {vr(ACC+16+4*f,4)}, v{vRS}, {sr(SWS,4)}, s{sAHTW} offen offset:{2048*f} sc1")
    touches(L, 5)
    stamp(f"p2_{L}")

RING = 96; AUX = 144; NRH = 12
vR1, vR2, vR3, vRA = vT0, vT1, vT2, vRS
LKH = opt("LKH", 10)
class Half:
    def __init__(self, kind, hf, g0):
        self.kind, self.hf, self.g0 = kind, hf, g0
        self.nks, self.srot, self.sbase = (32, sROT1, sAHTR) if kind == 1 else (28, sROT2, sAUR)
        self.vA, self.vC = (vTA, MA + 1) if kind == 1 else (vTB, MA + 2)
        self.vMX = MA
        self.ids = {}; self.cid = None
    def rb(self, s): return RING + ((self.g0 + s) % NRH) * 4
    def LD(self, s):
        if s == 0: a(f"s_lshl_b32 s{sSO}, s{self.srot}, 11")
        elif s & 1 == 0:
            a(f"s_add_u32 s{sSO}, s{sSO}, 4096")
            a(f"s_cmp_eq_u32 s{sSO}, {self.nks*2048}")
            a(f"s_cselect_b32 s{sSO}, 0, s{sSO}")
        self.ids[s] = a(f"buffer_load_dwordx4 {vr(self.rb(s),4)}, v{self.vA}, {sr(SWS,4)}, s{sSO} offen offset:{(s&1)*2048+self.hf*1024} sc1")
    def window(self):
        for s in range(LKH): self.LD(s)
    def can_issue(self):
        off = 2048 + 1024 + 512 + 252 if self.kind == 1 else self.hf * 1024 + 1020
        self.cid = a(f"buffer_load_dword v{vT3}, v{self.vC}, {sr(SWS,4)}, s{self.sbase} offen offset:{off} sc1")
    def can_check(self): a(f"v_cmp_eq_u32 vcc, -1, v{vT3}")
    def MF(self, s, acc):
        A0 = 32 + 32 * self.hf
        wf = wreg(self.kind, s, 4 * acc, 4); af = vr(self.rb(s), 4)
        c = "0" if s == 0 else vr(A0 + 16 * acc, 16)
        A_, B_ = (wf, af) if self.kind == 1 else (af, wf)
        mfma(vr(A0+16*acc,16), A_, B_, c)
    def steps(self, redo, nxt=None, hook=None, force=True):
        n = self.nks
        a(f"v_mov_b32 v{self.vMX}, 0")
        for s in range(n):
            if hook: hook(s, 0)
            a.wait(vm=self.ids[s])
            self.MF(s, 1)
            if s + LKH < n: self.LD(s + LKH)
            elif nxt is not None:
                if s + LKH == n and nxt.kind == 2: nxt.can_issue()
                nxt.LD(s + LKH - n)
            if s & 1: a(f"v_max3_u32 v{self.vMX}, v{self.vMX}, v{self.rb(s-1)}, v{self.rb(s)}")
            self.MF(s, 0)
            if hook: hook(s, 1)
        verify(self.vMX, redo, force=force)
    def run(self, nxt=None, hook=None):
        lab = a.newlabel("PLAIN"); back = a.newlabel("BACK")
        OOL.append((self, nxt, lab, back))
        self.steps(lab, nxt, hook)
        a.label(back)
    def scr(self, k):
        if self.hf == 0: return 0, k * 2048
        if k < 2: return 1, SCR + k * 2048
        return 0, 6144
    def writes(self):
        A0 = 32 + 32 * self.hf
        for k in (1, 2, 0):
            src = (A0 + 8, A0 + 16, A0 + 24)[k]
            area, o = self.scr(k)
            r = (vR1, vR2, vR3)[k]
            if area == 1:
                a(f"v_lshl_add_u32 v{AUX+10+k}, v{r}, 1, v{AUX+9}"); r = AUX + 10 + k
            for q in range(2): a(f"ds_write_b128 v{r}, {vr(src+4*q,4)} offset:{o+q*1024}")
    def reads(self):
        D = 64 - 32 * self.hf
        if self.hf == 1: a(f"v_lshl_add_u32 v{AUX+10}, v{vRA}, 1, v{AUX+9}")
        a.wait_lg_all()
        a("s_barrier")
        ids = {}
        for q in range(2):
            for k in range(3):
                area, o = self.scr(k)
                ids[(q, k)] = a(f"ds_read_b128 {vr(D+8*k+4*q,4)}, v{AUX+10 if area else vRA} offset:{o+q*1024}")
        A0 = 32 + 32 * self.hf
        for q in range(2):
            a.wait(lg=ids[(q, 1)])
            for j in (0, 2): pk("add", D+4*q+j, vr(D+4*q+j,2), vr(D+8+4*q+j,2))
            a.wait(lg=ids[(q, 2)])
            for j in (0, 2): pk("add", A0+4*q+j, vr(A0+4*q+j,2), vr(D+16+4*q+j,2))
            for j in (0, 2): pk("add", A0+4*q+j, vr(A0+4*q+j,2), vr(D+4*q+j,2))
    def woven(self, D):
        A0 = 32 + 32 * self.hf
        ops = []
        ids = {}
        wl = a.lg - 1
        def bar():
            if self.hf == 1: a(f"v_lshl_add_u32 v{AUX+10}, v{vRA}, 1, v{AUX+9}")
            a.wait(lg=wl); a("s_barrier")
        ops.append(bar)
        def rd(q, k):
            area, o = self.scr(k)
            ids[(q, k)] = a(f"ds_read_b128 {vr(D+8*k+4*q,4)}, v{AUX+10 if area else vRA} offset:{o+q*1024}")
        for q in range(2):
            for k in range(3): ops.append(lambda q=q, k=k: rd(q, k))
        ops.append(None); ops.append(None); ops.append(None)
        for q in range(2):
            for k in range(3):
                for j in range(4):
                    def ad(q=q, k=k, j=j):
                        a.wait(lg=ids[(q, k)])
                        a(f"v_add_f32 v{A0+4*q+j}, v{A0+4*q+j}, v{D+8*k+4*q+j}")
                    ops.append(ad)
        return ops
    def late_check(self, code):
        go = a.newlabel("GO")
        a.wait(vm=self.cid)
        self.can_check()
        force_fail("FRC")
        a(f"s_cbranch_vccz {go}")
        st = (a.vm, a.vm_done, a.lg, a.lg_done, dict(self.ids), self.cid, list(a.hist))
        poll(self.can_issue, self.can_check, code)
        self.window()
        a("s_waitcnt vmcnt(0)")
        a.vm, a.vm_done, a.lg, a.lg_done, self.ids, self.cid, a.hist = st
        a.label(go)
OOL = []
def mix_setup():
    a(f"v_add_u32 v{vTA}, s{sAHTR}, v{vL16}")
    a(f"v_min_u32 v{vT0}, 31, v{vL}")
    a(f"v_lshrrev_b32 v{vT1}, 1, v{vT0}")
    a(f"v_and_b32 v{vT0}, 1, v{vT0}")
    a(f"v_lshlrev_b32 v{vT0}, 8, v{vT0}")
    a(f"v_lshl_add_u32 v{MA+1}, v{vT1}, 12, v{vT0}")
    a(f"s_lshl_b32 s{sT0}, s{sKH}, 8")
    a(f"v_xor_b32 v{vTB}, s{sT0}, v{vL16}")
    a(f"v_add_u32 v{vTB}, s{sAUR}, v{vTB}")
    a(f"v_min_u32 v{MA+2}, 27, v{vL}")
    a(f"v_lshlrev_b32 v{MA+2}, 11, v{MA+2}")
    for acc, r in ((1, vR1), (2, vR2), (3, vR3)):
        a(f"s_xor_b32 s{sT0}, s{sW}, {acc}")
        a(f"s_lshl_b32 s{sT0}, s{sT0}, 13")
        a(f"v_add_u32 v{r}, s{sT0}, v{vL16}")
    a(f"s_lshl_b32 s{sT0}, s{sW}, 13")
    a(f"v_add_u32 v{vRA}, s{sT0}, v{vL16}")
    a(f"v_sub_u32 v{AUX+9}, {L_A}, v{vL16}")

def p34(L):
    a.c(f"======== P3 layer {L}")
    B1R = AUX
    pump.run(pump.i, refill=True)
    pump.run(32)
    a.wait_lg_all()
    if L == 1: a("s_barrier")
    pump.setup(2, L, extra=optL("XB", L, 0, 8))
    pump.run(optL("V2", L, 5, 0), refill=False)
    pump.fill(pump.c + optL("V2F", L, 0, 8))
    assert pump.c <= R2
    if L == 0: a("s_barrier")
    for j in range(4):
        a(f"v_lshlrev_b32 v{B1R+2*j}, 16, v{152+j}")
        a(f"v_and_b32 v{B1R+2*j+1}, 0xffff0000, v{152+j}")
    mix_setup()
    K1 = -2.0 * 0.7978845608028654 * LOG2E
    a(f"v_mov_b32 v{AUX+8}, {fl(K1)}")
    SPX = optL("SPX", L, 1, 1)
    h3a = Half(1, 0, 0); h3b = Half(1, 1, 32); h4a = Half(2, 0, 64); h4b = Half(2, 1, 92)
    stamp("p3_delta")
    idle = a.newlabel("P3IDLE"); join = a.newlabel("P3JOIN")
    pst = (pump.i, pump.c, dict(pump.vid), dict(pump.lid))
    a(f"s_cmp_eq_u32 s{sP3}, 7")
    a(f"s_cbranch_scc1 {idle}")
    IDN = optL("IDT", L, 18, 0)
    ntail = optL("V2T", L, 0, 0); nepi = optL("V2E", L, 6, 3)
    def gelu_store(hf):
        A0 = 32 + 32 * hf; T = A0 + 16
        for q in range(4): pk("mul", T+2*q, vr(A0+2*q,2), vr(A0+2*q,2))
        for q in range(4): pk("fma", T+2*q, vr(T+2*q,2), sr(sT2,2), vr(AUX+8,2), hi=[1,0,0])
        for q in range(4): pk("mul", T+2*q, vr(T+2*q,2), vr(A0+2*q,2))
        for i in range(8): a(f"v_exp_f32 v{T+i}, v{T+i}")
        for q in range(4): pk("add", T+2*q, vr(T+2*q,2), "1.0", hi=[1,0])
        for i in range(8): a(f"v_rcp_f32 v{T+i}, v{T+i}")
        for q in range(4): pk("mul", A0+2*q, vr(A0+2*q,2), vr(T+2*q,2))
        for q in range(4): a(f"v_cvt_pk_bf16_f32 v{T+8+q}, v{A0+2*q}, v{A0+2*q+1}")
        ws_store4(T + 8, sAUW, 1024 * hf)
    with cond():
        a(f"s_mov_b32 s{sT2}, s{sGK}")
        spec(h3a.can_issue, h3a.can_check, h3a.window, 0x50 + L, a.newlabel("SREDO"))
        stamp("canary")
        h3a.run(nxt=h3b)
        stamp("gemm_a")
        h3a.writes()
        pump.fill(pump.i + nepi)
        for q in range(4): pk("add", 32+2*q, vr(32+2*q,2), vr(B1R+2*q,2))
        h3a.reads()
        gelu_store(0)
        stamp("epi_a")
        i0 = pump.i
        def hk(s, k):
            if k == 1 and s + LKH >= 32 and (s & 1) and pump.i < i0 + ntail: pump.fill(pump.i + 1)
        h3b.run(nxt=h4a if SPX else None, hook=hk)
        assert ntail <= 5
        stamp("gemm_b")
        h3b.writes()
        n2 = pump.i
        nmid = pump.i
        if optL("EB", L, 1, 0): pump.run(pump.i if optL("EB", L, 1, 0) == 2 else min(R2, pump.i), refill=False, tmp=(AUX + 14, AUX + 15))
        cact = pump.c
        pump.fill(pump.i + optL("V2E2", L, 4, 3))
        nact = pump.i; n2 = nact - n2
        for q in range(4): pk("add", 64+2*q, vr(64+2*q,2), vr(B1R+2*q,2))
        h3b.reads()
        gelu_store(1)
        if SPX: h4a.late_check(0x60 + L)
        a(f"s_branch {join}")
    a.label(idle)
    pump.i, pump.c, pump.vid, pump.lid = pst
    if IDN:
        a(f"v_lshrrev_b32 v{RING}, 2, v{vL}")
        a(f"v_lshlrev_b32 v{RING}, 12, v{RING}")
        a(f"v_and_b32 v{RING+1}, 3, v{vL}")
        a(f"v_lshl_add_u32 v{RING}, v{RING+1}, 7, v{RING}")
        a(f"s_bfe_u32 s{sT0}, s{sWI}, 0x20002")
        a(f"s_mul_i32 s{sT0}, s{sT0}, {28*65536}")
        a(f"s_and_b32 s{sT1}, s{sB}, 7")
        a(f"s_lshl_b32 s{sT1}, s{sT1}, 9")
        a(f"s_add_u32 s{sT0}, s{sT0}, s{sT1}")
        a(f"v_add_u32 v{RING}, s{sT0}, v{RING}")
        a(f"s_add_u32 s{sT1}, s{sW}, s{sROT2}")
        a(f"s_add_u32 s{sT1}, s{sT1}, {28 - IDN}")
        for k in range((IDN + 3) // 4):
            a(f"s_sub_u32 s{sT2}, s{sT1}, 28")
            a(f"s_cselect_b32 s{sT1}, s{sT1}, s{sT2}")
            a(f"s_lshl_b32 s{sT2}, s{sT1}, 16")
            a(f"buffer_load_dword v31, v{RING}, {sr(SW2,4)}, s{sT2} offen")
            a(f"s_add_u32 s{sT1}, s{sT1}, 4")
    nlate = n2 if SPX else 0
    pump.fill(nmid)
    if SPX:
        poll(h4a.can_issue, h4a.can_check, 0x5e)
        h4a.window()
    pump.run(cact, refill=False, tmp=(AUX + 14, AUX + 15))
    pump.fill(nact)
    a.label(join)
    a.hist = []
    stamp(f"p3_{L}")
    a.c(f"======== P4 layer {L}")
    if L == 0:
        set_poi(64)
        tile_poison(64, sAX2W, 0, 2048)
        tile_poison(64, sAPQW, PQ[1] - PQ[0], 1024)
        kv_poison(64, 1)
    cinit = pst[1]
    NKT = opt("NKT", 10)
    def kvdma(j):
        if j == 0: a(f"s_add_u32 s{sT3}, s{sAWQT}, s{sWA}")
        if j & 3 == 0:
            a(f"s_add_u32 m0, s{sWA}, {j*1024}")
            if j: a(f"s_add_u32 s{sT3}, s{sT3}, 4096")
        return a(f"buffer_load_dwordx4 v{vL16}, {sr(SWS,4)}, s{sT3} offen offset:{(j&3)*1024} sc1 lds")
    if SPX:
        WV = opt("WV", 2); AH = optL("AH", L, 3, 4)
        pump.run(min(pump.i, pump.c + optL("PRE", L, 0, 0)), tmp=(AUX, AUX + 1))
        landed = pump.i; c0 = pump.c
        def hk(s, k):
            if k == 1:
                lim = max(min(landed, c0 + WV * (s + 1)), min(28, s + AH))
                pump.run(lim, tmp=(AUX, AUX + 1), first=(s == 0))
            if k == 0 and s >= cinit:
                assert pump.c > s
                if not opt("NOPUMP", 0): a.wait(lg=pump.lid[s])
        h4a.run(nxt=h4b, hook=hk)
    else:
        pump.run(28, tmp=(AUX, AUX + 1))
        stamp("p4_w2")
        a.wait_lg_all()
        spec(h4a.can_issue, h4a.can_check, h4a.window, 0x60 + L, a.newlabel("SREDO"))
        stamp("canary")
        h4a.run(nxt=h4b)
    stamp("gemm_a")
    def resid(hf):
        A0 = 32 + 32 * hf; XU = AUX
        for j in range(4):
            a(f"v_lshlrev_b32 v{XU+2*j}, 16, v{XR+4*hf+j}")
            a(f"v_and_b32 v{XU+2*j+1}, 0xffff0000, v{XR+4*hf+j}")
        for q in range(4): pk("add", XU+2*q, vr(XU+2*q,2), vr(vB2-1,2), lo=[0,1], hi=[1,1])
        for q in range(4): pk("add", A0+2*q, vr(A0+2*q,2), vr(XU+2*q,2))
    def out(hf):
        A0 = 32 + 32 * hf
        for q in range(4): a(f"v_cvt_pk_bf16_f32 v{XR+4*hf+q}, v{A0+2*q}, v{A0+2*q+1}")
        if L == 0: ws_store4(XR + 4 * hf, sAX2W, 2048 * hf)
        else:
            a(f"v_permlane32_swap_b32 v{XR+4*hf}, v{XR+4*hf+2}")
            a(f"v_permlane32_swap_b32 v{XR+4*hf+1}, v{XR+4*hf+3}")
            a(f"buffer_store_dwordx4 {vr(XR+4*hf,4)}, v{vOUT}, {sr(SOUT,4)}, 0 offen offset:{64*hf}")
    wv = []
    if optL("WE4", L, 1, 1):
        h4a.writes()
        wv = h4a.woven(40)
        XU = AUX
        pre = []
        for j in range(4):
            pre.append(lambda j=j: a(f"v_lshlrev_b32 v{XU+2*j}, 16, v{XR+j}"))
            pre.append(lambda j=j: a(f"v_and_b32 v{XU+2*j+1}, 0xffff0000, v{XR+j}"))
        for j in range(8): pre.append(lambda j=j: a(f"v_add_f32 v{32+j}, v{32+j}, v{vB2}"))
        for j in range(8): wv.append(lambda j=j: a(f"v_add_f32 v{32+j}, v{32+j}, v{XU+j}"))
        wv = pre[:8] + wv[:1] + wv[1:7] + pre[8:] + wv[10:]
        wv.append(lambda: out(0))
    else:
        h4a.writes(); resid(0); h4a.reads(); out(0)
    h4b.late_check(0x62 + L)
    stamp("epi_a")
    kc = [0]
    WPS = opt("WPS", 2)
    def hk(s, k):
        for _ in range(WPS if k == 1 else WPS - 1):
            if wv:
                f = wv.pop(0)
                if f: f()
        if L == 0 and k == 1 and s + LKH >= 28 and kc[0] < NKT:
            kvdma(kc[0]); kc[0] += 1
    h4b.run(hook=hk)
    assert not wv
    stamp("gemm_b")
    if L == 0 and opt("XE", 0) == 1: xa_start()
    h4b.writes()
    if L == 0 and opt("XE", 0) == 2: xa_start()
    if L == 0 and opt("KE", 2):
        while kc[0] < 12: kvdma(kc[0]); kc[0] += 1
    resid(1); h4b.reads()
    if L == 0 and opt("KE", 2) == 2:
        while kc[0] < 16: G["kvlast"] = kvdma(kc[0]); kc[0] += 1
    out(1)
    if L == 0:
        row_stats_publish(sAS2W, 32)
        for j in range(kc[0], 16): G["kvlast"] = kvdma(j)
    stamp(f"p4_{L}")

def emit_ool():
    for h, nxt, lab, back in OOL:
        a.label(lab)
        a.hist = []
        a.vm_done = a.vm
        h.window()
        h.steps(lab, force=False)
        if nxt is not None:
            if nxt.kind == 2: nxt.can_issue()
            nxt.window()
            a("s_waitcnt vmcnt(0)")
        a("s_nop 15")
        a(f"s_branch {back}")

prologue()
for L in range(2):
    p1(L); p2(L); p34(L)
finish()
a.label("L_END")
emit_ool()
a.label("L_EXIT")
a("s_endpgm")

hdr = open(f"ref.s").read().split("; Override launch")[0]
out = hdr + f"""; @launch grid=(256,1,1) block=(256,1,1) lds={LDS_BYTES}
.amdgcn_target "amdgcn-amd-amdhsa--gfx950"
.text
.globl {NAME}_kernel
.p2align 8
.type {NAME}_kernel,@function
{NAME}_kernel:
""" + a.text() + f""".section .rodata,"a"
.p2align 6
.amdhsa_kernel {NAME}_kernel
  .amdhsa_next_free_vgpr 512
  .amdhsa_next_free_sgpr 102
  .amdhsa_accum_offset 256
  .amdhsa_group_segment_fixed_size 0
  .amdhsa_kernarg_size 88
  .amdhsa_user_sgpr_count 2
  .amdhsa_user_sgpr_kernarg_segment_ptr 1
  .amdhsa_system_sgpr_workgroup_id_x 1
  .amdhsa_float_denorm_mode_32 3
.end_amdhsa_kernel
"""
outp = [x for x in sys.argv[1:] if x.endswith(".s")]
open(outp[0], "w").write(out)
if DIAG: open(outp[0] + ".stamps", "w").write("\n".join(stamp_names))
```

```python
import sys, struct
from contextlib import contextmanager
from asmlib import Asm, vr, ar, sr

NAME = "interleave_layers__linear_attn_block__mixer_token_mlp__prompt"
DIAG = "--diag" in sys.argv
OPT = {}
for a_ in sys.argv:
    if a_.startswith("-D"):
        k_, v_ = a_[2:].split("="); OPT[k_] = int(v_)
def opt(k, d): return OPT.get(k, d)
def optL(k, L, d0, d1): return OPT.get(f"{k}_{L}", (d0, d1)[L])
def f2u(x): return struct.unpack("<I", struct.pack("<f", x))[0]
def fl(x): return "0x%08x" % f2u(x)
FULL = (1 << 64) - 1
LOG2E = 1.4426950408889634

KVF = [0x2000, 0xC0000]; KVP = [0x8000, 0xC6000]; ST = [0x166000, 0x1A6000]; ST2 = 0x1E6000
SELFP = 0xC0000
PQ = [0x400000, 0x600000]; HT = [0x800000, 0xA00000]; U = [0xC00000, 0xE00000]; X2 = 0x1000000
WQT = 0x1200000
TS = 0x1400000
DUMP = 0x1500000
ERRS = 0x1520000
NONCE = 0x0; TAGQ = 0x1540000
WS_BYTES = 268435456
L_A = 32768; L_B = 98304; LDS_BYTES = 163840
NS = 6; SCR = 12288
sW = 3
SX, SWQKV, SWO, SW1, SW2, SWS, SOUT, SDBG, SB1, SB2, SCODE = 4, 8, 12, 16, 20, 24, 28, 32, 36, 40, 44
sST, sDT, sRB, sHP, sDT3, sFT, sP3, sRH, sKH, sWB, sTO, sONES = 48, 49, 50, 51, 52, 53, 54, 55, 56, 57, 58, 59
sEPS6 = 60; sB = 61
sT0, sT1, sT2, sT3, sT4, sT5 = 62, 63, 64, 65, 66, 67
sSO = 68; sW1K = 69; sTS = 70
sL2E = 74; sWA = 75; sROTX = 76; sROT1 = 77; sROT2 = 78; sRED = 79; sWOFF = 80; sKB = 81; sXC = 82; sWI = 83
sKA = 84
sAKVP, sAPQW, sAPQR, sAKVF, sASTW, sASTR, sAHTW, sAHTR, sAUW, sAUR, sAX2W, sAX2R, sAS2W, sAS2R, sAWQT, sGK = range(84, 100)
sDUM = 100; sNON = 101; sRX0 = 73
vL, vL16, vTA, vTB, vT0, vT1, vT2, vT3 = 0, 1, 2, 3, 4, 5, 6, 7
XR = 8
CKP, CVP, CQP, vB2, vRS, vHH, vOUT, vTSV = 16, 17, 18, 19, 20, 21, 22, 23
vWA, vWB, vWTA, vWTB = 24, 25, 26, 27
MA = 28

a = Asm()
stamp_names = []
G = {}

@contextmanager
def cond():
    st = (a.vm, a.vm_done, a.lg, a.lg_done); h = list(a.hist)
    yield
    a.vm, a.vm_done, a.lg, a.lg_done = st[0], min(st[1], st[0]), st[2], min(st[3], st[2])
    a.hist = h

def stamp(name):
    if not DIAG: return
    if "--lite" in sys.argv and name not in ("start", "end", "p4_0"): return
    k = len(stamp_names); stamp_names.append(name)
    if opt("CYC", 0) and name not in ("start", "end"): a(f"s_memtime {sr(sTS,2)}")
    else: a(f"s_memrealtime {sr(sTS,2)}")
    if name in ("start", "end"): a(f"s_memtime s[0:1]") if name == "end" else a(f"s_memtime {sr(sTS+2,2)}")
    a("s_waitcnt lgkmcnt(0)"); a.lg_done = a.lg
    a(f"v_writelane_b32 v{vTSV}, s{sTS}, {k}")
    if name in ("start", "end"): a(f"v_writelane_b32 v{vTSV}, s{sTS+2 if name == 'start' else 0}, {62 if name == 'start' else 63}")

def srd(base, ptr, nbytes):
    a(f"s_mov_b32 s{base}, s{ptr}")
    a(f"s_and_b32 s{base+1}, s{ptr+1}, 0xffff")
    a(f"s_mov_b32 s{base+2}, {nbytes:#x}")
    a(f"s_mov_b32 s{base+3}, 0x20000")

def set_exec(mask):
    if mask == FULL: a("s_mov_b64 exec, -1")
    elif mask <= 64: a(f"s_mov_b64 exec, {mask}")
    else:
        a(f"s_mov_b32 exec_lo, {mask & 0xffffffff:#x}"); a(f"s_mov_b32 exec_hi, {mask >> 32:#x}")

def lin(dst, terms, const=0):
    first = True
    for r, m in terms:
        t = dst if first else sT5
        if m == 1 and not first: a(f"s_add_u32 s{dst}, s{dst}, s{r}"); continue
        if m & (m - 1) == 0: a(f"s_lshl_b32 s{t}, s{r}, {m.bit_length()-1}")
        else: a(f"s_mul_i32 s{t}, s{r}, {m}")
        if not first: a(f"s_add_u32 s{dst}, s{dst}, s{sT5}")
        first = False
    if const: a(f"s_add_u32 s{dst}, s{dst}, {const:#x}")

def timeout_path(code):
    a(f"s_mov_b32 s{sTO}, 0")
    if DIAG:
        a(f"v_mov_b32 v{vT3}, {code}")
        a(f"s_mov_b32 s{sT5}, {ERRS:#x}")
        a(f"buffer_store_dword v{vT3}, off, {sr(SWS,4)}, s{sT5}")
        a("s_waitcnt vmcnt(0)")

def poll(issue, check, code, pre=None):
    top = a.newlabel("POLL"); done = a.newlabel("PDONE"); chk = a.newlabel("PCHK")
    if pre is not None:
        a.wait(vm=pre)
        st = (a.vm, a.vm_done)
        a(f"s_branch {chk}")
    a.label(top)
    issue()
    a.wait_vm_all(force=True)
    if pre is not None: a.label(chk)
    check()
    a(f"s_cbranch_vccz {done}")
    h = list(a.hist); vmst = (a.vm, a.vm_done)
    if opt("PS", 2) and not (code == 0x20 and opt("A1NS", 1)): a(f"s_sleep {opt('PS', 2)}")
    a(f"s_sub_u32 s{sTO}, s{sTO}, 1")
    a(f"s_cbranch_scc0 {top}")
    timeout_path(code)
    a.label(done)
    a.hist = h; a.vm, a.vm_done = vmst
    if pre is not None: a.vm, a.vm_done = st

def poll1(addr, code, tmp=None, tag=False):
    cmp = (lambda r: a(f"v_cmp_ne_u32 vcc, s{sNON}, v{r}")) if tag else (lambda r: a(f"v_cmp_eq_u32 vcc, -1, v{r}"))
    if tmp is None or not opt("PP", 0):
        poll(lambda: a(f"buffer_load_dword v{vT3}, {addr} sc1"), lambda: cmp(vT3), code)
        return
    top = a.newlabel("PP"); done = a.newlabel("PPD")
    a(f"buffer_load_dword v{vT3}, {addr} sc1")
    a(f"s_nop {opt('PPN', 15)}")
    a.label(top)
    for r, o in ((vT3, tmp), (tmp, vT3)):
        a(f"buffer_load_dword v{o}, {addr} sc1")
        a("s_waitcnt vmcnt(1)")
        cmp(r)
        a(f"s_cbranch_vccz {done}")
    h = list(a.hist)
    a(f"s_sub_u32 s{sTO}, s{sTO}, 2")
    a(f"s_cbranch_scc0 {top}")
    timeout_path(code)
    a.label(done)
    a.hist = h
    a.vm -= 1
    a.vm_done = a.vm - 1

SLD = {}
SPD = {0x50: 1, 0x51: 1, 0x60: 1, 0x61: 1, 0x36: 1, 0x38: 1, 0x39: 1, 0x40: 1}
def spec(can_issue, can_check, window, code, redo, on=True):
    go = a.newlabel("GO")
    d = OPT.get(f"SL{code:x}", SLD.get(code, 0))
    if d: a(f"s_sleep {d}")
    on = OPT.get(f"SP{code:x}", SPD.get(code, 0))
    if on:
        can_issue(); cid = a.vm - 1
        window()
        a.wait(vm=cid)
        can_check()
        force_fail("FRC")
        a(f"s_cbranch_vccz {go}")
        st = (a.vm, a.vm_done, list(a.hist))
        poll(can_issue, can_check, code)
        a.label(redo)
        window()
        a.label(go)
        a.hist = []
        a("s_nop 0")
    else:
        poll(can_issue, can_check, code)
        a.label(redo)
        window()

force_n = [0]
def force_fail(kind):
    if not opt(kind, 0): return
    k = force_n[0] % 32; force_n[0] += 1
    l = a.newlabel("FF")
    a(f"s_bitcmp1_b32 s2, {k}")
    a(f"s_cbranch_scc1 {l}")
    a(f"s_bitset1_b32 s2, {k}")
    a("s_mov_b64 vcc, 1")
    a.label(l)

def verify(vMX, redo, force=True):
    ok = a.newlabel("VOK")
    a(f"v_cmp_eq_u32 vcc, -1, v{vMX}")
    if force: force_fail("FRV")
    a(f"s_cbranch_vccz {ok}")
    h = list(a.hist)
    a("s_waitcnt vmcnt(0)")
    a(f"s_sub_u32 s{sTO}, s{sTO}, 64")
    a(f"s_cbranch_scc0 {redo}")
    a(f"s_mov_b32 s{sTO}, 0")
    a.label(ok)
    a.hist = h

def finish():
    if opt("AMP", -1) >= 0:
        lp = a.newlabel("AMPL"); sk = a.newlabel("AMPS")
        stamp("pre_end")
        a(f"s_cmp_lg_u32 s{sB}, 77")
        a(f"s_cbranch_scc1 {sk}")
        a(f"v_readlane_b32 s{sT0}, v{vTSV}, 0")
        a(f"v_readlane_b32 s{sT1}, v{vTSV}, {opt('AMP', 0)}")
        a(f"s_memrealtime s[70:71]")
        a("s_waitcnt lgkmcnt(0)")
        a(f"s_sub_u32 s{sT1}, s{sT1}, s{sT0}")
        a(f"s_lshl_b32 s{sT1}, s{sT1}, 2")
        a(f"s_add_u32 s{sT1}, s70, s{sT1}")
        a.label(lp)
        a(f"s_memrealtime s[70:71]")
        a("s_waitcnt lgkmcnt(0)")
        a(f"s_sub_u32 s{sT2}, s70, s{sT1}")
        a(f"s_cmp_lt_i32 s{sT2}, 0")
        a(f"s_cbranch_scc1 {lp}")
        a.label(sk)
    if DIAG:
        a(f"v_writelane_b32 v{vTSV}, s{sTO}, 61")
        stamp("end")
        lin(sT0, [(sB, 1024), (sW, 256)], TS)
        a(f"v_lshlrev_b32 v{vT0}, 2, v{vL}")
        a(f"buffer_store_dword v{vTSV}, v{vT0}, {sr(SWS,4)}, s{sT0} offen")
    a("s_endpgm")

def pk(op, d, x, y, z=None, hi=None, lo=None):
    ops = [x, y] + ([z] if z is not None else [])
    m = ""
    if lo: m += " op_sel:[" + ",".join(map(str, lo)) + "]"
    if hi: m += " op_sel_hi:[" + ",".join(map(str, hi)) + "]"
    a(f"v_pk_{op}_f32 {vr(d,2)}, " + ", ".join(ops) + m)

def mfma(d, A, B, C):
    a(f"v_mfma_f32_32x32x16_bf16 {d}, {A}, {B}, {C}")

def ws_store4(reg, soff, off=0): return a(f"buffer_store_dwordx4 {vr(reg,4)}, v{vL16}, {sr(SWS,4)}, s{soff} offen offset:{off} sc1")

def tr_base(dst_a, dst_b, sel64, sel32, region):
    a(f"v_bfe_u32 v{vT0}, v{vL}, 2, 2")
    a(f"v_lshl_add_u32 v{vT0}, v{vHH}, 2, v{vT0}")
    a(f"v_lshlrev_b32 v{dst_a}, 7, v{vT0}")
    a(f"v_bfe_u32 v{vT1}, v{vL}, 3, 1")
    a(f"v_lshl_add_u32 v{dst_a}, v{vT1}, 6, v{dst_a}")
    a(f"v_bfe_u32 v{vT1}, v{vL}, 4, 1")
    a(f"v_lshl_add_u32 v{dst_a}, v{vT1}, 5, v{dst_a}")
    a(f"v_and_b32 v{vT1}, 3, v{vL}")
    a(f"v_lshl_add_u32 v{dst_a}, v{vT1}, 3, v{dst_a}")
    for sel, sh in ((sel64, 6), (sel32, 5)):
        if sel is not None:
            a(f"s_lshl_b32 s{sT5}, s{sel}, {sh}")
            a(f"v_xor_b32 v{dst_a}, s{sT5}, v{dst_a}")
    a(f"v_add_u32 v{dst_a}, {region}, v{dst_a}")
    a(f"v_xor_b32 v{dst_b}, 64, v{dst_a}")

def dma_voff(dst, dst2, pitch, scol):
    a(f"v_lshrrev_b32 v{vT0}, 3, v{vL}")
    a(f"v_mul_u32_u24 v{dst}, {pitch}, v{vT0}")
    a(f"v_bfe_u32 v{vT1}, v{vL}, 4, 1")
    a(f"v_lshlrev_b32 v{vT1}, 2, v{vT1}")
    a(f"v_and_b32 v{vT0}, 7, v{vL}")
    a(f"v_xor_b32 v{vT0}, v{vT0}, v{vT1}")
    a(f"v_lshl_add_u32 v{dst}, v{vT0}, 4, v{dst}")
    a(f"v_add_u32 v{dst}, s{scol}, v{dst}")
    a(f"v_add_u32 v{dst2}, {8*pitch-1024}, v{dst}")

R1, R2 = 16, 11
def wreg(kind, t, j, n):
    r, base = (R1, 0) if kind == 1 else (R2, R1 * 8)
    if t < r: return ar(base + 8 * t + j, n)
    t -= r
    if t < 5: return ar(216 + 8 * t + j, n)
    return vr(160 + 8 * (t - 5) + j, n)

class Pump:
    def setup(self, kind, L, extra=0):
        self.kind = kind
        self.pitch, self.srd, self.n = (3584, SW1, 32) if kind == 1 else (4096, SW2, 28)
        self.t0 = 0 if L == 0 else (R1 if kind == 1 else R2)
        self.extra = extra
        self.ns = opt("NS1", 6) if kind == 1 else NS
        self.i = self.t0; self.c = self.t0; self.vid = {}; self.lid = {}
        a.c(f"pump setup W{kind}")
        a(f"s_lshl_b32 s{sT5}, s{sKH}, 5")
        a(f"v_xor_b32 v{vWTA}, s{sT5}, v{vWTA}")
        a(f"v_xor_b32 v{vWTB}, s{sT5}, v{vWTB}")
        lin(sT4, [(sFT if kind == 1 else sST, 128), (sW, self.n * 16 * self.pitch)])
        dma_voff(vWA, vWB, self.pitch, sT4)
        rot = sROT1 if kind == 1 else sROT2
        a(f"s_add_u32 s{sT5}, s{rot}, {self.t0}")
        a(f"s_sub_u32 s{sWOFF}, s{sT5}, {self.n}")
        a(f"s_cselect_b32 s{sWOFF}, s{sT5}, s{sWOFF}")
        a(f"s_mul_i32 s{sWOFF}, s{sWOFF}, {16*self.pitch}")
    def place(self, t):
        k = t - self.t0
        if k < self.extra: return ("B", k * 2048)
        return ("A", ((k - self.extra) % self.ns) * 2048)
    def prev_user(self, t):
        p = t - self.ns
        return p if p - self.t0 >= self.extra else None
    def room(self, lag=0):
        p = self.prev_user(self.i)
        return p is None or p < self.c - lag
    def issue1(self):
        t = self.i
        if opt("NOPUMP", 0):
            self.vid[t] = None; self.i += 1; return
        p = self.prev_user(t)
        if p is not None: a.wait(lg=self.lid[p])
        reg, o = self.place(t)
        a(f"s_add_u32 m0, s{sWB if reg == 'B' else sWA}, {o}")
        if t > self.t0:
            a(f"s_add_u32 s{sWOFF}, s{sWOFF}, {16*self.pitch}")
            a(f"s_cmp_eq_u32 s{sWOFF}, {self.n*16*self.pitch}")
            a(f"s_cselect_b32 s{sWOFF}, 0, s{sWOFF}")
        a(f"buffer_load_dwordx4 v{vWA}, {sr(self.srd,4)}, s{sWOFF} offen lds")
        self.vid[t] = a(f"buffer_load_dwordx4 v{vWB}, {sr(self.srd,4)}, s{sWOFF} offen offset:1024 lds")
        self.i += 1
    def fill(self, upto=None):
        lim = self.n if upto is None else min(self.n, upto)
        while self.i < lim and self.room(): self.issue1()
    def run(self, target, refill=True, tmp=(vT0, vT1), first=True):
        target = min(target, self.n)
        haveB = not first
        while self.c < target:
            t = self.c
            if t >= self.i: self.issue1()
            if opt("NOPUMP", 0):
                self.c += 1; continue
            reg, o = self.place(t)
            ta, tb = vWTA, vWTB
            if reg == "B":
                ta, tb = tmp
                if not haveB:
                    a(f"v_add_u32 v{ta}, 65536, v{vWTA}"); a(f"v_add_u32 v{tb}, 65536, v{vWTB}"); haveB = True
            a.wait(vm=self.vid[t])
            a(f"ds_read_b64_tr_b16 {wreg(self.kind,t,0,2)}, v{ta} offset:{o}")
            a(f"ds_read_b64_tr_b16 {wreg(self.kind,t,2,2)}, v{ta} offset:{o+1024}")
            a(f"ds_read_b64_tr_b16 {wreg(self.kind,t,4,2)}, v{tb} offset:{o}")
            self.lid[t] = a(f"ds_read_b64_tr_b16 {wreg(self.kind,t,6,2)}, v{tb} offset:{o+1024}")
            self.c += 1
            lim = self.n if refill else target
            if self.i < lim and self.room(lag=1): self.issue1()
        if refill: self.fill()
pump = Pump()

def prologue():
    a(f"s_cmp_ge_u32 s2, 256")
    a(f"s_cbranch_scc1 L_EXIT")
    a(f"s_load_dwordx16 {sr(sKA,16)}, s[0:1], 0")
    a(f"s_load_dwordx4 {sr(SCODE,4)}, s[0:1], 64")
    a(f"s_load_dwordx2 s[100:101], s[0:1], 80")
    a(f"s_mov_b32 s{sB}, s2")
    if opt("FRV", 0) or opt("FRC", 0): a("s_mov_b32 s2, 0")
    a(f"v_lshrrev_b32 v{vT0}, 6, v0")
    a(f"v_and_b32 v{vL}, 63, v0")
    a(f"v_readfirstlane_b32 s{sW}, v{vT0}")
    a(f"v_lshlrev_b32 v{vL16}, 4, v{vL}")
    a(f"v_lshrrev_b32 v{vHH}, 5, v{vL}")
    if opt("CODEPF", 2) == 2:
        a(f"s_getpc_b64 {sr(SB1,2)}")
        a.label("L_PC")
        a(f"s_and_b32 s{SB1+1}, s{SB1+1}, 0xffff")
        a(f"s_mov_b32 s{SB1+2}, L_END - L_PC")
        a(f"s_mov_b32 s{SB1+3}, 0x20000")
        a(f"s_lshr_b32 s{sT0}, s{sB}, 3")
        a(f"s_lshl_b32 s{sT0}, s{sT0}, 2")
        a(f"s_add_u32 s{sT0}, s{sT0}, s{sW}")
        a(f"s_lshl_b32 s{sT0}, s{sT0}, 10")
        a(f"buffer_load_dwordx4 {ar(252,4)}, v{vL16}, {sr(SB1,4)}, s{sT0} offen")
    if DIAG: a(f"v_mov_b32 v{vTSV}, 0")
    stamp("start")
    X_, I_ = sT0, sT1
    a(f"s_and_b32 s{X_}, s{sB}, 7")
    a(f"s_lshr_b32 s{I_}, s{sB}, 3")
    a(f"s_lshr_b32 s{sT2}, s{I_}, 3")
    a(f"s_and_b32 s{sDT}, s{I_}, 7")
    a(f"s_and_b32 s{sRB}, s{X_}, 3")
    a(f"s_lshl_b32 s{sRB}, s{sRB}, 2")
    a(f"s_add_u32 s{sRB}, s{sRB}, s{sT2}")
    a(f"s_lshr_b32 s{sHP}, s{X_}, 2")
    a(f"s_lshl_b32 s{sHP}, s{sHP}, 3")
    a(f"s_add_u32 s{sHP}, s{sHP}, s{sDT}")
    a(f"s_lshr_b32 s{sROTX}, s{sDT}, 1")
    a(f"s_add_u32 s{sROTX}, s{sROTX}, s{sT2}")
    a(f"s_and_b32 s{sROTX}, s{sROTX}, 3")
    a(f"s_lshl_b32 s{sROTX}, s{sROTX}, 1")
    a(f"s_and_b32 s{sT3}, s{I_}, 1")
    a(f"s_add_u32 s{sROTX}, s{sROTX}, s{sT3}")
    a(f"s_and_b32 s{sRX0}, s{sROTX}, {opt('RXM', 6)}")
    a(f"s_lshl_b32 s{sW1K}, s{sW}, 10")
    a(f"s_lshl_b32 s{sWB}, s{sW}, 14")
    a(f"s_add_u32 s{sWA}, s{sWB}, {L_A}")
    a(f"s_add_u32 s{sWB}, s{sWB}, {L_B}")

def roles2():
    X_, I_ = sT0, sT1
    a(f"s_and_b32 s{X_}, s{sB}, 7")
    a(f"s_lshr_b32 s{I_}, s{sB}, 3")
    a(f"s_lshr_b32 s{sT2}, s{I_}, 3")
    a(f"s_lshl_b32 s{sST}, s{X_}, 2")
    a(f"s_add_u32 s{sST}, s{sST}, s{sT2}")
    a(f"s_lshr_b32 s{sT3}, s{X_}, 1")
    a(f"s_mul_i32 s{sT3}, s{sT3}, 7")
    a(f"s_and_b32 s{sT4}, s{X_}, 1")
    a(f"s_lshl_b32 s{sT5}, s{sT4}, 2")
    a(f"s_add_u32 s{sFT}, s{sT3}, s{sT5}")
    a(f"s_add_u32 s{sFT}, s{sFT}, s{sT2}")
    a(f"s_and_b32 s{sP3}, s{I_}, 3")
    a(f"s_add_u32 s{sT5}, s{sT5}, s{sP3}")
    a(f"s_add_u32 s{sKB}, s{sT3}, 3")
    a(f"s_cmp_lt_u32 s{I_}, 24")
    a(f"s_cselect_b32 s{sFT}, s{sFT}, s{sKB}")
    a(f"s_cselect_b32 s{sDT3}, s{sDT}, s{sT5}")
    a(f"s_mul_i32 s{sT4}, s{sT4}, 3")
    a(f"s_add_u32 s{sXC}, s{sT3}, s{sT4}")
    a(f"s_lshl_b32 s{sROT1}, s{X_}, 2")
    a(f"s_and_b32 s{sT3}, s{I_}, 3")
    a(f"s_lshr_b32 s{sP3}, s{I_}, 2")
    a(f"s_lshl_b32 s{sWI}, s{I_}, 2")
    a(f"s_add_u32 s{sWI}, s{sWI}, s{sW}")
    a(f"s_lshl_b32 s{sRED}, s{X_}, 2")
    a(f"s_add_u32 s{sRED}, s{sRED}, s{sT3}")
    a(f"s_lshl_b32 s{sRED}, s{sRED}, 1")
    a(f"s_add_u32 s{sRED}, s{sRED}, s{sW}")
    a(f"s_cmp_lt_u32 s{sW}, 2")
    a(f"s_cselect_b32 s{sRED}, s{sRED}, 99")
    a(f"s_cmp_eq_u32 s{sP3}, 7")
    a(f"s_cselect_b32 s{sRED}, s{sRED}, 99")
    a(f"s_mul_i32 s{sROT2}, s{X_}, 7")
    a(f"s_lshr_b32 s{sROT2}, s{sROT2}, 2")
    a(f"s_lshl_b32 s{sROT2}, s{sROT2}, 1")
    if opt("MAP", 0):
        a(f"s_and_b32 s{sT2}, s{X_}, 1")
        a(f"s_lshl_b32 s{sT2}, s{sT2}, 2")
        a(f"s_and_b32 s{sT3}, s{I_}, 3")
        a(f"s_lshr_b32 s{sT5}, s{X_}, 1")
        a(f"s_add_u32 s{sT4}, s{sP3}, s{sT3}")
        a(f"s_and_b32 s{sT4}, s{sT4}, {opt('MROT', 1)}")
        if opt("MAP", 0) & 1:
            a(f"s_add_u32 s{sDT3}, s{sT2}, s{sT3}")
            a(f"s_mul_i32 s{sFT}, s{sT5}, 7")
            a(f"s_add_u32 s{sFT}, s{sFT}, s{sP3}")
            a(f"s_lshl_b32 s{sROT1}, s{sT4}, 4")
        if opt("MAP", 0) & 2:
            a(f"s_add_u32 s{sDT}, s{sT2}, s{sT3}")
            a(f"s_lshl_b32 s{sST}, s{sT5}, 3")
            a(f"s_add_u32 s{sST}, s{sST}, s{sP3}")
            a(f"s_mul_i32 s{sROT2}, s{sT4}, 14")
    a(f"s_lshr_b32 s{sRH}, s{sW}, 1")
    a(f"s_and_b32 s{sKH}, s{sW}, 1")
    a(f"s_mov_b32 s{sTO}, 400000")
    a(f"s_mov_b32 s{sONES}, 0x3f803f80")
    a(f"s_mov_b32 s{sEPS6}, {fl(1e-6)}")
    a(f"s_mov_b32 s{sL2E}, {fl(LOG2E)}")

def late_srds():
    srd(SWO, sKA + 4, 512 * 512 * 2)
    srd(SW1, sKA + 8, 2048 * 1792 * 2)
    srd(SB1, sKA + 10, 1792 * 2)
    srd(SW2, sKA + 12, 1792 * 2048 * 2)
    srd(SB2, sKA + 14, 2048 * 2)
    srd(SOUT, SCODE, 2048 * 512 * 2)
    srd(SDBG, SCODE + 2, 256)

def code_prefetch():
    if opt("CODEPF", 2) == 1:
        a(f"s_getpc_b64 {sr(SCODE,2)}")
        a.label("L_PC")
        a(f"s_and_b32 s{SCODE+1}, s{SCODE+1}, 0xffff")
        a(f"s_mov_b32 s{SCODE+2}, L_END - L_PC")
        a(f"s_mov_b32 s{SCODE+3}, 0x20000")
        a(f"s_lshl_b32 s{sT0}, s{sWI}, 10")
        a(f"buffer_load_dwordx4 {ar(252,4)}, v{vL16}, {sr(SCODE,4)}, s{sT0} offen")
    srd(SCODE, SW1, 2048 * 1792 * 2)
    a(f"s_cmp_eq_u32 s{sP3}, 7")
    a(f"s_cselect_b32 s{SW1+2}, 0, s{SW1+2}")

def addresses():
    lin(sAKVP, [(sHP, 64 * 640), (sRB, 4 * 640), (sW, 640)], KVP[0])
    lin(sAPQW, [(sRB, 4 * 32768), (sW, 32768), (sHP, 2048)], PQ[0])
    lin(sAPQR, [(sST, 65536), (sRH, 32768), (sKH, 16384)], PQ[0])
    lin(sAKVF, [(sKH, 16 * 768)], KVF[0])
    lin(sASTW, [(sST, 8192), (sDT, 1024), (sKH, 512), (sRH, 256)], ST[0])
    lin(sASTR, [(sST, 8192), (sRH, 256)], ST[0])
    lin(sAHTW, [(sDT, 262144), (sST, 8192), (sRH, 4096), (sKH, 256)], HT[0])
    lin(sAHTR, [(sDT3, 262144), (sW, 65536)], HT[0])
    lin(sAUW, [(sDT3, 229376), (sFT, 8192), (sRH, 4096), (sKH, 2048)], U[0])
    a(f"s_cmp_eq_u32 s{sP3}, 7")
    a(f"s_cselect_b32 s{sAUW}, {WS_BYTES:#x}, s{sAUW}")
    lin(sAUR, [(sDT, 229376), (sW, 57344)], U[0])
    lin(sAX2W, [(sST, 65536), (sRH, 32768), (sDT, 4096), (sKH, 1024)], X2)
    lin(sAX2R, [(sRB, 4 * 32768), (sW, 32768)], X2)
    a(f"s_add_u32 s{sAS2W}, s{sASTW}, {ST2 - ST[0]:#x}")
    lin(sAS2R, [(sRB, 2 * 8192), (sRH, 8192), (sKH, 256)], ST2)
    lin(sAWQT, [(sHP, 98304)], WQT)
    a(f"s_mov_b32 s{sGK}, {fl(-2.0 * 0.7978845608028654 * LOG2E * 0.044715)}")

def next_layer_addresses():
    for r, d in ((sAKVP, KVP[1] - KVP[0]), (sAPQW, PQ[1] - PQ[0]), (sAPQR, PQ[1] - PQ[0]), (sAKVF, KVF[1] - KVF[0]),
                 (sASTW, ST[1] - ST[0]), (sASTR, ST[1] - ST[0]), (sAHTW, HT[1] - HT[0]), (sAHTR, HT[1] - HT[0]),
                 (sAUW, U[1] - U[0]), (sAUR, U[1] - U[0])):
        a(f"s_add_u32 s{r}, s{r}, {d:#x}")

def kv_poison(P, L):
    r = sAKVP
    if L == 1:
        a(f"s_add_u32 s{sT1}, s{sAKVP}, {KVP[1]-KVP[0]:#x}"); r = sT1
    set_exec((1 << 40) - 1)
    ws_store4(P, r)
    a(f"s_mul_i32 s{sT0}, s{sRED}, 384")
    a(f"s_add_u32 s{sT0}, s{sT0}, {KVF[L]:#x}")
    a(f"s_cmp_ge_u32 s{sRED}, 64")
    a(f"s_cselect_b32 s{sT0}, {WS_BYTES:#x}, s{sT0}")
    set_exec((1 << 24) - 1)
    ws_store4(P, sT0)
    set_exec(FULL)
def ht_voff(dst):
    a(f"v_and_b32 v{dst}, 15, v{vL}")
    a(f"v_lshlrev_b32 v{dst}, 4, v{dst}")
    a(f"v_lshl_add_u32 v{dst}, v{vHH}, 9, v{dst}")
    a(f"v_bfe_u32 v{vT0}, v{vL}, 4, 1")
    a(f"v_lshl_add_u32 v{dst}, v{vT0}, 10, v{dst}")
def tile_poison(P, r, delta, step):
    v = vL16
    if r == sAHTW:
        ht_voff(vT1); v = vT1
    if delta:
        a(f"s_add_u32 s{sT0}, s{r}, {delta:#x}"); r = sT0
    for f in range(2): a(f"buffer_store_dwordx4 {vr(P,4)}, v{v}, {sr(SWS,4)}, s{r} offen offset:{step*f} sc1")
def canary_poison(P):
    lines = ((sAHTW, 2048+1024+512+128), (sAUW, 896), (sAUW, 1024+896), (sAHTW, HT[1]-HT[0]+2048+1024+512+128),
             (sAUW, U[1]-U[0]+896), (sAUW, U[1]-U[0]+1024+896), (sAPQW, PQ[1]-PQ[0]+1024+896), (sAX2W, 896))
    a(f"v_lshrrev_b32 v{vT0}, 3, v{vL}")
    for g, (r, d) in enumerate(lines):
        a(f"s_add_u32 s{sT0}, s{r}, {d:#x}")
        if g == 0: a(f"v_mov_b32 v{vT1}, s{sT0}")
        else:
            a(f"v_mov_b32 v{vT2}, s{sT0}")
            a(f"v_cmp_eq_u32 vcc, {g}, v{vT0}")
            a(f"v_cndmask_b32 v{vT1}, v{vT1}, v{vT2}, vcc")
    a(f"v_and_b32 v{vT0}, 7, v{vL}")
    a(f"v_lshl_add_u32 v{vT1}, v{vT0}, 4, v{vT1}")
    a(f"buffer_store_dwordx4 {vr(P,4)}, v{vT1}, {sr(SWS,4)}, 0 offen sc1")
def st_poison(P):
    lin(sT0, [(sB, 3072), (sW, 768)], ST[0])
    set_exec((1 << 48) - 1)
    ws_store4(P, sT0)
    set_exec(FULL)
def set_poi(P):
    for i in range(4): a(f"v_mov_b32 v{P+i}, -1")

def misc_loads():
    lin(sT0, [(sST, 64), (sRH, 32)])
    a(f"v_and_b32 v{vT0}, 31, v{vL}")
    a(f"v_add_u32 v{vT0}, s{sT0}, v{vT0}")
    a(f"v_lshlrev_b32 v{vT1}, 1, v{vT0}")
    a(f"buffer_load_ushort v{vB2}, v{vT1}, {sr(SB2,4)}, 0 offen")
    a(f"v_lshlrev_b32 v{vT0}, 10, v{vT0}")
    a(f"v_lshl_add_u32 v{vOUT}, v{vHH}, 4, v{vT0}")
    lin(sT0, [(sDT, 128), (sKH, 32)])
    a(f"v_add_u32 v{vOUT}, s{sT0}, v{vOUT}")
    a(f"buffer_load_dwordx4 {vr(XR,4)}, v{vOUT}, {sr(SX,4)}, 0 offen")
    a(f"buffer_load_dwordx4 {vr(XR+4,4)}, v{vOUT}, {sr(SX,4)}, 0 offen offset:64")

def touch(srdn, rows_per_wave, lg, pitch, scol_emit, dst):
    n = rows_per_wave << lg
    scol_emit()
    a(f"v_min_u32 v{vT0}, {n-1}, v{vL}")
    a(f"v_lshrrev_b32 v{vT1}, {lg}, v{vT0}")
    a(f"v_mul_u32_u24 v{vT1}, {pitch}, v{vT1}")
    a(f"v_and_b32 v{vT0}, {(1<<lg)-1}, v{vT0}")
    a(f"v_lshl_add_u32 v{vT0}, v{vT0}, 7, v{vT1}")
    a(f"s_mul_i32 s{sT5}, s{sWI}, {rows_per_wave*pitch}")
    a(f"s_add_u32 s{sT4}, s{sT4}, s{sT5}")
    a(f"buffer_load_dword {dst}, v{vT0}, {sr(srdn,4)}, s{sT4} offen")
def touch_w1(dst): touch(SCODE, 16, 2, 3584, lambda: a(f"s_lshl_b32 s{sT4}, s{sXC}, 7"), dst)
def touch_w2(dst):
    def c2():
        a(f"s_and_b32 s{sT4}, s{sB}, 7"); a(f"s_lshl_b32 s{sT4}, s{sT4}, 9")
    touch(SW2, 16, 2, 4096, c2, dst)
def touch_w2h(dst, t0):
    a(f"s_lshr_b32 s{sT4}, s{sWI}, 3")
    a(f"s_add_u32 s{sT4}, s{sT4}, s{sROT2}")
    if t0: a(f"s_add_u32 s{sT4}, s{sT4}, {t0}")
    a(f"s_sub_u32 s{sT5}, s{sT4}, 28")
    a(f"s_cselect_b32 s{sT4}, s{sT4}, s{sT5}")
    a(f"s_and_b32 s{sT5}, s{sWI}, 3")
    a(f"s_mul_i32 s{sT5}, s{sT5}, 28")
    a(f"s_add_u32 s{sT4}, s{sT4}, s{sT5}")
    a(f"s_lshl_b32 s{sT4}, s{sT4}, 1")
    a(f"s_bfe_u32 s{sT5}, s{sWI}, 0x10002")
    a(f"s_add_u32 s{sT4}, s{sT4}, s{sT5}")
    a(f"s_lshl_b32 s{sT4}, s{sT4}, 15")
    a(f"s_and_b32 s{sT5}, s{sB}, 7")
    a(f"s_lshl_b32 s{sT5}, s{sT5}, 9")
    a(f"s_add_u32 s{sT4}, s{sT4}, s{sT5}")
    a(f"s_cmp_eq_u32 s{sP3}, 7")
    a(f"s_cselect_b32 s{sT4}, 0x10000000, s{sT4}")
    a(f"v_min_u32 v{vT0}, 31, v{vL}")
    a(f"v_lshrrev_b32 v{vT1}, 2, v{vT0}")
    a(f"v_and_b32 v{vT0}, 3, v{vT0}")
    a(f"v_lshlrev_b32 v{vT0}, 7, v{vT0}")
    a(f"v_lshl_add_u32 v{vT0}, v{vT1}, 12, v{vT0}")
    a(f"buffer_load_dword {dst}, v{vT0}, {sr(SW2,4)}, s{sT4} offen")
def touch_w1h(dst, t0):
    a(f"s_lshr_b32 s{sT4}, s{sWI}, 3")
    a(f"s_add_u32 s{sT4}, s{sT4}, s{sROT1}")
    if t0: a(f"s_add_u32 s{sT4}, s{sT4}, {t0}")
    a(f"s_and_b32 s{sT4}, s{sT4}, 31")
    a(f"s_and_b32 s{sT5}, s{sWI}, 3")
    a(f"s_lshl_b32 s{sT5}, s{sT5}, 5")
    a(f"s_add_u32 s{sT4}, s{sT4}, s{sT5}")
    a(f"s_lshl_b32 s{sT4}, s{sT4}, 1")
    a(f"s_bfe_u32 s{sT5}, s{sWI}, 0x10002")
    a(f"s_add_u32 s{sT4}, s{sT4}, s{sT5}")
    a(f"s_mul_i32 s{sT4}, s{sT4}, {8*3584}")
    a(f"s_lshl_b32 s{sT5}, s{sXC}, 7")
    a(f"s_add_u32 s{sT4}, s{sT4}, s{sT5}")
    a(f"v_min_u32 v{vT0}, 31, v{vL}")
    a(f"v_lshrrev_b32 v{vT1}, 2, v{vT0}")
    a(f"v_and_b32 v{vT0}, 3, v{vT0}")
    a(f"v_lshlrev_b32 v{vT0}, 7, v{vT0}")
    a(f"v_mul_u32_u24 v{vT1}, 3584, v{vT1}")
    a(f"v_add_u32 v{vT0}, v{vT1}, v{vT0}")
    a(f"buffer_load_dword {dst}, v{vT0}, {sr(SCODE,4)}, s{sT4} offen")
def touch_wo(dst): touch(SWO, 4, 3, 1024, lambda: a(f"s_mov_b32 s{sT4}, 0"), dst)
def touches(L, where):
    dst = "a25" if where in (1, 2, 3, 6, 7, 8) else None
    if optL("T1", L, 8, 0) == where: touch_w1(dst + "2" if dst else "v31")
    if optL("T1A", L, 0, 0) == where: touch_w1h(dst + "2" if dst else "v31", 0)
    if optL("T1B", L, 0, 0) == where: touch_w1h(dst + "5" if dst else "v31", 16)
    if optL("T2", L, 0, 0) == where: touch_w2(dst + "3" if dst else "v31")
    if optL("T2H", L, 9, 0) == where: touch_w2h(dst + "3" if dst else "v31", 0)
    if optL("T2G", L, 0, 0) == where: touch_w2h(dst + "3" if dst else "v31", 14)

def split2(dst, src, t0):
    a(f"v_cvt_pk_bf16_f32 v{t0}, v{src}, v{src}")
    a(f"v_and_b32 v{t0}, 0xffff0000, v{t0}")
    a(f"v_sub_f32 v{dst}, v{src}, v{t0}")
    a(f"v_cvt_pk_bf16_f32 v{dst}, v{t0}, v{dst}")

def stats_to_frags(S, Q, RA):
    a(f"v_mul_f32 v{S}, {fl(-1/512)}, v{S}")
    a(f"v_mul_f32 v{Q}, {fl(1/512)}, v{Q}")
    a(f"v_cmp_eq_u32 vcc, 0, v{vHH}")
    a(f"v_fma_f32 v{Q}, -v{S}, v{S}, v{Q}")
    a(f"v_max_f32 v{Q}, 0, v{Q}")
    a(f"v_add_f32 v{Q}, {fl(1e-5)}, v{Q}")
    a(f"v_rsq_f32 v{vRS}, v{Q}")
    a(f"v_cndmask_b32 v{S}, 0, v{S}, vcc")
    a(f"v_cvt_pk_bf16_f32 v{MA}, v{S}, v{S}")
    a(f"v_cndmask_b32 v{Q}, 0, v{vRS}, vcc")
    a(f"v_and_b32 v{vT0}, 0xffff0000, v{MA}")
    a(f"v_sub_f32 v{S}, v{S}, v{vT0}")
    a(f"v_cvt_pk_bf16_f32 v{MA+1}, v{S}, v{S}")
    split2(RA, Q, vT0)

def stats_check(SB):
    a(f"v_max3_u32 v{vT3}, v{SB+1}, v{SB+3}, v{SB+5}")
    a(f"v_max3_u32 v{vT3}, v{vT3}, v{SB+7}, v{SB+9}")
    a(f"v_max3_u32 v{vT3}, v{vT3}, v{SB+11}, v{SB+13}")
    a(f"v_max_u32 v{vT3}, v{vT3}, v{SB+15}")
    a(f"v_cmp_eq_u32 vcc, -1, v{vT3}")
def stats_sum(SB):
    for n in (4, 2, 1):
        for p in range(n): pk("add", SB+2*p, vr(SB+2*p,2), vr(SB+2*(p+n),2))
    a(f"v_mov_b32 v{SB+2}, v{SB}")
    a(f"v_mov_b32 v{SB+3}, v{SB+1}")
    a(f"v_permlane32_swap_b32 v{SB}, v{SB+2}")
    a(f"v_permlane32_swap_b32 v{SB+1}, v{SB+3}")
    pk("add", SB, vr(SB,2), vr(SB+2,2))

A1B = 128
def a1_issue():
    a(f"s_mov_b32 s{sT3}, s{sKB}")
    for p in range(16):
        a(f"buffer_load_dwordx4 {vr(A1B+4*p,4)}, v{vL16}, {sr(SWS,4)}, s{sT3} offen offset:{(p&1)*2560} sc1")
        if p & 1 and p < 15: a(f"s_add_u32 s{sT3}, s{sT3}, {2*2560}")
def a1_early(L):
    skip = a.newlabel("NOA1E")
    a(f"s_cmp_ge_u32 s{sRED}, 64")
    a(f"s_cbranch_scc1 {skip}")
    with cond():
        a(f"s_lshr_b32 s{sKB}, s{sRED}, 2")
        a(f"s_mul_i32 s{sKB}, s{sKB}, {16*2560}")
        a(f"s_and_b32 s{sT2}, s{sRED}, 3")
        a(f"s_mul_i32 s{sT2}, s{sT2}, 640")
        a(f"s_add_u32 s{sKB}, s{sKB}, s{sT2}")
        a(f"s_add_u32 s{sKB}, s{sKB}, {KVP[L]:#x}")
        if opt("A1C", 0):
            a(f"v_and_b32 v{vT1}, 15, v{vL}")
            a(f"v_mul_u32_u24 v{vT1}, 2560, v{vT1}")
            a(f"buffer_load_dword v{vT3}, v{vT1}, {sr(SWS,4)}, s{sKB} offen offset:544 sc1")
        else:
            set_exec((1 << 35) - 1)
            a1_issue()
            set_exec(FULL)
    a.label(skip)
def a1_check():
    B = A1B
    a(f"v_max3_u32 v{vT3}, v{B}, v{B+4}, v{B+8}")
    a(f"v_min3_u32 v{vT1}, v{B}, v{B+4}, v{B+8}")
    for p in range(3, 15, 2):
        a(f"v_max3_u32 v{vT3}, v{vT3}, v{B+4*p}, v{B+4*p+4}")
        a(f"v_min3_u32 v{vT1}, v{vT1}, v{B+4*p}, v{B+4*p+4}")
    a(f"v_max_u32 v{vT3}, v{vT3}, v{B+60}")
    a(f"v_min_u32 v{vT1}, v{vT1}, v{B+60}")
    a(f"v_cmp_eq_u32 vcc, -1, v{vT3}")
    a(f"v_readlane_b32 s{sT0}, v{vT3}, 34")
    a(f"v_readlane_b32 s{sT1}, v{vT1}, 34")
    a(f"s_xor_b32 s{sT0}, s{sT0}, s{sNON}")
    a(f"s_xor_b32 s{sT1}, s{sT1}, s{sNON}")
    a(f"s_or_b32 s{sT0}, s{sT0}, s{sT1}")
    a(f"s_or_b32 vcc_lo, vcc_lo, s{sT0}")
    a(f"s_or_b64 vcc, vcc, vcc")
def a1_mid(younger):
    skip = a.newlabel("NOA1M"); ok = a.newlabel("A1MOK")
    a(f"s_cmp_ge_u32 s{sRED}, 64")
    a(f"s_cbranch_scc1 {skip}")
    with cond():
        set_exec((1 << 35) - 1)
        a(f"s_waitcnt vmcnt({younger})")
        a1_check()
        a(f"s_cbranch_vccz {ok}")
        a1_issue()
        a.label(ok)
        set_exec(FULL)
    a.label(skip)
def a1(L, younger):
    a.c("======== A1 reducer")
    skip = a.newlabel("NOA1")
    a(f"s_cmp_ge_u32 s{sRED}, 64")
    a(f"s_cbranch_scc1 {skip}")
    with cond():
        B = A1B
        a(f"s_mul_i32 s{sT2}, s{sRED}, 384")
        a(f"s_add_u32 s{sT2}, s{sT2}, {KVF[L]:#x}")
        a(f"v_lshlrev_b32 v{vT2}, 3, v{vL}")
        set_exec((1 << 35) - 1)
        def check():
            a(f"v_max3_u32 v{vT3}, v{B}, v{B+4}, v{B+8}")
            a(f"v_min3_u32 v{vT1}, v{B}, v{B+4}, v{B+8}")
            for p in range(3, 15, 2):
                a(f"v_max3_u32 v{vT3}, v{vT3}, v{B+4*p}, v{B+4*p+4}")
                a(f"v_min3_u32 v{vT1}, v{vT1}, v{B+4*p}, v{B+4*p+4}")
            a(f"v_max_u32 v{vT3}, v{vT3}, v{B+60}")
            a(f"v_min_u32 v{vT1}, v{vT1}, v{B+60}")
            a(f"v_cmp_eq_u32 vcc, -1, v{vT3}")
            a(f"v_readlane_b32 s{sT0}, v{vT3}, 34")
            a(f"v_readlane_b32 s{sT1}, v{vT1}, 34")
            a(f"s_xor_b32 s{sT0}, s{sT0}, s{sNON}")
            a(f"s_xor_b32 s{sT1}, s{sT1}, s{sNON}")
            a(f"s_or_b32 s{sT0}, s{sT0}, s{sT1}")
            a(f"s_or_b32 vcc_lo, vcc_lo, s{sT0}")
            a(f"s_or_b64 vcc, vcc, vcc")
        a.vm_done = min(a.vm_done, a.vm - younger - 1)
        if opt("A1C", 0):
            poll(lambda: a(f"buffer_load_dword v{vT3}, v{vT1}, {sr(SWS,4)}, s{sKB} offen offset:544 sc1"),
                 lambda: a(f"v_cmp_ne_u32 vcc, s{sNON}, v{vT3}"), 0x21, pre=a.vm - younger - 1)
            poll(a1_issue, check, 0x20)
        else:
            poll(a1_issue, check, 0x20, pre=a.vm - younger - 1)
        n = 16
        while n > 1:
            n //= 2
            for p in range(n):
                for j in (0, 2): pk("add", B+4*p+j, vr(B+4*p+j,2), vr(B+4*(p+n)+j,2))
        a(f"v_cvt_pk_bf16_f32 v{B+4}, v{B}, v{B+1}")
        a(f"v_cvt_pk_bf16_f32 v{B+5}, v{B+2}, v{B+3}")
        a(f"v_mov_b32_dpp v{B+6}, v{B+4} quad_perm:[1,1,3,3] row_mask:0xf bank_mask:0xf")
        a(f"v_mov_b32_dpp v{B+7}, v{B+5} quad_perm:[1,1,3,3] row_mask:0xf bank_mask:0xf")
        a(f"v_writelane_b32 v{B+4}, s{sNON}, 34")
        set_exec(0x555555555555)
        a(f"buffer_store_dwordx4 {vr(B+4,4)}, v{vT2}, {sr(SWS,4)}, s{sT2} offen sc1")
        set_exec(FULL)
        a("s_nop 1")
    a.label(skip)
    stamp("a1")

XF = 128
def KS(s): return 4 * ((s & 15) >> 1) + (s & 1) + 2 * (s >> 4)
def XFR(L, s): return XF + 4 * (((s + 16) & 31) if L == 1 else s)
xid1 = {}
def xa_XL(s):
    jj = s & 15
    if jj == 0: a(f"s_mov_b32 s{sSO}, s{sT4}")
    elif jj == 8: a(f"s_xor_b32 s{sSO}, s{sT4}, 16384")
    elif jj & 1 == 0: a(f"s_add_u32 s{sSO}, s{sSO}, 4096")
    xid1[s] = a(f"buffer_load_dwordx4 {vr(XFR(1,s),4)}, v{vL16}, {sr(SWS,4)}, s{sSO} offen offset:{(KS(s)&3)*1024} sc1")
vXC = MA + 1
def xa_ci(): return a(f"buffer_load_dword v{vT3}, v{vXC}, {sr(SWS,4)}, s{sAX2R} offen offset:1020 sc1")
def xa_start():
    a(f"s_and_b32 s{sT5}, s{sROTX}, {opt('XROT', 1)}")
    a(f"s_lshl_b32 s{sT5}, s{sT5}, 14")
    a(f"s_add_u32 s{sT4}, s{sAX2R}, s{sT5}")
    a(f"v_and_b32 v{vXC}, 15, v{vL}")
    a(f"v_lshrrev_b32 v{MA+3}, 1, v{vXC}")
    a(f"v_and_b32 v{vXC}, 1, v{vXC}")
    a(f"v_lshlrev_b32 v{vXC}, 10, v{vXC}")
    a(f"v_lshl_add_u32 v{vXC}, v{MA+3}, 12, v{vXC}")
    G["xcid"] = xa_ci()
    for s in range(opt("LA1", 8)): xa_XL(s)
def p1(L):
    ACCK, ACCV, RR = 32, 48, 64
    VV, PK, T1 = 80, 88, 96
    S0, S1, Q0, Q1 = 80, 81, 82, 83
    CF = 84
    CFV, CFQ, RA = 112, 116, 120
    vTQ, vTV = 124, 125
    vW, vXA, vXB = 126, 127, 96
    vCQ, vCV = 97, 98
    vOA, vOB = vTA, vTB
    vTQ2, vTV2 = vTA, vTB
    vKW, vKR = 92, 93
    XA = 88
    vKW2, vKR2 = vT2, 127
    POI = 100
    WFR = 216; NWF = 4; ONESF = 248; CG = 200; CK, CV, CQ = 152, 168, 184
    a.c(f"======== P1 layer {L}")
    xid = {}; wid = {}
    toff = 256
    def addr_setup():
        if L == 0:
            a(f"v_bfe_u32 v{vT0}, v{vL}, 2, 2")
            a(f"v_lshl_add_u32 v{vT0}, v{vHH}, 3, v{vT0}")
            a(f"v_lshlrev_b32 v{vTQ}, 6, v{vT0}")
            a(f"v_bfe_u32 v{vT1}, v{vL}, 4, 1")
            a(f"v_lshl_add_u32 v{vTQ}, v{vT1}, 5, v{vTQ}")
            a(f"v_and_b32 v{vT1}, 3, v{vL}")
            a(f"v_lshl_add_u32 v{vTQ}, v{vT1}, 3, v{vTQ}")
        else:
            a(f"s_and_b32 s{sT5}, s{sROTX}, {opt('XROT', 1)}")
            a(f"s_lshl_b32 s{sT5}, s{sT5}, 14")
            a(f"v_add_u32 v{vTQ}, s{sT5}, v{vL16}")
            a(f"v_xor_b32 v{vTQ2}, 16384, v{vTQ}")
            a(f"v_add_u32 v{vTV2}, 65536, v{vTQ2}")
        a(f"v_add_u32 v{vTV}, 65536, v{vTQ}")
        for i in range(4): a(f"v_accvgpr_write_b32 a{ONESF+i}, s{sONES}")
        for r in ([MA + 2, MA + 3] if L == 0 else []) + [RA + 1, RA + 2, RA + 3, CF + 2, CF + 3, CFV + 2, CFV + 3, CFQ + 2, CFQ + 3]: a(f"v_mov_b32 v{r}, 0")
    def kv_addr():
        a(f"v_bfe_u32 v{vT0}, v{vL}, 4, 1")
        a(f"v_lshl_add_u32 v{vT0}, v{vT0}, 1, v{vHH}")
        a(f"v_mul_u32_u24 v{vT0}, 17, v{vT0}")
        a(f"v_and_b32 v{vT1}, 15, v{vL}")
        a(f"v_add_u32 v{vT0}, v{vT0}, v{vT1}")
        a(f"v_lshlrev_b32 v{vT0}, 5, v{vT0}")
        a(f"v_add_u32 v{vKW2}, s{sWA}, v{vT0}")
        a(f"s_mul_i32 s{sT0}, s{sW}, 544")
        a(f"s_add_u32 s{sT0}, s{sT0}, {L_A + SCR}")
        a(f"v_add_u32 v{vKR2}, s{sT0}, v{vL16}")
    rg = {}
    def RG(s):
        b = WFR + (s % NWF) * 8
        if L == 0:
            o = s * 1024
            a(f"ds_read_b64_tr_b16 {ar(b,2)}, v{vTQ} offset:{32768+o}")
            a(f"ds_read_b64_tr_b16 {ar(b+2,2)}, v{vTQ} offset:{32768+o+toff}")
            a(f"ds_read_b64_tr_b16 {ar(b+4,2)}, v{vTV} offset:{o}")
            rg[s] = a(f"ds_read_b64_tr_b16 {ar(b+6,2)}, v{vTV} offset:{o+toff}")
        else:
            o = (KS(s) & 15) * 1024
            q_, v_ = (vTQ2, vTV2) if KS(s) >= 16 else (vTQ, vTV)
            a(f"ds_read_b128 {ar(b,4)}, v{q_} offset:{32768+o}")
            rg[s] = a(f"ds_read_b128 {ar(b+4,4)}, v{v_} offset:{o}")
    if L == 0:
        a(f"v_lshrrev_b32 v{vT0}, 2, v{vL}")
        a(f"s_lshl_b32 s{sT0}, s{sW}, 4")
        a(f"v_add_u32 v{vT0}, s{sT0}, v{vT0}")
        a(f"v_mul_u32_u24 v{vW}, 3072, v{vT0}")
        a(f"v_and_b32 v{vT0}, 3, v{vL}")
        a(f"v_lshl_add_u32 v{vW}, v{vT0}, 4, v{vW}")
        a(f"s_lshl_b32 s{sT0}, s{sHP}, 6")
        a(f"v_add_u32 v{vW}, s{sT0}, v{vW}")
        lin(sT0, [(sRB, 131072), (sW, 32768)])
        a(f"v_lshrrev_b32 v{vT0}, 3, v{vL}")
        a(f"v_lshlrev_b32 v{vT0}, 10, v{vT0}")
        a(f"v_add_u32 v{vT0}, s{sT0}, v{vT0}")
        a(f"v_and_b32 v{vT1}, 7, v{vL}")
        a(f"v_lshrrev_b32 v{vT2}, 4, v{vL}")
        a(f"v_xor_b32 v{vT1}, v{vT1}, v{vT2}")
        a(f"v_lshl_add_u32 v{vXA}, v{vT1}, 4, v{vT0}")
        a(f"v_xor_b32 v{vXB}, 64, v{vXA}")
        a(f"v_add_u32 v{vXB}, {8192-1024}, v{vXB}")
        a("s_waitcnt lgkmcnt(0)")
        srd(SX, sKA + 0, 2048 * 512 * 2)
        srd(SWQKV, sKA + 2, 512 * 1536 * 2)
        def x_issue(j):
            a(f"s_add_u32 s{sKB}, s{sRX0}, {j}")
            a(f"s_and_b32 s{sKB}, s{sKB}, 7")
            a(f"s_lshl_b32 s{sT1}, s{sKB}, 7")
            a(f"s_add_u32 m0, s{sWB}, {(j&3)*4096}")
            a(f"s_mul_i32 s{sSO}, s{sKB}, {64*3072}")
            a(f"buffer_load_dwordx4 v{vXA}, {sr(SX,4)}, s{sT1} offen lds")
            a(f"buffer_load_dwordx4 v{vXB}, {sr(SX,4)}, s{sT1} offen offset:1024 lds")
            a(f"s_add_u32 m0, s{sWB}, {(j&3)*4096+2048}")
            a(f"s_add_u32 s{sT1}, s{sT1}, 16384")
            a(f"buffer_load_dwordx4 v{vXA}, {sr(SX,4)}, s{sT1} offen lds")
            xid[j] = a(f"buffer_load_dwordx4 v{vXB}, {sr(SX,4)}, s{sT1} offen offset:1024 lds")
        def w_issue(j):
            for seg in (1, 2, 0):
                a(f"s_add_u32 m0, s{sW1K}, {seg*32768 - seg*1024 + j*4096}")
                wid[j] = a(f"buffer_load_dwordx4 v{vW}, {sr(SWQKV,4)}, s{sSO} offen offset:{seg*1024} lds")
        def wo_issue(c):
            for k in range(2):
                j = 2 * c + k
                a(f"s_add_u32 m0, s{sWB}, {j*2048}")
                if j == 0: a(f"s_lshl_b32 s{sSO}, s{sW}, 17")
                else: a(f"s_add_u32 s{sSO}, s{sSO}, 16384")
                a(f"buffer_load_dwordx4 v{vOA}, {sr(SWO,4)}, s{sSO} offen lds")
                G["wo"] = a(f"buffer_load_dwordx4 v{vOB}, {sr(SWO,4)}, s{sSO} offen offset:1024 lds")
        x_issue(0); w_issue(0)
        srd(SWS, 100, WS_BYTES)
        a(f"buffer_load_dword v{vKW}, off, {sr(SWS,4)}, 0 offset:{NONCE} sc1")
        roles2()
        late_srds()
        x_issue(1); w_issue(1)
        touch_wo("a254")
        code_prefetch()
        touches(0, 6)
        for i in range(4): a(f"v_mov_b32 v{POI+i}, -1")
        addresses()
        addr_setup()
        a(f"v_add_u32 v{vCQ}, s{sW1K}, v{vTQ}")
        a(f"v_add_u32 v{vCV}, s{sW1K}, v{vTV}")
        for r in (S0, S1, Q0, Q1): a(f"v_mov_b32 v{r}, 0")
        a(f"v_and_b32 v{vT0}, 31, v{vL}")
        a(f"v_bfe_u32 v{vT1}, v{vL}, 1, 3")
        a(f"v_xor_b32 v{vT1}, v{vT1}, v{vHH}")
        a(f"v_lshlrev_b32 v{vT0}, 7, v{vT0}")
        a(f"v_add_u32 v{vT0}, s{sWB}, v{vT0}")
        for t in range(4):
            a(f"v_xor_b32 v{vT2}, {2*t}, v{vT1}")
            a(f"v_lshl_add_u32 v{XA+t}, v{vT2}, 4, v{vT0}")
        a(f"s_lshl_b32 s{sT4}, s{sDT}, 7")
        dma_voff(vOA, vOB, 1024, sT4)
        tr_base(vWTA, vWTB, sRH, None, f"s{sWA}")
        pump.setup(1, 0)
        SCHED = {0: {0: [2, 3], 1: [4, 5], 2: [6], 3: [7]}, 1: {0: [2], 1: [3, 4], 2: [5, 6], 3: [7]}, 2: {0: [2, 3, 4], 1: [5], 2: [6], 3: [7]},
                 3: {0: [2], 1: [3], 2: [4], 3: [5], 4: [6], 5: [7]}, 4: {0: [2, 3], 1: [4], 2: [5], 3: [6], 4: [7]}}[opt("SCHED", 0)]
        JL = max(SCHED)
        cgid = {}
        def CGr(j):
            o = j * 4096
            a(f"ds_read_b64_tr_b16 {ar(CG,2)}, v{vCQ} offset:{32768+o}")
            a(f"ds_read_b64_tr_b16 {ar(CG+2,2)}, v{vCQ} offset:{32768+o+toff}")
            a(f"ds_read_b64_tr_b16 {ar(CG+4,2)}, v{vCV} offset:{o}")
            a(f"ds_read_b64_tr_b16 {ar(CG+6,2)}, v{vCV} offset:{o+toff}")
            a(f"ds_read_b64_tr_b16 {ar(CG+8,2)}, v{vCQ} offset:{o}")
            cgid[j] = a(f"ds_read_b64_tr_b16 {ar(CG+10,2)}, v{vCQ} offset:{o+toff}")
        def colsum(j):
            a.wait(lg=cgid[j])
            for k, c in enumerate((CK, CV, CQ)):
                mfma(ar(c,16), ar(ONESF,4), ar(CG+4*k,4), "0" if j == 0 else ar(c,16))
        def xreads(j):
            a.wait(vm=xid[j])
            return [a(f"ds_read_b128 {vr(XF+16*j+4*t,4)}, v{XA+t} offset:{(j&3)*4096}") for t in range(4)]
        xr = xreads(0)
        a.wait(vm=wid[0])
        a("s_barrier")
        stamp("p1_first")
        CGr(0); RG(0); RG(1); RG(2)
        colsum(0)
        CPY = 104; CS4 = 96
        initld = None
        for j in range(8):
            for t in range(4):
                a.wait(lg=xr[t])
                for k in range(4 if not opt("XNOD", 0) else 0):
                    r = XF + 16 * j + 4 * t + k
                    a(f"v_dot2_f32_bf16 v{S0+(k&1)}, v{r}, s{sONES}, v{S0+(k&1)}")
                    a(f"v_dot2_f32_bf16 v{Q0+(k&1)}, v{r}, v{r}, v{Q0+(k&1)}")
            if j == 7:
                a(f"s_lshr_b32 s{sT0}, s{sRB}, 1")
                a(f"s_sub_u32 s{sT0}, s{sT0}, s{sRX0}")
                a(f"s_and_b32 s{sT0}, s{sT0}, 7")
                a(f"s_cmp_eq_u32 s{sT0}, 0")
                a(f"s_cselect_b32 s{sT1}, 4096, 0")
                a(f"s_add_u32 s{sT1}, s{sT1}, {L_A}")
                a(f"v_add_u32 v{vT1}, s{sT1}, v{vL16}")
                a(f"v_add_u32 v{vT0}, s{sW1K}, v{vT1}")
                a(f"v_accvgpr_read_b32 v{CS4}, a{CK}")
                a(f"v_accvgpr_read_b32 v{CS4+1}, a{CV}")
                a(f"v_accvgpr_read_b32 v{CS4+2}, a{CQ}")
                cw = a(f"ds_write_b128 v{vT0}, {vr(CS4,4)}")
            for s in range(4 * j, 4 * j + 4):
                t = s & 3
                a.wait(lg=rg[s])
                b = WFR + (s % NWF) * 8
                x = vr(XF + 4 * s, 4)
                mfma(vr(ACCK,16), x, ar(b,4), "0" if s == 0 else vr(ACCK,16))
                if s + 3 < 32: RG(s + 3)
                if t == 1 and j < 7 and not opt("XNOC", 0): CGr(j + 1)
                if t == 2 and j < 7: xr = xreads(j + 1)
                if j == 7 and t == 1:
                    for w in range(4): cr = a(f"ds_read_b128 {vr(RR+4*w,4)}, v{vT1} offset:{1024*w}")
                    a(f"s_lshl_b32 s{sT0}, s{sT0}, 12")
                    a(f"s_and_b32 s{sT1}, s{sRB}, 1")
                    a(f"s_lshl_b32 s{sT1}, s{sT1}, 11")
                    a(f"s_add_u32 s{sT0}, s{sT0}, s{sT1}")
                    a(f"s_min_u32 s{sT2}, s{sW}, 2")
                    a(f"s_lshl_b32 s{sT2}, s{sT2}, 15")
                    a(f"s_add_u32 s{sT0}, s{sT0}, s{sT2}")
                    a(f"v_lshlrev_b32 v{vT1}, 8, v{vHH}")
                    a(f"v_sub_u32 v{vT0}, v{vTQ}, v{vT1}")
                    a(f"v_add_u32 v{vT0}, s{sT0}, v{vT0}")
                    for k in range(4): cp = a(f"ds_read_b64_tr_b16 {vr(CPY+2*k,2)}, v{vT0} offset:{512*k}")
                if j == 7 and t == 2:
                    a.wait(lg=cr)
                    for k in range(3):
                        a(f"v_add_f32 v{RR+k}, v{RR+k}, v{RR+4+k}")
                        a(f"v_add_f32 v{RR+8+k}, v{RR+8+k}, v{RR+12+k}")
                if j == 7 and t == 3:
                    split2(CKP, RR, vT0)
                    split2(CVP, RR + 1, vT1)
                mfma(vr(ACCV,16), x, ar(b+4,4), "0" if s == 0 else vr(ACCV,16))
                if t == 0:
                    if j < 7: a.wait(vm=wid[j + 1])
                    else: a.wait(lg=cw)
                    a("s_barrier")
                    if j == 1:
                        a(f"v_add_u32 v{vKW}, 1, v{vKW}")
                        a(f"v_and_b32 v{vKW}, 0x3fffffff, v{vKW}")
                        a(f"v_or_b32 v{vKW}, 0x40000000, v{vKW}")
                        a(f"v_readfirstlane_b32 s{sNON}, v{vKW}")
                if t <= 2 and j in SCHED and t < len(SCHED[j]):
                    x_issue(SCHED[j][t]); w_issue(SCHED[j][t])
                if t == 1 and j >= 4 and opt("WOP", 1) == 0: wo_issue(j - 4)
                if t == 3 and j == JL:
                    if opt("MISC", 0) == 0: misc_loads()
                    touches(0, 8)
                if t == 1 and j == 6 and opt("MISC", 0) == 1: misc_loads()
                if t == 3 and opt("SLOTST", 0) and j in (1, 3, 6): stamp(f"it{j}")
                if t == 2:
                    if j == 3: touches(0, 7)
                    if j == opt("POJ", 2):
                        st_poison(POI); kv_poison(POI, 0); canary_poison(POI)
                    if j == 6: kv_addr()
                    if j == opt("POJ", 2) + 1:
                        tile_poison(POI, sAPQW, 0, 1024); initld = a.vm - 1
                    if j == 7:
                        for k in range(3): a(f"v_add_f32 v{RR+k}, v{RR+k}, v{RR+8+k}")
                        a(f"s_lshl_b32 s{sT1}, s{sRB}, 11")
                        a(f"s_add_u32 s{sT3}, s{sAWQT}, s{sT2}")
                        a(f"s_add_u32 s{sT3}, s{sT3}, s{sT1}")
                        a.wait(lg=cp)
                        ws_store4(CPY, sT3); ws_store4(CPY + 4, sT3, 1024)
                if t == 3 and j < 7 and not opt("XNOC", 0): colsum(j + 1)
        stamp("p1_gemm")
        a(f"v_add_f32 v{S0}, v{S0}, v{S1}")
        a(f"v_add_f32 v{Q0}, v{Q0}, v{Q1}")
        a(f"v_mov_b32 v{S1}, v{S0}")
        a(f"v_mov_b32 v{Q1}, v{Q0}")
        for c, p in ((CF, CKP), (CFV, CVP)):
            a(f"v_mov_b32 v{c}, v{p}"); a(f"v_mov_b32 v{c+1}, v{p}")
        a(f"v_permlane32_swap_b32 v{S0}, v{S1}")
        a(f"v_permlane32_swap_b32 v{Q0}, v{Q1}")
        a(f"v_add_f32 v{S0}, v{S0}, v{S1}")
        a(f"v_add_f32 v{Q0}, v{Q0}, v{Q1}")
        split2(CQP, RR + 2, vT1)
        stats_to_frags(S0, Q0, RA)
        mfma(vr(ACCK,16), vr(MA,4), vr(CF,4), vr(ACCK,16))
        mfma(vr(RR,16), vr(RA,4), ar(ONESF,4), "0")
        mfma(vr(ACCV,16), vr(MA,4), vr(CFV,4), vr(ACCV,16))
        touches(0, 1)
    else:
        xid = xid1; XL = xa_XL; ci = xa_ci
        LA = opt("LA1", 8)
        vMX = vW
        cc = lambda: a(f"v_cmp_eq_u32 vcc, -1, v{vT3}")
        def windowa():
            for s in range(LA): XL(s)
        def windowb():
            for s in range(16, 16 + LA): XL(s)
        if opt("XE", 0) == 0: xa_start()
        cid = max(G["xcid"], G["kvlast"])
        addr_setup()
        next_layer_addresses()
        for c, p in ((CF, CKP), (CFV, CVP)):
            a(f"v_mov_b32 v{c}, v{p}"); a(f"v_mov_b32 v{c+1}, v{p}")
        a(f"v_and_b32 v{vT0}, 31, v{vL}")
        a(f"v_lshlrev_b32 v{vT0}, 3, v{vT0}")
        a(f"v_lshl_add_u32 v{PK+1}, v{vHH}, 12, v{vT0}")
        a(f"s_lshl_b32 s{sT2}, s{sW}, 13")
        a(f"s_add_u32 s{sKB}, s{sAWQT}, s{sT2}")
        a(f"s_mov_b32 s{sT1}, s{sT4}")
        pump.setup(1, 1)
        a(f"s_mov_b32 s{sT4}, s{sT1}")
        a(f"v_mov_b32 v{MA+2}, 0"); a(f"v_mov_b32 v{MA+3}, 0")
        go = a.newlabel("XGO"); redo = a.newlabel("XREDO"); go2 = a.newlabel("XGO2")
        a.wait(vm=cid)
        cc()
        force_fail("FRC")
        a(f"s_cbranch_vccz {go2}")
        st = (a.vm, a.vm_done, dict(xid), list(a.hist))
        poll(ci, cc, 0x41)
        windowa()
        a("s_waitcnt vmcnt(0)")
        a.vm, a.vm_done, _x, a.hist = st; xid.update(_x)
        a.label(go2)
        a("s_barrier")
        stamp("p1_flag")
        a(f"s_branch {go}")
        a.label(redo)
        sv = dict(xid)
        with cond():
            windowa()
            a("s_waitcnt vmcnt(0)")
        xid.update(sv)
        a.label(go)
        RG(0); RG(1); RG(2)
        a(f"v_mov_b32 v{vMX}, 0")
        a(f"s_mov_b32 s{sT3}, s{sKB}")
        SB = T1
        def issue():
            for p in range(8): a(f"buffer_load_dwordx2 {vr(SB+2*p,2)}, v{PK+1}, {sr(SWS,4)}, s{sAS2R} offen offset:{p*512} sc1")
        qid = None
        LA = opt("LA1", 8)
        ZS = opt("ZS", 11); nb = [16]
        assert ZS + LA >= 16
        for s in range(32):
            if s == 16:
                stamp("p1_a")
                if ZS < 16:
                    go3 = a.newlabel("XGO3")
                    a.wait(vm=sid)
                    stats_check(SB)
                    force_fail("FRC")
                    a(f"s_cbranch_vccz {go3}")
                    st = (a.vm, a.vm_done, dict(xid), list(a.hist))
                    poll(issue, lambda: stats_check(SB), 0x40)
                    windowb()
                    a("s_waitcnt vmcnt(0)")
                    a.vm, a.vm_done, _x, a.hist = st; xid.update(_x)
                    a.label(go3)
                else:
                    spec(issue, lambda: stats_check(SB), windowb, 0x40, a.newlabel("XR0"))
                stamp("p1_st2")
                stats_sum(SB)
                stats_to_frags(SB, SB + 1, RA)
                mfma(vr(RR,16), vr(RA,4), ar(ONESF,4), "0")
                mfma(vr(ACCK,16), vr(MA,4), vr(CF,4), vr(ACCK,16))
                mfma(vr(ACCV,16), vr(MA,4), vr(CFV,4), vr(ACCV,16))
            a.wait(vm=xid[s], lg=rg[s])
            b = WFR + (s % NWF) * 8
            x = vr(XFR(1, s), 4)
            mfma(vr(ACCK,16), x, ar(b,4), "0" if s == 0 else vr(ACCK,16))
            if s == ZS:
                issue(); sid = a.vm - 1
            if ZS < s < 16:
                per = -(-LA // (15 - ZS))
                for _ in range(per):
                    if nb[0] < 16 + LA: XL(nb[0]); nb[0] += 1
            if (s & 15) + LA < 16: XL(s + LA)
            if s >= 24:
                j = s - 24
                if j == 4: a(f"s_add_u32 s{sT3}, s{sT3}, 4096")
                if j & 3 == 0: a(f"s_add_u32 m0, s{sT2}, {j*1024}")
                qid = a(f"buffer_load_dwordx4 v{vL16}, {sr(SWS,4)}, s{sT3} offen offset:{(j&3)*1024} sc1 lds")
            mfma(vr(ACCV,16), x, ar(b+4,4), "0" if s == 0 else vr(ACCV,16))
            if s & 1: a(f"v_max3_u32 v{vMX}, v{vMX}, v{XFR(1,s-1)}, v{XFR(1,s)}")
            if s + 3 < 32: RG(s + 3)
            if s == 30: kv_addr()
        verify(vMX, redo)
        stamp("p1_gemm")
    for q in range(8): pk("fma", ACCK+2*q, vr(ACCK+2*q,2), vr(RR+2*q,2), sr(sEPS6,2), hi=[1,1,0])
    for q in range(8): pk("mul", T1+2*q, vr(ACCK+2*q,2), sr(sL2E,2), hi=[1,0])
    for i in range(16):
        a(f"v_exp_f32_e64 v{T1+i}, v{T1+i} clamp")
        a(f"v_max_f32 v{ACCK+i}, s{sEPS6}, v{ACCK+i}")
    for q in range(8): pk("add", ACCK+2*q, vr(ACCK+2*q,2), vr(T1+2*q,2))
    for q in range(8): a(f"v_cvt_pk_bf16_f32 v{PK+q}, v{ACCK+2*q}, v{ACCK+2*q+1}")
    ZA = T1
    for q in range(4): pk("mul", ACCV+2*q, vr(ACCV+2*q,2), vr(RR+2*q,2))
    for q in range(4, 8): pk("mul", ACCV+2*q, vr(ACCV+2*q,2), vr(RR+2*q,2))
    mfma(vr(ZA,16), vr(PK,4), ar(ONESF,4), "0")
    for q in range(4): a(f"v_cvt_pk_bf16_f32 v{VV+q}, v{ACCV+2*q}, v{ACCV+2*q+1}")
    mfma(vr(ZA,16), vr(PK+4,4), ar(ONESF,4), vr(ZA,16))
    for q in range(4, 8): a(f"v_cvt_pk_bf16_f32 v{VV+q}, v{ACCV+2*q}, v{ACCV+2*q+1}")
    KVA = RR
    a(f"v_and_b32 v{vT0}, 16, v{vL}")
    a(f"v_cmp_ne_u32 vcc, 0, v{vT0}")
    mfma(vr(KVA,16), vr(PK,4), vr(VV,4), "0")
    mfma(vr(KVA,16), vr(PK+4,4), vr(VV+4,4), vr(KVA,16))
    a("s_barrier")
    for j in range(8): a(f"v_cndmask_b32 v{ACCK+8+j}, v{ZA+j}, v{ZA+8+j}, vcc")
    set_exec(0x0001000100010001)
    a(f"ds_write_b128 v{vKW2}, {vr(ACCK+8,4)} offset:{SCR+512}")
    a(f"ds_write_b128 v{vKW2}, {vr(ACCK+12,4)} offset:{SCR+528}")
    set_exec(FULL)
    for j in range(4): a(f"v_cndmask_b32 v{ACCK+j}, v{KVA+j}, v{KVA+8+j}, vcc")
    a(f"ds_write_b128 v{vKW2}, {vr(ACCK,4)} offset:{SCR}")
    for j in range(4, 8): a(f"v_cndmask_b32 v{ACCK+j}, v{KVA+j}, v{KVA+8+j}, vcc")
    a(f"ds_write_b128 v{vKW2}, {vr(ACCK+4,4)} offset:{SCR+16}")
    if L == 0: a.wait(vm=initld)
    NQ = 8; QLA = 6
    rq = {}
    def RQ(s):
        b = WFR + (s % NQ) * 4
        if L == 0:
            a(f"ds_read_b64_tr_b16 {ar(b,2)}, v{vTQ} offset:{s*1024}")
            rq[s] = a(f"ds_read_b64_tr_b16 {ar(b+2,2)}, v{vTQ} offset:{s*1024+toff}")
        else:
            ks = KS((s + 16) & 31)
            rq[s] = a(f"ds_read_b128 {ar(b,4)}, v{vTQ2 if ks >= 16 else vTQ} offset:{(ks&15)*1024}")
    QB = L == 1 and opt("QB", 1)
    if L == 1 and not QB: a.wait(vm=qid)
    a.wait_lg_all()
    a("s_barrier")
    for w in range(4): kr = a(f"ds_read_b128 {vr(RR+4*w,4)}, v{vKR2} offset:{16384*w}")
    if not QB:
        for s in range(QLA): RQ(s)
    a(f"v_mov_b32 v{CFQ}, v{CQP}"); a(f"v_mov_b32 v{CFQ+1}, v{CQP}")
    ACCQ = ACCK
    mfma(vr(ACCQ,16), vr(CFQ,4), vr(MA,4), "0")
    a.wait(lg=kr)
    for j in range(4): a(f"v_add_f32 v{RR+j}, v{RR+j}, v{RR+4+j}")
    for j in range(4): a(f"v_add_f32 v{RR+8+j}, v{RR+8+j}, v{RR+12+j}")
    for j in range(4): a(f"v_add_f32 v{RR+j}, v{RR+j}, v{RR+8+j}")
    set_exec((1 << 40) - 1)
    a(f"v_writelane_b32 v{RR}, s{sNON}, 34")
    ws_store4(RR, sAKVP)
    set_exec(FULL)
    stamp("p1_kvpub")
    if QB:
        a.wait(vm=qid)
        a("s_barrier")
        for s in range(QLA): RQ(s)
    touches(L, 2)
    nfill = optL("F0", L, 0, 0); assert nfill <= 6
    for s in range(32):
        a.wait(lg=rq[s])
        b = WFR + (s % NQ) * 4
        mfma(vr(ACCQ,16), ar(b,4), vr(XF+4*s,4), vr(ACCQ,16))
        if s + QLA < 32: RQ(s + QLA)
        if s % 3 == 1 and pump.i < pump.c + nfill: pump.fill(pump.i + 1)
        if L == 0 and opt("WOP", 1) == 1 and s % 8 == 0: wo_issue(s // 8)
        if optL("POIQ", L, 1, 1):
            if s == 2: set_poi(VV)
            if s == 3: tile_poison(VV, sAHTW, 0, 2048)
            if s == 6: tile_poison(VV, sAUW, 0, 1024)
        if s == opt("A1S", 31):
            a1_early(L); vm_a1 = a.vm
        if s == opt("A1M", 99):
            a1_mid(a.vm - vm_a1); vm_a1 = a.vm
    for h in range(2):
        for q in range(4*h, 4*h+4): pk("fma", ACCQ+2*q, vr(ACCQ+2*q,2), vr(vRS,2), sr(sEPS6,2), hi=[1,0,0])
        for q in range(4*h, 4*h+4): pk("mul", T1+2*q, vr(ACCQ+2*q,2), sr(sL2E,2), hi=[1,0])
        for i in range(8*h, 8*h+8):
            a(f"v_exp_f32_e64 v{T1+i}, v{T1+i} clamp")
            a(f"v_max_f32 v{ACCQ+i}, s{sEPS6}, v{ACCQ+i}")
        for q in range(4*h, 4*h+4): pk("add", ACCQ+2*q, vr(ACCQ+2*q,2), vr(T1+2*q,2))
        for q in range(4*h, 4*h+4): a(f"v_cvt_pk_bf16_f32 v{PK+q}, v{ACCQ+2*q}, v{ACCQ+2*q+1}")
        ws_store4(PK + 4 * h, sAPQW, 1024 * h)
        if opt("A1S", 31) == 32 + h:
            a1_early(L); vm_a1 = a.vm
    if L == 0:
        for k in range(4): a(f"v_mov_b32 v{T1+k}, s{sNON}")
        a(f"s_sub_u32 s{sT0}, s{sAPQW}, {PQ[0]:#x}")
        a(f"s_lshr_b32 s{sT0}, s{sT0}, 4")
        a(f"s_add_u32 s{sT0}, s{sT0}, {TAGQ:#x}")
        set_exec(0xff)
        ws_store4(T1, sT0)
        set_exec(FULL)
    stamp("p1_q")
    if opt("NS1", 6) > 6: a("s_barrier")
    a1(L, a.vm - vm_a1)
    if L == 0 and opt("MISC", 0) == 2: misc_loads()
    G["misc"] = a.vm - 1
    pump.fill(pump.c + optL("F1", L, 6, 5))
    touches(L, 3)

def row_stats_publish(soff, SM):
    a(f"v_dot2_f32_bf16 v{SM}, v{XR}, s{sONES}, 0")
    a(f"v_dot2_f32_bf16 v{SM+1}, v{XR}, v{XR}, 0")
    a(f"v_dot2_f32_bf16 v{SM+2}, v{XR+1}, s{sONES}, 0")
    a(f"v_dot2_f32_bf16 v{SM+3}, v{XR+1}, v{XR+1}, 0")
    for j in range(2, 8):
        o = 2 * (j & 1)
        a(f"v_dot2_f32_bf16 v{SM+o}, v{XR+j}, s{sONES}, v{SM+o}")
        a(f"v_dot2_f32_bf16 v{SM+o+1}, v{XR+j}, v{XR+j}, v{SM+o+1}")
    a(f"v_lshlrev_b32 v{vT0}, 3, v{vL}")
    pk("add", SM, vr(SM,2), vr(SM+2,2))
    a(f"v_mov_b32 v{SM+2}, v{SM}")
    a(f"v_mov_b32 v{SM+3}, v{SM+1}")
    a(f"v_permlane32_swap_b32 v{SM}, v{SM+2}")
    a(f"v_permlane32_swap_b32 v{SM+1}, v{SM+3}")
    pk("add", SM, vr(SM,2), vr(SM+2,2))
    a(f"s_mov_b32 exec_hi, 0")
    a(f"v_and_b32 v{SM+1}, 0x7fffffff, v{SM+1}")
    a(f"buffer_store_dwordx2 {vr(SM,2)}, v{vT0}, {sr(SWS,4)}, s{soff} offen sc1")
    set_exec(FULL)

def unpack_xr(XU):
    for j in range(8):
        a(f"v_lshlrev_b32 v{XU+2*j}, 16, v{XR+j}")
        a(f"v_and_b32 v{XU+2*j+1}, 0xffff0000, v{XR+j}")

def p2(L):
    a.c(f"======== P2 layer {L}")
    KF, QF = 128, 192
    ACC = 32; CR = 64; OF = 96; WF = 104; XU = 64
    vK, vKC, vMX = MA, MA + 1, MA + 2
    tr_base(vTA, vTB, None, sKH, L_B)
    a(f"s_lshl_b32 s{sT2}, s{sKH}, 15")
    a(f"v_add_u32 v{vTA}, s{sT2}, v{vTA}")
    a(f"v_add_u32 v{vTB}, s{sT2}, v{vTB}")
    a(f"v_and_b32 v{vT0}, 31, v{vL}")
    a(f"v_mul_u32_u24 v{vKC}, 384, v{vT0}")
    a(f"v_min_u32 v{vT0}, 16, v{vT0}")
    a(f"v_lshlrev_b32 v{vT0}, 4, v{vT0}")
    a(f"v_mul_u32_u24 v{vT1}, 384, v{vHH}")
    a(f"v_add_u32 v{vK}, v{vT0}, v{vT1}")
    a(f"v_and_b32 v{vT2}, 7, v{vL}")
    a(f"v_lshlrev_b32 v{vT2}, {11 if L else 7}, v{vT2}")
    if L == 0:
        a(f"s_sub_u32 s{sT0}, s{sAPQR}, {PQ[0]:#x}")
        a(f"s_lshr_b32 s{sT0}, s{sT0}, 4")
        a(f"s_add_u32 s{sT0}, s{sT0}, {TAGQ:#x}")
    pump.run(min(R1 + 5, optL("B1", L, 21, 21)), refill=bool(optL("B1R", L, 1, 1)))
    if optL("POIQ", L, 1, 1) == 0:
        set_poi(CR)
        tile_poison(CR, sAHTW, 0, 2048)
        tile_poison(CR, sAUW, 0, 1024)
    stamp("beta")
    def ldq():
        a(f"s_mov_b32 s{sT4}, s{sAPQR}")
        for j in range(16):
            a(f"buffer_load_dwordx4 {vr(QF+4*j,4)}, v{vL16}, {sr(SWS,4)}, s{sT4} offen offset:{(j&3)*1024} sc1")
            if j & 3 == 3 and j < 15: a(f"s_add_u32 s{sT4}, s{sT4}, 4096")
    if L == 1:
        ci = lambda: a(f"buffer_load_dword v{vT3}, v{vT2}, {sr(SWS,4)}, s{sAPQR} offen offset:2044 sc1")
        cc = lambda: a(f"v_cmp_eq_u32 vcc, -1, v{vT3}")
    else:
        ci = lambda: a(f"buffer_load_dword v{vT3}, v{vT2}, {sr(SWS,4)}, s{sT0} offen sc1")
        cc = lambda: a(f"v_cmp_ne_u32 vcc, s{sNON}, v{vT3}")
    spec(ci, cc, ldq, 0x36 + L, a.newlabel("PQR"), on=opt("SPEC", 15) & 4)
    stamp("p2_pqc")
    if L == 0:
        a.wait(vm=max(G['wo'], G['misc']))
        for q in range(2):
            a(f"v_permlane32_swap_b32 v{XR+4*q}, v{XR+4*q+2}")
            a(f"v_permlane32_swap_b32 v{XR+4*q+1}, v{XR+4*q+3}")
        a(f"v_lshlrev_b32 v{vB2}, 16, v{vB2}")
    pump.run(min(R1 + 5, pump.i), refill=False)
    pump.run(min(R1 + 5, optL("B2", L, 0, 0)), refill=False)
    pump.fill(pump.c + optL("FK", L, 0, 0))
    a(f"s_xor_b32 s{sT0}, s{sW}, 1")
    a(f"s_lshl_b32 s{sT0}, s{sT0}, 12")
    a(f"v_add_u32 v{vRS}, s{sT0}, v{vL16}")
    a.wait_lg_all()
    a("s_barrier")
    rw = {}
    def RW(j):
        b = WF + (j % 3) * 8
        a(f"ds_read_b64_tr_b16 {vr(b,2)}, v{vTA} offset:{j*2048}")
        a(f"ds_read_b64_tr_b16 {vr(b+2,2)}, v{vTA} offset:{j*2048+1024}")
        a(f"ds_read_b64_tr_b16 {vr(b+4,2)}, v{vTB} offset:{j*2048}")
        rw[j] = a(f"ds_read_b64_tr_b16 {vr(b+6,2)}, v{vTB} offset:{j*2048+1024}")
    lid = {}
    def LD(j):
        if j == 0: a(f"s_mov_b32 s{sSO}, s{sAKVF}")
        elif j & 3 == 0: a(f"s_add_u32 s{sSO}, s{sSO}, {4*768}")
        lid[j] = a(f"buffer_load_dwordx4 {vr(KF+4*j,4)}, v{vK}, {sr(SWS,4)}, s{sSO} offen offset:{(j&3)*768} sc1")
    PLA = optL("PLA", L, 10, 10)
    redo = a.newlabel("P2REDO"); redo2 = a.newlabel("P2REDO2"); over = a.newlabel("P2OVER")
    a(f"s_branch {over}")
    a.label(redo)
    with cond():
        ldq()
        a("s_waitcnt vmcnt(0)")
        a(f"s_branch {redo2}")
    a.label(over)
    def window():
        for j in range(PLA): LD(j)
    spec(lambda: a(f"buffer_load_dword v{vT3}, v{vKC}, {sr(SWS,4)}, s{sAKVF} offen offset:272 sc1"),
         lambda: a(f"v_cmp_ne_u32 vcc, s{sNON}, v{vT3}"), window, 0x38 + L, redo2, on=opt("SPEC", 15) & 2)
    stamp("p2_kvc")
    if L == 0:
        sk = a.newlabel("NONW")
        a(f"s_cmp_lg_u32 s{sWI}, 0")
        a(f"s_cselect_b32 s{sT0}, 1, s{sB}")
        a(f"s_cmp_lg_u32 s{sT0}, 0")
        a(f"s_cbranch_scc1 {sk}")
        with cond():
            a(f"v_mov_b32 v{vT0}, s{sNON}")
            set_exec(1)
            a(f"buffer_store_dword v{vT0}, off, {sr(SWS,4)}, 0 offset:{NONCE} sc1")
            set_exec(FULL)
        a.label(sk)
    RW(0); RW(1)
    a(f"v_mov_b32 v{vMX}, 0")
    def M1(j):
        a.wait(vm=lid[j])
        mfma(vr(CR+(j&1)*16,16), vr(KF+4*j,4), vr(QF+4*j,4), "0")
        a(f"v_max3_u32 v{vMX}, v{vMX}, v{KF+4*j}, v{QF+4*j}")
        if j + PLA < 16: LD(j + PLA)
        if j + PLA == 16: touches(L, 9)
    def Va(j):
        c = CR + (j & 1) * 16
        a(f"v_add_f32 v{c+8}, s{sEPS6}, v{c+8}")
        a(f"v_rcp_f32 v{c+8}, v{c+8}")
    def Vb(j):
        c = CR + (j & 1) * 16; o = OF + (j & 1) * 4
        for i in range(4): a(f"v_mul_f32 v{c+i}, v{c+i}, v{c+8}")
        for i in range(2): a(f"v_cvt_pk_bf16_f32 v{o+i}, v{c+2*i}, v{c+2*i+1}")
    def Vc(j):
        c = CR + (j & 1) * 16; o = OF + (j & 1) * 4
        for i in range(4, 8): a(f"v_mul_f32 v{c+i}, v{c+i}, v{c+8}")
        for i in range(2, 4): a(f"v_cvt_pk_bf16_f32 v{o+i}, v{c+2*i}, v{c+2*i+1}")
    M1(0); M1(1)
    Va(0); Vb(0); Vc(0); M1(2)
    nfp = optL("FP2", L, 6, 6)
    kb_saved = False
    for j in range(16):
        o = OF + (j & 1) * 4; b = WF + (j % 3) * 8
        if j + 1 < 16: Va(j + 1)
        a.wait(lg=rw[j])
        mfma(vr(ACC+16,16), vr(b+4,4), vr(o,4), "0" if j == 0 else vr(ACC+16,16))
        if j + 1 < 16: Vb(j + 1)
        mfma(vr(ACC,16), vr(b,4), vr(o,4), "0" if j == 0 else vr(ACC,16))
        if j + 1 < 16: Vc(j + 1)
        if j + 3 < 16: M1(j + 3)
        if j + 2 < 16: RW(j + 2)
    verify(vMX, redo)
    stamp("p2_main")
    lin(sT0, [(sFT, 128), (sRH, 64), (sKH, 32)])
    a(f"v_lshlrev_b32 v{vT0}, 3, v{vHH}")
    for q in range(2): a(f"buffer_load_dwordx2 {vr(152+2*q,2)}, v{vT0}, {sr(SB1,4)}, s{sT0} offen offset:{16*q}")
    for q, r in enumerate((ACC + 24, ACC + 28, ACC + 8, ACC + 12)): a(f"ds_write_b128 v{vRS}, {vr(r,4)} offset:{(q^2)*1024}")
    unpack_xr(XU)
    a(f"v_xor_b32 v{vT1}, 4096, v{vRS}")
    for q in range(4): pk("add", ACC+16+2*q, vr(ACC+16+2*q,2), vr(XU+8+2*q,2))
    for q in range(4): pk("add", ACC+2*q, vr(ACC+2*q,2), vr(XU+2*q,2))
    a.wait_lg_all()
    a("s_barrier")
    own = (ACC, ACC + 4, ACC + 16, ACC + 20)
    ids = [a(f"ds_read_b128 {vr(XU+4*q,4)}, v{vT1} offset:{q*1024}") for q in range(4)]
    for q in range(4):
        a.wait(lg=ids[q])
        pk("add", own[q], vr(own[q],2), vr(XU+4*q,2))
        pk("add", own[q]+2, vr(own[q]+2,2), vr(XU+4*q+2,2))
        a(f"v_cvt_pk_bf16_f32 v{XR+2*q}, v{own[q]}, v{own[q]+1}")
        a(f"v_cvt_pk_bf16_f32 v{XR+2*q+1}, v{own[q]+2}, v{own[q]+3}")
    row_stats_publish(sASTW, OF)
    stamp("p2_stpub")
    pump.run(pump.i, refill=False)
    pump.fill(pump.c + optL("GF", L, 6, 4))
    unpack_xr(XU)
    IDF = 104
    a(f"v_and_b32 v{vT0}, 31, v{vL}")
    a(f"v_lshlrev_b32 v{vT1}, 2, v{vHH}")
    a(f"v_sub_u32 v{vT0}, v{vT0}, v{vT1}")
    a(f"v_mov_b32 v{vT3}, 0x3f80")
    for f in range(2):
        for c in range(4):
            base = 16 * f + ((2 * c) & 3) + 8 * (c >> 1)
            a(f"v_subrev_u32 v{vT1}, {base}, v{vT0}")
            a(f"v_cmp_gt_u32 vcc, 2, v{vT1}")
            a(f"v_lshlrev_b32 v{vT1}, 4, v{vT1}")
            a(f"v_lshlrev_b32 v{vT2}, v{vT1}, v{vT3}")
            a(f"v_cndmask_b32 v{IDF+4*f+c}, 0, v{vT2}, vcc")
    SB = 128
    ht_voff(vRS)
    a(f"v_and_b32 v{vT0}, 31, v{vL}")
    a(f"v_lshlrev_b32 v{vT0}, 3, v{vT0}")
    a(f"v_lshl_add_u32 v{vT2}, v{vHH}, 12, v{vT0}")
    a(f"v_mov_b32 v{SB+18}, {fl(1.0+1e-5)}")
    def issue():
        for p in range(8): a(f"buffer_load_dwordx2 {vr(SB+2*p,2)}, v{vT2}, {sr(SWS,4)}, s{sASTR} offen offset:{p*512} sc1")
    if OPT.get(f"SL{0x34+L:x}", 0): a(f"s_sleep {OPT.get(f'SL{0x34+L:x}', 0)}")
    poll(issue, lambda: stats_check(SB), 0x34 + L)
    stamp("p2_stats")
    if optL("SF", L, 3, 3):
        pump.run(pump.i, refill=False)
        pump.fill(pump.c + optL("SF", L, 3, 3))
    stats_sum(SB)
    a(f"v_mul_f32 v{SB}, {fl(-1/512)}, v{SB}")
    a(f"v_mul_f32 v{SB+1}, {fl(1/512)}, v{SB+1}")
    a(f"v_fma_f32 v{SB+1}, -v{SB}, v{SB}, v{SB+1}")
    a(f"v_max_f32 v{SB+1}, 0, v{SB+1}")
    a(f"v_fmaak_f32 v{SB+1}, v{SB+1}, v{SB+18}, {fl(1e-10)}")
    a(f"v_rsq_f32 v{SB+2}, v{SB+1}")
    a(f"v_mul_f32 v{SB}, v{SB}, v{SB+2}")
    HP_ = 112
    for f in range(2):
        for j in range(4*f, 4*f+4):
            pk("fma", XU+2*j, vr(XU+2*j,2), vr(SB+2,2), vr(SB,2), hi=[1,0,0])
    for f in range(2):
        for j in range(4*f, 4*f+4):
            a(f"v_cvt_pk_bf16_f32 v{HP_+j}, v{XU+2*j}, v{XU+2*j+1}")
        mfma(vr(ACC,16), vr(HP_+4*f,4), vr(IDF+4*f,4), "0" if f == 0 else vr(ACC,16))
    for f in range(2):
        for j in range(4): a(f"v_cvt_pk_bf16_f32 v{ACC+16+4*f+j}, v{ACC+8*f+2*j}, v{ACC+8*f+2*j+1}")
        a(f"buffer_store_dwordx4 {vr(ACC+16+4*f,4)}, v{vRS}, {sr(SWS,4)}, s{sAHTW} offen offset:{2048*f} sc1")
    touches(L, 5)
    stamp(f"p2_{L}")

RING = 96; AUX = 144; NRH = 12
vR1, vR2, vR3, vRA = vT0, vT1, vT2, vRS
LKH = opt("LKH", 10)
class Half:
    def __init__(self, kind, hf, g0):
        self.kind, self.hf, self.g0 = kind, hf, g0
        self.nks, self.srot, self.sbase = (32, sROT1, sAHTR) if kind == 1 else (28, sROT2, sAUR)
        self.vA, self.vC = (vTA, MA + 1) if kind == 1 else (vTB, MA + 2)
        self.vMX = MA
        self.ids = {}; self.cid = None
    def rb(self, s): return RING + ((self.g0 + s) % NRH) * 4
    def LD(self, s):
        if s == 0: a(f"s_lshl_b32 s{sSO}, s{self.srot}, 11")
        elif s & 1 == 0:
            a(f"s_add_u32 s{sSO}, s{sSO}, 4096")
            a(f"s_cmp_eq_u32 s{sSO}, {self.nks*2048}")
            a(f"s_cselect_b32 s{sSO}, 0, s{sSO}")
        self.ids[s] = a(f"buffer_load_dwordx4 {vr(self.rb(s),4)}, v{self.vA}, {sr(SWS,4)}, s{sSO} offen offset:{(s&1)*2048+self.hf*1024} sc1")
    def window(self):
        for s in range(LKH): self.LD(s)
    def can_issue(self):
        off = 2048 + 1024 + 512 + 252 if self.kind == 1 else self.hf * 1024 + 1020
        self.cid = a(f"buffer_load_dword v{vT3}, v{self.vC}, {sr(SWS,4)}, s{self.sbase} offen offset:{off} sc1")
    def can_check(self): a(f"v_cmp_eq_u32 vcc, -1, v{vT3}")
    def MF(self, s, acc):
        A0 = 32 + 32 * self.hf
        wf = wreg(self.kind, s, 4 * acc, 4); af = vr(self.rb(s), 4)
        c = "0" if s == 0 else vr(A0 + 16 * acc, 16)
        A_, B_ = (wf, af) if self.kind == 1 else (af, wf)
        mfma(vr(A0+16*acc,16), A_, B_, c)
    def steps(self, redo, nxt=None, hook=None, force=True):
        n = self.nks
        a(f"v_mov_b32 v{self.vMX}, 0")
        for s in range(n):
            if hook: hook(s, 0)
            a.wait(vm=self.ids[s])
            self.MF(s, 1)
            if s + LKH < n: self.LD(s + LKH)
            elif nxt is not None:
                if s + LKH == n and nxt.kind == 2: nxt.can_issue()
                nxt.LD(s + LKH - n)
            if s & 1: a(f"v_max3_u32 v{self.vMX}, v{self.vMX}, v{self.rb(s-1)}, v{self.rb(s)}")
            self.MF(s, 0)
            if hook: hook(s, 1)
        verify(self.vMX, redo, force=force)
    def run(self, nxt=None, hook=None):
        lab = a.newlabel("PLAIN"); back = a.newlabel("BACK")
        OOL.append((self, nxt, lab, back))
        self.steps(lab, nxt, hook)
        a.label(back)
    def scr(self, k):
        if self.hf == 0: return 0, k * 2048
        if k < 2: return 1, SCR + k * 2048
        return 0, 6144
    def writes(self):
        A0 = 32 + 32 * self.hf
        for k in (1, 2, 0):
            src = (A0 + 8, A0 + 16, A0 + 24)[k]
            area, o = self.scr(k)
            r = (vR1, vR2, vR3)[k]
            if area == 1:
                a(f"v_lshl_add_u32 v{AUX+10+k}, v{r}, 1, v{AUX+9}"); r = AUX + 10 + k
            for q in range(2): a(f"ds_write_b128 v{r}, {vr(src+4*q,4)} offset:{o+q*1024}")
    def reads(self):
        D = 64 - 32 * self.hf
        if self.hf == 1: a(f"v_lshl_add_u32 v{AUX+10}, v{vRA}, 1, v{AUX+9}")
        a.wait_lg_all()
        a("s_barrier")
        ids = {}
        for q in range(2):
            for k in range(3):
                area, o = self.scr(k)
                ids[(q, k)] = a(f"ds_read_b128 {vr(D+8*k+4*q,4)}, v{AUX+10 if area else vRA} offset:{o+q*1024}")
        A0 = 32 + 32 * self.hf
        for q in range(2):
            a.wait(lg=ids[(q, 1)])
            for j in (0, 2): pk("add", D+4*q+j, vr(D+4*q+j,2), vr(D+8+4*q+j,2))
            a.wait(lg=ids[(q, 2)])
            for j in (0, 2): pk("add", A0+4*q+j, vr(A0+4*q+j,2), vr(D+16+4*q+j,2))
            for j in (0, 2): pk("add", A0+4*q+j, vr(A0+4*q+j,2), vr(D+4*q+j,2))
    def woven(self, D):
        A0 = 32 + 32 * self.hf
        ops = []
        ids = {}
        wl = a.lg - 1
        def bar():
            if self.hf == 1: a(f"v_lshl_add_u32 v{AUX+10}, v{vRA}, 1, v{AUX+9}")
            a.wait(lg=wl); a("s_barrier")
        ops.append(bar)
        def rd(q, k):
            area, o = self.scr(k)
            ids[(q, k)] = a(f"ds_read_b128 {vr(D+8*k+4*q,4)}, v{AUX+10 if area else vRA} offset:{o+q*1024}")
        for q in range(2):
            for k in range(3): ops.append(lambda q=q, k=k: rd(q, k))
        ops.append(None); ops.append(None); ops.append(None)
        for q in range(2):
            for k in range(3):
                for j in range(4):
                    def ad(q=q, k=k, j=j):
                        a.wait(lg=ids[(q, k)])
                        a(f"v_add_f32 v{A0+4*q+j}, v{A0+4*q+j}, v{D+8*k+4*q+j}")
                    ops.append(ad)
        return ops
    def late_check(self, code):
        go = a.newlabel("GO")
        a.wait(vm=self.cid)
        self.can_check()
        force_fail("FRC")
        a(f"s_cbranch_vccz {go}")
        st = (a.vm, a.vm_done, a.lg, a.lg_done, dict(self.ids), self.cid, list(a.hist))
        poll(self.can_issue, self.can_check, code)
        self.window()
        a("s_waitcnt vmcnt(0)")
        a.vm, a.vm_done, a.lg, a.lg_done, self.ids, self.cid, a.hist = st
        a.label(go)
OOL = []
def mix_setup():
    a(f"v_add_u32 v{vTA}, s{sAHTR}, v{vL16}")
    a(f"v_min_u32 v{vT0}, 31, v{vL}")
    a(f"v_lshrrev_b32 v{vT1}, 1, v{vT0}")
    a(f"v_and_b32 v{vT0}, 1, v{vT0}")
    a(f"v_lshlrev_b32 v{vT0}, 8, v{vT0}")
    a(f"v_lshl_add_u32 v{MA+1}, v{vT1}, 12, v{vT0}")
    a(f"s_lshl_b32 s{sT0}, s{sKH}, 8")
    a(f"v_xor_b32 v{vTB}, s{sT0}, v{vL16}")
    a(f"v_add_u32 v{vTB}, s{sAUR}, v{vTB}")
    a(f"v_min_u32 v{MA+2}, 27, v{vL}")
    a(f"v_lshlrev_b32 v{MA+2}, 11, v{MA+2}")
    for acc, r in ((1, vR1), (2, vR2), (3, vR3)):
        a(f"s_xor_b32 s{sT0}, s{sW}, {acc}")
        a(f"s_lshl_b32 s{sT0}, s{sT0}, 13")
        a(f"v_add_u32 v{r}, s{sT0}, v{vL16}")
    a(f"s_lshl_b32 s{sT0}, s{sW}, 13")
    a(f"v_add_u32 v{vRA}, s{sT0}, v{vL16}")
    a(f"v_sub_u32 v{AUX+9}, {L_A}, v{vL16}")

def p34(L):
    a.c(f"======== P3 layer {L}")
    B1R = AUX
    pump.run(pump.i, refill=True)
    pump.run(32)
    a.wait_lg_all()
    if L == 1: a("s_barrier")
    pump.setup(2, L, extra=optL("XB", L, 0, 8))
    pump.run(optL("V2", L, 5, 0), refill=False)
    pump.fill(pump.c + optL("V2F", L, 0, 8))
    assert pump.c <= R2
    if L == 0: a("s_barrier")
    for j in range(4):
        a(f"v_lshlrev_b32 v{B1R+2*j}, 16, v{152+j}")
        a(f"v_and_b32 v{B1R+2*j+1}, 0xffff0000, v{152+j}")
    mix_setup()
    K1 = -2.0 * 0.7978845608028654 * LOG2E
    a(f"v_mov_b32 v{AUX+8}, {fl(K1)}")
    SPX = optL("SPX", L, 1, 1)
    h3a = Half(1, 0, 0); h3b = Half(1, 1, 32); h4a = Half(2, 0, 64); h4b = Half(2, 1, 92)
    stamp("p3_delta")
    idle = a.newlabel("P3IDLE"); join = a.newlabel("P3JOIN")
    pst = (pump.i, pump.c, dict(pump.vid), dict(pump.lid))
    a(f"s_cmp_eq_u32 s{sP3}, 7")
    a(f"s_cbranch_scc1 {idle}")
    IDN = optL("IDT", L, 18, 0)
    WE3 = optL("WE3", L, 0, 0) and SPX
    ntail = optL("V2T", L, 0, 0); nepi = optL("V2E", L, 6, 3)
    def gelu_store(hf):
        A0 = 32 + 32 * hf; T = A0 + 16
        for q in range(4): pk("mul", T+2*q, vr(A0+2*q,2), vr(A0+2*q,2))
        for q in range(4): pk("fma", T+2*q, vr(T+2*q,2), sr(sT2,2), vr(AUX+8,2), hi=[1,0,0])
        for q in range(4): pk("mul", T+2*q, vr(T+2*q,2), vr(A0+2*q,2))
        for i in range(8): a(f"v_exp_f32 v{T+i}, v{T+i}")
        for q in range(4): pk("add", T+2*q, vr(T+2*q,2), "1.0", hi=[1,0])
        for i in range(8): a(f"v_rcp_f32 v{T+i}, v{T+i}")
        for q in range(4): pk("mul", A0+2*q, vr(A0+2*q,2), vr(T+2*q,2))
        for q in range(4): a(f"v_cvt_pk_bf16_f32 v{T+8+q}, v{A0+2*q}, v{A0+2*q+1}")
        ws_store4(T + 8, sAUW, 1024 * hf)
    with cond():
        a(f"s_mov_b32 s{sT2}, s{sGK}")
        spec(h3a.can_issue, h3a.can_check, h3a.window, 0x50 + L, a.newlabel("SREDO"))
        stamp("canary")
        h3a.run(nxt=h3b)
        stamp("gemm_a")
        h3a.writes()
        pump.fill(pump.i + nepi)
        for q in range(4): pk("add", 32+2*q, vr(32+2*q,2), vr(B1R+2*q,2))
        h3a.reads()
        gelu_store(0)
        stamp("epi_a")
        i0 = pump.i
        def hk(s, k):
            if k == 1 and s + LKH >= 32 and (s & 1) and pump.i < i0 + ntail: pump.fill(pump.i + 1)
        h3b.run(nxt=h4a if SPX else None, hook=hk)
        assert ntail <= 5
        stamp("gemm_b")
        h3b.writes()
        n2 = pump.i
        nmid = pump.i
        if optL("EB", L, 1, 0): pump.run(pump.i if optL("EB", L, 1, 0) == 2 else min(R2, pump.i), refill=False, tmp=(AUX + 14, AUX + 15))
        cact = pump.c
        pump.fill(pump.i + optL("V2E2", L, 4, 3))
        nact = pump.i; n2 = nact - n2
        if not WE3:
            for q in range(4): pk("add", 64+2*q, vr(64+2*q,2), vr(B1R+2*q,2))
            h3b.reads()
            gelu_store(1)
        else: a.wait_lg_all()
        if SPX: h4a.late_check(0x60 + L)
        a(f"s_branch {join}")
    a.label(idle)
    pump.i, pump.c, pump.vid, pump.lid = pst
    if IDN:
        a(f"v_lshrrev_b32 v{RING}, 2, v{vL}")
        a(f"v_lshlrev_b32 v{RING}, 12, v{RING}")
        a(f"v_and_b32 v{RING+1}, 3, v{vL}")
        a(f"v_lshl_add_u32 v{RING}, v{RING+1}, 7, v{RING}")
        a(f"s_bfe_u32 s{sT0}, s{sWI}, 0x20002")
        a(f"s_mul_i32 s{sT0}, s{sT0}, {28*65536}")
        a(f"s_and_b32 s{sT1}, s{sB}, 7")
        a(f"s_lshl_b32 s{sT1}, s{sT1}, 9")
        a(f"s_add_u32 s{sT0}, s{sT0}, s{sT1}")
        a(f"v_add_u32 v{RING}, s{sT0}, v{RING}")
        a(f"s_add_u32 s{sT1}, s{sW}, s{sROT2}")
        a(f"s_add_u32 s{sT1}, s{sT1}, {28 - IDN}")
        for k in range((IDN + 3) // 4):
            a(f"s_sub_u32 s{sT2}, s{sT1}, 28")
            a(f"s_cselect_b32 s{sT1}, s{sT1}, s{sT2}")
            a(f"s_lshl_b32 s{sT2}, s{sT1}, 16")
            a(f"buffer_load_dword v31, v{RING}, {sr(SW2,4)}, s{sT2} offen")
            a(f"s_add_u32 s{sT1}, s{sT1}, 4")
    nlate = n2 if SPX else 0
    pump.fill(nmid)
    if SPX:
        poll(h4a.can_issue, h4a.can_check, 0x5e)
        h4a.window()
    pump.run(cact, refill=False, tmp=(AUX + 14, AUX + 15))
    pump.fill(nact)
    a.label(join)
    a.hist = []
    stamp(f"p3_{L}")
    a.c(f"======== P4 layer {L}")
    if L == 0:
        set_poi(56)
        tile_poison(56, sAX2W, 0, 2048)
        tile_poison(56, sAPQW, PQ[1] - PQ[0], 1024)
        kv_poison(56, 1)
    cinit = pst[1]
    NKT = opt("NKT", 10)
    def kvdma(j):
        if j == 0: a(f"s_add_u32 s{sT3}, s{sAWQT}, s{sWA}")
        if j & 3 == 0:
            a(f"s_add_u32 m0, s{sWA}, {j*1024}")
            if j: a(f"s_add_u32 s{sT3}, s{sT3}, 4096")
        return a(f"buffer_load_dwordx4 v{vL16}, {sr(SWS,4)}, s{sT3} offen offset:{(j&3)*1024} sc1 lds")
    if SPX:
        WV = opt("WV", 2); AH = optL("AH", L, 3, 4)
        pump.run(min(pump.i, pump.c + optL("PRE", L, 0, 0)), tmp=(AUX, AUX + 1))
        landed = pump.i; c0 = pump.c
        w3 = []
        if WE3:
            w3 = h3b.woven(72)
            w3 = w3[:7] + [(lambda j=j: a(f"v_add_f32 v{64+j}, v{64+j}, v{B1R+j}")) for j in range(8)] + w3[10:]
            T = 72
            for i in range(8): w3.append(lambda i=i: a(f"v_mul_f32 v{T+i}, v{64+i}, v{64+i}"))
            for i in range(8): w3.append(lambda i=i: a(f"v_fma_f32 v{T+i}, v{T+i}, s{sGK}, v{AUX+8}"))
            for i in range(8): w3.append(lambda i=i: a(f"v_mul_f32 v{T+i}, v{T+i}, v{64+i}"))
            for i in range(8): w3.append(lambda i=i: a(f"v_exp_f32 v{T+i}, v{T+i}"))
            for i in range(8): w3.append(lambda i=i: a(f"v_add_f32 v{T+i}, 1.0, v{T+i}"))
            for i in range(8): w3.append(lambda i=i: a(f"v_rcp_f32 v{T+i}, v{T+i}"))
            for i in range(8): w3.append(lambda i=i: a(f"v_mul_f32 v{64+i}, v{64+i}, v{T+i}"))
            for q in range(4): w3.append(lambda q=q: a(f"v_cvt_pk_bf16_f32 v{80+q}, v{64+2*q}, v{64+2*q+1}"))
            w3.append(lambda: ws_store4(80, sAUW, 1024))
        W3S = opt("W3S", 4)
        def hk(s, k):
            for _ in range(W3S):
                if w3:
                    f = w3.pop(0)
                    if f: f()
            if k == 1:
                lim = max(min(landed, c0 + WV * (s + 1)), min(28, s + AH))
                pump.run(lim, tmp=(AUX, AUX + 1), first=(s == 0))
            if k == 0 and s >= cinit:
                assert pump.c > s
                if not opt("NOPUMP", 0): a.wait(lg=pump.lid[s])
        h4a.run(nxt=h4b, hook=hk)
        assert not w3
    else:
        pump.run(28, tmp=(AUX, AUX + 1))
        stamp("p4_w2")
        a.wait_lg_all()
        spec(h4a.can_issue, h4a.can_check, h4a.window, 0x60 + L, a.newlabel("SREDO"))
        stamp("canary")
        h4a.run(nxt=h4b)
    stamp("gemm_a")
    def resid(hf):
        A0 = 32 + 32 * hf; XU = AUX
        for j in range(4):
            a(f"v_lshlrev_b32 v{XU+2*j}, 16, v{XR+4*hf+j}")
            a(f"v_and_b32 v{XU+2*j+1}, 0xffff0000, v{XR+4*hf+j}")
        for q in range(4): pk("add", XU+2*q, vr(XU+2*q,2), vr(vB2-1,2), lo=[0,1], hi=[1,1])
        for q in range(4): pk("add", A0+2*q, vr(A0+2*q,2), vr(XU+2*q,2))
    def out(hf):
        A0 = 32 + 32 * hf
        for q in range(4): a(f"v_cvt_pk_bf16_f32 v{XR+4*hf+q}, v{A0+2*q}, v{A0+2*q+1}")
        if L == 0: ws_store4(XR + 4 * hf, sAX2W, 2048 * hf)
        else:
            a(f"v_permlane32_swap_b32 v{XR+4*hf}, v{XR+4*hf+2}")
            a(f"v_permlane32_swap_b32 v{XR+4*hf+1}, v{XR+4*hf+3}")
            a(f"buffer_store_dwordx4 {vr(XR+4*hf,4)}, v{vOUT}, {sr(SOUT,4)}, 0 offen offset:{64*hf}")
    wv = []
    if optL("WE4", L, 1, 1):
        h4a.writes()
        wv = h4a.woven(40)
        XU = AUX
        pre = []
        for j in range(4):
            pre.append(lambda j=j: a(f"v_lshlrev_b32 v{XU+2*j}, 16, v{XR+j}"))
            pre.append(lambda j=j: a(f"v_and_b32 v{XU+2*j+1}, 0xffff0000, v{XR+j}"))
        for j in range(8): pre.append(lambda j=j: a(f"v_add_f32 v{32+j}, v{32+j}, v{vB2}"))
        for j in range(8): wv.append(lambda j=j: a(f"v_add_f32 v{32+j}, v{32+j}, v{XU+j}"))
        wv = pre[:8] + wv[:1] + wv[1:7] + pre[8:] + wv[10:]
        wv.append(lambda: out(0))
    else:
        h4a.writes(); resid(0); h4a.reads(); out(0)
    h4b.late_check(0x62 + L)
    stamp("epi_a")
    kc = [0]
    WPS = opt("WPS", 2)
    def hk(s, k):
        for _ in range(WPS if k == 1 else WPS - 1):
            if wv:
                f = wv.pop(0)
                if f: f()
        if L == 0 and k == 1 and s + LKH >= 28 and kc[0] < NKT:
            kvdma(kc[0]); kc[0] += 1
    h4b.run(hook=hk)
    assert not wv
    stamp("gemm_b")
    if L == 0 and opt("XE", 0) == 1: xa_start()
    h4b.writes()
    if L == 0 and opt("XE", 0) == 2: xa_start()
    if L == 0 and opt("KE", 2):
        while kc[0] < 12: kvdma(kc[0]); kc[0] += 1
    resid(1); h4b.reads()
    if L == 0 and opt("KE", 2) == 2:
        while kc[0] < 16: G["kvlast"] = kvdma(kc[0]); kc[0] += 1
    out(1)
    if L == 0:
        row_stats_publish(sAS2W, 32)
        for j in range(kc[0], 16): G["kvlast"] = kvdma(j)
    stamp(f"p4_{L}")

def emit_ool():
    for h, nxt, lab, back in OOL:
        a.label(lab)
        a.hist = []
        a.vm_done = a.vm
        h.window()
        h.steps(lab, force=False)
        if nxt is not None:
            if nxt.kind == 2: nxt.can_issue()
            nxt.window()
            a("s_waitcnt vmcnt(0)")
        a("s_nop 15")
        a(f"s_branch {back}")

prologue()
for L in range(2):
    p1(L); p2(L); p34(L)
finish()
a.label("L_END")
emit_ool()
a.label("L_EXIT")
a("s_endpgm")

hdr = open(f"ref.s").read().split("; Override launch")[0]
out = hdr + f"""; @launch grid=(256,1,1) block=(256,1,1) lds={LDS_BYTES}
.amdgcn_target "amdgcn-amd-amdhsa--gfx950"
.text
.globl {NAME}_kernel
.p2align 8
.type {NAME}_kernel,@function
{NAME}_kernel:
""" + a.text() + f""".section .rodata,"a"
.p2align 6
.amdhsa_kernel {NAME}_kernel
  .amdhsa_next_free_vgpr 512
  .amdhsa_next_free_sgpr 102
  .amdhsa_accum_offset 256
  .amdhsa_group_segment_fixed_size 0
  .amdhsa_kernarg_size 88
  .amdhsa_user_sgpr_count 2
  .amdhsa_user_sgpr_kernarg_segment_ptr 1
  .amdhsa_system_sgpr_workgroup_id_x 1
  .amdhsa_float_denorm_mode_32 3
.end_amdhsa_kernel
"""
outp = [x for x in sys.argv[1:] if x.endswith(".s")]
open(outp[0], "w").write(out)
if DIAG: open(outp[0] + ".stamps", "w").write("\n".join(stamp_names))
```

```python
import sys, struct
from contextlib import contextmanager
from asmlib import Asm, vr, ar, sr

NAME = "interleave_layers__linear_attn_block__mixer_token_mlp__prompt"
DIAG = "--diag" in sys.argv
OPT = {}
for a_ in sys.argv:
    if a_.startswith("-D"):
        k_, v_ = a_[2:].split("="); OPT[k_] = int(v_)
def opt(k, d): return OPT.get(k, d)
def optL(k, L, d0, d1): return OPT.get(f"{k}_{L}", (d0, d1)[L])
def f2u(x): return struct.unpack("<I", struct.pack("<f", x))[0]
def fl(x): return "0x%08x" % f2u(x)
FULL = (1 << 64) - 1
LOG2E = 1.4426950408889634

KVF = [0x2000, 0xC0000]; KVP = [0x8000, 0xC6000]; ST = [0x166000, 0x1A6000]; ST2 = 0x1E6000
SELFP = 0xC0000
PQ = [0x400000, 0x600000]; HT = [0x800000, 0xA00000]; U = [0xC00000, 0xE00000]; X2 = 0x1000000
WQT = 0x1200000
TS = 0x1400000
DUMP = 0x1500000
ERRS = 0x1520000
NONCE = 0x0; TAGQ = 0x1540000
WS_BYTES = 268435456
L_A = 32768; L_B = 98304; LDS_BYTES = 163840
NS = 6; SCR = 12288
sW = 3
SX, SWQKV, SWO, SW1, SW2, SWS, SOUT, SDBG, SB1, SB2, SCODE = 4, 8, 12, 16, 20, 24, 28, 32, 36, 40, 44
sST, sDT, sRB, sHP, sDT3, sFT, sP3, sRH, sKH, sWB, sTO, sONES = 48, 49, 50, 51, 52, 53, 54, 55, 56, 57, 58, 59
sEPS6 = 60; sB = 61
sT0, sT1, sT2, sT3, sT4, sT5 = 62, 63, 64, 65, 66, 67
sSO = 68; sW1K = 69; sTS = 70
sL2E = 74; sWA = 75; sROTX = 76; sROT1 = 77; sROT2 = 78; sRED = 79; sWOFF = 80; sKB = 81; sXC = 82; sWI = 83
sKA = 84
sAKVP, sAPQW, sAPQR, sAKVF, sASTW, sASTR, sAHTW, sAHTR, sAUW, sAUR, sAX2W, sAX2R, sAS2W, sAS2R, sAWQT, sGK = range(84, 100)
sDUM = 100; sNON = 101; sRX0 = 73
vL, vL16, vTA, vTB, vT0, vT1, vT2, vT3 = 0, 1, 2, 3, 4, 5, 6, 7
XR = 8
CKP, CVP, CQP, vB2, vRS, vHH, vOUT, vTSV = 16, 17, 18, 19, 20, 21, 22, 23
vWA, vWB, vWTA, vWTB = 24, 25, 26, 27
MA = 28

a = Asm()
stamp_names = []
G = {}

@contextmanager
def cond():
    st = (a.vm, a.vm_done, a.lg, a.lg_done); h = list(a.hist)
    yield
    a.vm, a.vm_done, a.lg, a.lg_done = st[0], min(st[1], st[0]), st[2], min(st[3], st[2])
    a.hist = h

def stamp(name):
    if not DIAG: return
    if "--lite" in sys.argv and name not in ("start", "end", "p4_0"): return
    k = len(stamp_names); stamp_names.append(name)
    if opt("CYC", 0) and name not in ("start", "end"): a(f"s_memtime {sr(sTS,2)}")
    else: a(f"s_memrealtime {sr(sTS,2)}")
    if name in ("start", "end"): a(f"s_memtime s[0:1]") if name == "end" else a(f"s_memtime {sr(sTS+2,2)}")
    a("s_waitcnt lgkmcnt(0)"); a.lg_done = a.lg
    a(f"v_writelane_b32 v{vTSV}, s{sTS}, {k}")
    if name in ("start", "end"): a(f"v_writelane_b32 v{vTSV}, s{sTS+2 if name == 'start' else 0}, {62 if name == 'start' else 63}")

def srd(base, ptr, nbytes):
    a(f"s_mov_b32 s{base}, s{ptr}")
    a(f"s_and_b32 s{base+1}, s{ptr+1}, 0xffff")
    a(f"s_mov_b32 s{base+2}, {nbytes:#x}")
    a(f"s_mov_b32 s{base+3}, 0x20000")

def set_exec(mask):
    if mask == FULL: a("s_mov_b64 exec, -1")
    elif mask <= 64: a(f"s_mov_b64 exec, {mask}")
    else:
        a(f"s_mov_b32 exec_lo, {mask & 0xffffffff:#x}"); a(f"s_mov_b32 exec_hi, {mask >> 32:#x}")

def lin(dst, terms, const=0):
    first = True
    for r, m in terms:
        t = dst if first else sT5
        if m == 1 and not first: a(f"s_add_u32 s{dst}, s{dst}, s{r}"); continue
        if m & (m - 1) == 0: a(f"s_lshl_b32 s{t}, s{r}, {m.bit_length()-1}")
        else: a(f"s_mul_i32 s{t}, s{r}, {m}")
        if not first: a(f"s_add_u32 s{dst}, s{dst}, s{sT5}")
        first = False
    if const: a(f"s_add_u32 s{dst}, s{dst}, {const:#x}")

def timeout_path(code):
    a(f"s_mov_b32 s{sTO}, 0")
    if DIAG:
        a(f"v_mov_b32 v{vT3}, {code}")
        a(f"s_mov_b32 s{sT5}, {ERRS:#x}")
        a(f"buffer_store_dword v{vT3}, off, {sr(SWS,4)}, s{sT5}")
        a("s_waitcnt vmcnt(0)")

def poll(issue, check, code, pre=None):
    top = a.newlabel("POLL"); done = a.newlabel("PDONE"); chk = a.newlabel("PCHK")
    if pre is not None:
        a.wait(vm=pre)
        st = (a.vm, a.vm_done)
        a(f"s_branch {chk}")
    a.label(top)
    issue()
    a.wait_vm_all(force=True)
    if pre is not None: a.label(chk)
    check()
    a(f"s_cbranch_vccz {done}")
    h = list(a.hist); vmst = (a.vm, a.vm_done)
    mark(f"retry{code:x}")
    if opt("PS", 2) and not (code == 0x20 and opt("A1NS", 1)): a(f"s_sleep {opt('PS', 2)}")
    a(f"s_sub_u32 s{sTO}, s{sTO}, 1")
    a(f"s_cbranch_scc0 {top}")
    timeout_path(code)
    a.label(done)
    a.hist = h; a.vm, a.vm_done = vmst
    if pre is not None: a.vm, a.vm_done = st

def poll1(addr, code, tmp=None, tag=False):
    cmp = (lambda r: a(f"v_cmp_ne_u32 vcc, s{sNON}, v{r}")) if tag else (lambda r: a(f"v_cmp_eq_u32 vcc, -1, v{r}"))
    if tmp is None or not opt("PP", 0):
        poll(lambda: a(f"buffer_load_dword v{vT3}, {addr} sc1"), lambda: cmp(vT3), code)
        return
    top = a.newlabel("PP"); done = a.newlabel("PPD")
    a(f"buffer_load_dword v{vT3}, {addr} sc1")
    a(f"s_nop {opt('PPN', 15)}")
    a.label(top)
    for r, o in ((vT3, tmp), (tmp, vT3)):
        a(f"buffer_load_dword v{o}, {addr} sc1")
        a("s_waitcnt vmcnt(1)")
        cmp(r)
        a(f"s_cbranch_vccz {done}")
    h = list(a.hist)
    a(f"s_sub_u32 s{sTO}, s{sTO}, 2")
    a(f"s_cbranch_scc0 {top}")
    timeout_path(code)
    a.label(done)
    a.hist = h
    a.vm -= 1
    a.vm_done = a.vm - 1

SLD = {}
SPD = {0x50: 1, 0x51: 1, 0x60: 1, 0x61: 1, 0x36: 1, 0x38: 1, 0x39: 1, 0x40: 1}
def spec(can_issue, can_check, window, code, redo, on=True):
    go = a.newlabel("GO")
    d = OPT.get(f"SL{code:x}", SLD.get(code, 0))
    if d: a(f"s_sleep {d}")
    on = OPT.get(f"SP{code:x}", SPD.get(code, 0))
    if on:
        can_issue(); cid = a.vm - 1
        window()
        a.wait(vm=cid)
        can_check()
        force_fail("FRC")
        a(f"s_cbranch_vccz {go}")
        st = (a.vm, a.vm_done, list(a.hist))
        mark(f"fb{code:x}")
        poll(can_issue, can_check, code)
        a.label(redo)
        window()
        a.label(go)
        a.hist = []
        a("s_nop 0")
    else:
        poll(can_issue, can_check, code)
        a.label(redo)
        window()

site_names = []
def mark(name):
    if not (DIAG and opt("CNT", 0)): return
    if name.startswith("retry") and name not in ("retry20", "retry34", "retry35", "retry37"): return
    k = len(site_names); site_names.append(name)
    a(f"s_bitset1_b32 s2, {k}")
force_n = [0]
def force_fail(kind):
    if not opt(kind, 0): return
    k = force_n[0] % 32; force_n[0] += 1
    l = a.newlabel("FF")
    a(f"s_bitcmp1_b32 s2, {k}")
    a(f"s_cbranch_scc1 {l}")
    a(f"s_bitset1_b32 s2, {k}")
    a("s_mov_b64 vcc, 1")
    a.label(l)

def verify(vMX, redo, force=True):
    ok = a.newlabel("VOK")
    a(f"v_cmp_eq_u32 vcc, -1, v{vMX}")
    if force: force_fail("FRV")
    a(f"s_cbranch_vccz {ok}")
    h = list(a.hist)
    if force: mark("redo")
    a("s_waitcnt vmcnt(0)")
    a(f"s_sub_u32 s{sTO}, s{sTO}, 64")
    a(f"s_cbranch_scc0 {redo}")
    a(f"s_mov_b32 s{sTO}, 0")
    a.label(ok)
    a.hist = h

def finish():
    if opt("AMP", -1) >= 0:
        lp = a.newlabel("AMPL"); sk = a.newlabel("AMPS")
        stamp("pre_end")
        a(f"s_cmp_lg_u32 s{sB}, 77")
        a(f"s_cbranch_scc1 {sk}")
        a(f"v_readlane_b32 s{sT0}, v{vTSV}, 0")
        a(f"v_readlane_b32 s{sT1}, v{vTSV}, {opt('AMP', 0)}")
        a(f"s_memrealtime s[70:71]")
        a("s_waitcnt lgkmcnt(0)")
        a(f"s_sub_u32 s{sT1}, s{sT1}, s{sT0}")
        a(f"s_lshl_b32 s{sT1}, s{sT1}, 2")
        a(f"s_add_u32 s{sT1}, s70, s{sT1}")
        a.label(lp)
        a(f"s_memrealtime s[70:71]")
        a("s_waitcnt lgkmcnt(0)")
        a(f"s_sub_u32 s{sT2}, s70, s{sT1}")
        a(f"s_cmp_lt_i32 s{sT2}, 0")
        a(f"s_cbranch_scc1 {lp}")
        a.label(sk)
    if DIAG:
        a(f"v_writelane_b32 v{vTSV}, s{sTO}, 61")
        if opt("CNT", 0): a(f"v_writelane_b32 v{vTSV}, s2, 60")
        stamp("end")
        lin(sT0, [(sB, 1024), (sW, 256)], TS)
        a(f"v_lshlrev_b32 v{vT0}, 2, v{vL}")
        a(f"buffer_store_dword v{vTSV}, v{vT0}, {sr(SWS,4)}, s{sT0} offen")
    a("s_endpgm")

def pk(op, d, x, y, z=None, hi=None, lo=None):
    ops = [x, y] + ([z] if z is not None else [])
    m = ""
    if lo: m += " op_sel:[" + ",".join(map(str, lo)) + "]"
    if hi: m += " op_sel_hi:[" + ",".join(map(str, hi)) + "]"
    a(f"v_pk_{op}_f32 {vr(d,2)}, " + ", ".join(ops) + m)

def mfma(d, A, B, C):
    a(f"v_mfma_f32_32x32x16_bf16 {d}, {A}, {B}, {C}")

def ws_store4(reg, soff, off=0): return a(f"buffer_store_dwordx4 {vr(reg,4)}, v{vL16}, {sr(SWS,4)}, s{soff} offen offset:{off} sc1")

def tr_base(dst_a, dst_b, sel64, sel32, region):
    a(f"v_bfe_u32 v{vT0}, v{vL}, 2, 2")
    a(f"v_lshl_add_u32 v{vT0}, v{vHH}, 2, v{vT0}")
    a(f"v_lshlrev_b32 v{dst_a}, 7, v{vT0}")
    a(f"v_bfe_u32 v{vT1}, v{vL}, 3, 1")
    a(f"v_lshl_add_u32 v{dst_a}, v{vT1}, 6, v{dst_a}")
    a(f"v_bfe_u32 v{vT1}, v{vL}, 4, 1")
    a(f"v_lshl_add_u32 v{dst_a}, v{vT1}, 5, v{dst_a}")
    a(f"v_and_b32 v{vT1}, 3, v{vL}")
    a(f"v_lshl_add_u32 v{dst_a}, v{vT1}, 3, v{dst_a}")
    for sel, sh in ((sel64, 6), (sel32, 5)):
        if sel is not None:
            a(f"s_lshl_b32 s{sT5}, s{sel}, {sh}")
            a(f"v_xor_b32 v{dst_a}, s{sT5}, v{dst_a}")
    a(f"v_add_u32 v{dst_a}, {region}, v{dst_a}")
    a(f"v_xor_b32 v{dst_b}, 64, v{dst_a}")

def dma_voff(dst, dst2, pitch, scol):
    a(f"v_lshrrev_b32 v{vT0}, 3, v{vL}")
    a(f"v_mul_u32_u24 v{dst}, {pitch}, v{vT0}")
    a(f"v_bfe_u32 v{vT1}, v{vL}, 4, 1")
    a(f"v_lshlrev_b32 v{vT1}, 2, v{vT1}")
    a(f"v_and_b32 v{vT0}, 7, v{vL}")
    a(f"v_xor_b32 v{vT0}, v{vT0}, v{vT1}")
    a(f"v_lshl_add_u32 v{dst}, v{vT0}, 4, v{dst}")
    a(f"v_add_u32 v{dst}, s{scol}, v{dst}")
    a(f"v_add_u32 v{dst2}, {8*pitch-1024}, v{dst}")

R1, R2 = 16, 11
def wreg(kind, t, j, n):
    r, base = (R1, 0) if kind == 1 else (R2, R1 * 8)
    if t < r: return ar(base + 8 * t + j, n)
    t -= r
    if t < 5: return ar(216 + 8 * t + j, n)
    return vr(160 + 8 * (t - 5) + j, n)

class Pump:
    def setup(self, kind, L, extra=0):
        self.kind = kind
        self.pitch, self.srd, self.n = (3584, SW1, 32) if kind == 1 else (4096, SW2, 28)
        self.t0 = 0 if L == 0 else (R1 if kind == 1 else R2)
        self.extra = extra
        self.ns = opt("NS1", 6) if kind == 1 else NS
        self.i = self.t0; self.c = self.t0; self.vid = {}; self.lid = {}
        a.c(f"pump setup W{kind}")
        a(f"s_lshl_b32 s{sT5}, s{sKH}, 5")
        a(f"v_xor_b32 v{vWTA}, s{sT5}, v{vWTA}")
        a(f"v_xor_b32 v{vWTB}, s{sT5}, v{vWTB}")
        lin(sT4, [(sFT if kind == 1 else sST, 128), (sW, self.n * 16 * self.pitch)])
        dma_voff(vWA, vWB, self.pitch, sT4)
        rot = sROT1 if kind == 1 else sROT2
        a(f"s_add_u32 s{sT5}, s{rot}, {self.t0}")
        a(f"s_sub_u32 s{sWOFF}, s{sT5}, {self.n}")
        a(f"s_cselect_b32 s{sWOFF}, s{sT5}, s{sWOFF}")
        a(f"s_mul_i32 s{sWOFF}, s{sWOFF}, {16*self.pitch}")
    def place(self, t):
        k = t - self.t0
        if k < self.extra: return ("B", k * 2048)
        return ("A", ((k - self.extra) % self.ns) * 2048)
    def prev_user(self, t):
        p = t - self.ns
        return p if p - self.t0 >= self.extra else None
    def room(self, lag=0):
        p = self.prev_user(self.i)
        return p is None or p < self.c - lag
    def issue1(self):
        t = self.i
        if opt("NOPUMP", 0):
            self.vid[t] = None; self.i += 1; return
        p = self.prev_user(t)
        if p is not None: a.wait(lg=self.lid[p])
        reg, o = self.place(t)
        a(f"s_add_u32 m0, s{sWB if reg == 'B' else sWA}, {o}")
        if t > self.t0:
            a(f"s_add_u32 s{sWOFF}, s{sWOFF}, {16*self.pitch}")
            a(f"s_cmp_eq_u32 s{sWOFF}, {self.n*16*self.pitch}")
            a(f"s_cselect_b32 s{sWOFF}, 0, s{sWOFF}")
        a(f"buffer_load_dwordx4 v{vWA}, {sr(self.srd,4)}, s{sWOFF} offen lds")
        self.vid[t] = a(f"buffer_load_dwordx4 v{vWB}, {sr(self.srd,4)}, s{sWOFF} offen offset:1024 lds")
        self.i += 1
    def fill(self, upto=None):
        lim = self.n if upto is None else min(self.n, upto)
        while self.i < lim and self.room(): self.issue1()
    def run(self, target, refill=True, tmp=(vT0, vT1), first=True):
        target = min(target, self.n)
        haveB = not first
        while self.c < target:
            t = self.c
            if t >= self.i: self.issue1()
            if opt("NOPUMP", 0):
                self.c += 1; continue
            reg, o = self.place(t)
            ta, tb = vWTA, vWTB
            if reg == "B":
                ta, tb = tmp
                if not haveB:
                    a(f"v_add_u32 v{ta}, 65536, v{vWTA}"); a(f"v_add_u32 v{tb}, 65536, v{vWTB}"); haveB = True
            a.wait(vm=self.vid[t])
            a(f"ds_read_b64_tr_b16 {wreg(self.kind,t,0,2)}, v{ta} offset:{o}")
            a(f"ds_read_b64_tr_b16 {wreg(self.kind,t,2,2)}, v{ta} offset:{o+1024}")
            a(f"ds_read_b64_tr_b16 {wreg(self.kind,t,4,2)}, v{tb} offset:{o}")
            self.lid[t] = a(f"ds_read_b64_tr_b16 {wreg(self.kind,t,6,2)}, v{tb} offset:{o+1024}")
            self.c += 1
            lim = self.n if refill else target
            if self.i < lim and self.room(lag=1): self.issue1()
        if refill: self.fill()
pump = Pump()

def prologue():
    a(f"s_cmp_ge_u32 s2, 256")
    a(f"s_cbranch_scc1 L_EXIT")
    a(f"s_load_dwordx16 {sr(sKA,16)}, s[0:1], 0")
    a(f"s_load_dwordx4 {sr(SCODE,4)}, s[0:1], 64")
    a(f"s_load_dwordx2 s[100:101], s[0:1], 80")
    a(f"s_mov_b32 s{sB}, s2")
    if opt("CNT", 0): a("s_mov_b32 s2, 0")
    if opt("FRV", 0) or opt("FRC", 0): a("s_mov_b32 s2, 0")
    a(f"v_lshrrev_b32 v{vT0}, 6, v0")
    a(f"v_and_b32 v{vL}, 63, v0")
    a(f"v_readfirstlane_b32 s{sW}, v{vT0}")
    a(f"v_lshlrev_b32 v{vL16}, 4, v{vL}")
    a(f"v_lshrrev_b32 v{vHH}, 5, v{vL}")
    if opt("CODEPF", 2) == 2:
        a(f"s_getpc_b64 {sr(SB1,2)}")
        a.label("L_PC")
        a(f"s_and_b32 s{SB1+1}, s{SB1+1}, 0xffff")
        a(f"s_mov_b32 s{SB1+2}, L_END - L_PC")
        a(f"s_mov_b32 s{SB1+3}, 0x20000")
        a(f"s_lshr_b32 s{sT0}, s{sB}, 3")
        a(f"s_lshl_b32 s{sT0}, s{sT0}, 2")
        a(f"s_add_u32 s{sT0}, s{sT0}, s{sW}")
        a(f"s_lshl_b32 s{sT0}, s{sT0}, 10")
        a(f"buffer_load_dwordx4 {ar(252,4)}, v{vL16}, {sr(SB1,4)}, s{sT0} offen")
    if DIAG: a(f"v_mov_b32 v{vTSV}, 0")
    stamp("start")
    X_, I_ = sT0, sT1
    a(f"s_and_b32 s{X_}, s{sB}, 7")
    a(f"s_lshr_b32 s{I_}, s{sB}, 3")
    a(f"s_lshr_b32 s{sT2}, s{I_}, 3")
    a(f"s_and_b32 s{sDT}, s{I_}, 7")
    a(f"s_and_b32 s{sRB}, s{X_}, 3")
    a(f"s_lshl_b32 s{sRB}, s{sRB}, 2")
    a(f"s_add_u32 s{sRB}, s{sRB}, s{sT2}")
    a(f"s_lshr_b32 s{sHP}, s{X_}, 2")
    a(f"s_lshl_b32 s{sHP}, s{sHP}, 3")
    a(f"s_add_u32 s{sHP}, s{sHP}, s{sDT}")
    a(f"s_lshr_b32 s{sROTX}, s{sDT}, 1")
    a(f"s_add_u32 s{sROTX}, s{sROTX}, s{sT2}")
    a(f"s_and_b32 s{sROTX}, s{sROTX}, 3")
    a(f"s_lshl_b32 s{sROTX}, s{sROTX}, 1")
    a(f"s_and_b32 s{sT3}, s{I_}, 1")
    a(f"s_add_u32 s{sROTX}, s{sROTX}, s{sT3}")
    a(f"s_and_b32 s{sRX0}, s{sROTX}, {opt('RXM', 6)}")
    a(f"s_lshl_b32 s{sW1K}, s{sW}, 10")
    a(f"s_lshl_b32 s{sWB}, s{sW}, 14")
    a(f"s_add_u32 s{sWA}, s{sWB}, {L_A}")
    a(f"s_add_u32 s{sWB}, s{sWB}, {L_B}")

def roles2():
    X_, I_ = sT0, sT1
    a(f"s_and_b32 s{X_}, s{sB}, 7")
    a(f"s_lshr_b32 s{I_}, s{sB}, 3")
    a(f"s_lshr_b32 s{sT2}, s{I_}, 3")
    a(f"s_lshl_b32 s{sST}, s{X_}, 2")
    a(f"s_add_u32 s{sST}, s{sST}, s{sT2}")
    a(f"s_lshr_b32 s{sT3}, s{X_}, 1")
    a(f"s_mul_i32 s{sT3}, s{sT3}, 7")
    a(f"s_and_b32 s{sT4}, s{X_}, 1")
    a(f"s_lshl_b32 s{sT5}, s{sT4}, 2")
    a(f"s_add_u32 s{sFT}, s{sT3}, s{sT5}")
    a(f"s_add_u32 s{sFT}, s{sFT}, s{sT2}")
    a(f"s_and_b32 s{sP3}, s{I_}, 3")
    a(f"s_add_u32 s{sT5}, s{sT5}, s{sP3}")
    a(f"s_add_u32 s{sKB}, s{sT3}, 3")
    a(f"s_cmp_lt_u32 s{I_}, 24")
    a(f"s_cselect_b32 s{sFT}, s{sFT}, s{sKB}")
    a(f"s_cselect_b32 s{sDT3}, s{sDT}, s{sT5}")
    a(f"s_mul_i32 s{sT4}, s{sT4}, 3")
    a(f"s_add_u32 s{sXC}, s{sT3}, s{sT4}")
    a(f"s_lshl_b32 s{sROT1}, s{X_}, 2")
    a(f"s_and_b32 s{sT3}, s{I_}, 3")
    a(f"s_lshr_b32 s{sP3}, s{I_}, 2")
    a(f"s_lshl_b32 s{sWI}, s{I_}, 2")
    a(f"s_add_u32 s{sWI}, s{sWI}, s{sW}")
    a(f"s_lshl_b32 s{sRED}, s{X_}, 2")
    a(f"s_add_u32 s{sRED}, s{sRED}, s{sT3}")
    a(f"s_lshl_b32 s{sRED}, s{sRED}, 1")
    a(f"s_add_u32 s{sRED}, s{sRED}, s{sW}")
    a(f"s_cmp_lt_u32 s{sW}, 2")
    a(f"s_cselect_b32 s{sRED}, s{sRED}, 99")
    a(f"s_cmp_eq_u32 s{sP3}, 7")
    a(f"s_cselect_b32 s{sRED}, s{sRED}, 99")
    a(f"s_mul_i32 s{sROT2}, s{X_}, 7")
    a(f"s_lshr_b32 s{sROT2}, s{sROT2}, 2")
    a(f"s_lshl_b32 s{sROT2}, s{sROT2}, 1")
    if opt("MAP", 0):
        a(f"s_and_b32 s{sT2}, s{X_}, 1")
        a(f"s_lshl_b32 s{sT2}, s{sT2}, 2")
        a(f"s_and_b32 s{sT3}, s{I_}, 3")
        a(f"s_lshr_b32 s{sT5}, s{X_}, 1")
        a(f"s_add_u32 s{sT4}, s{sP3}, s{sT3}")
        a(f"s_and_b32 s{sT4}, s{sT4}, {opt('MROT', 1)}")
        if opt("MAP", 0) & 1:
            a(f"s_add_u32 s{sDT3}, s{sT2}, s{sT3}")
            a(f"s_mul_i32 s{sFT}, s{sT5}, 7")
            a(f"s_add_u32 s{sFT}, s{sFT}, s{sP3}")
            a(f"s_lshl_b32 s{sROT1}, s{sT4}, 4")
        if opt("MAP", 0) & 2:
            a(f"s_add_u32 s{sDT}, s{sT2}, s{sT3}")
            a(f"s_lshl_b32 s{sST}, s{sT5}, 3")
            a(f"s_add_u32 s{sST}, s{sST}, s{sP3}")
            a(f"s_mul_i32 s{sROT2}, s{sT4}, 14")
    a(f"s_lshr_b32 s{sRH}, s{sW}, 1")
    a(f"s_and_b32 s{sKH}, s{sW}, 1")
    a(f"s_mov_b32 s{sTO}, 400000")
    a(f"s_mov_b32 s{sONES}, 0x3f803f80")
    a(f"s_mov_b32 s{sEPS6}, {fl(1e-6)}")
    a(f"s_mov_b32 s{sL2E}, {fl(LOG2E)}")

def late_srds():
    srd(SWO, sKA + 4, 512 * 512 * 2)
    srd(SW1, sKA + 8, 2048 * 1792 * 2)
    srd(SB1, sKA + 10, 1792 * 2)
    srd(SW2, sKA + 12, 1792 * 2048 * 2)
    srd(SB2, sKA + 14, 2048 * 2)
    srd(SOUT, SCODE, 2048 * 512 * 2)
    srd(SDBG, SCODE + 2, 256)

def code_prefetch():
    if opt("CODEPF", 2) == 1:
        a(f"s_getpc_b64 {sr(SCODE,2)}")
        a.label("L_PC")
        a(f"s_and_b32 s{SCODE+1}, s{SCODE+1}, 0xffff")
        a(f"s_mov_b32 s{SCODE+2}, L_END - L_PC")
        a(f"s_mov_b32 s{SCODE+3}, 0x20000")
        a(f"s_lshl_b32 s{sT0}, s{sWI}, 10")
        a(f"buffer_load_dwordx4 {ar(252,4)}, v{vL16}, {sr(SCODE,4)}, s{sT0} offen")
    srd(SCODE, SW1, 2048 * 1792 * 2)
    a(f"s_cmp_eq_u32 s{sP3}, 7")
    a(f"s_cselect_b32 s{SW1+2}, 0, s{SW1+2}")

def addresses():
    lin(sAKVP, [(sHP, 64 * 640), (sRB, 4 * 640), (sW, 640)], KVP[0])
    lin(sAPQW, [(sRB, 4 * 32768), (sW, 32768), (sHP, 2048)], PQ[0])
    lin(sAPQR, [(sST, 65536), (sRH, 32768), (sKH, 16384)], PQ[0])
    lin(sAKVF, [(sKH, 16 * 768)], KVF[0])
    lin(sASTW, [(sST, 8192), (sDT, 1024), (sKH, 512), (sRH, 256)], ST[0])
    lin(sASTR, [(sST, 8192), (sRH, 256)], ST[0])
    lin(sAHTW, [(sDT, 262144), (sST, 8192), (sRH, 4096), (sKH, 256)], HT[0])
    lin(sAHTR, [(sDT3, 262144), (sW, 65536)], HT[0])
    lin(sAUW, [(sDT3, 229376), (sFT, 8192), (sRH, 4096), (sKH, 2048)], U[0])
    a(f"s_cmp_eq_u32 s{sP3}, 7")
    a(f"s_cselect_b32 s{sAUW}, {WS_BYTES:#x}, s{sAUW}")
    lin(sAUR, [(sDT, 229376), (sW, 57344)], U[0])
    lin(sAX2W, [(sST, 65536), (sRH, 32768), (sDT, 4096), (sKH, 1024)], X2)
    lin(sAX2R, [(sRB, 4 * 32768), (sW, 32768)], X2)
    a(f"s_add_u32 s{sAS2W}, s{sASTW}, {ST2 - ST[0]:#x}")
    lin(sAS2R, [(sRB, 2 * 8192), (sRH, 8192), (sKH, 256)], ST2)
    lin(sAWQT, [(sHP, 98304)], WQT)
    a(f"s_mov_b32 s{sGK}, {fl(-2.0 * 0.7978845608028654 * LOG2E * 0.044715)}")

def next_layer_addresses():
    for r, d in ((sAKVP, KVP[1] - KVP[0]), (sAPQW, PQ[1] - PQ[0]), (sAPQR, PQ[1] - PQ[0]), (sAKVF, KVF[1] - KVF[0]),
                 (sASTW, ST[1] - ST[0]), (sASTR, ST[1] - ST[0]), (sAHTW, HT[1] - HT[0]), (sAHTR, HT[1] - HT[0]),
                 (sAUW, U[1] - U[0]), (sAUR, U[1] - U[0])):
        a(f"s_add_u32 s{r}, s{r}, {d:#x}")

def kv_poison(P, L):
    r = sAKVP
    if L == 1:
        a(f"s_add_u32 s{sT1}, s{sAKVP}, {KVP[1]-KVP[0]:#x}"); r = sT1
    set_exec((1 << 40) - 1)
    ws_store4(P, r)
    a(f"s_mul_i32 s{sT0}, s{sRED}, 384")
    a(f"s_add_u32 s{sT0}, s{sT0}, {KVF[L]:#x}")
    a(f"s_cmp_ge_u32 s{sRED}, 64")
    a(f"s_cselect_b32 s{sT0}, {WS_BYTES:#x}, s{sT0}")
    set_exec((1 << 24) - 1)
    ws_store4(P, sT0)
    set_exec(FULL)
def ht_voff(dst):
    a(f"v_and_b32 v{dst}, 15, v{vL}")
    a(f"v_lshlrev_b32 v{dst}, 4, v{dst}")
    a(f"v_lshl_add_u32 v{dst}, v{vHH}, 9, v{dst}")
    a(f"v_bfe_u32 v{vT0}, v{vL}, 4, 1")
    a(f"v_lshl_add_u32 v{dst}, v{vT0}, 10, v{dst}")
def tile_poison(P, r, delta, step):
    v = vL16
    if r == sAHTW:
        ht_voff(vT1); v = vT1
    if delta:
        a(f"s_add_u32 s{sT0}, s{r}, {delta:#x}"); r = sT0
    for f in range(2): a(f"buffer_store_dwordx4 {vr(P,4)}, v{v}, {sr(SWS,4)}, s{r} offen offset:{step*f} sc1")
def canary_poison(P):
    lines = ((sAHTW, 2048+1024+512+128), (sAUW, 896), (sAUW, 1024+896), (sAHTW, HT[1]-HT[0]+2048+1024+512+128),
             (sAUW, U[1]-U[0]+896), (sAUW, U[1]-U[0]+1024+896), (sAPQW, PQ[1]-PQ[0]+1024+896), (sAX2W, 896))
    a(f"v_lshrrev_b32 v{vT0}, 3, v{vL}")
    for g, (r, d) in enumerate(lines):
        a(f"s_add_u32 s{sT0}, s{r}, {d:#x}")
        if g == 0: a(f"v_mov_b32 v{vT1}, s{sT0}")
        else:
            a(f"v_mov_b32 v{vT2}, s{sT0}")
            a(f"v_cmp_eq_u32 vcc, {g}, v{vT0}")
            a(f"v_cndmask_b32 v{vT1}, v{vT1}, v{vT2}, vcc")
    a(f"v_and_b32 v{vT0}, 7, v{vL}")
    a(f"v_lshl_add_u32 v{vT1}, v{vT0}, 4, v{vT1}")
    a(f"buffer_store_dwordx4 {vr(P,4)}, v{vT1}, {sr(SWS,4)}, 0 offen sc1")
def st_poison(P):
    lin(sT0, [(sB, 3072), (sW, 768)], ST[0])
    set_exec((1 << 48) - 1)
    ws_store4(P, sT0)
    set_exec(FULL)
def set_poi(P):
    for i in range(4): a(f"v_mov_b32 v{P+i}, -1")

def misc_loads():
    lin(sT0, [(sST, 64), (sRH, 32)])
    a(f"v_and_b32 v{vT0}, 31, v{vL}")
    a(f"v_add_u32 v{vT0}, s{sT0}, v{vT0}")
    a(f"v_lshlrev_b32 v{vT1}, 1, v{vT0}")
    a(f"buffer_load_ushort v{vB2}, v{vT1}, {sr(SB2,4)}, 0 offen")
    a(f"v_lshlrev_b32 v{vT0}, 10, v{vT0}")
    a(f"v_lshl_add_u32 v{vOUT}, v{vHH}, 4, v{vT0}")
    lin(sT0, [(sDT, 128), (sKH, 32)])
    a(f"v_add_u32 v{vOUT}, s{sT0}, v{vOUT}")
    a(f"buffer_load_dwordx4 {vr(XR,4)}, v{vOUT}, {sr(SX,4)}, 0 offen")
    a(f"buffer_load_dwordx4 {vr(XR+4,4)}, v{vOUT}, {sr(SX,4)}, 0 offen offset:64")

def touch(srdn, rows_per_wave, lg, pitch, scol_emit, dst):
    n = rows_per_wave << lg
    scol_emit()
    a(f"v_min_u32 v{vT0}, {n-1}, v{vL}")
    a(f"v_lshrrev_b32 v{vT1}, {lg}, v{vT0}")
    a(f"v_mul_u32_u24 v{vT1}, {pitch}, v{vT1}")
    a(f"v_and_b32 v{vT0}, {(1<<lg)-1}, v{vT0}")
    a(f"v_lshl_add_u32 v{vT0}, v{vT0}, 7, v{vT1}")
    a(f"s_mul_i32 s{sT5}, s{sWI}, {rows_per_wave*pitch}")
    a(f"s_add_u32 s{sT4}, s{sT4}, s{sT5}")
    a(f"buffer_load_dword {dst}, v{vT0}, {sr(srdn,4)}, s{sT4} offen")
def touch_w1(dst): touch(SCODE, 16, 2, 3584, lambda: a(f"s_lshl_b32 s{sT4}, s{sXC}, 7"), dst)
def touch_w2(dst):
    def c2():
        a(f"s_and_b32 s{sT4}, s{sB}, 7"); a(f"s_lshl_b32 s{sT4}, s{sT4}, 9")
    touch(SW2, 16, 2, 4096, c2, dst)
def touch_w2h(dst, t0):
    a(f"s_lshr_b32 s{sT4}, s{sWI}, 3")
    a(f"s_add_u32 s{sT4}, s{sT4}, s{sROT2}")
    if t0: a(f"s_add_u32 s{sT4}, s{sT4}, {t0}")
    a(f"s_sub_u32 s{sT5}, s{sT4}, 28")
    a(f"s_cselect_b32 s{sT4}, s{sT4}, s{sT5}")
    a(f"s_and_b32 s{sT5}, s{sWI}, 3")
    a(f"s_mul_i32 s{sT5}, s{sT5}, 28")
    a(f"s_add_u32 s{sT4}, s{sT4}, s{sT5}")
    a(f"s_lshl_b32 s{sT4}, s{sT4}, 1")
    a(f"s_bfe_u32 s{sT5}, s{sWI}, 0x10002")
    a(f"s_add_u32 s{sT4}, s{sT4}, s{sT5}")
    a(f"s_lshl_b32 s{sT4}, s{sT4}, 15")
    a(f"s_and_b32 s{sT5}, s{sB}, 7")
    a(f"s_lshl_b32 s{sT5}, s{sT5}, 9")
    a(f"s_add_u32 s{sT4}, s{sT4}, s{sT5}")
    a(f"s_cmp_eq_u32 s{sP3}, 7")
    a(f"s_cselect_b32 s{sT4}, 0x10000000, s{sT4}")
    a(f"v_min_u32 v{vT0}, 31, v{vL}")
    a(f"v_lshrrev_b32 v{vT1}, 2, v{vT0}")
    a(f"v_and_b32 v{vT0}, 3, v{vT0}")
    a(f"v_lshlrev_b32 v{vT0}, 7, v{vT0}")
    a(f"v_lshl_add_u32 v{vT0}, v{vT1}, 12, v{vT0}")
    a(f"buffer_load_dword {dst}, v{vT0}, {sr(SW2,4)}, s{sT4} offen")
def touch_w1h(dst, t0):
    a(f"s_lshr_b32 s{sT4}, s{sWI}, 3")
    a(f"s_add_u32 s{sT4}, s{sT4}, s{sROT1}")
    if t0: a(f"s_add_u32 s{sT4}, s{sT4}, {t0}")
    a(f"s_and_b32 s{sT4}, s{sT4}, 31")
    a(f"s_and_b32 s{sT5}, s{sWI}, 3")
    a(f"s_lshl_b32 s{sT5}, s{sT5}, 5")
    a(f"s_add_u32 s{sT4}, s{sT4}, s{sT5}")
    a(f"s_lshl_b32 s{sT4}, s{sT4}, 1")
    a(f"s_bfe_u32 s{sT5}, s{sWI}, 0x10002")
    a(f"s_add_u32 s{sT4}, s{sT4}, s{sT5}")
    a(f"s_mul_i32 s{sT4}, s{sT4}, {8*3584}")
    a(f"s_lshl_b32 s{sT5}, s{sXC}, 7")
    a(f"s_add_u32 s{sT4}, s{sT4}, s{sT5}")
    a(f"v_min_u32 v{vT0}, 31, v{vL}")
    a(f"v_lshrrev_b32 v{vT1}, 2, v{vT0}")
    a(f"v_and_b32 v{vT0}, 3, v{vT0}")
    a(f"v_lshlrev_b32 v{vT0}, 7, v{vT0}")
    a(f"v_mul_u32_u24 v{vT1}, 3584, v{vT1}")
    a(f"v_add_u32 v{vT0}, v{vT1}, v{vT0}")
    a(f"buffer_load_dword {dst}, v{vT0}, {sr(SCODE,4)}, s{sT4} offen")
def touch_wo(dst): touch(SWO, 4, 3, 1024, lambda: a(f"s_mov_b32 s{sT4}, 0"), dst)
def touches(L, where):
    dst = "a25" if where in (1, 2, 3, 6, 7, 8) else None
    if optL("T1", L, 8, 0) == where: touch_w1(dst + "2" if dst else "v31")
    if optL("T1A", L, 0, 0) == where: touch_w1h(dst + "2" if dst else "v31", 0)
    if optL("T1B", L, 0, 0) == where: touch_w1h(dst + "5" if dst else "v31", 16)
    if optL("T2", L, 0, 0) == where: touch_w2(dst + "3" if dst else "v31")
    if optL("T2H", L, 9, 0) == where: touch_w2h(dst + "3" if dst else "v31", 0)
    if optL("T2G", L, 0, 0) == where: touch_w2h(dst + "3" if dst else "v31", 14)

def split2(dst, src, t0):
    a(f"v_cvt_pk_bf16_f32 v{t0}, v{src}, v{src}")
    a(f"v_and_b32 v{t0}, 0xffff0000, v{t0}")
    a(f"v_sub_f32 v{dst}, v{src}, v{t0}")
    a(f"v_cvt_pk_bf16_f32 v{dst}, v{t0}, v{dst}")

def stats_to_frags(S, Q, RA):
    a(f"v_mul_f32 v{S}, {fl(-1/512)}, v{S}")
    a(f"v_mul_f32 v{Q}, {fl(1/512)}, v{Q}")
    a(f"v_cmp_eq_u32 vcc, 0, v{vHH}")
    a(f"v_fma_f32 v{Q}, -v{S}, v{S}, v{Q}")
    a(f"v_max_f32 v{Q}, 0, v{Q}")
    a(f"v_add_f32 v{Q}, {fl(1e-5)}, v{Q}")
    a(f"v_rsq_f32 v{vRS}, v{Q}")
    a(f"v_cndmask_b32 v{S}, 0, v{S}, vcc")
    a(f"v_cvt_pk_bf16_f32 v{MA}, v{S}, v{S}")
    a(f"v_cndmask_b32 v{Q}, 0, v{vRS}, vcc")
    a(f"v_and_b32 v{vT0}, 0xffff0000, v{MA}")
    a(f"v_sub_f32 v{S}, v{S}, v{vT0}")
    a(f"v_cvt_pk_bf16_f32 v{MA+1}, v{S}, v{S}")
    split2(RA, Q, vT0)

def stats_check(SB):
    a(f"v_max3_u32 v{vT3}, v{SB+1}, v{SB+3}, v{SB+5}")
    a(f"v_max3_u32 v{vT3}, v{vT3}, v{SB+7}, v{SB+9}")
    a(f"v_max3_u32 v{vT3}, v{vT3}, v{SB+11}, v{SB+13}")
    a(f"v_max_u32 v{vT3}, v{vT3}, v{SB+15}")
    a(f"v_cmp_eq_u32 vcc, -1, v{vT3}")
def stats_sum(SB):
    for n in (4, 2, 1):
        for p in range(n): pk("add", SB+2*p, vr(SB+2*p,2), vr(SB+2*(p+n),2))
    a(f"v_mov_b32 v{SB+2}, v{SB}")
    a(f"v_mov_b32 v{SB+3}, v{SB+1}")
    a(f"v_permlane32_swap_b32 v{SB}, v{SB+2}")
    a(f"v_permlane32_swap_b32 v{SB+1}, v{SB+3}")
    pk("add", SB, vr(SB,2), vr(SB+2,2))

A1B = 128
def a1_issue():
    a(f"s_mov_b32 s{sT3}, s{sKB}")
    for p in range(16):
        a(f"buffer_load_dwordx4 {vr(A1B+4*p,4)}, v{vL16}, {sr(SWS,4)}, s{sT3} offen offset:{(p&1)*2560} sc1")
        if p & 1 and p < 15: a(f"s_add_u32 s{sT3}, s{sT3}, {2*2560}")
def a1_early(L):
    skip = a.newlabel("NOA1E")
    a(f"s_cmp_ge_u32 s{sRED}, 64")
    a(f"s_cbranch_scc1 {skip}")
    with cond():
        a(f"s_lshr_b32 s{sKB}, s{sRED}, 2")
        a(f"s_mul_i32 s{sKB}, s{sKB}, {16*2560}")
        a(f"s_and_b32 s{sT2}, s{sRED}, 3")
        a(f"s_mul_i32 s{sT2}, s{sT2}, 640")
        a(f"s_add_u32 s{sKB}, s{sKB}, s{sT2}")
        a(f"s_add_u32 s{sKB}, s{sKB}, {KVP[L]:#x}")
        if opt("A1C", 0):
            a(f"v_and_b32 v{vT1}, 15, v{vL}")
            a(f"v_mul_u32_u24 v{vT1}, 2560, v{vT1}")
            a(f"buffer_load_dword v{vT3}, v{vT1}, {sr(SWS,4)}, s{sKB} offen offset:544 sc1")
        else:
            set_exec((1 << 35) - 1)
            a1_issue()
            set_exec(FULL)
    a.label(skip)
def a1_check():
    B = A1B
    a(f"v_max3_u32 v{vT3}, v{B}, v{B+4}, v{B+8}")
    a(f"v_min3_u32 v{vT1}, v{B}, v{B+4}, v{B+8}")
    for p in range(3, 15, 2):
        a(f"v_max3_u32 v{vT3}, v{vT3}, v{B+4*p}, v{B+4*p+4}")
        a(f"v_min3_u32 v{vT1}, v{vT1}, v{B+4*p}, v{B+4*p+4}")
    a(f"v_max_u32 v{vT3}, v{vT3}, v{B+60}")
    a(f"v_min_u32 v{vT1}, v{vT1}, v{B+60}")
    a(f"v_cmp_eq_u32 vcc, -1, v{vT3}")
    a(f"v_readlane_b32 s{sT0}, v{vT3}, 34")
    a(f"v_readlane_b32 s{sT1}, v{vT1}, 34")
    a(f"s_xor_b32 s{sT0}, s{sT0}, s{sNON}")
    a(f"s_xor_b32 s{sT1}, s{sT1}, s{sNON}")
    a(f"s_or_b32 s{sT0}, s{sT0}, s{sT1}")
    a(f"s_or_b32 vcc_lo, vcc_lo, s{sT0}")
    a(f"s_or_b64 vcc, vcc, vcc")
def a1_mid(younger):
    skip = a.newlabel("NOA1M"); ok = a.newlabel("A1MOK")
    a(f"s_cmp_ge_u32 s{sRED}, 64")
    a(f"s_cbranch_scc1 {skip}")
    with cond():
        set_exec((1 << 35) - 1)
        a(f"s_waitcnt vmcnt({younger})")
        a1_check()
        a(f"s_cbranch_vccz {ok}")
        a1_issue()
        a.label(ok)
        set_exec(FULL)
    a.label(skip)
def a1(L, younger):
    a.c("======== A1 reducer")
    skip = a.newlabel("NOA1")
    a(f"s_cmp_ge_u32 s{sRED}, 64")
    a(f"s_cbranch_scc1 {skip}")
    with cond():
        B = A1B
        a(f"s_mul_i32 s{sT2}, s{sRED}, 384")
        a(f"s_add_u32 s{sT2}, s{sT2}, {KVF[L]:#x}")
        a(f"v_lshlrev_b32 v{vT2}, 3, v{vL}")
        set_exec((1 << 35) - 1)
        def check():
            a(f"v_max3_u32 v{vT3}, v{B}, v{B+4}, v{B+8}")
            a(f"v_min3_u32 v{vT1}, v{B}, v{B+4}, v{B+8}")
            for p in range(3, 15, 2):
                a(f"v_max3_u32 v{vT3}, v{vT3}, v{B+4*p}, v{B+4*p+4}")
                a(f"v_min3_u32 v{vT1}, v{vT1}, v{B+4*p}, v{B+4*p+4}")
            a(f"v_max_u32 v{vT3}, v{vT3}, v{B+60}")
            a(f"v_min_u32 v{vT1}, v{vT1}, v{B+60}")
            a(f"v_cmp_eq_u32 vcc, -1, v{vT3}")
            a(f"v_readlane_b32 s{sT0}, v{vT3}, 34")
            a(f"v_readlane_b32 s{sT1}, v{vT1}, 34")
            a(f"s_xor_b32 s{sT0}, s{sT0}, s{sNON}")
            a(f"s_xor_b32 s{sT1}, s{sT1}, s{sNON}")
            a(f"s_or_b32 s{sT0}, s{sT0}, s{sT1}")
            a(f"s_or_b32 vcc_lo, vcc_lo, s{sT0}")
            a(f"s_or_b64 vcc, vcc, vcc")
        a.vm_done = min(a.vm_done, a.vm - younger - 1)
        if opt("A1C", 0):
            poll(lambda: a(f"buffer_load_dword v{vT3}, v{vT1}, {sr(SWS,4)}, s{sKB} offen offset:544 sc1"),
                 lambda: a(f"v_cmp_ne_u32 vcc, s{sNON}, v{vT3}"), 0x21, pre=a.vm - younger - 1)
            poll(a1_issue, check, 0x20)
        else:
            poll(a1_issue, check, 0x20, pre=a.vm - younger - 1)
        n = 16
        while n > 1:
            n //= 2
            for p in range(n):
                for j in (0, 2): pk("add", B+4*p+j, vr(B+4*p+j,2), vr(B+4*(p+n)+j,2))
        a(f"v_cvt_pk_bf16_f32 v{B+4}, v{B}, v{B+1}")
        a(f"v_cvt_pk_bf16_f32 v{B+5}, v{B+2}, v{B+3}")
        a(f"v_mov_b32_dpp v{B+6}, v{B+4} quad_perm:[1,1,3,3] row_mask:0xf bank_mask:0xf")
        a(f"v_mov_b32_dpp v{B+7}, v{B+5} quad_perm:[1,1,3,3] row_mask:0xf bank_mask:0xf")
        a(f"v_writelane_b32 v{B+4}, s{sNON}, 34")
        set_exec(0x555555555555)
        a(f"buffer_store_dwordx4 {vr(B+4,4)}, v{vT2}, {sr(SWS,4)}, s{sT2} offen sc1")
        set_exec(FULL)
        a("s_nop 1")
    a.label(skip)
    stamp("a1")

XF = 128
def KS(s): return 4 * ((s & 15) >> 1) + (s & 1) + 2 * (s >> 4)
def XFR(L, s): return XF + 4 * (((s + 16) & 31) if L == 1 else s)
xid1 = {}
def xa_XL(s):
    jj = s & 15
    if jj == 0: a(f"s_mov_b32 s{sSO}, s{sT4}")
    elif jj == 8: a(f"s_xor_b32 s{sSO}, s{sT4}, 16384")
    elif jj & 1 == 0: a(f"s_add_u32 s{sSO}, s{sSO}, 4096")
    xid1[s] = a(f"buffer_load_dwordx4 {vr(XFR(1,s),4)}, v{vL16}, {sr(SWS,4)}, s{sSO} offen offset:{(KS(s)&3)*1024} sc1")
vXC = MA + 1
def xa_ci(): return a(f"buffer_load_dword v{vT3}, v{vXC}, {sr(SWS,4)}, s{sAX2R} offen offset:1020 sc1")
def xa_start():
    a(f"s_and_b32 s{sT5}, s{sROTX}, {opt('XROT', 1)}")
    a(f"s_lshl_b32 s{sT5}, s{sT5}, 14")
    a(f"s_add_u32 s{sT4}, s{sAX2R}, s{sT5}")
    a(f"v_and_b32 v{vXC}, 15, v{vL}")
    a(f"v_lshrrev_b32 v{MA+3}, 1, v{vXC}")
    a(f"v_and_b32 v{vXC}, 1, v{vXC}")
    a(f"v_lshlrev_b32 v{vXC}, 10, v{vXC}")
    a(f"v_lshl_add_u32 v{vXC}, v{MA+3}, 12, v{vXC}")
    G["xcid"] = xa_ci()
    for s in range(opt("LA1", 8)): xa_XL(s)
def p1(L):
    ACCK, ACCV, RR = 32, 48, 64
    VV, PK, T1 = 80, 88, 96
    S0, S1, Q0, Q1 = 80, 81, 82, 83
    CF = 84
    CFV, CFQ, RA = 112, 116, 120
    vTQ, vTV = 124, 125
    vW, vXA, vXB = 126, 127, 96
    vCQ, vCV = 97, 98
    vOA, vOB = vTA, vTB
    vTQ2, vTV2 = vTA, vTB
    vKW, vKR = 92, 93
    XA = 88
    vKW2, vKR2 = vT2, 127
    POI = 100
    WFR = 216; NWF = 4; ONESF = 248; CG = 200; CK, CV, CQ = 152, 168, 184
    a.c(f"======== P1 layer {L}")
    xid = {}; wid = {}
    toff = 256
    def addr_setup():
        if L == 0:
            a(f"v_bfe_u32 v{vT0}, v{vL}, 2, 2")
            a(f"v_lshl_add_u32 v{vT0}, v{vHH}, 3, v{vT0}")
            a(f"v_lshlrev_b32 v{vTQ}, 6, v{vT0}")
            a(f"v_bfe_u32 v{vT1}, v{vL}, 4, 1")
            a(f"v_lshl_add_u32 v{vTQ}, v{vT1}, 5, v{vTQ}")
            a(f"v_and_b32 v{vT1}, 3, v{vL}")
            a(f"v_lshl_add_u32 v{vTQ}, v{vT1}, 3, v{vTQ}")
        else:
            a(f"s_and_b32 s{sT5}, s{sROTX}, {opt('XROT', 1)}")
            a(f"s_lshl_b32 s{sT5}, s{sT5}, 14")
            a(f"v_add_u32 v{vTQ}, s{sT5}, v{vL16}")
            a(f"v_xor_b32 v{vTQ2}, 16384, v{vTQ}")
            a(f"v_add_u32 v{vTV2}, 65536, v{vTQ2}")
        a(f"v_add_u32 v{vTV}, 65536, v{vTQ}")
        for i in range(4): a(f"v_accvgpr_write_b32 a{ONESF+i}, s{sONES}")
        for r in ([MA + 2, MA + 3] if L == 0 else []) + [RA + 1, RA + 2, RA + 3, CF + 2, CF + 3, CFV + 2, CFV + 3, CFQ + 2, CFQ + 3]: a(f"v_mov_b32 v{r}, 0")
    def kv_addr():
        a(f"v_bfe_u32 v{vT0}, v{vL}, 4, 1")
        a(f"v_lshl_add_u32 v{vT0}, v{vT0}, 1, v{vHH}")
        a(f"v_mul_u32_u24 v{vT0}, 17, v{vT0}")
        a(f"v_and_b32 v{vT1}, 15, v{vL}")
        a(f"v_add_u32 v{vT0}, v{vT0}, v{vT1}")
        a(f"v_lshlrev_b32 v{vT0}, 5, v{vT0}")
        a(f"v_add_u32 v{vKW2}, s{sWA}, v{vT0}")
        a(f"s_mul_i32 s{sT0}, s{sW}, 544")
        a(f"s_add_u32 s{sT0}, s{sT0}, {L_A + SCR}")
        a(f"v_add_u32 v{vKR2}, s{sT0}, v{vL16}")
    rg = {}
    def RG(s):
        b = WFR + (s % NWF) * 8
        if L == 0:
            o = s * 1024
            a(f"ds_read_b64_tr_b16 {ar(b,2)}, v{vTQ} offset:{32768+o}")
            a(f"ds_read_b64_tr_b16 {ar(b+2,2)}, v{vTQ} offset:{32768+o+toff}")
            a(f"ds_read_b64_tr_b16 {ar(b+4,2)}, v{vTV} offset:{o}")
            rg[s] = a(f"ds_read_b64_tr_b16 {ar(b+6,2)}, v{vTV} offset:{o+toff}")
        else:
            o = (KS(s) & 15) * 1024
            q_, v_ = (vTQ2, vTV2) if KS(s) >= 16 else (vTQ, vTV)
            a(f"ds_read_b128 {ar(b,4)}, v{q_} offset:{32768+o}")
            rg[s] = a(f"ds_read_b128 {ar(b+4,4)}, v{v_} offset:{o}")
    if L == 0:
        a(f"v_lshrrev_b32 v{vT0}, 2, v{vL}")
        a(f"s_lshl_b32 s{sT0}, s{sW}, 4")
        a(f"v_add_u32 v{vT0}, s{sT0}, v{vT0}")
        a(f"v_mul_u32_u24 v{vW}, 3072, v{vT0}")
        a(f"v_and_b32 v{vT0}, 3, v{vL}")
        a(f"v_lshl_add_u32 v{vW}, v{vT0}, 4, v{vW}")
        a(f"s_lshl_b32 s{sT0}, s{sHP}, 6")
        a(f"v_add_u32 v{vW}, s{sT0}, v{vW}")
        lin(sT0, [(sRB, 131072), (sW, 32768)])
        a(f"v_lshrrev_b32 v{vT0}, 3, v{vL}")
        a(f"v_lshlrev_b32 v{vT0}, 10, v{vT0}")
        a(f"v_add_u32 v{vT0}, s{sT0}, v{vT0}")
        a(f"v_and_b32 v{vT1}, 7, v{vL}")
        a(f"v_lshrrev_b32 v{vT2}, 4, v{vL}")
        a(f"v_xor_b32 v{vT1}, v{vT1}, v{vT2}")
        a(f"v_lshl_add_u32 v{vXA}, v{vT1}, 4, v{vT0}")
        a(f"v_xor_b32 v{vXB}, 64, v{vXA}")
        a(f"v_add_u32 v{vXB}, {8192-1024}, v{vXB}")
        a("s_waitcnt lgkmcnt(0)")
        srd(SX, sKA + 0, 2048 * 512 * 2)
        srd(SWQKV, sKA + 2, 512 * 1536 * 2)
        def x_issue(j):
            a(f"s_add_u32 s{sKB}, s{sRX0}, {j}")
            a(f"s_and_b32 s{sKB}, s{sKB}, 7")
            a(f"s_lshl_b32 s{sT1}, s{sKB}, 7")
            a(f"s_add_u32 m0, s{sWB}, {(j&3)*4096}")
            a(f"s_mul_i32 s{sSO}, s{sKB}, {64*3072}")
            a(f"buffer_load_dwordx4 v{vXA}, {sr(SX,4)}, s{sT1} offen lds")
            a(f"buffer_load_dwordx4 v{vXB}, {sr(SX,4)}, s{sT1} offen offset:1024 lds")
            a(f"s_add_u32 m0, s{sWB}, {(j&3)*4096+2048}")
            a(f"s_add_u32 s{sT1}, s{sT1}, 16384")
            a(f"buffer_load_dwordx4 v{vXA}, {sr(SX,4)}, s{sT1} offen lds")
            xid[j] = a(f"buffer_load_dwordx4 v{vXB}, {sr(SX,4)}, s{sT1} offen offset:1024 lds")
        def w_issue(j):
            for seg in (1, 2, 0):
                a(f"s_add_u32 m0, s{sW1K}, {seg*32768 - seg*1024 + j*4096}")
                wid[j] = a(f"buffer_load_dwordx4 v{vW}, {sr(SWQKV,4)}, s{sSO} offen offset:{seg*1024} lds")
        def wo_issue(c):
            for k in range(2):
                j = 2 * c + k
                a(f"s_add_u32 m0, s{sWB}, {j*2048}")
                if j == 0: a(f"s_lshl_b32 s{sSO}, s{sW}, 17")
                else: a(f"s_add_u32 s{sSO}, s{sSO}, 16384")
                a(f"buffer_load_dwordx4 v{vOA}, {sr(SWO,4)}, s{sSO} offen lds")
                G["wo"] = a(f"buffer_load_dwordx4 v{vOB}, {sr(SWO,4)}, s{sSO} offen offset:1024 lds")
        x_issue(0); w_issue(0)
        srd(SWS, 100, WS_BYTES)
        a(f"buffer_load_dword v{vKW}, off, {sr(SWS,4)}, 0 offset:{NONCE} sc1")
        roles2()
        late_srds()
        x_issue(1); w_issue(1)
        touch_wo("a254")
        code_prefetch()
        touches(0, 6)
        for i in range(4): a(f"v_mov_b32 v{POI+i}, -1")
        addresses()
        addr_setup()
        a(f"v_add_u32 v{vCQ}, s{sW1K}, v{vTQ}")
        a(f"v_add_u32 v{vCV}, s{sW1K}, v{vTV}")
        for r in (S0, S1, Q0, Q1): a(f"v_mov_b32 v{r}, 0")
        a(f"v_and_b32 v{vT0}, 31, v{vL}")
        a(f"v_bfe_u32 v{vT1}, v{vL}, 1, 3")
        a(f"v_xor_b32 v{vT1}, v{vT1}, v{vHH}")
        a(f"v_lshlrev_b32 v{vT0}, 7, v{vT0}")
        a(f"v_add_u32 v{vT0}, s{sWB}, v{vT0}")
        for t in range(4):
            a(f"v_xor_b32 v{vT2}, {2*t}, v{vT1}")
            a(f"v_lshl_add_u32 v{XA+t}, v{vT2}, 4, v{vT0}")
        a(f"s_lshl_b32 s{sT4}, s{sDT}, 7")
        dma_voff(vOA, vOB, 1024, sT4)
        tr_base(vWTA, vWTB, sRH, None, f"s{sWA}")
        pump.setup(1, 0)
        SCHED = {0: {0: [2, 3], 1: [4, 5], 2: [6], 3: [7]}, 1: {0: [2], 1: [3, 4], 2: [5, 6], 3: [7]}, 2: {0: [2, 3, 4], 1: [5], 2: [6], 3: [7]},
                 3: {0: [2], 1: [3], 2: [4], 3: [5], 4: [6], 5: [7]}, 4: {0: [2, 3], 1: [4], 2: [5], 3: [6], 4: [7]}}[opt("SCHED", 0)]
        JL = max(SCHED)
        cgid = {}
        def CGr(j):
            o = j * 4096
            a(f"ds_read_b64_tr_b16 {ar(CG,2)}, v{vCQ} offset:{32768+o}")
            a(f"ds_read_b64_tr_b16 {ar(CG+2,2)}, v{vCQ} offset:{32768+o+toff}")
            a(f"ds_read_b64_tr_b16 {ar(CG+4,2)}, v{vCV} offset:{o}")
            a(f"ds_read_b64_tr_b16 {ar(CG+6,2)}, v{vCV} offset:{o+toff}")
            a(f"ds_read_b64_tr_b16 {ar(CG+8,2)}, v{vCQ} offset:{o}")
            cgid[j] = a(f"ds_read_b64_tr_b16 {ar(CG+10,2)}, v{vCQ} offset:{o+toff}")
        def colsum(j):
            a.wait(lg=cgid[j])
            for k, c in enumerate((CK, CV, CQ)):
                mfma(ar(c,16), ar(ONESF,4), ar(CG+4*k,4), "0" if j == 0 else ar(c,16))
        def xreads(j):
            a.wait(vm=xid[j])
            return [a(f"ds_read_b128 {vr(XF+16*j+4*t,4)}, v{XA+t} offset:{(j&3)*4096}") for t in range(4)]
        xr = xreads(0)
        a.wait(vm=wid[0])
        a("s_barrier")
        stamp("p1_first")
        CGr(0); RG(0); RG(1); RG(2)
        colsum(0)
        CPY = 104; CS4 = 96
        initld = None
        for j in range(8):
            for t in range(4):
                a.wait(lg=xr[t])
                for k in range(4 if not opt("XNOD", 0) else 0):
                    r = XF + 16 * j + 4 * t + k
                    a(f"v_dot2_f32_bf16 v{S0+(k&1)}, v{r}, s{sONES}, v{S0+(k&1)}")
                    a(f"v_dot2_f32_bf16 v{Q0+(k&1)}, v{r}, v{r}, v{Q0+(k&1)}")
            if j == 7:
                a(f"s_lshr_b32 s{sT0}, s{sRB}, 1")
                a(f"s_sub_u32 s{sT0}, s{sT0}, s{sRX0}")
                a(f"s_and_b32 s{sT0}, s{sT0}, 7")
                a(f"s_cmp_eq_u32 s{sT0}, 0")
                a(f"s_cselect_b32 s{sT1}, 4096, 0")
                a(f"s_add_u32 s{sT1}, s{sT1}, {L_A}")
                a(f"v_add_u32 v{vT1}, s{sT1}, v{vL16}")
                a(f"v_add_u32 v{vT0}, s{sW1K}, v{vT1}")
                a(f"v_accvgpr_read_b32 v{CS4}, a{CK}")
                a(f"v_accvgpr_read_b32 v{CS4+1}, a{CV}")
                a(f"v_accvgpr_read_b32 v{CS4+2}, a{CQ}")
                cw = a(f"ds_write_b128 v{vT0}, {vr(CS4,4)}")
            for s in range(4 * j, 4 * j + 4):
                t = s & 3
                a.wait(lg=rg[s])
                b = WFR + (s % NWF) * 8
                x = vr(XF + 4 * s, 4)
                mfma(vr(ACCK,16), x, ar(b,4), "0" if s == 0 else vr(ACCK,16))
                if s + 3 < 32: RG(s + 3)
                if t == 1 and j < 7 and not opt("XNOC", 0): CGr(j + 1)
                if t == 2 and j < 7: xr = xreads(j + 1)
                if j == 7 and t == 1:
                    for w in range(4): cr = a(f"ds_read_b128 {vr(RR+4*w,4)}, v{vT1} offset:{1024*w}")
                    a(f"s_lshl_b32 s{sT0}, s{sT0}, 12")
                    a(f"s_and_b32 s{sT1}, s{sRB}, 1")
                    a(f"s_lshl_b32 s{sT1}, s{sT1}, 11")
                    a(f"s_add_u32 s{sT0}, s{sT0}, s{sT1}")
                    a(f"s_min_u32 s{sT2}, s{sW}, 2")
                    a(f"s_lshl_b32 s{sT2}, s{sT2}, 15")
                    a(f"s_add_u32 s{sT0}, s{sT0}, s{sT2}")
                    a(f"v_lshlrev_b32 v{vT1}, 8, v{vHH}")
                    a(f"v_sub_u32 v{vT0}, v{vTQ}, v{vT1}")
                    a(f"v_add_u32 v{vT0}, s{sT0}, v{vT0}")
                    for k in range(4): cp = a(f"ds_read_b64_tr_b16 {vr(CPY+2*k,2)}, v{vT0} offset:{512*k}")
                if j == 7 and t == 2:
                    a.wait(lg=cr)
                    for k in range(3):
                        a(f"v_add_f32 v{RR+k}, v{RR+k}, v{RR+4+k}")
                        a(f"v_add_f32 v{RR+8+k}, v{RR+8+k}, v{RR+12+k}")
                if j == 7 and t == 3:
                    split2(CKP, RR, vT0)
                    split2(CVP, RR + 1, vT1)
                mfma(vr(ACCV,16), x, ar(b+4,4), "0" if s == 0 else vr(ACCV,16))
                if t == 0:
                    if j < 7: a.wait(vm=wid[j + 1])
                    else: a.wait(lg=cw)
                    a("s_barrier")
                    if j == 1:
                        a(f"v_add_u32 v{vKW}, 1, v{vKW}")
                        a(f"v_and_b32 v{vKW}, 0x3fffffff, v{vKW}")
                        a(f"v_or_b32 v{vKW}, 0x40000000, v{vKW}")
                        a(f"v_readfirstlane_b32 s{sNON}, v{vKW}")
                if t <= 2 and j in SCHED and t < len(SCHED[j]):
                    x_issue(SCHED[j][t]); w_issue(SCHED[j][t])
                if t == 1 and j >= 4 and opt("WOP", 1) == 0: wo_issue(j - 4)
                if t == 3 and j == JL:
                    if opt("MISC", 0) == 0: misc_loads()
                    touches(0, 8)
                if t == 1 and j == 6 and opt("MISC", 0) == 1: misc_loads()
                if t == 3 and opt("SLOTST", 0) and j in (1, 3, 6): stamp(f"it{j}")
                if t == 2:
                    if j == 3: touches(0, 7)
                    if j == opt("POJ", 2):
                        st_poison(POI); kv_poison(POI, 0); canary_poison(POI)
                    if j == 6: kv_addr()
                    if j == opt("POJ", 2) + 1:
                        tile_poison(POI, sAPQW, 0, 1024); initld = a.vm - 1
                    if j == 7:
                        for k in range(3): a(f"v_add_f32 v{RR+k}, v{RR+k}, v{RR+8+k}")
                        a(f"s_lshl_b32 s{sT1}, s{sRB}, 11")
                        a(f"s_add_u32 s{sT3}, s{sAWQT}, s{sT2}")
                        a(f"s_add_u32 s{sT3}, s{sT3}, s{sT1}")
                        a.wait(lg=cp)
                        ws_store4(CPY, sT3); ws_store4(CPY + 4, sT3, 1024)
                if t == 3 and j < 7 and not opt("XNOC", 0): colsum(j + 1)
        stamp("p1_gemm")
        a(f"v_add_f32 v{S0}, v{S0}, v{S1}")
        a(f"v_add_f32 v{Q0}, v{Q0}, v{Q1}")
        a(f"v_mov_b32 v{S1}, v{S0}")
        a(f"v_mov_b32 v{Q1}, v{Q0}")
        for c, p in ((CF, CKP), (CFV, CVP)):
            a(f"v_mov_b32 v{c}, v{p}"); a(f"v_mov_b32 v{c+1}, v{p}")
        a(f"v_permlane32_swap_b32 v{S0}, v{S1}")
        a(f"v_permlane32_swap_b32 v{Q0}, v{Q1}")
        a(f"v_add_f32 v{S0}, v{S0}, v{S1}")
        a(f"v_add_f32 v{Q0}, v{Q0}, v{Q1}")
        split2(CQP, RR + 2, vT1)
        stats_to_frags(S0, Q0, RA)
        mfma(vr(ACCK,16), vr(MA,4), vr(CF,4), vr(ACCK,16))
        mfma(vr(RR,16), vr(RA,4), ar(ONESF,4), "0")
        mfma(vr(ACCV,16), vr(MA,4), vr(CFV,4), vr(ACCV,16))
        touches(0, 1)
    else:
        xid = xid1; XL = xa_XL; ci = xa_ci
        LA = opt("LA1", 8)
        vMX = vW
        cc = lambda: a(f"v_cmp_eq_u32 vcc, -1, v{vT3}")
        def windowa():
            for s in range(LA): XL(s)
        def windowb():
            for s in range(16, 16 + LA): XL(s)
        if opt("XE", 0) == 0: xa_start()
        cid = max(G["xcid"], G["kvlast"])
        addr_setup()
        next_layer_addresses()
        for c, p in ((CF, CKP), (CFV, CVP)):
            a(f"v_mov_b32 v{c}, v{p}"); a(f"v_mov_b32 v{c+1}, v{p}")
        a(f"v_and_b32 v{vT0}, 31, v{vL}")
        a(f"v_lshlrev_b32 v{vT0}, 3, v{vT0}")
        a(f"v_lshl_add_u32 v{PK+1}, v{vHH}, 12, v{vT0}")
        a(f"s_lshl_b32 s{sT2}, s{sW}, 13")
        a(f"s_add_u32 s{sKB}, s{sAWQT}, s{sT2}")
        a(f"s_mov_b32 s{sT1}, s{sT4}")
        pump.setup(1, 1)
        a(f"s_mov_b32 s{sT4}, s{sT1}")
        a(f"v_mov_b32 v{MA+2}, 0"); a(f"v_mov_b32 v{MA+3}, 0")
        go = a.newlabel("XGO"); redo = a.newlabel("XREDO"); go2 = a.newlabel("XGO2")
        a.wait(vm=cid)
        cc()
        force_fail("FRC")
        a(f"s_cbranch_vccz {go2}")
        st = (a.vm, a.vm_done, dict(xid), list(a.hist))
        mark("fb41")
        poll(ci, cc, 0x41)
        windowa()
        a("s_waitcnt vmcnt(0)")
        a.vm, a.vm_done, _x, a.hist = st; xid.update(_x)
        a.label(go2)
        a("s_barrier")
        stamp("p1_flag")
        a(f"s_branch {go}")
        a.label(redo)
        sv = dict(xid)
        with cond():
            windowa()
            a("s_waitcnt vmcnt(0)")
        xid.update(sv)
        a.label(go)
        RG(0); RG(1); RG(2)
        a(f"v_mov_b32 v{vMX}, 0")
        a(f"s_mov_b32 s{sT3}, s{sKB}")
        SB = T1
        def issue():
            for p in range(8): a(f"buffer_load_dwordx2 {vr(SB+2*p,2)}, v{PK+1}, {sr(SWS,4)}, s{sAS2R} offen offset:{p*512} sc1")
        qid = None
        LA = opt("LA1", 8)
        ZS = opt("ZS", 11); nb = [16]
        assert ZS + LA >= 16
        for s in range(32):
            if s == 16:
                stamp("p1_a")
                if ZS < 16:
                    go3 = a.newlabel("XGO3")
                    a.wait(vm=sid)
                    stats_check(SB)
                    force_fail("FRC")
                    a(f"s_cbranch_vccz {go3}")
                    st = (a.vm, a.vm_done, dict(xid), list(a.hist))
                    mark("fb40")
                    poll(issue, lambda: stats_check(SB), 0x40)
                    windowb()
                    a("s_waitcnt vmcnt(0)")
                    a.vm, a.vm_done, _x, a.hist = st; xid.update(_x)
                    a.label(go3)
                else:
                    spec(issue, lambda: stats_check(SB), windowb, 0x40, a.newlabel("XR0"))
                stamp("p1_st2")
                stats_sum(SB)
                stats_to_frags(SB, SB + 1, RA)
                mfma(vr(RR,16), vr(RA,4), ar(ONESF,4), "0")
                mfma(vr(ACCK,16), vr(MA,4), vr(CF,4), vr(ACCK,16))
                mfma(vr(ACCV,16), vr(MA,4), vr(CFV,4), vr(ACCV,16))
            a.wait(vm=xid[s], lg=rg[s])
            b = WFR + (s % NWF) * 8
            x = vr(XFR(1, s), 4)
            mfma(vr(ACCK,16), x, ar(b,4), "0" if s == 0 else vr(ACCK,16))
            if s == ZS:
                issue(); sid = a.vm - 1
            if ZS < s < 16:
                per = -(-LA // (15 - ZS))
                for _ in range(per):
                    if nb[0] < 16 + LA: XL(nb[0]); nb[0] += 1
            if (s & 15) + LA < 16: XL(s + LA)
            if s >= 24:
                j = s - 24
                if j == 4: a(f"s_add_u32 s{sT3}, s{sT3}, 4096")
                if j & 3 == 0: a(f"s_add_u32 m0, s{sT2}, {j*1024}")
                qid = a(f"buffer_load_dwordx4 v{vL16}, {sr(SWS,4)}, s{sT3} offen offset:{(j&3)*1024} sc1 lds")
            mfma(vr(ACCV,16), x, ar(b+4,4), "0" if s == 0 else vr(ACCV,16))
            if s & 1: a(f"v_max3_u32 v{vMX}, v{vMX}, v{XFR(1,s-1)}, v{XFR(1,s)}")
            if s + 3 < 32: RG(s + 3)
            if s == 30: kv_addr()
        verify(vMX, redo)
        stamp("p1_gemm")
    for q in range(8): pk("fma", ACCK+2*q, vr(ACCK+2*q,2), vr(RR+2*q,2), sr(sEPS6,2), hi=[1,1,0])
    for q in range(8): pk("mul", T1+2*q, vr(ACCK+2*q,2), sr(sL2E,2), hi=[1,0])
    for i in range(16):
        a(f"v_exp_f32_e64 v{T1+i}, v{T1+i} clamp")
        a(f"v_max_f32 v{ACCK+i}, s{sEPS6}, v{ACCK+i}")
    for q in range(8): pk("add", ACCK+2*q, vr(ACCK+2*q,2), vr(T1+2*q,2))
    for q in range(8): a(f"v_cvt_pk_bf16_f32 v{PK+q}, v{ACCK+2*q}, v{ACCK+2*q+1}")
    ZA = T1
    for q in range(4): pk("mul", ACCV+2*q, vr(ACCV+2*q,2), vr(RR+2*q,2))
    for q in range(4, 8): pk("mul", ACCV+2*q, vr(ACCV+2*q,2), vr(RR+2*q,2))
    mfma(vr(ZA,16), vr(PK,4), ar(ONESF,4), "0")
    for q in range(4): a(f"v_cvt_pk_bf16_f32 v{VV+q}, v{ACCV+2*q}, v{ACCV+2*q+1}")
    mfma(vr(ZA,16), vr(PK+4,4), ar(ONESF,4), vr(ZA,16))
    for q in range(4, 8): a(f"v_cvt_pk_bf16_f32 v{VV+q}, v{ACCV+2*q}, v{ACCV+2*q+1}")
    KVA = RR
    a(f"v_and_b32 v{vT0}, 16, v{vL}")
    a(f"v_cmp_ne_u32 vcc, 0, v{vT0}")
    mfma(vr(KVA,16), vr(PK,4), vr(VV,4), "0")
    mfma(vr(KVA,16), vr(PK+4,4), vr(VV+4,4), vr(KVA,16))
    a("s_barrier")
    for j in range(8): a(f"v_cndmask_b32 v{ACCK+8+j}, v{ZA+j}, v{ZA+8+j}, vcc")
    set_exec(0x0001000100010001)
    a(f"ds_write_b128 v{vKW2}, {vr(ACCK+8,4)} offset:{SCR+512}")
    a(f"ds_write_b128 v{vKW2}, {vr(ACCK+12,4)} offset:{SCR+528}")
    set_exec(FULL)
    for j in range(4): a(f"v_cndmask_b32 v{ACCK+j}, v{KVA+j}, v{KVA+8+j}, vcc")
    a(f"ds_write_b128 v{vKW2}, {vr(ACCK,4)} offset:{SCR}")
    for j in range(4, 8): a(f"v_cndmask_b32 v{ACCK+j}, v{KVA+j}, v{KVA+8+j}, vcc")
    a(f"ds_write_b128 v{vKW2}, {vr(ACCK+4,4)} offset:{SCR+16}")
    if L == 0: a.wait(vm=initld)
    NQ = 8; QLA = 6
    rq = {}
    def RQ(s):
        b = WFR + (s % NQ) * 4
        if L == 0:
            a(f"ds_read_b64_tr_b16 {ar(b,2)}, v{vTQ} offset:{s*1024}")
            rq[s] = a(f"ds_read_b64_tr_b16 {ar(b+2,2)}, v{vTQ} offset:{s*1024+toff}")
        else:
            ks = KS((s + 16) & 31)
            rq[s] = a(f"ds_read_b128 {ar(b,4)}, v{vTQ2 if ks >= 16 else vTQ} offset:{(ks&15)*1024}")
    QB = L == 1 and opt("QB", 1)
    if L == 1 and not QB: a.wait(vm=qid)
    a.wait_lg_all()
    a("s_barrier")
    for w in range(4): kr = a(f"ds_read_b128 {vr(RR+4*w,4)}, v{vKR2} offset:{16384*w}")
    if not QB:
        for s in range(QLA): RQ(s)
    a(f"v_mov_b32 v{CFQ}, v{CQP}"); a(f"v_mov_b32 v{CFQ+1}, v{CQP}")
    ACCQ = ACCK
    mfma(vr(ACCQ,16), vr(CFQ,4), vr(MA,4), "0")
    a.wait(lg=kr)
    for j in range(4): a(f"v_add_f32 v{RR+j}, v{RR+j}, v{RR+4+j}")
    for j in range(4): a(f"v_add_f32 v{RR+8+j}, v{RR+8+j}, v{RR+12+j}")
    for j in range(4): a(f"v_add_f32 v{RR+j}, v{RR+j}, v{RR+8+j}")
    set_exec((1 << 40) - 1)
    a(f"v_writelane_b32 v{RR}, s{sNON}, 34")
    ws_store4(RR, sAKVP)
    set_exec(FULL)
    stamp("p1_kvpub")
    if QB:
        a.wait(vm=qid)
        a("s_barrier")
        for s in range(QLA): RQ(s)
    touches(L, 2)
    nfill = optL("F0", L, 0, 0); assert nfill <= 6
    for s in range(32):
        a.wait(lg=rq[s])
        b = WFR + (s % NQ) * 4
        mfma(vr(ACCQ,16), ar(b,4), vr(XF+4*s,4), vr(ACCQ,16))
        if s + QLA < 32: RQ(s + QLA)
        if s % 3 == 1 and pump.i < pump.c + nfill: pump.fill(pump.i + 1)
        if L == 0 and opt("WOP", 1) == 1 and s % 8 == 0: wo_issue(s // 8)
        if optL("POIQ", L, 1, 1):
            if s == 2: set_poi(VV)
            if s == 3: tile_poison(VV, sAHTW, 0, 2048)
            if s == 6: tile_poison(VV, sAUW, 0, 1024)
        if s == opt("A1S", 31):
            a1_early(L); vm_a1 = a.vm
        if s == opt("A1M", 99):
            a1_mid(a.vm - vm_a1); vm_a1 = a.vm
    for h in range(2):
        for q in range(4*h, 4*h+4): pk("fma", ACCQ+2*q, vr(ACCQ+2*q,2), vr(vRS,2), sr(sEPS6,2), hi=[1,0,0])
        for q in range(4*h, 4*h+4): pk("mul", T1+2*q, vr(ACCQ+2*q,2), sr(sL2E,2), hi=[1,0])
        for i in range(8*h, 8*h+8):
            a(f"v_exp_f32_e64 v{T1+i}, v{T1+i} clamp")
            a(f"v_max_f32 v{ACCQ+i}, s{sEPS6}, v{ACCQ+i}")
        for q in range(4*h, 4*h+4): pk("add", ACCQ+2*q, vr(ACCQ+2*q,2), vr(T1+2*q,2))
        for q in range(4*h, 4*h+4): a(f"v_cvt_pk_bf16_f32 v{PK+q}, v{ACCQ+2*q}, v{ACCQ+2*q+1}")
        ws_store4(PK + 4 * h, sAPQW, 1024 * h)
        if opt("A1S", 31) == 32 + h:
            a1_early(L); vm_a1 = a.vm
    if L == 0:
        for k in range(4): a(f"v_mov_b32 v{T1+k}, s{sNON}")
        a(f"s_sub_u32 s{sT0}, s{sAPQW}, {PQ[0]:#x}")
        a(f"s_lshr_b32 s{sT0}, s{sT0}, 4")
        a(f"s_add_u32 s{sT0}, s{sT0}, {TAGQ:#x}")
        set_exec(0xff)
        ws_store4(T1, sT0)
        set_exec(FULL)
    stamp("p1_q")
    if opt("NS1", 6) > 6: a("s_barrier")
    a1(L, a.vm - vm_a1)
    if L == 0 and opt("MISC", 0) == 2: misc_loads()
    G["misc"] = a.vm - 1
    pump.fill(pump.c + optL("F1", L, 6, 5))
    touches(L, 3)

def row_stats_publish(soff, SM):
    a(f"v_dot2_f32_bf16 v{SM}, v{XR}, s{sONES}, 0")
    a(f"v_dot2_f32_bf16 v{SM+1}, v{XR}, v{XR}, 0")
    a(f"v_dot2_f32_bf16 v{SM+2}, v{XR+1}, s{sONES}, 0")
    a(f"v_dot2_f32_bf16 v{SM+3}, v{XR+1}, v{XR+1}, 0")
    for j in range(2, 8):
        o = 2 * (j & 1)
        a(f"v_dot2_f32_bf16 v{SM+o}, v{XR+j}, s{sONES}, v{SM+o}")
        a(f"v_dot2_f32_bf16 v{SM+o+1}, v{XR+j}, v{XR+j}, v{SM+o+1}")
    a(f"v_lshlrev_b32 v{vT0}, 3, v{vL}")
    pk("add", SM, vr(SM,2), vr(SM+2,2))
    a(f"v_mov_b32 v{SM+2}, v{SM}")
    a(f"v_mov_b32 v{SM+3}, v{SM+1}")
    a(f"v_permlane32_swap_b32 v{SM}, v{SM+2}")
    a(f"v_permlane32_swap_b32 v{SM+1}, v{SM+3}")
    pk("add", SM, vr(SM,2), vr(SM+2,2))
    a(f"s_mov_b32 exec_hi, 0")
    a(f"v_and_b32 v{SM+1}, 0x7fffffff, v{SM+1}")
    a(f"buffer_store_dwordx2 {vr(SM,2)}, v{vT0}, {sr(SWS,4)}, s{soff} offen sc1")
    set_exec(FULL)

def unpack_xr(XU):
    for j in range(8):
        a(f"v_lshlrev_b32 v{XU+2*j}, 16, v{XR+j}")
        a(f"v_and_b32 v{XU+2*j+1}, 0xffff0000, v{XR+j}")

def p2(L):
    a.c(f"======== P2 layer {L}")
    KF, QF = 128, 192
    ACC = 32; CR = 64; OF = 96; WF = 104; XU = 64
    vK, vKC, vMX = MA, MA + 1, MA + 2
    tr_base(vTA, vTB, None, sKH, L_B)
    a(f"s_lshl_b32 s{sT2}, s{sKH}, 15")
    a(f"v_add_u32 v{vTA}, s{sT2}, v{vTA}")
    a(f"v_add_u32 v{vTB}, s{sT2}, v{vTB}")
    a(f"v_and_b32 v{vT0}, 31, v{vL}")
    a(f"v_mul_u32_u24 v{vKC}, 384, v{vT0}")
    a(f"v_min_u32 v{vT0}, 16, v{vT0}")
    a(f"v_lshlrev_b32 v{vT0}, 4, v{vT0}")
    a(f"v_mul_u32_u24 v{vT1}, 384, v{vHH}")
    a(f"v_add_u32 v{vK}, v{vT0}, v{vT1}")
    a(f"v_and_b32 v{vT2}, 7, v{vL}")
    a(f"v_lshlrev_b32 v{vT2}, {11 if L else 7}, v{vT2}")
    if L == 0:
        a(f"s_sub_u32 s{sT0}, s{sAPQR}, {PQ[0]:#x}")
        a(f"s_lshr_b32 s{sT0}, s{sT0}, 4")
        a(f"s_add_u32 s{sT0}, s{sT0}, {TAGQ:#x}")
    pump.run(min(R1 + 5, optL("B1", L, 21, 21)), refill=bool(optL("B1R", L, 1, 1)))
    if optL("POIQ", L, 1, 1) == 0:
        set_poi(CR)
        tile_poison(CR, sAHTW, 0, 2048)
        tile_poison(CR, sAUW, 0, 1024)
    stamp("beta")
    def ldq():
        a(f"s_mov_b32 s{sT4}, s{sAPQR}")
        for j in range(16):
            a(f"buffer_load_dwordx4 {vr(QF+4*j,4)}, v{vL16}, {sr(SWS,4)}, s{sT4} offen offset:{(j&3)*1024} sc1")
            if j & 3 == 3 and j < 15: a(f"s_add_u32 s{sT4}, s{sT4}, 4096")
    if L == 1:
        ci = lambda: a(f"buffer_load_dword v{vT3}, v{vT2}, {sr(SWS,4)}, s{sAPQR} offen offset:2044 sc1")
        cc = lambda: a(f"v_cmp_eq_u32 vcc, -1, v{vT3}")
    else:
        ci = lambda: a(f"buffer_load_dword v{vT3}, v{vT2}, {sr(SWS,4)}, s{sT0} offen sc1")
        cc = lambda: a(f"v_cmp_ne_u32 vcc, s{sNON}, v{vT3}")
    spec(ci, cc, ldq, 0x36 + L, a.newlabel("PQR"), on=opt("SPEC", 15) & 4)
    stamp("p2_pqc")
    if L == 0:
        a.wait(vm=max(G['wo'], G['misc']))
        for q in range(2):
            a(f"v_permlane32_swap_b32 v{XR+4*q}, v{XR+4*q+2}")
            a(f"v_permlane32_swap_b32 v{XR+4*q+1}, v{XR+4*q+3}")
        a(f"v_lshlrev_b32 v{vB2}, 16, v{vB2}")
    pump.run(min(R1 + 5, pump.i), refill=False)
    pump.run(min(R1 + 5, optL("B2", L, 0, 0)), refill=False)
    pump.fill(pump.c + optL("FK", L, 0, 0))
    a(f"s_xor_b32 s{sT0}, s{sW}, 1")
    a(f"s_lshl_b32 s{sT0}, s{sT0}, 12")
    a(f"v_add_u32 v{vRS}, s{sT0}, v{vL16}")
    a.wait_lg_all()
    a("s_barrier")
    rw = {}
    def RW(j):
        b = WF + (j % 3) * 8
        a(f"ds_read_b64_tr_b16 {vr(b,2)}, v{vTA} offset:{j*2048}")
        a(f"ds_read_b64_tr_b16 {vr(b+2,2)}, v{vTA} offset:{j*2048+1024}")
        a(f"ds_read_b64_tr_b16 {vr(b+4,2)}, v{vTB} offset:{j*2048}")
        rw[j] = a(f"ds_read_b64_tr_b16 {vr(b+6,2)}, v{vTB} offset:{j*2048+1024}")
    lid = {}
    def LD(j):
        if j == 0: a(f"s_mov_b32 s{sSO}, s{sAKVF}")
        elif j & 3 == 0: a(f"s_add_u32 s{sSO}, s{sSO}, {4*768}")
        lid[j] = a(f"buffer_load_dwordx4 {vr(KF+4*j,4)}, v{vK}, {sr(SWS,4)}, s{sSO} offen offset:{(j&3)*768} sc1")
    PLA = optL("PLA", L, 10, 10)
    redo = a.newlabel("P2REDO"); redo2 = a.newlabel("P2REDO2"); over = a.newlabel("P2OVER")
    a(f"s_branch {over}")
    a.label(redo)
    with cond():
        ldq()
        a("s_waitcnt vmcnt(0)")
        a(f"s_branch {redo2}")
    a.label(over)
    def window():
        for j in range(PLA): LD(j)
    spec(lambda: a(f"buffer_load_dword v{vT3}, v{vKC}, {sr(SWS,4)}, s{sAKVF} offen offset:272 sc1"),
         lambda: a(f"v_cmp_ne_u32 vcc, s{sNON}, v{vT3}"), window, 0x38 + L, redo2, on=opt("SPEC", 15) & 2)
    stamp("p2_kvc")
    if L == 0:
        sk = a.newlabel("NONW")
        a(f"s_cmp_lg_u32 s{sWI}, 0")
        a(f"s_cselect_b32 s{sT0}, 1, s{sB}")
        a(f"s_cmp_lg_u32 s{sT0}, 0")
        a(f"s_cbranch_scc1 {sk}")
        with cond():
            a(f"v_mov_b32 v{vT0}, s{sNON}")
            set_exec(1)
            a(f"buffer_store_dword v{vT0}, off, {sr(SWS,4)}, 0 offset:{NONCE} sc1")
            set_exec(FULL)
        a.label(sk)
    RW(0); RW(1)
    a(f"v_mov_b32 v{vMX}, 0")
    def M1(j):
        a.wait(vm=lid[j])
        mfma(vr(CR+(j&1)*16,16), vr(KF+4*j,4), vr(QF+4*j,4), "0")
        a(f"v_max3_u32 v{vMX}, v{vMX}, v{KF+4*j}, v{QF+4*j}")
        if j + PLA < 16: LD(j + PLA)
        if j + PLA == 16: touches(L, 9)
    def Va(j):
        c = CR + (j & 1) * 16
        a(f"v_add_f32 v{c+8}, s{sEPS6}, v{c+8}")
        a(f"v_rcp_f32 v{c+8}, v{c+8}")
    def Vb(j):
        c = CR + (j & 1) * 16; o = OF + (j & 1) * 4
        for i in range(4): a(f"v_mul_f32 v{c+i}, v{c+i}, v{c+8}")
        for i in range(2): a(f"v_cvt_pk_bf16_f32 v{o+i}, v{c+2*i}, v{c+2*i+1}")
    def Vc(j):
        c = CR + (j & 1) * 16; o = OF + (j & 1) * 4
        for i in range(4, 8): a(f"v_mul_f32 v{c+i}, v{c+i}, v{c+8}")
        for i in range(2, 4): a(f"v_cvt_pk_bf16_f32 v{o+i}, v{c+2*i}, v{c+2*i+1}")
    M1(0); M1(1)
    Va(0); Vb(0); Vc(0); M1(2)
    nfp = optL("FP2", L, 6, 6)
    kb_saved = False
    for j in range(16):
        o = OF + (j & 1) * 4; b = WF + (j % 3) * 8
        if j + 1 < 16: Va(j + 1)
        a.wait(lg=rw[j])
        mfma(vr(ACC+16,16), vr(b+4,4), vr(o,4), "0" if j == 0 else vr(ACC+16,16))
        if j + 1 < 16: Vb(j + 1)
        mfma(vr(ACC,16), vr(b,4), vr(o,4), "0" if j == 0 else vr(ACC,16))
        if j + 1 < 16: Vc(j + 1)
        if j + 3 < 16: M1(j + 3)
        if j + 2 < 16: RW(j + 2)
    verify(vMX, redo)
    stamp("p2_main")
    lin(sT0, [(sFT, 128), (sRH, 64), (sKH, 32)])
    a(f"v_lshlrev_b32 v{vT0}, 3, v{vHH}")
    for q in range(2): a(f"buffer_load_dwordx2 {vr(152+2*q,2)}, v{vT0}, {sr(SB1,4)}, s{sT0} offen offset:{16*q}")
    for q, r in enumerate((ACC + 24, ACC + 28, ACC + 8, ACC + 12)): a(f"ds_write_b128 v{vRS}, {vr(r,4)} offset:{(q^2)*1024}")
    unpack_xr(XU)
    a(f"v_xor_b32 v{vT1}, 4096, v{vRS}")
    for q in range(4): pk("add", ACC+16+2*q, vr(ACC+16+2*q,2), vr(XU+8+2*q,2))
    for q in range(4): pk("add", ACC+2*q, vr(ACC+2*q,2), vr(XU+2*q,2))
    a.wait_lg_all()
    a("s_barrier")
    own = (ACC, ACC + 4, ACC + 16, ACC + 20)
    ids = [a(f"ds_read_b128 {vr(XU+4*q,4)}, v{vT1} offset:{q*1024}") for q in range(4)]
    for q in range(4):
        a.wait(lg=ids[q])
        pk("add", own[q], vr(own[q],2), vr(XU+4*q,2))
        pk("add", own[q]+2, vr(own[q]+2,2), vr(XU+4*q+2,2))
        a(f"v_cvt_pk_bf16_f32 v{XR+2*q}, v{own[q]}, v{own[q]+1}")
        a(f"v_cvt_pk_bf16_f32 v{XR+2*q+1}, v{own[q]+2}, v{own[q]+3}")
    row_stats_publish(sASTW, OF)
    stamp("p2_stpub")
    pump.run(pump.i, refill=False)
    pump.fill(pump.c + optL("GF", L, 6, 4))
    unpack_xr(XU)
    IDF = 104
    a(f"v_and_b32 v{vT0}, 31, v{vL}")
    a(f"v_lshlrev_b32 v{vT1}, 2, v{vHH}")
    a(f"v_sub_u32 v{vT0}, v{vT0}, v{vT1}")
    a(f"v_mov_b32 v{vT3}, 0x3f80")
    for f in range(2):
        for c in range(4):
            base = 16 * f + ((2 * c) & 3) + 8 * (c >> 1)
            a(f"v_subrev_u32 v{vT1}, {base}, v{vT0}")
            a(f"v_cmp_gt_u32 vcc, 2, v{vT1}")
            a(f"v_lshlrev_b32 v{vT1}, 4, v{vT1}")
            a(f"v_lshlrev_b32 v{vT2}, v{vT1}, v{vT3}")
            a(f"v_cndmask_b32 v{IDF+4*f+c}, 0, v{vT2}, vcc")
    SB = 128
    ht_voff(vRS)
    a(f"v_and_b32 v{vT0}, 31, v{vL}")
    a(f"v_lshlrev_b32 v{vT0}, 3, v{vT0}")
    a(f"v_lshl_add_u32 v{vT2}, v{vHH}, 12, v{vT0}")
    a(f"v_mov_b32 v{SB+18}, {fl(1.0+1e-5)}")
    def issue():
        for p in range(8): a(f"buffer_load_dwordx2 {vr(SB+2*p,2)}, v{vT2}, {sr(SWS,4)}, s{sASTR} offen offset:{p*512} sc1")
    if OPT.get(f"SL{0x34+L:x}", 0): a(f"s_sleep {OPT.get(f'SL{0x34+L:x}', 0)}")
    poll(issue, lambda: stats_check(SB), 0x34 + L)
    stamp("p2_stats")
    if optL("SF", L, 3, 3):
        pump.run(pump.i, refill=False)
        pump.fill(pump.c + optL("SF", L, 3, 3))
    stats_sum(SB)
    a(f"v_mul_f32 v{SB}, {fl(-1/512)}, v{SB}")
    a(f"v_mul_f32 v{SB+1}, {fl(1/512)}, v{SB+1}")
    a(f"v_fma_f32 v{SB+1}, -v{SB}, v{SB}, v{SB+1}")
    a(f"v_max_f32 v{SB+1}, 0, v{SB+1}")
    a(f"v_fmaak_f32 v{SB+1}, v{SB+1}, v{SB+18}, {fl(1e-10)}")
    a(f"v_rsq_f32 v{SB+2}, v{SB+1}")
    a(f"v_mul_f32 v{SB}, v{SB}, v{SB+2}")
    HP_ = 112
    for f in range(2):
        for j in range(4*f, 4*f+4):
            pk("fma", XU+2*j, vr(XU+2*j,2), vr(SB+2,2), vr(SB,2), hi=[1,0,0])
    for f in range(2):
        for j in range(4*f, 4*f+4):
            a(f"v_cvt_pk_bf16_f32 v{HP_+j}, v{XU+2*j}, v{XU+2*j+1}")
        mfma(vr(ACC,16), vr(HP_+4*f,4), vr(IDF+4*f,4), "0" if f == 0 else vr(ACC,16))
    for f in range(2):
        for j in range(4): a(f"v_cvt_pk_bf16_f32 v{ACC+16+4*f+j}, v{ACC+8*f+2*j}, v{ACC+8*f+2*j+1}")
        a(f"buffer_store_dwordx4 {vr(ACC+16+4*f,4)}, v{vRS}, {sr(SWS,4)}, s{sAHTW} offen offset:{2048*f} sc1")
    touches(L, 5)
    stamp(f"p2_{L}")

RING = 96; AUX = 144; NRH = 12
vR1, vR2, vR3, vRA = vT0, vT1, vT2, vRS
LKH = opt("LKH", 9)
class Half:
    def __init__(self, kind, hf, g0):
        self.kind, self.hf, self.g0 = kind, hf, g0
        self.nks, self.srot, self.sbase = (32, sROT1, sAHTR) if kind == 1 else (28, sROT2, sAUR)
        self.vA, self.vC = (vTA, MA + 1) if kind == 1 else (vTB, MA + 2)
        self.vMX = MA
        self.ids = {}; self.cid = None
    def rb(self, s): return RING + ((self.g0 + s) % NRH) * 4
    def LD(self, s):
        if s == 0: a(f"s_lshl_b32 s{sSO}, s{self.srot}, 11")
        elif s & 1 == 0:
            a(f"s_add_u32 s{sSO}, s{sSO}, 4096")
            a(f"s_cmp_eq_u32 s{sSO}, {self.nks*2048}")
            a(f"s_cselect_b32 s{sSO}, 0, s{sSO}")
        self.ids[s] = a(f"buffer_load_dwordx4 {vr(self.rb(s),4)}, v{self.vA}, {sr(SWS,4)}, s{sSO} offen offset:{(s&1)*2048+self.hf*1024} sc1")
    def window(self):
        for s in range(LKH): self.LD(s)
    def can_issue(self):
        off = 2048 + 1024 + 512 + 252 if self.kind == 1 else self.hf * 1024 + 1020
        self.cid = a(f"buffer_load_dword v{vT3}, v{self.vC}, {sr(SWS,4)}, s{self.sbase} offen offset:{off} sc1")
    def can_check(self): a(f"v_cmp_eq_u32 vcc, -1, v{vT3}")
    def MF(self, s, acc):
        A0 = 32 + 32 * self.hf
        wf = wreg(self.kind, s, 4 * acc, 4); af = vr(self.rb(s), 4)
        c = "0" if s == 0 else vr(A0 + 16 * acc, 16)
        A_, B_ = (wf, af) if self.kind == 1 else (af, wf)
        mfma(vr(A0+16*acc,16), A_, B_, c)
    def steps(self, redo, nxt=None, hook=None, force=True):
        n = self.nks
        a(f"v_mov_b32 v{self.vMX}, 0")
        for s in range(n):
            if hook: hook(s, 0)
            a.wait(vm=self.ids[s])
            self.MF(s, 1)
            if s + LKH < n: self.LD(s + LKH)
            elif nxt is not None:
                if s + LKH == n and nxt.kind == 2: nxt.can_issue()
                nxt.LD(s + LKH - n)
            if s & 1: a(f"v_max3_u32 v{self.vMX}, v{self.vMX}, v{self.rb(s-1)}, v{self.rb(s)}")
            self.MF(s, 0)
            if hook: hook(s, 1)
        verify(self.vMX, redo, force=force)
    def run(self, nxt=None, hook=None):
        lab = a.newlabel("PLAIN"); back = a.newlabel("BACK")
        OOL.append((self, nxt, lab, back))
        self.steps(lab, nxt, hook)
        a.label(back)
    def scr(self, k):
        if self.hf == 0: return 0, k * 2048
        if k < 2: return 1, SCR + k * 2048
        return 0, 6144
    def writes(self):
        A0 = 32 + 32 * self.hf
        for k in (1, 2, 0):
            src = (A0 + 8, A0 + 16, A0 + 24)[k]
            area, o = self.scr(k)
            r = (vR1, vR2, vR3)[k]
            if area == 1:
                a(f"v_lshl_add_u32 v{AUX+10+k}, v{r}, 1, v{AUX+9}"); r = AUX + 10 + k
            for q in range(2): a(f"ds_write_b128 v{r}, {vr(src+4*q,4)} offset:{o+q*1024}")
    def reads(self):
        D = 64 - 32 * self.hf
        if self.hf == 1: a(f"v_lshl_add_u32 v{AUX+10}, v{vRA}, 1, v{AUX+9}")
        a.wait_lg_all()
        a("s_barrier")
        ids = {}
        for q in range(2):
            for k in range(3):
                area, o = self.scr(k)
                ids[(q, k)] = a(f"ds_read_b128 {vr(D+8*k+4*q,4)}, v{AUX+10 if area else vRA} offset:{o+q*1024}")
        A0 = 32 + 32 * self.hf
        for q in range(2):
            a.wait(lg=ids[(q, 1)])
            for j in (0, 2): pk("add", D+4*q+j, vr(D+4*q+j,2), vr(D+8+4*q+j,2))
            a.wait(lg=ids[(q, 2)])
            for j in (0, 2): pk("add", A0+4*q+j, vr(A0+4*q+j,2), vr(D+16+4*q+j,2))
            for j in (0, 2): pk("add", A0+4*q+j, vr(A0+4*q+j,2), vr(D+4*q+j,2))
    def woven(self, D):
        A0 = 32 + 32 * self.hf
        ops = []
        ids = {}
        wl = a.lg - 1
        def bar():
            if self.hf == 1: a(f"v_lshl_add_u32 v{AUX+10}, v{vRA}, 1, v{AUX+9}")
            a.wait(lg=wl); a("s_barrier")
        ops.append(bar)
        def rd(q, k):
            area, o = self.scr(k)
            ids[(q, k)] = a(f"ds_read_b128 {vr(D+8*k+4*q,4)}, v{AUX+10 if area else vRA} offset:{o+q*1024}")
        for q in range(2):
            for k in range(3): ops.append(lambda q=q, k=k: rd(q, k))
        ops.append(None); ops.append(None); ops.append(None)
        for q in range(2):
            for k in range(3):
                for j in range(4):
                    def ad(q=q, k=k, j=j):
                        a.wait(lg=ids[(q, k)])
                        a(f"v_add_f32 v{A0+4*q+j}, v{A0+4*q+j}, v{D+8*k+4*q+j}")
                    ops.append(ad)
        return ops
    def late_check(self, code):
        go = a.newlabel("GO")
        a.wait(vm=self.cid)
        self.can_check()
        force_fail("FRC")
        a(f"s_cbranch_vccz {go}")
        st = (a.vm, a.vm_done, a.lg, a.lg_done, dict(self.ids), self.cid, list(a.hist))
        mark(f"fb{code:x}")
        poll(self.can_issue, self.can_check, code)
        self.window()
        a("s_waitcnt vmcnt(0)")
        a.vm, a.vm_done, a.lg, a.lg_done, self.ids, self.cid, a.hist = st
        a.label(go)
OOL = []
def mix_setup():
    a(f"v_add_u32 v{vTA}, s{sAHTR}, v{vL16}")
    a(f"v_min_u32 v{vT0}, 31, v{vL}")
    a(f"v_lshrrev_b32 v{vT1}, 1, v{vT0}")
    a(f"v_and_b32 v{vT0}, 1, v{vT0}")
    a(f"v_lshlrev_b32 v{vT0}, 8, v{vT0}")
    a(f"v_lshl_add_u32 v{MA+1}, v{vT1}, 12, v{vT0}")
    a(f"s_lshl_b32 s{sT0}, s{sKH}, 8")
    a(f"v_xor_b32 v{vTB}, s{sT0}, v{vL16}")
    a(f"v_add_u32 v{vTB}, s{sAUR}, v{vTB}")
    a(f"v_min_u32 v{MA+2}, 27, v{vL}")
    a(f"v_lshlrev_b32 v{MA+2}, 11, v{MA+2}")
    for acc, r in ((1, vR1), (2, vR2), (3, vR3)):
        a(f"s_xor_b32 s{sT0}, s{sW}, {acc}")
        a(f"s_lshl_b32 s{sT0}, s{sT0}, 13")
        a(f"v_add_u32 v{r}, s{sT0}, v{vL16}")
    a(f"s_lshl_b32 s{sT0}, s{sW}, 13")
    a(f"v_add_u32 v{vRA}, s{sT0}, v{vL16}")
    a(f"v_sub_u32 v{AUX+9}, {L_A}, v{vL16}")

def p34(L):
    a.c(f"======== P3 layer {L}")
    B1R = AUX
    pump.run(pump.i, refill=True)
    pump.run(32)
    a.wait_lg_all()
    if L == 1: a("s_barrier")
    pump.setup(2, L, extra=optL("XB", L, 0, 8))
    pump.run(optL("V2", L, 5, 0), refill=False)
    pump.fill(pump.c + optL("V2F", L, 0, 8))
    assert pump.c <= R2
    if L == 0: a("s_barrier")
    for j in range(4):
        a(f"v_lshlrev_b32 v{B1R+2*j}, 16, v{152+j}")
        a(f"v_and_b32 v{B1R+2*j+1}, 0xffff0000, v{152+j}")
    mix_setup()
    K1 = -2.0 * 0.7978845608028654 * LOG2E
    a(f"v_mov_b32 v{AUX+8}, {fl(K1)}")
    SPX = optL("SPX", L, 1, 1)
    h3a = Half(1, 0, 0); h3b = Half(1, 1, 32); h4a = Half(2, 0, 64); h4b = Half(2, 1, 92)
    stamp("p3_delta")
    idle = a.newlabel("P3IDLE"); join = a.newlabel("P3JOIN")
    pst = (pump.i, pump.c, dict(pump.vid), dict(pump.lid))
    a(f"s_cmp_eq_u32 s{sP3}, 7")
    a(f"s_cbranch_scc1 {idle}")
    IDN = optL("IDT", L, 18, 0)
    WE3 = optL("WE3", L, 0, 0) and SPX
    ntail = optL("V2T", L, 0, 0); nepi = optL("V2E", L, 6, 3)
    def gelu_store(hf):
        A0 = 32 + 32 * hf; T = A0 + 16
        for q in range(4): pk("mul", T+2*q, vr(A0+2*q,2), vr(A0+2*q,2))
        for q in range(4): pk("fma", T+2*q, vr(T+2*q,2), sr(sT2,2), vr(AUX+8,2), hi=[1,0,0])
        for q in range(4): pk("mul", T+2*q, vr(T+2*q,2), vr(A0+2*q,2))
        for i in range(8): a(f"v_exp_f32 v{T+i}, v{T+i}")
        for q in range(4): pk("add", T+2*q, vr(T+2*q,2), "1.0", hi=[1,0])
        for i in range(8): a(f"v_rcp_f32 v{T+i}, v{T+i}")
        for q in range(4): pk("mul", A0+2*q, vr(A0+2*q,2), vr(T+2*q,2))
        for q in range(4): a(f"v_cvt_pk_bf16_f32 v{T+8+q}, v{A0+2*q}, v{A0+2*q+1}")
        ws_store4(T + 8, sAUW, 1024 * hf)
    with cond():
        a(f"s_mov_b32 s{sT2}, s{sGK}")
        spec(h3a.can_issue, h3a.can_check, h3a.window, 0x50 + L, a.newlabel("SREDO"))
        stamp("canary")
        h3a.run(nxt=h3b)
        stamp("gemm_a")
        h3a.writes()
        pump.fill(pump.i + nepi)
        for q in range(4): pk("add", 32+2*q, vr(32+2*q,2), vr(B1R+2*q,2))
        h3a.reads()
        gelu_store(0)
        stamp("epi_a")
        i0 = pump.i
        def hk(s, k):
            if k == 1 and s + LKH >= 32 and (s & 1) and pump.i < i0 + ntail: pump.fill(pump.i + 1)
        h3b.run(nxt=h4a if SPX else None, hook=hk)
        assert ntail <= 5
        stamp("gemm_b")
        h3b.writes()
        n2 = pump.i
        nmid = pump.i
        if optL("EB", L, 1, 0): pump.run(pump.i if optL("EB", L, 1, 0) == 2 else min(R2, pump.i), refill=False, tmp=(AUX + 14, AUX + 15))
        cact = pump.c
        pump.fill(pump.i + optL("V2E2", L, 4, 3))
        nact = pump.i; n2 = nact - n2
        if not WE3:
            for q in range(4): pk("add", 64+2*q, vr(64+2*q,2), vr(B1R+2*q,2))
            h3b.reads()
            gelu_store(1)
        else: a.wait_lg_all()
        if SPX: h4a.late_check(0x60 + L)
        a(f"s_branch {join}")
    a.label(idle)
    pump.i, pump.c, pump.vid, pump.lid = pst
    if IDN:
        a(f"v_lshrrev_b32 v{RING}, 2, v{vL}")
        a(f"v_lshlrev_b32 v{RING}, 12, v{RING}")
        a(f"v_and_b32 v{RING+1}, 3, v{vL}")
        a(f"v_lshl_add_u32 v{RING}, v{RING+1}, 7, v{RING}")
        a(f"s_bfe_u32 s{sT0}, s{sWI}, 0x20002")
        a(f"s_mul_i32 s{sT0}, s{sT0}, {28*65536}")
        a(f"s_and_b32 s{sT1}, s{sB}, 7")
        a(f"s_lshl_b32 s{sT1}, s{sT1}, 9")
        a(f"s_add_u32 s{sT0}, s{sT0}, s{sT1}")
        a(f"v_add_u32 v{RING}, s{sT0}, v{RING}")
        a(f"s_add_u32 s{sT1}, s{sW}, s{sROT2}")
        a(f"s_add_u32 s{sT1}, s{sT1}, {28 - IDN}")
        for k in range((IDN + 3) // 4):
            a(f"s_sub_u32 s{sT2}, s{sT1}, 28")
            a(f"s_cselect_b32 s{sT1}, s{sT1}, s{sT2}")
            a(f"s_lshl_b32 s{sT2}, s{sT1}, 16")
            a(f"buffer_load_dword v31, v{RING}, {sr(SW2,4)}, s{sT2} offen")
            a(f"s_add_u32 s{sT1}, s{sT1}, 4")
    nlate = n2 if SPX else 0
    pump.fill(nmid)
    if SPX:
        poll(h4a.can_issue, h4a.can_check, 0x5e)
        h4a.window()
    pump.run(cact, refill=False, tmp=(AUX + 14, AUX + 15))
    pump.fill(nact)
    a.label(join)
    a.hist = []
    stamp(f"p3_{L}")
    a.c(f"======== P4 layer {L}")
    if L == 0:
        set_poi(56)
        tile_poison(56, sAX2W, 0, 2048)
        tile_poison(56, sAPQW, PQ[1] - PQ[0], 1024)
        kv_poison(56, 1)
    cinit = pst[1]
    NKT = opt("NKT", 10)
    def kvdma(j):
        if j == 0: a(f"s_add_u32 s{sT3}, s{sAWQT}, s{sWA}")
        if j & 3 == 0:
            a(f"s_add_u32 m0, s{sWA}, {j*1024}")
            if j: a(f"s_add_u32 s{sT3}, s{sT3}, 4096")
        return a(f"buffer_load_dwordx4 v{vL16}, {sr(SWS,4)}, s{sT3} offen offset:{(j&3)*1024} sc1 lds")
    if SPX:
        WV = opt("WV", 2); AH = optL("AH", L, 3, 4)
        pump.run(min(pump.i, pump.c + optL("PRE", L, 0, 0)), tmp=(AUX, AUX + 1))
        landed = pump.i; c0 = pump.c
        w3 = []
        if WE3:
            w3 = h3b.woven(72)
            w3 = w3[:7] + [(lambda j=j: a(f"v_add_f32 v{64+j}, v{64+j}, v{B1R+j}")) for j in range(8)] + w3[10:]
            T = 72
            for i in range(8): w3.append(lambda i=i: a(f"v_mul_f32 v{T+i}, v{64+i}, v{64+i}"))
            for i in range(8): w3.append(lambda i=i: a(f"v_fma_f32 v{T+i}, v{T+i}, s{sGK}, v{AUX+8}"))
            for i in range(8): w3.append(lambda i=i: a(f"v_mul_f32 v{T+i}, v{T+i}, v{64+i}"))
            for i in range(8): w3.append(lambda i=i: a(f"v_exp_f32 v{T+i}, v{T+i}"))
            for i in range(8): w3.append(lambda i=i: a(f"v_add_f32 v{T+i}, 1.0, v{T+i}"))
            for i in range(8): w3.append(lambda i=i: a(f"v_rcp_f32 v{T+i}, v{T+i}"))
            for i in range(8): w3.append(lambda i=i: a(f"v_mul_f32 v{64+i}, v{64+i}, v{T+i}"))
            for q in range(4): w3.append(lambda q=q: a(f"v_cvt_pk_bf16_f32 v{80+q}, v{64+2*q}, v{64+2*q+1}"))
            w3.append(lambda: ws_store4(80, sAUW, 1024))
        W3S = opt("W3S", 4)
        def hk(s, k):
            for _ in range(W3S):
                if w3:
                    f = w3.pop(0)
                    if f: f()
            if k == 1:
                lim = max(min(landed, c0 + WV * (s + 1)), min(28, s + AH))
                pump.run(lim, tmp=(AUX, AUX + 1), first=(s == 0))
            if k == 0 and s >= cinit:
                assert pump.c > s
                if not opt("NOPUMP", 0): a.wait(lg=pump.lid[s])
        h4a.run(nxt=h4b, hook=hk)
        assert not w3
    else:
        pump.run(28, tmp=(AUX, AUX + 1))
        stamp("p4_w2")
        a.wait_lg_all()
        spec(h4a.can_issue, h4a.can_check, h4a.window, 0x60 + L, a.newlabel("SREDO"))
        stamp("canary")
        h4a.run(nxt=h4b)
    stamp("gemm_a")
    def resid(hf):
        A0 = 32 + 32 * hf; XU = AUX
        for j in range(4):
            a(f"v_lshlrev_b32 v{XU+2*j}, 16, v{XR+4*hf+j}")
            a(f"v_and_b32 v{XU+2*j+1}, 0xffff0000, v{XR+4*hf+j}")
        for q in range(4): pk("add", XU+2*q, vr(XU+2*q,2), vr(vB2-1,2), lo=[0,1], hi=[1,1])
        for q in range(4): pk("add", A0+2*q, vr(A0+2*q,2), vr(XU+2*q,2))
    def out(hf):
        A0 = 32 + 32 * hf
        for q in range(4): a(f"v_cvt_pk_bf16_f32 v{XR+4*hf+q}, v{A0+2*q}, v{A0+2*q+1}")
        if L == 0: ws_store4(XR + 4 * hf, sAX2W, 2048 * hf)
        else:
            a(f"v_permlane32_swap_b32 v{XR+4*hf}, v{XR+4*hf+2}")
            a(f"v_permlane32_swap_b32 v{XR+4*hf+1}, v{XR+4*hf+3}")
            a(f"buffer_store_dwordx4 {vr(XR+4*hf,4)}, v{vOUT}, {sr(SOUT,4)}, 0 offen offset:{64*hf}")
    wv = []
    if optL("WE4", L, 1, 1):
        h4a.writes()
        wv = h4a.woven(40)
        XU = AUX
        pre = []
        for j in range(4):
            pre.append(lambda j=j: a(f"v_lshlrev_b32 v{XU+2*j}, 16, v{XR+j}"))
            pre.append(lambda j=j: a(f"v_and_b32 v{XU+2*j+1}, 0xffff0000, v{XR+j}"))
        for j in range(8): pre.append(lambda j=j: a(f"v_add_f32 v{32+j}, v{32+j}, v{vB2}"))
        for j in range(8): wv.append(lambda j=j: a(f"v_add_f32 v{32+j}, v{32+j}, v{XU+j}"))
        wv = pre[:8] + wv[:1] + wv[1:7] + pre[8:] + wv[10:]
        wv.append(lambda: out(0))
    else:
        h4a.writes(); resid(0); h4a.reads(); out(0)
    h4b.late_check(0x62 + L)
    stamp("epi_a")
    kc = [0]
    WPS = opt("WPS", 2)
    def hk(s, k):
        for _ in range(WPS if k == 1 else WPS - 1):
            if wv:
                f = wv.pop(0)
                if f: f()
        if L == 0 and k == 1 and s + LKH >= 28 and kc[0] < NKT:
            kvdma(kc[0]); kc[0] += 1
    h4b.run(hook=hk)
    assert not wv
    stamp("gemm_b")
    if L == 0 and opt("XE", 0) == 1: xa_start()
    h4b.writes()
    if L == 0 and opt("XE", 0) == 2: xa_start()
    if L == 0 and opt("KE", 2):
        while kc[0] < 12: kvdma(kc[0]); kc[0] += 1
    resid(1); h4b.reads()
    if L == 0 and opt("KE", 2) == 2:
        while kc[0] < 16: G["kvlast"] = kvdma(kc[0]); kc[0] += 1
    out(1)
    if L == 0:
        row_stats_publish(sAS2W, 32)
        for j in range(kc[0], 16): G["kvlast"] = kvdma(j)
    stamp(f"p4_{L}")

def emit_ool():
    for h, nxt, lab, back in OOL:
        a.label(lab)
        a.hist = []
        a.vm_done = a.vm
        h.window()
        h.steps(lab, force=False)
        if nxt is not None:
            if nxt.kind == 2: nxt.can_issue()
            nxt.window()
            a("s_waitcnt vmcnt(0)")
        a("s_nop 15")
        a(f"s_branch {back}")

prologue()
for L in range(2):
    p1(L); p2(L); p34(L)
finish()
a.label("L_END")
emit_ool()
a.label("L_EXIT")
a("s_endpgm")

hdr = open(f"ref.s").read().split("; Override launch")[0]
def wrap(body): return hdr + f"""; @launch grid=(256,1,1) block=(256,1,1) lds={LDS_BYTES}
.amdgcn_target "amdgcn-amd-amdhsa--gfx950"
.text
.globl {NAME}_kernel
.p2align 8
.type {NAME}_kernel,@function
{NAME}_kernel:
""" + body + f""".section .rodata,"a"
.p2align 6
.amdhsa_kernel {NAME}_kernel
  .amdhsa_next_free_vgpr 512
  .amdhsa_next_free_sgpr 102
  .amdhsa_accum_offset 256
  .amdhsa_group_segment_fixed_size 0
  .amdhsa_kernarg_size 88
  .amdhsa_user_sgpr_count 2
  .amdhsa_user_sgpr_kernarg_segment_ptr 1
  .amdhsa_system_sgpr_workgroup_id_x 1
  .amdhsa_float_denorm_mode_32 3
.end_amdhsa_kernel
"""
lines = a.out
if opt("ALN", 32):
    from align import align
    lines, st = align(lines, wrap, B=opt("ALN", 32), NOPC=opt("NOPC", 150))
    print("align: straddles %d -> %d, widened %d, bytes %d -> %d" % st, file=sys.stderr)
out = wrap("\n".join(lines) + "\n")
outp = [x for x in sys.argv[1:] if x.endswith(".s")]
open(outp[0], "w").write(out)
if DIAG: open(outp[0] + ".stamps", "w").write("\n".join(stamp_names))
if DIAG: open(outp[0] + ".sites", "w").write(" ".join(site_names))
```

```python
import sys, struct
from contextlib import contextmanager
from asmlib import Asm, vr, ar, sr

NAME = "interleave_layers__linear_attn_block__mixer_token_mlp__prompt"
DIAG = "--diag" in sys.argv
OPT = {}
for a_ in sys.argv:
    if a_.startswith("-D"):
        k_, v_ = a_[2:].split("="); OPT[k_] = int(v_)
def opt(k, d): return OPT.get(k, d)
def optL(k, L, d0, d1): return OPT.get(f"{k}_{L}", (d0, d1)[L])
def f2u(x): return struct.unpack("<I", struct.pack("<f", x))[0]
def fl(x): return "0x%08x" % f2u(x)
FULL = (1 << 64) - 1
LOG2E = 1.4426950408889634

KVF = [0x2000, 0xC0000]; KVP = [0x8000, 0xC6000]; ST = [0x166000, 0x1A6000]; ST2 = 0x1E6000
SELFP = 0xC0000
PQ = [0x400000, 0x600000]; HT = [0x800000, 0xA00000]; U = [0xC00000, 0xE00000]; X2 = 0x1000000
WQT = 0x1200000
TS = 0x1400000
DUMP = 0x1500000
ERRS = 0x1520000
NONCE = 0x0; TAGQ = 0x1540000
WS_BYTES = 268435456
L_A = 32768; L_B = 98304; LDS_BYTES = 163840
NS = 6; SCR = 12288
sW = 3
SX, SWQKV, SWO, SW1, SW2, SWS, SOUT, SDBG, SB1, SB2, SCODE = 4, 8, 12, 16, 20, 24, 28, 32, 36, 40, 44
sST, sDT, sRB, sHP, sDT3, sFT, sP3, sRH, sKH, sWB, sTO, sONES = 48, 49, 50, 51, 52, 53, 54, 55, 56, 57, 58, 59
sEPS6 = 60; sB = 61
sT0, sT1, sT2, sT3, sT4, sT5 = 62, 63, 64, 65, 66, 67
sSO = 68; sW1K = 69; sTS = 70
sL2E = 74; sWA = 75; sROTX = 76; sROT1 = 77; sROT2 = 78; sRED = 79; sWOFF = 80; sKB = 81; sXC = 82; sWI = 83
sKA = 84
sAKVP, sAPQW, sAPQR, sAKVF, sASTW, sASTR, sAHTW, sAHTR, sAUW, sAUR, sAX2W, sAX2R, sAS2W, sAS2R, sAWQT, sGK = range(84, 100)
sDUM = 100; sNON = 101; sRX0 = 73
vL, vL16, vTA, vTB, vT0, vT1, vT2, vT3 = 0, 1, 2, 3, 4, 5, 6, 7
XR = 8
CKP, CVP, CQP, vB2, vRS, vHH, vOUT, vTSV = 16, 17, 18, 19, 20, 21, 22, 23
vWA, vWB, vWTA, vWTB = 24, 25, 26, 27
MA = 28

a = Asm()
stamp_names = []
G = {}

@contextmanager
def cond():
    st = (a.vm, a.vm_done, a.lg, a.lg_done); h = list(a.hist)
    yield
    a.vm, a.vm_done, a.lg, a.lg_done = st[0], min(st[1], st[0]), st[2], min(st[3], st[2])
    a.hist = h

COLD = []
@contextmanager
def cold(label, back=None):
    st = (a.vm, a.vm_done, a.lg, a.lg_done, list(a.hist)); main = a.out
    a.out = []
    a.label(label)
    yield
    if back:
        a("s_nop 1")
        a(f"s_branch {back}")
    COLD.extend(a.out)
    a.out = main
    a.vm, a.vm_done, a.lg, a.lg_done, a.hist = st

def stamp(name):
    if not DIAG: return
    if "--lite" in sys.argv and name not in ("start", "end", "p4_0"): return
    k = len(stamp_names); stamp_names.append(name)
    if opt("CYC", 0) and name not in ("start", "end"): a(f"s_memtime {sr(sTS,2)}")
    else: a(f"s_memrealtime {sr(sTS,2)}")
    if name in ("start", "end"): a(f"s_memtime s[0:1]") if name == "end" else a(f"s_memtime {sr(sTS+2,2)}")
    a("s_waitcnt lgkmcnt(0)"); a.lg_done = a.lg
    a(f"v_writelane_b32 v{vTSV}, s{sTS}, {k}")
    if name in ("start", "end"): a(f"v_writelane_b32 v{vTSV}, s{sTS+2 if name == 'start' else 0}, {62 if name == 'start' else 63}")

def srd(base, ptr, nbytes):
    a(f"s_mov_b32 s{base}, s{ptr}")
    a(f"s_and_b32 s{base+1}, s{ptr+1}, 0xffff")
    a(f"s_mov_b32 s{base+2}, {nbytes:#x}")
    a(f"s_mov_b32 s{base+3}, 0x20000")

def set_exec(mask):
    if mask == FULL: a("s_mov_b64 exec, -1")
    elif mask <= 64: a(f"s_mov_b64 exec, {mask}")
    else:
        a(f"s_mov_b32 exec_lo, {mask & 0xffffffff:#x}"); a(f"s_mov_b32 exec_hi, {mask >> 32:#x}")

def lin(dst, terms, const=0):
    first = True
    for r, m in terms:
        t = dst if first else sT5
        if m == 1 and not first: a(f"s_add_u32 s{dst}, s{dst}, s{r}"); continue
        if m & (m - 1) == 0: a(f"s_lshl_b32 s{t}, s{r}, {m.bit_length()-1}")
        else: a(f"s_mul_i32 s{t}, s{r}, {m}")
        if not first: a(f"s_add_u32 s{dst}, s{dst}, s{sT5}")
        first = False
    if const: a(f"s_add_u32 s{dst}, s{dst}, {const:#x}")

def timeout_path(code):
    a(f"s_mov_b32 s{sTO}, 0")
    if DIAG:
        a(f"v_mov_b32 v{vT3}, {code}")
        a(f"s_mov_b32 s{sT5}, {ERRS:#x}")
        a(f"buffer_store_dword v{vT3}, off, {sr(SWS,4)}, s{sT5}")
        a("s_waitcnt vmcnt(0)")

def poll_loop(issue, check, code, done):
    top = a.newlabel("POLL"); go = a.newlabel("PGO")
    a.label(top)
    mark(f"retry{code:x}")
    if opt("PS", 2) and not (code == 0x20 and opt("A1NS", 1)): a(f"s_sleep {opt('PS', 2)}")
    a(f"s_sub_u32 s{sTO}, s{sTO}, 1")
    a(f"s_cbranch_scc0 {go}")
    timeout_path(code)
    a(f"s_branch {done}")
    a.label(go)
    issue()
    a.wait_vm_all(force=True)
    check()
    a(f"s_cbranch_vccnz {top}")
    a(f"s_branch {done}")

def poll(issue, check, code, pre=None):
    done = a.newlabel("PDONE"); rt = a.newlabel("PRT")
    if pre is not None: a.wait(vm=pre)
    else:
        issue()
        a.wait_vm_all(force=True)
    check()
    a(f"s_cbranch_vccnz {rt}")
    with cold(rt): poll_loop(issue, check, code, done)
    a.label(done)

def fallback(issue, check, code, reissue, name):
    fb = a.newlabel("FB"); back = a.newlabel("FBB"); mid = a.newlabel("FBM"); first = a.newlabel("FBF")
    force_fail("FRC")
    a(f"s_cbranch_vccnz {fb}")
    with cold(fb, back):
        mark(name)
        issue()
        a.wait_vm_all(force=True)
        check()
        a(f"s_cbranch_vccz {mid}")
        poll_loop(issue, check, code, mid)
        a.label(mid)
        reissue()
        a("s_waitcnt vmcnt(0)")
    a.label(back)

def poll1(addr, code, tmp=None, tag=False):
    cmp = (lambda r: a(f"v_cmp_ne_u32 vcc, s{sNON}, v{r}")) if tag else (lambda r: a(f"v_cmp_eq_u32 vcc, -1, v{r}"))
    if tmp is None or not opt("PP", 0):
        poll(lambda: a(f"buffer_load_dword v{vT3}, {addr} sc1"), lambda: cmp(vT3), code)
        return
    top = a.newlabel("PP"); done = a.newlabel("PPD")
    a(f"buffer_load_dword v{vT3}, {addr} sc1")
    a(f"s_nop {opt('PPN', 15)}")
    a.label(top)
    for r, o in ((vT3, tmp), (tmp, vT3)):
        a(f"buffer_load_dword v{o}, {addr} sc1")
        a("s_waitcnt vmcnt(1)")
        cmp(r)
        a(f"s_cbranch_vccz {done}")
    h = list(a.hist)
    a(f"s_sub_u32 s{sTO}, s{sTO}, 2")
    a(f"s_cbranch_scc0 {top}")
    timeout_path(code)
    a.label(done)
    a.hist = h
    a.vm -= 1
    a.vm_done = a.vm - 1

SLD = {}
SPD = {0x50: 1, 0x51: 1, 0x60: 1, 0x61: 1, 0x36: 1, 0x38: 1, 0x39: 1, 0x40: 1}
def spec(can_issue, can_check, window, code, redo, on=True):
    d = OPT.get(f"SL{code:x}", SLD.get(code, 0))
    if d: a(f"s_sleep {d}")
    on = OPT.get(f"SP{code:x}", SPD.get(code, 0))
    go = a.newlabel("GO")
    if on:
        can_issue(); cid = a.vm - 1
        window()
        a.wait(vm=cid)
        can_check()
        keep = snapshot_ids()
        fallback(can_issue, can_check, code, window, f"fb{code:x}")
        restore_ids(keep)
    else:
        poll(can_issue, can_check, code)
        window()
    keep = snapshot_ids()
    with cold(redo, go):
        window()
        a("s_waitcnt vmcnt(0)")
    restore_ids(keep)
    a.label(go)

IDMAPS = []
def snapshot_ids(): return [dict(m) for m in IDMAPS]
def restore_ids(k):
    for m, v in zip(IDMAPS, k):
        m.clear(); m.update(v)

site_names = []
def mark(name):
    if not (DIAG and opt("CNT", 0)): return
    if name.startswith("retry") and name not in ("retry20", "retry34", "retry35", "retry37"): return
    k = len(site_names); site_names.append(name)
    a(f"s_bitset1_b32 s2, {k}")
force_n = [0]
def force_fail(kind):
    if not opt(kind, 0): return
    k = force_n[0] % 32; force_n[0] += 1
    l = a.newlabel("FF")
    a(f"s_bitcmp1_b32 s2, {k}")
    a(f"s_cbranch_scc1 {l}")
    a(f"s_bitset1_b32 s2, {k}")
    a("s_mov_b64 vcc, 1")
    a.label(l)

def verify(vMX, redo, force=True):
    ok = a.newlabel("VOK"); bad = a.newlabel("VBAD")
    a(f"v_cmp_eq_u32 vcc, -1, v{vMX}")
    if force: force_fail("FRV")
    a(f"s_cbranch_vccnz {bad}")
    with cold(bad, ok):
        if force: mark("redo")
        a("s_waitcnt vmcnt(0)")
        a(f"s_sub_u32 s{sTO}, s{sTO}, 64")
        a(f"s_cbranch_scc0 {redo}")
        a(f"s_mov_b32 s{sTO}, 0")
        a("s_nop 15")
    a.label(ok)

def finish():
    if opt("AMP", -1) >= 0:
        lp = a.newlabel("AMPL"); sk = a.newlabel("AMPS")
        stamp("pre_end")
        a(f"s_cmp_lg_u32 s{sB}, 77")
        a(f"s_cbranch_scc1 {sk}")
        a(f"v_readlane_b32 s{sT0}, v{vTSV}, 0")
        a(f"v_readlane_b32 s{sT1}, v{vTSV}, {opt('AMP', 0)}")
        a(f"s_memrealtime s[70:71]")
        a("s_waitcnt lgkmcnt(0)")
        a(f"s_sub_u32 s{sT1}, s{sT1}, s{sT0}")
        a(f"s_lshl_b32 s{sT1}, s{sT1}, 2")
        a(f"s_add_u32 s{sT1}, s70, s{sT1}")
        a.label(lp)
        a(f"s_memrealtime s[70:71]")
        a("s_waitcnt lgkmcnt(0)")
        a(f"s_sub_u32 s{sT2}, s70, s{sT1}")
        a(f"s_cmp_lt_i32 s{sT2}, 0")
        a(f"s_cbranch_scc1 {lp}")
        a.label(sk)
    if DIAG:
        a(f"v_writelane_b32 v{vTSV}, s{sTO}, 61")
        if opt("CNT", 0): a(f"v_writelane_b32 v{vTSV}, s2, 60")
        stamp("end")
        lin(sT0, [(sB, 1024), (sW, 256)], TS)
        a(f"v_lshlrev_b32 v{vT0}, 2, v{vL}")
        a(f"buffer_store_dword v{vTSV}, v{vT0}, {sr(SWS,4)}, s{sT0} offen")
    a("s_endpgm")

def pk(op, d, x, y, z=None, hi=None, lo=None):
    ops = [x, y] + ([z] if z is not None else [])
    m = ""
    if lo: m += " op_sel:[" + ",".join(map(str, lo)) + "]"
    if hi: m += " op_sel_hi:[" + ",".join(map(str, hi)) + "]"
    a(f"v_pk_{op}_f32 {vr(d,2)}, " + ", ".join(ops) + m)

def mfma(d, A, B, C):
    a(f"v_mfma_f32_32x32x16_bf16 {d}, {A}, {B}, {C}")

def ws_store4(reg, soff, off=0): return a(f"buffer_store_dwordx4 {vr(reg,4)}, v{vL16}, {sr(SWS,4)}, s{soff} offen offset:{off} sc1")

def tr_base(dst_a, dst_b, sel64, sel32, region):
    a(f"v_bfe_u32 v{vT0}, v{vL}, 2, 2")
    a(f"v_lshl_add_u32 v{vT0}, v{vHH}, 2, v{vT0}")
    a(f"v_lshlrev_b32 v{dst_a}, 7, v{vT0}")
    a(f"v_bfe_u32 v{vT1}, v{vL}, 3, 1")
    a(f"v_lshl_add_u32 v{dst_a}, v{vT1}, 6, v{dst_a}")
    a(f"v_bfe_u32 v{vT1}, v{vL}, 4, 1")
    a(f"v_lshl_add_u32 v{dst_a}, v{vT1}, 5, v{dst_a}")
    a(f"v_and_b32 v{vT1}, 3, v{vL}")
    a(f"v_lshl_add_u32 v{dst_a}, v{vT1}, 3, v{dst_a}")
    for sel, sh in ((sel64, 6), (sel32, 5)):
        if sel is not None:
            a(f"s_lshl_b32 s{sT5}, s{sel}, {sh}")
            a(f"v_xor_b32 v{dst_a}, s{sT5}, v{dst_a}")
    a(f"v_add_u32 v{dst_a}, {region}, v{dst_a}")
    a(f"v_xor_b32 v{dst_b}, 64, v{dst_a}")

def dma_voff(dst, dst2, pitch, scol):
    a(f"v_lshrrev_b32 v{vT0}, 3, v{vL}")
    a(f"v_mul_u32_u24 v{dst}, {pitch}, v{vT0}")
    a(f"v_bfe_u32 v{vT1}, v{vL}, 4, 1")
    a(f"v_lshlrev_b32 v{vT1}, 2, v{vT1}")
    a(f"v_and_b32 v{vT0}, 7, v{vL}")
    a(f"v_xor_b32 v{vT0}, v{vT0}, v{vT1}")
    a(f"v_lshl_add_u32 v{dst}, v{vT0}, 4, v{dst}")
    a(f"v_add_u32 v{dst}, s{scol}, v{dst}")
    a(f"v_add_u32 v{dst2}, {8*pitch-1024}, v{dst}")

R1, R2 = 16, 11
def wreg(kind, t, j, n):
    r, base = (R1, 0) if kind == 1 else (R2, R1 * 8)
    if t < r: return ar(base + 8 * t + j, n)
    t -= r
    if t < 5: return ar(216 + 8 * t + j, n)
    return vr(160 + 8 * (t - 5) + j, n)

class Pump:
    def setup(self, kind, L, extra=0):
        self.kind = kind
        self.pitch, self.srd, self.n = (3584, SW1, 32) if kind == 1 else (4096, SW2, 28)
        self.t0 = 0 if L == 0 else (R1 if kind == 1 else R2)
        self.extra = extra
        self.ns = opt("NS1", 6) if kind == 1 else NS
        self.i = self.t0; self.c = self.t0; self.vid = {}; self.lid = {}
        a.c(f"pump setup W{kind}")
        a(f"s_lshl_b32 s{sT5}, s{sKH}, 5")
        a(f"v_xor_b32 v{vWTA}, s{sT5}, v{vWTA}")
        a(f"v_xor_b32 v{vWTB}, s{sT5}, v{vWTB}")
        lin(sT4, [(sFT if kind == 1 else sST, 128), (sW, self.n * 16 * self.pitch)])
        dma_voff(vWA, vWB, self.pitch, sT4)
        rot = sROT1 if kind == 1 else sROT2
        a(f"s_add_u32 s{sT5}, s{rot}, {self.t0}")
        a(f"s_sub_u32 s{sWOFF}, s{sT5}, {self.n}")
        a(f"s_cselect_b32 s{sWOFF}, s{sT5}, s{sWOFF}")
        a(f"s_mul_i32 s{sWOFF}, s{sWOFF}, {16*self.pitch}")
    def place(self, t):
        k = t - self.t0
        if k < self.extra: return ("B", k * 2048)
        return ("A", ((k - self.extra) % self.ns) * 2048)
    def prev_user(self, t):
        p = t - self.ns
        return p if p - self.t0 >= self.extra else None
    def room(self, lag=0):
        p = self.prev_user(self.i)
        return p is None or p < self.c - lag
    def issue1(self):
        t = self.i
        if opt("NOPUMP", 0):
            self.vid[t] = None; self.i += 1; return
        p = self.prev_user(t)
        if p is not None: a.wait(lg=self.lid[p])
        reg, o = self.place(t)
        a(f"s_add_u32 m0, s{sWB if reg == 'B' else sWA}, {o}")
        if t > self.t0:
            a(f"s_add_u32 s{sWOFF}, s{sWOFF}, {16*self.pitch}")
            a(f"s_cmp_eq_u32 s{sWOFF}, {self.n*16*self.pitch}")
            a(f"s_cselect_b32 s{sWOFF}, 0, s{sWOFF}")
        a(f"buffer_load_dwordx4 v{vWA}, {sr(self.srd,4)}, s{sWOFF} offen lds")
        self.vid[t] = a(f"buffer_load_dwordx4 v{vWB}, {sr(self.srd,4)}, s{sWOFF} offen offset:1024 lds")
        self.i += 1
    def fill(self, upto=None):
        lim = self.n if upto is None else min(self.n, upto)
        while self.i < lim and self.room(): self.issue1()
    def run(self, target, refill=True, tmp=(vT0, vT1), first=True):
        target = min(target, self.n)
        haveB = not first
        while self.c < target:
            t = self.c
            if t >= self.i: self.issue1()
            if opt("NOPUMP", 0):
                self.c += 1; continue
            reg, o = self.place(t)
            ta, tb = vWTA, vWTB
            if reg == "B":
                ta, tb = tmp
                if not haveB:
                    a(f"v_add_u32 v{ta}, 65536, v{vWTA}"); a(f"v_add_u32 v{tb}, 65536, v{vWTB}"); haveB = True
            a.wait(vm=self.vid[t])
            a(f"ds_read_b64_tr_b16 {wreg(self.kind,t,0,2)}, v{ta} offset:{o}")
            a(f"ds_read_b64_tr_b16 {wreg(self.kind,t,2,2)}, v{ta} offset:{o+1024}")
            a(f"ds_read_b64_tr_b16 {wreg(self.kind,t,4,2)}, v{tb} offset:{o}")
            self.lid[t] = a(f"ds_read_b64_tr_b16 {wreg(self.kind,t,6,2)}, v{tb} offset:{o+1024}")
            self.c += 1
            lim = self.n if refill else target
            if self.i < lim and self.room(lag=1): self.issue1()
        if refill: self.fill()
pump = Pump()

def prologue():
    a(f"s_cmp_ge_u32 s2, 256")
    a(f"s_cbranch_scc1 L_EXIT")
    a(f"s_load_dwordx16 {sr(sKA,16)}, s[0:1], 0")
    a(f"s_load_dwordx4 {sr(SCODE,4)}, s[0:1], 64")
    a(f"s_load_dwordx2 s[100:101], s[0:1], 80")
    a(f"s_mov_b32 s{sB}, s2")
    if opt("CNT", 0): a("s_mov_b32 s2, 0")
    if opt("FRV", 0) or opt("FRC", 0): a("s_mov_b32 s2, 0")
    a(f"v_lshrrev_b32 v{vT0}, 6, v0")
    a(f"v_and_b32 v{vL}, 63, v0")
    a(f"v_readfirstlane_b32 s{sW}, v{vT0}")
    a(f"v_lshlrev_b32 v{vL16}, 4, v{vL}")
    a(f"v_lshrrev_b32 v{vHH}, 5, v{vL}")
    if opt("CODEPF", 2) == 2:
        a(f"s_getpc_b64 {sr(SB1,2)}")
        a.label("L_PC")
        a(f"s_and_b32 s{SB1+1}, s{SB1+1}, 0xffff")
        a(f"s_mov_b32 s{SB1+2}, L_END - L_PC")
        a(f"s_mov_b32 s{SB1+3}, 0x20000")
        a(f"s_lshr_b32 s{sT0}, s{sB}, 3")
        a(f"s_lshl_b32 s{sT0}, s{sT0}, 2")
        a(f"s_add_u32 s{sT0}, s{sT0}, s{sW}")
        a(f"s_lshl_b32 s{sT0}, s{sT0}, 10")
        a(f"buffer_load_dwordx4 {ar(252,4)}, v{vL16}, {sr(SB1,4)}, s{sT0} offen")
    if DIAG: a(f"v_mov_b32 v{vTSV}, 0")
    stamp("start")
    X_, I_ = sT0, sT1
    a(f"s_and_b32 s{X_}, s{sB}, 7")
    a(f"s_lshr_b32 s{I_}, s{sB}, 3")
    a(f"s_lshr_b32 s{sT2}, s{I_}, 3")
    a(f"s_and_b32 s{sDT}, s{I_}, 7")
    a(f"s_and_b32 s{sRB}, s{X_}, 3")
    a(f"s_lshl_b32 s{sRB}, s{sRB}, 2")
    a(f"s_add_u32 s{sRB}, s{sRB}, s{sT2}")
    a(f"s_lshr_b32 s{sHP}, s{X_}, 2")
    a(f"s_lshl_b32 s{sHP}, s{sHP}, 3")
    a(f"s_add_u32 s{sHP}, s{sHP}, s{sDT}")
    a(f"s_lshr_b32 s{sROTX}, s{sDT}, 1")
    a(f"s_add_u32 s{sROTX}, s{sROTX}, s{sT2}")
    a(f"s_and_b32 s{sROTX}, s{sROTX}, 3")
    a(f"s_lshl_b32 s{sROTX}, s{sROTX}, 1")
    a(f"s_and_b32 s{sT3}, s{I_}, 1")
    a(f"s_add_u32 s{sROTX}, s{sROTX}, s{sT3}")
    a(f"s_and_b32 s{sRX0}, s{sROTX}, {opt('RXM', 6)}")
    a(f"s_lshl_b32 s{sW1K}, s{sW}, 10")
    a(f"s_lshl_b32 s{sWB}, s{sW}, 14")
    a(f"s_add_u32 s{sWA}, s{sWB}, {L_A}")
    a(f"s_add_u32 s{sWB}, s{sWB}, {L_B}")

def roles2():
    X_, I_ = sT0, sT1
    a(f"s_and_b32 s{X_}, s{sB}, 7")
    a(f"s_lshr_b32 s{I_}, s{sB}, 3")
    a(f"s_lshr_b32 s{sT2}, s{I_}, 3")
    a(f"s_lshl_b32 s{sST}, s{X_}, 2")
    a(f"s_add_u32 s{sST}, s{sST}, s{sT2}")
    a(f"s_lshr_b32 s{sT3}, s{X_}, 1")
    a(f"s_mul_i32 s{sT3}, s{sT3}, 7")
    a(f"s_and_b32 s{sT4}, s{X_}, 1")
    a(f"s_lshl_b32 s{sT5}, s{sT4}, 2")
    a(f"s_add_u32 s{sFT}, s{sT3}, s{sT5}")
    a(f"s_add_u32 s{sFT}, s{sFT}, s{sT2}")
    a(f"s_and_b32 s{sP3}, s{I_}, 3")
    a(f"s_add_u32 s{sT5}, s{sT5}, s{sP3}")
    a(f"s_add_u32 s{sKB}, s{sT3}, 3")
    a(f"s_cmp_lt_u32 s{I_}, 24")
    a(f"s_cselect_b32 s{sFT}, s{sFT}, s{sKB}")
    a(f"s_cselect_b32 s{sDT3}, s{sDT}, s{sT5}")
    a(f"s_mul_i32 s{sT4}, s{sT4}, 3")
    a(f"s_add_u32 s{sXC}, s{sT3}, s{sT4}")
    a(f"s_lshl_b32 s{sROT1}, s{X_}, 2")
    a(f"s_and_b32 s{sT3}, s{I_}, 3")
    a(f"s_lshr_b32 s{sP3}, s{I_}, 2")
    a(f"s_lshl_b32 s{sWI}, s{I_}, 2")
    a(f"s_add_u32 s{sWI}, s{sWI}, s{sW}")
    a(f"s_lshl_b32 s{sRED}, s{X_}, 2")
    a(f"s_add_u32 s{sRED}, s{sRED}, s{sT3}")
    a(f"s_lshl_b32 s{sRED}, s{sRED}, 1")
    a(f"s_add_u32 s{sRED}, s{sRED}, s{sW}")
    a(f"s_cmp_lt_u32 s{sW}, 2")
    a(f"s_cselect_b32 s{sRED}, s{sRED}, 99")
    a(f"s_cmp_eq_u32 s{sP3}, 7")
    a(f"s_cselect_b32 s{sRED}, s{sRED}, 99")
    a(f"s_mul_i32 s{sROT2}, s{X_}, 7")
    a(f"s_lshr_b32 s{sROT2}, s{sROT2}, 2")
    a(f"s_lshl_b32 s{sROT2}, s{sROT2}, 1")
    if opt("MAP", 0):
        a(f"s_and_b32 s{sT2}, s{X_}, 1")
        a(f"s_lshl_b32 s{sT2}, s{sT2}, 2")
        a(f"s_and_b32 s{sT3}, s{I_}, 3")
        a(f"s_lshr_b32 s{sT5}, s{X_}, 1")
        a(f"s_add_u32 s{sT4}, s{sP3}, s{sT3}")
        a(f"s_and_b32 s{sT4}, s{sT4}, {opt('MROT', 1)}")
        if opt("MAP", 0) & 1:
            a(f"s_add_u32 s{sDT3}, s{sT2}, s{sT3}")
            a(f"s_mul_i32 s{sFT}, s{sT5}, 7")
            a(f"s_add_u32 s{sFT}, s{sFT}, s{sP3}")
            a(f"s_lshl_b32 s{sROT1}, s{sT4}, 4")
        if opt("MAP", 0) & 2:
            a(f"s_add_u32 s{sDT}, s{sT2}, s{sT3}")
            a(f"s_lshl_b32 s{sST}, s{sT5}, 3")
            a(f"s_add_u32 s{sST}, s{sST}, s{sP3}")
            a(f"s_mul_i32 s{sROT2}, s{sT4}, 14")
    a(f"s_lshr_b32 s{sRH}, s{sW}, 1")
    a(f"s_and_b32 s{sKH}, s{sW}, 1")
    a(f"s_mov_b32 s{sTO}, 400000")
    a(f"s_mov_b32 s{sONES}, 0x3f803f80")
    a(f"s_mov_b32 s{sEPS6}, {fl(1e-6)}")
    a(f"s_mov_b32 s{sL2E}, {fl(LOG2E)}")

def late_srds():
    srd(SWO, sKA + 4, 512 * 512 * 2)
    srd(SW1, sKA + 8, 2048 * 1792 * 2)
    srd(SB1, sKA + 10, 1792 * 2)
    srd(SW2, sKA + 12, 1792 * 2048 * 2)
    srd(SB2, sKA + 14, 2048 * 2)
    srd(SOUT, SCODE, 2048 * 512 * 2)
    srd(SDBG, SCODE + 2, 256)

def code_prefetch():
    if opt("CODEPF", 2) == 1:
        a(f"s_getpc_b64 {sr(SCODE,2)}")
        a.label("L_PC")
        a(f"s_and_b32 s{SCODE+1}, s{SCODE+1}, 0xffff")
        a(f"s_mov_b32 s{SCODE+2}, L_END - L_PC")
        a(f"s_mov_b32 s{SCODE+3}, 0x20000")
        a(f"s_lshl_b32 s{sT0}, s{sWI}, 10")
        a(f"buffer_load_dwordx4 {ar(252,4)}, v{vL16}, {sr(SCODE,4)}, s{sT0} offen")
    srd(SCODE, SW1, 2048 * 1792 * 2)
    a(f"s_cmp_eq_u32 s{sP3}, 7")
    a(f"s_cselect_b32 s{SW1+2}, 0, s{SW1+2}")

def addresses():
    lin(sAKVP, [(sHP, 64 * 640), (sRB, 4 * 640), (sW, 640)], KVP[0])
    lin(sAPQW, [(sRB, 4 * 32768), (sW, 32768), (sHP, 2048)], PQ[0])
    lin(sAPQR, [(sST, 65536), (sRH, 32768), (sKH, 16384)], PQ[0])
    lin(sAKVF, [(sKH, 16 * 768)], KVF[0])
    lin(sASTW, [(sST, 8192), (sDT, 1024), (sKH, 512), (sRH, 256)], ST[0])
    lin(sASTR, [(sST, 8192), (sRH, 256)], ST[0])
    lin(sAHTW, [(sDT, 262144), (sST, 8192), (sRH, 4096), (sKH, 256)], HT[0])
    lin(sAHTR, [(sDT3, 262144), (sW, 65536)], HT[0])
    lin(sAUW, [(sDT3, 229376), (sFT, 8192), (sRH, 4096), (sKH, 2048)], U[0])
    a(f"s_cmp_eq_u32 s{sP3}, 7")
    a(f"s_cselect_b32 s{sAUW}, {WS_BYTES:#x}, s{sAUW}")
    lin(sAUR, [(sDT, 229376), (sW, 57344)], U[0])
    lin(sAX2W, [(sST, 65536), (sRH, 32768), (sDT, 4096), (sKH, 1024)], X2)
    lin(sAX2R, [(sRB, 4 * 32768), (sW, 32768)], X2)
    a(f"s_add_u32 s{sAS2W}, s{sASTW}, {ST2 - ST[0]:#x}")
    lin(sAS2R, [(sRB, 2 * 8192), (sRH, 8192), (sKH, 256)], ST2)
    lin(sAWQT, [(sHP, 98304)], WQT)
    a(f"s_mov_b32 s{sGK}, {fl(-2.0 * 0.7978845608028654 * LOG2E * 0.044715)}")

def next_layer_addresses():
    for r, d in ((sAKVP, KVP[1] - KVP[0]), (sAPQW, PQ[1] - PQ[0]), (sAPQR, PQ[1] - PQ[0]), (sAKVF, KVF[1] - KVF[0]),
                 (sASTW, ST[1] - ST[0]), (sASTR, ST[1] - ST[0]), (sAHTW, HT[1] - HT[0]), (sAHTR, HT[1] - HT[0]),
                 (sAUW, U[1] - U[0]), (sAUR, U[1] - U[0])):
        a(f"s_add_u32 s{r}, s{r}, {d:#x}")

def kv_poison(P, L):
    r = sAKVP
    if L == 1:
        a(f"s_add_u32 s{sT1}, s{sAKVP}, {KVP[1]-KVP[0]:#x}"); r = sT1
    set_exec((1 << 40) - 1)
    ws_store4(P, r)
    a(f"s_mul_i32 s{sT0}, s{sRED}, 384")
    a(f"s_add_u32 s{sT0}, s{sT0}, {KVF[L]:#x}")
    a(f"s_cmp_ge_u32 s{sRED}, 64")
    a(f"s_cselect_b32 s{sT0}, {WS_BYTES:#x}, s{sT0}")
    set_exec((1 << 24) - 1)
    ws_store4(P, sT0)
    set_exec(FULL)
def ht_voff(dst):
    a(f"v_and_b32 v{dst}, 15, v{vL}")
    a(f"v_lshlrev_b32 v{dst}, 4, v{dst}")
    a(f"v_lshl_add_u32 v{dst}, v{vHH}, 9, v{dst}")
    a(f"v_bfe_u32 v{vT0}, v{vL}, 4, 1")
    a(f"v_lshl_add_u32 v{dst}, v{vT0}, 10, v{dst}")
def tile_poison(P, r, delta, step):
    v = vL16
    if r == sAHTW:
        ht_voff(vT1); v = vT1
    if delta:
        a(f"s_add_u32 s{sT0}, s{r}, {delta:#x}"); r = sT0
    for f in range(2): a(f"buffer_store_dwordx4 {vr(P,4)}, v{v}, {sr(SWS,4)}, s{r} offen offset:{step*f} sc1")
def canary_poison(P):
    lines = ((sAHTW, 2048+1024+512+128), (sAUW, 896), (sAUW, 1024+896), (sAHTW, HT[1]-HT[0]+2048+1024+512+128),
             (sAUW, U[1]-U[0]+896), (sAUW, U[1]-U[0]+1024+896), (sAPQW, PQ[1]-PQ[0]+1024+896), (sAX2W, 896))
    a(f"v_lshrrev_b32 v{vT0}, 3, v{vL}")
    for g, (r, d) in enumerate(lines):
        a(f"s_add_u32 s{sT0}, s{r}, {d:#x}")
        if g == 0: a(f"v_mov_b32 v{vT1}, s{sT0}")
        else:
            a(f"v_mov_b32 v{vT2}, s{sT0}")
            a(f"v_cmp_eq_u32 vcc, {g}, v{vT0}")
            a(f"v_cndmask_b32 v{vT1}, v{vT1}, v{vT2}, vcc")
    a(f"v_and_b32 v{vT0}, 7, v{vL}")
    a(f"v_lshl_add_u32 v{vT1}, v{vT0}, 4, v{vT1}")
    a(f"buffer_store_dwordx4 {vr(P,4)}, v{vT1}, {sr(SWS,4)}, 0 offen sc1")
def st_poison(P):
    lin(sT0, [(sB, 3072), (sW, 768)], ST[0])
    set_exec((1 << 48) - 1)
    ws_store4(P, sT0)
    set_exec(FULL)
def set_poi(P):
    for i in range(4): a(f"v_mov_b32 v{P+i}, -1")

def misc_loads():
    lin(sT0, [(sST, 64), (sRH, 32)])
    a(f"v_and_b32 v{vT0}, 31, v{vL}")
    a(f"v_add_u32 v{vT0}, s{sT0}, v{vT0}")
    a(f"v_lshlrev_b32 v{vT1}, 1, v{vT0}")
    a(f"buffer_load_ushort v{vB2}, v{vT1}, {sr(SB2,4)}, 0 offen")
    a(f"v_lshlrev_b32 v{vT0}, 10, v{vT0}")
    a(f"v_lshl_add_u32 v{vOUT}, v{vHH}, 4, v{vT0}")
    lin(sT0, [(sDT, 128), (sKH, 32)])
    a(f"v_add_u32 v{vOUT}, s{sT0}, v{vOUT}")
    a(f"buffer_load_dwordx4 {vr(XR,4)}, v{vOUT}, {sr(SX,4)}, 0 offen")
    a(f"buffer_load_dwordx4 {vr(XR+4,4)}, v{vOUT}, {sr(SX,4)}, 0 offen offset:64")

def touch(srdn, rows_per_wave, lg, pitch, scol_emit, dst):
    n = rows_per_wave << lg
    scol_emit()
    a(f"v_min_u32 v{vT0}, {n-1}, v{vL}")
    a(f"v_lshrrev_b32 v{vT1}, {lg}, v{vT0}")
    a(f"v_mul_u32_u24 v{vT1}, {pitch}, v{vT1}")
    a(f"v_and_b32 v{vT0}, {(1<<lg)-1}, v{vT0}")
    a(f"v_lshl_add_u32 v{vT0}, v{vT0}, 7, v{vT1}")
    a(f"s_mul_i32 s{sT5}, s{sWI}, {rows_per_wave*pitch}")
    a(f"s_add_u32 s{sT4}, s{sT4}, s{sT5}")
    a(f"buffer_load_dword {dst}, v{vT0}, {sr(srdn,4)}, s{sT4} offen")
def touch_w1(dst): touch(SCODE, 16, 2, 3584, lambda: a(f"s_lshl_b32 s{sT4}, s{sXC}, 7"), dst)
def touch_w2(dst):
    def c2():
        a(f"s_and_b32 s{sT4}, s{sB}, 7"); a(f"s_lshl_b32 s{sT4}, s{sT4}, 9")
    touch(SW2, 16, 2, 4096, c2, dst)
def touch_w2h(dst, t0):
    a(f"s_lshr_b32 s{sT4}, s{sWI}, 3")
    a(f"s_add_u32 s{sT4}, s{sT4}, s{sROT2}")
    if t0: a(f"s_add_u32 s{sT4}, s{sT4}, {t0}")
    a(f"s_sub_u32 s{sT5}, s{sT4}, 28")
    a(f"s_cselect_b32 s{sT4}, s{sT4}, s{sT5}")
    a(f"s_and_b32 s{sT5}, s{sWI}, 3")
    a(f"s_mul_i32 s{sT5}, s{sT5}, 28")
    a(f"s_add_u32 s{sT4}, s{sT4}, s{sT5}")
    a(f"s_lshl_b32 s{sT4}, s{sT4}, 1")
    a(f"s_bfe_u32 s{sT5}, s{sWI}, 0x10002")
    a(f"s_add_u32 s{sT4}, s{sT4}, s{sT5}")
    a(f"s_lshl_b32 s{sT4}, s{sT4}, 15")
    a(f"s_and_b32 s{sT5}, s{sB}, 7")
    a(f"s_lshl_b32 s{sT5}, s{sT5}, 9")
    a(f"s_add_u32 s{sT4}, s{sT4}, s{sT5}")
    a(f"s_cmp_eq_u32 s{sP3}, 7")
    a(f"s_cselect_b32 s{sT4}, 0x10000000, s{sT4}")
    a(f"v_min_u32 v{vT0}, 31, v{vL}")
    a(f"v_lshrrev_b32 v{vT1}, 2, v{vT0}")
    a(f"v_and_b32 v{vT0}, 3, v{vT0}")
    a(f"v_lshlrev_b32 v{vT0}, 7, v{vT0}")
    a(f"v_lshl_add_u32 v{vT0}, v{vT1}, 12, v{vT0}")
    a(f"buffer_load_dword {dst}, v{vT0}, {sr(SW2,4)}, s{sT4} offen")
def touch_w1h(dst, t0):
    a(f"s_lshr_b32 s{sT4}, s{sWI}, 3")
    a(f"s_add_u32 s{sT4}, s{sT4}, s{sROT1}")
    if t0: a(f"s_add_u32 s{sT4}, s{sT4}, {t0}")
    a(f"s_and_b32 s{sT4}, s{sT4}, 31")
    a(f"s_and_b32 s{sT5}, s{sWI}, 3")
    a(f"s_lshl_b32 s{sT5}, s{sT5}, 5")
    a(f"s_add_u32 s{sT4}, s{sT4}, s{sT5}")
    a(f"s_lshl_b32 s{sT4}, s{sT4}, 1")
    a(f"s_bfe_u32 s{sT5}, s{sWI}, 0x10002")
    a(f"s_add_u32 s{sT4}, s{sT4}, s{sT5}")
    a(f"s_mul_i32 s{sT4}, s{sT4}, {8*3584}")
    a(f"s_lshl_b32 s{sT5}, s{sXC}, 7")
    a(f"s_add_u32 s{sT4}, s{sT4}, s{sT5}")
    a(f"v_min_u32 v{vT0}, 31, v{vL}")
    a(f"v_lshrrev_b32 v{vT1}, 2, v{vT0}")
    a(f"v_and_b32 v{vT0}, 3, v{vT0}")
    a(f"v_lshlrev_b32 v{vT0}, 7, v{vT0}")
    a(f"v_mul_u32_u24 v{vT1}, 3584, v{vT1}")
    a(f"v_add_u32 v{vT0}, v{vT1}, v{vT0}")
    a(f"buffer_load_dword {dst}, v{vT0}, {sr(SCODE,4)}, s{sT4} offen")
def touch_wo(dst): touch(SWO, 4, 3, 1024, lambda: a(f"s_mov_b32 s{sT4}, 0"), dst)
def touches(L, where):
    dst = "a25" if where in (1, 2, 3, 6, 7, 8) else None
    if optL("T1", L, 8, 0) == where: touch_w1(dst + "2" if dst else "v31")
    if optL("T1A", L, 0, 0) == where: touch_w1h(dst + "2" if dst else "v31", 0)
    if optL("T1B", L, 0, 0) == where: touch_w1h(dst + "5" if dst else "v31", 16)
    if optL("T2", L, 0, 0) == where: touch_w2(dst + "3" if dst else "v31")
    if optL("T2H", L, 9, 0) == where: touch_w2h(dst + "3" if dst else "v31", 0)
    if optL("T2G", L, 0, 0) == where: touch_w2h(dst + "3" if dst else "v31", 14)

def split2(dst, src, t0):
    a(f"v_cvt_pk_bf16_f32 v{t0}, v{src}, v{src}")
    a(f"v_and_b32 v{t0}, 0xffff0000, v{t0}")
    a(f"v_sub_f32 v{dst}, v{src}, v{t0}")
    a(f"v_cvt_pk_bf16_f32 v{dst}, v{t0}, v{dst}")

def stats_to_frags(S, Q, RA):
    a(f"v_mul_f32 v{S}, {fl(-1/512)}, v{S}")
    a(f"v_mul_f32 v{Q}, {fl(1/512)}, v{Q}")
    a(f"v_cmp_eq_u32 vcc, 0, v{vHH}")
    a(f"v_fma_f32 v{Q}, -v{S}, v{S}, v{Q}")
    a(f"v_max_f32 v{Q}, 0, v{Q}")
    a(f"v_add_f32 v{Q}, {fl(1e-5)}, v{Q}")
    a(f"v_rsq_f32 v{vRS}, v{Q}")
    a(f"v_cndmask_b32 v{S}, 0, v{S}, vcc")
    a(f"v_cvt_pk_bf16_f32 v{MA}, v{S}, v{S}")
    a(f"v_cndmask_b32 v{Q}, 0, v{vRS}, vcc")
    a(f"v_and_b32 v{vT0}, 0xffff0000, v{MA}")
    a(f"v_sub_f32 v{S}, v{S}, v{vT0}")
    a(f"v_cvt_pk_bf16_f32 v{MA+1}, v{S}, v{S}")
    split2(RA, Q, vT0)

def stats_check(SB):
    a(f"v_max3_u32 v{vT3}, v{SB+1}, v{SB+3}, v{SB+5}")
    a(f"v_max3_u32 v{vT3}, v{vT3}, v{SB+7}, v{SB+9}")
    a(f"v_max3_u32 v{vT3}, v{vT3}, v{SB+11}, v{SB+13}")
    a(f"v_max_u32 v{vT3}, v{vT3}, v{SB+15}")
    a(f"v_cmp_eq_u32 vcc, -1, v{vT3}")
def stats_sum(SB):
    for n in (4, 2, 1):
        for p in range(n): pk("add", SB+2*p, vr(SB+2*p,2), vr(SB+2*(p+n),2))
    a(f"v_mov_b32 v{SB+2}, v{SB}")
    a(f"v_mov_b32 v{SB+3}, v{SB+1}")
    a(f"v_permlane32_swap_b32 v{SB}, v{SB+2}")
    a(f"v_permlane32_swap_b32 v{SB+1}, v{SB+3}")
    pk("add", SB, vr(SB,2), vr(SB+2,2))

@contextmanager
def rare(skip):
    if opt("A1OOL", 1):
        l = a.newlabel("RED")
        a(f"s_cmp_lt_u32 s{sRED}, 64")
        a(f"s_cbranch_scc1 {l}")
        with cold(l, skip): yield
    else:
        a(f"s_cmp_ge_u32 s{sRED}, 64")
        a(f"s_cbranch_scc1 {skip}")
        with cond(): yield
A1B = 128
def a1_issue():
    a(f"s_mov_b32 s{sT3}, s{sKB}")
    for p in range(16):
        a(f"buffer_load_dwordx4 {vr(A1B+4*p,4)}, v{vL16}, {sr(SWS,4)}, s{sT3} offen offset:{(p&1)*2560} sc1")
        if p & 1 and p < 15: a(f"s_add_u32 s{sT3}, s{sT3}, {2*2560}")
def a1_early(L):
    skip = a.newlabel("NOA1E")
    with rare(skip):
        a(f"s_lshr_b32 s{sKB}, s{sRED}, 2")
        a(f"s_mul_i32 s{sKB}, s{sKB}, {16*2560}")
        a(f"s_and_b32 s{sT2}, s{sRED}, 3")
        a(f"s_mul_i32 s{sT2}, s{sT2}, 640")
        a(f"s_add_u32 s{sKB}, s{sKB}, s{sT2}")
        a(f"s_add_u32 s{sKB}, s{sKB}, {KVP[L]:#x}")
        if opt("A1C", 0):
            a(f"v_and_b32 v{vT1}, 15, v{vL}")
            a(f"v_mul_u32_u24 v{vT1}, 2560, v{vT1}")
            a(f"buffer_load_dword v{vT3}, v{vT1}, {sr(SWS,4)}, s{sKB} offen offset:544 sc1")
        else:
            set_exec((1 << 35) - 1)
            a1_issue()
            set_exec(FULL)
    a.label(skip)
def a1_check():
    B = A1B
    a(f"v_max3_u32 v{vT3}, v{B}, v{B+4}, v{B+8}")
    a(f"v_min3_u32 v{vT1}, v{B}, v{B+4}, v{B+8}")
    for p in range(3, 15, 2):
        a(f"v_max3_u32 v{vT3}, v{vT3}, v{B+4*p}, v{B+4*p+4}")
        a(f"v_min3_u32 v{vT1}, v{vT1}, v{B+4*p}, v{B+4*p+4}")
    a(f"v_max_u32 v{vT3}, v{vT3}, v{B+60}")
    a(f"v_min_u32 v{vT1}, v{vT1}, v{B+60}")
    a(f"v_cmp_eq_u32 vcc, -1, v{vT3}")
    a(f"v_readlane_b32 s{sT0}, v{vT3}, 34")
    a(f"v_readlane_b32 s{sT1}, v{vT1}, 34")
    a(f"s_xor_b32 s{sT0}, s{sT0}, s{sNON}")
    a(f"s_xor_b32 s{sT1}, s{sT1}, s{sNON}")
    a(f"s_or_b32 s{sT0}, s{sT0}, s{sT1}")
    a(f"s_or_b32 vcc_lo, vcc_lo, s{sT0}")
    a(f"s_or_b64 vcc, vcc, vcc")
def a1_mid(younger):
    skip = a.newlabel("NOA1M"); ok = a.newlabel("A1MOK")
    a(f"s_cmp_ge_u32 s{sRED}, 64")
    a(f"s_cbranch_scc1 {skip}")
    with cond():
        set_exec((1 << 35) - 1)
        a(f"s_waitcnt vmcnt({younger})")
        a1_check()
        a(f"s_cbranch_vccz {ok}")
        a1_issue()
        a.label(ok)
        set_exec(FULL)
    a.label(skip)
def a1(L, younger):
    a.c("======== A1 reducer")
    skip = a.newlabel("NOA1")
    with rare(skip):
        B = A1B
        a(f"s_mul_i32 s{sT2}, s{sRED}, 384")
        a(f"s_add_u32 s{sT2}, s{sT2}, {KVF[L]:#x}")
        a(f"v_lshlrev_b32 v{vT2}, 3, v{vL}")
        set_exec((1 << 35) - 1)
        def check():
            a(f"v_max3_u32 v{vT3}, v{B}, v{B+4}, v{B+8}")
            a(f"v_min3_u32 v{vT1}, v{B}, v{B+4}, v{B+8}")
            for p in range(3, 15, 2):
                a(f"v_max3_u32 v{vT3}, v{vT3}, v{B+4*p}, v{B+4*p+4}")
                a(f"v_min3_u32 v{vT1}, v{vT1}, v{B+4*p}, v{B+4*p+4}")
            a(f"v_max_u32 v{vT3}, v{vT3}, v{B+60}")
            a(f"v_min_u32 v{vT1}, v{vT1}, v{B+60}")
            a(f"v_cmp_eq_u32 vcc, -1, v{vT3}")
            a(f"v_readlane_b32 s{sT0}, v{vT3}, 34")
            a(f"v_readlane_b32 s{sT1}, v{vT1}, 34")
            a(f"s_xor_b32 s{sT0}, s{sT0}, s{sNON}")
            a(f"s_xor_b32 s{sT1}, s{sT1}, s{sNON}")
            a(f"s_or_b32 s{sT0}, s{sT0}, s{sT1}")
            a(f"s_or_b32 vcc_lo, vcc_lo, s{sT0}")
            a(f"s_or_b64 vcc, vcc, vcc")
        a.vm_done = min(a.vm_done, a.vm - younger - 1)
        if opt("A1C", 0):
            poll(lambda: a(f"buffer_load_dword v{vT3}, v{vT1}, {sr(SWS,4)}, s{sKB} offen offset:544 sc1"),
                 lambda: a(f"v_cmp_ne_u32 vcc, s{sNON}, v{vT3}"), 0x21, pre=a.vm - younger - 1)
            poll(a1_issue, check, 0x20)
        else:
            poll(a1_issue, check, 0x20, pre=a.vm - younger - 1)
        n = 16
        while n > 1:
            n //= 2
            for p in range(n):
                for j in (0, 2): pk("add", B+4*p+j, vr(B+4*p+j,2), vr(B+4*(p+n)+j,2))
        a(f"v_cvt_pk_bf16_f32 v{B+4}, v{B}, v{B+1}")
        a(f"v_cvt_pk_bf16_f32 v{B+5}, v{B+2}, v{B+3}")
        a(f"v_mov_b32_dpp v{B+6}, v{B+4} quad_perm:[1,1,3,3] row_mask:0xf bank_mask:0xf")
        a(f"v_mov_b32_dpp v{B+7}, v{B+5} quad_perm:[1,1,3,3] row_mask:0xf bank_mask:0xf")
        a(f"v_writelane_b32 v{B+4}, s{sNON}, 34")
        set_exec(0x555555555555)
        a(f"buffer_store_dwordx4 {vr(B+4,4)}, v{vT2}, {sr(SWS,4)}, s{sT2} offen sc1")
        set_exec(FULL)
        a("s_nop 1")
    a.label(skip)
    stamp("a1")

XF = 128
def KS(s): return 4 * ((s & 15) >> 1) + (s & 1) + 2 * (s >> 4)
def XFR(L, s): return XF + 4 * (((s + 16) & 31) if L == 1 else s)
xid1 = {}
def xa_XL(s):
    jj = s & 15
    if jj == 0: a(f"s_mov_b32 s{sSO}, s{sT4}")
    elif jj == 8: a(f"s_xor_b32 s{sSO}, s{sT4}, 16384")
    elif jj & 1 == 0: a(f"s_add_u32 s{sSO}, s{sSO}, 4096")
    xid1[s] = a(f"buffer_load_dwordx4 {vr(XFR(1,s),4)}, v{vL16}, {sr(SWS,4)}, s{sSO} offen offset:{(KS(s)&3)*1024} sc1")
vXC = MA + 1
def xa_ci(): return a(f"buffer_load_dword v{vT3}, v{vXC}, {sr(SWS,4)}, s{sAX2R} offen offset:1020 sc1")
def xa_start():
    a(f"s_and_b32 s{sT5}, s{sROTX}, {opt('XROT', 1)}")
    a(f"s_lshl_b32 s{sT5}, s{sT5}, 14")
    a(f"s_add_u32 s{sT4}, s{sAX2R}, s{sT5}")
    a(f"v_and_b32 v{vXC}, 15, v{vL}")
    a(f"v_lshrrev_b32 v{MA+3}, 1, v{vXC}")
    a(f"v_and_b32 v{vXC}, 1, v{vXC}")
    a(f"v_lshlrev_b32 v{vXC}, 10, v{vXC}")
    a(f"v_lshl_add_u32 v{vXC}, v{MA+3}, 12, v{vXC}")
    G["xcid"] = xa_ci()
    for s in range(opt("LA1", 8)): xa_XL(s)
def p1(L):
    ACCK, ACCV, RR = 32, 48, 64
    VV, PK, T1 = 80, 88, 96
    S0, S1, Q0, Q1 = 80, 81, 82, 83
    CF = 84
    CFV, CFQ, RA = 112, 116, 120
    vTQ, vTV = 124, 125
    vW, vXA, vXB = 126, 127, 96
    vCQ, vCV = 97, 98
    vOA, vOB = vTA, vTB
    vTQ2, vTV2 = vTA, vTB
    vKW, vKR = 92, 93
    XA = 88
    vKW2, vKR2 = vT2, 127
    POI = 100
    WFR = 216; NWF = 4; ONESF = 248; CG = 200; CK, CV, CQ = 152, 168, 184
    a.c(f"======== P1 layer {L}")
    xid = {}; wid = {}
    toff = 256
    def addr_setup():
        if L == 0:
            a(f"v_bfe_u32 v{vT0}, v{vL}, 2, 2")
            a(f"v_lshl_add_u32 v{vT0}, v{vHH}, 3, v{vT0}")
            a(f"v_lshlrev_b32 v{vTQ}, 6, v{vT0}")
            a(f"v_bfe_u32 v{vT1}, v{vL}, 4, 1")
            a(f"v_lshl_add_u32 v{vTQ}, v{vT1}, 5, v{vTQ}")
            a(f"v_and_b32 v{vT1}, 3, v{vL}")
            a(f"v_lshl_add_u32 v{vTQ}, v{vT1}, 3, v{vTQ}")
        else:
            a(f"s_and_b32 s{sT5}, s{sROTX}, {opt('XROT', 1)}")
            a(f"s_lshl_b32 s{sT5}, s{sT5}, 14")
            a(f"v_add_u32 v{vTQ}, s{sT5}, v{vL16}")
            a(f"v_xor_b32 v{vTQ2}, 16384, v{vTQ}")
            a(f"v_add_u32 v{vTV2}, 65536, v{vTQ2}")
        a(f"v_add_u32 v{vTV}, 65536, v{vTQ}")
        for i in range(4): a(f"v_accvgpr_write_b32 a{ONESF+i}, s{sONES}")
        for r in ([MA + 2, MA + 3] if L == 0 else []) + [RA + 1, RA + 2, RA + 3, CF + 2, CF + 3, CFV + 2, CFV + 3, CFQ + 2, CFQ + 3]: a(f"v_mov_b32 v{r}, 0")
    def kv_addr():
        a(f"v_bfe_u32 v{vT0}, v{vL}, 4, 1")
        a(f"v_lshl_add_u32 v{vT0}, v{vT0}, 1, v{vHH}")
        a(f"v_mul_u32_u24 v{vT0}, 17, v{vT0}")
        a(f"v_and_b32 v{vT1}, 15, v{vL}")
        a(f"v_add_u32 v{vT0}, v{vT0}, v{vT1}")
        a(f"v_lshlrev_b32 v{vT0}, 5, v{vT0}")
        a(f"v_add_u32 v{vKW2}, s{sWA}, v{vT0}")
        a(f"s_mul_i32 s{sT0}, s{sW}, 544")
        a(f"s_add_u32 s{sT0}, s{sT0}, {L_A + SCR}")
        a(f"v_add_u32 v{vKR2}, s{sT0}, v{vL16}")
    rg = {}
    def RG(s):
        b = WFR + (s % NWF) * 8
        if L == 0:
            o = s * 1024
            a(f"ds_read_b64_tr_b16 {ar(b,2)}, v{vTQ} offset:{32768+o}")
            a(f"ds_read_b64_tr_b16 {ar(b+2,2)}, v{vTQ} offset:{32768+o+toff}")
            a(f"ds_read_b64_tr_b16 {ar(b+4,2)}, v{vTV} offset:{o}")
            rg[s] = a(f"ds_read_b64_tr_b16 {ar(b+6,2)}, v{vTV} offset:{o+toff}")
        else:
            o = (KS(s) & 15) * 1024
            q_, v_ = (vTQ2, vTV2) if KS(s) >= 16 else (vTQ, vTV)
            a(f"ds_read_b128 {ar(b,4)}, v{q_} offset:{32768+o}")
            rg[s] = a(f"ds_read_b128 {ar(b+4,4)}, v{v_} offset:{o}")
    if L == 0:
        a(f"v_lshrrev_b32 v{vT0}, 2, v{vL}")
        a(f"s_lshl_b32 s{sT0}, s{sW}, 4")
        a(f"v_add_u32 v{vT0}, s{sT0}, v{vT0}")
        a(f"v_mul_u32_u24 v{vW}, 3072, v{vT0}")
        a(f"v_and_b32 v{vT0}, 3, v{vL}")
        a(f"v_lshl_add_u32 v{vW}, v{vT0}, 4, v{vW}")
        a(f"s_lshl_b32 s{sT0}, s{sHP}, 6")
        a(f"v_add_u32 v{vW}, s{sT0}, v{vW}")
        lin(sT0, [(sRB, 131072), (sW, 32768)])
        a(f"v_lshrrev_b32 v{vT0}, 3, v{vL}")
        a(f"v_lshlrev_b32 v{vT0}, 10, v{vT0}")
        a(f"v_add_u32 v{vT0}, s{sT0}, v{vT0}")
        a(f"v_and_b32 v{vT1}, 7, v{vL}")
        a(f"v_lshrrev_b32 v{vT2}, 4, v{vL}")
        a(f"v_xor_b32 v{vT1}, v{vT1}, v{vT2}")
        a(f"v_lshl_add_u32 v{vXA}, v{vT1}, 4, v{vT0}")
        a(f"v_xor_b32 v{vXB}, 64, v{vXA}")
        a(f"v_add_u32 v{vXB}, {8192-1024}, v{vXB}")
        a("s_waitcnt lgkmcnt(0)")
        srd(SX, sKA + 0, 2048 * 512 * 2)
        srd(SWQKV, sKA + 2, 512 * 1536 * 2)
        def x_issue(j):
            a(f"s_add_u32 s{sKB}, s{sRX0}, {j}")
            a(f"s_and_b32 s{sKB}, s{sKB}, 7")
            a(f"s_lshl_b32 s{sT1}, s{sKB}, 7")
            a(f"s_add_u32 m0, s{sWB}, {(j&3)*4096}")
            a(f"s_mul_i32 s{sSO}, s{sKB}, {64*3072}")
            a(f"buffer_load_dwordx4 v{vXA}, {sr(SX,4)}, s{sT1} offen lds")
            a(f"buffer_load_dwordx4 v{vXB}, {sr(SX,4)}, s{sT1} offen offset:1024 lds")
            a(f"s_add_u32 m0, s{sWB}, {(j&3)*4096+2048}")
            a(f"s_add_u32 s{sT1}, s{sT1}, 16384")
            a(f"buffer_load_dwordx4 v{vXA}, {sr(SX,4)}, s{sT1} offen lds")
            xid[j] = a(f"buffer_load_dwordx4 v{vXB}, {sr(SX,4)}, s{sT1} offen offset:1024 lds")
        def w_issue(j):
            for seg in (1, 2, 0):
                a(f"s_add_u32 m0, s{sW1K}, {seg*32768 - seg*1024 + j*4096}")
                wid[j] = a(f"buffer_load_dwordx4 v{vW}, {sr(SWQKV,4)}, s{sSO} offen offset:{seg*1024} lds")
        def wo_issue(c):
            for k in range(2):
                j = 2 * c + k
                a(f"s_add_u32 m0, s{sWB}, {j*2048}")
                if j == 0: a(f"s_lshl_b32 s{sSO}, s{sW}, 17")
                else: a(f"s_add_u32 s{sSO}, s{sSO}, 16384")
                a(f"buffer_load_dwordx4 v{vOA}, {sr(SWO,4)}, s{sSO} offen lds")
                G["wo"] = a(f"buffer_load_dwordx4 v{vOB}, {sr(SWO,4)}, s{sSO} offen offset:1024 lds")
        x_issue(0); w_issue(0)
        srd(SWS, 100, WS_BYTES)
        a(f"buffer_load_dword v{vKW}, off, {sr(SWS,4)}, 0 offset:{NONCE} sc1")
        roles2()
        late_srds()
        x_issue(1); w_issue(1)
        touch_wo("a254")
        code_prefetch()
        touches(0, 6)
        for i in range(4): a(f"v_mov_b32 v{POI+i}, -1")
        addresses()
        addr_setup()
        a(f"v_add_u32 v{vCQ}, s{sW1K}, v{vTQ}")
        a(f"v_add_u32 v{vCV}, s{sW1K}, v{vTV}")
        for r in (S0, S1, Q0, Q1): a(f"v_mov_b32 v{r}, 0")
        a(f"v_and_b32 v{vT0}, 31, v{vL}")
        a(f"v_bfe_u32 v{vT1}, v{vL}, 1, 3")
        a(f"v_xor_b32 v{vT1}, v{vT1}, v{vHH}")
        a(f"v_lshlrev_b32 v{vT0}, 7, v{vT0}")
        a(f"v_add_u32 v{vT0}, s{sWB}, v{vT0}")
        for t in range(4):
            a(f"v_xor_b32 v{vT2}, {2*t}, v{vT1}")
            a(f"v_lshl_add_u32 v{XA+t}, v{vT2}, 4, v{vT0}")
        a(f"s_lshl_b32 s{sT4}, s{sDT}, 7")
        dma_voff(vOA, vOB, 1024, sT4)
        tr_base(vWTA, vWTB, sRH, None, f"s{sWA}")
        pump.setup(1, 0)
        SCHED = {0: {0: [2, 3], 1: [4, 5], 2: [6], 3: [7]}, 1: {0: [2], 1: [3, 4], 2: [5, 6], 3: [7]}, 2: {0: [2, 3, 4], 1: [5], 2: [6], 3: [7]},
                 3: {0: [2], 1: [3], 2: [4], 3: [5], 4: [6], 5: [7]}, 4: {0: [2, 3], 1: [4], 2: [5], 3: [6], 4: [7]}}[opt("SCHED", 0)]
        JL = max(SCHED)
        cgid = {}
        def CGr(j):
            o = j * 4096
            a(f"ds_read_b64_tr_b16 {ar(CG,2)}, v{vCQ} offset:{32768+o}")
            a(f"ds_read_b64_tr_b16 {ar(CG+2,2)}, v{vCQ} offset:{32768+o+toff}")
            a(f"ds_read_b64_tr_b16 {ar(CG+4,2)}, v{vCV} offset:{o}")
            a(f"ds_read_b64_tr_b16 {ar(CG+6,2)}, v{vCV} offset:{o+toff}")
            a(f"ds_read_b64_tr_b16 {ar(CG+8,2)}, v{vCQ} offset:{o}")
            cgid[j] = a(f"ds_read_b64_tr_b16 {ar(CG+10,2)}, v{vCQ} offset:{o+toff}")
        def colsum(j):
            a.wait(lg=cgid[j])
            for k, c in enumerate((CK, CV, CQ)):
                mfma(ar(c,16), ar(ONESF,4), ar(CG+4*k,4), "0" if j == 0 else ar(c,16))
        def xreads(j):
            a.wait(vm=xid[j])
            return [a(f"ds_read_b128 {vr(XF+16*j+4*t,4)}, v{XA+t} offset:{(j&3)*4096}") for t in range(4)]
        xr = xreads(0)
        a.wait(vm=wid[0])
        a("s_barrier")
        stamp("p1_first")
        CGr(0); RG(0); RG(1); RG(2)
        colsum(0)
        CPY = 104; CS4 = 96
        initld = None
        for j in range(8):
            for t in range(4):
                a.wait(lg=xr[t])
                for k in range(4 if not opt("XNOD", 0) else 0):
                    r = XF + 16 * j + 4 * t + k
                    a(f"v_dot2_f32_bf16 v{S0+(k&1)}, v{r}, s{sONES}, v{S0+(k&1)}")
                    a(f"v_dot2_f32_bf16 v{Q0+(k&1)}, v{r}, v{r}, v{Q0+(k&1)}")
            if j == 7:
                a(f"s_lshr_b32 s{sT0}, s{sRB}, 1")
                a(f"s_sub_u32 s{sT0}, s{sT0}, s{sRX0}")
                a(f"s_and_b32 s{sT0}, s{sT0}, 7")
                a(f"s_cmp_eq_u32 s{sT0}, 0")
                a(f"s_cselect_b32 s{sT1}, 4096, 0")
                a(f"s_add_u32 s{sT1}, s{sT1}, {L_A}")
                a(f"v_add_u32 v{vT1}, s{sT1}, v{vL16}")
                a(f"v_add_u32 v{vT0}, s{sW1K}, v{vT1}")
                a(f"v_accvgpr_read_b32 v{CS4}, a{CK}")
                a(f"v_accvgpr_read_b32 v{CS4+1}, a{CV}")
                a(f"v_accvgpr_read_b32 v{CS4+2}, a{CQ}")
                cw = a(f"ds_write_b128 v{vT0}, {vr(CS4,4)}")
            for s in range(4 * j, 4 * j + 4):
                t = s & 3
                a.wait(lg=rg[s])
                b = WFR + (s % NWF) * 8
                x = vr(XF + 4 * s, 4)
                mfma(vr(ACCK,16), x, ar(b,4), "0" if s == 0 else vr(ACCK,16))
                if s + 3 < 32: RG(s + 3)
                if t == 1 and j < 7 and not opt("XNOC", 0): CGr(j + 1)
                if t == 2 and j < 7: xr = xreads(j + 1)
                if j == 7 and t == 1:
                    for w in range(4): cr = a(f"ds_read_b128 {vr(RR+4*w,4)}, v{vT1} offset:{1024*w}")
                    a(f"s_lshl_b32 s{sT0}, s{sT0}, 12")
                    a(f"s_and_b32 s{sT1}, s{sRB}, 1")
                    a(f"s_lshl_b32 s{sT1}, s{sT1}, 11")
                    a(f"s_add_u32 s{sT0}, s{sT0}, s{sT1}")
                    a(f"s_min_u32 s{sT2}, s{sW}, 2")
                    a(f"s_lshl_b32 s{sT2}, s{sT2}, 15")
                    a(f"s_add_u32 s{sT0}, s{sT0}, s{sT2}")
                    a(f"v_lshlrev_b32 v{vT1}, 8, v{vHH}")
                    a(f"v_sub_u32 v{vT0}, v{vTQ}, v{vT1}")
                    a(f"v_add_u32 v{vT0}, s{sT0}, v{vT0}")
                    for k in range(4): cp = a(f"ds_read_b64_tr_b16 {vr(CPY+2*k,2)}, v{vT0} offset:{512*k}")
                if j == 7 and t == 2:
                    a.wait(lg=cr)
                    for k in range(3):
                        a(f"v_add_f32 v{RR+k}, v{RR+k}, v{RR+4+k}")
                        a(f"v_add_f32 v{RR+8+k}, v{RR+8+k}, v{RR+12+k}")
                if j == 7 and t == 3:
                    split2(CKP, RR, vT0)
                    split2(CVP, RR + 1, vT1)
                mfma(vr(ACCV,16), x, ar(b+4,4), "0" if s == 0 else vr(ACCV,16))
                if t == 0:
                    if j < 7: a.wait(vm=wid[j + 1])
                    else: a.wait(lg=cw)
                    a("s_barrier")
                    if j == 1:
                        a(f"v_add_u32 v{vKW}, 1, v{vKW}")
                        a(f"v_and_b32 v{vKW}, 0x3fffffff, v{vKW}")
                        a(f"v_or_b32 v{vKW}, 0x40000000, v{vKW}")
                        a(f"v_readfirstlane_b32 s{sNON}, v{vKW}")
                if t <= 2 and j in SCHED and t < len(SCHED[j]):
                    x_issue(SCHED[j][t]); w_issue(SCHED[j][t])
                if t == 1 and j >= 4 and opt("WOP", 1) == 0: wo_issue(j - 4)
                if t == 3 and j == JL:
                    if opt("MISC", 0) == 0: misc_loads()
                    touches(0, 8)
                if t == 1 and j == 6 and opt("MISC", 0) == 1: misc_loads()
                if t == 3 and opt("SLOTST", 0) and j in (1, 3, 6): stamp(f"it{j}")
                if t == 2:
                    if j == 3: touches(0, 7)
                    if j == opt("POJ", 2):
                        st_poison(POI); kv_poison(POI, 0); canary_poison(POI)
                    if j == 6: kv_addr()
                    if j == opt("POJ", 2) + 1:
                        tile_poison(POI, sAPQW, 0, 1024); initld = a.vm - 1
                    if j == 7:
                        for k in range(3): a(f"v_add_f32 v{RR+k}, v{RR+k}, v{RR+8+k}")
                        a(f"s_lshl_b32 s{sT1}, s{sRB}, 11")
                        a(f"s_add_u32 s{sT3}, s{sAWQT}, s{sT2}")
                        a(f"s_add_u32 s{sT3}, s{sT3}, s{sT1}")
                        a.wait(lg=cp)
                        ws_store4(CPY, sT3); ws_store4(CPY + 4, sT3, 1024)
                if t == 3 and j < 7 and not opt("XNOC", 0): colsum(j + 1)
        stamp("p1_gemm")
        a(f"v_add_f32 v{S0}, v{S0}, v{S1}")
        a(f"v_add_f32 v{Q0}, v{Q0}, v{Q1}")
        a(f"v_mov_b32 v{S1}, v{S0}")
        a(f"v_mov_b32 v{Q1}, v{Q0}")
        for c, p in ((CF, CKP), (CFV, CVP)):
            a(f"v_mov_b32 v{c}, v{p}"); a(f"v_mov_b32 v{c+1}, v{p}")
        a(f"v_permlane32_swap_b32 v{S0}, v{S1}")
        a(f"v_permlane32_swap_b32 v{Q0}, v{Q1}")
        a(f"v_add_f32 v{S0}, v{S0}, v{S1}")
        a(f"v_add_f32 v{Q0}, v{Q0}, v{Q1}")
        split2(CQP, RR + 2, vT1)
        stats_to_frags(S0, Q0, RA)
        mfma(vr(ACCK,16), vr(MA,4), vr(CF,4), vr(ACCK,16))
        mfma(vr(RR,16), vr(RA,4), ar(ONESF,4), "0")
        mfma(vr(ACCV,16), vr(MA,4), vr(CFV,4), vr(ACCV,16))
        touches(0, 1)
    else:
        xid = xid1; XL = xa_XL; ci = xa_ci
        LA = opt("LA1", 8)
        vMX = vW
        cc = lambda: a(f"v_cmp_eq_u32 vcc, -1, v{vT3}")
        def windowa():
            for s in range(LA): XL(s)
        def windowb():
            for s in range(16, 16 + LA): XL(s)
        if opt("XE", 0) == 0: xa_start()
        cid = max(G["xcid"], G["kvlast"])
        addr_setup()
        next_layer_addresses()
        for c, p in ((CF, CKP), (CFV, CVP)):
            a(f"v_mov_b32 v{c}, v{p}"); a(f"v_mov_b32 v{c+1}, v{p}")
        a(f"v_and_b32 v{vT0}, 31, v{vL}")
        a(f"v_lshlrev_b32 v{vT0}, 3, v{vT0}")
        a(f"v_lshl_add_u32 v{PK+1}, v{vHH}, 12, v{vT0}")
        a(f"s_lshl_b32 s{sT2}, s{sW}, 13")
        a(f"s_add_u32 s{sKB}, s{sAWQT}, s{sT2}")
        a(f"s_mov_b32 s{sT1}, s{sT4}")
        pump.setup(1, 1)
        a(f"s_mov_b32 s{sT4}, s{sT1}")
        a(f"v_mov_b32 v{MA+2}, 0"); a(f"v_mov_b32 v{MA+3}, 0")
        go = a.newlabel("XGO"); redo = a.newlabel("XREDO")
        IDMAPS.append(xid)
        a.wait(vm=cid)
        cc()
        keep = snapshot_ids()
        fallback(ci, cc, 0x41, windowa, "fb41")
        restore_ids(keep)
        a("s_barrier")
        stamp("p1_flag")
        with cold(redo, go):
            windowa()
            a("s_waitcnt vmcnt(0)")
        restore_ids(keep)
        a.label(go)
        RG(0); RG(1); RG(2)
        a(f"v_mov_b32 v{vMX}, 0")
        a(f"s_mov_b32 s{sT3}, s{sKB}")
        SB = T1
        def issue():
            for p in range(8): a(f"buffer_load_dwordx2 {vr(SB+2*p,2)}, v{PK+1}, {sr(SWS,4)}, s{sAS2R} offen offset:{p*512} sc1")
        qid = None
        LA = opt("LA1", 8)
        ZS = opt("ZS", 11); nb = [16]
        assert ZS + LA >= 16
        for s in range(32):
            if s == 16:
                stamp("p1_a")
                if ZS < 16:
                    a.wait(vm=sid)
                    stats_check(SB)
                    keep = snapshot_ids()
                    fallback(issue, lambda: stats_check(SB), 0x40, windowb, "fb40")
                    restore_ids(keep)
                else:
                    spec(issue, lambda: stats_check(SB), windowb, 0x40, a.newlabel("XR0"))
                stamp("p1_st2")
                stats_sum(SB)
                stats_to_frags(SB, SB + 1, RA)
                mfma(vr(RR,16), vr(RA,4), ar(ONESF,4), "0")
                mfma(vr(ACCK,16), vr(MA,4), vr(CF,4), vr(ACCK,16))
                mfma(vr(ACCV,16), vr(MA,4), vr(CFV,4), vr(ACCV,16))
            a.wait(vm=xid[s], lg=rg[s])
            b = WFR + (s % NWF) * 8
            x = vr(XFR(1, s), 4)
            mfma(vr(ACCK,16), x, ar(b,4), "0" if s == 0 else vr(ACCK,16))
            if s == ZS:
                issue(); sid = a.vm - 1
            if ZS < s < 16:
                per = -(-LA // (15 - ZS))
                for _ in range(per):
                    if nb[0] < 16 + LA: XL(nb[0]); nb[0] += 1
            if (s & 15) + LA < 16: XL(s + LA)
            if s >= 24:
                j = s - 24
                if j == 4: a(f"s_add_u32 s{sT3}, s{sT3}, 4096")
                if j & 3 == 0: a(f"s_add_u32 m0, s{sT2}, {j*1024}")
                qid = a(f"buffer_load_dwordx4 v{vL16}, {sr(SWS,4)}, s{sT3} offen offset:{(j&3)*1024} sc1 lds")
            mfma(vr(ACCV,16), x, ar(b+4,4), "0" if s == 0 else vr(ACCV,16))
            if s & 1: a(f"v_max3_u32 v{vMX}, v{vMX}, v{XFR(1,s-1)}, v{XFR(1,s)}")
            if s + 3 < 32: RG(s + 3)
            if s == 30: kv_addr()
        verify(vMX, redo)
        stamp("p1_gemm")
    for q in range(8): pk("fma", ACCK+2*q, vr(ACCK+2*q,2), vr(RR+2*q,2), sr(sEPS6,2), hi=[1,1,0])
    for q in range(8): pk("mul", T1+2*q, vr(ACCK+2*q,2), sr(sL2E,2), hi=[1,0])
    for i in range(16):
        a(f"v_exp_f32_e64 v{T1+i}, v{T1+i} clamp")
        a(f"v_max_f32 v{ACCK+i}, s{sEPS6}, v{ACCK+i}")
    for q in range(8): pk("add", ACCK+2*q, vr(ACCK+2*q,2), vr(T1+2*q,2))
    for q in range(8): a(f"v_cvt_pk_bf16_f32 v{PK+q}, v{ACCK+2*q}, v{ACCK+2*q+1}")
    ZA = T1
    for q in range(4): pk("mul", ACCV+2*q, vr(ACCV+2*q,2), vr(RR+2*q,2))
    for q in range(4, 8): pk("mul", ACCV+2*q, vr(ACCV+2*q,2), vr(RR+2*q,2))
    mfma(vr(ZA,16), vr(PK,4), ar(ONESF,4), "0")
    for q in range(4): a(f"v_cvt_pk_bf16_f32 v{VV+q}, v{ACCV+2*q}, v{ACCV+2*q+1}")
    mfma(vr(ZA,16), vr(PK+4,4), ar(ONESF,4), vr(ZA,16))
    for q in range(4, 8): a(f"v_cvt_pk_bf16_f32 v{VV+q}, v{ACCV+2*q}, v{ACCV+2*q+1}")
    KVA = RR
    a(f"v_and_b32 v{vT0}, 16, v{vL}")
    a(f"v_cmp_ne_u32 vcc, 0, v{vT0}")
    mfma(vr(KVA,16), vr(PK,4), vr(VV,4), "0")
    mfma(vr(KVA,16), vr(PK+4,4), vr(VV+4,4), vr(KVA,16))
    a("s_barrier")
    for j in range(8): a(f"v_cndmask_b32 v{ACCK+8+j}, v{ZA+j}, v{ZA+8+j}, vcc")
    set_exec(0x0001000100010001)
    a(f"ds_write_b128 v{vKW2}, {vr(ACCK+8,4)} offset:{SCR+512}")
    a(f"ds_write_b128 v{vKW2}, {vr(ACCK+12,4)} offset:{SCR+528}")
    set_exec(FULL)
    for j in range(4): a(f"v_cndmask_b32 v{ACCK+j}, v{KVA+j}, v{KVA+8+j}, vcc")
    a(f"ds_write_b128 v{vKW2}, {vr(ACCK,4)} offset:{SCR}")
    for j in range(4, 8): a(f"v_cndmask_b32 v{ACCK+j}, v{KVA+j}, v{KVA+8+j}, vcc")
    a(f"ds_write_b128 v{vKW2}, {vr(ACCK+4,4)} offset:{SCR+16}")
    if L == 0: a.wait(vm=initld)
    NQ = 8; QLA = 6
    rq = {}
    def RQ(s):
        b = WFR + (s % NQ) * 4
        if L == 0:
            a(f"ds_read_b64_tr_b16 {ar(b,2)}, v{vTQ} offset:{s*1024}")
            rq[s] = a(f"ds_read_b64_tr_b16 {ar(b+2,2)}, v{vTQ} offset:{s*1024+toff}")
        else:
            ks = KS((s + 16) & 31)
            rq[s] = a(f"ds_read_b128 {ar(b,4)}, v{vTQ2 if ks >= 16 else vTQ} offset:{(ks&15)*1024}")
    QB = L == 1 and opt("QB", 1)
    if L == 1 and not QB: a.wait(vm=qid)
    a.wait_lg_all()
    a("s_barrier")
    for w in range(4): kr = a(f"ds_read_b128 {vr(RR+4*w,4)}, v{vKR2} offset:{16384*w}")
    if not QB:
        for s in range(QLA): RQ(s)
    a(f"v_mov_b32 v{CFQ}, v{CQP}"); a(f"v_mov_b32 v{CFQ+1}, v{CQP}")
    ACCQ = ACCK
    mfma(vr(ACCQ,16), vr(CFQ,4), vr(MA,4), "0")
    a.wait(lg=kr)
    for j in range(4): a(f"v_add_f32 v{RR+j}, v{RR+j}, v{RR+4+j}")
    for j in range(4): a(f"v_add_f32 v{RR+8+j}, v{RR+8+j}, v{RR+12+j}")
    for j in range(4): a(f"v_add_f32 v{RR+j}, v{RR+j}, v{RR+8+j}")
    set_exec((1 << 40) - 1)
    a(f"v_writelane_b32 v{RR}, s{sNON}, 34")
    ws_store4(RR, sAKVP)
    set_exec(FULL)
    stamp("p1_kvpub")
    if QB:
        a.wait(vm=qid)
        a("s_barrier")
        for s in range(QLA): RQ(s)
    touches(L, 2)
    nfill = optL("F0", L, 0, 0); assert nfill <= 6
    for s in range(32):
        a.wait(lg=rq[s])
        b = WFR + (s % NQ) * 4
        mfma(vr(ACCQ,16), ar(b,4), vr(XF+4*s,4), vr(ACCQ,16))
        if s + QLA < 32: RQ(s + QLA)
        if s % 3 == 1 and pump.i < pump.c + nfill: pump.fill(pump.i + 1)
        if L == 0 and opt("WOP", 1) == 1 and s % 8 == 0: wo_issue(s // 8)
        if optL("POIQ", L, 1, 1):
            if s == 2: set_poi(VV)
            if s == 3: tile_poison(VV, sAHTW, 0, 2048)
            if s == 6: tile_poison(VV, sAUW, 0, 1024)
        if s == opt("A1S", 31):
            a1_early(L); vm_a1 = a.vm
        if s == opt("A1M", 99):
            a1_mid(a.vm - vm_a1); vm_a1 = a.vm
    for h in range(2):
        for q in range(4*h, 4*h+4): pk("fma", ACCQ+2*q, vr(ACCQ+2*q,2), vr(vRS,2), sr(sEPS6,2), hi=[1,0,0])
        for q in range(4*h, 4*h+4): pk("mul", T1+2*q, vr(ACCQ+2*q,2), sr(sL2E,2), hi=[1,0])
        for i in range(8*h, 8*h+8):
            a(f"v_exp_f32_e64 v{T1+i}, v{T1+i} clamp")
            a(f"v_max_f32 v{ACCQ+i}, s{sEPS6}, v{ACCQ+i}")
        for q in range(4*h, 4*h+4): pk("add", ACCQ+2*q, vr(ACCQ+2*q,2), vr(T1+2*q,2))
        for q in range(4*h, 4*h+4): a(f"v_cvt_pk_bf16_f32 v{PK+q}, v{ACCQ+2*q}, v{ACCQ+2*q+1}")
        ws_store4(PK + 4 * h, sAPQW, 1024 * h)
        if opt("A1S", 31) == 32 + h:
            a1_early(L); vm_a1 = a.vm
    if L == 0:
        for k in range(4): a(f"v_mov_b32 v{T1+k}, s{sNON}")
        a(f"s_sub_u32 s{sT0}, s{sAPQW}, {PQ[0]:#x}")
        a(f"s_lshr_b32 s{sT0}, s{sT0}, 4")
        a(f"s_add_u32 s{sT0}, s{sT0}, {TAGQ:#x}")
        set_exec(0xff)
        ws_store4(T1, sT0)
        set_exec(FULL)
    stamp("p1_q")
    if opt("NS1", 6) > 6: a("s_barrier")
    a1(L, a.vm - vm_a1)
    if L == 0 and opt("MISC", 0) == 2: misc_loads()
    G["misc"] = a.vm - 1
    pump.fill(pump.c + optL("F1", L, 6, 5))
    touches(L, 3)

def row_stats_publish(soff, SM):
    a(f"v_dot2_f32_bf16 v{SM}, v{XR}, s{sONES}, 0")
    a(f"v_dot2_f32_bf16 v{SM+1}, v{XR}, v{XR}, 0")
    a(f"v_dot2_f32_bf16 v{SM+2}, v{XR+1}, s{sONES}, 0")
    a(f"v_dot2_f32_bf16 v{SM+3}, v{XR+1}, v{XR+1}, 0")
    for j in range(2, 8):
        o = 2 * (j & 1)
        a(f"v_dot2_f32_bf16 v{SM+o}, v{XR+j}, s{sONES}, v{SM+o}")
        a(f"v_dot2_f32_bf16 v{SM+o+1}, v{XR+j}, v{XR+j}, v{SM+o+1}")
    a(f"v_lshlrev_b32 v{vT0}, 3, v{vL}")
    pk("add", SM, vr(SM,2), vr(SM+2,2))
    a(f"v_mov_b32 v{SM+2}, v{SM}")
    a(f"v_mov_b32 v{SM+3}, v{SM+1}")
    a(f"v_permlane32_swap_b32 v{SM}, v{SM+2}")
    a(f"v_permlane32_swap_b32 v{SM+1}, v{SM+3}")
    pk("add", SM, vr(SM,2), vr(SM+2,2))
    a(f"s_mov_b32 exec_hi, 0")
    a(f"v_and_b32 v{SM+1}, 0x7fffffff, v{SM+1}")
    a(f"buffer_store_dwordx2 {vr(SM,2)}, v{vT0}, {sr(SWS,4)}, s{soff} offen sc1")
    set_exec(FULL)

def unpack_xr(XU):
    for j in range(8):
        a(f"v_lshlrev_b32 v{XU+2*j}, 16, v{XR+j}")
        a(f"v_and_b32 v{XU+2*j+1}, 0xffff0000, v{XR+j}")

def p2(L):
    a.c(f"======== P2 layer {L}")
    KF, QF = 128, 192
    ACC = 32; CR = 64; OF = 96; WF = 104; XU = 64
    vK, vKC, vMX = MA, MA + 1, MA + 2
    tr_base(vTA, vTB, None, sKH, L_B)
    a(f"s_lshl_b32 s{sT2}, s{sKH}, 15")
    a(f"v_add_u32 v{vTA}, s{sT2}, v{vTA}")
    a(f"v_add_u32 v{vTB}, s{sT2}, v{vTB}")
    a(f"v_and_b32 v{vT0}, 31, v{vL}")
    a(f"v_mul_u32_u24 v{vKC}, 384, v{vT0}")
    a(f"v_min_u32 v{vT0}, 16, v{vT0}")
    a(f"v_lshlrev_b32 v{vT0}, 4, v{vT0}")
    a(f"v_mul_u32_u24 v{vT1}, 384, v{vHH}")
    a(f"v_add_u32 v{vK}, v{vT0}, v{vT1}")
    a(f"v_and_b32 v{vT2}, 7, v{vL}")
    a(f"v_lshlrev_b32 v{vT2}, {11 if L else 7}, v{vT2}")
    if L == 0:
        a(f"s_sub_u32 s{sT0}, s{sAPQR}, {PQ[0]:#x}")
        a(f"s_lshr_b32 s{sT0}, s{sT0}, 4")
        a(f"s_add_u32 s{sT0}, s{sT0}, {TAGQ:#x}")
    pump.run(min(R1 + 5, optL("B1", L, 21, 21)), refill=bool(optL("B1R", L, 1, 1)))
    if optL("POIQ", L, 1, 1) == 0:
        set_poi(CR)
        tile_poison(CR, sAHTW, 0, 2048)
        tile_poison(CR, sAUW, 0, 1024)
    stamp("beta")
    def ldq():
        a(f"s_mov_b32 s{sT4}, s{sAPQR}")
        for j in range(16):
            a(f"buffer_load_dwordx4 {vr(QF+4*j,4)}, v{vL16}, {sr(SWS,4)}, s{sT4} offen offset:{(j&3)*1024} sc1")
            if j & 3 == 3 and j < 15: a(f"s_add_u32 s{sT4}, s{sT4}, 4096")
    if L == 1:
        ci = lambda: a(f"buffer_load_dword v{vT3}, v{vT2}, {sr(SWS,4)}, s{sAPQR} offen offset:2044 sc1")
        cc = lambda: a(f"v_cmp_eq_u32 vcc, -1, v{vT3}")
    else:
        ci = lambda: a(f"buffer_load_dword v{vT3}, v{vT2}, {sr(SWS,4)}, s{sT0} offen sc1")
        cc = lambda: a(f"v_cmp_ne_u32 vcc, s{sNON}, v{vT3}")
    spec(ci, cc, ldq, 0x36 + L, a.newlabel("PQR"), on=opt("SPEC", 15) & 4)
    stamp("p2_pqc")
    if L == 0:
        a.wait(vm=max(G['wo'], G['misc']))
        for q in range(2):
            a(f"v_permlane32_swap_b32 v{XR+4*q}, v{XR+4*q+2}")
            a(f"v_permlane32_swap_b32 v{XR+4*q+1}, v{XR+4*q+3}")
        a(f"v_lshlrev_b32 v{vB2}, 16, v{vB2}")
    pump.run(min(R1 + 5, pump.i), refill=False)
    pump.run(min(R1 + 5, optL("B2", L, 0, 0)), refill=False)
    pump.fill(pump.c + optL("FK", L, 0, 0))
    a(f"s_xor_b32 s{sT0}, s{sW}, 1")
    a(f"s_lshl_b32 s{sT0}, s{sT0}, 12")
    a(f"v_add_u32 v{vRS}, s{sT0}, v{vL16}")
    a.wait_lg_all()
    a("s_barrier")
    rw = {}
    def RW(j):
        b = WF + (j % 3) * 8
        a(f"ds_read_b64_tr_b16 {vr(b,2)}, v{vTA} offset:{j*2048}")
        a(f"ds_read_b64_tr_b16 {vr(b+2,2)}, v{vTA} offset:{j*2048+1024}")
        a(f"ds_read_b64_tr_b16 {vr(b+4,2)}, v{vTB} offset:{j*2048}")
        rw[j] = a(f"ds_read_b64_tr_b16 {vr(b+6,2)}, v{vTB} offset:{j*2048+1024}")
    lid = {}
    def LD(j):
        if j == 0: a(f"s_mov_b32 s{sSO}, s{sAKVF}")
        elif j & 3 == 0: a(f"s_add_u32 s{sSO}, s{sSO}, {4*768}")
        lid[j] = a(f"buffer_load_dwordx4 {vr(KF+4*j,4)}, v{vK}, {sr(SWS,4)}, s{sSO} offen offset:{(j&3)*768} sc1")
    PLA = optL("PLA", L, 10, 10)
    redo = a.newlabel("P2REDO"); redo2 = a.newlabel("P2REDO2")
    IDMAPS.append(lid)
    with cold(redo, redo2): ldq()
    def window():
        for j in range(PLA): LD(j)
    spec(lambda: a(f"buffer_load_dword v{vT3}, v{vKC}, {sr(SWS,4)}, s{sAKVF} offen offset:272 sc1"),
         lambda: a(f"v_cmp_ne_u32 vcc, s{sNON}, v{vT3}"), window, 0x38 + L, redo2, on=opt("SPEC", 15) & 2)
    stamp("p2_kvc")
    if L == 0:
        sk = a.newlabel("NONW"); nw = a.newlabel("NONC")
        a(f"s_cmp_lg_u32 s{sWI}, 0")
        a(f"s_cselect_b32 s{sT0}, 1, s{sB}")
        a(f"s_cmp_eq_u32 s{sT0}, 0")
        a(f"s_cbranch_scc1 {nw}")
        with cold(nw, sk):
            a(f"v_mov_b32 v{vT0}, s{sNON}")
            set_exec(1)
            a(f"buffer_store_dword v{vT0}, off, {sr(SWS,4)}, 0 offset:{NONCE} sc1")
            set_exec(FULL)
        a.label(sk)
    RW(0); RW(1)
    a(f"v_mov_b32 v{vMX}, 0")
    def M1(j):
        a.wait(vm=lid[j])
        mfma(vr(CR+(j&1)*16,16), vr(KF+4*j,4), vr(QF+4*j,4), "0")
        a(f"v_max3_u32 v{vMX}, v{vMX}, v{KF+4*j}, v{QF+4*j}")
        if j + PLA < 16: LD(j + PLA)
        if j + PLA == 16: touches(L, 9)
    def Va(j):
        c = CR + (j & 1) * 16
        a(f"v_add_f32 v{c+8}, s{sEPS6}, v{c+8}")
        a(f"v_rcp_f32 v{c+8}, v{c+8}")
    def Vb(j):
        c = CR + (j & 1) * 16; o = OF + (j & 1) * 4
        for i in range(4): a(f"v_mul_f32 v{c+i}, v{c+i}, v{c+8}")
        for i in range(2): a(f"v_cvt_pk_bf16_f32 v{o+i}, v{c+2*i}, v{c+2*i+1}")
    def Vc(j):
        c = CR + (j & 1) * 16; o = OF + (j & 1) * 4
        for i in range(4, 8): a(f"v_mul_f32 v{c+i}, v{c+i}, v{c+8}")
        for i in range(2, 4): a(f"v_cvt_pk_bf16_f32 v{o+i}, v{c+2*i}, v{c+2*i+1}")
    M1(0); M1(1)
    Va(0); Vb(0); Vc(0); M1(2)
    nfp = optL("FP2", L, 6, 6)
    kb_saved = False
    for j in range(16):
        o = OF + (j & 1) * 4; b = WF + (j % 3) * 8
        if j + 1 < 16: Va(j + 1)
        a.wait(lg=rw[j])
        mfma(vr(ACC+16,16), vr(b+4,4), vr(o,4), "0" if j == 0 else vr(ACC+16,16))
        if j + 1 < 16: Vb(j + 1)
        mfma(vr(ACC,16), vr(b,4), vr(o,4), "0" if j == 0 else vr(ACC,16))
        if j + 1 < 16: Vc(j + 1)
        if j + 3 < 16: M1(j + 3)
        if j + 2 < 16: RW(j + 2)
    verify(vMX, redo)
    stamp("p2_main")
    lin(sT0, [(sFT, 128), (sRH, 64), (sKH, 32)])
    a(f"v_lshlrev_b32 v{vT0}, 3, v{vHH}")
    for q in range(2): a(f"buffer_load_dwordx2 {vr(152+2*q,2)}, v{vT0}, {sr(SB1,4)}, s{sT0} offen offset:{16*q}")
    for q, r in enumerate((ACC + 24, ACC + 28, ACC + 8, ACC + 12)): a(f"ds_write_b128 v{vRS}, {vr(r,4)} offset:{(q^2)*1024}")
    unpack_xr(XU)
    a(f"v_xor_b32 v{vT1}, 4096, v{vRS}")
    for q in range(4): pk("add", ACC+16+2*q, vr(ACC+16+2*q,2), vr(XU+8+2*q,2))
    for q in range(4): pk("add", ACC+2*q, vr(ACC+2*q,2), vr(XU+2*q,2))
    a.wait_lg_all()
    a("s_barrier")
    own = (ACC, ACC + 4, ACC + 16, ACC + 20)
    ids = [a(f"ds_read_b128 {vr(XU+4*q,4)}, v{vT1} offset:{q*1024}") for q in range(4)]
    for q in range(4):
        a.wait(lg=ids[q])
        pk("add", own[q], vr(own[q],2), vr(XU+4*q,2))
        pk("add", own[q]+2, vr(own[q]+2,2), vr(XU+4*q+2,2))
        a(f"v_cvt_pk_bf16_f32 v{XR+2*q}, v{own[q]}, v{own[q]+1}")
        a(f"v_cvt_pk_bf16_f32 v{XR+2*q+1}, v{own[q]+2}, v{own[q]+3}")
    row_stats_publish(sASTW, OF)
    stamp("p2_stpub")
    pump.run(pump.i, refill=False)
    pump.fill(pump.c + optL("GF", L, 6, 4))
    unpack_xr(XU)
    IDF = 104
    a(f"v_and_b32 v{vT0}, 31, v{vL}")
    a(f"v_lshlrev_b32 v{vT1}, 2, v{vHH}")
    a(f"v_sub_u32 v{vT0}, v{vT0}, v{vT1}")
    a(f"v_mov_b32 v{vT3}, 0x3f80")
    for f in range(2):
        for c in range(4):
            base = 16 * f + ((2 * c) & 3) + 8 * (c >> 1)
            a(f"v_subrev_u32 v{vT1}, {base}, v{vT0}")
            a(f"v_cmp_gt_u32 vcc, 2, v{vT1}")
            a(f"v_lshlrev_b32 v{vT1}, 4, v{vT1}")
            a(f"v_lshlrev_b32 v{vT2}, v{vT1}, v{vT3}")
            a(f"v_cndmask_b32 v{IDF+4*f+c}, 0, v{vT2}, vcc")
    SB = 128
    ht_voff(vRS)
    a(f"v_and_b32 v{vT0}, 31, v{vL}")
    a(f"v_lshlrev_b32 v{vT0}, 3, v{vT0}")
    a(f"v_lshl_add_u32 v{vT2}, v{vHH}, 12, v{vT0}")
    a(f"v_mov_b32 v{SB+18}, {fl(1.0+1e-5)}")
    def issue():
        for p in range(8): a(f"buffer_load_dwordx2 {vr(SB+2*p,2)}, v{vT2}, {sr(SWS,4)}, s{sASTR} offen offset:{p*512} sc1")
    if OPT.get(f"SL{0x34+L:x}", 0): a(f"s_sleep {OPT.get(f'SL{0x34+L:x}', 0)}")
    poll(issue, lambda: stats_check(SB), 0x34 + L)
    stamp("p2_stats")
    if optL("SF", L, 3, 3):
        pump.run(pump.i, refill=False)
        pump.fill(pump.c + optL("SF", L, 3, 3))
    stats_sum(SB)
    a(f"v_mul_f32 v{SB}, {fl(-1/512)}, v{SB}")
    a(f"v_mul_f32 v{SB+1}, {fl(1/512)}, v{SB+1}")
    a(f"v_fma_f32 v{SB+1}, -v{SB}, v{SB}, v{SB+1}")
    a(f"v_max_f32 v{SB+1}, 0, v{SB+1}")
    a(f"v_fmaak_f32 v{SB+1}, v{SB+1}, v{SB+18}, {fl(1e-10)}")
    a(f"v_rsq_f32 v{SB+2}, v{SB+1}")
    a(f"v_mul_f32 v{SB}, v{SB}, v{SB+2}")
    HP_ = 112
    for f in range(2):
        for j in range(4*f, 4*f+4):
            pk("fma", XU+2*j, vr(XU+2*j,2), vr(SB+2,2), vr(SB,2), hi=[1,0,0])
    for f in range(2):
        for j in range(4*f, 4*f+4):
            a(f"v_cvt_pk_bf16_f32 v{HP_+j}, v{XU+2*j}, v{XU+2*j+1}")
        mfma(vr(ACC,16), vr(HP_+4*f,4), vr(IDF+4*f,4), "0" if f == 0 else vr(ACC,16))
    for f in range(2):
        for j in range(4): a(f"v_cvt_pk_bf16_f32 v{ACC+16+4*f+j}, v{ACC+8*f+2*j}, v{ACC+8*f+2*j+1}")
        a(f"buffer_store_dwordx4 {vr(ACC+16+4*f,4)}, v{vRS}, {sr(SWS,4)}, s{sAHTW} offen offset:{2048*f} sc1")
    touches(L, 5)
    stamp(f"p2_{L}")

RING = 96; AUX = 144; NRH = 12
vR1, vR2, vR3, vRA = vT0, vT1, vT2, vRS
LKH = opt("LKH", 9)
class Half:
    def __init__(self, kind, hf, g0):
        self.kind, self.hf, self.g0 = kind, hf, g0
        self.nks, self.srot, self.sbase = (32, sROT1, sAHTR) if kind == 1 else (28, sROT2, sAUR)
        self.vA, self.vC = (vTA, MA + 1) if kind == 1 else (vTB, MA + 2)
        self.vMX = MA
        self.ids = {}; self.cid = None
        IDMAPS.append(self.ids)
    def rb(self, s): return RING + ((self.g0 + s) % NRH) * 4
    def LD(self, s):
        if s == 0: a(f"s_lshl_b32 s{sSO}, s{self.srot}, 11")
        elif s & 1 == 0:
            a(f"s_add_u32 s{sSO}, s{sSO}, 4096")
            a(f"s_cmp_eq_u32 s{sSO}, {self.nks*2048}")
            a(f"s_cselect_b32 s{sSO}, 0, s{sSO}")
        self.ids[s] = a(f"buffer_load_dwordx4 {vr(self.rb(s),4)}, v{self.vA}, {sr(SWS,4)}, s{sSO} offen offset:{(s&1)*2048+self.hf*1024} sc1")
    def window(self):
        for s in range(LKH): self.LD(s)
    def can_issue(self):
        off = 2048 + 1024 + 512 + 252 if self.kind == 1 else self.hf * 1024 + 1020
        self.cid = a(f"buffer_load_dword v{vT3}, v{self.vC}, {sr(SWS,4)}, s{self.sbase} offen offset:{off} sc1")
    def can_check(self): a(f"v_cmp_eq_u32 vcc, -1, v{vT3}")
    def MF(self, s, acc):
        A0 = 32 + 32 * self.hf
        wf = wreg(self.kind, s, 4 * acc, 4); af = vr(self.rb(s), 4)
        c = "0" if s == 0 else vr(A0 + 16 * acc, 16)
        A_, B_ = (wf, af) if self.kind == 1 else (af, wf)
        mfma(vr(A0+16*acc,16), A_, B_, c)
    def steps(self, redo, nxt=None, hook=None, force=True):
        n = self.nks
        a(f"v_mov_b32 v{self.vMX}, 0")
        for s in range(n):
            if hook: hook(s, 0)
            a.wait(vm=self.ids[s])
            self.MF(s, 1)
            if s + LKH < n: self.LD(s + LKH)
            elif nxt is not None:
                if s + LKH == n and nxt.kind == 2: nxt.can_issue()
                nxt.LD(s + LKH - n)
            if s & 1: a(f"v_max3_u32 v{self.vMX}, v{self.vMX}, v{self.rb(s-1)}, v{self.rb(s)}")
            self.MF(s, 0)
            if hook: hook(s, 1)
        verify(self.vMX, redo, force=force)
    def run(self, nxt=None, hook=None):
        lab = a.newlabel("PLAIN"); back = a.newlabel("BACK")
        OOL.append((self, nxt, lab, back))
        self.steps(lab, nxt, hook)
        a.label(back)
    def scr(self, k):
        if self.hf == 0: return 0, k * 2048
        if k < 2: return 1, SCR + k * 2048
        return 0, 6144
    def writes(self):
        A0 = 32 + 32 * self.hf
        for k in (1, 2, 0):
            src = (A0 + 8, A0 + 16, A0 + 24)[k]
            area, o = self.scr(k)
            r = (vR1, vR2, vR3)[k]
            if area == 1:
                a(f"v_lshl_add_u32 v{AUX+10+k}, v{r}, 1, v{AUX+9}"); r = AUX + 10 + k
            for q in range(2): a(f"ds_write_b128 v{r}, {vr(src+4*q,4)} offset:{o+q*1024}")
    def reads(self):
        D = 64 - 32 * self.hf
        if self.hf == 1: a(f"v_lshl_add_u32 v{AUX+10}, v{vRA}, 1, v{AUX+9}")
        a.wait_lg_all()
        a("s_barrier")
        ids = {}
        for q in range(2):
            for k in range(3):
                area, o = self.scr(k)
                ids[(q, k)] = a(f"ds_read_b128 {vr(D+8*k+4*q,4)}, v{AUX+10 if area else vRA} offset:{o+q*1024}")
        A0 = 32 + 32 * self.hf
        for q in range(2):
            a.wait(lg=ids[(q, 1)])
            for j in (0, 2): pk("add", D+4*q+j, vr(D+4*q+j,2), vr(D+8+4*q+j,2))
            a.wait(lg=ids[(q, 2)])
            for j in (0, 2): pk("add", A0+4*q+j, vr(A0+4*q+j,2), vr(D+16+4*q+j,2))
            for j in (0, 2): pk("add", A0+4*q+j, vr(A0+4*q+j,2), vr(D+4*q+j,2))
    def woven(self, D):
        A0 = 32 + 32 * self.hf
        ops = []
        ids = {}
        wl = a.lg - 1
        def bar():
            if self.hf == 1: a(f"v_lshl_add_u32 v{AUX+10}, v{vRA}, 1, v{AUX+9}")
            a.wait(lg=wl); a("s_barrier")
        ops.append(bar)
        def rd(q, k):
            area, o = self.scr(k)
            ids[(q, k)] = a(f"ds_read_b128 {vr(D+8*k+4*q,4)}, v{AUX+10 if area else vRA} offset:{o+q*1024}")
        for q in range(2):
            for k in range(3): ops.append(lambda q=q, k=k: rd(q, k))
        ops.append(None); ops.append(None); ops.append(None)
        for q in range(2):
            for k in range(3):
                for j in range(4):
                    def ad(q=q, k=k, j=j):
                        a.wait(lg=ids[(q, k)])
                        a(f"v_add_f32 v{A0+4*q+j}, v{A0+4*q+j}, v{D+8*k+4*q+j}")
                    ops.append(ad)
        return ops
    def late_check(self, code):
        a.wait(vm=self.cid)
        self.can_check()
        keep = snapshot_ids(); cid = self.cid
        fallback(self.can_issue, self.can_check, code, self.window, f"fb{code:x}")
        restore_ids(keep); self.cid = cid
OOL = []
def mix_setup():
    a(f"v_add_u32 v{vTA}, s{sAHTR}, v{vL16}")
    a(f"v_min_u32 v{vT0}, 31, v{vL}")
    a(f"v_lshrrev_b32 v{vT1}, 1, v{vT0}")
    a(f"v_and_b32 v{vT0}, 1, v{vT0}")
    a(f"v_lshlrev_b32 v{vT0}, 8, v{vT0}")
    a(f"v_lshl_add_u32 v{MA+1}, v{vT1}, 12, v{vT0}")
    a(f"s_lshl_b32 s{sT0}, s{sKH}, 8")
    a(f"v_xor_b32 v{vTB}, s{sT0}, v{vL16}")
    a(f"v_add_u32 v{vTB}, s{sAUR}, v{vTB}")
    a(f"v_min_u32 v{MA+2}, 27, v{vL}")
    a(f"v_lshlrev_b32 v{MA+2}, 11, v{MA+2}")
    for acc, r in ((1, vR1), (2, vR2), (3, vR3)):
        a(f"s_xor_b32 s{sT0}, s{sW}, {acc}")
        a(f"s_lshl_b32 s{sT0}, s{sT0}, 13")
        a(f"v_add_u32 v{r}, s{sT0}, v{vL16}")
    a(f"s_lshl_b32 s{sT0}, s{sW}, 13")
    a(f"v_add_u32 v{vRA}, s{sT0}, v{vL16}")
    a(f"v_sub_u32 v{AUX+9}, {L_A}, v{vL16}")

def p34(L):
    a.c(f"======== P3 layer {L}")
    B1R = AUX
    pump.run(pump.i, refill=True)
    pump.run(32)
    a.wait_lg_all()
    if L == 1: a("s_barrier")
    pump.setup(2, L, extra=optL("XB", L, 0, 8))
    pump.run(optL("V2", L, 5, 0), refill=False)
    pump.fill(pump.c + optL("V2F", L, 0, 8))
    assert pump.c <= R2
    if L == 0: a("s_barrier")
    for j in range(4):
        a(f"v_lshlrev_b32 v{B1R+2*j}, 16, v{152+j}")
        a(f"v_and_b32 v{B1R+2*j+1}, 0xffff0000, v{152+j}")
    mix_setup()
    K1 = -2.0 * 0.7978845608028654 * LOG2E
    a(f"v_mov_b32 v{AUX+8}, {fl(K1)}")
    SPX = optL("SPX", L, 1, 1)
    h3a = Half(1, 0, 0); h3b = Half(1, 1, 32); h4a = Half(2, 0, 64); h4b = Half(2, 1, 92)
    stamp("p3_delta")
    idle = a.newlabel("P3IDLE"); join = a.newlabel("P3JOIN")
    pst = (pump.i, pump.c, dict(pump.vid), dict(pump.lid))
    a(f"s_cmp_eq_u32 s{sP3}, 7")
    a(f"s_cbranch_scc1 {idle}")
    IDN = optL("IDT", L, 18, 0)
    WE3 = optL("WE3", L, 0, 0) and SPX
    ntail = optL("V2T", L, 0, 0); nepi = optL("V2E", L, 6, 3)
    def gelu_store(hf):
        A0 = 32 + 32 * hf; T = A0 + 16
        for q in range(4): pk("mul", T+2*q, vr(A0+2*q,2), vr(A0+2*q,2))
        for q in range(4): pk("fma", T+2*q, vr(T+2*q,2), sr(sT2,2), vr(AUX+8,2), hi=[1,0,0])
        for q in range(4): pk("mul", T+2*q, vr(T+2*q,2), vr(A0+2*q,2))
        for i in range(8): a(f"v_exp_f32 v{T+i}, v{T+i}")
        for q in range(4): pk("add", T+2*q, vr(T+2*q,2), "1.0", hi=[1,0])
        for i in range(8): a(f"v_rcp_f32 v{T+i}, v{T+i}")
        for q in range(4): pk("mul", A0+2*q, vr(A0+2*q,2), vr(T+2*q,2))
        for q in range(4): a(f"v_cvt_pk_bf16_f32 v{T+8+q}, v{A0+2*q}, v{A0+2*q+1}")
        ws_store4(T + 8, sAUW, 1024 * hf)
    with cond():
        a(f"s_mov_b32 s{sT2}, s{sGK}")
        spec(h3a.can_issue, h3a.can_check, h3a.window, 0x50 + L, a.newlabel("SREDO"))
        stamp("canary")
        h3a.run(nxt=h3b)
        stamp("gemm_a")
        h3a.writes()
        pump.fill(pump.i + nepi)
        for q in range(4): pk("add", 32+2*q, vr(32+2*q,2), vr(B1R+2*q,2))
        h3a.reads()
        gelu_store(0)
        stamp("epi_a")
        i0 = pump.i
        def hk(s, k):
            if k == 1 and s + LKH >= 32 and (s & 1) and pump.i < i0 + ntail: pump.fill(pump.i + 1)
        h3b.run(nxt=h4a if SPX else None, hook=hk)
        assert ntail <= 5
        stamp("gemm_b")
        h3b.writes()
        n2 = pump.i
        nmid = pump.i
        if optL("EB", L, 1, 0): pump.run(pump.i if optL("EB", L, 1, 0) == 2 else min(R2, pump.i), refill=False, tmp=(AUX + 14, AUX + 15))
        cact = pump.c
        pump.fill(pump.i + optL("V2E2", L, 4, 3))
        nact = pump.i; n2 = nact - n2
        if not WE3:
            for q in range(4): pk("add", 64+2*q, vr(64+2*q,2), vr(B1R+2*q,2))
            h3b.reads()
            gelu_store(1)
        else: a.wait_lg_all()
        if SPX: h4a.late_check(0x60 + L)
        a("s_nop 1")
    main_out = a.out; a.out = []
    a.label(idle)
    pump.i, pump.c, pump.vid, pump.lid = pst
    if IDN:
        a(f"v_lshrrev_b32 v{RING}, 2, v{vL}")
        a(f"v_lshlrev_b32 v{RING}, 12, v{RING}")
        a(f"v_and_b32 v{RING+1}, 3, v{vL}")
        a(f"v_lshl_add_u32 v{RING}, v{RING+1}, 7, v{RING}")
        a(f"s_bfe_u32 s{sT0}, s{sWI}, 0x20002")
        a(f"s_mul_i32 s{sT0}, s{sT0}, {28*65536}")
        a(f"s_and_b32 s{sT1}, s{sB}, 7")
        a(f"s_lshl_b32 s{sT1}, s{sT1}, 9")
        a(f"s_add_u32 s{sT0}, s{sT0}, s{sT1}")
        a(f"v_add_u32 v{RING}, s{sT0}, v{RING}")
        a(f"s_add_u32 s{sT1}, s{sW}, s{sROT2}")
        a(f"s_add_u32 s{sT1}, s{sT1}, {28 - IDN}")
        for k in range((IDN + 3) // 4):
            a(f"s_sub_u32 s{sT2}, s{sT1}, 28")
            a(f"s_cselect_b32 s{sT1}, s{sT1}, s{sT2}")
            a(f"s_lshl_b32 s{sT2}, s{sT1}, 16")
            a(f"buffer_load_dword v31, v{RING}, {sr(SW2,4)}, s{sT2} offen")
            a(f"s_add_u32 s{sT1}, s{sT1}, 4")
    nlate = n2 if SPX else 0
    pump.fill(nmid)
    if SPX:
        poll(h4a.can_issue, h4a.can_check, 0x5e)
        h4a.window()
    pump.run(cact, refill=False, tmp=(AUX + 14, AUX + 15))
    pump.fill(nact)
    a("s_nop 1")
    a(f"s_branch {join}")
    COLD.extend(a.out); a.out = main_out
    a.label(join)
    a.hist = []
    stamp(f"p3_{L}")
    a.c(f"======== P4 layer {L}")
    if L == 0:
        set_poi(56)
        tile_poison(56, sAX2W, 0, 2048)
        tile_poison(56, sAPQW, PQ[1] - PQ[0], 1024)
        kv_poison(56, 1)
    cinit = pst[1]
    NKT = opt("NKT", 10)
    def kvdma(j):
        if j == 0: a(f"s_add_u32 s{sT3}, s{sAWQT}, s{sWA}")
        if j & 3 == 0:
            a(f"s_add_u32 m0, s{sWA}, {j*1024}")
            if j: a(f"s_add_u32 s{sT3}, s{sT3}, 4096")
        return a(f"buffer_load_dwordx4 v{vL16}, {sr(SWS,4)}, s{sT3} offen offset:{(j&3)*1024} sc1 lds")
    if SPX:
        WV = opt("WV", 2); AH = optL("AH", L, 3, 4)
        pump.run(min(pump.i, pump.c + optL("PRE", L, 0, 0)), tmp=(AUX, AUX + 1))
        landed = pump.i; c0 = pump.c
        w3 = []
        if WE3:
            w3 = h3b.woven(72)
            w3 = w3[:7] + [(lambda j=j: a(f"v_add_f32 v{64+j}, v{64+j}, v{B1R+j}")) for j in range(8)] + w3[10:]
            T = 72
            for i in range(8): w3.append(lambda i=i: a(f"v_mul_f32 v{T+i}, v{64+i}, v{64+i}"))
            for i in range(8): w3.append(lambda i=i: a(f"v_fma_f32 v{T+i}, v{T+i}, s{sGK}, v{AUX+8}"))
            for i in range(8): w3.append(lambda i=i: a(f"v_mul_f32 v{T+i}, v{T+i}, v{64+i}"))
            for i in range(8): w3.append(lambda i=i: a(f"v_exp_f32 v{T+i}, v{T+i}"))
            for i in range(8): w3.append(lambda i=i: a(f"v_add_f32 v{T+i}, 1.0, v{T+i}"))
            for i in range(8): w3.append(lambda i=i: a(f"v_rcp_f32 v{T+i}, v{T+i}"))
            for i in range(8): w3.append(lambda i=i: a(f"v_mul_f32 v{64+i}, v{64+i}, v{T+i}"))
            for q in range(4): w3.append(lambda q=q: a(f"v_cvt_pk_bf16_f32 v{80+q}, v{64+2*q}, v{64+2*q+1}"))
            w3.append(lambda: ws_store4(80, sAUW, 1024))
        W3S = opt("W3S", 4)
        def hk(s, k):
            for _ in range(W3S):
                if w3:
                    f = w3.pop(0)
                    if f: f()
            if k == 1:
                lim = max(min(landed, c0 + WV * (s + 1)), min(28, s + AH))
                pump.run(lim, tmp=(AUX, AUX + 1), first=(s == 0))
            if k == 0 and s >= cinit:
                assert pump.c > s
                if not opt("NOPUMP", 0): a.wait(lg=pump.lid[s])
        h4a.run(nxt=h4b, hook=hk)
        assert not w3
    else:
        pump.run(28, tmp=(AUX, AUX + 1))
        stamp("p4_w2")
        a.wait_lg_all()
        spec(h4a.can_issue, h4a.can_check, h4a.window, 0x60 + L, a.newlabel("SREDO"))
        stamp("canary")
        h4a.run(nxt=h4b)
    stamp("gemm_a")
    def resid(hf):
        A0 = 32 + 32 * hf; XU = AUX
        for j in range(4):
            a(f"v_lshlrev_b32 v{XU+2*j}, 16, v{XR+4*hf+j}")
            a(f"v_and_b32 v{XU+2*j+1}, 0xffff0000, v{XR+4*hf+j}")
        for q in range(4): pk("add", XU+2*q, vr(XU+2*q,2), vr(vB2-1,2), lo=[0,1], hi=[1,1])
        for q in range(4): pk("add", A0+2*q, vr(A0+2*q,2), vr(XU+2*q,2))
    def out(hf):
        A0 = 32 + 32 * hf
        for q in range(4): a(f"v_cvt_pk_bf16_f32 v{XR+4*hf+q}, v{A0+2*q}, v{A0+2*q+1}")
        if L == 0: ws_store4(XR + 4 * hf, sAX2W, 2048 * hf)
        else:
            a(f"v_permlane32_swap_b32 v{XR+4*hf}, v{XR+4*hf+2}")
            a(f"v_permlane32_swap_b32 v{XR+4*hf+1}, v{XR+4*hf+3}")
            a(f"buffer_store_dwordx4 {vr(XR+4*hf,4)}, v{vOUT}, {sr(SOUT,4)}, 0 offen offset:{64*hf}")
    wv = []
    if optL("WE4", L, 1, 1):
        h4a.writes()
        wv = h4a.woven(40)
        XU = AUX
        pre = []
        for j in range(4):
            pre.append(lambda j=j: a(f"v_lshlrev_b32 v{XU+2*j}, 16, v{XR+j}"))
            pre.append(lambda j=j: a(f"v_and_b32 v{XU+2*j+1}, 0xffff0000, v{XR+j}"))
        for j in range(8): pre.append(lambda j=j: a(f"v_add_f32 v{32+j}, v{32+j}, v{vB2}"))
        for j in range(8): wv.append(lambda j=j: a(f"v_add_f32 v{32+j}, v{32+j}, v{XU+j}"))
        wv = pre[:8] + wv[:1] + wv[1:7] + pre[8:] + wv[10:]
        wv.append(lambda: out(0))
    else:
        h4a.writes(); resid(0); h4a.reads(); out(0)
    h4b.late_check(0x62 + L)
    stamp("epi_a")
    kc = [0]
    WPS = opt("WPS", 2)
    def hk(s, k):
        for _ in range(WPS if k == 1 else WPS - 1):
            if wv:
                f = wv.pop(0)
                if f: f()
        if L == 0 and k == 1 and s + LKH >= 28 and kc[0] < NKT:
            kvdma(kc[0]); kc[0] += 1
    h4b.run(hook=hk)
    assert not wv
    stamp("gemm_b")
    if L == 0 and opt("XE", 0) == 1: xa_start()
    h4b.writes()
    if L == 0 and opt("XE", 0) == 2: xa_start()
    if L == 0 and opt("KE", 2):
        while kc[0] < 12: kvdma(kc[0]); kc[0] += 1
    resid(1); h4b.reads()
    if L == 0 and opt("KE", 2) == 2:
        while kc[0] < 16: G["kvlast"] = kvdma(kc[0]); kc[0] += 1
    out(1)
    if L == 0:
        row_stats_publish(sAS2W, 32)
        for j in range(kc[0], 16): G["kvlast"] = kvdma(j)
    stamp(f"p4_{L}")

def emit_ool():
    for h, nxt, lab, back in OOL:
        a.label(lab)
        a.hist = []
        a.vm_done = a.vm
        h.window()
        h.steps(lab, force=False)
        if nxt is not None:
            if nxt.kind == 2: nxt.can_issue()
            nxt.window()
            a("s_waitcnt vmcnt(0)")
        a("s_nop 15")
        a(f"s_branch {back}")

prologue()
for L in range(2):
    p1(L); p2(L); p34(L)
finish()
a.out.extend(COLD); COLD.clear()
a.label("L_END")
emit_ool()
a.out.extend(COLD)
a.label("L_EXIT")
a("s_endpgm")

hdr = open(f"ref.s").read().split("; Override launch")[0]
def wrap(body): return hdr + f"""; @launch grid=(256,1,1) block=(256,1,1) lds={LDS_BYTES}
.amdgcn_target "amdgcn-amd-amdhsa--gfx950"
.text
.globl {NAME}_kernel
.p2align 8
.type {NAME}_kernel,@function
{NAME}_kernel:
""" + body + f""".section .rodata,"a"
.p2align 6
.amdhsa_kernel {NAME}_kernel
  .amdhsa_next_free_vgpr 512
  .amdhsa_next_free_sgpr 102
  .amdhsa_accum_offset 256
  .amdhsa_group_segment_fixed_size 0
  .amdhsa_kernarg_size 88
  .amdhsa_user_sgpr_count 2
  .amdhsa_user_sgpr_kernarg_segment_ptr 1
  .amdhsa_system_sgpr_workgroup_id_x 1
  .amdhsa_float_denorm_mode_32 3
.end_amdhsa_kernel
"""
lines = a.out
if opt("ALN", 32):
    from align import align
    lines, st = align(lines, wrap, B=opt("ALN", 32), NOPC=opt("NOPC", 150))
    print("align: straddles %d -> %d, widened %d, bytes %d -> %d" % st, file=sys.stderr)
out = wrap("\n".join(lines) + "\n")
outp = [x for x in sys.argv[1:] if x.endswith(".s")]
open(outp[0], "w").write(out)
if DIAG: open(outp[0] + ".stamps", "w").write("\n".join(stamp_names))
if DIAG: open(outp[0] + ".sites", "w").write(" ".join(site_names))
```

```python
import sys, struct
from contextlib import contextmanager
from asmlib import Asm, vr, ar, sr

NAME = "interleave_layers__linear_attn_block__mixer_token_mlp__prompt"
DIAG = "--diag" in sys.argv
OPT = {}
for a_ in sys.argv:
    if a_.startswith("-D"):
        k_, v_ = a_[2:].split("="); OPT[k_] = int(v_)
def opt(k, d): return OPT.get(k, d)
def optL(k, L, d0, d1): return OPT.get(f"{k}_{L}", (d0, d1)[L])
def f2u(x): return struct.unpack("<I", struct.pack("<f", x))[0]
def fl(x): return "0x%08x" % f2u(x)
FULL = (1 << 64) - 1
LOG2E = 1.4426950408889634

KVF = [0x2000, 0xC0000]; KVP = [0x8000, 0xC6000]; ST = [0x166000, 0x1A6000]; ST2 = 0x1E6000
SELFP = 0xC0000
PQ = [0x400000, 0x600000]; HT = [0x800000, 0xA00000]; U = [0xC00000, 0xE00000]; X2 = 0x1000000
WQT = 0x1200000
TS = 0x1400000
DUMP = 0x1500000
ERRS = 0x1520000
NONCE = 0x0; TAGQ = 0x1540000
WS_BYTES = 268435456
L_A = 32768; L_B = 98304; LDS_BYTES = 163840
NS = 6; SCR = 12288
sW = 3
SX, SWQKV, SWO, SW1, SW2, SWS, SOUT, SDBG, SB1, SB2, SCODE = 4, 8, 12, 16, 20, 24, 28, 32, 36, 40, 44
sST, sDT, sRB, sHP, sDT3, sFT, sP3, sRH, sKH, sWB, sTO, sONES = 48, 49, 50, 51, 52, 53, 54, 55, 56, 57, 58, 59
sEPS6 = 60; sB = 61
sT0, sT1, sT2, sT3, sT4, sT5 = 62, 63, 64, 65, 66, 67
sSO = 68; sW1K = 69; sTS = 70
sL2E = 74; sWA = 75; sROTX = 76; sROT1 = 77; sROT2 = 78; sRED = 79; sWOFF = 80; sKB = 81; sXC = 82; sWI = 83
sKA = 84
sAKVP, sAPQW, sAPQR, sAKVF, sASTW, sASTR, sAHTW, sAHTR, sAUW, sAUR, sAX2W, sAX2R, sAS2W, sAS2R, sAWQT, sGK = range(84, 100)
sDUM = 100; sNON = 101; sRX0 = 73
vL, vL16, vTA, vTB, vT0, vT1, vT2, vT3 = 0, 1, 2, 3, 4, 5, 6, 7
XR = 8
CKP, CVP, CQP, vB2, vRS, vHH, vOUT, vTSV = 16, 17, 18, 19, 20, 21, 22, 23
vWA, vWB, vWTA, vWTB = 24, 25, 26, 27
MA = 28

a = Asm()
stamp_names = []
G = {}

@contextmanager
def cond():
    st = (a.vm, a.vm_done, a.lg, a.lg_done); h = list(a.hist)
    yield
    a.vm, a.vm_done, a.lg, a.lg_done = st[0], min(st[1], st[0]), st[2], min(st[3], st[2])
    a.hist = h

COLD = []
@contextmanager
def cold(label, back=None):
    st = (a.vm, a.vm_done, a.lg, a.lg_done, list(a.hist)); main = a.out
    a.out = []
    a.label(label)
    yield
    if back:
        a("s_nop 1")
        a(f"s_branch {back}")
    COLD.extend(a.out)
    a.out = main
    a.vm, a.vm_done, a.lg, a.lg_done, a.hist = st

def stamp(name):
    if not DIAG: return
    if "--lite" in sys.argv and name not in ("start", "end", "p4_0"): return
    k = len(stamp_names); stamp_names.append(name)
    if opt("CYC", 0) and name not in ("start", "end"): a(f"s_memtime {sr(sTS,2)}")
    else: a(f"s_memrealtime {sr(sTS,2)}")
    if name in ("start", "end"): a(f"s_memtime s[0:1]") if name == "end" else a(f"s_memtime {sr(sTS+2,2)}")
    a("s_waitcnt lgkmcnt(0)"); a.lg_done = a.lg
    a(f"v_writelane_b32 v{vTSV}, s{sTS}, {k}")
    if name in ("start", "end"): a(f"v_writelane_b32 v{vTSV}, s{sTS+2 if name == 'start' else 0}, {62 if name == 'start' else 63}")

def srd(base, ptr, nbytes):
    a(f"s_mov_b32 s{base}, s{ptr}")
    a(f"s_and_b32 s{base+1}, s{ptr+1}, 0xffff")
    a(f"s_mov_b32 s{base+2}, {nbytes:#x}")
    a(f"s_mov_b32 s{base+3}, 0x20000")

def set_exec(mask):
    if mask == FULL: a("s_mov_b64 exec, -1")
    elif mask <= 64: a(f"s_mov_b64 exec, {mask}")
    else:
        a(f"s_mov_b32 exec_lo, {mask & 0xffffffff:#x}"); a(f"s_mov_b32 exec_hi, {mask >> 32:#x}")

def lin(dst, terms, const=0):
    first = True
    for r, m in terms:
        t = dst if first else sT5
        if m == 1 and not first: a(f"s_add_u32 s{dst}, s{dst}, s{r}"); continue
        if m & (m - 1) == 0: a(f"s_lshl_b32 s{t}, s{r}, {m.bit_length()-1}")
        else: a(f"s_mul_i32 s{t}, s{r}, {m}")
        if not first: a(f"s_add_u32 s{dst}, s{dst}, s{sT5}")
        first = False
    if const: a(f"s_add_u32 s{dst}, s{dst}, {const:#x}")

def timeout_path(code):
    a(f"s_mov_b32 s{sTO}, 0")
    if DIAG:
        a(f"v_mov_b32 v{vT3}, {code}")
        a(f"s_mov_b32 s{sT5}, {ERRS:#x}")
        a(f"buffer_store_dword v{vT3}, off, {sr(SWS,4)}, s{sT5}")
        a("s_waitcnt vmcnt(0)")

def poll_loop(issue, check, code, done):
    top = a.newlabel("POLL"); go = a.newlabel("PGO")
    a.label(top)
    mark(f"retry{code:x}")
    if opt("PS", 2) and not (code == 0x20 and opt("A1NS", 1)): a(f"s_sleep {opt('PS', 2)}")
    a(f"s_sub_u32 s{sTO}, s{sTO}, 1")
    a(f"s_cbranch_scc0 {go}")
    timeout_path(code)
    a(f"s_branch {done}")
    a.label(go)
    issue()
    a.wait_vm_all(force=True)
    check()
    a(f"s_cbranch_vccnz {top}")
    a(f"s_branch {done}")

def poll(issue, check, code, pre=None):
    done = a.newlabel("PDONE"); rt = a.newlabel("PRT")
    if pre is not None: a.wait(vm=pre)
    else:
        issue()
        a.wait_vm_all(force=True)
    check()
    a(f"s_cbranch_vccnz {rt}")
    with cold(rt): poll_loop(issue, check, code, done)
    a.label(done)

def fallback(issue, check, code, reissue, name):
    fb = a.newlabel("FB"); back = a.newlabel("FBB"); mid = a.newlabel("FBM"); first = a.newlabel("FBF")
    force_fail("FRC")
    a(f"s_cbranch_vccnz {fb}")
    with cold(fb, back):
        mark(name)
        issue()
        a.wait_vm_all(force=True)
        check()
        a(f"s_cbranch_vccz {mid}")
        poll_loop(issue, check, code, mid)
        a.label(mid)
        reissue()
        a("s_waitcnt vmcnt(0)")
    a.label(back)

def poll1(addr, code, tmp=None, tag=False):
    cmp = (lambda r: a(f"v_cmp_ne_u32 vcc, s{sNON}, v{r}")) if tag else (lambda r: a(f"v_cmp_eq_u32 vcc, -1, v{r}"))
    if tmp is None or not opt("PP", 0):
        poll(lambda: a(f"buffer_load_dword v{vT3}, {addr} sc1"), lambda: cmp(vT3), code)
        return
    top = a.newlabel("PP"); done = a.newlabel("PPD")
    a(f"buffer_load_dword v{vT3}, {addr} sc1")
    a(f"s_nop {opt('PPN', 15)}")
    a.label(top)
    for r, o in ((vT3, tmp), (tmp, vT3)):
        a(f"buffer_load_dword v{o}, {addr} sc1")
        a("s_waitcnt vmcnt(1)")
        cmp(r)
        a(f"s_cbranch_vccz {done}")
    h = list(a.hist)
    a(f"s_sub_u32 s{sTO}, s{sTO}, 2")
    a(f"s_cbranch_scc0 {top}")
    timeout_path(code)
    a.label(done)
    a.hist = h
    a.vm -= 1
    a.vm_done = a.vm - 1

SLD = {}
SPD = {0x50: 1, 0x51: 1, 0x60: 1, 0x61: 1, 0x36: 1, 0x38: 1, 0x39: 1, 0x40: 1}
def spec(can_issue, can_check, window, code, redo, on=True):
    d = OPT.get(f"SL{code:x}", SLD.get(code, 0))
    if d: a(f"s_sleep {d}")
    on = OPT.get(f"SP{code:x}", SPD.get(code, 0))
    go = a.newlabel("GO")
    if on:
        can_issue(); cid = a.vm - 1
        window()
        a.wait(vm=cid)
        can_check()
        keep = snapshot_ids()
        fallback(can_issue, can_check, code, window, f"fb{code:x}")
        restore_ids(keep)
    else:
        poll(can_issue, can_check, code)
        window()
    keep = snapshot_ids()
    with cold(redo, go):
        window()
        a("s_waitcnt vmcnt(0)")
    restore_ids(keep)
    a.label(go)

IDMAPS = []
def snapshot_ids(): return [dict(m) for m in IDMAPS]
def restore_ids(k):
    for m, v in zip(IDMAPS, k):
        m.clear(); m.update(v)

site_names = []
def mark(name):
    if not (DIAG and opt("CNT", 0)): return
    if name.startswith("retry") and name not in ("retry20", "retry34", "retry35", "retry37"): return
    k = len(site_names); site_names.append(name)
    a(f"s_bitset1_b32 s2, {k}")
force_n = [0]
def force_fail(kind):
    if not opt(kind, 0): return
    k = force_n[0] % 32; force_n[0] += 1
    l = a.newlabel("FF")
    a(f"s_bitcmp1_b32 s2, {k}")
    a(f"s_cbranch_scc1 {l}")
    a(f"s_bitset1_b32 s2, {k}")
    a("s_mov_b64 vcc, 1")
    a.label(l)

def verify(vMX, redo, force=True):
    ok = a.newlabel("VOK"); bad = a.newlabel("VBAD")
    a(f"v_cmp_eq_u32 vcc, -1, v{vMX}")
    if force: force_fail("FRV")
    a(f"s_cbranch_vccnz {bad}")
    with cold(bad, ok):
        if force: mark("redo")
        a("s_waitcnt vmcnt(0)")
        a(f"s_sub_u32 s{sTO}, s{sTO}, 64")
        a(f"s_cbranch_scc0 {redo}")
        a(f"s_mov_b32 s{sTO}, 0")
        a("s_nop 15")
    a.label(ok)

def finish():
    if opt("AMP", -1) >= 0:
        lp = a.newlabel("AMPL"); sk = a.newlabel("AMPS")
        stamp("pre_end")
        a(f"s_cmp_lg_u32 s{sB}, 77")
        a(f"s_cbranch_scc1 {sk}")
        a(f"v_readlane_b32 s{sT0}, v{vTSV}, 0")
        a(f"v_readlane_b32 s{sT1}, v{vTSV}, {opt('AMP', 0)}")
        a(f"s_memrealtime s[70:71]")
        a("s_waitcnt lgkmcnt(0)")
        a(f"s_sub_u32 s{sT1}, s{sT1}, s{sT0}")
        a(f"s_lshl_b32 s{sT1}, s{sT1}, 2")
        a(f"s_add_u32 s{sT1}, s70, s{sT1}")
        a.label(lp)
        a(f"s_memrealtime s[70:71]")
        a("s_waitcnt lgkmcnt(0)")
        a(f"s_sub_u32 s{sT2}, s70, s{sT1}")
        a(f"s_cmp_lt_i32 s{sT2}, 0")
        a(f"s_cbranch_scc1 {lp}")
        a.label(sk)
    if DIAG:
        a(f"v_writelane_b32 v{vTSV}, s{sTO}, 61")
        if opt("CNT", 0): a(f"v_writelane_b32 v{vTSV}, s2, 60")
        stamp("end")
        lin(sT0, [(sB, 1024), (sW, 256)], TS)
        a(f"v_lshlrev_b32 v{vT0}, 2, v{vL}")
        a(f"buffer_store_dword v{vTSV}, v{vT0}, {sr(SWS,4)}, s{sT0} offen")
    a("s_endpgm")

def pk(op, d, x, y, z=None, hi=None, lo=None):
    ops = [x, y] + ([z] if z is not None else [])
    m = ""
    if lo: m += " op_sel:[" + ",".join(map(str, lo)) + "]"
    if hi: m += " op_sel_hi:[" + ",".join(map(str, hi)) + "]"
    a(f"v_pk_{op}_f32 {vr(d,2)}, " + ", ".join(ops) + m)

def mfma(d, A, B, C):
    a(f"v_mfma_f32_32x32x16_bf16 {d}, {A}, {B}, {C}")

def ws_store4(reg, soff, off=0): return a(f"buffer_store_dwordx4 {vr(reg,4)}, v{vL16}, {sr(SWS,4)}, s{soff} offen offset:{off} sc1")

def tr_base(dst_a, dst_b, sel64, sel32, region):
    a(f"v_bfe_u32 v{vT0}, v{vL}, 2, 2")
    a(f"v_lshl_add_u32 v{vT0}, v{vHH}, 2, v{vT0}")
    a(f"v_lshlrev_b32 v{dst_a}, 7, v{vT0}")
    a(f"v_bfe_u32 v{vT1}, v{vL}, 3, 1")
    a(f"v_lshl_add_u32 v{dst_a}, v{vT1}, 6, v{dst_a}")
    a(f"v_bfe_u32 v{vT1}, v{vL}, 4, 1")
    a(f"v_lshl_add_u32 v{dst_a}, v{vT1}, 5, v{dst_a}")
    a(f"v_and_b32 v{vT1}, 3, v{vL}")
    a(f"v_lshl_add_u32 v{dst_a}, v{vT1}, 3, v{dst_a}")
    for sel, sh in ((sel64, 6), (sel32, 5)):
        if sel is not None:
            a(f"s_lshl_b32 s{sT5}, s{sel}, {sh}")
            a(f"v_xor_b32 v{dst_a}, s{sT5}, v{dst_a}")
    a(f"v_add_u32 v{dst_a}, {region}, v{dst_a}")
    a(f"v_xor_b32 v{dst_b}, 64, v{dst_a}")

def dma_voff(dst, dst2, pitch, scol):
    a(f"v_lshrrev_b32 v{vT0}, 3, v{vL}")
    a(f"v_mul_u32_u24 v{dst}, {pitch}, v{vT0}")
    a(f"v_bfe_u32 v{vT1}, v{vL}, 4, 1")
    a(f"v_lshlrev_b32 v{vT1}, 2, v{vT1}")
    a(f"v_and_b32 v{vT0}, 7, v{vL}")
    a(f"v_xor_b32 v{vT0}, v{vT0}, v{vT1}")
    a(f"v_lshl_add_u32 v{dst}, v{vT0}, 4, v{dst}")
    a(f"v_add_u32 v{dst}, s{scol}, v{dst}")
    a(f"v_add_u32 v{dst2}, {8*pitch-1024}, v{dst}")

R1, R2 = 16, 11
def wreg(kind, t, j, n):
    r, base = (R1, 0) if kind == 1 else (R2, R1 * 8)
    if t < r: return ar(base + 8 * t + j, n)
    t -= r
    if t < 5: return ar(216 + 8 * t + j, n)
    return vr(160 + 8 * (t - 5) + j, n)

class Pump:
    def setup(self, kind, L, extra=0):
        self.kind = kind
        self.pitch, self.srd, self.n = (3584, SW1, 32) if kind == 1 else (4096, SW2, 28)
        self.t0 = 0 if L == 0 else (R1 if kind == 1 else R2)
        self.extra = extra
        self.ns = opt("NS1", 6) if kind == 1 else NS
        self.i = self.t0; self.c = self.t0; self.vid = {}; self.lid = {}
        a.c(f"pump setup W{kind}")
        a(f"s_lshl_b32 s{sT5}, s{sKH}, 5")
        a(f"v_xor_b32 v{vWTA}, s{sT5}, v{vWTA}")
        a(f"v_xor_b32 v{vWTB}, s{sT5}, v{vWTB}")
        lin(sT4, [(sFT if kind == 1 else sST, 128), (sW, self.n * 16 * self.pitch)])
        dma_voff(vWA, vWB, self.pitch, sT4)
        rot = sROT1 if kind == 1 else sROT2
        a(f"s_add_u32 s{sT5}, s{rot}, {self.t0}")
        a(f"s_sub_u32 s{sWOFF}, s{sT5}, {self.n}")
        a(f"s_cselect_b32 s{sWOFF}, s{sT5}, s{sWOFF}")
        a(f"s_mul_i32 s{sWOFF}, s{sWOFF}, {16*self.pitch}")
    def place(self, t):
        k = t - self.t0
        if k < self.extra: return ("B", k * 2048)
        return ("A", ((k - self.extra) % self.ns) * 2048)
    def prev_user(self, t):
        p = t - self.ns
        return p if p - self.t0 >= self.extra else None
    def room(self, lag=0):
        p = self.prev_user(self.i)
        return p is None or p < self.c - lag
    def issue1(self):
        t = self.i
        if opt("NOPUMP", 0):
            self.vid[t] = None; self.i += 1; return
        p = self.prev_user(t)
        if p is not None: a.wait(lg=self.lid[p])
        reg, o = self.place(t)
        a(f"s_add_u32 m0, s{sWB if reg == 'B' else sWA}, {o}")
        if t > self.t0:
            a(f"s_add_u32 s{sWOFF}, s{sWOFF}, {16*self.pitch}")
            a(f"s_cmp_eq_u32 s{sWOFF}, {self.n*16*self.pitch}")
            a(f"s_cselect_b32 s{sWOFF}, 0, s{sWOFF}")
        a(f"buffer_load_dwordx4 v{vWA}, {sr(self.srd,4)}, s{sWOFF} offen lds")
        self.vid[t] = a(f"buffer_load_dwordx4 v{vWB}, {sr(self.srd,4)}, s{sWOFF} offen offset:1024 lds")
        self.i += 1
    def fill(self, upto=None):
        lim = self.n if upto is None else min(self.n, upto)
        while self.i < lim and self.room(): self.issue1()
    def run(self, target, refill=True, tmp=(vT0, vT1), first=True):
        target = min(target, self.n)
        haveB = not first
        while self.c < target:
            t = self.c
            if t >= self.i: self.issue1()
            if opt("NOPUMP", 0):
                self.c += 1; continue
            reg, o = self.place(t)
            ta, tb = vWTA, vWTB
            if reg == "B":
                ta, tb = tmp
                if not haveB:
                    a(f"v_add_u32 v{ta}, 65536, v{vWTA}"); a(f"v_add_u32 v{tb}, 65536, v{vWTB}"); haveB = True
            a.wait(vm=self.vid[t])
            a(f"ds_read_b64_tr_b16 {wreg(self.kind,t,0,2)}, v{ta} offset:{o}")
            a(f"ds_read_b64_tr_b16 {wreg(self.kind,t,2,2)}, v{ta} offset:{o+1024}")
            a(f"ds_read_b64_tr_b16 {wreg(self.kind,t,4,2)}, v{tb} offset:{o}")
            self.lid[t] = a(f"ds_read_b64_tr_b16 {wreg(self.kind,t,6,2)}, v{tb} offset:{o+1024}")
            self.c += 1
            lim = self.n if refill else target
            if self.i < lim and self.room(lag=1): self.issue1()
        if refill: self.fill()
pump = Pump()

def prologue():
    a(f"s_cmp_ge_u32 s2, 256")
    a(f"s_cbranch_scc1 L_EXIT")
    a(f"s_load_dwordx16 {sr(sKA,16)}, s[0:1], 0")
    a(f"s_load_dwordx4 {sr(SCODE,4)}, s[0:1], 64")
    a(f"s_load_dwordx2 s[100:101], s[0:1], 80")
    a(f"s_mov_b32 s{sB}, s2")
    if opt("CNT", 0): a("s_mov_b32 s2, 0")
    if opt("FRV", 0) or opt("FRC", 0): a("s_mov_b32 s2, 0")
    a(f"v_lshrrev_b32 v{vT0}, 6, v0")
    a(f"v_and_b32 v{vL}, 63, v0")
    a(f"v_readfirstlane_b32 s{sW}, v{vT0}")
    a(f"v_lshlrev_b32 v{vL16}, 4, v{vL}")
    a(f"v_lshrrev_b32 v{vHH}, 5, v{vL}")
    if opt("CODEPF", 2) == 2:
        a(f"s_getpc_b64 {sr(SB1,2)}")
        a.label("L_PC")
        a(f"s_and_b32 s{SB1+1}, s{SB1+1}, 0xffff")
        a(f"s_mov_b32 s{SB1+2}, L_END - L_PC")
        a(f"s_mov_b32 s{SB1+3}, 0x20000")
        a(f"s_lshr_b32 s{sT0}, s{sB}, 3")
        a(f"s_lshl_b32 s{sT0}, s{sT0}, 2")
        a(f"s_add_u32 s{sT0}, s{sT0}, s{sW}")
        a(f"s_lshl_b32 s{sT0}, s{sT0}, 10")
        a(f"buffer_load_dwordx4 {ar(252,4)}, v{vL16}, {sr(SB1,4)}, s{sT0} offen")
    if DIAG: a(f"v_mov_b32 v{vTSV}, 0")
    stamp("start")
    X_, I_ = sT0, sT1
    a(f"s_and_b32 s{X_}, s{sB}, 7")
    a(f"s_lshr_b32 s{I_}, s{sB}, 3")
    a(f"s_lshr_b32 s{sT2}, s{I_}, 3")
    a(f"s_and_b32 s{sDT}, s{I_}, 7")
    a(f"s_and_b32 s{sRB}, s{X_}, 3")
    a(f"s_lshl_b32 s{sRB}, s{sRB}, 2")
    a(f"s_add_u32 s{sRB}, s{sRB}, s{sT2}")
    a(f"s_lshr_b32 s{sHP}, s{X_}, 2")
    a(f"s_lshl_b32 s{sHP}, s{sHP}, 3")
    a(f"s_add_u32 s{sHP}, s{sHP}, s{sDT}")
    a(f"s_lshr_b32 s{sROTX}, s{sDT}, 1")
    a(f"s_add_u32 s{sROTX}, s{sROTX}, s{sT2}")
    a(f"s_and_b32 s{sROTX}, s{sROTX}, 3")
    a(f"s_lshl_b32 s{sROTX}, s{sROTX}, 1")
    a(f"s_and_b32 s{sT3}, s{I_}, 1")
    a(f"s_add_u32 s{sROTX}, s{sROTX}, s{sT3}")
    a(f"s_and_b32 s{sRX0}, s{sROTX}, {opt('RXM', 6)}")
    a(f"s_lshl_b32 s{sW1K}, s{sW}, 10")
    a(f"s_lshl_b32 s{sWB}, s{sW}, 14")
    a(f"s_add_u32 s{sWA}, s{sWB}, {L_A}")
    a(f"s_add_u32 s{sWB}, s{sWB}, {L_B}")

def roles2():
    X_, I_ = sT0, sT1
    a(f"s_and_b32 s{X_}, s{sB}, 7")
    a(f"s_lshr_b32 s{I_}, s{sB}, 3")
    a(f"s_lshr_b32 s{sT2}, s{I_}, 3")
    a(f"s_lshl_b32 s{sST}, s{X_}, 2")
    a(f"s_add_u32 s{sST}, s{sST}, s{sT2}")
    a(f"s_lshr_b32 s{sT3}, s{X_}, 1")
    a(f"s_mul_i32 s{sT3}, s{sT3}, 7")
    a(f"s_and_b32 s{sT4}, s{X_}, 1")
    a(f"s_lshl_b32 s{sT5}, s{sT4}, 2")
    a(f"s_add_u32 s{sFT}, s{sT3}, s{sT5}")
    a(f"s_add_u32 s{sFT}, s{sFT}, s{sT2}")
    a(f"s_and_b32 s{sP3}, s{I_}, 3")
    a(f"s_add_u32 s{sT5}, s{sT5}, s{sP3}")
    a(f"s_add_u32 s{sKB}, s{sT3}, 3")
    a(f"s_cmp_lt_u32 s{I_}, 24")
    a(f"s_cselect_b32 s{sFT}, s{sFT}, s{sKB}")
    a(f"s_cselect_b32 s{sDT3}, s{sDT}, s{sT5}")
    a(f"s_mul_i32 s{sT4}, s{sT4}, 3")
    a(f"s_add_u32 s{sXC}, s{sT3}, s{sT4}")
    a(f"s_lshl_b32 s{sROT1}, s{X_}, 2")
    a(f"s_and_b32 s{sT3}, s{I_}, 3")
    a(f"s_lshr_b32 s{sP3}, s{I_}, 2")
    a(f"s_lshl_b32 s{sWI}, s{I_}, 2")
    a(f"s_add_u32 s{sWI}, s{sWI}, s{sW}")
    a(f"s_lshl_b32 s{sRED}, s{X_}, 2")
    a(f"s_add_u32 s{sRED}, s{sRED}, s{sT3}")
    a(f"s_lshl_b32 s{sRED}, s{sRED}, 1")
    a(f"s_add_u32 s{sRED}, s{sRED}, s{sW}")
    a(f"s_cmp_lt_u32 s{sW}, 2")
    a(f"s_cselect_b32 s{sRED}, s{sRED}, 99")
    a(f"s_cmp_eq_u32 s{sP3}, 7")
    a(f"s_cselect_b32 s{sRED}, s{sRED}, 99")
    a(f"s_mul_i32 s{sROT2}, s{X_}, 7")
    a(f"s_lshr_b32 s{sROT2}, s{sROT2}, 2")
    a(f"s_lshl_b32 s{sROT2}, s{sROT2}, 1")
    if opt("MAP", 0):
        a(f"s_and_b32 s{sT2}, s{X_}, 1")
        a(f"s_lshl_b32 s{sT2}, s{sT2}, 2")
        a(f"s_and_b32 s{sT3}, s{I_}, 3")
        a(f"s_lshr_b32 s{sT5}, s{X_}, 1")
        a(f"s_add_u32 s{sT4}, s{sP3}, s{sT3}")
        a(f"s_and_b32 s{sT4}, s{sT4}, {opt('MROT', 1)}")
        if opt("MAP", 0) & 1:
            a(f"s_add_u32 s{sDT3}, s{sT2}, s{sT3}")
            a(f"s_mul_i32 s{sFT}, s{sT5}, 7")
            a(f"s_add_u32 s{sFT}, s{sFT}, s{sP3}")
            a(f"s_lshl_b32 s{sROT1}, s{sT4}, 4")
        if opt("MAP", 0) & 2:
            a(f"s_add_u32 s{sDT}, s{sT2}, s{sT3}")
            a(f"s_lshl_b32 s{sST}, s{sT5}, 3")
            a(f"s_add_u32 s{sST}, s{sST}, s{sP3}")
            a(f"s_mul_i32 s{sROT2}, s{sT4}, 14")
    a(f"s_lshr_b32 s{sRH}, s{sW}, 1")
    a(f"s_and_b32 s{sKH}, s{sW}, 1")
    a(f"s_mov_b32 s{sTO}, 400000")
    a(f"s_mov_b32 s{sONES}, 0x3f803f80")
    a(f"s_mov_b32 s{sEPS6}, {fl(1e-6)}")
    a(f"s_mov_b32 s{sL2E}, {fl(LOG2E)}")

def late_srds():
    srd(SWO, sKA + 4, 512 * 512 * 2)
    srd(SW1, sKA + 8, 2048 * 1792 * 2)
    srd(SB1, sKA + 10, 1792 * 2)
    srd(SW2, sKA + 12, 1792 * 2048 * 2)
    srd(SB2, sKA + 14, 2048 * 2)
    srd(SOUT, SCODE, 2048 * 512 * 2)
    srd(SDBG, SCODE + 2, 256)

def code_prefetch():
    if opt("CODEPF", 2) == 1:
        a(f"s_getpc_b64 {sr(SCODE,2)}")
        a.label("L_PC")
        a(f"s_and_b32 s{SCODE+1}, s{SCODE+1}, 0xffff")
        a(f"s_mov_b32 s{SCODE+2}, L_END - L_PC")
        a(f"s_mov_b32 s{SCODE+3}, 0x20000")
        a(f"s_lshl_b32 s{sT0}, s{sWI}, 10")
        a(f"buffer_load_dwordx4 {ar(252,4)}, v{vL16}, {sr(SCODE,4)}, s{sT0} offen")
    srd(SCODE, SW1, 2048 * 1792 * 2)
    a(f"s_cmp_eq_u32 s{sP3}, 7")
    a(f"s_cselect_b32 s{SW1+2}, 0, s{SW1+2}")

def code_refetch(dst):
    l = a.newlabel("PCX")
    a(f"s_getpc_b64 {sr(SDBG,2)}")
    a.label(l)
    a(f"s_and_b32 s{SDBG+1}, s{SDBG+1}, 0xffff")
    a(f"s_mov_b32 s{SDBG+2}, L_END - {l}")
    a(f"s_lshl_b32 s{sT5}, s{sWI}, 10")
    a(f"buffer_load_dword v31, v{vL16}, {sr(SDBG,4)}, s{sT5} offen")

def addresses():
    lin(sAKVP, [(sHP, 64 * 640), (sRB, 4 * 640), (sW, 640)], KVP[0])
    lin(sAPQW, [(sRB, 4 * 32768), (sW, 32768), (sHP, 2048)], PQ[0])
    lin(sAPQR, [(sST, 65536), (sRH, 32768), (sKH, 16384)], PQ[0])
    lin(sAKVF, [(sKH, 16 * 768)], KVF[0])
    lin(sASTW, [(sST, 8192), (sDT, 1024), (sKH, 512), (sRH, 256)], ST[0])
    lin(sASTR, [(sST, 8192), (sRH, 256)], ST[0])
    lin(sAHTW, [(sDT, 262144), (sST, 8192), (sRH, 4096), (sKH, 256)], HT[0])
    lin(sAHTR, [(sDT3, 262144), (sW, 65536)], HT[0])
    lin(sAUW, [(sDT3, 229376), (sFT, 8192), (sRH, 4096), (sKH, 2048)], U[0])
    a(f"s_cmp_eq_u32 s{sP3}, 7")
    a(f"s_cselect_b32 s{sAUW}, {WS_BYTES:#x}, s{sAUW}")
    lin(sAUR, [(sDT, 229376), (sW, 57344)], U[0])
    lin(sAX2W, [(sST, 65536), (sRH, 32768), (sDT, 4096), (sKH, 1024)], X2)
    lin(sAX2R, [(sRB, 4 * 32768), (sW, 32768)], X2)
    a(f"s_add_u32 s{sAS2W}, s{sASTW}, {ST2 - ST[0]:#x}")
    lin(sAS2R, [(sRB, 2 * 8192), (sRH, 8192), (sKH, 256)], ST2)
    lin(sAWQT, [(sHP, 98304)], WQT)
    a(f"s_mov_b32 s{sGK}, {fl(-2.0 * 0.7978845608028654 * LOG2E * 0.044715)}")

def next_layer_addresses():
    for r, d in ((sAKVP, KVP[1] - KVP[0]), (sAPQW, PQ[1] - PQ[0]), (sAPQR, PQ[1] - PQ[0]), (sAKVF, KVF[1] - KVF[0]),
                 (sASTW, ST[1] - ST[0]), (sASTR, ST[1] - ST[0]), (sAHTW, HT[1] - HT[0]), (sAHTR, HT[1] - HT[0]),
                 (sAUW, U[1] - U[0]), (sAUR, U[1] - U[0])):
        a(f"s_add_u32 s{r}, s{r}, {d:#x}")

def kv_poison(P, L):
    r = sAKVP
    if L == 1:
        a(f"s_add_u32 s{sT1}, s{sAKVP}, {KVP[1]-KVP[0]:#x}"); r = sT1
    set_exec((1 << 40) - 1)
    ws_store4(P, r)
    a(f"s_mul_i32 s{sT0}, s{sRED}, 384")
    a(f"s_add_u32 s{sT0}, s{sT0}, {KVF[L]:#x}")
    a(f"s_cmp_ge_u32 s{sRED}, 64")
    a(f"s_cselect_b32 s{sT0}, {WS_BYTES:#x}, s{sT0}")
    set_exec((1 << 24) - 1)
    ws_store4(P, sT0)
    set_exec(FULL)
def ht_voff(dst):
    a(f"v_and_b32 v{dst}, 15, v{vL}")
    a(f"v_lshlrev_b32 v{dst}, 4, v{dst}")
    a(f"v_lshl_add_u32 v{dst}, v{vHH}, 9, v{dst}")
    a(f"v_bfe_u32 v{vT0}, v{vL}, 4, 1")
    a(f"v_lshl_add_u32 v{dst}, v{vT0}, 10, v{dst}")
def tile_poison(P, r, delta, step):
    v = vL16
    if r == sAHTW:
        ht_voff(vT1); v = vT1
    if delta:
        a(f"s_add_u32 s{sT0}, s{r}, {delta:#x}"); r = sT0
    for f in range(2): a(f"buffer_store_dwordx4 {vr(P,4)}, v{v}, {sr(SWS,4)}, s{r} offen offset:{step*f} sc1")
def canary_poison(P):
    lines = ((sAHTW, 2048+1024+512+128), (sAUW, 896), (sAUW, 1024+896), (sAHTW, HT[1]-HT[0]+2048+1024+512+128),
             (sAUW, U[1]-U[0]+896), (sAUW, U[1]-U[0]+1024+896), (sAPQW, PQ[1]-PQ[0]+1024+896), (sAX2W, 896))
    a(f"v_lshrrev_b32 v{vT0}, 3, v{vL}")
    for g, (r, d) in enumerate(lines):
        a(f"s_add_u32 s{sT0}, s{r}, {d:#x}")
        if g == 0: a(f"v_mov_b32 v{vT1}, s{sT0}")
        else:
            a(f"v_mov_b32 v{vT2}, s{sT0}")
            a(f"v_cmp_eq_u32 vcc, {g}, v{vT0}")
            a(f"v_cndmask_b32 v{vT1}, v{vT1}, v{vT2}, vcc")
    a(f"v_and_b32 v{vT0}, 7, v{vL}")
    a(f"v_lshl_add_u32 v{vT1}, v{vT0}, 4, v{vT1}")
    a(f"buffer_store_dwordx4 {vr(P,4)}, v{vT1}, {sr(SWS,4)}, 0 offen sc1")
def st_poison(P):
    lin(sT0, [(sB, 3072), (sW, 768)], ST[0])
    set_exec((1 << 48) - 1)
    ws_store4(P, sT0)
    set_exec(FULL)
def set_poi(P):
    for i in range(4): a(f"v_mov_b32 v{P+i}, -1")

def misc_loads():
    lin(sT0, [(sST, 64), (sRH, 32)])
    a(f"v_and_b32 v{vT0}, 31, v{vL}")
    a(f"v_add_u32 v{vT0}, s{sT0}, v{vT0}")
    a(f"v_lshlrev_b32 v{vT1}, 1, v{vT0}")
    a(f"buffer_load_ushort v{vB2}, v{vT1}, {sr(SB2,4)}, 0 offen")
    a(f"v_lshlrev_b32 v{vT0}, 10, v{vT0}")
    a(f"v_lshl_add_u32 v{vOUT}, v{vHH}, 4, v{vT0}")
    lin(sT0, [(sDT, 128), (sKH, 32)])
    a(f"v_add_u32 v{vOUT}, s{sT0}, v{vOUT}")
    a(f"buffer_load_dwordx4 {vr(XR,4)}, v{vOUT}, {sr(SX,4)}, 0 offen")
    a(f"buffer_load_dwordx4 {vr(XR+4,4)}, v{vOUT}, {sr(SX,4)}, 0 offen offset:64")

def touch(srdn, rows_per_wave, lg, pitch, scol_emit, dst):
    n = rows_per_wave << lg
    scol_emit()
    a(f"v_min_u32 v{vT0}, {n-1}, v{vL}")
    a(f"v_lshrrev_b32 v{vT1}, {lg}, v{vT0}")
    a(f"v_mul_u32_u24 v{vT1}, {pitch}, v{vT1}")
    a(f"v_and_b32 v{vT0}, {(1<<lg)-1}, v{vT0}")
    a(f"v_lshl_add_u32 v{vT0}, v{vT0}, 7, v{vT1}")
    a(f"s_mul_i32 s{sT5}, s{sWI}, {rows_per_wave*pitch}")
    a(f"s_add_u32 s{sT4}, s{sT4}, s{sT5}")
    a(f"buffer_load_dword {dst}, v{vT0}, {sr(srdn,4)}, s{sT4} offen")
def touch_w1(dst): touch(SCODE, 16, 2, 3584, lambda: a(f"s_lshl_b32 s{sT4}, s{sXC}, 7"), dst)
def touch_w2(dst):
    def c2():
        a(f"s_and_b32 s{sT4}, s{sB}, 7"); a(f"s_lshl_b32 s{sT4}, s{sT4}, 9")
    touch(SW2, 16, 2, 4096, c2, dst)
def touch_w2h(dst, t0):
    a(f"s_lshr_b32 s{sT4}, s{sWI}, 3")
    a(f"s_add_u32 s{sT4}, s{sT4}, s{sROT2}")
    if t0: a(f"s_add_u32 s{sT4}, s{sT4}, {t0}")
    a(f"s_sub_u32 s{sT5}, s{sT4}, 28")
    a(f"s_cselect_b32 s{sT4}, s{sT4}, s{sT5}")
    a(f"s_and_b32 s{sT5}, s{sWI}, 3")
    a(f"s_mul_i32 s{sT5}, s{sT5}, 28")
    a(f"s_add_u32 s{sT4}, s{sT4}, s{sT5}")
    a(f"s_lshl_b32 s{sT4}, s{sT4}, 1")
    a(f"s_bfe_u32 s{sT5}, s{sWI}, 0x10002")
    a(f"s_add_u32 s{sT4}, s{sT4}, s{sT5}")
    a(f"s_lshl_b32 s{sT4}, s{sT4}, 15")
    a(f"s_and_b32 s{sT5}, s{sB}, 7")
    a(f"s_lshl_b32 s{sT5}, s{sT5}, 9")
    a(f"s_add_u32 s{sT4}, s{sT4}, s{sT5}")
    a(f"s_cmp_eq_u32 s{sP3}, 7")
    a(f"s_cselect_b32 s{sT4}, 0x10000000, s{sT4}")
    a(f"v_min_u32 v{vT0}, 31, v{vL}")
    a(f"v_lshrrev_b32 v{vT1}, 2, v{vT0}")
    a(f"v_and_b32 v{vT0}, 3, v{vT0}")
    a(f"v_lshlrev_b32 v{vT0}, 7, v{vT0}")
    a(f"v_lshl_add_u32 v{vT0}, v{vT1}, 12, v{vT0}")
    a(f"buffer_load_dword {dst}, v{vT0}, {sr(SW2,4)}, s{sT4} offen")
def touch_w1h(dst, t0):
    a(f"s_lshr_b32 s{sT4}, s{sWI}, 3")
    a(f"s_add_u32 s{sT4}, s{sT4}, s{sROT1}")
    if t0: a(f"s_add_u32 s{sT4}, s{sT4}, {t0}")
    a(f"s_and_b32 s{sT4}, s{sT4}, 31")
    a(f"s_and_b32 s{sT5}, s{sWI}, 3")
    a(f"s_lshl_b32 s{sT5}, s{sT5}, 5")
    a(f"s_add_u32 s{sT4}, s{sT4}, s{sT5}")
    a(f"s_lshl_b32 s{sT4}, s{sT4}, 1")
    a(f"s_bfe_u32 s{sT5}, s{sWI}, 0x10002")
    a(f"s_add_u32 s{sT4}, s{sT4}, s{sT5}")
    a(f"s_mul_i32 s{sT4}, s{sT4}, {8*3584}")
    a(f"s_lshl_b32 s{sT5}, s{sXC}, 7")
    a(f"s_add_u32 s{sT4}, s{sT4}, s{sT5}")
    a(f"v_min_u32 v{vT0}, 31, v{vL}")
    a(f"v_lshrrev_b32 v{vT1}, 2, v{vT0}")
    a(f"v_and_b32 v{vT0}, 3, v{vT0}")
    a(f"v_lshlrev_b32 v{vT0}, 7, v{vT0}")
    a(f"v_mul_u32_u24 v{vT1}, 3584, v{vT1}")
    a(f"v_add_u32 v{vT0}, v{vT1}, v{vT0}")
    a(f"buffer_load_dword {dst}, v{vT0}, {sr(SCODE,4)}, s{sT4} offen")
def touch_wo(dst): touch(SWO, 4, 3, 1024, lambda: a(f"s_mov_b32 s{sT4}, 0"), dst)
def touches(L, where):
    dst = "a25" if where in (1, 2, 3, 6, 7, 8) else None
    if optL("T1", L, 8, 0) == where: touch_w1(dst + "2" if dst else "v31")
    if optL("T1A", L, 0, 0) == where: touch_w1h(dst + "2" if dst else "v31", 0)
    if optL("T1B", L, 0, 0) == where: touch_w1h(dst + "5" if dst else "v31", 16)
    if optL("T2", L, 0, 0) == where: touch_w2(dst + "3" if dst else "v31")
    if optL("T2H", L, 9, 0) == where: touch_w2h(dst + "3" if dst else "v31", 0)
    if optL("T2G", L, 0, 0) == where: touch_w2h(dst + "3" if dst else "v31", 14)

def split2(dst, src, t0):
    a(f"v_cvt_pk_bf16_f32 v{t0}, v{src}, v{src}")
    a(f"v_and_b32 v{t0}, 0xffff0000, v{t0}")
    a(f"v_sub_f32 v{dst}, v{src}, v{t0}")
    a(f"v_cvt_pk_bf16_f32 v{dst}, v{t0}, v{dst}")

def stats_to_frags(S, Q, RA):
    a(f"v_mul_f32 v{S}, {fl(-1/512)}, v{S}")
    a(f"v_mul_f32 v{Q}, {fl(1/512)}, v{Q}")
    a(f"v_cmp_eq_u32 vcc, 0, v{vHH}")
    a(f"v_fma_f32 v{Q}, -v{S}, v{S}, v{Q}")
    a(f"v_max_f32 v{Q}, 0, v{Q}")
    a(f"v_add_f32 v{Q}, {fl(1e-5)}, v{Q}")
    a(f"v_rsq_f32 v{vRS}, v{Q}")
    a(f"v_cndmask_b32 v{S}, 0, v{S}, vcc")
    a(f"v_cvt_pk_bf16_f32 v{MA}, v{S}, v{S}")
    a(f"v_cndmask_b32 v{Q}, 0, v{vRS}, vcc")
    a(f"v_and_b32 v{vT0}, 0xffff0000, v{MA}")
    a(f"v_sub_f32 v{S}, v{S}, v{vT0}")
    a(f"v_cvt_pk_bf16_f32 v{MA+1}, v{S}, v{S}")
    split2(RA, Q, vT0)

def stats_check(SB):
    a(f"v_max3_u32 v{vT3}, v{SB+1}, v{SB+3}, v{SB+5}")
    a(f"v_max3_u32 v{vT3}, v{vT3}, v{SB+7}, v{SB+9}")
    a(f"v_max3_u32 v{vT3}, v{vT3}, v{SB+11}, v{SB+13}")
    a(f"v_max_u32 v{vT3}, v{vT3}, v{SB+15}")
    a(f"v_cmp_eq_u32 vcc, -1, v{vT3}")
def stats_sum(SB):
    for n in (4, 2, 1):
        for p in range(n): pk("add", SB+2*p, vr(SB+2*p,2), vr(SB+2*(p+n),2))
    a(f"v_mov_b32 v{SB+2}, v{SB}")
    a(f"v_mov_b32 v{SB+3}, v{SB+1}")
    a(f"v_permlane32_swap_b32 v{SB}, v{SB+2}")
    a(f"v_permlane32_swap_b32 v{SB+1}, v{SB+3}")
    pk("add", SB, vr(SB,2), vr(SB+2,2))

@contextmanager
def rare(skip):
    if opt("A1OOL", 1):
        l = a.newlabel("RED")
        a(f"s_cmp_lt_u32 s{sRED}, 64")
        a(f"s_cbranch_scc1 {l}")
        with cold(l, skip): yield
    else:
        a(f"s_cmp_ge_u32 s{sRED}, 64")
        a(f"s_cbranch_scc1 {skip}")
        with cond(): yield
A1B = 128
def a1_issue():
    a(f"s_mov_b32 s{sT3}, s{sKB}")
    for p in range(16):
        a(f"buffer_load_dwordx4 {vr(A1B+4*p,4)}, v{vL16}, {sr(SWS,4)}, s{sT3} offen offset:{(p&1)*2560} sc1")
        if p & 1 and p < 15: a(f"s_add_u32 s{sT3}, s{sT3}, {2*2560}")
def a1_early(L):
    skip = a.newlabel("NOA1E")
    with rare(skip):
        a(f"s_lshr_b32 s{sKB}, s{sRED}, 2")
        a(f"s_mul_i32 s{sKB}, s{sKB}, {16*2560}")
        a(f"s_and_b32 s{sT2}, s{sRED}, 3")
        a(f"s_mul_i32 s{sT2}, s{sT2}, 640")
        a(f"s_add_u32 s{sKB}, s{sKB}, s{sT2}")
        a(f"s_add_u32 s{sKB}, s{sKB}, {KVP[L]:#x}")
        if opt("A1C", 0):
            a(f"v_and_b32 v{vT1}, 15, v{vL}")
            a(f"v_mul_u32_u24 v{vT1}, 2560, v{vT1}")
            a(f"buffer_load_dword v{vT3}, v{vT1}, {sr(SWS,4)}, s{sKB} offen offset:544 sc1")
        else:
            set_exec((1 << 35) - 1)
            a1_issue()
            set_exec(FULL)
    a.label(skip)
def a1_check():
    B = A1B
    a(f"v_max3_u32 v{vT3}, v{B}, v{B+4}, v{B+8}")
    a(f"v_min3_u32 v{vT1}, v{B}, v{B+4}, v{B+8}")
    for p in range(3, 15, 2):
        a(f"v_max3_u32 v{vT3}, v{vT3}, v{B+4*p}, v{B+4*p+4}")
        a(f"v_min3_u32 v{vT1}, v{vT1}, v{B+4*p}, v{B+4*p+4}")
    a(f"v_max_u32 v{vT3}, v{vT3}, v{B+60}")
    a(f"v_min_u32 v{vT1}, v{vT1}, v{B+60}")
    a(f"v_cmp_eq_u32 vcc, -1, v{vT3}")
    a(f"v_readlane_b32 s{sT0}, v{vT3}, 34")
    a(f"v_readlane_b32 s{sT1}, v{vT1}, 34")
    a(f"s_xor_b32 s{sT0}, s{sT0}, s{sNON}")
    a(f"s_xor_b32 s{sT1}, s{sT1}, s{sNON}")
    a(f"s_or_b32 s{sT0}, s{sT0}, s{sT1}")
    a(f"s_or_b32 vcc_lo, vcc_lo, s{sT0}")
    a(f"s_or_b64 vcc, vcc, vcc")
def a1_mid(younger):
    skip = a.newlabel("NOA1M"); ok = a.newlabel("A1MOK")
    a(f"s_cmp_ge_u32 s{sRED}, 64")
    a(f"s_cbranch_scc1 {skip}")
    with cond():
        set_exec((1 << 35) - 1)
        a(f"s_waitcnt vmcnt({younger})")
        a1_check()
        a(f"s_cbranch_vccz {ok}")
        a1_issue()
        a.label(ok)
        set_exec(FULL)
    a.label(skip)
def a1(L, younger):
    a.c("======== A1 reducer")
    skip = a.newlabel("NOA1")
    with rare(skip):
        B = A1B
        a(f"s_mul_i32 s{sT2}, s{sRED}, 384")
        a(f"s_add_u32 s{sT2}, s{sT2}, {KVF[L]:#x}")
        a(f"v_lshlrev_b32 v{vT2}, 3, v{vL}")
        set_exec((1 << 35) - 1)
        def check():
            a(f"v_max3_u32 v{vT3}, v{B}, v{B+4}, v{B+8}")
            a(f"v_min3_u32 v{vT1}, v{B}, v{B+4}, v{B+8}")
            for p in range(3, 15, 2):
                a(f"v_max3_u32 v{vT3}, v{vT3}, v{B+4*p}, v{B+4*p+4}")
                a(f"v_min3_u32 v{vT1}, v{vT1}, v{B+4*p}, v{B+4*p+4}")
            a(f"v_max_u32 v{vT3}, v{vT3}, v{B+60}")
            a(f"v_min_u32 v{vT1}, v{vT1}, v{B+60}")
            a(f"v_cmp_eq_u32 vcc, -1, v{vT3}")
            a(f"v_readlane_b32 s{sT0}, v{vT3}, 34")
            a(f"v_readlane_b32 s{sT1}, v{vT1}, 34")
            a(f"s_xor_b32 s{sT0}, s{sT0}, s{sNON}")
            a(f"s_xor_b32 s{sT1}, s{sT1}, s{sNON}")
            a(f"s_or_b32 s{sT0}, s{sT0}, s{sT1}")
            a(f"s_or_b32 vcc_lo, vcc_lo, s{sT0}")
            a(f"s_or_b64 vcc, vcc, vcc")
        a.vm_done = min(a.vm_done, a.vm - younger - 1)
        if opt("A1C", 0):
            poll(lambda: a(f"buffer_load_dword v{vT3}, v{vT1}, {sr(SWS,4)}, s{sKB} offen offset:544 sc1"),
                 lambda: a(f"v_cmp_ne_u32 vcc, s{sNON}, v{vT3}"), 0x21, pre=a.vm - younger - 1)
            poll(a1_issue, check, 0x20)
        else:
            poll(a1_issue, check, 0x20, pre=a.vm - younger - 1)
        n = 16
        while n > 1:
            n //= 2
            for p in range(n):
                for j in (0, 2): pk("add", B+4*p+j, vr(B+4*p+j,2), vr(B+4*(p+n)+j,2))
        a(f"v_cvt_pk_bf16_f32 v{B+4}, v{B}, v{B+1}")
        a(f"v_cvt_pk_bf16_f32 v{B+5}, v{B+2}, v{B+3}")
        a(f"v_mov_b32_dpp v{B+6}, v{B+4} quad_perm:[1,1,3,3] row_mask:0xf bank_mask:0xf")
        a(f"v_mov_b32_dpp v{B+7}, v{B+5} quad_perm:[1,1,3,3] row_mask:0xf bank_mask:0xf")
        a(f"v_writelane_b32 v{B+4}, s{sNON}, 34")
        set_exec(0x555555555555)
        a(f"buffer_store_dwordx4 {vr(B+4,4)}, v{vT2}, {sr(SWS,4)}, s{sT2} offen sc1")
        set_exec(FULL)
        a("s_nop 1")
    a.label(skip)
    stamp("a1")

XF = 128
def KS(s): return 4 * ((s & 15) >> 1) + (s & 1) + 2 * (s >> 4)
def XFR(L, s): return XF + 4 * (((s + 16) & 31) if L == 1 else s)
xid1 = {}
def xa_XL(s):
    jj = s & 15
    if jj == 0: a(f"s_mov_b32 s{sSO}, s{sT4}")
    elif jj == 8: a(f"s_xor_b32 s{sSO}, s{sT4}, 16384")
    elif jj & 1 == 0: a(f"s_add_u32 s{sSO}, s{sSO}, 4096")
    xid1[s] = a(f"buffer_load_dwordx4 {vr(XFR(1,s),4)}, v{vL16}, {sr(SWS,4)}, s{sSO} offen offset:{(KS(s)&3)*1024} sc1")
vXC = MA + 1
def xa_ci(): return a(f"buffer_load_dword v{vT3}, v{vXC}, {sr(SWS,4)}, s{sAX2R} offen offset:1020 sc1")
def xa_start():
    a(f"s_and_b32 s{sT5}, s{sROTX}, {opt('XROT', 1)}")
    a(f"s_lshl_b32 s{sT5}, s{sT5}, 14")
    a(f"s_add_u32 s{sT4}, s{sAX2R}, s{sT5}")
    a(f"v_and_b32 v{vXC}, 15, v{vL}")
    a(f"v_lshrrev_b32 v{MA+3}, 1, v{vXC}")
    a(f"v_and_b32 v{vXC}, 1, v{vXC}")
    a(f"v_lshlrev_b32 v{vXC}, 10, v{vXC}")
    a(f"v_lshl_add_u32 v{vXC}, v{MA+3}, 12, v{vXC}")
    G["xcid"] = xa_ci()
    for s in range(opt("LA1", 8)): xa_XL(s)
def p1(L):
    ACCK, ACCV, RR = 32, 48, 64
    VV, PK, T1 = 80, 88, 96
    S0, S1, Q0, Q1 = 80, 81, 82, 83
    CF = 84
    CFV, CFQ, RA = 112, 116, 120
    vTQ, vTV = 124, 125
    vW, vXA, vXB = 126, 127, 96
    vCQ, vCV = 97, 98
    vOA, vOB = vTA, vTB
    vTQ2, vTV2 = vTA, vTB
    vKW, vKR = 92, 93
    XA = 88
    vKW2, vKR2 = vT2, 127
    POI = 100
    WFR = 216; NWF = 4; ONESF = 248; CG = 200; CK, CV, CQ = 152, 168, 184
    a.c(f"======== P1 layer {L}")
    xid = {}; wid = {}
    toff = 256
    def addr_setup():
        if L == 0:
            a(f"v_bfe_u32 v{vT0}, v{vL}, 2, 2")
            a(f"v_lshl_add_u32 v{vT0}, v{vHH}, 3, v{vT0}")
            a(f"v_lshlrev_b32 v{vTQ}, 6, v{vT0}")
            a(f"v_bfe_u32 v{vT1}, v{vL}, 4, 1")
            a(f"v_lshl_add_u32 v{vTQ}, v{vT1}, 5, v{vTQ}")
            a(f"v_and_b32 v{vT1}, 3, v{vL}")
            a(f"v_lshl_add_u32 v{vTQ}, v{vT1}, 3, v{vTQ}")
        else:
            a(f"s_and_b32 s{sT5}, s{sROTX}, {opt('XROT', 1)}")
            a(f"s_lshl_b32 s{sT5}, s{sT5}, 14")
            a(f"v_add_u32 v{vTQ}, s{sT5}, v{vL16}")
            a(f"v_xor_b32 v{vTQ2}, 16384, v{vTQ}")
            a(f"v_add_u32 v{vTV2}, 65536, v{vTQ2}")
        a(f"v_add_u32 v{vTV}, 65536, v{vTQ}")
        for i in range(4): a(f"v_accvgpr_write_b32 a{ONESF+i}, s{sONES}")
        for r in ([MA + 2, MA + 3] if L == 0 else []) + [RA + 1, RA + 2, RA + 3, CF + 2, CF + 3, CFV + 2, CFV + 3, CFQ + 2, CFQ + 3]: a(f"v_mov_b32 v{r}, 0")
    def kv_addr():
        a(f"v_bfe_u32 v{vT0}, v{vL}, 4, 1")
        a(f"v_lshl_add_u32 v{vT0}, v{vT0}, 1, v{vHH}")
        a(f"v_mul_u32_u24 v{vT0}, 17, v{vT0}")
        a(f"v_and_b32 v{vT1}, 15, v{vL}")
        a(f"v_add_u32 v{vT0}, v{vT0}, v{vT1}")
        a(f"v_lshlrev_b32 v{vT0}, 5, v{vT0}")
        a(f"v_add_u32 v{vKW2}, s{sWA}, v{vT0}")
        a(f"s_mul_i32 s{sT0}, s{sW}, 544")
        a(f"s_add_u32 s{sT0}, s{sT0}, {L_A + SCR}")
        a(f"v_add_u32 v{vKR2}, s{sT0}, v{vL16}")
    rg = {}
    def RG(s):
        b = WFR + (s % NWF) * 8
        if L == 0:
            o = s * 1024
            a(f"ds_read_b64_tr_b16 {ar(b,2)}, v{vTQ} offset:{32768+o}")
            a(f"ds_read_b64_tr_b16 {ar(b+2,2)}, v{vTQ} offset:{32768+o+toff}")
            a(f"ds_read_b64_tr_b16 {ar(b+4,2)}, v{vTV} offset:{o}")
            rg[s] = a(f"ds_read_b64_tr_b16 {ar(b+6,2)}, v{vTV} offset:{o+toff}")
        else:
            o = (KS(s) & 15) * 1024
            q_, v_ = (vTQ2, vTV2) if KS(s) >= 16 else (vTQ, vTV)
            a(f"ds_read_b128 {ar(b,4)}, v{q_} offset:{32768+o}")
            rg[s] = a(f"ds_read_b128 {ar(b+4,4)}, v{v_} offset:{o}")
    if L == 0:
        a(f"v_lshrrev_b32 v{vT0}, 2, v{vL}")
        a(f"s_lshl_b32 s{sT0}, s{sW}, 4")
        a(f"v_add_u32 v{vT0}, s{sT0}, v{vT0}")
        a(f"v_mul_u32_u24 v{vW}, 3072, v{vT0}")
        a(f"v_and_b32 v{vT0}, 3, v{vL}")
        a(f"v_lshl_add_u32 v{vW}, v{vT0}, 4, v{vW}")
        a(f"s_lshl_b32 s{sT0}, s{sHP}, 6")
        a(f"v_add_u32 v{vW}, s{sT0}, v{vW}")
        lin(sT0, [(sRB, 131072), (sW, 32768)])
        a(f"v_lshrrev_b32 v{vT0}, 3, v{vL}")
        a(f"v_lshlrev_b32 v{vT0}, 10, v{vT0}")
        a(f"v_add_u32 v{vT0}, s{sT0}, v{vT0}")
        a(f"v_and_b32 v{vT1}, 7, v{vL}")
        a(f"v_lshrrev_b32 v{vT2}, 4, v{vL}")
        a(f"v_xor_b32 v{vT1}, v{vT1}, v{vT2}")
        a(f"v_lshl_add_u32 v{vXA}, v{vT1}, 4, v{vT0}")
        a(f"v_xor_b32 v{vXB}, 64, v{vXA}")
        a(f"v_add_u32 v{vXB}, {8192-1024}, v{vXB}")
        a("s_waitcnt lgkmcnt(0)")
        srd(SX, sKA + 0, 2048 * 512 * 2)
        srd(SWQKV, sKA + 2, 512 * 1536 * 2)
        def x_issue(j):
            a(f"s_add_u32 s{sKB}, s{sRX0}, {j}")
            a(f"s_and_b32 s{sKB}, s{sKB}, 7")
            a(f"s_lshl_b32 s{sT1}, s{sKB}, 7")
            a(f"s_add_u32 m0, s{sWB}, {(j&3)*4096}")
            a(f"s_mul_i32 s{sSO}, s{sKB}, {64*3072}")
            a(f"buffer_load_dwordx4 v{vXA}, {sr(SX,4)}, s{sT1} offen lds")
            a(f"buffer_load_dwordx4 v{vXB}, {sr(SX,4)}, s{sT1} offen offset:1024 lds")
            a(f"s_add_u32 m0, s{sWB}, {(j&3)*4096+2048}")
            a(f"s_add_u32 s{sT1}, s{sT1}, 16384")
            a(f"buffer_load_dwordx4 v{vXA}, {sr(SX,4)}, s{sT1} offen lds")
            xid[j] = a(f"buffer_load_dwordx4 v{vXB}, {sr(SX,4)}, s{sT1} offen offset:1024 lds")
        def w_issue(j):
            for seg in (1, 2, 0):
                a(f"s_add_u32 m0, s{sW1K}, {seg*32768 - seg*1024 + j*4096}")
                wid[j] = a(f"buffer_load_dwordx4 v{vW}, {sr(SWQKV,4)}, s{sSO} offen offset:{seg*1024} lds")
        def wo_issue(c):
            for k in range(2):
                j = 2 * c + k
                a(f"s_add_u32 m0, s{sWB}, {j*2048}")
                if j == 0: a(f"s_lshl_b32 s{sSO}, s{sW}, 17")
                else: a(f"s_add_u32 s{sSO}, s{sSO}, 16384")
                a(f"buffer_load_dwordx4 v{vOA}, {sr(SWO,4)}, s{sSO} offen lds")
                G["wo"] = a(f"buffer_load_dwordx4 v{vOB}, {sr(SWO,4)}, s{sSO} offen offset:1024 lds")
        x_issue(0); w_issue(0)
        srd(SWS, 100, WS_BYTES)
        a(f"buffer_load_dword v{vKW}, off, {sr(SWS,4)}, 0 offset:{NONCE} sc1")
        roles2()
        late_srds()
        x_issue(1); w_issue(1)
        touch_wo("a254")
        code_prefetch()
        touches(0, 6)
        for i in range(4): a(f"v_mov_b32 v{POI+i}, -1")
        addresses()
        addr_setup()
        a(f"v_add_u32 v{vCQ}, s{sW1K}, v{vTQ}")
        a(f"v_add_u32 v{vCV}, s{sW1K}, v{vTV}")
        for r in (S0, S1, Q0, Q1): a(f"v_mov_b32 v{r}, 0")
        a(f"v_and_b32 v{vT0}, 31, v{vL}")
        a(f"v_bfe_u32 v{vT1}, v{vL}, 1, 3")
        a(f"v_xor_b32 v{vT1}, v{vT1}, v{vHH}")
        a(f"v_lshlrev_b32 v{vT0}, 7, v{vT0}")
        a(f"v_add_u32 v{vT0}, s{sWB}, v{vT0}")
        for t in range(4):
            a(f"v_xor_b32 v{vT2}, {2*t}, v{vT1}")
            a(f"v_lshl_add_u32 v{XA+t}, v{vT2}, 4, v{vT0}")
        a(f"s_lshl_b32 s{sT4}, s{sDT}, 7")
        dma_voff(vOA, vOB, 1024, sT4)
        tr_base(vWTA, vWTB, sRH, None, f"s{sWA}")
        pump.setup(1, 0)
        SCHED = {0: {0: [2, 3], 1: [4, 5], 2: [6], 3: [7]}, 1: {0: [2], 1: [3, 4], 2: [5, 6], 3: [7]}, 2: {0: [2, 3, 4], 1: [5], 2: [6], 3: [7]},
                 3: {0: [2], 1: [3], 2: [4], 3: [5], 4: [6], 5: [7]}, 4: {0: [2, 3], 1: [4], 2: [5], 3: [6], 4: [7]}}[opt("SCHED", 0)]
        JL = max(SCHED)
        cgid = {}
        def CGr(j):
            o = j * 4096
            a(f"ds_read_b64_tr_b16 {ar(CG,2)}, v{vCQ} offset:{32768+o}")
            a(f"ds_read_b64_tr_b16 {ar(CG+2,2)}, v{vCQ} offset:{32768+o+toff}")
            a(f"ds_read_b64_tr_b16 {ar(CG+4,2)}, v{vCV} offset:{o}")
            a(f"ds_read_b64_tr_b16 {ar(CG+6,2)}, v{vCV} offset:{o+toff}")
            a(f"ds_read_b64_tr_b16 {ar(CG+8,2)}, v{vCQ} offset:{o}")
            cgid[j] = a(f"ds_read_b64_tr_b16 {ar(CG+10,2)}, v{vCQ} offset:{o+toff}")
        def colsum(j):
            a.wait(lg=cgid[j])
            for k, c in enumerate((CK, CV, CQ)):
                mfma(ar(c,16), ar(ONESF,4), ar(CG+4*k,4), "0" if j == 0 else ar(c,16))
        def xreads(j):
            a.wait(vm=xid[j])
            return [a(f"ds_read_b128 {vr(XF+16*j+4*t,4)}, v{XA+t} offset:{(j&3)*4096}") for t in range(4)]
        xr = xreads(0)
        a.wait(vm=wid[0])
        a("s_barrier")
        stamp("p1_first")
        CGr(0); RG(0); RG(1); RG(2)
        colsum(0)
        CPY = 104; CS4 = 96
        initld = None
        for j in range(8):
            for t in range(4):
                a.wait(lg=xr[t])
                for k in range(4 if not opt("XNOD", 0) else 0):
                    r = XF + 16 * j + 4 * t + k
                    a(f"v_dot2_f32_bf16 v{S0+(k&1)}, v{r}, s{sONES}, v{S0+(k&1)}")
                    a(f"v_dot2_f32_bf16 v{Q0+(k&1)}, v{r}, v{r}, v{Q0+(k&1)}")
            if j == 7:
                a(f"s_lshr_b32 s{sT0}, s{sRB}, 1")
                a(f"s_sub_u32 s{sT0}, s{sT0}, s{sRX0}")
                a(f"s_and_b32 s{sT0}, s{sT0}, 7")
                a(f"s_cmp_eq_u32 s{sT0}, 0")
                a(f"s_cselect_b32 s{sT1}, 4096, 0")
                a(f"s_add_u32 s{sT1}, s{sT1}, {L_A}")
                a(f"v_add_u32 v{vT1}, s{sT1}, v{vL16}")
                a(f"v_add_u32 v{vT0}, s{sW1K}, v{vT1}")
                a(f"v_accvgpr_read_b32 v{CS4}, a{CK}")
                a(f"v_accvgpr_read_b32 v{CS4+1}, a{CV}")
                a(f"v_accvgpr_read_b32 v{CS4+2}, a{CQ}")
                cw = a(f"ds_write_b128 v{vT0}, {vr(CS4,4)}")
            for s in range(4 * j, 4 * j + 4):
                t = s & 3
                a.wait(lg=rg[s])
                b = WFR + (s % NWF) * 8
                x = vr(XF + 4 * s, 4)
                mfma(vr(ACCK,16), x, ar(b,4), "0" if s == 0 else vr(ACCK,16))
                if s + 3 < 32: RG(s + 3)
                if t == 1 and j < 7 and not opt("XNOC", 0): CGr(j + 1)
                if t == 2 and j < 7: xr = xreads(j + 1)
                if j == 7 and t == 1:
                    for w in range(4): cr = a(f"ds_read_b128 {vr(RR+4*w,4)}, v{vT1} offset:{1024*w}")
                    a(f"s_lshl_b32 s{sT0}, s{sT0}, 12")
                    a(f"s_and_b32 s{sT1}, s{sRB}, 1")
                    a(f"s_lshl_b32 s{sT1}, s{sT1}, 11")
                    a(f"s_add_u32 s{sT0}, s{sT0}, s{sT1}")
                    a(f"s_min_u32 s{sT2}, s{sW}, 2")
                    a(f"s_lshl_b32 s{sT2}, s{sT2}, 15")
                    a(f"s_add_u32 s{sT0}, s{sT0}, s{sT2}")
                    a(f"v_lshlrev_b32 v{vT1}, 8, v{vHH}")
                    a(f"v_sub_u32 v{vT0}, v{vTQ}, v{vT1}")
                    a(f"v_add_u32 v{vT0}, s{sT0}, v{vT0}")
                    for k in range(4): cp = a(f"ds_read_b64_tr_b16 {vr(CPY+2*k,2)}, v{vT0} offset:{512*k}")
                if j == 7 and t == 2:
                    a.wait(lg=cr)
                    for k in range(3):
                        a(f"v_add_f32 v{RR+k}, v{RR+k}, v{RR+4+k}")
                        a(f"v_add_f32 v{RR+8+k}, v{RR+8+k}, v{RR+12+k}")
                if j == 7 and t == 3:
                    split2(CKP, RR, vT0)
                    split2(CVP, RR + 1, vT1)
                mfma(vr(ACCV,16), x, ar(b+4,4), "0" if s == 0 else vr(ACCV,16))
                if t == 0:
                    if j < 7: a.wait(vm=wid[j + 1])
                    else: a.wait(lg=cw)
                    a("s_barrier")
                    if j == 1:
                        a(f"v_add_u32 v{vKW}, 1, v{vKW}")
                        a(f"v_and_b32 v{vKW}, 0x3fffffff, v{vKW}")
                        a(f"v_or_b32 v{vKW}, 0x40000000, v{vKW}")
                        a(f"v_readfirstlane_b32 s{sNON}, v{vKW}")
                if t <= 2 and j in SCHED and t < len(SCHED[j]):
                    x_issue(SCHED[j][t]); w_issue(SCHED[j][t])
                if t == 1 and j >= 4 and opt("WOP", 1) == 0: wo_issue(j - 4)
                if t == 3 and j == JL:
                    if opt("MISC", 0) == 0: misc_loads()
                    touches(0, 8)
                if t == 1 and j == 6 and opt("MISC", 0) == 1: misc_loads()
                if t == 3 and opt("SLOTST", 0) and j in (1, 3, 6): stamp(f"it{j}")
                if t == 2:
                    if j == 3: touches(0, 7)
                    if j == opt("POJ", 2):
                        st_poison(POI); kv_poison(POI, 0); canary_poison(POI)
                    if j == 6: kv_addr()
                    if j == opt("POJ", 2) + 1:
                        tile_poison(POI, sAPQW, 0, 1024); initld = a.vm - 1
                    if j == 7:
                        for k in range(3): a(f"v_add_f32 v{RR+k}, v{RR+k}, v{RR+8+k}")
                        a(f"s_lshl_b32 s{sT1}, s{sRB}, 11")
                        a(f"s_add_u32 s{sT3}, s{sAWQT}, s{sT2}")
                        a(f"s_add_u32 s{sT3}, s{sT3}, s{sT1}")
                        a.wait(lg=cp)
                        ws_store4(CPY, sT3); ws_store4(CPY + 4, sT3, 1024)
                if t == 3 and j < 7 and not opt("XNOC", 0): colsum(j + 1)
        stamp("p1_gemm")
        a(f"v_add_f32 v{S0}, v{S0}, v{S1}")
        a(f"v_add_f32 v{Q0}, v{Q0}, v{Q1}")
        a(f"v_mov_b32 v{S1}, v{S0}")
        a(f"v_mov_b32 v{Q1}, v{Q0}")
        for c, p in ((CF, CKP), (CFV, CVP)):
            a(f"v_mov_b32 v{c}, v{p}"); a(f"v_mov_b32 v{c+1}, v{p}")
        a(f"v_permlane32_swap_b32 v{S0}, v{S1}")
        a(f"v_permlane32_swap_b32 v{Q0}, v{Q1}")
        a(f"v_add_f32 v{S0}, v{S0}, v{S1}")
        a(f"v_add_f32 v{Q0}, v{Q0}, v{Q1}")
        split2(CQP, RR + 2, vT1)
        stats_to_frags(S0, Q0, RA)
        mfma(vr(ACCK,16), vr(MA,4), vr(CF,4), vr(ACCK,16))
        mfma(vr(RR,16), vr(RA,4), ar(ONESF,4), "0")
        mfma(vr(ACCV,16), vr(MA,4), vr(CFV,4), vr(ACCV,16))
        touches(0, 1)
    else:
        xid = xid1; XL = xa_XL; ci = xa_ci
        LA = opt("LA1", 8)
        vMX = vW
        cc = lambda: a(f"v_cmp_eq_u32 vcc, -1, v{vT3}")
        def windowa():
            for s in range(LA): XL(s)
        def windowb():
            for s in range(16, 16 + LA): XL(s)
        if opt("XE", 0) == 0: xa_start()
        cid = max(G["xcid"], G["kvlast"])
        addr_setup()
        next_layer_addresses()
        for c, p in ((CF, CKP), (CFV, CVP)):
            a(f"v_mov_b32 v{c}, v{p}"); a(f"v_mov_b32 v{c+1}, v{p}")
        a(f"v_and_b32 v{vT0}, 31, v{vL}")
        a(f"v_lshlrev_b32 v{vT0}, 3, v{vT0}")
        a(f"v_lshl_add_u32 v{PK+1}, v{vHH}, 12, v{vT0}")
        a(f"s_lshl_b32 s{sT2}, s{sW}, 13")
        a(f"s_add_u32 s{sKB}, s{sAWQT}, s{sT2}")
        a(f"s_mov_b32 s{sT1}, s{sT4}")
        pump.setup(1, 1)
        a(f"s_mov_b32 s{sT4}, s{sT1}")
        a(f"v_mov_b32 v{MA+2}, 0"); a(f"v_mov_b32 v{MA+3}, 0")
        go = a.newlabel("XGO"); redo = a.newlabel("XREDO")
        IDMAPS.append(xid)
        a.wait(vm=cid)
        cc()
        keep = snapshot_ids()
        fallback(ci, cc, 0x41, windowa, "fb41")
        restore_ids(keep)
        a("s_barrier")
        stamp("p1_flag")
        with cold(redo, go):
            windowa()
            a("s_waitcnt vmcnt(0)")
        restore_ids(keep)
        a.label(go)
        RG(0); RG(1); RG(2)
        a(f"v_mov_b32 v{vMX}, 0")
        a(f"s_mov_b32 s{sT3}, s{sKB}")
        SB = T1
        def issue():
            for p in range(8): a(f"buffer_load_dwordx2 {vr(SB+2*p,2)}, v{PK+1}, {sr(SWS,4)}, s{sAS2R} offen offset:{p*512} sc1")
        qid = None
        LA = opt("LA1", 8)
        ZS = opt("ZS", 11); nb = [16]
        assert ZS + LA >= 16
        for s in range(32):
            if s == 16:
                stamp("p1_a")
                if ZS < 16:
                    a.wait(vm=sid)
                    stats_check(SB)
                    keep = snapshot_ids()
                    fallback(issue, lambda: stats_check(SB), 0x40, windowb, "fb40")
                    restore_ids(keep)
                else:
                    spec(issue, lambda: stats_check(SB), windowb, 0x40, a.newlabel("XR0"))
                stamp("p1_st2")
                stats_sum(SB)
                stats_to_frags(SB, SB + 1, RA)
                mfma(vr(RR,16), vr(RA,4), ar(ONESF,4), "0")
                mfma(vr(ACCK,16), vr(MA,4), vr(CF,4), vr(ACCK,16))
                mfma(vr(ACCV,16), vr(MA,4), vr(CFV,4), vr(ACCV,16))
            a.wait(vm=xid[s], lg=rg[s])
            b = WFR + (s % NWF) * 8
            x = vr(XFR(1, s), 4)
            mfma(vr(ACCK,16), x, ar(b,4), "0" if s == 0 else vr(ACCK,16))
            if s == ZS:
                issue(); sid = a.vm - 1
            if ZS < s < 16:
                per = -(-LA // (15 - ZS))
                for _ in range(per):
                    if nb[0] < 16 + LA: XL(nb[0]); nb[0] += 1
            if (s & 15) + LA < 16: XL(s + LA)
            if s >= 24:
                j = s - 24
                if j == 4: a(f"s_add_u32 s{sT3}, s{sT3}, 4096")
                if j & 3 == 0: a(f"s_add_u32 m0, s{sT2}, {j*1024}")
                qid = a(f"buffer_load_dwordx4 v{vL16}, {sr(SWS,4)}, s{sT3} offen offset:{(j&3)*1024} sc1 lds")
            mfma(vr(ACCV,16), x, ar(b+4,4), "0" if s == 0 else vr(ACCV,16))
            if s & 1: a(f"v_max3_u32 v{vMX}, v{vMX}, v{XFR(1,s-1)}, v{XFR(1,s)}")
            if s + 3 < 32: RG(s + 3)
            if s == 30: kv_addr()
        verify(vMX, redo)
        stamp("p1_gemm")
    for q in range(8): pk("fma", ACCK+2*q, vr(ACCK+2*q,2), vr(RR+2*q,2), sr(sEPS6,2), hi=[1,1,0])
    for q in range(8): pk("mul", T1+2*q, vr(ACCK+2*q,2), sr(sL2E,2), hi=[1,0])
    for i in range(16):
        a(f"v_exp_f32_e64 v{T1+i}, v{T1+i} clamp")
        a(f"v_max_f32 v{ACCK+i}, s{sEPS6}, v{ACCK+i}")
    for q in range(8): pk("add", ACCK+2*q, vr(ACCK+2*q,2), vr(T1+2*q,2))
    for q in range(8): a(f"v_cvt_pk_bf16_f32 v{PK+q}, v{ACCK+2*q}, v{ACCK+2*q+1}")
    ZA = T1
    for q in range(4): pk("mul", ACCV+2*q, vr(ACCV+2*q,2), vr(RR+2*q,2))
    for q in range(4, 8): pk("mul", ACCV+2*q, vr(ACCV+2*q,2), vr(RR+2*q,2))
    mfma(vr(ZA,16), vr(PK,4), ar(ONESF,4), "0")
    for q in range(4): a(f"v_cvt_pk_bf16_f32 v{VV+q}, v{ACCV+2*q}, v{ACCV+2*q+1}")
    mfma(vr(ZA,16), vr(PK+4,4), ar(ONESF,4), vr(ZA,16))
    for q in range(4, 8): a(f"v_cvt_pk_bf16_f32 v{VV+q}, v{ACCV+2*q}, v{ACCV+2*q+1}")
    KVA = RR
    a(f"v_and_b32 v{vT0}, 16, v{vL}")
    a(f"v_cmp_ne_u32 vcc, 0, v{vT0}")
    mfma(vr(KVA,16), vr(PK,4), vr(VV,4), "0")
    mfma(vr(KVA,16), vr(PK+4,4), vr(VV+4,4), vr(KVA,16))
    a("s_barrier")
    for j in range(8): a(f"v_cndmask_b32 v{ACCK+8+j}, v{ZA+j}, v{ZA+8+j}, vcc")
    set_exec(0x0001000100010001)
    a(f"ds_write_b128 v{vKW2}, {vr(ACCK+8,4)} offset:{SCR+512}")
    a(f"ds_write_b128 v{vKW2}, {vr(ACCK+12,4)} offset:{SCR+528}")
    set_exec(FULL)
    for j in range(4): a(f"v_cndmask_b32 v{ACCK+j}, v{KVA+j}, v{KVA+8+j}, vcc")
    a(f"ds_write_b128 v{vKW2}, {vr(ACCK,4)} offset:{SCR}")
    for j in range(4, 8): a(f"v_cndmask_b32 v{ACCK+j}, v{KVA+j}, v{KVA+8+j}, vcc")
    a(f"ds_write_b128 v{vKW2}, {vr(ACCK+4,4)} offset:{SCR+16}")
    if L == 0: a.wait(vm=initld)
    NQ = 8; QLA = 6
    rq = {}
    def RQ(s):
        b = WFR + (s % NQ) * 4
        if L == 0:
            a(f"ds_read_b64_tr_b16 {ar(b,2)}, v{vTQ} offset:{s*1024}")
            rq[s] = a(f"ds_read_b64_tr_b16 {ar(b+2,2)}, v{vTQ} offset:{s*1024+toff}")
        else:
            ks = KS((s + 16) & 31)
            rq[s] = a(f"ds_read_b128 {ar(b,4)}, v{vTQ2 if ks >= 16 else vTQ} offset:{(ks&15)*1024}")
    QB = L == 1 and opt("QB", 1)
    if L == 1 and not QB: a.wait(vm=qid)
    a.wait_lg_all()
    a("s_barrier")
    for w in range(4): kr = a(f"ds_read_b128 {vr(RR+4*w,4)}, v{vKR2} offset:{16384*w}")
    if not QB:
        for s in range(QLA): RQ(s)
    a(f"v_mov_b32 v{CFQ}, v{CQP}"); a(f"v_mov_b32 v{CFQ+1}, v{CQP}")
    ACCQ = ACCK
    mfma(vr(ACCQ,16), vr(CFQ,4), vr(MA,4), "0")
    a.wait(lg=kr)
    for j in range(4): a(f"v_add_f32 v{RR+j}, v{RR+j}, v{RR+4+j}")
    for j in range(4): a(f"v_add_f32 v{RR+8+j}, v{RR+8+j}, v{RR+12+j}")
    for j in range(4): a(f"v_add_f32 v{RR+j}, v{RR+j}, v{RR+8+j}")
    set_exec((1 << 40) - 1)
    a(f"v_writelane_b32 v{RR}, s{sNON}, 34")
    ws_store4(RR, sAKVP)
    set_exec(FULL)
    stamp("p1_kvpub")
    if QB:
        a.wait(vm=qid)
        a("s_barrier")
        for s in range(QLA): RQ(s)
    touches(L, 2)
    nfill = optL("F0", L, 0, 0); assert nfill <= 6
    for s in range(32):
        a.wait(lg=rq[s])
        b = WFR + (s % NQ) * 4
        mfma(vr(ACCQ,16), ar(b,4), vr(XF+4*s,4), vr(ACCQ,16))
        if s + QLA < 32: RQ(s + QLA)
        if s % 3 == 1 and pump.i < pump.c + nfill: pump.fill(pump.i + 1)
        if L == 0 and opt("WOP", 1) == 1 and s % 8 == 0: wo_issue(s // 8)
        if optL("POIQ", L, 1, 1):
            if s == 2: set_poi(VV)
            if s == 3: tile_poison(VV, sAHTW, 0, 2048)
            if s == 6: tile_poison(VV, sAUW, 0, 1024)
        if s == opt("A1S", 31):
            a1_early(L); vm_a1 = a.vm
        if s == opt("A1M", 99):
            a1_mid(a.vm - vm_a1); vm_a1 = a.vm
    for h in range(2):
        for q in range(4*h, 4*h+4): pk("fma", ACCQ+2*q, vr(ACCQ+2*q,2), vr(vRS,2), sr(sEPS6,2), hi=[1,0,0])
        for q in range(4*h, 4*h+4): pk("mul", T1+2*q, vr(ACCQ+2*q,2), sr(sL2E,2), hi=[1,0])
        for i in range(8*h, 8*h+8):
            a(f"v_exp_f32_e64 v{T1+i}, v{T1+i} clamp")
            a(f"v_max_f32 v{ACCQ+i}, s{sEPS6}, v{ACCQ+i}")
        for q in range(4*h, 4*h+4): pk("add", ACCQ+2*q, vr(ACCQ+2*q,2), vr(T1+2*q,2))
        for q in range(4*h, 4*h+4): a(f"v_cvt_pk_bf16_f32 v{PK+q}, v{ACCQ+2*q}, v{ACCQ+2*q+1}")
        ws_store4(PK + 4 * h, sAPQW, 1024 * h)
        if opt("A1S", 31) == 32 + h:
            a1_early(L); vm_a1 = a.vm
    if L == 0:
        for k in range(4): a(f"v_mov_b32 v{T1+k}, s{sNON}")
        a(f"s_sub_u32 s{sT0}, s{sAPQW}, {PQ[0]:#x}")
        a(f"s_lshr_b32 s{sT0}, s{sT0}, 4")
        a(f"s_add_u32 s{sT0}, s{sT0}, {TAGQ:#x}")
        set_exec(0xff)
        ws_store4(T1, sT0)
        set_exec(FULL)
    stamp("p1_q")
    if opt("NS1", 6) > 6: a("s_barrier")
    a1(L, a.vm - vm_a1)
    if L == 0 and opt("MISC", 0) == 2: misc_loads()
    G["misc"] = a.vm - 1
    pump.fill(pump.c + optL("F1", L, 6, 5))
    touches(L, 3)

def row_stats_publish(soff, SM):
    a(f"v_dot2_f32_bf16 v{SM}, v{XR}, s{sONES}, 0")
    a(f"v_dot2_f32_bf16 v{SM+1}, v{XR}, v{XR}, 0")
    a(f"v_dot2_f32_bf16 v{SM+2}, v{XR+1}, s{sONES}, 0")
    a(f"v_dot2_f32_bf16 v{SM+3}, v{XR+1}, v{XR+1}, 0")
    for j in range(2, 8):
        o = 2 * (j & 1)
        a(f"v_dot2_f32_bf16 v{SM+o}, v{XR+j}, s{sONES}, v{SM+o}")
        a(f"v_dot2_f32_bf16 v{SM+o+1}, v{XR+j}, v{XR+j}, v{SM+o+1}")
    a(f"v_lshlrev_b32 v{vT0}, 3, v{vL}")
    pk("add", SM, vr(SM,2), vr(SM+2,2))
    a(f"v_mov_b32 v{SM+2}, v{SM}")
    a(f"v_mov_b32 v{SM+3}, v{SM+1}")
    a(f"v_permlane32_swap_b32 v{SM}, v{SM+2}")
    a(f"v_permlane32_swap_b32 v{SM+1}, v{SM+3}")
    pk("add", SM, vr(SM,2), vr(SM+2,2))
    a(f"s_mov_b32 exec_hi, 0")
    a(f"v_and_b32 v{SM+1}, 0x7fffffff, v{SM+1}")
    a(f"buffer_store_dwordx2 {vr(SM,2)}, v{vT0}, {sr(SWS,4)}, s{soff} offen sc1")
    set_exec(FULL)

def unpack_xr(XU):
    for j in range(8):
        a(f"v_lshlrev_b32 v{XU+2*j}, 16, v{XR+j}")
        a(f"v_and_b32 v{XU+2*j+1}, 0xffff0000, v{XR+j}")

def p2(L):
    a.c(f"======== P2 layer {L}")
    if opt("CRF", 0) & (8 << L): code_refetch(vr(60, 4))
    KF, QF = 128, 192
    ACC = 32; CR = 64; OF = 96; WF = 104; XU = 64
    vK, vKC, vMX = MA, MA + 1, MA + 2
    tr_base(vTA, vTB, None, sKH, L_B)
    a(f"s_lshl_b32 s{sT2}, s{sKH}, 15")
    a(f"v_add_u32 v{vTA}, s{sT2}, v{vTA}")
    a(f"v_add_u32 v{vTB}, s{sT2}, v{vTB}")
    a(f"v_and_b32 v{vT0}, 31, v{vL}")
    a(f"v_mul_u32_u24 v{vKC}, 384, v{vT0}")
    a(f"v_min_u32 v{vT0}, 16, v{vT0}")
    a(f"v_lshlrev_b32 v{vT0}, 4, v{vT0}")
    a(f"v_mul_u32_u24 v{vT1}, 384, v{vHH}")
    a(f"v_add_u32 v{vK}, v{vT0}, v{vT1}")
    a(f"v_and_b32 v{vT2}, 7, v{vL}")
    a(f"v_lshlrev_b32 v{vT2}, {11 if L else 7}, v{vT2}")
    if L == 0:
        a(f"s_sub_u32 s{sT0}, s{sAPQR}, {PQ[0]:#x}")
        a(f"s_lshr_b32 s{sT0}, s{sT0}, 4")
        a(f"s_add_u32 s{sT0}, s{sT0}, {TAGQ:#x}")
    pump.run(min(R1 + 5, optL("B1", L, 21, 21)), refill=bool(optL("B1R", L, 1, 1)))
    if optL("POIQ", L, 1, 1) == 0:
        set_poi(CR)
        tile_poison(CR, sAHTW, 0, 2048)
        tile_poison(CR, sAUW, 0, 1024)
    stamp("beta")
    def ldq():
        a(f"s_mov_b32 s{sT4}, s{sAPQR}")
        for j in range(16):
            a(f"buffer_load_dwordx4 {vr(QF+4*j,4)}, v{vL16}, {sr(SWS,4)}, s{sT4} offen offset:{(j&3)*1024} sc1")
            if j & 3 == 3 and j < 15: a(f"s_add_u32 s{sT4}, s{sT4}, 4096")
    if L == 1:
        ci = lambda: a(f"buffer_load_dword v{vT3}, v{vT2}, {sr(SWS,4)}, s{sAPQR} offen offset:2044 sc1")
        cc = lambda: a(f"v_cmp_eq_u32 vcc, -1, v{vT3}")
    else:
        ci = lambda: a(f"buffer_load_dword v{vT3}, v{vT2}, {sr(SWS,4)}, s{sT0} offen sc1")
        cc = lambda: a(f"v_cmp_ne_u32 vcc, s{sNON}, v{vT3}")
    spec(ci, cc, ldq, 0x36 + L, a.newlabel("PQR"), on=opt("SPEC", 15) & 4)
    stamp("p2_pqc")
    if L == 0:
        a.wait(vm=max(G['wo'], G['misc']))
        for q in range(2):
            a(f"v_permlane32_swap_b32 v{XR+4*q}, v{XR+4*q+2}")
            a(f"v_permlane32_swap_b32 v{XR+4*q+1}, v{XR+4*q+3}")
        a(f"v_lshlrev_b32 v{vB2}, 16, v{vB2}")
    pump.run(min(R1 + 5, pump.i), refill=False)
    pump.run(min(R1 + 5, optL("B2", L, 0, 0)), refill=False)
    pump.fill(pump.c + optL("FK", L, 0, 0))
    a(f"s_xor_b32 s{sT0}, s{sW}, 1")
    a(f"s_lshl_b32 s{sT0}, s{sT0}, 12")
    a(f"v_add_u32 v{vRS}, s{sT0}, v{vL16}")
    a.wait_lg_all()
    a("s_barrier")
    rw = {}
    def RW(j):
        b = WF + (j % 3) * 8
        a(f"ds_read_b64_tr_b16 {vr(b,2)}, v{vTA} offset:{j*2048}")
        a(f"ds_read_b64_tr_b16 {vr(b+2,2)}, v{vTA} offset:{j*2048+1024}")
        a(f"ds_read_b64_tr_b16 {vr(b+4,2)}, v{vTB} offset:{j*2048}")
        rw[j] = a(f"ds_read_b64_tr_b16 {vr(b+6,2)}, v{vTB} offset:{j*2048+1024}")
    lid = {}
    def LD(j):
        if j == 0: a(f"s_mov_b32 s{sSO}, s{sAKVF}")
        elif j & 3 == 0: a(f"s_add_u32 s{sSO}, s{sSO}, {4*768}")
        lid[j] = a(f"buffer_load_dwordx4 {vr(KF+4*j,4)}, v{vK}, {sr(SWS,4)}, s{sSO} offen offset:{(j&3)*768} sc1")
    PLA = optL("PLA", L, 10, 10)
    redo = a.newlabel("P2REDO"); redo2 = a.newlabel("P2REDO2")
    IDMAPS.append(lid)
    with cold(redo, redo2): ldq()
    def window():
        for j in range(PLA): LD(j)
    spec(lambda: a(f"buffer_load_dword v{vT3}, v{vKC}, {sr(SWS,4)}, s{sAKVF} offen offset:272 sc1"),
         lambda: a(f"v_cmp_ne_u32 vcc, s{sNON}, v{vT3}"), window, 0x38 + L, redo2, on=opt("SPEC", 15) & 2)
    stamp("p2_kvc")
    if L == 0:
        sk = a.newlabel("NONW"); nw = a.newlabel("NONC")
        a(f"s_cmp_lg_u32 s{sWI}, 0")
        a(f"s_cselect_b32 s{sT0}, 1, s{sB}")
        a(f"s_cmp_eq_u32 s{sT0}, 0")
        a(f"s_cbranch_scc1 {nw}")
        with cold(nw, sk):
            a(f"v_mov_b32 v{vT0}, s{sNON}")
            set_exec(1)
            a(f"buffer_store_dword v{vT0}, off, {sr(SWS,4)}, 0 offset:{NONCE} sc1")
            set_exec(FULL)
        a.label(sk)
    RW(0); RW(1)
    a(f"v_mov_b32 v{vMX}, 0")
    def M1(j):
        a.wait(vm=lid[j])
        mfma(vr(CR+(j&1)*16,16), vr(KF+4*j,4), vr(QF+4*j,4), "0")
        a(f"v_max3_u32 v{vMX}, v{vMX}, v{KF+4*j}, v{QF+4*j}")
        if j + PLA < 16: LD(j + PLA)
        if j + PLA == 16: touches(L, 9)
    def Va(j):
        c = CR + (j & 1) * 16
        a(f"v_add_f32 v{c+8}, s{sEPS6}, v{c+8}")
        a(f"v_rcp_f32 v{c+8}, v{c+8}")
    def Vb(j):
        c = CR + (j & 1) * 16; o = OF + (j & 1) * 4
        for i in range(4): a(f"v_mul_f32 v{c+i}, v{c+i}, v{c+8}")
        for i in range(2): a(f"v_cvt_pk_bf16_f32 v{o+i}, v{c+2*i}, v{c+2*i+1}")
    def Vc(j):
        c = CR + (j & 1) * 16; o = OF + (j & 1) * 4
        for i in range(4, 8): a(f"v_mul_f32 v{c+i}, v{c+i}, v{c+8}")
        for i in range(2, 4): a(f"v_cvt_pk_bf16_f32 v{o+i}, v{c+2*i}, v{c+2*i+1}")
    M1(0); M1(1)
    Va(0); Vb(0); Vc(0); M1(2)
    nfp = optL("FP2", L, 6, 6)
    kb_saved = False
    for j in range(16):
        o = OF + (j & 1) * 4; b = WF + (j % 3) * 8
        if j + 1 < 16: Va(j + 1)
        a.wait(lg=rw[j])
        mfma(vr(ACC+16,16), vr(b+4,4), vr(o,4), "0" if j == 0 else vr(ACC+16,16))
        if j + 1 < 16: Vb(j + 1)
        mfma(vr(ACC,16), vr(b,4), vr(o,4), "0" if j == 0 else vr(ACC,16))
        if j + 1 < 16: Vc(j + 1)
        if j + 3 < 16: M1(j + 3)
        if j + 2 < 16: RW(j + 2)
    verify(vMX, redo)
    stamp("p2_main")
    lin(sT0, [(sFT, 128), (sRH, 64), (sKH, 32)])
    a(f"v_lshlrev_b32 v{vT0}, 3, v{vHH}")
    for q in range(2): a(f"buffer_load_dwordx2 {vr(152+2*q,2)}, v{vT0}, {sr(SB1,4)}, s{sT0} offen offset:{16*q}")
    for q, r in enumerate((ACC + 24, ACC + 28, ACC + 8, ACC + 12)): a(f"ds_write_b128 v{vRS}, {vr(r,4)} offset:{(q^2)*1024}")
    unpack_xr(XU)
    a(f"v_xor_b32 v{vT1}, 4096, v{vRS}")
    for q in range(4): pk("add", ACC+16+2*q, vr(ACC+16+2*q,2), vr(XU+8+2*q,2))
    for q in range(4): pk("add", ACC+2*q, vr(ACC+2*q,2), vr(XU+2*q,2))
    a.wait_lg_all()
    a("s_barrier")
    own = (ACC, ACC + 4, ACC + 16, ACC + 20)
    ids = [a(f"ds_read_b128 {vr(XU+4*q,4)}, v{vT1} offset:{q*1024}") for q in range(4)]
    for q in range(4):
        a.wait(lg=ids[q])
        pk("add", own[q], vr(own[q],2), vr(XU+4*q,2))
        pk("add", own[q]+2, vr(own[q]+2,2), vr(XU+4*q+2,2))
        a(f"v_cvt_pk_bf16_f32 v{XR+2*q}, v{own[q]}, v{own[q]+1}")
        a(f"v_cvt_pk_bf16_f32 v{XR+2*q+1}, v{own[q]+2}, v{own[q]+3}")
    row_stats_publish(sASTW, OF)
    stamp("p2_stpub")
    pump.run(pump.i, refill=False)
    pump.fill(pump.c + optL("GF", L, 6, 4))
    unpack_xr(XU)
    IDF = 104
    a(f"v_and_b32 v{vT0}, 31, v{vL}")
    a(f"v_lshlrev_b32 v{vT1}, 2, v{vHH}")
    a(f"v_sub_u32 v{vT0}, v{vT0}, v{vT1}")
    a(f"v_mov_b32 v{vT3}, 0x3f80")
    for f in range(2):
        for c in range(4):
            base = 16 * f + ((2 * c) & 3) + 8 * (c >> 1)
            a(f"v_subrev_u32 v{vT1}, {base}, v{vT0}")
            a(f"v_cmp_gt_u32 vcc, 2, v{vT1}")
            a(f"v_lshlrev_b32 v{vT1}, 4, v{vT1}")
            a(f"v_lshlrev_b32 v{vT2}, v{vT1}, v{vT3}")
            a(f"v_cndmask_b32 v{IDF+4*f+c}, 0, v{vT2}, vcc")
    SB = 128
    ht_voff(vRS)
    a(f"v_and_b32 v{vT0}, 31, v{vL}")
    a(f"v_lshlrev_b32 v{vT0}, 3, v{vT0}")
    a(f"v_lshl_add_u32 v{vT2}, v{vHH}, 12, v{vT0}")
    a(f"v_mov_b32 v{SB+18}, {fl(1.0+1e-5)}")
    def issue():
        for p in range(8): a(f"buffer_load_dwordx2 {vr(SB+2*p,2)}, v{vT2}, {sr(SWS,4)}, s{sASTR} offen offset:{p*512} sc1")
    if OPT.get(f"SL{0x34+L:x}", 0): a(f"s_sleep {OPT.get(f'SL{0x34+L:x}', 0)}")
    poll(issue, lambda: stats_check(SB), 0x34 + L)
    stamp("p2_stats")
    if optL("SF", L, 3, 3):
        pump.run(pump.i, refill=False)
        pump.fill(pump.c + optL("SF", L, 3, 3))
    stats_sum(SB)
    a(f"v_mul_f32 v{SB}, {fl(-1/512)}, v{SB}")
    a(f"v_mul_f32 v{SB+1}, {fl(1/512)}, v{SB+1}")
    a(f"v_fma_f32 v{SB+1}, -v{SB}, v{SB}, v{SB+1}")
    a(f"v_max_f32 v{SB+1}, 0, v{SB+1}")
    a(f"v_fmaak_f32 v{SB+1}, v{SB+1}, v{SB+18}, {fl(1e-10)}")
    a(f"v_rsq_f32 v{SB+2}, v{SB+1}")
    a(f"v_mul_f32 v{SB}, v{SB}, v{SB+2}")
    HP_ = 112
    for f in range(2):
        for j in range(4*f, 4*f+4):
            pk("fma", XU+2*j, vr(XU+2*j,2), vr(SB+2,2), vr(SB,2), hi=[1,0,0])
    for f in range(2):
        for j in range(4*f, 4*f+4):
            a(f"v_cvt_pk_bf16_f32 v{HP_+j}, v{XU+2*j}, v{XU+2*j+1}")
        mfma(vr(ACC,16), vr(HP_+4*f,4), vr(IDF+4*f,4), "0" if f == 0 else vr(ACC,16))
    for f in range(2):
        for j in range(4): a(f"v_cvt_pk_bf16_f32 v{ACC+16+4*f+j}, v{ACC+8*f+2*j}, v{ACC+8*f+2*j+1}")
        a(f"buffer_store_dwordx4 {vr(ACC+16+4*f,4)}, v{vRS}, {sr(SWS,4)}, s{sAHTW} offen offset:{2048*f} sc1")
    touches(L, 5)
    stamp(f"p2_{L}")

RING = 96; AUX = 144; NRH = 12
vR1, vR2, vR3, vRA = vT0, vT1, vT2, vRS
LKH = opt("LKH", 9)
class Half:
    def __init__(self, kind, hf, g0):
        self.kind, self.hf, self.g0 = kind, hf, g0
        self.nks, self.srot, self.sbase = (32, sROT1, sAHTR) if kind == 1 else (28, sROT2, sAUR)
        self.vA, self.vC = (vTA, MA + 1) if kind == 1 else (vTB, MA + 2)
        self.vMX = MA
        self.ids = {}; self.cid = None
        IDMAPS.append(self.ids)
    def rb(self, s): return RING + ((self.g0 + s) % NRH) * 4
    def LD(self, s):
        if s == 0: a(f"s_lshl_b32 s{sSO}, s{self.srot}, 11")
        elif s & 1 == 0:
            a(f"s_add_u32 s{sSO}, s{sSO}, 4096")
            a(f"s_cmp_eq_u32 s{sSO}, {self.nks*2048}")
            a(f"s_cselect_b32 s{sSO}, 0, s{sSO}")
        self.ids[s] = a(f"buffer_load_dwordx4 {vr(self.rb(s),4)}, v{self.vA}, {sr(SWS,4)}, s{sSO} offen offset:{(s&1)*2048+self.hf*1024} sc1")
    def window(self):
        for s in range(LKH): self.LD(s)
    def can_issue(self):
        off = 2048 + 1024 + 512 + 252 if self.kind == 1 else self.hf * 1024 + 1020
        self.cid = a(f"buffer_load_dword v{vT3}, v{self.vC}, {sr(SWS,4)}, s{self.sbase} offen offset:{off} sc1")
    def can_check(self): a(f"v_cmp_eq_u32 vcc, -1, v{vT3}")
    def MF(self, s, acc):
        A0 = 32 + 32 * self.hf
        wf = wreg(self.kind, s, 4 * acc, 4); af = vr(self.rb(s), 4)
        c = "0" if s == 0 else vr(A0 + 16 * acc, 16)
        A_, B_ = (wf, af) if self.kind == 1 else (af, wf)
        mfma(vr(A0+16*acc,16), A_, B_, c)
    def steps(self, redo, nxt=None, hook=None, force=True):
        n = self.nks
        a(f"v_mov_b32 v{self.vMX}, 0")
        for s in range(n):
            if hook: hook(s, 0)
            a.wait(vm=self.ids[s])
            self.MF(s, 1)
            if s + LKH < n: self.LD(s + LKH)
            elif nxt is not None:
                if s + LKH == n and nxt.kind == 2: nxt.can_issue()
                nxt.LD(s + LKH - n)
            if s & 1: a(f"v_max3_u32 v{self.vMX}, v{self.vMX}, v{self.rb(s-1)}, v{self.rb(s)}")
            self.MF(s, 0)
            if hook: hook(s, 1)
        verify(self.vMX, redo, force=force)
    def run(self, nxt=None, hook=None):
        lab = a.newlabel("PLAIN"); back = a.newlabel("BACK")
        OOL.append((self, nxt, lab, back))
        self.steps(lab, nxt, hook)
        a.label(back)
    def scr(self, k):
        if self.hf == 0: return 0, k * 2048
        if k < 2: return 1, SCR + k * 2048
        return 0, 6144
    def writes(self):
        A0 = 32 + 32 * self.hf
        for k in (1, 2, 0):
            src = (A0 + 8, A0 + 16, A0 + 24)[k]
            area, o = self.scr(k)
            r = (vR1, vR2, vR3)[k]
            if area == 1:
                a(f"v_lshl_add_u32 v{AUX+10+k}, v{r}, 1, v{AUX+9}"); r = AUX + 10 + k
            for q in range(2): a(f"ds_write_b128 v{r}, {vr(src+4*q,4)} offset:{o+q*1024}")
    def reads(self):
        D = 64 - 32 * self.hf
        if self.hf == 1: a(f"v_lshl_add_u32 v{AUX+10}, v{vRA}, 1, v{AUX+9}")
        a.wait_lg_all()
        a("s_barrier")
        ids = {}
        for q in range(2):
            for k in range(3):
                area, o = self.scr(k)
                ids[(q, k)] = a(f"ds_read_b128 {vr(D+8*k+4*q,4)}, v{AUX+10 if area else vRA} offset:{o+q*1024}")
        A0 = 32 + 32 * self.hf
        for q in range(2):
            a.wait(lg=ids[(q, 1)])
            for j in (0, 2): pk("add", D+4*q+j, vr(D+4*q+j,2), vr(D+8+4*q+j,2))
            a.wait(lg=ids[(q, 2)])
            for j in (0, 2): pk("add", A0+4*q+j, vr(A0+4*q+j,2), vr(D+16+4*q+j,2))
            for j in (0, 2): pk("add", A0+4*q+j, vr(A0+4*q+j,2), vr(D+4*q+j,2))
    def woven(self, D):
        A0 = 32 + 32 * self.hf
        ops = []
        ids = {}
        wl = a.lg - 1
        def bar():
            if self.hf == 1: a(f"v_lshl_add_u32 v{AUX+10}, v{vRA}, 1, v{AUX+9}")
            a.wait(lg=wl); a("s_barrier")
        ops.append(bar)
        def rd(q, k):
            area, o = self.scr(k)
            ids[(q, k)] = a(f"ds_read_b128 {vr(D+8*k+4*q,4)}, v{AUX+10 if area else vRA} offset:{o+q*1024}")
        for q in range(2):
            for k in range(3): ops.append(lambda q=q, k=k: rd(q, k))
        ops.append(None); ops.append(None); ops.append(None)
        for q in range(2):
            for k in range(3):
                for j in range(4):
                    def ad(q=q, k=k, j=j):
                        a.wait(lg=ids[(q, k)])
                        a(f"v_add_f32 v{A0+4*q+j}, v{A0+4*q+j}, v{D+8*k+4*q+j}")
                    ops.append(ad)
        return ops
    def late_check(self, code):
        a.wait(vm=self.cid)
        self.can_check()
        keep = snapshot_ids(); cid = self.cid
        fallback(self.can_issue, self.can_check, code, self.window, f"fb{code:x}")
        restore_ids(keep); self.cid = cid
OOL = []
def mix_setup():
    a(f"v_add_u32 v{vTA}, s{sAHTR}, v{vL16}")
    a(f"v_min_u32 v{vT0}, 31, v{vL}")
    a(f"v_lshrrev_b32 v{vT1}, 1, v{vT0}")
    a(f"v_and_b32 v{vT0}, 1, v{vT0}")
    a(f"v_lshlrev_b32 v{vT0}, 8, v{vT0}")
    a(f"v_lshl_add_u32 v{MA+1}, v{vT1}, 12, v{vT0}")
    a(f"s_lshl_b32 s{sT0}, s{sKH}, 8")
    a(f"v_xor_b32 v{vTB}, s{sT0}, v{vL16}")
    a(f"v_add_u32 v{vTB}, s{sAUR}, v{vTB}")
    a(f"v_min_u32 v{MA+2}, 27, v{vL}")
    a(f"v_lshlrev_b32 v{MA+2}, 11, v{MA+2}")
    for acc, r in ((1, vR1), (2, vR2), (3, vR3)):
        a(f"s_xor_b32 s{sT0}, s{sW}, {acc}")
        a(f"s_lshl_b32 s{sT0}, s{sT0}, 13")
        a(f"v_add_u32 v{r}, s{sT0}, v{vL16}")
    a(f"s_lshl_b32 s{sT0}, s{sW}, 13")
    a(f"v_add_u32 v{vRA}, s{sT0}, v{vL16}")
    a(f"v_sub_u32 v{AUX+9}, {L_A}, v{vL16}")

def p34(L):
    a.c(f"======== P3 layer {L}")
    if opt("CRF", 0) & (2 << L): code_refetch(vr(60, 4))
    B1R = AUX
    pump.run(pump.i, refill=True)
    pump.run(32)
    a.wait_lg_all()
    if L == 1: a("s_barrier")
    pump.setup(2, L, extra=optL("XB", L, 0, 8))
    pump.run(optL("V2", L, 5, 0), refill=False)
    pump.fill(pump.c + optL("V2F", L, 0, 8))
    assert pump.c <= R2
    if L == 0: a("s_barrier")
    for j in range(4):
        a(f"v_lshlrev_b32 v{B1R+2*j}, 16, v{152+j}")
        a(f"v_and_b32 v{B1R+2*j+1}, 0xffff0000, v{152+j}")
    mix_setup()
    K1 = -2.0 * 0.7978845608028654 * LOG2E
    a(f"v_mov_b32 v{AUX+8}, {fl(K1)}")
    SPX = optL("SPX", L, 1, 1)
    h3a = Half(1, 0, 0); h3b = Half(1, 1, 32); h4a = Half(2, 0, 64); h4b = Half(2, 1, 92)
    stamp("p3_delta")
    idle = a.newlabel("P3IDLE"); join = a.newlabel("P3JOIN")
    pst = (pump.i, pump.c, dict(pump.vid), dict(pump.lid))
    a(f"s_cmp_eq_u32 s{sP3}, 7")
    a(f"s_cbranch_scc1 {idle}")
    IDN = optL("IDT", L, 18, 0)
    WE3 = optL("WE3", L, 0, 0) and SPX
    ntail = optL("V2T", L, 0, 0); nepi = optL("V2E", L, 6, 3)
    def gelu_store(hf):
        A0 = 32 + 32 * hf; T = A0 + 16
        for q in range(4): pk("mul", T+2*q, vr(A0+2*q,2), vr(A0+2*q,2))
        for q in range(4): pk("fma", T+2*q, vr(T+2*q,2), sr(sT2,2), vr(AUX+8,2), hi=[1,0,0])
        for q in range(4): pk("mul", T+2*q, vr(T+2*q,2), vr(A0+2*q,2))
        for i in range(8): a(f"v_exp_f32 v{T+i}, v{T+i}")
        for q in range(4): pk("add", T+2*q, vr(T+2*q,2), "1.0", hi=[1,0])
        for i in range(8): a(f"v_rcp_f32 v{T+i}, v{T+i}")
        for q in range(4): pk("mul", A0+2*q, vr(A0+2*q,2), vr(T+2*q,2))
        for q in range(4): a(f"v_cvt_pk_bf16_f32 v{T+8+q}, v{A0+2*q}, v{A0+2*q+1}")
        ws_store4(T + 8, sAUW, 1024 * hf)
    with cond():
        a(f"s_mov_b32 s{sT2}, s{sGK}")
        spec(h3a.can_issue, h3a.can_check, h3a.window, 0x50 + L, a.newlabel("SREDO"))
        stamp("canary")
        h3a.run(nxt=h3b)
        stamp("gemm_a")
        h3a.writes()
        pump.fill(pump.i + nepi)
        for q in range(4): pk("add", 32+2*q, vr(32+2*q,2), vr(B1R+2*q,2))
        h3a.reads()
        gelu_store(0)
        stamp("epi_a")
        i0 = pump.i
        def hk(s, k):
            if k == 1 and s + LKH >= 32 and (s & 1) and pump.i < i0 + ntail: pump.fill(pump.i + 1)
        h3b.run(nxt=h4a if SPX else None, hook=hk)
        assert ntail <= 5
        stamp("gemm_b")
        h3b.writes()
        n2 = pump.i
        nmid = pump.i
        if optL("EB", L, 1, 0): pump.run(pump.i if optL("EB", L, 1, 0) == 2 else min(R2, pump.i), refill=False, tmp=(AUX + 14, AUX + 15))
        cact = pump.c
        pump.fill(pump.i + optL("V2E2", L, 4, 3))
        nact = pump.i; n2 = nact - n2
        if not WE3:
            for q in range(4): pk("add", 64+2*q, vr(64+2*q,2), vr(B1R+2*q,2))
            h3b.reads()
            gelu_store(1)
        else: a.wait_lg_all()
        if SPX: h4a.late_check(0x60 + L)
        a("s_nop 1")
    main_out = a.out; a.out = []
    a.label(idle)
    pump.i, pump.c, pump.vid, pump.lid = pst
    if IDN:
        a(f"v_lshrrev_b32 v{RING}, 2, v{vL}")
        a(f"v_lshlrev_b32 v{RING}, 12, v{RING}")
        a(f"v_and_b32 v{RING+1}, 3, v{vL}")
        a(f"v_lshl_add_u32 v{RING}, v{RING+1}, 7, v{RING}")
        a(f"s_bfe_u32 s{sT0}, s{sWI}, 0x20002")
        a(f"s_mul_i32 s{sT0}, s{sT0}, {28*65536}")
        a(f"s_and_b32 s{sT1}, s{sB}, 7")
        a(f"s_lshl_b32 s{sT1}, s{sT1}, 9")
        a(f"s_add_u32 s{sT0}, s{sT0}, s{sT1}")
        a(f"v_add_u32 v{RING}, s{sT0}, v{RING}")
        a(f"s_add_u32 s{sT1}, s{sW}, s{sROT2}")
        a(f"s_add_u32 s{sT1}, s{sT1}, {28 - IDN}")
        for k in range((IDN + 3) // 4):
            a(f"s_sub_u32 s{sT2}, s{sT1}, 28")
            a(f"s_cselect_b32 s{sT1}, s{sT1}, s{sT2}")
            a(f"s_lshl_b32 s{sT2}, s{sT1}, 16")
            a(f"buffer_load_dword v31, v{RING}, {sr(SW2,4)}, s{sT2} offen")
            a(f"s_add_u32 s{sT1}, s{sT1}, 4")
    nlate = n2 if SPX else 0
    pump.fill(nmid)
    if SPX:
        poll(h4a.can_issue, h4a.can_check, 0x5e)
        h4a.window()
    pump.run(cact, refill=False, tmp=(AUX + 14, AUX + 15))
    pump.fill(nact)
    a("s_nop 1")
    a(f"s_branch {join}")
    COLD.extend(a.out); a.out = main_out
    a.label(join)
    a.hist = []
    stamp(f"p3_{L}")
    a.c(f"======== P4 layer {L}")
    if L == 0 and opt("CRF", 0) & 1: code_refetch(vr(60, 4))
    if L == 0:
        set_poi(56)
        tile_poison(56, sAX2W, 0, 2048)
        tile_poison(56, sAPQW, PQ[1] - PQ[0], 1024)
        kv_poison(56, 1)
    cinit = pst[1]
    NKT = opt("NKT", 10)
    def kvdma(j):
        if j == 0: a(f"s_add_u32 s{sT3}, s{sAWQT}, s{sWA}")
        if j & 3 == 0:
            a(f"s_add_u32 m0, s{sWA}, {j*1024}")
            if j: a(f"s_add_u32 s{sT3}, s{sT3}, 4096")
        return a(f"buffer_load_dwordx4 v{vL16}, {sr(SWS,4)}, s{sT3} offen offset:{(j&3)*1024} sc1 lds")
    if SPX:
        WV = opt("WV", 2); AH = optL("AH", L, 3, 4)
        pump.run(min(pump.i, pump.c + optL("PRE", L, 0, 0)), tmp=(AUX, AUX + 1))
        landed = pump.i; c0 = pump.c
        w3 = []
        if WE3:
            w3 = h3b.woven(72)
            w3 = w3[:7] + [(lambda j=j: a(f"v_add_f32 v{64+j}, v{64+j}, v{B1R+j}")) for j in range(8)] + w3[10:]
            T = 72
            for i in range(8): w3.append(lambda i=i: a(f"v_mul_f32 v{T+i}, v{64+i}, v{64+i}"))
            for i in range(8): w3.append(lambda i=i: a(f"v_fma_f32 v{T+i}, v{T+i}, s{sGK}, v{AUX+8}"))
            for i in range(8): w3.append(lambda i=i: a(f"v_mul_f32 v{T+i}, v{T+i}, v{64+i}"))
            for i in range(8): w3.append(lambda i=i: a(f"v_exp_f32 v{T+i}, v{T+i}"))
            for i in range(8): w3.append(lambda i=i: a(f"v_add_f32 v{T+i}, 1.0, v{T+i}"))
            for i in range(8): w3.append(lambda i=i: a(f"v_rcp_f32 v{T+i}, v{T+i}"))
            for i in range(8): w3.append(lambda i=i: a(f"v_mul_f32 v{64+i}, v{64+i}, v{T+i}"))
            for q in range(4): w3.append(lambda q=q: a(f"v_cvt_pk_bf16_f32 v{80+q}, v{64+2*q}, v{64+2*q+1}"))
            w3.append(lambda: ws_store4(80, sAUW, 1024))
        W3S = opt("W3S", 4)
        def hk(s, k):
            for _ in range(W3S):
                if w3:
                    f = w3.pop(0)
                    if f: f()
            if k == 1:
                lim = max(min(landed, c0 + WV * (s + 1)), min(28, s + AH))
                pump.run(lim, tmp=(AUX, AUX + 1), first=(s == 0))
            if k == 0 and s >= cinit:
                assert pump.c > s
                if not opt("NOPUMP", 0): a.wait(lg=pump.lid[s])
        h4a.run(nxt=h4b, hook=hk)
        assert not w3
    else:
        pump.run(28, tmp=(AUX, AUX + 1))
        stamp("p4_w2")
        a.wait_lg_all()
        spec(h4a.can_issue, h4a.can_check, h4a.window, 0x60 + L, a.newlabel("SREDO"))
        stamp("canary")
        h4a.run(nxt=h4b)
    stamp("gemm_a")
    def resid(hf):
        A0 = 32 + 32 * hf; XU = AUX
        for j in range(4):
            a(f"v_lshlrev_b32 v{XU+2*j}, 16, v{XR+4*hf+j}")
            a(f"v_and_b32 v{XU+2*j+1}, 0xffff0000, v{XR+4*hf+j}")
        for q in range(4): pk("add", XU+2*q, vr(XU+2*q,2), vr(vB2-1,2), lo=[0,1], hi=[1,1])
        for q in range(4): pk("add", A0+2*q, vr(A0+2*q,2), vr(XU+2*q,2))
    def out(hf):
        A0 = 32 + 32 * hf
        for q in range(4): a(f"v_cvt_pk_bf16_f32 v{XR+4*hf+q}, v{A0+2*q}, v{A0+2*q+1}")
        if L == 0: ws_store4(XR + 4 * hf, sAX2W, 2048 * hf)
        else:
            a(f"v_permlane32_swap_b32 v{XR+4*hf}, v{XR+4*hf+2}")
            a(f"v_permlane32_swap_b32 v{XR+4*hf+1}, v{XR+4*hf+3}")
            a(f"buffer_store_dwordx4 {vr(XR+4*hf,4)}, v{vOUT}, {sr(SOUT,4)}, 0 offen offset:{64*hf}")
    wv = []
    if optL("WE4", L, 1, 1):
        h4a.writes()
        wv = h4a.woven(40)
        XU = AUX
        pre = []
        for j in range(4):
            pre.append(lambda j=j: a(f"v_lshlrev_b32 v{XU+2*j}, 16, v{XR+j}"))
            pre.append(lambda j=j: a(f"v_and_b32 v{XU+2*j+1}, 0xffff0000, v{XR+j}"))
        for j in range(8): pre.append(lambda j=j: a(f"v_add_f32 v{32+j}, v{32+j}, v{vB2}"))
        for j in range(8): wv.append(lambda j=j: a(f"v_add_f32 v{32+j}, v{32+j}, v{XU+j}"))
        wv = pre[:8] + wv[:1] + wv[1:7] + pre[8:] + wv[10:]
        wv.append(lambda: out(0))
    else:
        h4a.writes(); resid(0); h4a.reads(); out(0)
    h4b.late_check(0x62 + L)
    stamp("epi_a")
    kc = [0]
    WPS = opt("WPS", 2)
    def hk(s, k):
        for _ in range(WPS if k == 1 else WPS - 1):
            if wv:
                f = wv.pop(0)
                if f: f()
        if L == 0 and k == 1 and s + LKH >= 28 and kc[0] < NKT:
            kvdma(kc[0]); kc[0] += 1
    h4b.run(hook=hk)
    assert not wv
    stamp("gemm_b")
    if L == 0 and opt("XE", 0) == 1: xa_start()
    h4b.writes()
    if L == 0 and opt("XE", 0) == 2: xa_start()
    if L == 0 and opt("KE", 2):
        while kc[0] < 12: kvdma(kc[0]); kc[0] += 1
    resid(1); h4b.reads()
    if L == 0 and opt("KE", 2) == 2:
        while kc[0] < 16: G["kvlast"] = kvdma(kc[0]); kc[0] += 1
    out(1)
    if L == 0:
        row_stats_publish(sAS2W, 32)
        for j in range(kc[0], 16): G["kvlast"] = kvdma(j)
    stamp(f"p4_{L}")

def emit_ool():
    for h, nxt, lab, back in OOL:
        a.label(lab)
        a.hist = []
        a.vm_done = a.vm
        h.window()
        h.steps(lab, force=False)
        if nxt is not None:
            if nxt.kind == 2: nxt.can_issue()
            nxt.window()
            a("s_waitcnt vmcnt(0)")
        a("s_nop 15")
        a(f"s_branch {back}")

prologue()
for L in range(2):
    p1(L); p2(L); p34(L)
finish()
a.out.extend(COLD); COLD.clear()
a.label("L_END")
emit_ool()
a.out.extend(COLD)
a.label("L_EXIT")
a("s_endpgm")

hdr = open(f"ref.s").read().split("; Override launch")[0]
def wrap(body): return hdr + f"""; @launch grid=(256,1,1) block=(256,1,1) lds={LDS_BYTES}
.amdgcn_target "amdgcn-amd-amdhsa--gfx950"
.text
.globl {NAME}_kernel
.p2align 8
.type {NAME}_kernel,@function
{NAME}_kernel:
""" + body + f""".section .rodata,"a"
.p2align 6
.amdhsa_kernel {NAME}_kernel
  .amdhsa_next_free_vgpr 512
  .amdhsa_next_free_sgpr 102
  .amdhsa_accum_offset 256
  .amdhsa_group_segment_fixed_size 0
  .amdhsa_kernarg_size 88
  .amdhsa_user_sgpr_count 2
  .amdhsa_user_sgpr_kernarg_segment_ptr 1
  .amdhsa_system_sgpr_workgroup_id_x 1
  .amdhsa_float_denorm_mode_32 3
.end_amdhsa_kernel
"""
lines = a.out
if opt("ALN", 32):
    from align import align
    lines, st = align(lines, wrap, B=opt("ALN", 32), NOPC=opt("NOPC", 150))
    print("align: straddles %d -> %d, widened %d, bytes %d -> %d" % st, file=sys.stderr)
out = wrap("\n".join(lines) + "\n")
outp = [x for x in sys.argv[1:] if x.endswith(".s")]
open(outp[0], "w").write(out)
if DIAG: open(outp[0] + ".stamps", "w").write("\n".join(stamp_names))
if DIAG: open(outp[0] + ".sites", "w").write(" ".join(site_names))
```

```python
import sys, struct
from contextlib import contextmanager
from asmlib import Asm, vr, ar, sr

NAME = "interleave_layers__linear_attn_block__mixer_token_mlp__prompt"
DIAG = "--diag" in sys.argv
OPT = {}
for a_ in sys.argv:
    if a_.startswith("-D"):
        k_, v_ = a_[2:].split("="); OPT[k_] = int(v_)
def opt(k, d): return OPT.get(k, d)
def optL(k, L, d0, d1): return OPT.get(f"{k}_{L}", (d0, d1)[L])
def f2u(x): return struct.unpack("<I", struct.pack("<f", x))[0]
def fl(x): return "0x%08x" % f2u(x)
FULL = (1 << 64) - 1
LOG2E = 1.4426950408889634

KVF = [0x2000, 0xC0000]; KVP = [0x8000, 0xC6000]; ST = [0x166000, 0x1A6000]; ST2 = 0x1E6000
SELFP = 0xC0000
PQ = [0x400000, 0x600000]; HT = [0x800000, 0xA00000]; U = [0xC00000, 0xE00000]; X2 = 0x1000000
WQT = 0x1200000
TS = 0x1400000
DUMP = 0x1500000
ERRS = 0x1520000
NONCE = 0x0; TAGQ = 0x1540000
WS_BYTES = 268435456
L_A = 32768; L_B = 98304; LDS_BYTES = 163840
NS = 6; SCR = 12288
sW = 3
SX, SWQKV, SWO, SW1, SW2, SWS, SOUT, SDBG, SB1, SB2, SCODE = 4, 8, 12, 16, 20, 24, 28, 32, 36, 40, 44
sST, sDT, sRB, sHP, sDT3, sFT, sP3, sRH, sKH, sWB, sTO, sONES = 48, 49, 50, 51, 52, 53, 54, 55, 56, 57, 58, 59
sEPS6 = 60; sB = 61
sT0, sT1, sT2, sT3, sT4, sT5 = 62, 63, 64, 65, 66, 67
sSO = 68; sW1K = 69; sTS = 70
sL2E = 74; sWA = 75; sROTX = 76; sROT1 = 77; sROT2 = 78; sRED = 79; sWOFF = 80; sKB = 81; sXC = 82; sWI = 83
sKA = 84
sAKVP, sAPQW, sAPQR, sAKVF, sASTW, sASTR, sAHTW, sAHTR, sAUW, sAUR, sAX2W, sAX2R, sAS2W, sAS2R, sAWQT, sGK = range(84, 100)
sDUM = 100; sNON = 101; sRX0 = 73
vL, vL16, vTA, vTB, vT0, vT1, vT2, vT3 = 0, 1, 2, 3, 4, 5, 6, 7
XR = 8
CKP, CVP, CQP, vB2, vRS, vHH, vOUT, vTSV = 16, 17, 18, 19, 20, 21, 22, 23
vWA, vWB, vWTA, vWTB = 24, 25, 26, 27
MA = 28

a = Asm()
stamp_names = []
G = {}

@contextmanager
def cond():
    st = (a.vm, a.vm_done, a.lg, a.lg_done); h = list(a.hist)
    yield
    a.vm, a.vm_done, a.lg, a.lg_done = st[0], min(st[1], st[0]), st[2], min(st[3], st[2])
    a.hist = h

COLD = []
@contextmanager
def cold(label, back=None):
    st = (a.vm, a.vm_done, a.lg, a.lg_done, list(a.hist)); main = a.out
    a.out = []
    a.label(label)
    yield
    if back:
        a("s_nop 1")
        a(f"s_branch {back}")
    COLD.extend(a.out)
    a.out = main
    a.vm, a.vm_done, a.lg, a.lg_done, a.hist = st

def stamp(name):
    if not DIAG: return
    if "--lite" in sys.argv and name not in ("start", "end", "p4_0"): return
    k = len(stamp_names); stamp_names.append(name)
    if opt("CYC", 0) and name not in ("start", "end"): a(f"s_memtime {sr(sTS,2)}")
    else: a(f"s_memrealtime {sr(sTS,2)}")
    if name in ("start", "end"): a(f"s_memtime s[0:1]") if name == "end" else a(f"s_memtime {sr(sTS+2,2)}")
    a("s_waitcnt lgkmcnt(0)"); a.lg_done = a.lg
    a(f"v_writelane_b32 v{vTSV}, s{sTS}, {k}")
    if name in ("start", "end"): a(f"v_writelane_b32 v{vTSV}, s{sTS+2 if name == 'start' else 0}, {62 if name == 'start' else 63}")

def srd(base, ptr, nbytes):
    a(f"s_mov_b32 s{base}, s{ptr}")
    a(f"s_and_b32 s{base+1}, s{ptr+1}, 0xffff")
    a(f"s_mov_b32 s{base+2}, {nbytes:#x}")
    a(f"s_mov_b32 s{base+3}, 0x20000")

def set_exec(mask):
    if mask == FULL: a("s_mov_b64 exec, -1")
    elif mask <= 64: a(f"s_mov_b64 exec, {mask}")
    else:
        a(f"s_mov_b32 exec_lo, {mask & 0xffffffff:#x}"); a(f"s_mov_b32 exec_hi, {mask >> 32:#x}")

def lin(dst, terms, const=0):
    first = True
    for r, m in terms:
        t = dst if first else sT5
        if m == 1 and not first: a(f"s_add_u32 s{dst}, s{dst}, s{r}"); continue
        if m & (m - 1) == 0: a(f"s_lshl_b32 s{t}, s{r}, {m.bit_length()-1}")
        else: a(f"s_mul_i32 s{t}, s{r}, {m}")
        if not first: a(f"s_add_u32 s{dst}, s{dst}, s{sT5}")
        first = False
    if const: a(f"s_add_u32 s{dst}, s{dst}, {const:#x}")

def timeout_path(code):
    a(f"s_mov_b32 s{sTO}, 0")
    if DIAG:
        a(f"v_mov_b32 v{vT3}, {code}")
        a(f"s_mov_b32 s{sT5}, {ERRS:#x}")
        a(f"buffer_store_dword v{vT3}, off, {sr(SWS,4)}, s{sT5}")
        a("s_waitcnt vmcnt(0)")

def poll_loop(issue, check, code, done):
    top = a.newlabel("POLL"); go = a.newlabel("PGO")
    a.label(top)
    mark(f"retry{code:x}")
    if opt("PS", 2) and not (code == 0x20 and opt("A1NS", 1)): a(f"s_sleep {opt('PS', 2)}")
    a(f"s_sub_u32 s{sTO}, s{sTO}, 1")
    a(f"s_cbranch_scc0 {go}")
    timeout_path(code)
    a(f"s_branch {done}")
    a.label(go)
    issue()
    a.wait_vm_all(force=True)
    check()
    a(f"s_cbranch_vccnz {top}")
    a(f"s_branch {done}")

def poll(issue, check, code, pre=None):
    done = a.newlabel("PDONE"); rt = a.newlabel("PRT")
    if pre is not None: a.wait(vm=pre)
    else:
        issue()
        a.wait_vm_all(force=True)
    check()
    a(f"s_cbranch_vccnz {rt}")
    with cold(rt): poll_loop(issue, check, code, done)
    a.label(done)

def fallback(issue, check, code, reissue, name):
    fb = a.newlabel("FB"); back = a.newlabel("FBB"); mid = a.newlabel("FBM"); first = a.newlabel("FBF")
    force_fail("FRC")
    a(f"s_cbranch_vccnz {fb}")
    with cold(fb, back):
        mark(name)
        issue()
        a.wait_vm_all(force=True)
        check()
        a(f"s_cbranch_vccz {mid}")
        poll_loop(issue, check, code, mid)
        a.label(mid)
        reissue()
        a("s_waitcnt vmcnt(0)")
    a.label(back)

def poll1(addr, code, tmp=None, tag=False):
    cmp = (lambda r: a(f"v_cmp_ne_u32 vcc, s{sNON}, v{r}")) if tag else (lambda r: a(f"v_cmp_eq_u32 vcc, -1, v{r}"))
    if tmp is None or not opt("PP", 0):
        poll(lambda: a(f"buffer_load_dword v{vT3}, {addr} sc1"), lambda: cmp(vT3), code)
        return
    top = a.newlabel("PP"); done = a.newlabel("PPD")
    a(f"buffer_load_dword v{vT3}, {addr} sc1")
    a(f"s_nop {opt('PPN', 15)}")
    a.label(top)
    for r, o in ((vT3, tmp), (tmp, vT3)):
        a(f"buffer_load_dword v{o}, {addr} sc1")
        a("s_waitcnt vmcnt(1)")
        cmp(r)
        a(f"s_cbranch_vccz {done}")
    h = list(a.hist)
    a(f"s_sub_u32 s{sTO}, s{sTO}, 2")
    a(f"s_cbranch_scc0 {top}")
    timeout_path(code)
    a.label(done)
    a.hist = h
    a.vm -= 1
    a.vm_done = a.vm - 1

SLD = {}
SPD = {0x50: 1, 0x51: 1, 0x60: 1, 0x61: 1, 0x36: 1, 0x38: 1, 0x39: 1, 0x40: 1}
def spec(can_issue, can_check, window, code, redo, on=True):
    d = OPT.get(f"SL{code:x}", SLD.get(code, 0))
    if d: a(f"s_sleep {d}")
    on = OPT.get(f"SP{code:x}", SPD.get(code, 0))
    go = a.newlabel("GO")
    if on:
        can_issue(); cid = a.vm - 1
        window()
        a.wait(vm=cid)
        can_check()
        keep = snapshot_ids()
        fallback(can_issue, can_check, code, window, f"fb{code:x}")
        restore_ids(keep)
    else:
        poll(can_issue, can_check, code)
        window()
    keep = snapshot_ids()
    with cold(redo, go):
        window()
        a("s_waitcnt vmcnt(0)")
    restore_ids(keep)
    a.label(go)

IDMAPS = []
def snapshot_ids(): return [dict(m) for m in IDMAPS]
def restore_ids(k):
    for m, v in zip(IDMAPS, k):
        m.clear(); m.update(v)

site_names = []
def mark(name):
    if not opt("CNT", 0): return
    if name.startswith("retry") and name not in ("retry20", "retry34", "retry35", "retry37"): return
    k = len(site_names); site_names.append(name)
    a(f"s_bitset1_b32 s2, {k}")
force_n = [0]
def force_fail(kind):
    if not opt(kind, 0): return
    k = force_n[0] % 32; force_n[0] += 1
    l = a.newlabel("FF")
    a(f"s_bitcmp1_b32 s2, {k}")
    a(f"s_cbranch_scc1 {l}")
    a(f"s_bitset1_b32 s2, {k}")
    a("s_mov_b64 vcc, 1")
    a.label(l)

def verify(vMX, redo, force=True):
    ok = a.newlabel("VOK"); bad = a.newlabel("VBAD")
    a(f"v_cmp_eq_u32 vcc, -1, v{vMX}")
    if force: force_fail("FRV")
    a(f"s_cbranch_vccnz {bad}")
    with cold(bad, ok):
        if force: mark("redo")
        a("s_waitcnt vmcnt(0)")
        a(f"s_sub_u32 s{sTO}, s{sTO}, 64")
        a(f"s_cbranch_scc0 {redo}")
        a(f"s_mov_b32 s{sTO}, 0")
        a("s_nop 15")
    a.label(ok)

def finish():
    if opt("AMPM", 0):
        lp = a.newlabel("AML"); sk = a.newlabel("AMS")
        a(f"s_and_b32 s{sT0}, s2, {opt('AMPM', 0):#x}")
        a(f"s_cbranch_scc0 {sk}")
        a(f"s_memrealtime s[70:71]")
        a("s_waitcnt lgkmcnt(0)")
        a(f"s_add_u32 s{sT1}, s70, 4000")
        a.label(lp)
        a(f"s_memrealtime s[70:71]")
        a("s_waitcnt lgkmcnt(0)")
        a(f"s_sub_u32 s{sT2}, s70, s{sT1}")
        a(f"s_cmp_lt_i32 s{sT2}, 0")
        a(f"s_cbranch_scc1 {lp}")
        a.label(sk)
    if opt("AMP", -1) >= 0:
        lp = a.newlabel("AMPL"); sk = a.newlabel("AMPS")
        stamp("pre_end")
        a(f"s_cmp_lg_u32 s{sB}, 77")
        a(f"s_cbranch_scc1 {sk}")
        a(f"v_readlane_b32 s{sT0}, v{vTSV}, 0")
        a(f"v_readlane_b32 s{sT1}, v{vTSV}, {opt('AMP', 0)}")
        a(f"s_memrealtime s[70:71]")
        a("s_waitcnt lgkmcnt(0)")
        a(f"s_sub_u32 s{sT1}, s{sT1}, s{sT0}")
        a(f"s_lshl_b32 s{sT1}, s{sT1}, 2")
        a(f"s_add_u32 s{sT1}, s70, s{sT1}")
        a.label(lp)
        a(f"s_memrealtime s[70:71]")
        a("s_waitcnt lgkmcnt(0)")
        a(f"s_sub_u32 s{sT2}, s70, s{sT1}")
        a(f"s_cmp_lt_i32 s{sT2}, 0")
        a(f"s_cbranch_scc1 {lp}")
        a.label(sk)
    if DIAG:
        a(f"v_writelane_b32 v{vTSV}, s{sTO}, 61")
        if opt("CNT", 0): a(f"v_writelane_b32 v{vTSV}, s2, 60")
        stamp("end")
        lin(sT0, [(sB, 1024), (sW, 256)], TS)
        a(f"v_lshlrev_b32 v{vT0}, 2, v{vL}")
        a(f"buffer_store_dword v{vTSV}, v{vT0}, {sr(SWS,4)}, s{sT0} offen")
    a("s_endpgm")

def pk(op, d, x, y, z=None, hi=None, lo=None):
    ops = [x, y] + ([z] if z is not None else [])
    m = ""
    if lo: m += " op_sel:[" + ",".join(map(str, lo)) + "]"
    if hi: m += " op_sel_hi:[" + ",".join(map(str, hi)) + "]"
    a(f"v_pk_{op}_f32 {vr(d,2)}, " + ", ".join(ops) + m)

def mfma(d, A, B, C):
    a(f"v_mfma_f32_32x32x16_bf16 {d}, {A}, {B}, {C}")

def ws_store4(reg, soff, off=0): return a(f"buffer_store_dwordx4 {vr(reg,4)}, v{vL16}, {sr(SWS,4)}, s{soff} offen offset:{off} sc1")

def tr_base(dst_a, dst_b, sel64, sel32, region):
    a(f"v_bfe_u32 v{vT0}, v{vL}, 2, 2")
    a(f"v_lshl_add_u32 v{vT0}, v{vHH}, 2, v{vT0}")
    a(f"v_lshlrev_b32 v{dst_a}, 7, v{vT0}")
    a(f"v_bfe_u32 v{vT1}, v{vL}, 3, 1")
    a(f"v_lshl_add_u32 v{dst_a}, v{vT1}, 6, v{dst_a}")
    a(f"v_bfe_u32 v{vT1}, v{vL}, 4, 1")
    a(f"v_lshl_add_u32 v{dst_a}, v{vT1}, 5, v{dst_a}")
    a(f"v_and_b32 v{vT1}, 3, v{vL}")
    a(f"v_lshl_add_u32 v{dst_a}, v{vT1}, 3, v{dst_a}")
    for sel, sh in ((sel64, 6), (sel32, 5)):
        if sel is not None:
            a(f"s_lshl_b32 s{sT5}, s{sel}, {sh}")
            a(f"v_xor_b32 v{dst_a}, s{sT5}, v{dst_a}")
    a(f"v_add_u32 v{dst_a}, {region}, v{dst_a}")
    a(f"v_xor_b32 v{dst_b}, 64, v{dst_a}")

def dma_voff(dst, dst2, pitch, scol):
    a(f"v_lshrrev_b32 v{vT0}, 3, v{vL}")
    a(f"v_mul_u32_u24 v{dst}, {pitch}, v{vT0}")
    a(f"v_bfe_u32 v{vT1}, v{vL}, 4, 1")
    a(f"v_lshlrev_b32 v{vT1}, 2, v{vT1}")
    a(f"v_and_b32 v{vT0}, 7, v{vL}")
    a(f"v_xor_b32 v{vT0}, v{vT0}, v{vT1}")
    a(f"v_lshl_add_u32 v{dst}, v{vT0}, 4, v{dst}")
    a(f"v_add_u32 v{dst}, s{scol}, v{dst}")
    a(f"v_add_u32 v{dst2}, {8*pitch-1024}, v{dst}")

R1, R2 = 16, 11
def wreg(kind, t, j, n):
    r, base = (R1, 0) if kind == 1 else (R2, R1 * 8)
    if t < r: return ar(base + 8 * t + j, n)
    t -= r
    if t < 5: return ar(216 + 8 * t + j, n)
    return vr(160 + 8 * (t - 5) + j, n)

class Pump:
    def setup(self, kind, L, extra=0):
        self.kind = kind
        self.pitch, self.srd, self.n = (3584, SW1, 32) if kind == 1 else (4096, SW2, 28)
        self.t0 = 0 if L == 0 else (R1 if kind == 1 else R2)
        self.extra = extra
        self.ns = opt("NS1", 6) if kind == 1 else NS
        self.i = self.t0; self.c = self.t0; self.vid = {}; self.lid = {}
        a.c(f"pump setup W{kind}")
        a(f"s_lshl_b32 s{sT5}, s{sKH}, 5")
        a(f"v_xor_b32 v{vWTA}, s{sT5}, v{vWTA}")
        a(f"v_xor_b32 v{vWTB}, s{sT5}, v{vWTB}")
        lin(sT4, [(sFT if kind == 1 else sST, 128), (sW, self.n * 16 * self.pitch)])
        dma_voff(vWA, vWB, self.pitch, sT4)
        rot = sROT1 if kind == 1 else sROT2
        a(f"s_add_u32 s{sT5}, s{rot}, {self.t0}")
        a(f"s_sub_u32 s{sWOFF}, s{sT5}, {self.n}")
        a(f"s_cselect_b32 s{sWOFF}, s{sT5}, s{sWOFF}")
        a(f"s_mul_i32 s{sWOFF}, s{sWOFF}, {16*self.pitch}")
    def place(self, t):
        k = t - self.t0
        if k < self.extra: return ("B", k * 2048)
        return ("A", ((k - self.extra) % self.ns) * 2048)
    def prev_user(self, t):
        p = t - self.ns
        return p if p - self.t0 >= self.extra else None
    def room(self, lag=0):
        p = self.prev_user(self.i)
        return p is None or p < self.c - lag
    def issue1(self):
        t = self.i
        if opt("NOPUMP", 0):
            self.vid[t] = None; self.i += 1; return
        p = self.prev_user(t)
        if p is not None: a.wait(lg=self.lid[p])
        reg, o = self.place(t)
        a(f"s_add_u32 m0, s{sWB if reg == 'B' else sWA}, {o}")
        if t > self.t0:
            a(f"s_add_u32 s{sWOFF}, s{sWOFF}, {16*self.pitch}")
            a(f"s_cmp_eq_u32 s{sWOFF}, {self.n*16*self.pitch}")
            a(f"s_cselect_b32 s{sWOFF}, 0, s{sWOFF}")
        a(f"buffer_load_dwordx4 v{vWA}, {sr(self.srd,4)}, s{sWOFF} offen lds")
        self.vid[t] = a(f"buffer_load_dwordx4 v{vWB}, {sr(self.srd,4)}, s{sWOFF} offen offset:1024 lds")
        self.i += 1
    def fill(self, upto=None):
        lim = self.n if upto is None else min(self.n, upto)
        while self.i < lim and self.room(): self.issue1()
    def run(self, target, refill=True, tmp=(vT0, vT1), first=True):
        target = min(target, self.n)
        haveB = not first
        while self.c < target:
            t = self.c
            if t >= self.i: self.issue1()
            if opt("NOPUMP", 0):
                self.c += 1; continue
            reg, o = self.place(t)
            ta, tb = vWTA, vWTB
            if reg == "B":
                ta, tb = tmp
                if not haveB:
                    a(f"v_add_u32 v{ta}, 65536, v{vWTA}"); a(f"v_add_u32 v{tb}, 65536, v{vWTB}"); haveB = True
            a.wait(vm=self.vid[t])
            a(f"ds_read_b64_tr_b16 {wreg(self.kind,t,0,2)}, v{ta} offset:{o}")
            a(f"ds_read_b64_tr_b16 {wreg(self.kind,t,2,2)}, v{ta} offset:{o+1024}")
            a(f"ds_read_b64_tr_b16 {wreg(self.kind,t,4,2)}, v{tb} offset:{o}")
            self.lid[t] = a(f"ds_read_b64_tr_b16 {wreg(self.kind,t,6,2)}, v{tb} offset:{o+1024}")
            self.c += 1
            lim = self.n if refill else target
            if self.i < lim and self.room(lag=1): self.issue1()
        if refill: self.fill()
pump = Pump()

def prologue():
    a(f"s_cmp_ge_u32 s2, 256")
    a(f"s_cbranch_scc1 L_EXIT")
    a(f"s_load_dwordx16 {sr(sKA,16)}, s[0:1], 0")
    a(f"s_load_dwordx4 {sr(SCODE,4)}, s[0:1], 64")
    a(f"s_load_dwordx2 s[100:101], s[0:1], 80")
    a(f"s_mov_b32 s{sB}, s2")
    if opt("CNT", 0): a("s_mov_b32 s2, 0")
    if opt("FRV", 0) or opt("FRC", 0): a("s_mov_b32 s2, 0")
    a(f"v_lshrrev_b32 v{vT0}, 6, v0")
    a(f"v_and_b32 v{vL}, 63, v0")
    a(f"v_readfirstlane_b32 s{sW}, v{vT0}")
    a(f"v_lshlrev_b32 v{vL16}, 4, v{vL}")
    a(f"v_lshrrev_b32 v{vHH}, 5, v{vL}")
    if opt("CODEPF", 2) == 2:
        a(f"s_getpc_b64 {sr(SB1,2)}")
        a.label("L_PC")
        a(f"s_and_b32 s{SB1+1}, s{SB1+1}, 0xffff")
        a(f"s_mov_b32 s{SB1+2}, L_END - L_PC")
        a(f"s_mov_b32 s{SB1+3}, 0x20000")
        a(f"s_lshr_b32 s{sT0}, s{sB}, 3")
        a(f"s_lshl_b32 s{sT0}, s{sT0}, 2")
        a(f"s_add_u32 s{sT0}, s{sT0}, s{sW}")
        a(f"s_lshl_b32 s{sT0}, s{sT0}, 10")
        a(f"buffer_load_dwordx4 {ar(252,4)}, v{vL16}, {sr(SB1,4)}, s{sT0} offen")
    if DIAG: a(f"v_mov_b32 v{vTSV}, 0")
    stamp("start")
    X_, I_ = sT0, sT1
    a(f"s_and_b32 s{X_}, s{sB}, 7")
    a(f"s_lshr_b32 s{I_}, s{sB}, 3")
    a(f"s_lshr_b32 s{sT2}, s{I_}, 3")
    a(f"s_and_b32 s{sDT}, s{I_}, 7")
    a(f"s_and_b32 s{sRB}, s{X_}, 3")
    a(f"s_lshl_b32 s{sRB}, s{sRB}, 2")
    a(f"s_add_u32 s{sRB}, s{sRB}, s{sT2}")
    a(f"s_lshr_b32 s{sHP}, s{X_}, 2")
    a(f"s_lshl_b32 s{sHP}, s{sHP}, 3")
    a(f"s_add_u32 s{sHP}, s{sHP}, s{sDT}")
    a(f"s_lshr_b32 s{sROTX}, s{sDT}, 1")
    a(f"s_add_u32 s{sROTX}, s{sROTX}, s{sT2}")
    a(f"s_and_b32 s{sROTX}, s{sROTX}, 3")
    a(f"s_lshl_b32 s{sROTX}, s{sROTX}, 1")
    a(f"s_and_b32 s{sT3}, s{I_}, 1")
    a(f"s_add_u32 s{sROTX}, s{sROTX}, s{sT3}")
    a(f"s_and_b32 s{sRX0}, s{sROTX}, {opt('RXM', 6)}")
    a(f"s_lshl_b32 s{sW1K}, s{sW}, 10")
    a(f"s_lshl_b32 s{sWB}, s{sW}, 14")
    a(f"s_add_u32 s{sWA}, s{sWB}, {L_A}")
    a(f"s_add_u32 s{sWB}, s{sWB}, {L_B}")

def roles2():
    X_, I_ = sT0, sT1
    a(f"s_and_b32 s{X_}, s{sB}, 7")
    a(f"s_lshr_b32 s{I_}, s{sB}, 3")
    a(f"s_lshr_b32 s{sT2}, s{I_}, 3")
    a(f"s_lshl_b32 s{sST}, s{X_}, 2")
    a(f"s_add_u32 s{sST}, s{sST}, s{sT2}")
    a(f"s_lshr_b32 s{sT3}, s{X_}, 1")
    a(f"s_mul_i32 s{sT3}, s{sT3}, 7")
    a(f"s_and_b32 s{sT4}, s{X_}, 1")
    a(f"s_lshl_b32 s{sT5}, s{sT4}, 2")
    a(f"s_add_u32 s{sFT}, s{sT3}, s{sT5}")
    a(f"s_add_u32 s{sFT}, s{sFT}, s{sT2}")
    a(f"s_and_b32 s{sP3}, s{I_}, 3")
    a(f"s_add_u32 s{sT5}, s{sT5}, s{sP3}")
    a(f"s_add_u32 s{sKB}, s{sT3}, 3")
    a(f"s_cmp_lt_u32 s{I_}, 24")
    a(f"s_cselect_b32 s{sFT}, s{sFT}, s{sKB}")
    a(f"s_cselect_b32 s{sDT3}, s{sDT}, s{sT5}")
    a(f"s_mul_i32 s{sT4}, s{sT4}, 3")
    a(f"s_add_u32 s{sXC}, s{sT3}, s{sT4}")
    a(f"s_lshl_b32 s{sROT1}, s{X_}, 2")
    a(f"s_and_b32 s{sT3}, s{I_}, 3")
    a(f"s_lshr_b32 s{sP3}, s{I_}, 2")
    a(f"s_lshl_b32 s{sWI}, s{I_}, 2")
    a(f"s_add_u32 s{sWI}, s{sWI}, s{sW}")
    a(f"s_lshl_b32 s{sRED}, s{X_}, 2")
    a(f"s_add_u32 s{sRED}, s{sRED}, s{sT3}")
    a(f"s_lshl_b32 s{sRED}, s{sRED}, 1")
    a(f"s_add_u32 s{sRED}, s{sRED}, s{sW}")
    a(f"s_cmp_lt_u32 s{sW}, 2")
    a(f"s_cselect_b32 s{sRED}, s{sRED}, 99")
    a(f"s_cmp_eq_u32 s{sP3}, 7")
    a(f"s_cselect_b32 s{sRED}, s{sRED}, 99")
    a(f"s_mul_i32 s{sROT2}, s{X_}, 7")
    a(f"s_lshr_b32 s{sROT2}, s{sROT2}, 2")
    a(f"s_lshl_b32 s{sROT2}, s{sROT2}, 1")
    if opt("MAP", 0):
        a(f"s_and_b32 s{sT2}, s{X_}, 1")
        a(f"s_lshl_b32 s{sT2}, s{sT2}, 2")
        a(f"s_and_b32 s{sT3}, s{I_}, 3")
        a(f"s_lshr_b32 s{sT5}, s{X_}, 1")
        a(f"s_add_u32 s{sT4}, s{sP3}, s{sT3}")
        a(f"s_and_b32 s{sT4}, s{sT4}, {opt('MROT', 1)}")
        if opt("MAP", 0) & 1:
            a(f"s_add_u32 s{sDT3}, s{sT2}, s{sT3}")
            a(f"s_mul_i32 s{sFT}, s{sT5}, 7")
            a(f"s_add_u32 s{sFT}, s{sFT}, s{sP3}")
            a(f"s_lshl_b32 s{sROT1}, s{sT4}, 4")
        if opt("MAP", 0) & 2:
            a(f"s_add_u32 s{sDT}, s{sT2}, s{sT3}")
            a(f"s_lshl_b32 s{sST}, s{sT5}, 3")
            a(f"s_add_u32 s{sST}, s{sST}, s{sP3}")
            a(f"s_mul_i32 s{sROT2}, s{sT4}, 14")
    a(f"s_lshr_b32 s{sRH}, s{sW}, 1")
    a(f"s_and_b32 s{sKH}, s{sW}, 1")
    a(f"s_mov_b32 s{sTO}, 400000")
    a(f"s_mov_b32 s{sONES}, 0x3f803f80")
    a(f"s_mov_b32 s{sEPS6}, {fl(1e-6)}")
    a(f"s_mov_b32 s{sL2E}, {fl(LOG2E)}")

def late_srds():
    srd(SWO, sKA + 4, 512 * 512 * 2)
    srd(SW1, sKA + 8, 2048 * 1792 * 2)
    srd(SB1, sKA + 10, 1792 * 2)
    srd(SW2, sKA + 12, 1792 * 2048 * 2)
    srd(SB2, sKA + 14, 2048 * 2)
    srd(SOUT, SCODE, 2048 * 512 * 2)
    srd(SDBG, SCODE + 2, 256)

def code_prefetch():
    if opt("CODEPF", 2) == 1:
        a(f"s_getpc_b64 {sr(SCODE,2)}")
        a.label("L_PC")
        a(f"s_and_b32 s{SCODE+1}, s{SCODE+1}, 0xffff")
        a(f"s_mov_b32 s{SCODE+2}, L_END - L_PC")
        a(f"s_mov_b32 s{SCODE+3}, 0x20000")
        a(f"s_lshl_b32 s{sT0}, s{sWI}, 10")
        a(f"buffer_load_dwordx4 {ar(252,4)}, v{vL16}, {sr(SCODE,4)}, s{sT0} offen")
    srd(SCODE, SW1, 2048 * 1792 * 2)
    a(f"s_cmp_eq_u32 s{sP3}, 7")
    a(f"s_cselect_b32 s{SW1+2}, 0, s{SW1+2}")

def code_refetch(dst):
    l = a.newlabel("PCX")
    a(f"s_getpc_b64 {sr(SDBG,2)}")
    a.label(l)
    a(f"s_and_b32 s{SDBG+1}, s{SDBG+1}, 0xffff")
    a(f"s_mov_b32 s{SDBG+2}, L_END - {l}")
    a(f"s_lshl_b32 s{sT5}, s{sWI}, 10")
    a(f"buffer_load_dword v31, v{vL16}, {sr(SDBG,4)}, s{sT5} offen")

def addresses():
    lin(sAKVP, [(sHP, 64 * 640), (sRB, 4 * 640), (sW, 640)], KVP[0])
    lin(sAPQW, [(sRB, 4 * 32768), (sW, 32768), (sHP, 2048)], PQ[0])
    lin(sAPQR, [(sST, 65536), (sRH, 32768), (sKH, 16384)], PQ[0])
    lin(sAKVF, [(sKH, 16 * 768)], KVF[0])
    lin(sASTW, [(sST, 8192), (sDT, 1024), (sKH, 512), (sRH, 256)], ST[0])
    lin(sASTR, [(sST, 8192), (sRH, 256)], ST[0])
    lin(sAHTW, [(sDT, 262144), (sST, 8192), (sRH, 4096), (sKH, 256)], HT[0])
    lin(sAHTR, [(sDT3, 262144), (sW, 65536)], HT[0])
    lin(sAUW, [(sDT3, 229376), (sFT, 8192), (sRH, 4096), (sKH, 2048)], U[0])
    a(f"s_cmp_eq_u32 s{sP3}, 7")
    a(f"s_cselect_b32 s{sAUW}, {WS_BYTES:#x}, s{sAUW}")
    lin(sAUR, [(sDT, 229376), (sW, 57344)], U[0])
    lin(sAX2W, [(sST, 65536), (sRH, 32768), (sDT, 4096), (sKH, 1024)], X2)
    lin(sAX2R, [(sRB, 4 * 32768), (sW, 32768)], X2)
    a(f"s_add_u32 s{sAS2W}, s{sASTW}, {ST2 - ST[0]:#x}")
    lin(sAS2R, [(sRB, 2 * 8192), (sRH, 8192), (sKH, 256)], ST2)
    lin(sAWQT, [(sHP, 98304)], WQT)
    a(f"s_mov_b32 s{sGK}, {fl(-2.0 * 0.7978845608028654 * LOG2E * 0.044715)}")

def next_layer_addresses():
    for r, d in ((sAKVP, KVP[1] - KVP[0]), (sAPQW, PQ[1] - PQ[0]), (sAPQR, PQ[1] - PQ[0]), (sAKVF, KVF[1] - KVF[0]),
                 (sASTW, ST[1] - ST[0]), (sASTR, ST[1] - ST[0]), (sAHTW, HT[1] - HT[0]), (sAHTR, HT[1] - HT[0]),
                 (sAUW, U[1] - U[0]), (sAUR, U[1] - U[0])):
        a(f"s_add_u32 s{r}, s{r}, {d:#x}")

def kv_poison(P, L):
    r = sAKVP
    if L == 1:
        a(f"s_add_u32 s{sT1}, s{sAKVP}, {KVP[1]-KVP[0]:#x}"); r = sT1
    set_exec((1 << 40) - 1)
    ws_store4(P, r)
    a(f"s_mul_i32 s{sT0}, s{sRED}, 384")
    a(f"s_add_u32 s{sT0}, s{sT0}, {KVF[L]:#x}")
    a(f"s_cmp_ge_u32 s{sRED}, 64")
    a(f"s_cselect_b32 s{sT0}, {WS_BYTES:#x}, s{sT0}")
    set_exec((1 << 24) - 1)
    ws_store4(P, sT0)
    set_exec(FULL)
def ht_voff(dst):
    a(f"v_and_b32 v{dst}, 15, v{vL}")
    a(f"v_lshlrev_b32 v{dst}, 4, v{dst}")
    a(f"v_lshl_add_u32 v{dst}, v{vHH}, 9, v{dst}")
    a(f"v_bfe_u32 v{vT0}, v{vL}, 4, 1")
    a(f"v_lshl_add_u32 v{dst}, v{vT0}, 10, v{dst}")
def tile_poison(P, r, delta, step):
    v = vL16
    if r == sAHTW:
        ht_voff(vT1); v = vT1
    if delta:
        a(f"s_add_u32 s{sT0}, s{r}, {delta:#x}"); r = sT0
    for f in range(2): a(f"buffer_store_dwordx4 {vr(P,4)}, v{v}, {sr(SWS,4)}, s{r} offen offset:{step*f} sc1")
def canary_poison(P):
    lines = ((sAHTW, 2048+1024+512+128), (sAUW, 896), (sAUW, 1024+896), (sAHTW, HT[1]-HT[0]+2048+1024+512+128),
             (sAUW, U[1]-U[0]+896), (sAUW, U[1]-U[0]+1024+896), (sAPQW, PQ[1]-PQ[0]+1024+896), (sAX2W, 896))
    a(f"v_lshrrev_b32 v{vT0}, 3, v{vL}")
    for g, (r, d) in enumerate(lines):
        a(f"s_add_u32 s{sT0}, s{r}, {d:#x}")
        if g == 0: a(f"v_mov_b32 v{vT1}, s{sT0}")
        else:
            a(f"v_mov_b32 v{vT2}, s{sT0}")
            a(f"v_cmp_eq_u32 vcc, {g}, v{vT0}")
            a(f"v_cndmask_b32 v{vT1}, v{vT1}, v{vT2}, vcc")
    a(f"v_and_b32 v{vT0}, 7, v{vL}")
    a(f"v_lshl_add_u32 v{vT1}, v{vT0}, 4, v{vT1}")
    a(f"buffer_store_dwordx4 {vr(P,4)}, v{vT1}, {sr(SWS,4)}, 0 offen sc1")
def st_poison(P):
    lin(sT0, [(sB, 3072), (sW, 768)], ST[0])
    set_exec((1 << 48) - 1)
    ws_store4(P, sT0)
    set_exec(FULL)
def set_poi(P):
    for i in range(4): a(f"v_mov_b32 v{P+i}, -1")

def misc_loads():
    lin(sT0, [(sST, 64), (sRH, 32)])
    a(f"v_and_b32 v{vT0}, 31, v{vL}")
    a(f"v_add_u32 v{vT0}, s{sT0}, v{vT0}")
    a(f"v_lshlrev_b32 v{vT1}, 1, v{vT0}")
    a(f"buffer_load_ushort v{vB2}, v{vT1}, {sr(SB2,4)}, 0 offen")
    a(f"v_lshlrev_b32 v{vT0}, 10, v{vT0}")
    a(f"v_lshl_add_u32 v{vOUT}, v{vHH}, 4, v{vT0}")
    lin(sT0, [(sDT, 128), (sKH, 32)])
    a(f"v_add_u32 v{vOUT}, s{sT0}, v{vOUT}")
    a(f"buffer_load_dwordx4 {vr(XR,4)}, v{vOUT}, {sr(SX,4)}, 0 offen")
    a(f"buffer_load_dwordx4 {vr(XR+4,4)}, v{vOUT}, {sr(SX,4)}, 0 offen offset:64")

def touch(srdn, rows_per_wave, lg, pitch, scol_emit, dst):
    n = rows_per_wave << lg
    scol_emit()
    a(f"v_min_u32 v{vT0}, {n-1}, v{vL}")
    a(f"v_lshrrev_b32 v{vT1}, {lg}, v{vT0}")
    a(f"v_mul_u32_u24 v{vT1}, {pitch}, v{vT1}")
    a(f"v_and_b32 v{vT0}, {(1<<lg)-1}, v{vT0}")
    a(f"v_lshl_add_u32 v{vT0}, v{vT0}, 7, v{vT1}")
    a(f"s_mul_i32 s{sT5}, s{sWI}, {rows_per_wave*pitch}")
    a(f"s_add_u32 s{sT4}, s{sT4}, s{sT5}")
    a(f"buffer_load_dword {dst}, v{vT0}, {sr(srdn,4)}, s{sT4} offen")
def touch_w1(dst): touch(SCODE, 16, 2, 3584, lambda: a(f"s_lshl_b32 s{sT4}, s{sXC}, 7"), dst)
def touch_w2(dst):
    def c2():
        a(f"s_and_b32 s{sT4}, s{sB}, 7"); a(f"s_lshl_b32 s{sT4}, s{sT4}, 9")
    touch(SW2, 16, 2, 4096, c2, dst)
def touch_w2h(dst, t0):
    a(f"s_lshr_b32 s{sT4}, s{sWI}, 3")
    a(f"s_add_u32 s{sT4}, s{sT4}, s{sROT2}")
    if t0: a(f"s_add_u32 s{sT4}, s{sT4}, {t0}")
    a(f"s_sub_u32 s{sT5}, s{sT4}, 28")
    a(f"s_cselect_b32 s{sT4}, s{sT4}, s{sT5}")
    a(f"s_and_b32 s{sT5}, s{sWI}, 3")
    a(f"s_mul_i32 s{sT5}, s{sT5}, 28")
    a(f"s_add_u32 s{sT4}, s{sT4}, s{sT5}")
    a(f"s_lshl_b32 s{sT4}, s{sT4}, 1")
    a(f"s_bfe_u32 s{sT5}, s{sWI}, 0x10002")
    a(f"s_add_u32 s{sT4}, s{sT4}, s{sT5}")
    a(f"s_lshl_b32 s{sT4}, s{sT4}, 15")
    a(f"s_and_b32 s{sT5}, s{sB}, 7")
    a(f"s_lshl_b32 s{sT5}, s{sT5}, 9")
    a(f"s_add_u32 s{sT4}, s{sT4}, s{sT5}")
    a(f"s_cmp_eq_u32 s{sP3}, 7")
    a(f"s_cselect_b32 s{sT4}, 0x10000000, s{sT4}")
    a(f"v_min_u32 v{vT0}, 31, v{vL}")
    a(f"v_lshrrev_b32 v{vT1}, 2, v{vT0}")
    a(f"v_and_b32 v{vT0}, 3, v{vT0}")
    a(f"v_lshlrev_b32 v{vT0}, 7, v{vT0}")
    a(f"v_lshl_add_u32 v{vT0}, v{vT1}, 12, v{vT0}")
    a(f"buffer_load_dword {dst}, v{vT0}, {sr(SW2,4)}, s{sT4} offen")
def touch_w1h(dst, t0):
    a(f"s_lshr_b32 s{sT4}, s{sWI}, 3")
    a(f"s_add_u32 s{sT4}, s{sT4}, s{sROT1}")
    if t0: a(f"s_add_u32 s{sT4}, s{sT4}, {t0}")
    a(f"s_and_b32 s{sT4}, s{sT4}, 31")
    a(f"s_and_b32 s{sT5}, s{sWI}, 3")
    a(f"s_lshl_b32 s{sT5}, s{sT5}, 5")
    a(f"s_add_u32 s{sT4}, s{sT4}, s{sT5}")
    a(f"s_lshl_b32 s{sT4}, s{sT4}, 1")
    a(f"s_bfe_u32 s{sT5}, s{sWI}, 0x10002")
    a(f"s_add_u32 s{sT4}, s{sT4}, s{sT5}")
    a(f"s_mul_i32 s{sT4}, s{sT4}, {8*3584}")
    a(f"s_lshl_b32 s{sT5}, s{sXC}, 7")
    a(f"s_add_u32 s{sT4}, s{sT4}, s{sT5}")
    a(f"v_min_u32 v{vT0}, 31, v{vL}")
    a(f"v_lshrrev_b32 v{vT1}, 2, v{vT0}")
    a(f"v_and_b32 v{vT0}, 3, v{vT0}")
    a(f"v_lshlrev_b32 v{vT0}, 7, v{vT0}")
    a(f"v_mul_u32_u24 v{vT1}, 3584, v{vT1}")
    a(f"v_add_u32 v{vT0}, v{vT1}, v{vT0}")
    a(f"buffer_load_dword {dst}, v{vT0}, {sr(SCODE,4)}, s{sT4} offen")
def touch_wo(dst): touch(SWO, 4, 3, 1024, lambda: a(f"s_mov_b32 s{sT4}, 0"), dst)
def touches(L, where):
    dst = "a25" if where in (1, 2, 3, 6, 7, 8) else None
    if optL("T1", L, 8, 0) == where: touch_w1(dst + "2" if dst else "v31")
    if optL("T1A", L, 0, 0) == where: touch_w1h(dst + "2" if dst else "v31", 0)
    if optL("T1B", L, 0, 0) == where: touch_w1h(dst + "5" if dst else "v31", 16)
    if optL("T2", L, 0, 0) == where: touch_w2(dst + "3" if dst else "v31")
    if optL("T2H", L, 9, 0) == where: touch_w2h(dst + "3" if dst else "v31", 0)
    if optL("T2G", L, 0, 0) == where: touch_w2h(dst + "3" if dst else "v31", 14)

def split2(dst, src, t0):
    a(f"v_cvt_pk_bf16_f32 v{t0}, v{src}, v{src}")
    a(f"v_and_b32 v{t0}, 0xffff0000, v{t0}")
    a(f"v_sub_f32 v{dst}, v{src}, v{t0}")
    a(f"v_cvt_pk_bf16_f32 v{dst}, v{t0}, v{dst}")

def stats_to_frags(S, Q, RA):
    a(f"v_mul_f32 v{S}, {fl(-1/512)}, v{S}")
    a(f"v_mul_f32 v{Q}, {fl(1/512)}, v{Q}")
    a(f"v_cmp_eq_u32 vcc, 0, v{vHH}")
    a(f"v_fma_f32 v{Q}, -v{S}, v{S}, v{Q}")
    a(f"v_max_f32 v{Q}, 0, v{Q}")
    a(f"v_add_f32 v{Q}, {fl(1e-5)}, v{Q}")
    a(f"v_rsq_f32 v{vRS}, v{Q}")
    a(f"v_cndmask_b32 v{S}, 0, v{S}, vcc")
    a(f"v_cvt_pk_bf16_f32 v{MA}, v{S}, v{S}")
    a(f"v_cndmask_b32 v{Q}, 0, v{vRS}, vcc")
    a(f"v_and_b32 v{vT0}, 0xffff0000, v{MA}")
    a(f"v_sub_f32 v{S}, v{S}, v{vT0}")
    a(f"v_cvt_pk_bf16_f32 v{MA+1}, v{S}, v{S}")
    split2(RA, Q, vT0)

def stats_check(SB):
    a(f"v_max3_u32 v{vT3}, v{SB+1}, v{SB+3}, v{SB+5}")
    a(f"v_max3_u32 v{vT3}, v{vT3}, v{SB+7}, v{SB+9}")
    a(f"v_max3_u32 v{vT3}, v{vT3}, v{SB+11}, v{SB+13}")
    a(f"v_max_u32 v{vT3}, v{vT3}, v{SB+15}")
    a(f"v_cmp_eq_u32 vcc, -1, v{vT3}")
def stats_sum(SB):
    for n in (4, 2, 1):
        for p in range(n): pk("add", SB+2*p, vr(SB+2*p,2), vr(SB+2*(p+n),2))
    a(f"v_mov_b32 v{SB+2}, v{SB}")
    a(f"v_mov_b32 v{SB+3}, v{SB+1}")
    a(f"v_permlane32_swap_b32 v{SB}, v{SB+2}")
    a(f"v_permlane32_swap_b32 v{SB+1}, v{SB+3}")
    pk("add", SB, vr(SB,2), vr(SB+2,2))

@contextmanager
def rare(skip):
    if opt("A1OOL", 1):
        l = a.newlabel("RED")
        a(f"s_cmp_lt_u32 s{sRED}, 64")
        a(f"s_cbranch_scc1 {l}")
        with cold(l, skip): yield
    else:
        a(f"s_cmp_ge_u32 s{sRED}, 64")
        a(f"s_cbranch_scc1 {skip}")
        with cond(): yield
A1B = 128
def a1_issue():
    a(f"s_mov_b32 s{sT3}, s{sKB}")
    for p in range(16):
        a(f"buffer_load_dwordx4 {vr(A1B+4*p,4)}, v{vL16}, {sr(SWS,4)}, s{sT3} offen offset:{(p&1)*2560} sc1")
        if p & 1 and p < 15: a(f"s_add_u32 s{sT3}, s{sT3}, {2*2560}")
def a1_early(L):
    skip = a.newlabel("NOA1E")
    with rare(skip):
        a(f"s_lshr_b32 s{sKB}, s{sRED}, 2")
        a(f"s_mul_i32 s{sKB}, s{sKB}, {16*2560}")
        a(f"s_and_b32 s{sT2}, s{sRED}, 3")
        a(f"s_mul_i32 s{sT2}, s{sT2}, 640")
        a(f"s_add_u32 s{sKB}, s{sKB}, s{sT2}")
        a(f"s_add_u32 s{sKB}, s{sKB}, {KVP[L]:#x}")
        if opt("A1C", 0):
            a(f"v_and_b32 v{vT1}, 15, v{vL}")
            a(f"v_mul_u32_u24 v{vT1}, 2560, v{vT1}")
            a(f"buffer_load_dword v{vT3}, v{vT1}, {sr(SWS,4)}, s{sKB} offen offset:544 sc1")
        else:
            set_exec((1 << 35) - 1)
            a1_issue()
            set_exec(FULL)
    a.label(skip)
def a1_check():
    B = A1B
    a(f"v_max3_u32 v{vT3}, v{B}, v{B+4}, v{B+8}")
    a(f"v_min3_u32 v{vT1}, v{B}, v{B+4}, v{B+8}")
    for p in range(3, 15, 2):
        a(f"v_max3_u32 v{vT3}, v{vT3}, v{B+4*p}, v{B+4*p+4}")
        a(f"v_min3_u32 v{vT1}, v{vT1}, v{B+4*p}, v{B+4*p+4}")
    a(f"v_max_u32 v{vT3}, v{vT3}, v{B+60}")
    a(f"v_min_u32 v{vT1}, v{vT1}, v{B+60}")
    a(f"v_cmp_eq_u32 vcc, -1, v{vT3}")
    a(f"v_readlane_b32 s{sT0}, v{vT3}, 34")
    a(f"v_readlane_b32 s{sT1}, v{vT1}, 34")
    a(f"s_xor_b32 s{sT0}, s{sT0}, s{sNON}")
    a(f"s_xor_b32 s{sT1}, s{sT1}, s{sNON}")
    a(f"s_or_b32 s{sT0}, s{sT0}, s{sT1}")
    a(f"s_or_b32 vcc_lo, vcc_lo, s{sT0}")
    a(f"s_or_b64 vcc, vcc, vcc")
def a1_mid(younger):
    skip = a.newlabel("NOA1M"); ok = a.newlabel("A1MOK")
    a(f"s_cmp_ge_u32 s{sRED}, 64")
    a(f"s_cbranch_scc1 {skip}")
    with cond():
        set_exec((1 << 35) - 1)
        a(f"s_waitcnt vmcnt({younger})")
        a1_check()
        a(f"s_cbranch_vccz {ok}")
        a1_issue()
        a.label(ok)
        set_exec(FULL)
    a.label(skip)
def a1(L, younger):
    a.c("======== A1 reducer")
    skip = a.newlabel("NOA1")
    with rare(skip):
        B = A1B
        a(f"s_mul_i32 s{sT2}, s{sRED}, 384")
        a(f"s_add_u32 s{sT2}, s{sT2}, {KVF[L]:#x}")
        a(f"v_lshlrev_b32 v{vT2}, 3, v{vL}")
        set_exec((1 << 35) - 1)
        def check():
            a(f"v_max3_u32 v{vT3}, v{B}, v{B+4}, v{B+8}")
            a(f"v_min3_u32 v{vT1}, v{B}, v{B+4}, v{B+8}")
            for p in range(3, 15, 2):
                a(f"v_max3_u32 v{vT3}, v{vT3}, v{B+4*p}, v{B+4*p+4}")
                a(f"v_min3_u32 v{vT1}, v{vT1}, v{B+4*p}, v{B+4*p+4}")
            a(f"v_max_u32 v{vT3}, v{vT3}, v{B+60}")
            a(f"v_min_u32 v{vT1}, v{vT1}, v{B+60}")
            a(f"v_cmp_eq_u32 vcc, -1, v{vT3}")
            a(f"v_readlane_b32 s{sT0}, v{vT3}, 34")
            a(f"v_readlane_b32 s{sT1}, v{vT1}, 34")
            a(f"s_xor_b32 s{sT0}, s{sT0}, s{sNON}")
            a(f"s_xor_b32 s{sT1}, s{sT1}, s{sNON}")
            a(f"s_or_b32 s{sT0}, s{sT0}, s{sT1}")
            a(f"s_or_b32 vcc_lo, vcc_lo, s{sT0}")
            a(f"s_or_b64 vcc, vcc, vcc")
        a.vm_done = min(a.vm_done, a.vm - younger - 1)
        if opt("A1C", 0):
            poll(lambda: a(f"buffer_load_dword v{vT3}, v{vT1}, {sr(SWS,4)}, s{sKB} offen offset:544 sc1"),
                 lambda: a(f"v_cmp_ne_u32 vcc, s{sNON}, v{vT3}"), 0x21, pre=a.vm - younger - 1)
            poll(a1_issue, check, 0x20)
        else:
            poll(a1_issue, check, 0x20, pre=a.vm - younger - 1)
        n = 16
        while n > 1:
            n //= 2
            for p in range(n):
                for j in (0, 2): pk("add", B+4*p+j, vr(B+4*p+j,2), vr(B+4*(p+n)+j,2))
        a(f"v_cvt_pk_bf16_f32 v{B+4}, v{B}, v{B+1}")
        a(f"v_cvt_pk_bf16_f32 v{B+5}, v{B+2}, v{B+3}")
        a(f"v_mov_b32_dpp v{B+6}, v{B+4} quad_perm:[1,1,3,3] row_mask:0xf bank_mask:0xf")
        a(f"v_mov_b32_dpp v{B+7}, v{B+5} quad_perm:[1,1,3,3] row_mask:0xf bank_mask:0xf")
        a(f"v_writelane_b32 v{B+4}, s{sNON}, 34")
        set_exec(0x555555555555)
        a(f"buffer_store_dwordx4 {vr(B+4,4)}, v{vT2}, {sr(SWS,4)}, s{sT2} offen sc1")
        set_exec(FULL)
        a("s_nop 1")
    a.label(skip)
    stamp("a1")

XF = 128
def KS(s): return 4 * ((s & 15) >> 1) + (s & 1) + 2 * (s >> 4)
def XFR(L, s): return XF + 4 * (((s + 16) & 31) if L == 1 else s)
xid1 = {}
def xa_XL(s):
    jj = s & 15
    if jj == 0: a(f"s_mov_b32 s{sSO}, s{sT4}")
    elif jj == 8: a(f"s_xor_b32 s{sSO}, s{sT4}, 16384")
    elif jj & 1 == 0: a(f"s_add_u32 s{sSO}, s{sSO}, 4096")
    xid1[s] = a(f"buffer_load_dwordx4 {vr(XFR(1,s),4)}, v{vL16}, {sr(SWS,4)}, s{sSO} offen offset:{(KS(s)&3)*1024} sc1")
vXC = MA + 1
def xa_ci(): return a(f"buffer_load_dword v{vT3}, v{vXC}, {sr(SWS,4)}, s{sAX2R} offen offset:1020 sc1")
def xa_start():
    a(f"s_and_b32 s{sT5}, s{sROTX}, {opt('XROT', 1)}")
    a(f"s_lshl_b32 s{sT5}, s{sT5}, 14")
    a(f"s_add_u32 s{sT4}, s{sAX2R}, s{sT5}")
    a(f"v_and_b32 v{vXC}, 15, v{vL}")
    a(f"v_lshrrev_b32 v{MA+3}, 1, v{vXC}")
    a(f"v_and_b32 v{vXC}, 1, v{vXC}")
    a(f"v_lshlrev_b32 v{vXC}, 10, v{vXC}")
    a(f"v_lshl_add_u32 v{vXC}, v{MA+3}, 12, v{vXC}")
    G["xcid"] = xa_ci()
    for s in range(opt("LA1", 8)): xa_XL(s)
def p1(L):
    ACCK, ACCV, RR = 32, 48, 64
    VV, PK, T1 = 80, 88, 96
    S0, S1, Q0, Q1 = 80, 81, 82, 83
    CF = 84
    CFV, CFQ, RA = 112, 116, 120
    vTQ, vTV = 124, 125
    vW, vXA, vXB = 126, 127, 96
    vCQ, vCV = 97, 98
    vOA, vOB = vTA, vTB
    vTQ2, vTV2 = vTA, vTB
    vKW, vKR = 92, 93
    XA = 88
    vKW2, vKR2 = vT2, 127
    POI = 100
    WFR = 216; NWF = 4; ONESF = 248; CG = 200; CK, CV, CQ = 152, 168, 184
    a.c(f"======== P1 layer {L}")
    xid = {}; wid = {}
    toff = 256
    def addr_setup():
        if L == 0:
            a(f"v_bfe_u32 v{vT0}, v{vL}, 2, 2")
            a(f"v_lshl_add_u32 v{vT0}, v{vHH}, 3, v{vT0}")
            a(f"v_lshlrev_b32 v{vTQ}, 6, v{vT0}")
            a(f"v_bfe_u32 v{vT1}, v{vL}, 4, 1")
            a(f"v_lshl_add_u32 v{vTQ}, v{vT1}, 5, v{vTQ}")
            a(f"v_and_b32 v{vT1}, 3, v{vL}")
            a(f"v_lshl_add_u32 v{vTQ}, v{vT1}, 3, v{vTQ}")
        else:
            a(f"s_and_b32 s{sT5}, s{sROTX}, {opt('XROT', 1)}")
            a(f"s_lshl_b32 s{sT5}, s{sT5}, 14")
            a(f"v_add_u32 v{vTQ}, s{sT5}, v{vL16}")
            a(f"v_xor_b32 v{vTQ2}, 16384, v{vTQ}")
            a(f"v_add_u32 v{vTV2}, 65536, v{vTQ2}")
        a(f"v_add_u32 v{vTV}, 65536, v{vTQ}")
        for i in range(4): a(f"v_accvgpr_write_b32 a{ONESF+i}, s{sONES}")
        for r in ([MA + 2, MA + 3] if L == 0 else []) + [RA + 1, RA + 2, RA + 3, CF + 2, CF + 3, CFV + 2, CFV + 3, CFQ + 2, CFQ + 3]: a(f"v_mov_b32 v{r}, 0")
    def kv_addr():
        a(f"v_bfe_u32 v{vT0}, v{vL}, 4, 1")
        a(f"v_lshl_add_u32 v{vT0}, v{vT0}, 1, v{vHH}")
        a(f"v_mul_u32_u24 v{vT0}, 17, v{vT0}")
        a(f"v_and_b32 v{vT1}, 15, v{vL}")
        a(f"v_add_u32 v{vT0}, v{vT0}, v{vT1}")
        a(f"v_lshlrev_b32 v{vT0}, 5, v{vT0}")
        a(f"v_add_u32 v{vKW2}, s{sWA}, v{vT0}")
        a(f"s_mul_i32 s{sT0}, s{sW}, 544")
        a(f"s_add_u32 s{sT0}, s{sT0}, {L_A + SCR}")
        a(f"v_add_u32 v{vKR2}, s{sT0}, v{vL16}")
    rg = {}
    def RG(s):
        b = WFR + (s % NWF) * 8
        if L == 0:
            o = s * 1024
            a(f"ds_read_b64_tr_b16 {ar(b,2)}, v{vTQ} offset:{32768+o}")
            a(f"ds_read_b64_tr_b16 {ar(b+2,2)}, v{vTQ} offset:{32768+o+toff}")
            a(f"ds_read_b64_tr_b16 {ar(b+4,2)}, v{vTV} offset:{o}")
            rg[s] = a(f"ds_read_b64_tr_b16 {ar(b+6,2)}, v{vTV} offset:{o+toff}")
        else:
            o = (KS(s) & 15) * 1024
            q_, v_ = (vTQ2, vTV2) if KS(s) >= 16 else (vTQ, vTV)
            a(f"ds_read_b128 {ar(b,4)}, v{q_} offset:{32768+o}")
            rg[s] = a(f"ds_read_b128 {ar(b+4,4)}, v{v_} offset:{o}")
    if L == 0:
        a(f"v_lshrrev_b32 v{vT0}, 2, v{vL}")
        a(f"s_lshl_b32 s{sT0}, s{sW}, 4")
        a(f"v_add_u32 v{vT0}, s{sT0}, v{vT0}")
        a(f"v_mul_u32_u24 v{vW}, 3072, v{vT0}")
        a(f"v_and_b32 v{vT0}, 3, v{vL}")
        a(f"v_lshl_add_u32 v{vW}, v{vT0}, 4, v{vW}")
        a(f"s_lshl_b32 s{sT0}, s{sHP}, 6")
        a(f"v_add_u32 v{vW}, s{sT0}, v{vW}")
        lin(sT0, [(sRB, 131072), (sW, 32768)])
        a(f"v_lshrrev_b32 v{vT0}, 3, v{vL}")
        a(f"v_lshlrev_b32 v{vT0}, 10, v{vT0}")
        a(f"v_add_u32 v{vT0}, s{sT0}, v{vT0}")
        a(f"v_and_b32 v{vT1}, 7, v{vL}")
        a(f"v_lshrrev_b32 v{vT2}, 4, v{vL}")
        a(f"v_xor_b32 v{vT1}, v{vT1}, v{vT2}")
        a(f"v_lshl_add_u32 v{vXA}, v{vT1}, 4, v{vT0}")
        a(f"v_xor_b32 v{vXB}, 64, v{vXA}")
        a(f"v_add_u32 v{vXB}, {8192-1024}, v{vXB}")
        a("s_waitcnt lgkmcnt(0)")
        srd(SX, sKA + 0, 2048 * 512 * 2)
        srd(SWQKV, sKA + 2, 512 * 1536 * 2)
        def x_issue(j):
            a(f"s_add_u32 s{sKB}, s{sRX0}, {j}")
            a(f"s_and_b32 s{sKB}, s{sKB}, 7")
            a(f"s_lshl_b32 s{sT1}, s{sKB}, 7")
            a(f"s_add_u32 m0, s{sWB}, {(j&3)*4096}")
            a(f"s_mul_i32 s{sSO}, s{sKB}, {64*3072}")
            a(f"buffer_load_dwordx4 v{vXA}, {sr(SX,4)}, s{sT1} offen lds")
            a(f"buffer_load_dwordx4 v{vXB}, {sr(SX,4)}, s{sT1} offen offset:1024 lds")
            a(f"s_add_u32 m0, s{sWB}, {(j&3)*4096+2048}")
            a(f"s_add_u32 s{sT1}, s{sT1}, 16384")
            a(f"buffer_load_dwordx4 v{vXA}, {sr(SX,4)}, s{sT1} offen lds")
            xid[j] = a(f"buffer_load_dwordx4 v{vXB}, {sr(SX,4)}, s{sT1} offen offset:1024 lds")
        def w_issue(j):
            for seg in (1, 2, 0):
                a(f"s_add_u32 m0, s{sW1K}, {seg*32768 - seg*1024 + j*4096}")
                wid[j] = a(f"buffer_load_dwordx4 v{vW}, {sr(SWQKV,4)}, s{sSO} offen offset:{seg*1024} lds")
        def wo_issue(c):
            for k in range(2):
                j = 2 * c + k
                a(f"s_add_u32 m0, s{sWB}, {j*2048}")
                if j == 0: a(f"s_lshl_b32 s{sSO}, s{sW}, 17")
                else: a(f"s_add_u32 s{sSO}, s{sSO}, 16384")
                a(f"buffer_load_dwordx4 v{vOA}, {sr(SWO,4)}, s{sSO} offen lds")
                G["wo"] = a(f"buffer_load_dwordx4 v{vOB}, {sr(SWO,4)}, s{sSO} offen offset:1024 lds")
        x_issue(0); w_issue(0)
        srd(SWS, 100, WS_BYTES)
        a(f"buffer_load_dword v{vKW}, off, {sr(SWS,4)}, 0 offset:{NONCE} sc1")
        roles2()
        late_srds()
        x_issue(1); w_issue(1)
        touch_wo("a254")
        code_prefetch()
        touches(0, 6)
        for i in range(4): a(f"v_mov_b32 v{POI+i}, -1")
        addresses()
        addr_setup()
        a(f"v_add_u32 v{vCQ}, s{sW1K}, v{vTQ}")
        a(f"v_add_u32 v{vCV}, s{sW1K}, v{vTV}")
        for r in (S0, S1, Q0, Q1): a(f"v_mov_b32 v{r}, 0")
        a(f"v_and_b32 v{vT0}, 31, v{vL}")
        a(f"v_bfe_u32 v{vT1}, v{vL}, 1, 3")
        a(f"v_xor_b32 v{vT1}, v{vT1}, v{vHH}")
        a(f"v_lshlrev_b32 v{vT0}, 7, v{vT0}")
        a(f"v_add_u32 v{vT0}, s{sWB}, v{vT0}")
        for t in range(4):
            a(f"v_xor_b32 v{vT2}, {2*t}, v{vT1}")
            a(f"v_lshl_add_u32 v{XA+t}, v{vT2}, 4, v{vT0}")
        a(f"s_lshl_b32 s{sT4}, s{sDT}, 7")
        dma_voff(vOA, vOB, 1024, sT4)
        tr_base(vWTA, vWTB, sRH, None, f"s{sWA}")
        pump.setup(1, 0)
        SCHED = {0: {0: [2, 3], 1: [4, 5], 2: [6], 3: [7]}, 1: {0: [2], 1: [3, 4], 2: [5, 6], 3: [7]}, 2: {0: [2, 3, 4], 1: [5], 2: [6], 3: [7]},
                 3: {0: [2], 1: [3], 2: [4], 3: [5], 4: [6], 5: [7]}, 4: {0: [2, 3], 1: [4], 2: [5], 3: [6], 4: [7]}}[opt("SCHED", 0)]
        JL = max(SCHED)
        cgid = {}
        def CGr(j):
            o = j * 4096
            a(f"ds_read_b64_tr_b16 {ar(CG,2)}, v{vCQ} offset:{32768+o}")
            a(f"ds_read_b64_tr_b16 {ar(CG+2,2)}, v{vCQ} offset:{32768+o+toff}")
            a(f"ds_read_b64_tr_b16 {ar(CG+4,2)}, v{vCV} offset:{o}")
            a(f"ds_read_b64_tr_b16 {ar(CG+6,2)}, v{vCV} offset:{o+toff}")
            a(f"ds_read_b64_tr_b16 {ar(CG+8,2)}, v{vCQ} offset:{o}")
            cgid[j] = a(f"ds_read_b64_tr_b16 {ar(CG+10,2)}, v{vCQ} offset:{o+toff}")
        def colsum(j):
            a.wait(lg=cgid[j])
            for k, c in enumerate((CK, CV, CQ)):
                mfma(ar(c,16), ar(ONESF,4), ar(CG+4*k,4), "0" if j == 0 else ar(c,16))
        def xreads(j):
            a.wait(vm=xid[j])
            return [a(f"ds_read_b128 {vr(XF+16*j+4*t,4)}, v{XA+t} offset:{(j&3)*4096}") for t in range(4)]
        xr = xreads(0)
        a.wait(vm=wid[0])
        a("s_barrier")
        stamp("p1_first")
        CGr(0); RG(0); RG(1); RG(2)
        colsum(0)
        CPY = 104; CS4 = 96
        initld = None
        for j in range(8):
            for t in range(4):
                a.wait(lg=xr[t])
                for k in range(4 if not opt("XNOD", 0) else 0):
                    r = XF + 16 * j + 4 * t + k
                    a(f"v_dot2_f32_bf16 v{S0+(k&1)}, v{r}, s{sONES}, v{S0+(k&1)}")
                    a(f"v_dot2_f32_bf16 v{Q0+(k&1)}, v{r}, v{r}, v{Q0+(k&1)}")
            if j == 7:
                a(f"s_lshr_b32 s{sT0}, s{sRB}, 1")
                a(f"s_sub_u32 s{sT0}, s{sT0}, s{sRX0}")
                a(f"s_and_b32 s{sT0}, s{sT0}, 7")
                a(f"s_cmp_eq_u32 s{sT0}, 0")
                a(f"s_cselect_b32 s{sT1}, 4096, 0")
                a(f"s_add_u32 s{sT1}, s{sT1}, {L_A}")
                a(f"v_add_u32 v{vT1}, s{sT1}, v{vL16}")
                a(f"v_add_u32 v{vT0}, s{sW1K}, v{vT1}")
                a(f"v_accvgpr_read_b32 v{CS4}, a{CK}")
                a(f"v_accvgpr_read_b32 v{CS4+1}, a{CV}")
                a(f"v_accvgpr_read_b32 v{CS4+2}, a{CQ}")
                cw = a(f"ds_write_b128 v{vT0}, {vr(CS4,4)}")
            for s in range(4 * j, 4 * j + 4):
                t = s & 3
                a.wait(lg=rg[s])
                b = WFR + (s % NWF) * 8
                x = vr(XF + 4 * s, 4)
                mfma(vr(ACCK,16), x, ar(b,4), "0" if s == 0 else vr(ACCK,16))
                if s + 3 < 32: RG(s + 3)
                if t == 1 and j < 7 and not opt("XNOC", 0): CGr(j + 1)
                if t == 2 and j < 7: xr = xreads(j + 1)
                if j == 7 and t == 1:
                    for w in range(4): cr = a(f"ds_read_b128 {vr(RR+4*w,4)}, v{vT1} offset:{1024*w}")
                    a(f"s_lshl_b32 s{sT0}, s{sT0}, 12")
                    a(f"s_and_b32 s{sT1}, s{sRB}, 1")
                    a(f"s_lshl_b32 s{sT1}, s{sT1}, 11")
                    a(f"s_add_u32 s{sT0}, s{sT0}, s{sT1}")
                    a(f"s_min_u32 s{sT2}, s{sW}, 2")
                    a(f"s_lshl_b32 s{sT2}, s{sT2}, 15")
                    a(f"s_add_u32 s{sT0}, s{sT0}, s{sT2}")
                    a(f"v_lshlrev_b32 v{vT1}, 8, v{vHH}")
                    a(f"v_sub_u32 v{vT0}, v{vTQ}, v{vT1}")
                    a(f"v_add_u32 v{vT0}, s{sT0}, v{vT0}")
                    for k in range(4): cp = a(f"ds_read_b64_tr_b16 {vr(CPY+2*k,2)}, v{vT0} offset:{512*k}")
                if j == 7 and t == 2:
                    a.wait(lg=cr)
                    for k in range(3):
                        a(f"v_add_f32 v{RR+k}, v{RR+k}, v{RR+4+k}")
                        a(f"v_add_f32 v{RR+8+k}, v{RR+8+k}, v{RR+12+k}")
                if j == 7 and t == 3:
                    split2(CKP, RR, vT0)
                    split2(CVP, RR + 1, vT1)
                mfma(vr(ACCV,16), x, ar(b+4,4), "0" if s == 0 else vr(ACCV,16))
                if t == 0:
                    if j < 7: a.wait(vm=wid[j + 1])
                    else: a.wait(lg=cw)
                    a("s_barrier")
                    if j == 1:
                        a(f"v_add_u32 v{vKW}, 1, v{vKW}")
                        a(f"v_and_b32 v{vKW}, 0x3fffffff, v{vKW}")
                        a(f"v_or_b32 v{vKW}, 0x40000000, v{vKW}")
                        a(f"v_readfirstlane_b32 s{sNON}, v{vKW}")
                if t <= 2 and j in SCHED and t < len(SCHED[j]):
                    x_issue(SCHED[j][t]); w_issue(SCHED[j][t])
                if t == 1 and j >= 4 and opt("WOP", 1) == 0: wo_issue(j - 4)
                if t == 3 and j == JL:
                    if opt("MISC", 0) == 0: misc_loads()
                    touches(0, 8)
                if t == 1 and j == 6 and opt("MISC", 0) == 1: misc_loads()
                if t == 3 and opt("SLOTST", 0) and j in (1, 3, 6): stamp(f"it{j}")
                if t == 2:
                    if j == 3: touches(0, 7)
                    if j == opt("POJ", 2):
                        st_poison(POI); kv_poison(POI, 0); canary_poison(POI)
                    if j == 6: kv_addr()
                    if j == opt("POJ", 2) + 1:
                        tile_poison(POI, sAPQW, 0, 1024); initld = a.vm - 1
                    if j == 7:
                        for k in range(3): a(f"v_add_f32 v{RR+k}, v{RR+k}, v{RR+8+k}")
                        a(f"s_lshl_b32 s{sT1}, s{sRB}, 11")
                        a(f"s_add_u32 s{sT3}, s{sAWQT}, s{sT2}")
                        a(f"s_add_u32 s{sT3}, s{sT3}, s{sT1}")
                        a.wait(lg=cp)
                        ws_store4(CPY, sT3); ws_store4(CPY + 4, sT3, 1024)
                if t == 3 and j < 7 and not opt("XNOC", 0): colsum(j + 1)
        stamp("p1_gemm")
        a(f"v_add_f32 v{S0}, v{S0}, v{S1}")
        a(f"v_add_f32 v{Q0}, v{Q0}, v{Q1}")
        a(f"v_mov_b32 v{S1}, v{S0}")
        a(f"v_mov_b32 v{Q1}, v{Q0}")
        for c, p in ((CF, CKP), (CFV, CVP)):
            a(f"v_mov_b32 v{c}, v{p}"); a(f"v_mov_b32 v{c+1}, v{p}")
        a(f"v_permlane32_swap_b32 v{S0}, v{S1}")
        a(f"v_permlane32_swap_b32 v{Q0}, v{Q1}")
        a(f"v_add_f32 v{S0}, v{S0}, v{S1}")
        a(f"v_add_f32 v{Q0}, v{Q0}, v{Q1}")
        split2(CQP, RR + 2, vT1)
        stats_to_frags(S0, Q0, RA)
        mfma(vr(ACCK,16), vr(MA,4), vr(CF,4), vr(ACCK,16))
        mfma(vr(RR,16), vr(RA,4), ar(ONESF,4), "0")
        mfma(vr(ACCV,16), vr(MA,4), vr(CFV,4), vr(ACCV,16))
        touches(0, 1)
    else:
        xid = xid1; XL = xa_XL; ci = xa_ci
        LA = opt("LA1", 8)
        vMX = vW
        cc = lambda: a(f"v_cmp_eq_u32 vcc, -1, v{vT3}")
        def windowa():
            for s in range(LA): XL(s)
        def windowb():
            for s in range(16, 16 + LA): XL(s)
        if opt("XE", 0) == 0: xa_start()
        cid = max(G["xcid"], G["kvlast"])
        addr_setup()
        next_layer_addresses()
        for c, p in ((CF, CKP), (CFV, CVP)):
            a(f"v_mov_b32 v{c}, v{p}"); a(f"v_mov_b32 v{c+1}, v{p}")
        a(f"v_and_b32 v{vT0}, 31, v{vL}")
        a(f"v_lshlrev_b32 v{vT0}, 3, v{vT0}")
        a(f"v_lshl_add_u32 v{PK+1}, v{vHH}, 12, v{vT0}")
        a(f"s_lshl_b32 s{sT2}, s{sW}, 13")
        a(f"s_add_u32 s{sKB}, s{sAWQT}, s{sT2}")
        a(f"s_mov_b32 s{sT1}, s{sT4}")
        pump.setup(1, 1)
        a(f"s_mov_b32 s{sT4}, s{sT1}")
        a(f"v_mov_b32 v{MA+2}, 0"); a(f"v_mov_b32 v{MA+3}, 0")
        go = a.newlabel("XGO"); redo = a.newlabel("XREDO")
        IDMAPS.append(xid)
        a.wait(vm=cid)
        cc()
        keep = snapshot_ids()
        fallback(ci, cc, 0x41, windowa, "fb41")
        restore_ids(keep)
        a("s_barrier")
        stamp("p1_flag")
        with cold(redo, go):
            windowa()
            a("s_waitcnt vmcnt(0)")
        restore_ids(keep)
        a.label(go)
        RG(0); RG(1); RG(2)
        a(f"v_mov_b32 v{vMX}, 0")
        a(f"s_mov_b32 s{sT3}, s{sKB}")
        SB = T1
        def issue():
            for p in range(8): a(f"buffer_load_dwordx2 {vr(SB+2*p,2)}, v{PK+1}, {sr(SWS,4)}, s{sAS2R} offen offset:{p*512} sc1")
        qid = None
        LA = opt("LA1", 8)
        ZS = opt("ZS", 11); nb = [16]
        assert ZS + LA >= 16
        for s in range(32):
            if s == 16:
                stamp("p1_a")
                if ZS < 16:
                    a.wait(vm=sid)
                    stats_check(SB)
                    keep = snapshot_ids()
                    fallback(issue, lambda: stats_check(SB), 0x40, windowb, "fb40")
                    restore_ids(keep)
                else:
                    spec(issue, lambda: stats_check(SB), windowb, 0x40, a.newlabel("XR0"))
                stamp("p1_st2")
                stats_sum(SB)
                stats_to_frags(SB, SB + 1, RA)
                mfma(vr(RR,16), vr(RA,4), ar(ONESF,4), "0")
                mfma(vr(ACCK,16), vr(MA,4), vr(CF,4), vr(ACCK,16))
                mfma(vr(ACCV,16), vr(MA,4), vr(CFV,4), vr(ACCV,16))
            a.wait(vm=xid[s], lg=rg[s])
            b = WFR + (s % NWF) * 8
            x = vr(XFR(1, s), 4)
            mfma(vr(ACCK,16), x, ar(b,4), "0" if s == 0 else vr(ACCK,16))
            if s == ZS:
                issue(); sid = a.vm - 1
            if ZS < s < 16:
                per = -(-LA // (15 - ZS))
                for _ in range(per):
                    if nb[0] < 16 + LA: XL(nb[0]); nb[0] += 1
            if (s & 15) + LA < 16: XL(s + LA)
            if s >= 24:
                j = s - 24
                if j == 4: a(f"s_add_u32 s{sT3}, s{sT3}, 4096")
                if j & 3 == 0: a(f"s_add_u32 m0, s{sT2}, {j*1024}")
                qid = a(f"buffer_load_dwordx4 v{vL16}, {sr(SWS,4)}, s{sT3} offen offset:{(j&3)*1024} sc1 lds")
            mfma(vr(ACCV,16), x, ar(b+4,4), "0" if s == 0 else vr(ACCV,16))
            if s & 1: a(f"v_max3_u32 v{vMX}, v{vMX}, v{XFR(1,s-1)}, v{XFR(1,s)}")
            if s + 3 < 32: RG(s + 3)
            if s == 30: kv_addr()
        verify(vMX, redo)
        stamp("p1_gemm")
    for q in range(8): pk("fma", ACCK+2*q, vr(ACCK+2*q,2), vr(RR+2*q,2), sr(sEPS6,2), hi=[1,1,0])
    for q in range(8): pk("mul", T1+2*q, vr(ACCK+2*q,2), sr(sL2E,2), hi=[1,0])
    for i in range(16):
        a(f"v_exp_f32_e64 v{T1+i}, v{T1+i} clamp")
        a(f"v_max_f32 v{ACCK+i}, s{sEPS6}, v{ACCK+i}")
    for q in range(8): pk("add", ACCK+2*q, vr(ACCK+2*q,2), vr(T1+2*q,2))
    for q in range(8): a(f"v_cvt_pk_bf16_f32 v{PK+q}, v{ACCK+2*q}, v{ACCK+2*q+1}")
    ZA = T1
    for q in range(4): pk("mul", ACCV+2*q, vr(ACCV+2*q,2), vr(RR+2*q,2))
    for q in range(4, 8): pk("mul", ACCV+2*q, vr(ACCV+2*q,2), vr(RR+2*q,2))
    mfma(vr(ZA,16), vr(PK,4), ar(ONESF,4), "0")
    for q in range(4): a(f"v_cvt_pk_bf16_f32 v{VV+q}, v{ACCV+2*q}, v{ACCV+2*q+1}")
    mfma(vr(ZA,16), vr(PK+4,4), ar(ONESF,4), vr(ZA,16))
    for q in range(4, 8): a(f"v_cvt_pk_bf16_f32 v{VV+q}, v{ACCV+2*q}, v{ACCV+2*q+1}")
    KVA = RR
    a(f"v_and_b32 v{vT0}, 16, v{vL}")
    a(f"v_cmp_ne_u32 vcc, 0, v{vT0}")
    mfma(vr(KVA,16), vr(PK,4), vr(VV,4), "0")
    mfma(vr(KVA,16), vr(PK+4,4), vr(VV+4,4), vr(KVA,16))
    a("s_barrier")
    for j in range(8): a(f"v_cndmask_b32 v{ACCK+8+j}, v{ZA+j}, v{ZA+8+j}, vcc")
    set_exec(0x0001000100010001)
    a(f"ds_write_b128 v{vKW2}, {vr(ACCK+8,4)} offset:{SCR+512}")
    a(f"ds_write_b128 v{vKW2}, {vr(ACCK+12,4)} offset:{SCR+528}")
    set_exec(FULL)
    for j in range(4): a(f"v_cndmask_b32 v{ACCK+j}, v{KVA+j}, v{KVA+8+j}, vcc")
    a(f"ds_write_b128 v{vKW2}, {vr(ACCK,4)} offset:{SCR}")
    for j in range(4, 8): a(f"v_cndmask_b32 v{ACCK+j}, v{KVA+j}, v{KVA+8+j}, vcc")
    a(f"ds_write_b128 v{vKW2}, {vr(ACCK+4,4)} offset:{SCR+16}")
    if L == 0: a.wait(vm=initld)
    NQ = 8; QLA = 6
    rq = {}
    def RQ(s):
        b = WFR + (s % NQ) * 4
        if L == 0:
            a(f"ds_read_b64_tr_b16 {ar(b,2)}, v{vTQ} offset:{s*1024}")
            rq[s] = a(f"ds_read_b64_tr_b16 {ar(b+2,2)}, v{vTQ} offset:{s*1024+toff}")
        else:
            ks = KS((s + 16) & 31)
            rq[s] = a(f"ds_read_b128 {ar(b,4)}, v{vTQ2 if ks >= 16 else vTQ} offset:{(ks&15)*1024}")
    QB = L == 1 and opt("QB", 1)
    if L == 1 and not QB: a.wait(vm=qid)
    a.wait_lg_all()
    a("s_barrier")
    for w in range(4): kr = a(f"ds_read_b128 {vr(RR+4*w,4)}, v{vKR2} offset:{16384*w}")
    if not QB:
        for s in range(QLA): RQ(s)
    a(f"v_mov_b32 v{CFQ}, v{CQP}"); a(f"v_mov_b32 v{CFQ+1}, v{CQP}")
    ACCQ = ACCK
    mfma(vr(ACCQ,16), vr(CFQ,4), vr(MA,4), "0")
    a.wait(lg=kr)
    for j in range(4): a(f"v_add_f32 v{RR+j}, v{RR+j}, v{RR+4+j}")
    for j in range(4): a(f"v_add_f32 v{RR+8+j}, v{RR+8+j}, v{RR+12+j}")
    for j in range(4): a(f"v_add_f32 v{RR+j}, v{RR+j}, v{RR+8+j}")
    set_exec((1 << 40) - 1)
    a(f"v_writelane_b32 v{RR}, s{sNON}, 34")
    ws_store4(RR, sAKVP)
    set_exec(FULL)
    stamp("p1_kvpub")
    if QB:
        a.wait(vm=qid)
        a("s_barrier")
        for s in range(QLA): RQ(s)
    touches(L, 2)
    nfill = optL("F0", L, 0, 0); assert nfill <= 6
    for s in range(32):
        a.wait(lg=rq[s])
        b = WFR + (s % NQ) * 4
        mfma(vr(ACCQ,16), ar(b,4), vr(XF+4*s,4), vr(ACCQ,16))
        if s + QLA < 32: RQ(s + QLA)
        if s % 3 == 1 and pump.i < pump.c + nfill: pump.fill(pump.i + 1)
        if L == 0 and opt("WOP", 1) == 1 and s % 8 == 0: wo_issue(s // 8)
        if optL("POIQ", L, 1, 1):
            if s == 2: set_poi(VV)
            if s == 3: tile_poison(VV, sAHTW, 0, 2048)
            if s == 6: tile_poison(VV, sAUW, 0, 1024)
        if s == opt("A1S", 31):
            a1_early(L); vm_a1 = a.vm
        if s == opt("A1M", 99):
            a1_mid(a.vm - vm_a1); vm_a1 = a.vm
    for h in range(2):
        for q in range(4*h, 4*h+4): pk("fma", ACCQ+2*q, vr(ACCQ+2*q,2), vr(vRS,2), sr(sEPS6,2), hi=[1,0,0])
        for q in range(4*h, 4*h+4): pk("mul", T1+2*q, vr(ACCQ+2*q,2), sr(sL2E,2), hi=[1,0])
        for i in range(8*h, 8*h+8):
            a(f"v_exp_f32_e64 v{T1+i}, v{T1+i} clamp")
            a(f"v_max_f32 v{ACCQ+i}, s{sEPS6}, v{ACCQ+i}")
        for q in range(4*h, 4*h+4): pk("add", ACCQ+2*q, vr(ACCQ+2*q,2), vr(T1+2*q,2))
        for q in range(4*h, 4*h+4): a(f"v_cvt_pk_bf16_f32 v{PK+q}, v{ACCQ+2*q}, v{ACCQ+2*q+1}")
        ws_store4(PK + 4 * h, sAPQW, 1024 * h)
        if opt("A1S", 31) == 32 + h:
            a1_early(L); vm_a1 = a.vm
    if L == 0:
        for k in range(4): a(f"v_mov_b32 v{T1+k}, s{sNON}")
        a(f"s_sub_u32 s{sT0}, s{sAPQW}, {PQ[0]:#x}")
        a(f"s_lshr_b32 s{sT0}, s{sT0}, 4")
        a(f"s_add_u32 s{sT0}, s{sT0}, {TAGQ:#x}")
        set_exec(0xff)
        ws_store4(T1, sT0)
        set_exec(FULL)
    stamp("p1_q")
    if opt("NS1", 6) > 6: a("s_barrier")
    a1(L, a.vm - vm_a1)
    if L == 0 and opt("MISC", 0) == 2: misc_loads()
    G["misc"] = a.vm - 1
    pump.fill(pump.c + optL("F1", L, 6, 5))
    touches(L, 3)

def row_stats_publish(soff, SM):
    a(f"v_dot2_f32_bf16 v{SM}, v{XR}, s{sONES}, 0")
    a(f"v_dot2_f32_bf16 v{SM+1}, v{XR}, v{XR}, 0")
    a(f"v_dot2_f32_bf16 v{SM+2}, v{XR+1}, s{sONES}, 0")
    a(f"v_dot2_f32_bf16 v{SM+3}, v{XR+1}, v{XR+1}, 0")
    for j in range(2, 8):
        o = 2 * (j & 1)
        a(f"v_dot2_f32_bf16 v{SM+o}, v{XR+j}, s{sONES}, v{SM+o}")
        a(f"v_dot2_f32_bf16 v{SM+o+1}, v{XR+j}, v{XR+j}, v{SM+o+1}")
    a(f"v_lshlrev_b32 v{vT0}, 3, v{vL}")
    pk("add", SM, vr(SM,2), vr(SM+2,2))
    a(f"v_mov_b32 v{SM+2}, v{SM}")
    a(f"v_mov_b32 v{SM+3}, v{SM+1}")
    a(f"v_permlane32_swap_b32 v{SM}, v{SM+2}")
    a(f"v_permlane32_swap_b32 v{SM+1}, v{SM+3}")
    pk("add", SM, vr(SM,2), vr(SM+2,2))
    a(f"s_mov_b32 exec_hi, 0")
    a(f"v_and_b32 v{SM+1}, 0x7fffffff, v{SM+1}")
    a(f"buffer_store_dwordx2 {vr(SM,2)}, v{vT0}, {sr(SWS,4)}, s{soff} offen sc1")
    set_exec(FULL)

def unpack_xr(XU):
    for j in range(8):
        a(f"v_lshlrev_b32 v{XU+2*j}, 16, v{XR+j}")
        a(f"v_and_b32 v{XU+2*j+1}, 0xffff0000, v{XR+j}")

def p2(L):
    a.c(f"======== P2 layer {L}")
    if opt("CRF", 0) & (8 << L): code_refetch(vr(60, 4))
    KF, QF = 128, 192
    ACC = 32; CR = 64; OF = 96; WF = 104; XU = 64
    vK, vKC, vMX = MA, MA + 1, MA + 2
    tr_base(vTA, vTB, None, sKH, L_B)
    a(f"s_lshl_b32 s{sT2}, s{sKH}, 15")
    a(f"v_add_u32 v{vTA}, s{sT2}, v{vTA}")
    a(f"v_add_u32 v{vTB}, s{sT2}, v{vTB}")
    a(f"v_and_b32 v{vT0}, 31, v{vL}")
    a(f"v_mul_u32_u24 v{vKC}, 384, v{vT0}")
    a(f"v_min_u32 v{vT0}, 16, v{vT0}")
    a(f"v_lshlrev_b32 v{vT0}, 4, v{vT0}")
    a(f"v_mul_u32_u24 v{vT1}, 384, v{vHH}")
    a(f"v_add_u32 v{vK}, v{vT0}, v{vT1}")
    a(f"v_and_b32 v{vT2}, 7, v{vL}")
    a(f"v_lshlrev_b32 v{vT2}, {11 if L else 7}, v{vT2}")
    if L == 0:
        a(f"s_sub_u32 s{sT0}, s{sAPQR}, {PQ[0]:#x}")
        a(f"s_lshr_b32 s{sT0}, s{sT0}, 4")
        a(f"s_add_u32 s{sT0}, s{sT0}, {TAGQ:#x}")
    pump.run(min(R1 + 5, optL("B1", L, 21, 21)), refill=bool(optL("B1R", L, 1, 1)))
    if optL("POIQ", L, 1, 1) == 0:
        set_poi(CR)
        tile_poison(CR, sAHTW, 0, 2048)
        tile_poison(CR, sAUW, 0, 1024)
    stamp("beta")
    def ldq():
        a(f"s_mov_b32 s{sT4}, s{sAPQR}")
        for j in range(16):
            a(f"buffer_load_dwordx4 {vr(QF+4*j,4)}, v{vL16}, {sr(SWS,4)}, s{sT4} offen offset:{(j&3)*1024} sc1")
            if j & 3 == 3 and j < 15: a(f"s_add_u32 s{sT4}, s{sT4}, 4096")
    if L == 1:
        ci = lambda: a(f"buffer_load_dword v{vT3}, v{vT2}, {sr(SWS,4)}, s{sAPQR} offen offset:2044 sc1")
        cc = lambda: a(f"v_cmp_eq_u32 vcc, -1, v{vT3}")
    else:
        ci = lambda: a(f"buffer_load_dword v{vT3}, v{vT2}, {sr(SWS,4)}, s{sT0} offen sc1")
        cc = lambda: a(f"v_cmp_ne_u32 vcc, s{sNON}, v{vT3}")
    spec(ci, cc, ldq, 0x36 + L, a.newlabel("PQR"), on=opt("SPEC", 15) & 4)
    stamp("p2_pqc")
    if L == 0:
        a.wait(vm=max(G['wo'], G['misc']))
        for q in range(2):
            a(f"v_permlane32_swap_b32 v{XR+4*q}, v{XR+4*q+2}")
            a(f"v_permlane32_swap_b32 v{XR+4*q+1}, v{XR+4*q+3}")
        a(f"v_lshlrev_b32 v{vB2}, 16, v{vB2}")
    pump.run(min(R1 + 5, pump.i), refill=False)
    pump.run(min(R1 + 5, optL("B2", L, 0, 0)), refill=False)
    pump.fill(pump.c + optL("FK", L, 0, 0))
    a(f"s_xor_b32 s{sT0}, s{sW}, 1")
    a(f"s_lshl_b32 s{sT0}, s{sT0}, 12")
    a(f"v_add_u32 v{vRS}, s{sT0}, v{vL16}")
    a.wait_lg_all()
    a("s_barrier")
    rw = {}
    def RW(j):
        b = WF + (j % 3) * 8
        a(f"ds_read_b64_tr_b16 {vr(b,2)}, v{vTA} offset:{j*2048}")
        a(f"ds_read_b64_tr_b16 {vr(b+2,2)}, v{vTA} offset:{j*2048+1024}")
        a(f"ds_read_b64_tr_b16 {vr(b+4,2)}, v{vTB} offset:{j*2048}")
        rw[j] = a(f"ds_read_b64_tr_b16 {vr(b+6,2)}, v{vTB} offset:{j*2048+1024}")
    lid = {}
    def LD(j):
        if j == 0: a(f"s_mov_b32 s{sSO}, s{sAKVF}")
        elif j & 3 == 0: a(f"s_add_u32 s{sSO}, s{sSO}, {4*768}")
        lid[j] = a(f"buffer_load_dwordx4 {vr(KF+4*j,4)}, v{vK}, {sr(SWS,4)}, s{sSO} offen offset:{(j&3)*768} sc1")
    PLA = optL("PLA", L, 10, 10)
    redo = a.newlabel("P2REDO"); redo2 = a.newlabel("P2REDO2")
    IDMAPS.append(lid)
    with cold(redo, redo2): ldq()
    def window():
        for j in range(PLA): LD(j)
    spec(lambda: a(f"buffer_load_dword v{vT3}, v{vKC}, {sr(SWS,4)}, s{sAKVF} offen offset:272 sc1"),
         lambda: a(f"v_cmp_ne_u32 vcc, s{sNON}, v{vT3}"), window, 0x38 + L, redo2, on=opt("SPEC", 15) & 2)
    stamp("p2_kvc")
    if L == 0:
        sk = a.newlabel("NONW"); nw = a.newlabel("NONC")
        a(f"s_cmp_lg_u32 s{sWI}, 0")
        a(f"s_cselect_b32 s{sT0}, 1, s{sB}")
        a(f"s_cmp_eq_u32 s{sT0}, 0")
        a(f"s_cbranch_scc1 {nw}")
        with cold(nw, sk):
            a(f"v_mov_b32 v{vT0}, s{sNON}")
            set_exec(1)
            a(f"buffer_store_dword v{vT0}, off, {sr(SWS,4)}, 0 offset:{NONCE} sc1")
            set_exec(FULL)
        a.label(sk)
    RW(0); RW(1)
    a(f"v_mov_b32 v{vMX}, 0")
    def M1(j):
        a.wait(vm=lid[j])
        mfma(vr(CR+(j&1)*16,16), vr(KF+4*j,4), vr(QF+4*j,4), "0")
        a(f"v_max3_u32 v{vMX}, v{vMX}, v{KF+4*j}, v{QF+4*j}")
        if j + PLA < 16: LD(j + PLA)
        if j + PLA == 16: touches(L, 9)
    def Va(j):
        c = CR + (j & 1) * 16
        a(f"v_add_f32 v{c+8}, s{sEPS6}, v{c+8}")
        a(f"v_rcp_f32 v{c+8}, v{c+8}")
    def Vb(j):
        c = CR + (j & 1) * 16; o = OF + (j & 1) * 4
        for i in range(4): a(f"v_mul_f32 v{c+i}, v{c+i}, v{c+8}")
        for i in range(2): a(f"v_cvt_pk_bf16_f32 v{o+i}, v{c+2*i}, v{c+2*i+1}")
    def Vc(j):
        c = CR + (j & 1) * 16; o = OF + (j & 1) * 4
        for i in range(4, 8): a(f"v_mul_f32 v{c+i}, v{c+i}, v{c+8}")
        for i in range(2, 4): a(f"v_cvt_pk_bf16_f32 v{o+i}, v{c+2*i}, v{c+2*i+1}")
    M1(0); M1(1)
    Va(0); Vb(0); Vc(0); M1(2)
    nfp = optL("FP2", L, 6, 6)
    kb_saved = False
    for j in range(16):
        o = OF + (j & 1) * 4; b = WF + (j % 3) * 8
        if j + 1 < 16: Va(j + 1)
        a.wait(lg=rw[j])
        mfma(vr(ACC+16,16), vr(b+4,4), vr(o,4), "0" if j == 0 else vr(ACC+16,16))
        if j + 1 < 16: Vb(j + 1)
        mfma(vr(ACC,16), vr(b,4), vr(o,4), "0" if j == 0 else vr(ACC,16))
        if j + 1 < 16: Vc(j + 1)
        if j + 3 < 16: M1(j + 3)
        if j + 2 < 16: RW(j + 2)
    verify(vMX, redo)
    stamp("p2_main")
    lin(sT0, [(sFT, 128), (sRH, 64), (sKH, 32)])
    a(f"v_lshlrev_b32 v{vT0}, 3, v{vHH}")
    for q in range(2): a(f"buffer_load_dwordx2 {vr(152+2*q,2)}, v{vT0}, {sr(SB1,4)}, s{sT0} offen offset:{16*q}")
    for q, r in enumerate((ACC + 24, ACC + 28, ACC + 8, ACC + 12)): a(f"ds_write_b128 v{vRS}, {vr(r,4)} offset:{(q^2)*1024}")
    unpack_xr(XU)
    a(f"v_xor_b32 v{vT1}, 4096, v{vRS}")
    for q in range(4): pk("add", ACC+16+2*q, vr(ACC+16+2*q,2), vr(XU+8+2*q,2))
    for q in range(4): pk("add", ACC+2*q, vr(ACC+2*q,2), vr(XU+2*q,2))
    a.wait_lg_all()
    a("s_barrier")
    own = (ACC, ACC + 4, ACC + 16, ACC + 20)
    ids = [a(f"ds_read_b128 {vr(XU+4*q,4)}, v{vT1} offset:{q*1024}") for q in range(4)]
    for q in range(4):
        a.wait(lg=ids[q])
        pk("add", own[q], vr(own[q],2), vr(XU+4*q,2))
        pk("add", own[q]+2, vr(own[q]+2,2), vr(XU+4*q+2,2))
        a(f"v_cvt_pk_bf16_f32 v{XR+2*q}, v{own[q]}, v{own[q]+1}")
        a(f"v_cvt_pk_bf16_f32 v{XR+2*q+1}, v{own[q]+2}, v{own[q]+3}")
    row_stats_publish(sASTW, OF)
    stamp("p2_stpub")
    pump.run(pump.i, refill=False)
    pump.fill(pump.c + optL("GF", L, 6, 4))
    unpack_xr(XU)
    IDF = 104
    a(f"v_and_b32 v{vT0}, 31, v{vL}")
    a(f"v_lshlrev_b32 v{vT1}, 2, v{vHH}")
    a(f"v_sub_u32 v{vT0}, v{vT0}, v{vT1}")
    a(f"v_mov_b32 v{vT3}, 0x3f80")
    for f in range(2):
        for c in range(4):
            base = 16 * f + ((2 * c) & 3) + 8 * (c >> 1)
            a(f"v_subrev_u32 v{vT1}, {base}, v{vT0}")
            a(f"v_cmp_gt_u32 vcc, 2, v{vT1}")
            a(f"v_lshlrev_b32 v{vT1}, 4, v{vT1}")
            a(f"v_lshlrev_b32 v{vT2}, v{vT1}, v{vT3}")
            a(f"v_cndmask_b32 v{IDF+4*f+c}, 0, v{vT2}, vcc")
    SB = 128
    ht_voff(vRS)
    a(f"v_and_b32 v{vT0}, 31, v{vL}")
    a(f"v_lshlrev_b32 v{vT0}, 3, v{vT0}")
    a(f"v_lshl_add_u32 v{vT2}, v{vHH}, 12, v{vT0}")
    a(f"v_mov_b32 v{SB+18}, {fl(1.0+1e-5)}")
    def issue():
        for p in range(8): a(f"buffer_load_dwordx2 {vr(SB+2*p,2)}, v{vT2}, {sr(SWS,4)}, s{sASTR} offen offset:{p*512} sc1")
    if OPT.get(f"SL{0x34+L:x}", 0): a(f"s_sleep {OPT.get(f'SL{0x34+L:x}', 0)}")
    poll(issue, lambda: stats_check(SB), 0x34 + L)
    stamp("p2_stats")
    if optL("SF", L, 3, 3):
        pump.run(pump.i, refill=False)
        pump.fill(pump.c + optL("SF", L, 3, 3))
    stats_sum(SB)
    a(f"v_mul_f32 v{SB}, {fl(-1/512)}, v{SB}")
    a(f"v_mul_f32 v{SB+1}, {fl(1/512)}, v{SB+1}")
    a(f"v_fma_f32 v{SB+1}, -v{SB}, v{SB}, v{SB+1}")
    a(f"v_max_f32 v{SB+1}, 0, v{SB+1}")
    a(f"v_fmaak_f32 v{SB+1}, v{SB+1}, v{SB+18}, {fl(1e-10)}")
    a(f"v_rsq_f32 v{SB+2}, v{SB+1}")
    a(f"v_mul_f32 v{SB}, v{SB}, v{SB+2}")
    HP_ = 112
    for f in range(2):
        for j in range(4*f, 4*f+4):
            pk("fma", XU+2*j, vr(XU+2*j,2), vr(SB+2,2), vr(SB,2), hi=[1,0,0])
    for f in range(2):
        for j in range(4*f, 4*f+4):
            a(f"v_cvt_pk_bf16_f32 v{HP_+j}, v{XU+2*j}, v{XU+2*j+1}")
        mfma(vr(ACC,16), vr(HP_+4*f,4), vr(IDF+4*f,4), "0" if f == 0 else vr(ACC,16))
    for f in range(2):
        for j in range(4): a(f"v_cvt_pk_bf16_f32 v{ACC+16+4*f+j}, v{ACC+8*f+2*j}, v{ACC+8*f+2*j+1}")
        a(f"buffer_store_dwordx4 {vr(ACC+16+4*f,4)}, v{vRS}, {sr(SWS,4)}, s{sAHTW} offen offset:{2048*f} sc1")
    touches(L, 5)
    stamp(f"p2_{L}")

RING = 96; AUX = 144; NRH = 12
vR1, vR2, vR3, vRA = vT0, vT1, vT2, vRS
LKH = opt("LKH", 9)
class Half:
    def __init__(self, kind, hf, g0):
        self.kind, self.hf, self.g0 = kind, hf, g0
        self.nks, self.srot, self.sbase = (32, sROT1, sAHTR) if kind == 1 else (28, sROT2, sAUR)
        self.vA, self.vC = (vTA, MA + 1) if kind == 1 else (vTB, MA + 2)
        self.vMX = MA
        self.ids = {}; self.cid = None
        IDMAPS.append(self.ids)
    def rb(self, s): return RING + ((self.g0 + s) % NRH) * 4
    def LD(self, s):
        if s == 0: a(f"s_lshl_b32 s{sSO}, s{self.srot}, 11")
        elif s & 1 == 0:
            a(f"s_add_u32 s{sSO}, s{sSO}, 4096")
            a(f"s_cmp_eq_u32 s{sSO}, {self.nks*2048}")
            a(f"s_cselect_b32 s{sSO}, 0, s{sSO}")
        self.ids[s] = a(f"buffer_load_dwordx4 {vr(self.rb(s),4)}, v{self.vA}, {sr(SWS,4)}, s{sSO} offen offset:{(s&1)*2048+self.hf*1024} sc1")
    def window(self):
        for s in range(LKH): self.LD(s)
    def can_issue(self):
        off = 2048 + 1024 + 512 + 252 if self.kind == 1 else self.hf * 1024 + 1020
        self.cid = a(f"buffer_load_dword v{vT3}, v{self.vC}, {sr(SWS,4)}, s{self.sbase} offen offset:{off} sc1")
    def can_check(self): a(f"v_cmp_eq_u32 vcc, -1, v{vT3}")
    def MF(self, s, acc):
        A0 = 32 + 32 * self.hf
        wf = wreg(self.kind, s, 4 * acc, 4); af = vr(self.rb(s), 4)
        c = "0" if s == 0 else vr(A0 + 16 * acc, 16)
        A_, B_ = (wf, af) if self.kind == 1 else (af, wf)
        mfma(vr(A0+16*acc,16), A_, B_, c)
    def steps(self, redo, nxt=None, hook=None, force=True):
        n = self.nks
        a(f"v_mov_b32 v{self.vMX}, 0")
        for s in range(n):
            if hook: hook(s, 0)
            a.wait(vm=self.ids[s])
            self.MF(s, 1)
            if s + LKH < n: self.LD(s + LKH)
            elif nxt is not None:
                if s + LKH == n and nxt.kind == 2: nxt.can_issue()
                nxt.LD(s + LKH - n)
            if s & 1: a(f"v_max3_u32 v{self.vMX}, v{self.vMX}, v{self.rb(s-1)}, v{self.rb(s)}")
            self.MF(s, 0)
            if hook: hook(s, 1)
        verify(self.vMX, redo, force=force)
    def run(self, nxt=None, hook=None):
        lab = a.newlabel("PLAIN"); back = a.newlabel("BACK")
        OOL.append((self, nxt, lab, back))
        self.steps(lab, nxt, hook)
        a.label(back)
    def scr(self, k):
        if self.hf == 0: return 0, k * 2048
        if k < 2: return 1, SCR + k * 2048
        return 0, 6144
    def writes(self):
        A0 = 32 + 32 * self.hf
        for k in (1, 2, 0):
            src = (A0 + 8, A0 + 16, A0 + 24)[k]
            area, o = self.scr(k)
            r = (vR1, vR2, vR3)[k]
            if area == 1:
                a(f"v_lshl_add_u32 v{AUX+10+k}, v{r}, 1, v{AUX+9}"); r = AUX + 10 + k
            for q in range(2): a(f"ds_write_b128 v{r}, {vr(src+4*q,4)} offset:{o+q*1024}")
    def reads(self):
        D = 64 - 32 * self.hf
        if self.hf == 1: a(f"v_lshl_add_u32 v{AUX+10}, v{vRA}, 1, v{AUX+9}")
        a.wait_lg_all()
        a("s_barrier")
        ids = {}
        for q in range(2):
            for k in range(3):
                area, o = self.scr(k)
                ids[(q, k)] = a(f"ds_read_b128 {vr(D+8*k+4*q,4)}, v{AUX+10 if area else vRA} offset:{o+q*1024}")
        A0 = 32 + 32 * self.hf
        for q in range(2):
            a.wait(lg=ids[(q, 1)])
            for j in (0, 2): pk("add", D+4*q+j, vr(D+4*q+j,2), vr(D+8+4*q+j,2))
            a.wait(lg=ids[(q, 2)])
            for j in (0, 2): pk("add", A0+4*q+j, vr(A0+4*q+j,2), vr(D+16+4*q+j,2))
            for j in (0, 2): pk("add", A0+4*q+j, vr(A0+4*q+j,2), vr(D+4*q+j,2))
    def woven(self, D):
        A0 = 32 + 32 * self.hf
        ops = []
        ids = {}
        wl = a.lg - 1
        def bar():
            if self.hf == 1: a(f"v_lshl_add_u32 v{AUX+10}, v{vRA}, 1, v{AUX+9}")
            a.wait(lg=wl); a("s_barrier")
        ops.append(bar)
        def rd(q, k):
            area, o = self.scr(k)
            ids[(q, k)] = a(f"ds_read_b128 {vr(D+8*k+4*q,4)}, v{AUX+10 if area else vRA} offset:{o+q*1024}")
        for q in range(2):
            for k in range(3): ops.append(lambda q=q, k=k: rd(q, k))
        ops.append(None); ops.append(None); ops.append(None)
        for q in range(2):
            for k in range(3):
                for j in range(4):
                    def ad(q=q, k=k, j=j):
                        a.wait(lg=ids[(q, k)])
                        a(f"v_add_f32 v{A0+4*q+j}, v{A0+4*q+j}, v{D+8*k+4*q+j}")
                    ops.append(ad)
        return ops
    def late_check(self, code):
        a.wait(vm=self.cid)
        self.can_check()
        keep = snapshot_ids(); cid = self.cid
        fallback(self.can_issue, self.can_check, code, self.window, f"fb{code:x}")
        restore_ids(keep); self.cid = cid
OOL = []
def mix_setup():
    a(f"v_add_u32 v{vTA}, s{sAHTR}, v{vL16}")
    a(f"v_min_u32 v{vT0}, 31, v{vL}")
    a(f"v_lshrrev_b32 v{vT1}, 1, v{vT0}")
    a(f"v_and_b32 v{vT0}, 1, v{vT0}")
    a(f"v_lshlrev_b32 v{vT0}, 8, v{vT0}")
    a(f"v_lshl_add_u32 v{MA+1}, v{vT1}, 12, v{vT0}")
    a(f"s_lshl_b32 s{sT0}, s{sKH}, 8")
    a(f"v_xor_b32 v{vTB}, s{sT0}, v{vL16}")
    a(f"v_add_u32 v{vTB}, s{sAUR}, v{vTB}")
    a(f"v_min_u32 v{MA+2}, 27, v{vL}")
    a(f"v_lshlrev_b32 v{MA+2}, 11, v{MA+2}")
    for acc, r in ((1, vR1), (2, vR2), (3, vR3)):
        a(f"s_xor_b32 s{sT0}, s{sW}, {acc}")
        a(f"s_lshl_b32 s{sT0}, s{sT0}, 13")
        a(f"v_add_u32 v{r}, s{sT0}, v{vL16}")
    a(f"s_lshl_b32 s{sT0}, s{sW}, 13")
    a(f"v_add_u32 v{vRA}, s{sT0}, v{vL16}")
    a(f"v_sub_u32 v{AUX+9}, {L_A}, v{vL16}")

def p34(L):
    a.c(f"======== P3 layer {L}")
    if opt("CRF", 0) & (2 << L): code_refetch(vr(60, 4))
    B1R = AUX
    pump.run(pump.i, refill=True)
    pump.run(32)
    a.wait_lg_all()
    if L == 1: a("s_barrier")
    pump.setup(2, L, extra=optL("XB", L, 0, 8))
    pump.run(optL("V2", L, 5, 0), refill=False)
    pump.fill(pump.c + optL("V2F", L, 0, 8))
    assert pump.c <= R2
    if L == 0: a("s_barrier")
    for j in range(4):
        a(f"v_lshlrev_b32 v{B1R+2*j}, 16, v{152+j}")
        a(f"v_and_b32 v{B1R+2*j+1}, 0xffff0000, v{152+j}")
    mix_setup()
    K1 = -2.0 * 0.7978845608028654 * LOG2E
    a(f"v_mov_b32 v{AUX+8}, {fl(K1)}")
    SPX = optL("SPX", L, 1, 1)
    h3a = Half(1, 0, 0); h3b = Half(1, 1, 32); h4a = Half(2, 0, 64); h4b = Half(2, 1, 92)
    stamp("p3_delta")
    idle = a.newlabel("P3IDLE"); join = a.newlabel("P3JOIN")
    pst = (pump.i, pump.c, dict(pump.vid), dict(pump.lid))
    a(f"s_cmp_eq_u32 s{sP3}, 7")
    a(f"s_cbranch_scc1 {idle}")
    IDN = optL("IDT", L, 18, 0)
    WE3 = optL("WE3", L, 0, 0) and SPX
    ntail = optL("V2T", L, 0, 0); nepi = optL("V2E", L, 6, 3)
    def gelu_store(hf):
        A0 = 32 + 32 * hf; T = A0 + 16
        for q in range(4): pk("mul", T+2*q, vr(A0+2*q,2), vr(A0+2*q,2))
        for q in range(4): pk("fma", T+2*q, vr(T+2*q,2), sr(sT2,2), vr(AUX+8,2), hi=[1,0,0])
        for q in range(4): pk("mul", T+2*q, vr(T+2*q,2), vr(A0+2*q,2))
        for i in range(8): a(f"v_exp_f32 v{T+i}, v{T+i}")
        for q in range(4): pk("add", T+2*q, vr(T+2*q,2), "1.0", hi=[1,0])
        for i in range(8): a(f"v_rcp_f32 v{T+i}, v{T+i}")
        for q in range(4): pk("mul", A0+2*q, vr(A0+2*q,2), vr(T+2*q,2))
        for q in range(4): a(f"v_cvt_pk_bf16_f32 v{T+8+q}, v{A0+2*q}, v{A0+2*q+1}")
        ws_store4(T + 8, sAUW, 1024 * hf)
    with cond():
        a(f"s_mov_b32 s{sT2}, s{sGK}")
        spec(h3a.can_issue, h3a.can_check, h3a.window, 0x50 + L, a.newlabel("SREDO"))
        stamp("canary")
        h3a.run(nxt=h3b)
        stamp("gemm_a")
        h3a.writes()
        pump.fill(pump.i + nepi)
        for q in range(4): pk("add", 32+2*q, vr(32+2*q,2), vr(B1R+2*q,2))
        h3a.reads()
        gelu_store(0)
        stamp("epi_a")
        i0 = pump.i
        def hk(s, k):
            if k == 1 and s + LKH >= 32 and (s & 1) and pump.i < i0 + ntail: pump.fill(pump.i + 1)
        h3b.run(nxt=h4a if SPX else None, hook=hk)
        assert ntail <= 5
        stamp("gemm_b")
        h3b.writes()
        n2 = pump.i
        nmid = pump.i
        if optL("EB", L, 1, 0): pump.run(pump.i if optL("EB", L, 1, 0) == 2 else min(R2, pump.i), refill=False, tmp=(AUX + 14, AUX + 15))
        cact = pump.c
        pump.fill(pump.i + optL("V2E2", L, 4, 3))
        nact = pump.i; n2 = nact - n2
        if not WE3:
            for q in range(4): pk("add", 64+2*q, vr(64+2*q,2), vr(B1R+2*q,2))
            h3b.reads()
            gelu_store(1)
        else: a.wait_lg_all()
        if SPX: h4a.late_check(0x60 + L)
        a("s_nop 1")
    main_out = a.out; a.out = []
    a.label(idle)
    pump.i, pump.c, pump.vid, pump.lid = pst
    if IDN:
        a(f"v_lshrrev_b32 v{RING}, 2, v{vL}")
        a(f"v_lshlrev_b32 v{RING}, 12, v{RING}")
        a(f"v_and_b32 v{RING+1}, 3, v{vL}")
        a(f"v_lshl_add_u32 v{RING}, v{RING+1}, 7, v{RING}")
        a(f"s_bfe_u32 s{sT0}, s{sWI}, 0x20002")
        a(f"s_mul_i32 s{sT0}, s{sT0}, {28*65536}")
        a(f"s_and_b32 s{sT1}, s{sB}, 7")
        a(f"s_lshl_b32 s{sT1}, s{sT1}, 9")
        a(f"s_add_u32 s{sT0}, s{sT0}, s{sT1}")
        a(f"v_add_u32 v{RING}, s{sT0}, v{RING}")
        a(f"s_add_u32 s{sT1}, s{sW}, s{sROT2}")
        a(f"s_add_u32 s{sT1}, s{sT1}, {28 - IDN}")
        for k in range((IDN + 3) // 4):
            a(f"s_sub_u32 s{sT2}, s{sT1}, 28")
            a(f"s_cselect_b32 s{sT1}, s{sT1}, s{sT2}")
            a(f"s_lshl_b32 s{sT2}, s{sT1}, 16")
            a(f"buffer_load_dword v31, v{RING}, {sr(SW2,4)}, s{sT2} offen")
            a(f"s_add_u32 s{sT1}, s{sT1}, 4")
    nlate = n2 if SPX else 0
    pump.fill(nmid)
    if SPX:
        poll(h4a.can_issue, h4a.can_check, 0x5e)
        h4a.window()
    pump.run(cact, refill=False, tmp=(AUX + 14, AUX + 15))
    pump.fill(nact)
    a("s_nop 1")
    a(f"s_branch {join}")
    COLD.extend(a.out); a.out = main_out
    a.label(join)
    a.hist = []
    stamp(f"p3_{L}")
    a.c(f"======== P4 layer {L}")
    if L == 0 and opt("CRF", 0) & 1: code_refetch(vr(60, 4))
    if L == 0:
        set_poi(56)
        tile_poison(56, sAX2W, 0, 2048)
        tile_poison(56, sAPQW, PQ[1] - PQ[0], 1024)
        kv_poison(56, 1)
    cinit = pst[1]
    NKT = opt("NKT", 10)
    def kvdma(j):
        if j == 0: a(f"s_add_u32 s{sT3}, s{sAWQT}, s{sWA}")
        if j & 3 == 0:
            a(f"s_add_u32 m0, s{sWA}, {j*1024}")
            if j: a(f"s_add_u32 s{sT3}, s{sT3}, 4096")
        return a(f"buffer_load_dwordx4 v{vL16}, {sr(SWS,4)}, s{sT3} offen offset:{(j&3)*1024} sc1 lds")
    if SPX:
        WV = opt("WV", 2); AH = optL("AH", L, 3, 4)
        pump.run(min(pump.i, pump.c + optL("PRE", L, 0, 0)), tmp=(AUX, AUX + 1))
        landed = pump.i; c0 = pump.c
        w3 = []
        if WE3:
            w3 = h3b.woven(72)
            w3 = w3[:7] + [(lambda j=j: a(f"v_add_f32 v{64+j}, v{64+j}, v{B1R+j}")) for j in range(8)] + w3[10:]
            T = 72
            for i in range(8): w3.append(lambda i=i: a(f"v_mul_f32 v{T+i}, v{64+i}, v{64+i}"))
            for i in range(8): w3.append(lambda i=i: a(f"v_fma_f32 v{T+i}, v{T+i}, s{sGK}, v{AUX+8}"))
            for i in range(8): w3.append(lambda i=i: a(f"v_mul_f32 v{T+i}, v{T+i}, v{64+i}"))
            for i in range(8): w3.append(lambda i=i: a(f"v_exp_f32 v{T+i}, v{T+i}"))
            for i in range(8): w3.append(lambda i=i: a(f"v_add_f32 v{T+i}, 1.0, v{T+i}"))
            for i in range(8): w3.append(lambda i=i: a(f"v_rcp_f32 v{T+i}, v{T+i}"))
            for i in range(8): w3.append(lambda i=i: a(f"v_mul_f32 v{64+i}, v{64+i}, v{T+i}"))
            for q in range(4): w3.append(lambda q=q: a(f"v_cvt_pk_bf16_f32 v{80+q}, v{64+2*q}, v{64+2*q+1}"))
            w3.append(lambda: ws_store4(80, sAUW, 1024))
        W3S = opt("W3S", 4)
        def hk(s, k):
            for _ in range(W3S):
                if w3:
                    f = w3.pop(0)
                    if f: f()
            if k == 1:
                lim = max(min(landed, c0 + WV * (s + 1)), min(28, s + AH))
                pump.run(lim, tmp=(AUX, AUX + 1), first=(s == 0))
            if k == 0 and s >= cinit:
                assert pump.c > s
                if not opt("NOPUMP", 0): a.wait(lg=pump.lid[s])
        h4a.run(nxt=h4b, hook=hk)
        assert not w3
    else:
        pump.run(28, tmp=(AUX, AUX + 1))
        stamp("p4_w2")
        a.wait_lg_all()
        spec(h4a.can_issue, h4a.can_check, h4a.window, 0x60 + L, a.newlabel("SREDO"))
        stamp("canary")
        h4a.run(nxt=h4b)
    stamp("gemm_a")
    def resid(hf):
        A0 = 32 + 32 * hf; XU = AUX
        for j in range(4):
            a(f"v_lshlrev_b32 v{XU+2*j}, 16, v{XR+4*hf+j}")
            a(f"v_and_b32 v{XU+2*j+1}, 0xffff0000, v{XR+4*hf+j}")
        for q in range(4): pk("add", XU+2*q, vr(XU+2*q,2), vr(vB2-1,2), lo=[0,1], hi=[1,1])
        for q in range(4): pk("add", A0+2*q, vr(A0+2*q,2), vr(XU+2*q,2))
    def out(hf):
        A0 = 32 + 32 * hf
        for q in range(4): a(f"v_cvt_pk_bf16_f32 v{XR+4*hf+q}, v{A0+2*q}, v{A0+2*q+1}")
        if L == 0: ws_store4(XR + 4 * hf, sAX2W, 2048 * hf)
        else:
            a(f"v_permlane32_swap_b32 v{XR+4*hf}, v{XR+4*hf+2}")
            a(f"v_permlane32_swap_b32 v{XR+4*hf+1}, v{XR+4*hf+3}")
            a(f"buffer_store_dwordx4 {vr(XR+4*hf,4)}, v{vOUT}, {sr(SOUT,4)}, 0 offen offset:{64*hf}")
    wv = []
    if optL("WE4", L, 1, 1):
        h4a.writes()
        wv = h4a.woven(40)
        XU = AUX
        pre = []
        for j in range(4):
            pre.append(lambda j=j: a(f"v_lshlrev_b32 v{XU+2*j}, 16, v{XR+j}"))
            pre.append(lambda j=j: a(f"v_and_b32 v{XU+2*j+1}, 0xffff0000, v{XR+j}"))
        for j in range(8): pre.append(lambda j=j: a(f"v_add_f32 v{32+j}, v{32+j}, v{vB2}"))
        for j in range(8): wv.append(lambda j=j: a(f"v_add_f32 v{32+j}, v{32+j}, v{XU+j}"))
        wv = pre[:8] + wv[:1] + wv[1:7] + pre[8:] + wv[10:]
        wv.append(lambda: out(0))
    else:
        h4a.writes(); resid(0); h4a.reads(); out(0)
    h4b.late_check(0x62 + L)
    stamp("epi_a")
    kc = [0]
    WPS = opt("WPS", 2)
    def hk(s, k):
        for _ in range(WPS if k == 1 else WPS - 1):
            if wv:
                f = wv.pop(0)
                if f: f()
        if L == 0 and k == 1 and s + LKH >= 28 and kc[0] < NKT:
            kvdma(kc[0]); kc[0] += 1
    h4b.run(hook=hk)
    assert not wv
    stamp("gemm_b")
    if L == 0 and opt("XE", 0) == 1: xa_start()
    h4b.writes()
    if L == 0 and opt("XE", 0) == 2: xa_start()
    if L == 0 and opt("KE", 2):
        while kc[0] < 12: kvdma(kc[0]); kc[0] += 1
    resid(1); h4b.reads()
    if L == 0 and opt("KE", 2) == 2:
        while kc[0] < 16: G["kvlast"] = kvdma(kc[0]); kc[0] += 1
    out(1)
    if L == 0:
        row_stats_publish(sAS2W, 32)
        for j in range(kc[0], 16): G["kvlast"] = kvdma(j)
    stamp(f"p4_{L}")

def emit_ool():
    for h, nxt, lab, back in OOL:
        a.label(lab)
        a.hist = []
        a.vm_done = a.vm
        h.window()
        h.steps(lab, force=False)
        if nxt is not None:
            if nxt.kind == 2: nxt.can_issue()
            nxt.window()
            a("s_waitcnt vmcnt(0)")
        a("s_nop 15")
        a(f"s_branch {back}")

prologue()
for L in range(2):
    p1(L); p2(L); p34(L)
finish()
a.out.extend(COLD); COLD.clear()
a.label("L_END")
emit_ool()
a.out.extend(COLD)
a.label("L_EXIT")
a("s_endpgm")

hdr = open(f"ref.s").read().split("; Override launch")[0]
def wrap(body): return hdr + f"""; @launch grid=(256,1,1) block=(256,1,1) lds={LDS_BYTES}
.amdgcn_target "amdgcn-amd-amdhsa--gfx950"
.text
.globl {NAME}_kernel
.p2align 8
.type {NAME}_kernel,@function
{NAME}_kernel:
""" + body + f""".section .rodata,"a"
.p2align 6
.amdhsa_kernel {NAME}_kernel
  .amdhsa_next_free_vgpr 512
  .amdhsa_next_free_sgpr 102
  .amdhsa_accum_offset 256
  .amdhsa_group_segment_fixed_size 0
  .amdhsa_kernarg_size 88
  .amdhsa_user_sgpr_count 2
  .amdhsa_user_sgpr_kernarg_segment_ptr 1
  .amdhsa_system_sgpr_workgroup_id_x 1
  .amdhsa_float_denorm_mode_32 3
.end_amdhsa_kernel
"""
lines = a.out
if opt("ALN", 32):
    from align import align
    lines, st = align(lines, wrap, B=opt("ALN", 32), NOPC=opt("NOPC", 150))
    print("align: straddles %d -> %d, widened %d, bytes %d -> %d" % st, file=sys.stderr)
out = wrap("\n".join(lines) + "\n")
outp = [x for x in sys.argv[1:] if x.endswith(".s")]
open(outp[0], "w").write(out)
if DIAG: open(outp[0] + ".stamps", "w").write("\n".join(stamp_names))
open(outp[0] + ".sites", "w").write(" ".join(site_names))
```

```python
import sys, struct
from contextlib import contextmanager
from asmlib import Asm, vr, ar, sr

NAME = "interleave_layers__linear_attn_block__mixer_token_mlp__prompt"
DIAG = "--diag" in sys.argv
OPT = {}
for a_ in sys.argv:
    if a_.startswith("-D"):
        k_, v_ = a_[2:].split("="); OPT[k_] = int(v_)
def opt(k, d): return OPT.get(k, d)
def optL(k, L, d0, d1): return OPT.get(f"{k}_{L}", (d0, d1)[L])
def f2u(x): return struct.unpack("<I", struct.pack("<f", x))[0]
def fl(x): return "0x%08x" % f2u(x)
FULL = (1 << 64) - 1
LOG2E = 1.4426950408889634

KVF = [0x2000, 0xC0000]; KVP = [0x8000, 0xC6000]; ST = [0x166000, 0x1A6000]; ST2 = 0x1E6000
SELFP = 0xC0000
PQ = [0x400000, 0x600000]; HT = [0x800000, 0xA00000]; U = [0xC00000, 0xE00000]; X2 = 0x1000000
WQT = 0x1200000
TS = 0x1400000
DUMP = 0x1500000
ERRS = 0x1520000
NONCE = 0x0; TAGQ = 0x1540000
WS_BYTES = 268435456
L_A = 32768; L_B = 98304; LDS_BYTES = 163840
NS = 6; SCR = 12288
sW = 3
SX, SWQKV, SWO, SW1, SW2, SWS, SOUT, SDBG, SB1, SB2, SCODE = 4, 8, 12, 16, 20, 24, 28, 32, 36, 40, 44
sST, sDT, sRB, sHP, sDT3, sFT, sP3, sRH, sKH, sWB, sTO, sONES = 48, 49, 50, 51, 52, 53, 54, 55, 56, 57, 58, 59
sEPS6 = 60; sB = 61
sT0, sT1, sT2, sT3, sT4, sT5 = 62, 63, 64, 65, 66, 67
sSO = 68; sW1K = 69; sTS = 70
sL2E = 74; sWA = 75; sROTX = 76; sROT1 = 77; sROT2 = 78; sRED = 79; sWOFF = 80; sKB = 81; sXC = 82; sWI = 83
sKA = 84
sAKVP, sAPQW, sAPQR, sAKVF, sASTW, sASTR, sAHTW, sAHTR, sAUW, sAUR, sAX2W, sAX2R, sAS2W, sAS2R, sAWQT, sGK = range(84, 100)
sDUM = 100; sNON = 101; sRX0 = 73
vL, vL16, vTA, vTB, vT0, vT1, vT2, vT3 = 0, 1, 2, 3, 4, 5, 6, 7
XR = 8
CKP, CVP, CQP, vB2, vRS, vHH, vOUT, vTSV = 16, 17, 18, 19, 20, 21, 22, 23
vWA, vWB, vWTA, vWTB = 24, 25, 26, 27
MA = 28

a = Asm()
stamp_names = []
G = {}

@contextmanager
def cond():
    st = (a.vm, a.vm_done, a.lg, a.lg_done); h = list(a.hist)
    yield
    a.vm, a.vm_done, a.lg, a.lg_done = st[0], min(st[1], st[0]), st[2], min(st[3], st[2])
    a.hist = h

COLD = []
@contextmanager
def cold(label, back=None):
    st = (a.vm, a.vm_done, a.lg, a.lg_done, list(a.hist)); main = a.out
    a.out = []
    a.label(label)
    yield
    if back:
        a("s_nop 1")
        a(f"s_branch {back}")
    COLD.extend(a.out)
    a.out = main
    a.vm, a.vm_done, a.lg, a.lg_done, a.hist = st

def stamp(name):
    if not DIAG: return
    if "--lite" in sys.argv and name not in ("start", "end", "p4_0"): return
    k = len(stamp_names); stamp_names.append(name)
    if opt("CYC", 0) and name not in ("start", "end"): a(f"s_memtime {sr(sTS,2)}")
    else: a(f"s_memrealtime {sr(sTS,2)}")
    if name in ("start", "end"): a(f"s_memtime s[0:1]") if name == "end" else a(f"s_memtime {sr(sTS+2,2)}")
    a("s_waitcnt lgkmcnt(0)"); a.lg_done = a.lg
    a(f"v_writelane_b32 v{vTSV}, s{sTS}, {k}")
    if name in ("start", "end"): a(f"v_writelane_b32 v{vTSV}, s{sTS+2 if name == 'start' else 0}, {62 if name == 'start' else 63}")

def srd(base, ptr, nbytes):
    a(f"s_mov_b32 s{base}, s{ptr}")
    a(f"s_and_b32 s{base+1}, s{ptr+1}, 0xffff")
    a(f"s_mov_b32 s{base+2}, {nbytes:#x}")
    a(f"s_mov_b32 s{base+3}, 0x20000")

def set_exec(mask):
    if mask == FULL: a("s_mov_b64 exec, -1")
    elif mask <= 64: a(f"s_mov_b64 exec, {mask}")
    else:
        a(f"s_mov_b32 exec_lo, {mask & 0xffffffff:#x}"); a(f"s_mov_b32 exec_hi, {mask >> 32:#x}")

def lin(dst, terms, const=0):
    first = True
    for r, m in terms:
        t = dst if first else sT5
        if m == 1 and not first: a(f"s_add_u32 s{dst}, s{dst}, s{r}"); continue
        if m & (m - 1) == 0: a(f"s_lshl_b32 s{t}, s{r}, {m.bit_length()-1}")
        else: a(f"s_mul_i32 s{t}, s{r}, {m}")
        if not first: a(f"s_add_u32 s{dst}, s{dst}, s{sT5}")
        first = False
    if const: a(f"s_add_u32 s{dst}, s{dst}, {const:#x}")

def timeout_path(code):
    a(f"s_mov_b32 s{sTO}, 0")
    if DIAG:
        a(f"v_mov_b32 v{vT3}, {code}")
        a(f"s_mov_b32 s{sT5}, {ERRS:#x}")
        a(f"buffer_store_dword v{vT3}, off, {sr(SWS,4)}, s{sT5}")
        a("s_waitcnt vmcnt(0)")

def poll_loop(issue, check, code, done):
    top = a.newlabel("POLL"); go = a.newlabel("PGO")
    a.label(top)
    mark(f"retry{code:x}")
    if opt("PS", 2) and not (code == 0x20 and opt("A1NS", 1)): a(f"s_sleep {opt('PS', 2)}")
    a(f"s_sub_u32 s{sTO}, s{sTO}, 1")
    a(f"s_cbranch_scc0 {go}")
    timeout_path(code)
    a(f"s_branch {done}")
    a.label(go)
    issue()
    a.wait_vm_all(force=True)
    check()
    a(f"s_cbranch_vccnz {top}")
    a(f"s_branch {done}")

def poll(issue, check, code, pre=None):
    done = a.newlabel("PDONE"); rt = a.newlabel("PRT")
    if pre is not None: a.wait(vm=pre)
    else:
        issue()
        a.wait_vm_all(force=True)
    check()
    a(f"s_cbranch_vccnz {rt}")
    with cold(rt): poll_loop(issue, check, code, done)
    a.label(done)

def fallback(issue, check, code, reissue, name, last=None):
    fb = a.newlabel("FB"); back = a.newlabel("FBB"); mid = a.newlabel("FBM"); first = a.newlabel("FBF")
    force_fail("FRC")
    y = None
    if last is not None and last[0] >= a.vm_done: y = a.vm - last[1] - 1
    a(f"s_cbranch_vccnz {fb}")
    with cold(fb, back):
        mark(name)
        issue()
        a.wait_vm_all(force=True)
        check()
        a(f"s_cbranch_vccz {mid}")
        poll_loop(issue, check, code, mid)
        a.label(mid)
        reissue()
        if y is None or not opt("FBP", 1): a("s_waitcnt vmcnt(0)")
        else:
            for _ in range(y): a(f"buffer_load_dword v{vT3}, off, {sr(SB2,4)}, 0 offset:4094")
    a.label(back)

def poll1(addr, code, tmp=None, tag=False):
    cmp = (lambda r: a(f"v_cmp_ne_u32 vcc, s{sNON}, v{r}")) if tag else (lambda r: a(f"v_cmp_eq_u32 vcc, -1, v{r}"))
    if tmp is None or not opt("PP", 0):
        poll(lambda: a(f"buffer_load_dword v{vT3}, {addr} sc1"), lambda: cmp(vT3), code)
        return
    top = a.newlabel("PP"); done = a.newlabel("PPD")
    a(f"buffer_load_dword v{vT3}, {addr} sc1")
    a(f"s_nop {opt('PPN', 15)}")
    a.label(top)
    for r, o in ((vT3, tmp), (tmp, vT3)):
        a(f"buffer_load_dword v{o}, {addr} sc1")
        a("s_waitcnt vmcnt(1)")
        cmp(r)
        a(f"s_cbranch_vccz {done}")
    h = list(a.hist)
    a(f"s_sub_u32 s{sTO}, s{sTO}, 2")
    a(f"s_cbranch_scc0 {top}")
    timeout_path(code)
    a.label(done)
    a.hist = h
    a.vm -= 1
    a.vm_done = a.vm - 1

SLD = {}
SPD = {0x50: 1, 0x51: 1, 0x60: 1, 0x61: 1, 0x36: 1, 0x38: 1, 0x39: 1, 0x40: 1}
def spec(can_issue, can_check, window, code, redo, on=True):
    d = OPT.get(f"SL{code:x}", SLD.get(code, 0))
    if d: a(f"s_sleep {d}")
    on = OPT.get(f"SP{code:x}", SPD.get(code, 0))
    go = a.newlabel("GO")
    if on:
        can_issue(); cid = a.vm - 1
        window()
        a.wait(vm=cid)
        can_check()
        keep = snapshot_ids()
        fallback(can_issue, can_check, code, window, f"fb{code:x}", last=(cid + 1, a.vm - 1))
        restore_ids(keep)
    else:
        poll(can_issue, can_check, code)
        window()
    keep = snapshot_ids()
    with cold(redo, go):
        window()
        a("s_waitcnt vmcnt(0)")
    restore_ids(keep)
    a.label(go)

IDMAPS = []
def snapshot_ids(): return [dict(m) for m in IDMAPS]
def restore_ids(k):
    for m, v in zip(IDMAPS, k):
        m.clear(); m.update(v)

site_names = []
def mark(name):
    if not opt("CNT", 0): return
    if name.startswith("retry") and name not in ("retry20", "retry34", "retry35", "retry37"): return
    k = len(site_names); site_names.append(name)
    a(f"s_bitset1_b32 s2, {k}")
force_n = [0]
def force_fail(kind):
    if not opt(kind, 0): return
    k = force_n[0] % 32; force_n[0] += 1
    l = a.newlabel("FF")
    a(f"s_bitcmp1_b32 s2, {k}")
    a(f"s_cbranch_scc1 {l}")
    a(f"s_bitset1_b32 s2, {k}")
    a("s_mov_b64 vcc, 1")
    a.label(l)

def verify(vMX, redo, force=True):
    ok = a.newlabel("VOK"); bad = a.newlabel("VBAD")
    a(f"v_cmp_eq_u32 vcc, -1, v{vMX}")
    if force: force_fail("FRV")
    a(f"s_cbranch_vccnz {bad}")
    with cold(bad, ok):
        if force: mark("redo")
        a("s_waitcnt vmcnt(0)")
        a(f"s_sub_u32 s{sTO}, s{sTO}, 64")
        a(f"s_cbranch_scc0 {redo}")
        a(f"s_mov_b32 s{sTO}, 0")
        a("s_nop 15")
    a.label(ok)

def finish():
    if opt("AMPM", 0):
        lp = a.newlabel("AML"); sk = a.newlabel("AMS")
        a(f"s_and_b32 s{sT0}, s2, {opt('AMPM', 0):#x}")
        a(f"s_cbranch_scc0 {sk}")
        a(f"s_memrealtime s[70:71]")
        a("s_waitcnt lgkmcnt(0)")
        a(f"s_add_u32 s{sT1}, s70, 4000")
        a.label(lp)
        a(f"s_memrealtime s[70:71]")
        a("s_waitcnt lgkmcnt(0)")
        a(f"s_sub_u32 s{sT2}, s70, s{sT1}")
        a(f"s_cmp_lt_i32 s{sT2}, 0")
        a(f"s_cbranch_scc1 {lp}")
        a.label(sk)
    if opt("AMP", -1) >= 0:
        lp = a.newlabel("AMPL"); sk = a.newlabel("AMPS")
        stamp("pre_end")
        a(f"s_cmp_lg_u32 s{sB}, 77")
        a(f"s_cbranch_scc1 {sk}")
        a(f"v_readlane_b32 s{sT0}, v{vTSV}, 0")
        a(f"v_readlane_b32 s{sT1}, v{vTSV}, {opt('AMP', 0)}")
        a(f"s_memrealtime s[70:71]")
        a("s_waitcnt lgkmcnt(0)")
        a(f"s_sub_u32 s{sT1}, s{sT1}, s{sT0}")
        a(f"s_lshl_b32 s{sT1}, s{sT1}, 2")
        a(f"s_add_u32 s{sT1}, s70, s{sT1}")
        a.label(lp)
        a(f"s_memrealtime s[70:71]")
        a("s_waitcnt lgkmcnt(0)")
        a(f"s_sub_u32 s{sT2}, s70, s{sT1}")
        a(f"s_cmp_lt_i32 s{sT2}, 0")
        a(f"s_cbranch_scc1 {lp}")
        a.label(sk)
    if DIAG:
        a(f"v_writelane_b32 v{vTSV}, s{sTO}, 61")
        if opt("CNT", 0): a(f"v_writelane_b32 v{vTSV}, s2, 60")
        stamp("end")
        lin(sT0, [(sB, 1024), (sW, 256)], TS)
        a(f"v_lshlrev_b32 v{vT0}, 2, v{vL}")
        a(f"buffer_store_dword v{vTSV}, v{vT0}, {sr(SWS,4)}, s{sT0} offen")
    a("s_endpgm")

def pk(op, d, x, y, z=None, hi=None, lo=None):
    ops = [x, y] + ([z] if z is not None else [])
    m = ""
    if lo: m += " op_sel:[" + ",".join(map(str, lo)) + "]"
    if hi: m += " op_sel_hi:[" + ",".join(map(str, hi)) + "]"
    a(f"v_pk_{op}_f32 {vr(d,2)}, " + ", ".join(ops) + m)

def mfma(d, A, B, C):
    a(f"v_mfma_f32_32x32x16_bf16 {d}, {A}, {B}, {C}")

def ws_store4(reg, soff, off=0): return a(f"buffer_store_dwordx4 {vr(reg,4)}, v{vL16}, {sr(SWS,4)}, s{soff} offen offset:{off} sc1")

def tr_base(dst_a, dst_b, sel64, sel32, region):
    a(f"v_bfe_u32 v{vT0}, v{vL}, 2, 2")
    a(f"v_lshl_add_u32 v{vT0}, v{vHH}, 2, v{vT0}")
    a(f"v_lshlrev_b32 v{dst_a}, 7, v{vT0}")
    a(f"v_bfe_u32 v{vT1}, v{vL}, 3, 1")
    a(f"v_lshl_add_u32 v{dst_a}, v{vT1}, 6, v{dst_a}")
    a(f"v_bfe_u32 v{vT1}, v{vL}, 4, 1")
    a(f"v_lshl_add_u32 v{dst_a}, v{vT1}, 5, v{dst_a}")
    a(f"v_and_b32 v{vT1}, 3, v{vL}")
    a(f"v_lshl_add_u32 v{dst_a}, v{vT1}, 3, v{dst_a}")
    for sel, sh in ((sel64, 6), (sel32, 5)):
        if sel is not None:
            a(f"s_lshl_b32 s{sT5}, s{sel}, {sh}")
            a(f"v_xor_b32 v{dst_a}, s{sT5}, v{dst_a}")
    a(f"v_add_u32 v{dst_a}, {region}, v{dst_a}")
    a(f"v_xor_b32 v{dst_b}, 64, v{dst_a}")

def dma_voff(dst, dst2, pitch, scol):
    a(f"v_lshrrev_b32 v{vT0}, 3, v{vL}")
    a(f"v_mul_u32_u24 v{dst}, {pitch}, v{vT0}")
    a(f"v_bfe_u32 v{vT1}, v{vL}, 4, 1")
    a(f"v_lshlrev_b32 v{vT1}, 2, v{vT1}")
    a(f"v_and_b32 v{vT0}, 7, v{vL}")
    a(f"v_xor_b32 v{vT0}, v{vT0}, v{vT1}")
    a(f"v_lshl_add_u32 v{dst}, v{vT0}, 4, v{dst}")
    a(f"v_add_u32 v{dst}, s{scol}, v{dst}")
    a(f"v_add_u32 v{dst2}, {8*pitch-1024}, v{dst}")

R1, R2 = 16, 11
def wreg(kind, t, j, n):
    r, base = (R1, 0) if kind == 1 else (R2, R1 * 8)
    if t < r: return ar(base + 8 * t + j, n)
    t -= r
    if t < 5: return ar(216 + 8 * t + j, n)
    return vr(160 + 8 * (t - 5) + j, n)

class Pump:
    def setup(self, kind, L, extra=0):
        self.kind = kind
        self.pitch, self.srd, self.n = (3584, SW1, 32) if kind == 1 else (4096, SW2, 28)
        self.t0 = 0 if L == 0 else (R1 if kind == 1 else R2)
        self.extra = extra
        self.ns = opt("NS1", 6) if kind == 1 else NS
        self.i = self.t0; self.c = self.t0; self.vid = {}; self.lid = {}
        a.c(f"pump setup W{kind}")
        a(f"s_lshl_b32 s{sT5}, s{sKH}, 5")
        a(f"v_xor_b32 v{vWTA}, s{sT5}, v{vWTA}")
        a(f"v_xor_b32 v{vWTB}, s{sT5}, v{vWTB}")
        lin(sT4, [(sFT if kind == 1 else sST, 128), (sW, self.n * 16 * self.pitch)])
        dma_voff(vWA, vWB, self.pitch, sT4)
        rot = sROT1 if kind == 1 else sROT2
        a(f"s_add_u32 s{sT5}, s{rot}, {self.t0}")
        a(f"s_sub_u32 s{sWOFF}, s{sT5}, {self.n}")
        a(f"s_cselect_b32 s{sWOFF}, s{sT5}, s{sWOFF}")
        a(f"s_mul_i32 s{sWOFF}, s{sWOFF}, {16*self.pitch}")
    def place(self, t):
        k = t - self.t0
        if k < self.extra: return ("B", k * 2048)
        return ("A", ((k - self.extra) % self.ns) * 2048)
    def prev_user(self, t):
        p = t - self.ns
        return p if p - self.t0 >= self.extra else None
    def room(self, lag=0):
        p = self.prev_user(self.i)
        return p is None or p < self.c - lag
    def issue1(self):
        t = self.i
        if opt("NOPUMP", 0):
            self.vid[t] = None; self.i += 1; return
        p = self.prev_user(t)
        if p is not None: a.wait(lg=self.lid[p])
        reg, o = self.place(t)
        a(f"s_add_u32 m0, s{sWB if reg == 'B' else sWA}, {o}")
        if t > self.t0:
            a(f"s_add_u32 s{sWOFF}, s{sWOFF}, {16*self.pitch}")
            a(f"s_cmp_eq_u32 s{sWOFF}, {self.n*16*self.pitch}")
            a(f"s_cselect_b32 s{sWOFF}, 0, s{sWOFF}")
        a(f"buffer_load_dwordx4 v{vWA}, {sr(self.srd,4)}, s{sWOFF} offen lds")
        self.vid[t] = a(f"buffer_load_dwordx4 v{vWB}, {sr(self.srd,4)}, s{sWOFF} offen offset:1024 lds")
        self.i += 1
    def fill(self, upto=None):
        lim = self.n if upto is None else min(self.n, upto)
        while self.i < lim and self.room(): self.issue1()
    def run(self, target, refill=True, tmp=(vT0, vT1), first=True):
        target = min(target, self.n)
        haveB = not first
        while self.c < target:
            t = self.c
            if t >= self.i: self.issue1()
            if opt("NOPUMP", 0):
                self.c += 1; continue
            reg, o = self.place(t)
            ta, tb = vWTA, vWTB
            if reg == "B":
                ta, tb = tmp
                if not haveB:
                    a(f"v_add_u32 v{ta}, 65536, v{vWTA}"); a(f"v_add_u32 v{tb}, 65536, v{vWTB}"); haveB = True
            a.wait(vm=self.vid[t])
            a(f"ds_read_b64_tr_b16 {wreg(self.kind,t,0,2)}, v{ta} offset:{o}")
            a(f"ds_read_b64_tr_b16 {wreg(self.kind,t,2,2)}, v{ta} offset:{o+1024}")
            a(f"ds_read_b64_tr_b16 {wreg(self.kind,t,4,2)}, v{tb} offset:{o}")
            self.lid[t] = a(f"ds_read_b64_tr_b16 {wreg(self.kind,t,6,2)}, v{tb} offset:{o+1024}")
            self.c += 1
            lim = self.n if refill else target
            if self.i < lim and self.room(lag=1): self.issue1()
        if refill: self.fill()
pump = Pump()

def prologue():
    a(f"s_cmp_ge_u32 s2, 256")
    a(f"s_cbranch_scc1 L_EXIT")
    a(f"s_load_dwordx16 {sr(sKA,16)}, s[0:1], 0")
    a(f"s_load_dwordx4 {sr(SCODE,4)}, s[0:1], 64")
    a(f"s_load_dwordx2 s[100:101], s[0:1], 80")
    a(f"s_mov_b32 s{sB}, s2")
    if opt("CNT", 0): a("s_mov_b32 s2, 0")
    if opt("FRV", 0) or opt("FRC", 0): a("s_mov_b32 s2, 0")
    a(f"v_lshrrev_b32 v{vT0}, 6, v0")
    a(f"v_and_b32 v{vL}, 63, v0")
    a(f"v_readfirstlane_b32 s{sW}, v{vT0}")
    a(f"v_lshlrev_b32 v{vL16}, 4, v{vL}")
    a(f"v_lshrrev_b32 v{vHH}, 5, v{vL}")
    if opt("CODEPF", 2) == 2:
        a(f"s_getpc_b64 {sr(SB1,2)}")
        a.label("L_PC")
        a(f"s_and_b32 s{SB1+1}, s{SB1+1}, 0xffff")
        a(f"s_mov_b32 s{SB1+2}, L_END - L_PC")
        a(f"s_mov_b32 s{SB1+3}, 0x20000")
        a(f"s_lshr_b32 s{sT0}, s{sB}, 3")
        a(f"s_lshl_b32 s{sT0}, s{sT0}, 2")
        a(f"s_add_u32 s{sT0}, s{sT0}, s{sW}")
        a(f"s_lshl_b32 s{sT0}, s{sT0}, 10")
        a(f"buffer_load_dwordx4 {ar(252,4)}, v{vL16}, {sr(SB1,4)}, s{sT0} offen")
    if DIAG: a(f"v_mov_b32 v{vTSV}, 0")
    stamp("start")
    X_, I_ = sT0, sT1
    a(f"s_and_b32 s{X_}, s{sB}, 7")
    a(f"s_lshr_b32 s{I_}, s{sB}, 3")
    a(f"s_lshr_b32 s{sT2}, s{I_}, 3")
    a(f"s_and_b32 s{sDT}, s{I_}, 7")
    a(f"s_and_b32 s{sRB}, s{X_}, 3")
    a(f"s_lshl_b32 s{sRB}, s{sRB}, 2")
    a(f"s_add_u32 s{sRB}, s{sRB}, s{sT2}")
    a(f"s_lshr_b32 s{sHP}, s{X_}, 2")
    a(f"s_lshl_b32 s{sHP}, s{sHP}, 3")
    a(f"s_add_u32 s{sHP}, s{sHP}, s{sDT}")
    a(f"s_lshr_b32 s{sROTX}, s{sDT}, 1")
    a(f"s_add_u32 s{sROTX}, s{sROTX}, s{sT2}")
    a(f"s_and_b32 s{sROTX}, s{sROTX}, 3")
    a(f"s_lshl_b32 s{sROTX}, s{sROTX}, 1")
    a(f"s_and_b32 s{sT3}, s{I_}, 1")
    a(f"s_add_u32 s{sROTX}, s{sROTX}, s{sT3}")
    a(f"s_and_b32 s{sRX0}, s{sROTX}, {opt('RXM', 6)}")
    a(f"s_lshl_b32 s{sW1K}, s{sW}, 10")
    a(f"s_lshl_b32 s{sWB}, s{sW}, 14")
    a(f"s_add_u32 s{sWA}, s{sWB}, {L_A}")
    a(f"s_add_u32 s{sWB}, s{sWB}, {L_B}")

def roles2():
    X_, I_ = sT0, sT1
    a(f"s_and_b32 s{X_}, s{sB}, 7")
    a(f"s_lshr_b32 s{I_}, s{sB}, 3")
    a(f"s_lshr_b32 s{sT2}, s{I_}, 3")
    a(f"s_lshl_b32 s{sST}, s{X_}, 2")
    a(f"s_add_u32 s{sST}, s{sST}, s{sT2}")
    a(f"s_lshr_b32 s{sT3}, s{X_}, 1")
    a(f"s_mul_i32 s{sT3}, s{sT3}, 7")
    a(f"s_and_b32 s{sT4}, s{X_}, 1")
    a(f"s_lshl_b32 s{sT5}, s{sT4}, 2")
    a(f"s_add_u32 s{sFT}, s{sT3}, s{sT5}")
    a(f"s_add_u32 s{sFT}, s{sFT}, s{sT2}")
    a(f"s_and_b32 s{sP3}, s{I_}, 3")
    a(f"s_add_u32 s{sT5}, s{sT5}, s{sP3}")
    a(f"s_add_u32 s{sKB}, s{sT3}, 3")
    a(f"s_cmp_lt_u32 s{I_}, 24")
    a(f"s_cselect_b32 s{sFT}, s{sFT}, s{sKB}")
    a(f"s_cselect_b32 s{sDT3}, s{sDT}, s{sT5}")
    a(f"s_mul_i32 s{sT4}, s{sT4}, 3")
    a(f"s_add_u32 s{sXC}, s{sT3}, s{sT4}")
    a(f"s_lshl_b32 s{sROT1}, s{X_}, 2")
    a(f"s_and_b32 s{sT3}, s{I_}, 3")
    a(f"s_lshr_b32 s{sP3}, s{I_}, 2")
    a(f"s_lshl_b32 s{sWI}, s{I_}, 2")
    a(f"s_add_u32 s{sWI}, s{sWI}, s{sW}")
    a(f"s_lshl_b32 s{sRED}, s{X_}, 2")
    a(f"s_add_u32 s{sRED}, s{sRED}, s{sT3}")
    a(f"s_lshl_b32 s{sRED}, s{sRED}, 1")
    a(f"s_add_u32 s{sRED}, s{sRED}, s{sW}")
    a(f"s_cmp_lt_u32 s{sW}, 2")
    a(f"s_cselect_b32 s{sRED}, s{sRED}, 99")
    a(f"s_cmp_eq_u32 s{sP3}, 7")
    a(f"s_cselect_b32 s{sRED}, s{sRED}, 99")
    a(f"s_mul_i32 s{sROT2}, s{X_}, 7")
    a(f"s_lshr_b32 s{sROT2}, s{sROT2}, 2")
    a(f"s_lshl_b32 s{sROT2}, s{sROT2}, 1")
    if opt("MAP", 0):
        a(f"s_and_b32 s{sT2}, s{X_}, 1")
        a(f"s_lshl_b32 s{sT2}, s{sT2}, 2")
        a(f"s_and_b32 s{sT3}, s{I_}, 3")
        a(f"s_lshr_b32 s{sT5}, s{X_}, 1")
        a(f"s_add_u32 s{sT4}, s{sP3}, s{sT3}")
        a(f"s_and_b32 s{sT4}, s{sT4}, {opt('MROT', 1)}")
        if opt("MAP", 0) & 1:
            a(f"s_add_u32 s{sDT3}, s{sT2}, s{sT3}")
            a(f"s_mul_i32 s{sFT}, s{sT5}, 7")
            a(f"s_add_u32 s{sFT}, s{sFT}, s{sP3}")
            a(f"s_lshl_b32 s{sROT1}, s{sT4}, 4")
        if opt("MAP", 0) & 2:
            a(f"s_add_u32 s{sDT}, s{sT2}, s{sT3}")
            a(f"s_lshl_b32 s{sST}, s{sT5}, 3")
            a(f"s_add_u32 s{sST}, s{sST}, s{sP3}")
            a(f"s_mul_i32 s{sROT2}, s{sT4}, 14")
    a(f"s_lshr_b32 s{sRH}, s{sW}, 1")
    a(f"s_and_b32 s{sKH}, s{sW}, 1")
    a(f"s_mov_b32 s{sTO}, 400000")
    a(f"s_mov_b32 s{sONES}, 0x3f803f80")
    a(f"s_mov_b32 s{sEPS6}, {fl(1e-6)}")
    a(f"s_mov_b32 s{sL2E}, {fl(LOG2E)}")

def late_srds():
    srd(SWO, sKA + 4, 512 * 512 * 2)
    srd(SW1, sKA + 8, 2048 * 1792 * 2)
    srd(SB1, sKA + 10, 1792 * 2)
    srd(SW2, sKA + 12, 1792 * 2048 * 2)
    srd(SB2, sKA + 14, 2048 * 2)
    srd(SOUT, SCODE, 2048 * 512 * 2)
    srd(SDBG, SCODE + 2, 256)

def code_prefetch():
    if opt("CODEPF", 2) == 1:
        a(f"s_getpc_b64 {sr(SCODE,2)}")
        a.label("L_PC")
        a(f"s_and_b32 s{SCODE+1}, s{SCODE+1}, 0xffff")
        a(f"s_mov_b32 s{SCODE+2}, L_END - L_PC")
        a(f"s_mov_b32 s{SCODE+3}, 0x20000")
        a(f"s_lshl_b32 s{sT0}, s{sWI}, 10")
        a(f"buffer_load_dwordx4 {ar(252,4)}, v{vL16}, {sr(SCODE,4)}, s{sT0} offen")
    srd(SCODE, SW1, 2048 * 1792 * 2)
    a(f"s_cmp_eq_u32 s{sP3}, 7")
    a(f"s_cselect_b32 s{SW1+2}, 0, s{SW1+2}")

def code_refetch(dst):
    l = a.newlabel("PCX")
    a(f"s_getpc_b64 {sr(SDBG,2)}")
    a.label(l)
    a(f"s_and_b32 s{SDBG+1}, s{SDBG+1}, 0xffff")
    a(f"s_mov_b32 s{SDBG+2}, L_END - {l}")
    a(f"s_lshl_b32 s{sT5}, s{sWI}, 10")
    a(f"buffer_load_dword v31, v{vL16}, {sr(SDBG,4)}, s{sT5} offen")

def addresses():
    lin(sAKVP, [(sHP, 64 * 640), (sRB, 4 * 640), (sW, 640)], KVP[0])
    lin(sAPQW, [(sRB, 4 * 32768), (sW, 32768), (sHP, 2048)], PQ[0])
    lin(sAPQR, [(sST, 65536), (sRH, 32768), (sKH, 16384)], PQ[0])
    lin(sAKVF, [(sKH, 16 * 768)], KVF[0])
    lin(sASTW, [(sST, 8192), (sDT, 1024), (sKH, 512), (sRH, 256)], ST[0])
    lin(sASTR, [(sST, 8192), (sRH, 256)], ST[0])
    lin(sAHTW, [(sDT, 262144), (sST, 8192), (sRH, 4096), (sKH, 256)], HT[0])
    lin(sAHTR, [(sDT3, 262144), (sW, 65536)], HT[0])
    lin(sAUW, [(sDT3, 229376), (sFT, 8192), (sRH, 4096), (sKH, 2048)], U[0])
    a(f"s_cmp_eq_u32 s{sP3}, 7")
    a(f"s_cselect_b32 s{sAUW}, {WS_BYTES:#x}, s{sAUW}")
    lin(sAUR, [(sDT, 229376), (sW, 57344)], U[0])
    lin(sAX2W, [(sST, 65536), (sRH, 32768), (sDT, 4096), (sKH, 1024)], X2)
    lin(sAX2R, [(sRB, 4 * 32768), (sW, 32768)], X2)
    a(f"s_add_u32 s{sAS2W}, s{sASTW}, {ST2 - ST[0]:#x}")
    lin(sAS2R, [(sRB, 2 * 8192), (sRH, 8192), (sKH, 256)], ST2)
    lin(sAWQT, [(sHP, 98304)], WQT)
    a(f"s_mov_b32 s{sGK}, {fl(-2.0 * 0.7978845608028654 * LOG2E * 0.044715)}")

def next_layer_addresses():
    for r, d in ((sAKVP, KVP[1] - KVP[0]), (sAPQW, PQ[1] - PQ[0]), (sAPQR, PQ[1] - PQ[0]), (sAKVF, KVF[1] - KVF[0]),
                 (sASTW, ST[1] - ST[0]), (sASTR, ST[1] - ST[0]), (sAHTW, HT[1] - HT[0]), (sAHTR, HT[1] - HT[0]),
                 (sAUW, U[1] - U[0]), (sAUR, U[1] - U[0])):
        a(f"s_add_u32 s{r}, s{r}, {d:#x}")

def kv_poison(P, L):
    r = sAKVP
    if L == 1:
        a(f"s_add_u32 s{sT1}, s{sAKVP}, {KVP[1]-KVP[0]:#x}"); r = sT1
    set_exec((1 << 40) - 1)
    ws_store4(P, r)
    a(f"s_mul_i32 s{sT0}, s{sRED}, 384")
    a(f"s_add_u32 s{sT0}, s{sT0}, {KVF[L]:#x}")
    a(f"s_cmp_ge_u32 s{sRED}, 64")
    a(f"s_cselect_b32 s{sT0}, {WS_BYTES:#x}, s{sT0}")
    set_exec((1 << 24) - 1)
    ws_store4(P, sT0)
    set_exec(FULL)
def ht_voff(dst):
    a(f"v_and_b32 v{dst}, 15, v{vL}")
    a(f"v_lshlrev_b32 v{dst}, 4, v{dst}")
    a(f"v_lshl_add_u32 v{dst}, v{vHH}, 9, v{dst}")
    a(f"v_bfe_u32 v{vT0}, v{vL}, 4, 1")
    a(f"v_lshl_add_u32 v{dst}, v{vT0}, 10, v{dst}")
def tile_poison(P, r, delta, step):
    v = vL16
    if r == sAHTW:
        ht_voff(vT1); v = vT1
    if delta:
        a(f"s_add_u32 s{sT0}, s{r}, {delta:#x}"); r = sT0
    for f in range(2): a(f"buffer_store_dwordx4 {vr(P,4)}, v{v}, {sr(SWS,4)}, s{r} offen offset:{step*f} sc1")
def canary_poison(P):
    lines = ((sAHTW, 2048+1024+512+128), (sAUW, 896), (sAUW, 1024+896), (sAHTW, HT[1]-HT[0]+2048+1024+512+128),
             (sAUW, U[1]-U[0]+896), (sAUW, U[1]-U[0]+1024+896), (sAPQW, PQ[1]-PQ[0]+1024+896), (sAX2W, 896))
    a(f"v_lshrrev_b32 v{vT0}, 3, v{vL}")
    for g, (r, d) in enumerate(lines):
        a(f"s_add_u32 s{sT0}, s{r}, {d:#x}")
        if g == 0: a(f"v_mov_b32 v{vT1}, s{sT0}")
        else:
            a(f"v_mov_b32 v{vT2}, s{sT0}")
            a(f"v_cmp_eq_u32 vcc, {g}, v{vT0}")
            a(f"v_cndmask_b32 v{vT1}, v{vT1}, v{vT2}, vcc")
    a(f"v_and_b32 v{vT0}, 7, v{vL}")
    a(f"v_lshl_add_u32 v{vT1}, v{vT0}, 4, v{vT1}")
    a(f"buffer_store_dwordx4 {vr(P,4)}, v{vT1}, {sr(SWS,4)}, 0 offen sc1")
def st_poison(P):
    lin(sT0, [(sB, 3072), (sW, 768)], ST[0])
    set_exec((1 << 48) - 1)
    ws_store4(P, sT0)
    set_exec(FULL)
def set_poi(P):
    for i in range(4): a(f"v_mov_b32 v{P+i}, -1")

def misc_loads():
    lin(sT0, [(sST, 64), (sRH, 32)])
    a(f"v_and_b32 v{vT0}, 31, v{vL}")
    a(f"v_add_u32 v{vT0}, s{sT0}, v{vT0}")
    a(f"v_lshlrev_b32 v{vT1}, 1, v{vT0}")
    a(f"buffer_load_ushort v{vB2}, v{vT1}, {sr(SB2,4)}, 0 offen")
    a(f"v_lshlrev_b32 v{vT0}, 10, v{vT0}")
    a(f"v_lshl_add_u32 v{vOUT}, v{vHH}, 4, v{vT0}")
    lin(sT0, [(sDT, 128), (sKH, 32)])
    a(f"v_add_u32 v{vOUT}, s{sT0}, v{vOUT}")
    a(f"buffer_load_dwordx4 {vr(XR,4)}, v{vOUT}, {sr(SX,4)}, 0 offen")
    a(f"buffer_load_dwordx4 {vr(XR+4,4)}, v{vOUT}, {sr(SX,4)}, 0 offen offset:64")

def touch(srdn, rows_per_wave, lg, pitch, scol_emit, dst):
    n = rows_per_wave << lg
    scol_emit()
    a(f"v_min_u32 v{vT0}, {n-1}, v{vL}")
    a(f"v_lshrrev_b32 v{vT1}, {lg}, v{vT0}")
    a(f"v_mul_u32_u24 v{vT1}, {pitch}, v{vT1}")
    a(f"v_and_b32 v{vT0}, {(1<<lg)-1}, v{vT0}")
    a(f"v_lshl_add_u32 v{vT0}, v{vT0}, 7, v{vT1}")
    a(f"s_mul_i32 s{sT5}, s{sWI}, {rows_per_wave*pitch}")
    a(f"s_add_u32 s{sT4}, s{sT4}, s{sT5}")
    a(f"buffer_load_dword {dst}, v{vT0}, {sr(srdn,4)}, s{sT4} offen")
def touch_w1(dst): touch(SCODE, 16, 2, 3584, lambda: a(f"s_lshl_b32 s{sT4}, s{sXC}, 7"), dst)
def touch_w2(dst):
    def c2():
        a(f"s_and_b32 s{sT4}, s{sB}, 7"); a(f"s_lshl_b32 s{sT4}, s{sT4}, 9")
    touch(SW2, 16, 2, 4096, c2, dst)
def touch_w2h(dst, t0):
    a(f"s_lshr_b32 s{sT4}, s{sWI}, 3")
    a(f"s_add_u32 s{sT4}, s{sT4}, s{sROT2}")
    if t0: a(f"s_add_u32 s{sT4}, s{sT4}, {t0}")
    a(f"s_sub_u32 s{sT5}, s{sT4}, 28")
    a(f"s_cselect_b32 s{sT4}, s{sT4}, s{sT5}")
    a(f"s_and_b32 s{sT5}, s{sWI}, 3")
    a(f"s_mul_i32 s{sT5}, s{sT5}, 28")
    a(f"s_add_u32 s{sT4}, s{sT4}, s{sT5}")
    a(f"s_lshl_b32 s{sT4}, s{sT4}, 1")
    a(f"s_bfe_u32 s{sT5}, s{sWI}, 0x10002")
    a(f"s_add_u32 s{sT4}, s{sT4}, s{sT5}")
    a(f"s_lshl_b32 s{sT4}, s{sT4}, 15")
    a(f"s_and_b32 s{sT5}, s{sB}, 7")
    a(f"s_lshl_b32 s{sT5}, s{sT5}, 9")
    a(f"s_add_u32 s{sT4}, s{sT4}, s{sT5}")
    a(f"s_cmp_eq_u32 s{sP3}, 7")
    a(f"s_cselect_b32 s{sT4}, 0x10000000, s{sT4}")
    a(f"v_min_u32 v{vT0}, 31, v{vL}")
    a(f"v_lshrrev_b32 v{vT1}, 2, v{vT0}")
    a(f"v_and_b32 v{vT0}, 3, v{vT0}")
    a(f"v_lshlrev_b32 v{vT0}, 7, v{vT0}")
    a(f"v_lshl_add_u32 v{vT0}, v{vT1}, 12, v{vT0}")
    a(f"buffer_load_dword {dst}, v{vT0}, {sr(SW2,4)}, s{sT4} offen")
def touch_w1h(dst, t0):
    a(f"s_lshr_b32 s{sT4}, s{sWI}, 3")
    a(f"s_add_u32 s{sT4}, s{sT4}, s{sROT1}")
    if t0: a(f"s_add_u32 s{sT4}, s{sT4}, {t0}")
    a(f"s_and_b32 s{sT4}, s{sT4}, 31")
    a(f"s_and_b32 s{sT5}, s{sWI}, 3")
    a(f"s_lshl_b32 s{sT5}, s{sT5}, 5")
    a(f"s_add_u32 s{sT4}, s{sT4}, s{sT5}")
    a(f"s_lshl_b32 s{sT4}, s{sT4}, 1")
    a(f"s_bfe_u32 s{sT5}, s{sWI}, 0x10002")
    a(f"s_add_u32 s{sT4}, s{sT4}, s{sT5}")
    a(f"s_mul_i32 s{sT4}, s{sT4}, {8*3584}")
    a(f"s_lshl_b32 s{sT5}, s{sXC}, 7")
    a(f"s_add_u32 s{sT4}, s{sT4}, s{sT5}")
    a(f"v_min_u32 v{vT0}, 31, v{vL}")
    a(f"v_lshrrev_b32 v{vT1}, 2, v{vT0}")
    a(f"v_and_b32 v{vT0}, 3, v{vT0}")
    a(f"v_lshlrev_b32 v{vT0}, 7, v{vT0}")
    a(f"v_mul_u32_u24 v{vT1}, 3584, v{vT1}")
    a(f"v_add_u32 v{vT0}, v{vT1}, v{vT0}")
    a(f"buffer_load_dword {dst}, v{vT0}, {sr(SCODE,4)}, s{sT4} offen")
def touch_wo(dst): touch(SWO, 4, 3, 1024, lambda: a(f"s_mov_b32 s{sT4}, 0"), dst)
def touches(L, where):
    dst = "a25" if where in (1, 2, 3, 6, 7, 8) else None
    if optL("T1", L, 8, 0) == where: touch_w1(dst + "2" if dst else "v31")
    if optL("T1A", L, 0, 0) == where: touch_w1h(dst + "2" if dst else "v31", 0)
    if optL("T1B", L, 0, 0) == where: touch_w1h(dst + "5" if dst else "v31", 16)
    if optL("T2", L, 0, 0) == where: touch_w2(dst + "3" if dst else "v31")
    if optL("T2H", L, 9, 0) == where: touch_w2h(dst + "3" if dst else "v31", 0)
    if optL("T2G", L, 0, 0) == where: touch_w2h(dst + "3" if dst else "v31", 14)

def split2(dst, src, t0):
    a(f"v_cvt_pk_bf16_f32 v{t0}, v{src}, v{src}")
    a(f"v_and_b32 v{t0}, 0xffff0000, v{t0}")
    a(f"v_sub_f32 v{dst}, v{src}, v{t0}")
    a(f"v_cvt_pk_bf16_f32 v{dst}, v{t0}, v{dst}")

def stats_to_frags(S, Q, RA):
    a(f"v_mul_f32 v{S}, {fl(-1/512)}, v{S}")
    a(f"v_mul_f32 v{Q}, {fl(1/512)}, v{Q}")
    a(f"v_cmp_eq_u32 vcc, 0, v{vHH}")
    a(f"v_fma_f32 v{Q}, -v{S}, v{S}, v{Q}")
    a(f"v_max_f32 v{Q}, 0, v{Q}")
    a(f"v_add_f32 v{Q}, {fl(1e-5)}, v{Q}")
    a(f"v_rsq_f32 v{vRS}, v{Q}")
    a(f"v_cndmask_b32 v{S}, 0, v{S}, vcc")
    a(f"v_cvt_pk_bf16_f32 v{MA}, v{S}, v{S}")
    a(f"v_cndmask_b32 v{Q}, 0, v{vRS}, vcc")
    a(f"v_and_b32 v{vT0}, 0xffff0000, v{MA}")
    a(f"v_sub_f32 v{S}, v{S}, v{vT0}")
    a(f"v_cvt_pk_bf16_f32 v{MA+1}, v{S}, v{S}")
    split2(RA, Q, vT0)

def stats_check(SB):
    a(f"v_max3_u32 v{vT3}, v{SB+1}, v{SB+3}, v{SB+5}")
    a(f"v_max3_u32 v{vT3}, v{vT3}, v{SB+7}, v{SB+9}")
    a(f"v_max3_u32 v{vT3}, v{vT3}, v{SB+11}, v{SB+13}")
    a(f"v_max_u32 v{vT3}, v{vT3}, v{SB+15}")
    a(f"v_cmp_eq_u32 vcc, -1, v{vT3}")
def stats_sum(SB):
    for n in (4, 2, 1):
        for p in range(n): pk("add", SB+2*p, vr(SB+2*p,2), vr(SB+2*(p+n),2))
    a(f"v_mov_b32 v{SB+2}, v{SB}")
    a(f"v_mov_b32 v{SB+3}, v{SB+1}")
    a(f"v_permlane32_swap_b32 v{SB}, v{SB+2}")
    a(f"v_permlane32_swap_b32 v{SB+1}, v{SB+3}")
    pk("add", SB, vr(SB,2), vr(SB+2,2))

@contextmanager
def rare(skip):
    if opt("A1OOL", 1):
        l = a.newlabel("RED")
        a(f"s_cmp_lt_u32 s{sRED}, 64")
        a(f"s_cbranch_scc1 {l}")
        with cold(l, skip): yield
    else:
        a(f"s_cmp_ge_u32 s{sRED}, 64")
        a(f"s_cbranch_scc1 {skip}")
        with cond(): yield
A1B = 128
def a1_issue():
    a(f"s_mov_b32 s{sT3}, s{sKB}")
    for p in range(16):
        a(f"buffer_load_dwordx4 {vr(A1B+4*p,4)}, v{vL16}, {sr(SWS,4)}, s{sT3} offen offset:{(p&1)*2560} sc1")
        if p & 1 and p < 15: a(f"s_add_u32 s{sT3}, s{sT3}, {2*2560}")
def a1_early(L):
    skip = a.newlabel("NOA1E")
    with rare(skip):
        a(f"s_lshr_b32 s{sKB}, s{sRED}, 2")
        a(f"s_mul_i32 s{sKB}, s{sKB}, {16*2560}")
        a(f"s_and_b32 s{sT2}, s{sRED}, 3")
        a(f"s_mul_i32 s{sT2}, s{sT2}, 640")
        a(f"s_add_u32 s{sKB}, s{sKB}, s{sT2}")
        a(f"s_add_u32 s{sKB}, s{sKB}, {KVP[L]:#x}")
        if opt("A1C", 0):
            a(f"v_and_b32 v{vT1}, 15, v{vL}")
            a(f"v_mul_u32_u24 v{vT1}, 2560, v{vT1}")
            a(f"buffer_load_dword v{vT3}, v{vT1}, {sr(SWS,4)}, s{sKB} offen offset:544 sc1")
        else:
            set_exec((1 << 35) - 1)
            a1_issue()
            set_exec(FULL)
    a.label(skip)
def a1_check():
    B = A1B
    a(f"v_max3_u32 v{vT3}, v{B}, v{B+4}, v{B+8}")
    a(f"v_min3_u32 v{vT1}, v{B}, v{B+4}, v{B+8}")
    for p in range(3, 15, 2):
        a(f"v_max3_u32 v{vT3}, v{vT3}, v{B+4*p}, v{B+4*p+4}")
        a(f"v_min3_u32 v{vT1}, v{vT1}, v{B+4*p}, v{B+4*p+4}")
    a(f"v_max_u32 v{vT3}, v{vT3}, v{B+60}")
    a(f"v_min_u32 v{vT1}, v{vT1}, v{B+60}")
    a(f"v_cmp_eq_u32 vcc, -1, v{vT3}")
    a(f"v_readlane_b32 s{sT0}, v{vT3}, 34")
    a(f"v_readlane_b32 s{sT1}, v{vT1}, 34")
    a(f"s_xor_b32 s{sT0}, s{sT0}, s{sNON}")
    a(f"s_xor_b32 s{sT1}, s{sT1}, s{sNON}")
    a(f"s_or_b32 s{sT0}, s{sT0}, s{sT1}")
    a(f"s_or_b32 vcc_lo, vcc_lo, s{sT0}")
    a(f"s_or_b64 vcc, vcc, vcc")
def a1_mid(younger):
    skip = a.newlabel("NOA1M"); ok = a.newlabel("A1MOK")
    a(f"s_cmp_ge_u32 s{sRED}, 64")
    a(f"s_cbranch_scc1 {skip}")
    with cond():
        set_exec((1 << 35) - 1)
        a(f"s_waitcnt vmcnt({younger})")
        a1_check()
        a(f"s_cbranch_vccz {ok}")
        a1_issue()
        a.label(ok)
        set_exec(FULL)
    a.label(skip)
def a1(L, younger):
    a.c("======== A1 reducer")
    skip = a.newlabel("NOA1")
    with rare(skip):
        B = A1B
        a(f"s_mul_i32 s{sT2}, s{sRED}, 384")
        a(f"s_add_u32 s{sT2}, s{sT2}, {KVF[L]:#x}")
        a(f"v_lshlrev_b32 v{vT2}, 3, v{vL}")
        set_exec((1 << 35) - 1)
        def check():
            a(f"v_max3_u32 v{vT3}, v{B}, v{B+4}, v{B+8}")
            a(f"v_min3_u32 v{vT1}, v{B}, v{B+4}, v{B+8}")
            for p in range(3, 15, 2):
                a(f"v_max3_u32 v{vT3}, v{vT3}, v{B+4*p}, v{B+4*p+4}")
                a(f"v_min3_u32 v{vT1}, v{vT1}, v{B+4*p}, v{B+4*p+4}")
            a(f"v_max_u32 v{vT3}, v{vT3}, v{B+60}")
            a(f"v_min_u32 v{vT1}, v{vT1}, v{B+60}")
            a(f"v_cmp_eq_u32 vcc, -1, v{vT3}")
            a(f"v_readlane_b32 s{sT0}, v{vT3}, 34")
            a(f"v_readlane_b32 s{sT1}, v{vT1}, 34")
            a(f"s_xor_b32 s{sT0}, s{sT0}, s{sNON}")
            a(f"s_xor_b32 s{sT1}, s{sT1}, s{sNON}")
            a(f"s_or_b32 s{sT0}, s{sT0}, s{sT1}")
            a(f"s_or_b32 vcc_lo, vcc_lo, s{sT0}")
            a(f"s_or_b64 vcc, vcc, vcc")
        a.vm_done = min(a.vm_done, a.vm - younger - 1)
        if opt("A1C", 0):
            poll(lambda: a(f"buffer_load_dword v{vT3}, v{vT1}, {sr(SWS,4)}, s{sKB} offen offset:544 sc1"),
                 lambda: a(f"v_cmp_ne_u32 vcc, s{sNON}, v{vT3}"), 0x21, pre=a.vm - younger - 1)
            poll(a1_issue, check, 0x20)
        else:
            poll(a1_issue, check, 0x20, pre=a.vm - younger - 1)
        n = 16
        while n > 1:
            n //= 2
            for p in range(n):
                for j in (0, 2): pk("add", B+4*p+j, vr(B+4*p+j,2), vr(B+4*(p+n)+j,2))
        a(f"v_cvt_pk_bf16_f32 v{B+4}, v{B}, v{B+1}")
        a(f"v_cvt_pk_bf16_f32 v{B+5}, v{B+2}, v{B+3}")
        a(f"v_mov_b32_dpp v{B+6}, v{B+4} quad_perm:[1,1,3,3] row_mask:0xf bank_mask:0xf")
        a(f"v_mov_b32_dpp v{B+7}, v{B+5} quad_perm:[1,1,3,3] row_mask:0xf bank_mask:0xf")
        a(f"v_writelane_b32 v{B+4}, s{sNON}, 34")
        set_exec(0x555555555555)
        a(f"buffer_store_dwordx4 {vr(B+4,4)}, v{vT2}, {sr(SWS,4)}, s{sT2} offen sc1")
        set_exec(FULL)
        a("s_nop 1")
    a.label(skip)
    stamp("a1")

XF = 128
def KS(s): return 4 * ((s & 15) >> 1) + (s & 1) + 2 * (s >> 4)
def XFR(L, s): return XF + 4 * (((s + 16) & 31) if L == 1 else s)
xid1 = {}
def xa_XL(s):
    jj = s & 15
    if jj == 0: a(f"s_mov_b32 s{sSO}, s{sT4}")
    elif jj == 8: a(f"s_xor_b32 s{sSO}, s{sT4}, 16384")
    elif jj & 1 == 0: a(f"s_add_u32 s{sSO}, s{sSO}, 4096")
    xid1[s] = a(f"buffer_load_dwordx4 {vr(XFR(1,s),4)}, v{vL16}, {sr(SWS,4)}, s{sSO} offen offset:{(KS(s)&3)*1024} sc1")
vXC = MA + 1
def xa_ci(): return a(f"buffer_load_dword v{vT3}, v{vXC}, {sr(SWS,4)}, s{sAX2R} offen offset:1020 sc1")
def xa_start():
    a(f"s_and_b32 s{sT5}, s{sROTX}, {opt('XROT', 1)}")
    a(f"s_lshl_b32 s{sT5}, s{sT5}, 14")
    a(f"s_add_u32 s{sT4}, s{sAX2R}, s{sT5}")
    a(f"v_and_b32 v{vXC}, 15, v{vL}")
    a(f"v_lshrrev_b32 v{MA+3}, 1, v{vXC}")
    a(f"v_and_b32 v{vXC}, 1, v{vXC}")
    a(f"v_lshlrev_b32 v{vXC}, 10, v{vXC}")
    a(f"v_lshl_add_u32 v{vXC}, v{MA+3}, 12, v{vXC}")
    G["xcid"] = xa_ci()
    for s in range(opt("LA1", 8)): xa_XL(s)
def p1(L):
    ACCK, ACCV, RR = 32, 48, 64
    VV, PK, T1 = 80, 88, 96
    S0, S1, Q0, Q1 = 80, 81, 82, 83
    CF = 84
    CFV, CFQ, RA = 112, 116, 120
    vTQ, vTV = 124, 125
    vW, vXA, vXB = 126, 127, 96
    vCQ, vCV = 97, 98
    vOA, vOB = vTA, vTB
    vTQ2, vTV2 = vTA, vTB
    vKW, vKR = 92, 93
    XA = 88
    vKW2, vKR2 = vT2, 127
    POI = 100
    WFR = 216; NWF = 4; ONESF = 248; CG = 200; CK, CV, CQ = 152, 168, 184
    a.c(f"======== P1 layer {L}")
    xid = {}; wid = {}
    toff = 256
    def addr_setup():
        if L == 0:
            a(f"v_bfe_u32 v{vT0}, v{vL}, 2, 2")
            a(f"v_lshl_add_u32 v{vT0}, v{vHH}, 3, v{vT0}")
            a(f"v_lshlrev_b32 v{vTQ}, 6, v{vT0}")
            a(f"v_bfe_u32 v{vT1}, v{vL}, 4, 1")
            a(f"v_lshl_add_u32 v{vTQ}, v{vT1}, 5, v{vTQ}")
            a(f"v_and_b32 v{vT1}, 3, v{vL}")
            a(f"v_lshl_add_u32 v{vTQ}, v{vT1}, 3, v{vTQ}")
        else:
            a(f"s_and_b32 s{sT5}, s{sROTX}, {opt('XROT', 1)}")
            a(f"s_lshl_b32 s{sT5}, s{sT5}, 14")
            a(f"v_add_u32 v{vTQ}, s{sT5}, v{vL16}")
            a(f"v_xor_b32 v{vTQ2}, 16384, v{vTQ}")
            a(f"v_add_u32 v{vTV2}, 65536, v{vTQ2}")
        a(f"v_add_u32 v{vTV}, 65536, v{vTQ}")
        for i in range(4): a(f"v_accvgpr_write_b32 a{ONESF+i}, s{sONES}")
        for r in ([MA + 2, MA + 3] if L == 0 else []) + [RA + 1, RA + 2, RA + 3, CF + 2, CF + 3, CFV + 2, CFV + 3, CFQ + 2, CFQ + 3]: a(f"v_mov_b32 v{r}, 0")
    def kv_addr():
        a(f"v_bfe_u32 v{vT0}, v{vL}, 4, 1")
        a(f"v_lshl_add_u32 v{vT0}, v{vT0}, 1, v{vHH}")
        a(f"v_mul_u32_u24 v{vT0}, 17, v{vT0}")
        a(f"v_and_b32 v{vT1}, 15, v{vL}")
        a(f"v_add_u32 v{vT0}, v{vT0}, v{vT1}")
        a(f"v_lshlrev_b32 v{vT0}, 5, v{vT0}")
        a(f"v_add_u32 v{vKW2}, s{sWA}, v{vT0}")
        a(f"s_mul_i32 s{sT0}, s{sW}, 544")
        a(f"s_add_u32 s{sT0}, s{sT0}, {L_A + SCR}")
        a(f"v_add_u32 v{vKR2}, s{sT0}, v{vL16}")
    rg = {}
    def RG(s):
        b = WFR + (s % NWF) * 8
        if L == 0:
            o = s * 1024
            a(f"ds_read_b64_tr_b16 {ar(b,2)}, v{vTQ} offset:{32768+o}")
            a(f"ds_read_b64_tr_b16 {ar(b+2,2)}, v{vTQ} offset:{32768+o+toff}")
            a(f"ds_read_b64_tr_b16 {ar(b+4,2)}, v{vTV} offset:{o}")
            rg[s] = a(f"ds_read_b64_tr_b16 {ar(b+6,2)}, v{vTV} offset:{o+toff}")
        else:
            o = (KS(s) & 15) * 1024
            q_, v_ = (vTQ2, vTV2) if KS(s) >= 16 else (vTQ, vTV)
            a(f"ds_read_b128 {ar(b,4)}, v{q_} offset:{32768+o}")
            rg[s] = a(f"ds_read_b128 {ar(b+4,4)}, v{v_} offset:{o}")
    if L == 0:
        a(f"v_lshrrev_b32 v{vT0}, 2, v{vL}")
        a(f"s_lshl_b32 s{sT0}, s{sW}, 4")
        a(f"v_add_u32 v{vT0}, s{sT0}, v{vT0}")
        a(f"v_mul_u32_u24 v{vW}, 3072, v{vT0}")
        a(f"v_and_b32 v{vT0}, 3, v{vL}")
        a(f"v_lshl_add_u32 v{vW}, v{vT0}, 4, v{vW}")
        a(f"s_lshl_b32 s{sT0}, s{sHP}, 6")
        a(f"v_add_u32 v{vW}, s{sT0}, v{vW}")
        lin(sT0, [(sRB, 131072), (sW, 32768)])
        a(f"v_lshrrev_b32 v{vT0}, 3, v{vL}")
        a(f"v_lshlrev_b32 v{vT0}, 10, v{vT0}")
        a(f"v_add_u32 v{vT0}, s{sT0}, v{vT0}")
        a(f"v_and_b32 v{vT1}, 7, v{vL}")
        a(f"v_lshrrev_b32 v{vT2}, 4, v{vL}")
        a(f"v_xor_b32 v{vT1}, v{vT1}, v{vT2}")
        a(f"v_lshl_add_u32 v{vXA}, v{vT1}, 4, v{vT0}")
        a(f"v_xor_b32 v{vXB}, 64, v{vXA}")
        a(f"v_add_u32 v{vXB}, {8192-1024}, v{vXB}")
        a("s_waitcnt lgkmcnt(0)")
        srd(SX, sKA + 0, 2048 * 512 * 2)
        srd(SWQKV, sKA + 2, 512 * 1536 * 2)
        def x_issue(j):
            a(f"s_add_u32 s{sKB}, s{sRX0}, {j}")
            a(f"s_and_b32 s{sKB}, s{sKB}, 7")
            a(f"s_lshl_b32 s{sT1}, s{sKB}, 7")
            a(f"s_add_u32 m0, s{sWB}, {(j&3)*4096}")
            a(f"s_mul_i32 s{sSO}, s{sKB}, {64*3072}")
            a(f"buffer_load_dwordx4 v{vXA}, {sr(SX,4)}, s{sT1} offen lds")
            a(f"buffer_load_dwordx4 v{vXB}, {sr(SX,4)}, s{sT1} offen offset:1024 lds")
            a(f"s_add_u32 m0, s{sWB}, {(j&3)*4096+2048}")
            a(f"s_add_u32 s{sT1}, s{sT1}, 16384")
            a(f"buffer_load_dwordx4 v{vXA}, {sr(SX,4)}, s{sT1} offen lds")
            xid[j] = a(f"buffer_load_dwordx4 v{vXB}, {sr(SX,4)}, s{sT1} offen offset:1024 lds")
        def w_issue(j):
            for seg in (1, 2, 0):
                a(f"s_add_u32 m0, s{sW1K}, {seg*32768 - seg*1024 + j*4096}")
                wid[j] = a(f"buffer_load_dwordx4 v{vW}, {sr(SWQKV,4)}, s{sSO} offen offset:{seg*1024} lds")
        def wo_issue(c):
            for k in range(2):
                j = 2 * c + k
                a(f"s_add_u32 m0, s{sWB}, {j*2048}")
                if j == 0: a(f"s_lshl_b32 s{sSO}, s{sW}, 17")
                else: a(f"s_add_u32 s{sSO}, s{sSO}, 16384")
                a(f"buffer_load_dwordx4 v{vOA}, {sr(SWO,4)}, s{sSO} offen lds")
                G["wo"] = a(f"buffer_load_dwordx4 v{vOB}, {sr(SWO,4)}, s{sSO} offen offset:1024 lds")
        x_issue(0); w_issue(0)
        srd(SWS, 100, WS_BYTES)
        a(f"buffer_load_dword v{vKW}, off, {sr(SWS,4)}, 0 offset:{NONCE} sc1")
        roles2()
        late_srds()
        x_issue(1); w_issue(1)
        touch_wo("a254")
        code_prefetch()
        touches(0, 6)
        for i in range(4): a(f"v_mov_b32 v{POI+i}, -1")
        addresses()
        addr_setup()
        a(f"v_add_u32 v{vCQ}, s{sW1K}, v{vTQ}")
        a(f"v_add_u32 v{vCV}, s{sW1K}, v{vTV}")
        for r in (S0, S1, Q0, Q1): a(f"v_mov_b32 v{r}, 0")
        a(f"v_and_b32 v{vT0}, 31, v{vL}")
        a(f"v_bfe_u32 v{vT1}, v{vL}, 1, 3")
        a(f"v_xor_b32 v{vT1}, v{vT1}, v{vHH}")
        a(f"v_lshlrev_b32 v{vT0}, 7, v{vT0}")
        a(f"v_add_u32 v{vT0}, s{sWB}, v{vT0}")
        for t in range(4):
            a(f"v_xor_b32 v{vT2}, {2*t}, v{vT1}")
            a(f"v_lshl_add_u32 v{XA+t}, v{vT2}, 4, v{vT0}")
        a(f"s_lshl_b32 s{sT4}, s{sDT}, 7")
        dma_voff(vOA, vOB, 1024, sT4)
        tr_base(vWTA, vWTB, sRH, None, f"s{sWA}")
        pump.setup(1, 0)
        SCHED = {0: {0: [2, 3], 1: [4, 5], 2: [6], 3: [7]}, 1: {0: [2], 1: [3, 4], 2: [5, 6], 3: [7]}, 2: {0: [2, 3, 4], 1: [5], 2: [6], 3: [7]},
                 3: {0: [2], 1: [3], 2: [4], 3: [5], 4: [6], 5: [7]}, 4: {0: [2, 3], 1: [4], 2: [5], 3: [6], 4: [7]}}[opt("SCHED", 0)]
        JL = max(SCHED)
        cgid = {}
        def CGr(j):
            o = j * 4096
            a(f"ds_read_b64_tr_b16 {ar(CG,2)}, v{vCQ} offset:{32768+o}")
            a(f"ds_read_b64_tr_b16 {ar(CG+2,2)}, v{vCQ} offset:{32768+o+toff}")
            a(f"ds_read_b64_tr_b16 {ar(CG+4,2)}, v{vCV} offset:{o}")
            a(f"ds_read_b64_tr_b16 {ar(CG+6,2)}, v{vCV} offset:{o+toff}")
            a(f"ds_read_b64_tr_b16 {ar(CG+8,2)}, v{vCQ} offset:{o}")
            cgid[j] = a(f"ds_read_b64_tr_b16 {ar(CG+10,2)}, v{vCQ} offset:{o+toff}")
        def colsum(j):
            a.wait(lg=cgid[j])
            for k, c in enumerate((CK, CV, CQ)):
                mfma(ar(c,16), ar(ONESF,4), ar(CG+4*k,4), "0" if j == 0 else ar(c,16))
        def xreads(j):
            a.wait(vm=xid[j])
            return [a(f"ds_read_b128 {vr(XF+16*j+4*t,4)}, v{XA+t} offset:{(j&3)*4096}") for t in range(4)]
        xr = xreads(0)
        a.wait(vm=wid[0])
        a("s_barrier")
        stamp("p1_first")
        CGr(0); RG(0); RG(1); RG(2)
        colsum(0)
        CPY = 104; CS4 = 96
        initld = None
        for j in range(8):
            for t in range(4):
                a.wait(lg=xr[t])
                for k in range(4 if not opt("XNOD", 0) else 0):
                    r = XF + 16 * j + 4 * t + k
                    a(f"v_dot2_f32_bf16 v{S0+(k&1)}, v{r}, s{sONES}, v{S0+(k&1)}")
                    a(f"v_dot2_f32_bf16 v{Q0+(k&1)}, v{r}, v{r}, v{Q0+(k&1)}")
            if j == 7:
                a(f"s_lshr_b32 s{sT0}, s{sRB}, 1")
                a(f"s_sub_u32 s{sT0}, s{sT0}, s{sRX0}")
                a(f"s_and_b32 s{sT0}, s{sT0}, 7")
                a(f"s_cmp_eq_u32 s{sT0}, 0")
                a(f"s_cselect_b32 s{sT1}, 4096, 0")
                a(f"s_add_u32 s{sT1}, s{sT1}, {L_A}")
                a(f"v_add_u32 v{vT1}, s{sT1}, v{vL16}")
                a(f"v_add_u32 v{vT0}, s{sW1K}, v{vT1}")
                a(f"v_accvgpr_read_b32 v{CS4}, a{CK}")
                a(f"v_accvgpr_read_b32 v{CS4+1}, a{CV}")
                a(f"v_accvgpr_read_b32 v{CS4+2}, a{CQ}")
                cw = a(f"ds_write_b128 v{vT0}, {vr(CS4,4)}")
            for s in range(4 * j, 4 * j + 4):
                t = s & 3
                a.wait(lg=rg[s])
                b = WFR + (s % NWF) * 8
                x = vr(XF + 4 * s, 4)
                mfma(vr(ACCK,16), x, ar(b,4), "0" if s == 0 else vr(ACCK,16))
                if s + 3 < 32: RG(s + 3)
                if t == 1 and j < 7 and not opt("XNOC", 0): CGr(j + 1)
                if t == 2 and j < 7: xr = xreads(j + 1)
                if j == 7 and t == 1:
                    for w in range(4): cr = a(f"ds_read_b128 {vr(RR+4*w,4)}, v{vT1} offset:{1024*w}")
                    a(f"s_lshl_b32 s{sT0}, s{sT0}, 12")
                    a(f"s_and_b32 s{sT1}, s{sRB}, 1")
                    a(f"s_lshl_b32 s{sT1}, s{sT1}, 11")
                    a(f"s_add_u32 s{sT0}, s{sT0}, s{sT1}")
                    a(f"s_min_u32 s{sT2}, s{sW}, 2")
                    a(f"s_lshl_b32 s{sT2}, s{sT2}, 15")
                    a(f"s_add_u32 s{sT0}, s{sT0}, s{sT2}")
                    a(f"v_lshlrev_b32 v{vT1}, 8, v{vHH}")
                    a(f"v_sub_u32 v{vT0}, v{vTQ}, v{vT1}")
                    a(f"v_add_u32 v{vT0}, s{sT0}, v{vT0}")
                    for k in range(4): cp = a(f"ds_read_b64_tr_b16 {vr(CPY+2*k,2)}, v{vT0} offset:{512*k}")
                if j == 7 and t == 2:
                    a.wait(lg=cr)
                    for k in range(3):
                        a(f"v_add_f32 v{RR+k}, v{RR+k}, v{RR+4+k}")
                        a(f"v_add_f32 v{RR+8+k}, v{RR+8+k}, v{RR+12+k}")
                if j == 7 and t == 3:
                    split2(CKP, RR, vT0)
                    split2(CVP, RR + 1, vT1)
                mfma(vr(ACCV,16), x, ar(b+4,4), "0" if s == 0 else vr(ACCV,16))
                if t == 0:
                    if j < 7: a.wait(vm=wid[j + 1])
                    else: a.wait(lg=cw)
                    a("s_barrier")
                    if j == 1:
                        a(f"v_add_u32 v{vKW}, 1, v{vKW}")
                        a(f"v_and_b32 v{vKW}, 0x3fffffff, v{vKW}")
                        a(f"v_or_b32 v{vKW}, 0x40000000, v{vKW}")
                        a(f"v_readfirstlane_b32 s{sNON}, v{vKW}")
                if t <= 2 and j in SCHED and t < len(SCHED[j]):
                    x_issue(SCHED[j][t]); w_issue(SCHED[j][t])
                if t == 1 and j >= 4 and opt("WOP", 1) == 0: wo_issue(j - 4)
                if t == 3 and j == JL:
                    if opt("MISC", 0) == 0: misc_loads()
                    touches(0, 8)
                if t == 1 and j == 6 and opt("MISC", 0) == 1: misc_loads()
                if t == 3 and opt("SLOTST", 0) and j in (1, 3, 6): stamp(f"it{j}")
                if t == 2:
                    if j == 3: touches(0, 7)
                    if j == opt("POJ", 2):
                        st_poison(POI); kv_poison(POI, 0); canary_poison(POI)
                    if j == 6: kv_addr()
                    if j == opt("POJ", 2) + 1:
                        tile_poison(POI, sAPQW, 0, 1024); initld = a.vm - 1
                    if j == 7:
                        for k in range(3): a(f"v_add_f32 v{RR+k}, v{RR+k}, v{RR+8+k}")
                        a(f"s_lshl_b32 s{sT1}, s{sRB}, 11")
                        a(f"s_add_u32 s{sT3}, s{sAWQT}, s{sT2}")
                        a(f"s_add_u32 s{sT3}, s{sT3}, s{sT1}")
                        a.wait(lg=cp)
                        ws_store4(CPY, sT3); ws_store4(CPY + 4, sT3, 1024)
                if t == 3 and j < 7 and not opt("XNOC", 0): colsum(j + 1)
        stamp("p1_gemm")
        a(f"v_add_f32 v{S0}, v{S0}, v{S1}")
        a(f"v_add_f32 v{Q0}, v{Q0}, v{Q1}")
        a(f"v_mov_b32 v{S1}, v{S0}")
        a(f"v_mov_b32 v{Q1}, v{Q0}")
        for c, p in ((CF, CKP), (CFV, CVP)):
            a(f"v_mov_b32 v{c}, v{p}"); a(f"v_mov_b32 v{c+1}, v{p}")
        a(f"v_permlane32_swap_b32 v{S0}, v{S1}")
        a(f"v_permlane32_swap_b32 v{Q0}, v{Q1}")
        a(f"v_add_f32 v{S0}, v{S0}, v{S1}")
        a(f"v_add_f32 v{Q0}, v{Q0}, v{Q1}")
        split2(CQP, RR + 2, vT1)
        stats_to_frags(S0, Q0, RA)
        mfma(vr(ACCK,16), vr(MA,4), vr(CF,4), vr(ACCK,16))
        mfma(vr(RR,16), vr(RA,4), ar(ONESF,4), "0")
        mfma(vr(ACCV,16), vr(MA,4), vr(CFV,4), vr(ACCV,16))
        touches(0, 1)
    else:
        xid = xid1; XL = xa_XL; ci = xa_ci
        LA = opt("LA1", 8)
        vMX = vW
        cc = lambda: a(f"v_cmp_eq_u32 vcc, -1, v{vT3}")
        def windowa():
            for s in range(LA): XL(s)
        def windowb():
            for s in range(16, 16 + LA): XL(s)
        if opt("XE", 0) == 0: xa_start()
        cid = max(G["xcid"], G["kvlast"])
        addr_setup()
        next_layer_addresses()
        for c, p in ((CF, CKP), (CFV, CVP)):
            a(f"v_mov_b32 v{c}, v{p}"); a(f"v_mov_b32 v{c+1}, v{p}")
        a(f"v_and_b32 v{vT0}, 31, v{vL}")
        a(f"v_lshlrev_b32 v{vT0}, 3, v{vT0}")
        a(f"v_lshl_add_u32 v{PK+1}, v{vHH}, 12, v{vT0}")
        a(f"s_lshl_b32 s{sT2}, s{sW}, 13")
        a(f"s_add_u32 s{sKB}, s{sAWQT}, s{sT2}")
        a(f"s_mov_b32 s{sT1}, s{sT4}")
        pump.setup(1, 1)
        a(f"s_mov_b32 s{sT4}, s{sT1}")
        a(f"v_mov_b32 v{MA+2}, 0"); a(f"v_mov_b32 v{MA+3}, 0")
        go = a.newlabel("XGO"); redo = a.newlabel("XREDO")
        IDMAPS.append(xid)
        a.wait(vm=cid)
        cc()
        keep = snapshot_ids()
        fallback(ci, cc, 0x41, windowa, "fb41")
        restore_ids(keep)
        a("s_barrier")
        stamp("p1_flag")
        with cold(redo, go):
            windowa()
            a("s_waitcnt vmcnt(0)")
        restore_ids(keep)
        a.label(go)
        RG(0); RG(1); RG(2)
        a(f"v_mov_b32 v{vMX}, 0")
        a(f"s_mov_b32 s{sT3}, s{sKB}")
        SB = T1
        def issue():
            for p in range(8): a(f"buffer_load_dwordx2 {vr(SB+2*p,2)}, v{PK+1}, {sr(SWS,4)}, s{sAS2R} offen offset:{p*512} sc1")
        qid = None
        LA = opt("LA1", 8)
        ZS = opt("ZS", 13); nb = [16]
        assert ZS + LA >= 16
        for s in range(32):
            if s == 16:
                stamp("p1_a")
                if ZS < 16:
                    a.wait(vm=sid)
                    stats_check(SB)
                    keep = snapshot_ids()
                    fallback(issue, lambda: stats_check(SB), 0x40, windowb, "fb40", last=(xid[16], xid[16 + LA - 1]))
                    restore_ids(keep)
                else:
                    spec(issue, lambda: stats_check(SB), windowb, 0x40, a.newlabel("XR0"))
                stamp("p1_st2")
                stats_sum(SB)
                stats_to_frags(SB, SB + 1, RA)
                mfma(vr(RR,16), vr(RA,4), ar(ONESF,4), "0")
                mfma(vr(ACCK,16), vr(MA,4), vr(CF,4), vr(ACCK,16))
                mfma(vr(ACCV,16), vr(MA,4), vr(CFV,4), vr(ACCV,16))
            a.wait(vm=xid[s], lg=rg[s])
            b = WFR + (s % NWF) * 8
            x = vr(XFR(1, s), 4)
            mfma(vr(ACCK,16), x, ar(b,4), "0" if s == 0 else vr(ACCK,16))
            if s == ZS:
                issue(); sid = a.vm - 1
            if ZS < s < 16:
                per = -(-LA // (15 - ZS))
                for _ in range(per):
                    if nb[0] < 16 + LA: XL(nb[0]); nb[0] += 1
            if (s & 15) + LA < 16: XL(s + LA)
            if s >= 24:
                j = s - 24
                if j == 4: a(f"s_add_u32 s{sT3}, s{sT3}, 4096")
                if j & 3 == 0: a(f"s_add_u32 m0, s{sT2}, {j*1024}")
                qid = a(f"buffer_load_dwordx4 v{vL16}, {sr(SWS,4)}, s{sT3} offen offset:{(j&3)*1024} sc1 lds")
            mfma(vr(ACCV,16), x, ar(b+4,4), "0" if s == 0 else vr(ACCV,16))
            if s & 1: a(f"v_max3_u32 v{vMX}, v{vMX}, v{XFR(1,s-1)}, v{XFR(1,s)}")
            if s + 3 < 32: RG(s + 3)
            if s == 30: kv_addr()
        verify(vMX, redo)
        stamp("p1_gemm")
    for q in range(8): pk("fma", ACCK+2*q, vr(ACCK+2*q,2), vr(RR+2*q,2), sr(sEPS6,2), hi=[1,1,0])
    for q in range(8): pk("mul", T1+2*q, vr(ACCK+2*q,2), sr(sL2E,2), hi=[1,0])
    for i in range(16):
        a(f"v_exp_f32_e64 v{T1+i}, v{T1+i} clamp")
        a(f"v_max_f32 v{ACCK+i}, s{sEPS6}, v{ACCK+i}")
    for q in range(8): pk("add", ACCK+2*q, vr(ACCK+2*q,2), vr(T1+2*q,2))
    for q in range(8): a(f"v_cvt_pk_bf16_f32 v{PK+q}, v{ACCK+2*q}, v{ACCK+2*q+1}")
    ZA = T1
    for q in range(4): pk("mul", ACCV+2*q, vr(ACCV+2*q,2), vr(RR+2*q,2))
    for q in range(4, 8): pk("mul", ACCV+2*q, vr(ACCV+2*q,2), vr(RR+2*q,2))
    mfma(vr(ZA,16), vr(PK,4), ar(ONESF,4), "0")
    for q in range(4): a(f"v_cvt_pk_bf16_f32 v{VV+q}, v{ACCV+2*q}, v{ACCV+2*q+1}")
    mfma(vr(ZA,16), vr(PK+4,4), ar(ONESF,4), vr(ZA,16))
    for q in range(4, 8): a(f"v_cvt_pk_bf16_f32 v{VV+q}, v{ACCV+2*q}, v{ACCV+2*q+1}")
    KVA = RR
    a(f"v_and_b32 v{vT0}, 16, v{vL}")
    a(f"v_cmp_ne_u32 vcc, 0, v{vT0}")
    mfma(vr(KVA,16), vr(PK,4), vr(VV,4), "0")
    mfma(vr(KVA,16), vr(PK+4,4), vr(VV+4,4), vr(KVA,16))
    a("s_barrier")
    for j in range(8): a(f"v_cndmask_b32 v{ACCK+8+j}, v{ZA+j}, v{ZA+8+j}, vcc")
    set_exec(0x0001000100010001)
    a(f"ds_write_b128 v{vKW2}, {vr(ACCK+8,4)} offset:{SCR+512}")
    a(f"ds_write_b128 v{vKW2}, {vr(ACCK+12,4)} offset:{SCR+528}")
    set_exec(FULL)
    for j in range(4): a(f"v_cndmask_b32 v{ACCK+j}, v{KVA+j}, v{KVA+8+j}, vcc")
    a(f"ds_write_b128 v{vKW2}, {vr(ACCK,4)} offset:{SCR}")
    for j in range(4, 8): a(f"v_cndmask_b32 v{ACCK+j}, v{KVA+j}, v{KVA+8+j}, vcc")
    a(f"ds_write_b128 v{vKW2}, {vr(ACCK+4,4)} offset:{SCR+16}")
    if L == 0: a.wait(vm=initld)
    NQ = 8; QLA = 6
    rq = {}
    def RQ(s):
        b = WFR + (s % NQ) * 4
        if L == 0:
            a(f"ds_read_b64_tr_b16 {ar(b,2)}, v{vTQ} offset:{s*1024}")
            rq[s] = a(f"ds_read_b64_tr_b16 {ar(b+2,2)}, v{vTQ} offset:{s*1024+toff}")
        else:
            ks = KS((s + 16) & 31)
            rq[s] = a(f"ds_read_b128 {ar(b,4)}, v{vTQ2 if ks >= 16 else vTQ} offset:{(ks&15)*1024}")
    QB = L == 1 and opt("QB", 1)
    if L == 1 and not QB: a.wait(vm=qid)
    a.wait_lg_all()
    a("s_barrier")
    for w in range(4): kr = a(f"ds_read_b128 {vr(RR+4*w,4)}, v{vKR2} offset:{16384*w}")
    if not QB:
        for s in range(QLA): RQ(s)
    a(f"v_mov_b32 v{CFQ}, v{CQP}"); a(f"v_mov_b32 v{CFQ+1}, v{CQP}")
    ACCQ = ACCK
    mfma(vr(ACCQ,16), vr(CFQ,4), vr(MA,4), "0")
    a.wait(lg=kr)
    for j in range(4): a(f"v_add_f32 v{RR+j}, v{RR+j}, v{RR+4+j}")
    for j in range(4): a(f"v_add_f32 v{RR+8+j}, v{RR+8+j}, v{RR+12+j}")
    for j in range(4): a(f"v_add_f32 v{RR+j}, v{RR+j}, v{RR+8+j}")
    set_exec((1 << 40) - 1)
    a(f"v_writelane_b32 v{RR}, s{sNON}, 34")
    ws_store4(RR, sAKVP)
    set_exec(FULL)
    stamp("p1_kvpub")
    if QB:
        a.wait(vm=qid)
        a("s_barrier")
        for s in range(QLA): RQ(s)
    touches(L, 2)
    nfill = optL("F0", L, 0, 0); assert nfill <= 6
    for s in range(32):
        a.wait(lg=rq[s])
        b = WFR + (s % NQ) * 4
        mfma(vr(ACCQ,16), ar(b,4), vr(XF+4*s,4), vr(ACCQ,16))
        if s + QLA < 32: RQ(s + QLA)
        if s % 3 == 1 and pump.i < pump.c + nfill: pump.fill(pump.i + 1)
        if L == 0 and opt("WOP", 1) == 1 and s % 8 == 0: wo_issue(s // 8)
        if optL("POIQ", L, 1, 1):
            if s == 2: set_poi(VV)
            if s == 3: tile_poison(VV, sAHTW, 0, 2048)
            if s == 6: tile_poison(VV, sAUW, 0, 1024)
        if s == opt("A1S", 31):
            a1_early(L); vm_a1 = a.vm
        if s == opt("A1M", 99):
            a1_mid(a.vm - vm_a1); vm_a1 = a.vm
    for h in range(2):
        for q in range(4*h, 4*h+4): pk("fma", ACCQ+2*q, vr(ACCQ+2*q,2), vr(vRS,2), sr(sEPS6,2), hi=[1,0,0])
        for q in range(4*h, 4*h+4): pk("mul", T1+2*q, vr(ACCQ+2*q,2), sr(sL2E,2), hi=[1,0])
        for i in range(8*h, 8*h+8):
            a(f"v_exp_f32_e64 v{T1+i}, v{T1+i} clamp")
            a(f"v_max_f32 v{ACCQ+i}, s{sEPS6}, v{ACCQ+i}")
        for q in range(4*h, 4*h+4): pk("add", ACCQ+2*q, vr(ACCQ+2*q,2), vr(T1+2*q,2))
        for q in range(4*h, 4*h+4): a(f"v_cvt_pk_bf16_f32 v{PK+q}, v{ACCQ+2*q}, v{ACCQ+2*q+1}")
        ws_store4(PK + 4 * h, sAPQW, 1024 * h)
        if opt("A1S", 31) == 32 + h:
            a1_early(L); vm_a1 = a.vm
    if L == 0:
        for k in range(4): a(f"v_mov_b32 v{T1+k}, s{sNON}")
        a(f"s_sub_u32 s{sT0}, s{sAPQW}, {PQ[0]:#x}")
        a(f"s_lshr_b32 s{sT0}, s{sT0}, 4")
        a(f"s_add_u32 s{sT0}, s{sT0}, {TAGQ:#x}")
        set_exec(0xff)
        ws_store4(T1, sT0)
        set_exec(FULL)
    stamp("p1_q")
    if opt("NS1", 6) > 6: a("s_barrier")
    a1(L, a.vm - vm_a1)
    if L == 0 and opt("MISC", 0) == 2: misc_loads()
    G["misc"] = a.vm - 1
    pump.fill(pump.c + optL("F1", L, 6, 5))
    touches(L, 3)

def row_stats_publish(soff, SM):
    a(f"v_dot2_f32_bf16 v{SM}, v{XR}, s{sONES}, 0")
    a(f"v_dot2_f32_bf16 v{SM+1}, v{XR}, v{XR}, 0")
    a(f"v_dot2_f32_bf16 v{SM+2}, v{XR+1}, s{sONES}, 0")
    a(f"v_dot2_f32_bf16 v{SM+3}, v{XR+1}, v{XR+1}, 0")
    for j in range(2, 8):
        o = 2 * (j & 1)
        a(f"v_dot2_f32_bf16 v{SM+o}, v{XR+j}, s{sONES}, v{SM+o}")
        a(f"v_dot2_f32_bf16 v{SM+o+1}, v{XR+j}, v{XR+j}, v{SM+o+1}")
    a(f"v_lshlrev_b32 v{vT0}, 3, v{vL}")
    pk("add", SM, vr(SM,2), vr(SM+2,2))
    a(f"v_mov_b32 v{SM+2}, v{SM}")
    a(f"v_mov_b32 v{SM+3}, v{SM+1}")
    a(f"v_permlane32_swap_b32 v{SM}, v{SM+2}")
    a(f"v_permlane32_swap_b32 v{SM+1}, v{SM+3}")
    pk("add", SM, vr(SM,2), vr(SM+2,2))
    a(f"s_mov_b32 exec_hi, 0")
    a(f"v_and_b32 v{SM+1}, 0x7fffffff, v{SM+1}")
    a(f"buffer_store_dwordx2 {vr(SM,2)}, v{vT0}, {sr(SWS,4)}, s{soff} offen sc1")
    set_exec(FULL)

def unpack_xr(XU):
    for j in range(8):
        a(f"v_lshlrev_b32 v{XU+2*j}, 16, v{XR+j}")
        a(f"v_and_b32 v{XU+2*j+1}, 0xffff0000, v{XR+j}")

def p2(L):
    a.c(f"======== P2 layer {L}")
    if opt("CRF", 0) & (8 << L): code_refetch(vr(60, 4))
    KF, QF = 128, 192
    ACC = 32; CR = 64; OF = 96; WF = 104; XU = 64
    vK, vKC, vMX = MA, MA + 1, MA + 2
    tr_base(vTA, vTB, None, sKH, L_B)
    a(f"s_lshl_b32 s{sT2}, s{sKH}, 15")
    a(f"v_add_u32 v{vTA}, s{sT2}, v{vTA}")
    a(f"v_add_u32 v{vTB}, s{sT2}, v{vTB}")
    a(f"v_and_b32 v{vT0}, 31, v{vL}")
    a(f"v_mul_u32_u24 v{vKC}, 384, v{vT0}")
    a(f"v_min_u32 v{vT0}, 16, v{vT0}")
    a(f"v_lshlrev_b32 v{vT0}, 4, v{vT0}")
    a(f"v_mul_u32_u24 v{vT1}, 384, v{vHH}")
    a(f"v_add_u32 v{vK}, v{vT0}, v{vT1}")
    a(f"v_and_b32 v{vT2}, 7, v{vL}")
    a(f"v_lshlrev_b32 v{vT2}, {11 if L else 7}, v{vT2}")
    if L == 0:
        a(f"s_sub_u32 s{sT0}, s{sAPQR}, {PQ[0]:#x}")
        a(f"s_lshr_b32 s{sT0}, s{sT0}, 4")
        a(f"s_add_u32 s{sT0}, s{sT0}, {TAGQ:#x}")
    pump.run(min(R1 + 5, optL("B1", L, 21, 21)), refill=bool(optL("B1R", L, 1, 1)))
    if optL("POIQ", L, 1, 1) == 0:
        set_poi(CR)
        tile_poison(CR, sAHTW, 0, 2048)
        tile_poison(CR, sAUW, 0, 1024)
    stamp("beta")
    def ldq():
        a(f"s_mov_b32 s{sT4}, s{sAPQR}")
        for j in range(16):
            a(f"buffer_load_dwordx4 {vr(QF+4*j,4)}, v{vL16}, {sr(SWS,4)}, s{sT4} offen offset:{(j&3)*1024} sc1")
            if j & 3 == 3 and j < 15: a(f"s_add_u32 s{sT4}, s{sT4}, 4096")
    if L == 1:
        ci = lambda: a(f"buffer_load_dword v{vT3}, v{vT2}, {sr(SWS,4)}, s{sAPQR} offen offset:2044 sc1")
        cc = lambda: a(f"v_cmp_eq_u32 vcc, -1, v{vT3}")
    else:
        ci = lambda: a(f"buffer_load_dword v{vT3}, v{vT2}, {sr(SWS,4)}, s{sT0} offen sc1")
        cc = lambda: a(f"v_cmp_ne_u32 vcc, s{sNON}, v{vT3}")
    spec(ci, cc, ldq, 0x36 + L, a.newlabel("PQR"), on=opt("SPEC", 15) & 4)
    stamp("p2_pqc")
    if L == 0:
        a.wait(vm=max(G['wo'], G['misc']))
        for q in range(2):
            a(f"v_permlane32_swap_b32 v{XR+4*q}, v{XR+4*q+2}")
            a(f"v_permlane32_swap_b32 v{XR+4*q+1}, v{XR+4*q+3}")
        a(f"v_lshlrev_b32 v{vB2}, 16, v{vB2}")
    pump.run(min(R1 + 5, pump.i), refill=False)
    pump.run(min(R1 + 5, optL("B2", L, 0, 0)), refill=False)
    pump.fill(pump.c + optL("FK", L, 0, 0))
    a(f"s_xor_b32 s{sT0}, s{sW}, 1")
    a(f"s_lshl_b32 s{sT0}, s{sT0}, 12")
    a(f"v_add_u32 v{vRS}, s{sT0}, v{vL16}")
    a.wait_lg_all()
    a("s_barrier")
    rw = {}
    def RW(j):
        b = WF + (j % 3) * 8
        a(f"ds_read_b64_tr_b16 {vr(b,2)}, v{vTA} offset:{j*2048}")
        a(f"ds_read_b64_tr_b16 {vr(b+2,2)}, v{vTA} offset:{j*2048+1024}")
        a(f"ds_read_b64_tr_b16 {vr(b+4,2)}, v{vTB} offset:{j*2048}")
        rw[j] = a(f"ds_read_b64_tr_b16 {vr(b+6,2)}, v{vTB} offset:{j*2048+1024}")
    lid = {}
    def LD(j):
        if j == 0: a(f"s_mov_b32 s{sSO}, s{sAKVF}")
        elif j & 3 == 0: a(f"s_add_u32 s{sSO}, s{sSO}, {4*768}")
        lid[j] = a(f"buffer_load_dwordx4 {vr(KF+4*j,4)}, v{vK}, {sr(SWS,4)}, s{sSO} offen offset:{(j&3)*768} sc1")
    PLA = optL("PLA", L, 10, 10)
    redo = a.newlabel("P2REDO"); redo2 = a.newlabel("P2REDO2")
    IDMAPS.append(lid)
    with cold(redo, redo2): ldq()
    def window():
        for j in range(PLA): LD(j)
    spec(lambda: a(f"buffer_load_dword v{vT3}, v{vKC}, {sr(SWS,4)}, s{sAKVF} offen offset:272 sc1"),
         lambda: a(f"v_cmp_ne_u32 vcc, s{sNON}, v{vT3}"), window, 0x38 + L, redo2, on=opt("SPEC", 15) & 2)
    stamp("p2_kvc")
    if L == 0:
        sk = a.newlabel("NONW"); nw = a.newlabel("NONC")
        a(f"s_cmp_lg_u32 s{sWI}, 0")
        a(f"s_cselect_b32 s{sT0}, 1, s{sB}")
        a(f"s_cmp_eq_u32 s{sT0}, 0")
        a(f"s_cbranch_scc1 {nw}")
        with cold(nw, sk):
            a(f"v_mov_b32 v{vT0}, s{sNON}")
            set_exec(1)
            a(f"buffer_store_dword v{vT0}, off, {sr(SWS,4)}, 0 offset:{NONCE} sc1")
            set_exec(FULL)
        a.label(sk)
    RW(0); RW(1)
    a(f"v_mov_b32 v{vMX}, 0")
    def M1(j):
        a.wait(vm=lid[j])
        mfma(vr(CR+(j&1)*16,16), vr(KF+4*j,4), vr(QF+4*j,4), "0")
        a(f"v_max3_u32 v{vMX}, v{vMX}, v{KF+4*j}, v{QF+4*j}")
        if j + PLA < 16: LD(j + PLA)
        if j + PLA == 16: touches(L, 9)
    def Va(j):
        c = CR + (j & 1) * 16
        a(f"v_add_f32 v{c+8}, s{sEPS6}, v{c+8}")
        a(f"v_rcp_f32 v{c+8}, v{c+8}")
    def Vb(j):
        c = CR + (j & 1) * 16; o = OF + (j & 1) * 4
        for i in range(4): a(f"v_mul_f32 v{c+i}, v{c+i}, v{c+8}")
        for i in range(2): a(f"v_cvt_pk_bf16_f32 v{o+i}, v{c+2*i}, v{c+2*i+1}")
    def Vc(j):
        c = CR + (j & 1) * 16; o = OF + (j & 1) * 4
        for i in range(4, 8): a(f"v_mul_f32 v{c+i}, v{c+i}, v{c+8}")
        for i in range(2, 4): a(f"v_cvt_pk_bf16_f32 v{o+i}, v{c+2*i}, v{c+2*i+1}")
    M1(0); M1(1)
    Va(0); Vb(0); Vc(0); M1(2)
    nfp = optL("FP2", L, 6, 6)
    kb_saved = False
    for j in range(16):
        o = OF + (j & 1) * 4; b = WF + (j % 3) * 8
        if j + 1 < 16: Va(j + 1)
        a.wait(lg=rw[j])
        mfma(vr(ACC+16,16), vr(b+4,4), vr(o,4), "0" if j == 0 else vr(ACC+16,16))
        if j + 1 < 16: Vb(j + 1)
        mfma(vr(ACC,16), vr(b,4), vr(o,4), "0" if j == 0 else vr(ACC,16))
        if j + 1 < 16: Vc(j + 1)
        if j + 3 < 16: M1(j + 3)
        if j + 2 < 16: RW(j + 2)
    verify(vMX, redo)
    stamp("p2_main")
    lin(sT0, [(sFT, 128), (sRH, 64), (sKH, 32)])
    a(f"v_lshlrev_b32 v{vT0}, 3, v{vHH}")
    for q in range(2): a(f"buffer_load_dwordx2 {vr(152+2*q,2)}, v{vT0}, {sr(SB1,4)}, s{sT0} offen offset:{16*q}")
    for q, r in enumerate((ACC + 24, ACC + 28, ACC + 8, ACC + 12)): a(f"ds_write_b128 v{vRS}, {vr(r,4)} offset:{(q^2)*1024}")
    unpack_xr(XU)
    a(f"v_xor_b32 v{vT1}, 4096, v{vRS}")
    for q in range(4): pk("add", ACC+16+2*q, vr(ACC+16+2*q,2), vr(XU+8+2*q,2))
    for q in range(4): pk("add", ACC+2*q, vr(ACC+2*q,2), vr(XU+2*q,2))
    a.wait_lg_all()
    a("s_barrier")
    own = (ACC, ACC + 4, ACC + 16, ACC + 20)
    ids = [a(f"ds_read_b128 {vr(XU+4*q,4)}, v{vT1} offset:{q*1024}") for q in range(4)]
    for q in range(4):
        a.wait(lg=ids[q])
        pk("add", own[q], vr(own[q],2), vr(XU+4*q,2))
        pk("add", own[q]+2, vr(own[q]+2,2), vr(XU+4*q+2,2))
        a(f"v_cvt_pk_bf16_f32 v{XR+2*q}, v{own[q]}, v{own[q]+1}")
        a(f"v_cvt_pk_bf16_f32 v{XR+2*q+1}, v{own[q]+2}, v{own[q]+3}")
    row_stats_publish(sASTW, OF)
    stamp("p2_stpub")
    pump.run(pump.i, refill=False)
    pump.fill(pump.c + optL("GF", L, 6, 4))
    unpack_xr(XU)
    IDF = 104
    a(f"v_and_b32 v{vT0}, 31, v{vL}")
    a(f"v_lshlrev_b32 v{vT1}, 2, v{vHH}")
    a(f"v_sub_u32 v{vT0}, v{vT0}, v{vT1}")
    a(f"v_mov_b32 v{vT3}, 0x3f80")
    for f in range(2):
        for c in range(4):
            base = 16 * f + ((2 * c) & 3) + 8 * (c >> 1)
            a(f"v_subrev_u32 v{vT1}, {base}, v{vT0}")
            a(f"v_cmp_gt_u32 vcc, 2, v{vT1}")
            a(f"v_lshlrev_b32 v{vT1}, 4, v{vT1}")
            a(f"v_lshlrev_b32 v{vT2}, v{vT1}, v{vT3}")
            a(f"v_cndmask_b32 v{IDF+4*f+c}, 0, v{vT2}, vcc")
    SB = 128
    ht_voff(vRS)
    a(f"v_and_b32 v{vT0}, 31, v{vL}")
    a(f"v_lshlrev_b32 v{vT0}, 3, v{vT0}")
    a(f"v_lshl_add_u32 v{vT2}, v{vHH}, 12, v{vT0}")
    a(f"v_mov_b32 v{SB+18}, {fl(1.0+1e-5)}")
    def issue():
        for p in range(8): a(f"buffer_load_dwordx2 {vr(SB+2*p,2)}, v{vT2}, {sr(SWS,4)}, s{sASTR} offen offset:{p*512} sc1")
    if OPT.get(f"SL{0x34+L:x}", 0): a(f"s_sleep {OPT.get(f'SL{0x34+L:x}', 0)}")
    poll(issue, lambda: stats_check(SB), 0x34 + L)
    stamp("p2_stats")
    if optL("SF", L, 3, 3):
        pump.run(pump.i, refill=False)
        pump.fill(pump.c + optL("SF", L, 3, 3))
    stats_sum(SB)
    a(f"v_mul_f32 v{SB}, {fl(-1/512)}, v{SB}")
    a(f"v_mul_f32 v{SB+1}, {fl(1/512)}, v{SB+1}")
    a(f"v_fma_f32 v{SB+1}, -v{SB}, v{SB}, v{SB+1}")
    a(f"v_max_f32 v{SB+1}, 0, v{SB+1}")
    a(f"v_fmaak_f32 v{SB+1}, v{SB+1}, v{SB+18}, {fl(1e-10)}")
    a(f"v_rsq_f32 v{SB+2}, v{SB+1}")
    a(f"v_mul_f32 v{SB}, v{SB}, v{SB+2}")
    HP_ = 112
    for f in range(2):
        for j in range(4*f, 4*f+4):
            pk("fma", XU+2*j, vr(XU+2*j,2), vr(SB+2,2), vr(SB,2), hi=[1,0,0])
    for f in range(2):
        for j in range(4*f, 4*f+4):
            a(f"v_cvt_pk_bf16_f32 v{HP_+j}, v{XU+2*j}, v{XU+2*j+1}")
        mfma(vr(ACC,16), vr(HP_+4*f,4), vr(IDF+4*f,4), "0" if f == 0 else vr(ACC,16))
    for f in range(2):
        for j in range(4): a(f"v_cvt_pk_bf16_f32 v{ACC+16+4*f+j}, v{ACC+8*f+2*j}, v{ACC+8*f+2*j+1}")
        a(f"buffer_store_dwordx4 {vr(ACC+16+4*f,4)}, v{vRS}, {sr(SWS,4)}, s{sAHTW} offen offset:{2048*f} sc1")
    touches(L, 5)
    stamp(f"p2_{L}")

RING = 96; AUX = 144; NRH = 12
vR1, vR2, vR3, vRA = vT0, vT1, vT2, vRS
LKH = opt("LKH", 9)
class Half:
    def __init__(self, kind, hf, g0):
        self.kind, self.hf, self.g0 = kind, hf, g0
        self.nks, self.srot, self.sbase = (32, sROT1, sAHTR) if kind == 1 else (28, sROT2, sAUR)
        self.vA, self.vC = (vTA, MA + 1) if kind == 1 else (vTB, MA + 2)
        self.vMX = MA
        self.ids = {}; self.cid = None
        IDMAPS.append(self.ids)
    def rb(self, s): return RING + ((self.g0 + s) % NRH) * 4
    def LD(self, s):
        if s == 0: a(f"s_lshl_b32 s{sSO}, s{self.srot}, 11")
        elif s & 1 == 0:
            a(f"s_add_u32 s{sSO}, s{sSO}, 4096")
            a(f"s_cmp_eq_u32 s{sSO}, {self.nks*2048}")
            a(f"s_cselect_b32 s{sSO}, 0, s{sSO}")
        self.ids[s] = a(f"buffer_load_dwordx4 {vr(self.rb(s),4)}, v{self.vA}, {sr(SWS,4)}, s{sSO} offen offset:{(s&1)*2048+self.hf*1024} sc1")
    def window(self):
        for s in range(LKH): self.LD(s)
    def can_issue(self):
        off = 2048 + 1024 + 512 + 252 if self.kind == 1 else self.hf * 1024 + 1020
        self.cid = a(f"buffer_load_dword v{vT3}, v{self.vC}, {sr(SWS,4)}, s{self.sbase} offen offset:{off} sc1")
    def can_check(self): a(f"v_cmp_eq_u32 vcc, -1, v{vT3}")
    def MF(self, s, acc):
        A0 = 32 + 32 * self.hf
        wf = wreg(self.kind, s, 4 * acc, 4); af = vr(self.rb(s), 4)
        c = "0" if s == 0 else vr(A0 + 16 * acc, 16)
        A_, B_ = (wf, af) if self.kind == 1 else (af, wf)
        mfma(vr(A0+16*acc,16), A_, B_, c)
    def steps(self, redo, nxt=None, hook=None, force=True):
        n = self.nks; nk = [0]
        a(f"v_mov_b32 v{self.vMX}, 0")
        for s in range(n):
            if hook: hook(s, 0)
            a.wait(vm=self.ids[s])
            self.MF(s, 1)
            if s + LKH < n: self.LD(s + LKH)
            elif nxt is not None:
                nxd = min(LKH, opt("NXD", LKH)) if nxt.kind == 2 else LKH
                if s + nxd == n and nxt.kind == 2: nxt.can_issue()
                if s + nxd >= n:
                    per = -(-LKH // nxd)
                    for _ in range(per):
                        if nk[0] < LKH: nxt.LD(nk[0]); nk[0] += 1
            if s & 1: a(f"v_max3_u32 v{self.vMX}, v{self.vMX}, v{self.rb(s-1)}, v{self.rb(s)}")
            self.MF(s, 0)
            if hook: hook(s, 1)
        verify(self.vMX, redo, force=force)
    def run(self, nxt=None, hook=None):
        lab = a.newlabel("PLAIN"); back = a.newlabel("BACK")
        OOL.append((self, nxt, lab, back))
        self.steps(lab, nxt, hook)
        a.label(back)
    def scr(self, k):
        if self.hf == 0: return 0, k * 2048
        if k < 2: return 1, SCR + k * 2048
        return 0, 6144
    def writes(self):
        A0 = 32 + 32 * self.hf
        for k in (1, 2, 0):
            src = (A0 + 8, A0 + 16, A0 + 24)[k]
            area, o = self.scr(k)
            r = (vR1, vR2, vR3)[k]
            if area == 1:
                a(f"v_lshl_add_u32 v{AUX+10+k}, v{r}, 1, v{AUX+9}"); r = AUX + 10 + k
            for q in range(2): a(f"ds_write_b128 v{r}, {vr(src+4*q,4)} offset:{o+q*1024}")
    def reads(self):
        D = 64 - 32 * self.hf
        if self.hf == 1: a(f"v_lshl_add_u32 v{AUX+10}, v{vRA}, 1, v{AUX+9}")
        a.wait_lg_all()
        a("s_barrier")
        ids = {}
        for q in range(2):
            for k in range(3):
                area, o = self.scr(k)
                ids[(q, k)] = a(f"ds_read_b128 {vr(D+8*k+4*q,4)}, v{AUX+10 if area else vRA} offset:{o+q*1024}")
        A0 = 32 + 32 * self.hf
        for q in range(2):
            a.wait(lg=ids[(q, 1)])
            for j in (0, 2): pk("add", D+4*q+j, vr(D+4*q+j,2), vr(D+8+4*q+j,2))
            a.wait(lg=ids[(q, 2)])
            for j in (0, 2): pk("add", A0+4*q+j, vr(A0+4*q+j,2), vr(D+16+4*q+j,2))
            for j in (0, 2): pk("add", A0+4*q+j, vr(A0+4*q+j,2), vr(D+4*q+j,2))
    def woven(self, D):
        A0 = 32 + 32 * self.hf
        ops = []
        ids = {}
        wl = a.lg - 1
        def bar():
            if self.hf == 1: a(f"v_lshl_add_u32 v{AUX+10}, v{vRA}, 1, v{AUX+9}")
            a.wait(lg=wl); a("s_barrier")
        ops.append(bar)
        def rd(q, k):
            area, o = self.scr(k)
            ids[(q, k)] = a(f"ds_read_b128 {vr(D+8*k+4*q,4)}, v{AUX+10 if area else vRA} offset:{o+q*1024}")
        for q in range(2):
            for k in range(3): ops.append(lambda q=q, k=k: rd(q, k))
        ops.append(None); ops.append(None); ops.append(None)
        for q in range(2):
            for k in range(3):
                for j in range(4):
                    def ad(q=q, k=k, j=j):
                        a.wait(lg=ids[(q, k)])
                        a(f"v_add_f32 v{A0+4*q+j}, v{A0+4*q+j}, v{D+8*k+4*q+j}")
                    ops.append(ad)
        return ops
    def late_check(self, code):
        a.wait(vm=self.cid)
        self.can_check()
        keep = snapshot_ids(); cid = self.cid
        lo, hi = self.ids[0], self.ids[LKH - 1]
        fallback(self.can_issue, self.can_check, code, self.window, f"fb{code:x}", last=(lo, hi) if hi - lo == LKH - 1 else None)
        restore_ids(keep); self.cid = cid
OOL = []
def mix_setup():
    a(f"v_add_u32 v{vTA}, s{sAHTR}, v{vL16}")
    a(f"v_min_u32 v{vT0}, 31, v{vL}")
    a(f"v_lshrrev_b32 v{vT1}, 1, v{vT0}")
    a(f"v_and_b32 v{vT0}, 1, v{vT0}")
    a(f"v_lshlrev_b32 v{vT0}, 8, v{vT0}")
    a(f"v_lshl_add_u32 v{MA+1}, v{vT1}, 12, v{vT0}")
    a(f"s_lshl_b32 s{sT0}, s{sKH}, 8")
    a(f"v_xor_b32 v{vTB}, s{sT0}, v{vL16}")
    a(f"v_add_u32 v{vTB}, s{sAUR}, v{vTB}")
    a(f"v_min_u32 v{MA+2}, 27, v{vL}")
    a(f"v_lshlrev_b32 v{MA+2}, 11, v{MA+2}")
    for acc, r in ((1, vR1), (2, vR2), (3, vR3)):
        a(f"s_xor_b32 s{sT0}, s{sW}, {acc}")
        a(f"s_lshl_b32 s{sT0}, s{sT0}, 13")
        a(f"v_add_u32 v{r}, s{sT0}, v{vL16}")
    a(f"s_lshl_b32 s{sT0}, s{sW}, 13")
    a(f"v_add_u32 v{vRA}, s{sT0}, v{vL16}")
    a(f"v_sub_u32 v{AUX+9}, {L_A}, v{vL16}")

def p34(L):
    a.c(f"======== P3 layer {L}")
    if opt("CRF", 0) & (2 << L): code_refetch(vr(60, 4))
    B1R = AUX
    pump.run(pump.i, refill=True)
    pump.run(32)
    a.wait_lg_all()
    if L == 1: a("s_barrier")
    pump.setup(2, L, extra=optL("XB", L, 0, 8))
    pump.run(optL("V2", L, 5, 0), refill=False)
    pump.fill(pump.c + optL("V2F", L, 0, 8))
    assert pump.c <= R2
    if L == 0: a("s_barrier")
    for j in range(4):
        a(f"v_lshlrev_b32 v{B1R+2*j}, 16, v{152+j}")
        a(f"v_and_b32 v{B1R+2*j+1}, 0xffff0000, v{152+j}")
    mix_setup()
    K1 = -2.0 * 0.7978845608028654 * LOG2E
    a(f"v_mov_b32 v{AUX+8}, {fl(K1)}")
    SPX = optL("SPX", L, 1, 1)
    h3a = Half(1, 0, 0); h3b = Half(1, 1, 32); h4a = Half(2, 0, 64); h4b = Half(2, 1, 92)
    stamp("p3_delta")
    idle = a.newlabel("P3IDLE"); join = a.newlabel("P3JOIN")
    pst = (pump.i, pump.c, dict(pump.vid), dict(pump.lid))
    a(f"s_cmp_eq_u32 s{sP3}, 7")
    a(f"s_cbranch_scc1 {idle}")
    IDN = optL("IDT", L, 18, 0)
    WE3 = optL("WE3", L, 0, 0) and SPX
    ntail = optL("V2T", L, 0, 0); nepi = optL("V2E", L, 6, 3)
    def gelu_store(hf):
        A0 = 32 + 32 * hf; T = A0 + 16
        for q in range(4): pk("mul", T+2*q, vr(A0+2*q,2), vr(A0+2*q,2))
        for q in range(4): pk("fma", T+2*q, vr(T+2*q,2), sr(sT2,2), vr(AUX+8,2), hi=[1,0,0])
        for q in range(4): pk("mul", T+2*q, vr(T+2*q,2), vr(A0+2*q,2))
        for i in range(8): a(f"v_exp_f32 v{T+i}, v{T+i}")
        for q in range(4): pk("add", T+2*q, vr(T+2*q,2), "1.0", hi=[1,0])
        for i in range(8): a(f"v_rcp_f32 v{T+i}, v{T+i}")
        for q in range(4): pk("mul", A0+2*q, vr(A0+2*q,2), vr(T+2*q,2))
        for q in range(4): a(f"v_cvt_pk_bf16_f32 v{T+8+q}, v{A0+2*q}, v{A0+2*q+1}")
        ws_store4(T + 8, sAUW, 1024 * hf)
    with cond():
        a(f"s_mov_b32 s{sT2}, s{sGK}")
        spec(h3a.can_issue, h3a.can_check, h3a.window, 0x50 + L, a.newlabel("SREDO"))
        stamp("canary")
        h3a.run(nxt=h3b)
        stamp("gemm_a")
        h3a.writes()
        pump.fill(pump.i + nepi)
        for q in range(4): pk("add", 32+2*q, vr(32+2*q,2), vr(B1R+2*q,2))
        h3a.reads()
        gelu_store(0)
        stamp("epi_a")
        i0 = pump.i
        def hk(s, k):
            if k == 1 and s + LKH >= 32 and (s & 1) and pump.i < i0 + ntail: pump.fill(pump.i + 1)
        h3b.run(nxt=h4a if SPX else None, hook=hk)
        assert ntail <= 5
        stamp("gemm_b")
        h3b.writes()
        n2 = pump.i
        nmid = pump.i
        if optL("EB", L, 1, 0): pump.run(pump.i if optL("EB", L, 1, 0) == 2 else min(R2, pump.i), refill=False, tmp=(AUX + 14, AUX + 15))
        cact = pump.c
        pump.fill(pump.i + optL("V2E2", L, 4, 3))
        nact = pump.i; n2 = nact - n2
        if not WE3:
            for q in range(4): pk("add", 64+2*q, vr(64+2*q,2), vr(B1R+2*q,2))
            h3b.reads()
            gelu_store(1)
        else: a.wait_lg_all()
        if SPX: h4a.late_check(0x60 + L)
        a("s_nop 1")
    main_out = a.out; a.out = []
    a.label(idle)
    pump.i, pump.c, pump.vid, pump.lid = pst
    if IDN:
        a(f"v_lshrrev_b32 v{RING}, 2, v{vL}")
        a(f"v_lshlrev_b32 v{RING}, 12, v{RING}")
        a(f"v_and_b32 v{RING+1}, 3, v{vL}")
        a(f"v_lshl_add_u32 v{RING}, v{RING+1}, 7, v{RING}")
        a(f"s_bfe_u32 s{sT0}, s{sWI}, 0x20002")
        a(f"s_mul_i32 s{sT0}, s{sT0}, {28*65536}")
        a(f"s_and_b32 s{sT1}, s{sB}, 7")
        a(f"s_lshl_b32 s{sT1}, s{sT1}, 9")
        a(f"s_add_u32 s{sT0}, s{sT0}, s{sT1}")
        a(f"v_add_u32 v{RING}, s{sT0}, v{RING}")
        a(f"s_add_u32 s{sT1}, s{sW}, s{sROT2}")
        a(f"s_add_u32 s{sT1}, s{sT1}, {28 - IDN}")
        for k in range((IDN + 3) // 4):
            a(f"s_sub_u32 s{sT2}, s{sT1}, 28")
            a(f"s_cselect_b32 s{sT1}, s{sT1}, s{sT2}")
            a(f"s_lshl_b32 s{sT2}, s{sT1}, 16")
            a(f"buffer_load_dword v31, v{RING}, {sr(SW2,4)}, s{sT2} offen")
            a(f"s_add_u32 s{sT1}, s{sT1}, 4")
    nlate = n2 if SPX else 0
    pump.fill(nmid)
    if SPX:
        poll(h4a.can_issue, h4a.can_check, 0x5e)
        h4a.window()
    pump.run(cact, refill=False, tmp=(AUX + 14, AUX + 15))
    pump.fill(nact)
    a("s_nop 1")
    a(f"s_branch {join}")
    COLD.extend(a.out); a.out = main_out
    a.label(join)
    a.hist = []
    stamp(f"p3_{L}")
    a.c(f"======== P4 layer {L}")
    if L == 0 and opt("CRF", 0) & 1: code_refetch(vr(60, 4))
    if L == 0:
        set_poi(56)
        tile_poison(56, sAX2W, 0, 2048)
        tile_poison(56, sAPQW, PQ[1] - PQ[0], 1024)
        kv_poison(56, 1)
    cinit = pst[1]
    NKT = opt("NKT", 10)
    def kvdma(j):
        if j == 0: a(f"s_add_u32 s{sT3}, s{sAWQT}, s{sWA}")
        if j & 3 == 0:
            a(f"s_add_u32 m0, s{sWA}, {j*1024}")
            if j: a(f"s_add_u32 s{sT3}, s{sT3}, 4096")
        return a(f"buffer_load_dwordx4 v{vL16}, {sr(SWS,4)}, s{sT3} offen offset:{(j&3)*1024} sc1 lds")
    if SPX:
        WV = opt("WV", 2); AH = optL("AH", L, 3, 4)
        pump.run(min(pump.i, pump.c + optL("PRE", L, 0, 0)), tmp=(AUX, AUX + 1))
        landed = pump.i; c0 = pump.c
        w3 = []
        if WE3:
            w3 = h3b.woven(72)
            w3 = w3[:7] + [(lambda j=j: a(f"v_add_f32 v{64+j}, v{64+j}, v{B1R+j}")) for j in range(8)] + w3[10:]
            T = 72
            for i in range(8): w3.append(lambda i=i: a(f"v_mul_f32 v{T+i}, v{64+i}, v{64+i}"))
            for i in range(8): w3.append(lambda i=i: a(f"v_fma_f32 v{T+i}, v{T+i}, s{sGK}, v{AUX+8}"))
            for i in range(8): w3.append(lambda i=i: a(f"v_mul_f32 v{T+i}, v{T+i}, v{64+i}"))
            for i in range(8): w3.append(lambda i=i: a(f"v_exp_f32 v{T+i}, v{T+i}"))
            for i in range(8): w3.append(lambda i=i: a(f"v_add_f32 v{T+i}, 1.0, v{T+i}"))
            for i in range(8): w3.append(lambda i=i: a(f"v_rcp_f32 v{T+i}, v{T+i}"))
            for i in range(8): w3.append(lambda i=i: a(f"v_mul_f32 v{64+i}, v{64+i}, v{T+i}"))
            for q in range(4): w3.append(lambda q=q: a(f"v_cvt_pk_bf16_f32 v{80+q}, v{64+2*q}, v{64+2*q+1}"))
            w3.append(lambda: ws_store4(80, sAUW, 1024))
        W3S = opt("W3S", 4)
        def hk(s, k):
            for _ in range(W3S):
                if w3:
                    f = w3.pop(0)
                    if f: f()
            if k == 1:
                lim = max(min(landed, c0 + WV * (s + 1)), min(28, s + AH))
                pump.run(lim, tmp=(AUX, AUX + 1), first=(s == 0))
            if k == 0 and s >= cinit:
                assert pump.c > s
                if not opt("NOPUMP", 0): a.wait(lg=pump.lid[s])
        h4a.run(nxt=h4b, hook=hk)
        assert not w3
    else:
        pump.run(28, tmp=(AUX, AUX + 1))
        stamp("p4_w2")
        a.wait_lg_all()
        spec(h4a.can_issue, h4a.can_check, h4a.window, 0x60 + L, a.newlabel("SREDO"))
        stamp("canary")
        h4a.run(nxt=h4b)
    stamp("gemm_a")
    def resid(hf):
        A0 = 32 + 32 * hf; XU = AUX
        for j in range(4):
            a(f"v_lshlrev_b32 v{XU+2*j}, 16, v{XR+4*hf+j}")
            a(f"v_and_b32 v{XU+2*j+1}, 0xffff0000, v{XR+4*hf+j}")
        for q in range(4): pk("add", XU+2*q, vr(XU+2*q,2), vr(vB2-1,2), lo=[0,1], hi=[1,1])
        for q in range(4): pk("add", A0+2*q, vr(A0+2*q,2), vr(XU+2*q,2))
    def out(hf):
        A0 = 32 + 32 * hf
        for q in range(4): a(f"v_cvt_pk_bf16_f32 v{XR+4*hf+q}, v{A0+2*q}, v{A0+2*q+1}")
        if L == 0: ws_store4(XR + 4 * hf, sAX2W, 2048 * hf)
        else:
            a(f"v_permlane32_swap_b32 v{XR+4*hf}, v{XR+4*hf+2}")
            a(f"v_permlane32_swap_b32 v{XR+4*hf+1}, v{XR+4*hf+3}")
            a(f"buffer_store_dwordx4 {vr(XR+4*hf,4)}, v{vOUT}, {sr(SOUT,4)}, 0 offen offset:{64*hf}")
    wv = []
    if optL("WE4", L, 1, 1):
        h4a.writes()
        wv = h4a.woven(40)
        XU = AUX
        pre = []
        for j in range(4):
            pre.append(lambda j=j: a(f"v_lshlrev_b32 v{XU+2*j}, 16, v{XR+j}"))
            pre.append(lambda j=j: a(f"v_and_b32 v{XU+2*j+1}, 0xffff0000, v{XR+j}"))
        for j in range(8): pre.append(lambda j=j: a(f"v_add_f32 v{32+j}, v{32+j}, v{vB2}"))
        for j in range(8): wv.append(lambda j=j: a(f"v_add_f32 v{32+j}, v{32+j}, v{XU+j}"))
        wv = pre[:8] + wv[:1] + wv[1:7] + pre[8:] + wv[10:]
        wv.append(lambda: out(0))
    else:
        h4a.writes(); resid(0); h4a.reads(); out(0)
    h4b.late_check(0x62 + L)
    stamp("epi_a")
    kc = [0]
    WPS = opt("WPS", 2)
    def hk(s, k):
        for _ in range(WPS if k == 1 else WPS - 1):
            if wv:
                f = wv.pop(0)
                if f: f()
        if L == 0 and k == 1 and s + LKH >= 28 and kc[0] < NKT:
            kvdma(kc[0]); kc[0] += 1
    h4b.run(hook=hk)
    assert not wv
    stamp("gemm_b")
    if L == 0 and opt("XE", 0) == 1: xa_start()
    h4b.writes()
    if L == 0 and opt("XE", 0) == 2: xa_start()
    if L == 0 and opt("KE", 2):
        while kc[0] < 12: kvdma(kc[0]); kc[0] += 1
    resid(1); h4b.reads()
    if L == 0 and opt("KE", 2) == 2:
        while kc[0] < 16: G["kvlast"] = kvdma(kc[0]); kc[0] += 1
    out(1)
    if L == 0:
        row_stats_publish(sAS2W, 32)
        for j in range(kc[0], 16): G["kvlast"] = kvdma(j)
    stamp(f"p4_{L}")

def emit_ool():
    for h, nxt, lab, back in OOL:
        a.label(lab)
        a.hist = []
        a.vm_done = a.vm
        h.window()
        h.steps(lab, force=False)
        if nxt is not None:
            if nxt.kind == 2: nxt.can_issue()
            nxt.window()
            a("s_waitcnt vmcnt(0)")
        a("s_nop 15")
        a(f"s_branch {back}")

prologue()
for L in range(2):
    p1(L); p2(L); p34(L)
finish()
a.out.extend(COLD); COLD.clear()
a.label("L_END")
emit_ool()
a.out.extend(COLD)
a.label("L_EXIT")
a("s_endpgm")

hdr = open(f"ref.s").read().split("; Override launch")[0]
def wrap(body): return hdr + f"""; @launch grid=(256,1,1) block=(256,1,1) lds={LDS_BYTES}
.amdgcn_target "amdgcn-amd-amdhsa--gfx950"
.text
.globl {NAME}_kernel
.p2align 8
.type {NAME}_kernel,@function
{NAME}_kernel:
""" + body + f""".section .rodata,"a"
.p2align 6
.amdhsa_kernel {NAME}_kernel
  .amdhsa_next_free_vgpr 512
  .amdhsa_next_free_sgpr 102
  .amdhsa_accum_offset 256
  .amdhsa_group_segment_fixed_size 0
  .amdhsa_kernarg_size 88
  .amdhsa_user_sgpr_count 2
  .amdhsa_user_sgpr_kernarg_segment_ptr 1
  .amdhsa_system_sgpr_workgroup_id_x 1
  .amdhsa_float_denorm_mode_32 3
.end_amdhsa_kernel
"""
lines = a.out
if opt("ALN", 32):
    from align import align
    lines, st = align(lines, wrap, B=opt("ALN", 32), NOPC=opt("NOPC", 150))
    print("align: straddles %d -> %d, widened %d, bytes %d -> %d" % st, file=sys.stderr)
out = wrap("\n".join(lines) + "\n")
outp = [x for x in sys.argv[1:] if x.endswith(".s")]
open(outp[0], "w").write(out)
if DIAG: open(outp[0] + ".stamps", "w").write("\n".join(stamp_names))
open(outp[0] + ".sites", "w").write(" ".join(site_names))
```

```python
import sys, struct
from contextlib import contextmanager
from asmlib import Asm, vr, ar, sr

NAME = "interleave_layers__linear_attn_block__mixer_token_mlp__prompt"
DIAG = "--diag" in sys.argv
OPT = {}
for a_ in sys.argv:
    if a_.startswith("-D"):
        k_, v_ = a_[2:].split("="); OPT[k_] = int(v_)
def opt(k, d): return OPT.get(k, d)
def optL(k, L, d0, d1): return OPT.get(f"{k}_{L}", (d0, d1)[L])
def f2u(x): return struct.unpack("<I", struct.pack("<f", x))[0]
def fl(x): return "0x%08x" % f2u(x)
FULL = (1 << 64) - 1
LOG2E = 1.4426950408889634

KVF = [0x2000, 0xC0000]; KVP = [0x8000, 0xC6000]; ST = [0x166000, 0x1A6000]; ST2 = 0x1E6000
SELFP = 0xC0000
PQ = [0x400000, 0x600000]; HT = [0x800000, 0xA00000]; U = [0xC00000, 0xE00000]; X2 = 0x1000000
WQT = 0x1200000
TS = 0x1400000
DUMP = 0x1500000
ERRS = 0x1520000
NONCE = 0x0; TAGQ = 0x1540000
WS_BYTES = 268435456
L_A = 32768; L_B = 98304; LDS_BYTES = 163840
NS = 6; SCR = 12288
sW = 3
SX, SWQKV, SWO, SW1, SW2, SWS, SOUT, SDBG, SB1, SB2, SCODE = 4, 8, 12, 16, 20, 24, 28, 32, 36, 40, 44
sST, sDT, sRB, sHP, sDT3, sFT, sP3, sRH, sKH, sWB, sTO, sONES = 48, 49, 50, 51, 52, 53, 54, 55, 56, 57, 58, 59
sEPS6 = 60; sB = 61
sT0, sT1, sT2, sT3, sT4, sT5 = 62, 63, 64, 65, 66, 67
sSO = 68; sW1K = 69; sTS = 70
sL2E = 74; sWA = 75; sROTX = 76; sROT1 = 77; sROT2 = 78; sRED = 79; sWOFF = 80; sKB = 81; sXC = 82; sWI = 83
sKA = 84
sAKVP, sAPQW, sAPQR, sAKVF, sASTW, sASTR, sAHTW, sAHTR, sAUW, sAUR, sAX2W, sAX2R, sAS2W, sAS2R, sAWQT, sGK = range(84, 100)
sDUM = 100; sNON = 101; sRX0 = 73
vL, vL16, vTA, vTB, vT0, vT1, vT2, vT3 = 0, 1, 2, 3, 4, 5, 6, 7
XR = 8
CKP, CVP, CQP, vB2, vRS, vHH, vOUT, vTSV = 16, 17, 18, 19, 20, 21, 22, 23
vWA, vWB, vWTA, vWTB = 24, 25, 26, 27
MA = 28

a = Asm()
stamp_names = []
G = {}

@contextmanager
def cond():
    st = (a.vm, a.vm_done, a.lg, a.lg_done); h = list(a.hist)
    yield
    a.vm, a.vm_done, a.lg, a.lg_done = st[0], min(st[1], st[0]), st[2], min(st[3], st[2])
    a.hist = h

COLD = []
@contextmanager
def cold(label, back=None):
    st = (a.vm, a.vm_done, a.lg, a.lg_done, list(a.hist)); main = a.out
    a.out = []
    a.label(label)
    yield
    if back:
        a("s_nop 1")
        a(f"s_branch {back}")
    COLD.extend(a.out)
    a.out = main
    a.vm, a.vm_done, a.lg, a.lg_done, a.hist = st

def stamp(name):
    if not DIAG: return
    if "--lite" in sys.argv and name not in ("start", "end", "p4_0"): return
    k = len(stamp_names); stamp_names.append(name)
    if opt("CYC", 0) and name not in ("start", "end"): a(f"s_memtime {sr(sTS,2)}")
    else: a(f"s_memrealtime {sr(sTS,2)}")
    if name in ("start", "end"): a(f"s_memtime s[0:1]") if name == "end" else a(f"s_memtime {sr(sTS+2,2)}")
    a("s_waitcnt lgkmcnt(0)"); a.lg_done = a.lg
    a(f"v_writelane_b32 v{vTSV}, s{sTS}, {k}")
    if name in ("start", "end"): a(f"v_writelane_b32 v{vTSV}, s{sTS+2 if name == 'start' else 0}, {62 if name == 'start' else 63}")

def srd(base, ptr, nbytes):
    a(f"s_mov_b32 s{base}, s{ptr}")
    a(f"s_and_b32 s{base+1}, s{ptr+1}, 0xffff")
    a(f"s_mov_b32 s{base+2}, {nbytes:#x}")
    a(f"s_mov_b32 s{base+3}, 0x20000")

def set_exec(mask):
    if mask == FULL: a("s_mov_b64 exec, -1")
    elif mask <= 64: a(f"s_mov_b64 exec, {mask}")
    else:
        a(f"s_mov_b32 exec_lo, {mask & 0xffffffff:#x}"); a(f"s_mov_b32 exec_hi, {mask >> 32:#x}")

def lin(dst, terms, const=0):
    first = True
    for r, m in terms:
        t = dst if first else sT5
        if m == 1 and not first: a(f"s_add_u32 s{dst}, s{dst}, s{r}"); continue
        if m & (m - 1) == 0: a(f"s_lshl_b32 s{t}, s{r}, {m.bit_length()-1}")
        else: a(f"s_mul_i32 s{t}, s{r}, {m}")
        if not first: a(f"s_add_u32 s{dst}, s{dst}, s{sT5}")
        first = False
    if const: a(f"s_add_u32 s{dst}, s{dst}, {const:#x}")

def timeout_path(code):
    a(f"s_mov_b32 s{sTO}, 0")
    if DIAG:
        a(f"v_mov_b32 v{vT3}, {code}")
        a(f"s_mov_b32 s{sT5}, {ERRS:#x}")
        a(f"buffer_store_dword v{vT3}, off, {sr(SWS,4)}, s{sT5}")
        a("s_waitcnt vmcnt(0)")

def poll_loop(issue, check, code, done):
    top = a.newlabel("POLL"); go = a.newlabel("PGO")
    a.label(top)
    mark(f"retry{code:x}")
    if opt("PS", 2) and not (code == 0x20 and opt("A1NS", 1)): a(f"s_sleep {opt('PS', 2)}")
    a(f"s_sub_u32 s{sTO}, s{sTO}, 1")
    a(f"s_cbranch_scc0 {go}")
    timeout_path(code)
    a(f"s_branch {done}")
    a.label(go)
    issue()
    a.wait_vm_all(force=True)
    check()
    a(f"s_cbranch_vccnz {top}")
    a(f"s_branch {done}")

def poll(issue, check, code, pre=None):
    done = a.newlabel("PDONE"); rt = a.newlabel("PRT")
    if pre is not None: a.wait(vm=pre)
    else:
        issue()
        a.wait_vm_all(force=True)
    check()
    a(f"s_cbranch_vccnz {rt}")
    with cold(rt): poll_loop(issue, check, code, done)
    a.label(done)

def fallback(issue, check, code, reissue, name, last=None):
    fb = a.newlabel("FB"); back = a.newlabel("FBB"); mid = a.newlabel("FBM"); first = a.newlabel("FBF")
    force_fail("FRC")
    y = None
    if last is not None and last[0] >= a.vm_done: y = a.vm - last[1] - 1
    a(f"s_cbranch_vccnz {fb}")
    with cold(fb, back):
        mark(name)
        issue()
        a.wait_vm_all(force=True)
        check()
        a(f"s_cbranch_vccz {mid}")
        poll_loop(issue, check, code, mid)
        a.label(mid)
        reissue()
        if y is None or not opt("FBP", 1): a("s_waitcnt vmcnt(0)")
        else:
            for _ in range(y): a(f"buffer_load_dword v{vT3}, off, {sr(SB2,4)}, 0 offset:4094")
    a.label(back)

def poll1(addr, code, tmp=None, tag=False):
    cmp = (lambda r: a(f"v_cmp_ne_u32 vcc, s{sNON}, v{r}")) if tag else (lambda r: a(f"v_cmp_eq_u32 vcc, -1, v{r}"))
    if tmp is None or not opt("PP", 0):
        poll(lambda: a(f"buffer_load_dword v{vT3}, {addr} sc1"), lambda: cmp(vT3), code)
        return
    top = a.newlabel("PP"); done = a.newlabel("PPD")
    a(f"buffer_load_dword v{vT3}, {addr} sc1")
    a(f"s_nop {opt('PPN', 15)}")
    a.label(top)
    for r, o in ((vT3, tmp), (tmp, vT3)):
        a(f"buffer_load_dword v{o}, {addr} sc1")
        a("s_waitcnt vmcnt(1)")
        cmp(r)
        a(f"s_cbranch_vccz {done}")
    h = list(a.hist)
    a(f"s_sub_u32 s{sTO}, s{sTO}, 2")
    a(f"s_cbranch_scc0 {top}")
    timeout_path(code)
    a.label(done)
    a.hist = h
    a.vm -= 1
    a.vm_done = a.vm - 1

SLD = {}
SPD = {0x50: 1, 0x51: 1, 0x60: 1, 0x61: 1, 0x36: 1, 0x38: 1, 0x39: 1, 0x40: 1}
def spec(can_issue, can_check, window, code, redo, on=True):
    d = OPT.get(f"SL{code:x}", SLD.get(code, 0))
    if d: a(f"s_sleep {d}")
    on = OPT.get(f"SP{code:x}", SPD.get(code, 0))
    go = a.newlabel("GO")
    if on:
        can_issue(); cid = a.vm - 1
        window()
        a.wait(vm=cid)
        can_check()
        keep = snapshot_ids()
        fallback(can_issue, can_check, code, window, f"fb{code:x}", last=(cid + 1, a.vm - 1))
        restore_ids(keep)
    else:
        poll(can_issue, can_check, code)
        window()
    keep = snapshot_ids()
    with cold(redo, go):
        window()
        a("s_waitcnt vmcnt(0)")
    restore_ids(keep)
    a.label(go)

IDMAPS = []
def snapshot_ids(): return [dict(m) for m in IDMAPS]
def restore_ids(k):
    for m, v in zip(IDMAPS, k):
        m.clear(); m.update(v)

site_names = []
def mark(name):
    if not opt("CNT", 0): return
    if name.startswith("retry") and name not in ("retry20", "retry34", "retry35", "retry37"): return
    k = len(site_names); site_names.append(name)
    a(f"s_bitset1_b32 s2, {k}")
force_n = [0]
def force_fail(kind):
    if not opt(kind, 0): return
    k = force_n[0] % 32; force_n[0] += 1
    l = a.newlabel("FF")
    a(f"s_bitcmp1_b32 s2, {k}")
    a(f"s_cbranch_scc1 {l}")
    a(f"s_bitset1_b32 s2, {k}")
    a("s_mov_b64 vcc, 1")
    a.label(l)

def verify(vMX, redo, force=True):
    ok = a.newlabel("VOK"); bad = a.newlabel("VBAD")
    a(f"v_cmp_eq_u32 vcc, -1, v{vMX}")
    if force: force_fail("FRV")
    a(f"s_cbranch_vccnz {bad}")
    with cold(bad, ok):
        if force: mark("redo")
        a("s_waitcnt vmcnt(0)")
        a(f"s_sub_u32 s{sTO}, s{sTO}, 64")
        a(f"s_cbranch_scc0 {redo}")
        a(f"s_mov_b32 s{sTO}, 0")
        a("s_nop 15")
    a.label(ok)

def finish():
    if opt("AMPM", 0):
        lp = a.newlabel("AML"); sk = a.newlabel("AMS")
        a(f"s_and_b32 s{sT0}, s2, {opt('AMPM', 0):#x}")
        a(f"s_cbranch_scc0 {sk}")
        a(f"s_memrealtime s[70:71]")
        a("s_waitcnt lgkmcnt(0)")
        a(f"s_add_u32 s{sT1}, s70, 4000")
        a.label(lp)
        a(f"s_memrealtime s[70:71]")
        a("s_waitcnt lgkmcnt(0)")
        a(f"s_sub_u32 s{sT2}, s70, s{sT1}")
        a(f"s_cmp_lt_i32 s{sT2}, 0")
        a(f"s_cbranch_scc1 {lp}")
        a.label(sk)
    if opt("AMP", -1) >= 0:
        lp = a.newlabel("AMPL"); sk = a.newlabel("AMPS")
        stamp("pre_end")
        a(f"s_cmp_lg_u32 s{sB}, 77")
        a(f"s_cbranch_scc1 {sk}")
        a(f"v_readlane_b32 s{sT0}, v{vTSV}, 0")
        a(f"v_readlane_b32 s{sT1}, v{vTSV}, {opt('AMP', 0)}")
        a(f"s_memrealtime s[70:71]")
        a("s_waitcnt lgkmcnt(0)")
        a(f"s_sub_u32 s{sT1}, s{sT1}, s{sT0}")
        a(f"s_lshl_b32 s{sT1}, s{sT1}, 2")
        a(f"s_add_u32 s{sT1}, s70, s{sT1}")
        a.label(lp)
        a(f"s_memrealtime s[70:71]")
        a("s_waitcnt lgkmcnt(0)")
        a(f"s_sub_u32 s{sT2}, s70, s{sT1}")
        a(f"s_cmp_lt_i32 s{sT2}, 0")
        a(f"s_cbranch_scc1 {lp}")
        a.label(sk)
    if DIAG:
        a(f"v_writelane_b32 v{vTSV}, s{sTO}, 61")
        if opt("CNT", 0): a(f"v_writelane_b32 v{vTSV}, s2, 60")
        stamp("end")
        lin(sT0, [(sB, 1024), (sW, 256)], TS)
        a(f"v_lshlrev_b32 v{vT0}, 2, v{vL}")
        a(f"buffer_store_dword v{vTSV}, v{vT0}, {sr(SWS,4)}, s{sT0} offen")
    a("s_endpgm")

def pk(op, d, x, y, z=None, hi=None, lo=None):
    ops = [x, y] + ([z] if z is not None else [])
    m = ""
    if lo: m += " op_sel:[" + ",".join(map(str, lo)) + "]"
    if hi: m += " op_sel_hi:[" + ",".join(map(str, hi)) + "]"
    a(f"v_pk_{op}_f32 {vr(d,2)}, " + ", ".join(ops) + m)

def mfma(d, A, B, C):
    a(f"v_mfma_f32_32x32x16_bf16 {d}, {A}, {B}, {C}")

def ws_store4(reg, soff, off=0): return a(f"buffer_store_dwordx4 {vr(reg,4)}, v{vL16}, {sr(SWS,4)}, s{soff} offen offset:{off} sc1")

def tr_base(dst_a, dst_b, sel64, sel32, region):
    a(f"v_bfe_u32 v{vT0}, v{vL}, 2, 2")
    a(f"v_lshl_add_u32 v{vT0}, v{vHH}, 2, v{vT0}")
    a(f"v_lshlrev_b32 v{dst_a}, 7, v{vT0}")
    a(f"v_bfe_u32 v{vT1}, v{vL}, 3, 1")
    a(f"v_lshl_add_u32 v{dst_a}, v{vT1}, 6, v{dst_a}")
    a(f"v_bfe_u32 v{vT1}, v{vL}, 4, 1")
    a(f"v_lshl_add_u32 v{dst_a}, v{vT1}, 5, v{dst_a}")
    a(f"v_and_b32 v{vT1}, 3, v{vL}")
    a(f"v_lshl_add_u32 v{dst_a}, v{vT1}, 3, v{dst_a}")
    for sel, sh in ((sel64, 6), (sel32, 5)):
        if sel is not None:
            a(f"s_lshl_b32 s{sT5}, s{sel}, {sh}")
            a(f"v_xor_b32 v{dst_a}, s{sT5}, v{dst_a}")
    a(f"v_add_u32 v{dst_a}, {region}, v{dst_a}")
    a(f"v_xor_b32 v{dst_b}, 64, v{dst_a}")

def dma_voff(dst, dst2, pitch, scol):
    a(f"v_lshrrev_b32 v{vT0}, 3, v{vL}")
    a(f"v_mul_u32_u24 v{dst}, {pitch}, v{vT0}")
    a(f"v_bfe_u32 v{vT1}, v{vL}, 4, 1")
    a(f"v_lshlrev_b32 v{vT1}, 2, v{vT1}")
    a(f"v_and_b32 v{vT0}, 7, v{vL}")
    a(f"v_xor_b32 v{vT0}, v{vT0}, v{vT1}")
    a(f"v_lshl_add_u32 v{dst}, v{vT0}, 4, v{dst}")
    a(f"v_add_u32 v{dst}, s{scol}, v{dst}")
    a(f"v_add_u32 v{dst2}, {8*pitch-1024}, v{dst}")

R1, R2 = 16, 11
def wreg(kind, t, j, n):
    r, base = (R1, 0) if kind == 1 else (R2, R1 * 8)
    if t < r: return ar(base + 8 * t + j, n)
    t -= r
    if t < 5: return ar(216 + 8 * t + j, n)
    return vr(160 + 8 * (t - 5) + j, n)

class Pump:
    def setup(self, kind, L, extra=0):
        self.kind = kind
        self.pitch, self.srd, self.n = (3584, SW1, 32) if kind == 1 else (4096, SW2, 28)
        self.t0 = 0 if L == 0 else (R1 if kind == 1 else R2)
        self.extra = extra
        self.ns = opt("NS1", 6) if kind == 1 else NS
        self.i = self.t0; self.c = self.t0; self.vid = {}; self.lid = {}
        a.c(f"pump setup W{kind}")
        a(f"s_lshl_b32 s{sT5}, s{sKH}, 5")
        a(f"v_xor_b32 v{vWTA}, s{sT5}, v{vWTA}")
        a(f"v_xor_b32 v{vWTB}, s{sT5}, v{vWTB}")
        lin(sT4, [(sFT if kind == 1 else sST, 128), (sW, self.n * 16 * self.pitch)])
        dma_voff(vWA, vWB, self.pitch, sT4)
        rot = sROT1 if kind == 1 else sROT2
        a(f"s_add_u32 s{sT5}, s{rot}, {self.t0}")
        a(f"s_sub_u32 s{sWOFF}, s{sT5}, {self.n}")
        a(f"s_cselect_b32 s{sWOFF}, s{sT5}, s{sWOFF}")
        a(f"s_mul_i32 s{sWOFF}, s{sWOFF}, {16*self.pitch}")
    def place(self, t):
        k = t - self.t0
        if k < self.extra: return ("B", k * 2048)
        return ("A", ((k - self.extra) % self.ns) * 2048)
    def prev_user(self, t):
        p = t - self.ns
        return p if p - self.t0 >= self.extra else None
    def room(self, lag=0):
        p = self.prev_user(self.i)
        return p is None or p < self.c - lag
    def issue1(self):
        t = self.i
        if opt("NOPUMP", 0):
            self.vid[t] = None; self.i += 1; return
        p = self.prev_user(t)
        if p is not None: a.wait(lg=self.lid[p])
        reg, o = self.place(t)
        a(f"s_add_u32 m0, s{sWB if reg == 'B' else sWA}, {o}")
        if t > self.t0:
            a(f"s_add_u32 s{sWOFF}, s{sWOFF}, {16*self.pitch}")
            a(f"s_cmp_eq_u32 s{sWOFF}, {self.n*16*self.pitch}")
            a(f"s_cselect_b32 s{sWOFF}, 0, s{sWOFF}")
        a(f"buffer_load_dwordx4 v{vWA}, {sr(self.srd,4)}, s{sWOFF} offen lds")
        self.vid[t] = a(f"buffer_load_dwordx4 v{vWB}, {sr(self.srd,4)}, s{sWOFF} offen offset:1024 lds")
        self.i += 1
    def fill(self, upto=None):
        lim = self.n if upto is None else min(self.n, upto)
        while self.i < lim and self.room(): self.issue1()
    def run(self, target, refill=True, tmp=(vT0, vT1), first=True):
        target = min(target, self.n)
        haveB = not first
        while self.c < target:
            t = self.c
            if t >= self.i: self.issue1()
            if opt("NOPUMP", 0):
                self.c += 1; continue
            reg, o = self.place(t)
            ta, tb = vWTA, vWTB
            if reg == "B":
                ta, tb = tmp
                if not haveB:
                    a(f"v_add_u32 v{ta}, 65536, v{vWTA}"); a(f"v_add_u32 v{tb}, 65536, v{vWTB}"); haveB = True
            a.wait(vm=self.vid[t])
            a(f"ds_read_b64_tr_b16 {wreg(self.kind,t,0,2)}, v{ta} offset:{o}")
            a(f"ds_read_b64_tr_b16 {wreg(self.kind,t,2,2)}, v{ta} offset:{o+1024}")
            a(f"ds_read_b64_tr_b16 {wreg(self.kind,t,4,2)}, v{tb} offset:{o}")
            self.lid[t] = a(f"ds_read_b64_tr_b16 {wreg(self.kind,t,6,2)}, v{tb} offset:{o+1024}")
            self.c += 1
            lim = self.n if refill else target
            if self.i < lim and self.room(lag=1): self.issue1()
        if refill: self.fill()
pump = Pump()

def prologue():
    a(f"s_cmp_ge_u32 s2, 256")
    a(f"s_cbranch_scc1 L_EXIT")
    a(f"s_load_dwordx16 {sr(sKA,16)}, s[0:1], 0")
    a(f"s_load_dwordx4 {sr(SCODE,4)}, s[0:1], 64")
    a(f"s_load_dwordx2 s[100:101], s[0:1], 80")
    a(f"s_mov_b32 s{sB}, s2")
    if opt("CNT", 0): a("s_mov_b32 s2, 0")
    if opt("FRV", 0) or opt("FRC", 0): a("s_mov_b32 s2, 0")
    a(f"v_lshrrev_b32 v{vT0}, 6, v0")
    a(f"v_and_b32 v{vL}, 63, v0")
    a(f"v_readfirstlane_b32 s{sW}, v{vT0}")
    a(f"v_lshlrev_b32 v{vL16}, 4, v{vL}")
    a(f"v_lshrrev_b32 v{vHH}, 5, v{vL}")
    if opt("CODEPF", 2) == 2:
        a(f"s_getpc_b64 {sr(SB1,2)}")
        a.label("L_PC")
        a(f"s_and_b32 s{SB1+1}, s{SB1+1}, 0xffff")
        a(f"s_mov_b32 s{SB1+2}, L_END - L_PC")
        a(f"s_mov_b32 s{SB1+3}, 0x20000")
        a(f"s_lshr_b32 s{sT0}, s{sB}, 3")
        a(f"s_lshl_b32 s{sT0}, s{sT0}, 2")
        a(f"s_add_u32 s{sT0}, s{sT0}, s{sW}")
        a(f"s_lshl_b32 s{sT0}, s{sT0}, 10")
        a(f"buffer_load_dwordx4 {ar(252,4)}, v{vL16}, {sr(SB1,4)}, s{sT0} offen")
    if DIAG: a(f"v_mov_b32 v{vTSV}, 0")
    stamp("start")
    X_, I_ = sT0, sT1
    a(f"s_and_b32 s{X_}, s{sB}, 7")
    a(f"s_lshr_b32 s{I_}, s{sB}, 3")
    a(f"s_lshr_b32 s{sT2}, s{I_}, 3")
    a(f"s_and_b32 s{sDT}, s{I_}, 7")
    a(f"s_and_b32 s{sRB}, s{X_}, 3")
    a(f"s_lshl_b32 s{sRB}, s{sRB}, 2")
    a(f"s_add_u32 s{sRB}, s{sRB}, s{sT2}")
    a(f"s_lshr_b32 s{sHP}, s{X_}, 2")
    a(f"s_lshl_b32 s{sHP}, s{sHP}, 3")
    a(f"s_add_u32 s{sHP}, s{sHP}, s{sDT}")
    a(f"s_lshr_b32 s{sROTX}, s{sDT}, 1")
    a(f"s_add_u32 s{sROTX}, s{sROTX}, s{sT2}")
    a(f"s_and_b32 s{sROTX}, s{sROTX}, 3")
    a(f"s_lshl_b32 s{sROTX}, s{sROTX}, 1")
    a(f"s_and_b32 s{sT3}, s{I_}, 1")
    a(f"s_add_u32 s{sROTX}, s{sROTX}, s{sT3}")
    a(f"s_and_b32 s{sRX0}, s{sROTX}, {opt('RXM', 6)}")
    a(f"s_lshl_b32 s{sW1K}, s{sW}, 10")
    a(f"s_lshl_b32 s{sWB}, s{sW}, 14")
    a(f"s_add_u32 s{sWA}, s{sWB}, {L_A}")
    a(f"s_add_u32 s{sWB}, s{sWB}, {L_B}")

def roles2():
    X_, I_ = sT0, sT1
    a(f"s_and_b32 s{X_}, s{sB}, 7")
    a(f"s_lshr_b32 s{I_}, s{sB}, 3")
    a(f"s_lshr_b32 s{sT2}, s{I_}, 3")
    a(f"s_lshl_b32 s{sST}, s{X_}, 2")
    a(f"s_add_u32 s{sST}, s{sST}, s{sT2}")
    a(f"s_lshr_b32 s{sT3}, s{X_}, 1")
    a(f"s_mul_i32 s{sT3}, s{sT3}, 7")
    a(f"s_and_b32 s{sT4}, s{X_}, 1")
    a(f"s_lshl_b32 s{sT5}, s{sT4}, 2")
    a(f"s_add_u32 s{sFT}, s{sT3}, s{sT5}")
    a(f"s_add_u32 s{sFT}, s{sFT}, s{sT2}")
    a(f"s_and_b32 s{sP3}, s{I_}, 3")
    a(f"s_add_u32 s{sT5}, s{sT5}, s{sP3}")
    a(f"s_add_u32 s{sKB}, s{sT3}, 3")
    a(f"s_cmp_lt_u32 s{I_}, 24")
    a(f"s_cselect_b32 s{sFT}, s{sFT}, s{sKB}")
    a(f"s_cselect_b32 s{sDT3}, s{sDT}, s{sT5}")
    a(f"s_mul_i32 s{sT4}, s{sT4}, 3")
    a(f"s_add_u32 s{sXC}, s{sT3}, s{sT4}")
    a(f"s_lshl_b32 s{sROT1}, s{X_}, 2")
    a(f"s_and_b32 s{sT3}, s{I_}, 3")
    a(f"s_lshr_b32 s{sP3}, s{I_}, 2")
    a(f"s_lshl_b32 s{sWI}, s{I_}, 2")
    a(f"s_add_u32 s{sWI}, s{sWI}, s{sW}")
    a(f"s_lshl_b32 s{sRED}, s{X_}, 2")
    a(f"s_add_u32 s{sRED}, s{sRED}, s{sT3}")
    a(f"s_lshl_b32 s{sRED}, s{sRED}, 1")
    a(f"s_add_u32 s{sRED}, s{sRED}, s{sW}")
    a(f"s_cmp_lt_u32 s{sW}, 2")
    a(f"s_cselect_b32 s{sRED}, s{sRED}, 99")
    a(f"s_cmp_eq_u32 s{sP3}, 7")
    a(f"s_cselect_b32 s{sRED}, s{sRED}, 99")
    a(f"s_mul_i32 s{sROT2}, s{X_}, 7")
    a(f"s_lshr_b32 s{sROT2}, s{sROT2}, 2")
    a(f"s_lshl_b32 s{sROT2}, s{sROT2}, 1")
    if opt("MAP", 0):
        a(f"s_and_b32 s{sT2}, s{X_}, 1")
        a(f"s_lshl_b32 s{sT2}, s{sT2}, 2")
        a(f"s_and_b32 s{sT3}, s{I_}, 3")
        a(f"s_lshr_b32 s{sT5}, s{X_}, 1")
        a(f"s_add_u32 s{sT4}, s{sP3}, s{sT3}")
        a(f"s_and_b32 s{sT4}, s{sT4}, {opt('MROT', 1)}")
        if opt("MAP", 0) & 1:
            a(f"s_add_u32 s{sDT3}, s{sT2}, s{sT3}")
            a(f"s_mul_i32 s{sFT}, s{sT5}, 7")
            a(f"s_add_u32 s{sFT}, s{sFT}, s{sP3}")
            a(f"s_lshl_b32 s{sROT1}, s{sT4}, 4")
        if opt("MAP", 0) & 2:
            a(f"s_add_u32 s{sDT}, s{sT2}, s{sT3}")
            a(f"s_lshl_b32 s{sST}, s{sT5}, 3")
            a(f"s_add_u32 s{sST}, s{sST}, s{sP3}")
            a(f"s_mul_i32 s{sROT2}, s{sT4}, 14")
    a(f"s_lshr_b32 s{sRH}, s{sW}, 1")
    a(f"s_and_b32 s{sKH}, s{sW}, 1")
    a(f"s_mov_b32 s{sTO}, 400000")
    a(f"s_mov_b32 s{sONES}, 0x3f803f80")
    a(f"s_mov_b32 s{sEPS6}, {fl(1e-6)}")
    a(f"s_mov_b32 s{sL2E}, {fl(LOG2E)}")

def late_srds():
    srd(SWO, sKA + 4, 512 * 512 * 2)
    srd(SW1, sKA + 8, 2048 * 1792 * 2)
    srd(SB1, sKA + 10, 1792 * 2)
    srd(SW2, sKA + 12, 1792 * 2048 * 2)
    srd(SB2, sKA + 14, 2048 * 2)
    srd(SOUT, SCODE, 2048 * 512 * 2)
    srd(SDBG, SCODE + 2, 256)

def code_prefetch():
    if opt("CODEPF", 2) == 1:
        a(f"s_getpc_b64 {sr(SCODE,2)}")
        a.label("L_PC")
        a(f"s_and_b32 s{SCODE+1}, s{SCODE+1}, 0xffff")
        a(f"s_mov_b32 s{SCODE+2}, L_END - L_PC")
        a(f"s_mov_b32 s{SCODE+3}, 0x20000")
        a(f"s_lshl_b32 s{sT0}, s{sWI}, 10")
        a(f"buffer_load_dwordx4 {ar(252,4)}, v{vL16}, {sr(SCODE,4)}, s{sT0} offen")
    srd(SCODE, SW1, 2048 * 1792 * 2)
    a(f"s_cmp_eq_u32 s{sP3}, 7")
    a(f"s_cselect_b32 s{SW1+2}, 0, s{SW1+2}")

def code_refetch(dst):
    l = a.newlabel("PCX")
    a(f"s_getpc_b64 {sr(SDBG,2)}")
    a.label(l)
    a(f"s_and_b32 s{SDBG+1}, s{SDBG+1}, 0xffff")
    a(f"s_mov_b32 s{SDBG+2}, L_END - {l}")
    a(f"s_lshl_b32 s{sT5}, s{sWI}, 10")
    a(f"buffer_load_dword v31, v{vL16}, {sr(SDBG,4)}, s{sT5} offen")

def addresses():
    lin(sAKVP, [(sHP, 64 * 640), (sRB, 4 * 640), (sW, 640)], KVP[0])
    lin(sAPQW, [(sRB, 4 * 32768), (sW, 32768), (sHP, 2048)], PQ[0])
    lin(sAPQR, [(sST, 65536), (sRH, 32768), (sKH, 16384)], PQ[0])
    lin(sAKVF, [(sKH, 16 * 768)], KVF[0])
    lin(sASTW, [(sST, 8192), (sDT, 1024), (sKH, 512), (sRH, 256)], ST[0])
    lin(sASTR, [(sST, 8192), (sRH, 256)], ST[0])
    lin(sAHTW, [(sDT, 262144), (sST, 8192), (sRH, 4096), (sKH, 256)], HT[0])
    lin(sAHTR, [(sDT3, 262144), (sW, 65536)], HT[0])
    lin(sAUW, [(sDT3, 229376), (sFT, 8192), (sRH, 4096), (sKH, 2048)], U[0])
    a(f"s_cmp_eq_u32 s{sP3}, 7")
    a(f"s_cselect_b32 s{sAUW}, {WS_BYTES:#x}, s{sAUW}")
    lin(sAUR, [(sDT, 229376), (sW, 57344)], U[0])
    lin(sAX2W, [(sST, 65536), (sRH, 32768), (sDT, 4096), (sKH, 1024)], X2)
    lin(sAX2R, [(sRB, 4 * 32768), (sW, 32768)], X2)
    a(f"s_add_u32 s{sAS2W}, s{sASTW}, {ST2 - ST[0]:#x}")
    lin(sAS2R, [(sRB, 2 * 8192), (sRH, 8192), (sKH, 256)], ST2)
    lin(sAWQT, [(sHP, 98304)], WQT)
    a(f"s_mov_b32 s{sGK}, {fl(-2.0 * 0.7978845608028654 * LOG2E * 0.044715)}")

def next_layer_addresses():
    for r, d in ((sAKVP, KVP[1] - KVP[0]), (sAPQW, PQ[1] - PQ[0]), (sAPQR, PQ[1] - PQ[0]), (sAKVF, KVF[1] - KVF[0]),
                 (sASTW, ST[1] - ST[0]), (sASTR, ST[1] - ST[0]), (sAHTW, HT[1] - HT[0]), (sAHTR, HT[1] - HT[0]),
                 (sAUW, U[1] - U[0]), (sAUR, U[1] - U[0])):
        a(f"s_add_u32 s{r}, s{r}, {d:#x}")

def kv_poison(P, L):
    r = sAKVP
    if L == 1:
        a(f"s_add_u32 s{sT1}, s{sAKVP}, {KVP[1]-KVP[0]:#x}"); r = sT1
    set_exec((1 << 40) - 1)
    ws_store4(P, r)
    a(f"s_mul_i32 s{sT0}, s{sRED}, 384")
    a(f"s_add_u32 s{sT0}, s{sT0}, {KVF[L]:#x}")
    a(f"s_cmp_ge_u32 s{sRED}, 64")
    a(f"s_cselect_b32 s{sT0}, {WS_BYTES:#x}, s{sT0}")
    set_exec((1 << 24) - 1)
    ws_store4(P, sT0)
    set_exec(FULL)
def ht_voff(dst):
    a(f"v_and_b32 v{dst}, 15, v{vL}")
    a(f"v_lshlrev_b32 v{dst}, 4, v{dst}")
    a(f"v_lshl_add_u32 v{dst}, v{vHH}, 9, v{dst}")
    a(f"v_bfe_u32 v{vT0}, v{vL}, 4, 1")
    a(f"v_lshl_add_u32 v{dst}, v{vT0}, 10, v{dst}")
def tile_poison(P, r, delta, step):
    v = vL16
    if r == sAHTW:
        ht_voff(vT1); v = vT1
    if delta:
        a(f"s_add_u32 s{sT0}, s{r}, {delta:#x}"); r = sT0
    for f in range(2): a(f"buffer_store_dwordx4 {vr(P,4)}, v{v}, {sr(SWS,4)}, s{r} offen offset:{step*f} sc1")
def canary_poison(P):
    lines = ((sAHTW, 2048+1024+512+128), (sAUW, 896), (sAUW, 1024+896), (sAHTW, HT[1]-HT[0]+2048+1024+512+128),
             (sAUW, U[1]-U[0]+896), (sAUW, U[1]-U[0]+1024+896), (sAPQW, PQ[1]-PQ[0]+1024+896), (sAX2W, 896))
    a(f"v_lshrrev_b32 v{vT0}, 3, v{vL}")
    for g, (r, d) in enumerate(lines):
        a(f"s_add_u32 s{sT0}, s{r}, {d:#x}")
        if g == 0: a(f"v_mov_b32 v{vT1}, s{sT0}")
        else:
            a(f"v_mov_b32 v{vT2}, s{sT0}")
            a(f"v_cmp_eq_u32 vcc, {g}, v{vT0}")
            a(f"v_cndmask_b32 v{vT1}, v{vT1}, v{vT2}, vcc")
    a(f"v_and_b32 v{vT0}, 7, v{vL}")
    a(f"v_lshl_add_u32 v{vT1}, v{vT0}, 4, v{vT1}")
    a(f"buffer_store_dwordx4 {vr(P,4)}, v{vT1}, {sr(SWS,4)}, 0 offen sc1")
def st_poison(P):
    lin(sT0, [(sB, 3072), (sW, 768)], ST[0])
    set_exec((1 << 48) - 1)
    ws_store4(P, sT0)
    set_exec(FULL)
def set_poi(P):
    for i in range(4): a(f"v_mov_b32 v{P+i}, -1")

def misc_loads():
    lin(sT0, [(sST, 64), (sRH, 32)])
    a(f"v_and_b32 v{vT0}, 31, v{vL}")
    a(f"v_add_u32 v{vT0}, s{sT0}, v{vT0}")
    a(f"v_lshlrev_b32 v{vT1}, 1, v{vT0}")
    a(f"buffer_load_ushort v{vB2}, v{vT1}, {sr(SB2,4)}, 0 offen")
    a(f"v_lshlrev_b32 v{vT0}, 10, v{vT0}")
    a(f"v_lshl_add_u32 v{vOUT}, v{vHH}, 4, v{vT0}")
    lin(sT0, [(sDT, 128), (sKH, 32)])
    a(f"v_add_u32 v{vOUT}, s{sT0}, v{vOUT}")
    a(f"buffer_load_dwordx4 {vr(XR,4)}, v{vOUT}, {sr(SX,4)}, 0 offen")
    a(f"buffer_load_dwordx4 {vr(XR+4,4)}, v{vOUT}, {sr(SX,4)}, 0 offen offset:64")

def touch(srdn, rows_per_wave, lg, pitch, scol_emit, dst):
    n = rows_per_wave << lg
    scol_emit()
    a(f"v_min_u32 v{vT0}, {n-1}, v{vL}")
    a(f"v_lshrrev_b32 v{vT1}, {lg}, v{vT0}")
    a(f"v_mul_u32_u24 v{vT1}, {pitch}, v{vT1}")
    a(f"v_and_b32 v{vT0}, {(1<<lg)-1}, v{vT0}")
    a(f"v_lshl_add_u32 v{vT0}, v{vT0}, 7, v{vT1}")
    a(f"s_mul_i32 s{sT5}, s{sWI}, {rows_per_wave*pitch}")
    a(f"s_add_u32 s{sT4}, s{sT4}, s{sT5}")
    a(f"buffer_load_dword {dst}, v{vT0}, {sr(srdn,4)}, s{sT4} offen")
def touch_w1(dst): touch(SCODE, 16, 2, 3584, lambda: a(f"s_lshl_b32 s{sT4}, s{sXC}, 7"), dst)
def touch_w2(dst):
    def c2():
        a(f"s_and_b32 s{sT4}, s{sB}, 7"); a(f"s_lshl_b32 s{sT4}, s{sT4}, 9")
    touch(SW2, 16, 2, 4096, c2, dst)
def touch_w2h(dst, t0):
    a(f"s_lshr_b32 s{sT4}, s{sWI}, 3")
    a(f"s_add_u32 s{sT4}, s{sT4}, s{sROT2}")
    if t0: a(f"s_add_u32 s{sT4}, s{sT4}, {t0}")
    a(f"s_sub_u32 s{sT5}, s{sT4}, 28")
    a(f"s_cselect_b32 s{sT4}, s{sT4}, s{sT5}")
    a(f"s_and_b32 s{sT5}, s{sWI}, 3")
    a(f"s_mul_i32 s{sT5}, s{sT5}, 28")
    a(f"s_add_u32 s{sT4}, s{sT4}, s{sT5}")
    a(f"s_lshl_b32 s{sT4}, s{sT4}, 1")
    a(f"s_bfe_u32 s{sT5}, s{sWI}, 0x10002")
    a(f"s_add_u32 s{sT4}, s{sT4}, s{sT5}")
    a(f"s_lshl_b32 s{sT4}, s{sT4}, 15")
    a(f"s_and_b32 s{sT5}, s{sB}, 7")
    a(f"s_lshl_b32 s{sT5}, s{sT5}, 9")
    a(f"s_add_u32 s{sT4}, s{sT4}, s{sT5}")
    a(f"s_cmp_eq_u32 s{sP3}, 7")
    a(f"s_cselect_b32 s{sT4}, 0x10000000, s{sT4}")
    a(f"v_min_u32 v{vT0}, 31, v{vL}")
    a(f"v_lshrrev_b32 v{vT1}, 2, v{vT0}")
    a(f"v_and_b32 v{vT0}, 3, v{vT0}")
    a(f"v_lshlrev_b32 v{vT0}, 7, v{vT0}")
    a(f"v_lshl_add_u32 v{vT0}, v{vT1}, 12, v{vT0}")
    a(f"buffer_load_dword {dst}, v{vT0}, {sr(SW2,4)}, s{sT4} offen")
def touch_w1h(dst, t0):
    a(f"s_lshr_b32 s{sT4}, s{sWI}, 3")
    a(f"s_add_u32 s{sT4}, s{sT4}, s{sROT1}")
    if t0: a(f"s_add_u32 s{sT4}, s{sT4}, {t0}")
    a(f"s_and_b32 s{sT4}, s{sT4}, 31")
    a(f"s_and_b32 s{sT5}, s{sWI}, 3")
    a(f"s_lshl_b32 s{sT5}, s{sT5}, 5")
    a(f"s_add_u32 s{sT4}, s{sT4}, s{sT5}")
    a(f"s_lshl_b32 s{sT4}, s{sT4}, 1")
    a(f"s_bfe_u32 s{sT5}, s{sWI}, 0x10002")
    a(f"s_add_u32 s{sT4}, s{sT4}, s{sT5}")
    a(f"s_mul_i32 s{sT4}, s{sT4}, {8*3584}")
    a(f"s_lshl_b32 s{sT5}, s{sXC}, 7")
    a(f"s_add_u32 s{sT4}, s{sT4}, s{sT5}")
    a(f"v_min_u32 v{vT0}, 31, v{vL}")
    a(f"v_lshrrev_b32 v{vT1}, 2, v{vT0}")
    a(f"v_and_b32 v{vT0}, 3, v{vT0}")
    a(f"v_lshlrev_b32 v{vT0}, 7, v{vT0}")
    a(f"v_mul_u32_u24 v{vT1}, 3584, v{vT1}")
    a(f"v_add_u32 v{vT0}, v{vT1}, v{vT0}")
    a(f"buffer_load_dword {dst}, v{vT0}, {sr(SCODE,4)}, s{sT4} offen")
def touch_wo(dst): touch(SWO, 4, 3, 1024, lambda: a(f"s_mov_b32 s{sT4}, 0"), dst)
def touches(L, where):
    dst = "a25" if where in (1, 2, 3, 6, 7, 8) else None
    if optL("T1", L, 8, 0) == where: touch_w1(dst + "2" if dst else "v31")
    if optL("T1A", L, 0, 0) == where: touch_w1h(dst + "2" if dst else "v31", 0)
    if optL("T1B", L, 0, 0) == where: touch_w1h(dst + "5" if dst else "v31", 16)
    if optL("T2", L, 0, 0) == where: touch_w2(dst + "3" if dst else "v31")
    if optL("T2H", L, 9, 0) == where: touch_w2h(dst + "3" if dst else "v31", 0)
    if optL("T2G", L, 0, 0) == where: touch_w2h(dst + "3" if dst else "v31", 14)

def split2(dst, src, t0):
    a(f"v_cvt_pk_bf16_f32 v{t0}, v{src}, v{src}")
    a(f"v_and_b32 v{t0}, 0xffff0000, v{t0}")
    a(f"v_sub_f32 v{dst}, v{src}, v{t0}")
    a(f"v_cvt_pk_bf16_f32 v{dst}, v{t0}, v{dst}")

def stats_to_frags(S, Q, RA):
    a(f"v_mul_f32 v{S}, {fl(-1/512)}, v{S}")
    a(f"v_mul_f32 v{Q}, {fl(1/512)}, v{Q}")
    a(f"v_cmp_eq_u32 vcc, 0, v{vHH}")
    a(f"v_fma_f32 v{Q}, -v{S}, v{S}, v{Q}")
    a(f"v_max_f32 v{Q}, 0, v{Q}")
    a(f"v_add_f32 v{Q}, {fl(1e-5)}, v{Q}")
    a(f"v_rsq_f32 v{vRS}, v{Q}")
    a(f"v_cndmask_b32 v{S}, 0, v{S}, vcc")
    a(f"v_cvt_pk_bf16_f32 v{MA}, v{S}, v{S}")
    a(f"v_cndmask_b32 v{Q}, 0, v{vRS}, vcc")
    a(f"v_and_b32 v{vT0}, 0xffff0000, v{MA}")
    a(f"v_sub_f32 v{S}, v{S}, v{vT0}")
    a(f"v_cvt_pk_bf16_f32 v{MA+1}, v{S}, v{S}")
    split2(RA, Q, vT0)

def stats_check(SB):
    a(f"v_max3_u32 v{vT3}, v{SB+1}, v{SB+3}, v{SB+5}")
    a(f"v_max3_u32 v{vT3}, v{vT3}, v{SB+7}, v{SB+9}")
    a(f"v_max3_u32 v{vT3}, v{vT3}, v{SB+11}, v{SB+13}")
    a(f"v_max_u32 v{vT3}, v{vT3}, v{SB+15}")
    a(f"v_cmp_eq_u32 vcc, -1, v{vT3}")
def stats_sum(SB):
    for n in (4, 2, 1):
        for p in range(n): pk("add", SB+2*p, vr(SB+2*p,2), vr(SB+2*(p+n),2))
    a(f"v_mov_b32 v{SB+2}, v{SB}")
    a(f"v_mov_b32 v{SB+3}, v{SB+1}")
    a(f"v_permlane32_swap_b32 v{SB}, v{SB+2}")
    a(f"v_permlane32_swap_b32 v{SB+1}, v{SB+3}")
    pk("add", SB, vr(SB,2), vr(SB+2,2))

@contextmanager
def rare(skip):
    if opt("A1OOL", 1):
        l = a.newlabel("RED")
        a(f"s_cmp_lt_u32 s{sRED}, 64")
        a(f"s_cbranch_scc1 {l}")
        with cold(l, skip): yield
    else:
        a(f"s_cmp_ge_u32 s{sRED}, 64")
        a(f"s_cbranch_scc1 {skip}")
        with cond(): yield
A1B = 128
def a1_issue():
    a(f"s_mov_b32 s{sT3}, s{sKB}")
    for p in range(16):
        a(f"buffer_load_dwordx4 {vr(A1B+4*p,4)}, v{vL16}, {sr(SWS,4)}, s{sT3} offen offset:{(p&1)*2560} sc1")
        if p & 1 and p < 15: a(f"s_add_u32 s{sT3}, s{sT3}, {2*2560}")
def a1_early(L):
    skip = a.newlabel("NOA1E")
    with rare(skip):
        a(f"s_lshr_b32 s{sKB}, s{sRED}, 2")
        a(f"s_mul_i32 s{sKB}, s{sKB}, {16*2560}")
        a(f"s_and_b32 s{sT2}, s{sRED}, 3")
        a(f"s_mul_i32 s{sT2}, s{sT2}, 640")
        a(f"s_add_u32 s{sKB}, s{sKB}, s{sT2}")
        a(f"s_add_u32 s{sKB}, s{sKB}, {KVP[L]:#x}")
        if opt("A1C", 0):
            a(f"v_and_b32 v{vT1}, 15, v{vL}")
            a(f"v_mul_u32_u24 v{vT1}, 2560, v{vT1}")
            a(f"buffer_load_dword v{vT3}, v{vT1}, {sr(SWS,4)}, s{sKB} offen offset:544 sc1")
        else:
            set_exec((1 << 35) - 1)
            a1_issue()
            set_exec(FULL)
    a.label(skip)
def a1_check():
    B = A1B
    a(f"v_max3_u32 v{vT3}, v{B}, v{B+4}, v{B+8}")
    a(f"v_min3_u32 v{vT1}, v{B}, v{B+4}, v{B+8}")
    for p in range(3, 15, 2):
        a(f"v_max3_u32 v{vT3}, v{vT3}, v{B+4*p}, v{B+4*p+4}")
        a(f"v_min3_u32 v{vT1}, v{vT1}, v{B+4*p}, v{B+4*p+4}")
    a(f"v_max_u32 v{vT3}, v{vT3}, v{B+60}")
    a(f"v_min_u32 v{vT1}, v{vT1}, v{B+60}")
    a(f"v_cmp_eq_u32 vcc, -1, v{vT3}")
    a(f"v_readlane_b32 s{sT0}, v{vT3}, 34")
    a(f"v_readlane_b32 s{sT1}, v{vT1}, 34")
    a(f"s_xor_b32 s{sT0}, s{sT0}, s{sNON}")
    a(f"s_xor_b32 s{sT1}, s{sT1}, s{sNON}")
    a(f"s_or_b32 s{sT0}, s{sT0}, s{sT1}")
    a(f"s_or_b32 vcc_lo, vcc_lo, s{sT0}")
    a(f"s_or_b64 vcc, vcc, vcc")
def a1_mid(younger):
    skip = a.newlabel("NOA1M"); ok = a.newlabel("A1MOK")
    a(f"s_cmp_ge_u32 s{sRED}, 64")
    a(f"s_cbranch_scc1 {skip}")
    with cond():
        set_exec((1 << 35) - 1)
        a(f"s_waitcnt vmcnt({younger})")
        a1_check()
        a(f"s_cbranch_vccz {ok}")
        a1_issue()
        a.label(ok)
        set_exec(FULL)
    a.label(skip)
def a1(L, younger):
    a.c("======== A1 reducer")
    skip = a.newlabel("NOA1")
    with rare(skip):
        B = A1B
        a(f"s_mul_i32 s{sT2}, s{sRED}, 384")
        a(f"s_add_u32 s{sT2}, s{sT2}, {KVF[L]:#x}")
        a(f"v_lshlrev_b32 v{vT2}, 3, v{vL}")
        set_exec((1 << 35) - 1)
        def check():
            a(f"v_max3_u32 v{vT3}, v{B}, v{B+4}, v{B+8}")
            a(f"v_min3_u32 v{vT1}, v{B}, v{B+4}, v{B+8}")
            for p in range(3, 15, 2):
                a(f"v_max3_u32 v{vT3}, v{vT3}, v{B+4*p}, v{B+4*p+4}")
                a(f"v_min3_u32 v{vT1}, v{vT1}, v{B+4*p}, v{B+4*p+4}")
            a(f"v_max_u32 v{vT3}, v{vT3}, v{B+60}")
            a(f"v_min_u32 v{vT1}, v{vT1}, v{B+60}")
            a(f"v_cmp_eq_u32 vcc, -1, v{vT3}")
            a(f"v_readlane_b32 s{sT0}, v{vT3}, 34")
            a(f"v_readlane_b32 s{sT1}, v{vT1}, 34")
            a(f"s_xor_b32 s{sT0}, s{sT0}, s{sNON}")
            a(f"s_xor_b32 s{sT1}, s{sT1}, s{sNON}")
            a(f"s_or_b32 s{sT0}, s{sT0}, s{sT1}")
            a(f"s_or_b32 vcc_lo, vcc_lo, s{sT0}")
            a(f"s_or_b64 vcc, vcc, vcc")
        a.vm_done = min(a.vm_done, a.vm - younger - 1)
        if opt("A1C", 0):
            poll(lambda: a(f"buffer_load_dword v{vT3}, v{vT1}, {sr(SWS,4)}, s{sKB} offen offset:544 sc1"),
                 lambda: a(f"v_cmp_ne_u32 vcc, s{sNON}, v{vT3}"), 0x21, pre=a.vm - younger - 1)
            poll(a1_issue, check, 0x20)
        else:
            poll(a1_issue, check, 0x20, pre=a.vm - younger - 1)
        n = 16
        while n > 1:
            n //= 2
            for p in range(n):
                for j in (0, 2): pk("add", B+4*p+j, vr(B+4*p+j,2), vr(B+4*(p+n)+j,2))
        a(f"v_cvt_pk_bf16_f32 v{B+4}, v{B}, v{B+1}")
        a(f"v_cvt_pk_bf16_f32 v{B+5}, v{B+2}, v{B+3}")
        a(f"v_mov_b32_dpp v{B+6}, v{B+4} quad_perm:[1,1,3,3] row_mask:0xf bank_mask:0xf")
        a(f"v_mov_b32_dpp v{B+7}, v{B+5} quad_perm:[1,1,3,3] row_mask:0xf bank_mask:0xf")
        a(f"v_writelane_b32 v{B+4}, s{sNON}, 34")
        set_exec(0x555555555555)
        a(f"buffer_store_dwordx4 {vr(B+4,4)}, v{vT2}, {sr(SWS,4)}, s{sT2} offen sc1")
        set_exec(FULL)
        a("s_nop 1")
    a.label(skip)
    stamp("a1")

XF = 128
def KS(s): return 4 * ((s & 15) >> 1) + (s & 1) + 2 * (s >> 4)
def XFR(L, s): return XF + 4 * (((s + 16) & 31) if L == 1 else s)
xid1 = {}
def xa_XL(s):
    jj = s & 15
    if jj == 0: a(f"s_mov_b32 s{sSO}, s{sT4}")
    elif jj == 8: a(f"s_xor_b32 s{sSO}, s{sT4}, 16384")
    elif jj & 1 == 0: a(f"s_add_u32 s{sSO}, s{sSO}, 4096")
    xid1[s] = a(f"buffer_load_dwordx4 {vr(XFR(1,s),4)}, v{vL16}, {sr(SWS,4)}, s{sSO} offen offset:{(KS(s)&3)*1024} sc1")
vXC = MA + 1
def xa_ci(): return a(f"buffer_load_dword v{vT3}, v{vXC}, {sr(SWS,4)}, s{sAX2R} offen offset:1020 sc1")
def xa_start():
    a(f"s_and_b32 s{sT5}, s{sROTX}, {opt('XROT', 1)}")
    a(f"s_lshl_b32 s{sT5}, s{sT5}, 14")
    a(f"s_add_u32 s{sT4}, s{sAX2R}, s{sT5}")
    a(f"v_and_b32 v{vXC}, 15, v{vL}")
    a(f"v_lshrrev_b32 v{MA+3}, 1, v{vXC}")
    a(f"v_and_b32 v{vXC}, 1, v{vXC}")
    a(f"v_lshlrev_b32 v{vXC}, 10, v{vXC}")
    a(f"v_lshl_add_u32 v{vXC}, v{MA+3}, 12, v{vXC}")
    G["xcid"] = xa_ci()
    for s in range(opt("LA1", 8)): xa_XL(s)
def p1(L):
    ACCK, ACCV, RR = 32, 48, 64
    VV, PK, T1 = 80, 88, 96
    S0, S1, Q0, Q1 = 80, 81, 82, 83
    CF = 84
    CFV, CFQ, RA = 112, 116, 120
    vTQ, vTV = 124, 125
    vW, vXA, vXB = 126, 127, 96
    vCQ, vCV = 97, 98
    vOA, vOB = vTA, vTB
    vTQ2, vTV2 = vTA, vTB
    vKW, vKR = 92, 93
    XA = 88
    vKW2, vKR2 = vT2, 127
    POI = 100
    WFR = 216; NWF = 4; ONESF = 248; CG = 200; CK, CV, CQ = 152, 168, 184
    a.c(f"======== P1 layer {L}")
    xid = {}; wid = {}
    toff = 256
    def addr_setup():
        if L == 0:
            a(f"v_bfe_u32 v{vT0}, v{vL}, 2, 2")
            a(f"v_lshl_add_u32 v{vT0}, v{vHH}, 3, v{vT0}")
            a(f"v_lshlrev_b32 v{vTQ}, 6, v{vT0}")
            a(f"v_bfe_u32 v{vT1}, v{vL}, 4, 1")
            a(f"v_lshl_add_u32 v{vTQ}, v{vT1}, 5, v{vTQ}")
            a(f"v_and_b32 v{vT1}, 3, v{vL}")
            a(f"v_lshl_add_u32 v{vTQ}, v{vT1}, 3, v{vTQ}")
        else:
            a(f"s_and_b32 s{sT5}, s{sROTX}, {opt('XROT', 1)}")
            a(f"s_lshl_b32 s{sT5}, s{sT5}, 14")
            a(f"v_add_u32 v{vTQ}, s{sT5}, v{vL16}")
            a(f"v_xor_b32 v{vTQ2}, 16384, v{vTQ}")
            a(f"v_add_u32 v{vTV2}, 65536, v{vTQ2}")
        a(f"v_add_u32 v{vTV}, 65536, v{vTQ}")
        for i in range(4): a(f"v_accvgpr_write_b32 a{ONESF+i}, s{sONES}")
        for r in ([MA + 2, MA + 3] if L == 0 else []) + [RA + 1, RA + 2, RA + 3, CF + 2, CF + 3, CFV + 2, CFV + 3, CFQ + 2, CFQ + 3]: a(f"v_mov_b32 v{r}, 0")
    def kv_addr():
        a(f"v_bfe_u32 v{vT0}, v{vL}, 4, 1")
        a(f"v_lshl_add_u32 v{vT0}, v{vT0}, 1, v{vHH}")
        a(f"v_mul_u32_u24 v{vT0}, 17, v{vT0}")
        a(f"v_and_b32 v{vT1}, 15, v{vL}")
        a(f"v_add_u32 v{vT0}, v{vT0}, v{vT1}")
        a(f"v_lshlrev_b32 v{vT0}, 5, v{vT0}")
        a(f"v_add_u32 v{vKW2}, s{sWA}, v{vT0}")
        a(f"s_mul_i32 s{sT0}, s{sW}, 544")
        a(f"s_add_u32 s{sT0}, s{sT0}, {L_A + SCR}")
        a(f"v_add_u32 v{vKR2}, s{sT0}, v{vL16}")
    rg = {}
    def RG(s):
        b = WFR + (s % NWF) * 8
        if L == 0:
            o = s * 1024
            a(f"ds_read_b64_tr_b16 {ar(b,2)}, v{vTQ} offset:{32768+o}")
            a(f"ds_read_b64_tr_b16 {ar(b+2,2)}, v{vTQ} offset:{32768+o+toff}")
            a(f"ds_read_b64_tr_b16 {ar(b+4,2)}, v{vTV} offset:{o}")
            rg[s] = a(f"ds_read_b64_tr_b16 {ar(b+6,2)}, v{vTV} offset:{o+toff}")
        else:
            o = (KS(s) & 15) * 1024
            q_, v_ = (vTQ2, vTV2) if KS(s) >= 16 else (vTQ, vTV)
            a(f"ds_read_b128 {ar(b,4)}, v{q_} offset:{32768+o}")
            rg[s] = a(f"ds_read_b128 {ar(b+4,4)}, v{v_} offset:{o}")
    if L == 0:
        a(f"v_lshrrev_b32 v{vT0}, 2, v{vL}")
        a(f"s_lshl_b32 s{sT0}, s{sW}, 4")
        a(f"v_add_u32 v{vT0}, s{sT0}, v{vT0}")
        a(f"v_mul_u32_u24 v{vW}, 3072, v{vT0}")
        a(f"v_and_b32 v{vT0}, 3, v{vL}")
        a(f"v_lshl_add_u32 v{vW}, v{vT0}, 4, v{vW}")
        a(f"s_lshl_b32 s{sT0}, s{sHP}, 6")
        a(f"v_add_u32 v{vW}, s{sT0}, v{vW}")
        lin(sT0, [(sRB, 131072), (sW, 32768)])
        a(f"v_lshrrev_b32 v{vT0}, 3, v{vL}")
        a(f"v_lshlrev_b32 v{vT0}, 10, v{vT0}")
        a(f"v_add_u32 v{vT0}, s{sT0}, v{vT0}")
        a(f"v_and_b32 v{vT1}, 7, v{vL}")
        a(f"v_lshrrev_b32 v{vT2}, 4, v{vL}")
        a(f"v_xor_b32 v{vT1}, v{vT1}, v{vT2}")
        a(f"v_lshl_add_u32 v{vXA}, v{vT1}, 4, v{vT0}")
        a(f"v_xor_b32 v{vXB}, 64, v{vXA}")
        a(f"v_add_u32 v{vXB}, {8192-1024}, v{vXB}")
        a("s_waitcnt lgkmcnt(0)")
        srd(SX, sKA + 0, 2048 * 512 * 2)
        srd(SWQKV, sKA + 2, 512 * 1536 * 2)
        def x_issue(j):
            a(f"s_add_u32 s{sKB}, s{sRX0}, {j}")
            a(f"s_and_b32 s{sKB}, s{sKB}, 7")
            a(f"s_lshl_b32 s{sT1}, s{sKB}, 7")
            a(f"s_add_u32 m0, s{sWB}, {(j&3)*4096}")
            a(f"s_mul_i32 s{sSO}, s{sKB}, {64*3072}")
            a(f"buffer_load_dwordx4 v{vXA}, {sr(SX,4)}, s{sT1} offen lds")
            a(f"buffer_load_dwordx4 v{vXB}, {sr(SX,4)}, s{sT1} offen offset:1024 lds")
            a(f"s_add_u32 m0, s{sWB}, {(j&3)*4096+2048}")
            a(f"s_add_u32 s{sT1}, s{sT1}, 16384")
            a(f"buffer_load_dwordx4 v{vXA}, {sr(SX,4)}, s{sT1} offen lds")
            xid[j] = a(f"buffer_load_dwordx4 v{vXB}, {sr(SX,4)}, s{sT1} offen offset:1024 lds")
        def w_issue(j):
            for seg in (1, 2, 0):
                a(f"s_add_u32 m0, s{sW1K}, {seg*32768 - seg*1024 + j*4096}")
                wid[j] = a(f"buffer_load_dwordx4 v{vW}, {sr(SWQKV,4)}, s{sSO} offen offset:{seg*1024} lds")
        def pieces(j):
            t1, so = (sT1, sSO) if j % 2 == 0 else (sT3, sT4)
            def p0():
                a(f"s_add_u32 s{sKB}, s{sRX0}, {j}")
                a(f"s_and_b32 s{sKB}, s{sKB}, 7")
                a(f"s_lshl_b32 s{t1}, s{sKB}, 7")
                a(f"s_add_u32 m0, s{sWB}, {(j&3)*4096}")
                a(f"s_mul_i32 s{so}, s{sKB}, {64*3072}")
                a(f"buffer_load_dwordx4 v{vXA}, {sr(SX,4)}, s{t1} offen lds")
            def p1_(): a(f"buffer_load_dwordx4 v{vXB}, {sr(SX,4)}, s{t1} offen offset:1024 lds")
            def p2_():
                a(f"s_add_u32 m0, s{sWB}, {(j&3)*4096+2048}")
                a(f"s_add_u32 s{t1}, s{t1}, 16384")
                a(f"buffer_load_dwordx4 v{vXA}, {sr(SX,4)}, s{t1} offen lds")
            def p3_(): xid[j] = a(f"buffer_load_dwordx4 v{vXB}, {sr(SX,4)}, s{t1} offen offset:1024 lds")
            def pw(seg):
                a(f"s_add_u32 m0, s{sW1K}, {seg*32768 - seg*1024 + j*4096}")
                wid[j] = a(f"buffer_load_dwordx4 v{vW}, {sr(SWQKV,4)}, s{so} offen offset:{seg*1024} lds")
            return [p0, p1_, p2_, p3_] + [(lambda seg=seg: pw(seg)) for seg in (1, 2, 0)]
        def wo_issue(c):
            for k in range(2):
                j = 2 * c + k
                a(f"s_add_u32 m0, s{sWB}, {j*2048}")
                if j == 0: a(f"s_lshl_b32 s{sSO}, s{sW}, 17")
                else: a(f"s_add_u32 s{sSO}, s{sSO}, 16384")
                a(f"buffer_load_dwordx4 v{vOA}, {sr(SWO,4)}, s{sSO} offen lds")
                G["wo"] = a(f"buffer_load_dwordx4 v{vOB}, {sr(SWO,4)}, s{sSO} offen offset:1024 lds")
        x_issue(0); w_issue(0)
        srd(SWS, 100, WS_BYTES)
        a(f"buffer_load_dword v{vKW}, off, {sr(SWS,4)}, 0 offset:{NONCE} sc1")
        roles2()
        late_srds()
        x_issue(1); w_issue(1)
        touch_wo("a254")
        code_prefetch()
        touches(0, 6)
        for i in range(4): a(f"v_mov_b32 v{POI+i}, -1")
        addresses()
        addr_setup()
        a(f"v_add_u32 v{vCQ}, s{sW1K}, v{vTQ}")
        a(f"v_add_u32 v{vCV}, s{sW1K}, v{vTV}")
        for r in (S0, S1, Q0, Q1): a(f"v_mov_b32 v{r}, 0")
        a(f"v_and_b32 v{vT0}, 31, v{vL}")
        a(f"v_bfe_u32 v{vT1}, v{vL}, 1, 3")
        a(f"v_xor_b32 v{vT1}, v{vT1}, v{vHH}")
        a(f"v_lshlrev_b32 v{vT0}, 7, v{vT0}")
        a(f"v_add_u32 v{vT0}, s{sWB}, v{vT0}")
        for t in range(4):
            a(f"v_xor_b32 v{vT2}, {2*t}, v{vT1}")
            a(f"v_lshl_add_u32 v{XA+t}, v{vT2}, 4, v{vT0}")
        a(f"s_lshl_b32 s{sT4}, s{sDT}, 7")
        dma_voff(vOA, vOB, 1024, sT4)
        tr_base(vWTA, vWTB, sRH, None, f"s{sWA}")
        pump.setup(1, 0)
        SCHED = {0: {0: [2, 3], 1: [4, 5], 2: [6], 3: [7]}, 1: {0: [2], 1: [3, 4], 2: [5, 6], 3: [7]}, 2: {0: [2, 3, 4], 1: [5], 2: [6], 3: [7]},
                 3: {0: [2], 1: [3], 2: [4], 3: [5], 4: [6], 5: [7]}, 4: {0: [2, 3], 1: [4], 2: [5], 3: [6], 4: [7]}}[opt("SCHED", 0)]
        JL = max(SCHED); SPR = opt("SPR", 1)
        cgid = {}
        def CGr(j):
            o = j * 4096
            a(f"ds_read_b64_tr_b16 {ar(CG,2)}, v{vCQ} offset:{32768+o}")
            a(f"ds_read_b64_tr_b16 {ar(CG+2,2)}, v{vCQ} offset:{32768+o+toff}")
            a(f"ds_read_b64_tr_b16 {ar(CG+4,2)}, v{vCV} offset:{o}")
            a(f"ds_read_b64_tr_b16 {ar(CG+6,2)}, v{vCV} offset:{o+toff}")
            a(f"ds_read_b64_tr_b16 {ar(CG+8,2)}, v{vCQ} offset:{o}")
            cgid[j] = a(f"ds_read_b64_tr_b16 {ar(CG+10,2)}, v{vCQ} offset:{o+toff}")
        def colsum(j):
            a.wait(lg=cgid[j])
            for k, c in enumerate((CK, CV, CQ)):
                mfma(ar(c,16), ar(ONESF,4), ar(CG+4*k,4), "0" if j == 0 else ar(c,16))
        def xreads(j):
            a.wait(vm=xid[j])
            return [a(f"ds_read_b128 {vr(XF+16*j+4*t,4)}, v{XA+t} offset:{(j&3)*4096}") for t in range(4)]
        xr = xreads(0)
        a.wait(vm=wid[0])
        a("s_barrier")
        stamp("p1_first")
        CGr(0); RG(0); RG(1); RG(2)
        colsum(0)
        CPY = 104; CS4 = 96
        initld = None
        for j in range(8):
            for t in range(4):
                a.wait(lg=xr[t])
                for k in range(4 if not opt("XNOD", 0) else 0):
                    r = XF + 16 * j + 4 * t + k
                    a(f"v_dot2_f32_bf16 v{S0+(k&1)}, v{r}, s{sONES}, v{S0+(k&1)}")
                    a(f"v_dot2_f32_bf16 v{Q0+(k&1)}, v{r}, v{r}, v{Q0+(k&1)}")
            if j == 7:
                a(f"s_lshr_b32 s{sT0}, s{sRB}, 1")
                a(f"s_sub_u32 s{sT0}, s{sT0}, s{sRX0}")
                a(f"s_and_b32 s{sT0}, s{sT0}, 7")
                a(f"s_cmp_eq_u32 s{sT0}, 0")
                a(f"s_cselect_b32 s{sT1}, 4096, 0")
                a(f"s_add_u32 s{sT1}, s{sT1}, {L_A}")
                a(f"v_add_u32 v{vT1}, s{sT1}, v{vL16}")
                a(f"v_add_u32 v{vT0}, s{sW1K}, v{vT1}")
                a(f"v_accvgpr_read_b32 v{CS4}, a{CK}")
                a(f"v_accvgpr_read_b32 v{CS4+1}, a{CV}")
                a(f"v_accvgpr_read_b32 v{CS4+2}, a{CQ}")
                cw = a(f"ds_write_b128 v{vT0}, {vr(CS4,4)}")
            for s in range(4 * j, 4 * j + 4):
                t = s & 3
                a.wait(lg=rg[s])
                b = WFR + (s % NWF) * 8
                x = vr(XF + 4 * s, 4)
                mfma(vr(ACCK,16), x, ar(b,4), "0" if s == 0 else vr(ACCK,16))
                if SPR:
                    if t == 0:
                        pq_ = [p for jj in SCHED.get(j, []) for p in pieces(jj)]; per_ = -(-len(pq_) // 7)
                    for _ in range(per_):
                        if pq_: pq_.pop(0)()
                if s + 3 < 32: RG(s + 3)
                if t == 1 and j < 7 and not opt("XNOC", 0): CGr(j + 1)
                if t == 2 and j < 7: xr = xreads(j + 1)
                if j == 7 and t == 1:
                    for w in range(4): cr = a(f"ds_read_b128 {vr(RR+4*w,4)}, v{vT1} offset:{1024*w}")
                    a(f"s_lshl_b32 s{sT0}, s{sT0}, 12")
                    a(f"s_and_b32 s{sT1}, s{sRB}, 1")
                    a(f"s_lshl_b32 s{sT1}, s{sT1}, 11")
                    a(f"s_add_u32 s{sT0}, s{sT0}, s{sT1}")
                    a(f"s_min_u32 s{sT2}, s{sW}, 2")
                    a(f"s_lshl_b32 s{sT2}, s{sT2}, 15")
                    a(f"s_add_u32 s{sT0}, s{sT0}, s{sT2}")
                    a(f"v_lshlrev_b32 v{vT1}, 8, v{vHH}")
                    a(f"v_sub_u32 v{vT0}, v{vTQ}, v{vT1}")
                    a(f"v_add_u32 v{vT0}, s{sT0}, v{vT0}")
                    for k in range(4): cp = a(f"ds_read_b64_tr_b16 {vr(CPY+2*k,2)}, v{vT0} offset:{512*k}")
                if j == 7 and t == 2:
                    a.wait(lg=cr)
                    for k in range(3):
                        a(f"v_add_f32 v{RR+k}, v{RR+k}, v{RR+4+k}")
                        a(f"v_add_f32 v{RR+8+k}, v{RR+8+k}, v{RR+12+k}")
                if j == 7 and t == 3:
                    split2(CKP, RR, vT0)
                    split2(CVP, RR + 1, vT1)
                mfma(vr(ACCV,16), x, ar(b+4,4), "0" if s == 0 else vr(ACCV,16))
                if t == 0:
                    if j < 7: a.wait(vm=wid[j + 1])
                    else: a.wait(lg=cw)
                    a("s_barrier")
                    if j == 1:
                        a(f"v_add_u32 v{vKW}, 1, v{vKW}")
                        a(f"v_and_b32 v{vKW}, 0x3fffffff, v{vKW}")
                        a(f"v_or_b32 v{vKW}, 0x40000000, v{vKW}")
                        a(f"v_readfirstlane_b32 s{sNON}, v{vKW}")
                if SPR:
                    for _ in range(per_ if t < 3 else 99):
                        if pq_: pq_.pop(0)()
                elif t <= 2 and j in SCHED and t < len(SCHED[j]):
                    x_issue(SCHED[j][t]); w_issue(SCHED[j][t])
                if t == 1 and j >= 4 and opt("WOP", 1) == 0: wo_issue(j - 4)
                if t == 3 and j == JL:
                    if opt("MISC", 0) == 0: misc_loads()
                    touches(0, 8)
                if t == 1 and j == 6 and opt("MISC", 0) == 1: misc_loads()
                if t == 3 and opt("SLOTST", 0) and j in (0, 1, 2, 3, 5): stamp(f"it{j}")
                if t == 2:
                    if j == 3: touches(0, 7)
                    if j == opt("POJ", 2):
                        st_poison(POI); kv_poison(POI, 0); canary_poison(POI)
                    if j == 6: kv_addr()
                    if j == opt("POJ", 2) + 1:
                        tile_poison(POI, sAPQW, 0, 1024); initld = a.vm - 1
                    if j == 7:
                        for k in range(3): a(f"v_add_f32 v{RR+k}, v{RR+k}, v{RR+8+k}")
                        a(f"s_lshl_b32 s{sT1}, s{sRB}, 11")
                        a(f"s_add_u32 s{sT3}, s{sAWQT}, s{sT2}")
                        a(f"s_add_u32 s{sT3}, s{sT3}, s{sT1}")
                        a.wait(lg=cp)
                        ws_store4(CPY, sT3); ws_store4(CPY + 4, sT3, 1024)
                if t == 3 and j < 7 and not opt("XNOC", 0): colsum(j + 1)
        stamp("p1_gemm")
        a(f"v_add_f32 v{S0}, v{S0}, v{S1}")
        a(f"v_add_f32 v{Q0}, v{Q0}, v{Q1}")
        a(f"v_mov_b32 v{S1}, v{S0}")
        a(f"v_mov_b32 v{Q1}, v{Q0}")
        for c, p in ((CF, CKP), (CFV, CVP)):
            a(f"v_mov_b32 v{c}, v{p}"); a(f"v_mov_b32 v{c+1}, v{p}")
        a(f"v_permlane32_swap_b32 v{S0}, v{S1}")
        a(f"v_permlane32_swap_b32 v{Q0}, v{Q1}")
        a(f"v_add_f32 v{S0}, v{S0}, v{S1}")
        a(f"v_add_f32 v{Q0}, v{Q0}, v{Q1}")
        split2(CQP, RR + 2, vT1)
        stats_to_frags(S0, Q0, RA)
        mfma(vr(ACCK,16), vr(MA,4), vr(CF,4), vr(ACCK,16))
        mfma(vr(RR,16), vr(RA,4), ar(ONESF,4), "0")
        mfma(vr(ACCV,16), vr(MA,4), vr(CFV,4), vr(ACCV,16))
        touches(0, 1)
    else:
        xid = xid1; XL = xa_XL; ci = xa_ci
        LA = opt("LA1", 8)
        vMX = vW
        cc = lambda: a(f"v_cmp_eq_u32 vcc, -1, v{vT3}")
        def windowa():
            for s in range(LA): XL(s)
        def windowb():
            for s in range(16, 16 + LA): XL(s)
        if opt("XE", 0) == 0: xa_start()
        cid = max(G["xcid"], G["kvlast"])
        addr_setup()
        next_layer_addresses()
        for c, p in ((CF, CKP), (CFV, CVP)):
            a(f"v_mov_b32 v{c}, v{p}"); a(f"v_mov_b32 v{c+1}, v{p}")
        a(f"v_and_b32 v{vT0}, 31, v{vL}")
        a(f"v_lshlrev_b32 v{vT0}, 3, v{vT0}")
        a(f"v_lshl_add_u32 v{PK+1}, v{vHH}, 12, v{vT0}")
        a(f"s_lshl_b32 s{sT2}, s{sW}, 13")
        a(f"s_add_u32 s{sKB}, s{sAWQT}, s{sT2}")
        a(f"s_mov_b32 s{sT1}, s{sT4}")
        pump.setup(1, 1)
        a(f"s_mov_b32 s{sT4}, s{sT1}")
        a(f"v_mov_b32 v{MA+2}, 0"); a(f"v_mov_b32 v{MA+3}, 0")
        go = a.newlabel("XGO"); redo = a.newlabel("XREDO")
        IDMAPS.append(xid)
        a.wait(vm=cid)
        cc()
        keep = snapshot_ids()
        fallback(ci, cc, 0x41, windowa, "fb41")
        restore_ids(keep)
        a("s_barrier")
        stamp("p1_flag")
        with cold(redo, go):
            windowa()
            a("s_waitcnt vmcnt(0)")
        restore_ids(keep)
        a.label(go)
        RG(0); RG(1); RG(2)
        a(f"v_mov_b32 v{vMX}, 0")
        a(f"s_mov_b32 s{sT3}, s{sKB}")
        SB = T1
        def issue():
            for p in range(8): a(f"buffer_load_dwordx2 {vr(SB+2*p,2)}, v{PK+1}, {sr(SWS,4)}, s{sAS2R} offen offset:{p*512} sc1")
        qid = None
        LA = opt("LA1", 8)
        ZS = opt("ZS", 13); nb = [16]
        assert ZS + LA >= 16
        for s in range(32):
            if s == 16:
                stamp("p1_a")
                if ZS < 16:
                    a.wait(vm=sid)
                    stats_check(SB)
                    keep = snapshot_ids()
                    fallback(issue, lambda: stats_check(SB), 0x40, windowb, "fb40", last=(xid[16], xid[16 + LA - 1]))
                    restore_ids(keep)
                else:
                    spec(issue, lambda: stats_check(SB), windowb, 0x40, a.newlabel("XR0"))
                stamp("p1_st2")
                stats_sum(SB)
                stats_to_frags(SB, SB + 1, RA)
                mfma(vr(RR,16), vr(RA,4), ar(ONESF,4), "0")
                mfma(vr(ACCK,16), vr(MA,4), vr(CF,4), vr(ACCK,16))
                mfma(vr(ACCV,16), vr(MA,4), vr(CFV,4), vr(ACCV,16))
            a.wait(vm=xid[s], lg=rg[s])
            b = WFR + (s % NWF) * 8
            x = vr(XFR(1, s), 4)
            mfma(vr(ACCK,16), x, ar(b,4), "0" if s == 0 else vr(ACCK,16))
            if s == ZS:
                issue(); sid = a.vm - 1
            if ZS < s < 16:
                per = -(-LA // (15 - ZS))
                for _ in range(per):
                    if nb[0] < 16 + LA: XL(nb[0]); nb[0] += 1
            if (s & 15) + LA < 16: XL(s + LA)
            if s >= 24:
                j = s - 24
                if j == 4: a(f"s_add_u32 s{sT3}, s{sT3}, 4096")
                if j & 3 == 0: a(f"s_add_u32 m0, s{sT2}, {j*1024}")
                qid = a(f"buffer_load_dwordx4 v{vL16}, {sr(SWS,4)}, s{sT3} offen offset:{(j&3)*1024} sc1 lds")
            mfma(vr(ACCV,16), x, ar(b+4,4), "0" if s == 0 else vr(ACCV,16))
            if s & 1: a(f"v_max3_u32 v{vMX}, v{vMX}, v{XFR(1,s-1)}, v{XFR(1,s)}")
            if s + 3 < 32: RG(s + 3)
            if s == 30: kv_addr()
        verify(vMX, redo)
        stamp("p1_gemm")
    for q in range(8): pk("fma", ACCK+2*q, vr(ACCK+2*q,2), vr(RR+2*q,2), sr(sEPS6,2), hi=[1,1,0])
    for q in range(8): pk("mul", T1+2*q, vr(ACCK+2*q,2), sr(sL2E,2), hi=[1,0])
    for i in range(16):
        a(f"v_exp_f32_e64 v{T1+i}, v{T1+i} clamp")
        a(f"v_max_f32 v{ACCK+i}, s{sEPS6}, v{ACCK+i}")
    for q in range(8): pk("add", ACCK+2*q, vr(ACCK+2*q,2), vr(T1+2*q,2))
    for q in range(8): a(f"v_cvt_pk_bf16_f32 v{PK+q}, v{ACCK+2*q}, v{ACCK+2*q+1}")
    ZA = T1
    for q in range(4): pk("mul", ACCV+2*q, vr(ACCV+2*q,2), vr(RR+2*q,2))
    for q in range(4, 8): pk("mul", ACCV+2*q, vr(ACCV+2*q,2), vr(RR+2*q,2))
    mfma(vr(ZA,16), vr(PK,4), ar(ONESF,4), "0")
    for q in range(4): a(f"v_cvt_pk_bf16_f32 v{VV+q}, v{ACCV+2*q}, v{ACCV+2*q+1}")
    mfma(vr(ZA,16), vr(PK+4,4), ar(ONESF,4), vr(ZA,16))
    for q in range(4, 8): a(f"v_cvt_pk_bf16_f32 v{VV+q}, v{ACCV+2*q}, v{ACCV+2*q+1}")
    KVA = RR
    a(f"v_and_b32 v{vT0}, 16, v{vL}")
    a(f"v_cmp_ne_u32 vcc, 0, v{vT0}")
    mfma(vr(KVA,16), vr(PK,4), vr(VV,4), "0")
    mfma(vr(KVA,16), vr(PK+4,4), vr(VV+4,4), vr(KVA,16))
    a("s_barrier")
    for j in range(8): a(f"v_cndmask_b32 v{ACCK+8+j}, v{ZA+j}, v{ZA+8+j}, vcc")
    set_exec(0x0001000100010001)
    a(f"ds_write_b128 v{vKW2}, {vr(ACCK+8,4)} offset:{SCR+512}")
    a(f"ds_write_b128 v{vKW2}, {vr(ACCK+12,4)} offset:{SCR+528}")
    set_exec(FULL)
    for j in range(4): a(f"v_cndmask_b32 v{ACCK+j}, v{KVA+j}, v{KVA+8+j}, vcc")
    a(f"ds_write_b128 v{vKW2}, {vr(ACCK,4)} offset:{SCR}")
    for j in range(4, 8): a(f"v_cndmask_b32 v{ACCK+j}, v{KVA+j}, v{KVA+8+j}, vcc")
    a(f"ds_write_b128 v{vKW2}, {vr(ACCK+4,4)} offset:{SCR+16}")
    if L == 0: a.wait(vm=initld)
    NQ = 8; QLA = 6
    rq = {}
    def RQ(s):
        b = WFR + (s % NQ) * 4
        if L == 0:
            a(f"ds_read_b64_tr_b16 {ar(b,2)}, v{vTQ} offset:{s*1024}")
            rq[s] = a(f"ds_read_b64_tr_b16 {ar(b+2,2)}, v{vTQ} offset:{s*1024+toff}")
        else:
            ks = KS((s + 16) & 31)
            rq[s] = a(f"ds_read_b128 {ar(b,4)}, v{vTQ2 if ks >= 16 else vTQ} offset:{(ks&15)*1024}")
    QB = L == 1 and opt("QB", 1)
    if L == 1 and not QB: a.wait(vm=qid)
    a.wait_lg_all()
    a("s_barrier")
    for w in range(4): kr = a(f"ds_read_b128 {vr(RR+4*w,4)}, v{vKR2} offset:{16384*w}")
    if not QB:
        for s in range(QLA): RQ(s)
    a(f"v_mov_b32 v{CFQ}, v{CQP}"); a(f"v_mov_b32 v{CFQ+1}, v{CQP}")
    ACCQ = ACCK
    mfma(vr(ACCQ,16), vr(CFQ,4), vr(MA,4), "0")
    a.wait(lg=kr)
    for j in range(4): a(f"v_add_f32 v{RR+j}, v{RR+j}, v{RR+4+j}")
    for j in range(4): a(f"v_add_f32 v{RR+8+j}, v{RR+8+j}, v{RR+12+j}")
    for j in range(4): a(f"v_add_f32 v{RR+j}, v{RR+j}, v{RR+8+j}")
    set_exec((1 << 40) - 1)
    a(f"v_writelane_b32 v{RR}, s{sNON}, 34")
    ws_store4(RR, sAKVP)
    set_exec(FULL)
    stamp("p1_kvpub")
    if QB:
        a.wait(vm=qid)
        a("s_barrier")
        for s in range(QLA): RQ(s)
    touches(L, 2)
    nfill = optL("F0", L, 0, 0); assert nfill <= 6
    for s in range(32):
        a.wait(lg=rq[s])
        b = WFR + (s % NQ) * 4
        mfma(vr(ACCQ,16), ar(b,4), vr(XF+4*s,4), vr(ACCQ,16))
        if s + QLA < 32: RQ(s + QLA)
        if s % 3 == 1 and pump.i < pump.c + nfill: pump.fill(pump.i + 1)
        if L == 0 and opt("WOP", 1) == 1 and s % 8 == 0: wo_issue(s // 8)
        if optL("POIQ", L, 1, 1):
            if s == 2: set_poi(VV)
            if s == 3: tile_poison(VV, sAHTW, 0, 2048)
            if s == 6: tile_poison(VV, sAUW, 0, 1024)
        if s == opt("A1S", 31):
            a1_early(L); vm_a1 = a.vm
        if s == opt("A1M", 99):
            a1_mid(a.vm - vm_a1); vm_a1 = a.vm
    for h in range(2):
        for q in range(4*h, 4*h+4): pk("fma", ACCQ+2*q, vr(ACCQ+2*q,2), vr(vRS,2), sr(sEPS6,2), hi=[1,0,0])
        for q in range(4*h, 4*h+4): pk("mul", T1+2*q, vr(ACCQ+2*q,2), sr(sL2E,2), hi=[1,0])
        for i in range(8*h, 8*h+8):
            a(f"v_exp_f32_e64 v{T1+i}, v{T1+i} clamp")
            a(f"v_max_f32 v{ACCQ+i}, s{sEPS6}, v{ACCQ+i}")
        for q in range(4*h, 4*h+4): pk("add", ACCQ+2*q, vr(ACCQ+2*q,2), vr(T1+2*q,2))
        for q in range(4*h, 4*h+4): a(f"v_cvt_pk_bf16_f32 v{PK+q}, v{ACCQ+2*q}, v{ACCQ+2*q+1}")
        ws_store4(PK + 4 * h, sAPQW, 1024 * h)
        if opt("A1S", 31) == 32 + h:
            a1_early(L); vm_a1 = a.vm
    if L == 0:
        for k in range(4): a(f"v_mov_b32 v{T1+k}, s{sNON}")
        a(f"s_sub_u32 s{sT0}, s{sAPQW}, {PQ[0]:#x}")
        a(f"s_lshr_b32 s{sT0}, s{sT0}, 4")
        a(f"s_add_u32 s{sT0}, s{sT0}, {TAGQ:#x}")
        set_exec(0xff)
        ws_store4(T1, sT0)
        set_exec(FULL)
    stamp("p1_q")
    if opt("NS1", 6) > 6: a("s_barrier")
    a1(L, a.vm - vm_a1)
    if L == 0 and opt("MISC", 0) == 2: misc_loads()
    G["misc"] = a.vm - 1
    pump.fill(pump.c + optL("F1", L, 6, 5))
    touches(L, 3)

def row_stats_publish(soff, SM):
    a(f"v_dot2_f32_bf16 v{SM}, v{XR}, s{sONES}, 0")
    a(f"v_dot2_f32_bf16 v{SM+1}, v{XR}, v{XR}, 0")
    a(f"v_dot2_f32_bf16 v{SM+2}, v{XR+1}, s{sONES}, 0")
    a(f"v_dot2_f32_bf16 v{SM+3}, v{XR+1}, v{XR+1}, 0")
    for j in range(2, 8):
        o = 2 * (j & 1)
        a(f"v_dot2_f32_bf16 v{SM+o}, v{XR+j}, s{sONES}, v{SM+o}")
        a(f"v_dot2_f32_bf16 v{SM+o+1}, v{XR+j}, v{XR+j}, v{SM+o+1}")
    a(f"v_lshlrev_b32 v{vT0}, 3, v{vL}")
    pk("add", SM, vr(SM,2), vr(SM+2,2))
    a(f"v_mov_b32 v{SM+2}, v{SM}")
    a(f"v_mov_b32 v{SM+3}, v{SM+1}")
    a(f"v_permlane32_swap_b32 v{SM}, v{SM+2}")
    a(f"v_permlane32_swap_b32 v{SM+1}, v{SM+3}")
    pk("add", SM, vr(SM,2), vr(SM+2,2))
    a(f"s_mov_b32 exec_hi, 0")
    a(f"v_and_b32 v{SM+1}, 0x7fffffff, v{SM+1}")
    a(f"buffer_store_dwordx2 {vr(SM,2)}, v{vT0}, {sr(SWS,4)}, s{soff} offen sc1")
    set_exec(FULL)

def unpack_xr(XU):
    for j in range(8):
        a(f"v_lshlrev_b32 v{XU+2*j}, 16, v{XR+j}")
        a(f"v_and_b32 v{XU+2*j+1}, 0xffff0000, v{XR+j}")

def p2(L):
    a.c(f"======== P2 layer {L}")
    if opt("CRF", 0) & (8 << L): code_refetch(vr(60, 4))
    KF, QF = 128, 192
    ACC = 32; CR = 64; OF = 96; WF = 104; XU = 64
    vK, vKC, vMX = MA, MA + 1, MA + 2
    tr_base(vTA, vTB, None, sKH, L_B)
    a(f"s_lshl_b32 s{sT2}, s{sKH}, 15")
    a(f"v_add_u32 v{vTA}, s{sT2}, v{vTA}")
    a(f"v_add_u32 v{vTB}, s{sT2}, v{vTB}")
    a(f"v_and_b32 v{vT0}, 31, v{vL}")
    a(f"v_mul_u32_u24 v{vKC}, 384, v{vT0}")
    a(f"v_min_u32 v{vT0}, 16, v{vT0}")
    a(f"v_lshlrev_b32 v{vT0}, 4, v{vT0}")
    a(f"v_mul_u32_u24 v{vT1}, 384, v{vHH}")
    a(f"v_add_u32 v{vK}, v{vT0}, v{vT1}")
    a(f"v_and_b32 v{vT2}, 7, v{vL}")
    a(f"v_lshlrev_b32 v{vT2}, {11 if L else 7}, v{vT2}")
    if L == 0:
        a(f"s_sub_u32 s{sT0}, s{sAPQR}, {PQ[0]:#x}")
        a(f"s_lshr_b32 s{sT0}, s{sT0}, 4")
        a(f"s_add_u32 s{sT0}, s{sT0}, {TAGQ:#x}")
    pump.run(min(R1 + 5, optL("B1", L, 21, 21)), refill=bool(optL("B1R", L, 1, 1)))
    if optL("POIQ", L, 1, 1) == 0:
        set_poi(CR)
        tile_poison(CR, sAHTW, 0, 2048)
        tile_poison(CR, sAUW, 0, 1024)
    stamp("beta")
    def ldq():
        a(f"s_mov_b32 s{sT4}, s{sAPQR}")
        for j in range(16):
            a(f"buffer_load_dwordx4 {vr(QF+4*j,4)}, v{vL16}, {sr(SWS,4)}, s{sT4} offen offset:{(j&3)*1024} sc1")
            if j & 3 == 3 and j < 15: a(f"s_add_u32 s{sT4}, s{sT4}, 4096")
    if L == 1:
        ci = lambda: a(f"buffer_load_dword v{vT3}, v{vT2}, {sr(SWS,4)}, s{sAPQR} offen offset:2044 sc1")
        cc = lambda: a(f"v_cmp_eq_u32 vcc, -1, v{vT3}")
    else:
        ci = lambda: a(f"buffer_load_dword v{vT3}, v{vT2}, {sr(SWS,4)}, s{sT0} offen sc1")
        cc = lambda: a(f"v_cmp_ne_u32 vcc, s{sNON}, v{vT3}")
    spec(ci, cc, ldq, 0x36 + L, a.newlabel("PQR"), on=opt("SPEC", 15) & 4)
    stamp("p2_pqc")
    if L == 0:
        a.wait(vm=max(G['wo'], G['misc']))
        for q in range(2):
            a(f"v_permlane32_swap_b32 v{XR+4*q}, v{XR+4*q+2}")
            a(f"v_permlane32_swap_b32 v{XR+4*q+1}, v{XR+4*q+3}")
        a(f"v_lshlrev_b32 v{vB2}, 16, v{vB2}")
    pump.run(min(R1 + 5, pump.i), refill=False)
    pump.run(min(R1 + 5, optL("B2", L, 0, 0)), refill=False)
    pump.fill(pump.c + optL("FK", L, 0, 0))
    a(f"s_xor_b32 s{sT0}, s{sW}, 1")
    a(f"s_lshl_b32 s{sT0}, s{sT0}, 12")
    a(f"v_add_u32 v{vRS}, s{sT0}, v{vL16}")
    a.wait_lg_all()
    a("s_barrier")
    rw = {}
    def RW(j):
        b = WF + (j % 3) * 8
        a(f"ds_read_b64_tr_b16 {vr(b,2)}, v{vTA} offset:{j*2048}")
        a(f"ds_read_b64_tr_b16 {vr(b+2,2)}, v{vTA} offset:{j*2048+1024}")
        a(f"ds_read_b64_tr_b16 {vr(b+4,2)}, v{vTB} offset:{j*2048}")
        rw[j] = a(f"ds_read_b64_tr_b16 {vr(b+6,2)}, v{vTB} offset:{j*2048+1024}")
    lid = {}
    def LD(j):
        if j == 0: a(f"s_mov_b32 s{sSO}, s{sAKVF}")
        elif j & 3 == 0: a(f"s_add_u32 s{sSO}, s{sSO}, {4*768}")
        lid[j] = a(f"buffer_load_dwordx4 {vr(KF+4*j,4)}, v{vK}, {sr(SWS,4)}, s{sSO} offen offset:{(j&3)*768} sc1")
    PLA = optL("PLA", L, 10, 10)
    redo = a.newlabel("P2REDO"); redo2 = a.newlabel("P2REDO2")
    IDMAPS.append(lid)
    with cold(redo, redo2): ldq()
    def window():
        for j in range(PLA): LD(j)
    spec(lambda: a(f"buffer_load_dword v{vT3}, v{vKC}, {sr(SWS,4)}, s{sAKVF} offen offset:272 sc1"),
         lambda: a(f"v_cmp_ne_u32 vcc, s{sNON}, v{vT3}"), window, 0x38 + L, redo2, on=opt("SPEC", 15) & 2)
    stamp("p2_kvc")
    RW(0); RW(1)
    a(f"v_mov_b32 v{vMX}, 0")
    def M1(j):
        a.wait(vm=lid[j])
        mfma(vr(CR+(j&1)*16,16), vr(KF+4*j,4), vr(QF+4*j,4), "0")
        a(f"v_max3_u32 v{vMX}, v{vMX}, v{KF+4*j}, v{QF+4*j}")
        if j + PLA < 16: LD(j + PLA)
        if j + PLA == 16: touches(L, 9)
    def Va(j):
        c = CR + (j & 1) * 16
        a(f"v_add_f32 v{c+8}, s{sEPS6}, v{c+8}")
        a(f"v_rcp_f32 v{c+8}, v{c+8}")
    def Vb(j):
        c = CR + (j & 1) * 16; o = OF + (j & 1) * 4
        for i in range(4): a(f"v_mul_f32 v{c+i}, v{c+i}, v{c+8}")
        for i in range(2): a(f"v_cvt_pk_bf16_f32 v{o+i}, v{c+2*i}, v{c+2*i+1}")
    def Vc(j):
        c = CR + (j & 1) * 16; o = OF + (j & 1) * 4
        for i in range(4, 8): a(f"v_mul_f32 v{c+i}, v{c+i}, v{c+8}")
        for i in range(2, 4): a(f"v_cvt_pk_bf16_f32 v{o+i}, v{c+2*i}, v{c+2*i+1}")
    M1(0); M1(1)
    Va(0); Vb(0); Vc(0); M1(2)
    nfp = optL("FP2", L, 6, 6)
    kb_saved = False
    for j in range(16):
        o = OF + (j & 1) * 4; b = WF + (j % 3) * 8
        if j + 1 < 16: Va(j + 1)
        a.wait(lg=rw[j])
        mfma(vr(ACC+16,16), vr(b+4,4), vr(o,4), "0" if j == 0 else vr(ACC+16,16))
        if j + 1 < 16: Vb(j + 1)
        mfma(vr(ACC,16), vr(b,4), vr(o,4), "0" if j == 0 else vr(ACC,16))
        if j + 1 < 16: Vc(j + 1)
        if j + 3 < 16: M1(j + 3)
        if j + 2 < 16: RW(j + 2)
    verify(vMX, redo)
    stamp("p2_main")
    lin(sT0, [(sFT, 128), (sRH, 64), (sKH, 32)])
    a(f"v_lshlrev_b32 v{vT0}, 3, v{vHH}")
    for q in range(2): a(f"buffer_load_dwordx2 {vr(152+2*q,2)}, v{vT0}, {sr(SB1,4)}, s{sT0} offen offset:{16*q}")
    for q, r in enumerate((ACC + 24, ACC + 28, ACC + 8, ACC + 12)): a(f"ds_write_b128 v{vRS}, {vr(r,4)} offset:{(q^2)*1024}")
    unpack_xr(XU)
    a(f"v_xor_b32 v{vT1}, 4096, v{vRS}")
    for q in range(4): pk("add", ACC+16+2*q, vr(ACC+16+2*q,2), vr(XU+8+2*q,2))
    for q in range(4): pk("add", ACC+2*q, vr(ACC+2*q,2), vr(XU+2*q,2))
    a.wait_lg_all()
    a("s_barrier")
    own = (ACC, ACC + 4, ACC + 16, ACC + 20)
    ids = [a(f"ds_read_b128 {vr(XU+4*q,4)}, v{vT1} offset:{q*1024}") for q in range(4)]
    for q in range(4):
        a.wait(lg=ids[q])
        pk("add", own[q], vr(own[q],2), vr(XU+4*q,2))
        pk("add", own[q]+2, vr(own[q]+2,2), vr(XU+4*q+2,2))
        a(f"v_cvt_pk_bf16_f32 v{XR+2*q}, v{own[q]}, v{own[q]+1}")
        a(f"v_cvt_pk_bf16_f32 v{XR+2*q+1}, v{own[q]+2}, v{own[q]+3}")
    row_stats_publish(sASTW, OF)
    stamp("p2_stpub")
    pump.run(pump.i, refill=False)
    pump.fill(pump.c + optL("GF", L, 6, 4))
    unpack_xr(XU)
    IDF = 104
    a(f"v_and_b32 v{vT0}, 31, v{vL}")
    a(f"v_lshlrev_b32 v{vT1}, 2, v{vHH}")
    a(f"v_sub_u32 v{vT0}, v{vT0}, v{vT1}")
    a(f"v_mov_b32 v{vT3}, 0x3f80")
    for f in range(2):
        for c in range(4):
            base = 16 * f + ((2 * c) & 3) + 8 * (c >> 1)
            a(f"v_subrev_u32 v{vT1}, {base}, v{vT0}")
            a(f"v_cmp_gt_u32 vcc, 2, v{vT1}")
            a(f"v_lshlrev_b32 v{vT1}, 4, v{vT1}")
            a(f"v_lshlrev_b32 v{vT2}, v{vT1}, v{vT3}")
            a(f"v_cndmask_b32 v{IDF+4*f+c}, 0, v{vT2}, vcc")
    SB = 128
    ht_voff(vRS)
    a(f"v_and_b32 v{vT0}, 31, v{vL}")
    a(f"v_lshlrev_b32 v{vT0}, 3, v{vT0}")
    a(f"v_lshl_add_u32 v{vT2}, v{vHH}, 12, v{vT0}")
    a(f"v_mov_b32 v{SB+18}, {fl(1.0+1e-5)}")
    def issue():
        for p in range(8): a(f"buffer_load_dwordx2 {vr(SB+2*p,2)}, v{vT2}, {sr(SWS,4)}, s{sASTR} offen offset:{p*512} sc1")
    if OPT.get(f"SL{0x34+L:x}", 0): a(f"s_sleep {OPT.get(f'SL{0x34+L:x}', 0)}")
    poll(issue, lambda: stats_check(SB), 0x34 + L)
    stamp("p2_stats")
    if optL("SF", L, 3, 3):
        pump.run(pump.i, refill=False)
        pump.fill(pump.c + optL("SF", L, 3, 3))
    stats_sum(SB)
    a(f"v_mul_f32 v{SB}, {fl(-1/512)}, v{SB}")
    a(f"v_mul_f32 v{SB+1}, {fl(1/512)}, v{SB+1}")
    a(f"v_fma_f32 v{SB+1}, -v{SB}, v{SB}, v{SB+1}")
    a(f"v_max_f32 v{SB+1}, 0, v{SB+1}")
    a(f"v_fmaak_f32 v{SB+1}, v{SB+1}, v{SB+18}, {fl(1e-10)}")
    a(f"v_rsq_f32 v{SB+2}, v{SB+1}")
    a(f"v_mul_f32 v{SB}, v{SB}, v{SB+2}")
    HP_ = 112
    for f in range(2):
        for j in range(4*f, 4*f+4):
            pk("fma", XU+2*j, vr(XU+2*j,2), vr(SB+2,2), vr(SB,2), hi=[1,0,0])
    for f in range(2):
        for j in range(4*f, 4*f+4):
            a(f"v_cvt_pk_bf16_f32 v{HP_+j}, v{XU+2*j}, v{XU+2*j+1}")
        mfma(vr(ACC,16), vr(HP_+4*f,4), vr(IDF+4*f,4), "0" if f == 0 else vr(ACC,16))
    for f in range(2):
        for j in range(4): a(f"v_cvt_pk_bf16_f32 v{ACC+16+4*f+j}, v{ACC+8*f+2*j}, v{ACC+8*f+2*j+1}")
        a(f"buffer_store_dwordx4 {vr(ACC+16+4*f,4)}, v{vRS}, {sr(SWS,4)}, s{sAHTW} offen offset:{2048*f} sc1")
    touches(L, 5)
    if L == 0:
        sk = a.newlabel("NONW"); nw = a.newlabel("NONC")
        a(f"s_cmp_lg_u32 s{sWI}, 0")
        a(f"s_cselect_b32 s{sT0}, 1, s{sB}")
        a(f"s_cmp_eq_u32 s{sT0}, 0")
        a(f"s_cbranch_scc1 {nw}")
        with cold(nw, sk):
            a(f"v_mov_b32 v{vT0}, s{sNON}")
            set_exec(1)
            a(f"buffer_store_dword v{vT0}, off, {sr(SWS,4)}, 0 offset:{NONCE} sc1")
            set_exec(FULL)
        a.label(sk)
    stamp(f"p2_{L}")

RING = 96; AUX = 144; NRH = 12
vR1, vR2, vR3, vRA = vT0, vT1, vT2, vRS
LKH = opt("LKH", 9)
class Half:
    def __init__(self, kind, hf, g0):
        self.kind, self.hf, self.g0 = kind, hf, g0
        self.nks, self.srot, self.sbase = (32, sROT1, sAHTR) if kind == 1 else (28, sROT2, sAUR)
        self.vA, self.vC = (vTA, MA + 1) if kind == 1 else (vTB, MA + 2)
        self.vMX = MA
        self.ids = {}; self.cid = None
        IDMAPS.append(self.ids)
    def rb(self, s): return RING + ((self.g0 + s) % NRH) * 4
    def LD(self, s):
        if s == 0: a(f"s_lshl_b32 s{sSO}, s{self.srot}, 11")
        elif s & 1 == 0:
            a(f"s_add_u32 s{sSO}, s{sSO}, 4096")
            a(f"s_cmp_eq_u32 s{sSO}, {self.nks*2048}")
            a(f"s_cselect_b32 s{sSO}, 0, s{sSO}")
        self.ids[s] = a(f"buffer_load_dwordx4 {vr(self.rb(s),4)}, v{self.vA}, {sr(SWS,4)}, s{sSO} offen offset:{(s&1)*2048+self.hf*1024} sc1")
    def window(self):
        for s in range(LKH): self.LD(s)
    def can_issue(self):
        off = 2048 + 1024 + 512 + 252 if self.kind == 1 else self.hf * 1024 + 1020
        self.cid = a(f"buffer_load_dword v{vT3}, v{self.vC}, {sr(SWS,4)}, s{self.sbase} offen offset:{off} sc1")
    def can_check(self): a(f"v_cmp_eq_u32 vcc, -1, v{vT3}")
    def MF(self, s, acc):
        A0 = 32 + 32 * self.hf
        wf = wreg(self.kind, s, 4 * acc, 4); af = vr(self.rb(s), 4)
        c = "0" if s == 0 else vr(A0 + 16 * acc, 16)
        A_, B_ = (wf, af) if self.kind == 1 else (af, wf)
        mfma(vr(A0+16*acc,16), A_, B_, c)
    def steps(self, redo, nxt=None, hook=None, force=True):
        n = self.nks; nk = [0]
        a(f"v_mov_b32 v{self.vMX}, 0")
        for s in range(n):
            if hook: hook(s, 0)
            a.wait(vm=self.ids[s])
            self.MF(s, 1)
            if s + LKH < n: self.LD(s + LKH)
            elif nxt is not None:
                nxd = min(LKH, opt("NXD", LKH)) if nxt.kind == 2 else LKH
                if s + nxd == n and nxt.kind == 2: nxt.can_issue()
                if s + nxd >= n:
                    per = -(-LKH // nxd)
                    for _ in range(per):
                        if nk[0] < LKH: nxt.LD(nk[0]); nk[0] += 1
            if s & 1: a(f"v_max3_u32 v{self.vMX}, v{self.vMX}, v{self.rb(s-1)}, v{self.rb(s)}")
            self.MF(s, 0)
            if hook: hook(s, 1)
        verify(self.vMX, redo, force=force)
    def run(self, nxt=None, hook=None):
        lab = a.newlabel("PLAIN"); back = a.newlabel("BACK")
        OOL.append((self, nxt, lab, back))
        self.steps(lab, nxt, hook)
        a.label(back)
    def scr(self, k):
        if self.hf == 0: return 0, k * 2048
        if k < 2: return 1, SCR + k * 2048
        return 0, 6144
    def writes(self):
        A0 = 32 + 32 * self.hf
        for k in (1, 2, 0):
            src = (A0 + 8, A0 + 16, A0 + 24)[k]
            area, o = self.scr(k)
            r = (vR1, vR2, vR3)[k]
            if area == 1:
                a(f"v_lshl_add_u32 v{AUX+10+k}, v{r}, 1, v{AUX+9}"); r = AUX + 10 + k
            for q in range(2): a(f"ds_write_b128 v{r}, {vr(src+4*q,4)} offset:{o+q*1024}")
    def reads(self):
        D = 64 - 32 * self.hf
        if self.hf == 1: a(f"v_lshl_add_u32 v{AUX+10}, v{vRA}, 1, v{AUX+9}")
        a.wait_lg_all()
        a("s_barrier")
        ids = {}
        for q in range(2):
            for k in range(3):
                area, o = self.scr(k)
                ids[(q, k)] = a(f"ds_read_b128 {vr(D+8*k+4*q,4)}, v{AUX+10 if area else vRA} offset:{o+q*1024}")
        A0 = 32 + 32 * self.hf
        for q in range(2):
            a.wait(lg=ids[(q, 1)])
            for j in (0, 2): pk("add", D+4*q+j, vr(D+4*q+j,2), vr(D+8+4*q+j,2))
            a.wait(lg=ids[(q, 2)])
            for j in (0, 2): pk("add", A0+4*q+j, vr(A0+4*q+j,2), vr(D+16+4*q+j,2))
            for j in (0, 2): pk("add", A0+4*q+j, vr(A0+4*q+j,2), vr(D+4*q+j,2))
    def woven(self, D):
        A0 = 32 + 32 * self.hf
        ops = []
        ids = {}
        wl = a.lg - 1
        def bar():
            if self.hf == 1: a(f"v_lshl_add_u32 v{AUX+10}, v{vRA}, 1, v{AUX+9}")
            a.wait(lg=wl); a("s_barrier")
        ops.append(bar)
        def rd(q, k):
            area, o = self.scr(k)
            ids[(q, k)] = a(f"ds_read_b128 {vr(D+8*k+4*q,4)}, v{AUX+10 if area else vRA} offset:{o+q*1024}")
        for q in range(2):
            for k in range(3): ops.append(lambda q=q, k=k: rd(q, k))
        ops.append(None); ops.append(None); ops.append(None)
        for q in range(2):
            for k in range(3):
                for j in range(4):
                    def ad(q=q, k=k, j=j):
                        a.wait(lg=ids[(q, k)])
                        a(f"v_add_f32 v{A0+4*q+j}, v{A0+4*q+j}, v{D+8*k+4*q+j}")
                    ops.append(ad)
        return ops
    def late_check(self, code):
        a.wait(vm=self.cid)
        self.can_check()
        keep = snapshot_ids(); cid = self.cid
        lo, hi = self.ids[0], self.ids[LKH - 1]
        fallback(self.can_issue, self.can_check, code, self.window, f"fb{code:x}", last=(lo, hi) if hi - lo == LKH - 1 else None)
        restore_ids(keep); self.cid = cid
OOL = []
def mix_setup():
    a(f"v_add_u32 v{vTA}, s{sAHTR}, v{vL16}")
    a(f"v_min_u32 v{vT0}, 31, v{vL}")
    a(f"v_lshrrev_b32 v{vT1}, 1, v{vT0}")
    a(f"v_and_b32 v{vT0}, 1, v{vT0}")
    a(f"v_lshlrev_b32 v{vT0}, 8, v{vT0}")
    a(f"v_lshl_add_u32 v{MA+1}, v{vT1}, 12, v{vT0}")
    a(f"s_lshl_b32 s{sT0}, s{sKH}, 8")
    a(f"v_xor_b32 v{vTB}, s{sT0}, v{vL16}")
    a(f"v_add_u32 v{vTB}, s{sAUR}, v{vTB}")
    a(f"v_min_u32 v{MA+2}, 27, v{vL}")
    a(f"v_lshlrev_b32 v{MA+2}, 11, v{MA+2}")
    for acc, r in ((1, vR1), (2, vR2), (3, vR3)):
        a(f"s_xor_b32 s{sT0}, s{sW}, {acc}")
        a(f"s_lshl_b32 s{sT0}, s{sT0}, 13")
        a(f"v_add_u32 v{r}, s{sT0}, v{vL16}")
    a(f"s_lshl_b32 s{sT0}, s{sW}, 13")
    a(f"v_add_u32 v{vRA}, s{sT0}, v{vL16}")
    a(f"v_sub_u32 v{AUX+9}, {L_A}, v{vL16}")

def p34(L):
    a.c(f"======== P3 layer {L}")
    if opt("CRF", 0) & (2 << L): code_refetch(vr(60, 4))
    B1R = AUX
    pump.run(pump.i, refill=True)
    pump.run(32)
    a.wait_lg_all()
    if L == 1: a("s_barrier")
    pump.setup(2, L, extra=optL("XB", L, 0, 8))
    pump.run(optL("V2", L, 5, 0), refill=False)
    pump.fill(pump.c + optL("V2F", L, 0, 8))
    assert pump.c <= R2
    if L == 0: a("s_barrier")
    for j in range(4):
        a(f"v_lshlrev_b32 v{B1R+2*j}, 16, v{152+j}")
        a(f"v_and_b32 v{B1R+2*j+1}, 0xffff0000, v{152+j}")
    mix_setup()
    K1 = -2.0 * 0.7978845608028654 * LOG2E
    a(f"v_mov_b32 v{AUX+8}, {fl(K1)}")
    SPX = optL("SPX", L, 1, 1)
    h3a = Half(1, 0, 0); h3b = Half(1, 1, 32); h4a = Half(2, 0, 64); h4b = Half(2, 1, 92)
    stamp("p3_delta")
    idle = a.newlabel("P3IDLE"); join = a.newlabel("P3JOIN")
    pst = (pump.i, pump.c, dict(pump.vid), dict(pump.lid))
    a(f"s_cmp_eq_u32 s{sP3}, 7")
    a(f"s_cbranch_scc1 {idle}")
    IDN = optL("IDT", L, 18, 0)
    WE3 = optL("WE3", L, 0, 0) and SPX
    ntail = optL("V2T", L, 0, 0); nepi = optL("V2E", L, 6, 3)
    def gelu_store(hf):
        A0 = 32 + 32 * hf; T = A0 + 16
        for q in range(4): pk("mul", T+2*q, vr(A0+2*q,2), vr(A0+2*q,2))
        for q in range(4): pk("fma", T+2*q, vr(T+2*q,2), sr(sT2,2), vr(AUX+8,2), hi=[1,0,0])
        for q in range(4): pk("mul", T+2*q, vr(T+2*q,2), vr(A0+2*q,2))
        for i in range(8): a(f"v_exp_f32 v{T+i}, v{T+i}")
        for q in range(4): pk("add", T+2*q, vr(T+2*q,2), "1.0", hi=[1,0])
        for i in range(8): a(f"v_rcp_f32 v{T+i}, v{T+i}")
        for q in range(4): pk("mul", A0+2*q, vr(A0+2*q,2), vr(T+2*q,2))
        for q in range(4): a(f"v_cvt_pk_bf16_f32 v{T+8+q}, v{A0+2*q}, v{A0+2*q+1}")
        ws_store4(T + 8, sAUW, 1024 * hf)
    with cond():
        a(f"s_mov_b32 s{sT2}, s{sGK}")
        spec(h3a.can_issue, h3a.can_check, h3a.window, 0x50 + L, a.newlabel("SREDO"))
        stamp("canary")
        h3a.run(nxt=h3b)
        stamp("gemm_a")
        h3a.writes()
        pump.fill(pump.i + nepi)
        for q in range(4): pk("add", 32+2*q, vr(32+2*q,2), vr(B1R+2*q,2))
        h3a.reads()
        gelu_store(0)
        stamp("epi_a")
        i0 = pump.i
        def hk(s, k):
            if k == 1 and s + LKH >= 32 and (s & 1) and pump.i < i0 + ntail: pump.fill(pump.i + 1)
        h3b.run(nxt=h4a if SPX else None, hook=hk)
        assert ntail <= 5
        stamp("gemm_b")
        h3b.writes()
        n2 = pump.i
        nmid = pump.i
        if optL("EB", L, 1, 0): pump.run(pump.i if optL("EB", L, 1, 0) == 2 else min(R2, pump.i), refill=False, tmp=(AUX + 14, AUX + 15))
        cact = pump.c
        pump.fill(pump.i + optL("V2E2", L, 4, 3))
        nact = pump.i; n2 = nact - n2
        if not WE3:
            for q in range(4): pk("add", 64+2*q, vr(64+2*q,2), vr(B1R+2*q,2))
            h3b.reads()
            gelu_store(1)
        else: a.wait_lg_all()
        if SPX: h4a.late_check(0x60 + L)
        a("s_nop 1")
    main_out = a.out; a.out = []
    a.label(idle)
    pump.i, pump.c, pump.vid, pump.lid = pst
    if IDN:
        a(f"v_lshrrev_b32 v{RING}, 2, v{vL}")
        a(f"v_lshlrev_b32 v{RING}, 12, v{RING}")
        a(f"v_and_b32 v{RING+1}, 3, v{vL}")
        a(f"v_lshl_add_u32 v{RING}, v{RING+1}, 7, v{RING}")
        a(f"s_bfe_u32 s{sT0}, s{sWI}, 0x20002")
        a(f"s_mul_i32 s{sT0}, s{sT0}, {28*65536}")
        a(f"s_and_b32 s{sT1}, s{sB}, 7")
        a(f"s_lshl_b32 s{sT1}, s{sT1}, 9")
        a(f"s_add_u32 s{sT0}, s{sT0}, s{sT1}")
        a(f"v_add_u32 v{RING}, s{sT0}, v{RING}")
        a(f"s_add_u32 s{sT1}, s{sW}, s{sROT2}")
        a(f"s_add_u32 s{sT1}, s{sT1}, {28 - IDN}")
        for k in range((IDN + 3) // 4):
            a(f"s_sub_u32 s{sT2}, s{sT1}, 28")
            a(f"s_cselect_b32 s{sT1}, s{sT1}, s{sT2}")
            a(f"s_lshl_b32 s{sT2}, s{sT1}, 16")
            a(f"buffer_load_dword v31, v{RING}, {sr(SW2,4)}, s{sT2} offen")
            a(f"s_add_u32 s{sT1}, s{sT1}, 4")
    nlate = n2 if SPX else 0
    pump.fill(nmid)
    if SPX:
        poll(h4a.can_issue, h4a.can_check, 0x5e)
        h4a.window()
    pump.run(cact, refill=False, tmp=(AUX + 14, AUX + 15))
    pump.fill(nact)
    a("s_nop 1")
    a(f"s_branch {join}")
    COLD.extend(a.out); a.out = main_out
    a.label(join)
    a.hist = []
    stamp(f"p3_{L}")
    a.c(f"======== P4 layer {L}")
    if L == 0 and opt("CRF", 0) & 1: code_refetch(vr(60, 4))
    if L == 0:
        set_poi(56)
        tile_poison(56, sAX2W, 0, 2048)
        tile_poison(56, sAPQW, PQ[1] - PQ[0], 1024)
        kv_poison(56, 1)
    cinit = pst[1]
    NKT = opt("NKT", 10)
    def kvdma(j):
        if j == 0: a(f"s_add_u32 s{sT3}, s{sAWQT}, s{sWA}")
        if j & 3 == 0:
            a(f"s_add_u32 m0, s{sWA}, {j*1024}")
            if j: a(f"s_add_u32 s{sT3}, s{sT3}, 4096")
        return a(f"buffer_load_dwordx4 v{vL16}, {sr(SWS,4)}, s{sT3} offen offset:{(j&3)*1024} sc1 lds")
    if SPX:
        WV = opt("WV", 2); AH = optL("AH", L, 3, 4)
        pump.run(min(pump.i, pump.c + optL("PRE", L, 0, 0)), tmp=(AUX, AUX + 1))
        landed = pump.i; c0 = pump.c
        w3 = []
        if WE3:
            w3 = h3b.woven(72)
            w3 = w3[:7] + [(lambda j=j: a(f"v_add_f32 v{64+j}, v{64+j}, v{B1R+j}")) for j in range(8)] + w3[10:]
            T = 72
            for i in range(8): w3.append(lambda i=i: a(f"v_mul_f32 v{T+i}, v{64+i}, v{64+i}"))
            for i in range(8): w3.append(lambda i=i: a(f"v_fma_f32 v{T+i}, v{T+i}, s{sGK}, v{AUX+8}"))
            for i in range(8): w3.append(lambda i=i: a(f"v_mul_f32 v{T+i}, v{T+i}, v{64+i}"))
            for i in range(8): w3.append(lambda i=i: a(f"v_exp_f32 v{T+i}, v{T+i}"))
            for i in range(8): w3.append(lambda i=i: a(f"v_add_f32 v{T+i}, 1.0, v{T+i}"))
            for i in range(8): w3.append(lambda i=i: a(f"v_rcp_f32 v{T+i}, v{T+i}"))
            for i in range(8): w3.append(lambda i=i: a(f"v_mul_f32 v{64+i}, v{64+i}, v{T+i}"))
            for q in range(4): w3.append(lambda q=q: a(f"v_cvt_pk_bf16_f32 v{80+q}, v{64+2*q}, v{64+2*q+1}"))
            w3.append(lambda: ws_store4(80, sAUW, 1024))
        W3S = opt("W3S", 4)
        def hk(s, k):
            for _ in range(W3S):
                if w3:
                    f = w3.pop(0)
                    if f: f()
            if k == 1:
                lim = max(min(landed, c0 + WV * (s + 1)), min(28, s + AH))
                pump.run(lim, tmp=(AUX, AUX + 1), first=(s == 0))
            if k == 0 and s >= cinit:
                assert pump.c > s
                if not opt("NOPUMP", 0): a.wait(lg=pump.lid[s])
        h4a.run(nxt=h4b, hook=hk)
        assert not w3
    else:
        pump.run(28, tmp=(AUX, AUX + 1))
        stamp("p4_w2")
        a.wait_lg_all()
        spec(h4a.can_issue, h4a.can_check, h4a.window, 0x60 + L, a.newlabel("SREDO"))
        stamp("canary")
        h4a.run(nxt=h4b)
    stamp("gemm_a")
    def resid(hf):
        A0 = 32 + 32 * hf; XU = AUX
        for j in range(4):
            a(f"v_lshlrev_b32 v{XU+2*j}, 16, v{XR+4*hf+j}")
            a(f"v_and_b32 v{XU+2*j+1}, 0xffff0000, v{XR+4*hf+j}")
        for q in range(4): pk("add", XU+2*q, vr(XU+2*q,2), vr(vB2-1,2), lo=[0,1], hi=[1,1])
        for q in range(4): pk("add", A0+2*q, vr(A0+2*q,2), vr(XU+2*q,2))
    def out(hf):
        A0 = 32 + 32 * hf
        for q in range(4): a(f"v_cvt_pk_bf16_f32 v{XR+4*hf+q}, v{A0+2*q}, v{A0+2*q+1}")
        if L == 0: ws_store4(XR + 4 * hf, sAX2W, 2048 * hf)
        else:
            a(f"v_permlane32_swap_b32 v{XR+4*hf}, v{XR+4*hf+2}")
            a(f"v_permlane32_swap_b32 v{XR+4*hf+1}, v{XR+4*hf+3}")
            a(f"buffer_store_dwordx4 {vr(XR+4*hf,4)}, v{vOUT}, {sr(SOUT,4)}, 0 offen offset:{64*hf}")
    wv = []
    if optL("WE4", L, 1, 1):
        h4a.writes()
        wv = h4a.woven(40)
        XU = AUX
        pre = []
        for j in range(4):
            pre.append(lambda j=j: a(f"v_lshlrev_b32 v{XU+2*j}, 16, v{XR+j}"))
            pre.append(lambda j=j: a(f"v_and_b32 v{XU+2*j+1}, 0xffff0000, v{XR+j}"))
        for j in range(8): pre.append(lambda j=j: a(f"v_add_f32 v{32+j}, v{32+j}, v{vB2}"))
        for j in range(8): wv.append(lambda j=j: a(f"v_add_f32 v{32+j}, v{32+j}, v{XU+j}"))
        wv = pre[:8] + wv[:1] + wv[1:7] + pre[8:] + wv[10:]
        wv.append(lambda: out(0))
    else:
        h4a.writes(); resid(0); h4a.reads(); out(0)
    h4b.late_check(0x62 + L)
    stamp("epi_a")
    kc = [0]
    WPS = opt("WPS", 2)
    def hk(s, k):
        for _ in range(WPS if k == 1 else WPS - 1):
            if wv:
                f = wv.pop(0)
                if f: f()
        if L == 0 and k == 1 and s + LKH >= 28 and kc[0] < NKT:
            kvdma(kc[0]); kc[0] += 1
    h4b.run(hook=hk)
    assert not wv
    stamp("gemm_b")
    if L == 0 and opt("XE", 0) == 1: xa_start()
    h4b.writes()
    if L == 0 and opt("XE", 0) == 2: xa_start()
    if L == 0 and opt("KE", 2):
        while kc[0] < 12: kvdma(kc[0]); kc[0] += 1
    resid(1); h4b.reads()
    if L == 0 and opt("KE", 2) == 2:
        while kc[0] < 16: G["kvlast"] = kvdma(kc[0]); kc[0] += 1
    out(1)
    if L == 0:
        row_stats_publish(sAS2W, 32)
        for j in range(kc[0], 16): G["kvlast"] = kvdma(j)
    stamp(f"p4_{L}")

def emit_ool():
    for h, nxt, lab, back in OOL:
        a.label(lab)
        a.hist = []
        a.vm_done = a.vm
        h.window()
        h.steps(lab, force=False)
        if nxt is not None:
            if nxt.kind == 2: nxt.can_issue()
            nxt.window()
            a("s_waitcnt vmcnt(0)")
        a("s_nop 15")
        a(f"s_branch {back}")

prologue()
for L in range(2):
    p1(L); p2(L); p34(L)
finish()
a.out.extend(COLD); COLD.clear()
a.label("L_END")
emit_ool()
a.out.extend(COLD)
a.label("L_EXIT")
a("s_endpgm")

hdr = open(f"ref.s").read().split("; Override launch")[0]
def wrap(body): return hdr + f"""; @launch grid=(256,1,1) block=(256,1,1) lds={LDS_BYTES}
.amdgcn_target "amdgcn-amd-amdhsa--gfx950"
.text
.globl {NAME}_kernel
.p2align 8
.type {NAME}_kernel,@function
{NAME}_kernel:
""" + body + f""".section .rodata,"a"
.p2align 6
.amdhsa_kernel {NAME}_kernel
  .amdhsa_next_free_vgpr 512
  .amdhsa_next_free_sgpr 102
  .amdhsa_accum_offset 256
  .amdhsa_group_segment_fixed_size 0
  .amdhsa_kernarg_size 88
  .amdhsa_user_sgpr_count 2
  .amdhsa_user_sgpr_kernarg_segment_ptr 1
  .amdhsa_system_sgpr_workgroup_id_x 1
  .amdhsa_float_denorm_mode_32 3
.end_amdhsa_kernel
"""
lines = a.out
if opt("ALN", 32):
    from align import align
    lines, st = align(lines, wrap, B=opt("ALN", 32), NOPC=opt("NOPC", 150))
    print("align: straddles %d -> %d, widened %d, bytes %d -> %d" % st, file=sys.stderr)
out = wrap("\n".join(lines) + "\n")
outp = [x for x in sys.argv[1:] if x.endswith(".s")]
open(outp[0], "w").write(out)
if DIAG: open(outp[0] + ".stamps", "w").write("\n".join(stamp_names))
open(outp[0] + ".sites", "w").write(" ".join(site_names))
```
